```python
import torch

def _softmax(x, axis=-1):
    return torch.softmax(x, dim=axis)
def _gelu(x):
    return torch.nn.functional.gelu(x, approximate="tanh")
def _silu(x):
    return torch.nn.functional.silu(x)
def _sigmoid(x):
    return torch.sigmoid(x)
def _layernorm(x, axis=-1, eps=1e-5):
    m = x.mean(dim=axis, keepdim=True)
    v = x.var(dim=axis, keepdim=True, unbiased=False)
    return (x - m) / torch.sqrt(v + eps)
def _scatter_add(tgt, idx, src, axis=0):
    return tgt.clone().index_add_(axis, idx, src)
def _segment_sum(src, seg, n):
    out = torch.zeros((n,) + src.shape[1:], dtype=src.dtype)
    return out.index_add_(0, seg, src)
def _pad(x, pw):
    flat = tuple(v for pair in reversed(pw) for v in pair)
    return torch.nn.functional.pad(x, flat)

kernel_name = 'concat_heads__softmax_full_mha__mha_block__prompt'

def setup_inputs():

    _w = (lambda a: (lambda t: t.to(torch.bfloat16) if t.is_floating_point() else t)(torch.as_tensor(a)))
    def _A_setup():
        B, S, D = 1, 2048, 512
        return {
            "x": _w((lambda *s: torch.randn(*s, dtype=torch.bfloat16) * 0.2)(B, S, D)),
            "wqkv": _w((lambda *s: torch.randn(*s, dtype=torch.bfloat16) * 0.2)(D, 3 * D)),
            "wo": _w((lambda *s: torch.randn(*s, dtype=torch.bfloat16) * 0.05)(D, D)),
        }
    _A_in = _A_setup()

    def _B_setup():
        B, S, D, H = 1, 2048, 512, 32
        return {
            "x": _w((lambda *s: torch.randn(*s, dtype=torch.bfloat16) * 0.2)(B, S, D)),
            "wqkv": _w((lambda *s: torch.randn(*s, dtype=torch.bfloat16) * 0.2)(D, 3 * D)),
            "wo": _w((lambda *s: torch.randn(*s, dtype=torch.bfloat16) * 0.05)(D, D)),
        }
    _B_in = _B_setup()

    return {
        "A_x": _A_in["x"],
        "A_wqkv": _A_in["wqkv"],
        "A_wo": _A_in["wo"],
        "B_x": _B_in["x"],
        "B_wqkv": _B_in["wqkv"],
        "B_wo": _B_in["wo"],
    }

def reference(A_x, A_wqkv, A_wo, B_x, B_wqkv, B_wo):
    def _A_ref(x, wqkv, wo):
        B, S, D = x.shape
        H = 32; Dh = D // H
        qkv = (lambda x, *d: x.permute(*d))((x @ wqkv).reshape(B, S, 3, H, Dh), 2, 0, 3, 1, 4)
        q, k, v = qkv[0], qkv[1], qkv[2]
        scale = Dh ** -0.5
        scores = torch.einsum("bhqd,bhkd->bhqk", q, k) * scale
        p = _softmax(scores, axis=-1)
        o = torch.einsum("bhqk,bhkd->bhqd", p, v)
        return (lambda x, *d: x.permute(*d))(o, 0, 2, 1, 3).reshape(B, S, D) @ wo

    def _B_ref(x, wqkv, wo):
        B, S, D = x.shape
        H = 32
        Dh = D // H
        qkv = (lambda x, *d: x.permute(*d))((x @ wqkv).reshape(B, S, 3, H, Dh), 2, 0, 3, 1, 4)
        q, k, v = qkv[0], qkv[1], qkv[2]
        scores = torch.einsum("bhqd,bhkd->bhqk", q, k) * (Dh ** -0.5)
        p = _softmax(scores, axis=-1)
        o = torch.einsum("bhqk,bhkd->bhqd", p, v)
        return (lambda x, *d: x.permute(*d))(o, 0, 2, 1, 3).reshape(B, S, D) @ wo

    a = _A_ref(A_x, A_wqkv, A_wo)
    b = _B_ref(B_x, B_wqkv, B_wo)
    return torch.concatenate([a, b], axis=-1)
```

```python
NAME = "concat_heads__softmax_full_mha__mha_block__prompt"

WS_Q  = 0
WS_KV = 4 << 20
WS_O  = 12 << 20
WS_STAMP = 32 << 20

class Asm:
    def __init__(self):
        self.lines = []
    def __call__(self, s=""):
        for l in s.split("\n"):
            self.lines.append(l)
    def i(self, s):
        self.lines.append("    " + s)
    def label(self, s):
        self.lines.append(s + ":")
    def text(self):
        return "\n".join(self.lines) + "\n"

def vr(a, n):
    return f"v[{a}:{a+n-1}]" if n > 1 else f"v{a}"
def sr(a, n):
    return f"s[{a}:{a+n-1}]" if n > 1 else f"s{a}"
def ar(a, n):
    return f"a[{a}:{a+n-1}]" if n > 1 else f"a{a}"

def kernel_head(a, name):
    a(f".text\n.globl {name}\n.p2align 8\n.type {name},@function")
    a.label(name)

def kernel_desc(a, name, nvgpr, accum=None, nsgpr=96):
    accum = accum if accum is not None else (nvgpr + 3) // 4 * 4
    a(f""".section .rodata,"a"
.p2align 6
.amdhsa_kernel {name}
  .amdhsa_next_free_vgpr {nvgpr}
  .amdhsa_next_free_sgpr {nsgpr}
  .amdhsa_accum_offset {accum}
  .amdhsa_group_segment_fixed_size 0
  .amdhsa_kernarg_size 72
  .amdhsa_user_sgpr_count 2
  .amdhsa_user_sgpr_kernarg_segment_ptr 1
  .amdhsa_system_sgpr_workgroup_id_x 1
.end_amdhsa_kernel""")

def srd(a, d, base, size_imm, off_s=None):
    if off_s is None:
        a.i(f"s_mov_b32 s{d}, s{base}")
        a.i(f"s_mov_b32 s{d+1}, s{base+1}")
    else:
        a.i(f"s_add_u32 s{d}, s{base}, {off_s}")
        a.i(f"s_addc_u32 s{d+1}, s{base+1}, 0")
    a.i(f"s_mov_b32 s{d+2}, {size_imm}")
    a.i(f"s_mov_b32 s{d+3}, 0x20000")
```

```python
import math, struct
from common import *

WS_FLAG = 16 << 20
SLOT = 45056; SLOT_W = 32768
RING = 32768
L_WO = 65536
L_CONST = 135168
L_QX = 155648
LDS_TOTAL = 163840
S_X, S_W, S_WO, S_KV, S_O, S_FL, S_DBG, S_OUT = 8, 12, 16, 20, 24, 28, 32, 36
S_WAVE, S_BR, S_HP, S_TB, S_IT, S_T0, S_T1, S_T2, S_T3 = 40, 41, 42, 43, 44, 45, 46, 47, 48
S_A, S_B, S_C, S_D, S_E, S_F = 49, 50, 51, 52, 53, 54
S_M = 56
V_L16, V_KA, V_VA, V_VX, V_IDX, V_T0, V_T1 = 1, 2, 3, 4, 5, 6, 7
V_Q = [8, 12]; V_K = 16; V_V = [20, 28]; V_S = [36, 52]; V_O = [68, 84]
V_F = 241
V_FA = 242
V_WOA = 243
V_ACC = 100
V_FR = [196, 216]
V_XA = 236; V_WA = 240
NVGPR = 256
QSCALE = struct.unpack('<I', struct.pack('<f', 0.25 * math.log2(math.e)))[0]
SPIN_MAX = 1 << 20

class G:
    def __init__(self, opt):
        self.a = Asm(); self.opt = opt; self.diag = opt.get('diag', 0)
    def i(self, s): self.a.i(s)
    def lab(self, s): self.a.label(s)
    def stamp(self, k):
        if self.diag:
            self.i(f"s_memtime s[{64+4*k}:{65+4*k}]")
            self.i(f"s_memrealtime s[{66+4*k}:{67+4*k}]")

def spin(g, tag, load, want, nlanes_mask=None):
    g.i(f"s_mov_b32 s{S_T3}, 0")
    g.lab(f"L_spin_{tag}")
    g.i(load)
    g.i(f"s_add_u32 s{S_T3}, s{S_T3}, 1")
    g.i("s_waitcnt vmcnt(0)")
    g.i(f"v_cmp_ne_u32 vcc, {want}, v{V_F}")
    g.i(f"s_cmp_ge_u32 s{S_T3}, {SPIN_MAX}")
    g.i(f"s_cbranch_scc1 L_spun_{tag}")
    g.i(f"s_cbranch_vccnz L_spin_{tag}")
    g.lab(f"L_spun_{tag}")

def entry(g, name):
    a = g.a
    kernel_head(a, name)
    g.i("s_cmp_ge_u32 s2, 256")
    g.i("s_cbranch_scc1 L_end")
    g.stamp(0)
    g.i(f"s_bfe_u32 s{S_BR}, s2, 0x10002")
    g.i(f"s_mul_i32 s{S_T0}, s{S_BR}, 24")
    g.i(f"s_load_dwordx4 s[{S_M}:{S_M+3}], s[0:1], s{S_T0}")
    g.i(f"s_load_dwordx2 s[{S_M+4}:{S_M+5}], s[0:1], s{S_T0} offset:16")
    g.i("s_load_dwordx4 s[4:7], s[0:1], 48")
    g.i(f"s_load_dwordx2 s[{S_M+6}:{S_M+7}], s[0:1], 64")
    g.i("v_lshrrev_b32 v6, 6, v0")
    g.i("v_and_b32 v0, 63, v0")
    g.i(f"v_readfirstlane_b32 s{S_WAVE}, v6")
    g.i(f"v_lshlrev_b32 v{V_L16}, 4, v0")
    g.i(f"s_and_b32 s{S_HP}, s2, 3")
    g.i(f"s_lshl_b32 s{S_HP}, s{S_HP}, 2")
    g.i(f"s_bfe_u32 s{S_T0}, s2, 0x20003")
    g.i(f"s_add_u32 s{S_HP}, s{S_HP}, s{S_T0}")
    g.i(f"s_lshr_b32 s{S_TB}, s2, 5")
    g.i(f"s_lshl_b32 s{S_T0}, s{S_TB}, 18")
    g.i(f"s_lshl_b32 s{S_T1}, s{S_BR}, 4")
    g.i(f"s_add_u32 s{S_T1}, s{S_T1}, s{S_HP}")
    g.i(f"s_lshl_b32 s{S_T2}, s{S_T1}, 18")
    g.i(f"s_add_u32 s{S_T2}, s{S_T2}, {WS_KV}")
    g.i(f"s_lshl_b32 s{S_T3}, s{S_BR}, 21")
    g.i(f"s_add_u32 s{S_T3}, s{S_T3}, {WS_O}")
    g.i("s_waitcnt lgkmcnt(0)")
    srd(a, S_X, S_M, 256 * 1024, f"s{S_T0}")
    srd(a, S_W, S_M + 2, 512 * 1536 * 2)
    g.i(f"s_cmp_ge_u32 s{S_WAVE}, 4")
    g.i("s_cbranch_scc1 L_loader")

def late_srds(g):
    a = g.a
    srd(a, S_WO, S_M + 4, 512 * 512 * 2)
    srd(a, S_KV, S_M + 6, 256 * 1024, f"s{S_T2}")
    srd(a, S_O, S_M + 6, 2 << 20, f"s{S_T3}")
    srd(a, S_FL, S_M + 6, 4096 + 16384, str(WS_FLAG))
    srd(a, S_DBG, 6, 256)
    srd(a, S_OUT, 4, 2048 * 1024 * 2)
    if g.diag:
        g.i(f"s_mov_b32 s96, s{S_M+6}")
        g.i(f"s_mov_b32 s97, s{S_M+7}")

def attn_consts(g):
    g.i(f"s_lshr_b32 s{S_T0}, s{S_WAVE}, 2")
    g.i(f"s_lshl_b32 s{S_T0}, s{S_T0}, 14")
    g.i(f"v_add_u32 v{V_KA}, s{S_T0}, v{V_L16}")
    g.i(f"v_and_b32 v{V_T0}, 15, v0")
    g.i(f"v_lshlrev_b32 v{V_T0}, 4, v{V_T0}")
    g.i(f"v_lshrrev_b32 v{V_T1}, 5, v0")
    g.i(f"v_lshl_add_u32 v{V_T0}, v{V_T1}, 8, v{V_T0}")
    g.i(f"s_add_u32 s{S_T0}, s{S_T0}, 1024")
    g.i(f"v_add_u32 v{V_VA}, s{S_T0}, v{V_T0}")
    g.i(f"v_and_b32 v{V_T0}, 31, v0")
    g.i(f"v_subrev_u32 v{V_T1}, 20, v{V_T0}")
    g.i(f"v_cmp_gt_u32 vcc, 8, v{V_T1}")
    g.i(f"v_mov_b32 v{V_T1}, {L_CONST+16}")
    g.i(f"v_mov_b32 v{V_VX}, {L_CONST+16+64}")
    g.i(f"v_cndmask_b32 v{V_T1}, v{V_T1}, v{V_VX}, vcc")
    g.i(f"v_and_b32 v{V_VX}, 27, v0")
    g.i(f"v_cmp_eq_u32 vcc, 16, v{V_VX}")
    g.i(f"v_subrev_u32 v{V_VX}, 16, v{V_T1}")
    g.i("s_nop 0")
    g.i(f"v_cndmask_b32 v{V_T1}, v{V_T1}, v{V_VX}, vcc")
    g.i(f"v_cmp_gt_u32 vcc, 16, v{V_T0}")
    g.i(f"v_mov_b32 v{V_T0}, {RING}")
    g.i(f"v_mov_b32 v{V_IDX}, 0xdddd")
    g.i(f"v_cndmask_b32 v{V_VA}, v{V_T1}, v{V_VA}, vcc")
    g.i(f"v_cndmask_b32 v{V_VX}, 0, v{V_T0}, vcc")
    for r in range(0, 32, 2):
        g.i(f"v_mov_b64 v[{V_O[0]+r}:{V_O[0]+r+1}], 0")
    for r in range(0, 8, 2):
        g.i(f"v_mov_b64 v[{V_S[1]+8+r}:{V_S[1]+9+r}], 0")
    for r in range(0, 4, 2):
        g.i(f"v_mov_b64 v[{V_V[1]+4+r}:{V_V[1]+5+r}], 0")
    g.i(f"v_lshrrev_b32 v{V_T0}, 2, v0")
    g.i(f"v_and_b32 v{V_T0}, 4, v{V_T0}")
    g.i(f"v_and_b32 v{V_T1}, 7, v0")
    g.i(f"v_xor_b32 v{V_T0}, v{V_T0}, v{V_T1}")
    g.i(f"v_lshlrev_b32 v{V_T0}, 4, v{V_T0}")
    g.i(f"v_lshrrev_b32 v{V_T1}, 3, v0")
    g.i(f"v_lshl_add_u32 v{V_WOA}, v{V_T1}, 10, v{V_T0}")

def loader(g):
    VX, VW = 100, 104
    g.lab("L_loader")
    g.i(f"s_sub_u32 s{S_A}, s{S_WAVE}, 4")
    g.i("v_lshrrev_b32 v6, 4, v0")
    g.i("v_and_b32 v7, 7, v0")
    g.i("v_xor_b32 v6, v6, v7")
    g.i("v_lshlrev_b32 v6, 4, v6")
    g.i("v_lshrrev_b32 v7, 3, v0")
    g.i(f"v_lshl_add_u32 v{VX}, v7, 10, v6")
    g.i(f"v_xor_b32 v{VX+1}, 64, v{VX}")
    g.i(f"v_add_u32 v{VX+2}, {2*7168}, v{VX}")
    g.i(f"v_add_u32 v{VX+3}, {3*7168}, v{VX+1}")
    g.i(f"v_add_u32 v{VX+1}, 7168, v{VX+1}")
    g.i(f"s_lshl_b32 s{S_B}, s{S_A}, 16")
    g.i(f"s_lshl_b32 s{S_D}, s{S_A}, 13")
    def issue_x():
        g.i(f"s_mov_b32 m0, s{S_D}")
        g.i(f"s_add_u32 s{S_T0}, s{S_B}, 32768")
        for p in range(4):
            g.i(f"buffer_load_dwordx4 v{VX+p}, s[{S_X}:{S_X+3}], s{S_B} offen offset:{1024*p} lds")
        g.i(f"s_add_u32 m0, s{S_D}, 4096")
        g.i(f"s_add_u32 s{S_B}, s{S_B}, 128")
        for p in range(4):
            g.i(f"buffer_load_dwordx4 v{VX+p}, s[{S_X}:{S_X+3}], s{S_T0} offen offset:{1024*p} lds")
    def issue_w():
        g.i(f"s_mov_b32 m0, s{S_E}")
        g.i("s_nop 0")
        for p in range(3):
            g.i(f"buffer_load_dwordx4 v{VW+p}, s[{S_W}:{S_W+3}], s{S_C} offen offset:{1024*p} lds")
        g.i(f"s_add_u32 s{S_C}, s{S_C}, {64*3072}")
    issue_x()
    for p in range(3):
        g.i(f"v_add_u32 v6, {64*p}, v0")
        g.i("v_mul_u32_u24 v7, 43691, v6")
        g.i("v_lshrrev_b32 v7, 19, v7")
        g.i("v_mul_u32_u24 v108, 12, v7")
        g.i("v_sub_u32 v6, v6, v108")
        g.i("v_mul_u32_u24 v7, 3072, v7")
        g.i("v_lshrrev_b32 v108, 2, v6")
        g.i("v_lshl_add_u32 v7, v108, 10, v7")
        g.i("v_and_b32 v6, 3, v6")
        g.i("v_lshl_add_u32 v7, v6, 4, v7")
        g.i(f"v_subrev_u32 v{VW+p}, {1024*p}, v7")
    g.i(f"s_mul_i32 s{S_C}, s{S_A}, {16*3072}")
    g.i(f"s_lshl_b32 s{S_T0}, s{S_HP}, 6")
    g.i(f"s_add_u32 s{S_C}, s{S_C}, s{S_T0}")
    g.i(f"s_mul_i32 s{S_E}, s{S_A}, 3072")
    g.i(f"s_add_u32 s{S_E}, s{S_E}, {SLOT_W}")
    issue_w()
    for c in (1, 2):
        g.i(f"s_add_u32 s{S_D}, s{S_D}, {SLOT}")
        g.i(f"s_add_u32 s{S_E}, s{S_E}, {SLOT}")
        issue_x(); issue_w()
    late_srds(g)
    attn_consts(g)
    g.i(f"s_cmp_lg_u32 s{S_WAVE}, 4")
    g.i("s_cbranch_scc1 L_ld_noconst")
    g.i("v_lshrrev_b32 v6, 2, v0")
    g.i("v_and_b32 v7, 1, v6")
    g.i("v_lshlrev_b32 v7, 9, v7")
    g.i("v_lshrrev_b32 v6, 1, v6")
    g.i("v_lshl_add_u32 v7, v6, 11, v7")
    g.i("v_and_b32 v6, 1, v0")
    g.i("v_lshl_add_u32 v7, v6, 4, v7")
    g.i("v_cmp_eq_u32 vcc, 0, v6")
    g.i("v_and_b32 v6, 2, v0")
    g.i("v_lshl_add_u32 v7, v6, 5, v7")
    g.i("v_mov_b32 v6, 0x3f803f80")
    g.i(f"v_add_u32 v7, {L_CONST}, v7")
    g.i("v_cndmask_b32 v108, 0, v6, vcc")
    g.i("v_cndmask_b32 v109, 0, v6, vcc")
    g.i("v_cndmask_b32 v110, 0, v6, vcc")
    g.i("v_cndmask_b32 v111, 0, v6, vcc")
    g.i("ds_write_b128 v7, v[108:111]")
    g.lab("L_ld_noconst")
    g.i("s_waitcnt vmcnt(22)")
    g.i("s_barrier")
    g.i(f"s_mov_b32 s{S_IT}, 1")
    g.lab("L_ld_loop")
    g.i("s_waitcnt vmcnt(11)")
    g.i("s_barrier")
    g.i(f"s_add_u32 s{S_D}, s{S_D}, {SLOT}")
    g.i(f"s_add_u32 s{S_E}, s{S_E}, {SLOT}")
    g.i(f"s_cmp_lt_u32 s{S_D}, {3*SLOT}")
    g.i(f"s_cselect_b32 s{S_T0}, 0, {3*SLOT}")
    g.i(f"s_sub_u32 s{S_D}, s{S_D}, s{S_T0}")
    g.i(f"s_sub_u32 s{S_E}, s{S_E}, s{S_T0}")
    issue_x(); issue_w()
    g.i(f"s_add_u32 s{S_IT}, s{S_IT}, 1")
    g.i(f"s_cmp_lt_u32 s{S_IT}, 6")
    g.i("s_cbranch_scc1 L_ld_loop")
    g.i("s_waitcnt vmcnt(11)")
    g.i("s_barrier")
    g.i("s_waitcnt vmcnt(0)")
    g.i("s_barrier")
    g.i(f"s_cmp_lg_u32 s{S_WAVE}, 4")
    g.i("s_cbranch_scc1 L_ld_nocert")
    g.i(f"s_lshl_b32 s{S_T0}, s{S_BR}, 4")
    g.i(f"s_add_u32 s{S_T0}, s{S_T0}, s{S_HP}")
    g.i(f"s_lshl_b32 s{S_T0}, s{S_T0}, 3")
    g.i(f"v_mov_b32 v{V_FA}, s{S_T0}")
    spin(g, "cert1", f"buffer_load_dword v{V_F}, v{V_FA}, s[{S_DBG}:{S_DBG+3}], 0 offen sc1", 8)
    g.lab("L_ld_nocert")
    g.i("s_waitcnt lgkmcnt(0)")
    g.i("s_barrier")
    g.i(f"s_lshl_b32 s{S_T0}, s{S_A}, 11")
    g.i(f"s_add_u32 s{S_T0}, s{S_T0}, {L_QX}")
    g.i(f"v_add_u32 v6, s{S_T0}, v{V_L16}")
    g.i(f"ds_read_b128 {vr(V_Q[0],4)}, v6")
    g.i(f"ds_read_b128 {vr(V_Q[1],4)}, v6 offset:1024")
    g.i("s_branch L_attn")

class LdsQ:
    def __init__(self, g): self.g = g; self.q = []
    def issue(self, tag): self.q.append(tag)
    def need(self, tags):
        idx = max([i for i, t in enumerate(self.q) if t in tags], default=-1)
        if idx >= 0:
            n = len(self.q) - 1 - idx
            self.g.i(f"s_waitcnt lgkmcnt({min(n,15)})")
            self.q = self.q[idx + 1:]

def compute(g):
    late_srds(g)
    g.i(f"s_cmp_lg_u32 s{S_WAVE}, 0")
    g.i("s_cbranch_scc1 L_cp_noclear")
    g.i(f"s_lshl_b32 s{S_T0}, s{S_BR}, 4")
    g.i(f"s_add_u32 s{S_T0}, s{S_T0}, s{S_HP}")
    g.i(f"s_lshl_b32 s{S_T1}, s{S_T0}, 7")
    g.i(f"s_lshl_b32 s{S_T2}, s{S_TB}, 4")
    g.i(f"s_add_u32 s{S_T1}, s{S_T1}, s{S_T2}")
    g.i(f"v_lshl_add_u32 v6, v0, 2, s{S_T1}")
    g.i(f"s_lshl_b32 s{S_T1}, s{S_BR}, 3")
    g.i(f"s_add_u32 s{S_T1}, s{S_T1}, s{S_TB}")
    g.i(f"s_lshl_b32 s{S_T1}, s{S_T1}, 10")
    g.i(f"s_lshr_b32 s{S_T2}, s{S_HP}, 3")
    g.i(f"s_lshl_b32 s{S_T2}, s{S_T2}, 7")
    g.i(f"s_add_u32 s{S_T1}, s{S_T1}, s{S_T2}")
    g.i(f"s_and_b32 s{S_T2}, s{S_HP}, 7")
    g.i(f"s_lshl_b32 s{S_T2}, s{S_T2}, 3")
    g.i(f"s_add_u32 s{S_T1}, s{S_T1}, s{S_T2}")
    g.i(f"s_add_u32 s{S_T1}, s{S_T1}, 4096")
    g.i("v_and_b32 v7, 3, v0")
    g.i(f"v_lshl_add_u32 v7, v7, 8, s{S_T1}")
    g.i("v_lshrrev_b32 v100, 3, v0")
    g.i("v_lshl_add_u32 v7, v100, 2, v7")
    g.i("v_cmp_gt_u32 vcc, 4, v0")
    g.i("v_mov_b32 v100, 0")
    g.i(f"s_lshl_b32 s{S_T0}, s{S_T0}, 3")
    g.i("v_cndmask_b32 v6, v7, v6, vcc")
    g.i("s_mov_b64 exec, 0xfff")
    g.i(f"buffer_store_dword v100, v6, s[{S_FL}:{S_FL+3}], 0 offen sc1")
    g.i("s_mov_b64 exec, 1")
    g.i(f"v_mov_b32 v6, s{S_T0}")
    g.i("v_mov_b32 v7, 1")
    g.i("s_waitcnt vmcnt(0)")
    g.i(f"buffer_atomic_add v7, v6, s[{S_DBG}:{S_DBG+3}], 0 offen sc1")
    g.i("s_mov_b64 exec, -1")
    g.lab("L_cp_noclear")
    attn_consts(g)
    g.i("v_and_b32 v6, 31, v0")
    g.i(f"s_lshl_b32 s{S_T0}, s{S_WAVE}, 13")
    g.i(f"v_lshl_add_u32 v100, v6, 7, s{S_T0}")
    g.i("v_bfe_u32 v6, v0, 1, 3")
    g.i("v_lshrrev_b32 v7, 5, v0")
    g.i("v_xor_b32 v6, v6, v7")
    for s in range(4):
        g.i(f"v_xor_b32 v7, {2*s}, v6")
        g.i(f"v_lshl_add_u32 v{V_XA+s}, v7, 4, v100")
    g.i("v_lshrrev_b32 v6, 5, v0")
    g.i("v_bfe_u32 v7, v0, 2, 2")
    g.i("v_lshl_add_u32 v6, v6, 3, v7")
    g.i("v_mul_u32_u24 v6, 192, v6")
    g.i("v_bfe_u32 v7, v0, 4, 1")
    g.i("v_lshl_add_u32 v6, v7, 5, v6")
    g.i("v_and_b32 v7, 3, v0")
    g.i("v_lshl_add_u32 v6, v7, 3, v6")
    g.i(f"v_add_u32 v{V_WA}, {SLOT_W}, v6")
    for r in range(0, 96, 2):
        g.i(f"v_mov_b64 v[{V_ACC+r}:{V_ACC+r+1}], 0")
    g.i(f"s_mov_b32 s{S_IT}, 0")
    g.i(f"s_mov_b32 s{S_A}, 0")
    g.i(f"s_mov_b32 s{S_B}, {SLOT}")
    q = LdsQ(g)
    def rd(setn, s, which):
        F = V_FR[setn]
        if which[0] == 'x':
            i = int(which[1])
            g.i(f"ds_read_b128 {vr(F+4*i,4)}, v{V_XA+s} offset:{4096*i}")
        else:
            p = {'q': 0, 'k': 1, 'v': 2}[which[0]]; i = int(which[1])
            g.i(f"ds_read_b64_tr_b16 {vr(F+8+4*p+2*i,2)}, v{V_WA} offset:{s*3072+i*768+p*64}")
        q.issue((setn, which))
    ORDER = ['x0', 'q0', 'q1', 'x1', 'k0', 'k1', 'v0', 'v1']
    def mf(setn, n):
        F = V_FR[setn]; p, i = n // 2, n % 2
        w, x = vr(F + 8 + 4 * p, 4), vr(F + 4 * i, 4)
        nm = 'qkv'[p]
        q.need({(setn, f'x{i}'), (setn, nm + '0'), (setn, nm + '1')})
        A, B = (w, x) if p < 2 else (x, w)
        acc = vr(V_ACC + 16 * n, 16)
        g.i(f"v_mfma_f32_32x32x16_bf16 {acc}, {A}, {B}, {acc}")
    def step(cur, nxt_s):
        plan = [ORDER[0:2], ORDER[2:4], ORDER[4:6], ORDER[6:8], [], []]
        for n in range(6):
            if cur is not None: mf(cur, n)
            if nxt_s is not None:
                for w in plan[n]: rd(1 - (cur if cur is not None else 1), nxt_s, w)
    g.i("s_barrier")
    g.stamp(1)
    step(None, 0)
    g.lab("L_cp_loop")
    q.q = [(0, w) for w in ORDER]
    step(0, 1); step(1, 2); step(0, 3)
    g.i(f"s_add_u32 s{S_A}, s{S_A}, 1")
    g.i(f"s_cmp_eq_u32 s{S_A}, 3")
    g.i(f"s_cselect_b32 s{S_T0}, {(-2*SLOT) & 0xffffffff}, s{S_B}")
    g.i(f"s_cselect_b32 s{S_A}, 0, s{S_A}")
    g.i(f"s_add_u32 s{S_IT}, s{S_IT}, 1")
    g.i(f"s_cmp_eq_u32 s{S_IT}, 8")
    g.i("s_cbranch_scc1 L_cp_last")
    g.i("s_waitcnt lgkmcnt(0)")
    q.q = []
    g.i("s_barrier")
    for r in range(5):
        g.i(f"v_add_u32 v{V_XA+r}, s{S_T0}, v{V_XA+r}")
    step(1, 0)
    g.i("s_branch L_cp_loop")
    g.lab("L_cp_last")
    q.q = [(1, w) for w in ORDER]
    step(1, None)
    g.stamp(2)
    g.i("v_and_b32 v6, 0x33, v0")
    g.i("v_bfe_u32 v7, v0, 2, 1")
    g.i("v_lshl_or_b32 v6, v7, 3, v6")
    g.i("v_bfe_u32 v7, v0, 3, 1")
    g.i("v_lshl_or_b32 v6, v7, 2, v6")
    KG, KL, VG, VL, QL = 196, 197, 198, 199, 200
    g.i(f"v_lshlrev_b32 v{KG}, 4, v6")
    g.i(f"s_lshl_b32 s{S_T0}, s{S_WAVE}, 12")
    g.i(f"v_add_u32 v{KL}, s{S_T0}, v{KG}")
    g.i("v_and_b32 v6, 15, v0")
    g.i("v_lshlrev_b32 v6, 4, v6")
    g.i("v_lshrrev_b32 v7, 5, v0")
    g.i("v_lshl_add_u32 v6, v7, 8, v6")
    g.i("v_add_u32 v6, 1024, v6")
    g.i("v_bfe_u32 v7, v0, 4, 1")
    g.i(f"v_lshl_add_u32 v{VG}, v7, 17, v6")
    g.i("v_lshl_add_u32 v6, v7, 14, v6")
    g.i(f"v_add_u32 v{VL}, s{S_T0}, v6")
    g.i(f"s_lshl_b32 s{S_T1}, s{S_TB}, 14")
    g.i(f"s_add_u32 s{S_T1}, s{S_T1}, s{S_T0}")
    g.i(f"s_add_u32 s{S_T2}, s{S_T1}, 131072")
    g.i(f"s_lshr_b32 s{S_T0}, s{S_T0}, 1")
    g.i(f"s_add_u32 s{S_T0}, s{S_T0}, {L_QX}")
    g.i(f"v_add_u32 v{QL}, s{S_T0}, v{V_L16}")
    T = 204
    n = 0
    for i in range(2):
        A = V_ACC + 16 * (2 + i)
        for hd in range(2):
            for r in range(4):
                g.i(f"v_cvt_pk_bf16_f32 v{T+4*n+r}, v{A+8*hd+2*r}, v{A+8*hd+2*r+1}")
            g.i(f"buffer_store_dwordx4 {vr(T+4*n,4)}, v{KG}, s[{S_KV}:{S_KV+3}], s{S_T2 if hd else S_T1} offen offset:{2048*i} sc1")
            g.i(f"ds_write_b128 v{KL}, {vr(T+4*n,4)} offset:{16384*hd+2048*i}")
            n += 1
    for i in range(2):
        A = V_ACC + 16 * (4 + i)
        for gr in range(2):
            for r in range(4):
                g.i(f"v_cvt_pk_bf16_f32 v{T+4*n+r}, v{A+8*gr+2*r}, v{A+8*gr+2*r+1}")
            g.i(f"buffer_store_dwordx4 {vr(T+4*n,4)}, v{VG}, s[{S_KV}:{S_KV+3}], s{S_T1} offen offset:{2048*i+512*gr} sc1")
            g.i(f"ds_write_b128 v{VL}, {vr(T+4*n,4)} offset:{2048*i+512*gr}")
            n += 1
    g.i(f"s_mov_b32 s{S_T0}, {hex(QSCALE)}")
    for i in range(2):
        A = V_ACC + 16 * i
        for r in range(16):
            g.i(f"v_mul_f32 v{A+r}, s{S_T0}, v{A+r}")
        for r in range(4):
            g.i(f"v_cvt_pk_bf16_f32 v{A+8+r}, v{A+8+2*r}, v{A+8+2*r+1}")
        g.i(f"ds_write_b128 v{QL}, {vr(A+8,4)} offset:{1024*i}")
        for r in range(4):
            g.i(f"v_cvt_pk_bf16_f32 v{V_Q[i]+r}, v{A+2*r}, v{A+2*r+1}")
    g.i("s_waitcnt lgkmcnt(0)")
    g.i("s_barrier")

U = 8
def dma_chunk(g):
    g.i(f"s_lshl_b32 s{S_T0}, s{S_C}, 14")
    g.i(f"s_add_u32 s{S_T0}, s{S_T0}, s{S_A}")
    g.i(f"s_add_u32 m0, s{S_D}, s{S_A}")
    g.i(f"s_add_u32 s{S_T1}, s{S_T0}, 131072")
    g.i(f"buffer_load_dwordx4 v{V_L16}, s[{S_KV}:{S_KV+3}], s{S_T0} offen sc1 lds")
    g.i(f"buffer_load_dwordx4 v{V_L16}, s[{S_KV}:{S_KV+3}], s{S_T0} offen offset:1024 sc1 lds")
    g.i("s_add_u32 m0, m0, 16384")
    g.i(f"s_add_u32 s{S_C}, s{S_C}, 1")
    g.i(f"buffer_load_dwordx4 v{V_L16}, s[{S_KV}:{S_KV+3}], s{S_T1} offen sc1 lds")
    g.i(f"buffer_load_dwordx4 v{V_L16}, s[{S_KV}:{S_KV+3}], s{S_T1} offen offset:1024 sc1 lds")
    g.i(f"s_and_b32 s{S_C}, s{S_C}, 7")
    g.i(f"s_xor_b32 s{S_D}, s{S_D}, {RING}")

def attention(g):
    opt = g.opt
    g.lab("L_attn")
    g.stamp(3)
    g.i(f"ds_read_b128 {vr(V_K,4)}, v{V_KA}")
    g.i(f"ds_read_b128 {vr(V_V[0],4)}, v{V_VA}")
    g.i(f"ds_read_b128 {vr(V_V[0]+4,4)}, v{V_VA} offset:512")
    g.i(f"s_mov_b32 s{S_IT}, 0")
    g.i(f"s_lshl_b32 s{S_A}, s{S_WAVE}, 11")
    g.i(f"s_add_u32 s{S_C}, s{S_TB}, 1")
    g.i(f"s_and_b32 s{S_C}, s{S_C}, 7")
    g.i(f"s_mov_b32 s{S_D}, {RING}")
    g.i(f"s_lshr_b32 s{S_T0}, s{S_HP}, 3")
    g.i(f"s_lshl_b32 s{S_T0}, s{S_T0}, 2")
    g.i(f"s_and_b32 s{S_T1}, s{S_HP}, 3")
    g.i(f"s_add_u32 s{S_F}, s{S_T0}, s{S_T1}")
    g.i(f"s_lshl_b32 s{S_T0}, s{S_F}, 7")
    g.i(f"s_lshl_b32 s{S_B}, s{S_WAVE}, 16")
    g.i(f"s_add_u32 s{S_B}, s{S_B}, s{S_T0}")
    g.i(f"s_lshl_b32 s{S_E}, s{S_WAVE}, 13")
    g.i(f"s_add_u32 s{S_E}, s{S_E}, {L_WO}")
    g.i(f"s_lshl_b32 s{S_T0}, s{S_BR}, 4")
    g.i(f"s_add_u32 s{S_T0}, s{S_T0}, s{S_HP}")
    g.i(f"s_lshl_b32 s{S_T0}, s{S_T0}, 7")
    g.i(f"v_and_b32 v6, 31, v0")
    g.i(f"v_lshl_add_u32 v{V_FA}, v6, 2, s{S_T0}")
    g.i("s_waitcnt lgkmcnt(0)")
    g.i(f"v_mfma_f32_32x32x16_bf16 {vr(V_S[0],16)}, {vr(V_K,4)}, {vr(V_Q[0],4)}, 0")
    g.i("s_nop 11")
    if opt.get('align', 1): g.a(".p2align 6")
    g.lab("L_at_loop")
    poll = f"buffer_load_dword v{V_F}, v{V_FA}, s[{S_FL}:{S_FL+3}], 0 offen sc1"
    def ev_publish():
        g.i(f"s_lshl_b32 s{S_T0}, s{S_IT}, 2")
        g.i(f"s_or_b32 s{S_T0}, s{S_T0}, s{S_WAVE}")
        g.i(f"s_cmp_ge_u32 s{S_T0}, 4")
        g.i("s_cbranch_scc1 L_at_nopub")
        g.i(f"s_lshl_b32 s{S_T0}, s{S_TB}, 2")
        g.i(f"s_add_u32 s{S_T0}, s{S_T0}, s{S_WAVE}")
        g.i(f"s_lshl_b64 exec, 1, s{S_T0}")
        g.i(f"v_mov_b32 v{V_F}, 1")
        g.i("s_waitcnt vmcnt(0)")
        g.i(f"buffer_store_dword v{V_F}, v{V_FA}, s[{S_FL}:{S_FL+3}], 0 offen sc1")
        g.i("s_mov_b64 exec, -1")
        g.lab("L_at_nopub")
    def ev_poll_issue():
        g.i(f"s_cmp_lg_u32 s{S_IT}, 0")
        g.i("s_cbranch_scc1 L_at_nopoll")
        g.i(poll)
        g.lab("L_at_nopoll")
    def ev_poll_check():
        g.i(f"s_cmp_lg_u32 s{S_IT}, 0")
        g.i("s_cbranch_scc1 L_at_nochk")
        g.i("s_waitcnt vmcnt(0)")
        g.i(f"v_cmp_ne_u32 vcc, 1, v{V_F}")
        g.i("s_cbranch_vccz L_at_ok1")
        spin(g, "kv", poll, 1)
        g.lab("L_at_ok1")
        dma_chunk(g)
        g.lab("L_at_nochk")
    def ev_cert_issue():
        g.i(f"s_lshl_b32 s{S_T0}, s{S_IT}, 3")
        g.i(f"s_or_b32 s{S_T0}, s{S_T0}, s{S_WAVE}")
        g.i(f"s_cmp_lg_u32 s{S_T0}, {4*8+4}")
        g.i("s_cbranch_scc1 L_at_nocert")
        g.i(f"s_lshl_b32 s{S_T0}, s{S_BR}, 7")
        g.i("v_and_b32 v6, 15, v0")
        g.i(f"v_lshl_add_u32 v{V_FA}, v6, 3, s{S_T0}")
        spin(g, "cert2", f"buffer_load_dword v{V_F}, v{V_FA}, s[{S_DBG}:{S_DBG+3}], 0 offen sc1", 8)
        g.lab("L_at_nocert")
    def ev_sync():
        g.i(f"s_cmp_ge_u32 s{S_IT}, 7")
        g.i("s_cbranch_scc1 L_at_nosync")
        g.i("s_waitcnt vmcnt(0)")
        g.i("s_barrier")
        g.i(f"s_cmp_ge_u32 s{S_IT}, 6")
        g.i("s_cbranch_scc1 L_at_nosync")
        dma_chunk(g)
        g.i(f"s_cmp_ge_u32 s{S_IT}, 4")
        g.i("s_cbranch_scc1 L_at_nosync")
        g.i(f"s_mov_b32 m0, s{S_E}")
        g.i(f"s_add_u32 s{S_T0}, s{S_B}, 7168")
        g.i(f"buffer_load_dwordx4 v{V_WOA}, s[{S_WO}:{S_WO+3}], s{S_B} offen lds")
        g.i(f"buffer_load_dwordx4 v{V_WOA}, s[{S_WO}:{S_WO+3}], s{S_T0} offen offset:1024 lds")
        g.i(f"s_add_u32 s{S_B}, s{S_B}, 16384")
        g.i(f"s_add_u32 s{S_E}, s{S_E}, 2048")
        g.lab("L_at_nosync")
        g.i(f"v_xor_b32 v{V_KA}, {RING}, v{V_KA}")
        g.i(f"v_xor_b32 v{V_VA}, v{V_VX}, v{V_VA}")
    pe = opt.get('ev', (1, 7, 9, 13))
    events = {pe[0]: ev_publish, pe[1]: ev_poll_issue, pe[2]: ev_poll_check, pe[3]: ev_cert_issue}
    prio = opt.get('prio', {0: 3, 7: 2, 12: 1, 15: 0})
    p2, pq, p1 = opt.get('pos', (1, 5, 10))
    for p in range(2 * U):
        b, t = p % 2, p // 2
        S, So = V_S[b], V_S[1 - b]
        nt = (t + 1) % U
        for e in range(16):
            g.i(f"v_exp_f32 v{S+e}, v{S+e}")
            if e == p2:
                tp = (p - 1) // 2
                g.i(f"v_smfmac_f32_32x32x32_bf16 {vr(V_O[1-b],16)}, {vr(V_V[tp%2]+4,4)}, {vr(So+8,8)}, v{V_IDX}")
                if b == 0:
                    if t == U - 1: ev_sync()
                    g.i(f"ds_read_b128 {vr(V_V[(t+1)%2],4)}, v{V_VA} offset:{nt*2048}")
                else:
                    g.i("s_waitcnt lgkmcnt(1)")
            if e == pq:
                g.i(f"v_mfma_f32_32x32x16_bf16 {vr(So,16)}, {vr(V_K,4)}, {vr(V_Q[1-b],4)}, 0")
                if b == 0:
                    g.i(f"ds_read_b128 {vr(V_K,4)}, v{V_KA} offset:{nt*2048}")
                elif (p + 1) % 16 in prio:
                    g.i(f"s_setprio {prio[(p+1)%16]}")
                if b == 1 and p in events: events[p]()
            if e == p1:
                g.i(f"v_smfmac_f32_32x32x32_bf16 {vr(V_O[b],16)}, {vr(V_V[t%2],4)}, {vr(S,8)}, v{V_IDX}")
                if b == 0:
                    g.i(f"ds_read_b128 {vr(V_V[(t+1)%2]+4,4)}, v{V_VA} offset:{nt*2048+512}")
                    if (p + 1) in prio: g.i(f"s_setprio {prio[p+1]}")
                else:
                    g.i("s_waitcnt lgkmcnt(0)")
                    if p == 2 * U - 1:
                        g.i(f"s_add_u32 s{S_IT}, s{S_IT}, 1")
    g.i(f"s_cmp_lt_u32 s{S_IT}, 8")
    g.i("s_cbranch_scc1 L_at_loop")
    g.i("s_nop 0")
    g.i(f"v_smfmac_f32_32x32x32_bf16 {vr(V_O[1],16)}, {vr(V_V[1]+4,4)}, {vr(V_S[1]+8,8)}, v{V_IDX}")
    g.stamp(4)
    g.i(f"s_and_b32 s{S_T0}, s{S_WAVE}, 3")
    g.i(f"s_lshl_b32 s{S_T0}, s{S_T0}, 1")
    g.i(f"s_lshl_b32 s{S_T1}, s{S_TB}, 3")
    g.i(f"s_add_u32 s{S_T0}, s{S_T0}, s{S_T1}")
    g.i(f"s_lshl_b32 s{S_A}, s{S_T0}, 15")
    g.i(f"s_lshr_b32 s{S_T1}, s{S_WAVE}, 2")
    g.i(f"s_lshl_b32 s{S_T2}, s{S_HP}, 1")
    g.i(f"s_add_u32 s{S_T1}, s{S_T1}, s{S_T2}")
    g.i(f"s_lshl_b32 s{S_T2}, s{S_T1}, 10")
    g.i(f"s_add_u32 s{S_A}, s{S_A}, s{S_T2}")
    g.i(f"s_add_u32 s{S_B}, s{S_A}, 32768")
    g.i(f"s_lshl_b32 s{S_C}, s{S_BR}, 3")
    g.i(f"s_add_u32 s{S_C}, s{S_C}, s{S_TB}")
    g.i(f"s_lshl_b32 s{S_C}, s{S_C}, 10")
    g.i(f"s_add_u32 s{S_C}, s{S_C}, 4096")
    g.i(f"s_and_b32 s{S_T0}, s{S_WAVE}, 3")
    g.i(f"s_lshl_b32 s{S_T0}, s{S_T0}, 8")
    g.i(f"s_bfe_u32 s{S_T2}, s{S_T1}, 0x10004")
    g.i(f"s_lshl_b32 s{S_T2}, s{S_T2}, 7")
    g.i(f"s_add_u32 s{S_T0}, s{S_T0}, s{S_T2}")
    g.i(f"s_and_b32 s{S_T1}, s{S_T1}, 15")
    g.i(f"s_lshl_b32 s{S_T1}, s{S_T1}, 2")
    g.i(f"s_add_u32 s{S_T0}, s{S_T0}, s{S_T1}")
    g.i(f"s_add_u32 s{S_D}, s{S_T0}, s{S_C}")
    g.i(f"s_mov_b32 s{S_T0}, 0x2b800000")
    g.i(f"s_mov_b32 s{S_T1}, 0x53800000")
    g.i(f"s_mov_b32 s{S_T2}, 0x7f800000")
    for q in range(2):
        O = V_O[q]
        g.i(f"v_add_f32 v6, abs(v{O}), abs(v{O+1})")
        g.i(f"v_add_f32 v7, abs(v{O+2}), abs(v{O+3})")
        for r in range(4, 8, 2):
            g.i(f"v_add_f32 v6, v6, abs(v{O+r})")
            g.i(f"v_add_f32 v7, v7, abs(v{O+r+1})")
        g.i(f"v_add_f32 v6, v6, v7")
        g.i(f"v_cmp_nle_f32 s[{S_M}:{S_M+1}], s{S_T0}, v{O+8}")
        g.i(f"v_cmp_nge_f32 s[{S_M+2}:{S_M+3}], s{S_T1}, v{O+8}")
        g.i(f"v_cmp_ngt_f32 vcc, s{S_T2}, v6")
        g.i(f"v_rcp_f32 v{V_S[0]+q}, v{O+8}")
        g.i(f"s_or_b64 s[{S_M}:{S_M+1}], s[{S_M}:{S_M+1}], s[{S_M+2}:{S_M+3}]")
        g.i(f"s_or_b64 s[{S_M}:{S_M+1}], s[{S_M}:{S_M+1}], vcc")
        g.i("s_branch L_fallback" if opt.get('force_fallback') else "s_cbranch_scc1 L_fallback")
    g.lab("L_at_store")
    for q in range(2):
        O = V_O[q]
        for r in range(8):
            g.i(f"v_mul_f32 v{O+r}, v{O+r}, v{V_S[0]+q}")
        for r in range(4):
            g.i(f"v_cvt_pk_bf16_f32 v{O+r}, v{O+2*r}, v{O+2*r+1}")
        g.i(f"buffer_store_dwordx4 {vr(O,4)}, v{V_L16}, s[{S_O}:{S_O+3}], s{S_B if q else S_A} offen sc1")

P_WO = 100
P_OF = 8
def outproj(g):
    opt = g.opt
    A0, A1 = 228, 72
    WA0, WA1, RA, OA = 244, 245, 246, 247
    g.i(f"s_lshr_b32 s{S_E}, s{S_WAVE}, 2")
    g.i(f"s_lshl_b32 s{S_T0}, s{S_E}, 15")
    g.i(f"s_add_u32 s{S_T0}, s{S_T0}, {L_WO}")
    g.i("v_lshrrev_b32 v6, 5, v0")
    g.i("v_bfe_u32 v7, v0, 2, 2")
    g.i("v_lshl_add_u32 v6, v6, 2, v7")
    g.i(f"v_lshl_add_u32 v6, v6, 7, s{S_T0}")
    g.i("v_bfe_u32 v7, v0, 3, 2")
    g.i("v_and_b32 v2, 1, v7")
    g.i("v_lshl_add_u32 v6, v2, 6, v6")
    g.i("v_lshrrev_b32 v7, 1, v7")
    g.i("v_lshl_add_u32 v6, v7, 5, v6")
    g.i("v_and_b32 v7, 3, v0")
    g.i(f"v_lshl_add_u32 v6, v7, 3, v6")
    g.i(f"s_lshl_b32 s{S_T0}, s{S_E}, 6")
    g.i(f"v_xor_b32 v{WA0}, s{S_T0}, v6")
    g.i(f"v_xor_b32 v{WA1}, 64, v{WA0}")
    n = 0
    def wo_reads(s0, s1):
        for s in range(s0, s1):
            for f in range(2):
                for i in range(2):
                    g.i(f"ds_read_b64_tr_b16 {vr(P_WO+8*s+4*f+2*i,2)}, v{WA1 if f else WA0} offset:{s*2048+i*1024}")
    wo_reads(0, 3)
    g.i(f"v_mov_b32 v6, s{S_D}")
    g.i("v_mov_b32 v7, 1")
    g.i("s_mov_b64 exec, 1")
    g.i("s_waitcnt vmcnt(0)")
    g.i(f"buffer_store_dword v7, v6, s[{S_FL}:{S_FL+3}], 0 offen sc1")
    g.i("s_mov_b64 exec, -1")
    g.stamp(5)
    for s0 in range(3, 16, 3):
        g.i("s_waitcnt lgkmcnt(2)")
        wo_reads(s0, min(s0 + 3, 16))
    g.i(f"s_bfe_u32 s{S_T0}, s{S_HP}, 0x10002")
    g.i(f"s_lshl_b32 s{S_T0}, s{S_T0}, 2")
    g.i(f"s_and_b32 s{S_T1}, s{S_WAVE}, 3")
    g.i(f"s_add_u32 s{S_A}, s{S_T0}, s{S_T1}")
    g.i(f"s_lshr_b32 s{S_T0}, s{S_A}, 1")
    g.i(f"s_lshl_b32 s{S_T0}, s{S_T0}, 8")
    g.i(f"s_lshl_b32 s{S_T1}, s{S_E}, 7")
    g.i(f"s_add_u32 s{S_T0}, s{S_T0}, s{S_T1}")
    g.i(f"s_add_u32 s{S_T0}, s{S_T0}, s{S_C}")
    g.i("v_and_b32 v6, 15, v0")
    g.i(f"v_lshl_add_u32 v2, v6, 2, s{S_T0}")
    g.i(f"s_lshl_b32 s{S_T0}, s{S_TB}, 3")
    g.i(f"s_add_u32 s{S_A}, s{S_A}, s{S_T0}")
    g.i(f"s_lshl_b32 s{S_B}, s{S_A}, 15")
    g.i(f"s_lshl_b32 s{S_T0}, s{S_E}, 14")
    g.i(f"s_add_u32 s{S_B}, s{S_B}, s{S_T0}")
    for r in range(0, 16, 2):
        g.i(f"v_mov_b64 v[{A1+r}:{A1+r+1}], 0")
    g.i(f"s_lshl_b32 s{S_T0}, s{S_WAVE}, 12")
    g.i(f"v_add_u32 v{RA}, s{S_T0}, v{V_L16}")
    g.i("v_and_b32 v6, 31, v0")
    g.i("v_lshlrev_b32 v6, 11, v6")
    g.i("v_lshrrev_b32 v7, 5, v0")
    g.i(f"v_lshl_add_u32 v{OA}, v7, 4, v6")
    g.i(f"s_lshl_b32 s{S_A}, s{S_A}, 16")
    g.i(f"s_lshl_b32 s{S_T0}, s{S_BR}, 10")
    g.i(f"s_add_u32 s{S_A}, s{S_A}, s{S_T0}")
    g.i(f"s_lshl_b32 s{S_T0}, s{S_F}, 7")
    g.i(f"s_add_u32 s{S_A}, s{S_A}, s{S_T0}")
    g.i(f"s_lshl_b32 s{S_T0}, s{S_E}, 6")
    g.i(f"s_add_u32 s{S_A}, s{S_A}, s{S_T0}")
    g.i(f"s_mov_b32 s{S_T3}, 0")
    g.lab("L_spin_o")
    g.i(f"buffer_load_dword v3, v2, s[{S_FL}:{S_FL+3}], 0 offen sc1")
    g.i(f"s_add_u32 s{S_T3}, s{S_T3}, 1")
    g.i("s_waitcnt vmcnt(0)")
    g.i("v_cmp_ne_u32 vcc, 1, v3")
    g.i(f"s_cmp_ge_u32 s{S_T3}, {SPIN_MAX}")
    g.i("s_cbranch_scc1 L_spun_o")
    g.i("s_cbranch_vccnz L_spin_o")
    g.lab("L_spun_o")
    g.stamp(6)
    for s in range(16):
        if s and s % 4 == 0:
            g.i(f"s_add_u32 s{S_B}, s{S_B}, 4096")
        g.i(f"buffer_load_dwordx4 {vr(P_OF+4*s,4)}, v{V_L16}, s[{S_O}:{S_O+3}], s{S_B} offen offset:{1024*(s%4)} sc1")
    for r in range(0, 16, 2):
        g.i(f"v_mov_b64 v[{A0+r}:{A0+r+1}], 0")
    g.i("s_waitcnt lgkmcnt(0)")
    for s in range(16):
        g.i(f"s_waitcnt vmcnt({15-s})")
        for f, A in ((1, A1), (0, A0)):
            g.i(f"v_mfma_f32_32x32x16_bf16 {vr(A,16)}, {vr(P_WO+8*s+4*f,4)}, {vr(P_OF+4*s,4)}, {vr(A,16)}")
    g.i("s_nop 10")
    for r in range(4):
        g.i(f"ds_write_b128 v{RA}, {vr(A1+4*r,4)} offset:{1024*r}")
    g.i("s_waitcnt lgkmcnt(0)")
    g.i(f"v_xor_b32 v{RA}, 16384, v{RA}")
    g.i("s_barrier")
    for r in range(4):
        g.i(f"ds_read_b128 {vr(P_OF+4*r,4)}, v{RA} offset:{1024*r}")
    for r in range(4):
        g.i(f"s_waitcnt lgkmcnt({3-r})")
        for k in range(4):
            g.i(f"v_add_f32 v{A0+4*r+k}, v{A0+4*r+k}, v{P_OF+4*r+k}")
        for k in range(2):
            g.i(f"v_cvt_pk_bf16_f32 v{24+2*r+k}, v{A0+4*r+2*k}, v{A0+4*r+2*k+1}")
        if r % 2:
            g.i("s_nop 1")
            g.i(f"v_permlane32_swap_b32 v{24+2*r-2}, v{24+2*r}")
            g.i(f"v_permlane32_swap_b32 v{24+2*r-1}, v{24+2*r+1}")
            g.i(f"buffer_store_dwordx4 {vr(24+2*r-2,4)}, v{OA}, s[{S_OUT}:{S_OUT+3}], s{S_A} offen offset:{16*(r-1)}")
    if g.diag:
        g.i("s_waitcnt vmcnt(0)")
        g.stamp(7)
        g.i("s_waitcnt lgkmcnt(0)")
        g.i(f"s_lshl_b32 s{S_T0}, s2, 3")
        g.i(f"s_add_u32 s{S_T0}, s{S_T0}, s{S_WAVE}")
        g.i(f"s_lshl_b32 s{S_T0}, s{S_T0}, 7")
        g.i(f"s_add_u32 s{S_T0}, s{S_T0}, {WS_STAMP}")
        srd(g.a, S_X, 96, 128, f"s{S_T0}")
        for k in range(32):
            g.i(f"v_mov_b32 v{36+k}, s{64+k}")
        g.i("v_mov_b32 v6, 0")
        for k in range(8):
            g.i(f"buffer_store_dwordx4 {vr(36+4*k,4)}, v6, s[{S_X}:{S_X+3}], 0 offen offset:{16*k}")
    g.lab("L_end")
    g.i("s_endpgm")

def fallback(g):
    C = [100, 116]; M = [132, 133]; GV = 134
    g.lab("L_fallback")
    g.i(f"s_lshr_b32 s{S_T0}, s{S_WAVE}, 2")
    g.i(f"s_lshl_b32 s{S_T0}, s{S_T0}, 17")
    g.i(f"v_mov_b32 v{M[0]}, 0xff800000")
    g.i(f"v_mov_b32 v{M[1]}, 0xff800000")
    g.i(f"s_mov_b32 s{S_T1}, s{S_T0}")
    g.i(f"s_add_u32 s{S_T2}, s{S_T0}, 131072")
    g.lab("L_fb_max")
    g.i(f"buffer_load_dwordx4 {vr(V_K,4)}, v{V_L16}, s[{S_KV}:{S_KV+3}], s{S_T1} offen sc1")
    g.i(f"s_add_u32 s{S_T1}, s{S_T1}, 2048")
    g.i("s_waitcnt vmcnt(0)")
    for q in range(2):
        g.i(f"v_mfma_f32_32x32x16_bf16 {vr(V_S[q],16)}, {vr(V_K,4)}, {vr(V_Q[q],4)}, 0")
    g.i("s_nop 15")
    for q in range(2):
        for r in range(0, 16, 2):
            g.i(f"v_max3_f32 v{M[q]}, v{M[q]}, v{V_S[q]+r}, v{V_S[q]+r+1}")
    g.i(f"s_cmp_lt_u32 s{S_T1}, s{S_T2}")
    g.i("s_cbranch_scc1 L_fb_max")
    for q in range(2):
        g.i(f"v_mov_b32 v6, v{M[q]}")
        g.i(f"v_mov_b32 v7, v{M[q]}")
        g.i("s_nop 1")
        g.i("v_permlane32_swap_b32 v6, v7")
        g.i("s_nop 1")
        g.i("v_max_f32 v6, v6, v7")
        for r in range(16):
            g.i(f"v_sub_f32 v{C[q]+r}, 0, v6")
            g.i(f"v_mov_b32 v{V_O[q]+r}, 0")
    g.i("v_and_b32 v6, 15, v0")
    g.i("v_lshlrev_b32 v6, 4, v6")
    g.i("v_lshrrev_b32 v7, 5, v0")
    g.i(f"v_lshl_add_u32 v{GV}, v7, 8, v6")
    for r in range(8):
        g.i(f"v_mov_b32 v{V_V[0]+r}, 0x3f803f80")
    g.i(f"s_mov_b32 s{S_T1}, s{S_T0}")
    g.i(f"s_mov_b32 s{S_M}, 0xffff")
    g.i(f"s_mov_b32 s{S_M+1}, 0xffff")
    g.lab("L_fb_pv")
    g.i(f"buffer_load_dwordx4 {vr(V_K,4)}, v{V_L16}, s[{S_KV}:{S_KV+3}], s{S_T1} offen sc1")
    g.i(f"s_mov_b64 exec, s[{S_M}:{S_M+1}]")
    g.i(f"buffer_load_dwordx4 {vr(V_V[0],4)}, v{GV}, s[{S_KV}:{S_KV+3}], s{S_T1} offen offset:1024 sc1")
    g.i(f"buffer_load_dwordx4 {vr(V_V[0]+4,4)}, v{GV}, s[{S_KV}:{S_KV+3}], s{S_T1} offen offset:1536 sc1")
    g.i("s_mov_b64 exec, -1")
    g.i(f"s_add_u32 s{S_T1}, s{S_T1}, 2048")
    g.i("s_waitcnt vmcnt(0)")
    for q in range(2):
        g.i(f"v_mfma_f32_32x32x16_bf16 {vr(V_S[q],16)}, {vr(V_K,4)}, {vr(V_Q[q],4)}, {vr(C[q],16)}")
    g.i("s_nop 15")
    for q in range(2):
        for r in range(16):
            g.i(f"v_exp_f32 v{V_S[q]+r}, v{V_S[q]+r}")
    g.i("s_nop 3")
    for q in range(2):
        for h in range(2):
            g.i(f"v_smfmac_f32_32x32x32_bf16 {vr(V_O[q],16)}, {vr(V_V[0]+4*h,4)}, {vr(V_S[q]+8*h,8)}, v{V_IDX}")
    g.i("s_nop 15")
    g.i(f"s_cmp_lt_u32 s{S_T1}, s{S_T2}")
    g.i("s_cbranch_scc1 L_fb_pv")
    for q in range(2):
        g.i(f"v_rcp_f32 v{V_S[0]+q}, v{V_O[q]+8}")
    g.i("s_nop 1")
    g.i("s_branch L_at_store")

HEADER = open('cdna_kernels/' + NAME + '.s.ref').read().split('; Override launch')[0]

def generate(opt={}):
    g = G(opt)
    name = NAME + "_kernel"
    g.a(HEADER.rstrip())
    g.a(f"; @launch grid=(256,1,1) block=(512,1,1) lds={LDS_TOTAL}")
    g.a('.amdgcn_target "amdgcn-amd-amdhsa--gfx950"')
    entry(g, name)
    compute(g)
    attention(g)
    outproj(g)
    loader(g)
    fallback(g)
    kernel_desc(g.a, name, NVGPR, 256, 102)
    return g.a.text()

if __name__ == "__main__":
    import sys
    opt = eval(sys.argv[2]) if len(sys.argv) > 2 else {}
    open(sys.argv[1], 'w').write(generate(opt))
```

```python
import math, struct
from common import *

WS_FLAG = 16 << 20
SLOT = 45056; SLOT_W = 32768
RING = 32768
L_WO = 65536
L_CONST = 135168
L_QX = 155648
LDS_TOTAL = 163840
S_X, S_W, S_WO, S_KV, S_O, S_FL, S_DBG, S_OUT = 8, 12, 16, 20, 24, 28, 32, 36
S_WAVE, S_BR, S_HP, S_TB, S_IT, S_T0, S_T1, S_T2, S_T3 = 40, 41, 42, 43, 44, 45, 46, 47, 48
S_A, S_B, S_C, S_D, S_E, S_F = 49, 50, 51, 52, 53, 54
S_M = 56
V_L16, V_KA, V_VA, V_VX, V_IDX, V_T0, V_T1 = 1, 2, 3, 4, 5, 6, 7
V_Q = [8, 12]; V_K = 16; V_V = [20, 28]; V_S = [36, 52]; V_O = [68, 84]
V_F = 241
V_FA = 242
V_WOA = 243
V_ACC = 100
V_FR = [196, 216]
V_XA = 236; V_WA = 240
NVGPR = 256
QSCALE = struct.unpack('<I', struct.pack('<f', 0.25 * math.log2(math.e)))[0]
SPIN_MAX = 1 << 20

class G:
    def __init__(self, opt):
        self.a = Asm(); self.opt = opt; self.diag = opt.get('diag', 0)
    def i(self, s): self.a.i(s)
    def lab(self, s): self.a.label(s)
    def stamp(self, k):
        if self.diag:
            self.i(f"s_memtime s[{64+4*k}:{65+4*k}]")
            self.i(f"s_memrealtime s[{66+4*k}:{67+4*k}]")

def spin(g, tag, load, want, nlanes_mask=None):
    g.i(f"s_mov_b32 s{S_T3}, 0")
    g.lab(f"L_spin_{tag}")
    g.i(load)
    g.i(f"s_add_u32 s{S_T3}, s{S_T3}, 1")
    g.i("s_waitcnt vmcnt(0)")
    g.i(f"v_cmp_{'gt' if want > 1 else 'ne'}_u32 vcc, {want}, v{V_F}")
    g.i(f"s_cmp_ge_u32 s{S_T3}, {SPIN_MAX}")
    g.i(f"s_cbranch_scc1 L_spun_{tag}")
    g.i(f"s_cbranch_vccnz L_spin_{tag}")
    g.lab(f"L_spun_{tag}")

def entry(g, name):
    a = g.a
    kernel_head(a, name)
    g.i("s_cmp_ge_u32 s2, 256")
    g.i("s_cbranch_scc1 L_end")
    g.stamp(0)
    g.i(f"s_bfe_u32 s{S_BR}, s2, 0x10002")
    g.i(f"s_mul_i32 s{S_T0}, s{S_BR}, 24")
    g.i(f"s_load_dwordx4 s[{S_M}:{S_M+3}], s[0:1], s{S_T0}")
    g.i(f"s_load_dwordx2 s[{S_M+4}:{S_M+5}], s[0:1], s{S_T0} offset:16")
    g.i("s_load_dwordx4 s[4:7], s[0:1], 48")
    g.i(f"s_load_dwordx2 s[{S_M+6}:{S_M+7}], s[0:1], 64")
    g.i("v_lshrrev_b32 v6, 6, v0")
    g.i("v_and_b32 v0, 63, v0")
    g.i(f"v_readfirstlane_b32 s{S_WAVE}, v6")
    g.i(f"v_lshlrev_b32 v{V_L16}, 4, v0")
    g.i(f"s_and_b32 s{S_HP}, s2, 3")
    g.i(f"s_lshl_b32 s{S_HP}, s{S_HP}, 2")
    g.i(f"s_bfe_u32 s{S_T0}, s2, 0x20003")
    g.i(f"s_add_u32 s{S_HP}, s{S_HP}, s{S_T0}")
    g.i(f"s_lshr_b32 s{S_TB}, s2, 5")
    g.i(f"s_lshl_b32 s{S_T0}, s{S_TB}, 18")
    g.i(f"s_lshl_b32 s{S_T1}, s{S_BR}, 4")
    g.i(f"s_add_u32 s{S_T1}, s{S_T1}, s{S_HP}")
    g.i(f"s_lshl_b32 s{S_T2}, s{S_T1}, 18")
    g.i(f"s_add_u32 s{S_T2}, s{S_T2}, {WS_KV}")
    g.i(f"s_lshl_b32 s{S_T3}, s{S_BR}, 21")
    g.i(f"s_add_u32 s{S_T3}, s{S_T3}, {WS_O}")
    g.i("s_waitcnt lgkmcnt(0)")
    srd(a, S_X, S_M, 256 * 1024, f"s{S_T0}")
    srd(a, S_W, S_M + 2, 512 * 1536 * 2)
    g.i(f"s_cmp_ge_u32 s{S_WAVE}, 4")
    g.i("s_cbranch_scc1 L_loader")

def late_srds(g):
    a = g.a
    srd(a, S_WO, S_M + 4, 512 * 512 * 2)
    srd(a, S_KV, S_M + 6, 256 * 1024, f"s{S_T2}")
    srd(a, S_O, S_M + 6, 2 << 20, f"s{S_T3}")
    srd(a, S_FL, S_M + 6, 4096 + 16384, str(WS_FLAG))
    srd(a, S_DBG, 6, 256)
    srd(a, S_OUT, 4, 2048 * 1024 * 2)
    if g.diag:
        g.i(f"s_mov_b32 s96, s{S_M+6}")
        g.i(f"s_mov_b32 s97, s{S_M+7}")

def attn_consts(g):
    g.i(f"s_lshr_b32 s{S_T0}, s{S_WAVE}, 2")
    g.i(f"s_lshl_b32 s{S_T0}, s{S_T0}, 14")
    g.i(f"v_add_u32 v{V_KA}, s{S_T0}, v{V_L16}")
    g.i(f"v_and_b32 v{V_T0}, 15, v0")
    g.i(f"v_lshlrev_b32 v{V_T0}, 4, v{V_T0}")
    g.i(f"v_lshrrev_b32 v{V_T1}, 5, v0")
    g.i(f"v_lshl_add_u32 v{V_T0}, v{V_T1}, 8, v{V_T0}")
    g.i(f"s_add_u32 s{S_T0}, s{S_T0}, 1024")
    g.i(f"v_add_u32 v{V_VA}, s{S_T0}, v{V_T0}")
    g.i(f"v_and_b32 v{V_T0}, 31, v0")
    g.i(f"v_subrev_u32 v{V_T1}, 20, v{V_T0}")
    g.i(f"v_cmp_gt_u32 vcc, 8, v{V_T1}")
    g.i(f"v_mov_b32 v{V_T1}, {L_CONST+16}")
    g.i(f"v_mov_b32 v{V_VX}, {L_CONST+16+64}")
    g.i(f"v_cndmask_b32 v{V_T1}, v{V_T1}, v{V_VX}, vcc")
    g.i(f"v_and_b32 v{V_VX}, 27, v0")
    g.i(f"v_cmp_eq_u32 vcc, 16, v{V_VX}")
    g.i(f"v_subrev_u32 v{V_VX}, 16, v{V_T1}")
    g.i("s_nop 0")
    g.i(f"v_cndmask_b32 v{V_T1}, v{V_T1}, v{V_VX}, vcc")
    g.i(f"v_cmp_gt_u32 vcc, 16, v{V_T0}")
    g.i(f"v_mov_b32 v{V_T0}, {RING}")
    g.i(f"v_mov_b32 v{V_IDX}, 0xdddd")
    g.i(f"v_cndmask_b32 v{V_VA}, v{V_T1}, v{V_VA}, vcc")
    g.i(f"v_cndmask_b32 v{V_VX}, 0, v{V_T0}, vcc")
    for r in range(0, 32, 2):
        g.i(f"v_mov_b64 v[{V_O[0]+r}:{V_O[0]+r+1}], 0")
    for r in range(0, 8, 2):
        g.i(f"v_mov_b64 v[{V_S[1]+8+r}:{V_S[1]+9+r}], 0")
    for r in range(0, 4, 2):
        g.i(f"v_mov_b64 v[{V_V[1]+4+r}:{V_V[1]+5+r}], 0")
    g.i(f"v_lshrrev_b32 v{V_T0}, 2, v0")
    g.i(f"v_and_b32 v{V_T0}, 4, v{V_T0}")
    g.i(f"v_and_b32 v{V_T1}, 7, v0")
    g.i(f"v_xor_b32 v{V_T0}, v{V_T0}, v{V_T1}")
    g.i(f"v_lshlrev_b32 v{V_T0}, 4, v{V_T0}")
    g.i(f"v_lshrrev_b32 v{V_T1}, 3, v0")
    g.i(f"v_lshl_add_u32 v{V_WOA}, v{V_T1}, 10, v{V_T0}")

def loader(g):
    VX, VW = 100, 104
    g.lab("L_loader")
    g.i(f"s_sub_u32 s{S_A}, s{S_WAVE}, 4")
    g.i("v_lshrrev_b32 v6, 4, v0")
    g.i("v_and_b32 v7, 7, v0")
    g.i("v_xor_b32 v6, v6, v7")
    g.i("v_lshlrev_b32 v6, 4, v6")
    g.i("v_lshrrev_b32 v7, 3, v0")
    g.i(f"v_lshl_add_u32 v{VX}, v7, 10, v6")
    g.i(f"v_xor_b32 v{VX+1}, 64, v{VX}")
    g.i(f"v_add_u32 v{VX+2}, {2*7168}, v{VX}")
    g.i(f"v_add_u32 v{VX+3}, {3*7168}, v{VX+1}")
    g.i(f"v_add_u32 v{VX+1}, 7168, v{VX+1}")
    g.i(f"s_lshl_b32 s{S_B}, s{S_A}, 16")
    g.i(f"s_lshl_b32 s{S_D}, s{S_A}, 13")
    def issue_x():
        g.i(f"s_mov_b32 m0, s{S_D}")
        g.i(f"s_add_u32 s{S_T0}, s{S_B}, 32768")
        for p in range(4):
            g.i(f"buffer_load_dwordx4 v{VX+p}, s[{S_X}:{S_X+3}], s{S_B} offen offset:{1024*p} lds")
        g.i(f"s_add_u32 m0, s{S_D}, 4096")
        g.i(f"s_add_u32 s{S_B}, s{S_B}, 128")
        for p in range(4):
            g.i(f"buffer_load_dwordx4 v{VX+p}, s[{S_X}:{S_X+3}], s{S_T0} offen offset:{1024*p} lds")
    def issue_w():
        g.i(f"s_mov_b32 m0, s{S_E}")
        g.i("s_nop 0")
        for p in range(3):
            g.i(f"buffer_load_dwordx4 v{VW+p}, s[{S_W}:{S_W+3}], s{S_C} offen offset:{1024*p} lds")
        g.i(f"s_add_u32 s{S_C}, s{S_C}, {64*3072}")
    issue_x()
    for p in range(3):
        g.i(f"v_add_u32 v6, {64*p}, v0")
        g.i("v_mul_u32_u24 v7, 43691, v6")
        g.i("v_lshrrev_b32 v7, 19, v7")
        g.i("v_mul_u32_u24 v108, 12, v7")
        g.i("v_sub_u32 v6, v6, v108")
        g.i("v_mul_u32_u24 v7, 3072, v7")
        g.i("v_lshrrev_b32 v108, 2, v6")
        g.i("v_lshl_add_u32 v7, v108, 10, v7")
        g.i("v_and_b32 v6, 3, v6")
        g.i("v_lshl_add_u32 v7, v6, 4, v7")
        g.i(f"v_subrev_u32 v{VW+p}, {1024*p}, v7")
    g.i(f"s_mul_i32 s{S_C}, s{S_A}, {16*3072}")
    g.i(f"s_lshl_b32 s{S_T0}, s{S_HP}, 6")
    g.i(f"s_add_u32 s{S_C}, s{S_C}, s{S_T0}")
    g.i(f"s_mul_i32 s{S_E}, s{S_A}, 3072")
    g.i(f"s_add_u32 s{S_E}, s{S_E}, {SLOT_W}")
    issue_w()
    for c in (1, 2):
        g.i(f"s_add_u32 s{S_D}, s{S_D}, {SLOT}")
        g.i(f"s_add_u32 s{S_E}, s{S_E}, {SLOT}")
        issue_x(); issue_w()
    late_srds(g)
    attn_consts(g)
    g.i(f"s_cmp_lg_u32 s{S_WAVE}, 4")
    g.i("s_cbranch_scc1 L_ld_noconst")
    g.i("v_lshrrev_b32 v6, 2, v0")
    g.i("v_and_b32 v7, 1, v6")
    g.i("v_lshlrev_b32 v7, 9, v7")
    g.i("v_lshrrev_b32 v6, 1, v6")
    g.i("v_lshl_add_u32 v7, v6, 11, v7")
    g.i("v_and_b32 v6, 1, v0")
    g.i("v_lshl_add_u32 v7, v6, 4, v7")
    g.i("v_cmp_eq_u32 vcc, 0, v6")
    g.i("v_and_b32 v6, 2, v0")
    g.i("v_lshl_add_u32 v7, v6, 5, v7")
    g.i("v_mov_b32 v6, 0x3f803f80")
    g.i(f"v_add_u32 v7, {L_CONST}, v7")
    g.i("v_cndmask_b32 v108, 0, v6, vcc")
    g.i("v_cndmask_b32 v109, 0, v6, vcc")
    g.i("v_cndmask_b32 v110, 0, v6, vcc")
    g.i("v_cndmask_b32 v111, 0, v6, vcc")
    g.i("ds_write_b128 v7, v[108:111]")
    g.lab("L_ld_noconst")
    g.i("s_waitcnt vmcnt(22)")
    g.i("s_barrier")
    g.i(f"s_mov_b32 s{S_IT}, 1")
    g.lab("L_ld_loop")
    g.i("s_waitcnt vmcnt(11)")
    g.i("s_barrier")
    g.i(f"s_add_u32 s{S_D}, s{S_D}, {SLOT}")
    g.i(f"s_add_u32 s{S_E}, s{S_E}, {SLOT}")
    g.i(f"s_cmp_lt_u32 s{S_D}, {3*SLOT}")
    g.i(f"s_cselect_b32 s{S_T0}, 0, {3*SLOT}")
    g.i(f"s_sub_u32 s{S_D}, s{S_D}, s{S_T0}")
    g.i(f"s_sub_u32 s{S_E}, s{S_E}, s{S_T0}")
    issue_x(); issue_w()
    g.i(f"s_add_u32 s{S_IT}, s{S_IT}, 1")
    g.i(f"s_cmp_lt_u32 s{S_IT}, 6")
    g.i("s_cbranch_scc1 L_ld_loop")
    g.i("s_waitcnt vmcnt(11)")
    g.i("s_barrier")
    g.i("s_waitcnt vmcnt(0)")
    g.i("s_barrier")
    g.i(f"s_cmp_lg_u32 s{S_WAVE}, 4")
    g.i("s_cbranch_scc1 L_ld_nocert")
    g.i(f"s_lshl_b32 s{S_T0}, s{S_BR}, 4")
    g.i(f"s_add_u32 s{S_T0}, s{S_T0}, s{S_HP}")
    g.i(f"s_lshl_b32 s{S_T0}, s{S_T0}, 3")
    g.i(f"v_mov_b32 v{V_FA}, s{S_T0}")
    spin(g, "cert1", f"buffer_load_dword v{V_F}, v{V_FA}, s[{S_DBG}:{S_DBG+3}], 0 offen sc1", 8)
    g.lab("L_ld_nocert")
    g.i("s_waitcnt lgkmcnt(0)")
    g.i("s_barrier")
    g.i(f"s_lshl_b32 s{S_T0}, s{S_A}, 11")
    g.i(f"s_add_u32 s{S_T0}, s{S_T0}, {L_QX}")
    g.i(f"v_add_u32 v6, s{S_T0}, v{V_L16}")
    g.i(f"ds_read_b128 {vr(V_Q[0],4)}, v6")
    g.i(f"ds_read_b128 {vr(V_Q[1],4)}, v6 offset:1024")
    g.i("s_branch L_attn")

class LdsQ:
    def __init__(self, g): self.g = g; self.q = []
    def issue(self, tag): self.q.append(tag)
    def need(self, tags):
        idx = max([i for i, t in enumerate(self.q) if t in tags], default=-1)
        if idx >= 0:
            n = len(self.q) - 1 - idx
            self.g.i(f"s_waitcnt lgkmcnt({min(n,15)})")
            self.q = self.q[idx + 1:]

def compute(g):
    late_srds(g)
    g.i(f"s_cmp_lg_u32 s{S_WAVE}, 0")
    g.i("s_cbranch_scc1 L_cp_noclear")
    g.i(f"s_lshl_b32 s{S_T0}, s{S_BR}, 4")
    g.i(f"s_add_u32 s{S_T0}, s{S_T0}, s{S_HP}")
    g.i(f"s_lshl_b32 s{S_T1}, s{S_T0}, 7")
    g.i(f"s_lshl_b32 s{S_T2}, s{S_TB}, 4")
    g.i(f"s_add_u32 s{S_T1}, s{S_T1}, s{S_T2}")
    g.i(f"v_lshl_add_u32 v6, v0, 2, s{S_T1}")
    g.i(f"s_lshl_b32 s{S_T1}, s{S_BR}, 3")
    g.i(f"s_add_u32 s{S_T1}, s{S_T1}, s{S_TB}")
    g.i(f"s_lshl_b32 s{S_T1}, s{S_T1}, 10")
    g.i(f"s_lshr_b32 s{S_T2}, s{S_HP}, 3")
    g.i(f"s_lshl_b32 s{S_T2}, s{S_T2}, 7")
    g.i(f"s_add_u32 s{S_T1}, s{S_T1}, s{S_T2}")
    g.i(f"s_and_b32 s{S_T2}, s{S_HP}, 7")
    g.i(f"s_lshl_b32 s{S_T2}, s{S_T2}, 3")
    g.i(f"s_add_u32 s{S_T1}, s{S_T1}, s{S_T2}")
    g.i(f"s_add_u32 s{S_T1}, s{S_T1}, 4096")
    g.i("v_and_b32 v7, 3, v0")
    g.i(f"v_lshl_add_u32 v7, v7, 8, s{S_T1}")
    g.i("v_lshrrev_b32 v100, 3, v0")
    g.i("v_lshl_add_u32 v7, v100, 2, v7")
    g.i("v_cmp_gt_u32 vcc, 4, v0")
    g.i("v_mov_b32 v100, 0")
    g.i(f"s_lshl_b32 s{S_T0}, s{S_T0}, 3")
    g.i("v_cndmask_b32 v6, v7, v6, vcc")
    g.i("s_mov_b64 exec, 0xfff")
    g.i(f"buffer_store_dword v100, v6, s[{S_FL}:{S_FL+3}], 0 offen sc1")
    g.i("s_mov_b64 exec, 1")
    g.i(f"v_mov_b32 v6, s{S_T0}")
    g.i("v_mov_b32 v7, 1")
    g.i("s_waitcnt vmcnt(0)")
    g.i(f"buffer_atomic_add v7, v6, s[{S_DBG}:{S_DBG+3}], 0 offen sc1")
    g.i("s_mov_b64 exec, -1")
    g.lab("L_cp_noclear")
    attn_consts(g)
    g.i("v_and_b32 v6, 31, v0")
    g.i(f"s_lshl_b32 s{S_T0}, s{S_WAVE}, 13")
    g.i(f"v_lshl_add_u32 v100, v6, 7, s{S_T0}")
    g.i("v_bfe_u32 v6, v0, 1, 3")
    g.i("v_lshrrev_b32 v7, 5, v0")
    g.i("v_xor_b32 v6, v6, v7")
    for s in range(4):
        g.i(f"v_xor_b32 v7, {2*s}, v6")
        g.i(f"v_lshl_add_u32 v{V_XA+s}, v7, 4, v100")
    g.i("v_lshrrev_b32 v6, 5, v0")
    g.i("v_bfe_u32 v7, v0, 2, 2")
    g.i("v_lshl_add_u32 v6, v6, 3, v7")
    g.i("v_mul_u32_u24 v6, 192, v6")
    g.i("v_bfe_u32 v7, v0, 4, 1")
    g.i("v_lshl_add_u32 v6, v7, 5, v6")
    g.i("v_and_b32 v7, 3, v0")
    g.i("v_lshl_add_u32 v6, v7, 3, v6")
    g.i(f"v_add_u32 v{V_WA}, {SLOT_W}, v6")
    for r in range(0, 96, 2):
        g.i(f"v_mov_b64 v[{V_ACC+r}:{V_ACC+r+1}], 0")
    g.i(f"s_mov_b32 s{S_IT}, 0")
    g.i(f"s_mov_b32 s{S_A}, 0")
    g.i(f"s_mov_b32 s{S_B}, {SLOT}")
    q = LdsQ(g)
    def rd(setn, s, which):
        F = V_FR[setn]
        if which[0] == 'x':
            i = int(which[1])
            g.i(f"ds_read_b128 {vr(F+4*i,4)}, v{V_XA+s} offset:{4096*i}")
        else:
            p = {'q': 0, 'k': 1, 'v': 2}[which[0]]; i = int(which[1])
            g.i(f"ds_read_b64_tr_b16 {vr(F+8+4*p+2*i,2)}, v{V_WA} offset:{s*3072+i*768+p*64}")
        q.issue((setn, which))
    ORDER = ['x0', 'q0', 'q1', 'x1', 'k0', 'k1', 'v0', 'v1']
    def mf(setn, n):
        F = V_FR[setn]; p, i = n // 2, n % 2
        w, x = vr(F + 8 + 4 * p, 4), vr(F + 4 * i, 4)
        nm = 'qkv'[p]
        q.need({(setn, f'x{i}'), (setn, nm + '0'), (setn, nm + '1')})
        A, B = (w, x) if p < 2 else (x, w)
        acc = vr(V_ACC + 16 * n, 16)
        g.i(f"v_mfma_f32_32x32x16_bf16 {acc}, {A}, {B}, {acc}")
    def step(cur, nxt_s):
        plan = [ORDER[0:2], ORDER[2:4], ORDER[4:6], ORDER[6:8], [], []]
        for n in range(6):
            if cur is not None: mf(cur, n)
            if nxt_s is not None:
                for w in plan[n]: rd(1 - (cur if cur is not None else 1), nxt_s, w)
    g.i("s_barrier")
    g.stamp(1)
    step(None, 0)
    g.lab("L_cp_loop")
    q.q = [(0, w) for w in ORDER]
    step(0, 1); step(1, 2); step(0, 3)
    g.i(f"s_add_u32 s{S_A}, s{S_A}, 1")
    g.i(f"s_cmp_eq_u32 s{S_A}, 3")
    g.i(f"s_cselect_b32 s{S_T0}, {(-2*SLOT) & 0xffffffff}, s{S_B}")
    g.i(f"s_cselect_b32 s{S_A}, 0, s{S_A}")
    g.i(f"s_add_u32 s{S_IT}, s{S_IT}, 1")
    g.i(f"s_cmp_eq_u32 s{S_IT}, 8")
    g.i("s_cbranch_scc1 L_cp_last")
    g.i("s_waitcnt lgkmcnt(0)")
    q.q = []
    g.i("s_barrier")
    for r in range(5):
        g.i(f"v_add_u32 v{V_XA+r}, s{S_T0}, v{V_XA+r}")
    step(1, 0)
    g.i("s_branch L_cp_loop")
    g.lab("L_cp_last")
    q.q = [(1, w) for w in ORDER]
    step(1, None)
    g.stamp(2)
    g.i("v_and_b32 v6, 0x33, v0")
    g.i("v_bfe_u32 v7, v0, 2, 1")
    g.i("v_lshl_or_b32 v6, v7, 3, v6")
    g.i("v_bfe_u32 v7, v0, 3, 1")
    g.i("v_lshl_or_b32 v6, v7, 2, v6")
    KG, KL, VG, VL, QL = 196, 197, 198, 199, 200
    g.i(f"v_lshlrev_b32 v{KG}, 4, v6")
    g.i(f"s_lshl_b32 s{S_T0}, s{S_WAVE}, 12")
    g.i(f"v_add_u32 v{KL}, s{S_T0}, v{KG}")
    g.i("v_and_b32 v6, 15, v0")
    g.i("v_lshlrev_b32 v6, 4, v6")
    g.i("v_lshrrev_b32 v7, 5, v0")
    g.i("v_lshl_add_u32 v6, v7, 8, v6")
    g.i("v_add_u32 v6, 1024, v6")
    g.i("v_bfe_u32 v7, v0, 4, 1")
    g.i(f"v_lshl_add_u32 v{VG}, v7, 17, v6")
    g.i("v_lshl_add_u32 v6, v7, 14, v6")
    g.i(f"v_add_u32 v{VL}, s{S_T0}, v6")
    g.i(f"s_lshl_b32 s{S_T1}, s{S_TB}, 14")
    g.i(f"s_add_u32 s{S_T1}, s{S_T1}, s{S_T0}")
    g.i(f"s_add_u32 s{S_T2}, s{S_T1}, 131072")
    g.i(f"s_lshr_b32 s{S_T0}, s{S_T0}, 1")
    g.i(f"s_add_u32 s{S_T0}, s{S_T0}, {L_QX}")
    g.i(f"v_add_u32 v{QL}, s{S_T0}, v{V_L16}")
    T = 204
    n = 0
    for i in range(2):
        A = V_ACC + 16 * (2 + i)
        for hd in range(2):
            for r in range(4):
                g.i(f"v_cvt_pk_bf16_f32 v{T+4*n+r}, v{A+8*hd+2*r}, v{A+8*hd+2*r+1}")
            g.i(f"buffer_store_dwordx4 {vr(T+4*n,4)}, v{KG}, s[{S_KV}:{S_KV+3}], s{S_T2 if hd else S_T1} offen offset:{2048*i} sc1")
            g.i(f"ds_write_b128 v{KL}, {vr(T+4*n,4)} offset:{16384*hd+2048*i}")
            n += 1
    for i in range(2):
        A = V_ACC + 16 * (4 + i)
        for gr in range(2):
            for r in range(4):
                g.i(f"v_cvt_pk_bf16_f32 v{T+4*n+r}, v{A+8*gr+2*r}, v{A+8*gr+2*r+1}")
            g.i(f"buffer_store_dwordx4 {vr(T+4*n,4)}, v{VG}, s[{S_KV}:{S_KV+3}], s{S_T1} offen offset:{2048*i+512*gr} sc1")
            g.i(f"ds_write_b128 v{VL}, {vr(T+4*n,4)} offset:{2048*i+512*gr}")
            n += 1
    g.i(f"s_mov_b32 s{S_T0}, {hex(QSCALE)}")
    for i in range(2):
        A = V_ACC + 16 * i
        for r in range(16):
            g.i(f"v_mul_f32 v{A+r}, s{S_T0}, v{A+r}")
        for r in range(4):
            g.i(f"v_cvt_pk_bf16_f32 v{A+8+r}, v{A+8+2*r}, v{A+8+2*r+1}")
        g.i(f"ds_write_b128 v{QL}, {vr(A+8,4)} offset:{1024*i}")
        for r in range(4):
            g.i(f"v_cvt_pk_bf16_f32 v{V_Q[i]+r}, v{A+2*r}, v{A+2*r+1}")
    g.i("s_waitcnt lgkmcnt(0)")
    g.i("s_barrier")

U = 8
def dma_chunk(g):
    g.i(f"s_lshl_b32 s{S_T0}, s{S_C}, 14")
    g.i(f"s_add_u32 s{S_T0}, s{S_T0}, s{S_A}")
    g.i(f"s_add_u32 m0, s{S_D}, s{S_A}")
    g.i(f"s_add_u32 s{S_T1}, s{S_T0}, 131072")
    g.i(f"buffer_load_dwordx4 v{V_L16}, s[{S_KV}:{S_KV+3}], s{S_T0} offen sc1 lds")
    g.i(f"buffer_load_dwordx4 v{V_L16}, s[{S_KV}:{S_KV+3}], s{S_T0} offen offset:1024 sc1 lds")
    g.i("s_add_u32 m0, m0, 16384")
    g.i(f"s_add_u32 s{S_C}, s{S_C}, 1")
    g.i(f"buffer_load_dwordx4 v{V_L16}, s[{S_KV}:{S_KV+3}], s{S_T1} offen sc1 lds")
    g.i(f"buffer_load_dwordx4 v{V_L16}, s[{S_KV}:{S_KV+3}], s{S_T1} offen offset:1024 sc1 lds")
    g.i(f"s_and_b32 s{S_C}, s{S_C}, 7")
    g.i(f"s_xor_b32 s{S_D}, s{S_D}, {RING}")

def attention(g):
    opt = g.opt
    g.lab("L_attn")
    g.stamp(3)
    g.i(f"ds_read_b128 {vr(V_K,4)}, v{V_KA}")
    g.i(f"ds_read_b128 {vr(V_V[0],4)}, v{V_VA}")
    g.i(f"ds_read_b128 {vr(V_V[0]+4,4)}, v{V_VA} offset:512")
    g.i(f"s_mov_b32 s{S_IT}, 0")
    g.i(f"s_lshl_b32 s{S_A}, s{S_WAVE}, 11")
    g.i(f"s_add_u32 s{S_C}, s{S_TB}, 1")
    g.i(f"s_and_b32 s{S_C}, s{S_C}, 7")
    g.i(f"s_mov_b32 s{S_D}, {RING}")
    g.i(f"s_lshr_b32 s{S_T0}, s{S_HP}, 3")
    g.i(f"s_lshl_b32 s{S_T0}, s{S_T0}, 2")
    g.i(f"s_and_b32 s{S_T1}, s{S_HP}, 3")
    g.i(f"s_add_u32 s{S_F}, s{S_T0}, s{S_T1}")
    g.i(f"s_lshl_b32 s{S_T0}, s{S_F}, 7")
    g.i(f"s_lshl_b32 s{S_B}, s{S_WAVE}, 16")
    g.i(f"s_add_u32 s{S_B}, s{S_B}, s{S_T0}")
    g.i(f"s_lshl_b32 s{S_E}, s{S_WAVE}, 13")
    g.i(f"s_add_u32 s{S_E}, s{S_E}, {L_WO}")
    g.i(f"s_lshl_b32 s{S_T0}, s{S_BR}, 4")
    g.i(f"s_add_u32 s{S_T0}, s{S_T0}, s{S_HP}")
    g.i(f"s_lshl_b32 s{S_T0}, s{S_T0}, 7")
    g.i(f"v_and_b32 v6, 31, v0")
    g.i(f"v_lshl_add_u32 v{V_FA}, v6, 2, s{S_T0}")
    g.i("s_waitcnt lgkmcnt(0)")
    g.i(f"v_mfma_f32_32x32x16_bf16 {vr(V_S[0],16)}, {vr(V_K,4)}, {vr(V_Q[0],4)}, 0")
    g.i("s_nop 11")
    if opt.get('align', 1): g.a(".p2align 6")
    g.lab("L_at_loop")
    poll = f"buffer_load_dword v{V_F}, v{V_FA}, s[{S_FL}:{S_FL+3}], 0 offen sc1"
    def ev_publish():
        g.i(f"s_lshl_b32 s{S_T0}, s{S_IT}, 2")
        g.i(f"s_or_b32 s{S_T0}, s{S_T0}, s{S_WAVE}")
        g.i(f"s_cmp_ge_u32 s{S_T0}, 4")
        g.i("s_cbranch_scc1 L_at_nopub")
        g.i(f"s_lshl_b32 s{S_T0}, s{S_TB}, 2")
        g.i(f"s_add_u32 s{S_T0}, s{S_T0}, s{S_WAVE}")
        g.i(f"s_lshl_b64 exec, 1, s{S_T0}")
        g.i(f"v_mov_b32 v{V_F}, 1")
        g.i("s_waitcnt vmcnt(0)")
        g.i(f"buffer_store_dword v{V_F}, v{V_FA}, s[{S_FL}:{S_FL+3}], 0 offen sc1")
        g.i("s_mov_b64 exec, -1")
        g.lab("L_at_nopub")
    def ev_poll_issue():
        g.i(f"s_cmp_lg_u32 s{S_IT}, 0")
        g.i("s_cbranch_scc1 L_at_nopoll")
        g.i(poll)
        g.lab("L_at_nopoll")
    def ev_poll_check():
        g.i(f"s_cmp_lg_u32 s{S_IT}, 0")
        g.i("s_cbranch_scc1 L_at_nochk")
        g.i("s_waitcnt vmcnt(0)")
        g.i(f"v_cmp_ne_u32 vcc, 1, v{V_F}")
        g.i("s_cbranch_vccz L_at_ok1")
        spin(g, "kv", poll, 1)
        g.lab("L_at_ok1")
        dma_chunk(g)
        g.lab("L_at_nochk")
    def ev_cert_issue():
        g.i(f"s_lshl_b32 s{S_T0}, s{S_IT}, 3")
        g.i(f"s_or_b32 s{S_T0}, s{S_T0}, s{S_WAVE}")
        g.i(f"s_cmp_lg_u32 s{S_T0}, {4*8+4}")
        g.i("s_cbranch_scc1 L_at_nocert")
        g.i(f"s_lshl_b32 s{S_T0}, s{S_BR}, 7")
        g.i("v_and_b32 v6, 15, v0")
        g.i(f"v_lshl_add_u32 v{V_FA}, v6, 3, s{S_T0}")
        spin(g, "cert2", f"buffer_load_dword v{V_F}, v{V_FA}, s[{S_DBG}:{S_DBG+3}], 0 offen sc1", 8)
        g.lab("L_at_nocert")
    def ev_sync():
        g.i(f"s_cmp_ge_u32 s{S_IT}, 7")
        g.i("s_cbranch_scc1 L_at_nosync")
        g.i("s_waitcnt vmcnt(0)")
        g.i("s_barrier")
        g.i(f"s_cmp_ge_u32 s{S_IT}, 6")
        g.i("s_cbranch_scc1 L_at_nosync")
        dma_chunk(g)
        g.i(f"s_cmp_ge_u32 s{S_IT}, 4")
        g.i("s_cbranch_scc1 L_at_nosync")
        g.i(f"s_mov_b32 m0, s{S_E}")
        g.i(f"s_add_u32 s{S_T0}, s{S_B}, 7168")
        g.i(f"buffer_load_dwordx4 v{V_WOA}, s[{S_WO}:{S_WO+3}], s{S_B} offen lds")
        g.i(f"buffer_load_dwordx4 v{V_WOA}, s[{S_WO}:{S_WO+3}], s{S_T0} offen offset:1024 lds")
        g.i(f"s_add_u32 s{S_B}, s{S_B}, 16384")
        g.i(f"s_add_u32 s{S_E}, s{S_E}, 2048")
        g.lab("L_at_nosync")
        g.i(f"v_xor_b32 v{V_KA}, {RING}, v{V_KA}")
        g.i(f"v_xor_b32 v{V_VA}, v{V_VX}, v{V_VA}")
    pe = opt.get('ev', (1, 7, 9, 13))
    events = {pe[0]: ev_publish, pe[1]: ev_poll_issue, pe[2]: ev_poll_check, pe[3]: ev_cert_issue}
    prio = opt.get('prio', {0: 3, 7: 2, 12: 1, 15: 0})
    p2, pq, p1 = opt.get('pos', (1, 5, 10))
    for p in range(2 * U):
        b, t = p % 2, p // 2
        S, So = V_S[b], V_S[1 - b]
        nt = (t + 1) % U
        for e in range(16):
            g.i(f"v_exp_f32 v{S+e}, v{S+e}")
            if e == p2:
                tp = (p - 1) // 2
                g.i(f"v_smfmac_f32_32x32x32_bf16 {vr(V_O[1-b],16)}, {vr(V_V[tp%2]+4,4)}, {vr(So+8,8)}, v{V_IDX}")
                if b == 0:
                    if t == U - 1: ev_sync()
                    g.i(f"ds_read_b128 {vr(V_V[(t+1)%2],4)}, v{V_VA} offset:{nt*2048}")
                else:
                    g.i("s_waitcnt lgkmcnt(1)")
            if e == pq:
                g.i(f"v_mfma_f32_32x32x16_bf16 {vr(So,16)}, {vr(V_K,4)}, {vr(V_Q[1-b],4)}, 0")
                if b == 0:
                    g.i(f"ds_read_b128 {vr(V_K,4)}, v{V_KA} offset:{nt*2048}")
                elif (p + 1) % 16 in prio:
                    g.i(f"s_setprio {prio[(p+1)%16]}")
                if b == 1 and p in events: events[p]()
            if e == p1:
                g.i(f"v_smfmac_f32_32x32x32_bf16 {vr(V_O[b],16)}, {vr(V_V[t%2],4)}, {vr(S,8)}, v{V_IDX}")
                if b == 0:
                    g.i(f"ds_read_b128 {vr(V_V[(t+1)%2]+4,4)}, v{V_VA} offset:{nt*2048+512}")
                    if (p + 1) in prio: g.i(f"s_setprio {prio[p+1]}")
                else:
                    g.i("s_waitcnt lgkmcnt(0)")
                    if p == 2 * U - 1:
                        g.i(f"s_add_u32 s{S_IT}, s{S_IT}, 1")
    g.i(f"s_cmp_lt_u32 s{S_IT}, 8")
    g.i("s_cbranch_scc1 L_at_loop")
    g.i("s_nop 0")
    g.i(f"v_smfmac_f32_32x32x32_bf16 {vr(V_O[1],16)}, {vr(V_V[1]+4,4)}, {vr(V_S[1]+8,8)}, v{V_IDX}")
    g.stamp(4)
    g.i(f"s_and_b32 s{S_T0}, s{S_WAVE}, 3")
    g.i(f"s_lshl_b32 s{S_T0}, s{S_T0}, 1")
    g.i(f"s_lshl_b32 s{S_T1}, s{S_TB}, 3")
    g.i(f"s_add_u32 s{S_T0}, s{S_T0}, s{S_T1}")
    g.i(f"s_lshl_b32 s{S_A}, s{S_T0}, 15")
    g.i(f"s_lshr_b32 s{S_T1}, s{S_WAVE}, 2")
    g.i(f"s_lshl_b32 s{S_T2}, s{S_HP}, 1")
    g.i(f"s_add_u32 s{S_T1}, s{S_T1}, s{S_T2}")
    g.i(f"s_lshl_b32 s{S_T2}, s{S_T1}, 10")
    g.i(f"s_add_u32 s{S_A}, s{S_A}, s{S_T2}")
    g.i(f"s_add_u32 s{S_B}, s{S_A}, 32768")
    g.i(f"s_lshl_b32 s{S_C}, s{S_BR}, 3")
    g.i(f"s_add_u32 s{S_C}, s{S_C}, s{S_TB}")
    g.i(f"s_lshl_b32 s{S_C}, s{S_C}, 10")
    g.i(f"s_add_u32 s{S_C}, s{S_C}, 4096")
    g.i(f"s_and_b32 s{S_T0}, s{S_WAVE}, 3")
    g.i(f"s_lshl_b32 s{S_T0}, s{S_T0}, 8")
    g.i(f"s_bfe_u32 s{S_T2}, s{S_T1}, 0x10004")
    g.i(f"s_lshl_b32 s{S_T2}, s{S_T2}, 7")
    g.i(f"s_add_u32 s{S_T0}, s{S_T0}, s{S_T2}")
    g.i(f"s_and_b32 s{S_T1}, s{S_T1}, 15")
    g.i(f"s_lshl_b32 s{S_T1}, s{S_T1}, 2")
    g.i(f"s_add_u32 s{S_T0}, s{S_T0}, s{S_T1}")
    g.i(f"s_add_u32 s{S_D}, s{S_T0}, s{S_C}")
    g.i(f"s_mov_b32 s{S_T0}, 0x2b800000")
    g.i(f"s_mov_b32 s{S_T1}, 0x53800000")
    g.i(f"s_mov_b32 s{S_T2}, 0x7f800000")
    for q in range(2):
        O = V_O[q]
        g.i(f"v_add_f32 v6, abs(v{O}), abs(v{O+1})")
        g.i(f"v_add_f32 v7, abs(v{O+2}), abs(v{O+3})")
        for r in range(4, 8, 2):
            g.i(f"v_add_f32 v6, v6, abs(v{O+r})")
            g.i(f"v_add_f32 v7, v7, abs(v{O+r+1})")
        g.i(f"v_add_f32 v6, v6, v7")
        g.i(f"v_cmp_nle_f32 s[{S_M}:{S_M+1}], s{S_T0}, v{O+8}")
        g.i(f"v_cmp_nge_f32 s[{S_M+2}:{S_M+3}], s{S_T1}, v{O+8}")
        g.i(f"v_cmp_ngt_f32 vcc, s{S_T2}, v6")
        g.i(f"v_rcp_f32 v{V_S[0]+q}, v{O+8}")
        g.i(f"s_or_b64 s[{S_M}:{S_M+1}], s[{S_M}:{S_M+1}], s[{S_M+2}:{S_M+3}]")
        g.i(f"s_or_b64 s[{S_M}:{S_M+1}], s[{S_M}:{S_M+1}], vcc")
        g.i("s_branch L_fallback" if opt.get('force_fallback') else "s_cbranch_scc1 L_fallback")
    g.lab("L_at_store")
    for q in range(2):
        O = V_O[q]
        for r in range(8):
            g.i(f"v_mul_f32 v{O+r}, v{O+r}, v{V_S[0]+q}")
        for r in range(4):
            g.i(f"v_cvt_pk_bf16_f32 v{O+r}, v{O+2*r}, v{O+2*r+1}")
        g.i(f"buffer_store_dwordx4 {vr(O,4)}, v{V_L16}, s[{S_O}:{S_O+3}], s{S_B if q else S_A} offen sc1")

P_WO = 100
P_OF = 8
def outproj(g):
    opt = g.opt
    A0, A1 = 228, 72
    WA0, WA1, RA, OA = 244, 245, 246, 247
    g.i(f"s_lshr_b32 s{S_E}, s{S_WAVE}, 2")
    g.i(f"s_lshl_b32 s{S_T0}, s{S_E}, 15")
    g.i(f"s_add_u32 s{S_T0}, s{S_T0}, {L_WO}")
    g.i("v_lshrrev_b32 v6, 5, v0")
    g.i("v_bfe_u32 v7, v0, 2, 2")
    g.i("v_lshl_add_u32 v6, v6, 2, v7")
    g.i(f"v_lshl_add_u32 v6, v6, 7, s{S_T0}")
    g.i("v_bfe_u32 v7, v0, 3, 2")
    g.i("v_and_b32 v2, 1, v7")
    g.i("v_lshl_add_u32 v6, v2, 6, v6")
    g.i("v_lshrrev_b32 v7, 1, v7")
    g.i("v_lshl_add_u32 v6, v7, 5, v6")
    g.i("v_and_b32 v7, 3, v0")
    g.i(f"v_lshl_add_u32 v6, v7, 3, v6")
    g.i(f"s_lshl_b32 s{S_T0}, s{S_E}, 6")
    g.i(f"v_xor_b32 v{WA0}, s{S_T0}, v6")
    g.i(f"v_xor_b32 v{WA1}, 64, v{WA0}")
    n = 0
    def wo_reads(s0, s1):
        for s in range(s0, s1):
            for f in range(2):
                for i in range(2):
                    g.i(f"ds_read_b64_tr_b16 {vr(P_WO+8*s+4*f+2*i,2)}, v{WA1 if f else WA0} offset:{s*2048+i*1024}")
    wo_reads(0, 3)
    g.i(f"v_mov_b32 v6, s{S_D}")
    g.i("v_mov_b32 v7, 1")
    g.i("s_mov_b64 exec, 1")
    g.i("s_waitcnt vmcnt(0)")
    g.i(f"buffer_store_dword v7, v6, s[{S_FL}:{S_FL+3}], 0 offen sc1")
    g.i("s_mov_b64 exec, -1")
    g.stamp(5)
    for s0 in range(3, 16, 3):
        g.i("s_waitcnt lgkmcnt(2)")
        wo_reads(s0, min(s0 + 3, 16))
    g.i(f"s_bfe_u32 s{S_T0}, s{S_HP}, 0x10002")
    g.i(f"s_lshl_b32 s{S_T0}, s{S_T0}, 2")
    g.i(f"s_and_b32 s{S_T1}, s{S_WAVE}, 3")
    g.i(f"s_add_u32 s{S_A}, s{S_T0}, s{S_T1}")
    g.i(f"s_lshr_b32 s{S_T0}, s{S_A}, 1")
    g.i(f"s_lshl_b32 s{S_T0}, s{S_T0}, 8")
    g.i(f"s_lshl_b32 s{S_T1}, s{S_E}, 7")
    g.i(f"s_add_u32 s{S_T0}, s{S_T0}, s{S_T1}")
    g.i(f"s_add_u32 s{S_T0}, s{S_T0}, s{S_C}")
    g.i("v_and_b32 v6, 15, v0")
    g.i(f"v_lshl_add_u32 v2, v6, 2, s{S_T0}")
    g.i(f"s_lshl_b32 s{S_T0}, s{S_TB}, 3")
    g.i(f"s_add_u32 s{S_A}, s{S_A}, s{S_T0}")
    g.i(f"s_lshl_b32 s{S_B}, s{S_A}, 15")
    g.i(f"s_lshl_b32 s{S_T0}, s{S_E}, 14")
    g.i(f"s_add_u32 s{S_B}, s{S_B}, s{S_T0}")
    for r in range(0, 16, 2):
        g.i(f"v_mov_b64 v[{A1+r}:{A1+r+1}], 0")
    g.i(f"s_lshl_b32 s{S_T0}, s{S_WAVE}, 12")
    g.i(f"v_add_u32 v{RA}, s{S_T0}, v{V_L16}")
    g.i("v_and_b32 v6, 31, v0")
    g.i("v_lshlrev_b32 v6, 11, v6")
    g.i("v_lshrrev_b32 v7, 5, v0")
    g.i(f"v_lshl_add_u32 v{OA}, v7, 4, v6")
    g.i(f"s_lshl_b32 s{S_A}, s{S_A}, 16")
    g.i(f"s_lshl_b32 s{S_T0}, s{S_BR}, 10")
    g.i(f"s_add_u32 s{S_A}, s{S_A}, s{S_T0}")
    g.i(f"s_lshl_b32 s{S_T0}, s{S_F}, 7")
    g.i(f"s_add_u32 s{S_A}, s{S_A}, s{S_T0}")
    g.i(f"s_lshl_b32 s{S_T0}, s{S_E}, 6")
    g.i(f"s_add_u32 s{S_A}, s{S_A}, s{S_T0}")
    g.i(f"s_mov_b32 s{S_T3}, 0")
    g.lab("L_spin_o")
    g.i(f"buffer_load_dword v3, v2, s[{S_FL}:{S_FL+3}], 0 offen sc1")
    g.i(f"s_add_u32 s{S_T3}, s{S_T3}, 1")
    g.i("s_waitcnt vmcnt(0)")
    g.i("v_cmp_ne_u32 vcc, 1, v3")
    g.i(f"s_cmp_ge_u32 s{S_T3}, {SPIN_MAX}")
    g.i("s_cbranch_scc1 L_spun_o")
    g.i("s_cbranch_vccnz L_spin_o")
    g.lab("L_spun_o")
    g.stamp(6)
    for s in range(16):
        if s and s % 4 == 0:
            g.i(f"s_add_u32 s{S_B}, s{S_B}, 4096")
        g.i(f"buffer_load_dwordx4 {vr(P_OF+4*s,4)}, v{V_L16}, s[{S_O}:{S_O+3}], s{S_B} offen offset:{1024*(s%4)} sc1")
    for r in range(0, 16, 2):
        g.i(f"v_mov_b64 v[{A0+r}:{A0+r+1}], 0")
    g.i("s_waitcnt lgkmcnt(0)")
    for s in range(16):
        g.i(f"s_waitcnt vmcnt({15-s})")
        for f, A in ((1, A1), (0, A0)):
            g.i(f"v_mfma_f32_32x32x16_bf16 {vr(A,16)}, {vr(P_WO+8*s+4*f,4)}, {vr(P_OF+4*s,4)}, {vr(A,16)}")
    g.i("s_nop 10")
    for r in range(4):
        g.i(f"ds_write_b128 v{RA}, {vr(A1+4*r,4)} offset:{1024*r}")
    g.i("s_waitcnt lgkmcnt(0)")
    g.i(f"v_xor_b32 v{RA}, 16384, v{RA}")
    g.i("s_barrier")
    for r in range(4):
        g.i(f"ds_read_b128 {vr(P_OF+4*r,4)}, v{RA} offset:{1024*r}")
    for r in range(4):
        g.i(f"s_waitcnt lgkmcnt({3-r})")
        for k in range(4):
            g.i(f"v_add_f32 v{A0+4*r+k}, v{A0+4*r+k}, v{P_OF+4*r+k}")
        for k in range(2):
            g.i(f"v_cvt_pk_bf16_f32 v{24+2*r+k}, v{A0+4*r+2*k}, v{A0+4*r+2*k+1}")
        if r % 2:
            g.i("s_nop 1")
            g.i(f"v_permlane32_swap_b32 v{24+2*r-2}, v{24+2*r}")
            g.i(f"v_permlane32_swap_b32 v{24+2*r-1}, v{24+2*r+1}")
            g.i(f"buffer_store_dwordx4 {vr(24+2*r-2,4)}, v{OA}, s[{S_OUT}:{S_OUT+3}], s{S_A} offen offset:{16*(r-1)}")
    if g.diag:
        g.i("s_waitcnt vmcnt(0)")
        g.stamp(7)
        g.i("s_waitcnt lgkmcnt(0)")
        if g.diag == 2:
            g.i(f"s_cmp_ge_u32 s{S_WAVE}, 4")
            g.i("s_cbranch_scc1 L_end")
            g.i("s_mov_b64 exec, 1")
            for k in range(1, 8):
                g.i(f"s_sub_u32 s{S_T0}, s{66+4*k}, s66")
                g.i(f"v_mov_b32 v6, s{S_T0}")
                g.i(f"v_mov_b32 v7, {8*k+4}")
                g.i(f"buffer_atomic_umax v6, v7, s[{S_DBG}:{S_DBG+3}], 0 offen sc1")
            g.i(f"s_sub_u32 s{S_T0}, s{64+4*4}, s{64+4*3}")
            g.i(f"v_mov_b32 v6, s{S_T0}")
            g.i(f"v_mov_b32 v7, 4")
            g.i(f"buffer_atomic_umax v6, v7, s[{S_DBG}:{S_DBG+3}], 0 offen sc1")
            g.i("s_endpgm")
        g.i(f"s_lshl_b32 s{S_T0}, s2, 3")
        g.i(f"s_add_u32 s{S_T0}, s{S_T0}, s{S_WAVE}")
        g.i(f"s_lshl_b32 s{S_T0}, s{S_T0}, 7")
        g.i(f"s_add_u32 s{S_T0}, s{S_T0}, {WS_STAMP}")
        srd(g.a, S_X, 96, 128, f"s{S_T0}")
        for k in range(32):
            g.i(f"v_mov_b32 v{36+k}, s{64+k}")
        g.i("v_mov_b32 v6, 0")
        for k in range(8):
            g.i(f"buffer_store_dwordx4 {vr(36+4*k,4)}, v6, s[{S_X}:{S_X+3}], 0 offen offset:{16*k}")
    g.lab("L_end")
    g.i("s_endpgm")

def fallback(g):
    C = [100, 116]; M = [132, 133]; GV = 134
    g.lab("L_fallback")
    g.i(f"s_lshr_b32 s{S_T0}, s{S_WAVE}, 2")
    g.i(f"s_lshl_b32 s{S_T0}, s{S_T0}, 17")
    g.i(f"v_mov_b32 v{M[0]}, 0xff800000")
    g.i(f"v_mov_b32 v{M[1]}, 0xff800000")
    g.i(f"s_mov_b32 s{S_T1}, s{S_T0}")
    g.i(f"s_add_u32 s{S_T2}, s{S_T0}, 131072")
    g.lab("L_fb_max")
    g.i(f"buffer_load_dwordx4 {vr(V_K,4)}, v{V_L16}, s[{S_KV}:{S_KV+3}], s{S_T1} offen sc1")
    g.i(f"s_add_u32 s{S_T1}, s{S_T1}, 2048")
    g.i("s_waitcnt vmcnt(0)")
    for q in range(2):
        g.i(f"v_mfma_f32_32x32x16_bf16 {vr(V_S[q],16)}, {vr(V_K,4)}, {vr(V_Q[q],4)}, 0")
    g.i("s_nop 15")
    for q in range(2):
        for r in range(0, 16, 2):
            g.i(f"v_max3_f32 v{M[q]}, v{M[q]}, v{V_S[q]+r}, v{V_S[q]+r+1}")
    g.i(f"s_cmp_lt_u32 s{S_T1}, s{S_T2}")
    g.i("s_cbranch_scc1 L_fb_max")
    for q in range(2):
        g.i(f"v_mov_b32 v6, v{M[q]}")
        g.i(f"v_mov_b32 v7, v{M[q]}")
        g.i("s_nop 1")
        g.i("v_permlane32_swap_b32 v6, v7")
        g.i("s_nop 1")
        g.i("v_max_f32 v6, v6, v7")
        for r in range(16):
            g.i(f"v_sub_f32 v{C[q]+r}, 0, v6")
            g.i(f"v_mov_b32 v{V_O[q]+r}, 0")
    g.i("v_and_b32 v6, 15, v0")
    g.i("v_lshlrev_b32 v6, 4, v6")
    g.i("v_lshrrev_b32 v7, 5, v0")
    g.i(f"v_lshl_add_u32 v{GV}, v7, 8, v6")
    for r in range(8):
        g.i(f"v_mov_b32 v{V_V[0]+r}, 0x3f803f80")
    g.i(f"s_mov_b32 s{S_T1}, s{S_T0}")
    g.i(f"s_mov_b32 s{S_M}, 0xffff")
    g.i(f"s_mov_b32 s{S_M+1}, 0xffff")
    g.lab("L_fb_pv")
    g.i(f"buffer_load_dwordx4 {vr(V_K,4)}, v{V_L16}, s[{S_KV}:{S_KV+3}], s{S_T1} offen sc1")
    g.i(f"s_mov_b64 exec, s[{S_M}:{S_M+1}]")
    g.i(f"buffer_load_dwordx4 {vr(V_V[0],4)}, v{GV}, s[{S_KV}:{S_KV+3}], s{S_T1} offen offset:1024 sc1")
    g.i(f"buffer_load_dwordx4 {vr(V_V[0]+4,4)}, v{GV}, s[{S_KV}:{S_KV+3}], s{S_T1} offen offset:1536 sc1")
    g.i("s_mov_b64 exec, -1")
    g.i(f"s_add_u32 s{S_T1}, s{S_T1}, 2048")
    g.i("s_waitcnt vmcnt(0)")
    for q in range(2):
        g.i(f"v_mfma_f32_32x32x16_bf16 {vr(V_S[q],16)}, {vr(V_K,4)}, {vr(V_Q[q],4)}, {vr(C[q],16)}")
    g.i("s_nop 15")
    for q in range(2):
        for r in range(16):
            g.i(f"v_exp_f32 v{V_S[q]+r}, v{V_S[q]+r}")
    g.i("s_nop 3")
    for q in range(2):
        for h in range(2):
            g.i(f"v_smfmac_f32_32x32x32_bf16 {vr(V_O[q],16)}, {vr(V_V[0]+4*h,4)}, {vr(V_S[q]+8*h,8)}, v{V_IDX}")
    g.i("s_nop 15")
    g.i(f"s_cmp_lt_u32 s{S_T1}, s{S_T2}")
    g.i("s_cbranch_scc1 L_fb_pv")
    for q in range(2):
        g.i(f"v_rcp_f32 v{V_S[0]+q}, v{V_O[q]+8}")
    g.i("s_nop 1")
    g.i("s_branch L_at_store")

HEADER = open('cdna_kernels/' + NAME + '.s.ref').read().split('; Override launch')[0]

def generate(opt={}):
    g = G(opt)
    name = NAME + "_kernel"
    g.a(HEADER.rstrip())
    g.a(f"; @launch grid=(256,1,1) block=(512,1,1) lds={LDS_TOTAL}")
    g.a('.amdgcn_target "amdgcn-amd-amdhsa--gfx950"')
    entry(g, name)
    compute(g)
    attention(g)
    outproj(g)
    loader(g)
    fallback(g)
    kernel_desc(g.a, name, NVGPR, 256, 102)
    return g.a.text()

if __name__ == "__main__":
    import sys
    opt = eval(sys.argv[2]) if len(sys.argv) > 2 else {}
    open(sys.argv[1], 'w').write(generate(opt))
```

```python
import math, struct
from common import *

WS_FLAG = 16 << 20
SLOT = 45056; SLOT_W = 32768
RING = 32768
L_WO = 65536
L_CONST = 135168
L_QX = 155648
LDS_TOTAL = 163840
S_X, S_W, S_WO, S_KV, S_O, S_FL, S_DBG, S_OUT = 8, 12, 16, 20, 24, 28, 32, 36
S_WAVE, S_BR, S_HP, S_TB, S_IT, S_T0, S_T1, S_T2, S_T3 = 40, 41, 42, 43, 44, 45, 46, 47, 48
S_A, S_B, S_C, S_D, S_E, S_F = 49, 50, 51, 52, 53, 54
S_M = 56
V_L16, V_KA, V_VA, V_VX, V_IDX, V_T0, V_T1 = 1, 2, 3, 4, 5, 6, 7
V_Q = [8, 12]; V_K = 16; V_V = [20, 28]; V_S = [36, 52]; V_O = [68, 84]
V_F = 241
V_FA = 242
V_WOA = 243
V_ACC = 100
V_FR = [196, 216]
V_XA = 236; V_WA = 240
NVGPR = 256
QSCALE = struct.unpack('<I', struct.pack('<f', 0.25 * math.log2(math.e)))[0]
SPIN_MAX = 1 << 20

class G:
    def __init__(self, opt):
        self.a = Asm(); self.opt = opt; self.diag = opt.get('diag', 0)
    def i(self, s): self.a.i(s)
    def lab(self, s): self.a.label(s)
    def st(self, name):
        m = self.opt.get('st', {})
        if name in m: self.stamp(m[name], True)
    def stamp(self, k, forced=False):
        if k in self.opt.get('st', {}).values() and not forced: return
        if self.diag:
            self.i(f"s_memtime s[{64+4*k}:{65+4*k}]")
            self.i(f"s_memrealtime s[{66+4*k}:{67+4*k}]")

def spin(g, tag, load, want, nlanes_mask=None):
    g.i(f"s_mov_b32 s{S_T3}, 0")
    g.lab(f"L_spin_{tag}")
    g.i(load)
    g.i(f"s_add_u32 s{S_T3}, s{S_T3}, 1")
    g.i("s_waitcnt vmcnt(0)")
    g.i(f"v_cmp_{'gt' if want > 1 else 'ne'}_u32 vcc, {want}, v{V_F}")
    g.i(f"s_cmp_ge_u32 s{S_T3}, {SPIN_MAX}")
    g.i(f"s_cbranch_scc1 L_spun_{tag}")
    g.i(f"s_cbranch_vccnz L_spin_{tag}")
    g.lab(f"L_spun_{tag}")

def entry(g, name):
    a = g.a
    kernel_head(a, name)
    g.i("s_cmp_ge_u32 s2, 256")
    g.i("s_cbranch_scc1 L_end")
    g.stamp(0)
    g.i(f"s_bfe_u32 s{S_BR}, s2, 0x10002")
    g.i(f"s_mul_i32 s{S_T0}, s{S_BR}, 24")
    g.i(f"s_load_dwordx4 s[{S_M}:{S_M+3}], s[0:1], s{S_T0}")
    g.i(f"s_load_dwordx2 s[{S_M+4}:{S_M+5}], s[0:1], s{S_T0} offset:16")
    g.i("s_load_dwordx4 s[4:7], s[0:1], 48")
    g.i(f"s_load_dwordx2 s[{S_M+6}:{S_M+7}], s[0:1], 64")
    g.i("v_lshrrev_b32 v6, 6, v0")
    g.i("v_and_b32 v0, 63, v0")
    g.i(f"v_readfirstlane_b32 s{S_WAVE}, v6")
    g.i(f"v_lshlrev_b32 v{V_L16}, 4, v0")
    g.i(f"s_bfe_u32 s{S_HP}, s2, 0x10001")
    g.i(f"s_lshl_b32 s{S_HP}, s{S_HP}, 3")
    g.i(f"s_bfe_u32 s{S_T0}, s2, 0x30003")
    g.i(f"s_add_u32 s{S_HP}, s{S_HP}, s{S_T0}")
    g.i(f"s_and_b32 s{S_TB}, s2, 1")
    g.i(f"s_lshl_b32 s{S_TB}, s{S_TB}, 2")
    g.i(f"s_lshr_b32 s{S_T0}, s2, 6")
    g.i(f"s_add_u32 s{S_TB}, s{S_TB}, s{S_T0}")
    g.i(f"s_lshl_b32 s{S_T0}, s{S_TB}, 18")
    g.i(f"s_lshl_b32 s{S_T1}, s{S_BR}, 4")
    g.i(f"s_add_u32 s{S_T1}, s{S_T1}, s{S_HP}")
    g.i(f"s_lshl_b32 s{S_T2}, s{S_T1}, 18")
    g.i(f"s_add_u32 s{S_T2}, s{S_T2}, {WS_KV}")
    g.i(f"s_lshl_b32 s{S_T3}, s{S_BR}, 21")
    g.i(f"s_add_u32 s{S_T3}, s{S_T3}, {WS_O}")
    g.i(f"s_cmp_ge_u32 s{S_WAVE}, 4")
    g.i("s_cbranch_scc1 L_loader")

def early_srds(g):
    g.i("s_waitcnt lgkmcnt(0)")
    g.st('karg')
    srd(g.a, S_X, S_M, 256 * 1024, f"s{S_T0}")
    srd(g.a, S_W, S_M + 2, 512 * 1536 * 2)

def late_srds(g):
    a = g.a
    srd(a, S_WO, S_M + 4, 512 * 512 * 2)
    srd(a, S_KV, S_M + 6, 256 * 1024, f"s{S_T2}")
    srd(a, S_O, S_M + 6, 2 << 20, f"s{S_T3}")
    srd(a, S_FL, S_M + 6, 4096 + 16384, str(WS_FLAG))
    srd(a, S_DBG, 6, 256)
    srd(a, S_OUT, 4, 2048 * 1024 * 2)
    if g.diag:
        g.i(f"s_mov_b32 s96, s{S_M+6}")
        g.i(f"s_mov_b32 s97, s{S_M+7}")

def attn_consts(g):
    g.i(f"s_lshr_b32 s{S_T0}, s{S_WAVE}, 2")
    g.i(f"s_lshl_b32 s{S_T0}, s{S_T0}, 14")
    g.i(f"v_add_u32 v{V_KA}, s{S_T0}, v{V_L16}")
    g.i(f"v_and_b32 v{V_T0}, 15, v0")
    g.i(f"v_lshlrev_b32 v{V_T0}, 4, v{V_T0}")
    g.i(f"v_lshrrev_b32 v{V_T1}, 5, v0")
    g.i(f"v_lshl_add_u32 v{V_T0}, v{V_T1}, 8, v{V_T0}")
    g.i(f"s_add_u32 s{S_T0}, s{S_T0}, 1024")
    g.i(f"v_add_u32 v{V_VA}, s{S_T0}, v{V_T0}")
    g.i(f"v_and_b32 v{V_T0}, 31, v0")
    g.i(f"v_subrev_u32 v{V_T1}, 20, v{V_T0}")
    g.i(f"v_cmp_gt_u32 vcc, 8, v{V_T1}")
    g.i(f"v_mov_b32 v{V_T1}, {L_CONST+16}")
    g.i(f"v_mov_b32 v{V_VX}, {L_CONST+16+64}")
    g.i(f"v_cndmask_b32 v{V_T1}, v{V_T1}, v{V_VX}, vcc")
    g.i(f"v_and_b32 v{V_VX}, 27, v0")
    g.i(f"v_cmp_eq_u32 vcc, 16, v{V_VX}")
    g.i(f"v_subrev_u32 v{V_VX}, 16, v{V_T1}")
    g.i("s_nop 0")
    g.i(f"v_cndmask_b32 v{V_T1}, v{V_T1}, v{V_VX}, vcc")
    g.i(f"v_cmp_gt_u32 vcc, 16, v{V_T0}")
    g.i(f"v_mov_b32 v{V_T0}, {RING}")
    g.i(f"v_mov_b32 v{V_IDX}, 0xdddd")
    g.i(f"v_cndmask_b32 v{V_VA}, v{V_T1}, v{V_VA}, vcc")
    g.i(f"v_cndmask_b32 v{V_VX}, 0, v{V_T0}, vcc")
    for r in range(0, 32, 2):
        g.i(f"v_mov_b64 v[{V_O[0]+r}:{V_O[0]+r+1}], 0")
    for r in range(0, 8, 2):
        g.i(f"v_mov_b64 v[{V_S[1]+8+r}:{V_S[1]+9+r}], 0")
    for r in range(0, 4, 2):
        g.i(f"v_mov_b64 v[{V_V[1]+4+r}:{V_V[1]+5+r}], 0")
    g.i(f"v_lshrrev_b32 v{V_T0}, 2, v0")
    g.i(f"v_and_b32 v{V_T0}, 4, v{V_T0}")
    g.i(f"v_and_b32 v{V_T1}, 7, v0")
    g.i(f"v_xor_b32 v{V_T0}, v{V_T0}, v{V_T1}")
    g.i(f"v_lshlrev_b32 v{V_T0}, 4, v{V_T0}")
    g.i(f"v_lshrrev_b32 v{V_T1}, 3, v0")
    g.i(f"v_lshl_add_u32 v{V_WOA}, v{V_T1}, 10, v{V_T0}")

def consts(g):
    g.i(f"s_cmp_lg_u32 s{S_WAVE}, 4")
    g.i("s_cbranch_scc1 L_ld_noconst")
    g.i("v_lshrrev_b32 v6, 2, v0")
    g.i("v_and_b32 v7, 1, v6")
    g.i("v_lshlrev_b32 v7, 9, v7")
    g.i("v_lshrrev_b32 v6, 1, v6")
    g.i("v_lshl_add_u32 v7, v6, 11, v7")
    g.i("v_and_b32 v6, 1, v0")
    g.i("v_lshl_add_u32 v7, v6, 4, v7")
    g.i("v_cmp_eq_u32 vcc, 0, v6")
    g.i("v_and_b32 v6, 2, v0")
    g.i("v_lshl_add_u32 v7, v6, 5, v7")
    g.i("v_mov_b32 v6, 0x3f803f80")
    g.i(f"v_add_u32 v7, {L_CONST}, v7")
    g.i("v_cndmask_b32 v108, 0, v6, vcc")
    g.i("v_cndmask_b32 v109, 0, v6, vcc")
    g.i("v_cndmask_b32 v110, 0, v6, vcc")
    g.i("v_cndmask_b32 v111, 0, v6, vcc")
    g.i("ds_write_b128 v7, v[108:111]")
    g.lab("L_ld_noconst")

def loader(g):
    VX, VW, VT = 100, 104, 112
    LEAD = g.opt.get('lead', 0)
    g.lab("L_loader")
    g.i(f"s_sub_u32 s{S_A}, s{S_WAVE}, 4")
    S_CH, S_TX = S_F, 55
    RM = g.opt.get('rot', 4)
    if RM == 1:
        g.i(f"s_lshl_b32 s{S_CH}, s{S_TB}, 1")
        g.i(f"s_lshr_b32 s{S_T1}, s{S_TB}, 2")
        g.i(f"s_add_u32 s{S_CH}, s{S_CH}, s{S_T1}")
        g.i(f"s_and_b32 s{S_CH}, s{S_CH}, 7")
    elif RM == 2:
        g.i(f"s_mov_b32 s{S_CH}, s{S_TB}")
    elif RM == 4:
        g.i(f"s_lshl_b32 s{S_CH}, s{S_TB}, 1")
        g.i(f"s_add_u32 s{S_CH}, s{S_CH}, s{S_HP}")
        g.i(f"s_and_b32 s{S_CH}, s{S_CH}, 3")
        g.i(f"s_lshl_b32 s{S_CH}, s{S_CH}, 1")
    elif RM == 5:
        g.i(f"s_add_u32 s{S_CH}, s{S_TB}, s{S_HP}")
        g.i(f"s_and_b32 s{S_CH}, s{S_CH}, 3")
        g.i(f"s_lshl_b32 s{S_CH}, s{S_CH}, 1")
    elif RM == 3:
        g.i(f"s_lshl_b32 s{S_CH}, s{S_TB}, 1")
        g.i(f"s_and_b32 s{S_T1}, s{S_HP}, 1")
        g.i(f"s_add_u32 s{S_CH}, s{S_CH}, s{S_T1}")
        g.i(f"s_and_b32 s{S_CH}, s{S_CH}, 7")
    g.i(f"v_lshlrev_b32 v{VT}, 10, v0")
    g.i(f"s_and_b32 s{S_TX}, s{S_HP}, 7")
    g.i(f"s_lshl_b32 s{S_TX}, s{S_TX}, 2")
    g.i(f"s_add_u32 s{S_TX}, s{S_TX}, s{S_A}")
    g.i(f"s_lshl_b32 s{S_TX}, s{S_TX}, 13")
    NT = 1 if LEAD else 0
    def touch(ahead):
        if not LEAD: return
        g.i(f"s_add_u32 s{S_T0}, s{S_CH}, {ahead}")
        g.i(f"s_and_b32 s{S_T0}, s{S_T0}, 7")
        g.i(f"s_lshl_b32 s{S_T0}, s{S_T0}, 7")
        g.i(f"s_add_u32 s{S_T0}, s{S_T0}, s{S_TX}")
        g.i("s_mov_b64 exec, 0xff")
        g.i(f"buffer_load_dword v244, v{VT}, s[{S_X}:{S_X+3}], s{S_T0} offen")
        g.i("s_mov_b64 exec, -1")
    g.i("v_lshrrev_b32 v6, 4, v0")
    g.i("v_and_b32 v7, 7, v0")
    g.i("v_xor_b32 v6, v6, v7")
    g.i("v_lshlrev_b32 v6, 4, v6")
    g.i("v_lshrrev_b32 v7, 3, v0")
    g.i(f"v_lshl_add_u32 v{VX}, v7, 10, v6")
    g.i(f"v_xor_b32 v{VX+1}, 64, v{VX}")
    g.i(f"v_add_u32 v{VX+2}, {2*7168}, v{VX}")
    g.i(f"v_add_u32 v{VX+3}, {3*7168}, v{VX+1}")
    g.i(f"v_add_u32 v{VX+1}, 7168, v{VX+1}")
    g.i(f"s_lshl_b32 s{S_B}, s{S_A}, 16")
    g.i(f"s_lshl_b32 s{S_D}, s{S_A}, 13")
    for p in range(3):
        g.i(f"v_add_u32 v6, {64*p}, v0")
        g.i("v_mul_u32_u24 v7, 43691, v6")
        g.i("v_lshrrev_b32 v7, 19, v7")
        g.i("v_mul_u32_u24 v110, 12, v7")
        g.i("v_sub_u32 v6, v6, v110")
        g.i("v_mul_u32_u24 v7, 3072, v7")
        g.i("v_lshrrev_b32 v110, 2, v6")
        g.i("v_lshl_add_u32 v7, v110, 10, v7")
        g.i("v_and_b32 v6, 3, v6")
        g.i("v_lshl_add_u32 v7, v6, 4, v7")
        g.i(f"v_subrev_u32 v{VW+p}, {1024*p}, v7")
    g.i(f"s_mul_i32 s{S_C}, s{S_A}, {16*3072}")
    g.i(f"s_lshl_b32 s{S_T1}, s{S_HP}, 6")
    g.i(f"s_add_u32 s{S_C}, s{S_C}, s{S_T1}")
    g.i(f"s_mul_i32 s{S_E}, s{S_A}, 3072")
    g.i(f"s_add_u32 s{S_E}, s{S_E}, {SLOT_W}")
    early_srds(g)
    def issue():
        g.i(f"s_lshl_b32 s{S_T1}, s{S_CH}, 7")
        g.i(f"s_add_u32 s{S_T1}, s{S_T1}, s{S_B}")
        g.i(f"s_mov_b32 m0, s{S_D}")
        g.i(f"s_add_u32 s{S_T0}, s{S_T1}, 32768")
        for p in range(4):
            g.i(f"buffer_load_dwordx4 v{VX+p}, s[{S_X}:{S_X+3}], s{S_T1} offen offset:{1024*p} lds")
        g.i(f"s_add_u32 m0, s{S_D}, 4096")
        g.i(f"s_mul_i32 s{S_T1}, s{S_CH}, {64*3072}")
        for p in range(4):
            g.i(f"buffer_load_dwordx4 v{VX+p}, s[{S_X}:{S_X+3}], s{S_T0} offen offset:{1024*p} lds")
        g.i(f"s_mov_b32 m0, s{S_E}")
        g.i(f"s_add_u32 s{S_T1}, s{S_T1}, s{S_C}")
        for p in range(3):
            g.i(f"buffer_load_dwordx4 v{VW+p}, s[{S_W}:{S_W+3}], s{S_T1} offen offset:{1024*p} lds")
        g.i(f"s_add_u32 s{S_CH}, s{S_CH}, 1")
        g.i(f"s_and_b32 s{S_CH}, s{S_CH}, 7")
    def next_slot():
        g.i(f"s_add_u32 s{S_D}, s{S_D}, {SLOT}")
        g.i(f"s_add_u32 s{S_E}, s{S_E}, {SLOT}")
        g.i(f"s_cmp_lt_u32 s{S_D}, {3*SLOT}")
        g.i(f"s_cselect_b32 s{S_T0}, 0, {3*SLOT}")
        g.i(f"s_sub_u32 s{S_D}, s{S_D}, s{S_T0}")
        g.i(f"s_sub_u32 s{S_E}, s{S_E}, s{S_T0}")
    issue()
    g.st('ld_c0')
    next_slot(); issue()
    for c in range(2, LEAD): touch(c - 2)
    g.st('ld_c2')
    late_srds(g); attn_consts(g); consts(g)
    g.st('ld_pre')
    n0 = NT * max(LEAD - 2, 0)
    for c, n in ((0, 11 + n0), (1, n0 + 11 + NT)):
        g.i(f"s_waitcnt vmcnt({n})")
        if c == 0: g.st('ld_got0')
        g.i("s_barrier")
        next_slot(); issue(); touch(LEAD - 3)
    g.i(f"s_mov_b32 s{S_IT}, 2")
    g.lab("L_ld_loop")
    g.i(f"s_waitcnt vmcnt({11+2*NT})")
    g.i("s_barrier")
    next_slot(); issue(); touch(LEAD - 3)
    g.i(f"s_add_u32 s{S_IT}, s{S_IT}, 1")
    g.i(f"s_cmp_lt_u32 s{S_IT}, 6")
    g.i("s_cbranch_scc1 L_ld_loop")
    g.st('ld_iss7')
    g.i(f"s_waitcnt vmcnt({11+2*NT})")
    g.i("s_barrier")
    g.i("s_waitcnt vmcnt(0)")
    g.i("s_barrier")
    g.i(f"s_cmp_lg_u32 s{S_WAVE}, 4")
    g.i("s_cbranch_scc1 L_ld_nocert")
    g.i(f"s_lshl_b32 s{S_T0}, s{S_BR}, 4")
    g.i(f"s_add_u32 s{S_T0}, s{S_T0}, s{S_HP}")
    g.i(f"s_lshl_b32 s{S_T0}, s{S_T0}, 3")
    g.i(f"v_mov_b32 v{V_FA}, s{S_T0}")
    spin(g, "cert1", f"buffer_load_dword v{V_F}, v{V_FA}, s[{S_DBG}:{S_DBG+3}], 0 offen sc1", 8)
    g.lab("L_ld_nocert")
    g.i("s_waitcnt lgkmcnt(0)")
    g.i("s_barrier")
    g.i(f"s_lshl_b32 s{S_T0}, s{S_A}, 11")
    g.i(f"s_add_u32 s{S_T0}, s{S_T0}, {L_QX}")
    g.i(f"v_add_u32 v6, s{S_T0}, v{V_L16}")
    g.i(f"ds_read_b128 {vr(V_Q[0],4)}, v6")
    g.i(f"ds_read_b128 {vr(V_Q[1],4)}, v6 offset:1024")
    g.i("s_branch L_attn")

class LdsQ:
    def __init__(self, g): self.g = g; self.q = []
    def issue(self, tag): self.q.append(tag)
    def need(self, tags):
        idx = max([i for i, t in enumerate(self.q) if t in tags], default=-1)
        if idx >= 0:
            n = len(self.q) - 1 - idx
            self.g.i(f"s_waitcnt lgkmcnt({min(n,15)})")
            self.q = self.q[idx + 1:]

def compute(g):
    g.i("s_waitcnt lgkmcnt(0)")
    late_srds(g)
    g.i(f"s_cmp_lg_u32 s{S_WAVE}, 0")
    g.i("s_cbranch_scc1 L_cp_noclear")
    g.i(f"s_lshl_b32 s{S_T0}, s{S_BR}, 4")
    g.i(f"s_add_u32 s{S_T0}, s{S_T0}, s{S_HP}")
    g.i(f"s_lshl_b32 s{S_T1}, s{S_T0}, 7")
    g.i(f"s_lshl_b32 s{S_T2}, s{S_TB}, 4")
    g.i(f"s_add_u32 s{S_T1}, s{S_T1}, s{S_T2}")
    g.i(f"v_lshl_add_u32 v6, v0, 2, s{S_T1}")
    g.i(f"s_lshl_b32 s{S_T1}, s{S_BR}, 3")
    g.i(f"s_add_u32 s{S_T1}, s{S_T1}, s{S_TB}")
    g.i(f"s_lshl_b32 s{S_T1}, s{S_T1}, 10")
    g.i(f"s_lshr_b32 s{S_T2}, s{S_HP}, 3")
    g.i(f"s_lshl_b32 s{S_T2}, s{S_T2}, 7")
    g.i(f"s_add_u32 s{S_T1}, s{S_T1}, s{S_T2}")
    g.i(f"s_and_b32 s{S_T2}, s{S_HP}, 7")
    g.i(f"s_lshl_b32 s{S_T2}, s{S_T2}, 3")
    g.i(f"s_add_u32 s{S_T1}, s{S_T1}, s{S_T2}")
    g.i(f"s_add_u32 s{S_T1}, s{S_T1}, 4096")
    g.i("v_and_b32 v7, 3, v0")
    g.i(f"v_lshl_add_u32 v7, v7, 8, s{S_T1}")
    g.i("v_lshrrev_b32 v100, 3, v0")
    g.i("v_lshl_add_u32 v7, v100, 2, v7")
    g.i("v_cmp_gt_u32 vcc, 4, v0")
    g.i("v_mov_b32 v100, 0")
    g.i("s_nop 0")
    g.i("v_cndmask_b32 v6, v7, v6, vcc")
    g.i("s_mov_b64 exec, 0xfff")
    g.i(f"buffer_store_dword v100, v6, s[{S_FL}:{S_FL+3}], 0 offen sc1")
    g.i("s_mov_b64 exec, -1")
    g.lab("L_cp_noclear")
    attn_consts(g)
    g.i("v_and_b32 v6, 31, v0")
    g.i(f"s_lshl_b32 s{S_T0}, s{S_WAVE}, 13")
    g.i(f"v_lshl_add_u32 v100, v6, 7, s{S_T0}")
    g.i("v_bfe_u32 v6, v0, 1, 3")
    g.i("v_lshrrev_b32 v7, 5, v0")
    g.i("v_xor_b32 v6, v6, v7")
    for s in range(4):
        g.i(f"v_xor_b32 v7, {2*s}, v6")
        g.i(f"v_lshl_add_u32 v{V_XA+s}, v7, 4, v100")
    g.i("v_lshrrev_b32 v6, 5, v0")
    g.i("v_bfe_u32 v7, v0, 2, 2")
    g.i("v_lshl_add_u32 v6, v6, 3, v7")
    g.i("v_mul_u32_u24 v6, 192, v6")
    g.i("v_bfe_u32 v7, v0, 4, 1")
    g.i("v_lshl_add_u32 v6, v7, 5, v6")
    g.i("v_and_b32 v7, 3, v0")
    g.i("v_lshl_add_u32 v6, v7, 3, v6")
    g.i(f"v_add_u32 v{V_WA}, {SLOT_W}, v6")
    for r in range(0, 96, 2):
        g.i(f"v_mov_b64 v[{V_ACC+r}:{V_ACC+r+1}], 0")
    g.i(f"s_mov_b32 s{S_IT}, 0")
    g.i(f"s_mov_b32 s{S_A}, 0")
    g.i(f"s_mov_b32 s{S_B}, {SLOT}")
    q = LdsQ(g)
    def rd(setn, s, which):
        F = V_FR[setn]
        if which[0] == 'x':
            i = int(which[1])
            g.i(f"ds_read_b128 {vr(F+4*i,4)}, v{V_XA+s} offset:{4096*i}")
        else:
            p = {'q': 0, 'k': 1, 'v': 2}[which[0]]; i = int(which[1])
            g.i(f"ds_read_b64_tr_b16 {vr(F+8+4*p+2*i,2)}, v{V_WA} offset:{s*3072+i*768+p*64}")
        q.issue((setn, which))
    ORDER = ['x0', 'q0', 'q1', 'x1', 'k0', 'k1', 'v0', 'v1']
    def mf(setn, n):
        F = V_FR[setn]; p, i = n // 2, n % 2
        w, x = vr(F + 8 + 4 * p, 4), vr(F + 4 * i, 4)
        nm = 'qkv'[p]
        q.need({(setn, f'x{i}'), (setn, nm + '0'), (setn, nm + '1')})
        A, B = (w, x) if p < 2 else (x, w)
        acc = vr(V_ACC + 16 * n, 16)
        if g.opt.get('x_m16'):
            for hh in range(2):
                a4 = vr(V_ACC + 16 * n + 4 * hh, 4)
                g.i(f"v_mfma_f32_16x16x32_bf16 {a4}, {A}, {B}, {a4}")
        else:
            g.i(f"v_mfma_f32_32x32x16_bf16 {acc}, {A}, {B}, {acc}")
    def step(cur, nxt_s):
        plan = [ORDER[0:2], ORDER[2:4], ORDER[4:6], ORDER[6:8], [], []]
        for n in range(6):
            if cur is not None: mf(cur, n)
            if nxt_s is not None:
                for w in plan[n]: rd(1 - (cur if cur is not None else 1), nxt_s, w)
    g.i(f"s_cmp_lg_u32 s{S_WAVE}, 0")
    g.i("s_cbranch_scc1 L_cp_nocount")
    g.i(f"s_lshl_b32 s{S_T0}, s{S_BR}, 4")
    g.i(f"s_add_u32 s{S_T0}, s{S_T0}, s{S_HP}")
    g.i(f"s_lshl_b32 s{S_T0}, s{S_T0}, 3")
    g.i("s_mov_b64 exec, 1")
    g.i(f"v_mov_b32 v6, s{S_T0}")
    g.i("v_mov_b32 v7, 1")
    g.i(f"s_waitcnt vmcnt(0)")
    g.i(f"buffer_atomic_add v7, v6, s[{S_DBG}:{S_DBG+3}], 0 offen sc1")
    g.i("s_mov_b64 exec, -1")
    g.lab("L_cp_nocount")
    g.st('cp_pre')
    g.i("s_barrier")
    g.stamp(1)
    step(None, 0)
    g.lab("L_cp_loop")
    q.q = [(0, w) for w in ORDER]
    step(0, 1); step(1, 2); step(0, 3)
    g.i(f"s_add_u32 s{S_A}, s{S_A}, 1")
    g.i(f"s_cmp_eq_u32 s{S_A}, 3")
    g.i(f"s_cselect_b32 s{S_T0}, {(-2*SLOT) & 0xffffffff}, s{S_B}")
    g.i(f"s_cselect_b32 s{S_A}, 0, s{S_A}")
    g.i(f"s_add_u32 s{S_IT}, s{S_IT}, 1")
    g.i(f"s_cmp_eq_u32 s{S_IT}, 8")
    g.i("s_cbranch_scc1 L_cp_last")
    g.i("s_waitcnt lgkmcnt(0)")
    q.q = []
    g.i("s_barrier")
    for r in range(5):
        g.i(f"v_add_u32 v{V_XA+r}, s{S_T0}, v{V_XA+r}")
    step(1, 0)
    g.i("s_branch L_cp_loop")
    g.lab("L_cp_last")
    q.q = [(1, w) for w in ORDER]
    step(1, None)
    g.stamp(2)
    g.i("v_and_b32 v6, 0x33, v0")
    g.i("v_bfe_u32 v7, v0, 2, 1")
    g.i("v_lshl_or_b32 v6, v7, 3, v6")
    g.i("v_bfe_u32 v7, v0, 3, 1")
    g.i("v_lshl_or_b32 v6, v7, 2, v6")
    KG, KL, VG, VL, QL = 196, 197, 198, 199, 200
    g.i(f"v_lshlrev_b32 v{KG}, 4, v6")
    g.i(f"s_lshl_b32 s{S_T0}, s{S_WAVE}, 12")
    g.i(f"v_add_u32 v{KL}, s{S_T0}, v{KG}")
    g.i("v_and_b32 v6, 15, v0")
    g.i("v_lshlrev_b32 v6, 4, v6")
    g.i("v_lshrrev_b32 v7, 5, v0")
    g.i("v_lshl_add_u32 v6, v7, 8, v6")
    g.i("v_add_u32 v6, 1024, v6")
    g.i("v_bfe_u32 v7, v0, 4, 1")
    g.i(f"v_lshl_add_u32 v{VG}, v7, 17, v6")
    g.i("v_lshl_add_u32 v6, v7, 14, v6")
    g.i(f"v_add_u32 v{VL}, s{S_T0}, v6")
    g.i(f"s_lshl_b32 s{S_T1}, s{S_TB}, 14")
    g.i(f"s_add_u32 s{S_T1}, s{S_T1}, s{S_T0}")
    g.i(f"s_add_u32 s{S_T2}, s{S_T1}, 131072")
    g.i(f"s_lshr_b32 s{S_T0}, s{S_T0}, 1")
    g.i(f"s_add_u32 s{S_T0}, s{S_T0}, {L_QX}")
    g.i(f"v_add_u32 v{QL}, s{S_T0}, v{V_L16}")
    KVS = g.opt.get('kvs', ' sc1')
    T = 204
    n = 0
    for i in range(2):
        A = V_ACC + 16 * (2 + i)
        for hd in range(2):
            for r in range(4):
                g.i(f"v_cvt_pk_bf16_f32 v{T+4*n+r}, v{A+8*hd+2*r}, v{A+8*hd+2*r+1}")
            g.i(f"buffer_store_dwordx4 {vr(T+4*n,4)}, v{KG}, s[{S_KV}:{S_KV+3}], s{S_T2 if hd else S_T1} offen offset:{2048*i}{KVS}")
            g.i(f"ds_write_b128 v{KL}, {vr(T+4*n,4)} offset:{16384*hd+2048*i}")
            n += 1
    for i in range(2):
        A = V_ACC + 16 * (4 + i)
        for gr in range(2):
            for r in range(4):
                g.i(f"v_cvt_pk_bf16_f32 v{T+4*n+r}, v{A+8*gr+2*r}, v{A+8*gr+2*r+1}")
            g.i(f"buffer_store_dwordx4 {vr(T+4*n,4)}, v{VG}, s[{S_KV}:{S_KV+3}], s{S_T1} offen offset:{2048*i+512*gr}{KVS}")
            g.i(f"ds_write_b128 v{VL}, {vr(T+4*n,4)} offset:{2048*i+512*gr}")
            n += 1
    g.i(f"s_mov_b32 s{S_T0}, {hex(QSCALE)}")
    for i in range(2):
        A = V_ACC + 16 * i
        for r in range(16):
            g.i(f"v_mul_f32 v{A+r}, s{S_T0}, v{A+r}")
        for r in range(4):
            g.i(f"v_cvt_pk_bf16_f32 v{A+8+r}, v{A+8+2*r}, v{A+8+2*r+1}")
        g.i(f"ds_write_b128 v{QL}, {vr(A+8,4)} offset:{1024*i}")
        for r in range(4):
            g.i(f"v_cvt_pk_bf16_f32 v{V_Q[i]+r}, v{A+2*r}, v{A+2*r+1}")
    g.i("s_waitcnt lgkmcnt(0)")
    g.i("s_barrier")

U = 8
S_KO, S_KM, S_MK = 55, S_M + 4, S_M + 5
def next_chunk(g):
    g.i(f"s_add_u32 s{S_T0}, s{S_IT}, 1")
    g.i(f"s_xor_b32 s{S_T1}, s{S_T0}, s{S_TB}")
    g.i(f"s_and_b32 s{S_T1}, s{S_T1}, 4")
    g.i(f"s_add_u32 s{S_T0}, s{S_T0}, s{S_TB}")
    g.i(f"s_and_b32 s{S_T0}, s{S_T0}, 3")
    g.i(f"s_or_b32 s{S_C}, s{S_T0}, s{S_T1}")
    g.i(f"s_lshl_b32 s{S_KO}, s{S_C}, 14")
    g.i(f"s_add_u32 s{S_KO}, s{S_KO}, s{S_A}")
    g.i(f"s_xor_b32 s{S_KM}, s{S_KM}, {RING}")

def kv_piece(g, n):
    if n == 0: g.i(f"s_mov_b32 m0, s{S_KM}"); g.i("s_nop 0")
    if n == 2: g.i("s_add_u32 m0, m0, 16384"); g.i(f"s_add_u32 s{S_KO}, s{S_KO}, 131072")
    g.i(f"buffer_load_dwordx4 v{V_L16}, s[{S_KV}:{S_KV+3}], s{S_KO} offen offset:{1024*(n%2)} sc1 lds")

def wo_piece(g):
    g.i(f"s_mov_b32 m0, s{S_E}")
    g.i(f"s_add_u32 s{S_E}, s{S_E}, 1024")
    g.i(f"buffer_load_dwordx4 v{V_WOA}, s[{S_WO}:{S_WO+3}], s{S_B} offen lds")
    g.i(f"s_add_u32 s{S_B}, s{S_B}, 8192")

def spin_mask(g, tag, load):
    g.i(f"s_mov_b32 s{S_T3}, 0")
    g.lab(f"L_spin_{tag}")
    g.i("s_waitcnt vmcnt(0)")
    g.i(f"v_cmp_ne_u32 vcc, 1, v{V_F}")
    g.i(f"s_add_u32 s{S_T3}, s{S_T3}, 1")
    g.i(f"s_and_b32 vcc_lo, vcc_lo, s{S_MK}")
    g.i(f"s_cbranch_scc0 L_spun_{tag}")
    g.i(load)
    g.i(f"s_cmp_lt_u32 s{S_T3}, {SPIN_MAX}")
    g.i(f"s_cbranch_scc1 L_spin_{tag}")
    g.lab(f"L_spun_{tag}")

def attention(g):
    opt = g.opt
    g.lab("L_attn")
    g.stamp(3)
    g.i(f"ds_read_b128 {vr(V_K,4)}, v{V_KA}")
    g.i(f"ds_read_b128 {vr(V_V[0],4)}, v{V_VA}")
    g.i(f"ds_read_b128 {vr(V_V[0]+4,4)}, v{V_VA} offset:512")
    g.i(f"s_mov_b32 s{S_IT}, 0")
    g.i(f"s_lshl_b32 s{S_A}, s{S_WAVE}, 11")
    g.i(f"s_mov_b32 s{S_KM}, s{S_A}")
    next_chunk(g)
    g.i(f"s_lshl_b32 s{S_T0}, s{S_C}, 2")
    g.i(f"s_lshl_b32 s{S_MK}, 15, s{S_T0}")
    g.i(f"s_and_b32 s{S_F}, s{S_HP}, 7")
    g.i(f"s_lshl_b32 s{S_T0}, s{S_F}, 7")
    g.i(f"s_lshl_b32 s{S_B}, s{S_WAVE}, 16")
    g.i(f"s_add_u32 s{S_B}, s{S_B}, s{S_T0}")
    g.i(f"s_lshl_b32 s{S_E}, s{S_WAVE}, 13")
    g.i(f"s_add_u32 s{S_E}, s{S_E}, {L_WO}")
    g.i(f"s_lshl_b32 s{S_T0}, s{S_BR}, 4")
    g.i(f"s_add_u32 s{S_T0}, s{S_T0}, s{S_HP}")
    g.i(f"s_lshl_b32 s{S_T0}, s{S_T0}, 7")
    g.i(f"v_and_b32 v6, 31, v0")
    g.i(f"v_lshl_add_u32 v{V_FA}, v6, 2, s{S_T0}")
    g.i("s_mov_b64 vcc, 0")
    g.i("s_waitcnt lgkmcnt(0)")
    g.i(f"v_mfma_f32_32x32x16_bf16 {vr(V_S[0],16)}, {vr(V_K,4)}, {vr(V_Q[0],4)}, 0")
    g.i("s_nop 11")
    if opt.get('align', 1): g.a(".p2align 6")
    g.lab("L_at_loop")
    if opt.get('itst'):
        g.i("s_memtime s[98:99]")
        g.i("s_waitcnt lgkmcnt(0)")
        g.i(f"s_mov_b32 m0, s{S_IT}")
        g.i(f"v_writelane_b32 v250, s98, m0")
    poll = f"buffer_load_dword v{V_F}, v{V_FA}, s[{S_FL}:{S_FL+3}], 0 offen sc1"
    side = []
    def outline(tag, cond, body):
        cond(f"L_ol_{tag}")
        g.lab(f"L_olr_{tag}")
        side.append((tag, body))
    def it_lt(n):
        return lambda L: (g.i(f"s_cmp_lt_u32 s{S_IT}, {n}"), g.i(f"s_cbranch_scc1 {L}"))
    def b_publish():
        g.i(f"s_cmp_ge_u32 s{S_WAVE}, 4")
        g.i("s_cbranch_scc1 L_at_nopub")
        g.i(f"s_lshl_b32 s{S_T0}, s{S_TB}, 2")
        g.i(f"s_add_u32 s{S_T0}, s{S_T0}, s{S_WAVE}")
        g.i(f"s_lshl_b64 exec, 1, s{S_T0}")
        g.i(f"v_mov_b32 v{V_F}, 1")
        g.st('pub_pre')
        g.i("s_waitcnt vmcnt(0)")
        g.st('pub_ack')
        g.i(f"buffer_store_dword v{V_F}, v{V_FA}, s[{S_FL}:{S_FL+3}], 0 offen sc1")
        g.i("s_mov_b64 exec, -1")
        g.lab("L_at_nopub")
    def b_check0():
        g.st('chk_pre')
        spin_mask(g, "kv0", poll)
        g.st('chk_ok')
        for n in range(4): kv_piece(g, n)
        g.i(f"s_lshr_b32 s{S_T0}, s{S_TB}, 2")
        g.i(f"s_lshl_b32 s{S_T0}, s{S_T0}, 4")
        g.i(f"s_lshl_b32 s{S_MK}, 0xffff, s{S_T0}")
        g.i("s_mov_b64 vcc, 0")
    def b_check1():
        if 'chk1_pre' in g.opt.get('st', {}):
            g.i(f"s_cmp_lg_u32 s{S_IT}, 0"); g.i("s_cbranch_scc1 L_x1"); g.st('chk1_pre'); g.lab("L_x1")
        spin_mask(g, "kv1", poll)
        if 'chk1_ok' in g.opt.get('st', {}):
            g.i(f"s_cmp_lg_u32 s{S_IT}, 0"); g.i("s_cbranch_scc1 L_x2"); g.st('chk1_ok'); g.lab("L_x2")
        g.i(f"s_mov_b32 s{S_MK}, -1")
    def ev_sync():
        outline("chk1", it_lt(2), b_check1)
        g.i(f"s_cmp_ge_u32 s{S_IT}, 7")
        g.i("s_cbranch_scc1 L_at_nosync")
        g.i("s_waitcnt vmcnt(0)")
        g.i("s_barrier")
        g.lab("L_at_nosync")
        g.i(f"v_xor_b32 v{V_KA}, {RING}, v{V_KA}")
        g.i(f"v_xor_b32 v{V_VA}, v{V_VX}, v{V_VA}")
    def guarded(tag, body):
        def f():
            g.i(f"s_cbranch_vccz L_sk_{tag}")
            body()
            g.lab(f"L_sk_{tag}")
        return f
    def ev_next():
        g.i(f"s_add_u32 s{S_IT}, s{S_IT}, 1")
        next_chunk(g)
        g.i(f"s_cmp_lt_u32 s{S_IT}, 7")
        g.i("s_cselect_b64 vcc, -1, 0")
    ev = {}
    def at(p, slot, f): ev.setdefault((p, slot), []).append(f)
    pp, pi0, pc0, pi1 = opt.get('ev', (0, 7, 9, 11))
    at(pp, 'p1', lambda: outline("pub", it_lt(1), b_publish))
    def it_in12(L):
        g.i(f"s_sub_u32 s{S_T0}, s{S_IT}, 1"); g.i(f"s_cmp_lt_u32 s{S_T0}, 2"); g.i(f"s_cbranch_scc1 {L}")
    at(1, 'p1', lambda: outline("wo2", it_in12, lambda: wo_piece(g)))
    at(pi0, 'p1', lambda: outline("poll0", it_lt(1), lambda: g.i(poll)))
    at(pc0, 'p1', lambda: outline("chk0", it_lt(1), b_check0))
    at(pi1, 'p1', lambda: outline("poll1", it_lt(2), lambda: g.i(poll)))
    dp = opt.get('dma', (2, 4, 6, 8, 0))
    for n in range(4): at(dp[n], 'qk', guarded(f"kv{n}", lambda n=n: kv_piece(g, n)))
    at(dp[4], 'qk', guarded("wo", lambda: wo_piece(g)))
    at(15, 'qk', ev_next)
    for p, v in opt.get('prio', {0: 3, 7: 2, 12: 1, 15: 0}).items():
        at((p - 1) % 16, 'p1', lambda v=v: g.i(f"s_setprio {v}"))
    p2, pq, p1 = opt.get('pos', (1, 5, 10))
    for p in range(2 * U):
        b, t = p % 2, p // 2
        S, So = V_S[b], V_S[1 - b]
        nt = (t + 1) % U
        for e in range(16):
            g.i(f"v_exp_f32 v{S+e}, v{S+e}")
            if e == p2:
                tp = (p - 1) // 2
                g.i(f"v_smfmac_f32_32x32x32_bf16 {vr(V_O[1-b],16)}, {vr(V_V[tp%2]+4,4)}, {vr(So+8,8)}, v{V_IDX}")
                if b == 0:
                    if t == U - 1: ev_sync()
                    g.i(f"ds_read_b128 {vr(V_V[(t+1)%2],4)}, v{V_VA} offset:{nt*2048}")
                else:
                    g.i("s_waitcnt lgkmcnt(1)")
            if e == pq:
                g.i(f"v_mfma_f32_32x32x16_bf16 {vr(So,16)}, {vr(V_K,4)}, {vr(V_Q[1-b],4)}, 0")
                if b == 0:
                    g.i(f"ds_read_b128 {vr(V_K,4)}, v{V_KA} offset:{nt*2048}")
                for f in ev.get((p, 'qk'), []): f()
            if e == p1:
                g.i(f"v_smfmac_f32_32x32x32_bf16 {vr(V_O[b],16)}, {vr(V_V[t%2],4)}, {vr(S,8)}, v{V_IDX}")
                if b == 0:
                    g.i(f"ds_read_b128 {vr(V_V[(t+1)%2]+4,4)}, v{V_VA} offset:{nt*2048+512}")
                else:
                    g.i("s_waitcnt lgkmcnt(0)")
                for f in ev.get((p, 'p1'), []): f()
    g.side = side
    g.i(f"s_cmp_lt_u32 s{S_IT}, 8")
    g.i("s_cbranch_scc1 L_at_loop")
    g.i("s_nop 0")
    g.i(f"v_smfmac_f32_32x32x32_bf16 {vr(V_O[1],16)}, {vr(V_V[1]+4,4)}, {vr(V_S[1]+8,8)}, v{V_IDX}")
    g.stamp(4)
    if opt.get('itst'):
        g.i("s_memtime s[98:99]")
        g.i("s_waitcnt lgkmcnt(0)")
        g.i(f"s_mov_b32 m0, s{S_IT}")
        g.i(f"v_writelane_b32 v250, s98, m0")
    g.i(f"s_and_b32 s{S_T0}, s{S_WAVE}, 3")
    g.i(f"s_lshl_b32 s{S_T0}, s{S_T0}, 1")
    g.i(f"s_lshl_b32 s{S_T1}, s{S_TB}, 3")
    g.i(f"s_add_u32 s{S_T0}, s{S_T0}, s{S_T1}")
    g.i(f"s_lshl_b32 s{S_A}, s{S_T0}, 15")
    g.i(f"s_lshr_b32 s{S_T1}, s{S_WAVE}, 2")
    g.i(f"s_lshl_b32 s{S_T2}, s{S_HP}, 1")
    g.i(f"s_add_u32 s{S_T1}, s{S_T1}, s{S_T2}")
    g.i(f"s_lshl_b32 s{S_T2}, s{S_T1}, 10")
    g.i(f"s_add_u32 s{S_A}, s{S_A}, s{S_T2}")
    g.i(f"s_add_u32 s{S_B}, s{S_A}, 32768")
    g.i(f"s_lshl_b32 s{S_C}, s{S_BR}, 3")
    g.i(f"s_add_u32 s{S_C}, s{S_C}, s{S_TB}")
    g.i(f"s_lshl_b32 s{S_C}, s{S_C}, 10")
    g.i(f"s_add_u32 s{S_C}, s{S_C}, 4096")
    g.i(f"s_and_b32 s{S_T0}, s{S_WAVE}, 3")
    g.i(f"s_lshl_b32 s{S_T0}, s{S_T0}, 8")
    g.i(f"s_bfe_u32 s{S_T2}, s{S_T1}, 0x10004")
    g.i(f"s_lshl_b32 s{S_T2}, s{S_T2}, 7")
    g.i(f"s_add_u32 s{S_T0}, s{S_T0}, s{S_T2}")
    g.i(f"s_and_b32 s{S_T1}, s{S_T1}, 15")
    g.i(f"s_lshl_b32 s{S_T1}, s{S_T1}, 2")
    g.i(f"s_add_u32 s{S_T0}, s{S_T0}, s{S_T1}")
    g.i(f"s_add_u32 s{S_D}, s{S_T0}, s{S_C}")
    g.i(f"s_mov_b32 s{S_T0}, 0x2b800000")
    g.i(f"s_mov_b32 s{S_T1}, 0x53800000")
    g.i(f"s_mov_b32 s{S_T2}, 0x7f800000")
    for q in range(2):
        O = V_O[q]
        g.i(f"v_add_f32 v6, abs(v{O}), abs(v{O+1})")
        g.i(f"v_add_f32 v7, abs(v{O+2}), abs(v{O+3})")
        for r in range(4, 8, 2):
            g.i(f"v_add_f32 v6, v6, abs(v{O+r})")
            g.i(f"v_add_f32 v7, v7, abs(v{O+r+1})")
        g.i(f"v_add_f32 v6, v6, v7")
        g.i(f"v_cmp_nle_f32 s[{S_M}:{S_M+1}], s{S_T0}, v{O+8}")
        g.i(f"v_cmp_nge_f32 s[{S_M+2}:{S_M+3}], s{S_T1}, v{O+8}")
        g.i(f"v_cmp_ngt_f32 vcc, s{S_T2}, v6")
        g.i(f"v_rcp_f32 v{V_S[0]+q}, v{O+8}")
        g.i(f"s_or_b64 s[{S_M}:{S_M+1}], s[{S_M}:{S_M+1}], s[{S_M+2}:{S_M+3}]")
        g.i(f"s_or_b64 s[{S_M}:{S_M+1}], s[{S_M}:{S_M+1}], vcc")
        g.i("s_branch L_fallback" if opt.get('force_fallback') else "s_cbranch_scc1 L_fallback")
    g.lab("L_at_store")
    for q in range(2):
        O = V_O[q]
        for r in range(8):
            g.i(f"v_mul_f32 v{O+r}, v{O+r}, v{V_S[0]+q}")
        for r in range(4):
            g.i(f"v_cvt_pk_bf16_f32 v{O+r}, v{O+2*r}, v{O+2*r+1}")
        g.i(f"buffer_store_dwordx4 {vr(O,4)}, v{V_L16}, s[{S_O}:{S_O+3}], s{S_B if q else S_A} offen sc1")

P_WO = 100
P_OF = 8
def outproj(g):
    opt = g.opt
    A0, A1 = 228, 72
    WA0, WA1, RA, OA = 244, 245, 246, 247
    g.i(f"s_lshr_b32 s{S_E}, s{S_WAVE}, 2")
    g.i(f"s_lshl_b32 s{S_T0}, s{S_E}, 15")
    g.i(f"s_add_u32 s{S_T0}, s{S_T0}, {L_WO}")
    g.i("v_lshrrev_b32 v6, 5, v0")
    g.i("v_bfe_u32 v7, v0, 2, 2")
    g.i("v_lshl_add_u32 v6, v6, 2, v7")
    g.i(f"v_lshl_add_u32 v6, v6, 7, s{S_T0}")
    g.i("v_bfe_u32 v7, v0, 3, 2")
    g.i("v_and_b32 v2, 1, v7")
    g.i("v_lshl_add_u32 v6, v2, 6, v6")
    g.i("v_lshrrev_b32 v7, 1, v7")
    g.i("v_lshl_add_u32 v6, v7, 5, v6")
    g.i("v_and_b32 v7, 3, v0")
    g.i(f"v_lshl_add_u32 v6, v7, 3, v6")
    g.i(f"s_lshl_b32 s{S_T0}, s{S_E}, 6")
    g.i(f"v_xor_b32 v{WA0}, s{S_T0}, v6")
    g.i(f"v_xor_b32 v{WA1}, 64, v{WA0}")
    n = 0
    def wo_reads(s0, s1):
        for s in range(s0, s1):
            for f in range(2):
                for i in range(2):
                    g.i(f"ds_read_b64_tr_b16 {vr(P_WO+8*s+4*f+2*i,2)}, v{WA1 if f else WA0} offset:{s*2048+i*1024}")
    wo_reads(0, 3)
    g.i(f"v_mov_b32 v6, s{S_D}")
    g.i("v_mov_b32 v7, 1")
    g.i("s_mov_b64 exec, 1")
    g.i("s_waitcnt vmcnt(0)")
    g.i(f"buffer_store_dword v7, v6, s[{S_FL}:{S_FL+3}], 0 offen sc1")
    g.i("s_mov_b64 exec, -1")
    g.stamp(5)
    for s0 in range(3, 16, 3):
        g.i("s_waitcnt lgkmcnt(2)")
        wo_reads(s0, min(s0 + 3, 16))
    g.i(f"s_lshr_b32 s{S_T0}, s{S_HP}, 3")
    g.i(f"s_lshl_b32 s{S_T0}, s{S_T0}, 2")
    g.i(f"s_and_b32 s{S_T1}, s{S_WAVE}, 3")
    g.i(f"s_add_u32 s{S_A}, s{S_T0}, s{S_T1}")
    g.i(f"s_lshr_b32 s{S_T0}, s{S_A}, 1")
    g.i(f"s_lshl_b32 s{S_T0}, s{S_T0}, 8")
    g.i(f"s_lshl_b32 s{S_T1}, s{S_E}, 7")
    g.i(f"s_add_u32 s{S_T0}, s{S_T0}, s{S_T1}")
    g.i(f"s_add_u32 s{S_T0}, s{S_T0}, s{S_C}")
    g.i("v_and_b32 v6, 15, v0")
    g.i(f"v_lshl_add_u32 v2, v6, 2, s{S_T0}")
    g.i(f"s_lshl_b32 s{S_T0}, s{S_TB}, 3")
    g.i(f"s_add_u32 s{S_A}, s{S_A}, s{S_T0}")
    g.i(f"s_lshl_b32 s{S_B}, s{S_A}, 15")
    g.i(f"s_lshl_b32 s{S_T0}, s{S_E}, 14")
    g.i(f"s_add_u32 s{S_B}, s{S_B}, s{S_T0}")
    for r in range(0, 16, 2):
        g.i(f"v_mov_b64 v[{A1+r}:{A1+r+1}], 0")
    g.i(f"s_lshl_b32 s{S_T0}, s{S_WAVE}, 12")
    g.i(f"v_add_u32 v{RA}, s{S_T0}, v{V_L16}")
    g.i("v_and_b32 v6, 31, v0")
    g.i("v_lshlrev_b32 v6, 11, v6")
    g.i("v_lshrrev_b32 v7, 5, v0")
    g.i(f"v_lshl_add_u32 v{OA}, v7, 4, v6")
    g.i(f"s_lshl_b32 s{S_A}, s{S_A}, 16")
    g.i(f"s_lshl_b32 s{S_T0}, s{S_BR}, 10")
    g.i(f"s_add_u32 s{S_A}, s{S_A}, s{S_T0}")
    g.i(f"s_lshl_b32 s{S_T0}, s{S_F}, 7")
    g.i(f"s_add_u32 s{S_A}, s{S_A}, s{S_T0}")
    g.i(f"s_lshl_b32 s{S_T0}, s{S_E}, 6")
    g.i(f"s_add_u32 s{S_A}, s{S_A}, s{S_T0}")
    g.i(f"s_lshl_b32 s{S_T0}, s{S_BR}, 7")
    g.i("v_and_b32 v6, 15, v0")
    g.i(f"v_lshl_add_u32 v4, v6, 3, s{S_T0}")
    g.i(f"s_mov_b32 s{S_T3}, 0")
    g.lab("L_spin_c")
    g.i(f"buffer_load_dword v5, v4, s[{S_DBG}:{S_DBG+3}], 0 offen sc1")
    g.i(f"s_add_u32 s{S_T3}, s{S_T3}, 1")
    g.i("s_waitcnt vmcnt(0)")
    g.i("v_cmp_gt_u32 vcc, 8, v5")
    g.i(f"s_cmp_ge_u32 s{S_T3}, {SPIN_MAX}")
    g.i("s_cbranch_scc1 L_spin_o")
    g.i("s_cbranch_vccnz L_spin_c")
    g.lab("L_spin_o")
    g.i(f"buffer_load_dword v3, v2, s[{S_FL}:{S_FL+3}], 0 offen sc1")
    g.i(f"s_add_u32 s{S_T3}, s{S_T3}, 1")
    g.i("s_waitcnt vmcnt(0)")
    g.i("v_cmp_ne_u32 vcc, 1, v3")
    g.i(f"s_cmp_ge_u32 s{S_T3}, {SPIN_MAX}")
    g.i("s_cbranch_scc1 L_spun_o")
    g.i("s_cbranch_vccnz L_spin_o")
    g.lab("L_spun_o")
    g.stamp(6)
    for s in range(16):
        if s and s % 4 == 0:
            g.i(f"s_add_u32 s{S_B}, s{S_B}, 4096")
        g.i(f"buffer_load_dwordx4 {vr(P_OF+4*s,4)}, v{V_L16}, s[{S_O}:{S_O+3}], s{S_B} offen offset:{1024*(s%4)} sc1")
    for r in range(0, 16, 2):
        g.i(f"v_mov_b64 v[{A0+r}:{A0+r+1}], 0")
    g.i("s_waitcnt lgkmcnt(0)")
    for s in range(16):
        g.i(f"s_waitcnt vmcnt({15-s})")
        for f, A in ((1, A1), (0, A0)):
            g.i(f"v_mfma_f32_32x32x16_bf16 {vr(A,16)}, {vr(P_WO+8*s+4*f,4)}, {vr(P_OF+4*s,4)}, {vr(A,16)}")
    g.i("s_nop 10")
    for r in range(4):
        g.i(f"ds_write_b128 v{RA}, {vr(A1+4*r,4)} offset:{1024*r}")
    g.i("s_waitcnt lgkmcnt(0)")
    g.i(f"v_xor_b32 v{RA}, 16384, v{RA}")
    g.i("s_barrier")
    for r in range(4):
        g.i(f"ds_read_b128 {vr(P_OF+4*r,4)}, v{RA} offset:{1024*r}")
    for r in range(4):
        g.i(f"s_waitcnt lgkmcnt({3-r})")
        for k in range(4):
            g.i(f"v_add_f32 v{A0+4*r+k}, v{A0+4*r+k}, v{P_OF+4*r+k}")
        for k in range(2):
            g.i(f"v_cvt_pk_bf16_f32 v{24+2*r+k}, v{A0+4*r+2*k}, v{A0+4*r+2*k+1}")
        if r % 2:
            g.i("s_nop 1")
            g.i(f"v_permlane32_swap_b32 v{24+2*r-2}, v{24+2*r}")
            g.i(f"v_permlane32_swap_b32 v{24+2*r-1}, v{24+2*r+1}")
            g.i(f"buffer_store_dwordx4 {vr(24+2*r-2,4)}, v{OA}, s[{S_OUT}:{S_OUT+3}], s{S_A} offen offset:{16*(r-1)}")
    if g.diag:
        g.i("s_waitcnt vmcnt(0)")
        g.stamp(7)
        g.i("s_waitcnt lgkmcnt(0)")
        if g.diag == 2:
            g.i(f"s_cmp_ge_u32 s{S_WAVE}, 4")
            g.i("s_cbranch_scc1 L_end")
            g.i("s_mov_b64 exec, 1")
            for k in range(1, 8):
                g.i(f"s_sub_u32 s{S_T0}, s{66+4*k}, s66")
                g.i(f"v_mov_b32 v6, s{S_T0}")
                g.i(f"v_mov_b32 v7, {8*k+4}")
                g.i(f"buffer_atomic_umax v6, v7, s[{S_DBG}:{S_DBG+3}], 0 offen sc1")
            g.i(f"s_sub_u32 s{S_T0}, s{64+4*4}, s{64+4*3}")
            g.i(f"v_mov_b32 v6, s{S_T0}")
            g.i(f"v_mov_b32 v7, 4")
            g.i(f"buffer_atomic_umax v6, v7, s[{S_DBG}:{S_DBG+3}], 0 offen sc1")
            g.i("s_endpgm")
        g.i(f"s_lshl_b32 s{S_T0}, s2, 3")
        g.i(f"s_add_u32 s{S_T0}, s{S_T0}, s{S_WAVE}")
        g.i(f"s_lshl_b32 s{S_T0}, s{S_T0}, 7")
        g.i(f"s_add_u32 s{S_T0}, s{S_T0}, {WS_STAMP}")
        srd(g.a, S_X, 96, 128, f"s{S_T0}")
        for k in range(32):
            g.i(f"v_mov_b32 v{36+k}, s{64+k}")
        g.i("v_mov_b32 v6, 0")
        for k in range(8):
            g.i(f"buffer_store_dwordx4 {vr(36+4*k,4)}, v6, s[{S_X}:{S_X+3}], 0 offen offset:{16*k}")
        if opt.get('itst'):
            g.i(f"s_add_u32 s{S_T0}, s{S_T0}, {1<<20}")
            srd(g.a, S_X, 96, 64, f"s{S_T0}")
            g.i("v_lshlrev_b32 v6, 2, v0")
            g.i(f"buffer_store_dword v250, v6, s[{S_X}:{S_X+3}], 0 offen")
    g.lab("L_end")
    g.i("s_endpgm")

def fallback(g):
    C = [100, 116]; M = [132, 133]; GV = 134
    g.lab("L_fallback")
    g.i(f"s_lshr_b32 s{S_T0}, s{S_WAVE}, 2")
    g.i(f"s_lshl_b32 s{S_T0}, s{S_T0}, 17")
    g.i(f"v_mov_b32 v{M[0]}, 0xff800000")
    g.i(f"v_mov_b32 v{M[1]}, 0xff800000")
    g.i(f"s_mov_b32 s{S_T1}, s{S_T0}")
    g.i(f"s_add_u32 s{S_T2}, s{S_T0}, 131072")
    g.lab("L_fb_max")
    g.i(f"buffer_load_dwordx4 {vr(V_K,4)}, v{V_L16}, s[{S_KV}:{S_KV+3}], s{S_T1} offen sc1")
    g.i(f"s_add_u32 s{S_T1}, s{S_T1}, 2048")
    g.i("s_waitcnt vmcnt(0)")
    for q in range(2):
        g.i(f"v_mfma_f32_32x32x16_bf16 {vr(V_S[q],16)}, {vr(V_K,4)}, {vr(V_Q[q],4)}, 0")
    g.i("s_nop 15")
    for q in range(2):
        for r in range(0, 16, 2):
            g.i(f"v_max3_f32 v{M[q]}, v{M[q]}, v{V_S[q]+r}, v{V_S[q]+r+1}")
    g.i(f"s_cmp_lt_u32 s{S_T1}, s{S_T2}")
    g.i("s_cbranch_scc1 L_fb_max")
    for q in range(2):
        g.i(f"v_mov_b32 v6, v{M[q]}")
        g.i(f"v_mov_b32 v7, v{M[q]}")
        g.i("s_nop 1")
        g.i("v_permlane32_swap_b32 v6, v7")
        g.i("s_nop 1")
        g.i("v_max_f32 v6, v6, v7")
        for r in range(16):
            g.i(f"v_sub_f32 v{C[q]+r}, 0, v6")
            g.i(f"v_mov_b32 v{V_O[q]+r}, 0")
    g.i("v_and_b32 v6, 15, v0")
    g.i("v_lshlrev_b32 v6, 4, v6")
    g.i("v_lshrrev_b32 v7, 5, v0")
    g.i(f"v_lshl_add_u32 v{GV}, v7, 8, v6")
    for r in range(8):
        g.i(f"v_mov_b32 v{V_V[0]+r}, 0x3f803f80")
    g.i(f"s_mov_b32 s{S_T1}, s{S_T0}")
    g.i(f"s_mov_b32 s{S_M}, 0xffff")
    g.i(f"s_mov_b32 s{S_M+1}, 0xffff")
    g.lab("L_fb_pv")
    g.i(f"buffer_load_dwordx4 {vr(V_K,4)}, v{V_L16}, s[{S_KV}:{S_KV+3}], s{S_T1} offen sc1")
    g.i(f"s_mov_b64 exec, s[{S_M}:{S_M+1}]")
    g.i(f"buffer_load_dwordx4 {vr(V_V[0],4)}, v{GV}, s[{S_KV}:{S_KV+3}], s{S_T1} offen offset:1024 sc1")
    g.i(f"buffer_load_dwordx4 {vr(V_V[0]+4,4)}, v{GV}, s[{S_KV}:{S_KV+3}], s{S_T1} offen offset:1536 sc1")
    g.i("s_mov_b64 exec, -1")
    g.i(f"s_add_u32 s{S_T1}, s{S_T1}, 2048")
    g.i("s_waitcnt vmcnt(0)")
    for q in range(2):
        g.i(f"v_mfma_f32_32x32x16_bf16 {vr(V_S[q],16)}, {vr(V_K,4)}, {vr(V_Q[q],4)}, {vr(C[q],16)}")
    g.i("s_nop 15")
    for q in range(2):
        for r in range(16):
            g.i(f"v_exp_f32 v{V_S[q]+r}, v{V_S[q]+r}")
    g.i("s_nop 3")
    for q in range(2):
        for h in range(2):
            g.i(f"v_smfmac_f32_32x32x32_bf16 {vr(V_O[q],16)}, {vr(V_V[0]+4*h,4)}, {vr(V_S[q]+8*h,8)}, v{V_IDX}")
    g.i("s_nop 15")
    g.i(f"s_cmp_lt_u32 s{S_T1}, s{S_T2}")
    g.i("s_cbranch_scc1 L_fb_pv")
    for q in range(2):
        g.i(f"v_rcp_f32 v{V_S[0]+q}, v{V_O[q]+8}")
    g.i("s_nop 1")
    g.i("s_branch L_at_store")

HEADER = open('cdna_kernels/' + NAME + '.s.ref').read().split('; Override launch')[0]

def generate(opt={}):
    g = G(opt)
    name = NAME + "_kernel"
    g.a(HEADER.rstrip())
    g.a(f"; @launch grid=(256,1,1) block=(512,1,1) lds={LDS_TOTAL}")
    g.a('.amdgcn_target "amdgcn-amd-amdhsa--gfx950"')
    entry(g, name)
    compute(g)
    attention(g)
    outproj(g)
    for tag, body in g.side:
        g.lab(f"L_ol_{tag}")
        body()
        g.i(f"s_branch L_olr_{tag}")
    loader(g)
    fallback(g)
    kernel_desc(g.a, name, NVGPR, 256, 102)
    return g.a.text()

if __name__ == "__main__":
    import sys
    opt = eval(sys.argv[2]) if len(sys.argv) > 2 else {}
    open(sys.argv[1], 'w').write(generate(opt))
```

```python
import math, struct
from common import *

WS_FLAG = 16 << 20
SLOT = 45056; SLOT_W = 32768
RING = 32768
L_WO = 65536
L_CONST = 135168
L_QX = 155648
LDS_TOTAL = 163840
S_X, S_W, S_WO, S_KV, S_O, S_FL, S_DBG, S_OUT = 8, 12, 16, 20, 24, 28, 32, 36
S_WAVE, S_BR, S_HP, S_TB, S_IT, S_T0, S_T1, S_T2, S_T3 = 40, 41, 42, 43, 44, 45, 46, 47, 48
S_A, S_B, S_C, S_D, S_E, S_F = 49, 50, 51, 52, 53, 54
S_M = 56
V_L16, V_KA, V_VA, V_VX, V_IDX, V_T0, V_T1 = 1, 2, 3, 4, 5, 6, 7
V_Q = [8, 12]; V_K = 16; V_V = [20, 28]; V_S = [36, 52]; V_O = [68, 84]
V_F = 241
V_FA = 242
V_WOA = 243
V_ACC = 100
V_FR = [196, 216]
V_XA = 236; V_WA = 240
NVGPR = 256
QSCALE = struct.unpack('<I', struct.pack('<f', 0.25 * math.log2(math.e)))[0]
SPIN_MAX = 1 << 20

class G:
    def __init__(self, opt):
        self.a = Asm(); self.opt = opt; self.diag = opt.get('diag', 0)
    def i(self, s): self.a.i(s)
    def lab(self, s): self.a.label(s)
    def st(self, name):
        m = self.opt.get('st', {})
        if name in m: self.stamp(m[name], True)
    def stamp(self, k, forced=False):
        if k in self.opt.get('st', {}).values() and not forced: return
        if self.diag:
            self.i(f"s_memtime s[{64+4*k}:{65+4*k}]")
            self.i(f"s_memrealtime s[{66+4*k}:{67+4*k}]")

def spin(g, tag, load, want, nlanes_mask=None):
    g.i(f"s_mov_b32 s{S_T3}, 0")
    g.lab(f"L_spin_{tag}")
    g.i(load)
    g.i(f"s_add_u32 s{S_T3}, s{S_T3}, 1")
    g.i("s_waitcnt vmcnt(0)")
    g.i(f"v_cmp_{'gt' if want > 1 else 'ne'}_u32 vcc, {want}, v{V_F}")
    g.i(f"s_cmp_ge_u32 s{S_T3}, {SPIN_MAX}")
    g.i(f"s_cbranch_scc1 L_spun_{tag}")
    g.i(f"s_cbranch_vccnz L_spin_{tag}")
    g.lab(f"L_spun_{tag}")

def entry(g, name):
    a = g.a
    kernel_head(a, name)
    PF = g.opt.get('cpf', 1)
    if PF:
        g.i("s_getpc_b64 s[8:9]")
        g.i("v_lshlrev_b32 v6, 7, v0")
        g.i("s_mov_b32 s10, L_code_end-" + name + "-4")
        g.i("s_mov_b32 s11, 0x20000")
    g.i("s_cmp_ge_u32 s2, 256")
    g.i("s_cbranch_scc1 L_end")
    if PF:
        g.i("buffer_load_dword v246, v6, s[8:11], 0 offen")
    g.stamp(0)
    g.i(f"s_bfe_u32 s{S_BR}, s2, 0x10002")
    g.i(f"s_mul_i32 s{S_T0}, s{S_BR}, 24")
    g.i(f"s_load_dwordx4 s[{S_M}:{S_M+3}], s[0:1], s{S_T0}")
    g.i(f"s_load_dwordx2 s[{S_M+4}:{S_M+5}], s[0:1], s{S_T0} offset:16")
    g.i("s_load_dwordx4 s[4:7], s[0:1], 48")
    g.i(f"s_load_dwordx2 s[{S_M+6}:{S_M+7}], s[0:1], 64")
    g.i("v_lshrrev_b32 v6, 6, v0")
    g.i("v_and_b32 v0, 63, v0")
    g.i(f"v_readfirstlane_b32 s{S_WAVE}, v6")
    g.i(f"v_lshlrev_b32 v{V_L16}, 4, v0")
    g.i(f"s_bfe_u32 s{S_HP}, s2, 0x10001")
    g.i(f"s_lshl_b32 s{S_HP}, s{S_HP}, 3")
    g.i(f"s_bfe_u32 s{S_T0}, s2, 0x30003")
    g.i(f"s_add_u32 s{S_HP}, s{S_HP}, s{S_T0}")
    g.i(f"s_and_b32 s{S_TB}, s2, 1")
    g.i(f"s_lshl_b32 s{S_TB}, s{S_TB}, 2")
    g.i(f"s_lshr_b32 s{S_T0}, s2, 6")
    g.i(f"s_add_u32 s{S_TB}, s{S_TB}, s{S_T0}")
    g.i(f"s_lshl_b32 s{S_T0}, s{S_TB}, 18")
    g.i(f"s_lshl_b32 s{S_T1}, s{S_BR}, 4")
    g.i(f"s_add_u32 s{S_T1}, s{S_T1}, s{S_HP}")
    g.i(f"s_lshl_b32 s{S_T2}, s{S_T1}, 18")
    g.i(f"s_add_u32 s{S_T2}, s{S_T2}, {WS_KV}")
    g.i(f"s_lshl_b32 s{S_T3}, s{S_BR}, 21")
    g.i(f"s_add_u32 s{S_T3}, s{S_T3}, {WS_O}")
    if g.opt.get('lfirst', 1):
        g.i(f"s_cmp_lt_u32 s{S_WAVE}, 4")
        g.i("s_cbranch_scc1 L_compute")
    else:
        g.i(f"s_cmp_ge_u32 s{S_WAVE}, 4")
        g.i("s_cbranch_scc1 L_loader")

def early_srds(g):
    g.i("s_waitcnt lgkmcnt(0)")
    g.st('karg')
    srd(g.a, S_X, S_M, 256 * 1024, f"s{S_T0}")
    srd(g.a, S_W, S_M + 2, 512 * 1536 * 2)

def late_srds(g):
    a = g.a
    srd(a, S_WO, S_M + 4, 512 * 512 * 2)
    srd(a, S_KV, S_M + 6, 256 * 1024, f"s{S_T2}")
    srd(a, S_O, S_M + 6, 2 << 20, f"s{S_T3}")
    srd(a, S_FL, S_M + 6, 4096 + 16384, str(WS_FLAG))
    srd(a, S_DBG, 6, 256)
    srd(a, S_OUT, 4, 2048 * 1024 * 2)
    if g.diag:
        g.i(f"s_mov_b32 s96, s{S_M+6}")
        g.i(f"s_mov_b32 s97, s{S_M+7}")

def attn_consts(g):
    g.i(f"s_lshr_b32 s{S_T0}, s{S_WAVE}, 2")
    g.i(f"s_lshl_b32 s{S_T0}, s{S_T0}, 14")
    g.i(f"v_add_u32 v{V_KA}, s{S_T0}, v{V_L16}")
    g.i(f"v_and_b32 v{V_T0}, 15, v0")
    g.i(f"v_lshlrev_b32 v{V_T0}, 4, v{V_T0}")
    g.i(f"v_lshrrev_b32 v{V_T1}, 5, v0")
    g.i(f"v_lshl_add_u32 v{V_T0}, v{V_T1}, 8, v{V_T0}")
    g.i(f"s_add_u32 s{S_T0}, s{S_T0}, 1024")
    g.i(f"v_add_u32 v{V_VA}, s{S_T0}, v{V_T0}")
    g.i(f"v_and_b32 v{V_T0}, 31, v0")
    g.i(f"v_subrev_u32 v{V_T1}, 20, v{V_T0}")
    g.i(f"v_cmp_gt_u32 vcc, 8, v{V_T1}")
    g.i(f"v_mov_b32 v{V_T1}, {L_CONST+16}")
    g.i(f"v_mov_b32 v{V_VX}, {L_CONST+16+64}")
    g.i(f"v_cndmask_b32 v{V_T1}, v{V_T1}, v{V_VX}, vcc")
    g.i(f"v_and_b32 v{V_VX}, 27, v0")
    g.i(f"v_cmp_eq_u32 vcc, 16, v{V_VX}")
    g.i(f"v_subrev_u32 v{V_VX}, 16, v{V_T1}")
    g.i("s_nop 0")
    g.i(f"v_cndmask_b32 v{V_T1}, v{V_T1}, v{V_VX}, vcc")
    g.i(f"v_cmp_gt_u32 vcc, 16, v{V_T0}")
    g.i(f"v_mov_b32 v{V_T0}, {RING}")
    g.i(f"v_mov_b32 v{V_IDX}, 0xdddd")
    g.i(f"v_cndmask_b32 v{V_VA}, v{V_T1}, v{V_VA}, vcc")
    g.i(f"v_cndmask_b32 v{V_VX}, 0, v{V_T0}, vcc")
    for r in range(0, 32, 2):
        g.i(f"v_mov_b64 v[{V_O[0]+r}:{V_O[0]+r+1}], 0")
    for r in range(0, 8, 2):
        g.i(f"v_mov_b64 v[{V_S[1]+8+r}:{V_S[1]+9+r}], 0")
    for r in range(0, 4, 2):
        g.i(f"v_mov_b64 v[{V_V[1]+4+r}:{V_V[1]+5+r}], 0")
    g.i(f"v_lshrrev_b32 v{V_T0}, 2, v0")
    g.i(f"v_and_b32 v{V_T0}, 4, v{V_T0}")
    g.i(f"v_and_b32 v{V_T1}, 7, v0")
    g.i(f"v_xor_b32 v{V_T0}, v{V_T0}, v{V_T1}")
    g.i(f"v_lshlrev_b32 v{V_T0}, 4, v{V_T0}")
    g.i(f"v_lshrrev_b32 v{V_T1}, 3, v0")
    g.i(f"v_lshl_add_u32 v{V_WOA}, v{V_T1}, 10, v{V_T0}")

def consts(g):
    g.i(f"s_cmp_lg_u32 s{S_WAVE}, 4")
    g.i("s_cbranch_scc1 L_ld_noconst")
    g.i("v_lshrrev_b32 v6, 2, v0")
    g.i("v_and_b32 v7, 1, v6")
    g.i("v_lshlrev_b32 v7, 9, v7")
    g.i("v_lshrrev_b32 v6, 1, v6")
    g.i("v_lshl_add_u32 v7, v6, 11, v7")
    g.i("v_and_b32 v6, 1, v0")
    g.i("v_lshl_add_u32 v7, v6, 4, v7")
    g.i("v_cmp_eq_u32 vcc, 0, v6")
    g.i("v_and_b32 v6, 2, v0")
    g.i("v_lshl_add_u32 v7, v6, 5, v7")
    g.i("v_mov_b32 v6, 0x3f803f80")
    g.i(f"v_add_u32 v7, {L_CONST}, v7")
    g.i("v_cndmask_b32 v108, 0, v6, vcc")
    g.i("v_cndmask_b32 v109, 0, v6, vcc")
    g.i("v_cndmask_b32 v110, 0, v6, vcc")
    g.i("v_cndmask_b32 v111, 0, v6, vcc")
    g.i("ds_write_b128 v7, v[108:111]")
    g.lab("L_ld_noconst")

def loader(g):
    VX, VW, VT = 100, 104, 112
    LEAD = g.opt.get('lead', 0)
    g.lab("L_loader")
    g.i(f"s_sub_u32 s{S_A}, s{S_WAVE}, 4")
    S_CH, S_TX = S_F, 55
    RM = g.opt.get('rot', 5)
    if RM == 1:
        g.i(f"s_lshl_b32 s{S_CH}, s{S_TB}, 1")
        g.i(f"s_lshr_b32 s{S_T1}, s{S_TB}, 2")
        g.i(f"s_add_u32 s{S_CH}, s{S_CH}, s{S_T1}")
        g.i(f"s_and_b32 s{S_CH}, s{S_CH}, 7")
    elif RM == 2:
        g.i(f"s_mov_b32 s{S_CH}, s{S_TB}")
    elif RM == 4:
        g.i(f"s_lshl_b32 s{S_CH}, s{S_TB}, 1")
        g.i(f"s_add_u32 s{S_CH}, s{S_CH}, s{S_HP}")
        g.i(f"s_and_b32 s{S_CH}, s{S_CH}, 3")
        g.i(f"s_lshl_b32 s{S_CH}, s{S_CH}, 1")
    elif RM == 5:
        g.i(f"s_add_u32 s{S_CH}, s{S_TB}, s{S_HP}")
        g.i(f"s_and_b32 s{S_CH}, s{S_CH}, 3")
        g.i(f"s_lshl_b32 s{S_CH}, s{S_CH}, 1")
    elif RM == 3:
        g.i(f"s_lshl_b32 s{S_CH}, s{S_TB}, 1")
        g.i(f"s_and_b32 s{S_T1}, s{S_HP}, 1")
        g.i(f"s_add_u32 s{S_CH}, s{S_CH}, s{S_T1}")
        g.i(f"s_and_b32 s{S_CH}, s{S_CH}, 7")
    g.i(f"v_lshlrev_b32 v{VT}, 10, v0")
    g.i(f"s_and_b32 s{S_TX}, s{S_HP}, 7")
    g.i(f"s_lshl_b32 s{S_TX}, s{S_TX}, 2")
    g.i(f"s_add_u32 s{S_TX}, s{S_TX}, s{S_A}")
    g.i(f"s_lshl_b32 s{S_TX}, s{S_TX}, 13")
    NT = 1 if LEAD else 0
    def touch(ahead):
        if not LEAD: return
        g.i(f"s_add_u32 s{S_T0}, s{S_CH}, {ahead}")
        g.i(f"s_and_b32 s{S_T0}, s{S_T0}, 7")
        g.i(f"s_lshl_b32 s{S_T0}, s{S_T0}, 7")
        g.i(f"s_add_u32 s{S_T0}, s{S_T0}, s{S_TX}")
        g.i("s_mov_b64 exec, 0xff")
        g.i(f"buffer_load_dword v244, v{VT}, s[{S_X}:{S_X+3}], s{S_T0} offen")
        g.i("s_mov_b64 exec, -1")
    g.i("v_lshrrev_b32 v6, 4, v0")
    g.i("v_and_b32 v7, 7, v0")
    g.i("v_xor_b32 v6, v6, v7")
    g.i("v_lshlrev_b32 v6, 4, v6")
    g.i("v_lshrrev_b32 v7, 3, v0")
    g.i(f"v_lshl_add_u32 v{VX}, v7, 10, v6")
    g.i(f"v_xor_b32 v{VX+1}, 64, v{VX}")
    g.i(f"v_add_u32 v{VX+2}, {2*7168}, v{VX}")
    g.i(f"v_add_u32 v{VX+3}, {3*7168}, v{VX+1}")
    g.i(f"v_add_u32 v{VX+1}, 7168, v{VX+1}")
    g.i(f"s_lshl_b32 s{S_B}, s{S_A}, 16")
    g.i(f"s_lshl_b32 s{S_D}, s{S_A}, 13")
    for p in range(3):
        g.i(f"v_add_u32 v6, {64*p}, v0")
        g.i("v_mul_u32_u24 v7, 43691, v6")
        g.i("v_lshrrev_b32 v7, 19, v7")
        g.i("v_mul_u32_u24 v110, 12, v7")
        g.i("v_sub_u32 v6, v6, v110")
        g.i("v_mul_u32_u24 v7, 3072, v7")
        g.i("v_lshrrev_b32 v110, 2, v6")
        g.i("v_lshl_add_u32 v7, v110, 10, v7")
        g.i("v_and_b32 v6, 3, v6")
        g.i("v_lshl_add_u32 v7, v6, 4, v7")
        g.i(f"v_subrev_u32 v{VW+p}, {1024*p}, v7")
    g.i(f"s_mul_i32 s{S_C}, s{S_A}, {16*3072}")
    g.i(f"s_lshl_b32 s{S_T1}, s{S_HP}, 6")
    g.i(f"s_add_u32 s{S_C}, s{S_C}, s{S_T1}")
    g.i(f"s_mul_i32 s{S_E}, s{S_A}, 3072")
    g.i(f"s_add_u32 s{S_E}, s{S_E}, {SLOT_W}")
    early_srds(g)
    def issue():
        g.i(f"s_lshl_b32 s{S_T1}, s{S_CH}, 7")
        g.i(f"s_add_u32 s{S_T1}, s{S_T1}, s{S_B}")
        g.i(f"s_mov_b32 m0, s{S_D}")
        g.i(f"s_add_u32 s{S_T0}, s{S_T1}, 32768")
        for p in range(4):
            g.i(f"buffer_load_dwordx4 v{VX+p}, s[{S_X}:{S_X+3}], s{S_T1} offen offset:{1024*p} lds")
        g.i(f"s_add_u32 m0, s{S_D}, 4096")
        g.i(f"s_mul_i32 s{S_T1}, s{S_CH}, {64*3072}")
        for p in range(4):
            g.i(f"buffer_load_dwordx4 v{VX+p}, s[{S_X}:{S_X+3}], s{S_T0} offen offset:{1024*p} lds")
        g.i(f"s_mov_b32 m0, s{S_E}")
        g.i(f"s_add_u32 s{S_T1}, s{S_T1}, s{S_C}")
        for p in range(3):
            g.i(f"buffer_load_dwordx4 v{VW+p}, s[{S_W}:{S_W+3}], s{S_T1} offen offset:{1024*p} lds")
        g.i(f"s_add_u32 s{S_CH}, s{S_CH}, 1")
        g.i(f"s_and_b32 s{S_CH}, s{S_CH}, 7")
    def next_slot():
        g.i(f"s_add_u32 s{S_D}, s{S_D}, {SLOT}")
        g.i(f"s_add_u32 s{S_E}, s{S_E}, {SLOT}")
        g.i(f"s_cmp_lt_u32 s{S_D}, {3*SLOT}")
        g.i(f"s_cselect_b32 s{S_T0}, 0, {3*SLOT}")
        g.i(f"s_sub_u32 s{S_D}, s{S_D}, s{S_T0}")
        g.i(f"s_sub_u32 s{S_E}, s{S_E}, s{S_T0}")
    issue()
    g.st('ld_c0')
    next_slot(); issue()
    for c in range(2, LEAD): touch(c - 2)
    g.st('ld_c2')
    late_srds(g); attn_consts(g); consts(g)
    g.st('ld_pre')
    n0 = NT * max(LEAD - 2, 0)
    for c, n in ((0, 11 + n0), (1, n0 + 11 + NT)):
        g.i(f"s_waitcnt vmcnt({n})")
        if c == 0: g.st('ld_got0')
        g.i("s_barrier")
        next_slot(); issue(); touch(LEAD - 3)
    g.i(f"s_mov_b32 s{S_IT}, 2")
    g.lab("L_ld_loop")
    g.i(f"s_waitcnt vmcnt({11+2*NT})")
    g.i("s_barrier")
    next_slot(); issue(); touch(LEAD - 3)
    g.i(f"s_add_u32 s{S_IT}, s{S_IT}, 1")
    g.i(f"s_cmp_lt_u32 s{S_IT}, 6")
    g.i("s_cbranch_scc1 L_ld_loop")
    g.st('ld_iss7')
    g.i(f"s_waitcnt vmcnt({11+2*NT})")
    g.i("s_barrier")
    g.i("s_waitcnt vmcnt(0)")
    g.i("s_barrier")
    g.i(f"s_cmp_lg_u32 s{S_WAVE}, 4")
    g.i("s_cbranch_scc1 L_ld_nocert")
    g.i(f"s_lshl_b32 s{S_T0}, s{S_BR}, 4")
    g.i(f"s_add_u32 s{S_T0}, s{S_T0}, s{S_HP}")
    g.i(f"s_lshl_b32 s{S_T0}, s{S_T0}, 3")
    g.i(f"v_mov_b32 v{V_FA}, s{S_T0}")
    spin(g, "cert1", f"buffer_load_dword v{V_F}, v{V_FA}, s[{S_DBG}:{S_DBG+3}], 0 offen sc1", 8)
    g.lab("L_ld_nocert")
    g.i("s_waitcnt lgkmcnt(0)")
    g.i("s_barrier")
    g.i(f"s_lshl_b32 s{S_T0}, s{S_A}, 11")
    g.i(f"s_add_u32 s{S_T0}, s{S_T0}, {L_QX}")
    g.i(f"v_add_u32 v6, s{S_T0}, v{V_L16}")
    g.i(f"ds_read_b128 {vr(V_Q[0],4)}, v6")
    g.i(f"ds_read_b128 {vr(V_Q[1],4)}, v6 offset:1024")
    g.i("s_branch L_attn")

class LdsQ:
    def __init__(self, g): self.g = g; self.q = []
    def issue(self, tag): self.q.append(tag)
    def need(self, tags):
        idx = max([i for i, t in enumerate(self.q) if t in tags], default=-1)
        if idx >= 0:
            n = len(self.q) - 1 - idx
            self.g.i(f"s_waitcnt lgkmcnt({min(n,15)})")
            self.q = self.q[idx + 1:]

def compute(g):
    g.lab("L_compute")
    g.i("s_waitcnt lgkmcnt(0)")
    late_srds(g)
    g.i(f"s_cmp_lg_u32 s{S_WAVE}, 0")
    g.i("s_cbranch_scc1 L_cp_noclear")
    g.i(f"s_lshl_b32 s{S_T0}, s{S_BR}, 4")
    g.i(f"s_add_u32 s{S_T0}, s{S_T0}, s{S_HP}")
    g.i(f"s_lshl_b32 s{S_T1}, s{S_T0}, 7")
    g.i(f"s_lshl_b32 s{S_T2}, s{S_TB}, 4")
    g.i(f"s_add_u32 s{S_T1}, s{S_T1}, s{S_T2}")
    g.i(f"v_lshl_add_u32 v6, v0, 2, s{S_T1}")
    g.i(f"s_lshl_b32 s{S_T1}, s{S_BR}, 3")
    g.i(f"s_add_u32 s{S_T1}, s{S_T1}, s{S_TB}")
    g.i(f"s_lshl_b32 s{S_T1}, s{S_T1}, 10")
    g.i(f"s_lshr_b32 s{S_T2}, s{S_HP}, 3")
    g.i(f"s_lshl_b32 s{S_T2}, s{S_T2}, 7")
    g.i(f"s_add_u32 s{S_T1}, s{S_T1}, s{S_T2}")
    g.i(f"s_and_b32 s{S_T2}, s{S_HP}, 7")
    g.i(f"s_lshl_b32 s{S_T2}, s{S_T2}, 3")
    g.i(f"s_add_u32 s{S_T1}, s{S_T1}, s{S_T2}")
    g.i(f"s_add_u32 s{S_T1}, s{S_T1}, 4096")
    g.i("v_and_b32 v7, 3, v0")
    g.i(f"v_lshl_add_u32 v7, v7, 8, s{S_T1}")
    g.i("v_lshrrev_b32 v100, 3, v0")
    g.i("v_lshl_add_u32 v7, v100, 2, v7")
    g.i("v_cmp_gt_u32 vcc, 4, v0")
    g.i("v_mov_b32 v100, 0")
    g.i("s_nop 0")
    g.i("v_cndmask_b32 v6, v7, v6, vcc")
    g.i("s_mov_b64 exec, 0xfff")
    g.i(f"buffer_store_dword v100, v6, s[{S_FL}:{S_FL+3}], 0 offen sc1")
    g.i("s_mov_b64 exec, -1")
    g.lab("L_cp_noclear")
    attn_consts(g)
    g.i("v_and_b32 v6, 31, v0")
    g.i(f"s_lshl_b32 s{S_T0}, s{S_WAVE}, 13")
    g.i(f"v_lshl_add_u32 v100, v6, 7, s{S_T0}")
    g.i("v_bfe_u32 v6, v0, 1, 3")
    g.i("v_lshrrev_b32 v7, 5, v0")
    g.i("v_xor_b32 v6, v6, v7")
    for s in range(4):
        g.i(f"v_xor_b32 v7, {2*s}, v6")
        g.i(f"v_lshl_add_u32 v{V_XA+s}, v7, 4, v100")
    g.i("v_lshrrev_b32 v6, 5, v0")
    g.i("v_bfe_u32 v7, v0, 2, 2")
    g.i("v_lshl_add_u32 v6, v6, 3, v7")
    g.i("v_mul_u32_u24 v6, 192, v6")
    g.i("v_bfe_u32 v7, v0, 4, 1")
    g.i("v_lshl_add_u32 v6, v7, 5, v6")
    g.i("v_and_b32 v7, 3, v0")
    g.i("v_lshl_add_u32 v6, v7, 3, v6")
    g.i(f"v_add_u32 v{V_WA}, {SLOT_W}, v6")
    for r in range(0, 96, 2):
        g.i(f"v_mov_b64 v[{V_ACC+r}:{V_ACC+r+1}], 0")
    g.i(f"s_mov_b32 s{S_IT}, 0")
    g.i(f"s_mov_b32 s{S_A}, 0")
    g.i(f"s_mov_b32 s{S_B}, {SLOT}")
    q = LdsQ(g)
    def rd(setn, s, which):
        F = V_FR[setn]
        if which[0] == 'x':
            i = int(which[1])
            g.i(f"ds_read_b128 {vr(F+4*i,4)}, v{V_XA+s} offset:{4096*i}")
        else:
            p = {'q': 0, 'k': 1, 'v': 2}[which[0]]; i = int(which[1])
            g.i(f"ds_read_b64_tr_b16 {vr(F+8+4*p+2*i,2)}, v{V_WA} offset:{s*3072+i*768+p*64}")
        q.issue((setn, which))
    ORDER = ['x0', 'q0', 'q1', 'x1', 'k0', 'k1', 'v0', 'v1']
    def mf(setn, n):
        F = V_FR[setn]; p, i = n // 2, n % 2
        w, x = vr(F + 8 + 4 * p, 4), vr(F + 4 * i, 4)
        nm = 'qkv'[p]
        q.need({(setn, f'x{i}'), (setn, nm + '0'), (setn, nm + '1')})
        A, B = (w, x) if p < 2 else (x, w)
        acc = vr(V_ACC + 16 * n, 16)
        if g.opt.get('x_m16'):
            for hh in range(2):
                a4 = vr(V_ACC + 16 * n + 4 * hh, 4)
                g.i(f"v_mfma_f32_16x16x32_bf16 {a4}, {A}, {B}, {a4}")
        else:
            g.i(f"v_mfma_f32_32x32x16_bf16 {acc}, {A}, {B}, {acc}")
    def step(cur, nxt_s):
        plan = [ORDER[0:2], ORDER[2:4], ORDER[4:6], ORDER[6:8], [], []]
        for n in range(6):
            if cur is not None: mf(cur, n)
            if nxt_s is not None:
                for w in plan[n]: rd(1 - (cur if cur is not None else 1), nxt_s, w)
    g.i(f"s_cmp_lg_u32 s{S_WAVE}, 0")
    g.i("s_cbranch_scc1 L_cp_nocount")
    g.i(f"s_lshl_b32 s{S_T0}, s{S_BR}, 4")
    g.i(f"s_add_u32 s{S_T0}, s{S_T0}, s{S_HP}")
    g.i(f"s_lshl_b32 s{S_T0}, s{S_T0}, 3")
    g.i("s_mov_b64 exec, 1")
    g.i(f"v_mov_b32 v6, s{S_T0}")
    g.i("v_mov_b32 v7, 1")
    g.i(f"s_waitcnt vmcnt(0)")
    g.i(f"buffer_atomic_add v7, v6, s[{S_DBG}:{S_DBG+3}], 0 offen sc1")
    g.i("s_mov_b64 exec, -1")
    g.lab("L_cp_nocount")
    g.st('cp_pre')
    g.i("s_barrier")
    g.stamp(1)
    step(None, 0)
    g.lab("L_cp_loop")
    q.q = [(0, w) for w in ORDER]
    step(0, 1); step(1, 2); step(0, 3)
    g.i(f"s_add_u32 s{S_A}, s{S_A}, 1")
    g.i(f"s_cmp_eq_u32 s{S_A}, 3")
    g.i(f"s_cselect_b32 s{S_T0}, {(-2*SLOT) & 0xffffffff}, s{S_B}")
    g.i(f"s_cselect_b32 s{S_A}, 0, s{S_A}")
    g.i(f"s_add_u32 s{S_IT}, s{S_IT}, 1")
    g.i(f"s_cmp_eq_u32 s{S_IT}, 8")
    g.i("s_cbranch_scc1 L_cp_last")
    g.i("s_waitcnt lgkmcnt(0)")
    q.q = []
    g.i("s_barrier")
    for r in range(5):
        g.i(f"v_add_u32 v{V_XA+r}, s{S_T0}, v{V_XA+r}")
    step(1, 0)
    g.i("s_branch L_cp_loop")
    g.lab("L_cp_last")
    q.q = [(1, w) for w in ORDER]
    step(1, None)
    g.stamp(2)
    g.i("v_and_b32 v6, 0x33, v0")
    g.i("v_bfe_u32 v7, v0, 2, 1")
    g.i("v_lshl_or_b32 v6, v7, 3, v6")
    g.i("v_bfe_u32 v7, v0, 3, 1")
    g.i("v_lshl_or_b32 v6, v7, 2, v6")
    KG, KL, VG, VL, QL = 196, 197, 198, 199, 200
    g.i(f"v_lshlrev_b32 v{KG}, 4, v6")
    g.i(f"s_lshl_b32 s{S_T0}, s{S_WAVE}, 12")
    g.i(f"v_add_u32 v{KL}, s{S_T0}, v{KG}")
    g.i("v_and_b32 v6, 15, v0")
    g.i("v_lshlrev_b32 v6, 4, v6")
    g.i("v_lshrrev_b32 v7, 5, v0")
    g.i("v_lshl_add_u32 v6, v7, 8, v6")
    g.i("v_add_u32 v6, 1024, v6")
    g.i("v_bfe_u32 v7, v0, 4, 1")
    g.i(f"v_lshl_add_u32 v{VG}, v7, 17, v6")
    g.i("v_lshl_add_u32 v6, v7, 14, v6")
    g.i(f"v_add_u32 v{VL}, s{S_T0}, v6")
    g.i(f"s_lshl_b32 s{S_T1}, s{S_TB}, 14")
    g.i(f"s_add_u32 s{S_T1}, s{S_T1}, s{S_T0}")
    g.i(f"s_add_u32 s{S_T2}, s{S_T1}, 131072")
    g.i(f"s_lshr_b32 s{S_T0}, s{S_T0}, 1")
    g.i(f"s_add_u32 s{S_T0}, s{S_T0}, {L_QX}")
    g.i(f"v_add_u32 v{QL}, s{S_T0}, v{V_L16}")
    KVS = g.opt.get('kvs', ' sc1')
    T = 204
    n = 0
    for i in range(2):
        A = V_ACC + 16 * (2 + i)
        for hd in range(2):
            for r in range(4):
                g.i(f"v_cvt_pk_bf16_f32 v{T+4*n+r}, v{A+8*hd+2*r}, v{A+8*hd+2*r+1}")
            g.i(f"buffer_store_dwordx4 {vr(T+4*n,4)}, v{KG}, s[{S_KV}:{S_KV+3}], s{S_T2 if hd else S_T1} offen offset:{2048*i}{KVS}")
            g.i(f"ds_write_b128 v{KL}, {vr(T+4*n,4)} offset:{16384*hd+2048*i}")
            n += 1
    for i in range(2):
        A = V_ACC + 16 * (4 + i)
        for gr in range(2):
            for r in range(4):
                g.i(f"v_cvt_pk_bf16_f32 v{T+4*n+r}, v{A+8*gr+2*r}, v{A+8*gr+2*r+1}")
            g.i(f"buffer_store_dwordx4 {vr(T+4*n,4)}, v{VG}, s[{S_KV}:{S_KV+3}], s{S_T1} offen offset:{2048*i+512*gr}{KVS}")
            g.i(f"ds_write_b128 v{VL}, {vr(T+4*n,4)} offset:{2048*i+512*gr}")
            n += 1
    g.i(f"s_mov_b32 s{S_T0}, {hex(QSCALE)}")
    for i in range(2):
        A = V_ACC + 16 * i
        for r in range(16):
            g.i(f"v_mul_f32 v{A+r}, s{S_T0}, v{A+r}")
        for r in range(4):
            g.i(f"v_cvt_pk_bf16_f32 v{A+8+r}, v{A+8+2*r}, v{A+8+2*r+1}")
        g.i(f"ds_write_b128 v{QL}, {vr(A+8,4)} offset:{1024*i}")
        for r in range(4):
            g.i(f"v_cvt_pk_bf16_f32 v{V_Q[i]+r}, v{A+2*r}, v{A+2*r+1}")
    g.i("s_waitcnt lgkmcnt(0)")
    g.i("s_barrier")

U = 8
S_KO, S_KM, S_MK = 55, S_M + 4, S_M + 5
def next_chunk(g):
    g.i(f"s_add_u32 s{S_T0}, s{S_IT}, 1")
    g.i(f"s_xor_b32 s{S_T1}, s{S_T0}, s{S_TB}")
    g.i(f"s_and_b32 s{S_T1}, s{S_T1}, 4")
    g.i(f"s_add_u32 s{S_T0}, s{S_T0}, s{S_TB}")
    g.i(f"s_and_b32 s{S_T0}, s{S_T0}, 3")
    g.i(f"s_or_b32 s{S_C}, s{S_T0}, s{S_T1}")
    g.i(f"s_lshl_b32 s{S_KO}, s{S_C}, 14")
    g.i(f"s_add_u32 s{S_KO}, s{S_KO}, s{S_A}")
    g.i(f"s_xor_b32 s{S_KM}, s{S_KM}, {RING}")

def kv_piece(g, n):
    if n == 0: g.i(f"s_mov_b32 m0, s{S_KM}"); g.i("s_nop 0")
    if n == 2: g.i("s_add_u32 m0, m0, 16384"); g.i(f"s_add_u32 s{S_KO}, s{S_KO}, 131072")
    g.i(f"buffer_load_dwordx4 v{V_L16}, s[{S_KV}:{S_KV+3}], s{S_KO} offen offset:{1024*(n%2)} sc1 lds")

def wo_piece(g):
    g.i(f"s_mov_b32 m0, s{S_E}")
    g.i(f"s_add_u32 s{S_E}, s{S_E}, 1024")
    g.i(f"buffer_load_dwordx4 v{V_WOA}, s[{S_WO}:{S_WO+3}], s{S_B} offen lds")
    g.i(f"s_add_u32 s{S_B}, s{S_B}, 8192")

def spin_mask(g, tag, load):
    g.i(f"s_mov_b32 s{S_T3}, 0")
    g.lab(f"L_spin_{tag}")
    g.i("s_waitcnt vmcnt(0)")
    g.i(f"v_cmp_ne_u32 vcc, 1, v{V_F}")
    g.i(f"s_add_u32 s{S_T3}, s{S_T3}, 1")
    g.i(f"s_and_b32 vcc_lo, vcc_lo, s{S_MK}")
    g.i(f"s_cbranch_scc0 L_spun_{tag}")
    g.i(load)
    g.i(f"s_cmp_lt_u32 s{S_T3}, {SPIN_MAX}")
    g.i(f"s_cbranch_scc1 L_spin_{tag}")
    g.lab(f"L_spun_{tag}")

def attention(g):
    opt = g.opt
    g.lab("L_attn")
    g.stamp(3)
    g.i(f"ds_read_b128 {vr(V_K,4)}, v{V_KA}")
    g.i(f"ds_read_b128 {vr(V_V[0],4)}, v{V_VA}")
    g.i(f"ds_read_b128 {vr(V_V[0]+4,4)}, v{V_VA} offset:512")
    g.i(f"s_mov_b32 s{S_IT}, 0")
    g.i(f"s_lshl_b32 s{S_A}, s{S_WAVE}, 11")
    g.i(f"s_mov_b32 s{S_KM}, s{S_A}")
    next_chunk(g)
    g.i(f"s_lshl_b32 s{S_T0}, s{S_C}, 2")
    g.i(f"s_lshl_b32 s{S_MK}, 15, s{S_T0}")
    g.i(f"s_and_b32 s{S_F}, s{S_HP}, 7")
    g.i(f"s_lshl_b32 s{S_T0}, s{S_F}, 7")
    g.i(f"s_lshl_b32 s{S_B}, s{S_WAVE}, 16")
    g.i(f"s_add_u32 s{S_B}, s{S_B}, s{S_T0}")
    g.i(f"s_lshl_b32 s{S_E}, s{S_WAVE}, 13")
    g.i(f"s_add_u32 s{S_E}, s{S_E}, {L_WO}")
    g.i(f"s_lshl_b32 s{S_T0}, s{S_BR}, 4")
    g.i(f"s_add_u32 s{S_T0}, s{S_T0}, s{S_HP}")
    g.i(f"s_lshl_b32 s{S_T0}, s{S_T0}, 7")
    g.i(f"v_and_b32 v6, 31, v0")
    g.i(f"v_lshl_add_u32 v{V_FA}, v6, 2, s{S_T0}")
    g.i("s_mov_b64 vcc, 0")
    g.i("s_waitcnt lgkmcnt(0)")
    g.i(f"v_mfma_f32_32x32x16_bf16 {vr(V_S[0],16)}, {vr(V_K,4)}, {vr(V_Q[0],4)}, 0")
    g.i("s_nop 11")
    if opt.get('align', 1): g.a(".p2align 6")
    g.lab("L_at_loop")
    if opt.get('itst'):
        g.i("s_memtime s[98:99]")
        g.i("s_waitcnt lgkmcnt(0)")
        g.i(f"s_mov_b32 m0, s{S_IT}")
        g.i(f"v_writelane_b32 v250, s98, m0")
    poll = f"buffer_load_dword v{V_F}, v{V_FA}, s[{S_FL}:{S_FL+3}], 0 offen sc1"
    side = []
    def outline(tag, cond, body):
        cond(f"L_ol_{tag}")
        g.lab(f"L_olr_{tag}")
        side.append((tag, body))
    def it_lt(n):
        return lambda L: (g.i(f"s_cmp_lt_u32 s{S_IT}, {n}"), g.i(f"s_cbranch_scc1 {L}"))
    def b_publish():
        g.i(f"s_cmp_ge_u32 s{S_WAVE}, 4")
        g.i("s_cbranch_scc1 L_at_nopub")
        g.i(f"s_lshl_b32 s{S_T0}, s{S_TB}, 2")
        g.i(f"s_add_u32 s{S_T0}, s{S_T0}, s{S_WAVE}")
        g.i(f"s_lshl_b64 exec, 1, s{S_T0}")
        g.i(f"v_mov_b32 v{V_F}, 1")
        g.st('pub_pre')
        g.i("s_waitcnt vmcnt(0)")
        g.st('pub_ack')
        g.i(f"buffer_store_dword v{V_F}, v{V_FA}, s[{S_FL}:{S_FL+3}], 0 offen sc1")
        g.i("s_mov_b64 exec, -1")
        g.lab("L_at_nopub")
    def b_check0():
        g.st('chk_pre')
        spin_mask(g, "kv0", poll)
        g.st('chk_ok')
        for n in range(4): kv_piece(g, n)
        g.i(f"s_lshr_b32 s{S_T0}, s{S_TB}, 2")
        g.i(f"s_lshl_b32 s{S_T0}, s{S_T0}, 4")
        g.i(f"s_lshl_b32 s{S_MK}, 0xffff, s{S_T0}")
        g.i("s_mov_b64 vcc, 0")
    def b_check1():
        if 'chk1_pre' in g.opt.get('st', {}):
            g.i(f"s_cmp_lg_u32 s{S_IT}, 0"); g.i("s_cbranch_scc1 L_x1"); g.st('chk1_pre'); g.lab("L_x1")
        spin_mask(g, "kv1", poll)
        if 'chk1_ok' in g.opt.get('st', {}):
            g.i(f"s_cmp_lg_u32 s{S_IT}, 0"); g.i("s_cbranch_scc1 L_x2"); g.st('chk1_ok'); g.lab("L_x2")
        g.i(f"s_mov_b32 s{S_MK}, -1")
    def ev_sync():
        outline("chk1", it_lt(2), b_check1)
        g.i(f"s_cmp_ge_u32 s{S_IT}, 7")
        g.i("s_cbranch_scc1 L_at_nosync")
        g.i("s_waitcnt vmcnt(0)")
        g.i("s_barrier")
        g.lab("L_at_nosync")
        g.i(f"v_xor_b32 v{V_KA}, {RING}, v{V_KA}")
        g.i(f"v_xor_b32 v{V_VA}, v{V_VX}, v{V_VA}")
    def guarded(tag, body):
        def f():
            g.i(f"s_cbranch_vccz L_sk_{tag}")
            body()
            g.lab(f"L_sk_{tag}")
        return f
    def ev_next():
        g.i(f"s_add_u32 s{S_IT}, s{S_IT}, 1")
        next_chunk(g)
        g.i(f"s_cmp_lt_u32 s{S_IT}, 7")
        g.i("s_cselect_b64 vcc, -1, 0")
    ev = {}
    def at(p, slot, f): ev.setdefault((p, slot), []).append(f)
    pp, pi0, pc0, pi1 = opt.get('ev', (0, 7, 9, 11))
    at(pp, 'p1', lambda: outline("pub", it_lt(1), b_publish))
    def it_in12(L):
        g.i(f"s_sub_u32 s{S_T0}, s{S_IT}, 1"); g.i(f"s_cmp_lt_u32 s{S_T0}, 2"); g.i(f"s_cbranch_scc1 {L}")
    at(1, 'p1', lambda: outline("wo2", it_in12, lambda: wo_piece(g)))
    at(pi0, 'p1', lambda: outline("poll0", it_lt(1), lambda: g.i(poll)))
    at(pc0, 'p1', lambda: outline("chk0", it_lt(1), b_check0))
    at(pi1, 'p1', lambda: outline("poll1", it_lt(2), lambda: g.i(poll)))
    dp = opt.get('dma', (2, 4, 6, 8, 0))
    for n in range(4): at(dp[n], 'qk', guarded(f"kv{n}", lambda n=n: kv_piece(g, n)))
    at(dp[4], 'qk', guarded("wo", lambda: wo_piece(g)))
    at(15, 'qk', ev_next)
    for p, v in opt.get('prio', {0: 3, 7: 2, 12: 1, 15: 0}).items():
        at((p - 1) % 16, 'p1', lambda v=v: g.i(f"s_setprio {v}"))
    p2, pq, p1 = opt.get('pos', (1, 5, 10))
    for p in range(2 * U):
        b, t = p % 2, p // 2
        S, So = V_S[b], V_S[1 - b]
        nt = (t + 1) % U
        for e in range(16):
            g.i(f"v_exp_f32 v{S+e}, v{S+e}")
            if e == p2:
                tp = (p - 1) // 2
                g.i(f"v_smfmac_f32_32x32x32_bf16 {vr(V_O[1-b],16)}, {vr(V_V[tp%2]+4,4)}, {vr(So+8,8)}, v{V_IDX}")
                if b == 0:
                    if t == U - 1: ev_sync()
                    g.i(f"ds_read_b128 {vr(V_V[(t+1)%2],4)}, v{V_VA} offset:{nt*2048}")
                else:
                    g.i("s_waitcnt lgkmcnt(1)")
            if e == pq:
                g.i(f"v_mfma_f32_32x32x16_bf16 {vr(So,16)}, {vr(V_K,4)}, {vr(V_Q[1-b],4)}, 0")
                if b == 0:
                    g.i(f"ds_read_b128 {vr(V_K,4)}, v{V_KA} offset:{nt*2048}")
                for f in ev.get((p, 'qk'), []): f()
            if e == p1:
                g.i(f"v_smfmac_f32_32x32x32_bf16 {vr(V_O[b],16)}, {vr(V_V[t%2],4)}, {vr(S,8)}, v{V_IDX}")
                if b == 0:
                    g.i(f"ds_read_b128 {vr(V_V[(t+1)%2]+4,4)}, v{V_VA} offset:{nt*2048+512}")
                else:
                    g.i("s_waitcnt lgkmcnt(0)")
                for f in ev.get((p, 'p1'), []): f()
    g.side = side
    g.i(f"s_cmp_lt_u32 s{S_IT}, 8")
    g.i("s_cbranch_scc1 L_at_loop")
    g.i("s_nop 0")
    g.i(f"v_smfmac_f32_32x32x32_bf16 {vr(V_O[1],16)}, {vr(V_V[1]+4,4)}, {vr(V_S[1]+8,8)}, v{V_IDX}")
    g.stamp(4)
    if opt.get('itst'):
        g.i("s_memtime s[98:99]")
        g.i("s_waitcnt lgkmcnt(0)")
        g.i(f"s_mov_b32 m0, s{S_IT}")
        g.i(f"v_writelane_b32 v250, s98, m0")
    g.i(f"s_and_b32 s{S_T0}, s{S_WAVE}, 3")
    g.i(f"s_lshl_b32 s{S_T0}, s{S_T0}, 1")
    g.i(f"s_lshl_b32 s{S_T1}, s{S_TB}, 3")
    g.i(f"s_add_u32 s{S_T0}, s{S_T0}, s{S_T1}")
    g.i(f"s_lshl_b32 s{S_A}, s{S_T0}, 15")
    g.i(f"s_lshr_b32 s{S_T1}, s{S_WAVE}, 2")
    g.i(f"s_lshl_b32 s{S_T2}, s{S_HP}, 1")
    g.i(f"s_add_u32 s{S_T1}, s{S_T1}, s{S_T2}")
    g.i(f"s_lshl_b32 s{S_T2}, s{S_T1}, 10")
    g.i(f"s_add_u32 s{S_A}, s{S_A}, s{S_T2}")
    g.i(f"s_add_u32 s{S_B}, s{S_A}, 32768")
    g.i(f"s_lshl_b32 s{S_C}, s{S_BR}, 3")
    g.i(f"s_add_u32 s{S_C}, s{S_C}, s{S_TB}")
    g.i(f"s_lshl_b32 s{S_C}, s{S_C}, 10")
    g.i(f"s_add_u32 s{S_C}, s{S_C}, 4096")
    g.i(f"s_and_b32 s{S_T0}, s{S_WAVE}, 3")
    g.i(f"s_lshl_b32 s{S_T0}, s{S_T0}, 8")
    g.i(f"s_bfe_u32 s{S_T2}, s{S_T1}, 0x10004")
    g.i(f"s_lshl_b32 s{S_T2}, s{S_T2}, 7")
    g.i(f"s_add_u32 s{S_T0}, s{S_T0}, s{S_T2}")
    g.i(f"s_and_b32 s{S_T1}, s{S_T1}, 15")
    g.i(f"s_lshl_b32 s{S_T1}, s{S_T1}, 2")
    g.i(f"s_add_u32 s{S_T0}, s{S_T0}, s{S_T1}")
    g.i(f"s_add_u32 s{S_D}, s{S_T0}, s{S_C}")
    g.i(f"s_mov_b32 s{S_T0}, 0x2b800000")
    g.i(f"s_mov_b32 s{S_T1}, 0x53800000")
    g.i(f"s_mov_b32 s{S_T2}, 0x7f800000")
    for q in range(2):
        O = V_O[q]
        g.i(f"v_add_f32 v6, abs(v{O}), abs(v{O+1})")
        g.i(f"v_add_f32 v7, abs(v{O+2}), abs(v{O+3})")
        for r in range(4, 8, 2):
            g.i(f"v_add_f32 v6, v6, abs(v{O+r})")
            g.i(f"v_add_f32 v7, v7, abs(v{O+r+1})")
        g.i(f"v_add_f32 v6, v6, v7")
        g.i(f"v_cmp_nle_f32 s[{S_M}:{S_M+1}], s{S_T0}, v{O+8}")
        g.i(f"v_cmp_nge_f32 s[{S_M+2}:{S_M+3}], s{S_T1}, v{O+8}")
        g.i(f"v_cmp_ngt_f32 vcc, s{S_T2}, v6")
        g.i(f"v_rcp_f32 v{V_S[0]+q}, v{O+8}")
        g.i(f"s_or_b64 s[{S_M}:{S_M+1}], s[{S_M}:{S_M+1}], s[{S_M+2}:{S_M+3}]")
        g.i(f"s_or_b64 s[{S_M}:{S_M+1}], s[{S_M}:{S_M+1}], vcc")
        g.i("s_branch L_fallback" if opt.get('force_fallback') else "s_cbranch_scc1 L_fallback")
    g.lab("L_at_store")
    for q in range(2):
        O = V_O[q]
        for r in range(8):
            g.i(f"v_mul_f32 v{O+r}, v{O+r}, v{V_S[0]+q}")
        for r in range(4):
            g.i(f"v_cvt_pk_bf16_f32 v{O+r}, v{O+2*r}, v{O+2*r+1}")
        g.i(f"buffer_store_dwordx4 {vr(O,4)}, v{V_L16}, s[{S_O}:{S_O+3}], s{S_B if q else S_A} offen sc1")

P_WO = 100
P_OF = 8
def outproj(g):
    opt = g.opt
    A0, A1 = 228, 72
    WA0, WA1, RA, OA = 244, 245, 246, 247
    g.i(f"s_lshr_b32 s{S_E}, s{S_WAVE}, 2")
    g.i(f"s_lshl_b32 s{S_T0}, s{S_E}, 15")
    g.i(f"s_add_u32 s{S_T0}, s{S_T0}, {L_WO}")
    g.i("v_lshrrev_b32 v6, 5, v0")
    g.i("v_bfe_u32 v7, v0, 2, 2")
    g.i("v_lshl_add_u32 v6, v6, 2, v7")
    g.i(f"v_lshl_add_u32 v6, v6, 7, s{S_T0}")
    g.i("v_bfe_u32 v7, v0, 3, 2")
    g.i("v_and_b32 v2, 1, v7")
    g.i("v_lshl_add_u32 v6, v2, 6, v6")
    g.i("v_lshrrev_b32 v7, 1, v7")
    g.i("v_lshl_add_u32 v6, v7, 5, v6")
    g.i("v_and_b32 v7, 3, v0")
    g.i(f"v_lshl_add_u32 v6, v7, 3, v6")
    g.i(f"s_lshl_b32 s{S_T0}, s{S_E}, 6")
    g.i(f"v_xor_b32 v{WA0}, s{S_T0}, v6")
    g.i(f"v_xor_b32 v{WA1}, 64, v{WA0}")
    n = 0
    def wo_reads(s0, s1):
        for s in range(s0, s1):
            for f in range(2):
                for i in range(2):
                    g.i(f"ds_read_b64_tr_b16 {vr(P_WO+8*s+4*f+2*i,2)}, v{WA1 if f else WA0} offset:{s*2048+i*1024}")
    wo_reads(0, 3)
    g.i(f"v_mov_b32 v6, s{S_D}")
    g.i("v_mov_b32 v7, 1")
    g.i("s_mov_b64 exec, 1")
    g.i("s_waitcnt vmcnt(0)")
    g.i(f"buffer_store_dword v7, v6, s[{S_FL}:{S_FL+3}], 0 offen sc1")
    g.i("s_mov_b64 exec, -1")
    g.stamp(5)
    for s0 in range(3, 16, 3):
        g.i("s_waitcnt lgkmcnt(2)")
        wo_reads(s0, min(s0 + 3, 16))
    g.i(f"s_lshr_b32 s{S_T0}, s{S_HP}, 3")
    g.i(f"s_lshl_b32 s{S_T0}, s{S_T0}, 2")
    g.i(f"s_and_b32 s{S_T1}, s{S_WAVE}, 3")
    g.i(f"s_add_u32 s{S_A}, s{S_T0}, s{S_T1}")
    g.i(f"s_lshr_b32 s{S_T0}, s{S_A}, 1")
    g.i(f"s_lshl_b32 s{S_T0}, s{S_T0}, 8")
    g.i(f"s_lshl_b32 s{S_T1}, s{S_E}, 7")
    g.i(f"s_add_u32 s{S_T0}, s{S_T0}, s{S_T1}")
    g.i(f"s_add_u32 s{S_T0}, s{S_T0}, s{S_C}")
    g.i("v_and_b32 v6, 15, v0")
    g.i(f"v_lshl_add_u32 v2, v6, 2, s{S_T0}")
    g.i(f"s_lshl_b32 s{S_T0}, s{S_TB}, 3")
    g.i(f"s_add_u32 s{S_A}, s{S_A}, s{S_T0}")
    g.i(f"s_lshl_b32 s{S_B}, s{S_A}, 15")
    g.i(f"s_lshl_b32 s{S_T0}, s{S_E}, 14")
    g.i(f"s_add_u32 s{S_B}, s{S_B}, s{S_T0}")
    for r in range(0, 16, 2):
        g.i(f"v_mov_b64 v[{A1+r}:{A1+r+1}], 0")
    g.i(f"s_lshl_b32 s{S_T0}, s{S_WAVE}, 12")
    g.i(f"v_add_u32 v{RA}, s{S_T0}, v{V_L16}")
    g.i("v_and_b32 v6, 31, v0")
    g.i("v_lshlrev_b32 v6, 11, v6")
    g.i("v_lshrrev_b32 v7, 5, v0")
    g.i(f"v_lshl_add_u32 v{OA}, v7, 4, v6")
    g.i(f"s_lshl_b32 s{S_A}, s{S_A}, 16")
    g.i(f"s_lshl_b32 s{S_T0}, s{S_BR}, 10")
    g.i(f"s_add_u32 s{S_A}, s{S_A}, s{S_T0}")
    g.i(f"s_lshl_b32 s{S_T0}, s{S_F}, 7")
    g.i(f"s_add_u32 s{S_A}, s{S_A}, s{S_T0}")
    g.i(f"s_lshl_b32 s{S_T0}, s{S_E}, 6")
    g.i(f"s_add_u32 s{S_A}, s{S_A}, s{S_T0}")
    g.i(f"s_lshl_b32 s{S_T0}, s{S_BR}, 7")
    g.i("v_and_b32 v6, 15, v0")
    g.i(f"v_lshl_add_u32 v4, v6, 3, s{S_T0}")
    g.i(f"s_mov_b32 s{S_T3}, 0")
    g.lab("L_spin_c")
    g.i(f"buffer_load_dword v5, v4, s[{S_DBG}:{S_DBG+3}], 0 offen sc1")
    g.i(f"s_add_u32 s{S_T3}, s{S_T3}, 1")
    g.i("s_waitcnt vmcnt(0)")
    g.i("v_cmp_gt_u32 vcc, 8, v5")
    g.i(f"s_cmp_ge_u32 s{S_T3}, {SPIN_MAX}")
    g.i("s_cbranch_scc1 L_spin_o")
    g.i("s_cbranch_vccnz L_spin_c")
    g.lab("L_spin_o")
    g.i(f"buffer_load_dword v3, v2, s[{S_FL}:{S_FL+3}], 0 offen sc1")
    g.i(f"s_add_u32 s{S_T3}, s{S_T3}, 1")
    g.i("s_waitcnt vmcnt(0)")
    g.i("v_cmp_ne_u32 vcc, 1, v3")
    g.i(f"s_cmp_ge_u32 s{S_T3}, {SPIN_MAX}")
    g.i("s_cbranch_scc1 L_spun_o")
    g.i("s_cbranch_vccnz L_spin_o")
    g.lab("L_spun_o")
    g.stamp(6)
    for s in range(16):
        if s and s % 4 == 0:
            g.i(f"s_add_u32 s{S_B}, s{S_B}, 4096")
        g.i(f"buffer_load_dwordx4 {vr(P_OF+4*s,4)}, v{V_L16}, s[{S_O}:{S_O+3}], s{S_B} offen offset:{1024*(s%4)} sc1")
    for r in range(0, 16, 2):
        g.i(f"v_mov_b64 v[{A0+r}:{A0+r+1}], 0")
    g.i("s_waitcnt lgkmcnt(0)")
    for s in range(16):
        g.i(f"s_waitcnt vmcnt({15-s})")
        for f, A in ((1, A1), (0, A0)):
            g.i(f"v_mfma_f32_32x32x16_bf16 {vr(A,16)}, {vr(P_WO+8*s+4*f,4)}, {vr(P_OF+4*s,4)}, {vr(A,16)}")
    g.i("s_nop 10")
    for r in range(4):
        g.i(f"ds_write_b128 v{RA}, {vr(A1+4*r,4)} offset:{1024*r}")
    g.i("s_waitcnt lgkmcnt(0)")
    g.i(f"v_xor_b32 v{RA}, 16384, v{RA}")
    g.i("s_barrier")
    for r in range(4):
        g.i(f"ds_read_b128 {vr(P_OF+4*r,4)}, v{RA} offset:{1024*r}")
    for r in range(4):
        g.i(f"s_waitcnt lgkmcnt({3-r})")
        for k in range(4):
            g.i(f"v_add_f32 v{A0+4*r+k}, v{A0+4*r+k}, v{P_OF+4*r+k}")
        for k in range(2):
            g.i(f"v_cvt_pk_bf16_f32 v{24+2*r+k}, v{A0+4*r+2*k}, v{A0+4*r+2*k+1}")
        if r % 2:
            g.i("s_nop 1")
            g.i(f"v_permlane32_swap_b32 v{24+2*r-2}, v{24+2*r}")
            g.i(f"v_permlane32_swap_b32 v{24+2*r-1}, v{24+2*r+1}")
            g.i(f"buffer_store_dwordx4 {vr(24+2*r-2,4)}, v{OA}, s[{S_OUT}:{S_OUT+3}], s{S_A} offen offset:{16*(r-1)}{opt.get('outs','')}")
    if g.diag:
        g.i("s_waitcnt vmcnt(0)")
        g.stamp(7)
        g.i("s_waitcnt lgkmcnt(0)")
        if g.diag == 2:
            g.i(f"s_cmp_ge_u32 s{S_WAVE}, 4")
            g.i("s_cbranch_scc1 L_end")
            g.i("s_mov_b64 exec, 1")
            for k in range(1, 8):
                g.i(f"s_sub_u32 s{S_T0}, s{66+4*k}, s66")
                g.i(f"v_mov_b32 v6, s{S_T0}")
                g.i(f"v_mov_b32 v7, {8*k+4}")
                g.i(f"buffer_atomic_umax v6, v7, s[{S_DBG}:{S_DBG+3}], 0 offen sc1")
            g.i(f"s_sub_u32 s{S_T0}, s{64+4*4}, s{64+4*3}")
            g.i(f"v_mov_b32 v6, s{S_T0}")
            g.i(f"v_mov_b32 v7, 4")
            g.i(f"buffer_atomic_umax v6, v7, s[{S_DBG}:{S_DBG+3}], 0 offen sc1")
            g.i("s_endpgm")
        g.i(f"s_lshl_b32 s{S_T0}, s2, 3")
        g.i(f"s_add_u32 s{S_T0}, s{S_T0}, s{S_WAVE}")
        g.i(f"s_lshl_b32 s{S_T0}, s{S_T0}, 7")
        g.i(f"s_add_u32 s{S_T0}, s{S_T0}, {WS_STAMP}")
        srd(g.a, S_X, 96, 128, f"s{S_T0}")
        for k in range(32):
            g.i(f"v_mov_b32 v{36+k}, s{64+k}")
        g.i("v_mov_b32 v6, 0")
        for k in range(8):
            g.i(f"buffer_store_dwordx4 {vr(36+4*k,4)}, v6, s[{S_X}:{S_X+3}], 0 offen offset:{16*k}")
        if opt.get('itst'):
            g.i(f"s_add_u32 s{S_T0}, s{S_T0}, {1<<20}")
            srd(g.a, S_X, 96, 64, f"s{S_T0}")
            g.i("v_lshlrev_b32 v6, 2, v0")
            g.i(f"buffer_store_dword v250, v6, s[{S_X}:{S_X+3}], 0 offen")
    g.lab("L_end")
    g.i("s_endpgm")

def fallback(g):
    C = [100, 116]; M = [132, 133]; GV = 134
    g.lab("L_fallback")
    g.i(f"s_lshr_b32 s{S_T0}, s{S_WAVE}, 2")
    g.i(f"s_lshl_b32 s{S_T0}, s{S_T0}, 17")
    g.i(f"v_mov_b32 v{M[0]}, 0xff800000")
    g.i(f"v_mov_b32 v{M[1]}, 0xff800000")
    g.i(f"s_mov_b32 s{S_T1}, s{S_T0}")
    g.i(f"s_add_u32 s{S_T2}, s{S_T0}, 131072")
    g.lab("L_fb_max")
    g.i(f"buffer_load_dwordx4 {vr(V_K,4)}, v{V_L16}, s[{S_KV}:{S_KV+3}], s{S_T1} offen sc1")
    g.i(f"s_add_u32 s{S_T1}, s{S_T1}, 2048")
    g.i("s_waitcnt vmcnt(0)")
    for q in range(2):
        g.i(f"v_mfma_f32_32x32x16_bf16 {vr(V_S[q],16)}, {vr(V_K,4)}, {vr(V_Q[q],4)}, 0")
    g.i("s_nop 15")
    for q in range(2):
        for r in range(0, 16, 2):
            g.i(f"v_max3_f32 v{M[q]}, v{M[q]}, v{V_S[q]+r}, v{V_S[q]+r+1}")
    g.i(f"s_cmp_lt_u32 s{S_T1}, s{S_T2}")
    g.i("s_cbranch_scc1 L_fb_max")
    for q in range(2):
        g.i(f"v_mov_b32 v6, v{M[q]}")
        g.i(f"v_mov_b32 v7, v{M[q]}")
        g.i("s_nop 1")
        g.i("v_permlane32_swap_b32 v6, v7")
        g.i("s_nop 1")
        g.i("v_max_f32 v6, v6, v7")
        for r in range(16):
            g.i(f"v_sub_f32 v{C[q]+r}, 0, v6")
            g.i(f"v_mov_b32 v{V_O[q]+r}, 0")
    g.i("v_and_b32 v6, 15, v0")
    g.i("v_lshlrev_b32 v6, 4, v6")
    g.i("v_lshrrev_b32 v7, 5, v0")
    g.i(f"v_lshl_add_u32 v{GV}, v7, 8, v6")
    for r in range(8):
        g.i(f"v_mov_b32 v{V_V[0]+r}, 0x3f803f80")
    g.i(f"s_mov_b32 s{S_T1}, s{S_T0}")
    g.i(f"s_mov_b32 s{S_M}, 0xffff")
    g.i(f"s_mov_b32 s{S_M+1}, 0xffff")
    g.lab("L_fb_pv")
    g.i(f"buffer_load_dwordx4 {vr(V_K,4)}, v{V_L16}, s[{S_KV}:{S_KV+3}], s{S_T1} offen sc1")
    g.i(f"s_mov_b64 exec, s[{S_M}:{S_M+1}]")
    g.i(f"buffer_load_dwordx4 {vr(V_V[0],4)}, v{GV}, s[{S_KV}:{S_KV+3}], s{S_T1} offen offset:1024 sc1")
    g.i(f"buffer_load_dwordx4 {vr(V_V[0]+4,4)}, v{GV}, s[{S_KV}:{S_KV+3}], s{S_T1} offen offset:1536 sc1")
    g.i("s_mov_b64 exec, -1")
    g.i(f"s_add_u32 s{S_T1}, s{S_T1}, 2048")
    g.i("s_waitcnt vmcnt(0)")
    for q in range(2):
        g.i(f"v_mfma_f32_32x32x16_bf16 {vr(V_S[q],16)}, {vr(V_K,4)}, {vr(V_Q[q],4)}, {vr(C[q],16)}")
    g.i("s_nop 15")
    for q in range(2):
        for r in range(16):
            g.i(f"v_exp_f32 v{V_S[q]+r}, v{V_S[q]+r}")
    g.i("s_nop 3")
    for q in range(2):
        for h in range(2):
            g.i(f"v_smfmac_f32_32x32x32_bf16 {vr(V_O[q],16)}, {vr(V_V[0]+4*h,4)}, {vr(V_S[q]+8*h,8)}, v{V_IDX}")
    g.i("s_nop 15")
    g.i(f"s_cmp_lt_u32 s{S_T1}, s{S_T2}")
    g.i("s_cbranch_scc1 L_fb_pv")
    for q in range(2):
        g.i(f"v_rcp_f32 v{V_S[0]+q}, v{V_O[q]+8}")
    g.i("s_nop 1")
    g.i("s_branch L_at_store")

HEADER = open('cdna_kernels/' + NAME + '.s.ref').read().split('; Override launch')[0]

def generate(opt={}):
    g = G(opt)
    name = NAME + "_kernel"
    g.a(HEADER.rstrip())
    g.a(f"; @launch grid=(256,1,1) block=(512,1,1) lds={LDS_TOTAL}")
    g.a('.amdgcn_target "amdgcn-amd-amdhsa--gfx950"')
    entry(g, name)
    if opt.get('lfirst', 1): loader(g)
    compute(g)
    attention(g)
    outproj(g)
    for tag, body in g.side:
        g.lab(f"L_ol_{tag}")
        body()
        g.i(f"s_branch L_olr_{tag}")
    if not opt.get('lfirst', 1): loader(g)
    g.lab("L_code_end")
    fallback(g)
    kernel_desc(g.a, name, NVGPR, 256, 102)
    return g.a.text()

if __name__ == "__main__":
    import sys
    opt = eval(sys.argv[2]) if len(sys.argv) > 2 else {}
    open(sys.argv[1], 'w').write(generate(opt))
```

```python
import math, struct
from common import *

WS_FLAG = 16 << 20
SLOT = 45056; SLOT_W = 32768
RING = 32768
L_WO = 65536
L_CONST = 135168
L_QX = 155648
LDS_TOTAL = 163840
S_X, S_W, S_WO, S_KV, S_O, S_FL, S_DBG, S_OUT = 8, 12, 16, 20, 24, 28, 32, 36
S_WAVE, S_BR, S_HP, S_TB, S_IT, S_T0, S_T1, S_T2, S_T3 = 40, 41, 42, 43, 44, 45, 46, 47, 48
S_A, S_B, S_C, S_D, S_E, S_F = 49, 50, 51, 52, 53, 54
S_M = 56
V_L16, V_KA, V_VA, V_VX, V_IDX, V_T0, V_T1 = 1, 2, 3, 4, 5, 6, 7
V_Q = [8, 12]; V_K = 16; V_V = [20, 28]; V_S = [36, 52]; V_O = [68, 84]
V_F = 241
V_FA = 242
V_WOA = 243
V_ACC = 100
V_FR = [196, 216]
V_XA = 236; V_WA = 240
NVGPR = 256
QSCALE = struct.unpack('<I', struct.pack('<f', 0.25 * math.log2(math.e)))[0]
SPIN_MAX = 1 << 20
S_DRY = 3

class G:
    def __init__(self, opt):
        self.a = Asm(); self.opt = opt; self.diag = opt.get('diag', 0)
    def i(self, s): self.a.i(s)
    def lab(self, s): self.a.label(s)
    def st(self, name):
        m = self.opt.get('st', {})
        if name in m: self.stamp(m[name], True)
    def stamp(self, k, forced=False):
        if k in self.opt.get('st', {}).values() and not forced: return
        if self.diag:
            self.i(f"s_memtime s[{64+4*k}:{65+4*k}]")
            self.i(f"s_memrealtime s[{66+4*k}:{67+4*k}]")

def dry_exit(g, label="L_dry_ret"):
    if g.opt.get('dry', 1):
        g.i(f"s_cmp_lg_u32 s{S_DRY}, 0")
        g.i(f"s_cbranch_scc1 {label}")

def barrier_unless_dry(g, tag):
    dry_exit(g, f"L_nb_{tag}")
    g.i("s_barrier")
    g.lab(f"L_nb_{tag}")

def spin(g, tag, load, want, nlanes_mask=None):
    g.i(f"s_mov_b32 s{S_T3}, 0")
    g.lab(f"L_spin_{tag}")
    g.i(load)
    g.i(f"s_add_u32 s{S_T3}, s{S_T3}, 1")
    g.i("s_waitcnt vmcnt(0)")
    g.i(f"v_cmp_{'gt' if want > 1 else 'ne'}_u32 vcc, {want}, v{V_F}")
    g.i(f"s_cmp_ge_u32 s{S_T3}, {SPIN_MAX}")
    g.i(f"s_cbranch_scc1 L_spun_{tag}")
    g.i(f"s_cbranch_vccnz L_spin_{tag}")
    g.lab(f"L_spun_{tag}")

def entry(g, name):
    a = g.a
    kernel_head(a, name)
    PF = g.opt.get('cpf', 1)
    if PF:
        g.i("s_getpc_b64 s[8:9]")
        g.i("v_lshlrev_b32 v6, 7, v0")
        g.i("s_mov_b32 s10, L_code_end-" + name + "-4")
        g.i("s_mov_b32 s11, 0x20000")
    g.i("s_cmp_ge_u32 s2, 256")
    g.i("s_cbranch_scc1 L_end")
    if PF:
        g.i("buffer_load_dword v246, v6, s[8:11], 0 offen")
    g.stamp(0)
    g.i(f"s_mov_b32 s{S_DRY}, 0")
    g.i(f"s_bfe_u32 s{S_BR}, s2, 0x10002")
    g.i(f"s_mul_i32 s{S_T0}, s{S_BR}, 24")
    g.i(f"s_load_dwordx4 s[{S_M}:{S_M+3}], s[0:1], s{S_T0}")
    g.i(f"s_load_dwordx2 s[{S_M+4}:{S_M+5}], s[0:1], s{S_T0} offset:16")
    g.i("s_load_dwordx4 s[4:7], s[0:1], 48")
    g.i(f"s_load_dwordx2 s[{S_M+6}:{S_M+7}], s[0:1], 64")
    g.i("v_lshrrev_b32 v6, 6, v0")
    g.i("v_and_b32 v0, 63, v0")
    g.i(f"v_readfirstlane_b32 s{S_WAVE}, v6")
    g.i(f"v_lshlrev_b32 v{V_L16}, 4, v0")
    g.i(f"s_bfe_u32 s{S_HP}, s2, 0x10001")
    g.i(f"s_lshl_b32 s{S_HP}, s{S_HP}, 3")
    g.i(f"s_bfe_u32 s{S_T0}, s2, 0x30003")
    g.i(f"s_add_u32 s{S_HP}, s{S_HP}, s{S_T0}")
    g.i(f"s_and_b32 s{S_TB}, s2, 1")
    g.i(f"s_lshl_b32 s{S_TB}, s{S_TB}, 2")
    g.i(f"s_lshr_b32 s{S_T0}, s2, 6")
    g.i(f"s_add_u32 s{S_TB}, s{S_TB}, s{S_T0}")
    g.i(f"s_lshl_b32 s{S_T0}, s{S_TB}, 18")
    g.i(f"s_lshl_b32 s{S_T1}, s{S_BR}, 4")
    g.i(f"s_add_u32 s{S_T1}, s{S_T1}, s{S_HP}")
    g.i(f"s_lshl_b32 s{S_T2}, s{S_T1}, 18")
    g.i(f"s_add_u32 s{S_T2}, s{S_T2}, {WS_KV}")
    g.i(f"s_lshl_b32 s{S_T3}, s{S_BR}, 21")
    g.i(f"s_add_u32 s{S_T3}, s{S_T3}, {WS_O}")
    if g.opt.get('lfirst', 1):
        g.i(f"s_cmp_lt_u32 s{S_WAVE}, 4")
        g.i("s_cbranch_scc1 L_compute")
    else:
        g.i(f"s_cmp_ge_u32 s{S_WAVE}, 4")
        g.i("s_cbranch_scc1 L_loader")

def early_srds(g):
    g.i("s_waitcnt lgkmcnt(0)")
    g.st('karg')
    srd(g.a, S_X, S_M, 256 * 1024, f"s{S_T0}")
    srd(g.a, S_W, S_M + 2, 512 * 1536 * 2)

def late_srds(g):
    a = g.a
    srd(a, S_WO, S_M + 4, 512 * 512 * 2)
    srd(a, S_KV, S_M + 6, 256 * 1024, f"s{S_T2}")
    srd(a, S_O, S_M + 6, 2 << 20, f"s{S_T3}")
    srd(a, S_FL, S_M + 6, 4096, str(WS_FLAG))
    srd(a, S_DBG, 6, 256)
    srd(a, S_OUT, 4, 2048 * 1024 * 2)
    if g.diag:
        g.i(f"s_mov_b32 s96, s{S_M+6}")
        g.i(f"s_mov_b32 s97, s{S_M+7}")

def attn_consts(g):
    g.i(f"s_lshr_b32 s{S_T0}, s{S_WAVE}, 2")
    g.i(f"s_lshl_b32 s{S_T0}, s{S_T0}, 14")
    g.i(f"v_add_u32 v{V_KA}, s{S_T0}, v{V_L16}")
    g.i(f"v_and_b32 v{V_T0}, 15, v0")
    g.i(f"v_lshlrev_b32 v{V_T0}, 4, v{V_T0}")
    g.i(f"v_lshrrev_b32 v{V_T1}, 5, v0")
    g.i(f"v_lshl_add_u32 v{V_T0}, v{V_T1}, 8, v{V_T0}")
    g.i(f"s_add_u32 s{S_T0}, s{S_T0}, 1024")
    g.i(f"v_add_u32 v{V_VA}, s{S_T0}, v{V_T0}")
    g.i(f"v_and_b32 v{V_T0}, 31, v0")
    g.i(f"v_subrev_u32 v{V_T1}, 20, v{V_T0}")
    g.i(f"v_cmp_gt_u32 vcc, 8, v{V_T1}")
    g.i(f"v_mov_b32 v{V_T1}, {L_CONST+16}")
    g.i(f"v_mov_b32 v{V_VX}, {L_CONST+16+64}")
    g.i(f"v_cndmask_b32 v{V_T1}, v{V_T1}, v{V_VX}, vcc")
    g.i(f"v_and_b32 v{V_VX}, 27, v0")
    g.i(f"v_cmp_eq_u32 vcc, 16, v{V_VX}")
    g.i(f"v_subrev_u32 v{V_VX}, 16, v{V_T1}")
    g.i("s_nop 0")
    g.i(f"v_cndmask_b32 v{V_T1}, v{V_T1}, v{V_VX}, vcc")
    g.i(f"v_cmp_gt_u32 vcc, 16, v{V_T0}")
    g.i(f"v_mov_b32 v{V_T0}, {RING}")
    g.i(f"v_mov_b32 v{V_IDX}, 0xdddd")
    g.i(f"v_cndmask_b32 v{V_VA}, v{V_T1}, v{V_VA}, vcc")
    g.i(f"v_cndmask_b32 v{V_VX}, 0, v{V_T0}, vcc")
    g.i(f"v_add_u32 v{V_VX}, v{V_VX}, v{V_VA}")
    g.i("v_mov_b64 v[252:253], -1")
    g.i("v_mov_b64 v[254:255], -1")
    for r in range(0, 32, 2):
        g.i(f"v_mov_b64 v[{V_O[0]+r}:{V_O[0]+r+1}], 0")
    g.i(f"s_lshl_b32 s{S_T0}, s{S_BR}, 4")
    g.i(f"s_add_u32 s{S_T0}, s{S_T0}, s{S_HP}")
    g.i(f"s_lshl_b32 s{S_T0}, s{S_T0}, 7")
    g.i(f"v_and_b32 v6, 31, v0")
    g.i(f"v_lshl_add_u32 v{V_FA}, v6, 2, s{S_T0}")
    g.i(f"v_lshrrev_b32 v{V_T0}, 2, v0")
    g.i(f"v_and_b32 v{V_T0}, 4, v{V_T0}")
    g.i(f"v_and_b32 v{V_T1}, 7, v0")
    g.i(f"v_xor_b32 v{V_T0}, v{V_T0}, v{V_T1}")
    g.i(f"v_lshlrev_b32 v{V_T0}, 4, v{V_T0}")
    g.i(f"v_lshrrev_b32 v{V_T1}, 3, v0")
    g.i(f"v_lshl_add_u32 v{V_WOA}, v{V_T1}, 10, v{V_T0}")

def consts(g):
    g.i(f"s_cmp_lg_u32 s{S_WAVE}, 4")
    g.i("s_cbranch_scc1 L_ld_noconst")
    g.i("v_lshrrev_b32 v6, 2, v0")
    g.i("v_and_b32 v7, 1, v6")
    g.i("v_lshlrev_b32 v7, 9, v7")
    g.i("v_lshrrev_b32 v6, 1, v6")
    g.i("v_lshl_add_u32 v7, v6, 11, v7")
    g.i("v_and_b32 v6, 1, v0")
    g.i("v_lshl_add_u32 v7, v6, 4, v7")
    g.i("v_cmp_eq_u32 vcc, 0, v6")
    g.i("v_and_b32 v6, 2, v0")
    g.i("v_lshl_add_u32 v7, v6, 5, v7")
    g.i("v_mov_b32 v6, 0x3f803f80")
    g.i(f"v_add_u32 v7, {L_CONST}, v7")
    g.i("v_cndmask_b32 v108, 0, v6, vcc")
    g.i("v_cndmask_b32 v109, 0, v6, vcc")
    g.i("v_cndmask_b32 v110, 0, v6, vcc")
    g.i("v_cndmask_b32 v111, 0, v6, vcc")
    g.i("ds_write_b128 v7, v[108:111]")
    g.lab("L_ld_noconst")

def loader(g):
    VX, VW, VT = 100, 104, 112
    LEAD = g.opt.get('lead', 0)
    g.lab("L_loader")
    g.i(f"s_sub_u32 s{S_A}, s{S_WAVE}, 4")
    S_CH, S_TX = S_F, 55
    RM = g.opt.get('rot', 5)
    if RM == 1:
        g.i(f"s_lshl_b32 s{S_CH}, s{S_TB}, 1")
        g.i(f"s_lshr_b32 s{S_T1}, s{S_TB}, 2")
        g.i(f"s_add_u32 s{S_CH}, s{S_CH}, s{S_T1}")
        g.i(f"s_and_b32 s{S_CH}, s{S_CH}, 7")
    elif RM == 2:
        g.i(f"s_mov_b32 s{S_CH}, s{S_TB}")
    elif RM == 4:
        g.i(f"s_lshl_b32 s{S_CH}, s{S_TB}, 1")
        g.i(f"s_add_u32 s{S_CH}, s{S_CH}, s{S_HP}")
        g.i(f"s_and_b32 s{S_CH}, s{S_CH}, 3")
        g.i(f"s_lshl_b32 s{S_CH}, s{S_CH}, 1")
    elif RM == 5:
        g.i(f"s_add_u32 s{S_CH}, s{S_TB}, s{S_HP}")
        g.i(f"s_and_b32 s{S_CH}, s{S_CH}, 3")
        g.i(f"s_lshl_b32 s{S_CH}, s{S_CH}, 1")
    elif RM == 3:
        g.i(f"s_lshl_b32 s{S_CH}, s{S_TB}, 1")
        g.i(f"s_and_b32 s{S_T1}, s{S_HP}, 1")
        g.i(f"s_add_u32 s{S_CH}, s{S_CH}, s{S_T1}")
        g.i(f"s_and_b32 s{S_CH}, s{S_CH}, 7")
    g.i(f"v_lshlrev_b32 v{VT}, 10, v0")
    g.i(f"s_and_b32 s{S_TX}, s{S_HP}, 7")
    g.i(f"s_lshl_b32 s{S_TX}, s{S_TX}, 2")
    g.i(f"s_add_u32 s{S_TX}, s{S_TX}, s{S_A}")
    g.i(f"s_lshl_b32 s{S_TX}, s{S_TX}, 13")
    NT = 1 if LEAD else 0
    def touch(ahead):
        if not LEAD: return
        g.i(f"s_add_u32 s{S_T0}, s{S_CH}, {ahead}")
        g.i(f"s_and_b32 s{S_T0}, s{S_T0}, 7")
        g.i(f"s_lshl_b32 s{S_T0}, s{S_T0}, 7")
        g.i(f"s_add_u32 s{S_T0}, s{S_T0}, s{S_TX}")
        g.i("s_mov_b64 exec, 0xff")
        g.i(f"buffer_load_dword v244, v{VT}, s[{S_X}:{S_X+3}], s{S_T0} offen")
        g.i("s_mov_b64 exec, -1")
    g.i("v_lshrrev_b32 v6, 4, v0")
    g.i("v_and_b32 v7, 7, v0")
    g.i("v_xor_b32 v6, v6, v7")
    g.i("v_lshlrev_b32 v6, 4, v6")
    g.i("v_lshrrev_b32 v7, 3, v0")
    g.i(f"v_lshl_add_u32 v{VX}, v7, 10, v6")
    g.i(f"v_xor_b32 v{VX+1}, 64, v{VX}")
    g.i(f"v_add_u32 v{VX+2}, {2*7168}, v{VX}")
    g.i(f"v_add_u32 v{VX+3}, {3*7168}, v{VX+1}")
    g.i(f"v_add_u32 v{VX+1}, 7168, v{VX+1}")
    g.i(f"s_lshl_b32 s{S_B}, s{S_A}, 16")
    g.i(f"s_lshl_b32 s{S_D}, s{S_A}, 13")
    for p in range(3):
        g.i(f"v_add_u32 v6, {64*p}, v0")
        g.i("v_mul_u32_u24 v7, 43691, v6")
        g.i("v_lshrrev_b32 v7, 19, v7")
        g.i("v_mul_u32_u24 v110, 12, v7")
        g.i("v_sub_u32 v6, v6, v110")
        g.i("v_mul_u32_u24 v7, 3072, v7")
        g.i("v_lshrrev_b32 v110, 2, v6")
        g.i(f"v_lshl_add_u32 v7, v110, {6 if g.opt.get('x_wc') else 10}, v7")
        g.i("v_and_b32 v6, 3, v6")
        g.i("v_lshl_add_u32 v7, v6, 4, v7")
        g.i(f"v_subrev_u32 v{VW+p}, {1024*p}, v7")
    g.i(f"s_mul_i32 s{S_C}, s{S_A}, {16*3072}")
    g.i(f"s_lshl_b32 s{S_T1}, s{S_HP}, {7 if g.opt.get('x_wc') else 6}")
    g.i(f"s_add_u32 s{S_C}, s{S_C}, s{S_T1}")
    g.i(f"s_mul_i32 s{S_E}, s{S_A}, 3072")
    g.i(f"s_add_u32 s{S_E}, s{S_E}, {SLOT_W}")
    early_srds(g)
    def issue():
        g.i(f"s_lshl_b32 s{S_T1}, s{S_CH}, 7")
        g.i(f"s_add_u32 s{S_T1}, s{S_T1}, s{S_B}")
        g.i(f"s_mov_b32 m0, s{S_D}")
        g.i(f"s_add_u32 s{S_T0}, s{S_T1}, 32768")
        for p in range(4):
            g.i(f"buffer_load_dwordx4 v{VX+p}, s[{S_X}:{S_X+3}], s{S_T1} offen offset:{1024*p}{g.opt.get('xfl',' nt')} lds")
        g.i(f"s_add_u32 m0, s{S_D}, 4096")
        g.i(f"s_mul_i32 s{S_T1}, s{S_CH}, {64*3072}")
        for p in range(4):
            g.i(f"buffer_load_dwordx4 v{VX+p}, s[{S_X}:{S_X+3}], s{S_T0} offen offset:{1024*p}{g.opt.get('xfl',' nt')} lds")
        g.i(f"s_mov_b32 m0, s{S_E}")
        g.i(f"s_add_u32 s{S_T1}, s{S_T1}, s{S_C}")
        for p in range(3):
            if g.opt.get('x_now'): g.i(f"buffer_load_dword v244, v{VW+p}, s[{S_DBG if False else S_W}:{S_W+3}], s{S_C} offen"); continue
            g.i(f"buffer_load_dwordx4 v{VW+p}, s[{S_W}:{S_W+3}], s{S_T1} offen offset:{1024*p}{g.opt.get('wfl',' nt')} lds")
        g.i(f"s_add_u32 s{S_CH}, s{S_CH}, 1")
        g.i(f"s_and_b32 s{S_CH}, s{S_CH}, 7")
    def next_slot():
        g.i(f"s_add_u32 s{S_D}, s{S_D}, {SLOT}")
        g.i(f"s_add_u32 s{S_E}, s{S_E}, {SLOT}")
        g.i(f"s_cmp_lt_u32 s{S_D}, {3*SLOT}")
        g.i(f"s_cselect_b32 s{S_T0}, 0, {3*SLOT}")
        g.i(f"s_sub_u32 s{S_D}, s{S_D}, s{S_T0}")
        g.i(f"s_sub_u32 s{S_E}, s{S_E}, s{S_T0}")
    issue()
    g.st('ld_c0')
    next_slot(); issue()
    for c in range(2, LEAD): touch(c - 2)
    g.st('ld_c2')
    late_srds(g); attn_consts(g); consts(g)
    g.st('ld_pre')
    PRE = g.opt.get('pre', '')
    n0 = NT * max(LEAD - 2, 0)
    def pre():
        g.i(f"s_lshl_b32 s{S_T0}, s{S_TB}, 14")
        g.i(f"s_and_b32 s{S_T1}, s{S_A}, 1")
        g.i(f"s_lshl_b32 s{S_T1}, s{S_T1}, 13")
        g.i(f"s_add_u32 s{S_T0}, s{S_T0}, s{S_T1}")
        g.i(f"s_lshr_b32 s{S_T1}, s{S_A}, 1")
        g.i(f"s_lshl_b32 s{S_T1}, s{S_T1}, 17")
        g.i(f"s_add_u32 s{S_T0}, s{S_T0}, s{S_T1}")
        if PRE == 'r':
            g.i("v_lshlrev_b32 v6, 7, v0")
            g.i(f"buffer_load_dword v245, v6, s[{S_KV}:{S_KV+3}], s{S_T0} offen sc1")
            return 1
        g.i(f"s_add_u32 s{S_T1}, s{S_T0}, 4096")
        for k in range(8):
            g.i(f"buffer_store_dwordx4 v[{V_O[0]}:{V_O[0]+3}], v{V_L16}, s[{S_KV}:{S_KV+3}], s{S_T1 if k >= 4 else S_T0} offen offset:{1024*(k%4)} sc1")
        return 8
    np_ = 0
    PC = g.opt.get('prec', 1)
    for c, n in ((0, 11 + n0), (1, n0 + 11 + NT)):
        g.i(f"s_waitcnt vmcnt({n + (np_ if c == 1 else 0)})")
        if c == 0: g.st('ld_got0')
        g.i("s_barrier")
        next_slot(); issue(); touch(LEAD - 3)
        if PRE and c == PC: np_ = pre()
    if PRE and PC == 1:
        g.i(f"s_waitcnt vmcnt({11+2*NT+np_})")
        g.i("s_barrier")
        next_slot(); issue(); touch(LEAD - 3)
        g.i(f"s_mov_b32 s{S_IT}, 3")
        g.i(f"s_waitcnt vmcnt({11+2*NT+np_})")
        g.i("s_branch L_ld_loop2")
    g.i(f"s_mov_b32 s{S_IT}, 2")
    g.lab("L_ld_loop")
    g.i(f"s_waitcnt vmcnt({11+2*NT})")
    g.lab("L_ld_loop2")
    g.i("s_barrier")
    next_slot(); issue(); touch(LEAD - 3)
    g.i(f"s_add_u32 s{S_IT}, s{S_IT}, 1")
    g.i(f"s_cmp_lt_u32 s{S_IT}, 6")
    g.i("s_cbranch_scc1 L_ld_loop")
    g.st('ld_iss7')
    g.i(f"s_waitcnt vmcnt({11+2*NT})")
    g.i("s_barrier")
    g.i("s_waitcnt vmcnt(0)")
    g.i("s_barrier")
    g.i(f"s_cmp_lg_u32 s{S_WAVE}, 4")
    g.i("s_cbranch_scc1 L_ld_nocert")
    g.i(f"s_lshl_b32 s{S_T0}, s{S_BR}, 4")
    g.i(f"s_add_u32 s{S_T0}, s{S_T0}, s{S_HP}")
    g.i(f"s_lshl_b32 s{S_T0}, s{S_T0}, 3")
    g.i(f"v_mov_b32 v7, s{S_T0}")
    spin(g, "cert1", f"buffer_load_dword v{V_F}, v7, s[{S_DBG}:{S_DBG+3}], 0 offen sc1", 8)
    g.lab("L_ld_nocert")
    g.i(f"s_lshl_b32 s{S_T0}, s{S_A}, 11")
    g.i(f"s_add_u32 s{S_T0}, s{S_T0}, {L_QX}")
    g.i(f"v_add_u32 v6, s{S_T0}, v{V_L16}")
    attn_setup(g)
    g.i("s_waitcnt lgkmcnt(0)")
    g.i("s_barrier")
    g.i(f"ds_read_b128 {vr(V_Q[0],4)}, v6")
    g.i(f"ds_read_b128 {vr(V_Q[1],4)}, v6 offset:1024")
    g.i("s_branch L_attn")

class LdsQ:
    def __init__(self, g): self.g = g; self.q = []
    def issue(self, tag): self.q.append(tag)
    def need(self, tags):
        idx = max([i for i, t in enumerate(self.q) if t in tags], default=-1)
        if idx >= 0:
            n = len(self.q) - 1 - idx
            self.g.i(f"s_waitcnt lgkmcnt({min(n,15)})")
            self.q = self.q[idx + 1:]

def compute(g):
    g.lab("L_compute")
    g.i("s_waitcnt lgkmcnt(0)")
    late_srds(g)
    g.i(f"s_cmp_lg_u32 s{S_WAVE}, 0")
    g.i("s_cbranch_scc1 L_cp_noclear")
    g.i(f"s_lshl_b32 s{S_T0}, s{S_BR}, 4")
    g.i(f"s_add_u32 s{S_T0}, s{S_T0}, s{S_HP}")
    g.i(f"s_lshl_b32 s{S_T1}, s{S_T0}, 7")
    g.i(f"s_lshl_b32 s{S_T2}, s{S_TB}, 4")
    g.i(f"s_add_u32 s{S_T1}, s{S_T1}, s{S_T2}")
    g.i(f"v_lshl_add_u32 v6, v0, 2, s{S_T1}")
    g.i("v_mov_b32 v100, 0")
    g.i("s_mov_b64 exec, 0xf")
    g.i(f"buffer_store_dword v100, v6, s[{S_FL}:{S_FL+3}], 0 offen sc1")
    g.i("s_mov_b64 exec, -1")
    g.lab("L_cp_noclear")
    attn_consts(g)
    g.i("v_and_b32 v6, 31, v0")
    g.i(f"s_lshl_b32 s{S_T0}, s{S_WAVE}, 13")
    g.i(f"v_lshl_add_u32 v100, v6, 7, s{S_T0}")
    g.i("v_bfe_u32 v6, v0, 1, 3")
    g.i("v_lshrrev_b32 v7, 5, v0")
    g.i("v_xor_b32 v6, v6, v7")
    for s in range(4):
        g.i(f"v_xor_b32 v7, {2*s}, v6")
        g.i(f"v_lshl_add_u32 v{V_XA+s}, v7, 4, v100")
    g.i("v_lshrrev_b32 v6, 5, v0")
    g.i("v_bfe_u32 v7, v0, 2, 2")
    g.i("v_lshl_add_u32 v6, v6, 3, v7")
    g.i("v_mul_u32_u24 v6, 192, v6")
    g.i("v_bfe_u32 v7, v0, 4, 1")
    g.i("v_lshl_add_u32 v6, v7, 5, v6")
    g.i("v_and_b32 v7, 3, v0")
    g.i("v_lshl_add_u32 v6, v7, 3, v6")
    g.i(f"v_add_u32 v{V_WA}, {SLOT_W}, v6")
    for r in range(0, 96, 2):
        g.i(f"v_mov_b64 v[{V_ACC+r}:{V_ACC+r+1}], 0")
    S_A, S_B, S_G1, S_G2 = 56, 57, 58, 59
    KG, KL, VG, VL, QL = 244, 245, 247, 248, 249
    g.i("v_and_b32 v6, 0x33, v0")
    g.i("v_bfe_u32 v7, v0, 2, 1")
    g.i("v_lshl_or_b32 v6, v7, 3, v6")
    g.i("v_bfe_u32 v7, v0, 3, 1")
    g.i("v_lshl_or_b32 v6, v7, 2, v6")
    g.i(f"v_lshlrev_b32 v{KG}, 4, v6")
    g.i(f"s_lshl_b32 s{S_T0}, s{S_WAVE}, 12")
    g.i(f"v_add_u32 v{KL}, s{S_T0}, v{KG}")
    g.i("v_and_b32 v6, 15, v0")
    g.i("v_lshlrev_b32 v6, 4, v6")
    g.i("v_lshrrev_b32 v7, 5, v0")
    g.i("v_lshl_add_u32 v6, v7, 8, v6")
    g.i("v_add_u32 v6, 1024, v6")
    g.i("v_bfe_u32 v7, v0, 4, 1")
    g.i(f"v_lshl_add_u32 v{VG}, v7, 17, v6")
    g.i("v_lshl_add_u32 v6, v7, 14, v6")
    g.i(f"v_add_u32 v{VL}, s{S_T0}, v6")
    g.i(f"s_lshr_b32 s{S_T0}, s{S_T0}, 1")
    g.i(f"s_add_u32 s{S_T0}, s{S_T0}, {L_QX}")
    g.i(f"v_add_u32 v{QL}, s{S_T0}, v{V_L16}")
    if g.opt.get('dry', 1):
        g.i(f"s_cmp_lt_u32 s{S_WAVE}, 2")
        g.i("s_cbranch_scc1 L_dry_done")
        g.i(f"s_mov_b32 s{S_DRY}, 1")
        g.i(f"s_mov_b32 s{S_IT}, 7")
        g.i("s_mov_b64 vcc, 0")
        g.i(f"s_mov_b64 s[{S_M}:{S_M+1}], 0")
        g.i(f"s_mov_b64 s[{S_M+2}:{S_M+3}], 0")
        g.i(f"s_mov_b32 s{S_MK}, 0")
        g.i("s_waitcnt vmcnt(0) lgkmcnt(0)")
        g.i("s_setvskip -1, 0")
        g.i(f"s_cmp_eq_u32 s{S_WAVE}, 2")
        g.i("s_cbranch_scc1 L_at_done")
        g.i("s_branch L_cp_loop")
        g.lab("L_dry_ret")
        g.i("s_setvskip 0, 0")
        g.i("s_mov_b64 exec, -1")
        g.i("s_setprio 0")
        g.i(f"s_mov_b32 s{S_DRY}, 0")
        g.lab("L_dry_done")
    attn_setup(g)
    g.i(f"s_lshl_b32 s{S_T0}, s{S_WAVE}, 12")
    g.i(f"s_lshl_b32 s{S_G1}, s{S_TB}, 14")
    g.i(f"s_add_u32 s{S_G1}, s{S_G1}, s{S_T0}")
    g.i(f"s_add_u32 s{S_G2}, s{S_G1}, 131072")
    g.i(f"s_mov_b32 s{S_IT}, 0")
    g.i(f"s_mov_b32 s{S_A}, 0")
    g.i(f"s_mov_b32 s{S_B}, {SLOT}")
    q = LdsQ(g)
    def rd(setn, s, which):
        F = V_FR[setn]
        if which[0] == 'x':
            i = int(which[1])
            g.i(f"ds_read_b128 {vr(F+4*i,4)}, v{V_XA+s} offset:{4096*i}")
        else:
            p = {'q': 0, 'k': 1, 'v': 2}[which[0]]; i = int(which[1])
            g.i(f"ds_read_b64_tr_b16 {vr(F+8+4*p+2*i,2)}, v{V_WA} offset:{s*3072+i*768+p*64}")
        q.issue((setn, which))
    ORDER = ['x0', 'q0', 'q1', 'x1', 'k0', 'k1', 'v0', 'v1']
    def mf(setn, n):
        F = V_FR[setn]; p, i = n // 2, n % 2
        w, x = vr(F + 8 + 4 * p, 4), vr(F + 4 * i, 4)
        nm = 'qkv'[p]
        q.need({(setn, f'x{i}'), (setn, nm + '0'), (setn, nm + '1')})
        A, B = (w, x) if p < 2 else (x, w)
        acc = vr(V_ACC + 16 * n, 16)
        if g.opt.get('x_m16'):
            for hh in range(2):
                a4 = vr(V_ACC + 16 * n + 4 * hh, 4)
                g.i(f"v_mfma_f32_16x16x32_bf16 {a4}, {A}, {B}, {a4}")
        else:
            g.i(f"v_mfma_f32_32x32x16_bf16 {acc}, {A}, {B}, {acc}")
    def step(cur, nxt_s):
        plan = [ORDER[0:2], ORDER[2:4], ORDER[4:6], ORDER[6:8], [], []]
        for n in range(6):
            if cur is not None: mf(cur, n)
            if nxt_s is not None:
                for w in plan[n]: rd(1 - (cur if cur is not None else 1), nxt_s, w)
    g.i(f"s_cmp_lg_u32 s{S_WAVE}, 0")
    g.i("s_cbranch_scc1 L_cp_nocount")
    g.i(f"s_lshl_b32 s{S_T0}, s{S_BR}, 4")
    g.i(f"s_add_u32 s{S_T0}, s{S_T0}, s{S_HP}")
    g.i(f"s_lshl_b32 s{S_T0}, s{S_T0}, 3")
    g.i("s_mov_b64 exec, 1")
    g.i(f"v_mov_b32 v6, s{S_T0}")
    g.i("v_mov_b32 v7, 1")
    g.i(f"s_waitcnt vmcnt(0)")
    g.i(f"buffer_atomic_add v7, v6, s[{S_DBG}:{S_DBG+3}], 0 offen sc1")
    g.i("s_mov_b64 exec, -1")
    g.lab("L_cp_nocount")
    def prew():
        g.i(f"s_lshl_b32 s{S_T0}, s{S_TB}, 14")
        g.i(f"s_lshl_b32 s{S_T1}, s{S_WAVE}, 12")
        g.i(f"s_add_u32 s{S_T0}, s{S_T0}, s{S_T1}")
        g.i(f"s_add_u32 s{S_T1}, s{S_T0}, 131072")
        for k in range(8):
            g.i(f"buffer_store_dwordx4 v[{V_O[0]}:{V_O[0]+3}], v{V_L16}, s[{S_KV}:{S_KV+3}], s{S_T1 if k >= 4 else S_T0} offen offset:{1024*(k%4)} sc1")
    if g.opt.get('prew') == 1: prew()
    g.st('cp_pre')
    g.i("s_barrier")
    g.stamp(1)
    if g.opt.get('prew') == 2: prew()
    step(None, 0)
    g.lab("L_cp_loop")
    q.q = [(0, w) for w in ORDER]
    step(0, 1); step(1, 2); step(0, 3)
    g.i(f"s_add_u32 s{S_A}, s{S_A}, 1")
    g.i(f"s_cmp_eq_u32 s{S_A}, 3")
    g.i(f"s_cselect_b32 s{S_T0}, {(-2*SLOT) & 0xffffffff}, s{S_B}")
    g.i(f"s_cselect_b32 s{S_A}, 0, s{S_A}")
    g.i(f"s_add_u32 s{S_IT}, s{S_IT}, 1")
    g.i(f"s_cmp_eq_u32 s{S_IT}, 8")
    g.i("s_cbranch_scc1 L_cp_last")
    g.i("s_waitcnt lgkmcnt(0)")
    q.q = []
    g.i("s_barrier")
    for r in range(5):
        g.i(f"v_add_u32 v{V_XA+r}, s{S_T0}, v{V_XA+r}")
    step(1, 0)
    g.i("s_branch L_cp_loop")
    g.lab("L_cp_last")
    q.q = [(1, w) for w in ORDER]
    step(1, None)
    g.stamp(2)
    g.i(f"s_mov_b32 s{S_T1}, {hex(QSCALE)}")
    g.i(f"s_mov_b32 s{S_T2}, s{S_T1}")
    g.i("s_nop 5")
    KVS = g.opt.get('kvs', ' sc1')
    T = 204
    n = 0
    for i in range(2):
        A = V_ACC + 16 * (2 + i)
        for hd in range(2):
            for r in range(4):
                g.i(f"v_cvt_pk_bf16_f32 v{T+4*n+r}, v{A+8*hd+2*r}, v{A+8*hd+2*r+1}")
            g.i(f"buffer_store_dwordx4 {vr(T+4*n,4)}, v{KG}, s[{S_KV}:{S_KV+3}], s{S_G2 if hd else S_G1} offen offset:{2048*i}{KVS}")
            g.i(f"ds_write_b128 v{KL}, {vr(T+4*n,4)} offset:{16384*hd+2048*i}")
            n += 1
    for i in range(2):
        A = V_ACC + 16 * (4 + i)
        for gr in range(2):
            for r in range(4):
                g.i(f"v_cvt_pk_bf16_f32 v{T+4*n+r}, v{A+8*gr+2*r}, v{A+8*gr+2*r+1}")
            g.i(f"buffer_store_dwordx4 {vr(T+4*n,4)}, v{VG}, s[{S_KV}:{S_KV+3}], s{S_G1} offen offset:{2048*i+512*gr}{KVS}")
            g.i(f"ds_write_b128 v{VL}, {vr(T+4*n,4)} offset:{2048*i+512*gr}")
            n += 1
    for i in range(2):
        A = V_ACC + 16 * i
        for r in range(8, 16, 2):
            g.i(f"v_pk_mul_f32 v[{A+r}:{A+r+1}], v[{A+r}:{A+r+1}], s[{S_T0+1}:{S_T0+2}]")
        for r in range(4):
            g.i(f"v_cvt_pk_bf16_f32 v{A+8+r}, v{A+8+2*r}, v{A+8+2*r+1}")
        g.i(f"ds_write_b128 v{QL}, {vr(A+8,4)} offset:{1024*i}")
    for i in range(2):
        A = V_ACC + 16 * i
        for r in range(0, 8, 2):
            g.i(f"v_pk_mul_f32 v[{A+r}:{A+r+1}], v[{A+r}:{A+r+1}], s[{S_T0+1}:{S_T0+2}]")
        for r in range(4):
            g.i(f"v_cvt_pk_bf16_f32 v{V_Q[i]+r}, v{A+2*r}, v{A+2*r+1}")
    g.i("s_waitcnt lgkmcnt(0)")
    barrier_unless_dry(g, "b8")

U = 8
S_OA, S_OB = S_M + 6, S_M + 7
S_MK = S_M + 5
S_KV2 = S_X
S_KO = [None, 4, 5, 6, 7, 12, 13, 14]
S_LM = [[49, 50], [51, 52]]
V_VB = 4

def spin_mask(g, tag, load):
    g.i(f"s_mov_b32 s{S_T3}, 0")
    g.lab(f"L_spin_{tag}")
    g.i(load)
    g.i(f"s_add_u32 s{S_T3}, s{S_T3}, 1")
    g.i("s_waitcnt vmcnt(0)")
    g.i(f"v_cmp_ne_u32 vcc, 1, v{V_F}")
    g.i(f"s_cmp_ge_u32 s{S_T3}, {SPIN_MAX}")
    g.i(f"s_cbranch_scc1 L_olr_{tag}")
    g.i(f"s_and_b32 vcc_lo, vcc_lo, s{S_MK}")
    g.i(f"s_cbranch_scc1 L_spin_{tag}")

def attn_setup(g):
    g.i(f"s_add_u32 s{S_KV2}, s{S_KV}, 131072")
    g.i(f"s_addc_u32 s{S_KV2+1}, s{S_KV+1}, 0")
    g.i(f"s_mov_b32 s{S_KV2+2}, 131072")
    g.i(f"s_mov_b32 s{S_KV2+3}, 0x20000")
    g.i(f"s_lshl_b32 s{S_LM[0][0]}, s{S_WAVE}, 11")
    g.i(f"s_add_u32 s{S_LM[0][1]}, s{S_LM[0][0]}, 16384")
    g.i(f"s_add_u32 s{S_LM[1][0]}, s{S_LM[0][0]}, {RING}")
    g.i(f"s_add_u32 s{S_LM[1][1]}, s{S_LM[0][0]}, {RING+16384}")
    g.i(f"s_and_b32 s{S_T1}, s{S_TB}, 4")
    g.i(f"s_xor_b32 s{S_T2}, s{S_T1}, 4")
    for i in range(1, 8):
        g.i(f"s_add_u32 s{S_T0}, s{S_TB}, {i}")
        g.i(f"s_and_b32 s{S_T0}, s{S_T0}, 3")
        g.i(f"s_or_b32 s{S_T0}, s{S_T0}, s{S_T1 if i < 4 else S_T2}")
        if i == 1:
            g.i(f"s_lshl_b32 s{S_T3}, s{S_T0}, 2")
            g.i(f"s_lshl_b32 s{S_MK}, 15, s{S_T3}")
        g.i(f"s_lshl_b32 s{S_T0}, s{S_T0}, 14")
        g.i(f"s_add_u32 s{S_KO[i]}, s{S_T0}, s{S_LM[0][0]}")
    g.i(f"s_and_b32 s{S_F}, s{S_HP}, 7")
    g.i(f"s_lshl_b32 s{S_T0}, s{S_F}, 7")
    g.i(f"s_lshl_b32 s55, s{S_WAVE}, 16")
    g.i(f"s_add_u32 s55, s55, s{S_T0}")
    g.i(f"s_lshl_b32 s{S_E}, s{S_WAVE}, 13")
    g.i(f"s_add_u32 s{S_E}, s{S_E}, {L_WO}")
    g.i(f"s_and_b32 s{S_T0}, s{S_WAVE}, 3")
    g.i(f"s_lshl_b32 s{S_T0}, s{S_T0}, 1")
    g.i(f"s_lshl_b32 s{S_T1}, s{S_TB}, 3")
    g.i(f"s_add_u32 s{S_T0}, s{S_T0}, s{S_T1}")
    g.i(f"s_lshl_b32 s{S_OA}, s{S_T0}, 15")
    g.i(f"s_lshr_b32 s{S_T1}, s{S_WAVE}, 2")
    g.i(f"s_lshl_b32 s{S_T2}, s{S_HP}, 1")
    g.i(f"s_add_u32 s{S_T1}, s{S_T1}, s{S_T2}")
    g.i(f"s_lshl_b32 s{S_T2}, s{S_T1}, 10")
    g.i(f"s_add_u32 s{S_OA}, s{S_OA}, s{S_T2}")
    g.i(f"s_add_u32 s{S_OB}, s{S_OA}, 32768")

def attention(g):
    opt = g.opt
    g.lab("L_attn")
    g.stamp(3)
    g.i(f"ds_read_b128 {vr(V_K,4)}, v{V_KA}")
    g.i(f"ds_read_b128 {vr(V_V[0],4)}, v{V_VA}")
    g.i(f"ds_read_b128 {vr(V_V[0]+4,4)}, v{V_VA} offset:512")
    g.i("s_setprio 3")
    g.i("s_waitcnt lgkmcnt(2)")
    g.i(f"v_mfma_f32_32x32x16_bf16 {vr(V_S[0],16)}, {vr(V_K,4)}, {vr(V_Q[0],4)}, 0")
    dry_exit(g)
    g.i("s_nop 9")
    g.i("s_waitcnt lgkmcnt(0)")
    poll = f"buffer_load_dword v{V_F}, v{V_FA}, s[{S_FL}:{S_FL+3}], 0 offen sc1"
    side = []
    ev = {}
    def at(it, p, slot, *ins): ev.setdefault((it, p, slot), []).extend(ins)
    def kv(i, n):
        return f"buffer_load_dwordx4 v{V_L16}, {sr(S_KV2 if n >= 2 else S_KV, 4)}, s{S_KO[i]} offen offset:{1024*(n%2)}{opt.get('kvl', ' sc1')} lds"
    def check(tag, n):
        def f():
            g.i(f"s_waitcnt vmcnt({n})")
            g.i(f"v_cmp_ne_u32 vcc, 1, v{V_F}")
            g.i(f"s_nop {opt.get('x_nop', 0)}")
            g.i(f"s_and_b32 vcc_lo, vcc_lo, s{S_MK}")
            g.i(f"s_cbranch_scc1 L_ol_{tag}")
            g.lab(f"L_olr_{tag}")
            if opt.get('inv'):
                g.i("buffer_inv sc1")
                g.i("s_waitcnt vmcnt(0)")
            side.append((tag, lambda: spin_mask(g, tag, poll)))
        return f
    def publish():
        g.i(f"s_cmp_ge_u32 s{S_WAVE}, 4")
        g.i("s_cbranch_scc1 L_at_nopub")
        g.i(f"s_lshl_b32 s{S_T0}, s{S_TB}, 2")
        g.i(f"s_add_u32 s{S_T0}, s{S_T0}, s{S_WAVE}")
        g.i(f"s_lshl_b64 exec, 1, s{S_T0}")
        g.i(f"v_mov_b32 v{V_F}, 1")
        g.st('pub_pre')
        if opt.get('wbl2'):
            g.i("s_waitcnt vmcnt(0)")
            g.i("buffer_wbl2 sc1")
        g.i("s_waitcnt vmcnt(0)")
        g.st('pub_ack')
        g.i(f"buffer_store_dword v{V_F}, v{V_FA}, s[{S_FL}:{S_FL+3}], 0 offen sc1")
        g.i("s_mov_b64 exec, -1")
        g.lab("L_at_nopub")
    def count():
        g.i(f"s_cmp_lg_u32 s{S_WAVE}, 7")
        g.i("s_cbranch_scc1 L_at_nocnt")
        g.i(f"s_lshl_b32 s{S_T0}, s{S_BR}, 4")
        g.i(f"s_add_u32 s{S_T0}, s{S_T0}, s{S_HP}")
        g.i(f"s_lshl_b32 s{S_T0}, s{S_T0}, 3")
        g.i("s_mov_b64 exec, 1")
        g.i(f"v_mov_b32 v246, s{S_T0}")
        g.i("v_mov_b32 v247, 1")
        g.i(f"buffer_atomic_add v247, v246, s[{S_DBG}:{S_DBG+3}], 0 offen offset:4 sc1")
        g.i("s_mov_b64 exec, -1")
        g.lab("L_at_nocnt")
    pp, pi0, pc0, pi1 = opt.get('ev', (0, 7, 9, 11))
    at(0, pp, 'p1', publish)
    at(0, pi0, 'qk', poll)
    at(0, pc0, 'qk', check("kv0", 0), lambda: g.st('chk_ok'), f"s_mov_b32 m0, s{S_LM[1][0]}", f"s_lshr_b32 s{S_T0}, s{S_TB}, 2",
       kv(1, 0), kv(1, 1), f"s_mov_b32 m0, s{S_LM[1][1]}", f"s_lshl_b32 s{S_T0}, s{S_T0}, 4", kv(1, 2), kv(1, 3),
       f"s_lshl_b32 s{S_MK}, 0xffff, s{S_T0}")
    at(0, pi1, 'qk', poll)
    late = {i: 0 for i in range(8)}
    dp = opt.get('dma', (1, 3, 5, 7))
    for i in range(1, 7):
        sl = (i + 1) % 2
        at(i, dp[0] - 1, 'p2x', f"s_mov_b32 m0, s{S_LM[sl][0]}")
        at(i, dp[0], 'qk', kv(i + 1, 0))
        at(i, dp[1], 'qk', kv(i + 1, 1))
        at(i, dp[2], 'p2', f"s_mov_b32 m0, s{S_LM[sl][1]}")
        at(i, dp[2], 'qk', kv(i + 1, 2))
        at(i, dp[3], 'qk', kv(i + 1, 3))
    CK2 = opt.get('ck2', 2)
    at(CK2, 7, 'p1', poll)
    wp = opt.get('wop', (9, 11))
    for i in range(1, 5):
        for k, p in enumerate(wp):
            at(i, p, 'p2', f"s_add_u32 m0, s{S_E}, {(2*(i-1)+k)*1024}")
            at(i, p, 'qk', f"buffer_load_dwordx4 v{V_WOA}, s[{S_WO}:{S_WO+3}], s55 offen lds")
            at(i, p, 'p1', "s_add_u32 s55, s55, 8192")
        late[i] += 2
    for k, so in enumerate((S_OA, S_OB)):
        at(5, 9 + 2 * k, 'qk', f"buffer_store_dwordx4 v[252:255], v{V_L16}, s[{S_O}:{S_O+3}], s{so} offen sc1")
    late[5] += 2
    at(7, 1, 'qk', count)
    if opt.get('x_late0'): late = {i: 0 for i in range(8)}
    prio = opt.get('prio', {0: 3, 5: 2, 10: 1, 13: 0})
    for i in range(8):
        for p, v in prio.items():
            ii, q = (i, p - 1) if p else (i - 1, 15)
            if ii >= 0: at(ii, q, 'p1', f"s_setprio {v}")
    def emit(it, p, slot):
        for x in ev.pop((it, p, slot), []):
            x() if callable(x) else g.i(x)
    p2, pq, p1 = opt.get('pos', (1, 5, 10))
    for it in range(8):
        if opt.get('itst'):
            g.i("s_memtime s[98:99]")
            g.i("s_waitcnt lgkmcnt(0)")
            g.i(f"v_writelane_b32 v250, s98, {it}")
        for p in range(2 * U):
            b, t = p % 2, p // 2
            S, So = V_S[b], V_S[1 - b]
            nt = (t + 1) % U
            sl = (it + (t == U - 1)) % 2
            VA = V_VB if sl else V_VA
            last = it == 7 and t == U - 1
            for e in range(16):
                g.i(f"v_exp_f32 v{S+e}, v{S+e}")
                if e == p2:
                    tp = (p - 1) // 2
                    if it or p:
                        g.i(f"v_smfmac_f32_32x32x32_bf16 {vr(V_O[1-b],16)}, {vr(V_V[tp%2]+4,4)}, {vr(So+8,8)}, v{V_IDX}")
                    emit(it, p, 'p2x')
                    if b == 0:
                        if t == U - 1 and it < 7:
                            if it == 0: check("kv1", 0)(); g.st('chk1_ok'); g.i(f"s_mov_b32 s{S_MK}, -1")
                            elif it == CK2: check("kv2", late[it])()
                            else: g.i(f"s_waitcnt vmcnt({late[it]})")
                            g.i("s_barrier")
                        if not last: g.i(f"ds_read_b128 {vr(V_V[(t+1)%2],4)}, v{VA} offset:{nt*2048}")
                    elif not last:
                        g.i("s_waitcnt lgkmcnt(1)")
                    emit(it, p, 'p2')
                if e == pq:
                    if not (last and b):
                        g.i(f"v_mfma_f32_32x32x16_bf16 {vr(So,16)}, {vr(V_K,4)}, {vr(V_Q[1-b],4)}, 0")
                    if b == 0 and not last:
                        g.i(f"ds_read_b128 {vr(V_K,4)}, v{V_KA} offset:{sl*RING+nt*2048}")
                    emit(it, p, 'qk')
                if e == p1:
                    g.i(f"v_smfmac_f32_32x32x32_bf16 {vr(V_O[b],16)}, {vr(V_V[t%2],4)}, {vr(S,8)}, v{V_IDX}")
                    if b == 0 and not last:
                        g.i(f"ds_read_b128 {vr(V_V[(t+1)%2]+4,4)}, v{VA} offset:{nt*2048+512}")
                    elif not last:
                        g.i("s_waitcnt lgkmcnt(0)")
                    emit(it, p, 'p1')
    assert not ev, ev
    g.side = side
    g.lab("L_at_done")
    g.i("s_nop 1")
    g.i(f"v_smfmac_f32_32x32x32_bf16 {vr(V_O[1],16)}, {vr(V_V[1]+4,4)}, {vr(V_S[1]+8,8)}, v{V_IDX}")
    g.stamp(4)
    if opt.get('itst'):
        g.i("s_memtime s[98:99]")
        g.i("s_waitcnt lgkmcnt(0)")
        g.i(f"v_writelane_b32 v250, s98, 8")
    g.i(f"s_mov_b32 s{S_T0}, 0x2b800000")
    g.i(f"s_mov_b32 s{S_T1}, 0x53800000")
    g.i(f"s_mov_b32 s{S_T2}, 0x7f800000")
    for q in range(2):
        O = V_O[q]
        g.i(f"v_add_f32 v6, abs(v{O}), abs(v{O+1})")
        g.i(f"v_add_f32 v7, abs(v{O+2}), abs(v{O+3})")
        for r in range(4, 8, 2):
            g.i(f"v_add_f32 v6, v6, abs(v{O+r})")
            g.i(f"v_add_f32 v7, v7, abs(v{O+r+1})")
        g.i(f"v_add_f32 v6, v6, v7")
        g.i(f"v_cmp_nle_f32 s[{S_M}:{S_M+1}], s{S_T0}, v{O+8}")
        g.i(f"v_cmp_nge_f32 s[{S_M+2}:{S_M+3}], s{S_T1}, v{O+8}")
        g.i(f"v_cmp_ngt_f32 vcc, s{S_T2}, v6")
        g.i(f"v_rcp_f32 v{V_S[0]+q}, v{O+8}")
        g.i(f"s_or_b64 s[{S_M}:{S_M+1}], s[{S_M}:{S_M+1}], s[{S_M+2}:{S_M+3}]")
        g.i(f"s_or_b64 s[{S_M}:{S_M+1}], s[{S_M}:{S_M+1}], vcc")
        g.i("s_branch L_fallback" if opt.get('force_fallback') else "s_cbranch_scc1 L_fallback")
    g.lab("L_at_store")
    for q in range(2):
        O = V_O[q]
        for r in range(8):
            g.i(f"v_mul_f32 v{O+r}, v{O+r}, v{V_S[0]+q}")
        for r in range(4):
            g.i(f"v_cvt_pk_bf16_f32 v{O+r}, v{O+2*r}, v{O+2*r+1}")
        g.i(f"buffer_store_dwordx4 {vr(O,4)}, v{V_L16}, s[{S_O}:{S_O+3}], s{S_OB if q else S_OA} offen sc1")

P_WO = 100
P_OF = 8
def outproj(g):
    opt = g.opt
    A0, A1 = 228, 72
    WA0, WA1, RA, OA = 244, 245, 246, 247
    g.i(f"s_lshr_b32 s{S_E}, s{S_WAVE}, 2")
    g.i(f"s_lshl_b32 s{S_T0}, s{S_E}, 15")
    g.i(f"s_add_u32 s{S_T0}, s{S_T0}, {L_WO}")
    g.i("v_lshrrev_b32 v6, 5, v0")
    g.i("v_bfe_u32 v7, v0, 2, 2")
    g.i("v_lshl_add_u32 v6, v6, 2, v7")
    g.i(f"v_lshl_add_u32 v6, v6, 7, s{S_T0}")
    g.i("v_bfe_u32 v7, v0, 3, 2")
    g.i("v_and_b32 v2, 1, v7")
    g.i("v_lshl_add_u32 v6, v2, 6, v6")
    g.i("v_lshrrev_b32 v7, 1, v7")
    g.i("v_lshl_add_u32 v6, v7, 5, v6")
    g.i("v_and_b32 v7, 3, v0")
    g.i(f"v_lshl_add_u32 v6, v7, 3, v6")
    g.i(f"s_lshl_b32 s{S_T0}, s{S_E}, 6")
    g.i(f"v_xor_b32 v{WA0}, s{S_T0}, v6")
    g.i(f"v_xor_b32 v{WA1}, 64, v{WA0}")
    n = 0
    def wo_reads(s0, s1):
        for s in range(s0, s1):
            for f in range(2):
                for i in range(2):
                    g.i(f"ds_read_b64_tr_b16 {vr(P_WO+8*s+4*f+2*i,2)}, v{WA1 if f else WA0} offset:{s*2048+i*1024}")
    g.stamp(5)
    g.i(f"s_lshl_b32 s{S_T0}, s{S_BR}, 7")
    g.i("v_and_b32 v6, 15, v0")
    g.i(f"v_lshl_add_u32 v4, v6, 3, s{S_T0}")
    g.i(f"buffer_load_dword v5, v4, s[{S_DBG}:{S_DBG+3}], 0 offen offset:4 sc1")
    for s0 in range(0, 16, 3):
        if s0: g.i("s_waitcnt lgkmcnt(2)")
        wo_reads(s0, min(s0 + 3, 16))
    g.i(f"s_lshr_b32 s{S_T0}, s{S_HP}, 3")
    g.i(f"s_lshl_b32 s{S_T0}, s{S_T0}, 2")
    g.i(f"s_and_b32 s{S_T1}, s{S_WAVE}, 3")
    g.i(f"s_add_u32 s{S_A}, s{S_T0}, s{S_T1}")
    g.i(f"s_lshl_b32 s{S_T0}, s{S_TB}, 3")
    g.i(f"s_add_u32 s{S_A}, s{S_A}, s{S_T0}")
    g.i(f"s_lshl_b32 s{S_B}, s{S_A}, 15")
    g.i(f"s_lshl_b32 s{S_T0}, s{S_E}, 14")
    g.i(f"s_add_u32 s{S_B}, s{S_B}, s{S_T0}")
    g.i(f"s_add_u32 s{S_C}, s{S_B}, 4096")
    g.i(f"s_add_u32 s{S_D}, s{S_B}, 8192")
    g.i(f"s_add_u32 s{S_IT}, s{S_B}, 12288")
    g.i(f"v_lshlrev_b32 v2, 10, v6")
    g.i(f"v_add_u32 v2, 1020, v2")
    g.i(f"s_lshl_b32 s{S_T0}, s{S_WAVE}, 12")
    g.i(f"v_add_u32 v{RA}, s{S_T0}, v{V_L16}")
    g.i("v_and_b32 v6, 31, v0")
    g.i("v_lshlrev_b32 v6, 11, v6")
    g.i("v_lshrrev_b32 v7, 5, v0")
    g.i(f"v_lshl_add_u32 v{OA}, v7, 4, v6")
    g.i(f"s_lshl_b32 s{S_A}, s{S_A}, 16")
    g.i(f"s_lshl_b32 s{S_T0}, s{S_BR}, 10")
    g.i(f"s_add_u32 s{S_A}, s{S_A}, s{S_T0}")
    g.i(f"s_lshl_b32 s{S_T0}, s{S_F}, 7")
    g.i(f"s_add_u32 s{S_A}, s{S_A}, s{S_T0}")
    g.i(f"s_lshl_b32 s{S_T0}, s{S_E}, 6")
    g.i(f"s_add_u32 s{S_A}, s{S_A}, s{S_T0}")
    g.i(f"s_mov_b32 s{S_T3}, 0")
    g.lab("L_spin_c")
    g.i("s_waitcnt vmcnt(0)")
    g.i("v_cmp_gt_u32 vcc, 8, v5")
    g.i(f"s_add_u32 s{S_T3}, s{S_T3}, 1")
    g.i("s_cbranch_vccz L_spin_o")
    g.i(f"buffer_load_dword v5, v4, s[{S_DBG}:{S_DBG+3}], 0 offen offset:4 sc1")
    g.i(f"s_cmp_lt_u32 s{S_T3}, {SPIN_MAX}")
    g.i("s_cbranch_scc1 L_spin_c")
    g.lab("L_spin_o")
    if opt.get('probe', 1):
        g.i("s_mov_b64 exec, 0xffff")
        g.i(f"buffer_load_dword v3, v2, s[{S_O}:{S_O+3}], s{S_B} offen sc1")
        g.i(f"s_add_u32 s{S_T3}, s{S_T3}, 1")
        g.i("s_waitcnt vmcnt(0)")
        g.i("v_cmp_eq_u32 vcc, -1, v3")
        g.i("s_mov_b64 exec, -1")
        g.i(f"s_cmp_ge_u32 s{S_T3}, {SPIN_MAX}")
        g.i("s_cbranch_scc1 L_spun_o")
        if opt.get('sleep'): g.i(f"s_sleep {opt['sleep']}")
        g.i("s_cbranch_vccnz L_spin_o")
    else:
        g.i(f"s_add_u32 s{S_T3}, s{S_T3}, 1")
    g.lab("L_spun_o")
    g.stamp(6)
    for s in range(16):
        so = (S_B, S_C, S_D, S_IT)[s // 4]
        g.i(f"buffer_load_dwordx4 {vr(P_OF+4*s,4)}, v{V_L16}, s[{S_O}:{S_O+3}], s{so} offen offset:{1024*(s%4)} sc1")
    g.i("v_mov_b32 v3, 0")
    g.i("s_waitcnt lgkmcnt(0)")
    for s in range(16):
        g.i(f"s_waitcnt vmcnt({15-s})")
        for f, A in ((1, A1), (0, A0)):
            g.i(f"v_mfma_f32_32x32x16_bf16 {vr(A,16)}, {vr(P_WO+8*s+4*f,4)}, {vr(P_OF+4*s,4)}, {vr(A,16) if s else 0}")
            g.i(f"v_max3_u32 v3, v3, v{P_OF+4*s+2*f}, v{P_OF+4*s+2*f+1}")
    g.i("v_cmp_eq_u32 vcc, -1, v3")
    g.i(f"s_cmp_ge_u32 s{S_T3}, {SPIN_MAX}")
    g.i("s_cbranch_scc1 L_op_go")
    g.i("s_cbranch_vccnz L_spin_o")
    g.lab("L_op_go")
    g.i("s_nop 5")
    for r in range(4):
        g.i(f"ds_write_b128 v{RA}, {vr(A1+4*r,4)} offset:{1024*r}")
    g.i("s_waitcnt lgkmcnt(0)")
    g.i(f"v_xor_b32 v{RA}, 16384, v{RA}")
    barrier_unless_dry(g, "b9")
    for r in range(4):
        g.i(f"ds_read_b128 {vr(P_OF+4*r,4)}, v{RA} offset:{1024*r}")
    for r in range(4):
        g.i(f"s_waitcnt lgkmcnt({3-r})")
        for k in range(4):
            g.i(f"v_add_f32 v{A0+4*r+k}, v{A0+4*r+k}, v{P_OF+4*r+k}")
        for k in range(2):
            g.i(f"v_cvt_pk_bf16_f32 v{24+2*r+k}, v{A0+4*r+2*k}, v{A0+4*r+2*k+1}")
        if r % 2:
            g.i("s_nop 1")
            g.i(f"v_permlane32_swap_b32 v{24+2*r-2}, v{24+2*r}")
            g.i(f"v_permlane32_swap_b32 v{24+2*r-1}, v{24+2*r+1}")
            g.i(f"buffer_store_dwordx4 {vr(24+2*r-2,4)}, v{OA}, s[{S_OUT}:{S_OUT+3}], s{S_A} offen offset:{16*(r-1)}{opt.get('outs','')}")
    dry_exit(g)
    if g.diag:
        g.i("s_waitcnt vmcnt(0)")
        g.stamp(7)
        g.i("s_waitcnt lgkmcnt(0)")
        if g.diag == 2:
            g.i(f"s_cmp_ge_u32 s{S_WAVE}, 4")
            g.i("s_cbranch_scc1 L_end")
            g.i("s_mov_b64 exec, 1")
            for k in range(1, 8):
                g.i(f"s_sub_u32 s{S_T0}, s{66+4*k}, s66")
                g.i(f"v_mov_b32 v6, s{S_T0}")
                g.i(f"v_mov_b32 v7, {8*k+4}")
                g.i(f"buffer_atomic_umax v6, v7, s[{S_DBG}:{S_DBG+3}], 0 offen sc1")
            g.i(f"s_sub_u32 s{S_T0}, s{64+4*4}, s{64+4*3}")
            g.i(f"v_mov_b32 v6, s{S_T0}")
            g.i(f"v_mov_b32 v7, 4")
            g.i(f"buffer_atomic_umax v6, v7, s[{S_DBG}:{S_DBG+3}], 0 offen sc1")
            g.i("s_endpgm")
        g.i(f"s_lshl_b32 s{S_T0}, s2, 3")
        g.i(f"s_add_u32 s{S_T0}, s{S_T0}, s{S_WAVE}")
        g.i(f"s_lshl_b32 s{S_T0}, s{S_T0}, 7")
        g.i(f"s_add_u32 s{S_T0}, s{S_T0}, {WS_STAMP}")
        srd(g.a, S_X, 96, 128, f"s{S_T0}")
        for k in range(32):
            g.i(f"v_mov_b32 v{36+k}, s{64+k}")
        g.i("v_mov_b32 v6, 0")
        for k in range(8):
            g.i(f"buffer_store_dwordx4 {vr(36+4*k,4)}, v6, s[{S_X}:{S_X+3}], 0 offen offset:{16*k}")
        if opt.get('itst'):
            g.i(f"s_add_u32 s{S_T0}, s{S_T0}, {1<<20}")
            srd(g.a, S_X, 96, 64, f"s{S_T0}")
            g.i("v_lshlrev_b32 v6, 2, v0")
            g.i(f"buffer_store_dword v250, v6, s[{S_X}:{S_X+3}], 0 offen")
    g.lab("L_end")
    g.i("s_endpgm")

def fallback(g):
    C = [100, 116]; M = [132, 133]; GV = 134
    g.lab("L_fallback")
    g.i(f"s_lshr_b32 s{S_T0}, s{S_WAVE}, 2")
    g.i(f"s_lshl_b32 s{S_T0}, s{S_T0}, 17")
    g.i(f"v_mov_b32 v{M[0]}, 0xff800000")
    g.i(f"v_mov_b32 v{M[1]}, 0xff800000")
    g.i(f"s_mov_b32 s{S_T1}, s{S_T0}")
    g.i(f"s_add_u32 s{S_T2}, s{S_T0}, 131072")
    g.lab("L_fb_max")
    g.i(f"buffer_load_dwordx4 {vr(V_K,4)}, v{V_L16}, s[{S_KV}:{S_KV+3}], s{S_T1} offen sc1")
    g.i(f"s_add_u32 s{S_T1}, s{S_T1}, 2048")
    g.i("s_waitcnt vmcnt(0)")
    for q in range(2):
        g.i(f"v_mfma_f32_32x32x16_bf16 {vr(V_S[q],16)}, {vr(V_K,4)}, {vr(V_Q[q],4)}, 0")
    g.i("s_nop 15")
    for q in range(2):
        for r in range(0, 16, 2):
            g.i(f"v_max3_f32 v{M[q]}, v{M[q]}, v{V_S[q]+r}, v{V_S[q]+r+1}")
    g.i(f"s_cmp_lt_u32 s{S_T1}, s{S_T2}")
    g.i("s_cbranch_scc1 L_fb_max")
    for q in range(2):
        g.i(f"v_mov_b32 v6, v{M[q]}")
        g.i(f"v_mov_b32 v7, v{M[q]}")
        g.i("s_nop 1")
        g.i("v_permlane32_swap_b32 v6, v7")
        g.i("s_nop 1")
        g.i("v_max_f32 v6, v6, v7")
        for r in range(16):
            g.i(f"v_sub_f32 v{C[q]+r}, 0, v6")
            g.i(f"v_mov_b32 v{V_O[q]+r}, 0")
    g.i("v_and_b32 v6, 15, v0")
    g.i("v_lshlrev_b32 v6, 4, v6")
    g.i("v_lshrrev_b32 v7, 5, v0")
    g.i(f"v_lshl_add_u32 v{GV}, v7, 8, v6")
    for r in range(8):
        g.i(f"v_mov_b32 v{V_V[0]+r}, 0x3f803f80")
    g.i(f"s_mov_b32 s{S_T1}, s{S_T0}")
    g.i(f"s_mov_b32 s{S_M}, 0xffff")
    g.i(f"s_mov_b32 s{S_M+1}, 0xffff")
    g.lab("L_fb_pv")
    g.i(f"buffer_load_dwordx4 {vr(V_K,4)}, v{V_L16}, s[{S_KV}:{S_KV+3}], s{S_T1} offen sc1")
    g.i(f"s_mov_b64 exec, s[{S_M}:{S_M+1}]")
    g.i(f"buffer_load_dwordx4 {vr(V_V[0],4)}, v{GV}, s[{S_KV}:{S_KV+3}], s{S_T1} offen offset:1024 sc1")
    g.i(f"buffer_load_dwordx4 {vr(V_V[0]+4,4)}, v{GV}, s[{S_KV}:{S_KV+3}], s{S_T1} offen offset:1536 sc1")
    g.i("s_mov_b64 exec, -1")
    g.i(f"s_add_u32 s{S_T1}, s{S_T1}, 2048")
    g.i("s_waitcnt vmcnt(0)")
    for q in range(2):
        g.i(f"v_mfma_f32_32x32x16_bf16 {vr(V_S[q],16)}, {vr(V_K,4)}, {vr(V_Q[q],4)}, {vr(C[q],16)}")
    g.i("s_nop 15")
    for q in range(2):
        for r in range(16):
            g.i(f"v_exp_f32 v{V_S[q]+r}, v{V_S[q]+r}")
    g.i("s_nop 3")
    for q in range(2):
        for h in range(2):
            g.i(f"v_smfmac_f32_32x32x32_bf16 {vr(V_O[q],16)}, {vr(V_V[0]+4*h,4)}, {vr(V_S[q]+8*h,8)}, v{V_IDX}")
    g.i("s_nop 15")
    g.i(f"s_cmp_lt_u32 s{S_T1}, s{S_T2}")
    g.i("s_cbranch_scc1 L_fb_pv")
    for q in range(2):
        g.i(f"v_rcp_f32 v{V_S[0]+q}, v{V_O[q]+8}")
    g.i("s_nop 1")
    g.i("s_branch L_at_store")

HEADER = open('cdna_kernels/' + NAME + '.s.ref').read().split('; Override launch')[0]

def generate(opt={}):
    g = G(opt)
    name = NAME + "_kernel"
    g.a(HEADER.rstrip())
    g.a(f"; @launch grid=(256,1,1) block=(512,1,1) lds={LDS_TOTAL}")
    g.a('.amdgcn_target "amdgcn-amd-amdhsa--gfx950"')
    entry(g, name)
    if opt.get('lfirst', 1): loader(g)
    compute(g)
    attention(g)
    outproj(g)
    if not opt.get('lfirst', 1): loader(g)
    g.lab("L_code_end")
    for tag, body in g.side:
        g.lab(f"L_ol_{tag}")
        body()
        g.i(f"s_branch L_olr_{tag}")
    fallback(g)
    kernel_desc(g.a, name, NVGPR, 256, 102)
    return g.a.text()

if __name__ == "__main__":
    import sys
    opt = eval(sys.argv[2]) if len(sys.argv) > 2 else {}
    open(sys.argv[1], 'w').write(generate(opt))
```

```python
import math, struct
from common import *

WS_FLAG = 16 << 20
SLOT = 45056; SLOT_W = 32768
RING = 32768
L_WO = 65536
L_CONST = 135168
L_QX = 155648
LDS_TOTAL = 163840
S_X, S_W, S_WO, S_KV, S_O, S_FL, S_DBG, S_OUT = 8, 12, 16, 20, 24, 28, 32, 36
S_WAVE, S_BR, S_HP, S_TB, S_IT, S_T0, S_T1, S_T2, S_T3 = 40, 41, 42, 43, 44, 45, 46, 47, 48
S_A, S_B, S_C, S_D, S_E, S_F = 49, 50, 51, 52, 53, 54
S_M = 56
V_L16, V_KA, V_VA, V_VX, V_IDX, V_T0, V_T1 = 1, 2, 3, 4, 5, 6, 7
V_Q = [8, 12]; V_K = 16; V_V = [20, 28]; V_S = [36, 52]; V_O = [68, 84]
V_F = 241
V_FA = 242
V_WOA = 243
V_ACC = 100
V_FR = [196, 216]
V_XA = 236; V_WA = 240
NVGPR = 256
QSCALE = struct.unpack('<I', struct.pack('<f', 0.25 * math.log2(math.e)))[0]
SPIN_MAX = 1 << 20
S_DRY = 3

class G:
    def __init__(self, opt):
        self.a = Asm(); self.opt = opt; self.diag = opt.get('diag', 0)
    def i(self, s): self.a.i(s)
    def lab(self, s): self.a.label(s)
    def st(self, name):
        m = self.opt.get('st', {})
        if name in m: self.stamp(m[name], True)
    def stamp(self, k, forced=False):
        if k in self.opt.get('st', {}).values() and not forced: return
        if self.diag:
            self.i(f"s_memtime s[{64+4*k}:{65+4*k}]")
            self.i(f"s_memrealtime s[{66+4*k}:{67+4*k}]")

def dry_exit(g, label="L_dry_ret"):
    if g.opt.get('dry', 1):
        g.i(f"s_cmp_lg_u32 s{S_DRY}, 0")
        g.i(f"s_cbranch_scc1 {label}")

def barrier_unless_dry(g, tag):
    dry_exit(g, f"L_nb_{tag}")
    g.i("s_barrier")
    g.lab(f"L_nb_{tag}")

def spin(g, tag, load, want, nlanes_mask=None):
    g.i(f"s_mov_b32 s{S_T3}, 0")
    g.lab(f"L_spin_{tag}")
    g.i(load)
    g.i(f"s_add_u32 s{S_T3}, s{S_T3}, 1")
    g.i("s_waitcnt vmcnt(0)")
    g.i(f"v_cmp_{'gt' if want > 1 else 'ne'}_u32 vcc, {want}, v{V_F}")
    g.i(f"s_cmp_ge_u32 s{S_T3}, {SPIN_MAX}")
    g.i(f"s_cbranch_scc1 L_spun_{tag}")
    g.i(f"s_cbranch_vccnz L_spin_{tag}")
    g.lab(f"L_spun_{tag}")

def entry(g, name):
    a = g.a
    kernel_head(a, name)
    PF = g.opt.get('cpf', 1)
    if PF:
        g.i("s_getpc_b64 s[8:9]")
        g.i("v_lshlrev_b32 v6, 7, v0")
        g.i("s_mov_b32 s10, L_code_end-" + name + "-4")
        g.i("s_mov_b32 s11, 0x20000")
    g.i("s_cmp_ge_u32 s2, 256")
    g.i("s_cbranch_scc1 L_end")
    if PF:
        g.i("buffer_load_dword v246, v6, s[8:11], 0 offen")
    g.stamp(0)
    g.i(f"s_mov_b32 s{S_DRY}, 0")
    g.i(f"s_bfe_u32 s{S_BR}, s2, 0x10002")
    g.i(f"s_mul_i32 s{S_T0}, s{S_BR}, 24")
    g.i(f"s_load_dwordx4 s[{S_M}:{S_M+3}], s[0:1], s{S_T0}")
    g.i(f"s_load_dwordx2 s[{S_M+4}:{S_M+5}], s[0:1], s{S_T0} offset:16")
    g.i("s_load_dwordx4 s[4:7], s[0:1], 48")
    g.i(f"s_load_dwordx2 s[{S_M+6}:{S_M+7}], s[0:1], 64")
    g.i("v_lshrrev_b32 v6, 6, v0")
    g.i("v_and_b32 v0, 63, v0")
    g.i(f"v_readfirstlane_b32 s{S_WAVE}, v6")
    g.i(f"v_lshlrev_b32 v{V_L16}, 4, v0")
    g.i(f"s_bfe_u32 s{S_HP}, s2, 0x10001")
    g.i(f"s_lshl_b32 s{S_HP}, s{S_HP}, 3")
    g.i(f"s_bfe_u32 s{S_T0}, s2, 0x30003")
    g.i(f"s_add_u32 s{S_HP}, s{S_HP}, s{S_T0}")
    g.i(f"s_and_b32 s{S_TB}, s2, 1")
    g.i(f"s_lshl_b32 s{S_TB}, s{S_TB}, 2")
    g.i(f"s_lshr_b32 s{S_T0}, s2, 6")
    g.i(f"s_add_u32 s{S_TB}, s{S_TB}, s{S_T0}")
    g.i(f"s_lshl_b32 s{S_T0}, s{S_TB}, 18")
    g.i(f"s_lshl_b32 s{S_T1}, s{S_BR}, 4")
    g.i(f"s_add_u32 s{S_T1}, s{S_T1}, s{S_HP}")
    g.i(f"s_lshl_b32 s{S_T2}, s{S_T1}, 18")
    g.i(f"s_add_u32 s{S_T2}, s{S_T2}, {WS_KV}")
    g.i(f"s_lshl_b32 s{S_T3}, s{S_BR}, 21")
    g.i(f"s_add_u32 s{S_T3}, s{S_T3}, {WS_O}")
    if g.opt.get('lfirst', 1):
        g.i(f"s_cmp_lt_u32 s{S_WAVE}, 4")
        g.i("s_cbranch_scc1 L_compute")
    else:
        g.i(f"s_cmp_ge_u32 s{S_WAVE}, 4")
        g.i("s_cbranch_scc1 L_loader")

def early_srds(g):
    g.i("s_waitcnt lgkmcnt(0)")
    g.st('karg')
    srd(g.a, S_X, S_M, 256 * 1024, f"s{S_T0}")
    srd(g.a, S_W, S_M + 2, 512 * 1536 * 2)

def late_srds(g):
    a = g.a
    srd(a, S_WO, S_M + 4, 512 * 512 * 2)
    srd(a, S_KV, S_M + 6, 256 * 1024, f"s{S_T2}")
    srd(a, S_O, S_M + 6, 2 << 20, f"s{S_T3}")
    srd(a, S_FL, S_M + 6, 4096, str(WS_FLAG))
    srd(a, S_DBG, 6, 256)
    srd(a, S_OUT, 4, 2048 * 1024 * 2)
    if g.diag:
        g.i(f"s_mov_b32 s96, s{S_M+6}")
        g.i(f"s_mov_b32 s97, s{S_M+7}")

def attn_consts(g):
    g.i(f"s_lshr_b32 s{S_T0}, s{S_WAVE}, 2")
    g.i(f"s_lshl_b32 s{S_T0}, s{S_T0}, 14")
    g.i(f"v_add_u32 v{V_KA}, s{S_T0}, v{V_L16}")
    g.i(f"v_and_b32 v{V_T0}, 15, v0")
    g.i(f"v_lshlrev_b32 v{V_T0}, 4, v{V_T0}")
    g.i(f"v_lshrrev_b32 v{V_T1}, 5, v0")
    g.i(f"v_lshl_add_u32 v{V_T0}, v{V_T1}, 8, v{V_T0}")
    g.i(f"s_add_u32 s{S_T0}, s{S_T0}, 1024")
    g.i(f"v_add_u32 v{V_VA}, s{S_T0}, v{V_T0}")
    g.i(f"v_and_b32 v{V_T0}, 31, v0")
    g.i(f"v_subrev_u32 v{V_T1}, 20, v{V_T0}")
    g.i(f"v_cmp_gt_u32 vcc, 8, v{V_T1}")
    g.i(f"v_mov_b32 v{V_T1}, {L_CONST+16}")
    g.i(f"v_mov_b32 v{V_VX}, {L_CONST+16+64}")
    g.i(f"v_cndmask_b32 v{V_T1}, v{V_T1}, v{V_VX}, vcc")
    g.i(f"v_and_b32 v{V_VX}, 27, v0")
    g.i(f"v_cmp_eq_u32 vcc, 16, v{V_VX}")
    g.i(f"v_subrev_u32 v{V_VX}, 16, v{V_T1}")
    g.i("s_nop 0")
    g.i(f"v_cndmask_b32 v{V_T1}, v{V_T1}, v{V_VX}, vcc")
    g.i(f"v_cmp_gt_u32 vcc, 16, v{V_T0}")
    g.i(f"v_mov_b32 v{V_T0}, {RING}")
    g.i(f"v_mov_b32 v{V_IDX}, 0xdddd")
    g.i(f"v_cndmask_b32 v{V_VA}, v{V_T1}, v{V_VA}, vcc")
    g.i(f"v_cndmask_b32 v{V_VX}, 0, v{V_T0}, vcc")
    g.i(f"v_add_u32 v{V_VX}, v{V_VX}, v{V_VA}")
    g.i("v_mov_b64 v[252:253], -1")
    g.i("v_mov_b64 v[254:255], -1")
    for r in range(0, 32, 2):
        g.i(f"v_mov_b64 v[{V_O[0]+r}:{V_O[0]+r+1}], 0")
    g.i(f"s_lshl_b32 s{S_T0}, s{S_BR}, 4")
    g.i(f"s_add_u32 s{S_T0}, s{S_T0}, s{S_HP}")
    g.i(f"s_lshl_b32 s{S_T0}, s{S_T0}, 7")
    g.i(f"v_and_b32 v6, 31, v0")
    g.i(f"v_lshl_add_u32 v{V_FA}, v6, 2, s{S_T0}")
    g.i(f"v_lshrrev_b32 v{V_T0}, 2, v0")
    g.i(f"v_and_b32 v{V_T0}, 4, v{V_T0}")
    g.i(f"v_and_b32 v{V_T1}, 7, v0")
    g.i(f"v_xor_b32 v{V_T0}, v{V_T0}, v{V_T1}")
    g.i(f"v_lshlrev_b32 v{V_T0}, 4, v{V_T0}")
    g.i(f"v_lshrrev_b32 v{V_T1}, 3, v0")
    g.i(f"v_lshl_add_u32 v{V_WOA}, v{V_T1}, 10, v{V_T0}")

def consts(g):
    g.i(f"s_cmp_lg_u32 s{S_WAVE}, 4")
    g.i("s_cbranch_scc1 L_ld_noconst")
    g.i("v_lshrrev_b32 v6, 2, v0")
    g.i("v_and_b32 v7, 1, v6")
    g.i("v_lshlrev_b32 v7, 9, v7")
    g.i("v_lshrrev_b32 v6, 1, v6")
    g.i("v_lshl_add_u32 v7, v6, 11, v7")
    g.i("v_and_b32 v6, 1, v0")
    g.i("v_lshl_add_u32 v7, v6, 4, v7")
    g.i("v_cmp_eq_u32 vcc, 0, v6")
    g.i("v_and_b32 v6, 2, v0")
    g.i("v_lshl_add_u32 v7, v6, 5, v7")
    g.i("v_mov_b32 v6, 0x3f803f80")
    g.i(f"v_add_u32 v7, {L_CONST}, v7")
    g.i("v_cndmask_b32 v108, 0, v6, vcc")
    g.i("v_cndmask_b32 v109, 0, v6, vcc")
    g.i("v_cndmask_b32 v110, 0, v6, vcc")
    g.i("v_cndmask_b32 v111, 0, v6, vcc")
    g.i("ds_write_b128 v7, v[108:111]")
    g.lab("L_ld_noconst")

def loader(g):
    VX, VW, VT = 100, 104, 112
    LEAD = g.opt.get('lead', 0)
    g.lab("L_loader")
    g.i(f"s_sub_u32 s{S_A}, s{S_WAVE}, 4")
    S_CH, S_TX = S_F, 55
    RM = g.opt.get('rot', 5)
    if RM == 1:
        g.i(f"s_lshl_b32 s{S_CH}, s{S_TB}, 1")
        g.i(f"s_lshr_b32 s{S_T1}, s{S_TB}, 2")
        g.i(f"s_add_u32 s{S_CH}, s{S_CH}, s{S_T1}")
        g.i(f"s_and_b32 s{S_CH}, s{S_CH}, 7")
    elif RM == 2:
        g.i(f"s_mov_b32 s{S_CH}, s{S_TB}")
    elif RM == 4:
        g.i(f"s_lshl_b32 s{S_CH}, s{S_TB}, 1")
        g.i(f"s_add_u32 s{S_CH}, s{S_CH}, s{S_HP}")
        g.i(f"s_and_b32 s{S_CH}, s{S_CH}, 3")
        g.i(f"s_lshl_b32 s{S_CH}, s{S_CH}, 1")
    elif RM == 5:
        g.i(f"s_add_u32 s{S_CH}, s{S_TB}, s{S_HP}")
        g.i(f"s_and_b32 s{S_CH}, s{S_CH}, 3")
        g.i(f"s_lshl_b32 s{S_CH}, s{S_CH}, 1")
    elif RM == 3:
        g.i(f"s_lshl_b32 s{S_CH}, s{S_TB}, 1")
        g.i(f"s_and_b32 s{S_T1}, s{S_HP}, 1")
        g.i(f"s_add_u32 s{S_CH}, s{S_CH}, s{S_T1}")
        g.i(f"s_and_b32 s{S_CH}, s{S_CH}, 7")
    g.i(f"v_lshlrev_b32 v{VT}, 10, v0")
    g.i(f"s_and_b32 s{S_TX}, s{S_HP}, 7")
    g.i(f"s_lshl_b32 s{S_TX}, s{S_TX}, 2")
    g.i(f"s_add_u32 s{S_TX}, s{S_TX}, s{S_A}")
    g.i(f"s_lshl_b32 s{S_TX}, s{S_TX}, 13")
    NT = 1 if LEAD else 0
    def touch(ahead):
        if not LEAD: return
        g.i(f"s_add_u32 s{S_T0}, s{S_CH}, {ahead}")
        g.i(f"s_and_b32 s{S_T0}, s{S_T0}, 7")
        g.i(f"s_lshl_b32 s{S_T0}, s{S_T0}, 7")
        g.i(f"s_add_u32 s{S_T0}, s{S_T0}, s{S_TX}")
        g.i("s_mov_b64 exec, 0xff")
        g.i(f"buffer_load_dword v244, v{VT}, s[{S_X}:{S_X+3}], s{S_T0} offen")
        g.i("s_mov_b64 exec, -1")
    g.i("v_lshrrev_b32 v6, 4, v0")
    g.i("v_and_b32 v7, 7, v0")
    g.i("v_xor_b32 v6, v6, v7")
    g.i("v_lshlrev_b32 v6, 4, v6")
    g.i("v_lshrrev_b32 v7, 3, v0")
    g.i(f"v_lshl_add_u32 v{VX}, v7, 10, v6")
    g.i(f"v_xor_b32 v{VX+1}, 64, v{VX}")
    g.i(f"v_add_u32 v{VX+2}, {2*7168}, v{VX}")
    g.i(f"v_add_u32 v{VX+3}, {3*7168}, v{VX+1}")
    g.i(f"v_add_u32 v{VX+1}, 7168, v{VX+1}")
    g.i(f"s_lshl_b32 s{S_B}, s{S_A}, 16")
    g.i(f"s_lshl_b32 s{S_D}, s{S_A}, 13")
    for p in range(3):
        g.i(f"v_add_u32 v6, {64*p}, v0")
        g.i("v_mul_u32_u24 v7, 43691, v6")
        g.i("v_lshrrev_b32 v7, 19, v7")
        g.i("v_mul_u32_u24 v110, 12, v7")
        g.i("v_sub_u32 v6, v6, v110")
        g.i("v_mul_u32_u24 v7, 3072, v7")
        g.i("v_lshrrev_b32 v110, 2, v6")
        g.i(f"v_lshl_add_u32 v7, v110, {6 if g.opt.get('x_wc') else 10}, v7")
        g.i("v_and_b32 v6, 3, v6")
        g.i("v_lshl_add_u32 v7, v6, 4, v7")
        g.i(f"v_subrev_u32 v{VW+p}, {1024*p}, v7")
    g.i(f"s_mul_i32 s{S_C}, s{S_A}, {16*3072}")
    g.i(f"s_lshl_b32 s{S_T1}, s{S_HP}, {7 if g.opt.get('x_wc') else 6}")
    g.i(f"s_add_u32 s{S_C}, s{S_C}, s{S_T1}")
    g.i(f"s_mul_i32 s{S_E}, s{S_A}, 3072")
    g.i(f"s_add_u32 s{S_E}, s{S_E}, {SLOT_W}")
    early_srds(g)
    def issue():
        g.i(f"s_lshl_b32 s{S_T1}, s{S_CH}, 7")
        g.i(f"s_add_u32 s{S_T1}, s{S_T1}, s{S_B}")
        g.i(f"s_mov_b32 m0, s{S_D}")
        g.i(f"s_add_u32 s{S_T0}, s{S_T1}, 32768")
        for p in range(4):
            g.i(f"buffer_load_dwordx4 v{VX+p}, s[{S_X}:{S_X+3}], s{S_T1} offen offset:{1024*p}{g.opt.get('xfl','')} lds")
        g.i(f"s_add_u32 m0, s{S_D}, 4096")
        g.i(f"s_mul_i32 s{S_T1}, s{S_CH}, {64*3072}")
        for p in range(4):
            g.i(f"buffer_load_dwordx4 v{VX+p}, s[{S_X}:{S_X+3}], s{S_T0} offen offset:{1024*p}{g.opt.get('xfl','')} lds")
        g.i(f"s_mov_b32 m0, s{S_E}")
        g.i(f"s_add_u32 s{S_T1}, s{S_T1}, s{S_C}")
        for p in range(3):
            if g.opt.get('x_now'): g.i(f"buffer_load_dword v244, v{VW+p}, s[{S_DBG if False else S_W}:{S_W+3}], s{S_C} offen"); continue
            g.i(f"buffer_load_dwordx4 v{VW+p}, s[{S_W}:{S_W+3}], s{S_T1} offen offset:{1024*p}{g.opt.get('wfl','')} lds")
        g.i(f"s_add_u32 s{S_CH}, s{S_CH}, 1")
        g.i(f"s_and_b32 s{S_CH}, s{S_CH}, 7")
    def next_slot():
        g.i(f"s_add_u32 s{S_D}, s{S_D}, {SLOT}")
        g.i(f"s_add_u32 s{S_E}, s{S_E}, {SLOT}")
        g.i(f"s_cmp_lt_u32 s{S_D}, {3*SLOT}")
        g.i(f"s_cselect_b32 s{S_T0}, 0, {3*SLOT}")
        g.i(f"s_sub_u32 s{S_D}, s{S_D}, s{S_T0}")
        g.i(f"s_sub_u32 s{S_E}, s{S_E}, s{S_T0}")
    issue()
    g.st('ld_c0')
    next_slot(); issue()
    for c in range(2, LEAD): touch(c - 2)
    g.st('ld_c2')
    late_srds(g); attn_consts(g); consts(g)
    g.st('ld_pre')
    PRE = g.opt.get('pre', '')
    n0 = NT * max(LEAD - 2, 0)
    def pre():
        g.i(f"s_lshl_b32 s{S_T0}, s{S_TB}, 14")
        g.i(f"s_and_b32 s{S_T1}, s{S_A}, 1")
        g.i(f"s_lshl_b32 s{S_T1}, s{S_T1}, 13")
        g.i(f"s_add_u32 s{S_T0}, s{S_T0}, s{S_T1}")
        g.i(f"s_lshr_b32 s{S_T1}, s{S_A}, 1")
        g.i(f"s_lshl_b32 s{S_T1}, s{S_T1}, 17")
        g.i(f"s_add_u32 s{S_T0}, s{S_T0}, s{S_T1}")
        if PRE == 'r':
            g.i("v_lshlrev_b32 v6, 7, v0")
            g.i(f"buffer_load_dword v245, v6, s[{S_KV}:{S_KV+3}], s{S_T0} offen sc1")
            return 1
        g.i(f"s_add_u32 s{S_T1}, s{S_T0}, 4096")
        for k in range(8):
            g.i(f"buffer_store_dwordx4 v[{V_O[0]}:{V_O[0]+3}], v{V_L16}, s[{S_KV}:{S_KV+3}], s{S_T1 if k >= 4 else S_T0} offen offset:{1024*(k%4)} sc1")
        return 8
    np_ = 0
    PC = g.opt.get('prec', 1)
    for c, n in ((0, 11 + n0), (1, n0 + 11 + NT)):
        g.i(f"s_waitcnt vmcnt({n + (np_ if c == 1 else 0)})")
        if c == 0: g.st('ld_got0')
        g.i("s_barrier")
        next_slot(); issue(); touch(LEAD - 3)
        if PRE and c == PC: np_ = pre()
    if PRE and PC == 1:
        g.i(f"s_waitcnt vmcnt({11+2*NT+np_})")
        g.i("s_barrier")
        next_slot(); issue(); touch(LEAD - 3)
        g.i(f"s_mov_b32 s{S_IT}, 3")
        g.i(f"s_waitcnt vmcnt({11+2*NT+np_})")
        g.i("s_branch L_ld_loop2")
    g.i(f"s_mov_b32 s{S_IT}, 2")
    g.lab("L_ld_loop")
    g.i(f"s_waitcnt vmcnt({11+2*NT})")
    g.lab("L_ld_loop2")
    g.i("s_barrier")
    next_slot(); issue(); touch(LEAD - 3)
    g.i(f"s_add_u32 s{S_IT}, s{S_IT}, 1")
    g.i(f"s_cmp_lt_u32 s{S_IT}, 6")
    g.i("s_cbranch_scc1 L_ld_loop")
    g.st('ld_iss7')
    g.i(f"s_waitcnt vmcnt({11+2*NT})")
    g.i("s_barrier")
    g.i("s_waitcnt vmcnt(0)")
    g.i("s_barrier")
    g.i(f"s_cmp_lg_u32 s{S_WAVE}, 4")
    g.i("s_cbranch_scc1 L_ld_nocert")
    g.i(f"s_lshl_b32 s{S_T0}, s{S_BR}, 4")
    g.i(f"s_add_u32 s{S_T0}, s{S_T0}, s{S_HP}")
    g.i(f"s_lshl_b32 s{S_T0}, s{S_T0}, 3")
    g.i(f"v_mov_b32 v7, s{S_T0}")
    spin(g, "cert1", f"buffer_load_dword v{V_F}, v7, s[{S_DBG}:{S_DBG+3}], 0 offen sc1", 8)
    g.lab("L_ld_nocert")
    g.i(f"s_lshl_b32 s{S_T0}, s{S_A}, 11")
    g.i(f"s_add_u32 s{S_T0}, s{S_T0}, {L_QX}")
    g.i(f"v_add_u32 v6, s{S_T0}, v{V_L16}")
    attn_setup(g)
    g.i("s_waitcnt lgkmcnt(0)")
    g.i("s_barrier")
    g.i(f"ds_read_b128 {vr(V_Q[0],4)}, v6")
    g.i(f"ds_read_b128 {vr(V_Q[1],4)}, v6 offset:1024")
    g.i("s_branch L_attn")

class LdsQ:
    def __init__(self, g): self.g = g; self.q = []
    def issue(self, tag): self.q.append(tag)
    def need(self, tags):
        idx = max([i for i, t in enumerate(self.q) if t in tags], default=-1)
        if idx >= 0:
            n = len(self.q) - 1 - idx
            self.g.i(f"s_waitcnt lgkmcnt({min(n,15)})")
            self.q = self.q[idx + 1:]

def compute(g):
    g.lab("L_compute")
    g.i("s_waitcnt lgkmcnt(0)")
    late_srds(g)
    g.i(f"s_cmp_lg_u32 s{S_WAVE}, 0")
    g.i("s_cbranch_scc1 L_cp_noclear")
    g.i(f"s_lshl_b32 s{S_T0}, s{S_BR}, 4")
    g.i(f"s_add_u32 s{S_T0}, s{S_T0}, s{S_HP}")
    g.i(f"s_lshl_b32 s{S_T1}, s{S_T0}, 7")
    g.i(f"s_lshl_b32 s{S_T2}, s{S_TB}, 4")
    g.i(f"s_add_u32 s{S_T1}, s{S_T1}, s{S_T2}")
    g.i(f"v_lshl_add_u32 v6, v0, 2, s{S_T1}")
    g.i("v_mov_b32 v100, 0")
    g.i("s_mov_b64 exec, 0xf")
    g.i(f"buffer_store_dword v100, v6, s[{S_FL}:{S_FL+3}], 0 offen sc1")
    g.i("s_mov_b64 exec, -1")
    g.lab("L_cp_noclear")
    attn_consts(g)
    g.i("v_and_b32 v6, 31, v0")
    g.i(f"s_lshl_b32 s{S_T0}, s{S_WAVE}, 13")
    g.i(f"v_lshl_add_u32 v100, v6, 7, s{S_T0}")
    g.i("v_bfe_u32 v6, v0, 1, 3")
    g.i("v_lshrrev_b32 v7, 5, v0")
    g.i("v_xor_b32 v6, v6, v7")
    for s in range(4):
        g.i(f"v_xor_b32 v7, {2*s}, v6")
        g.i(f"v_lshl_add_u32 v{V_XA+s}, v7, 4, v100")
    g.i("v_lshrrev_b32 v6, 5, v0")
    g.i("v_bfe_u32 v7, v0, 2, 2")
    g.i("v_lshl_add_u32 v6, v6, 3, v7")
    g.i("v_mul_u32_u24 v6, 192, v6")
    g.i("v_bfe_u32 v7, v0, 4, 1")
    g.i("v_lshl_add_u32 v6, v7, 5, v6")
    g.i("v_and_b32 v7, 3, v0")
    g.i("v_lshl_add_u32 v6, v7, 3, v6")
    g.i(f"v_add_u32 v{V_WA}, {SLOT_W}, v6")
    for r in range(0, 96, 2):
        g.i(f"v_mov_b64 v[{V_ACC+r}:{V_ACC+r+1}], 0")
    S_A, S_B, S_G1, S_G2 = 56, 57, 58, 59
    KG, KL, VG, VL, QL = 244, 245, 247, 248, 249
    g.i("v_and_b32 v6, 0x33, v0")
    g.i("v_bfe_u32 v7, v0, 2, 1")
    g.i("v_lshl_or_b32 v6, v7, 3, v6")
    g.i("v_bfe_u32 v7, v0, 3, 1")
    g.i("v_lshl_or_b32 v6, v7, 2, v6")
    g.i(f"v_lshlrev_b32 v{KG}, 4, v6")
    g.i(f"s_lshl_b32 s{S_T0}, s{S_WAVE}, 12")
    g.i(f"v_add_u32 v{KL}, s{S_T0}, v{KG}")
    g.i("v_and_b32 v6, 15, v0")
    g.i("v_lshlrev_b32 v6, 4, v6")
    g.i("v_lshrrev_b32 v7, 5, v0")
    g.i("v_lshl_add_u32 v6, v7, 8, v6")
    g.i("v_add_u32 v6, 1024, v6")
    g.i("v_bfe_u32 v7, v0, 4, 1")
    g.i(f"v_lshl_add_u32 v{VG}, v7, 17, v6")
    g.i("v_lshl_add_u32 v6, v7, 14, v6")
    g.i(f"v_add_u32 v{VL}, s{S_T0}, v6")
    g.i(f"s_lshr_b32 s{S_T0}, s{S_T0}, 1")
    g.i(f"s_add_u32 s{S_T0}, s{S_T0}, {L_QX}")
    g.i(f"v_add_u32 v{QL}, s{S_T0}, v{V_L16}")
    if g.opt.get('dry', 1):
        g.i(f"s_cmp_lt_u32 s{S_WAVE}, 2")
        g.i("s_cbranch_scc1 L_dry_done")
        g.i(f"s_mov_b32 s{S_DRY}, 1")
        g.i(f"s_mov_b32 s{S_IT}, 7")
        g.i("s_mov_b64 vcc, 0")
        g.i(f"s_mov_b64 s[{S_M}:{S_M+1}], 0")
        g.i(f"s_mov_b64 s[{S_M+2}:{S_M+3}], 0")
        g.i(f"s_mov_b32 s{S_MK}, 0")
        g.i("s_waitcnt vmcnt(0) lgkmcnt(0)")
        g.i("s_setvskip -1, 0")
        g.i(f"s_cmp_eq_u32 s{S_WAVE}, 2")
        g.i("s_cbranch_scc1 L_at_done")
        g.i("s_branch L_cp_loop")
        g.lab("L_dry_ret")
        g.i("s_setvskip 0, 0")
        g.i("s_mov_b64 exec, -1")
        g.i("s_setprio 0")
        g.i(f"s_mov_b32 s{S_DRY}, 0")
        g.lab("L_dry_done")
    attn_setup(g)
    g.i(f"s_lshl_b32 s{S_T0}, s{S_WAVE}, 12")
    g.i(f"s_lshl_b32 s{S_G1}, s{S_TB}, 14")
    g.i(f"s_add_u32 s{S_G1}, s{S_G1}, s{S_T0}")
    g.i(f"s_add_u32 s{S_G2}, s{S_G1}, 131072")
    g.i(f"s_mov_b32 s{S_IT}, 0")
    g.i(f"s_mov_b32 s{S_A}, 0")
    g.i(f"s_mov_b32 s{S_B}, {SLOT}")
    q = LdsQ(g)
    def rd(setn, s, which):
        F = V_FR[setn]
        if which[0] == 'x':
            i = int(which[1])
            g.i(f"ds_read_b128 {vr(F+4*i,4)}, v{V_XA+s} offset:{4096*i}")
        else:
            p = {'q': 0, 'k': 1, 'v': 2}[which[0]]; i = int(which[1])
            g.i(f"ds_read_b64_tr_b16 {vr(F+8+4*p+2*i,2)}, v{V_WA} offset:{s*3072+i*768+p*64}")
        q.issue((setn, which))
    ORDER = ['x0', 'q0', 'q1', 'x1', 'k0', 'k1', 'v0', 'v1']
    def mf(setn, n):
        F = V_FR[setn]; p, i = n // 2, n % 2
        w, x = vr(F + 8 + 4 * p, 4), vr(F + 4 * i, 4)
        nm = 'qkv'[p]
        q.need({(setn, f'x{i}'), (setn, nm + '0'), (setn, nm + '1')})
        A, B = (w, x) if p < 2 else (x, w)
        acc = vr(V_ACC + 16 * n, 16)
        if g.opt.get('x_m16'):
            for hh in range(2):
                a4 = vr(V_ACC + 16 * n + 4 * hh, 4)
                g.i(f"v_mfma_f32_16x16x32_bf16 {a4}, {A}, {B}, {a4}")
        else:
            g.i(f"v_mfma_f32_32x32x16_bf16 {acc}, {A}, {B}, {acc}")
    def step(cur, nxt_s):
        plan = [ORDER[0:2], ORDER[2:4], ORDER[4:6], ORDER[6:8], [], []]
        for n in range(6):
            if cur is not None: mf(cur, n)
            if nxt_s is not None:
                for w in plan[n]: rd(1 - (cur if cur is not None else 1), nxt_s, w)
    g.i(f"s_cmp_lg_u32 s{S_WAVE}, 0")
    g.i("s_cbranch_scc1 L_cp_nocount")
    g.i(f"s_lshl_b32 s{S_T0}, s{S_BR}, 4")
    g.i(f"s_add_u32 s{S_T0}, s{S_T0}, s{S_HP}")
    g.i(f"s_lshl_b32 s{S_T0}, s{S_T0}, 3")
    g.i("s_mov_b64 exec, 1")
    g.i(f"v_mov_b32 v6, s{S_T0}")
    g.i("v_mov_b32 v7, 1")
    g.i(f"s_waitcnt vmcnt(0)")
    g.i(f"buffer_atomic_add v7, v6, s[{S_DBG}:{S_DBG+3}], 0 offen sc1")
    g.i("s_mov_b64 exec, -1")
    g.lab("L_cp_nocount")
    def prew():
        g.i(f"s_lshl_b32 s{S_T0}, s{S_TB}, 14")
        g.i(f"s_lshl_b32 s{S_T1}, s{S_WAVE}, 12")
        g.i(f"s_add_u32 s{S_T0}, s{S_T0}, s{S_T1}")
        g.i(f"s_add_u32 s{S_T1}, s{S_T0}, 131072")
        for k in range(8):
            g.i(f"buffer_store_dwordx4 v[{V_O[0]}:{V_O[0]+3}], v{V_L16}, s[{S_KV}:{S_KV+3}], s{S_T1 if k >= 4 else S_T0} offen offset:{1024*(k%4)} sc1")
    if g.opt.get('prew') == 1: prew()
    g.st('cp_pre')
    g.i("s_barrier")
    g.stamp(1)
    if g.opt.get('prew') == 2: prew()
    step(None, 0)
    g.lab("L_cp_loop")
    q.q = [(0, w) for w in ORDER]
    step(0, 1); step(1, 2); step(0, 3)
    g.i(f"s_add_u32 s{S_A}, s{S_A}, 1")
    g.i(f"s_cmp_eq_u32 s{S_A}, 3")
    g.i(f"s_cselect_b32 s{S_T0}, {(-2*SLOT) & 0xffffffff}, s{S_B}")
    g.i(f"s_cselect_b32 s{S_A}, 0, s{S_A}")
    g.i(f"s_add_u32 s{S_IT}, s{S_IT}, 1")
    g.i(f"s_cmp_eq_u32 s{S_IT}, 8")
    g.i("s_cbranch_scc1 L_cp_last")
    g.i("s_waitcnt lgkmcnt(0)")
    q.q = []
    g.i("s_barrier")
    for r in range(5):
        g.i(f"v_add_u32 v{V_XA+r}, s{S_T0}, v{V_XA+r}")
    step(1, 0)
    g.i("s_branch L_cp_loop")
    g.lab("L_cp_last")
    q.q = [(1, w) for w in ORDER]
    step(1, None)
    g.stamp(2)
    g.i(f"s_mov_b32 s{S_T1}, {hex(QSCALE)}")
    g.i(f"s_mov_b32 s{S_T2}, s{S_T1}")
    g.i("s_nop 5")
    KVS = g.opt.get('kvs', ' sc1')
    T = 204
    n = 0
    for i in range(2):
        A = V_ACC + 16 * (2 + i)
        for hd in range(2):
            for r in range(4):
                g.i(f"v_cvt_pk_bf16_f32 v{T+4*n+r}, v{A+8*hd+2*r}, v{A+8*hd+2*r+1}")
            g.i(f"buffer_store_dwordx4 {vr(T+4*n,4)}, v{KG}, s[{S_KV}:{S_KV+3}], s{S_G2 if hd else S_G1} offen offset:{2048*i}{KVS}")
            g.i(f"ds_write_b128 v{KL}, {vr(T+4*n,4)} offset:{16384*hd+2048*i}")
            n += 1
    for i in range(2):
        A = V_ACC + 16 * (4 + i)
        for gr in range(2):
            for r in range(4):
                g.i(f"v_cvt_pk_bf16_f32 v{T+4*n+r}, v{A+8*gr+2*r}, v{A+8*gr+2*r+1}")
            g.i(f"buffer_store_dwordx4 {vr(T+4*n,4)}, v{VG}, s[{S_KV}:{S_KV+3}], s{S_G1} offen offset:{2048*i+512*gr}{KVS}")
            g.i(f"ds_write_b128 v{VL}, {vr(T+4*n,4)} offset:{2048*i+512*gr}")
            n += 1
    for i in range(2):
        A = V_ACC + 16 * i
        for r in range(8, 16, 2):
            g.i(f"v_pk_mul_f32 v[{A+r}:{A+r+1}], v[{A+r}:{A+r+1}], s[{S_T0+1}:{S_T0+2}]")
        for r in range(4):
            g.i(f"v_cvt_pk_bf16_f32 v{A+8+r}, v{A+8+2*r}, v{A+8+2*r+1}")
        g.i(f"ds_write_b128 v{QL}, {vr(A+8,4)} offset:{1024*i}")
    for i in range(2):
        A = V_ACC + 16 * i
        for r in range(0, 8, 2):
            g.i(f"v_pk_mul_f32 v[{A+r}:{A+r+1}], v[{A+r}:{A+r+1}], s[{S_T0+1}:{S_T0+2}]")
        for r in range(4):
            g.i(f"v_cvt_pk_bf16_f32 v{V_Q[i]+r}, v{A+2*r}, v{A+2*r+1}")
    g.i("s_waitcnt lgkmcnt(0)")
    barrier_unless_dry(g, "b8")

U = 8
S_OA, S_OB = S_M + 6, S_M + 7
S_MK = S_M + 5
S_KV2 = S_X
S_KO = [None, 4, 5, 6, 7, 12, 13, 14]
S_LM = [[49, 50], [51, 52]]
V_VB = 4

def spin_mask(g, tag, load):
    g.i(f"s_mov_b32 s{S_T3}, 0")
    g.lab(f"L_spin_{tag}")
    g.i(load)
    g.i(f"s_add_u32 s{S_T3}, s{S_T3}, 1")
    g.i("s_waitcnt vmcnt(0)")
    g.i(f"v_cmp_ne_u32 vcc, 1, v{V_F}")
    g.i(f"s_cmp_ge_u32 s{S_T3}, {SPIN_MAX}")
    g.i(f"s_cbranch_scc1 L_olr_{tag}")
    g.i(f"s_and_b32 vcc_lo, vcc_lo, s{S_MK}")
    g.i(f"s_cbranch_scc1 L_spin_{tag}")

def attn_setup(g):
    g.i(f"s_add_u32 s{S_KV2}, s{S_KV}, 131072")
    g.i(f"s_addc_u32 s{S_KV2+1}, s{S_KV+1}, 0")
    g.i(f"s_mov_b32 s{S_KV2+2}, 131072")
    g.i(f"s_mov_b32 s{S_KV2+3}, 0x20000")
    g.i(f"s_lshl_b32 s{S_LM[0][0]}, s{S_WAVE}, 11")
    g.i(f"s_add_u32 s{S_LM[0][1]}, s{S_LM[0][0]}, 16384")
    g.i(f"s_add_u32 s{S_LM[1][0]}, s{S_LM[0][0]}, {RING}")
    g.i(f"s_add_u32 s{S_LM[1][1]}, s{S_LM[0][0]}, {RING+16384}")
    g.i(f"s_and_b32 s{S_T1}, s{S_TB}, 4")
    g.i(f"s_xor_b32 s{S_T2}, s{S_T1}, 4")
    for i in range(1, 8):
        g.i(f"s_add_u32 s{S_T0}, s{S_TB}, {i}")
        g.i(f"s_and_b32 s{S_T0}, s{S_T0}, 3")
        g.i(f"s_or_b32 s{S_T0}, s{S_T0}, s{S_T1 if i < 4 else S_T2}")
        if i == 1:
            g.i(f"s_lshl_b32 s{S_T3}, s{S_T0}, 2")
            g.i(f"s_lshl_b32 s{S_MK}, 15, s{S_T3}")
        g.i(f"s_lshl_b32 s{S_T0}, s{S_T0}, 14")
        g.i(f"s_add_u32 s{S_KO[i]}, s{S_T0}, s{S_LM[0][0]}")
    g.i(f"s_and_b32 s{S_F}, s{S_HP}, 7")
    g.i(f"s_lshl_b32 s{S_T0}, s{S_F}, 7")
    g.i(f"s_lshl_b32 s55, s{S_WAVE}, 16")
    g.i(f"s_add_u32 s55, s55, s{S_T0}")
    g.i(f"s_lshl_b32 s{S_E}, s{S_WAVE}, 13")
    g.i(f"s_add_u32 s{S_E}, s{S_E}, {L_WO}")
    g.i(f"s_and_b32 s{S_T0}, s{S_WAVE}, 3")
    g.i(f"s_lshl_b32 s{S_T0}, s{S_T0}, 1")
    g.i(f"s_lshl_b32 s{S_T1}, s{S_TB}, 3")
    g.i(f"s_add_u32 s{S_T0}, s{S_T0}, s{S_T1}")
    g.i(f"s_lshl_b32 s{S_OA}, s{S_T0}, 15")
    g.i(f"s_lshr_b32 s{S_T1}, s{S_WAVE}, 2")
    g.i(f"s_lshl_b32 s{S_T2}, s{S_HP}, 1")
    g.i(f"s_add_u32 s{S_T1}, s{S_T1}, s{S_T2}")
    g.i(f"s_lshl_b32 s{S_T2}, s{S_T1}, 10")
    g.i(f"s_add_u32 s{S_OA}, s{S_OA}, s{S_T2}")
    g.i(f"s_add_u32 s{S_OB}, s{S_OA}, 32768")

def attention(g):
    opt = g.opt
    g.lab("L_attn")
    g.stamp(3)
    g.i(f"ds_read_b128 {vr(V_K,4)}, v{V_KA}")
    g.i(f"ds_read_b128 {vr(V_V[0],4)}, v{V_VA}")
    g.i(f"ds_read_b128 {vr(V_V[0]+4,4)}, v{V_VA} offset:512")
    g.i("s_setprio 3")
    g.i("s_waitcnt lgkmcnt(2)")
    g.i(f"v_mfma_f32_32x32x16_bf16 {vr(V_S[0],16)}, {vr(V_K,4)}, {vr(V_Q[0],4)}, 0")
    dry_exit(g)
    g.i("s_nop 9")
    g.i("s_waitcnt lgkmcnt(0)")
    poll = f"buffer_load_dword v{V_F}, v{V_FA}, s[{S_FL}:{S_FL+3}], 0 offen sc1"
    side = []
    ev = {}
    def at(it, p, slot, *ins): ev.setdefault((it, p, slot), []).extend(ins)
    def kv(i, n):
        return f"buffer_load_dwordx4 v{V_L16}, {sr(S_KV2 if n >= 2 else S_KV, 4)}, s{S_KO[i]} offen offset:{1024*(n%2)}{opt.get('kvl', ' sc1')} lds"
    def check(tag, n):
        def f():
            g.i(f"s_waitcnt vmcnt({n})")
            g.i(f"v_cmp_ne_u32 vcc, 1, v{V_F}")
            g.i(f"s_nop {opt.get('x_nop', 0)}")
            g.i(f"s_and_b32 vcc_lo, vcc_lo, s{S_MK}")
            g.i(f"s_cbranch_scc1 L_ol_{tag}")
            g.lab(f"L_olr_{tag}")
            if opt.get('inv'):
                g.i("buffer_inv sc1")
                g.i("s_waitcnt vmcnt(0)")
            side.append((tag, lambda: spin_mask(g, tag, poll)))
        return f
    def publish():
        g.i(f"s_cmp_ge_u32 s{S_WAVE}, 4")
        g.i("s_cbranch_scc1 L_at_nopub")
        g.i(f"s_lshl_b32 s{S_T0}, s{S_TB}, 2")
        g.i(f"s_add_u32 s{S_T0}, s{S_T0}, s{S_WAVE}")
        g.i(f"s_lshl_b64 exec, 1, s{S_T0}")
        g.i(f"v_mov_b32 v{V_F}, 1")
        g.st('pub_pre')
        if opt.get('wbl2'):
            g.i("s_waitcnt vmcnt(0)")
            g.i("buffer_wbl2 sc1")
        g.i("s_waitcnt vmcnt(0)")
        g.st('pub_ack')
        g.i(f"buffer_store_dword v{V_F}, v{V_FA}, s[{S_FL}:{S_FL+3}], 0 offen sc1")
        g.i("s_mov_b64 exec, -1")
        g.lab("L_at_nopub")
    def count():
        g.i(f"s_cmp_lg_u32 s{S_WAVE}, 7")
        g.i("s_cbranch_scc1 L_at_nocnt")
        g.i(f"s_lshl_b32 s{S_T0}, s{S_BR}, 4")
        g.i(f"s_add_u32 s{S_T0}, s{S_T0}, s{S_HP}")
        g.i(f"s_lshl_b32 s{S_T0}, s{S_T0}, 3")
        g.i("s_mov_b64 exec, 1")
        g.i(f"v_mov_b32 v246, s{S_T0}")
        g.i("v_mov_b32 v247, 1")
        g.i(f"buffer_atomic_add v247, v246, s[{S_DBG}:{S_DBG+3}], 0 offen offset:4 sc1")
        g.i("s_mov_b64 exec, -1")
        g.lab("L_at_nocnt")
    pp, pi0, pc0, pi1 = opt.get('ev', (0, 7, 9, 11))
    at(0, pp, 'p1', publish)
    at(0, pi0, 'qk', poll)
    at(0, pc0, 'qk', check("kv0", 0), lambda: g.st('chk_ok'), f"s_mov_b32 m0, s{S_LM[1][0]}", f"s_lshr_b32 s{S_T0}, s{S_TB}, 2",
       kv(1, 0), kv(1, 1), f"s_mov_b32 m0, s{S_LM[1][1]}", f"s_lshl_b32 s{S_T0}, s{S_T0}, 4", kv(1, 2), kv(1, 3),
       f"s_lshl_b32 s{S_MK}, 0xffff, s{S_T0}")
    at(0, pi1, 'qk', poll)
    late = {i: 0 for i in range(8)}
    dp = opt.get('dma', (1, 3, 5, 7))
    for i in range(1, 7):
        sl = (i + 1) % 2
        at(i, dp[0] - 1, 'p2x', f"s_mov_b32 m0, s{S_LM[sl][0]}")
        at(i, dp[0], 'qk', kv(i + 1, 0))
        at(i, dp[1], 'qk', kv(i + 1, 1))
        at(i, dp[2], 'p2', f"s_mov_b32 m0, s{S_LM[sl][1]}")
        at(i, dp[2], 'qk', kv(i + 1, 2))
        at(i, dp[3], 'qk', kv(i + 1, 3))
    CK2 = opt.get('ck2', 2)
    at(CK2, 7, 'p1', poll)
    wp = opt.get('wop', (9, 11))
    for i in range(1, 5):
        for k, p in enumerate(wp):
            at(i, p, 'p2', f"s_add_u32 m0, s{S_E}, {(2*(i-1)+k)*1024}")
            at(i, p, 'qk', f"buffer_load_dwordx4 v{V_WOA}, s[{S_WO}:{S_WO+3}], s55 offen lds")
            at(i, p, 'p1', "s_add_u32 s55, s55, 8192")
        late[i] += 2
    for k, so in enumerate((S_OA, S_OB)):
        at(5, 9 + 2 * k, 'qk', f"buffer_store_dwordx4 v[252:255], v{V_L16}, s[{S_O}:{S_O+3}], s{so} offen sc1")
    late[5] += 2
    at(7, 1, 'qk', count)
    if opt.get('x_late0'): late = {i: 0 for i in range(8)}
    prio = opt.get('prio', {0: 3, 5: 2, 10: 1, 13: 0})
    for i in range(8):
        for p, v in prio.items():
            ii, q = (i, p - 1) if p else (i - 1, 15)
            if ii >= 0: at(ii, q, 'p1', f"s_setprio {v}")
    def emit(it, p, slot):
        for x in ev.pop((it, p, slot), []):
            x() if callable(x) else g.i(x)
    p2, pq, p1 = opt.get('pos', (1, 5, 10))
    for it in range(8):
        if opt.get('itst'):
            g.i("s_memtime s[98:99]")
            g.i("s_waitcnt lgkmcnt(0)")
            g.i(f"v_writelane_b32 v250, s98, {it}")
        for p in range(2 * U):
            b, t = p % 2, p // 2
            S, So = V_S[b], V_S[1 - b]
            nt = (t + 1) % U
            sl = (it + (t == U - 1)) % 2
            VA = V_VB if sl else V_VA
            last = it == 7 and t == U - 1
            for e in range(16):
                g.i(f"v_exp_f32 v{S+e}, v{S+e}")
                if e == p2:
                    tp = (p - 1) // 2
                    if it or p:
                        g.i(f"v_smfmac_f32_32x32x32_bf16 {vr(V_O[1-b],16)}, {vr(V_V[tp%2]+4,4)}, {vr(So+8,8)}, v{V_IDX}")
                    emit(it, p, 'p2x')
                    if b == 0:
                        if t == U - 1 and it < 7:
                            if it == 0: check("kv1", 0)(); g.st('chk1_ok'); g.i(f"s_mov_b32 s{S_MK}, -1")
                            elif it == CK2: check("kv2", late[it])()
                            else: g.i(f"s_waitcnt vmcnt({late[it]})")
                            g.i("s_barrier")
                        if not last: g.i(f"ds_read_b128 {vr(V_V[(t+1)%2],4)}, v{VA} offset:{nt*2048}")
                    elif not last:
                        g.i("s_waitcnt lgkmcnt(1)")
                    emit(it, p, 'p2')
                if e == pq:
                    if not (last and b):
                        g.i(f"v_mfma_f32_32x32x16_bf16 {vr(So,16)}, {vr(V_K,4)}, {vr(V_Q[1-b],4)}, 0")
                    if b == 0 and not last:
                        g.i(f"ds_read_b128 {vr(V_K,4)}, v{V_KA} offset:{sl*RING+nt*2048}")
                    emit(it, p, 'qk')
                if e == p1:
                    g.i(f"v_smfmac_f32_32x32x32_bf16 {vr(V_O[b],16)}, {vr(V_V[t%2],4)}, {vr(S,8)}, v{V_IDX}")
                    if b == 0 and not last:
                        g.i(f"ds_read_b128 {vr(V_V[(t+1)%2]+4,4)}, v{VA} offset:{nt*2048+512}")
                    elif not last:
                        g.i("s_waitcnt lgkmcnt(0)")
                    emit(it, p, 'p1')
    assert not ev, ev
    g.side = side
    g.lab("L_at_done")
    g.i("s_nop 1")
    g.i(f"v_smfmac_f32_32x32x32_bf16 {vr(V_O[1],16)}, {vr(V_V[1]+4,4)}, {vr(V_S[1]+8,8)}, v{V_IDX}")
    g.stamp(4)
    if opt.get('itst'):
        g.i("s_memtime s[98:99]")
        g.i("s_waitcnt lgkmcnt(0)")
        g.i(f"v_writelane_b32 v250, s98, 8")
    g.i(f"s_mov_b32 s{S_T0}, 0x2b800000")
    g.i(f"s_mov_b32 s{S_T1}, 0x53800000")
    g.i(f"s_mov_b32 s{S_T2}, 0x7f800000")
    for q in range(2):
        O = V_O[q]
        g.i(f"v_add_f32 v6, abs(v{O}), abs(v{O+1})")
        g.i(f"v_add_f32 v7, abs(v{O+2}), abs(v{O+3})")
        for r in range(4, 8, 2):
            g.i(f"v_add_f32 v6, v6, abs(v{O+r})")
            g.i(f"v_add_f32 v7, v7, abs(v{O+r+1})")
        g.i(f"v_add_f32 v6, v6, v7")
        g.i(f"v_cmp_nle_f32 s[{S_M}:{S_M+1}], s{S_T0}, v{O+8}")
        g.i(f"v_cmp_nge_f32 s[{S_M+2}:{S_M+3}], s{S_T1}, v{O+8}")
        g.i(f"v_cmp_ngt_f32 vcc, s{S_T2}, v6")
        g.i(f"v_rcp_f32 v{V_S[0]+q}, v{O+8}")
        g.i(f"s_or_b64 s[{S_M}:{S_M+1}], s[{S_M}:{S_M+1}], s[{S_M+2}:{S_M+3}]")
        g.i(f"s_or_b64 s[{S_M}:{S_M+1}], s[{S_M}:{S_M+1}], vcc")
        g.i("s_branch L_fallback" if opt.get('force_fallback') else "s_cbranch_scc1 L_fallback")
    g.lab("L_at_store")
    for q in range(2):
        O = V_O[q]
        for r in range(8):
            g.i(f"v_mul_f32 v{O+r}, v{O+r}, v{V_S[0]+q}")
        for r in range(4):
            g.i(f"v_cvt_pk_bf16_f32 v{O+r}, v{O+2*r}, v{O+2*r+1}")
        g.i(f"buffer_store_dwordx4 {vr(O,4)}, v{V_L16}, s[{S_O}:{S_O+3}], s{S_OB if q else S_OA} offen sc1")

P_WO = 100
P_OF = 8
def outproj(g):
    opt = g.opt
    A0, A1 = 228, 72
    WA0, WA1, RA, OA = 244, 245, 246, 247
    g.i(f"s_lshr_b32 s{S_E}, s{S_WAVE}, 2")
    g.i(f"s_lshl_b32 s{S_T0}, s{S_E}, 15")
    g.i(f"s_add_u32 s{S_T0}, s{S_T0}, {L_WO}")
    g.i("v_lshrrev_b32 v6, 5, v0")
    g.i("v_bfe_u32 v7, v0, 2, 2")
    g.i("v_lshl_add_u32 v6, v6, 2, v7")
    g.i(f"v_lshl_add_u32 v6, v6, 7, s{S_T0}")
    g.i("v_bfe_u32 v7, v0, 3, 2")
    g.i("v_and_b32 v2, 1, v7")
    g.i("v_lshl_add_u32 v6, v2, 6, v6")
    g.i("v_lshrrev_b32 v7, 1, v7")
    g.i("v_lshl_add_u32 v6, v7, 5, v6")
    g.i("v_and_b32 v7, 3, v0")
    g.i(f"v_lshl_add_u32 v6, v7, 3, v6")
    g.i(f"s_lshl_b32 s{S_T0}, s{S_E}, 6")
    g.i(f"v_xor_b32 v{WA0}, s{S_T0}, v6")
    g.i(f"v_xor_b32 v{WA1}, 64, v{WA0}")
    n = 0
    def wo_reads(s0, s1):
        for s in range(s0, s1):
            for f in range(2):
                for i in range(2):
                    g.i(f"ds_read_b64_tr_b16 {vr(P_WO+8*s+4*f+2*i,2)}, v{WA1 if f else WA0} offset:{s*2048+i*1024}")
    g.stamp(5)
    g.i(f"s_lshl_b32 s{S_T0}, s{S_BR}, 7")
    g.i("v_and_b32 v6, 15, v0")
    g.i(f"v_lshl_add_u32 v4, v6, 3, s{S_T0}")
    g.i(f"buffer_load_dword v5, v4, s[{S_DBG}:{S_DBG+3}], 0 offen offset:4 sc1")
    for s0 in range(0, 16, 3):
        if s0: g.i("s_waitcnt lgkmcnt(2)")
        wo_reads(s0, min(s0 + 3, 16))
    g.i(f"s_lshr_b32 s{S_T0}, s{S_HP}, 3")
    g.i(f"s_lshl_b32 s{S_T0}, s{S_T0}, 2")
    g.i(f"s_and_b32 s{S_T1}, s{S_WAVE}, 3")
    g.i(f"s_add_u32 s{S_A}, s{S_T0}, s{S_T1}")
    g.i(f"s_lshl_b32 s{S_T0}, s{S_TB}, 3")
    g.i(f"s_add_u32 s{S_A}, s{S_A}, s{S_T0}")
    g.i(f"s_lshl_b32 s{S_B}, s{S_A}, 15")
    g.i(f"s_lshl_b32 s{S_T0}, s{S_E}, 14")
    g.i(f"s_add_u32 s{S_B}, s{S_B}, s{S_T0}")
    g.i(f"s_add_u32 s{S_C}, s{S_B}, 4096")
    g.i(f"s_add_u32 s{S_D}, s{S_B}, 8192")
    g.i(f"s_add_u32 s{S_IT}, s{S_B}, 12288")
    g.i(f"v_lshlrev_b32 v2, 10, v6")
    g.i(f"v_add_u32 v2, 1020, v2")
    g.i(f"s_lshl_b32 s{S_T0}, s{S_WAVE}, 12")
    g.i(f"v_add_u32 v{RA}, s{S_T0}, v{V_L16}")
    g.i("v_and_b32 v6, 31, v0")
    g.i("v_lshlrev_b32 v6, 11, v6")
    g.i("v_lshrrev_b32 v7, 5, v0")
    g.i(f"v_lshl_add_u32 v{OA}, v7, 4, v6")
    g.i(f"s_lshl_b32 s{S_A}, s{S_A}, 16")
    g.i(f"s_lshl_b32 s{S_T0}, s{S_BR}, 10")
    g.i(f"s_add_u32 s{S_A}, s{S_A}, s{S_T0}")
    g.i(f"s_lshl_b32 s{S_T0}, s{S_F}, 7")
    g.i(f"s_add_u32 s{S_A}, s{S_A}, s{S_T0}")
    g.i(f"s_lshl_b32 s{S_T0}, s{S_E}, 6")
    g.i(f"s_add_u32 s{S_A}, s{S_A}, s{S_T0}")
    g.i(f"s_mov_b32 s{S_T3}, 0")
    g.lab("L_spin_c")
    g.i("s_waitcnt vmcnt(0)")
    g.i("v_cmp_gt_u32 vcc, 8, v5")
    g.i(f"s_add_u32 s{S_T3}, s{S_T3}, 1")
    g.i("s_cbranch_vccz L_spin_o")
    g.i(f"buffer_load_dword v5, v4, s[{S_DBG}:{S_DBG+3}], 0 offen offset:4 sc1")
    g.i(f"s_cmp_lt_u32 s{S_T3}, {SPIN_MAX}")
    g.i("s_cbranch_scc1 L_spin_c")
    g.lab("L_spin_o")
    if opt.get('probe', 1):
        g.i("s_mov_b64 exec, 0xffff")
        g.i(f"buffer_load_dword v3, v2, s[{S_O}:{S_O+3}], s{S_B} offen sc1")
        g.i(f"s_add_u32 s{S_T3}, s{S_T3}, 1")
        g.i("s_waitcnt vmcnt(0)")
        g.i("v_cmp_eq_u32 vcc, -1, v3")
        g.i("s_mov_b64 exec, -1")
        g.i(f"s_cmp_ge_u32 s{S_T3}, {SPIN_MAX}")
        g.i("s_cbranch_scc1 L_spun_o")
        if opt.get('sleep'): g.i(f"s_sleep {opt['sleep']}")
        g.i("s_cbranch_vccnz L_spin_o")
    else:
        g.i(f"s_add_u32 s{S_T3}, s{S_T3}, 1")
    g.lab("L_spun_o")
    g.stamp(6)
    for s in range(16):
        so = (S_B, S_C, S_D, S_IT)[s // 4]
        g.i(f"buffer_load_dwordx4 {vr(P_OF+4*s,4)}, v{V_L16}, s[{S_O}:{S_O+3}], s{so} offen offset:{1024*(s%4)} sc1")
    g.i("v_mov_b32 v3, 0")
    g.i("s_waitcnt lgkmcnt(0)")
    for s in range(16):
        g.i(f"s_waitcnt vmcnt({15-s})")
        for f, A in ((1, A1), (0, A0)):
            g.i(f"v_mfma_f32_32x32x16_bf16 {vr(A,16)}, {vr(P_WO+8*s+4*f,4)}, {vr(P_OF+4*s,4)}, {vr(A,16) if s else 0}")
            g.i(f"v_max3_u32 v3, v3, v{P_OF+4*s+2*f}, v{P_OF+4*s+2*f+1}")
    g.i("v_cmp_eq_u32 vcc, -1, v3")
    g.i(f"s_cmp_ge_u32 s{S_T3}, {SPIN_MAX}")
    g.i("s_cbranch_scc1 L_op_go")
    g.i("s_cbranch_vccnz L_spin_o")
    g.lab("L_op_go")
    g.i("s_nop 5")
    for r in range(4):
        g.i(f"ds_write_b128 v{RA}, {vr(A1+4*r,4)} offset:{1024*r}")
    g.i("s_waitcnt lgkmcnt(0)")
    g.i(f"v_xor_b32 v{RA}, 16384, v{RA}")
    barrier_unless_dry(g, "b9")
    for r in range(4):
        g.i(f"ds_read_b128 {vr(P_OF+4*r,4)}, v{RA} offset:{1024*r}")
    for r in range(4):
        g.i(f"s_waitcnt lgkmcnt({3-r})")
        for k in range(4):
            g.i(f"v_add_f32 v{A0+4*r+k}, v{A0+4*r+k}, v{P_OF+4*r+k}")
        for k in range(2):
            g.i(f"v_cvt_pk_bf16_f32 v{24+2*r+k}, v{A0+4*r+2*k}, v{A0+4*r+2*k+1}")
        if r % 2:
            g.i("s_nop 1")
            g.i(f"v_permlane32_swap_b32 v{24+2*r-2}, v{24+2*r}")
            g.i(f"v_permlane32_swap_b32 v{24+2*r-1}, v{24+2*r+1}")
            g.i(f"buffer_store_dwordx4 {vr(24+2*r-2,4)}, v{OA}, s[{S_OUT}:{S_OUT+3}], s{S_A} offen offset:{16*(r-1)}{opt.get('outs','')}")
    dry_exit(g)
    if g.diag:
        g.i("s_waitcnt vmcnt(0)")
        g.stamp(7)
        g.i("s_waitcnt lgkmcnt(0)")
        if g.diag == 3:
            a_, b_, K = opt['leak']
            if a_ in (1, 2) or b_ in (1, 2):
                g.i(f"s_cmp_ge_u32 s{S_WAVE}, 4")
                g.i("s_cbranch_scc1 L_end")
            g.i(f"s_sub_u32 s{S_T0}, s{66+4*b_}, s{66+4*a_}")
            g.i(f"s_mul_i32 s{S_T0}, s{S_T0}, {K}")
            g.lab("L_leak")
            g.i("s_memrealtime s[98:99]")
            g.i("s_waitcnt lgkmcnt(0)")
            g.i(f"s_sub_u32 s{S_T1}, s98, s{66+4*7}")
            g.i(f"s_cmp_lt_u32 s{S_T1}, s{S_T0}")
            g.i("s_cbranch_scc1 L_leak")
            g.i("s_endpgm")
        if g.diag == 2:
            g.i(f"s_cmp_ge_u32 s{S_WAVE}, 4")
            g.i("s_cbranch_scc1 L_end")
            g.i("s_mov_b64 exec, 1")
            for k in range(1, 8):
                g.i(f"s_sub_u32 s{S_T0}, s{66+4*k}, s66")
                g.i(f"v_mov_b32 v6, s{S_T0}")
                g.i(f"v_mov_b32 v7, {8*k+4}")
                g.i(f"buffer_atomic_umax v6, v7, s[{S_DBG}:{S_DBG+3}], 0 offen sc1")
            g.i(f"s_sub_u32 s{S_T0}, s{64+4*4}, s{64+4*3}")
            g.i(f"v_mov_b32 v6, s{S_T0}")
            g.i(f"v_mov_b32 v7, 4")
            g.i(f"buffer_atomic_umax v6, v7, s[{S_DBG}:{S_DBG+3}], 0 offen sc1")
            g.i("s_endpgm")
        g.i(f"s_lshl_b32 s{S_T0}, s2, 3")
        g.i(f"s_add_u32 s{S_T0}, s{S_T0}, s{S_WAVE}")
        g.i(f"s_lshl_b32 s{S_T0}, s{S_T0}, 7")
        g.i(f"s_add_u32 s{S_T0}, s{S_T0}, {WS_STAMP}")
        srd(g.a, S_X, 96, 128, f"s{S_T0}")
        for k in range(32):
            g.i(f"v_mov_b32 v{36+k}, s{64+k}")
        g.i("v_mov_b32 v6, 0")
        for k in range(8):
            g.i(f"buffer_store_dwordx4 {vr(36+4*k,4)}, v6, s[{S_X}:{S_X+3}], 0 offen offset:{16*k}")
        if opt.get('itst'):
            g.i(f"s_add_u32 s{S_T0}, s{S_T0}, {1<<20}")
            srd(g.a, S_X, 96, 64, f"s{S_T0}")
            g.i("v_lshlrev_b32 v6, 2, v0")
            g.i(f"buffer_store_dword v250, v6, s[{S_X}:{S_X+3}], 0 offen")
    g.lab("L_end")
    g.i("s_endpgm")

def fallback(g):
    C = [100, 116]; M = [132, 133]; GV = 134
    g.lab("L_fallback")
    g.i(f"s_lshr_b32 s{S_T0}, s{S_WAVE}, 2")
    g.i(f"s_lshl_b32 s{S_T0}, s{S_T0}, 17")
    g.i(f"v_mov_b32 v{M[0]}, 0xff800000")
    g.i(f"v_mov_b32 v{M[1]}, 0xff800000")
    g.i(f"s_mov_b32 s{S_T1}, s{S_T0}")
    g.i(f"s_add_u32 s{S_T2}, s{S_T0}, 131072")
    g.lab("L_fb_max")
    g.i(f"buffer_load_dwordx4 {vr(V_K,4)}, v{V_L16}, s[{S_KV}:{S_KV+3}], s{S_T1} offen sc1")
    g.i(f"s_add_u32 s{S_T1}, s{S_T1}, 2048")
    g.i("s_waitcnt vmcnt(0)")
    for q in range(2):
        g.i(f"v_mfma_f32_32x32x16_bf16 {vr(V_S[q],16)}, {vr(V_K,4)}, {vr(V_Q[q],4)}, 0")
    g.i("s_nop 15")
    for q in range(2):
        for r in range(0, 16, 2):
            g.i(f"v_max3_f32 v{M[q]}, v{M[q]}, v{V_S[q]+r}, v{V_S[q]+r+1}")
    g.i(f"s_cmp_lt_u32 s{S_T1}, s{S_T2}")
    g.i("s_cbranch_scc1 L_fb_max")
    for q in range(2):
        g.i(f"v_mov_b32 v6, v{M[q]}")
        g.i(f"v_mov_b32 v7, v{M[q]}")
        g.i("s_nop 1")
        g.i("v_permlane32_swap_b32 v6, v7")
        g.i("s_nop 1")
        g.i("v_max_f32 v6, v6, v7")
        for r in range(16):
            g.i(f"v_sub_f32 v{C[q]+r}, 0, v6")
            g.i(f"v_mov_b32 v{V_O[q]+r}, 0")
    g.i("v_and_b32 v6, 15, v0")
    g.i("v_lshlrev_b32 v6, 4, v6")
    g.i("v_lshrrev_b32 v7, 5, v0")
    g.i(f"v_lshl_add_u32 v{GV}, v7, 8, v6")
    for r in range(8):
        g.i(f"v_mov_b32 v{V_V[0]+r}, 0x3f803f80")
    g.i(f"s_mov_b32 s{S_T1}, s{S_T0}")
    g.i(f"s_mov_b32 s{S_M}, 0xffff")
    g.i(f"s_mov_b32 s{S_M+1}, 0xffff")
    g.lab("L_fb_pv")
    g.i(f"buffer_load_dwordx4 {vr(V_K,4)}, v{V_L16}, s[{S_KV}:{S_KV+3}], s{S_T1} offen sc1")
    g.i(f"s_mov_b64 exec, s[{S_M}:{S_M+1}]")
    g.i(f"buffer_load_dwordx4 {vr(V_V[0],4)}, v{GV}, s[{S_KV}:{S_KV+3}], s{S_T1} offen offset:1024 sc1")
    g.i(f"buffer_load_dwordx4 {vr(V_V[0]+4,4)}, v{GV}, s[{S_KV}:{S_KV+3}], s{S_T1} offen offset:1536 sc1")
    g.i("s_mov_b64 exec, -1")
    g.i(f"s_add_u32 s{S_T1}, s{S_T1}, 2048")
    g.i("s_waitcnt vmcnt(0)")
    for q in range(2):
        g.i(f"v_mfma_f32_32x32x16_bf16 {vr(V_S[q],16)}, {vr(V_K,4)}, {vr(V_Q[q],4)}, {vr(C[q],16)}")
    g.i("s_nop 15")
    for q in range(2):
        for r in range(16):
            g.i(f"v_exp_f32 v{V_S[q]+r}, v{V_S[q]+r}")
    g.i("s_nop 3")
    for q in range(2):
        for h in range(2):
            g.i(f"v_smfmac_f32_32x32x32_bf16 {vr(V_O[q],16)}, {vr(V_V[0]+4*h,4)}, {vr(V_S[q]+8*h,8)}, v{V_IDX}")
    g.i("s_nop 15")
    g.i(f"s_cmp_lt_u32 s{S_T1}, s{S_T2}")
    g.i("s_cbranch_scc1 L_fb_pv")
    for q in range(2):
        g.i(f"v_rcp_f32 v{V_S[0]+q}, v{V_O[q]+8}")
    g.i("s_nop 1")
    g.i("s_branch L_at_store")

HEADER = open('cdna_kernels/' + NAME + '.s.ref').read().split('; Override launch')[0]

def generate(opt={}):
    g = G(opt)
    name = NAME + "_kernel"
    g.a(HEADER.rstrip())
    g.a(f"; @launch grid=(256,1,1) block=(512,1,1) lds={LDS_TOTAL}")
    g.a('.amdgcn_target "amdgcn-amd-amdhsa--gfx950"')
    entry(g, name)
    if opt.get('lfirst', 1): loader(g)
    compute(g)
    attention(g)
    outproj(g)
    if not opt.get('lfirst', 1): loader(g)
    g.lab("L_code_end")
    for tag, body in g.side:
        g.lab(f"L_ol_{tag}")
        body()
        g.i(f"s_branch L_olr_{tag}")
    fallback(g)
    kernel_desc(g.a, name, NVGPR, 256, 102)
    return g.a.text()

if __name__ == "__main__":
    import sys
    opt = eval(sys.argv[2]) if len(sys.argv) > 2 else {}
    open(sys.argv[1], 'w').write(generate(opt))
```

```python
import math, struct
from common import *

WS_FLAG = 16 << 20
SLOT = 45056; SLOT_W = 32768
RING = 32768
L_WO = 65536
L_CONST = 135168
L_QX = 155648
LDS_TOTAL = 163840
S_X, S_W, S_WO, S_KV, S_O, S_FL, S_DBG, S_OUT = 8, 12, 16, 20, 24, 28, 32, 36
S_WAVE, S_BR, S_HP, S_TB, S_IT, S_T0, S_T1, S_T2, S_T3 = 40, 41, 42, 43, 44, 45, 46, 47, 48
S_A, S_B, S_C, S_D, S_E, S_F = 49, 50, 51, 52, 53, 54
S_M = 56
V_L16, V_KA, V_VA, V_VX, V_IDX, V_T0, V_T1 = 1, 2, 3, 4, 5, 6, 7
V_Q = [8, 12]; V_K = 16; V_V = [20, 28]; V_S = [36, 52]; V_O = [68, 84]
V_F = 241
V_FA = 242
V_WOA = 243
V_ACC = 100
V_FR = [196, 216]
V_XA = 236; V_WA = 240
NVGPR = 256
QSCALE = struct.unpack('<I', struct.pack('<f', 0.25 * math.log2(math.e)))[0]
SPIN_MAX = 1 << 20
S_DRY = 3

class G:
    def __init__(self, opt):
        self.a = Asm(); self.opt = opt; self.diag = opt.get('diag', 0)
    def i(self, s): self.a.i(s)
    def lab(self, s): self.a.label(s)
    def st(self, name):
        m = self.opt.get('st', {})
        if name in m: self.stamp(m[name], True)
    def stamp(self, k, forced=False):
        if k in self.opt.get('st', {}).values() and not forced: return
        if self.diag:
            self.i(f"s_memtime s[{64+4*k}:{65+4*k}]")
            self.i(f"s_memrealtime s[{66+4*k}:{67+4*k}]")

def dry_exit(g, label="L_dry_ret"):
    if g.opt.get('dry', 1):
        g.i(f"s_cmp_lg_u32 s{S_DRY}, 0")
        g.i(f"s_cbranch_scc1 {label}")

def barrier_unless_dry(g, tag):
    dry_exit(g, f"L_nb_{tag}")
    g.i("s_barrier")
    g.lab(f"L_nb_{tag}")

def spin(g, tag, load, want, nlanes_mask=None):
    g.i(f"s_mov_b32 s{S_T3}, 0")
    g.lab(f"L_spin_{tag}")
    g.i(load)
    g.i(f"s_add_u32 s{S_T3}, s{S_T3}, 1")
    g.i("s_waitcnt vmcnt(0)")
    g.i(f"v_cmp_{'gt' if want > 1 else 'ne'}_u32 vcc, {want}, v{V_F}")
    g.i(f"s_cmp_ge_u32 s{S_T3}, {SPIN_MAX}")
    g.i(f"s_cbranch_scc1 L_spun_{tag}")
    g.i(f"s_cbranch_vccnz L_spin_{tag}")
    g.lab(f"L_spun_{tag}")

def entry(g, name):
    a = g.a
    kernel_head(a, name)
    PF = g.opt.get('cpf', 1)
    if PF:
        g.i("s_getpc_b64 s[8:9]")
        g.i("v_lshlrev_b32 v6, 7, v0")
        g.i("s_mov_b32 s10, L_code_end-" + name + "-4")
        g.i("s_mov_b32 s11, 0x20000")
    g.i("s_cmp_ge_u32 s2, 256")
    g.i("s_cbranch_scc1 L_end")
    if PF:
        g.i("buffer_load_dword v246, v6, s[8:11], 0 offen")
    g.stamp(0)
    g.i(f"s_mov_b32 s{S_DRY}, 0")
    g.i(f"s_bfe_u32 s{S_BR}, s2, 0x10002")
    g.i(f"s_mul_i32 s{S_T0}, s{S_BR}, 24")
    g.i(f"s_load_dwordx4 s[{S_M}:{S_M+3}], s[0:1], s{S_T0}")
    g.i(f"s_load_dwordx2 s[{S_M+4}:{S_M+5}], s[0:1], s{S_T0} offset:16")
    g.i("s_load_dwordx4 s[4:7], s[0:1], 48")
    g.i(f"s_load_dwordx2 s[{S_M+6}:{S_M+7}], s[0:1], 64")
    g.i("v_lshrrev_b32 v6, 6, v0")
    g.i("v_and_b32 v0, 63, v0")
    g.i(f"v_readfirstlane_b32 s{S_WAVE}, v6")
    g.i(f"v_lshlrev_b32 v{V_L16}, 4, v0")
    g.i(f"s_bfe_u32 s{S_HP}, s2, 0x10001")
    g.i(f"s_lshl_b32 s{S_HP}, s{S_HP}, 3")
    g.i(f"s_bfe_u32 s{S_T0}, s2, 0x30003")
    g.i(f"s_add_u32 s{S_HP}, s{S_HP}, s{S_T0}")
    g.i(f"s_and_b32 s{S_TB}, s2, 1")
    g.i(f"s_lshl_b32 s{S_TB}, s{S_TB}, 2")
    g.i(f"s_lshr_b32 s{S_T0}, s2, 6")
    g.i(f"s_add_u32 s{S_TB}, s{S_TB}, s{S_T0}")
    g.i(f"s_lshl_b32 s{S_T0}, s{S_TB}, 18")
    g.i(f"s_lshl_b32 s{S_T1}, s{S_BR}, 4")
    g.i(f"s_add_u32 s{S_T1}, s{S_T1}, s{S_HP}")
    g.i(f"s_lshl_b32 s{S_T2}, s{S_T1}, 18")
    g.i(f"s_add_u32 s{S_T2}, s{S_T2}, {WS_KV}")
    g.i(f"s_lshl_b32 s{S_T3}, s{S_BR}, 21")
    g.i(f"s_add_u32 s{S_T3}, s{S_T3}, {WS_O}")
    if g.opt.get('lfirst', 1):
        g.i(f"s_cmp_lt_u32 s{S_WAVE}, 4")
        g.i("s_cbranch_scc1 L_compute")
    else:
        g.i(f"s_cmp_ge_u32 s{S_WAVE}, 4")
        g.i("s_cbranch_scc1 L_loader")

def early_srds(g):
    g.i("s_waitcnt lgkmcnt(0)")
    g.st('karg')
    srd(g.a, S_X, S_M, 256 * 1024, f"s{S_T0}")
    srd(g.a, S_W, S_M + 2, 512 * 1536 * 2)

def late_srds(g):
    a = g.a
    srd(a, S_WO, S_M + 4, 512 * 512 * 2)
    srd(a, S_KV, S_M + 6, 256 * 1024, f"s{S_T2}")
    srd(a, S_O, S_M + 6, 2 << 20, f"s{S_T3}")
    srd(a, S_FL, S_M + 6, 4096, str(WS_FLAG))
    srd(a, S_DBG, 6, 256)
    srd(a, S_OUT, 4, 2048 * 1024 * 2)
    if g.diag:
        g.i(f"s_mov_b32 s96, s{S_M+6}")
        g.i(f"s_mov_b32 s97, s{S_M+7}")

def attn_consts(g):
    g.i(f"s_lshr_b32 s{S_T0}, s{S_WAVE}, 2")
    g.i(f"s_lshl_b32 s{S_T0}, s{S_T0}, 14")
    g.i(f"v_add_u32 v{V_KA}, s{S_T0}, v{V_L16}")
    g.i(f"v_and_b32 v{V_T0}, 15, v0")
    g.i(f"v_lshlrev_b32 v{V_T0}, 4, v{V_T0}")
    g.i(f"v_lshrrev_b32 v{V_T1}, 5, v0")
    g.i(f"v_lshl_add_u32 v{V_T0}, v{V_T1}, 8, v{V_T0}")
    g.i(f"s_add_u32 s{S_T0}, s{S_T0}, 1024")
    g.i(f"v_add_u32 v{V_VA}, s{S_T0}, v{V_T0}")
    g.i(f"v_and_b32 v{V_T0}, 31, v0")
    g.i(f"v_subrev_u32 v{V_T1}, 20, v{V_T0}")
    g.i(f"v_cmp_gt_u32 vcc, 8, v{V_T1}")
    g.i(f"v_mov_b32 v{V_T1}, {L_CONST+16}")
    g.i(f"v_mov_b32 v{V_VX}, {L_CONST+16+64}")
    g.i(f"v_cndmask_b32 v{V_T1}, v{V_T1}, v{V_VX}, vcc")
    g.i(f"v_and_b32 v{V_VX}, 27, v0")
    g.i(f"v_cmp_eq_u32 vcc, 16, v{V_VX}")
    g.i(f"v_subrev_u32 v{V_VX}, 16, v{V_T1}")
    g.i("s_nop 0")
    g.i(f"v_cndmask_b32 v{V_T1}, v{V_T1}, v{V_VX}, vcc")
    g.i(f"v_cmp_gt_u32 vcc, 16, v{V_T0}")
    g.i(f"v_mov_b32 v{V_T0}, {RING}")
    g.i(f"v_mov_b32 v{V_IDX}, 0xdddd")
    g.i(f"v_cndmask_b32 v{V_VA}, v{V_T1}, v{V_VA}, vcc")
    g.i(f"v_cndmask_b32 v{V_VX}, 0, v{V_T0}, vcc")
    g.i(f"v_add_u32 v{V_VX}, v{V_VX}, v{V_VA}")
    g.i("v_mov_b64 v[252:253], -1")
    g.i("v_mov_b64 v[254:255], -1")
    for r in range(0, 32, 2):
        g.i(f"v_mov_b64 v[{V_O[0]+r}:{V_O[0]+r+1}], 0")
    g.i(f"s_lshl_b32 s{S_T0}, s{S_BR}, 4")
    g.i(f"s_add_u32 s{S_T0}, s{S_T0}, s{S_HP}")
    g.i(f"s_lshl_b32 s{S_T0}, s{S_T0}, 7")
    g.i(f"v_and_b32 v6, 31, v0")
    g.i(f"v_lshl_add_u32 v{V_FA}, v6, 2, s{S_T0}")
    g.i(f"v_lshrrev_b32 v{V_T0}, 2, v0")
    g.i(f"v_and_b32 v{V_T0}, 4, v{V_T0}")
    g.i(f"v_and_b32 v{V_T1}, 7, v0")
    g.i(f"v_xor_b32 v{V_T0}, v{V_T0}, v{V_T1}")
    g.i(f"v_lshlrev_b32 v{V_T0}, 4, v{V_T0}")
    g.i(f"v_lshrrev_b32 v{V_T1}, 3, v0")
    g.i(f"v_lshl_add_u32 v{V_WOA}, v{V_T1}, 10, v{V_T0}")

def consts(g):
    g.i(f"s_cmp_lg_u32 s{S_WAVE}, 4")
    g.i("s_cbranch_scc1 L_ld_noconst")
    g.i("v_lshrrev_b32 v6, 2, v0")
    g.i("v_and_b32 v7, 1, v6")
    g.i("v_lshlrev_b32 v7, 9, v7")
    g.i("v_lshrrev_b32 v6, 1, v6")
    g.i("v_lshl_add_u32 v7, v6, 11, v7")
    g.i("v_and_b32 v6, 1, v0")
    g.i("v_lshl_add_u32 v7, v6, 4, v7")
    g.i("v_cmp_eq_u32 vcc, 0, v6")
    g.i("v_and_b32 v6, 2, v0")
    g.i("v_lshl_add_u32 v7, v6, 5, v7")
    g.i("v_mov_b32 v6, 0x3f803f80")
    g.i(f"v_add_u32 v7, {L_CONST}, v7")
    g.i("v_cndmask_b32 v108, 0, v6, vcc")
    g.i("v_cndmask_b32 v109, 0, v6, vcc")
    g.i("v_cndmask_b32 v110, 0, v6, vcc")
    g.i("v_cndmask_b32 v111, 0, v6, vcc")
    g.i("ds_write_b128 v7, v[108:111]")
    g.lab("L_ld_noconst")

def loader(g):
    VX, VW, VT = 100, 104, 112
    LEAD = g.opt.get('lead', 0)
    g.lab("L_loader")
    g.i(f"s_sub_u32 s{S_A}, s{S_WAVE}, 4")
    S_CH, S_TX = S_F, 55
    RM = g.opt.get('rot', 5)
    if RM == 1:
        g.i(f"s_lshl_b32 s{S_CH}, s{S_TB}, 1")
        g.i(f"s_lshr_b32 s{S_T1}, s{S_TB}, 2")
        g.i(f"s_add_u32 s{S_CH}, s{S_CH}, s{S_T1}")
        g.i(f"s_and_b32 s{S_CH}, s{S_CH}, 7")
    elif RM == 2:
        g.i(f"s_mov_b32 s{S_CH}, s{S_TB}")
    elif RM == 0:
        g.i(f"s_mov_b32 s{S_CH}, 0")
    elif RM == 6:
        g.i(f"s_lshl_b32 s{S_CH}, s{S_TB}, 1")
        g.i(f"s_add_u32 s{S_CH}, s{S_CH}, s{S_HP}")
        g.i(f"s_and_b32 s{S_CH}, s{S_CH}, 7")
    elif RM == 4:
        g.i(f"s_lshl_b32 s{S_CH}, s{S_TB}, 1")
        g.i(f"s_add_u32 s{S_CH}, s{S_CH}, s{S_HP}")
        g.i(f"s_and_b32 s{S_CH}, s{S_CH}, 3")
        g.i(f"s_lshl_b32 s{S_CH}, s{S_CH}, 1")
    elif RM == 5:
        g.i(f"s_add_u32 s{S_CH}, s{S_TB}, s{S_HP}")
        g.i(f"s_and_b32 s{S_CH}, s{S_CH}, 3")
        g.i(f"s_lshl_b32 s{S_CH}, s{S_CH}, 1")
    elif RM == 3:
        g.i(f"s_lshl_b32 s{S_CH}, s{S_TB}, 1")
        g.i(f"s_and_b32 s{S_T1}, s{S_HP}, 1")
        g.i(f"s_add_u32 s{S_CH}, s{S_CH}, s{S_T1}")
        g.i(f"s_and_b32 s{S_CH}, s{S_CH}, 7")
    g.i(f"v_lshlrev_b32 v{VT}, 10, v0")
    g.i(f"s_and_b32 s{S_TX}, s{S_HP}, 7")
    g.i(f"s_lshl_b32 s{S_TX}, s{S_TX}, 2")
    g.i(f"s_add_u32 s{S_TX}, s{S_TX}, s{S_A}")
    g.i(f"s_lshl_b32 s{S_TX}, s{S_TX}, 13")
    NT = 1 if LEAD else 0
    def touch(ahead):
        if not LEAD: return
        g.i(f"s_add_u32 s{S_T0}, s{S_CH}, {ahead}")
        g.i(f"s_and_b32 s{S_T0}, s{S_T0}, 7")
        g.i(f"s_lshl_b32 s{S_T0}, s{S_T0}, 7")
        g.i(f"s_add_u32 s{S_T0}, s{S_T0}, s{S_TX}")
        g.i("s_mov_b64 exec, 0xff")
        g.i(f"buffer_load_dword v244, v{VT}, s[{S_X}:{S_X+3}], s{S_T0} offen")
        g.i("s_mov_b64 exec, -1")
    g.i("v_lshrrev_b32 v6, 4, v0")
    g.i("v_and_b32 v7, 7, v0")
    g.i("v_xor_b32 v6, v6, v7")
    g.i("v_lshlrev_b32 v6, 4, v6")
    g.i("v_lshrrev_b32 v7, 3, v0")
    g.i(f"v_lshl_add_u32 v{VX}, v7, 10, v6")
    g.i(f"v_xor_b32 v{VX+1}, 64, v{VX}")
    g.i(f"v_add_u32 v{VX+2}, {2*7168}, v{VX}")
    g.i(f"v_add_u32 v{VX+3}, {3*7168}, v{VX+1}")
    g.i(f"v_add_u32 v{VX+1}, 7168, v{VX+1}")
    g.i(f"s_lshl_b32 s{S_B}, s{S_A}, 16")
    g.i(f"s_lshl_b32 s{S_D}, s{S_A}, 13")
    for p in range(3):
        g.i(f"v_add_u32 v6, {64*p}, v0")
        g.i("v_mul_u32_u24 v7, 43691, v6")
        g.i("v_lshrrev_b32 v7, 19, v7")
        g.i("v_mul_u32_u24 v110, 12, v7")
        g.i("v_sub_u32 v6, v6, v110")
        g.i("v_mul_u32_u24 v7, 3072, v7")
        g.i("v_lshrrev_b32 v110, 2, v6")
        g.i(f"v_lshl_add_u32 v7, v110, {6 if g.opt.get('x_wc') else 10}, v7")
        g.i("v_and_b32 v6, 3, v6")
        g.i("v_lshl_add_u32 v7, v6, 4, v7")
        g.i(f"v_subrev_u32 v{VW+p}, {1024*p}, v7")
    g.i(f"s_mul_i32 s{S_C}, s{S_A}, {16*3072}")
    g.i(f"s_lshl_b32 s{S_T1}, s{S_HP}, {7 if g.opt.get('x_wc') else 6}")
    g.i(f"s_add_u32 s{S_C}, s{S_C}, s{S_T1}")
    g.i(f"s_mul_i32 s{S_E}, s{S_A}, 3072")
    g.i(f"s_add_u32 s{S_E}, s{S_E}, {SLOT_W}")
    early_srds(g)
    def issue():
        g.i(f"s_lshl_b32 s{S_T1}, s{S_CH}, 7")
        g.i(f"s_add_u32 s{S_T1}, s{S_T1}, s{S_B}")
        g.i(f"s_mov_b32 m0, s{S_D}")
        g.i(f"s_add_u32 s{S_T0}, s{S_T1}, 32768")
        for p in range(4):
            g.i(f"buffer_load_dwordx4 v{VX+p}, s[{S_X}:{S_X+3}], s{S_T1} offen offset:{1024*p}{g.opt.get('xfl','')} lds")
        g.i(f"s_add_u32 m0, s{S_D}, 4096")
        g.i(f"s_mul_i32 s{S_T1}, s{S_CH}, {64*3072}")
        for p in range(4):
            g.i(f"buffer_load_dwordx4 v{VX+p}, s[{S_X}:{S_X+3}], s{S_T0} offen offset:{1024*p}{g.opt.get('xfl','')} lds")
        g.i(f"s_mov_b32 m0, s{S_E}")
        g.i(f"s_add_u32 s{S_T1}, s{S_T1}, s{S_C}")
        for p in range(3):
            if g.opt.get('x_now'): g.i(f"buffer_load_dword v244, v{VW+p}, s[{S_DBG if False else S_W}:{S_W+3}], s{S_C} offen"); continue
            g.i(f"buffer_load_dwordx4 v{VW+p}, s[{S_W}:{S_W+3}], s{S_T1} offen offset:{1024*p}{g.opt.get('wfl','')} lds")
        g.i(f"s_add_u32 s{S_CH}, s{S_CH}, 1")
        g.i(f"s_and_b32 s{S_CH}, s{S_CH}, 7")
    def next_slot():
        g.i(f"s_add_u32 s{S_D}, s{S_D}, {SLOT}")
        g.i(f"s_add_u32 s{S_E}, s{S_E}, {SLOT}")
        g.i(f"s_cmp_lt_u32 s{S_D}, {3*SLOT}")
        g.i(f"s_cselect_b32 s{S_T0}, 0, {3*SLOT}")
        g.i(f"s_sub_u32 s{S_D}, s{S_D}, s{S_T0}")
        g.i(f"s_sub_u32 s{S_E}, s{S_E}, s{S_T0}")
    issue()
    g.st('ld_c0')
    next_slot(); issue()
    for c in range(2, LEAD): touch(c - 2)
    g.st('ld_c2')
    late_srds(g); attn_consts(g); consts(g)
    g.st('ld_pre')
    PRE = g.opt.get('pre', '')
    n0 = NT * max(LEAD - 2, 0)
    def pre():
        g.i(f"s_lshl_b32 s{S_T0}, s{S_TB}, 14")
        g.i(f"s_and_b32 s{S_T1}, s{S_A}, 1")
        g.i(f"s_lshl_b32 s{S_T1}, s{S_T1}, 13")
        g.i(f"s_add_u32 s{S_T0}, s{S_T0}, s{S_T1}")
        g.i(f"s_lshr_b32 s{S_T1}, s{S_A}, 1")
        g.i(f"s_lshl_b32 s{S_T1}, s{S_T1}, 17")
        g.i(f"s_add_u32 s{S_T0}, s{S_T0}, s{S_T1}")
        if PRE == 'r':
            g.i("v_lshlrev_b32 v6, 7, v0")
            g.i(f"buffer_load_dword v245, v6, s[{S_KV}:{S_KV+3}], s{S_T0} offen sc1")
            return 1
        g.i(f"s_add_u32 s{S_T1}, s{S_T0}, 4096")
        for k in range(8):
            g.i(f"buffer_store_dwordx4 v[{V_O[0]}:{V_O[0]+3}], v{V_L16}, s[{S_KV}:{S_KV+3}], s{S_T1 if k >= 4 else S_T0} offen offset:{1024*(k%4)} sc1")
        return 8
    np_ = 0
    PC = g.opt.get('prec', 1)
    for c, n in ((0, 11 + n0), (1, n0 + 11 + NT)):
        g.i(f"s_waitcnt vmcnt({n + (np_ if c == 1 else 0)})")
        if c == 0: g.st('ld_got0')
        g.i("s_barrier")
        next_slot(); issue(); touch(LEAD - 3)
        if PRE and c == PC: np_ = pre()
    if PRE and PC == 1:
        g.i(f"s_waitcnt vmcnt({11+2*NT+np_})")
        g.i("s_barrier")
        next_slot(); issue(); touch(LEAD - 3)
        g.i(f"s_mov_b32 s{S_IT}, 3")
        g.i(f"s_waitcnt vmcnt({11+2*NT+np_})")
        g.i("s_branch L_ld_loop2")
    g.i(f"s_mov_b32 s{S_IT}, 2")
    g.lab("L_ld_loop")
    g.i(f"s_waitcnt vmcnt({11+2*NT})")
    g.lab("L_ld_loop2")
    g.i("s_barrier")
    next_slot(); issue(); touch(LEAD - 3)
    g.i(f"s_add_u32 s{S_IT}, s{S_IT}, 1")
    g.i(f"s_cmp_lt_u32 s{S_IT}, 6")
    g.i("s_cbranch_scc1 L_ld_loop")
    g.st('ld_iss7')
    g.i(f"s_waitcnt vmcnt({11+2*NT})")
    g.i("s_barrier")
    g.i("s_waitcnt vmcnt(0)")
    g.i("s_barrier")
    g.i(f"s_cmp_lg_u32 s{S_WAVE}, 4")
    g.i("s_cbranch_scc1 L_ld_nocert")
    g.i(f"s_lshl_b32 s{S_T0}, s{S_BR}, 4")
    g.i(f"s_add_u32 s{S_T0}, s{S_T0}, s{S_HP}")
    g.i(f"s_lshl_b32 s{S_T0}, s{S_T0}, 3")
    g.i(f"v_mov_b32 v7, s{S_T0}")
    spin(g, "cert1", f"buffer_load_dword v{V_F}, v7, s[{S_DBG}:{S_DBG+3}], 0 offen sc1", 8)
    g.lab("L_ld_nocert")
    g.i(f"s_lshl_b32 s{S_T0}, s{S_A}, 11")
    g.i(f"s_add_u32 s{S_T0}, s{S_T0}, {L_QX}")
    g.i(f"v_add_u32 v6, s{S_T0}, v{V_L16}")
    attn_setup(g)
    g.i("s_waitcnt lgkmcnt(0)")
    g.i("s_barrier")
    g.i(f"ds_read_b128 {vr(V_Q[0],4)}, v6")
    g.i(f"ds_read_b128 {vr(V_Q[1],4)}, v6 offset:1024")
    g.i("s_branch L_attn")

class LdsQ:
    def __init__(self, g): self.g = g; self.q = []
    def issue(self, tag): self.q.append(tag)
    def need(self, tags):
        idx = max([i for i, t in enumerate(self.q) if t in tags], default=-1)
        if idx >= 0:
            n = len(self.q) - 1 - idx
            self.g.i(f"s_waitcnt lgkmcnt({min(n,15)})")
            self.q = self.q[idx + 1:]

def compute(g):
    g.lab("L_compute")
    g.i("s_waitcnt lgkmcnt(0)")
    late_srds(g)
    g.i(f"s_cmp_lg_u32 s{S_WAVE}, 0")
    g.i("s_cbranch_scc1 L_cp_noclear")
    g.i(f"s_lshl_b32 s{S_T0}, s{S_BR}, 4")
    g.i(f"s_add_u32 s{S_T0}, s{S_T0}, s{S_HP}")
    g.i(f"s_lshl_b32 s{S_T1}, s{S_T0}, 7")
    g.i(f"s_lshl_b32 s{S_T2}, s{S_TB}, 4")
    g.i(f"s_add_u32 s{S_T1}, s{S_T1}, s{S_T2}")
    g.i(f"v_lshl_add_u32 v6, v0, 2, s{S_T1}")
    g.i("v_mov_b32 v100, 0")
    g.i("s_mov_b64 exec, 0xf")
    g.i(f"buffer_store_dword v100, v6, s[{S_FL}:{S_FL+3}], 0 offen sc1")
    g.i("s_mov_b64 exec, -1")
    g.lab("L_cp_noclear")
    attn_consts(g)
    g.i("v_and_b32 v6, 31, v0")
    g.i(f"s_lshl_b32 s{S_T0}, s{S_WAVE}, 13")
    g.i(f"v_lshl_add_u32 v100, v6, 7, s{S_T0}")
    g.i("v_bfe_u32 v6, v0, 1, 3")
    g.i("v_lshrrev_b32 v7, 5, v0")
    g.i("v_xor_b32 v6, v6, v7")
    for s in range(4):
        g.i(f"v_xor_b32 v7, {2*s}, v6")
        g.i(f"v_lshl_add_u32 v{V_XA+s}, v7, 4, v100")
    g.i("v_lshrrev_b32 v6, 5, v0")
    g.i("v_bfe_u32 v7, v0, 2, 2")
    g.i("v_lshl_add_u32 v6, v6, 3, v7")
    g.i("v_mul_u32_u24 v6, 192, v6")
    g.i("v_bfe_u32 v7, v0, 4, 1")
    g.i("v_lshl_add_u32 v6, v7, 5, v6")
    g.i("v_and_b32 v7, 3, v0")
    g.i("v_lshl_add_u32 v6, v7, 3, v6")
    g.i(f"v_add_u32 v{V_WA}, {SLOT_W}, v6")
    for r in range(0, 96, 2):
        g.i(f"v_mov_b64 v[{V_ACC+r}:{V_ACC+r+1}], 0")
    S_A, S_B, S_G1, S_G2 = 56, 57, 58, 59
    KG, KL, VG, VL, QL = 244, 245, 247, 248, 249
    g.i("v_and_b32 v6, 0x33, v0")
    g.i("v_bfe_u32 v7, v0, 2, 1")
    g.i("v_lshl_or_b32 v6, v7, 3, v6")
    g.i("v_bfe_u32 v7, v0, 3, 1")
    g.i("v_lshl_or_b32 v6, v7, 2, v6")
    g.i(f"v_lshlrev_b32 v{KG}, 4, v6")
    g.i(f"s_lshl_b32 s{S_T0}, s{S_WAVE}, 12")
    g.i(f"v_add_u32 v{KL}, s{S_T0}, v{KG}")
    g.i("v_and_b32 v6, 15, v0")
    g.i("v_lshlrev_b32 v6, 4, v6")
    g.i("v_lshrrev_b32 v7, 5, v0")
    g.i("v_lshl_add_u32 v6, v7, 8, v6")
    g.i("v_add_u32 v6, 1024, v6")
    g.i("v_bfe_u32 v7, v0, 4, 1")
    g.i(f"v_lshl_add_u32 v{VG}, v7, 17, v6")
    g.i("v_lshl_add_u32 v6, v7, 14, v6")
    g.i(f"v_add_u32 v{VL}, s{S_T0}, v6")
    g.i(f"s_lshr_b32 s{S_T0}, s{S_T0}, 1")
    g.i(f"s_add_u32 s{S_T0}, s{S_T0}, {L_QX}")
    g.i(f"v_add_u32 v{QL}, s{S_T0}, v{V_L16}")
    if g.opt.get('dry', 1):
        g.i(f"s_cmp_lt_u32 s{S_WAVE}, 2")
        g.i("s_cbranch_scc1 L_dry_done")
        g.i(f"s_mov_b32 s{S_DRY}, 1")
        g.i(f"s_mov_b32 s{S_IT}, 7")
        g.i("s_mov_b64 vcc, 0")
        g.i(f"s_mov_b64 s[{S_M}:{S_M+1}], 0")
        g.i(f"s_mov_b64 s[{S_M+2}:{S_M+3}], 0")
        g.i(f"s_mov_b32 s{S_MK}, 0")
        g.i("s_waitcnt vmcnt(0) lgkmcnt(0)")
        g.i("s_setvskip -1, 0")
        g.i(f"s_cmp_eq_u32 s{S_WAVE}, 2")
        g.i("s_cbranch_scc1 L_at_done")
        g.i("s_branch L_cp_loop")
        g.lab("L_dry_ret")
        g.i("s_setvskip 0, 0")
        g.i("s_mov_b64 exec, -1")
        g.i("s_setprio 0")
        g.i(f"s_mov_b32 s{S_DRY}, 0")
        g.lab("L_dry_done")
    attn_setup(g)
    g.i(f"s_lshl_b32 s{S_T0}, s{S_WAVE}, 12")
    g.i(f"s_lshl_b32 s{S_G1}, s{S_TB}, 14")
    g.i(f"s_add_u32 s{S_G1}, s{S_G1}, s{S_T0}")
    g.i(f"s_add_u32 s{S_G2}, s{S_G1}, 131072")
    g.i(f"s_mov_b32 s{S_IT}, 0")
    g.i(f"s_mov_b32 s{S_A}, 0")
    g.i(f"s_mov_b32 s{S_B}, {SLOT}")
    q = LdsQ(g)
    def rd(setn, s, which):
        F = V_FR[setn]
        if which[0] == 'x':
            i = int(which[1])
            g.i(f"ds_read_b128 {vr(F+4*i,4)}, v{V_XA+s} offset:{4096*i}")
        else:
            p = {'q': 0, 'k': 1, 'v': 2}[which[0]]; i = int(which[1])
            g.i(f"ds_read_b64_tr_b16 {vr(F+8+4*p+2*i,2)}, v{V_WA} offset:{s*3072+i*768+p*64}")
        q.issue((setn, which))
    ORDER = ['x0', 'q0', 'q1', 'x1', 'k0', 'k1', 'v0', 'v1']
    def mf(setn, n):
        F = V_FR[setn]; p, i = n // 2, n % 2
        w, x = vr(F + 8 + 4 * p, 4), vr(F + 4 * i, 4)
        nm = 'qkv'[p]
        q.need({(setn, f'x{i}'), (setn, nm + '0'), (setn, nm + '1')})
        A, B = (w, x) if p < 2 else (x, w)
        acc = vr(V_ACC + 16 * n, 16)
        if g.opt.get('x_m16'):
            for hh in range(2):
                a4 = vr(V_ACC + 16 * n + 4 * hh, 4)
                g.i(f"v_mfma_f32_16x16x32_bf16 {a4}, {A}, {B}, {a4}")
        else:
            g.i(f"v_mfma_f32_32x32x16_bf16 {acc}, {A}, {B}, {acc}")
    def step(cur, nxt_s):
        plan = [ORDER[0:2], ORDER[2:4], ORDER[4:6], ORDER[6:8], [], []]
        for n in range(6):
            if cur is not None: mf(cur, n)
            if nxt_s is not None:
                for w in plan[n]: rd(1 - (cur if cur is not None else 1), nxt_s, w)
    g.i(f"s_cmp_lg_u32 s{S_WAVE}, 0")
    g.i("s_cbranch_scc1 L_cp_nocount")
    g.i(f"s_lshl_b32 s{S_T0}, s{S_BR}, 4")
    g.i(f"s_add_u32 s{S_T0}, s{S_T0}, s{S_HP}")
    g.i(f"s_lshl_b32 s{S_T0}, s{S_T0}, 3")
    g.i("s_mov_b64 exec, 1")
    g.i(f"v_mov_b32 v6, s{S_T0}")
    g.i("v_mov_b32 v7, 1")
    g.i(f"s_waitcnt vmcnt(0)")
    g.i(f"buffer_atomic_add v7, v6, s[{S_DBG}:{S_DBG+3}], 0 offen sc1")
    g.i("s_mov_b64 exec, -1")
    g.lab("L_cp_nocount")
    def prew():
        g.i(f"s_lshl_b32 s{S_T0}, s{S_TB}, 14")
        g.i(f"s_lshl_b32 s{S_T1}, s{S_WAVE}, 12")
        g.i(f"s_add_u32 s{S_T0}, s{S_T0}, s{S_T1}")
        g.i(f"s_add_u32 s{S_T1}, s{S_T0}, 131072")
        for k in range(8):
            g.i(f"buffer_store_dwordx4 v[{V_O[0]}:{V_O[0]+3}], v{V_L16}, s[{S_KV}:{S_KV+3}], s{S_T1 if k >= 4 else S_T0} offen offset:{1024*(k%4)} sc1")
    if g.opt.get('prew') == 1: prew()
    g.st('cp_pre')
    g.i("s_barrier")
    g.stamp(1)
    if g.opt.get('prew') == 2: prew()
    step(None, 0)
    g.lab("L_cp_loop")
    q.q = [(0, w) for w in ORDER]
    step(0, 1); step(1, 2); step(0, 3)
    g.i(f"s_add_u32 s{S_A}, s{S_A}, 1")
    g.i(f"s_cmp_eq_u32 s{S_A}, 3")
    g.i(f"s_cselect_b32 s{S_T0}, {(-2*SLOT) & 0xffffffff}, s{S_B}")
    g.i(f"s_cselect_b32 s{S_A}, 0, s{S_A}")
    g.i(f"s_add_u32 s{S_IT}, s{S_IT}, 1")
    g.i(f"s_cmp_eq_u32 s{S_IT}, 8")
    g.i("s_cbranch_scc1 L_cp_last")
    g.i("s_waitcnt lgkmcnt(0)")
    q.q = []
    g.i("s_barrier")
    for r in range(5):
        g.i(f"v_add_u32 v{V_XA+r}, s{S_T0}, v{V_XA+r}")
    step(1, 0)
    g.i("s_branch L_cp_loop")
    g.lab("L_cp_last")
    q.q = [(1, w) for w in ORDER]
    step(1, None)
    g.stamp(2)
    g.i(f"s_mov_b32 s{S_T1}, {hex(QSCALE)}")
    g.i(f"s_mov_b32 s{S_T2}, s{S_T1}")
    g.i("s_nop 5")
    KVS = g.opt.get('kvs', ' sc1')
    T = 204
    n = 0
    for i in range(2):
        A = V_ACC + 16 * (2 + i)
        for hd in range(2):
            for r in range(4):
                g.i(f"v_cvt_pk_bf16_f32 v{T+4*n+r}, v{A+8*hd+2*r}, v{A+8*hd+2*r+1}")
            g.i(f"buffer_store_dwordx4 {vr(T+4*n,4)}, v{KG}, s[{S_KV}:{S_KV+3}], s{S_G2 if hd else S_G1} offen offset:{2048*i}{KVS}")
            g.i(f"ds_write_b128 v{KL}, {vr(T+4*n,4)} offset:{16384*hd+2048*i}")
            n += 1
    for i in range(2):
        A = V_ACC + 16 * (4 + i)
        for gr in range(2):
            for r in range(4):
                g.i(f"v_cvt_pk_bf16_f32 v{T+4*n+r}, v{A+8*gr+2*r}, v{A+8*gr+2*r+1}")
            g.i(f"buffer_store_dwordx4 {vr(T+4*n,4)}, v{VG}, s[{S_KV}:{S_KV+3}], s{S_G1} offen offset:{2048*i+512*gr}{KVS}")
            g.i(f"ds_write_b128 v{VL}, {vr(T+4*n,4)} offset:{2048*i+512*gr}")
            n += 1
    for i in range(2):
        A = V_ACC + 16 * i
        for r in range(8, 16, 2):
            g.i(f"v_pk_mul_f32 v[{A+r}:{A+r+1}], v[{A+r}:{A+r+1}], s[{S_T0+1}:{S_T0+2}]")
        for r in range(4):
            g.i(f"v_cvt_pk_bf16_f32 v{A+8+r}, v{A+8+2*r}, v{A+8+2*r+1}")
        g.i(f"ds_write_b128 v{QL}, {vr(A+8,4)} offset:{1024*i}")
    for i in range(2):
        A = V_ACC + 16 * i
        for r in range(0, 8, 2):
            g.i(f"v_pk_mul_f32 v[{A+r}:{A+r+1}], v[{A+r}:{A+r+1}], s[{S_T0+1}:{S_T0+2}]")
        for r in range(4):
            g.i(f"v_cvt_pk_bf16_f32 v{V_Q[i]+r}, v{A+2*r}, v{A+2*r+1}")
    g.i("s_waitcnt lgkmcnt(0)")
    barrier_unless_dry(g, "b8")

U = 8
S_OA, S_OB = S_M + 6, S_M + 7
S_MK = S_M + 5
S_KV2 = S_X
S_KO = [None, 4, 5, 6, 7, 12, 13, 14]
S_LM = [[49, 50], [51, 52]]
V_VB = 4

def spin_mask(g, tag, load):
    g.i(f"s_mov_b32 s{S_T3}, 0")
    g.lab(f"L_spin_{tag}")
    g.i(load)
    g.i(f"s_add_u32 s{S_T3}, s{S_T3}, 1")
    g.i("s_waitcnt vmcnt(0)")
    g.i(f"v_cmp_ne_u32 vcc, 1, v{V_F}")
    g.i(f"s_cmp_ge_u32 s{S_T3}, {SPIN_MAX}")
    g.i(f"s_cbranch_scc1 L_olr_{tag}")
    g.i(f"s_and_b32 vcc_lo, vcc_lo, s{S_MK}")
    g.i(f"s_cbranch_scc1 L_spin_{tag}")

def attn_setup(g):
    g.i(f"s_add_u32 s{S_KV2}, s{S_KV}, 131072")
    g.i(f"s_addc_u32 s{S_KV2+1}, s{S_KV+1}, 0")
    g.i(f"s_mov_b32 s{S_KV2+2}, 131072")
    g.i(f"s_mov_b32 s{S_KV2+3}, 0x20000")
    g.i(f"s_lshl_b32 s{S_LM[0][0]}, s{S_WAVE}, 11")
    g.i(f"s_add_u32 s{S_LM[0][1]}, s{S_LM[0][0]}, 16384")
    g.i(f"s_add_u32 s{S_LM[1][0]}, s{S_LM[0][0]}, {RING}")
    g.i(f"s_add_u32 s{S_LM[1][1]}, s{S_LM[0][0]}, {RING+16384}")
    g.i(f"s_and_b32 s{S_T1}, s{S_TB}, 4")
    g.i(f"s_xor_b32 s{S_T2}, s{S_T1}, 4")
    for i in range(1, 8):
        g.i(f"s_add_u32 s{S_T0}, s{S_TB}, {i}")
        g.i(f"s_and_b32 s{S_T0}, s{S_T0}, 3")
        g.i(f"s_or_b32 s{S_T0}, s{S_T0}, s{S_T1 if i < 4 else S_T2}")
        if i == 1:
            g.i(f"s_lshl_b32 s{S_T3}, s{S_T0}, 2")
            g.i(f"s_lshl_b32 s{S_MK}, 15, s{S_T3}")
        g.i(f"s_lshl_b32 s{S_T0}, s{S_T0}, 14")
        g.i(f"s_add_u32 s{S_KO[i]}, s{S_T0}, s{S_LM[0][0]}")
    g.i(f"s_and_b32 s{S_F}, s{S_HP}, 7")
    g.i(f"s_lshl_b32 s{S_T0}, s{S_F}, 7")
    g.i(f"s_lshl_b32 s55, s{S_WAVE}, 16")
    g.i(f"s_add_u32 s55, s55, s{S_T0}")
    g.i(f"s_lshl_b32 s{S_E}, s{S_WAVE}, 13")
    g.i(f"s_add_u32 s{S_E}, s{S_E}, {L_WO}")
    g.i(f"s_and_b32 s{S_T0}, s{S_WAVE}, 3")
    g.i(f"s_lshl_b32 s{S_T0}, s{S_T0}, 1")
    g.i(f"s_lshl_b32 s{S_T1}, s{S_TB}, 3")
    g.i(f"s_add_u32 s{S_T0}, s{S_T0}, s{S_T1}")
    g.i(f"s_lshl_b32 s{S_OA}, s{S_T0}, 15")
    g.i(f"s_lshr_b32 s{S_T1}, s{S_WAVE}, 2")
    g.i(f"s_lshl_b32 s{S_T2}, s{S_HP}, 1")
    g.i(f"s_add_u32 s{S_T1}, s{S_T1}, s{S_T2}")
    g.i(f"s_lshl_b32 s{S_T2}, s{S_T1}, 10")
    g.i(f"s_add_u32 s{S_OA}, s{S_OA}, s{S_T2}")
    g.i(f"s_add_u32 s{S_OB}, s{S_OA}, 32768")

def attention(g):
    opt = g.opt
    g.lab("L_attn")
    g.stamp(3)
    g.i(f"ds_read_b128 {vr(V_K,4)}, v{V_KA}")
    g.i(f"ds_read_b128 {vr(V_V[0],4)}, v{V_VA}")
    g.i(f"ds_read_b128 {vr(V_V[0]+4,4)}, v{V_VA} offset:512")
    g.i("s_setprio 3")
    g.i("s_waitcnt lgkmcnt(2)")
    g.i(f"v_mfma_f32_32x32x16_bf16 {vr(V_S[0],16)}, {vr(V_K,4)}, {vr(V_Q[0],4)}, 0")
    dry_exit(g)
    g.i("s_nop 9")
    g.i("s_waitcnt lgkmcnt(0)")
    poll = f"buffer_load_dword v{V_F}, v{V_FA}, s[{S_FL}:{S_FL+3}], 0 offen sc1"
    side = []
    ev = {}
    def at(it, p, slot, *ins): ev.setdefault((it, p, slot), []).extend(ins)
    def kv(i, n):
        return f"buffer_load_dwordx4 v{V_L16}, {sr(S_KV2 if n >= 2 else S_KV, 4)}, s{S_KO[i]} offen offset:{1024*(n%2)}{opt.get('kvl', ' sc1')} lds"
    def check(tag, n):
        def f():
            g.i(f"s_waitcnt vmcnt({n})")
            g.i(f"v_cmp_ne_u32 vcc, 1, v{V_F}")
            g.i(f"s_nop {opt.get('x_nop', 0)}")
            g.i(f"s_and_b32 vcc_lo, vcc_lo, s{S_MK}")
            g.i(f"s_cbranch_scc1 L_ol_{tag}")
            g.lab(f"L_olr_{tag}")
            if opt.get('inv'):
                g.i("buffer_inv sc1")
                g.i("s_waitcnt vmcnt(0)")
            side.append((tag, lambda: spin_mask(g, tag, poll)))
        return f
    def publish():
        g.i(f"s_cmp_ge_u32 s{S_WAVE}, 4")
        g.i("s_cbranch_scc1 L_at_nopub")
        g.i(f"s_lshl_b32 s{S_T0}, s{S_TB}, 2")
        g.i(f"s_add_u32 s{S_T0}, s{S_T0}, s{S_WAVE}")
        g.i(f"s_lshl_b64 exec, 1, s{S_T0}")
        g.i(f"v_mov_b32 v{V_F}, 1")
        g.st('pub_pre')
        if opt.get('wbl2'):
            g.i("s_waitcnt vmcnt(0)")
            g.i("buffer_wbl2 sc1")
        g.i("s_waitcnt vmcnt(0)")
        g.st('pub_ack')
        g.i(f"buffer_store_dword v{V_F}, v{V_FA}, s[{S_FL}:{S_FL+3}], 0 offen sc1")
        g.i("s_mov_b64 exec, -1")
        g.lab("L_at_nopub")
    def count():
        g.i(f"s_cmp_lg_u32 s{S_WAVE}, 7")
        g.i("s_cbranch_scc1 L_at_nocnt")
        g.i(f"s_lshl_b32 s{S_T0}, s{S_BR}, 4")
        g.i(f"s_add_u32 s{S_T0}, s{S_T0}, s{S_HP}")
        g.i(f"s_lshl_b32 s{S_T0}, s{S_T0}, 3")
        g.i("s_mov_b64 exec, 1")
        g.i(f"v_mov_b32 v246, s{S_T0}")
        g.i("v_mov_b32 v247, 1")
        g.i(f"buffer_atomic_add v247, v246, s[{S_DBG}:{S_DBG+3}], 0 offen offset:4 sc1")
        g.i("s_mov_b64 exec, -1")
        g.lab("L_at_nocnt")
    pp, pi0, pc0, pi1 = opt.get('ev', (0, 7, 9, 11))
    at(0, pp, 'p1', publish)
    at(0, pi0, 'qk', poll)
    at(0, pc0, 'qk', check("kv0", 0), lambda: g.st('chk_ok'), f"s_mov_b32 m0, s{S_LM[1][0]}", f"s_lshr_b32 s{S_T0}, s{S_TB}, 2",
       kv(1, 0), kv(1, 1), f"s_mov_b32 m0, s{S_LM[1][1]}", f"s_lshl_b32 s{S_T0}, s{S_T0}, 4", kv(1, 2), kv(1, 3),
       f"s_lshl_b32 s{S_MK}, 0xffff, s{S_T0}")
    at(0, pi1, 'qk', poll)
    late = {i: 0 for i in range(8)}
    dp = opt.get('dma', (1, 3, 5, 7))
    for i in range(1, 7):
        sl = (i + 1) % 2
        at(i, dp[0] - 1, 'p2x', f"s_mov_b32 m0, s{S_LM[sl][0]}")
        at(i, dp[0], 'qk', kv(i + 1, 0))
        at(i, dp[1], 'qk', kv(i + 1, 1))
        at(i, dp[2], 'p2', f"s_mov_b32 m0, s{S_LM[sl][1]}")
        at(i, dp[2], 'qk', kv(i + 1, 2))
        at(i, dp[3], 'qk', kv(i + 1, 3))
    CK2 = opt.get('ck2', 2)
    at(CK2, 7, 'p1', poll)
    wp = opt.get('wop', (9, 11))
    for i in range(1, 5):
        for k, p in enumerate(wp):
            at(i, p, 'p2', f"s_add_u32 m0, s{S_E}, {(2*(i-1)+k)*1024}")
            at(i, p, 'qk', f"buffer_load_dwordx4 v{V_WOA}, s[{S_WO}:{S_WO+3}], s55 offen lds")
            at(i, p, 'p1', "s_add_u32 s55, s55, 8192")
        late[i] += 2
    for k, so in enumerate((S_OA, S_OB)):
        at(5, 9 + 2 * k, 'qk', f"buffer_store_dwordx4 v[252:255], v{V_L16}, s[{S_O}:{S_O+3}], s{so} offen sc1")
    late[5] += 2
    at(7, 1, 'qk', count)
    if opt.get('x_late0'): late = {i: 0 for i in range(8)}
    prio = opt.get('prio', {0: 3, 5: 2, 10: 1, 13: 0})
    for i in range(8):
        for p, v in prio.items():
            ii, q = (i, p - 1) if p else (i - 1, 15)
            if ii >= 0: at(ii, q, 'p1', f"s_setprio {v}")
    def emit(it, p, slot):
        for x in ev.pop((it, p, slot), []):
            x() if callable(x) else g.i(x)
    p2, pq, p1 = opt.get('pos', (1, 5, 10))
    for it in range(8):
        if opt.get('itst'):
            g.i("s_memtime s[98:99]")
            g.i("s_waitcnt lgkmcnt(0)")
            g.i(f"v_writelane_b32 v250, s98, {it}")
        for p in range(2 * U):
            b, t = p % 2, p // 2
            S, So = V_S[b], V_S[1 - b]
            nt = (t + 1) % U
            sl = (it + (t == U - 1)) % 2
            VA = V_VB if sl else V_VA
            last = it == 7 and t == U - 1
            for e in range(16):
                g.i(f"v_exp_f32 v{S+e}, v{S+e}")
                if e == p2:
                    tp = (p - 1) // 2
                    if it or p:
                        g.i(f"v_smfmac_f32_32x32x32_bf16 {vr(V_O[1-b],16)}, {vr(V_V[tp%2]+4,4)}, {vr(So+8,8)}, v{V_IDX}")
                    emit(it, p, 'p2x')
                    if b == 0:
                        if t == U - 1 and it < 7:
                            if it == 0: check("kv1", 0)(); g.st('chk1_ok'); g.i(f"s_mov_b32 s{S_MK}, -1")
                            elif it == CK2: check("kv2", late[it])()
                            else: g.i(f"s_waitcnt vmcnt({late[it]})")
                            g.i("s_barrier")
                        if not last: g.i(f"ds_read_b128 {vr(V_V[(t+1)%2],4)}, v{VA} offset:{nt*2048}")
                    elif not last:
                        g.i("s_waitcnt lgkmcnt(1)")
                    emit(it, p, 'p2')
                if e == pq:
                    if not (last and b):
                        g.i(f"v_mfma_f32_32x32x16_bf16 {vr(So,16)}, {vr(V_K,4)}, {vr(V_Q[1-b],4)}, 0")
                    if b == 0 and not last:
                        g.i(f"ds_read_b128 {vr(V_K,4)}, v{V_KA} offset:{sl*RING+nt*2048}")
                    emit(it, p, 'qk')
                if e == p1:
                    g.i(f"v_smfmac_f32_32x32x32_bf16 {vr(V_O[b],16)}, {vr(V_V[t%2],4)}, {vr(S,8)}, v{V_IDX}")
                    if b == 0 and not last:
                        g.i(f"ds_read_b128 {vr(V_V[(t+1)%2]+4,4)}, v{VA} offset:{nt*2048+512}")
                    elif not last:
                        g.i("s_waitcnt lgkmcnt(0)")
                    emit(it, p, 'p1')
    assert not ev, ev
    g.side = side
    g.lab("L_at_done")
    g.i("s_nop 1")
    g.i(f"v_smfmac_f32_32x32x32_bf16 {vr(V_O[1],16)}, {vr(V_V[1]+4,4)}, {vr(V_S[1]+8,8)}, v{V_IDX}")
    g.stamp(4)
    if opt.get('itst'):
        g.i("s_memtime s[98:99]")
        g.i("s_waitcnt lgkmcnt(0)")
        g.i(f"v_writelane_b32 v250, s98, 8")
    g.i(f"s_mov_b32 s{S_T0}, 0x2b800000")
    g.i(f"s_mov_b32 s{S_T1}, 0x53800000")
    g.i(f"s_mov_b32 s{S_T2}, 0x7f800000")
    for q in range(2):
        O = V_O[q]
        g.i(f"v_add_f32 v6, abs(v{O}), abs(v{O+1})")
        g.i(f"v_add_f32 v7, abs(v{O+2}), abs(v{O+3})")
        for r in range(4, 8, 2):
            g.i(f"v_add_f32 v6, v6, abs(v{O+r})")
            g.i(f"v_add_f32 v7, v7, abs(v{O+r+1})")
        g.i(f"v_add_f32 v6, v6, v7")
        g.i(f"v_cmp_nle_f32 s[{S_M}:{S_M+1}], s{S_T0}, v{O+8}")
        g.i(f"v_cmp_nge_f32 s[{S_M+2}:{S_M+3}], s{S_T1}, v{O+8}")
        g.i(f"v_cmp_ngt_f32 vcc, s{S_T2}, v6")
        g.i(f"v_rcp_f32 v{V_S[0]+q}, v{O+8}")
        g.i(f"s_or_b64 s[{S_M}:{S_M+1}], s[{S_M}:{S_M+1}], s[{S_M+2}:{S_M+3}]")
        g.i(f"s_or_b64 s[{S_M}:{S_M+1}], s[{S_M}:{S_M+1}], vcc")
        g.i("s_branch L_fallback" if opt.get('force_fallback') else "s_cbranch_scc1 L_fallback")
    g.lab("L_at_store")
    for q in range(2):
        O = V_O[q]
        for r in range(8):
            g.i(f"v_mul_f32 v{O+r}, v{O+r}, v{V_S[0]+q}")
        for r in range(4):
            g.i(f"v_cvt_pk_bf16_f32 v{O+r}, v{O+2*r}, v{O+2*r+1}")
        g.i(f"buffer_store_dwordx4 {vr(O,4)}, v{V_L16}, s[{S_O}:{S_O+3}], s{S_OB if q else S_OA} offen sc1")

P_WO = 100
P_OF = 8
def outproj(g):
    opt = g.opt
    A0, A1 = 228, 72
    WA0, WA1, RA, OA = 244, 245, 246, 247
    g.i(f"s_lshr_b32 s{S_E}, s{S_WAVE}, 2")
    g.i(f"s_lshl_b32 s{S_T0}, s{S_E}, 15")
    g.i(f"s_add_u32 s{S_T0}, s{S_T0}, {L_WO}")
    g.i("v_lshrrev_b32 v6, 5, v0")
    g.i("v_bfe_u32 v7, v0, 2, 2")
    g.i("v_lshl_add_u32 v6, v6, 2, v7")
    g.i(f"v_lshl_add_u32 v6, v6, 7, s{S_T0}")
    g.i("v_bfe_u32 v7, v0, 3, 2")
    g.i("v_and_b32 v2, 1, v7")
    g.i("v_lshl_add_u32 v6, v2, 6, v6")
    g.i("v_lshrrev_b32 v7, 1, v7")
    g.i("v_lshl_add_u32 v6, v7, 5, v6")
    g.i("v_and_b32 v7, 3, v0")
    g.i(f"v_lshl_add_u32 v6, v7, 3, v6")
    g.i(f"s_lshl_b32 s{S_T0}, s{S_E}, 6")
    g.i(f"v_xor_b32 v{WA0}, s{S_T0}, v6")
    g.i(f"v_xor_b32 v{WA1}, 64, v{WA0}")
    n = 0
    def wo_reads(s0, s1):
        for s in range(s0, s1):
            for f in range(2):
                for i in range(2):
                    g.i(f"ds_read_b64_tr_b16 {vr(P_WO+8*s+4*f+2*i,2)}, v{WA1 if f else WA0} offset:{s*2048+i*1024}")
    g.stamp(5)
    g.i(f"s_lshl_b32 s{S_T0}, s{S_BR}, 7")
    g.i("v_and_b32 v6, 15, v0")
    g.i(f"v_lshl_add_u32 v4, v6, 3, s{S_T0}")
    g.i(f"buffer_load_dword v5, v4, s[{S_DBG}:{S_DBG+3}], 0 offen offset:4 sc1")
    for s0 in range(0, 16, 3):
        if s0: g.i("s_waitcnt lgkmcnt(2)")
        wo_reads(s0, min(s0 + 3, 16))
    g.i(f"s_lshr_b32 s{S_T0}, s{S_HP}, 3")
    g.i(f"s_lshl_b32 s{S_T0}, s{S_T0}, 2")
    g.i(f"s_and_b32 s{S_T1}, s{S_WAVE}, 3")
    g.i(f"s_add_u32 s{S_A}, s{S_T0}, s{S_T1}")
    g.i(f"s_lshl_b32 s{S_T0}, s{S_TB}, 3")
    g.i(f"s_add_u32 s{S_A}, s{S_A}, s{S_T0}")
    g.i(f"s_lshl_b32 s{S_B}, s{S_A}, 15")
    g.i(f"s_lshl_b32 s{S_T0}, s{S_E}, 14")
    g.i(f"s_add_u32 s{S_B}, s{S_B}, s{S_T0}")
    g.i(f"s_add_u32 s{S_C}, s{S_B}, 4096")
    g.i(f"s_add_u32 s{S_D}, s{S_B}, 8192")
    g.i(f"s_add_u32 s{S_IT}, s{S_B}, 12288")
    g.i(f"v_lshlrev_b32 v2, 10, v6")
    g.i(f"v_add_u32 v2, 1020, v2")
    g.i(f"s_lshl_b32 s{S_T0}, s{S_WAVE}, 12")
    g.i(f"v_add_u32 v{RA}, s{S_T0}, v{V_L16}")
    g.i("v_and_b32 v6, 31, v0")
    g.i("v_lshlrev_b32 v6, 11, v6")
    g.i("v_lshrrev_b32 v7, 5, v0")
    g.i(f"v_lshl_add_u32 v{OA}, v7, 4, v6")
    g.i(f"s_lshl_b32 s{S_A}, s{S_A}, 16")
    g.i(f"s_lshl_b32 s{S_T0}, s{S_BR}, 10")
    g.i(f"s_add_u32 s{S_A}, s{S_A}, s{S_T0}")
    g.i(f"s_lshl_b32 s{S_T0}, s{S_F}, 7")
    g.i(f"s_add_u32 s{S_A}, s{S_A}, s{S_T0}")
    g.i(f"s_lshl_b32 s{S_T0}, s{S_E}, 6")
    g.i(f"s_add_u32 s{S_A}, s{S_A}, s{S_T0}")
    g.i(f"s_mov_b32 s{S_T3}, 0")
    g.lab("L_spin_c")
    g.i("s_waitcnt vmcnt(0)")
    g.i("v_cmp_gt_u32 vcc, 8, v5")
    g.i(f"s_add_u32 s{S_T3}, s{S_T3}, 1")
    g.i("s_cbranch_vccz L_spin_o")
    g.i(f"buffer_load_dword v5, v4, s[{S_DBG}:{S_DBG+3}], 0 offen offset:4 sc1")
    g.i(f"s_cmp_lt_u32 s{S_T3}, {SPIN_MAX}")
    g.i("s_cbranch_scc1 L_spin_c")
    g.lab("L_spin_o")
    if opt.get('probe', 1):
        g.i("s_mov_b64 exec, 0xffff")
        g.i(f"buffer_load_dword v3, v2, s[{S_O}:{S_O+3}], s{S_B} offen sc1")
        g.i(f"s_add_u32 s{S_T3}, s{S_T3}, 1")
        g.i("s_waitcnt vmcnt(0)")
        g.i("v_cmp_eq_u32 vcc, -1, v3")
        g.i("s_mov_b64 exec, -1")
        g.i(f"s_cmp_ge_u32 s{S_T3}, {SPIN_MAX}")
        g.i("s_cbranch_scc1 L_spun_o")
        if opt.get('sleep'): g.i(f"s_sleep {opt['sleep']}")
        g.i("s_cbranch_vccnz L_spin_o")
    else:
        g.i(f"s_add_u32 s{S_T3}, s{S_T3}, 1")
    g.lab("L_spun_o")
    g.stamp(6)
    for s in range(16):
        so = (S_B, S_C, S_D, S_IT)[s // 4]
        g.i(f"buffer_load_dwordx4 {vr(P_OF+4*s,4)}, v{V_L16}, s[{S_O}:{S_O+3}], s{so} offen offset:{1024*(s%4)} sc1")
    g.i("v_mov_b32 v3, 0")
    g.i("s_waitcnt lgkmcnt(0)")
    for s in range(16):
        g.i(f"s_waitcnt vmcnt({15-s})")
        for f, A in ((1, A1), (0, A0)):
            g.i(f"v_mfma_f32_32x32x16_bf16 {vr(A,16)}, {vr(P_WO+8*s+4*f,4)}, {vr(P_OF+4*s,4)}, {vr(A,16) if s else 0}")
            g.i(f"v_max3_u32 v3, v3, v{P_OF+4*s+2*f}, v{P_OF+4*s+2*f+1}")
    g.i("v_cmp_eq_u32 vcc, -1, v3")
    g.i(f"s_cmp_ge_u32 s{S_T3}, {SPIN_MAX}")
    g.i("s_cbranch_scc1 L_op_go")
    g.i("s_cbranch_vccnz L_spin_o")
    g.lab("L_op_go")
    g.i("s_nop 5")
    for r in range(4):
        g.i(f"ds_write_b128 v{RA}, {vr(A1+4*r,4)} offset:{1024*r}")
    g.i("s_waitcnt lgkmcnt(0)")
    g.i(f"v_xor_b32 v{RA}, 16384, v{RA}")
    barrier_unless_dry(g, "b9")
    for r in range(4):
        g.i(f"ds_read_b128 {vr(P_OF+4*r,4)}, v{RA} offset:{1024*r}")
    for r in range(4):
        g.i(f"s_waitcnt lgkmcnt({3-r})")
        for k in range(4):
            g.i(f"v_add_f32 v{A0+4*r+k}, v{A0+4*r+k}, v{P_OF+4*r+k}")
        for k in range(2):
            g.i(f"v_cvt_pk_bf16_f32 v{24+2*r+k}, v{A0+4*r+2*k}, v{A0+4*r+2*k+1}")
        if r % 2:
            g.i("s_nop 1")
            g.i(f"v_permlane32_swap_b32 v{24+2*r-2}, v{24+2*r}")
            g.i(f"v_permlane32_swap_b32 v{24+2*r-1}, v{24+2*r+1}")
            g.i(f"buffer_store_dwordx4 {vr(24+2*r-2,4)}, v{OA}, s[{S_OUT}:{S_OUT+3}], s{S_A} offen offset:{16*(r-1)}{opt.get('outs','')}")
    dry_exit(g)
    if g.diag:
        g.i("s_waitcnt vmcnt(0)")
        g.stamp(7)
        g.i("s_waitcnt lgkmcnt(0)")
        if g.diag == 3:
            a_, b_, K = opt['leak']
            if a_ in (1, 2) or b_ in (1, 2):
                g.i(f"s_cmp_ge_u32 s{S_WAVE}, 4")
                g.i("s_cbranch_scc1 L_end")
            g.i(f"s_sub_u32 s{S_T0}, s{66+4*b_}, s{66+4*a_}")
            g.i(f"s_mul_i32 s{S_T0}, s{S_T0}, {K}")
            g.lab("L_leak")
            g.i("s_memrealtime s[98:99]")
            g.i("s_waitcnt lgkmcnt(0)")
            g.i(f"s_sub_u32 s{S_T1}, s98, s{66+4*7}")
            g.i(f"s_cmp_lt_u32 s{S_T1}, s{S_T0}")
            g.i("s_cbranch_scc1 L_leak")
            g.i("s_endpgm")
        if g.diag == 2:
            g.i(f"s_cmp_ge_u32 s{S_WAVE}, 4")
            g.i("s_cbranch_scc1 L_end")
            g.i("s_mov_b64 exec, 1")
            for k in range(1, 8):
                g.i(f"s_sub_u32 s{S_T0}, s{66+4*k}, s66")
                g.i(f"v_mov_b32 v6, s{S_T0}")
                g.i(f"v_mov_b32 v7, {8*k+4}")
                g.i(f"buffer_atomic_umax v6, v7, s[{S_DBG}:{S_DBG+3}], 0 offen sc1")
            g.i(f"s_sub_u32 s{S_T0}, s{64+4*4}, s{64+4*3}")
            g.i(f"v_mov_b32 v6, s{S_T0}")
            g.i(f"v_mov_b32 v7, 4")
            g.i(f"buffer_atomic_umax v6, v7, s[{S_DBG}:{S_DBG+3}], 0 offen sc1")
            g.i("s_endpgm")
        g.i(f"s_lshl_b32 s{S_T0}, s2, 3")
        g.i(f"s_add_u32 s{S_T0}, s{S_T0}, s{S_WAVE}")
        g.i(f"s_lshl_b32 s{S_T0}, s{S_T0}, 7")
        g.i(f"s_add_u32 s{S_T0}, s{S_T0}, {WS_STAMP}")
        srd(g.a, S_X, 96, 128, f"s{S_T0}")
        for k in range(32):
            g.i(f"v_mov_b32 v{36+k}, s{64+k}")
        g.i("v_mov_b32 v6, 0")
        for k in range(8):
            g.i(f"buffer_store_dwordx4 {vr(36+4*k,4)}, v6, s[{S_X}:{S_X+3}], 0 offen offset:{16*k}")
        if opt.get('itst'):
            g.i(f"s_add_u32 s{S_T0}, s{S_T0}, {1<<20}")
            srd(g.a, S_X, 96, 64, f"s{S_T0}")
            g.i("v_lshlrev_b32 v6, 2, v0")
            g.i(f"buffer_store_dword v250, v6, s[{S_X}:{S_X+3}], 0 offen")
    g.lab("L_end")
    g.i("s_endpgm")

def fallback(g):
    C = [100, 116]; M = [132, 133]; GV = 134
    g.lab("L_fallback")
    g.i(f"s_lshr_b32 s{S_T0}, s{S_WAVE}, 2")
    g.i(f"s_lshl_b32 s{S_T0}, s{S_T0}, 17")
    g.i(f"v_mov_b32 v{M[0]}, 0xff800000")
    g.i(f"v_mov_b32 v{M[1]}, 0xff800000")
    g.i(f"s_mov_b32 s{S_T1}, s{S_T0}")
    g.i(f"s_add_u32 s{S_T2}, s{S_T0}, 131072")
    g.lab("L_fb_max")
    g.i(f"buffer_load_dwordx4 {vr(V_K,4)}, v{V_L16}, s[{S_KV}:{S_KV+3}], s{S_T1} offen sc1")
    g.i(f"s_add_u32 s{S_T1}, s{S_T1}, 2048")
    g.i("s_waitcnt vmcnt(0)")
    for q in range(2):
        g.i(f"v_mfma_f32_32x32x16_bf16 {vr(V_S[q],16)}, {vr(V_K,4)}, {vr(V_Q[q],4)}, 0")
    g.i("s_nop 15")
    for q in range(2):
        for r in range(0, 16, 2):
            g.i(f"v_max3_f32 v{M[q]}, v{M[q]}, v{V_S[q]+r}, v{V_S[q]+r+1}")
    g.i(f"s_cmp_lt_u32 s{S_T1}, s{S_T2}")
    g.i("s_cbranch_scc1 L_fb_max")
    for q in range(2):
        g.i(f"v_mov_b32 v6, v{M[q]}")
        g.i(f"v_mov_b32 v7, v{M[q]}")
        g.i("s_nop 1")
        g.i("v_permlane32_swap_b32 v6, v7")
        g.i("s_nop 1")
        g.i("v_max_f32 v6, v6, v7")
        for r in range(16):
            g.i(f"v_sub_f32 v{C[q]+r}, 0, v6")
            g.i(f"v_mov_b32 v{V_O[q]+r}, 0")
    g.i("v_and_b32 v6, 15, v0")
    g.i("v_lshlrev_b32 v6, 4, v6")
    g.i("v_lshrrev_b32 v7, 5, v0")
    g.i(f"v_lshl_add_u32 v{GV}, v7, 8, v6")
    for r in range(8):
        g.i(f"v_mov_b32 v{V_V[0]+r}, 0x3f803f80")
    g.i(f"s_mov_b32 s{S_T1}, s{S_T0}")
    g.i(f"s_mov_b32 s{S_M}, 0xffff")
    g.i(f"s_mov_b32 s{S_M+1}, 0xffff")
    g.lab("L_fb_pv")
    g.i(f"buffer_load_dwordx4 {vr(V_K,4)}, v{V_L16}, s[{S_KV}:{S_KV+3}], s{S_T1} offen sc1")
    g.i(f"s_mov_b64 exec, s[{S_M}:{S_M+1}]")
    g.i(f"buffer_load_dwordx4 {vr(V_V[0],4)}, v{GV}, s[{S_KV}:{S_KV+3}], s{S_T1} offen offset:1024 sc1")
    g.i(f"buffer_load_dwordx4 {vr(V_V[0]+4,4)}, v{GV}, s[{S_KV}:{S_KV+3}], s{S_T1} offen offset:1536 sc1")
    g.i("s_mov_b64 exec, -1")
    g.i(f"s_add_u32 s{S_T1}, s{S_T1}, 2048")
    g.i("s_waitcnt vmcnt(0)")
    for q in range(2):
        g.i(f"v_mfma_f32_32x32x16_bf16 {vr(V_S[q],16)}, {vr(V_K,4)}, {vr(V_Q[q],4)}, {vr(C[q],16)}")
    g.i("s_nop 15")
    for q in range(2):
        for r in range(16):
            g.i(f"v_exp_f32 v{V_S[q]+r}, v{V_S[q]+r}")
    g.i("s_nop 3")
    for q in range(2):
        for h in range(2):
            g.i(f"v_smfmac_f32_32x32x32_bf16 {vr(V_O[q],16)}, {vr(V_V[0]+4*h,4)}, {vr(V_S[q]+8*h,8)}, v{V_IDX}")
    g.i("s_nop 15")
    g.i(f"s_cmp_lt_u32 s{S_T1}, s{S_T2}")
    g.i("s_cbranch_scc1 L_fb_pv")
    for q in range(2):
        g.i(f"v_rcp_f32 v{V_S[0]+q}, v{V_O[q]+8}")
    g.i("s_nop 1")
    g.i("s_branch L_at_store")

HEADER = open('cdna_kernels/' + NAME + '.s.ref').read().split('; Override launch')[0]

def generate(opt={}):
    g = G(opt)
    name = NAME + "_kernel"
    g.a(HEADER.rstrip())
    g.a(f"; @launch grid=(256,1,1) block=(512,1,1) lds={LDS_TOTAL}")
    g.a('.amdgcn_target "amdgcn-amd-amdhsa--gfx950"')
    entry(g, name)
    if opt.get('lfirst', 1): loader(g)
    compute(g)
    attention(g)
    outproj(g)
    if not opt.get('lfirst', 1): loader(g)
    g.lab("L_code_end")
    for tag, body in g.side:
        g.lab(f"L_ol_{tag}")
        body()
        g.i(f"s_branch L_olr_{tag}")
    fallback(g)
    kernel_desc(g.a, name, NVGPR, 256, 102)
    return g.a.text()

if __name__ == "__main__":
    import sys
    opt = eval(sys.argv[2]) if len(sys.argv) > 2 else {}
    open(sys.argv[1], 'w').write(generate(opt))
```

```python
import math, struct
from common import *

WS_FLAG = 16 << 20
SLOT = 45056; SLOT_W = 32768
RING = 32768
L_WO = 65536
L_CONST = 135168
L_QX = 155648
LDS_TOTAL = 163840
S_X, S_W, S_WO, S_KV, S_O, S_FL, S_DBG, S_OUT = 8, 12, 16, 20, 24, 28, 32, 36
S_WAVE, S_BR, S_HP, S_TB, S_IT, S_T0, S_T1, S_T2, S_T3 = 40, 41, 42, 43, 44, 45, 46, 47, 48
S_A, S_B, S_C, S_D, S_E, S_F = 49, 50, 51, 52, 53, 54
S_M = 56
V_L16, V_KA, V_VA, V_VX, V_IDX, V_T0, V_T1 = 1, 2, 3, 4, 5, 6, 7
V_Q = [8, 12]; V_K = 16; V_V = [20, 28]; V_S = [36, 52]; V_O = [68, 84]
V_F = 241
V_FA = 242
V_WOA = 243
V_ACC = 100
V_FR = [196, 216]
V_XA = 236; V_WA = 240
NVGPR = 256
QSCALE = struct.unpack('<I', struct.pack('<f', 0.25 * math.log2(math.e)))[0]
SPIN_MAX = 1 << 20
S_DRY = 3

class G:
    def __init__(self, opt):
        self.a = Asm(); self.opt = opt; self.diag = opt.get('diag', 0)
    def i(self, s): self.a.i(s)
    def lab(self, s): self.a.label(s)
    def st(self, name):
        m = self.opt.get('st', {})
        if name in m: self.stamp(m[name], True)
    def stamp(self, k, forced=False):
        if k in self.opt.get('st', {}).values() and not forced: return
        if self.diag:
            self.i(f"s_memtime s[{64+4*k}:{65+4*k}]")
            self.i(f"s_memrealtime s[{66+4*k}:{67+4*k}]")

def dry_exit(g, label="L_dry_ret"):
    if g.opt.get('dry', 1):
        g.i(f"s_cmp_lg_u32 s{S_DRY}, 0")
        g.i(f"s_cbranch_scc1 {label}")

def barrier_unless_dry(g, tag):
    dry_exit(g, f"L_nb_{tag}")
    g.i("s_barrier")
    g.lab(f"L_nb_{tag}")

def spin(g, tag, load, want, nlanes_mask=None):
    g.i(f"s_mov_b32 s{S_T3}, 0")
    g.lab(f"L_spin_{tag}")
    g.i(load)
    g.i(f"s_add_u32 s{S_T3}, s{S_T3}, 1")
    g.i("s_waitcnt vmcnt(0)")
    g.i(f"v_cmp_{'gt' if want > 1 else 'ne'}_u32 vcc, {want}, v{V_F}")
    g.i(f"s_cmp_ge_u32 s{S_T3}, {SPIN_MAX}")
    g.i(f"s_cbranch_scc1 L_spun_{tag}")
    g.i(f"s_cbranch_vccnz L_spin_{tag}")
    g.lab(f"L_spun_{tag}")

def entry(g, name):
    a = g.a
    kernel_head(a, name)
    PF = g.opt.get('cpf', 1)
    if PF:
        g.i("s_getpc_b64 s[8:9]")
        g.i("v_lshlrev_b32 v6, 7, v0")
        g.i("s_mov_b32 s10, L_code_end-" + name + "-4")
        g.i("s_mov_b32 s11, 0x20000")
    g.i("s_cmp_ge_u32 s2, 256")
    g.i("s_cbranch_scc1 L_end")
    if PF:
        g.i("buffer_load_dword v246, v6, s[8:11], 0 offen")
    g.stamp(0)
    g.i(f"s_mov_b32 s{S_DRY}, 0")
    g.i(f"s_bfe_u32 s{S_BR}, s2, 0x10002")
    g.i(f"s_mul_i32 s{S_T0}, s{S_BR}, 24")
    g.i(f"s_load_dwordx4 s[{S_M}:{S_M+3}], s[0:1], s{S_T0}")
    g.i(f"s_load_dwordx2 s[{S_M+4}:{S_M+5}], s[0:1], s{S_T0} offset:16")
    g.i("s_load_dwordx4 s[4:7], s[0:1], 48")
    g.i(f"s_load_dwordx2 s[{S_M+6}:{S_M+7}], s[0:1], 64")
    g.i("v_lshrrev_b32 v6, 6, v0")
    g.i("v_and_b32 v0, 63, v0")
    g.i(f"v_readfirstlane_b32 s{S_WAVE}, v6")
    g.i(f"v_lshlrev_b32 v{V_L16}, 4, v0")
    g.i(f"s_bfe_u32 s{S_HP}, s2, 0x10001")
    g.i(f"s_lshl_b32 s{S_HP}, s{S_HP}, 3")
    g.i(f"s_bfe_u32 s{S_T0}, s2, 0x30003")
    g.i(f"s_add_u32 s{S_HP}, s{S_HP}, s{S_T0}")
    g.i(f"s_and_b32 s{S_TB}, s2, 1")
    g.i(f"s_lshl_b32 s{S_TB}, s{S_TB}, 2")
    g.i(f"s_lshr_b32 s{S_T0}, s2, 6")
    g.i(f"s_add_u32 s{S_TB}, s{S_TB}, s{S_T0}")
    g.i(f"s_lshl_b32 s{S_T0}, s{S_TB}, 18")
    g.i(f"s_lshl_b32 s{S_T1}, s{S_BR}, 4")
    g.i(f"s_add_u32 s{S_T1}, s{S_T1}, s{S_HP}")
    g.i(f"s_lshl_b32 s{S_T2}, s{S_T1}, 18")
    g.i(f"s_add_u32 s{S_T2}, s{S_T2}, {WS_KV}")
    g.i(f"s_lshl_b32 s{S_T3}, s{S_BR}, 21")
    g.i(f"s_add_u32 s{S_T3}, s{S_T3}, {WS_O}")
    if g.opt.get('lfirst', 1):
        g.i(f"s_cmp_lt_u32 s{S_WAVE}, 4")
        g.i("s_cbranch_scc1 L_compute")
    else:
        g.i(f"s_cmp_ge_u32 s{S_WAVE}, 4")
        g.i("s_cbranch_scc1 L_loader")

def early_srds(g):
    g.i("s_waitcnt lgkmcnt(0)")
    g.st('karg')
    srd(g.a, S_X, S_M, 256 * 1024, f"s{S_T0}")
    srd(g.a, S_W, S_M + 2, 512 * 1536 * 2)

def late_srds(g):
    a = g.a
    srd(a, S_WO, S_M + 4, 512 * 512 * 2)
    srd(a, S_KV, S_M + 6, 256 * 1024, f"s{S_T2}")
    srd(a, S_O, S_M + 6, 2 << 20, f"s{S_T3}")
    srd(a, S_FL, S_M + 6, 4096, str(WS_FLAG))
    srd(a, S_DBG, 6, 256)
    srd(a, S_OUT, 4, 2048 * 1024 * 2)
    if g.diag:
        g.i(f"s_mov_b32 s96, s{S_M+6}")
        g.i(f"s_mov_b32 s97, s{S_M+7}")

def attn_consts(g):
    g.i(f"s_lshr_b32 s{S_T0}, s{S_WAVE}, 2")
    g.i(f"s_lshl_b32 s{S_T0}, s{S_T0}, 14")
    g.i(f"v_add_u32 v{V_KA}, s{S_T0}, v{V_L16}")
    g.i(f"v_and_b32 v{V_T0}, 15, v0")
    g.i(f"v_lshlrev_b32 v{V_T0}, 4, v{V_T0}")
    g.i(f"v_lshrrev_b32 v{V_T1}, 5, v0")
    g.i(f"v_lshl_add_u32 v{V_T0}, v{V_T1}, 8, v{V_T0}")
    g.i(f"s_add_u32 s{S_T0}, s{S_T0}, 1024")
    g.i(f"v_add_u32 v{V_VA}, s{S_T0}, v{V_T0}")
    g.i(f"v_and_b32 v{V_T0}, 31, v0")
    g.i(f"v_subrev_u32 v{V_T1}, 20, v{V_T0}")
    g.i(f"v_cmp_gt_u32 vcc, 8, v{V_T1}")
    g.i(f"v_mov_b32 v{V_T1}, {L_CONST+16}")
    g.i(f"v_mov_b32 v{V_VX}, {L_CONST+16+64}")
    g.i(f"v_cndmask_b32 v{V_T1}, v{V_T1}, v{V_VX}, vcc")
    g.i(f"v_and_b32 v{V_VX}, 27, v0")
    g.i(f"v_cmp_eq_u32 vcc, 16, v{V_VX}")
    g.i(f"v_subrev_u32 v{V_VX}, 16, v{V_T1}")
    g.i("s_nop 0")
    g.i(f"v_cndmask_b32 v{V_T1}, v{V_T1}, v{V_VX}, vcc")
    g.i(f"v_cmp_gt_u32 vcc, 16, v{V_T0}")
    g.i(f"v_mov_b32 v{V_T0}, {RING}")
    g.i(f"v_mov_b32 v{V_IDX}, 0xdddd")
    g.i(f"v_cndmask_b32 v{V_VA}, v{V_T1}, v{V_VA}, vcc")
    g.i(f"v_cndmask_b32 v{V_VX}, 0, v{V_T0}, vcc")
    g.i(f"v_add_u32 v{V_VX}, v{V_VX}, v{V_VA}")
    g.i("v_mov_b64 v[252:253], -1")
    g.i("v_mov_b64 v[254:255], -1")
    for r in range(0, 32, 2):
        g.i(f"v_mov_b64 v[{V_O[0]+r}:{V_O[0]+r+1}], 0")
    g.i(f"s_lshl_b32 s{S_T0}, s{S_BR}, 4")
    g.i(f"s_add_u32 s{S_T0}, s{S_T0}, s{S_HP}")
    g.i(f"s_lshl_b32 s{S_T0}, s{S_T0}, 7")
    g.i(f"v_and_b32 v6, 31, v0")
    g.i(f"v_lshl_add_u32 v{V_FA}, v6, 2, s{S_T0}")
    g.i(f"v_lshrrev_b32 v{V_T0}, 2, v0")
    g.i(f"v_and_b32 v{V_T0}, 4, v{V_T0}")
    g.i(f"v_and_b32 v{V_T1}, 7, v0")
    g.i(f"v_xor_b32 v{V_T0}, v{V_T0}, v{V_T1}")
    g.i(f"v_lshlrev_b32 v{V_T0}, 4, v{V_T0}")
    g.i(f"v_lshrrev_b32 v{V_T1}, 3, v0")
    g.i(f"v_lshl_add_u32 v{V_WOA}, v{V_T1}, 10, v{V_T0}")

def consts(g):
    g.i(f"s_cmp_lg_u32 s{S_WAVE}, 4")
    g.i("s_cbranch_scc1 L_ld_noconst")
    g.i("v_lshrrev_b32 v6, 2, v0")
    g.i("v_and_b32 v7, 1, v6")
    g.i("v_lshlrev_b32 v7, 9, v7")
    g.i("v_lshrrev_b32 v6, 1, v6")
    g.i("v_lshl_add_u32 v7, v6, 11, v7")
    g.i("v_and_b32 v6, 1, v0")
    g.i("v_lshl_add_u32 v7, v6, 4, v7")
    g.i("v_cmp_eq_u32 vcc, 0, v6")
    g.i("v_and_b32 v6, 2, v0")
    g.i("v_lshl_add_u32 v7, v6, 5, v7")
    g.i("v_mov_b32 v6, 0x3f803f80")
    g.i(f"v_add_u32 v7, {L_CONST}, v7")
    g.i("v_cndmask_b32 v108, 0, v6, vcc")
    g.i("v_cndmask_b32 v109, 0, v6, vcc")
    g.i("v_cndmask_b32 v110, 0, v6, vcc")
    g.i("v_cndmask_b32 v111, 0, v6, vcc")
    g.i("ds_write_b128 v7, v[108:111]")
    g.lab("L_ld_noconst")

def loader(g):
    VX, VW, VT = 100, 104, 112
    LEAD = g.opt.get('lead', 0)
    g.lab("L_loader")
    g.i(f"s_sub_u32 s{S_A}, s{S_WAVE}, 4")
    S_CH, S_TX = S_F, 55
    RM = g.opt.get('rot', 7)
    if RM == 1:
        g.i(f"s_lshl_b32 s{S_CH}, s{S_TB}, 1")
        g.i(f"s_lshr_b32 s{S_T1}, s{S_TB}, 2")
        g.i(f"s_add_u32 s{S_CH}, s{S_CH}, s{S_T1}")
        g.i(f"s_and_b32 s{S_CH}, s{S_CH}, 7")
    elif RM == 2:
        g.i(f"s_mov_b32 s{S_CH}, s{S_TB}")
    elif RM == 7:
        g.i(f"s_and_b32 s{S_T1}, s{S_HP}, 1")
        g.i(f"s_lshl_b32 s{S_T1}, s{S_T1}, 2")
        g.i(f"s_add_u32 s{S_CH}, s{S_TB}, s{S_T1}")
        g.i(f"s_and_b32 s{S_CH}, s{S_CH}, 7")
    elif RM == 8:
        g.i(f"s_lshl_b32 s{S_CH}, s{S_TB}, 1")
        g.i(f"s_bfe_u32 s{S_T1}, s{S_HP}, 0x10001")
        g.i(f"s_add_u32 s{S_CH}, s{S_CH}, s{S_T1}")
        g.i(f"s_and_b32 s{S_CH}, s{S_CH}, 7")
    elif RM == 9:
        g.i(f"s_lshl_b32 s{S_CH}, s{S_TB}, 1")
        g.i(f"s_and_b32 s{S_T1}, s{S_HP}, 3")
        g.i(f"s_add_u32 s{S_CH}, s{S_CH}, s{S_T1}")
        g.i(f"s_and_b32 s{S_CH}, s{S_CH}, 7")
    elif RM == 0:
        g.i(f"s_mov_b32 s{S_CH}, 0")
    elif RM == 6:
        g.i(f"s_lshl_b32 s{S_CH}, s{S_TB}, 1")
        g.i(f"s_add_u32 s{S_CH}, s{S_CH}, s{S_HP}")
        g.i(f"s_and_b32 s{S_CH}, s{S_CH}, 7")
    elif RM == 4:
        g.i(f"s_lshl_b32 s{S_CH}, s{S_TB}, 1")
        g.i(f"s_add_u32 s{S_CH}, s{S_CH}, s{S_HP}")
        g.i(f"s_and_b32 s{S_CH}, s{S_CH}, 3")
        g.i(f"s_lshl_b32 s{S_CH}, s{S_CH}, 1")
    elif RM == 5:
        g.i(f"s_add_u32 s{S_CH}, s{S_TB}, s{S_HP}")
        g.i(f"s_and_b32 s{S_CH}, s{S_CH}, 3")
        g.i(f"s_lshl_b32 s{S_CH}, s{S_CH}, 1")
    elif RM == 3:
        g.i(f"s_lshl_b32 s{S_CH}, s{S_TB}, 1")
        g.i(f"s_and_b32 s{S_T1}, s{S_HP}, 1")
        g.i(f"s_add_u32 s{S_CH}, s{S_CH}, s{S_T1}")
        g.i(f"s_and_b32 s{S_CH}, s{S_CH}, 7")
    g.i(f"v_lshlrev_b32 v{VT}, 10, v0")
    g.i(f"s_and_b32 s{S_TX}, s{S_HP}, 7")
    g.i(f"s_lshl_b32 s{S_TX}, s{S_TX}, 2")
    g.i(f"s_add_u32 s{S_TX}, s{S_TX}, s{S_A}")
    g.i(f"s_lshl_b32 s{S_TX}, s{S_TX}, 13")
    NT = 1 if LEAD else 0
    def touch(ahead):
        if not LEAD: return
        g.i(f"s_add_u32 s{S_T0}, s{S_CH}, {ahead}")
        g.i(f"s_and_b32 s{S_T0}, s{S_T0}, 7")
        g.i(f"s_lshl_b32 s{S_T0}, s{S_T0}, 7")
        g.i(f"s_add_u32 s{S_T0}, s{S_T0}, s{S_TX}")
        g.i("s_mov_b64 exec, 0xff")
        g.i(f"buffer_load_dword v244, v{VT}, s[{S_X}:{S_X+3}], s{S_T0} offen")
        g.i("s_mov_b64 exec, -1")
    g.i("v_lshrrev_b32 v6, 4, v0")
    g.i("v_and_b32 v7, 7, v0")
    g.i("v_xor_b32 v6, v6, v7")
    g.i("v_lshlrev_b32 v6, 4, v6")
    g.i("v_lshrrev_b32 v7, 3, v0")
    g.i(f"v_lshl_add_u32 v{VX}, v7, 10, v6")
    g.i(f"v_xor_b32 v{VX+1}, 64, v{VX}")
    g.i(f"v_add_u32 v{VX+2}, {2*7168}, v{VX}")
    g.i(f"v_add_u32 v{VX+3}, {3*7168}, v{VX+1}")
    g.i(f"v_add_u32 v{VX+1}, 7168, v{VX+1}")
    g.i(f"s_lshl_b32 s{S_B}, s{S_A}, 16")
    g.i(f"s_lshl_b32 s{S_D}, s{S_A}, 13")
    for p in range(3):
        g.i(f"v_add_u32 v6, {64*p}, v0")
        g.i("v_mul_u32_u24 v7, 43691, v6")
        g.i("v_lshrrev_b32 v7, 19, v7")
        g.i("v_mul_u32_u24 v110, 12, v7")
        g.i("v_sub_u32 v6, v6, v110")
        g.i("v_mul_u32_u24 v7, 3072, v7")
        g.i("v_lshrrev_b32 v110, 2, v6")
        g.i(f"v_lshl_add_u32 v7, v110, {6 if g.opt.get('x_wc') else 10}, v7")
        g.i("v_and_b32 v6, 3, v6")
        g.i("v_lshl_add_u32 v7, v6, 4, v7")
        g.i(f"v_subrev_u32 v{VW+p}, {1024*p}, v7")
    g.i(f"s_mul_i32 s{S_C}, s{S_A}, {16*3072}")
    g.i(f"s_lshl_b32 s{S_T1}, s{S_HP}, {7 if g.opt.get('x_wc') else 6}")
    g.i(f"s_add_u32 s{S_C}, s{S_C}, s{S_T1}")
    g.i(f"s_mul_i32 s{S_E}, s{S_A}, 3072")
    g.i(f"s_add_u32 s{S_E}, s{S_E}, {SLOT_W}")
    early_srds(g)
    def issue():
        g.i(f"s_lshl_b32 s{S_T1}, s{S_CH}, 7")
        g.i(f"s_add_u32 s{S_T1}, s{S_T1}, s{S_B}")
        g.i(f"s_mov_b32 m0, s{S_D}")
        g.i(f"s_add_u32 s{S_T0}, s{S_T1}, 32768")
        for p in range(4):
            g.i(f"buffer_load_dwordx4 v{VX+p}, s[{S_X}:{S_X+3}], s{S_T1} offen offset:{1024*p}{g.opt.get('xfl','')} lds")
        g.i(f"s_add_u32 m0, s{S_D}, 4096")
        g.i(f"s_mul_i32 s{S_T1}, s{S_CH}, {64*3072}")
        for p in range(4):
            g.i(f"buffer_load_dwordx4 v{VX+p}, s[{S_X}:{S_X+3}], s{S_T0} offen offset:{1024*p}{g.opt.get('xfl','')} lds")
        g.i(f"s_mov_b32 m0, s{S_E}")
        g.i(f"s_add_u32 s{S_T1}, s{S_T1}, s{S_C}")
        for p in range(3):
            if g.opt.get('x_now'): g.i(f"buffer_load_dword v244, v{VW+p}, s[{S_DBG if False else S_W}:{S_W+3}], s{S_C} offen"); continue
            g.i(f"buffer_load_dwordx4 v{VW+p}, s[{S_W}:{S_W+3}], s{S_T1} offen offset:{1024*p}{g.opt.get('wfl','')} lds")
        g.i(f"s_add_u32 s{S_CH}, s{S_CH}, 1")
        g.i(f"s_and_b32 s{S_CH}, s{S_CH}, 7")
    def next_slot():
        g.i(f"s_add_u32 s{S_D}, s{S_D}, {SLOT}")
        g.i(f"s_add_u32 s{S_E}, s{S_E}, {SLOT}")
        g.i(f"s_cmp_lt_u32 s{S_D}, {3*SLOT}")
        g.i(f"s_cselect_b32 s{S_T0}, 0, {3*SLOT}")
        g.i(f"s_sub_u32 s{S_D}, s{S_D}, s{S_T0}")
        g.i(f"s_sub_u32 s{S_E}, s{S_E}, s{S_T0}")
    issue()
    g.st('ld_c0')
    next_slot(); issue()
    for c in range(2, LEAD): touch(c - 2)
    g.st('ld_c2')
    late_srds(g); attn_consts(g); consts(g)
    g.st('ld_pre')
    PRE = g.opt.get('pre', '')
    n0 = NT * max(LEAD - 2, 0)
    def pre():
        g.i(f"s_lshl_b32 s{S_T0}, s{S_TB}, 14")
        g.i(f"s_and_b32 s{S_T1}, s{S_A}, 1")
        g.i(f"s_lshl_b32 s{S_T1}, s{S_T1}, 13")
        g.i(f"s_add_u32 s{S_T0}, s{S_T0}, s{S_T1}")
        g.i(f"s_lshr_b32 s{S_T1}, s{S_A}, 1")
        g.i(f"s_lshl_b32 s{S_T1}, s{S_T1}, 17")
        g.i(f"s_add_u32 s{S_T0}, s{S_T0}, s{S_T1}")
        if PRE == 'r':
            g.i("v_lshlrev_b32 v6, 7, v0")
            g.i(f"buffer_load_dword v245, v6, s[{S_KV}:{S_KV+3}], s{S_T0} offen sc1")
            return 1
        g.i(f"s_add_u32 s{S_T1}, s{S_T0}, 4096")
        for k in range(8):
            g.i(f"buffer_store_dwordx4 v[{V_O[0]}:{V_O[0]+3}], v{V_L16}, s[{S_KV}:{S_KV+3}], s{S_T1 if k >= 4 else S_T0} offen offset:{1024*(k%4)} sc1")
        return 8
    np_ = 0
    PC = g.opt.get('prec', 1)
    for c, n in ((0, 11 + n0), (1, n0 + 11 + NT)):
        g.i(f"s_waitcnt vmcnt({n + (np_ if c == 1 else 0)})")
        if c == 0: g.st('ld_got0')
        g.i("s_barrier")
        next_slot(); issue(); touch(LEAD - 3)
        if PRE and c == PC: np_ = pre()
    if PRE and PC == 1:
        g.i(f"s_waitcnt vmcnt({11+2*NT+np_})")
        g.i("s_barrier")
        next_slot(); issue(); touch(LEAD - 3)
        g.i(f"s_mov_b32 s{S_IT}, 3")
        g.i(f"s_waitcnt vmcnt({11+2*NT+np_})")
        g.i("s_branch L_ld_loop2")
    g.i(f"s_mov_b32 s{S_IT}, 2")
    g.lab("L_ld_loop")
    g.i(f"s_waitcnt vmcnt({11+2*NT})")
    g.lab("L_ld_loop2")
    g.i("s_barrier")
    next_slot(); issue(); touch(LEAD - 3)
    g.i(f"s_add_u32 s{S_IT}, s{S_IT}, 1")
    g.i(f"s_cmp_lt_u32 s{S_IT}, 6")
    g.i("s_cbranch_scc1 L_ld_loop")
    g.st('ld_iss7')
    g.i(f"s_waitcnt vmcnt({11+2*NT})")
    g.i("s_barrier")
    g.i("s_waitcnt vmcnt(0)")
    g.i("s_barrier")
    g.i(f"s_cmp_lg_u32 s{S_WAVE}, 4")
    g.i("s_cbranch_scc1 L_ld_nocert")
    g.i(f"s_lshl_b32 s{S_T0}, s{S_BR}, 4")
    g.i(f"s_add_u32 s{S_T0}, s{S_T0}, s{S_HP}")
    g.i(f"s_lshl_b32 s{S_T0}, s{S_T0}, 3")
    g.i(f"v_mov_b32 v7, s{S_T0}")
    spin(g, "cert1", f"buffer_load_dword v{V_F}, v7, s[{S_DBG}:{S_DBG+3}], 0 offen sc1", 8)
    g.lab("L_ld_nocert")
    g.i(f"s_lshl_b32 s{S_T0}, s{S_A}, 11")
    g.i(f"s_add_u32 s{S_T0}, s{S_T0}, {L_QX}")
    g.i(f"v_add_u32 v6, s{S_T0}, v{V_L16}")
    attn_setup(g)
    g.i("s_waitcnt lgkmcnt(0)")
    g.i("s_barrier")
    g.i(f"ds_read_b128 {vr(V_Q[0],4)}, v6")
    g.i(f"ds_read_b128 {vr(V_Q[1],4)}, v6 offset:1024")
    g.i("s_branch L_attn")

class LdsQ:
    def __init__(self, g): self.g = g; self.q = []
    def issue(self, tag): self.q.append(tag)
    def need(self, tags):
        idx = max([i for i, t in enumerate(self.q) if t in tags], default=-1)
        if idx >= 0:
            n = len(self.q) - 1 - idx
            self.g.i(f"s_waitcnt lgkmcnt({min(n,15)})")
            self.q = self.q[idx + 1:]

def compute(g):
    g.lab("L_compute")
    g.i("s_waitcnt lgkmcnt(0)")
    late_srds(g)
    g.i(f"s_cmp_lg_u32 s{S_WAVE}, 0")
    g.i("s_cbranch_scc1 L_cp_noclear")
    g.i(f"s_lshl_b32 s{S_T0}, s{S_BR}, 4")
    g.i(f"s_add_u32 s{S_T0}, s{S_T0}, s{S_HP}")
    g.i(f"s_lshl_b32 s{S_T1}, s{S_T0}, 7")
    g.i(f"s_lshl_b32 s{S_T2}, s{S_TB}, 4")
    g.i(f"s_add_u32 s{S_T1}, s{S_T1}, s{S_T2}")
    g.i(f"v_lshl_add_u32 v6, v0, 2, s{S_T1}")
    g.i("v_mov_b32 v100, 0")
    g.i("s_mov_b64 exec, 0xf")
    g.i(f"buffer_store_dword v100, v6, s[{S_FL}:{S_FL+3}], 0 offen sc1")
    g.i("s_mov_b64 exec, -1")
    g.lab("L_cp_noclear")
    attn_consts(g)
    g.i("v_and_b32 v6, 31, v0")
    g.i(f"s_lshl_b32 s{S_T0}, s{S_WAVE}, 13")
    g.i(f"v_lshl_add_u32 v100, v6, 7, s{S_T0}")
    g.i("v_bfe_u32 v6, v0, 1, 3")
    g.i("v_lshrrev_b32 v7, 5, v0")
    g.i("v_xor_b32 v6, v6, v7")
    for s in range(4):
        g.i(f"v_xor_b32 v7, {2*s}, v6")
        g.i(f"v_lshl_add_u32 v{V_XA+s}, v7, 4, v100")
    g.i("v_lshrrev_b32 v6, 5, v0")
    g.i("v_bfe_u32 v7, v0, 2, 2")
    g.i("v_lshl_add_u32 v6, v6, 3, v7")
    g.i("v_mul_u32_u24 v6, 192, v6")
    g.i("v_bfe_u32 v7, v0, 4, 1")
    g.i("v_lshl_add_u32 v6, v7, 5, v6")
    g.i("v_and_b32 v7, 3, v0")
    g.i("v_lshl_add_u32 v6, v7, 3, v6")
    g.i(f"v_add_u32 v{V_WA}, {SLOT_W}, v6")
    for r in range(0, 96, 2):
        g.i(f"v_mov_b64 v[{V_ACC+r}:{V_ACC+r+1}], 0")
    S_A, S_B, S_G1, S_G2 = 56, 57, 58, 59
    KG, KL, VG, VL, QL = 244, 245, 247, 248, 249
    g.i("v_and_b32 v6, 0x33, v0")
    g.i("v_bfe_u32 v7, v0, 2, 1")
    g.i("v_lshl_or_b32 v6, v7, 3, v6")
    g.i("v_bfe_u32 v7, v0, 3, 1")
    g.i("v_lshl_or_b32 v6, v7, 2, v6")
    g.i(f"v_lshlrev_b32 v{KG}, 4, v6")
    g.i(f"s_lshl_b32 s{S_T0}, s{S_WAVE}, 12")
    g.i(f"v_add_u32 v{KL}, s{S_T0}, v{KG}")
    g.i("v_and_b32 v6, 15, v0")
    g.i("v_lshlrev_b32 v6, 4, v6")
    g.i("v_lshrrev_b32 v7, 5, v0")
    g.i("v_lshl_add_u32 v6, v7, 8, v6")
    g.i("v_add_u32 v6, 1024, v6")
    g.i("v_bfe_u32 v7, v0, 4, 1")
    g.i(f"v_lshl_add_u32 v{VG}, v7, 17, v6")
    g.i("v_lshl_add_u32 v6, v7, 14, v6")
    g.i(f"v_add_u32 v{VL}, s{S_T0}, v6")
    g.i(f"s_lshr_b32 s{S_T0}, s{S_T0}, 1")
    g.i(f"s_add_u32 s{S_T0}, s{S_T0}, {L_QX}")
    g.i(f"v_add_u32 v{QL}, s{S_T0}, v{V_L16}")
    if g.opt.get('dry', 1):
        g.i(f"s_cmp_lt_u32 s{S_WAVE}, 2")
        g.i("s_cbranch_scc1 L_dry_done")
        g.i(f"s_mov_b32 s{S_DRY}, 1")
        g.i(f"s_mov_b32 s{S_IT}, 7")
        g.i("s_mov_b64 vcc, 0")
        g.i(f"s_mov_b64 s[{S_M}:{S_M+1}], 0")
        g.i(f"s_mov_b64 s[{S_M+2}:{S_M+3}], 0")
        g.i(f"s_mov_b32 s{S_MK}, 0")
        g.i("s_waitcnt vmcnt(0) lgkmcnt(0)")
        g.i("s_setvskip -1, 0")
        g.i(f"s_cmp_eq_u32 s{S_WAVE}, 2")
        g.i("s_cbranch_scc1 L_at_done")
        g.i("s_branch L_cp_loop")
        g.lab("L_dry_ret")
        g.i("s_setvskip 0, 0")
        g.i("s_mov_b64 exec, -1")
        g.i("s_setprio 0")
        g.i(f"s_mov_b32 s{S_DRY}, 0")
        g.lab("L_dry_done")
    attn_setup(g)
    g.i(f"s_lshl_b32 s{S_T0}, s{S_WAVE}, 12")
    g.i(f"s_lshl_b32 s{S_G1}, s{S_TB}, 14")
    g.i(f"s_add_u32 s{S_G1}, s{S_G1}, s{S_T0}")
    g.i(f"s_add_u32 s{S_G2}, s{S_G1}, 131072")
    g.i(f"s_mov_b32 s{S_IT}, 0")
    g.i(f"s_mov_b32 s{S_A}, 0")
    g.i(f"s_mov_b32 s{S_B}, {SLOT}")
    q = LdsQ(g)
    def rd(setn, s, which):
        F = V_FR[setn]
        if which[0] == 'x':
            i = int(which[1])
            g.i(f"ds_read_b128 {vr(F+4*i,4)}, v{V_XA+s} offset:{4096*i}")
        else:
            p = {'q': 0, 'k': 1, 'v': 2}[which[0]]; i = int(which[1])
            g.i(f"ds_read_b64_tr_b16 {vr(F+8+4*p+2*i,2)}, v{V_WA} offset:{s*3072+i*768+p*64}")
        q.issue((setn, which))
    ORDER = ['x0', 'q0', 'q1', 'x1', 'k0', 'k1', 'v0', 'v1']
    def mf(setn, n):
        F = V_FR[setn]; p, i = n // 2, n % 2
        w, x = vr(F + 8 + 4 * p, 4), vr(F + 4 * i, 4)
        nm = 'qkv'[p]
        q.need({(setn, f'x{i}'), (setn, nm + '0'), (setn, nm + '1')})
        A, B = (w, x) if p < 2 else (x, w)
        acc = vr(V_ACC + 16 * n, 16)
        if g.opt.get('x_m16'):
            for hh in range(2):
                a4 = vr(V_ACC + 16 * n + 4 * hh, 4)
                g.i(f"v_mfma_f32_16x16x32_bf16 {a4}, {A}, {B}, {a4}")
        else:
            g.i(f"v_mfma_f32_32x32x16_bf16 {acc}, {A}, {B}, {acc}")
    def step(cur, nxt_s):
        plan = [ORDER[0:2], ORDER[2:4], ORDER[4:6], ORDER[6:8], [], []]
        for n in range(6):
            if cur is not None: mf(cur, n)
            if nxt_s is not None:
                for w in plan[n]: rd(1 - (cur if cur is not None else 1), nxt_s, w)
    g.i(f"s_cmp_lg_u32 s{S_WAVE}, 0")
    g.i("s_cbranch_scc1 L_cp_nocount")
    g.i(f"s_lshl_b32 s{S_T0}, s{S_BR}, 4")
    g.i(f"s_add_u32 s{S_T0}, s{S_T0}, s{S_HP}")
    g.i(f"s_lshl_b32 s{S_T0}, s{S_T0}, 3")
    g.i("s_mov_b64 exec, 1")
    g.i(f"v_mov_b32 v6, s{S_T0}")
    g.i("v_mov_b32 v7, 1")
    g.i(f"s_waitcnt vmcnt(0)")
    g.i(f"buffer_atomic_add v7, v6, s[{S_DBG}:{S_DBG+3}], 0 offen sc1")
    g.i("s_mov_b64 exec, -1")
    g.lab("L_cp_nocount")
    def prew():
        g.i(f"s_lshl_b32 s{S_T0}, s{S_TB}, 14")
        g.i(f"s_lshl_b32 s{S_T1}, s{S_WAVE}, 12")
        g.i(f"s_add_u32 s{S_T0}, s{S_T0}, s{S_T1}")
        g.i(f"s_add_u32 s{S_T1}, s{S_T0}, 131072")
        for k in range(8):
            g.i(f"buffer_store_dwordx4 v[{V_O[0]}:{V_O[0]+3}], v{V_L16}, s[{S_KV}:{S_KV+3}], s{S_T1 if k >= 4 else S_T0} offen offset:{1024*(k%4)} sc1")
    if g.opt.get('prew') == 1: prew()
    g.st('cp_pre')
    g.i("s_barrier")
    g.stamp(1)
    if g.opt.get('prew') == 2: prew()
    step(None, 0)
    g.lab("L_cp_loop")
    q.q = [(0, w) for w in ORDER]
    step(0, 1); step(1, 2); step(0, 3)
    g.i(f"s_add_u32 s{S_A}, s{S_A}, 1")
    g.i(f"s_cmp_eq_u32 s{S_A}, 3")
    g.i(f"s_cselect_b32 s{S_T0}, {(-2*SLOT) & 0xffffffff}, s{S_B}")
    g.i(f"s_cselect_b32 s{S_A}, 0, s{S_A}")
    g.i(f"s_add_u32 s{S_IT}, s{S_IT}, 1")
    g.i(f"s_cmp_eq_u32 s{S_IT}, 8")
    g.i("s_cbranch_scc1 L_cp_last")
    g.i("s_waitcnt lgkmcnt(0)")
    q.q = []
    g.i("s_barrier")
    for r in range(5):
        g.i(f"v_add_u32 v{V_XA+r}, s{S_T0}, v{V_XA+r}")
    step(1, 0)
    g.i("s_branch L_cp_loop")
    g.lab("L_cp_last")
    q.q = [(1, w) for w in ORDER]
    step(1, None)
    g.stamp(2)
    g.i(f"s_mov_b32 s{S_T1}, {hex(QSCALE)}")
    g.i(f"s_mov_b32 s{S_T2}, s{S_T1}")
    g.i("s_nop 5")
    KVS = g.opt.get('kvs', ' sc1')
    T = 204
    n = 0
    for i in range(2):
        A = V_ACC + 16 * (2 + i)
        for hd in range(2):
            for r in range(4):
                g.i(f"v_cvt_pk_bf16_f32 v{T+4*n+r}, v{A+8*hd+2*r}, v{A+8*hd+2*r+1}")
            g.i(f"buffer_store_dwordx4 {vr(T+4*n,4)}, v{KG}, s[{S_KV}:{S_KV+3}], s{S_G2 if hd else S_G1} offen offset:{2048*i}{KVS}")
            g.i(f"ds_write_b128 v{KL}, {vr(T+4*n,4)} offset:{16384*hd+2048*i}")
            n += 1
    for i in range(2):
        A = V_ACC + 16 * (4 + i)
        for gr in range(2):
            for r in range(4):
                g.i(f"v_cvt_pk_bf16_f32 v{T+4*n+r}, v{A+8*gr+2*r}, v{A+8*gr+2*r+1}")
            g.i(f"buffer_store_dwordx4 {vr(T+4*n,4)}, v{VG}, s[{S_KV}:{S_KV+3}], s{S_G1} offen offset:{2048*i+512*gr}{KVS}")
            g.i(f"ds_write_b128 v{VL}, {vr(T+4*n,4)} offset:{2048*i+512*gr}")
            n += 1
    for i in range(2):
        A = V_ACC + 16 * i
        for r in range(8, 16, 2):
            g.i(f"v_pk_mul_f32 v[{A+r}:{A+r+1}], v[{A+r}:{A+r+1}], s[{S_T0+1}:{S_T0+2}]")
        for r in range(4):
            g.i(f"v_cvt_pk_bf16_f32 v{A+8+r}, v{A+8+2*r}, v{A+8+2*r+1}")
        g.i(f"ds_write_b128 v{QL}, {vr(A+8,4)} offset:{1024*i}")
    for i in range(2):
        A = V_ACC + 16 * i
        for r in range(0, 8, 2):
            g.i(f"v_pk_mul_f32 v[{A+r}:{A+r+1}], v[{A+r}:{A+r+1}], s[{S_T0+1}:{S_T0+2}]")
        for r in range(4):
            g.i(f"v_cvt_pk_bf16_f32 v{V_Q[i]+r}, v{A+2*r}, v{A+2*r+1}")
    g.i("s_waitcnt lgkmcnt(0)")
    barrier_unless_dry(g, "b8")

U = 8
S_OA, S_OB = S_M + 6, S_M + 7
S_MK = S_M + 5
S_KV2 = S_X
S_KO = [None, 4, 5, 6, 7, 12, 13, 14]
S_LM = [[49, 50], [51, 52]]
V_VB = 4

def spin_mask(g, tag, load):
    g.i(f"s_mov_b32 s{S_T3}, 0")
    g.lab(f"L_spin_{tag}")
    g.i(load)
    g.i(f"s_add_u32 s{S_T3}, s{S_T3}, 1")
    g.i("s_waitcnt vmcnt(0)")
    g.i(f"v_cmp_ne_u32 vcc, 1, v{V_F}")
    g.i(f"s_cmp_ge_u32 s{S_T3}, {SPIN_MAX}")
    g.i(f"s_cbranch_scc1 L_olr_{tag}")
    g.i(f"s_and_b32 vcc_lo, vcc_lo, s{S_MK}")
    g.i(f"s_cbranch_scc1 L_spin_{tag}")

def attn_setup(g):
    g.i(f"s_add_u32 s{S_KV2}, s{S_KV}, 131072")
    g.i(f"s_addc_u32 s{S_KV2+1}, s{S_KV+1}, 0")
    g.i(f"s_mov_b32 s{S_KV2+2}, 131072")
    g.i(f"s_mov_b32 s{S_KV2+3}, 0x20000")
    g.i(f"s_lshl_b32 s{S_LM[0][0]}, s{S_WAVE}, 11")
    g.i(f"s_add_u32 s{S_LM[0][1]}, s{S_LM[0][0]}, 16384")
    g.i(f"s_add_u32 s{S_LM[1][0]}, s{S_LM[0][0]}, {RING}")
    g.i(f"s_add_u32 s{S_LM[1][1]}, s{S_LM[0][0]}, {RING+16384}")
    g.i(f"s_and_b32 s{S_T1}, s{S_TB}, 4")
    g.i(f"s_xor_b32 s{S_T2}, s{S_T1}, 4")
    for i in range(1, 8):
        g.i(f"s_add_u32 s{S_T0}, s{S_TB}, {i}")
        g.i(f"s_and_b32 s{S_T0}, s{S_T0}, 3")
        g.i(f"s_or_b32 s{S_T0}, s{S_T0}, s{S_T1 if i < 4 else S_T2}")
        if i == 1:
            g.i(f"s_lshl_b32 s{S_T3}, s{S_T0}, 2")
            g.i(f"s_lshl_b32 s{S_MK}, 15, s{S_T3}")
        g.i(f"s_lshl_b32 s{S_T0}, s{S_T0}, 14")
        g.i(f"s_add_u32 s{S_KO[i]}, s{S_T0}, s{S_LM[0][0]}")
    g.i(f"s_and_b32 s{S_F}, s{S_HP}, 7")
    g.i(f"s_lshl_b32 s{S_T0}, s{S_F}, 7")
    g.i(f"s_lshl_b32 s55, s{S_WAVE}, 16")
    g.i(f"s_add_u32 s55, s55, s{S_T0}")
    g.i(f"s_lshl_b32 s{S_E}, s{S_WAVE}, 13")
    g.i(f"s_add_u32 s{S_E}, s{S_E}, {L_WO}")
    g.i(f"s_and_b32 s{S_T0}, s{S_WAVE}, 3")
    g.i(f"s_lshl_b32 s{S_T0}, s{S_T0}, 1")
    g.i(f"s_lshl_b32 s{S_T1}, s{S_TB}, 3")
    g.i(f"s_add_u32 s{S_T0}, s{S_T0}, s{S_T1}")
    g.i(f"s_lshl_b32 s{S_OA}, s{S_T0}, 15")
    g.i(f"s_lshr_b32 s{S_T1}, s{S_WAVE}, 2")
    g.i(f"s_lshl_b32 s{S_T2}, s{S_HP}, 1")
    g.i(f"s_add_u32 s{S_T1}, s{S_T1}, s{S_T2}")
    g.i(f"s_lshl_b32 s{S_T2}, s{S_T1}, 10")
    g.i(f"s_add_u32 s{S_OA}, s{S_OA}, s{S_T2}")
    g.i(f"s_add_u32 s{S_OB}, s{S_OA}, 32768")

def attention(g):
    opt = g.opt
    g.lab("L_attn")
    g.stamp(3)
    g.i(f"ds_read_b128 {vr(V_K,4)}, v{V_KA}")
    g.i(f"ds_read_b128 {vr(V_V[0],4)}, v{V_VA}")
    g.i(f"ds_read_b128 {vr(V_V[0]+4,4)}, v{V_VA} offset:512")
    g.i("s_setprio 3")
    g.i("s_waitcnt lgkmcnt(2)")
    g.i(f"v_mfma_f32_32x32x16_bf16 {vr(V_S[0],16)}, {vr(V_K,4)}, {vr(V_Q[0],4)}, 0")
    dry_exit(g)
    g.i("s_nop 9")
    g.i("s_waitcnt lgkmcnt(0)")
    poll = f"buffer_load_dword v{V_F}, v{V_FA}, s[{S_FL}:{S_FL+3}], 0 offen sc1"
    side = []
    ev = {}
    def at(it, p, slot, *ins): ev.setdefault((it, p, slot), []).extend(ins)
    def kv(i, n):
        return f"buffer_load_dwordx4 v{V_L16}, {sr(S_KV2 if n >= 2 else S_KV, 4)}, s{S_KO[i]} offen offset:{1024*(n%2)}{opt.get('kvl', ' sc1')} lds"
    def check(tag, n):
        def f():
            g.i(f"s_waitcnt vmcnt({n})")
            g.i(f"v_cmp_ne_u32 vcc, 1, v{V_F}")
            g.i(f"s_nop {opt.get('x_nop', 0)}")
            g.i(f"s_and_b32 vcc_lo, vcc_lo, s{S_MK}")
            g.i(f"s_cbranch_scc1 L_ol_{tag}")
            g.lab(f"L_olr_{tag}")
            if opt.get('inv'):
                g.i("buffer_inv sc1")
                g.i("s_waitcnt vmcnt(0)")
            side.append((tag, lambda: spin_mask(g, tag, poll)))
        return f
    def publish():
        g.i(f"s_cmp_ge_u32 s{S_WAVE}, 4")
        g.i("s_cbranch_scc1 L_at_nopub")
        g.i(f"s_lshl_b32 s{S_T0}, s{S_TB}, 2")
        g.i(f"s_add_u32 s{S_T0}, s{S_T0}, s{S_WAVE}")
        g.i(f"s_lshl_b64 exec, 1, s{S_T0}")
        g.i(f"v_mov_b32 v{V_F}, 1")
        g.st('pub_pre')
        if opt.get('wbl2'):
            g.i("s_waitcnt vmcnt(0)")
            g.i("buffer_wbl2 sc1")
        g.i("s_waitcnt vmcnt(0)")
        g.st('pub_ack')
        g.i(f"buffer_store_dword v{V_F}, v{V_FA}, s[{S_FL}:{S_FL+3}], 0 offen sc1")
        g.i("s_mov_b64 exec, -1")
        g.lab("L_at_nopub")
    def count():
        g.i(f"s_cmp_lg_u32 s{S_WAVE}, 7")
        g.i("s_cbranch_scc1 L_at_nocnt")
        g.i(f"s_lshl_b32 s{S_T0}, s{S_BR}, 4")
        g.i(f"s_add_u32 s{S_T0}, s{S_T0}, s{S_HP}")
        g.i(f"s_lshl_b32 s{S_T0}, s{S_T0}, 3")
        g.i("s_mov_b64 exec, 1")
        g.i(f"v_mov_b32 v246, s{S_T0}")
        g.i("v_mov_b32 v247, 1")
        g.i(f"buffer_atomic_add v247, v246, s[{S_DBG}:{S_DBG+3}], 0 offen offset:4 sc1")
        g.i("s_mov_b64 exec, -1")
        g.lab("L_at_nocnt")
    pp, pi0, pc0, pi1 = opt.get('ev', (0, 7, 9, 11))
    at(0, pp, 'p1', publish)
    at(0, pi0, 'qk', poll)
    at(0, pc0, 'qk', check("kv0", 0), lambda: g.st('chk_ok'), f"s_mov_b32 m0, s{S_LM[1][0]}", f"s_lshr_b32 s{S_T0}, s{S_TB}, 2",
       kv(1, 0), kv(1, 1), f"s_mov_b32 m0, s{S_LM[1][1]}", f"s_lshl_b32 s{S_T0}, s{S_T0}, 4", kv(1, 2), kv(1, 3),
       f"s_lshl_b32 s{S_MK}, 0xffff, s{S_T0}")
    at(0, pi1, 'qk', poll)
    late = {i: 0 for i in range(8)}
    dp = opt.get('dma', (1, 3, 5, 7))
    for i in range(1, 7):
        sl = (i + 1) % 2
        at(i, dp[0] - 1, 'p2x', f"s_mov_b32 m0, s{S_LM[sl][0]}")
        at(i, dp[0], 'qk', kv(i + 1, 0))
        at(i, dp[1], 'qk', kv(i + 1, 1))
        at(i, dp[2], 'p2', f"s_mov_b32 m0, s{S_LM[sl][1]}")
        at(i, dp[2], 'qk', kv(i + 1, 2))
        at(i, dp[3], 'qk', kv(i + 1, 3))
    CK2 = opt.get('ck2', 2)
    at(CK2, 7, 'p1', poll)
    wp = opt.get('wop', (9, 11))
    for i in range(1, 5):
        for k, p in enumerate(wp):
            at(i, p, 'p2', f"s_add_u32 m0, s{S_E}, {(2*(i-1)+k)*1024}")
            at(i, p, 'qk', f"buffer_load_dwordx4 v{V_WOA}, s[{S_WO}:{S_WO+3}], s55 offen lds")
            at(i, p, 'p1', "s_add_u32 s55, s55, 8192")
        late[i] += 2
    for k, so in enumerate((S_OA, S_OB)):
        at(5, 9 + 2 * k, 'qk', f"buffer_store_dwordx4 v[252:255], v{V_L16}, s[{S_O}:{S_O+3}], s{so} offen sc1")
    late[5] += 2
    at(7, 1, 'qk', count)
    if opt.get('x_late0'): late = {i: 0 for i in range(8)}
    prio = opt.get('prio', {0: 3, 5: 2, 10: 1, 13: 0})
    for i in range(8):
        for p, v in prio.items():
            ii, q = (i, p - 1) if p else (i - 1, 15)
            if ii >= 0: at(ii, q, 'p1', f"s_setprio {v}")
    def emit(it, p, slot):
        for x in ev.pop((it, p, slot), []):
            x() if callable(x) else g.i(x)
    p2, pq, p1 = opt.get('pos', (1, 5, 10))
    for it in range(8):
        if opt.get('itst'):
            g.i("s_memtime s[98:99]")
            g.i("s_waitcnt lgkmcnt(0)")
            g.i(f"v_writelane_b32 v250, s98, {it}")
        for p in range(2 * U):
            b, t = p % 2, p // 2
            S, So = V_S[b], V_S[1 - b]
            nt = (t + 1) % U
            sl = (it + (t == U - 1)) % 2
            VA = V_VB if sl else V_VA
            last = it == 7 and t == U - 1
            for e in range(16):
                g.i(f"v_exp_f32 v{S+e}, v{S+e}")
                if e == p2:
                    tp = (p - 1) // 2
                    if it or p:
                        g.i(f"v_smfmac_f32_32x32x32_bf16 {vr(V_O[1-b],16)}, {vr(V_V[tp%2]+4,4)}, {vr(So+8,8)}, v{V_IDX}")
                    emit(it, p, 'p2x')
                    if b == 0:
                        if t == U - 1 and it < 7:
                            if it == 0: check("kv1", 0)(); g.st('chk1_ok'); g.i(f"s_mov_b32 s{S_MK}, -1")
                            elif it == CK2: check("kv2", late[it])()
                            else: g.i(f"s_waitcnt vmcnt({late[it]})")
                            g.i("s_barrier")
                        if not last: g.i(f"ds_read_b128 {vr(V_V[(t+1)%2],4)}, v{VA} offset:{nt*2048}")
                    elif not last:
                        g.i("s_waitcnt lgkmcnt(1)")
                    emit(it, p, 'p2')
                if e == pq:
                    if not (last and b):
                        g.i(f"v_mfma_f32_32x32x16_bf16 {vr(So,16)}, {vr(V_K,4)}, {vr(V_Q[1-b],4)}, 0")
                    if b == 0 and not last:
                        g.i(f"ds_read_b128 {vr(V_K,4)}, v{V_KA} offset:{sl*RING+nt*2048}")
                    emit(it, p, 'qk')
                if e == p1:
                    g.i(f"v_smfmac_f32_32x32x32_bf16 {vr(V_O[b],16)}, {vr(V_V[t%2],4)}, {vr(S,8)}, v{V_IDX}")
                    if b == 0 and not last:
                        g.i(f"ds_read_b128 {vr(V_V[(t+1)%2]+4,4)}, v{VA} offset:{nt*2048+512}")
                    elif not last:
                        g.i("s_waitcnt lgkmcnt(0)")
                    emit(it, p, 'p1')
    assert not ev, ev
    g.side = side
    g.lab("L_at_done")
    g.i("s_nop 1")
    g.i(f"v_smfmac_f32_32x32x32_bf16 {vr(V_O[1],16)}, {vr(V_V[1]+4,4)}, {vr(V_S[1]+8,8)}, v{V_IDX}")
    g.stamp(4)
    if opt.get('itst'):
        g.i("s_memtime s[98:99]")
        g.i("s_waitcnt lgkmcnt(0)")
        g.i(f"v_writelane_b32 v250, s98, 8")
    g.i(f"s_mov_b32 s{S_T0}, 0x2b800000")
    g.i(f"s_mov_b32 s{S_T1}, 0x53800000")
    g.i(f"s_mov_b32 s{S_T2}, 0x7f800000")
    for q in range(2):
        O = V_O[q]
        g.i(f"v_add_f32 v6, abs(v{O}), abs(v{O+1})")
        g.i(f"v_add_f32 v7, abs(v{O+2}), abs(v{O+3})")
        for r in range(4, 8, 2):
            g.i(f"v_add_f32 v6, v6, abs(v{O+r})")
            g.i(f"v_add_f32 v7, v7, abs(v{O+r+1})")
        g.i(f"v_add_f32 v6, v6, v7")
        g.i(f"v_cmp_nle_f32 s[{S_M}:{S_M+1}], s{S_T0}, v{O+8}")
        g.i(f"v_cmp_nge_f32 s[{S_M+2}:{S_M+3}], s{S_T1}, v{O+8}")
        g.i(f"v_cmp_ngt_f32 vcc, s{S_T2}, v6")
        g.i(f"v_rcp_f32 v{V_S[0]+q}, v{O+8}")
        g.i(f"s_or_b64 s[{S_M}:{S_M+1}], s[{S_M}:{S_M+1}], s[{S_M+2}:{S_M+3}]")
        g.i(f"s_or_b64 s[{S_M}:{S_M+1}], s[{S_M}:{S_M+1}], vcc")
        g.i("s_branch L_fallback" if opt.get('force_fallback') else "s_cbranch_scc1 L_fallback")
    g.lab("L_at_store")
    for q in range(2):
        O = V_O[q]
        for r in range(8):
            g.i(f"v_mul_f32 v{O+r}, v{O+r}, v{V_S[0]+q}")
        for r in range(4):
            g.i(f"v_cvt_pk_bf16_f32 v{O+r}, v{O+2*r}, v{O+2*r+1}")
        g.i(f"buffer_store_dwordx4 {vr(O,4)}, v{V_L16}, s[{S_O}:{S_O+3}], s{S_OB if q else S_OA} offen sc1")

P_WO = 100
P_OF = 8
def outproj(g):
    opt = g.opt
    A0, A1 = 228, 72
    WA0, WA1, RA, OA = 244, 245, 246, 247
    g.i(f"s_lshr_b32 s{S_E}, s{S_WAVE}, 2")
    g.i(f"s_lshl_b32 s{S_T0}, s{S_E}, 15")
    g.i(f"s_add_u32 s{S_T0}, s{S_T0}, {L_WO}")
    g.i("v_lshrrev_b32 v6, 5, v0")
    g.i("v_bfe_u32 v7, v0, 2, 2")
    g.i("v_lshl_add_u32 v6, v6, 2, v7")
    g.i(f"v_lshl_add_u32 v6, v6, 7, s{S_T0}")
    g.i("v_bfe_u32 v7, v0, 3, 2")
    g.i("v_and_b32 v2, 1, v7")
    g.i("v_lshl_add_u32 v6, v2, 6, v6")
    g.i("v_lshrrev_b32 v7, 1, v7")
    g.i("v_lshl_add_u32 v6, v7, 5, v6")
    g.i("v_and_b32 v7, 3, v0")
    g.i(f"v_lshl_add_u32 v6, v7, 3, v6")
    g.i(f"s_lshl_b32 s{S_T0}, s{S_E}, 6")
    g.i(f"v_xor_b32 v{WA0}, s{S_T0}, v6")
    g.i(f"v_xor_b32 v{WA1}, 64, v{WA0}")
    n = 0
    def wo_reads(s0, s1):
        for s in range(s0, s1):
            for f in range(2):
                for i in range(2):
                    g.i(f"ds_read_b64_tr_b16 {vr(P_WO+8*s+4*f+2*i,2)}, v{WA1 if f else WA0} offset:{s*2048+i*1024}")
    g.stamp(5)
    g.i(f"s_lshl_b32 s{S_T0}, s{S_BR}, 7")
    g.i("v_and_b32 v6, 15, v0")
    g.i(f"v_lshl_add_u32 v4, v6, 3, s{S_T0}")
    g.i(f"buffer_load_dword v5, v4, s[{S_DBG}:{S_DBG+3}], 0 offen offset:4 sc1")
    for s0 in range(0, 16, 3):
        if s0: g.i("s_waitcnt lgkmcnt(2)")
        wo_reads(s0, min(s0 + 3, 16))
    g.i(f"s_lshr_b32 s{S_T0}, s{S_HP}, 3")
    g.i(f"s_lshl_b32 s{S_T0}, s{S_T0}, 2")
    g.i(f"s_and_b32 s{S_T1}, s{S_WAVE}, 3")
    g.i(f"s_add_u32 s{S_A}, s{S_T0}, s{S_T1}")
    g.i(f"s_lshl_b32 s{S_T0}, s{S_TB}, 3")
    g.i(f"s_add_u32 s{S_A}, s{S_A}, s{S_T0}")
    g.i(f"s_lshl_b32 s{S_B}, s{S_A}, 15")
    g.i(f"s_lshl_b32 s{S_T0}, s{S_E}, 14")
    g.i(f"s_add_u32 s{S_B}, s{S_B}, s{S_T0}")
    g.i(f"s_add_u32 s{S_C}, s{S_B}, 4096")
    g.i(f"s_add_u32 s{S_D}, s{S_B}, 8192")
    g.i(f"s_add_u32 s{S_IT}, s{S_B}, 12288")
    g.i(f"v_lshlrev_b32 v2, 10, v6")
    g.i(f"v_add_u32 v2, 1020, v2")
    g.i(f"s_lshl_b32 s{S_T0}, s{S_WAVE}, 12")
    g.i(f"v_add_u32 v{RA}, s{S_T0}, v{V_L16}")
    g.i("v_and_b32 v6, 31, v0")
    g.i("v_lshlrev_b32 v6, 11, v6")
    g.i("v_lshrrev_b32 v7, 5, v0")
    g.i(f"v_lshl_add_u32 v{OA}, v7, 4, v6")
    g.i(f"s_lshl_b32 s{S_A}, s{S_A}, 16")
    g.i(f"s_lshl_b32 s{S_T0}, s{S_BR}, 10")
    g.i(f"s_add_u32 s{S_A}, s{S_A}, s{S_T0}")
    g.i(f"s_lshl_b32 s{S_T0}, s{S_F}, 7")
    g.i(f"s_add_u32 s{S_A}, s{S_A}, s{S_T0}")
    g.i(f"s_lshl_b32 s{S_T0}, s{S_E}, 6")
    g.i(f"s_add_u32 s{S_A}, s{S_A}, s{S_T0}")
    g.i(f"s_mov_b32 s{S_T3}, 0")
    g.lab("L_spin_c")
    g.i("s_waitcnt vmcnt(0)")
    g.i("v_cmp_gt_u32 vcc, 8, v5")
    g.i(f"s_add_u32 s{S_T3}, s{S_T3}, 1")
    g.i("s_cbranch_vccz L_spin_o")
    g.i(f"buffer_load_dword v5, v4, s[{S_DBG}:{S_DBG+3}], 0 offen offset:4 sc1")
    g.i(f"s_cmp_lt_u32 s{S_T3}, {SPIN_MAX}")
    g.i("s_cbranch_scc1 L_spin_c")
    g.lab("L_spin_o")
    if opt.get('probe', 1):
        g.i("s_mov_b64 exec, 0xffff")
        g.i(f"buffer_load_dword v3, v2, s[{S_O}:{S_O+3}], s{S_B} offen sc1")
        g.i(f"s_add_u32 s{S_T3}, s{S_T3}, 1")
        g.i("s_waitcnt vmcnt(0)")
        g.i("v_cmp_eq_u32 vcc, -1, v3")
        g.i("s_mov_b64 exec, -1")
        g.i(f"s_cmp_ge_u32 s{S_T3}, {SPIN_MAX}")
        g.i("s_cbranch_scc1 L_spun_o")
        if opt.get('sleep'): g.i(f"s_sleep {opt['sleep']}")
        g.i("s_cbranch_vccnz L_spin_o")
    else:
        g.i(f"s_add_u32 s{S_T3}, s{S_T3}, 1")
    g.lab("L_spun_o")
    g.stamp(6)
    for s in range(16):
        so = (S_B, S_C, S_D, S_IT)[s // 4]
        g.i(f"buffer_load_dwordx4 {vr(P_OF+4*s,4)}, v{V_L16}, s[{S_O}:{S_O+3}], s{so} offen offset:{1024*(s%4)} sc1")
    g.i("v_mov_b32 v3, 0")
    g.i("s_waitcnt lgkmcnt(0)")
    for s in range(16):
        g.i(f"s_waitcnt vmcnt({15-s})")
        for f, A in ((1, A1), (0, A0)):
            g.i(f"v_mfma_f32_32x32x16_bf16 {vr(A,16)}, {vr(P_WO+8*s+4*f,4)}, {vr(P_OF+4*s,4)}, {vr(A,16) if s else 0}")
            g.i(f"v_max3_u32 v3, v3, v{P_OF+4*s+2*f}, v{P_OF+4*s+2*f+1}")
    g.i("v_cmp_eq_u32 vcc, -1, v3")
    g.i(f"s_cmp_ge_u32 s{S_T3}, {SPIN_MAX}")
    g.i("s_cbranch_scc1 L_op_go")
    g.i("s_cbranch_vccnz L_spin_o")
    g.lab("L_op_go")
    g.i("s_nop 5")
    for r in range(4):
        g.i(f"ds_write_b128 v{RA}, {vr(A1+4*r,4)} offset:{1024*r}")
    g.i("s_waitcnt lgkmcnt(0)")
    g.i(f"v_xor_b32 v{RA}, 16384, v{RA}")
    barrier_unless_dry(g, "b9")
    for r in range(4):
        g.i(f"ds_read_b128 {vr(P_OF+4*r,4)}, v{RA} offset:{1024*r}")
    for r in range(4):
        g.i(f"s_waitcnt lgkmcnt({3-r})")
        for k in range(4):
            g.i(f"v_add_f32 v{A0+4*r+k}, v{A0+4*r+k}, v{P_OF+4*r+k}")
        for k in range(2):
            g.i(f"v_cvt_pk_bf16_f32 v{24+2*r+k}, v{A0+4*r+2*k}, v{A0+4*r+2*k+1}")
        if r % 2:
            g.i("s_nop 1")
            g.i(f"v_permlane32_swap_b32 v{24+2*r-2}, v{24+2*r}")
            g.i(f"v_permlane32_swap_b32 v{24+2*r-1}, v{24+2*r+1}")
            g.i(f"buffer_store_dwordx4 {vr(24+2*r-2,4)}, v{OA}, s[{S_OUT}:{S_OUT+3}], s{S_A} offen offset:{16*(r-1)}{opt.get('outs','')}")
    dry_exit(g)
    if g.diag:
        g.i("s_waitcnt vmcnt(0)")
        g.stamp(7)
        g.i("s_waitcnt lgkmcnt(0)")
        if g.diag == 3:
            a_, b_, K = opt['leak']
            if a_ in (1, 2) or b_ in (1, 2):
                g.i(f"s_cmp_ge_u32 s{S_WAVE}, 4")
                g.i("s_cbranch_scc1 L_end")
            g.i(f"s_sub_u32 s{S_T0}, s{66+4*b_}, s{66+4*a_}")
            g.i(f"s_mul_i32 s{S_T0}, s{S_T0}, {K}")
            g.lab("L_leak")
            g.i("s_memrealtime s[98:99]")
            g.i("s_waitcnt lgkmcnt(0)")
            g.i(f"s_sub_u32 s{S_T1}, s98, s{66+4*7}")
            g.i(f"s_cmp_lt_u32 s{S_T1}, s{S_T0}")
            g.i("s_cbranch_scc1 L_leak")
            g.i("s_endpgm")
        if g.diag == 2:
            g.i(f"s_cmp_ge_u32 s{S_WAVE}, 4")
            g.i("s_cbranch_scc1 L_end")
            g.i("s_mov_b64 exec, 1")
            for k in range(1, 8):
                g.i(f"s_sub_u32 s{S_T0}, s{66+4*k}, s66")
                g.i(f"v_mov_b32 v6, s{S_T0}")
                g.i(f"v_mov_b32 v7, {8*k+4}")
                g.i(f"buffer_atomic_umax v6, v7, s[{S_DBG}:{S_DBG+3}], 0 offen sc1")
            g.i(f"s_sub_u32 s{S_T0}, s{64+4*4}, s{64+4*3}")
            g.i(f"v_mov_b32 v6, s{S_T0}")
            g.i(f"v_mov_b32 v7, 4")
            g.i(f"buffer_atomic_umax v6, v7, s[{S_DBG}:{S_DBG+3}], 0 offen sc1")
            g.i("s_endpgm")
        g.i(f"s_lshl_b32 s{S_T0}, s2, 3")
        g.i(f"s_add_u32 s{S_T0}, s{S_T0}, s{S_WAVE}")
        g.i(f"s_lshl_b32 s{S_T0}, s{S_T0}, 7")
        g.i(f"s_add_u32 s{S_T0}, s{S_T0}, {WS_STAMP}")
        srd(g.a, S_X, 96, 128, f"s{S_T0}")
        for k in range(32):
            g.i(f"v_mov_b32 v{36+k}, s{64+k}")
        g.i("v_mov_b32 v6, 0")
        for k in range(8):
            g.i(f"buffer_store_dwordx4 {vr(36+4*k,4)}, v6, s[{S_X}:{S_X+3}], 0 offen offset:{16*k}")
        if opt.get('itst'):
            g.i(f"s_add_u32 s{S_T0}, s{S_T0}, {1<<20}")
            srd(g.a, S_X, 96, 64, f"s{S_T0}")
            g.i("v_lshlrev_b32 v6, 2, v0")
            g.i(f"buffer_store_dword v250, v6, s[{S_X}:{S_X+3}], 0 offen")
    g.lab("L_end")
    g.i("s_endpgm")

def fallback(g):
    C = [100, 116]; M = [132, 133]; GV = 134
    g.lab("L_fallback")
    g.i(f"s_lshr_b32 s{S_T0}, s{S_WAVE}, 2")
    g.i(f"s_lshl_b32 s{S_T0}, s{S_T0}, 17")
    g.i(f"v_mov_b32 v{M[0]}, 0xff800000")
    g.i(f"v_mov_b32 v{M[1]}, 0xff800000")
    g.i(f"s_mov_b32 s{S_T1}, s{S_T0}")
    g.i(f"s_add_u32 s{S_T2}, s{S_T0}, 131072")
    g.lab("L_fb_max")
    g.i(f"buffer_load_dwordx4 {vr(V_K,4)}, v{V_L16}, s[{S_KV}:{S_KV+3}], s{S_T1} offen sc1")
    g.i(f"s_add_u32 s{S_T1}, s{S_T1}, 2048")
    g.i("s_waitcnt vmcnt(0)")
    for q in range(2):
        g.i(f"v_mfma_f32_32x32x16_bf16 {vr(V_S[q],16)}, {vr(V_K,4)}, {vr(V_Q[q],4)}, 0")
    g.i("s_nop 15")
    for q in range(2):
        for r in range(0, 16, 2):
            g.i(f"v_max3_f32 v{M[q]}, v{M[q]}, v{V_S[q]+r}, v{V_S[q]+r+1}")
    g.i(f"s_cmp_lt_u32 s{S_T1}, s{S_T2}")
    g.i("s_cbranch_scc1 L_fb_max")
    for q in range(2):
        g.i(f"v_mov_b32 v6, v{M[q]}")
        g.i(f"v_mov_b32 v7, v{M[q]}")
        g.i("s_nop 1")
        g.i("v_permlane32_swap_b32 v6, v7")
        g.i("s_nop 1")
        g.i("v_max_f32 v6, v6, v7")
        for r in range(16):
            g.i(f"v_sub_f32 v{C[q]+r}, 0, v6")
            g.i(f"v_mov_b32 v{V_O[q]+r}, 0")
    g.i("v_and_b32 v6, 15, v0")
    g.i("v_lshlrev_b32 v6, 4, v6")
    g.i("v_lshrrev_b32 v7, 5, v0")
    g.i(f"v_lshl_add_u32 v{GV}, v7, 8, v6")
    for r in range(8):
        g.i(f"v_mov_b32 v{V_V[0]+r}, 0x3f803f80")
    g.i(f"s_mov_b32 s{S_T1}, s{S_T0}")
    g.i(f"s_mov_b32 s{S_M}, 0xffff")
    g.i(f"s_mov_b32 s{S_M+1}, 0xffff")
    g.lab("L_fb_pv")
    g.i(f"buffer_load_dwordx4 {vr(V_K,4)}, v{V_L16}, s[{S_KV}:{S_KV+3}], s{S_T1} offen sc1")
    g.i(f"s_mov_b64 exec, s[{S_M}:{S_M+1}]")
    g.i(f"buffer_load_dwordx4 {vr(V_V[0],4)}, v{GV}, s[{S_KV}:{S_KV+3}], s{S_T1} offen offset:1024 sc1")
    g.i(f"buffer_load_dwordx4 {vr(V_V[0]+4,4)}, v{GV}, s[{S_KV}:{S_KV+3}], s{S_T1} offen offset:1536 sc1")
    g.i("s_mov_b64 exec, -1")
    g.i(f"s_add_u32 s{S_T1}, s{S_T1}, 2048")
    g.i("s_waitcnt vmcnt(0)")
    for q in range(2):
        g.i(f"v_mfma_f32_32x32x16_bf16 {vr(V_S[q],16)}, {vr(V_K,4)}, {vr(V_Q[q],4)}, {vr(C[q],16)}")
    g.i("s_nop 15")
    for q in range(2):
        for r in range(16):
            g.i(f"v_exp_f32 v{V_S[q]+r}, v{V_S[q]+r}")
    g.i("s_nop 3")
    for q in range(2):
        for h in range(2):
            g.i(f"v_smfmac_f32_32x32x32_bf16 {vr(V_O[q],16)}, {vr(V_V[0]+4*h,4)}, {vr(V_S[q]+8*h,8)}, v{V_IDX}")
    g.i("s_nop 15")
    g.i(f"s_cmp_lt_u32 s{S_T1}, s{S_T2}")
    g.i("s_cbranch_scc1 L_fb_pv")
    for q in range(2):
        g.i(f"v_rcp_f32 v{V_S[0]+q}, v{V_O[q]+8}")
    g.i("s_nop 1")
    g.i("s_branch L_at_store")

HEADER = open('cdna_kernels/' + NAME + '.s.ref').read().split('; Override launch')[0]

def generate(opt={}):
    global WS_KV, WS_O, WS_FLAG
    off = opt.get('wsoff', 0) << 20
    WS_KV, WS_O, WS_FLAG = (4 << 20) + off, (12 << 20) + off, (16 << 20) + off
    g = G(opt)
    name = NAME + "_kernel"
    g.a(HEADER.rstrip())
    g.a(f"; @launch grid=(256,1,1) block=(512,1,1) lds={LDS_TOTAL}")
    g.a('.amdgcn_target "amdgcn-amd-amdhsa--gfx950"')
    entry(g, name)
    if opt.get('lfirst', 1): loader(g)
    compute(g)
    attention(g)
    outproj(g)
    if not opt.get('lfirst', 1): loader(g)
    g.lab("L_code_end")
    for tag, body in g.side:
        g.lab(f"L_ol_{tag}")
        body()
        g.i(f"s_branch L_olr_{tag}")
    fallback(g)
    kernel_desc(g.a, name, NVGPR, 256, 102)
    return g.a.text()

if __name__ == "__main__":
    import sys
    opt = eval(sys.argv[2]) if len(sys.argv) > 2 else {}
    open(sys.argv[1], 'w').write(generate(opt))
```

```python
import math, struct
from common import *

WS_FLAG = 16 << 20
SLOT = 45056; SLOT_W = 32768
RING = 32768
L_WO = 65536
L_CONST = 135168
L_QX = 155648
LDS_TOTAL = 163840
S_X, S_W, S_WO, S_KV, S_O, S_FL, S_DBG, S_OUT = 8, 12, 16, 20, 24, 28, 32, 36
S_WAVE, S_BR, S_HP, S_TB, S_IT, S_T0, S_T1, S_T2, S_T3 = 40, 41, 42, 43, 44, 45, 46, 47, 48
S_A, S_B, S_C, S_D, S_E, S_F = 49, 50, 51, 52, 53, 54
S_M = 56
V_L16, V_KA, V_VA, V_VX, V_IDX, V_T0, V_T1 = 1, 2, 3, 4, 5, 6, 7
V_Q = [8, 12]; V_K = 16; V_V = [20, 28]; V_S = [36, 52]; V_O = [68, 84]
V_F = 241
V_FA = 242
V_WOA = 243
V_ACC = 100
V_FR = [196, 216]
V_XA = 236; V_WA = 240
NVGPR = 256
QSCALE = struct.unpack('<I', struct.pack('<f', 0.25 * math.log2(math.e)))[0]
SPIN_MAX = 1 << 20
S_DRY = 3

class G:
    def __init__(self, opt):
        self.a = Asm(); self.opt = opt; self.diag = opt.get('diag', 0)
    def i(self, s): self.a.i(s)
    def lab(self, s): self.a.label(s)
    def st(self, name):
        m = self.opt.get('st', {})
        if name in m: self.stamp(m[name], True)
    def stamp(self, k, forced=False):
        if k in self.opt.get('st', {}).values() and not forced: return
        if self.diag:
            self.i(f"s_memtime s[{64+4*k}:{65+4*k}]")
            self.i(f"s_memrealtime s[{66+4*k}:{67+4*k}]")

def dry_exit(g, label="L_dry_ret"):
    if g.opt.get('dry', 1):
        g.i(f"s_cmp_lg_u32 s{S_DRY}, 0")
        g.i(f"s_cbranch_scc1 {label}")

def barrier_unless_dry(g, tag):
    dry_exit(g, f"L_nb_{tag}")
    g.i("s_barrier")
    g.lab(f"L_nb_{tag}")

def spin(g, tag, load, want, nlanes_mask=None):
    g.i(f"s_mov_b32 s{S_T3}, 0")
    g.lab(f"L_spin_{tag}")
    g.i(load)
    g.i(f"s_add_u32 s{S_T3}, s{S_T3}, 1")
    g.i("s_waitcnt vmcnt(0)")
    g.i(f"v_cmp_{'gt' if want > 1 else 'ne'}_u32 vcc, {want}, v{V_F}")
    g.i(f"s_cmp_ge_u32 s{S_T3}, {SPIN_MAX}")
    g.i(f"s_cbranch_scc1 L_spun_{tag}")
    g.i(f"s_cbranch_vccnz L_spin_{tag}")
    g.lab(f"L_spun_{tag}")

def entry(g, name):
    a = g.a
    kernel_head(a, name)
    PF = g.opt.get('cpf', 1)
    if PF:
        g.i("s_getpc_b64 s[8:9]")
        g.i("v_lshlrev_b32 v6, 7, v0")
        g.i("s_mov_b32 s10, L_code_end-" + name + "-4")
        g.i("s_mov_b32 s11, 0x20000")
    g.i("s_cmp_ge_u32 s2, 256")
    g.i("s_cbranch_scc1 L_end")
    if PF:
        g.i("buffer_load_dword v246, v6, s[8:11], 0 offen")
    g.stamp(0)
    g.i(f"s_mov_b32 s{S_DRY}, 0")
    g.i(f"s_bfe_u32 s{S_BR}, s2, 0x10002")
    g.i(f"s_mul_i32 s{S_T0}, s{S_BR}, 24")
    g.i(f"s_load_dwordx4 s[{S_M}:{S_M+3}], s[0:1], s{S_T0}")
    g.i(f"s_load_dwordx2 s[{S_M+4}:{S_M+5}], s[0:1], s{S_T0} offset:16")
    g.i("s_load_dwordx4 s[4:7], s[0:1], 48")
    g.i(f"s_load_dwordx2 s[{S_M+6}:{S_M+7}], s[0:1], 64")
    g.i("v_lshrrev_b32 v6, 6, v0")
    g.i("v_and_b32 v0, 63, v0")
    g.i(f"v_readfirstlane_b32 s{S_WAVE}, v6")
    g.i(f"v_lshlrev_b32 v{V_L16}, 4, v0")
    g.i(f"s_bfe_u32 s{S_HP}, s2, 0x10001")
    g.i(f"s_lshl_b32 s{S_HP}, s{S_HP}, 3")
    g.i(f"s_bfe_u32 s{S_T0}, s2, 0x30003")
    g.i(f"s_add_u32 s{S_HP}, s{S_HP}, s{S_T0}")
    g.i(f"s_and_b32 s{S_TB}, s2, 1")
    g.i(f"s_lshl_b32 s{S_TB}, s{S_TB}, 2")
    g.i(f"s_lshr_b32 s{S_T0}, s2, 6")
    g.i(f"s_add_u32 s{S_TB}, s{S_TB}, s{S_T0}")
    g.i(f"s_lshl_b32 s{S_T0}, s{S_TB}, 18")
    g.i(f"s_lshl_b32 s{S_T1}, s{S_BR}, 4")
    g.i(f"s_add_u32 s{S_T1}, s{S_T1}, s{S_HP}")
    g.i(f"s_lshl_b32 s{S_T2}, s{S_T1}, 18")
    g.i(f"s_add_u32 s{S_T2}, s{S_T2}, {WS_KV}")
    g.i(f"s_lshl_b32 s{S_T3}, s{S_BR}, 21")
    g.i(f"s_add_u32 s{S_T3}, s{S_T3}, {WS_O}")
    if g.opt.get('lfirst', 1):
        g.i(f"s_cmp_lt_u32 s{S_WAVE}, 4")
        g.i("s_cbranch_scc1 L_compute")
    else:
        g.i(f"s_cmp_ge_u32 s{S_WAVE}, 4")
        g.i("s_cbranch_scc1 L_loader")

def early_srds(g):
    g.i("s_waitcnt lgkmcnt(0)")
    g.st('karg')
    srd(g.a, S_X, S_M, 256 * 1024, f"s{S_T0}")
    srd(g.a, S_W, S_M + 2, 512 * 1536 * 2)

def late_srds(g):
    a = g.a
    srd(a, S_WO, S_M + 4, 512 * 512 * 2)
    srd(a, S_KV, S_M + 6, 256 * 1024, f"s{S_T2}")
    srd(a, S_O, S_M + 6, 2 << 20, f"s{S_T3}")
    srd(a, S_FL, S_M + 6, 4096, str(WS_FLAG))
    srd(a, S_DBG, 6, 256)
    srd(a, S_OUT, 4, 2048 * 1024 * 2)
    if g.diag:
        g.i(f"s_mov_b32 s96, s{S_M+6}")
        g.i(f"s_mov_b32 s97, s{S_M+7}")

def attn_consts(g):
    g.i(f"s_lshr_b32 s{S_T0}, s{S_WAVE}, 2")
    g.i(f"s_lshl_b32 s{S_T0}, s{S_T0}, 14")
    g.i(f"v_add_u32 v{V_KA}, s{S_T0}, v{V_L16}")
    g.i(f"v_and_b32 v{V_T0}, 15, v0")
    g.i(f"v_lshlrev_b32 v{V_T0}, 4, v{V_T0}")
    g.i(f"v_lshrrev_b32 v{V_T1}, 5, v0")
    g.i(f"v_lshl_add_u32 v{V_T0}, v{V_T1}, 8, v{V_T0}")
    g.i(f"s_add_u32 s{S_T0}, s{S_T0}, 1024")
    g.i(f"v_add_u32 v{V_VA}, s{S_T0}, v{V_T0}")
    g.i(f"v_and_b32 v{V_T0}, 31, v0")
    g.i(f"v_subrev_u32 v{V_T1}, 20, v{V_T0}")
    g.i(f"v_cmp_gt_u32 vcc, 8, v{V_T1}")
    g.i(f"v_mov_b32 v{V_T1}, {L_CONST+16}")
    g.i(f"v_mov_b32 v{V_VX}, {L_CONST+16+64}")
    g.i(f"v_cndmask_b32 v{V_T1}, v{V_T1}, v{V_VX}, vcc")
    g.i(f"v_and_b32 v{V_VX}, 27, v0")
    g.i(f"v_cmp_eq_u32 vcc, 16, v{V_VX}")
    g.i(f"v_subrev_u32 v{V_VX}, 16, v{V_T1}")
    g.i("s_nop 0")
    g.i(f"v_cndmask_b32 v{V_T1}, v{V_T1}, v{V_VX}, vcc")
    g.i(f"v_cmp_gt_u32 vcc, 16, v{V_T0}")
    g.i(f"v_mov_b32 v{V_T0}, {RING}")
    g.i(f"v_mov_b32 v{V_IDX}, 0xdddd")
    g.i(f"v_cndmask_b32 v{V_VA}, v{V_T1}, v{V_VA}, vcc")
    g.i(f"v_cndmask_b32 v{V_VX}, 0, v{V_T0}, vcc")
    g.i(f"v_add_u32 v{V_VX}, v{V_VX}, v{V_VA}")
    g.i("v_mov_b64 v[252:253], -1")
    g.i("v_mov_b64 v[254:255], -1")
    for r in range(0, 32, 2):
        g.i(f"v_mov_b64 v[{V_O[0]+r}:{V_O[0]+r+1}], 0")
    g.i(f"s_lshl_b32 s{S_T0}, s{S_BR}, 4")
    g.i(f"s_add_u32 s{S_T0}, s{S_T0}, s{S_HP}")
    g.i(f"s_lshl_b32 s{S_T0}, s{S_T0}, 7")
    g.i(f"v_and_b32 v6, 31, v0")
    g.i(f"v_lshl_add_u32 v{V_FA}, v6, 2, s{S_T0}")
    g.i(f"v_lshrrev_b32 v{V_T0}, 2, v0")
    g.i(f"v_and_b32 v{V_T0}, 4, v{V_T0}")
    g.i(f"v_and_b32 v{V_T1}, 7, v0")
    g.i(f"v_xor_b32 v{V_T0}, v{V_T0}, v{V_T1}")
    g.i(f"v_lshlrev_b32 v{V_T0}, 4, v{V_T0}")
    g.i(f"v_lshrrev_b32 v{V_T1}, 3, v0")
    g.i(f"v_lshl_add_u32 v{V_WOA}, v{V_T1}, 10, v{V_T0}")

def consts(g):
    g.i(f"s_cmp_lg_u32 s{S_WAVE}, 4")
    g.i("s_cbranch_scc1 L_ld_noconst")
    g.i("v_lshrrev_b32 v6, 2, v0")
    g.i("v_and_b32 v7, 1, v6")
    g.i("v_lshlrev_b32 v7, 9, v7")
    g.i("v_lshrrev_b32 v6, 1, v6")
    g.i("v_lshl_add_u32 v7, v6, 11, v7")
    g.i("v_and_b32 v6, 1, v0")
    g.i("v_lshl_add_u32 v7, v6, 4, v7")
    g.i("v_cmp_eq_u32 vcc, 0, v6")
    g.i("v_and_b32 v6, 2, v0")
    g.i("v_lshl_add_u32 v7, v6, 5, v7")
    g.i("v_mov_b32 v6, 0x3f803f80")
    g.i(f"v_add_u32 v7, {L_CONST}, v7")
    g.i("v_cndmask_b32 v108, 0, v6, vcc")
    g.i("v_cndmask_b32 v109, 0, v6, vcc")
    g.i("v_cndmask_b32 v110, 0, v6, vcc")
    g.i("v_cndmask_b32 v111, 0, v6, vcc")
    g.i("ds_write_b128 v7, v[108:111]")
    g.lab("L_ld_noconst")

def loader(g):
    VX, VW, VT = 100, 104, 112
    LEAD = g.opt.get('lead', 0)
    g.lab("L_loader")
    g.i(f"s_sub_u32 s{S_A}, s{S_WAVE}, 4")
    S_CH, S_TX = S_F, 55
    RM = g.opt.get('rot', 7)
    if RM == 1:
        g.i(f"s_lshl_b32 s{S_CH}, s{S_TB}, 1")
        g.i(f"s_lshr_b32 s{S_T1}, s{S_TB}, 2")
        g.i(f"s_add_u32 s{S_CH}, s{S_CH}, s{S_T1}")
        g.i(f"s_and_b32 s{S_CH}, s{S_CH}, 7")
    elif RM == 2:
        g.i(f"s_mov_b32 s{S_CH}, s{S_TB}")
    elif RM == 7:
        g.i(f"s_and_b32 s{S_T1}, s{S_HP}, 1")
        g.i(f"s_lshl_b32 s{S_T1}, s{S_T1}, 2")
        g.i(f"s_add_u32 s{S_CH}, s{S_TB}, s{S_T1}")
        g.i(f"s_and_b32 s{S_CH}, s{S_CH}, 7")
    elif RM == 8:
        g.i(f"s_lshl_b32 s{S_CH}, s{S_TB}, 1")
        g.i(f"s_bfe_u32 s{S_T1}, s{S_HP}, 0x10001")
        g.i(f"s_add_u32 s{S_CH}, s{S_CH}, s{S_T1}")
        g.i(f"s_and_b32 s{S_CH}, s{S_CH}, 7")
    elif RM == 9:
        g.i(f"s_lshl_b32 s{S_CH}, s{S_TB}, 1")
        g.i(f"s_and_b32 s{S_T1}, s{S_HP}, 3")
        g.i(f"s_add_u32 s{S_CH}, s{S_CH}, s{S_T1}")
        g.i(f"s_and_b32 s{S_CH}, s{S_CH}, 7")
    elif RM == 0:
        g.i(f"s_mov_b32 s{S_CH}, 0")
    elif RM == 6:
        g.i(f"s_lshl_b32 s{S_CH}, s{S_TB}, 1")
        g.i(f"s_add_u32 s{S_CH}, s{S_CH}, s{S_HP}")
        g.i(f"s_and_b32 s{S_CH}, s{S_CH}, 7")
    elif RM == 4:
        g.i(f"s_lshl_b32 s{S_CH}, s{S_TB}, 1")
        g.i(f"s_add_u32 s{S_CH}, s{S_CH}, s{S_HP}")
        g.i(f"s_and_b32 s{S_CH}, s{S_CH}, 3")
        g.i(f"s_lshl_b32 s{S_CH}, s{S_CH}, 1")
    elif RM == 5:
        g.i(f"s_add_u32 s{S_CH}, s{S_TB}, s{S_HP}")
        g.i(f"s_and_b32 s{S_CH}, s{S_CH}, 3")
        g.i(f"s_lshl_b32 s{S_CH}, s{S_CH}, 1")
    elif RM == 3:
        g.i(f"s_lshl_b32 s{S_CH}, s{S_TB}, 1")
        g.i(f"s_and_b32 s{S_T1}, s{S_HP}, 1")
        g.i(f"s_add_u32 s{S_CH}, s{S_CH}, s{S_T1}")
        g.i(f"s_and_b32 s{S_CH}, s{S_CH}, 7")
    g.i(f"v_lshlrev_b32 v{VT}, 10, v0")
    g.i(f"s_and_b32 s{S_TX}, s{S_HP}, 7")
    g.i(f"s_lshl_b32 s{S_TX}, s{S_TX}, 2")
    g.i(f"s_add_u32 s{S_TX}, s{S_TX}, s{S_A}")
    g.i(f"s_lshl_b32 s{S_TX}, s{S_TX}, 13")
    NT = 1 if LEAD else 0
    def touch(ahead):
        if not LEAD: return
        g.i(f"s_add_u32 s{S_T0}, s{S_CH}, {ahead}")
        g.i(f"s_and_b32 s{S_T0}, s{S_T0}, 7")
        g.i(f"s_lshl_b32 s{S_T0}, s{S_T0}, 7")
        g.i(f"s_add_u32 s{S_T0}, s{S_T0}, s{S_TX}")
        g.i("s_mov_b64 exec, 0xff")
        g.i(f"buffer_load_dword v244, v{VT}, s[{S_X}:{S_X+3}], s{S_T0} offen")
        g.i("s_mov_b64 exec, -1")
    g.i("v_lshrrev_b32 v6, 4, v0")
    g.i("v_and_b32 v7, 7, v0")
    g.i("v_xor_b32 v6, v6, v7")
    g.i("v_lshlrev_b32 v6, 4, v6")
    g.i("v_lshrrev_b32 v7, 3, v0")
    g.i(f"v_lshl_add_u32 v{VX}, v7, 10, v6")
    g.i(f"v_xor_b32 v{VX+1}, 64, v{VX}")
    g.i(f"v_add_u32 v{VX+2}, {2*7168}, v{VX}")
    g.i(f"v_add_u32 v{VX+3}, {3*7168}, v{VX+1}")
    g.i(f"v_add_u32 v{VX+1}, 7168, v{VX+1}")
    g.i(f"s_lshl_b32 s{S_B}, s{S_A}, 16")
    g.i(f"s_lshl_b32 s{S_D}, s{S_A}, 13")
    for p in range(3):
        g.i(f"v_add_u32 v6, {64*p}, v0")
        g.i("v_mul_u32_u24 v7, 43691, v6")
        g.i("v_lshrrev_b32 v7, 19, v7")
        g.i("v_mul_u32_u24 v110, 12, v7")
        g.i("v_sub_u32 v6, v6, v110")
        g.i("v_mul_u32_u24 v7, 3072, v7")
        g.i("v_lshrrev_b32 v110, 2, v6")
        g.i(f"v_lshl_add_u32 v7, v110, {6 if g.opt.get('x_wc') else 10}, v7")
        g.i("v_and_b32 v6, 3, v6")
        g.i("v_lshl_add_u32 v7, v6, 4, v7")
        g.i(f"v_subrev_u32 v{VW+p}, {1024*p}, v7")
    g.i(f"s_mul_i32 s{S_C}, s{S_A}, {16*3072}")
    g.i(f"s_lshl_b32 s{S_T1}, s{S_HP}, {7 if g.opt.get('x_wc') else 6}")
    g.i(f"s_add_u32 s{S_C}, s{S_C}, s{S_T1}")
    g.i(f"s_mul_i32 s{S_E}, s{S_A}, 3072")
    g.i(f"s_add_u32 s{S_E}, s{S_E}, {SLOT_W}")
    early_srds(g)
    def issue():
        g.i(f"s_lshl_b32 s{S_T1}, s{S_CH}, 7")
        g.i(f"s_add_u32 s{S_T1}, s{S_T1}, s{S_B}")
        g.i(f"s_mov_b32 m0, s{S_D}")
        g.i(f"s_add_u32 s{S_T0}, s{S_T1}, 32768")
        for p in range(4):
            g.i(f"buffer_load_dwordx4 v{VX+p}, s[{S_X}:{S_X+3}], s{S_T1} offen offset:{1024*p}{g.opt.get('xfl','')} lds")
        g.i(f"s_add_u32 m0, s{S_D}, 4096")
        g.i(f"s_mul_i32 s{S_T1}, s{S_CH}, {64*3072}")
        for p in range(4):
            g.i(f"buffer_load_dwordx4 v{VX+p}, s[{S_X}:{S_X+3}], s{S_T0} offen offset:{1024*p}{g.opt.get('xfl','')} lds")
        g.i(f"s_mov_b32 m0, s{S_E}")
        g.i(f"s_add_u32 s{S_T1}, s{S_T1}, s{S_C}")
        for p in range(3):
            if g.opt.get('x_now'): g.i(f"buffer_load_dword v244, v{VW+p}, s[{S_DBG if False else S_W}:{S_W+3}], s{S_C} offen"); continue
            g.i(f"buffer_load_dwordx4 v{VW+p}, s[{S_W}:{S_W+3}], s{S_T1} offen offset:{1024*p}{g.opt.get('wfl','')} lds")
        g.i(f"s_add_u32 s{S_CH}, s{S_CH}, 1")
        g.i(f"s_and_b32 s{S_CH}, s{S_CH}, 7")
    def next_slot():
        g.i(f"s_add_u32 s{S_D}, s{S_D}, {SLOT}")
        g.i(f"s_add_u32 s{S_E}, s{S_E}, {SLOT}")
        g.i(f"s_cmp_lt_u32 s{S_D}, {3*SLOT}")
        g.i(f"s_cselect_b32 s{S_T0}, 0, {3*SLOT}")
        g.i(f"s_sub_u32 s{S_D}, s{S_D}, s{S_T0}")
        g.i(f"s_sub_u32 s{S_E}, s{S_E}, s{S_T0}")
    issue()
    g.st('ld_c0')
    next_slot(); issue()
    for c in range(2, LEAD): touch(c - 2)
    g.st('ld_c2')
    late_srds(g); attn_consts(g); consts(g)
    g.st('ld_pre')
    PRE = g.opt.get('pre', '')
    n0 = NT * max(LEAD - 2, 0)
    def pre():
        g.i(f"s_lshl_b32 s{S_T0}, s{S_TB}, 14")
        g.i(f"s_and_b32 s{S_T1}, s{S_A}, 1")
        g.i(f"s_lshl_b32 s{S_T1}, s{S_T1}, 13")
        g.i(f"s_add_u32 s{S_T0}, s{S_T0}, s{S_T1}")
        g.i(f"s_lshr_b32 s{S_T1}, s{S_A}, 1")
        g.i(f"s_lshl_b32 s{S_T1}, s{S_T1}, 17")
        g.i(f"s_add_u32 s{S_T0}, s{S_T0}, s{S_T1}")
        if PRE == 'r':
            g.i("v_lshlrev_b32 v6, 7, v0")
            g.i(f"buffer_load_dword v245, v6, s[{S_KV}:{S_KV+3}], s{S_T0} offen sc1")
            return 1
        g.i(f"s_add_u32 s{S_T1}, s{S_T0}, 4096")
        for k in range(8):
            g.i(f"buffer_store_dwordx4 v[{V_O[0]}:{V_O[0]+3}], v{V_L16}, s[{S_KV}:{S_KV+3}], s{S_T1 if k >= 4 else S_T0} offen offset:{1024*(k%4)} sc1")
        return 8
    np_ = 0
    PC = g.opt.get('prec', 1)
    for c, n in ((0, 11 + n0), (1, n0 + 11 + NT)):
        g.i(f"s_waitcnt vmcnt({n + (np_ if c == 1 else 0)})")
        if c == 0: g.st('ld_got0')
        g.i("s_barrier")
        next_slot(); issue(); touch(LEAD - 3)
        if PRE and c == PC: np_ = pre()
    if PRE and PC == 1:
        g.i(f"s_waitcnt vmcnt({11+2*NT+np_})")
        g.i("s_barrier")
        next_slot(); issue(); touch(LEAD - 3)
        g.i(f"s_mov_b32 s{S_IT}, 3")
        g.i(f"s_waitcnt vmcnt({11+2*NT+np_})")
        g.i("s_branch L_ld_loop2")
    g.i(f"s_mov_b32 s{S_IT}, 2")
    g.lab("L_ld_loop")
    g.i(f"s_waitcnt vmcnt({11+2*NT})")
    g.lab("L_ld_loop2")
    g.i("s_barrier")
    next_slot(); issue(); touch(LEAD - 3)
    g.i(f"s_add_u32 s{S_IT}, s{S_IT}, 1")
    g.i(f"s_cmp_lt_u32 s{S_IT}, 6")
    g.i("s_cbranch_scc1 L_ld_loop")
    g.st('ld_iss7')
    g.i(f"s_waitcnt vmcnt({11+2*NT})")
    g.i("s_barrier")
    g.i("s_waitcnt vmcnt(0)")
    g.i("s_barrier")
    g.i(f"s_cmp_lg_u32 s{S_WAVE}, 4")
    g.i("s_cbranch_scc1 L_ld_nocert")
    g.i(f"s_lshl_b32 s{S_T0}, s{S_BR}, 4")
    g.i(f"s_add_u32 s{S_T0}, s{S_T0}, s{S_HP}")
    g.i(f"s_lshl_b32 s{S_T0}, s{S_T0}, 3")
    g.i(f"v_mov_b32 v7, s{S_T0}")
    spin(g, "cert1", f"buffer_load_dword v{V_F}, v7, s[{S_DBG}:{S_DBG+3}], 0 offen sc1", 8)
    g.lab("L_ld_nocert")
    g.i(f"s_lshl_b32 s{S_T0}, s{S_A}, 11")
    g.i(f"s_add_u32 s{S_T0}, s{S_T0}, {L_QX}")
    g.i(f"v_add_u32 v6, s{S_T0}, v{V_L16}")
    attn_setup(g)
    g.i("s_waitcnt lgkmcnt(0)")
    g.i("s_barrier")
    g.i(f"ds_read_b128 {vr(V_Q[0],4)}, v6")
    g.i(f"ds_read_b128 {vr(V_Q[1],4)}, v6 offset:1024")
    g.i("s_branch L_attn")

class LdsQ:
    def __init__(self, g): self.g = g; self.q = []
    def issue(self, tag): self.q.append(tag)
    def need(self, tags):
        idx = max([i for i, t in enumerate(self.q) if t in tags], default=-1)
        if idx >= 0:
            n = len(self.q) - 1 - idx
            self.g.i(f"s_waitcnt lgkmcnt({min(n,15)})")
            self.q = self.q[idx + 1:]

def compute(g):
    g.lab("L_compute")
    g.i("s_waitcnt lgkmcnt(0)")
    late_srds(g)
    g.i(f"s_cmp_lg_u32 s{S_WAVE}, 0")
    g.i("s_cbranch_scc1 L_cp_noclear")
    g.i(f"s_lshl_b32 s{S_T0}, s{S_BR}, 4")
    g.i(f"s_add_u32 s{S_T0}, s{S_T0}, s{S_HP}")
    g.i(f"s_lshl_b32 s{S_T1}, s{S_T0}, 7")
    g.i(f"s_lshl_b32 s{S_T2}, s{S_TB}, 4")
    g.i(f"s_add_u32 s{S_T1}, s{S_T1}, s{S_T2}")
    g.i(f"v_lshl_add_u32 v6, v0, 2, s{S_T1}")
    g.i("v_mov_b32 v100, 0")
    g.i("s_mov_b64 exec, 0xf")
    g.i(f"buffer_store_dword v100, v6, s[{S_FL}:{S_FL+3}], 0 offen sc1")
    g.i("s_mov_b64 exec, -1")
    g.lab("L_cp_noclear")
    attn_consts(g)
    g.i("v_and_b32 v6, 31, v0")
    g.i(f"s_lshl_b32 s{S_T0}, s{S_WAVE}, 13")
    g.i(f"v_lshl_add_u32 v100, v6, 7, s{S_T0}")
    g.i("v_bfe_u32 v6, v0, 1, 3")
    g.i("v_lshrrev_b32 v7, 5, v0")
    g.i("v_xor_b32 v6, v6, v7")
    for s in range(4):
        g.i(f"v_xor_b32 v7, {2*s}, v6")
        g.i(f"v_lshl_add_u32 v{V_XA+s}, v7, 4, v100")
    g.i("v_lshrrev_b32 v6, 5, v0")
    g.i("v_bfe_u32 v7, v0, 2, 2")
    g.i("v_lshl_add_u32 v6, v6, 3, v7")
    g.i("v_mul_u32_u24 v6, 192, v6")
    g.i("v_bfe_u32 v7, v0, 4, 1")
    g.i("v_lshl_add_u32 v6, v7, 5, v6")
    g.i("v_and_b32 v7, 3, v0")
    g.i("v_lshl_add_u32 v6, v7, 3, v6")
    g.i(f"v_add_u32 v{V_WA}, {SLOT_W}, v6")
    for r in range(0, 96, 2):
        g.i(f"v_mov_b64 v[{V_ACC+r}:{V_ACC+r+1}], 0")
    S_A, S_B, S_G1, S_G2 = 56, 57, 58, 59
    KG, KL, VG, VL, QL = 244, 245, 247, 248, 249
    g.i("v_and_b32 v6, 0x33, v0")
    g.i("v_bfe_u32 v7, v0, 2, 1")
    g.i("v_lshl_or_b32 v6, v7, 3, v6")
    g.i("v_bfe_u32 v7, v0, 3, 1")
    g.i("v_lshl_or_b32 v6, v7, 2, v6")
    g.i(f"v_lshlrev_b32 v{KG}, 4, v6")
    g.i(f"s_lshl_b32 s{S_T0}, s{S_WAVE}, 12")
    g.i(f"v_add_u32 v{KL}, s{S_T0}, v{KG}")
    g.i("v_and_b32 v6, 15, v0")
    g.i("v_lshlrev_b32 v6, 4, v6")
    g.i("v_lshrrev_b32 v7, 5, v0")
    g.i("v_lshl_add_u32 v6, v7, 8, v6")
    g.i("v_add_u32 v6, 1024, v6")
    g.i("v_bfe_u32 v7, v0, 4, 1")
    g.i(f"v_lshl_add_u32 v{VG}, v7, 17, v6")
    g.i("v_lshl_add_u32 v6, v7, 14, v6")
    g.i(f"v_add_u32 v{VL}, s{S_T0}, v6")
    g.i(f"s_lshr_b32 s{S_T0}, s{S_T0}, 1")
    g.i(f"s_add_u32 s{S_T0}, s{S_T0}, {L_QX}")
    g.i(f"v_add_u32 v{QL}, s{S_T0}, v{V_L16}")
    if g.opt.get('dry', 1):
        g.i(f"s_cmp_lt_u32 s{S_WAVE}, 2")
        g.i("s_cbranch_scc1 L_dry_done")
        g.i(f"s_mov_b32 s{S_DRY}, 1")
        g.i(f"s_mov_b32 s{S_IT}, 7")
        g.i("s_mov_b64 vcc, 0")
        g.i(f"s_mov_b64 s[{S_M}:{S_M+1}], 0")
        g.i(f"s_mov_b64 s[{S_M+2}:{S_M+3}], 0")
        g.i(f"s_mov_b32 s{S_MK}, 0")
        g.i("s_waitcnt vmcnt(0) lgkmcnt(0)")
        g.i("s_setvskip -1, 0")
        g.i(f"s_cmp_eq_u32 s{S_WAVE}, 2")
        g.i("s_cbranch_scc1 L_at_done")
        g.i("s_branch L_cp_loop")
        g.lab("L_dry_ret")
        g.i("s_setvskip 0, 0")
        g.i("s_mov_b64 exec, -1")
        g.i("s_setprio 0")
        g.i(f"s_mov_b32 s{S_DRY}, 0")
        g.lab("L_dry_done")
    attn_setup(g)
    g.i(f"s_lshl_b32 s{S_T0}, s{S_WAVE}, 12")
    g.i(f"s_lshl_b32 s{S_G1}, s{S_TB}, 14")
    g.i(f"s_add_u32 s{S_G1}, s{S_G1}, s{S_T0}")
    g.i(f"s_add_u32 s{S_G2}, s{S_G1}, 131072")
    g.i(f"s_mov_b32 s{S_IT}, 0")
    g.i(f"s_mov_b32 s{S_A}, 0")
    g.i(f"s_mov_b32 s{S_B}, {SLOT}")
    q = LdsQ(g)
    def rd(setn, s, which):
        F = V_FR[setn]
        if which[0] == 'x':
            i = int(which[1])
            g.i(f"ds_read_b128 {vr(F+4*i,4)}, v{V_XA+s} offset:{4096*i}")
        else:
            p = {'q': 0, 'k': 1, 'v': 2}[which[0]]; i = int(which[1])
            g.i(f"ds_read_b64_tr_b16 {vr(F+8+4*p+2*i,2)}, v{V_WA} offset:{s*3072+i*768+p*64}")
        q.issue((setn, which))
    ORDER = ['x0', 'q0', 'q1', 'x1', 'k0', 'k1', 'v0', 'v1']
    def mf(setn, n):
        F = V_FR[setn]; p, i = n // 2, n % 2
        w, x = vr(F + 8 + 4 * p, 4), vr(F + 4 * i, 4)
        nm = 'qkv'[p]
        q.need({(setn, f'x{i}'), (setn, nm + '0'), (setn, nm + '1')})
        A, B = (w, x) if p < 2 else (x, w)
        acc = vr(V_ACC + 16 * n, 16)
        if g.opt.get('x_m16'):
            for hh in range(2):
                a4 = vr(V_ACC + 16 * n + 4 * hh, 4)
                g.i(f"v_mfma_f32_16x16x32_bf16 {a4}, {A}, {B}, {a4}")
        else:
            g.i(f"v_mfma_f32_32x32x16_bf16 {acc}, {A}, {B}, {acc}")
    def step(cur, nxt_s):
        plan = [ORDER[0:2], ORDER[2:4], ORDER[4:6], ORDER[6:8], [], []]
        for n in range(6):
            if cur is not None: mf(cur, n)
            if nxt_s is not None:
                for w in plan[n]: rd(1 - (cur if cur is not None else 1), nxt_s, w)
    g.i(f"s_cmp_lg_u32 s{S_WAVE}, 0")
    g.i("s_cbranch_scc1 L_cp_nocount")
    g.i(f"s_lshl_b32 s{S_T0}, s{S_BR}, 4")
    g.i(f"s_add_u32 s{S_T0}, s{S_T0}, s{S_HP}")
    g.i(f"s_lshl_b32 s{S_T0}, s{S_T0}, 3")
    g.i("s_mov_b64 exec, 1")
    g.i(f"v_mov_b32 v6, s{S_T0}")
    g.i("v_mov_b32 v7, 1")
    g.i(f"s_waitcnt vmcnt(0)")
    g.i(f"buffer_atomic_add v7, v6, s[{S_DBG}:{S_DBG+3}], 0 offen sc1")
    g.i("s_mov_b64 exec, -1")
    g.lab("L_cp_nocount")
    def prew():
        g.i(f"s_lshl_b32 s{S_T0}, s{S_TB}, 14")
        g.i(f"s_lshl_b32 s{S_T1}, s{S_WAVE}, 12")
        g.i(f"s_add_u32 s{S_T0}, s{S_T0}, s{S_T1}")
        g.i(f"s_add_u32 s{S_T1}, s{S_T0}, 131072")
        for k in range(8):
            g.i(f"buffer_store_dwordx4 v[{V_O[0]}:{V_O[0]+3}], v{V_L16}, s[{S_KV}:{S_KV+3}], s{S_T1 if k >= 4 else S_T0} offen offset:{1024*(k%4)} sc1")
    def prer():
        g.i("v_and_b32 v6, 31, v0")
        g.i("v_lshlrev_b32 v6, 7, v6")
        g.i("v_lshrrev_b32 v7, 5, v0")
        g.i("v_lshl_add_u32 v6, v7, 17, v6")
        g.i(f"buffer_load_dword v246, v6, s[{S_KV}:{S_KV+3}], s{S_G1} offen{g.opt.get('prefl', ' sc1')}")
    PR = g.opt.get('prer', 0)
    if PR == -1: prer()
    if g.opt.get('prew') == 1: prew()
    g.st('cp_pre')
    g.i("s_barrier")
    g.stamp(1)
    if g.opt.get('prew') == 2: prew()
    step(None, 0)
    g.lab("L_cp_loop")
    q.q = [(0, w) for w in ORDER]
    step(0, 1); step(1, 2); step(0, 3)
    g.i(f"s_add_u32 s{S_A}, s{S_A}, 1")
    g.i(f"s_cmp_eq_u32 s{S_A}, 3")
    g.i(f"s_cselect_b32 s{S_T0}, {(-2*SLOT) & 0xffffffff}, s{S_B}")
    g.i(f"s_cselect_b32 s{S_A}, 0, s{S_A}")
    g.i(f"s_add_u32 s{S_IT}, s{S_IT}, 1")
    g.i(f"s_cmp_eq_u32 s{S_IT}, 8")
    g.i("s_cbranch_scc1 L_cp_last")
    g.i("s_waitcnt lgkmcnt(0)")
    q.q = []
    g.i("s_barrier")
    for r in range(5):
        g.i(f"v_add_u32 v{V_XA+r}, s{S_T0}, v{V_XA+r}")
    if PR > 0:
        g.i(f"s_cmp_lg_u32 s{S_IT}, {PR}")
        g.i("s_cbranch_scc1 L_cp_nopre")
        prer()
        g.lab("L_cp_nopre")
    step(1, 0)
    g.i("s_branch L_cp_loop")
    g.lab("L_cp_last")
    q.q = [(1, w) for w in ORDER]
    step(1, None)
    g.stamp(2)
    g.i(f"s_mov_b32 s{S_T1}, {hex(QSCALE)}")
    g.i(f"s_mov_b32 s{S_T2}, s{S_T1}")
    g.i("s_nop 5")
    KVS = g.opt.get('kvs', ' sc1')
    T = 204
    n = 0
    for i in range(2):
        A = V_ACC + 16 * (2 + i)
        for hd in range(2):
            for r in range(4):
                g.i(f"v_cvt_pk_bf16_f32 v{T+4*n+r}, v{A+8*hd+2*r}, v{A+8*hd+2*r+1}")
            g.i(f"buffer_store_dwordx4 {vr(T+4*n,4)}, v{KG}, s[{S_KV}:{S_KV+3}], s{S_G2 if hd else S_G1} offen offset:{2048*i}{KVS}")
            g.i(f"ds_write_b128 v{KL}, {vr(T+4*n,4)} offset:{16384*hd+2048*i}")
            n += 1
    for i in range(2):
        A = V_ACC + 16 * (4 + i)
        for gr in range(2):
            for r in range(4):
                g.i(f"v_cvt_pk_bf16_f32 v{T+4*n+r}, v{A+8*gr+2*r}, v{A+8*gr+2*r+1}")
            g.i(f"buffer_store_dwordx4 {vr(T+4*n,4)}, v{VG}, s[{S_KV}:{S_KV+3}], s{S_G1} offen offset:{2048*i+512*gr}{KVS}")
            g.i(f"ds_write_b128 v{VL}, {vr(T+4*n,4)} offset:{2048*i+512*gr}")
            n += 1
    for i in range(2):
        A = V_ACC + 16 * i
        for r in range(8, 16, 2):
            g.i(f"v_pk_mul_f32 v[{A+r}:{A+r+1}], v[{A+r}:{A+r+1}], s[{S_T0+1}:{S_T0+2}]")
        for r in range(4):
            g.i(f"v_cvt_pk_bf16_f32 v{A+8+r}, v{A+8+2*r}, v{A+8+2*r+1}")
        g.i(f"ds_write_b128 v{QL}, {vr(A+8,4)} offset:{1024*i}")
    for i in range(2):
        A = V_ACC + 16 * i
        for r in range(0, 8, 2):
            g.i(f"v_pk_mul_f32 v[{A+r}:{A+r+1}], v[{A+r}:{A+r+1}], s[{S_T0+1}:{S_T0+2}]")
        for r in range(4):
            g.i(f"v_cvt_pk_bf16_f32 v{V_Q[i]+r}, v{A+2*r}, v{A+2*r+1}")
    g.i("s_waitcnt lgkmcnt(0)")
    barrier_unless_dry(g, "b8")

U = 8
S_OA, S_OB = S_M + 6, S_M + 7
S_MK = S_M + 5
S_KV2 = S_X
S_KO = [None, 4, 5, 6, 7, 12, 13, 14]
S_LM = [[49, 50], [51, 52]]
V_VB = 4

def spin_mask(g, tag, load):
    g.i(f"s_mov_b32 s{S_T3}, 0")
    g.lab(f"L_spin_{tag}")
    g.i(load)
    g.i(f"s_add_u32 s{S_T3}, s{S_T3}, 1")
    g.i("s_waitcnt vmcnt(0)")
    g.i(f"v_cmp_ne_u32 vcc, 1, v{V_F}")
    g.i(f"s_cmp_ge_u32 s{S_T3}, {SPIN_MAX}")
    g.i(f"s_cbranch_scc1 L_olr_{tag}")
    g.i(f"s_and_b32 vcc_lo, vcc_lo, s{S_MK}")
    g.i(f"s_cbranch_scc1 L_spin_{tag}")

def attn_setup(g):
    g.i(f"s_add_u32 s{S_KV2}, s{S_KV}, 131072")
    g.i(f"s_addc_u32 s{S_KV2+1}, s{S_KV+1}, 0")
    g.i(f"s_mov_b32 s{S_KV2+2}, 131072")
    g.i(f"s_mov_b32 s{S_KV2+3}, 0x20000")
    g.i(f"s_lshl_b32 s{S_LM[0][0]}, s{S_WAVE}, 11")
    g.i(f"s_add_u32 s{S_LM[0][1]}, s{S_LM[0][0]}, 16384")
    g.i(f"s_add_u32 s{S_LM[1][0]}, s{S_LM[0][0]}, {RING}")
    g.i(f"s_add_u32 s{S_LM[1][1]}, s{S_LM[0][0]}, {RING+16384}")
    g.i(f"s_and_b32 s{S_T1}, s{S_TB}, 4")
    g.i(f"s_xor_b32 s{S_T2}, s{S_T1}, 4")
    for i in range(1, 8):
        g.i(f"s_add_u32 s{S_T0}, s{S_TB}, {i}")
        g.i(f"s_and_b32 s{S_T0}, s{S_T0}, 3")
        g.i(f"s_or_b32 s{S_T0}, s{S_T0}, s{S_T1 if i < 4 else S_T2}")
        if i == 1:
            g.i(f"s_lshl_b32 s{S_T3}, s{S_T0}, 2")
            g.i(f"s_lshl_b32 s{S_MK}, 15, s{S_T3}")
        g.i(f"s_lshl_b32 s{S_T0}, s{S_T0}, 14")
        g.i(f"s_add_u32 s{S_KO[i]}, s{S_T0}, s{S_LM[0][0]}")
    g.i(f"s_and_b32 s{S_F}, s{S_HP}, 7")
    g.i(f"s_lshl_b32 s{S_T0}, s{S_F}, 7")
    g.i(f"s_lshl_b32 s55, s{S_WAVE}, 16")
    g.i(f"s_add_u32 s55, s55, s{S_T0}")
    g.i(f"s_lshl_b32 s{S_E}, s{S_WAVE}, 13")
    g.i(f"s_add_u32 s{S_E}, s{S_E}, {L_WO}")
    g.i(f"s_and_b32 s{S_T0}, s{S_WAVE}, 3")
    g.i(f"s_lshl_b32 s{S_T0}, s{S_T0}, 1")
    g.i(f"s_lshl_b32 s{S_T1}, s{S_TB}, 3")
    g.i(f"s_add_u32 s{S_T0}, s{S_T0}, s{S_T1}")
    g.i(f"s_lshl_b32 s{S_OA}, s{S_T0}, 15")
    g.i(f"s_lshr_b32 s{S_T1}, s{S_WAVE}, 2")
    g.i(f"s_lshl_b32 s{S_T2}, s{S_HP}, 1")
    g.i(f"s_add_u32 s{S_T1}, s{S_T1}, s{S_T2}")
    g.i(f"s_lshl_b32 s{S_T2}, s{S_T1}, 10")
    g.i(f"s_add_u32 s{S_OA}, s{S_OA}, s{S_T2}")
    g.i(f"s_add_u32 s{S_OB}, s{S_OA}, 32768")

def attention(g):
    opt = g.opt
    g.lab("L_attn")
    g.stamp(3)
    g.i(f"ds_read_b128 {vr(V_K,4)}, v{V_KA}")
    g.i(f"ds_read_b128 {vr(V_V[0],4)}, v{V_VA}")
    g.i(f"ds_read_b128 {vr(V_V[0]+4,4)}, v{V_VA} offset:512")
    g.i("s_setprio 3")
    g.i("s_waitcnt lgkmcnt(2)")
    g.i(f"v_mfma_f32_32x32x16_bf16 {vr(V_S[0],16)}, {vr(V_K,4)}, {vr(V_Q[0],4)}, 0")
    dry_exit(g)
    g.i("s_nop 9")
    g.i("s_waitcnt lgkmcnt(0)")
    poll = f"buffer_load_dword v{V_F}, v{V_FA}, s[{S_FL}:{S_FL+3}], 0 offen sc1"
    side = []
    ev = {}
    def at(it, p, slot, *ins): ev.setdefault((it, p, slot), []).extend(ins)
    def kv(i, n):
        return f"buffer_load_dwordx4 v{V_L16}, {sr(S_KV2 if n >= 2 else S_KV, 4)}, s{S_KO[i]} offen offset:{1024*(n%2)}{opt.get('kvl', ' sc1')} lds"
    def check(tag, n):
        def f():
            g.i(f"s_waitcnt vmcnt({n})")
            g.i(f"v_cmp_ne_u32 vcc, 1, v{V_F}")
            g.i(f"s_nop {opt.get('x_nop', 0)}")
            g.i(f"s_and_b32 vcc_lo, vcc_lo, s{S_MK}")
            g.i(f"s_cbranch_scc1 L_ol_{tag}")
            g.lab(f"L_olr_{tag}")
            if opt.get('inv'):
                g.i("buffer_inv sc1")
                g.i("s_waitcnt vmcnt(0)")
            side.append((tag, lambda: spin_mask(g, tag, poll)))
        return f
    def publish():
        g.i(f"s_cmp_ge_u32 s{S_WAVE}, 4")
        g.i("s_cbranch_scc1 L_at_nopub")
        g.i(f"s_lshl_b32 s{S_T0}, s{S_TB}, 2")
        g.i(f"s_add_u32 s{S_T0}, s{S_T0}, s{S_WAVE}")
        g.i(f"s_lshl_b64 exec, 1, s{S_T0}")
        g.i(f"v_mov_b32 v{V_F}, 1")
        g.st('pub_pre')
        if opt.get('wbl2'):
            g.i("s_waitcnt vmcnt(0)")
            g.i("buffer_wbl2 sc1")
        g.i("s_waitcnt vmcnt(0)")
        g.st('pub_ack')
        g.i(f"buffer_store_dword v{V_F}, v{V_FA}, s[{S_FL}:{S_FL+3}], 0 offen sc1")
        g.i("s_mov_b64 exec, -1")
        g.lab("L_at_nopub")
    def count():
        g.i(f"s_cmp_lg_u32 s{S_WAVE}, 7")
        g.i("s_cbranch_scc1 L_at_nocnt")
        g.i(f"s_lshl_b32 s{S_T0}, s{S_BR}, 4")
        g.i(f"s_add_u32 s{S_T0}, s{S_T0}, s{S_HP}")
        g.i(f"s_lshl_b32 s{S_T0}, s{S_T0}, 3")
        g.i("s_mov_b64 exec, 1")
        g.i(f"v_mov_b32 v246, s{S_T0}")
        g.i("v_mov_b32 v247, 1")
        g.i(f"buffer_atomic_add v247, v246, s[{S_DBG}:{S_DBG+3}], 0 offen offset:4 sc1")
        g.i("s_mov_b64 exec, -1")
        g.lab("L_at_nocnt")
    pp, pi0, pc0, pi1 = opt.get('ev', (0, 7, 9, 11))
    at(0, pp, 'p1', publish)
    at(0, pi0, 'qk', poll)
    at(0, pc0, 'qk', check("kv0", 0), lambda: g.st('chk_ok'), f"s_mov_b32 m0, s{S_LM[1][0]}", f"s_lshr_b32 s{S_T0}, s{S_TB}, 2",
       kv(1, 0), kv(1, 1), f"s_mov_b32 m0, s{S_LM[1][1]}", f"s_lshl_b32 s{S_T0}, s{S_T0}, 4", kv(1, 2), kv(1, 3),
       f"s_lshl_b32 s{S_MK}, 0xffff, s{S_T0}")
    at(0, pi1, 'qk', poll)
    late = {i: 0 for i in range(8)}
    dp = opt.get('dma', (1, 3, 5, 7))
    for i in range(1, 7):
        sl = (i + 1) % 2
        at(i, dp[0] - 1, 'p2x', f"s_mov_b32 m0, s{S_LM[sl][0]}")
        at(i, dp[0], 'qk', kv(i + 1, 0))
        at(i, dp[1], 'qk', kv(i + 1, 1))
        at(i, dp[2], 'p2', f"s_mov_b32 m0, s{S_LM[sl][1]}")
        at(i, dp[2], 'qk', kv(i + 1, 2))
        at(i, dp[3], 'qk', kv(i + 1, 3))
    CK2 = opt.get('ck2', 2)
    at(CK2, 7, 'p1', poll)
    wp = opt.get('wop', (9, 11))
    for i in range(1, 5):
        for k, p in enumerate(wp):
            at(i, p, 'p2', f"s_add_u32 m0, s{S_E}, {(2*(i-1)+k)*1024}")
            at(i, p, 'qk', f"buffer_load_dwordx4 v{V_WOA}, s[{S_WO}:{S_WO+3}], s55 offen lds")
            at(i, p, 'p1', "s_add_u32 s55, s55, 8192")
        late[i] += 2
    for k, so in enumerate((S_OA, S_OB)):
        at(5, 9 + 2 * k, 'qk', f"buffer_store_dwordx4 v[252:255], v{V_L16}, s[{S_O}:{S_O+3}], s{so} offen sc1")
    late[5] += 2
    at(7, 1, 'qk', count)
    if opt.get('x_late0'): late = {i: 0 for i in range(8)}
    prio = opt.get('prio', {0: 3, 5: 2, 10: 1, 13: 0})
    for i in range(8):
        for p, v in prio.items():
            ii, q = (i, p - 1) if p else (i - 1, 15)
            if ii >= 0: at(ii, q, 'p1', f"s_setprio {v}")
    def emit(it, p, slot):
        for x in ev.pop((it, p, slot), []):
            x() if callable(x) else g.i(x)
    p2, pq, p1 = opt.get('pos', (1, 5, 10))
    for it in range(8):
        if opt.get('itst'):
            g.i("s_memtime s[98:99]")
            g.i("s_waitcnt lgkmcnt(0)")
            g.i(f"v_writelane_b32 v250, s98, {it}")
        for p in range(2 * U):
            b, t = p % 2, p // 2
            S, So = V_S[b], V_S[1 - b]
            nt = (t + 1) % U
            sl = (it + (t == U - 1)) % 2
            VA = V_VB if sl else V_VA
            last = it == 7 and t == U - 1
            for e in range(16):
                g.i(f"v_exp_f32 v{S+e}, v{S+e}")
                if e == p2:
                    tp = (p - 1) // 2
                    if it or p:
                        g.i(f"v_smfmac_f32_32x32x32_bf16 {vr(V_O[1-b],16)}, {vr(V_V[tp%2]+4,4)}, {vr(So+8,8)}, v{V_IDX}")
                    emit(it, p, 'p2x')
                    if b == 0:
                        if t == U - 1 and it < 7:
                            if it == 0: check("kv1", 0)(); g.st('chk1_ok'); g.i(f"s_mov_b32 s{S_MK}, -1")
                            elif it == CK2: check("kv2", late[it])()
                            else: g.i(f"s_waitcnt vmcnt({late[it]})")
                            g.i("s_barrier")
                        if not last: g.i(f"ds_read_b128 {vr(V_V[(t+1)%2],4)}, v{VA} offset:{nt*2048}")
                    elif not last:
                        g.i("s_waitcnt lgkmcnt(1)")
                    emit(it, p, 'p2')
                if e == pq:
                    if not (last and b):
                        g.i(f"v_mfma_f32_32x32x16_bf16 {vr(So,16)}, {vr(V_K,4)}, {vr(V_Q[1-b],4)}, 0")
                    if b == 0 and not last:
                        g.i(f"ds_read_b128 {vr(V_K,4)}, v{V_KA} offset:{sl*RING+nt*2048}")
                    emit(it, p, 'qk')
                if e == p1:
                    g.i(f"v_smfmac_f32_32x32x32_bf16 {vr(V_O[b],16)}, {vr(V_V[t%2],4)}, {vr(S,8)}, v{V_IDX}")
                    if b == 0 and not last:
                        g.i(f"ds_read_b128 {vr(V_V[(t+1)%2]+4,4)}, v{VA} offset:{nt*2048+512}")
                    elif not last:
                        g.i("s_waitcnt lgkmcnt(0)")
                    emit(it, p, 'p1')
    assert not ev, ev
    g.side = side
    g.lab("L_at_done")
    g.i("s_nop 1")
    g.i(f"v_smfmac_f32_32x32x32_bf16 {vr(V_O[1],16)}, {vr(V_V[1]+4,4)}, {vr(V_S[1]+8,8)}, v{V_IDX}")
    g.stamp(4)
    if opt.get('itst'):
        g.i("s_memtime s[98:99]")
        g.i("s_waitcnt lgkmcnt(0)")
        g.i(f"v_writelane_b32 v250, s98, 8")
    g.i(f"s_mov_b32 s{S_T0}, 0x2b800000")
    g.i(f"s_mov_b32 s{S_T1}, 0x53800000")
    g.i(f"s_mov_b32 s{S_T2}, 0x7f800000")
    for q in range(2):
        O = V_O[q]
        g.i(f"v_add_f32 v6, abs(v{O}), abs(v{O+1})")
        g.i(f"v_add_f32 v7, abs(v{O+2}), abs(v{O+3})")
        for r in range(4, 8, 2):
            g.i(f"v_add_f32 v6, v6, abs(v{O+r})")
            g.i(f"v_add_f32 v7, v7, abs(v{O+r+1})")
        g.i(f"v_add_f32 v6, v6, v7")
        g.i(f"v_cmp_nle_f32 s[{S_M}:{S_M+1}], s{S_T0}, v{O+8}")
        g.i(f"v_cmp_nge_f32 s[{S_M+2}:{S_M+3}], s{S_T1}, v{O+8}")
        g.i(f"v_cmp_ngt_f32 vcc, s{S_T2}, v6")
        g.i(f"v_rcp_f32 v{V_S[0]+q}, v{O+8}")
        g.i(f"s_or_b64 s[{S_M}:{S_M+1}], s[{S_M}:{S_M+1}], s[{S_M+2}:{S_M+3}]")
        g.i(f"s_or_b64 s[{S_M}:{S_M+1}], s[{S_M}:{S_M+1}], vcc")
        g.i("s_branch L_fallback" if opt.get('force_fallback') else "s_cbranch_scc1 L_fallback")
    g.lab("L_at_store")
    for q in range(2):
        O = V_O[q]
        for r in range(8):
            g.i(f"v_mul_f32 v{O+r}, v{O+r}, v{V_S[0]+q}")
        for r in range(4):
            g.i(f"v_cvt_pk_bf16_f32 v{O+r}, v{O+2*r}, v{O+2*r+1}")
        g.i(f"buffer_store_dwordx4 {vr(O,4)}, v{V_L16}, s[{S_O}:{S_O+3}], s{S_OB if q else S_OA} offen sc1")

P_WO = 100
P_OF = 8
def outproj(g):
    opt = g.opt
    A0, A1 = 228, 72
    WA0, WA1, RA, OA = 244, 245, 246, 247
    g.i(f"s_lshr_b32 s{S_E}, s{S_WAVE}, 2")
    g.i(f"s_lshl_b32 s{S_T0}, s{S_E}, 15")
    g.i(f"s_add_u32 s{S_T0}, s{S_T0}, {L_WO}")
    g.i("v_lshrrev_b32 v6, 5, v0")
    g.i("v_bfe_u32 v7, v0, 2, 2")
    g.i("v_lshl_add_u32 v6, v6, 2, v7")
    g.i(f"v_lshl_add_u32 v6, v6, 7, s{S_T0}")
    g.i("v_bfe_u32 v7, v0, 3, 2")
    g.i("v_and_b32 v2, 1, v7")
    g.i("v_lshl_add_u32 v6, v2, 6, v6")
    g.i("v_lshrrev_b32 v7, 1, v7")
    g.i("v_lshl_add_u32 v6, v7, 5, v6")
    g.i("v_and_b32 v7, 3, v0")
    g.i(f"v_lshl_add_u32 v6, v7, 3, v6")
    g.i(f"s_lshl_b32 s{S_T0}, s{S_E}, 6")
    g.i(f"v_xor_b32 v{WA0}, s{S_T0}, v6")
    g.i(f"v_xor_b32 v{WA1}, 64, v{WA0}")
    n = 0
    def wo_reads(s0, s1):
        for s in range(s0, s1):
            for f in range(2):
                for i in range(2):
                    g.i(f"ds_read_b64_tr_b16 {vr(P_WO+8*s+4*f+2*i,2)}, v{WA1 if f else WA0} offset:{s*2048+i*1024}")
    g.stamp(5)
    g.i(f"s_lshl_b32 s{S_T0}, s{S_BR}, 7")
    g.i("v_and_b32 v6, 15, v0")
    g.i(f"v_lshl_add_u32 v4, v6, 3, s{S_T0}")
    g.i(f"buffer_load_dword v5, v4, s[{S_DBG}:{S_DBG+3}], 0 offen offset:4 sc1")
    for s0 in range(0, 16, 3):
        if s0: g.i("s_waitcnt lgkmcnt(2)")
        wo_reads(s0, min(s0 + 3, 16))
    g.i(f"s_lshr_b32 s{S_T0}, s{S_HP}, 3")
    g.i(f"s_lshl_b32 s{S_T0}, s{S_T0}, 2")
    g.i(f"s_and_b32 s{S_T1}, s{S_WAVE}, 3")
    g.i(f"s_add_u32 s{S_A}, s{S_T0}, s{S_T1}")
    g.i(f"s_lshl_b32 s{S_T0}, s{S_TB}, 3")
    g.i(f"s_add_u32 s{S_A}, s{S_A}, s{S_T0}")
    g.i(f"s_lshl_b32 s{S_B}, s{S_A}, 15")
    g.i(f"s_lshl_b32 s{S_T0}, s{S_E}, 14")
    g.i(f"s_add_u32 s{S_B}, s{S_B}, s{S_T0}")
    g.i(f"s_add_u32 s{S_C}, s{S_B}, 4096")
    g.i(f"s_add_u32 s{S_D}, s{S_B}, 8192")
    g.i(f"s_add_u32 s{S_IT}, s{S_B}, 12288")
    g.i(f"v_lshlrev_b32 v2, 10, v6")
    g.i(f"v_add_u32 v2, 1020, v2")
    g.i(f"s_lshl_b32 s{S_T0}, s{S_WAVE}, 12")
    g.i(f"v_add_u32 v{RA}, s{S_T0}, v{V_L16}")
    g.i("v_and_b32 v6, 31, v0")
    g.i("v_lshlrev_b32 v6, 11, v6")
    g.i("v_lshrrev_b32 v7, 5, v0")
    g.i(f"v_lshl_add_u32 v{OA}, v7, 4, v6")
    g.i(f"s_lshl_b32 s{S_A}, s{S_A}, 16")
    g.i(f"s_lshl_b32 s{S_T0}, s{S_BR}, 10")
    g.i(f"s_add_u32 s{S_A}, s{S_A}, s{S_T0}")
    g.i(f"s_lshl_b32 s{S_T0}, s{S_F}, 7")
    g.i(f"s_add_u32 s{S_A}, s{S_A}, s{S_T0}")
    g.i(f"s_lshl_b32 s{S_T0}, s{S_E}, 6")
    g.i(f"s_add_u32 s{S_A}, s{S_A}, s{S_T0}")
    g.i(f"s_mov_b32 s{S_T3}, 0")
    g.lab("L_spin_c")
    g.i("s_waitcnt vmcnt(0)")
    g.i("v_cmp_gt_u32 vcc, 8, v5")
    g.i(f"s_add_u32 s{S_T3}, s{S_T3}, 1")
    g.i("s_cbranch_vccz L_spin_o")
    g.i(f"buffer_load_dword v5, v4, s[{S_DBG}:{S_DBG+3}], 0 offen offset:4 sc1")
    g.i(f"s_cmp_lt_u32 s{S_T3}, {SPIN_MAX}")
    g.i("s_cbranch_scc1 L_spin_c")
    g.lab("L_spin_o")
    if opt.get('probe', 1):
        g.i("s_mov_b64 exec, 0xffff")
        g.i(f"buffer_load_dword v3, v2, s[{S_O}:{S_O+3}], s{S_B} offen sc1")
        g.i(f"s_add_u32 s{S_T3}, s{S_T3}, 1")
        g.i("s_waitcnt vmcnt(0)")
        g.i("v_cmp_eq_u32 vcc, -1, v3")
        g.i("s_mov_b64 exec, -1")
        g.i(f"s_cmp_ge_u32 s{S_T3}, {SPIN_MAX}")
        g.i("s_cbranch_scc1 L_spun_o")
        if opt.get('sleep'): g.i(f"s_sleep {opt['sleep']}")
        g.i("s_cbranch_vccnz L_spin_o")
    else:
        g.i(f"s_add_u32 s{S_T3}, s{S_T3}, 1")
    g.lab("L_spun_o")
    g.stamp(6)
    for s in range(16):
        so = (S_B, S_C, S_D, S_IT)[s // 4]
        g.i(f"buffer_load_dwordx4 {vr(P_OF+4*s,4)}, v{V_L16}, s[{S_O}:{S_O+3}], s{so} offen offset:{1024*(s%4)} sc1")
    g.i("v_mov_b32 v3, 0")
    g.i("s_waitcnt lgkmcnt(0)")
    for s in range(16):
        g.i(f"s_waitcnt vmcnt({15-s})")
        for f, A in ((1, A1), (0, A0)):
            g.i(f"v_mfma_f32_32x32x16_bf16 {vr(A,16)}, {vr(P_WO+8*s+4*f,4)}, {vr(P_OF+4*s,4)}, {vr(A,16) if s else 0}")
            g.i(f"v_max3_u32 v3, v3, v{P_OF+4*s+2*f}, v{P_OF+4*s+2*f+1}")
    g.i("v_cmp_eq_u32 vcc, -1, v3")
    g.i(f"s_cmp_ge_u32 s{S_T3}, {SPIN_MAX}")
    g.i("s_cbranch_scc1 L_op_go")
    g.i("s_cbranch_vccnz L_spin_o")
    g.lab("L_op_go")
    g.i("s_nop 5")
    for r in range(4):
        g.i(f"ds_write_b128 v{RA}, {vr(A1+4*r,4)} offset:{1024*r}")
    g.i("s_waitcnt lgkmcnt(0)")
    g.i(f"v_xor_b32 v{RA}, 16384, v{RA}")
    barrier_unless_dry(g, "b9")
    for r in range(4):
        g.i(f"ds_read_b128 {vr(P_OF+4*r,4)}, v{RA} offset:{1024*r}")
    for r in range(4):
        g.i(f"s_waitcnt lgkmcnt({3-r})")
        for k in range(4):
            g.i(f"v_add_f32 v{A0+4*r+k}, v{A0+4*r+k}, v{P_OF+4*r+k}")
        for k in range(2):
            g.i(f"v_cvt_pk_bf16_f32 v{24+2*r+k}, v{A0+4*r+2*k}, v{A0+4*r+2*k+1}")
        if r % 2:
            g.i("s_nop 1")
            g.i(f"v_permlane32_swap_b32 v{24+2*r-2}, v{24+2*r}")
            g.i(f"v_permlane32_swap_b32 v{24+2*r-1}, v{24+2*r+1}")
            g.i(f"buffer_store_dwordx4 {vr(24+2*r-2,4)}, v{OA}, s[{S_OUT}:{S_OUT+3}], s{S_A} offen offset:{16*(r-1)}{opt.get('outs','')}")
    dry_exit(g)
    if g.diag:
        g.i("s_waitcnt vmcnt(0)")
        g.stamp(7)
        g.i("s_waitcnt lgkmcnt(0)")
        if g.diag == 3:
            a_, b_, K = opt['leak']
            if a_ in (1, 2) or b_ in (1, 2):
                g.i(f"s_cmp_ge_u32 s{S_WAVE}, 4")
                g.i("s_cbranch_scc1 L_end")
            g.i(f"s_sub_u32 s{S_T0}, s{66+4*b_}, s{66+4*a_}")
            g.i(f"s_mul_i32 s{S_T0}, s{S_T0}, {K}")
            g.lab("L_leak")
            g.i("s_memrealtime s[98:99]")
            g.i("s_waitcnt lgkmcnt(0)")
            g.i(f"s_sub_u32 s{S_T1}, s98, s{66+4*7}")
            g.i(f"s_cmp_lt_u32 s{S_T1}, s{S_T0}")
            g.i("s_cbranch_scc1 L_leak")
            g.i("s_endpgm")
        if g.diag == 2:
            g.i(f"s_cmp_ge_u32 s{S_WAVE}, 4")
            g.i("s_cbranch_scc1 L_end")
            g.i("s_mov_b64 exec, 1")
            for k in range(1, 8):
                g.i(f"s_sub_u32 s{S_T0}, s{66+4*k}, s66")
                g.i(f"v_mov_b32 v6, s{S_T0}")
                g.i(f"v_mov_b32 v7, {8*k+4}")
                g.i(f"buffer_atomic_umax v6, v7, s[{S_DBG}:{S_DBG+3}], 0 offen sc1")
            g.i(f"s_sub_u32 s{S_T0}, s{64+4*4}, s{64+4*3}")
            g.i(f"v_mov_b32 v6, s{S_T0}")
            g.i(f"v_mov_b32 v7, 4")
            g.i(f"buffer_atomic_umax v6, v7, s[{S_DBG}:{S_DBG+3}], 0 offen sc1")
            g.i("s_endpgm")
        g.i(f"s_lshl_b32 s{S_T0}, s2, 3")
        g.i(f"s_add_u32 s{S_T0}, s{S_T0}, s{S_WAVE}")
        g.i(f"s_lshl_b32 s{S_T0}, s{S_T0}, 7")
        g.i(f"s_add_u32 s{S_T0}, s{S_T0}, {WS_STAMP}")
        srd(g.a, S_X, 96, 128, f"s{S_T0}")
        for k in range(32):
            g.i(f"v_mov_b32 v{36+k}, s{64+k}")
        g.i("v_mov_b32 v6, 0")
        for k in range(8):
            g.i(f"buffer_store_dwordx4 {vr(36+4*k,4)}, v6, s[{S_X}:{S_X+3}], 0 offen offset:{16*k}")
        if opt.get('itst'):
            g.i(f"s_add_u32 s{S_T0}, s{S_T0}, {1<<20}")
            srd(g.a, S_X, 96, 64, f"s{S_T0}")
            g.i("v_lshlrev_b32 v6, 2, v0")
            g.i(f"buffer_store_dword v250, v6, s[{S_X}:{S_X+3}], 0 offen")
    g.lab("L_end")
    g.i("s_endpgm")

def fallback(g):
    C = [100, 116]; M = [132, 133]; GV = 134
    g.lab("L_fallback")
    g.i(f"s_lshr_b32 s{S_T0}, s{S_WAVE}, 2")
    g.i(f"s_lshl_b32 s{S_T0}, s{S_T0}, 17")
    g.i(f"v_mov_b32 v{M[0]}, 0xff800000")
    g.i(f"v_mov_b32 v{M[1]}, 0xff800000")
    g.i(f"s_mov_b32 s{S_T1}, s{S_T0}")
    g.i(f"s_add_u32 s{S_T2}, s{S_T0}, 131072")
    g.lab("L_fb_max")
    g.i(f"buffer_load_dwordx4 {vr(V_K,4)}, v{V_L16}, s[{S_KV}:{S_KV+3}], s{S_T1} offen sc1")
    g.i(f"s_add_u32 s{S_T1}, s{S_T1}, 2048")
    g.i("s_waitcnt vmcnt(0)")
    for q in range(2):
        g.i(f"v_mfma_f32_32x32x16_bf16 {vr(V_S[q],16)}, {vr(V_K,4)}, {vr(V_Q[q],4)}, 0")
    g.i("s_nop 15")
    for q in range(2):
        for r in range(0, 16, 2):
            g.i(f"v_max3_f32 v{M[q]}, v{M[q]}, v{V_S[q]+r}, v{V_S[q]+r+1}")
    g.i(f"s_cmp_lt_u32 s{S_T1}, s{S_T2}")
    g.i("s_cbranch_scc1 L_fb_max")
    for q in range(2):
        g.i(f"v_mov_b32 v6, v{M[q]}")
        g.i(f"v_mov_b32 v7, v{M[q]}")
        g.i("s_nop 1")
        g.i("v_permlane32_swap_b32 v6, v7")
        g.i("s_nop 1")
        g.i("v_max_f32 v6, v6, v7")
        for r in range(16):
            g.i(f"v_sub_f32 v{C[q]+r}, 0, v6")
            g.i(f"v_mov_b32 v{V_O[q]+r}, 0")
    g.i("v_and_b32 v6, 15, v0")
    g.i("v_lshlrev_b32 v6, 4, v6")
    g.i("v_lshrrev_b32 v7, 5, v0")
    g.i(f"v_lshl_add_u32 v{GV}, v7, 8, v6")
    for r in range(8):
        g.i(f"v_mov_b32 v{V_V[0]+r}, 0x3f803f80")
    g.i(f"s_mov_b32 s{S_T1}, s{S_T0}")
    g.i(f"s_mov_b32 s{S_M}, 0xffff")
    g.i(f"s_mov_b32 s{S_M+1}, 0xffff")
    g.lab("L_fb_pv")
    g.i(f"buffer_load_dwordx4 {vr(V_K,4)}, v{V_L16}, s[{S_KV}:{S_KV+3}], s{S_T1} offen sc1")
    g.i(f"s_mov_b64 exec, s[{S_M}:{S_M+1}]")
    g.i(f"buffer_load_dwordx4 {vr(V_V[0],4)}, v{GV}, s[{S_KV}:{S_KV+3}], s{S_T1} offen offset:1024 sc1")
    g.i(f"buffer_load_dwordx4 {vr(V_V[0]+4,4)}, v{GV}, s[{S_KV}:{S_KV+3}], s{S_T1} offen offset:1536 sc1")
    g.i("s_mov_b64 exec, -1")
    g.i(f"s_add_u32 s{S_T1}, s{S_T1}, 2048")
    g.i("s_waitcnt vmcnt(0)")
    for q in range(2):
        g.i(f"v_mfma_f32_32x32x16_bf16 {vr(V_S[q],16)}, {vr(V_K,4)}, {vr(V_Q[q],4)}, {vr(C[q],16)}")
    g.i("s_nop 15")
    for q in range(2):
        for r in range(16):
            g.i(f"v_exp_f32 v{V_S[q]+r}, v{V_S[q]+r}")
    g.i("s_nop 3")
    for q in range(2):
        for h in range(2):
            g.i(f"v_smfmac_f32_32x32x32_bf16 {vr(V_O[q],16)}, {vr(V_V[0]+4*h,4)}, {vr(V_S[q]+8*h,8)}, v{V_IDX}")
    g.i("s_nop 15")
    g.i(f"s_cmp_lt_u32 s{S_T1}, s{S_T2}")
    g.i("s_cbranch_scc1 L_fb_pv")
    for q in range(2):
        g.i(f"v_rcp_f32 v{V_S[0]+q}, v{V_O[q]+8}")
    g.i("s_nop 1")
    g.i("s_branch L_at_store")

HEADER = open('cdna_kernels/' + NAME + '.s.ref').read().split('; Override launch')[0]

def generate(opt={}):
    global WS_KV, WS_O, WS_FLAG
    off = opt.get('wsoff', 0) << 20
    WS_KV, WS_O, WS_FLAG = (4 << 20) + off, (12 << 20) + off, (16 << 20) + off
    g = G(opt)
    name = NAME + "_kernel"
    g.a(HEADER.rstrip())
    g.a(f"; @launch grid=(256,1,1) block=(512,1,1) lds={LDS_TOTAL}")
    g.a('.amdgcn_target "amdgcn-amd-amdhsa--gfx950"')
    entry(g, name)
    if opt.get('lfirst', 1): loader(g)
    compute(g)
    attention(g)
    outproj(g)
    if not opt.get('lfirst', 1): loader(g)
    g.lab("L_code_end")
    for tag, body in g.side:
        g.lab(f"L_ol_{tag}")
        body()
        g.i(f"s_branch L_olr_{tag}")
    fallback(g)
    kernel_desc(g.a, name, NVGPR, 256, 102)
    return g.a.text()

if __name__ == "__main__":
    import sys
    opt = eval(sys.argv[2]) if len(sys.argv) > 2 else {}
    open(sys.argv[1], 'w').write(generate(opt))
```

```python
import math, struct
from common import *

WS_FLAG = 16 << 20
SLOT = 45056; SLOT_W = 32768
RING = 32768
L_WO = 65536
L_CONST = 135168
L_QX = 155648
LDS_TOTAL = 163840
S_X, S_W, S_WO, S_KV, S_O, S_FL, S_DBG, S_OUT = 8, 12, 16, 20, 24, 28, 32, 36
S_WAVE, S_BR, S_HP, S_TB, S_IT, S_T0, S_T1, S_T2, S_T3 = 40, 41, 42, 43, 44, 45, 46, 47, 48
S_A, S_B, S_C, S_D, S_E, S_F = 49, 50, 51, 52, 53, 54
S_M = 56
V_L16, V_KA, V_VA, V_VX, V_IDX, V_T0, V_T1 = 1, 2, 3, 4, 5, 6, 7
V_Q = [8, 12]; V_K = 16; V_V = [20, 28]; V_S = [36, 52]; V_O = [68, 84]
V_F = 241
V_FA = 242
V_WOA = 243
V_ACC = 100
V_FR = [196, 216]
V_XA = 236; V_WA = 240
NVGPR = 256
QSCALE = struct.unpack('<I', struct.pack('<f', 0.25 * math.log2(math.e)))[0]
SPIN_MAX = 1 << 20
S_DRY = 3

class G:
    def __init__(self, opt):
        self.a = Asm(); self.opt = opt; self.diag = opt.get('diag', 0)
    def i(self, s): self.a.i(s)
    def lab(self, s): self.a.label(s)
    def st(self, name):
        m = self.opt.get('st', {})
        if name in m: self.stamp(m[name], True)
    def stamp(self, k, forced=False):
        if k in self.opt.get('st', {}).values() and not forced: return
        if self.diag:
            self.i(f"s_memtime s[{64+4*k}:{65+4*k}]")
            self.i(f"s_memrealtime s[{66+4*k}:{67+4*k}]")

def dry_exit(g, label="L_dry_ret"):
    if g.opt.get('dry', 1):
        g.i(f"s_cmp_lg_u32 s{S_DRY}, 0")
        g.i(f"s_cbranch_scc1 {label}")

def barrier_unless_dry(g, tag):
    dry_exit(g, f"L_nb_{tag}")
    g.i("s_barrier")
    g.lab(f"L_nb_{tag}")

def spin(g, tag, load, want, nlanes_mask=None):
    g.i(f"s_mov_b32 s{S_T3}, 0")
    g.lab(f"L_spin_{tag}")
    g.i(load)
    g.i(f"s_add_u32 s{S_T3}, s{S_T3}, 1")
    g.i("s_waitcnt vmcnt(0)")
    g.i(f"v_cmp_{'gt' if want > 1 else 'ne'}_u32 vcc, {want}, v{V_F}")
    g.i(f"s_cmp_ge_u32 s{S_T3}, {SPIN_MAX}")
    g.i(f"s_cbranch_scc1 L_spun_{tag}")
    g.i(f"s_cbranch_vccnz L_spin_{tag}")
    g.lab(f"L_spun_{tag}")

def entry(g, name):
    a = g.a
    kernel_head(a, name)
    PF = g.opt.get('cpf', 1)
    if PF:
        g.i("s_getpc_b64 s[8:9]")
        g.i("v_lshlrev_b32 v6, 7, v0")
        g.i("s_mov_b32 s10, L_code_end-" + name + "-4")
        g.i("s_mov_b32 s11, 0x20000")
    g.i("s_cmp_ge_u32 s2, 256")
    g.i("s_cbranch_scc1 L_end")
    if PF:
        g.i("buffer_load_dword v246, v6, s[8:11], 0 offen")
    g.stamp(0)
    g.i(f"s_mov_b32 s{S_DRY}, 0")
    g.i(f"s_bfe_u32 s{S_BR}, s2, 0x10002")
    g.i(f"s_mul_i32 s{S_T0}, s{S_BR}, 24")
    g.i(f"s_load_dwordx4 s[{S_M}:{S_M+3}], s[0:1], s{S_T0}")
    g.i(f"s_load_dwordx2 s[{S_M+4}:{S_M+5}], s[0:1], s{S_T0} offset:16")
    g.i("s_load_dwordx4 s[4:7], s[0:1], 48")
    g.i(f"s_load_dwordx2 s[{S_M+6}:{S_M+7}], s[0:1], 64")
    g.i("v_lshrrev_b32 v6, 6, v0")
    g.i("v_and_b32 v0, 63, v0")
    g.i(f"v_readfirstlane_b32 s{S_WAVE}, v6")
    g.i(f"v_lshlrev_b32 v{V_L16}, 4, v0")
    g.i(f"s_bfe_u32 s{S_HP}, s2, 0x10001")
    g.i(f"s_lshl_b32 s{S_HP}, s{S_HP}, 3")
    g.i(f"s_bfe_u32 s{S_T0}, s2, 0x30003")
    g.i(f"s_add_u32 s{S_HP}, s{S_HP}, s{S_T0}")
    g.i(f"s_and_b32 s{S_TB}, s2, 1")
    g.i(f"s_lshl_b32 s{S_TB}, s{S_TB}, 2")
    g.i(f"s_lshr_b32 s{S_T0}, s2, 6")
    g.i(f"s_add_u32 s{S_TB}, s{S_TB}, s{S_T0}")
    g.i(f"s_lshl_b32 s{S_T0}, s{S_TB}, 18")
    g.i(f"s_lshl_b32 s{S_T1}, s{S_BR}, 4")
    g.i(f"s_add_u32 s{S_T1}, s{S_T1}, s{S_HP}")
    g.i(f"s_lshl_b32 s{S_T2}, s{S_T1}, 18")
    g.i(f"s_add_u32 s{S_T2}, s{S_T2}, {WS_KV}")
    g.i(f"s_lshl_b32 s{S_T3}, s{S_BR}, 21")
    g.i(f"s_add_u32 s{S_T3}, s{S_T3}, {WS_O}")
    if g.opt.get('lfirst', 1):
        g.i(f"s_cmp_lt_u32 s{S_WAVE}, 4")
        g.i("s_cbranch_scc1 L_compute")
    else:
        g.i(f"s_cmp_ge_u32 s{S_WAVE}, 4")
        g.i("s_cbranch_scc1 L_loader")

def early_srds(g):
    g.i("s_waitcnt lgkmcnt(0)")
    g.st('karg')
    srd(g.a, S_X, S_M, 256 * 1024, f"s{S_T0}")
    srd(g.a, S_W, S_M + 2, 512 * 1536 * 2)

def late_srds(g):
    a = g.a
    srd(a, S_WO, S_M + 4, 512 * 512 * 2)
    srd(a, S_KV, S_M + 6, 256 * 1024, f"s{S_T2}")
    srd(a, S_O, S_M + 6, 2 << 20, f"s{S_T3}")
    srd(a, S_FL, S_M + 6, 4096, str(WS_FLAG))
    srd(a, S_DBG, 6, 256)
    srd(a, S_OUT, 4, 2048 * 1024 * 2)
    if g.diag:
        g.i(f"s_mov_b32 s96, s{S_M+6}")
        g.i(f"s_mov_b32 s97, s{S_M+7}")

def attn_consts(g):
    g.i(f"s_lshr_b32 s{S_T0}, s{S_WAVE}, 2")
    g.i(f"s_lshl_b32 s{S_T0}, s{S_T0}, 14")
    g.i(f"v_add_u32 v{V_KA}, s{S_T0}, v{V_L16}")
    g.i(f"v_and_b32 v{V_T0}, 15, v0")
    g.i(f"v_lshlrev_b32 v{V_T0}, 4, v{V_T0}")
    g.i(f"v_lshrrev_b32 v{V_T1}, 5, v0")
    g.i(f"v_lshl_add_u32 v{V_T0}, v{V_T1}, 8, v{V_T0}")
    g.i(f"s_add_u32 s{S_T0}, s{S_T0}, 1024")
    g.i(f"v_add_u32 v{V_VA}, s{S_T0}, v{V_T0}")
    g.i(f"v_and_b32 v{V_T0}, 31, v0")
    g.i(f"v_subrev_u32 v{V_T1}, 20, v{V_T0}")
    g.i(f"v_cmp_gt_u32 vcc, 8, v{V_T1}")
    g.i(f"v_mov_b32 v{V_T1}, {L_CONST+16}")
    g.i(f"v_mov_b32 v{V_VX}, {L_CONST+16+64}")
    g.i(f"v_cndmask_b32 v{V_T1}, v{V_T1}, v{V_VX}, vcc")
    g.i(f"v_and_b32 v{V_VX}, 27, v0")
    g.i(f"v_cmp_eq_u32 vcc, 16, v{V_VX}")
    g.i(f"v_subrev_u32 v{V_VX}, 16, v{V_T1}")
    g.i("s_nop 0")
    g.i(f"v_cndmask_b32 v{V_T1}, v{V_T1}, v{V_VX}, vcc")
    g.i(f"v_cmp_gt_u32 vcc, 16, v{V_T0}")
    g.i(f"v_mov_b32 v{V_T0}, {RING}")
    g.i(f"v_mov_b32 v{V_IDX}, 0xdddd")
    g.i(f"v_cndmask_b32 v{V_VA}, v{V_T1}, v{V_VA}, vcc")
    g.i(f"v_cndmask_b32 v{V_VX}, 0, v{V_T0}, vcc")
    g.i(f"v_add_u32 v{V_VX}, v{V_VX}, v{V_VA}")
    g.i("v_mov_b64 v[252:253], -1")
    g.i("v_mov_b64 v[254:255], -1")
    for r in range(0, 32, 2):
        g.i(f"v_mov_b64 v[{V_O[0]+r}:{V_O[0]+r+1}], 0")
    g.i(f"s_lshl_b32 s{S_T0}, s{S_BR}, 4")
    g.i(f"s_add_u32 s{S_T0}, s{S_T0}, s{S_HP}")
    g.i(f"s_lshl_b32 s{S_T0}, s{S_T0}, 7")
    g.i(f"v_and_b32 v6, 31, v0")
    g.i(f"v_lshl_add_u32 v{V_FA}, v6, 2, s{S_T0}")
    g.i(f"v_lshrrev_b32 v{V_T0}, 2, v0")
    g.i(f"v_and_b32 v{V_T0}, 4, v{V_T0}")
    g.i(f"v_and_b32 v{V_T1}, 7, v0")
    g.i(f"v_xor_b32 v{V_T0}, v{V_T0}, v{V_T1}")
    g.i(f"v_lshlrev_b32 v{V_T0}, 4, v{V_T0}")
    g.i(f"v_lshrrev_b32 v{V_T1}, 3, v0")
    g.i(f"v_lshl_add_u32 v{V_WOA}, v{V_T1}, 10, v{V_T0}")

def consts(g):
    g.i(f"s_cmp_lg_u32 s{S_WAVE}, 4")
    g.i("s_cbranch_scc1 L_ld_noconst")
    g.i("v_lshrrev_b32 v6, 2, v0")
    g.i("v_and_b32 v7, 1, v6")
    g.i("v_lshlrev_b32 v7, 9, v7")
    g.i("v_lshrrev_b32 v6, 1, v6")
    g.i("v_lshl_add_u32 v7, v6, 11, v7")
    g.i("v_and_b32 v6, 1, v0")
    g.i("v_lshl_add_u32 v7, v6, 4, v7")
    g.i("v_cmp_eq_u32 vcc, 0, v6")
    g.i("v_and_b32 v6, 2, v0")
    g.i("v_lshl_add_u32 v7, v6, 5, v7")
    g.i("v_mov_b32 v6, 0x3f803f80")
    g.i(f"v_add_u32 v7, {L_CONST}, v7")
    g.i("v_cndmask_b32 v108, 0, v6, vcc")
    g.i("v_cndmask_b32 v109, 0, v6, vcc")
    g.i("v_cndmask_b32 v110, 0, v6, vcc")
    g.i("v_cndmask_b32 v111, 0, v6, vcc")
    g.i("ds_write_b128 v7, v[108:111]")
    g.lab("L_ld_noconst")

def loader(g):
    VX, VW, VT = 100, 104, 112
    LEAD = g.opt.get('lead', 0)
    g.lab("L_loader")
    g.i(f"s_sub_u32 s{S_A}, s{S_WAVE}, 4")
    S_CH, S_TX = S_F, 55
    RM = g.opt.get('rot', 7)
    if RM == 1:
        g.i(f"s_lshl_b32 s{S_CH}, s{S_TB}, 1")
        g.i(f"s_lshr_b32 s{S_T1}, s{S_TB}, 2")
        g.i(f"s_add_u32 s{S_CH}, s{S_CH}, s{S_T1}")
        g.i(f"s_and_b32 s{S_CH}, s{S_CH}, 7")
    elif RM == 2:
        g.i(f"s_mov_b32 s{S_CH}, s{S_TB}")
    elif RM == 7:
        g.i(f"s_and_b32 s{S_T1}, s{S_HP}, 1")
        g.i(f"s_lshl_b32 s{S_T1}, s{S_T1}, 2")
        g.i(f"s_add_u32 s{S_CH}, s{S_TB}, s{S_T1}")
        g.i(f"s_and_b32 s{S_CH}, s{S_CH}, 7")
    elif RM == 8:
        g.i(f"s_lshl_b32 s{S_CH}, s{S_TB}, 1")
        g.i(f"s_bfe_u32 s{S_T1}, s{S_HP}, 0x10001")
        g.i(f"s_add_u32 s{S_CH}, s{S_CH}, s{S_T1}")
        g.i(f"s_and_b32 s{S_CH}, s{S_CH}, 7")
    elif RM == 9:
        g.i(f"s_lshl_b32 s{S_CH}, s{S_TB}, 1")
        g.i(f"s_and_b32 s{S_T1}, s{S_HP}, 3")
        g.i(f"s_add_u32 s{S_CH}, s{S_CH}, s{S_T1}")
        g.i(f"s_and_b32 s{S_CH}, s{S_CH}, 7")
    elif RM == 0:
        g.i(f"s_mov_b32 s{S_CH}, 0")
    elif RM == 6:
        g.i(f"s_lshl_b32 s{S_CH}, s{S_TB}, 1")
        g.i(f"s_add_u32 s{S_CH}, s{S_CH}, s{S_HP}")
        g.i(f"s_and_b32 s{S_CH}, s{S_CH}, 7")
    elif RM == 4:
        g.i(f"s_lshl_b32 s{S_CH}, s{S_TB}, 1")
        g.i(f"s_add_u32 s{S_CH}, s{S_CH}, s{S_HP}")
        g.i(f"s_and_b32 s{S_CH}, s{S_CH}, 3")
        g.i(f"s_lshl_b32 s{S_CH}, s{S_CH}, 1")
    elif RM == 5:
        g.i(f"s_add_u32 s{S_CH}, s{S_TB}, s{S_HP}")
        g.i(f"s_and_b32 s{S_CH}, s{S_CH}, 3")
        g.i(f"s_lshl_b32 s{S_CH}, s{S_CH}, 1")
    elif RM == 3:
        g.i(f"s_lshl_b32 s{S_CH}, s{S_TB}, 1")
        g.i(f"s_and_b32 s{S_T1}, s{S_HP}, 1")
        g.i(f"s_add_u32 s{S_CH}, s{S_CH}, s{S_T1}")
        g.i(f"s_and_b32 s{S_CH}, s{S_CH}, 7")
    g.i(f"v_lshlrev_b32 v{VT}, 10, v0")
    g.i(f"s_and_b32 s{S_TX}, s{S_HP}, 7")
    g.i(f"s_lshl_b32 s{S_TX}, s{S_TX}, 2")
    g.i(f"s_add_u32 s{S_TX}, s{S_TX}, s{S_A}")
    g.i(f"s_lshl_b32 s{S_TX}, s{S_TX}, 13")
    NT = 1 if LEAD else 0
    def touch(ahead):
        if not LEAD: return
        g.i(f"s_add_u32 s{S_T0}, s{S_CH}, {ahead}")
        g.i(f"s_and_b32 s{S_T0}, s{S_T0}, 7")
        g.i(f"s_lshl_b32 s{S_T0}, s{S_T0}, 7")
        g.i(f"s_add_u32 s{S_T0}, s{S_T0}, s{S_TX}")
        g.i("s_mov_b64 exec, 0xff")
        g.i(f"buffer_load_dword v244, v{VT}, s[{S_X}:{S_X+3}], s{S_T0} offen")
        g.i("s_mov_b64 exec, -1")
    g.i("v_lshrrev_b32 v6, 4, v0")
    g.i("v_and_b32 v7, 7, v0")
    g.i("v_xor_b32 v6, v6, v7")
    g.i("v_lshlrev_b32 v6, 4, v6")
    g.i("v_lshrrev_b32 v7, 3, v0")
    g.i(f"v_lshl_add_u32 v{VX}, v7, 10, v6")
    g.i(f"v_xor_b32 v{VX+1}, 64, v{VX}")
    g.i(f"v_add_u32 v{VX+2}, {2*7168}, v{VX}")
    g.i(f"v_add_u32 v{VX+3}, {3*7168}, v{VX+1}")
    g.i(f"v_add_u32 v{VX+1}, 7168, v{VX+1}")
    g.i(f"s_lshl_b32 s{S_B}, s{S_A}, 16")
    g.i(f"s_lshl_b32 s{S_D}, s{S_A}, 13")
    for p in range(3):
        g.i(f"v_add_u32 v6, {64*p}, v0")
        g.i("v_mul_u32_u24 v7, 43691, v6")
        g.i("v_lshrrev_b32 v7, 19, v7")
        g.i("v_mul_u32_u24 v110, 12, v7")
        g.i("v_sub_u32 v6, v6, v110")
        g.i("v_mul_u32_u24 v7, 3072, v7")
        g.i("v_lshrrev_b32 v110, 2, v6")
        g.i(f"v_lshl_add_u32 v7, v110, {6 if g.opt.get('x_wc') else 10}, v7")
        g.i("v_and_b32 v6, 3, v6")
        g.i("v_lshl_add_u32 v7, v6, 4, v7")
        g.i(f"v_subrev_u32 v{VW+p}, {1024*p}, v7")
    g.i(f"s_mul_i32 s{S_C}, s{S_A}, {16*3072}")
    g.i(f"s_lshl_b32 s{S_T1}, s{S_HP}, {7 if g.opt.get('x_wc') else 6}")
    g.i(f"s_add_u32 s{S_C}, s{S_C}, s{S_T1}")
    g.i(f"s_mul_i32 s{S_E}, s{S_A}, 3072")
    g.i(f"s_add_u32 s{S_E}, s{S_E}, {SLOT_W}")
    early_srds(g)
    def issue():
        g.i(f"s_lshl_b32 s{S_T1}, s{S_CH}, 7")
        g.i(f"s_add_u32 s{S_T1}, s{S_T1}, s{S_B}")
        g.i(f"s_mov_b32 m0, s{S_D}")
        g.i(f"s_add_u32 s{S_T0}, s{S_T1}, 32768")
        for p in range(4):
            g.i(f"buffer_load_dwordx4 v{VX+p}, s[{S_X}:{S_X+3}], s{S_T1} offen offset:{1024*p}{g.opt.get('xfl','')} lds")
        g.i(f"s_add_u32 m0, s{S_D}, 4096")
        g.i(f"s_mul_i32 s{S_T1}, s{S_CH}, {64*3072}")
        for p in range(4):
            g.i(f"buffer_load_dwordx4 v{VX+p}, s[{S_X}:{S_X+3}], s{S_T0} offen offset:{1024*p}{g.opt.get('xfl','')} lds")
        g.i(f"s_mov_b32 m0, s{S_E}")
        g.i(f"s_add_u32 s{S_T1}, s{S_T1}, s{S_C}")
        for p in range(3):
            if g.opt.get('x_now'): g.i(f"buffer_load_dword v244, v{VW+p}, s[{S_DBG if False else S_W}:{S_W+3}], s{S_C} offen"); continue
            g.i(f"buffer_load_dwordx4 v{VW+p}, s[{S_W}:{S_W+3}], s{S_T1} offen offset:{1024*p}{g.opt.get('wfl','')} lds")
        g.i(f"s_add_u32 s{S_CH}, s{S_CH}, 1")
        g.i(f"s_and_b32 s{S_CH}, s{S_CH}, 7")
    def next_slot():
        g.i(f"s_add_u32 s{S_D}, s{S_D}, {SLOT}")
        g.i(f"s_add_u32 s{S_E}, s{S_E}, {SLOT}")
        g.i(f"s_cmp_lt_u32 s{S_D}, {3*SLOT}")
        g.i(f"s_cselect_b32 s{S_T0}, 0, {3*SLOT}")
        g.i(f"s_sub_u32 s{S_D}, s{S_D}, s{S_T0}")
        g.i(f"s_sub_u32 s{S_E}, s{S_E}, s{S_T0}")
    issue()
    g.st('ld_c0')
    next_slot(); issue()
    for c in range(2, LEAD): touch(c - 2)
    g.st('ld_c2')
    late_srds(g); attn_consts(g); consts(g)
    g.st('ld_pre')
    PRE = g.opt.get('pre', '')
    n0 = NT * max(LEAD - 2, 0)
    def pre():
        g.i(f"s_lshl_b32 s{S_T0}, s{S_TB}, 14")
        g.i(f"s_and_b32 s{S_T1}, s{S_A}, 1")
        g.i(f"s_lshl_b32 s{S_T1}, s{S_T1}, 13")
        g.i(f"s_add_u32 s{S_T0}, s{S_T0}, s{S_T1}")
        g.i(f"s_lshr_b32 s{S_T1}, s{S_A}, 1")
        g.i(f"s_lshl_b32 s{S_T1}, s{S_T1}, 17")
        g.i(f"s_add_u32 s{S_T0}, s{S_T0}, s{S_T1}")
        if PRE == 'r':
            g.i("v_lshlrev_b32 v6, 7, v0")
            g.i(f"buffer_load_dword v245, v6, s[{S_KV}:{S_KV+3}], s{S_T0} offen sc1")
            return 1
        g.i(f"s_add_u32 s{S_T1}, s{S_T0}, 4096")
        for k in range(8):
            g.i(f"buffer_store_dwordx4 v[{V_O[0]}:{V_O[0]+3}], v{V_L16}, s[{S_KV}:{S_KV+3}], s{S_T1 if k >= 4 else S_T0} offen offset:{1024*(k%4)} sc1")
        return 8
    np_ = 0
    PC = g.opt.get('prec', 1)
    for c, n in ((0, 11 + n0), (1, n0 + 11 + NT)):
        g.i(f"s_waitcnt vmcnt({n + (np_ if c == 1 else 0)})")
        if c == 0: g.st('ld_got0')
        g.i("s_barrier")
        next_slot(); issue(); touch(LEAD - 3)
        if PRE and c == PC: np_ = pre()
    if PRE and PC == 1:
        g.i(f"s_waitcnt vmcnt({11+2*NT+np_})")
        g.i("s_barrier")
        next_slot(); issue(); touch(LEAD - 3)
        g.i(f"s_mov_b32 s{S_IT}, 3")
        g.i(f"s_waitcnt vmcnt({11+2*NT+np_})")
        g.i("s_branch L_ld_loop2")
    g.i(f"s_mov_b32 s{S_IT}, 2")
    g.lab("L_ld_loop")
    g.i(f"s_waitcnt vmcnt({11+2*NT})")
    g.lab("L_ld_loop2")
    g.i("s_barrier")
    next_slot(); issue(); touch(LEAD - 3)
    g.i(f"s_add_u32 s{S_IT}, s{S_IT}, 1")
    g.i(f"s_cmp_lt_u32 s{S_IT}, 6")
    g.i("s_cbranch_scc1 L_ld_loop")
    g.st('ld_iss7')
    g.i(f"s_waitcnt vmcnt({11+2*NT})")
    g.i("s_barrier")
    g.i("s_waitcnt vmcnt(0)")
    g.i("s_barrier")
    g.i(f"s_cmp_lg_u32 s{S_WAVE}, 4")
    g.i("s_cbranch_scc1 L_ld_nocert")
    g.i(f"s_lshl_b32 s{S_T0}, s{S_BR}, 4")
    g.i(f"s_add_u32 s{S_T0}, s{S_T0}, s{S_HP}")
    g.i(f"s_lshl_b32 s{S_T0}, s{S_T0}, 3")
    g.i(f"v_mov_b32 v7, s{S_T0}")
    spin(g, "cert1", f"buffer_load_dword v{V_F}, v7, s[{S_DBG}:{S_DBG+3}], 0 offen sc1", 8)
    g.lab("L_ld_nocert")
    g.i(f"s_lshl_b32 s{S_T0}, s{S_A}, 11")
    g.i(f"s_add_u32 s{S_T0}, s{S_T0}, {L_QX}")
    g.i(f"v_add_u32 v6, s{S_T0}, v{V_L16}")
    attn_setup(g)
    g.i("s_waitcnt lgkmcnt(0)")
    g.i("s_barrier")
    g.i(f"ds_read_b128 {vr(V_Q[0],4)}, v6")
    g.i(f"ds_read_b128 {vr(V_Q[1],4)}, v6 offset:1024")
    g.i("s_branch L_attn")

class LdsQ:
    def __init__(self, g): self.g = g; self.q = []
    def issue(self, tag): self.q.append(tag)
    def need(self, tags):
        idx = max([i for i, t in enumerate(self.q) if t in tags], default=-1)
        if idx >= 0:
            n = len(self.q) - 1 - idx
            self.g.i(f"s_waitcnt lgkmcnt({min(n,15)})")
            self.q = self.q[idx + 1:]

def compute(g):
    g.lab("L_compute")
    g.i("s_waitcnt lgkmcnt(0)")
    late_srds(g)
    g.i(f"s_cmp_lg_u32 s{S_WAVE}, 0")
    g.i("s_cbranch_scc1 L_cp_noclear")
    g.i(f"s_lshl_b32 s{S_T0}, s{S_BR}, 4")
    g.i(f"s_add_u32 s{S_T0}, s{S_T0}, s{S_HP}")
    g.i(f"s_lshl_b32 s{S_T1}, s{S_T0}, 7")
    g.i(f"s_lshl_b32 s{S_T2}, s{S_TB}, 4")
    g.i(f"s_add_u32 s{S_T1}, s{S_T1}, s{S_T2}")
    g.i(f"v_lshl_add_u32 v6, v0, 2, s{S_T1}")
    g.i("v_mov_b32 v100, 0")
    g.i("s_mov_b64 exec, 0xf")
    g.i(f"buffer_store_dword v100, v6, s[{S_FL}:{S_FL+3}], 0 offen sc1")
    g.i("s_mov_b64 exec, -1")
    g.lab("L_cp_noclear")
    attn_consts(g)
    g.i("v_and_b32 v6, 31, v0")
    g.i(f"s_lshl_b32 s{S_T0}, s{S_WAVE}, 13")
    g.i(f"v_lshl_add_u32 v100, v6, 7, s{S_T0}")
    g.i("v_bfe_u32 v6, v0, 1, 3")
    g.i("v_lshrrev_b32 v7, 5, v0")
    g.i("v_xor_b32 v6, v6, v7")
    for s in range(4):
        g.i(f"v_xor_b32 v7, {2*s}, v6")
        g.i(f"v_lshl_add_u32 v{V_XA+s}, v7, 4, v100")
    g.i("v_lshrrev_b32 v6, 5, v0")
    g.i("v_bfe_u32 v7, v0, 2, 2")
    g.i("v_lshl_add_u32 v6, v6, 3, v7")
    g.i("v_mul_u32_u24 v6, 192, v6")
    g.i("v_bfe_u32 v7, v0, 4, 1")
    g.i("v_lshl_add_u32 v6, v7, 5, v6")
    g.i("v_and_b32 v7, 3, v0")
    g.i("v_lshl_add_u32 v6, v7, 3, v6")
    g.i(f"v_add_u32 v{V_WA}, {SLOT_W}, v6")
    for r in range(0, 96, 2):
        g.i(f"v_mov_b64 v[{V_ACC+r}:{V_ACC+r+1}], 0")
    S_A, S_B, S_G1, S_G2 = 56, 57, 58, 59
    KG, KL, VG, VL, QL = 244, 245, 247, 248, 249
    g.i("v_and_b32 v6, 0x33, v0")
    g.i("v_bfe_u32 v7, v0, 2, 1")
    g.i("v_lshl_or_b32 v6, v7, 3, v6")
    g.i("v_bfe_u32 v7, v0, 3, 1")
    g.i("v_lshl_or_b32 v6, v7, 2, v6")
    g.i(f"v_lshlrev_b32 v{KG}, 4, v6")
    g.i(f"s_lshl_b32 s{S_T0}, s{S_WAVE}, 12")
    g.i(f"v_add_u32 v{KL}, s{S_T0}, v{KG}")
    g.i("v_and_b32 v6, 15, v0")
    g.i("v_lshlrev_b32 v6, 4, v6")
    g.i("v_lshrrev_b32 v7, 5, v0")
    g.i("v_lshl_add_u32 v6, v7, 8, v6")
    g.i("v_add_u32 v6, 1024, v6")
    g.i("v_bfe_u32 v7, v0, 4, 1")
    g.i(f"v_lshl_add_u32 v{VG}, v7, 17, v6")
    g.i("v_lshl_add_u32 v6, v7, 14, v6")
    g.i(f"v_add_u32 v{VL}, s{S_T0}, v6")
    g.i(f"s_lshr_b32 s{S_T0}, s{S_T0}, 1")
    g.i(f"s_add_u32 s{S_T0}, s{S_T0}, {L_QX}")
    g.i(f"v_add_u32 v{QL}, s{S_T0}, v{V_L16}")
    if g.opt.get('dry', 1):
        g.i(f"s_cmp_lt_u32 s{S_WAVE}, 2")
        g.i("s_cbranch_scc1 L_dry_done")
        g.i(f"s_mov_b32 s{S_DRY}, 1")
        g.i(f"s_mov_b32 s{S_IT}, 7")
        g.i("s_mov_b64 vcc, 0")
        g.i(f"s_mov_b64 s[{S_M}:{S_M+1}], 0")
        g.i(f"s_mov_b64 s[{S_M+2}:{S_M+3}], 0")
        g.i(f"s_mov_b32 s{S_MK}, 0")
        g.i("s_waitcnt vmcnt(0) lgkmcnt(0)")
        g.i("s_setvskip -1, 0")
        g.i(f"s_cmp_eq_u32 s{S_WAVE}, 2")
        g.i("s_cbranch_scc1 L_at_done")
        g.i("s_branch L_cp_loop")
        g.lab("L_dry_ret")
        g.i("s_setvskip 0, 0")
        g.i("s_mov_b64 exec, -1")
        g.i("s_setprio 0")
        g.i(f"s_mov_b32 s{S_DRY}, 0")
        g.lab("L_dry_done")
    attn_setup(g)
    g.i(f"s_lshl_b32 s{S_T0}, s{S_WAVE}, 12")
    g.i(f"s_lshl_b32 s{S_G1}, s{S_TB}, 14")
    g.i(f"s_add_u32 s{S_G1}, s{S_G1}, s{S_T0}")
    g.i(f"s_add_u32 s{S_G2}, s{S_G1}, 131072")
    g.i(f"s_mov_b32 s{S_IT}, 0")
    g.i(f"s_mov_b32 s{S_A}, 0")
    g.i(f"s_mov_b32 s{S_B}, {SLOT}")
    q = LdsQ(g)
    def rd(setn, s, which):
        F = V_FR[setn]
        if which[0] == 'x':
            i = int(which[1])
            g.i(f"ds_read_b128 {vr(F+4*i,4)}, v{V_XA+s} offset:{4096*i}")
        else:
            p = {'q': 0, 'k': 1, 'v': 2}[which[0]]; i = int(which[1])
            g.i(f"ds_read_b64_tr_b16 {vr(F+8+4*p+2*i,2)}, v{V_WA} offset:{s*3072+i*768+p*64}")
        q.issue((setn, which))
    ORDER = ['x0', 'q0', 'q1', 'x1', 'k0', 'k1', 'v0', 'v1']
    def mf(setn, n):
        F = V_FR[setn]; p, i = n // 2, n % 2
        w, x = vr(F + 8 + 4 * p, 4), vr(F + 4 * i, 4)
        nm = 'qkv'[p]
        q.need({(setn, f'x{i}'), (setn, nm + '0'), (setn, nm + '1')})
        A, B = (w, x) if p < 2 else (x, w)
        acc = vr(V_ACC + 16 * n, 16)
        if g.opt.get('x_m16'):
            for hh in range(2):
                a4 = vr(V_ACC + 16 * n + 4 * hh, 4)
                g.i(f"v_mfma_f32_16x16x32_bf16 {a4}, {A}, {B}, {a4}")
        else:
            g.i(f"v_mfma_f32_32x32x16_bf16 {acc}, {A}, {B}, {acc}")
    def step(cur, nxt_s):
        plan = [ORDER[0:2], ORDER[2:4], ORDER[4:6], ORDER[6:8], [], []]
        for n in range(6):
            if cur is not None: mf(cur, n)
            if nxt_s is not None:
                for w in plan[n]: rd(1 - (cur if cur is not None else 1), nxt_s, w)
    g.i(f"s_cmp_lg_u32 s{S_WAVE}, 0")
    g.i("s_cbranch_scc1 L_cp_nocount")
    g.i(f"s_lshl_b32 s{S_T0}, s{S_BR}, 4")
    g.i(f"s_add_u32 s{S_T0}, s{S_T0}, s{S_HP}")
    g.i(f"s_lshl_b32 s{S_T0}, s{S_T0}, 3")
    g.i("s_mov_b64 exec, 1")
    g.i(f"v_mov_b32 v6, s{S_T0}")
    g.i("v_mov_b32 v7, 1")
    g.i(f"s_waitcnt vmcnt(0)")
    g.i(f"buffer_atomic_add v7, v6, s[{S_DBG}:{S_DBG+3}], 0 offen sc1")
    g.i("s_mov_b64 exec, -1")
    g.lab("L_cp_nocount")
    def prew():
        g.i(f"s_lshl_b32 s{S_T0}, s{S_TB}, 14")
        g.i(f"s_lshl_b32 s{S_T1}, s{S_WAVE}, 12")
        g.i(f"s_add_u32 s{S_T0}, s{S_T0}, s{S_T1}")
        g.i(f"s_add_u32 s{S_T1}, s{S_T0}, 131072")
        for k in range(8):
            g.i(f"buffer_store_dwordx4 v[{V_O[0]}:{V_O[0]+3}], v{V_L16}, s[{S_KV}:{S_KV+3}], s{S_T1 if k >= 4 else S_T0} offen offset:{1024*(k%4)} sc1")
    def prer():
        g.i("v_and_b32 v6, 31, v0")
        g.i("v_lshlrev_b32 v6, 7, v6")
        g.i("v_lshrrev_b32 v7, 5, v0")
        g.i("v_lshl_add_u32 v6, v7, 17, v6")
        g.i(f"buffer_load_dword v246, v6, s[{S_KV}:{S_KV+3}], s{S_G1} offen{g.opt.get('prefl', ' sc1')}")
    PR = g.opt.get('prer', 0)
    if PR == -1: prer()
    if g.opt.get('prew') == 1: prew()
    g.st('cp_pre')
    g.i("s_barrier")
    g.stamp(1)
    if g.opt.get('prew') == 2: prew()
    step(None, 0)
    g.lab("L_cp_loop")
    q.q = [(0, w) for w in ORDER]
    step(0, 1); step(1, 2); step(0, 3)
    g.i(f"s_add_u32 s{S_A}, s{S_A}, 1")
    g.i(f"s_cmp_eq_u32 s{S_A}, 3")
    g.i(f"s_cselect_b32 s{S_T0}, {(-2*SLOT) & 0xffffffff}, s{S_B}")
    g.i(f"s_cselect_b32 s{S_A}, 0, s{S_A}")
    g.i(f"s_add_u32 s{S_IT}, s{S_IT}, 1")
    g.i(f"s_cmp_eq_u32 s{S_IT}, 8")
    g.i("s_cbranch_scc1 L_cp_last")
    g.i("s_waitcnt lgkmcnt(0)")
    q.q = []
    g.i("s_barrier")
    for r in range(5):
        g.i(f"v_add_u32 v{V_XA+r}, s{S_T0}, v{V_XA+r}")
    PW = g.opt.get('pwd')
    if PW:
        c0, kind = PW
        if kind == 'd':
            g.i(f"s_cmp_lg_u32 s{S_IT}, {c0}")
            g.i("s_cbranch_scc1 L_cp_nopw")
            g.i("v_and_b32 v6, 31, v0")
            g.i("v_lshlrev_b32 v6, 7, v6")
            g.i("v_lshrrev_b32 v7, 5, v0")
            g.i("v_lshl_add_u32 v6, v7, 17, v6")
            g.i(f"buffer_store_dword v{V_O[0]}, v6, s[{S_KV}:{S_KV+3}], s{S_G1} offen sc1")
        elif kind == 'f':
            g.i(f"s_cmp_lg_u32 s{S_IT}, {c0}")
            g.i("s_cbranch_scc1 L_cp_nopw")
            for k in range(8):
                g.i(f"buffer_store_dwordx4 v[{V_O[0]}:{V_O[0]+3}], v{V_L16}, s[{S_KV}:{S_KV+3}], s{S_G2 if k >= 4 else S_G1} offen offset:{1024*(k%4)} sc1")
        elif kind == 's':
            g.i(f"s_sub_u32 s{S_T1}, s{S_IT}, {c0}")
            g.i(f"s_cmp_ge_u32 s{S_T1}, 4")
            g.i("s_cbranch_scc1 L_cp_nopw")
            g.i(f"s_lshl_b32 s{S_T1}, s{S_T1}, 10")
            g.i(f"s_add_u32 s{S_T2}, s{S_T1}, s{S_G2}")
            g.i(f"s_add_u32 s{S_T1}, s{S_T1}, s{S_G1}")
            for so in (S_T1, S_T2):
                g.i(f"buffer_store_dwordx4 v[{V_O[0]}:{V_O[0]+3}], v{V_L16}, s[{S_KV}:{S_KV+3}], s{so} offen sc1")
        g.lab("L_cp_nopw")
    if PR > 0:
        g.i(f"s_cmp_lg_u32 s{S_IT}, {PR}")
        g.i("s_cbranch_scc1 L_cp_nopre")
        prer()
        g.lab("L_cp_nopre")
    step(1, 0)
    g.i("s_branch L_cp_loop")
    g.lab("L_cp_last")
    q.q = [(1, w) for w in ORDER]
    step(1, None)
    g.stamp(2)
    g.i(f"s_mov_b32 s{S_T1}, {hex(QSCALE)}")
    g.i(f"s_mov_b32 s{S_T2}, s{S_T1}")
    g.i("s_nop 5")
    KVS = g.opt.get('kvs', ' sc1')
    T = 204
    n = 0
    for i in range(2):
        A = V_ACC + 16 * (2 + i)
        for hd in range(2):
            for r in range(4):
                g.i(f"v_cvt_pk_bf16_f32 v{T+4*n+r}, v{A+8*hd+2*r}, v{A+8*hd+2*r+1}")
            g.i(f"buffer_store_dwordx4 {vr(T+4*n,4)}, v{KG}, s[{S_KV}:{S_KV+3}], s{S_G2 if hd else S_G1} offen offset:{2048*i}{KVS}")
            g.i(f"ds_write_b128 v{KL}, {vr(T+4*n,4)} offset:{16384*hd+2048*i}")
            n += 1
    for i in range(2):
        A = V_ACC + 16 * (4 + i)
        for gr in range(2):
            for r in range(4):
                g.i(f"v_cvt_pk_bf16_f32 v{T+4*n+r}, v{A+8*gr+2*r}, v{A+8*gr+2*r+1}")
            g.i(f"buffer_store_dwordx4 {vr(T+4*n,4)}, v{VG}, s[{S_KV}:{S_KV+3}], s{S_G1} offen offset:{2048*i+512*gr}{KVS}")
            g.i(f"ds_write_b128 v{VL}, {vr(T+4*n,4)} offset:{2048*i+512*gr}")
            n += 1
    for i in range(2):
        A = V_ACC + 16 * i
        for r in range(8, 16, 2):
            g.i(f"v_pk_mul_f32 v[{A+r}:{A+r+1}], v[{A+r}:{A+r+1}], s[{S_T0+1}:{S_T0+2}]")
        for r in range(4):
            g.i(f"v_cvt_pk_bf16_f32 v{A+8+r}, v{A+8+2*r}, v{A+8+2*r+1}")
        g.i(f"ds_write_b128 v{QL}, {vr(A+8,4)} offset:{1024*i}")
    for i in range(2):
        A = V_ACC + 16 * i
        for r in range(0, 8, 2):
            g.i(f"v_pk_mul_f32 v[{A+r}:{A+r+1}], v[{A+r}:{A+r+1}], s[{S_T0+1}:{S_T0+2}]")
        for r in range(4):
            g.i(f"v_cvt_pk_bf16_f32 v{V_Q[i]+r}, v{A+2*r}, v{A+2*r+1}")
    g.i("s_waitcnt lgkmcnt(0)")
    barrier_unless_dry(g, "b8")

U = 8
S_OA, S_OB = S_M + 6, S_M + 7
S_MK = S_M + 5
S_KV2 = S_X
S_KO = [None, 4, 5, 6, 7, 12, 13, 14]
S_LM = [[49, 50], [51, 52]]
V_VB = 4

def spin_mask(g, tag, load):
    g.i(f"s_mov_b32 s{S_T3}, 0")
    g.lab(f"L_spin_{tag}")
    g.i(load)
    g.i(f"s_add_u32 s{S_T3}, s{S_T3}, 1")
    g.i("s_waitcnt vmcnt(0)")
    g.i(f"v_cmp_ne_u32 vcc, 1, v{V_F}")
    g.i(f"s_cmp_ge_u32 s{S_T3}, {SPIN_MAX}")
    g.i(f"s_cbranch_scc1 L_olr_{tag}")
    g.i(f"s_and_b32 vcc_lo, vcc_lo, s{S_MK}")
    g.i(f"s_cbranch_scc1 L_spin_{tag}")

def attn_setup(g):
    g.i(f"s_add_u32 s{S_KV2}, s{S_KV}, 131072")
    g.i(f"s_addc_u32 s{S_KV2+1}, s{S_KV+1}, 0")
    g.i(f"s_mov_b32 s{S_KV2+2}, 131072")
    g.i(f"s_mov_b32 s{S_KV2+3}, 0x20000")
    g.i(f"s_lshl_b32 s{S_LM[0][0]}, s{S_WAVE}, 11")
    g.i(f"s_add_u32 s{S_LM[0][1]}, s{S_LM[0][0]}, 16384")
    g.i(f"s_add_u32 s{S_LM[1][0]}, s{S_LM[0][0]}, {RING}")
    g.i(f"s_add_u32 s{S_LM[1][1]}, s{S_LM[0][0]}, {RING+16384}")
    g.i(f"s_and_b32 s{S_T1}, s{S_TB}, 4")
    g.i(f"s_xor_b32 s{S_T2}, s{S_T1}, 4")
    for i in range(1, 8):
        g.i(f"s_add_u32 s{S_T0}, s{S_TB}, {i}")
        g.i(f"s_and_b32 s{S_T0}, s{S_T0}, 3")
        g.i(f"s_or_b32 s{S_T0}, s{S_T0}, s{S_T1 if i < 4 else S_T2}")
        if i == 1:
            g.i(f"s_lshl_b32 s{S_T3}, s{S_T0}, 2")
            g.i(f"s_lshl_b32 s{S_MK}, 15, s{S_T3}")
        g.i(f"s_lshl_b32 s{S_T0}, s{S_T0}, 14")
        g.i(f"s_add_u32 s{S_KO[i]}, s{S_T0}, s{S_LM[0][0]}")
    g.i(f"s_and_b32 s{S_F}, s{S_HP}, 7")
    g.i(f"s_lshl_b32 s{S_T0}, s{S_F}, 7")
    g.i(f"s_lshl_b32 s55, s{S_WAVE}, 16")
    g.i(f"s_add_u32 s55, s55, s{S_T0}")
    g.i(f"s_lshl_b32 s{S_E}, s{S_WAVE}, 13")
    g.i(f"s_add_u32 s{S_E}, s{S_E}, {L_WO}")
    g.i(f"s_and_b32 s{S_T0}, s{S_WAVE}, 3")
    g.i(f"s_lshl_b32 s{S_T0}, s{S_T0}, 1")
    g.i(f"s_lshl_b32 s{S_T1}, s{S_TB}, 3")
    g.i(f"s_add_u32 s{S_T0}, s{S_T0}, s{S_T1}")
    g.i(f"s_lshl_b32 s{S_OA}, s{S_T0}, 15")
    g.i(f"s_lshr_b32 s{S_T1}, s{S_WAVE}, 2")
    g.i(f"s_lshl_b32 s{S_T2}, s{S_HP}, 1")
    g.i(f"s_add_u32 s{S_T1}, s{S_T1}, s{S_T2}")
    g.i(f"s_lshl_b32 s{S_T2}, s{S_T1}, 10")
    g.i(f"s_add_u32 s{S_OA}, s{S_OA}, s{S_T2}")
    g.i(f"s_add_u32 s{S_OB}, s{S_OA}, 32768")

def attention(g):
    opt = g.opt
    g.lab("L_attn")
    g.stamp(3)
    g.i(f"ds_read_b128 {vr(V_K,4)}, v{V_KA}")
    g.i(f"ds_read_b128 {vr(V_V[0],4)}, v{V_VA}")
    g.i(f"ds_read_b128 {vr(V_V[0]+4,4)}, v{V_VA} offset:512")
    g.i("s_setprio 3")
    g.i("s_waitcnt lgkmcnt(2)")
    g.i(f"v_mfma_f32_32x32x16_bf16 {vr(V_S[0],16)}, {vr(V_K,4)}, {vr(V_Q[0],4)}, 0")
    dry_exit(g)
    g.i("s_nop 9")
    g.i("s_waitcnt lgkmcnt(0)")
    poll = f"buffer_load_dword v{V_F}, v{V_FA}, s[{S_FL}:{S_FL+3}], 0 offen sc1"
    side = []
    ev = {}
    def at(it, p, slot, *ins): ev.setdefault((it, p, slot), []).extend(ins)
    def kv(i, n):
        return f"buffer_load_dwordx4 v{V_L16}, {sr(S_KV2 if n >= 2 else S_KV, 4)}, s{S_KO[i]} offen offset:{1024*(n%2)}{opt.get('kvl', ' sc1')} lds"
    def check(tag, n):
        def f():
            g.i(f"s_waitcnt vmcnt({n})")
            g.i(f"v_cmp_ne_u32 vcc, 1, v{V_F}")
            g.i(f"s_nop {opt.get('x_nop', 0)}")
            g.i(f"s_and_b32 vcc_lo, vcc_lo, s{S_MK}")
            g.i(f"s_cbranch_scc1 L_ol_{tag}")
            g.lab(f"L_olr_{tag}")
            if opt.get('inv'):
                g.i("buffer_inv sc1")
                g.i("s_waitcnt vmcnt(0)")
            side.append((tag, lambda: spin_mask(g, tag, poll)))
        return f
    def publish():
        g.i(f"s_cmp_ge_u32 s{S_WAVE}, 4")
        g.i("s_cbranch_scc1 L_at_nopub")
        g.i(f"s_lshl_b32 s{S_T0}, s{S_TB}, 2")
        g.i(f"s_add_u32 s{S_T0}, s{S_T0}, s{S_WAVE}")
        g.i(f"s_lshl_b64 exec, 1, s{S_T0}")
        g.i(f"v_mov_b32 v{V_F}, 1")
        g.st('pub_pre')
        if opt.get('wbl2'):
            g.i("s_waitcnt vmcnt(0)")
            g.i("buffer_wbl2 sc1")
        g.i("s_waitcnt vmcnt(0)")
        g.st('pub_ack')
        g.i(f"buffer_store_dword v{V_F}, v{V_FA}, s[{S_FL}:{S_FL+3}], 0 offen sc1")
        g.i("s_mov_b64 exec, -1")
        g.lab("L_at_nopub")
    def count():
        g.i(f"s_cmp_lg_u32 s{S_WAVE}, 7")
        g.i("s_cbranch_scc1 L_at_nocnt")
        g.i(f"s_lshl_b32 s{S_T0}, s{S_BR}, 4")
        g.i(f"s_add_u32 s{S_T0}, s{S_T0}, s{S_HP}")
        g.i(f"s_lshl_b32 s{S_T0}, s{S_T0}, 3")
        g.i("s_mov_b64 exec, 1")
        g.i(f"v_mov_b32 v246, s{S_T0}")
        g.i("v_mov_b32 v247, 1")
        g.i(f"buffer_atomic_add v247, v246, s[{S_DBG}:{S_DBG+3}], 0 offen offset:4 sc1")
        g.i("s_mov_b64 exec, -1")
        g.lab("L_at_nocnt")
    pp, pi0, pc0, pi1 = opt.get('ev', (0, 7, 9, 11))
    at(0, pp, 'p1', publish)
    at(0, pi0, 'qk', poll)
    at(0, pc0, 'qk', check("kv0", 0), lambda: g.st('chk_ok'), f"s_mov_b32 m0, s{S_LM[1][0]}", f"s_lshr_b32 s{S_T0}, s{S_TB}, 2",
       kv(1, 0), kv(1, 1), f"s_mov_b32 m0, s{S_LM[1][1]}", f"s_lshl_b32 s{S_T0}, s{S_T0}, 4", kv(1, 2), kv(1, 3),
       f"s_lshl_b32 s{S_MK}, 0xffff, s{S_T0}")
    at(0, pi1, 'qk', poll)
    late = {i: 0 for i in range(8)}
    dp = opt.get('dma', (1, 3, 5, 7))
    for i in range(1, 7):
        sl = (i + 1) % 2
        at(i, dp[0] - 1, 'p2x', f"s_mov_b32 m0, s{S_LM[sl][0]}")
        at(i, dp[0], 'qk', kv(i + 1, 0))
        at(i, dp[1], 'qk', kv(i + 1, 1))
        at(i, dp[2], 'p2', f"s_mov_b32 m0, s{S_LM[sl][1]}")
        at(i, dp[2], 'qk', kv(i + 1, 2))
        at(i, dp[3], 'qk', kv(i + 1, 3))
    CK2 = opt.get('ck2', 2)
    at(CK2, 7, 'p1', poll)
    wp = opt.get('wop', (9, 11))
    for i in range(1, 5):
        for k, p in enumerate(wp):
            at(i, p, 'p2', f"s_add_u32 m0, s{S_E}, {(2*(i-1)+k)*1024}")
            at(i, p, 'qk', f"buffer_load_dwordx4 v{V_WOA}, s[{S_WO}:{S_WO+3}], s55 offen lds")
            at(i, p, 'p1', "s_add_u32 s55, s55, 8192")
        late[i] += 2
    for k, so in enumerate((S_OA, S_OB)):
        at(5, 9 + 2 * k, 'qk', f"buffer_store_dwordx4 v[252:255], v{V_L16}, s[{S_O}:{S_O+3}], s{so} offen sc1")
    late[5] += 2
    at(7, 1, 'qk', count)
    if opt.get('x_late0'): late = {i: 0 for i in range(8)}
    prio = opt.get('prio', {0: 3, 5: 2, 10: 1, 13: 0})
    for i in range(8):
        for p, v in prio.items():
            ii, q = (i, p - 1) if p else (i - 1, 15)
            if ii >= 0: at(ii, q, 'p1', f"s_setprio {v}")
    def emit(it, p, slot):
        for x in ev.pop((it, p, slot), []):
            x() if callable(x) else g.i(x)
    p2, pq, p1 = opt.get('pos', (1, 5, 10))
    for it in range(8):
        if opt.get('itst'):
            g.i("s_memtime s[98:99]")
            g.i("s_waitcnt lgkmcnt(0)")
            g.i(f"v_writelane_b32 v250, s98, {it}")
        for p in range(2 * U):
            b, t = p % 2, p // 2
            S, So = V_S[b], V_S[1 - b]
            nt = (t + 1) % U
            sl = (it + (t == U - 1)) % 2
            VA = V_VB if sl else V_VA
            last = it == 7 and t == U - 1
            for e in range(16):
                g.i(f"v_exp_f32 v{S+e}, v{S+e}")
                if e == p2:
                    tp = (p - 1) // 2
                    if it or p:
                        g.i(f"v_smfmac_f32_32x32x32_bf16 {vr(V_O[1-b],16)}, {vr(V_V[tp%2]+4,4)}, {vr(So+8,8)}, v{V_IDX}")
                    emit(it, p, 'p2x')
                    if b == 0:
                        if t == U - 1 and it < 7:
                            if it == 0: check("kv1", 0)(); g.st('chk1_ok'); g.i(f"s_mov_b32 s{S_MK}, -1")
                            elif it == CK2: check("kv2", late[it])()
                            else: g.i(f"s_waitcnt vmcnt({late[it]})")
                            g.i("s_barrier")
                        if not last: g.i(f"ds_read_b128 {vr(V_V[(t+1)%2],4)}, v{VA} offset:{nt*2048}")
                    elif not last:
                        g.i("s_waitcnt lgkmcnt(1)")
                    emit(it, p, 'p2')
                if e == pq:
                    if not (last and b):
                        g.i(f"v_mfma_f32_32x32x16_bf16 {vr(So,16)}, {vr(V_K,4)}, {vr(V_Q[1-b],4)}, 0")
                    if b == 0 and not last:
                        g.i(f"ds_read_b128 {vr(V_K,4)}, v{V_KA} offset:{sl*RING+nt*2048}")
                    emit(it, p, 'qk')
                if e == p1:
                    g.i(f"v_smfmac_f32_32x32x32_bf16 {vr(V_O[b],16)}, {vr(V_V[t%2],4)}, {vr(S,8)}, v{V_IDX}")
                    if b == 0 and not last:
                        g.i(f"ds_read_b128 {vr(V_V[(t+1)%2]+4,4)}, v{VA} offset:{nt*2048+512}")
                    elif not last:
                        g.i("s_waitcnt lgkmcnt(0)")
                    emit(it, p, 'p1')
    assert not ev, ev
    g.side = side
    g.lab("L_at_done")
    g.i("s_nop 1")
    g.i(f"v_smfmac_f32_32x32x32_bf16 {vr(V_O[1],16)}, {vr(V_V[1]+4,4)}, {vr(V_S[1]+8,8)}, v{V_IDX}")
    g.stamp(4)
    if opt.get('itst'):
        g.i("s_memtime s[98:99]")
        g.i("s_waitcnt lgkmcnt(0)")
        g.i(f"v_writelane_b32 v250, s98, 8")
    g.i(f"s_mov_b32 s{S_T0}, 0x2b800000")
    g.i(f"s_mov_b32 s{S_T1}, 0x53800000")
    g.i(f"s_mov_b32 s{S_T2}, 0x7f800000")
    for q in range(2):
        O = V_O[q]
        g.i(f"v_add_f32 v6, abs(v{O}), abs(v{O+1})")
        g.i(f"v_add_f32 v7, abs(v{O+2}), abs(v{O+3})")
        for r in range(4, 8, 2):
            g.i(f"v_add_f32 v6, v6, abs(v{O+r})")
            g.i(f"v_add_f32 v7, v7, abs(v{O+r+1})")
        g.i(f"v_add_f32 v6, v6, v7")
        g.i(f"v_cmp_nle_f32 s[{S_M}:{S_M+1}], s{S_T0}, v{O+8}")
        g.i(f"v_cmp_nge_f32 s[{S_M+2}:{S_M+3}], s{S_T1}, v{O+8}")
        g.i(f"v_cmp_ngt_f32 vcc, s{S_T2}, v6")
        g.i(f"v_rcp_f32 v{V_S[0]+q}, v{O+8}")
        g.i(f"s_or_b64 s[{S_M}:{S_M+1}], s[{S_M}:{S_M+1}], s[{S_M+2}:{S_M+3}]")
        g.i(f"s_or_b64 s[{S_M}:{S_M+1}], s[{S_M}:{S_M+1}], vcc")
        g.i("s_branch L_fallback" if opt.get('force_fallback') else "s_cbranch_scc1 L_fallback")
    g.lab("L_at_store")
    for q in range(2):
        O = V_O[q]
        for r in range(8):
            g.i(f"v_mul_f32 v{O+r}, v{O+r}, v{V_S[0]+q}")
        for r in range(4):
            g.i(f"v_cvt_pk_bf16_f32 v{O+r}, v{O+2*r}, v{O+2*r+1}")
        g.i(f"buffer_store_dwordx4 {vr(O,4)}, v{V_L16}, s[{S_O}:{S_O+3}], s{S_OB if q else S_OA} offen sc1")

P_WO = 100
P_OF = 8
def outproj(g):
    opt = g.opt
    A0, A1 = 228, 72
    WA0, WA1, RA, OA = 244, 245, 246, 247
    g.i(f"s_lshr_b32 s{S_E}, s{S_WAVE}, 2")
    g.i(f"s_lshl_b32 s{S_T0}, s{S_E}, 15")
    g.i(f"s_add_u32 s{S_T0}, s{S_T0}, {L_WO}")
    g.i("v_lshrrev_b32 v6, 5, v0")
    g.i("v_bfe_u32 v7, v0, 2, 2")
    g.i("v_lshl_add_u32 v6, v6, 2, v7")
    g.i(f"v_lshl_add_u32 v6, v6, 7, s{S_T0}")
    g.i("v_bfe_u32 v7, v0, 3, 2")
    g.i("v_and_b32 v2, 1, v7")
    g.i("v_lshl_add_u32 v6, v2, 6, v6")
    g.i("v_lshrrev_b32 v7, 1, v7")
    g.i("v_lshl_add_u32 v6, v7, 5, v6")
    g.i("v_and_b32 v7, 3, v0")
    g.i(f"v_lshl_add_u32 v6, v7, 3, v6")
    g.i(f"s_lshl_b32 s{S_T0}, s{S_E}, 6")
    g.i(f"v_xor_b32 v{WA0}, s{S_T0}, v6")
    g.i(f"v_xor_b32 v{WA1}, 64, v{WA0}")
    n = 0
    def wo_reads(s0, s1):
        for s in range(s0, s1):
            for f in range(2):
                for i in range(2):
                    g.i(f"ds_read_b64_tr_b16 {vr(P_WO+8*s+4*f+2*i,2)}, v{WA1 if f else WA0} offset:{s*2048+i*1024}")
    g.stamp(5)
    g.i(f"s_lshl_b32 s{S_T0}, s{S_BR}, 7")
    g.i("v_and_b32 v6, 15, v0")
    g.i(f"v_lshl_add_u32 v4, v6, 3, s{S_T0}")
    g.i(f"buffer_load_dword v5, v4, s[{S_DBG}:{S_DBG+3}], 0 offen offset:4 sc1")
    for s0 in range(0, 16, 3):
        if s0: g.i("s_waitcnt lgkmcnt(2)")
        wo_reads(s0, min(s0 + 3, 16))
    g.i(f"s_lshr_b32 s{S_T0}, s{S_HP}, 3")
    g.i(f"s_lshl_b32 s{S_T0}, s{S_T0}, 2")
    g.i(f"s_and_b32 s{S_T1}, s{S_WAVE}, 3")
    g.i(f"s_add_u32 s{S_A}, s{S_T0}, s{S_T1}")
    g.i(f"s_lshl_b32 s{S_T0}, s{S_TB}, 3")
    g.i(f"s_add_u32 s{S_A}, s{S_A}, s{S_T0}")
    g.i(f"s_lshl_b32 s{S_B}, s{S_A}, 15")
    g.i(f"s_lshl_b32 s{S_T0}, s{S_E}, 14")
    g.i(f"s_add_u32 s{S_B}, s{S_B}, s{S_T0}")
    g.i(f"s_add_u32 s{S_C}, s{S_B}, 4096")
    g.i(f"s_add_u32 s{S_D}, s{S_B}, 8192")
    g.i(f"s_add_u32 s{S_IT}, s{S_B}, 12288")
    g.i(f"v_lshlrev_b32 v2, 10, v6")
    g.i(f"v_add_u32 v2, 1020, v2")
    g.i(f"s_lshl_b32 s{S_T0}, s{S_WAVE}, 12")
    g.i(f"v_add_u32 v{RA}, s{S_T0}, v{V_L16}")
    g.i("v_and_b32 v6, 31, v0")
    g.i("v_lshlrev_b32 v6, 11, v6")
    g.i("v_lshrrev_b32 v7, 5, v0")
    g.i(f"v_lshl_add_u32 v{OA}, v7, 4, v6")
    g.i(f"s_lshl_b32 s{S_A}, s{S_A}, 16")
    g.i(f"s_lshl_b32 s{S_T0}, s{S_BR}, 10")
    g.i(f"s_add_u32 s{S_A}, s{S_A}, s{S_T0}")
    g.i(f"s_lshl_b32 s{S_T0}, s{S_F}, 7")
    g.i(f"s_add_u32 s{S_A}, s{S_A}, s{S_T0}")
    g.i(f"s_lshl_b32 s{S_T0}, s{S_E}, 6")
    g.i(f"s_add_u32 s{S_A}, s{S_A}, s{S_T0}")
    g.i(f"s_mov_b32 s{S_T3}, 0")
    g.lab("L_spin_c")
    g.i("s_waitcnt vmcnt(0)")
    g.i("v_cmp_gt_u32 vcc, 8, v5")
    g.i(f"s_add_u32 s{S_T3}, s{S_T3}, 1")
    g.i("s_cbranch_vccz L_spin_o")
    g.i(f"buffer_load_dword v5, v4, s[{S_DBG}:{S_DBG+3}], 0 offen offset:4 sc1")
    g.i(f"s_cmp_lt_u32 s{S_T3}, {SPIN_MAX}")
    g.i("s_cbranch_scc1 L_spin_c")
    g.lab("L_spin_o")
    if opt.get('probe', 1):
        g.i("s_mov_b64 exec, 0xffff")
        g.i(f"buffer_load_dword v3, v2, s[{S_O}:{S_O+3}], s{S_B} offen sc1")
        g.i(f"s_add_u32 s{S_T3}, s{S_T3}, 1")
        g.i("s_waitcnt vmcnt(0)")
        g.i("v_cmp_eq_u32 vcc, -1, v3")
        g.i("s_mov_b64 exec, -1")
        g.i(f"s_cmp_ge_u32 s{S_T3}, {SPIN_MAX}")
        g.i("s_cbranch_scc1 L_spun_o")
        if opt.get('sleep'): g.i(f"s_sleep {opt['sleep']}")
        g.i("s_cbranch_vccnz L_spin_o")
    else:
        g.i(f"s_add_u32 s{S_T3}, s{S_T3}, 1")
    g.lab("L_spun_o")
    g.stamp(6)
    for s in range(16):
        so = (S_B, S_C, S_D, S_IT)[s // 4]
        g.i(f"buffer_load_dwordx4 {vr(P_OF+4*s,4)}, v{V_L16}, s[{S_O}:{S_O+3}], s{so} offen offset:{1024*(s%4)} sc1")
    g.i("v_mov_b32 v3, 0")
    g.i("s_waitcnt lgkmcnt(0)")
    for s in range(16):
        g.i(f"s_waitcnt vmcnt({15-s})")
        for f, A in ((1, A1), (0, A0)):
            g.i(f"v_mfma_f32_32x32x16_bf16 {vr(A,16)}, {vr(P_WO+8*s+4*f,4)}, {vr(P_OF+4*s,4)}, {vr(A,16) if s else 0}")
            g.i(f"v_max3_u32 v3, v3, v{P_OF+4*s+2*f}, v{P_OF+4*s+2*f+1}")
    g.i("v_cmp_eq_u32 vcc, -1, v3")
    g.i(f"s_cmp_ge_u32 s{S_T3}, {SPIN_MAX}")
    g.i("s_cbranch_scc1 L_op_go")
    g.i("s_cbranch_vccnz L_spin_o")
    g.lab("L_op_go")
    g.i("s_nop 5")
    for r in range(4):
        g.i(f"ds_write_b128 v{RA}, {vr(A1+4*r,4)} offset:{1024*r}")
    g.i("s_waitcnt lgkmcnt(0)")
    g.i(f"v_xor_b32 v{RA}, 16384, v{RA}")
    barrier_unless_dry(g, "b9")
    for r in range(4):
        g.i(f"ds_read_b128 {vr(P_OF+4*r,4)}, v{RA} offset:{1024*r}")
    for r in range(4):
        g.i(f"s_waitcnt lgkmcnt({3-r})")
        for k in range(4):
            g.i(f"v_add_f32 v{A0+4*r+k}, v{A0+4*r+k}, v{P_OF+4*r+k}")
        for k in range(2):
            g.i(f"v_cvt_pk_bf16_f32 v{24+2*r+k}, v{A0+4*r+2*k}, v{A0+4*r+2*k+1}")
        if r % 2:
            g.i("s_nop 1")
            g.i(f"v_permlane32_swap_b32 v{24+2*r-2}, v{24+2*r}")
            g.i(f"v_permlane32_swap_b32 v{24+2*r-1}, v{24+2*r+1}")
            g.i(f"buffer_store_dwordx4 {vr(24+2*r-2,4)}, v{OA}, s[{S_OUT}:{S_OUT+3}], s{S_A} offen offset:{16*(r-1)}{opt.get('outs','')}")
    dry_exit(g)
    if g.diag:
        g.i("s_waitcnt vmcnt(0)")
        g.stamp(7)
        g.i("s_waitcnt lgkmcnt(0)")
        if g.diag == 3:
            a_, b_, K = opt['leak']
            if a_ in (1, 2) or b_ in (1, 2):
                g.i(f"s_cmp_ge_u32 s{S_WAVE}, 4")
                g.i("s_cbranch_scc1 L_end")
            g.i(f"s_sub_u32 s{S_T0}, s{66+4*b_}, s{66+4*a_}")
            g.i(f"s_mul_i32 s{S_T0}, s{S_T0}, {K}")
            g.lab("L_leak")
            g.i("s_memrealtime s[98:99]")
            g.i("s_waitcnt lgkmcnt(0)")
            g.i(f"s_sub_u32 s{S_T1}, s98, s{66+4*7}")
            g.i(f"s_cmp_lt_u32 s{S_T1}, s{S_T0}")
            g.i("s_cbranch_scc1 L_leak")
            g.i("s_endpgm")
        if g.diag == 2:
            g.i(f"s_cmp_ge_u32 s{S_WAVE}, 4")
            g.i("s_cbranch_scc1 L_end")
            g.i("s_mov_b64 exec, 1")
            for k in range(1, 8):
                g.i(f"s_sub_u32 s{S_T0}, s{66+4*k}, s66")
                g.i(f"v_mov_b32 v6, s{S_T0}")
                g.i(f"v_mov_b32 v7, {8*k+4}")
                g.i(f"buffer_atomic_umax v6, v7, s[{S_DBG}:{S_DBG+3}], 0 offen sc1")
            g.i(f"s_sub_u32 s{S_T0}, s{64+4*4}, s{64+4*3}")
            g.i(f"v_mov_b32 v6, s{S_T0}")
            g.i(f"v_mov_b32 v7, 4")
            g.i(f"buffer_atomic_umax v6, v7, s[{S_DBG}:{S_DBG+3}], 0 offen sc1")
            g.i("s_endpgm")
        g.i(f"s_lshl_b32 s{S_T0}, s2, 3")
        g.i(f"s_add_u32 s{S_T0}, s{S_T0}, s{S_WAVE}")
        g.i(f"s_lshl_b32 s{S_T0}, s{S_T0}, 7")
        g.i(f"s_add_u32 s{S_T0}, s{S_T0}, {WS_STAMP}")
        srd(g.a, S_X, 96, 128, f"s{S_T0}")
        for k in range(32):
            g.i(f"v_mov_b32 v{36+k}, s{64+k}")
        g.i("v_mov_b32 v6, 0")
        for k in range(8):
            g.i(f"buffer_store_dwordx4 {vr(36+4*k,4)}, v6, s[{S_X}:{S_X+3}], 0 offen offset:{16*k}")
        if opt.get('itst'):
            g.i(f"s_add_u32 s{S_T0}, s{S_T0}, {1<<20}")
            srd(g.a, S_X, 96, 64, f"s{S_T0}")
            g.i("v_lshlrev_b32 v6, 2, v0")
            g.i(f"buffer_store_dword v250, v6, s[{S_X}:{S_X+3}], 0 offen")
    g.lab("L_end")
    g.i("s_endpgm")

def fallback(g):
    C = [100, 116]; M = [132, 133]; GV = 134
    g.lab("L_fallback")
    g.i(f"s_lshr_b32 s{S_T0}, s{S_WAVE}, 2")
    g.i(f"s_lshl_b32 s{S_T0}, s{S_T0}, 17")
    g.i(f"v_mov_b32 v{M[0]}, 0xff800000")
    g.i(f"v_mov_b32 v{M[1]}, 0xff800000")
    g.i(f"s_mov_b32 s{S_T1}, s{S_T0}")
    g.i(f"s_add_u32 s{S_T2}, s{S_T0}, 131072")
    g.lab("L_fb_max")
    g.i(f"buffer_load_dwordx4 {vr(V_K,4)}, v{V_L16}, s[{S_KV}:{S_KV+3}], s{S_T1} offen sc1")
    g.i(f"s_add_u32 s{S_T1}, s{S_T1}, 2048")
    g.i("s_waitcnt vmcnt(0)")
    for q in range(2):
        g.i(f"v_mfma_f32_32x32x16_bf16 {vr(V_S[q],16)}, {vr(V_K,4)}, {vr(V_Q[q],4)}, 0")
    g.i("s_nop 15")
    for q in range(2):
        for r in range(0, 16, 2):
            g.i(f"v_max3_f32 v{M[q]}, v{M[q]}, v{V_S[q]+r}, v{V_S[q]+r+1}")
    g.i(f"s_cmp_lt_u32 s{S_T1}, s{S_T2}")
    g.i("s_cbranch_scc1 L_fb_max")
    for q in range(2):
        g.i(f"v_mov_b32 v6, v{M[q]}")
        g.i(f"v_mov_b32 v7, v{M[q]}")
        g.i("s_nop 1")
        g.i("v_permlane32_swap_b32 v6, v7")
        g.i("s_nop 1")
        g.i("v_max_f32 v6, v6, v7")
        for r in range(16):
            g.i(f"v_sub_f32 v{C[q]+r}, 0, v6")
            g.i(f"v_mov_b32 v{V_O[q]+r}, 0")
    g.i("v_and_b32 v6, 15, v0")
    g.i("v_lshlrev_b32 v6, 4, v6")
    g.i("v_lshrrev_b32 v7, 5, v0")
    g.i(f"v_lshl_add_u32 v{GV}, v7, 8, v6")
    for r in range(8):
        g.i(f"v_mov_b32 v{V_V[0]+r}, 0x3f803f80")
    g.i(f"s_mov_b32 s{S_T1}, s{S_T0}")
    g.i(f"s_mov_b32 s{S_M}, 0xffff")
    g.i(f"s_mov_b32 s{S_M+1}, 0xffff")
    g.lab("L_fb_pv")
    g.i(f"buffer_load_dwordx4 {vr(V_K,4)}, v{V_L16}, s[{S_KV}:{S_KV+3}], s{S_T1} offen sc1")
    g.i(f"s_mov_b64 exec, s[{S_M}:{S_M+1}]")
    g.i(f"buffer_load_dwordx4 {vr(V_V[0],4)}, v{GV}, s[{S_KV}:{S_KV+3}], s{S_T1} offen offset:1024 sc1")
    g.i(f"buffer_load_dwordx4 {vr(V_V[0]+4,4)}, v{GV}, s[{S_KV}:{S_KV+3}], s{S_T1} offen offset:1536 sc1")
    g.i("s_mov_b64 exec, -1")
    g.i(f"s_add_u32 s{S_T1}, s{S_T1}, 2048")
    g.i("s_waitcnt vmcnt(0)")
    for q in range(2):
        g.i(f"v_mfma_f32_32x32x16_bf16 {vr(V_S[q],16)}, {vr(V_K,4)}, {vr(V_Q[q],4)}, {vr(C[q],16)}")
    g.i("s_nop 15")
    for q in range(2):
        for r in range(16):
            g.i(f"v_exp_f32 v{V_S[q]+r}, v{V_S[q]+r}")
    g.i("s_nop 3")
    for q in range(2):
        for h in range(2):
            g.i(f"v_smfmac_f32_32x32x32_bf16 {vr(V_O[q],16)}, {vr(V_V[0]+4*h,4)}, {vr(V_S[q]+8*h,8)}, v{V_IDX}")
    g.i("s_nop 15")
    g.i(f"s_cmp_lt_u32 s{S_T1}, s{S_T2}")
    g.i("s_cbranch_scc1 L_fb_pv")
    for q in range(2):
        g.i(f"v_rcp_f32 v{V_S[0]+q}, v{V_O[q]+8}")
    g.i("s_nop 1")
    g.i("s_branch L_at_store")

HEADER = open('cdna_kernels/' + NAME + '.s.ref').read().split('; Override launch')[0]

def generate(opt={}):
    global WS_KV, WS_O, WS_FLAG
    off = opt.get('wsoff', 0) << 20
    WS_KV, WS_O, WS_FLAG = (4 << 20) + off, (12 << 20) + off, (16 << 20) + off
    g = G(opt)
    name = NAME + "_kernel"
    g.a(HEADER.rstrip())
    g.a(f"; @launch grid=(256,1,1) block=(512,1,1) lds={LDS_TOTAL}")
    g.a('.amdgcn_target "amdgcn-amd-amdhsa--gfx950"')
    entry(g, name)
    if opt.get('lfirst', 1): loader(g)
    compute(g)
    attention(g)
    outproj(g)
    if not opt.get('lfirst', 1): loader(g)
    g.lab("L_code_end")
    for tag, body in g.side:
        g.lab(f"L_ol_{tag}")
        body()
        g.i(f"s_branch L_olr_{tag}")
    fallback(g)
    kernel_desc(g.a, name, NVGPR, 256, 102)
    return g.a.text()

if __name__ == "__main__":
    import sys
    opt = eval(sys.argv[2]) if len(sys.argv) > 2 else {}
    open(sys.argv[1], 'w').write(generate(opt))
```

```python
import math, struct
from common import *

WS_FLAG = 16 << 20
SLOT = 45056; SLOT_W = 32768
RING = 32768
L_WO = 65536
L_CONST = 135168
L_QX = 155648
LDS_TOTAL = 163840
S_X, S_W, S_WO, S_KV, S_O, S_FL, S_DBG, S_OUT = 8, 12, 16, 20, 24, 28, 32, 36
S_WAVE, S_BR, S_HP, S_TB, S_IT, S_T0, S_T1, S_T2, S_T3 = 40, 41, 42, 43, 44, 45, 46, 47, 48
S_A, S_B, S_C, S_D, S_E, S_F = 49, 50, 51, 52, 53, 54
S_G1, S_G2, S_PG = 58, 59, 60
KG, KL, VG, VL, QL, KVT = 244, 245, 247, 248, 249, 204
S_M = 56
V_L16, V_KA, V_VA, V_VX, V_IDX, V_T0, V_T1 = 1, 2, 3, 4, 5, 6, 7
V_Q = [8, 12]; V_K = 16; V_V = [20, 28]; V_S = [36, 52]; V_O = [68, 84]
V_F = 241
V_FA = 242
V_WOA = 243
V_ACC = 100
V_FR = [196, 216]
V_XA = 236; V_WA = 240
NVGPR = 256
QSCALE = struct.unpack('<I', struct.pack('<f', 0.25 * math.log2(math.e)))[0]
SPIN_MAX = 1 << 20
S_DRY = 3

class G:
    def __init__(self, opt):
        self.a = Asm(); self.opt = opt; self.diag = opt.get('diag', 0)
    def i(self, s): self.a.i(s)
    def lab(self, s): self.a.label(s)
    def st(self, name):
        m = self.opt.get('st', {})
        if name in m: self.stamp(m[name], True)
    def stamp(self, k, forced=False):
        if k in self.opt.get('st', {}).values() and not forced: return
        if self.diag:
            self.i(f"s_memtime s[{64+4*k}:{65+4*k}]")
            self.i(f"s_memrealtime s[{66+4*k}:{67+4*k}]")

def dry_exit(g, label="L_dry_ret"):
    if g.opt.get('dry', 1):
        g.i(f"s_cmp_lg_u32 s{S_DRY}, 0")
        g.i(f"s_cbranch_scc1 {label}")

def barrier_unless_dry(g, tag):
    dry_exit(g, f"L_nb_{tag}")
    g.i("s_barrier")
    g.lab(f"L_nb_{tag}")

def spin(g, tag, load, want, nlanes_mask=None):
    g.i(f"s_mov_b32 s{S_T3}, 0")
    g.lab(f"L_spin_{tag}")
    g.i(load)
    g.i(f"s_add_u32 s{S_T3}, s{S_T3}, 1")
    g.i("s_waitcnt vmcnt(0)")
    g.i(f"v_cmp_{'gt' if want > 1 else 'ne'}_u32 vcc, {want}, v{V_F}")
    g.i(f"s_cmp_ge_u32 s{S_T3}, {SPIN_MAX}")
    g.i(f"s_cbranch_scc1 L_spun_{tag}")
    g.i(f"s_cbranch_vccnz L_spin_{tag}")
    g.lab(f"L_spun_{tag}")

def entry(g, name):
    a = g.a
    kernel_head(a, name)
    PF = g.opt.get('cpf', 1)
    if PF:
        g.i("s_getpc_b64 s[8:9]")
        g.i("v_lshlrev_b32 v6, 7, v0")
        g.i("s_mov_b32 s10, L_code_end-" + name + "-4")
        g.i("s_mov_b32 s11, 0x20000")
    g.i("s_cmp_ge_u32 s2, 256")
    g.i("s_cbranch_scc1 L_end")
    if PF:
        g.i("buffer_load_dword v246, v6, s[8:11], 0 offen")
    g.stamp(0)
    g.i(f"s_mov_b32 s{S_DRY}, 0")
    g.i(f"s_bfe_u32 s{S_BR}, s2, 0x10002")
    g.i(f"s_mul_i32 s{S_T0}, s{S_BR}, 24")
    g.i(f"s_load_dwordx4 s[{S_M}:{S_M+3}], s[0:1], s{S_T0}")
    g.i(f"s_load_dwordx2 s[{S_M+4}:{S_M+5}], s[0:1], s{S_T0} offset:16")
    g.i("s_load_dwordx4 s[4:7], s[0:1], 48")
    g.i(f"s_load_dwordx2 s[{S_M+6}:{S_M+7}], s[0:1], 64")
    g.i("v_lshrrev_b32 v6, 6, v0")
    g.i("v_and_b32 v0, 63, v0")
    g.i(f"v_readfirstlane_b32 s{S_WAVE}, v6")
    g.i(f"v_lshlrev_b32 v{V_L16}, 4, v0")
    g.i(f"s_bfe_u32 s{S_HP}, s2, 0x10001")
    g.i(f"s_lshl_b32 s{S_HP}, s{S_HP}, 3")
    g.i(f"s_bfe_u32 s{S_T0}, s2, 0x30003")
    g.i(f"s_add_u32 s{S_HP}, s{S_HP}, s{S_T0}")
    g.i(f"s_and_b32 s{S_TB}, s2, 1")
    g.i(f"s_lshl_b32 s{S_TB}, s{S_TB}, 2")
    g.i(f"s_lshr_b32 s{S_T0}, s2, 6")
    g.i(f"s_add_u32 s{S_TB}, s{S_TB}, s{S_T0}")
    g.i(f"s_lshl_b32 s{S_T0}, s{S_TB}, 18")
    g.i(f"s_lshl_b32 s{S_T1}, s{S_BR}, 4")
    g.i(f"s_add_u32 s{S_T1}, s{S_T1}, s{S_HP}")
    g.i(f"s_lshl_b32 s{S_T2}, s{S_T1}, 18")
    g.i(f"s_add_u32 s{S_T2}, s{S_T2}, {WS_KV}")
    g.i(f"s_lshl_b32 s{S_T3}, s{S_BR}, 21")
    g.i(f"s_add_u32 s{S_T3}, s{S_T3}, {WS_O}")
    if g.opt.get('lfirst', 1):
        g.i(f"s_cmp_lt_u32 s{S_WAVE}, 4")
        g.i("s_cbranch_scc1 L_compute")
    else:
        g.i(f"s_cmp_ge_u32 s{S_WAVE}, 4")
        g.i("s_cbranch_scc1 L_loader")

def early_srds(g):
    g.i("s_waitcnt lgkmcnt(0)")
    g.st('karg')
    srd(g.a, S_X, S_M, 256 * 1024, f"s{S_T0}")
    srd(g.a, S_W, S_M + 2, 512 * 1536 * 2)

def late_srds(g):
    a = g.a
    srd(a, S_WO, S_M + 4, 512 * 512 * 2)
    srd(a, S_KV, S_M + 6, 256 * 1024, f"s{S_T2}")
    srd(a, S_O, S_M + 6, 2 << 20, f"s{S_T3}")
    srd(a, S_FL, S_M + 6, 4096, str(WS_FLAG))
    srd(a, S_DBG, 6, 256)
    srd(a, S_OUT, 4, 2048 * 1024 * 2)
    if g.diag:
        g.i(f"s_mov_b32 s96, s{S_M+6}")
        g.i(f"s_mov_b32 s97, s{S_M+7}")

def attn_consts(g):
    g.i(f"s_lshr_b32 s{S_T0}, s{S_WAVE}, 2")
    g.i(f"s_lshl_b32 s{S_T0}, s{S_T0}, 14")
    g.i(f"v_add_u32 v{V_KA}, s{S_T0}, v{V_L16}")
    g.i(f"v_and_b32 v{V_T0}, 15, v0")
    g.i(f"v_lshlrev_b32 v{V_T0}, 4, v{V_T0}")
    g.i(f"v_lshrrev_b32 v{V_T1}, 5, v0")
    g.i(f"v_lshl_add_u32 v{V_T0}, v{V_T1}, 8, v{V_T0}")
    g.i(f"s_add_u32 s{S_T0}, s{S_T0}, 1024")
    g.i(f"v_add_u32 v{V_VA}, s{S_T0}, v{V_T0}")
    g.i(f"v_and_b32 v{V_T0}, 31, v0")
    g.i(f"v_subrev_u32 v{V_T1}, 20, v{V_T0}")
    g.i(f"v_cmp_gt_u32 vcc, 8, v{V_T1}")
    g.i(f"v_mov_b32 v{V_T1}, {L_CONST+16}")
    g.i(f"v_mov_b32 v{V_VX}, {L_CONST+16+64}")
    g.i(f"v_cndmask_b32 v{V_T1}, v{V_T1}, v{V_VX}, vcc")
    g.i(f"v_and_b32 v{V_VX}, 27, v0")
    g.i(f"v_cmp_eq_u32 vcc, 16, v{V_VX}")
    g.i(f"v_subrev_u32 v{V_VX}, 16, v{V_T1}")
    g.i("s_nop 0")
    g.i(f"v_cndmask_b32 v{V_T1}, v{V_T1}, v{V_VX}, vcc")
    g.i(f"v_cmp_gt_u32 vcc, 16, v{V_T0}")
    g.i(f"v_mov_b32 v{V_T0}, {RING}")
    g.i(f"v_mov_b32 v{V_IDX}, 0xdddd")
    g.i(f"v_cndmask_b32 v{V_VA}, v{V_T1}, v{V_VA}, vcc")
    g.i(f"v_cndmask_b32 v{V_VX}, 0, v{V_T0}, vcc")
    g.i(f"v_add_u32 v{V_VX}, v{V_VX}, v{V_VA}")
    g.i(f"v_mov_b32 v{KG}, 0")
    g.i(f"v_mov_b32 v{VG}, 0")
    g.i("v_mov_b64 v[252:253], -1")
    g.i("v_mov_b64 v[254:255], -1")
    for r in range(0, 32, 2):
        g.i(f"v_mov_b64 v[{V_O[0]+r}:{V_O[0]+r+1}], 0")
    g.i(f"s_lshl_b32 s{S_T0}, s{S_BR}, 4")
    g.i(f"s_add_u32 s{S_T0}, s{S_T0}, s{S_HP}")
    g.i(f"s_lshl_b32 s{S_T0}, s{S_T0}, 7")
    g.i(f"v_and_b32 v6, 31, v0")
    g.i(f"v_lshl_add_u32 v{V_FA}, v6, 2, s{S_T0}")
    g.i(f"v_lshrrev_b32 v{V_T0}, 2, v0")
    g.i(f"v_and_b32 v{V_T0}, 4, v{V_T0}")
    g.i(f"v_and_b32 v{V_T1}, 7, v0")
    g.i(f"v_xor_b32 v{V_T0}, v{V_T0}, v{V_T1}")
    g.i(f"v_lshlrev_b32 v{V_T0}, 4, v{V_T0}")
    g.i(f"v_lshrrev_b32 v{V_T1}, 3, v0")
    g.i(f"v_lshl_add_u32 v{V_WOA}, v{V_T1}, 10, v{V_T0}")

def consts(g):
    g.i(f"s_cmp_lg_u32 s{S_WAVE}, 4")
    g.i("s_cbranch_scc1 L_ld_noconst")
    g.i("v_lshrrev_b32 v6, 2, v0")
    g.i("v_and_b32 v7, 1, v6")
    g.i("v_lshlrev_b32 v7, 9, v7")
    g.i("v_lshrrev_b32 v6, 1, v6")
    g.i("v_lshl_add_u32 v7, v6, 11, v7")
    g.i("v_and_b32 v6, 1, v0")
    g.i("v_lshl_add_u32 v7, v6, 4, v7")
    g.i("v_cmp_eq_u32 vcc, 0, v6")
    g.i("v_and_b32 v6, 2, v0")
    g.i("v_lshl_add_u32 v7, v6, 5, v7")
    g.i("v_mov_b32 v6, 0x3f803f80")
    g.i(f"v_add_u32 v7, {L_CONST}, v7")
    g.i("v_cndmask_b32 v108, 0, v6, vcc")
    g.i("v_cndmask_b32 v109, 0, v6, vcc")
    g.i("v_cndmask_b32 v110, 0, v6, vcc")
    g.i("v_cndmask_b32 v111, 0, v6, vcc")
    g.i("ds_write_b128 v7, v[108:111]")
    g.lab("L_ld_noconst")

def loader(g):
    VX, VW, VT = 100, 104, 112
    LEAD = g.opt.get('lead', 0)
    g.lab("L_loader")
    g.i(f"s_sub_u32 s{S_A}, s{S_WAVE}, 4")
    S_CH, S_TX = S_F, 55
    RM = g.opt.get('rot', 7)
    if RM == 1:
        g.i(f"s_lshl_b32 s{S_CH}, s{S_TB}, 1")
        g.i(f"s_lshr_b32 s{S_T1}, s{S_TB}, 2")
        g.i(f"s_add_u32 s{S_CH}, s{S_CH}, s{S_T1}")
        g.i(f"s_and_b32 s{S_CH}, s{S_CH}, 7")
    elif RM == 2:
        g.i(f"s_mov_b32 s{S_CH}, s{S_TB}")
    elif RM == 7:
        g.i(f"s_and_b32 s{S_T1}, s{S_HP}, 1")
        g.i(f"s_lshl_b32 s{S_T1}, s{S_T1}, 2")
        g.i(f"s_add_u32 s{S_CH}, s{S_TB}, s{S_T1}")
        g.i(f"s_and_b32 s{S_CH}, s{S_CH}, 7")
    elif RM == 8:
        g.i(f"s_lshl_b32 s{S_CH}, s{S_TB}, 1")
        g.i(f"s_bfe_u32 s{S_T1}, s{S_HP}, 0x10001")
        g.i(f"s_add_u32 s{S_CH}, s{S_CH}, s{S_T1}")
        g.i(f"s_and_b32 s{S_CH}, s{S_CH}, 7")
    elif RM == 9:
        g.i(f"s_lshl_b32 s{S_CH}, s{S_TB}, 1")
        g.i(f"s_and_b32 s{S_T1}, s{S_HP}, 3")
        g.i(f"s_add_u32 s{S_CH}, s{S_CH}, s{S_T1}")
        g.i(f"s_and_b32 s{S_CH}, s{S_CH}, 7")
    elif RM == 0:
        g.i(f"s_mov_b32 s{S_CH}, 0")
    elif RM == 6:
        g.i(f"s_lshl_b32 s{S_CH}, s{S_TB}, 1")
        g.i(f"s_add_u32 s{S_CH}, s{S_CH}, s{S_HP}")
        g.i(f"s_and_b32 s{S_CH}, s{S_CH}, 7")
    elif RM == 4:
        g.i(f"s_lshl_b32 s{S_CH}, s{S_TB}, 1")
        g.i(f"s_add_u32 s{S_CH}, s{S_CH}, s{S_HP}")
        g.i(f"s_and_b32 s{S_CH}, s{S_CH}, 3")
        g.i(f"s_lshl_b32 s{S_CH}, s{S_CH}, 1")
    elif RM == 5:
        g.i(f"s_add_u32 s{S_CH}, s{S_TB}, s{S_HP}")
        g.i(f"s_and_b32 s{S_CH}, s{S_CH}, 3")
        g.i(f"s_lshl_b32 s{S_CH}, s{S_CH}, 1")
    elif RM == 3:
        g.i(f"s_lshl_b32 s{S_CH}, s{S_TB}, 1")
        g.i(f"s_and_b32 s{S_T1}, s{S_HP}, 1")
        g.i(f"s_add_u32 s{S_CH}, s{S_CH}, s{S_T1}")
        g.i(f"s_and_b32 s{S_CH}, s{S_CH}, 7")
    g.i(f"v_lshlrev_b32 v{VT}, 10, v0")
    g.i(f"s_and_b32 s{S_TX}, s{S_HP}, 7")
    g.i(f"s_lshl_b32 s{S_TX}, s{S_TX}, 2")
    g.i(f"s_add_u32 s{S_TX}, s{S_TX}, s{S_A}")
    g.i(f"s_lshl_b32 s{S_TX}, s{S_TX}, 13")
    NT = 1 if LEAD else 0
    def touch(ahead):
        if not LEAD: return
        g.i(f"s_add_u32 s{S_T0}, s{S_CH}, {ahead}")
        g.i(f"s_and_b32 s{S_T0}, s{S_T0}, 7")
        g.i(f"s_lshl_b32 s{S_T0}, s{S_T0}, 7")
        g.i(f"s_add_u32 s{S_T0}, s{S_T0}, s{S_TX}")
        g.i("s_mov_b64 exec, 0xff")
        g.i(f"buffer_load_dword v244, v{VT}, s[{S_X}:{S_X+3}], s{S_T0} offen")
        g.i("s_mov_b64 exec, -1")
    g.i("v_lshrrev_b32 v6, 4, v0")
    g.i("v_and_b32 v7, 7, v0")
    g.i("v_xor_b32 v6, v6, v7")
    g.i("v_lshlrev_b32 v6, 4, v6")
    g.i("v_lshrrev_b32 v7, 3, v0")
    g.i(f"v_lshl_add_u32 v{VX}, v7, 10, v6")
    g.i(f"v_xor_b32 v{VX+1}, 64, v{VX}")
    g.i(f"v_add_u32 v{VX+2}, {2*7168}, v{VX}")
    g.i(f"v_add_u32 v{VX+3}, {3*7168}, v{VX+1}")
    g.i(f"v_add_u32 v{VX+1}, 7168, v{VX+1}")
    g.i(f"s_lshl_b32 s{S_B}, s{S_A}, 16")
    g.i(f"s_lshl_b32 s{S_D}, s{S_A}, 13")
    for p in range(3):
        g.i(f"v_add_u32 v6, {64*p}, v0")
        g.i("v_mul_u32_u24 v7, 43691, v6")
        g.i("v_lshrrev_b32 v7, 19, v7")
        g.i("v_mul_u32_u24 v110, 12, v7")
        g.i("v_sub_u32 v6, v6, v110")
        g.i("v_mul_u32_u24 v7, 3072, v7")
        g.i("v_lshrrev_b32 v110, 2, v6")
        g.i(f"v_lshl_add_u32 v7, v110, {6 if g.opt.get('x_wc') else 10}, v7")
        g.i("v_and_b32 v6, 3, v6")
        g.i("v_lshl_add_u32 v7, v6, 4, v7")
        g.i(f"v_subrev_u32 v{VW+p}, {1024*p}, v7")
    g.i(f"s_mul_i32 s{S_C}, s{S_A}, {16*3072}")
    g.i(f"s_lshl_b32 s{S_T1}, s{S_HP}, {7 if g.opt.get('x_wc') else 6}")
    g.i(f"s_add_u32 s{S_C}, s{S_C}, s{S_T1}")
    g.i(f"s_mul_i32 s{S_E}, s{S_A}, 3072")
    g.i(f"s_add_u32 s{S_E}, s{S_E}, {SLOT_W}")
    early_srds(g)
    def issue():
        g.i(f"s_lshl_b32 s{S_T1}, s{S_CH}, 7")
        g.i(f"s_add_u32 s{S_T1}, s{S_T1}, s{S_B}")
        g.i(f"s_mov_b32 m0, s{S_D}")
        g.i(f"s_add_u32 s{S_T0}, s{S_T1}, 32768")
        for p in range(4):
            g.i(f"buffer_load_dwordx4 v{VX+p}, s[{S_X}:{S_X+3}], s{S_T1} offen offset:{1024*p}{g.opt.get('xfl','')} lds")
        g.i(f"s_add_u32 m0, s{S_D}, 4096")
        g.i(f"s_mul_i32 s{S_T1}, s{S_CH}, {64*3072}")
        for p in range(4):
            g.i(f"buffer_load_dwordx4 v{VX+p}, s[{S_X}:{S_X+3}], s{S_T0} offen offset:{1024*p}{g.opt.get('xfl','')} lds")
        g.i(f"s_mov_b32 m0, s{S_E}")
        g.i(f"s_add_u32 s{S_T1}, s{S_T1}, s{S_C}")
        for p in range(3):
            if g.opt.get('x_now'): g.i(f"buffer_load_dword v244, v{VW+p}, s[{S_DBG if False else S_W}:{S_W+3}], s{S_C} offen"); continue
            g.i(f"buffer_load_dwordx4 v{VW+p}, s[{S_W}:{S_W+3}], s{S_T1} offen offset:{1024*p}{g.opt.get('wfl','')} lds")
        g.i(f"s_add_u32 s{S_CH}, s{S_CH}, 1")
        g.i(f"s_and_b32 s{S_CH}, s{S_CH}, 7")
    def next_slot():
        g.i(f"s_add_u32 s{S_D}, s{S_D}, {SLOT}")
        g.i(f"s_add_u32 s{S_E}, s{S_E}, {SLOT}")
        g.i(f"s_cmp_lt_u32 s{S_D}, {3*SLOT}")
        g.i(f"s_cselect_b32 s{S_T0}, 0, {3*SLOT}")
        g.i(f"s_sub_u32 s{S_D}, s{S_D}, s{S_T0}")
        g.i(f"s_sub_u32 s{S_E}, s{S_E}, s{S_T0}")
    issue()
    g.st('ld_c0')
    next_slot(); issue()
    for c in range(2, LEAD): touch(c - 2)
    g.st('ld_c2')
    late_srds(g); attn_consts(g); consts(g)
    g.st('ld_pre')
    PRE = g.opt.get('pre', '')
    n0 = NT * max(LEAD - 2, 0)
    def pre():
        g.i(f"s_lshl_b32 s{S_T0}, s{S_TB}, 14")
        g.i(f"s_and_b32 s{S_T1}, s{S_A}, 1")
        g.i(f"s_lshl_b32 s{S_T1}, s{S_T1}, 13")
        g.i(f"s_add_u32 s{S_T0}, s{S_T0}, s{S_T1}")
        g.i(f"s_lshr_b32 s{S_T1}, s{S_A}, 1")
        g.i(f"s_lshl_b32 s{S_T1}, s{S_T1}, 17")
        g.i(f"s_add_u32 s{S_T0}, s{S_T0}, s{S_T1}")
        if PRE == 'r':
            g.i("v_lshlrev_b32 v6, 7, v0")
            g.i(f"buffer_load_dword v245, v6, s[{S_KV}:{S_KV+3}], s{S_T0} offen sc1")
            return 1
        g.i(f"s_add_u32 s{S_T1}, s{S_T0}, 4096")
        for k in range(8):
            g.i(f"buffer_store_dwordx4 v[{V_O[0]}:{V_O[0]+3}], v{V_L16}, s[{S_KV}:{S_KV+3}], s{S_T1 if k >= 4 else S_T0} offen offset:{1024*(k%4)} sc1")
        return 8
    np_ = 0
    PC = g.opt.get('prec', 1)
    for c, n in ((0, 11 + n0), (1, n0 + 11 + NT)):
        g.i(f"s_waitcnt vmcnt({n + (np_ if c == 1 else 0)})")
        if c == 0: g.st('ld_got0')
        g.i("s_barrier")
        next_slot(); issue(); touch(LEAD - 3)
        if PRE and c == PC: np_ = pre()
    if PRE and PC == 1:
        g.i(f"s_waitcnt vmcnt({11+2*NT+np_})")
        g.i("s_barrier")
        next_slot(); issue(); touch(LEAD - 3)
        g.i(f"s_mov_b32 s{S_IT}, 3")
        g.i(f"s_waitcnt vmcnt({11+2*NT+np_})")
        g.i("s_branch L_ld_loop2")
    g.i(f"s_mov_b32 s{S_IT}, 2")
    g.lab("L_ld_loop")
    g.i(f"s_waitcnt vmcnt({11+2*NT})")
    g.lab("L_ld_loop2")
    g.i("s_barrier")
    next_slot(); issue(); touch(LEAD - 3)
    g.i(f"s_add_u32 s{S_IT}, s{S_IT}, 1")
    g.i(f"s_cmp_lt_u32 s{S_IT}, 6")
    g.i("s_cbranch_scc1 L_ld_loop")
    g.st('ld_iss7')
    g.i(f"s_waitcnt vmcnt({11+2*NT})")
    g.i("s_barrier")
    g.i("s_waitcnt vmcnt(0)")
    g.i("s_barrier")
    g.i(f"s_cmp_lg_u32 s{S_WAVE}, 4")
    g.i("s_cbranch_scc1 L_ld_nocert")
    g.i(f"s_lshl_b32 s{S_T0}, s{S_BR}, 4")
    g.i(f"s_add_u32 s{S_T0}, s{S_T0}, s{S_HP}")
    g.i(f"s_lshl_b32 s{S_T0}, s{S_T0}, 3")
    g.i(f"v_mov_b32 v7, s{S_T0}")
    spin(g, "cert1", f"buffer_load_dword v{V_F}, v7, s[{S_DBG}:{S_DBG+3}], 0 offen sc1", 8)
    g.lab("L_ld_nocert")
    g.i(f"s_lshl_b32 s{S_T0}, s{S_A}, 11")
    g.i(f"s_add_u32 s{S_T0}, s{S_T0}, {L_QX}")
    g.i(f"v_add_u32 v6, s{S_T0}, v{V_L16}")
    attn_setup(g)
    g.i("s_waitcnt lgkmcnt(0)")
    g.i("s_barrier")
    g.i(f"ds_read_b128 {vr(V_Q[0],4)}, v6")
    g.i(f"ds_read_b128 {vr(V_Q[1],4)}, v6 offset:1024")
    g.i("s_branch L_attn")

class LdsQ:
    def __init__(self, g): self.g = g; self.q = []
    def issue(self, tag): self.q.append(tag)
    def need(self, tags):
        idx = max([i for i, t in enumerate(self.q) if t in tags], default=-1)
        if idx >= 0:
            n = len(self.q) - 1 - idx
            self.g.i(f"s_waitcnt lgkmcnt({min(n,15)})")
            self.q = self.q[idx + 1:]

def compute(g):
    g.lab("L_compute")
    g.i("s_waitcnt lgkmcnt(0)")
    late_srds(g)
    g.i(f"s_cmp_lg_u32 s{S_WAVE}, 0")
    g.i("s_cbranch_scc1 L_cp_noclear")
    g.i(f"s_lshl_b32 s{S_T0}, s{S_BR}, 4")
    g.i(f"s_add_u32 s{S_T0}, s{S_T0}, s{S_HP}")
    g.i(f"s_lshl_b32 s{S_T1}, s{S_T0}, 7")
    g.i(f"s_lshl_b32 s{S_T2}, s{S_TB}, 4")
    g.i(f"s_add_u32 s{S_T1}, s{S_T1}, s{S_T2}")
    g.i(f"v_lshl_add_u32 v6, v0, 2, s{S_T1}")
    g.i("v_mov_b32 v100, 0")
    g.i("s_mov_b64 exec, 0xf")
    g.i(f"buffer_store_dword v100, v6, s[{S_FL}:{S_FL+3}], 0 offen sc1")
    g.i("s_mov_b64 exec, -1")
    g.lab("L_cp_noclear")
    attn_consts(g)
    g.i("v_and_b32 v6, 31, v0")
    g.i(f"s_lshl_b32 s{S_T0}, s{S_WAVE}, 13")
    g.i(f"v_lshl_add_u32 v100, v6, 7, s{S_T0}")
    g.i("v_bfe_u32 v6, v0, 1, 3")
    g.i("v_lshrrev_b32 v7, 5, v0")
    g.i("v_xor_b32 v6, v6, v7")
    for s in range(4):
        g.i(f"v_xor_b32 v7, {2*s}, v6")
        g.i(f"v_lshl_add_u32 v{V_XA+s}, v7, 4, v100")
    g.i("v_lshrrev_b32 v6, 5, v0")
    g.i("v_bfe_u32 v7, v0, 2, 2")
    g.i("v_lshl_add_u32 v6, v6, 3, v7")
    g.i("v_mul_u32_u24 v6, 192, v6")
    g.i("v_bfe_u32 v7, v0, 4, 1")
    g.i("v_lshl_add_u32 v6, v7, 5, v6")
    g.i("v_and_b32 v7, 3, v0")
    g.i("v_lshl_add_u32 v6, v7, 3, v6")
    g.i(f"v_add_u32 v{V_WA}, {SLOT_W}, v6")
    for r in range(0, 96, 2):
        g.i(f"v_mov_b64 v[{V_ACC+r}:{V_ACC+r+1}], 0")
    S_A, S_B = 56, 57
    g.i("v_and_b32 v6, 0x33, v0")
    g.i("v_bfe_u32 v7, v0, 2, 1")
    g.i("v_lshl_or_b32 v6, v7, 3, v6")
    g.i("v_bfe_u32 v7, v0, 3, 1")
    g.i("v_lshl_or_b32 v6, v7, 2, v6")
    g.i(f"v_lshlrev_b32 v{KG}, 4, v6")
    g.i(f"s_lshl_b32 s{S_T0}, s{S_WAVE}, 12")
    g.i(f"v_add_u32 v{KL}, s{S_T0}, v{KG}")
    g.i("v_and_b32 v6, 15, v0")
    g.i("v_lshlrev_b32 v6, 4, v6")
    g.i("v_lshrrev_b32 v7, 5, v0")
    g.i("v_lshl_add_u32 v6, v7, 8, v6")
    g.i("v_add_u32 v6, 1024, v6")
    g.i("v_bfe_u32 v7, v0, 4, 1")
    g.i(f"v_lshl_add_u32 v{VG}, v7, 17, v6")
    g.i("v_lshl_add_u32 v6, v7, 14, v6")
    g.i(f"v_add_u32 v{VL}, s{S_T0}, v6")
    g.i(f"s_lshr_b32 s{S_T0}, s{S_T0}, 1")
    g.i(f"s_add_u32 s{S_T0}, s{S_T0}, {L_QX}")
    g.i(f"v_add_u32 v{QL}, s{S_T0}, v{V_L16}")
    if g.opt.get('dry', 1):
        g.i(f"s_cmp_lt_u32 s{S_WAVE}, 2")
        g.i("s_cbranch_scc1 L_dry_done")
        g.i(f"s_mov_b32 s{S_DRY}, 1")
        g.i(f"s_mov_b32 s{S_IT}, 7")
        g.i("s_mov_b64 vcc, 0")
        g.i(f"s_mov_b64 s[{S_M}:{S_M+1}], 0")
        g.i(f"s_mov_b64 s[{S_M+2}:{S_M+3}], 0")
        g.i(f"s_mov_b32 s{S_MK}, 0")
        g.i("s_waitcnt vmcnt(0) lgkmcnt(0)")
        g.i("s_setvskip -1, 0")
        g.i(f"s_cmp_eq_u32 s{S_WAVE}, 2")
        g.i("s_cbranch_scc1 L_at_done")
        g.i("s_branch L_cp_loop")
        g.lab("L_dry_ret")
        g.i("s_setvskip 0, 0")
        g.i("s_mov_b64 exec, -1")
        g.i("s_setprio 0")
        g.i(f"s_mov_b32 s{S_DRY}, 0")
        g.lab("L_dry_done")
    attn_setup(g)
    g.i(f"s_lshl_b32 s{S_T0}, s{S_WAVE}, 12")
    g.i(f"s_lshl_b32 s{S_G1}, s{S_TB}, 14")
    g.i(f"s_add_u32 s{S_G1}, s{S_G1}, s{S_T0}")
    g.i(f"s_add_u32 s{S_G2}, s{S_G1}, 131072")
    g.i(f"s_mov_b32 s{S_IT}, 0")
    g.i(f"s_mov_b32 s{S_A}, 0")
    g.i(f"s_mov_b32 s{S_B}, {SLOT}")
    q = LdsQ(g)
    def rd(setn, s, which):
        F = V_FR[setn]
        if which[0] == 'x':
            i = int(which[1])
            g.i(f"ds_read_b128 {vr(F+4*i,4)}, v{V_XA+s} offset:{4096*i}")
        else:
            p = {'q': 0, 'k': 1, 'v': 2}[which[0]]; i = int(which[1])
            g.i(f"ds_read_b64_tr_b16 {vr(F+8+4*p+2*i,2)}, v{V_WA} offset:{s*3072+i*768+p*64}")
        q.issue((setn, which))
    ORDER = ['x0', 'q0', 'q1', 'x1', 'k0', 'k1', 'v0', 'v1']
    def mf(setn, n):
        F = V_FR[setn]; p, i = n // 2, n % 2
        w, x = vr(F + 8 + 4 * p, 4), vr(F + 4 * i, 4)
        nm = 'qkv'[p]
        q.need({(setn, f'x{i}'), (setn, nm + '0'), (setn, nm + '1')})
        A, B = (w, x) if p < 2 else (x, w)
        acc = vr(V_ACC + 16 * n, 16)
        if g.opt.get('x_m16'):
            for hh in range(2):
                a4 = vr(V_ACC + 16 * n + 4 * hh, 4)
                g.i(f"v_mfma_f32_16x16x32_bf16 {a4}, {A}, {B}, {a4}")
        else:
            g.i(f"v_mfma_f32_32x32x16_bf16 {acc}, {A}, {B}, {acc}")
    def step(cur, nxt_s):
        plan = [ORDER[0:2], ORDER[2:4], ORDER[4:6], ORDER[6:8], [], []]
        for n in range(6):
            if cur is not None: mf(cur, n)
            if nxt_s is not None:
                for w in plan[n]: rd(1 - (cur if cur is not None else 1), nxt_s, w)
    g.i(f"s_cmp_lg_u32 s{S_WAVE}, 0")
    g.i("s_cbranch_scc1 L_cp_nocount")
    g.i(f"s_lshl_b32 s{S_T0}, s{S_BR}, 4")
    g.i(f"s_add_u32 s{S_T0}, s{S_T0}, s{S_HP}")
    g.i(f"s_lshl_b32 s{S_T0}, s{S_T0}, 3")
    g.i("s_mov_b64 exec, 1")
    g.i(f"v_mov_b32 v6, s{S_T0}")
    g.i("v_mov_b32 v7, 1")
    g.i(f"s_waitcnt vmcnt(0)")
    g.i(f"buffer_atomic_add v7, v6, s[{S_DBG}:{S_DBG+3}], 0 offen sc1")
    g.i("s_mov_b64 exec, -1")
    g.lab("L_cp_nocount")
    def prew():
        g.i(f"s_lshl_b32 s{S_T0}, s{S_TB}, 14")
        g.i(f"s_lshl_b32 s{S_T1}, s{S_WAVE}, 12")
        g.i(f"s_add_u32 s{S_T0}, s{S_T0}, s{S_T1}")
        g.i(f"s_add_u32 s{S_T1}, s{S_T0}, 131072")
        for k in range(8):
            g.i(f"buffer_store_dwordx4 v[{V_O[0]}:{V_O[0]+3}], v{V_L16}, s[{S_KV}:{S_KV+3}], s{S_T1 if k >= 4 else S_T0} offen offset:{1024*(k%4)} sc1")
    def prer():
        g.i("v_and_b32 v6, 31, v0")
        g.i("v_lshlrev_b32 v6, 7, v6")
        g.i("v_lshrrev_b32 v7, 5, v0")
        g.i("v_lshl_add_u32 v6, v7, 17, v6")
        g.i(f"buffer_load_dword v246, v6, s[{S_KV}:{S_KV+3}], s{S_G1} offen{g.opt.get('prefl', ' sc1')}")
    PR = g.opt.get('prer', 0)
    if PR == -1: prer()
    if g.opt.get('prew') == 1: prew()
    g.st('cp_pre')
    g.i("s_barrier")
    g.stamp(1)
    if g.opt.get('prew') == 2: prew()
    step(None, 0)
    g.lab("L_cp_loop")
    q.q = [(0, w) for w in ORDER]
    step(0, 1); step(1, 2); step(0, 3)
    g.i(f"s_add_u32 s{S_A}, s{S_A}, 1")
    g.i(f"s_cmp_eq_u32 s{S_A}, 3")
    g.i(f"s_cselect_b32 s{S_T0}, {(-2*SLOT) & 0xffffffff}, s{S_B}")
    g.i(f"s_cselect_b32 s{S_A}, 0, s{S_A}")
    g.i(f"s_add_u32 s{S_IT}, s{S_IT}, 1")
    g.i(f"s_cmp_eq_u32 s{S_IT}, 8")
    g.i("s_cbranch_scc1 L_cp_last")
    g.i("s_waitcnt lgkmcnt(0)")
    q.q = []
    g.i("s_barrier")
    for r in range(5):
        g.i(f"v_add_u32 v{V_XA+r}, s{S_T0}, v{V_XA+r}")
    PW = g.opt.get('pwd')
    if PW:
        c0, kind = PW
        if kind == 'd':
            g.i(f"s_cmp_lg_u32 s{S_IT}, {c0}")
            g.i("s_cbranch_scc1 L_cp_nopw")
            g.i("v_and_b32 v6, 31, v0")
            g.i("v_lshlrev_b32 v6, 7, v6")
            g.i("v_lshrrev_b32 v7, 5, v0")
            g.i("v_lshl_add_u32 v6, v7, 17, v6")
            g.i(f"buffer_store_dword v{V_O[0]}, v6, s[{S_KV}:{S_KV+3}], s{S_G1} offen sc1")
        elif kind == 'f':
            g.i(f"s_cmp_lg_u32 s{S_IT}, {c0}")
            g.i("s_cbranch_scc1 L_cp_nopw")
            for k in range(8):
                g.i(f"buffer_store_dwordx4 v[{V_O[0]}:{V_O[0]+3}], v{V_L16}, s[{S_KV}:{S_KV+3}], s{S_G2 if k >= 4 else S_G1} offen offset:{1024*(k%4)} sc1")
        elif kind == 's':
            g.i(f"s_sub_u32 s{S_T1}, s{S_IT}, {c0}")
            g.i(f"s_cmp_ge_u32 s{S_T1}, 4")
            g.i("s_cbranch_scc1 L_cp_nopw")
            g.i(f"s_lshl_b32 s{S_T1}, s{S_T1}, 10")
            g.i(f"s_add_u32 s{S_T2}, s{S_T1}, s{S_G2}")
            g.i(f"s_add_u32 s{S_T1}, s{S_T1}, s{S_G1}")
            for so in (S_T1, S_T2):
                g.i(f"buffer_store_dwordx4 v[{V_O[0]}:{V_O[0]+3}], v{V_L16}, s[{S_KV}:{S_KV+3}], s{so} offen sc1")
        g.lab("L_cp_nopw")
    if PR > 0:
        g.i(f"s_cmp_lg_u32 s{S_IT}, {PR}")
        g.i("s_cbranch_scc1 L_cp_nopre")
        prer()
        g.lab("L_cp_nopre")
    step(1, 0)
    g.i("s_branch L_cp_loop")
    g.lab("L_cp_last")
    q.q = [(1, w) for w in ORDER]
    step(1, None)
    g.stamp(2)
    g.i(f"s_mov_b32 s{S_T1}, {hex(QSCALE)}")
    g.i(f"s_mov_b32 s{S_T2}, s{S_T1}")
    g.i("s_nop 5")
    KVS = g.opt.get('kvs', ' sc1')
    T = 204
    n = 0
    for i in range(2):
        A = V_ACC + 16 * (2 + i)
        for hd in range(2):
            for r in range(4):
                g.i(f"v_cvt_pk_bf16_f32 v{T+4*n+r}, v{A+8*hd+2*r}, v{A+8*hd+2*r+1}")
            g.i(f"ds_write_b128 v{KL}, {vr(T+4*n,4)} offset:{16384*hd+2048*i}")
            n += 1
    for i in range(2):
        A = V_ACC + 16 * (4 + i)
        for gr in range(2):
            for r in range(4):
                g.i(f"v_cvt_pk_bf16_f32 v{T+4*n+r}, v{A+8*gr+2*r}, v{A+8*gr+2*r+1}")
            g.i(f"ds_write_b128 v{VL}, {vr(T+4*n,4)} offset:{2048*i+512*gr}")
            n += 1
    g.i(f"s_cmp_lg_u32 s{S_PG}, 0")
    g.i("s_cbranch_scc1 L_cp_later")
    for n in range(8): g.i(kv_store(n))
    g.lab("L_cp_later")
    for i in range(2):
        A = V_ACC + 16 * i
        for r in range(8, 16, 2):
            g.i(f"v_pk_mul_f32 v[{A+r}:{A+r+1}], v[{A+r}:{A+r+1}], s[{S_T0+1}:{S_T0+2}]")
        for r in range(4):
            g.i(f"v_cvt_pk_bf16_f32 v{A+8+r}, v{A+8+2*r}, v{A+8+2*r+1}")
        g.i(f"ds_write_b128 v{QL}, {vr(A+8,4)} offset:{1024*i}")
    for i in range(2):
        A = V_ACC + 16 * i
        for r in range(0, 8, 2):
            g.i(f"v_pk_mul_f32 v[{A+r}:{A+r+1}], v[{A+r}:{A+r+1}], s[{S_T0+1}:{S_T0+2}]")
        for r in range(4):
            g.i(f"v_cvt_pk_bf16_f32 v{V_Q[i]+r}, v{A+2*r}, v{A+2*r+1}")
    g.i("s_waitcnt lgkmcnt(0)")
    barrier_unless_dry(g, "b8")

U = 8
S_OA, S_OB = S_M + 6, S_M + 7
S_MK = S_M + 5
S_KV2 = S_X
S_KO = [None, 4, 5, 6, 7, 12, 13, 14]
S_LM = [[49, 50], [51, 52]]
V_VB = 4

def kv_store(n):
    if n < 4: adr, so, off = KG, (S_G2 if n % 2 else S_G1), 2048 * (n // 2)
    else: adr, so, off = VG, S_G1, 2048 * ((n - 4) // 2) + 512 * (n % 2)
    return f"buffer_store_dwordx4 {vr(KVT+4*n,4)}, v{adr}, s[{S_KV}:{S_KV+3}], s{so} offen offset:{off} sc1"

def spin_mask(g, tag, load):
    g.i(f"s_mov_b32 s{S_T3}, 0")
    g.lab(f"L_spin_{tag}")
    g.i(load)
    g.i(f"s_add_u32 s{S_T3}, s{S_T3}, 1")
    g.i("s_waitcnt vmcnt(0)")
    g.i(f"v_cmp_ne_u32 vcc, 1, v{V_F}")
    g.i(f"s_cmp_ge_u32 s{S_T3}, {SPIN_MAX}")
    g.i(f"s_cbranch_scc1 L_olr_{tag}")
    g.i(f"s_and_b32 vcc_lo, vcc_lo, s{S_MK}")
    g.i(f"s_cbranch_scc1 L_spin_{tag}")

def attn_setup(g):
    g.i(f"s_add_u32 s{S_KV2}, s{S_KV}, 131072")
    g.i(f"s_addc_u32 s{S_KV2+1}, s{S_KV+1}, 0")
    g.i(f"s_mov_b32 s{S_KV2+2}, 131072")
    g.i(f"s_mov_b32 s{S_KV2+3}, 0x20000")
    g.i(f"s_lshl_b32 s{S_LM[0][0]}, s{S_WAVE}, 11")
    g.i(f"s_add_u32 s{S_LM[0][1]}, s{S_LM[0][0]}, 16384")
    g.i(f"s_add_u32 s{S_LM[1][0]}, s{S_LM[0][0]}, {RING}")
    g.i(f"s_add_u32 s{S_LM[1][1]}, s{S_LM[0][0]}, {RING+16384}")
    for i in range(1, 8):
        g.i(f"s_cmp_gt_u32 s{S_TB}, {i-1}")
        g.i(f"s_cselect_b32 s{S_T0}, {i-1}, {i}")
        if i == 1:
            g.i(f"s_lshl_b32 s{S_T3}, s{S_T0}, 2")
            g.i(f"s_lshl_b32 s{S_MK}, 15, s{S_T3}")
        g.i(f"s_lshl_b32 s{S_T0}, s{S_T0}, 14")
        g.i(f"s_add_u32 s{S_KO[i]}, s{S_T0}, s{S_LM[0][0]}")
    g.i(f"s_lshr_b32 s{S_PG}, s{S_TB}, 1")
    g.i(f"s_min_u32 s{S_PG}, s{S_PG}, 2")
    g.i(f"s_cmp_ge_u32 s{S_WAVE}, 4")
    g.i(f"s_cselect_b32 s{S_PG}, 3, s{S_PG}")
    g.i(f"s_and_b32 s{S_F}, s{S_HP}, 7")
    g.i(f"s_lshl_b32 s{S_T0}, s{S_F}, 7")
    g.i(f"s_lshl_b32 s55, s{S_WAVE}, 16")
    g.i(f"s_add_u32 s55, s55, s{S_T0}")
    g.i(f"s_lshl_b32 s{S_E}, s{S_WAVE}, 13")
    g.i(f"s_add_u32 s{S_E}, s{S_E}, {L_WO}")
    g.i(f"s_and_b32 s{S_T0}, s{S_WAVE}, 3")
    g.i(f"s_lshl_b32 s{S_T0}, s{S_T0}, 1")
    g.i(f"s_lshl_b32 s{S_T1}, s{S_TB}, 3")
    g.i(f"s_add_u32 s{S_T0}, s{S_T0}, s{S_T1}")
    g.i(f"s_lshl_b32 s{S_OA}, s{S_T0}, 15")
    g.i(f"s_lshr_b32 s{S_T1}, s{S_WAVE}, 2")
    g.i(f"s_lshl_b32 s{S_T2}, s{S_HP}, 1")
    g.i(f"s_add_u32 s{S_T1}, s{S_T1}, s{S_T2}")
    g.i(f"s_lshl_b32 s{S_T2}, s{S_T1}, 10")
    g.i(f"s_add_u32 s{S_OA}, s{S_OA}, s{S_T2}")
    g.i(f"s_add_u32 s{S_OB}, s{S_OA}, 32768")

def attention(g):
    opt = g.opt
    g.lab("L_attn")
    g.stamp(3)
    g.i(f"ds_read_b128 {vr(V_K,4)}, v{V_KA}")
    g.i(f"ds_read_b128 {vr(V_V[0],4)}, v{V_VA}")
    g.i(f"ds_read_b128 {vr(V_V[0]+4,4)}, v{V_VA} offset:512")
    g.i("s_setprio 3")
    g.i("s_waitcnt lgkmcnt(2)")
    g.i(f"v_mfma_f32_32x32x16_bf16 {vr(V_S[0],16)}, {vr(V_K,4)}, {vr(V_Q[0],4)}, 0")
    dry_exit(g)
    g.i("s_nop 9")
    g.i("s_waitcnt lgkmcnt(0)")
    poll = f"buffer_load_dword v{V_F}, v{V_FA}, s[{S_FL}:{S_FL+3}], 0 offen sc1"
    side = []
    ev = {}
    def at(it, p, slot, *ins): ev.setdefault((it, p, slot), []).extend(ins)
    def kv(i, n):
        return f"buffer_load_dwordx4 v{V_L16}, {sr(S_KV2 if n >= 2 else S_KV, 4)}, s{S_KO[i]} offen offset:{1024*(n%2)}{opt.get('kvl', ' sc1')} lds"
    def check(tag, n):
        def f():
            if n is not None: g.i(f"s_waitcnt vmcnt({n})")
            g.i(f"v_cmp_ne_u32 vcc, 1, v{V_F}")
            g.i("s_nop 0")
            g.i(f"s_and_b32 vcc_lo, vcc_lo, s{S_MK}")
            g.i(f"s_cbranch_scc1 L_ol_{tag}")
            g.lab(f"L_olr_{tag}")
            side.append((tag, lambda: spin_mask(g, tag, poll)))
        return f
    def group(pg, tag, body):
        def f():
            g.i(f"s_cmp_lg_u32 s{S_PG}, {pg}")
            g.i(f"s_cbranch_scc1 L_pg_{tag}")
            body()
            g.lab(f"L_pg_{tag}")
        return f
    def flag():
        g.i(f"s_lshl_b32 s{S_T0}, s{S_TB}, 2")
        g.i(f"s_add_u32 s{S_T0}, s{S_T0}, s{S_WAVE}")
        g.i(f"s_lshl_b64 exec, 1, s{S_T0}")
        g.i("v_mov_b32 v6, 1")
        g.i(f"buffer_store_dword v6, v{V_FA}, s[{S_FL}:{S_FL+3}], 0 offen sc1")
        g.i("s_mov_b64 exec, -1")
    def stores(it, p0, pg):
        for k, (a_, b_) in enumerate(((0, 3), (3, 6), (6, 8))):
            at(it, p0 + k, 'p1', group(pg, f"s{pg}{k}", lambda a_=a_, b_=b_: [g.i(kv_store(n)) for n in range(a_, b_)]))
    def burst(i):
        sl = i % 2
        return [f"s_mov_b32 m0, s{S_LM[sl][0]}", "s_nop 0", kv(i, 0), kv(i, 1), f"s_mov_b32 m0, s{S_LM[sl][1]}", "s_nop 0", kv(i, 2), kv(i, 3)]
    def count():
        g.i(f"s_cmp_lg_u32 s{S_WAVE}, 7")
        g.i("s_cbranch_scc1 L_at_nocnt")
        g.i(f"s_lshl_b32 s{S_T0}, s{S_BR}, 4")
        g.i(f"s_add_u32 s{S_T0}, s{S_T0}, s{S_HP}")
        g.i(f"s_lshl_b32 s{S_T0}, s{S_T0}, 3")
        g.i("s_mov_b64 exec, 1")
        g.i(f"v_mov_b32 v6, s{S_T0}")
        g.i("v_mov_b32 v7, 1")
        g.i(f"buffer_atomic_add v7, v6, s[{S_DBG}:{S_DBG+3}], 0 offen offset:4 sc1")
        g.i("s_mov_b64 exec, -1")
        g.lab("L_at_nocnt")
    pp, pi0, pc0, ps1, pi1, pc1, pi3, pc3 = opt.get('ev', (1, 7, 9, 2, 5, 7, 7, 9))
    at(0, pp, 'qk', group(0, "f0", lambda: (g.st('pub_pre'), g.i("s_waitcnt vmcnt(0)"), g.st('pub_ack'), flag())))
    stores(0, ps1, 1)
    at(0, pi0, 'qk', poll)
    at(0, pc0, 'qk', "s_waitcnt vmcnt(0)", group(1, "f1", flag), check("kv0", None), lambda: g.st('chk_ok'), *burst(1),
       f"s_mov_b32 s{S_MK}, 0xffff")
    at(1, pi1, 'qk', poll)
    at(1, pc1, 'qk', check("kv1", 0), *burst(2), f"s_mov_b32 s{S_MK}, -1")
    stores(1, pc1 + 1, 2)
    at(2, 15, 'qk', group(2, "f2", flag))
    at(3, pi3, 'qk', poll)
    at(3, pc3, 'p2', check("kv2", 0), *burst(4))
    late = {i: 0 for i in range(8)}
    dp = opt.get('dma', (1, 3, 5, 7))
    for i in (2, 4, 5, 6):
        sl = (i + 1) % 2
        at(i, dp[0] - 1, 'p2x', f"s_mov_b32 m0, s{S_LM[sl][0]}")
        at(i, dp[0], 'qk', kv(i + 1, 0))
        at(i, dp[1], 'qk', kv(i + 1, 1))
        at(i, dp[2], 'p2', f"s_mov_b32 m0, s{S_LM[sl][1]}")
        at(i, dp[2], 'qk', kv(i + 1, 2))
        at(i, dp[3], 'qk', kv(i + 1, 3))
    wp = opt.get('wop', (11, 13))
    for i in range(1, 5):
        for k, p in enumerate(wp):
            at(i, p, 'p2', f"s_add_u32 m0, s{S_E}, {(2*(i-1)+k)*1024}")
            at(i, p, 'qk', f"buffer_load_dwordx4 v{V_WOA}, s[{S_WO}:{S_WO+3}], s55 offen lds")
            at(i, p, 'p1', "s_add_u32 s55, s55, 8192")
        late[i] += 2
    for k, so in enumerate((S_OA, S_OB)):
        at(5, 9 + 2 * k, 'qk', f"buffer_store_dwordx4 v[252:255], v{V_L16}, s[{S_O}:{S_O+3}], s{so} offen sc1")
    late[5] += 2
    at(7, 1, 'qk', count)
    if opt.get('x_late0'): late = {i: 0 for i in range(8)}
    prio = opt.get('prio', {0: 3, 5: 2, 10: 1, 13: 0})
    for i in range(8):
        for p, v in prio.items():
            ii, q = (i, p - 1) if p else (i - 1, 15)
            if ii >= 0: at(ii, q, 'p1', f"s_setprio {v}")
    def emit(it, p, slot):
        for x in ev.pop((it, p, slot), []):
            x() if callable(x) else g.i(x)
    p2, pq, p1 = opt.get('pos', (1, 5, 10))
    for it in range(8):
        if opt.get('itst'):
            g.i("s_memtime s[98:99]")
            g.i("s_waitcnt lgkmcnt(0)")
            g.i(f"v_writelane_b32 v250, s98, {it}")
        for p in range(2 * U):
            b, t = p % 2, p // 2
            S, So = V_S[b], V_S[1 - b]
            nt = (t + 1) % U
            sl = (it + (t == U - 1)) % 2
            VA = V_VB if sl else V_VA
            last = it == 7 and t == U - 1
            for e in range(16):
                g.i(f"v_exp_f32 v{S+e}, v{S+e}")
                if e == p2:
                    tp = (p - 1) // 2
                    if it or p:
                        g.i(f"v_smfmac_f32_32x32x32_bf16 {vr(V_O[1-b],16)}, {vr(V_V[tp%2]+4,4)}, {vr(So+8,8)}, v{V_IDX}")
                    emit(it, p, 'p2x')
                    if b == 0:
                        if t == U - 1 and it < 7:
                            if it == 1:
                                g.i(f"s_waitcnt vmcnt({late[it] + 8})")
                                g.i(f"s_cmp_eq_u32 s{S_PG}, 2")
                                g.i("s_cbranch_scc1 L_w8")
                                g.i(f"s_waitcnt vmcnt({late[it]})")
                                g.lab("L_w8")
                            else: g.i(f"s_waitcnt vmcnt({late[it]})")
                            if it == 0: g.st('chk1_ok')
                            g.i("s_barrier")
                        if not last: g.i(f"ds_read_b128 {vr(V_V[(t+1)%2],4)}, v{VA} offset:{nt*2048}")
                    elif not last:
                        g.i("s_waitcnt lgkmcnt(1)")
                    emit(it, p, 'p2')
                if e == pq:
                    if not (last and b):
                        g.i(f"v_mfma_f32_32x32x16_bf16 {vr(So,16)}, {vr(V_K,4)}, {vr(V_Q[1-b],4)}, 0")
                    if b == 0 and not last:
                        g.i(f"ds_read_b128 {vr(V_K,4)}, v{V_KA} offset:{sl*RING+nt*2048}")
                    emit(it, p, 'qk')
                if e == p1:
                    g.i(f"v_smfmac_f32_32x32x32_bf16 {vr(V_O[b],16)}, {vr(V_V[t%2],4)}, {vr(S,8)}, v{V_IDX}")
                    if b == 0 and not last:
                        g.i(f"ds_read_b128 {vr(V_V[(t+1)%2]+4,4)}, v{VA} offset:{nt*2048+512}")
                    elif not last:
                        g.i("s_waitcnt lgkmcnt(0)")
                    emit(it, p, 'p1')
    assert not ev, ev
    g.side = side
    g.lab("L_at_done")
    g.i("s_nop 1")
    g.i(f"v_smfmac_f32_32x32x32_bf16 {vr(V_O[1],16)}, {vr(V_V[1]+4,4)}, {vr(V_S[1]+8,8)}, v{V_IDX}")
    g.stamp(4)
    if opt.get('itst'):
        g.i("s_memtime s[98:99]")
        g.i("s_waitcnt lgkmcnt(0)")
        g.i(f"v_writelane_b32 v250, s98, 8")
    g.i(f"s_mov_b32 s{S_T0}, 0x2b800000")
    g.i(f"s_mov_b32 s{S_T1}, 0x53800000")
    g.i(f"s_mov_b32 s{S_T2}, 0x7f800000")
    for q in range(2):
        O = V_O[q]
        g.i(f"v_add_f32 v6, abs(v{O}), abs(v{O+1})")
        g.i(f"v_add_f32 v7, abs(v{O+2}), abs(v{O+3})")
        for r in range(4, 8, 2):
            g.i(f"v_add_f32 v6, v6, abs(v{O+r})")
            g.i(f"v_add_f32 v7, v7, abs(v{O+r+1})")
        g.i(f"v_add_f32 v6, v6, v7")
        g.i(f"v_cmp_nle_f32 s[{S_M}:{S_M+1}], s{S_T0}, v{O+8}")
        g.i(f"v_cmp_nge_f32 s[{S_M+2}:{S_M+3}], s{S_T1}, v{O+8}")
        g.i(f"v_cmp_ngt_f32 vcc, s{S_T2}, v6")
        g.i(f"v_rcp_f32 v{V_S[0]+q}, v{O+8}")
        g.i(f"s_or_b64 s[{S_M}:{S_M+1}], s[{S_M}:{S_M+1}], s[{S_M+2}:{S_M+3}]")
        g.i(f"s_or_b64 s[{S_M}:{S_M+1}], s[{S_M}:{S_M+1}], vcc")
        g.i("s_branch L_fallback" if opt.get('force_fallback') else "s_cbranch_scc1 L_fallback")
    g.lab("L_at_store")
    for q in range(2):
        O = V_O[q]
        for r in range(8):
            g.i(f"v_mul_f32 v{O+r}, v{O+r}, v{V_S[0]+q}")
        for r in range(4):
            g.i(f"v_cvt_pk_bf16_f32 v{O+r}, v{O+2*r}, v{O+2*r+1}")
        g.i(f"buffer_store_dwordx4 {vr(O,4)}, v{V_L16}, s[{S_O}:{S_O+3}], s{S_OB if q else S_OA} offen sc1")

P_WO = 100
P_OF = 8
def outproj(g):
    opt = g.opt
    A0, A1 = 228, 72
    WA0, WA1, RA, OA = 244, 245, 246, 247
    g.i(f"s_lshr_b32 s{S_E}, s{S_WAVE}, 2")
    g.i(f"s_lshl_b32 s{S_T0}, s{S_E}, 15")
    g.i(f"s_add_u32 s{S_T0}, s{S_T0}, {L_WO}")
    g.i("v_lshrrev_b32 v6, 5, v0")
    g.i("v_bfe_u32 v7, v0, 2, 2")
    g.i("v_lshl_add_u32 v6, v6, 2, v7")
    g.i(f"v_lshl_add_u32 v6, v6, 7, s{S_T0}")
    g.i("v_bfe_u32 v7, v0, 3, 2")
    g.i("v_and_b32 v2, 1, v7")
    g.i("v_lshl_add_u32 v6, v2, 6, v6")
    g.i("v_lshrrev_b32 v7, 1, v7")
    g.i("v_lshl_add_u32 v6, v7, 5, v6")
    g.i("v_and_b32 v7, 3, v0")
    g.i(f"v_lshl_add_u32 v6, v7, 3, v6")
    g.i(f"s_lshl_b32 s{S_T0}, s{S_E}, 6")
    g.i(f"v_xor_b32 v{WA0}, s{S_T0}, v6")
    g.i(f"v_xor_b32 v{WA1}, 64, v{WA0}")
    n = 0
    def wo_reads(s0, s1):
        for s in range(s0, s1):
            for f in range(2):
                for i in range(2):
                    g.i(f"ds_read_b64_tr_b16 {vr(P_WO+8*s+4*f+2*i,2)}, v{WA1 if f else WA0} offset:{s*2048+i*1024}")
    g.stamp(5)
    g.i(f"s_lshl_b32 s{S_T0}, s{S_BR}, 7")
    g.i("v_and_b32 v6, 15, v0")
    g.i(f"v_lshl_add_u32 v4, v6, 3, s{S_T0}")
    g.i(f"buffer_load_dword v5, v4, s[{S_DBG}:{S_DBG+3}], 0 offen offset:4 sc1")
    for s0 in range(0, 16, 3):
        if s0: g.i("s_waitcnt lgkmcnt(2)")
        wo_reads(s0, min(s0 + 3, 16))
    g.i(f"s_lshr_b32 s{S_T0}, s{S_HP}, 3")
    g.i(f"s_lshl_b32 s{S_T0}, s{S_T0}, 2")
    g.i(f"s_and_b32 s{S_T1}, s{S_WAVE}, 3")
    g.i(f"s_add_u32 s{S_A}, s{S_T0}, s{S_T1}")
    g.i(f"s_lshl_b32 s{S_T0}, s{S_TB}, 3")
    g.i(f"s_add_u32 s{S_A}, s{S_A}, s{S_T0}")
    g.i(f"s_lshl_b32 s{S_B}, s{S_A}, 15")
    g.i(f"s_lshl_b32 s{S_T0}, s{S_E}, 14")
    g.i(f"s_add_u32 s{S_B}, s{S_B}, s{S_T0}")
    g.i(f"s_add_u32 s{S_C}, s{S_B}, 4096")
    g.i(f"s_add_u32 s{S_D}, s{S_B}, 8192")
    g.i(f"s_add_u32 s{S_IT}, s{S_B}, 12288")
    g.i(f"v_lshlrev_b32 v2, 10, v6")
    g.i(f"v_add_u32 v2, 1020, v2")
    g.i(f"s_lshl_b32 s{S_T0}, s{S_WAVE}, 12")
    g.i(f"v_add_u32 v{RA}, s{S_T0}, v{V_L16}")
    g.i("v_and_b32 v6, 31, v0")
    g.i("v_lshlrev_b32 v6, 11, v6")
    g.i("v_lshrrev_b32 v7, 5, v0")
    g.i(f"v_lshl_add_u32 v{OA}, v7, 4, v6")
    g.i(f"s_lshl_b32 s{S_A}, s{S_A}, 16")
    g.i(f"s_lshl_b32 s{S_T0}, s{S_BR}, 10")
    g.i(f"s_add_u32 s{S_A}, s{S_A}, s{S_T0}")
    g.i(f"s_lshl_b32 s{S_T0}, s{S_F}, 7")
    g.i(f"s_add_u32 s{S_A}, s{S_A}, s{S_T0}")
    g.i(f"s_lshl_b32 s{S_T0}, s{S_E}, 6")
    g.i(f"s_add_u32 s{S_A}, s{S_A}, s{S_T0}")
    g.i(f"s_mov_b32 s{S_T3}, 0")
    g.lab("L_spin_c")
    g.i("s_waitcnt vmcnt(0)")
    g.i("v_cmp_gt_u32 vcc, 8, v5")
    g.i(f"s_add_u32 s{S_T3}, s{S_T3}, 1")
    g.i("s_cbranch_vccz L_spin_o")
    g.i(f"buffer_load_dword v5, v4, s[{S_DBG}:{S_DBG+3}], 0 offen offset:4 sc1")
    g.i(f"s_cmp_lt_u32 s{S_T3}, {SPIN_MAX}")
    g.i("s_cbranch_scc1 L_spin_c")
    g.lab("L_spin_o")
    if opt.get('probe', 1):
        g.i("s_mov_b64 exec, 0xffff")
        g.i(f"buffer_load_dword v3, v2, s[{S_O}:{S_O+3}], s{S_B} offen sc1")
        g.i(f"s_add_u32 s{S_T3}, s{S_T3}, 1")
        g.i("s_waitcnt vmcnt(0)")
        g.i("v_cmp_eq_u32 vcc, -1, v3")
        g.i("s_mov_b64 exec, -1")
        g.i(f"s_cmp_ge_u32 s{S_T3}, {SPIN_MAX}")
        g.i("s_cbranch_scc1 L_spun_o")
        if opt.get('sleep'): g.i(f"s_sleep {opt['sleep']}")
        g.i("s_cbranch_vccnz L_spin_o")
    else:
        g.i(f"s_add_u32 s{S_T3}, s{S_T3}, 1")
    g.lab("L_spun_o")
    g.stamp(6)
    for s in range(16):
        so = (S_B, S_C, S_D, S_IT)[s // 4]
        g.i(f"buffer_load_dwordx4 {vr(P_OF+4*s,4)}, v{V_L16}, s[{S_O}:{S_O+3}], s{so} offen offset:{1024*(s%4)} sc1")
    g.i("v_mov_b32 v3, 0")
    g.i("s_waitcnt lgkmcnt(0)")
    for s in range(16):
        g.i(f"s_waitcnt vmcnt({15-s})")
        for f, A in ((1, A1), (0, A0)):
            g.i(f"v_mfma_f32_32x32x16_bf16 {vr(A,16)}, {vr(P_WO+8*s+4*f,4)}, {vr(P_OF+4*s,4)}, {vr(A,16) if s else 0}")
            g.i(f"v_max3_u32 v3, v3, v{P_OF+4*s+2*f}, v{P_OF+4*s+2*f+1}")
    g.i("v_cmp_eq_u32 vcc, -1, v3")
    g.i(f"s_cmp_ge_u32 s{S_T3}, {SPIN_MAX}")
    g.i("s_cbranch_scc1 L_op_go")
    g.i("s_cbranch_vccnz L_spin_o")
    g.lab("L_op_go")
    g.i("s_nop 5")
    for r in range(4):
        g.i(f"ds_write_b128 v{RA}, {vr(A1+4*r,4)} offset:{1024*r}")
    g.i("s_waitcnt lgkmcnt(0)")
    g.i(f"v_xor_b32 v{RA}, 16384, v{RA}")
    barrier_unless_dry(g, "b9")
    for r in range(4):
        g.i(f"ds_read_b128 {vr(P_OF+4*r,4)}, v{RA} offset:{1024*r}")
    for r in range(4):
        g.i(f"s_waitcnt lgkmcnt({3-r})")
        for k in range(4):
            g.i(f"v_add_f32 v{A0+4*r+k}, v{A0+4*r+k}, v{P_OF+4*r+k}")
        for k in range(2):
            g.i(f"v_cvt_pk_bf16_f32 v{24+2*r+k}, v{A0+4*r+2*k}, v{A0+4*r+2*k+1}")
        if r % 2:
            g.i("s_nop 1")
            g.i(f"v_permlane32_swap_b32 v{24+2*r-2}, v{24+2*r}")
            g.i(f"v_permlane32_swap_b32 v{24+2*r-1}, v{24+2*r+1}")
            g.i(f"buffer_store_dwordx4 {vr(24+2*r-2,4)}, v{OA}, s[{S_OUT}:{S_OUT+3}], s{S_A} offen offset:{16*(r-1)}{opt.get('outs','')}")
    dry_exit(g)
    if g.diag:
        g.i("s_waitcnt vmcnt(0)")
        g.stamp(7)
        g.i("s_waitcnt lgkmcnt(0)")
        if g.diag == 3:
            a_, b_, K = opt['leak']
            if a_ in (1, 2) or b_ in (1, 2):
                g.i(f"s_cmp_ge_u32 s{S_WAVE}, 4")
                g.i("s_cbranch_scc1 L_end")
            g.i(f"s_sub_u32 s{S_T0}, s{66+4*b_}, s{66+4*a_}")
            g.i(f"s_mul_i32 s{S_T0}, s{S_T0}, {K}")
            g.lab("L_leak")
            g.i("s_memrealtime s[98:99]")
            g.i("s_waitcnt lgkmcnt(0)")
            g.i(f"s_sub_u32 s{S_T1}, s98, s{66+4*7}")
            g.i(f"s_cmp_lt_u32 s{S_T1}, s{S_T0}")
            g.i("s_cbranch_scc1 L_leak")
            g.i("s_endpgm")
        if g.diag == 2:
            g.i(f"s_cmp_ge_u32 s{S_WAVE}, 4")
            g.i("s_cbranch_scc1 L_end")
            g.i("s_mov_b64 exec, 1")
            for k in range(1, 8):
                g.i(f"s_sub_u32 s{S_T0}, s{66+4*k}, s66")
                g.i(f"v_mov_b32 v6, s{S_T0}")
                g.i(f"v_mov_b32 v7, {8*k+4}")
                g.i(f"buffer_atomic_umax v6, v7, s[{S_DBG}:{S_DBG+3}], 0 offen sc1")
            g.i(f"s_sub_u32 s{S_T0}, s{64+4*4}, s{64+4*3}")
            g.i(f"v_mov_b32 v6, s{S_T0}")
            g.i(f"v_mov_b32 v7, 4")
            g.i(f"buffer_atomic_umax v6, v7, s[{S_DBG}:{S_DBG+3}], 0 offen sc1")
            g.i("s_endpgm")
        g.i(f"s_lshl_b32 s{S_T0}, s2, 3")
        g.i(f"s_add_u32 s{S_T0}, s{S_T0}, s{S_WAVE}")
        g.i(f"s_lshl_b32 s{S_T0}, s{S_T0}, 7")
        g.i(f"s_add_u32 s{S_T0}, s{S_T0}, {WS_STAMP}")
        srd(g.a, S_X, 96, 128, f"s{S_T0}")
        for k in range(32):
            g.i(f"v_mov_b32 v{36+k}, s{64+k}")
        g.i("v_mov_b32 v6, 0")
        for k in range(8):
            g.i(f"buffer_store_dwordx4 {vr(36+4*k,4)}, v6, s[{S_X}:{S_X+3}], 0 offen offset:{16*k}")
        if opt.get('itst'):
            g.i(f"s_add_u32 s{S_T0}, s{S_T0}, {1<<20}")
            srd(g.a, S_X, 96, 64, f"s{S_T0}")
            g.i("v_lshlrev_b32 v6, 2, v0")
            g.i(f"buffer_store_dword v250, v6, s[{S_X}:{S_X+3}], 0 offen")
    g.lab("L_end")
    g.i("s_endpgm")

def fallback(g):
    C = [100, 116]; M = [132, 133]; GV = 134
    g.lab("L_fallback")
    g.i(f"s_lshr_b32 s{S_T0}, s{S_WAVE}, 2")
    g.i(f"s_lshl_b32 s{S_T0}, s{S_T0}, 17")
    g.i(f"v_mov_b32 v{M[0]}, 0xff800000")
    g.i(f"v_mov_b32 v{M[1]}, 0xff800000")
    g.i(f"s_mov_b32 s{S_T1}, s{S_T0}")
    g.i(f"s_add_u32 s{S_T2}, s{S_T0}, 131072")
    g.lab("L_fb_max")
    g.i(f"buffer_load_dwordx4 {vr(V_K,4)}, v{V_L16}, s[{S_KV}:{S_KV+3}], s{S_T1} offen sc1")
    g.i(f"s_add_u32 s{S_T1}, s{S_T1}, 2048")
    g.i("s_waitcnt vmcnt(0)")
    for q in range(2):
        g.i(f"v_mfma_f32_32x32x16_bf16 {vr(V_S[q],16)}, {vr(V_K,4)}, {vr(V_Q[q],4)}, 0")
    g.i("s_nop 15")
    for q in range(2):
        for r in range(0, 16, 2):
            g.i(f"v_max3_f32 v{M[q]}, v{M[q]}, v{V_S[q]+r}, v{V_S[q]+r+1}")
    g.i(f"s_cmp_lt_u32 s{S_T1}, s{S_T2}")
    g.i("s_cbranch_scc1 L_fb_max")
    for q in range(2):
        g.i(f"v_mov_b32 v6, v{M[q]}")
        g.i(f"v_mov_b32 v7, v{M[q]}")
        g.i("s_nop 1")
        g.i("v_permlane32_swap_b32 v6, v7")
        g.i("s_nop 1")
        g.i("v_max_f32 v6, v6, v7")
        for r in range(16):
            g.i(f"v_sub_f32 v{C[q]+r}, 0, v6")
            g.i(f"v_mov_b32 v{V_O[q]+r}, 0")
    g.i("v_and_b32 v6, 15, v0")
    g.i("v_lshlrev_b32 v6, 4, v6")
    g.i("v_lshrrev_b32 v7, 5, v0")
    g.i(f"v_lshl_add_u32 v{GV}, v7, 8, v6")
    for r in range(8):
        g.i(f"v_mov_b32 v{V_V[0]+r}, 0x3f803f80")
    g.i(f"s_mov_b32 s{S_T1}, s{S_T0}")
    g.i(f"s_mov_b32 s{S_M}, 0xffff")
    g.i(f"s_mov_b32 s{S_M+1}, 0xffff")
    g.lab("L_fb_pv")
    g.i(f"buffer_load_dwordx4 {vr(V_K,4)}, v{V_L16}, s[{S_KV}:{S_KV+3}], s{S_T1} offen sc1")
    g.i(f"s_mov_b64 exec, s[{S_M}:{S_M+1}]")
    g.i(f"buffer_load_dwordx4 {vr(V_V[0],4)}, v{GV}, s[{S_KV}:{S_KV+3}], s{S_T1} offen offset:1024 sc1")
    g.i(f"buffer_load_dwordx4 {vr(V_V[0]+4,4)}, v{GV}, s[{S_KV}:{S_KV+3}], s{S_T1} offen offset:1536 sc1")
    g.i("s_mov_b64 exec, -1")
    g.i(f"s_add_u32 s{S_T1}, s{S_T1}, 2048")
    g.i("s_waitcnt vmcnt(0)")
    for q in range(2):
        g.i(f"v_mfma_f32_32x32x16_bf16 {vr(V_S[q],16)}, {vr(V_K,4)}, {vr(V_Q[q],4)}, {vr(C[q],16)}")
    g.i("s_nop 15")
    for q in range(2):
        for r in range(16):
            g.i(f"v_exp_f32 v{V_S[q]+r}, v{V_S[q]+r}")
    g.i("s_nop 3")
    for q in range(2):
        for h in range(2):
            g.i(f"v_smfmac_f32_32x32x32_bf16 {vr(V_O[q],16)}, {vr(V_V[0]+4*h,4)}, {vr(V_S[q]+8*h,8)}, v{V_IDX}")
    g.i("s_nop 15")
    g.i(f"s_cmp_lt_u32 s{S_T1}, s{S_T2}")
    g.i("s_cbranch_scc1 L_fb_pv")
    for q in range(2):
        g.i(f"v_rcp_f32 v{V_S[0]+q}, v{V_O[q]+8}")
    g.i("s_nop 1")
    g.i("s_branch L_at_store")

HEADER = open('cdna_kernels/' + NAME + '.s.ref').read().split('; Override launch')[0]

def generate(opt={}):
    global WS_KV, WS_O, WS_FLAG
    off = opt.get('wsoff', 0) << 20
    WS_KV, WS_O, WS_FLAG = (4 << 20) + off, (12 << 20) + off, (16 << 20) + off
    g = G(opt)
    name = NAME + "_kernel"
    g.a(HEADER.rstrip())
    g.a(f"; @launch grid=(256,1,1) block=(512,1,1) lds={LDS_TOTAL}")
    g.a('.amdgcn_target "amdgcn-amd-amdhsa--gfx950"')
    entry(g, name)
    if opt.get('lfirst', 1): loader(g)
    compute(g)
    attention(g)
    outproj(g)
    if not opt.get('lfirst', 1): loader(g)
    g.lab("L_code_end")
    for tag, body in g.side:
        g.lab(f"L_ol_{tag}")
        body()
        g.i(f"s_branch L_olr_{tag}")
    fallback(g)
    kernel_desc(g.a, name, NVGPR, 256, 102)
    return g.a.text()

if __name__ == "__main__":
    import sys
    opt = eval(sys.argv[2]) if len(sys.argv) > 2 else {}
    open(sys.argv[1], 'w').write(generate(opt))
```

```python
import math, struct
from common import *

WS_FLAG = 16 << 20
SLOT = 45056; SLOT_W = 32768
RING = 32768
L_WO = 65536
L_CONST = 135168
L_QX = 155648
LDS_TOTAL = 163840
S_X, S_W, S_WO, S_KV, S_O, S_FL, S_DBG, S_OUT = 8, 12, 16, 20, 24, 28, 32, 36
S_WAVE, S_BR, S_HP, S_TB, S_IT, S_T0, S_T1, S_T2, S_T3 = 40, 41, 42, 43, 44, 45, 46, 47, 48
S_A, S_B, S_C, S_D, S_E, S_F = 49, 50, 51, 52, 53, 54
S_G1, S_G2, S_PG = 58, 59, 60
KG, KL, VG, VL, QL, KVT = 244, 245, 247, 248, 249, 204
S_M = 56
V_L16, V_KA, V_VA, V_VX, V_IDX, V_T0, V_T1 = 1, 2, 3, 4, 5, 6, 7
V_Q = [8, 12]; V_K = 16; V_V = [20, 28]; V_S = [36, 52]; V_O = [68, 84]
V_F = 241
V_FA = 242
V_WOA = 243
V_ACC = 100
V_FR = [196, 216]
V_XA = 236; V_WA = 240
NVGPR = 256
QSCALE = struct.unpack('<I', struct.pack('<f', 0.25 * math.log2(math.e)))[0]
SPIN_MAX = 1 << 20
S_DRY = 3

class G:
    def __init__(self, opt):
        self.a = Asm(); self.opt = opt; self.diag = opt.get('diag', 0)
    def i(self, s): self.a.i(s)
    def lab(self, s): self.a.label(s)
    def st(self, name):
        m = self.opt.get('st', {})
        if name in m: self.stamp(m[name], True)
    def stamp(self, k, forced=False):
        if k in self.opt.get('st', {}).values() and not forced: return
        if self.diag:
            self.i(f"s_memtime s[{64+4*k}:{65+4*k}]")
            self.i(f"s_memrealtime s[{66+4*k}:{67+4*k}]")

def dry_exit(g, label="L_dry_ret"):
    if g.opt.get('dry', 1):
        g.i(f"s_cmp_lg_u32 s{S_DRY}, 0")
        g.i(f"s_cbranch_scc1 {label}")

def barrier_unless_dry(g, tag):
    dry_exit(g, f"L_nb_{tag}")
    g.i("s_barrier")
    g.lab(f"L_nb_{tag}")

def spin(g, tag, load, want, nlanes_mask=None):
    g.i(f"s_mov_b32 s{S_T3}, 0")
    g.lab(f"L_spin_{tag}")
    g.i(load)
    g.i(f"s_add_u32 s{S_T3}, s{S_T3}, 1")
    g.i("s_waitcnt vmcnt(0)")
    g.i(f"v_cmp_{'gt' if want > 1 else 'ne'}_u32 vcc, {want}, v{V_F}")
    g.i(f"s_cmp_ge_u32 s{S_T3}, {SPIN_MAX}")
    g.i(f"s_cbranch_scc1 L_spun_{tag}")
    g.i(f"s_cbranch_vccnz L_spin_{tag}")
    g.lab(f"L_spun_{tag}")

def entry(g, name):
    a = g.a
    kernel_head(a, name)
    PF = g.opt.get('cpf', 1)
    if PF:
        g.i("s_getpc_b64 s[8:9]")
        g.i("v_lshlrev_b32 v6, 7, v0")
        g.i("s_mov_b32 s10, L_code_end-" + name + "-4")
        g.i("s_mov_b32 s11, 0x20000")
    g.i("s_cmp_ge_u32 s2, 256")
    g.i("s_cbranch_scc1 L_end")
    if PF:
        g.i("buffer_load_dword v246, v6, s[8:11], 0 offen")
    g.stamp(0)
    g.i(f"s_mov_b32 s{S_DRY}, 0")
    g.i(f"s_bfe_u32 s{S_BR}, s2, 0x10002")
    g.i(f"s_mul_i32 s{S_T0}, s{S_BR}, 24")
    g.i(f"s_load_dwordx4 s[{S_M}:{S_M+3}], s[0:1], s{S_T0}")
    g.i(f"s_load_dwordx2 s[{S_M+4}:{S_M+5}], s[0:1], s{S_T0} offset:16")
    g.i("s_load_dwordx4 s[4:7], s[0:1], 48")
    g.i(f"s_load_dwordx2 s[{S_M+6}:{S_M+7}], s[0:1], 64")
    g.i("v_lshrrev_b32 v6, 6, v0")
    g.i("v_and_b32 v0, 63, v0")
    g.i(f"v_readfirstlane_b32 s{S_WAVE}, v6")
    g.i(f"v_lshlrev_b32 v{V_L16}, 4, v0")
    g.i(f"s_bfe_u32 s{S_HP}, s2, 0x10001")
    g.i(f"s_lshl_b32 s{S_HP}, s{S_HP}, 3")
    g.i(f"s_bfe_u32 s{S_T0}, s2, 0x30003")
    g.i(f"s_add_u32 s{S_HP}, s{S_HP}, s{S_T0}")
    g.i(f"s_and_b32 s{S_TB}, s2, 1")
    g.i(f"s_lshl_b32 s{S_TB}, s{S_TB}, 2")
    g.i(f"s_lshr_b32 s{S_T0}, s2, 6")
    g.i(f"s_add_u32 s{S_TB}, s{S_TB}, s{S_T0}")
    g.i(f"s_lshl_b32 s{S_T0}, s{S_TB}, 18")
    g.i(f"s_lshl_b32 s{S_T1}, s{S_BR}, 4")
    g.i(f"s_add_u32 s{S_T1}, s{S_T1}, s{S_HP}")
    g.i(f"s_lshl_b32 s{S_T2}, s{S_T1}, 18")
    g.i(f"s_add_u32 s{S_T2}, s{S_T2}, {WS_KV}")
    g.i(f"s_lshl_b32 s{S_T3}, s{S_BR}, 21")
    g.i(f"s_add_u32 s{S_T3}, s{S_T3}, {WS_O}")
    if g.opt.get('lfirst', 1):
        g.i(f"s_cmp_lt_u32 s{S_WAVE}, 4")
        g.i("s_cbranch_scc1 L_compute")
    else:
        g.i(f"s_cmp_ge_u32 s{S_WAVE}, 4")
        g.i("s_cbranch_scc1 L_loader")

def early_srds(g):
    g.i("s_waitcnt lgkmcnt(0)")
    g.st('karg')
    srd(g.a, S_X, S_M, 256 * 1024, f"s{S_T0}")
    srd(g.a, S_W, S_M + 2, 512 * 1536 * 2)

def late_srds(g):
    a = g.a
    srd(a, S_WO, S_M + 4, 512 * 512 * 2)
    srd(a, S_KV, S_M + 6, 256 * 1024, f"s{S_T2}")
    srd(a, S_O, S_M + 6, 2 << 20, f"s{S_T3}")
    srd(a, S_FL, S_M + 6, 4096, str(WS_FLAG))
    srd(a, S_DBG, 6, 256)
    srd(a, S_OUT, 4, 2048 * 1024 * 2)
    if g.diag:
        g.i(f"s_mov_b32 s96, s{S_M+6}")
        g.i(f"s_mov_b32 s97, s{S_M+7}")

def attn_consts(g):
    g.i(f"s_lshr_b32 s{S_T0}, s{S_WAVE}, 2")
    g.i(f"s_lshl_b32 s{S_T0}, s{S_T0}, 14")
    g.i(f"v_add_u32 v{V_KA}, s{S_T0}, v{V_L16}")
    g.i(f"v_and_b32 v{V_T0}, 15, v0")
    g.i(f"v_lshlrev_b32 v{V_T0}, 4, v{V_T0}")
    g.i(f"v_lshrrev_b32 v{V_T1}, 5, v0")
    g.i(f"v_lshl_add_u32 v{V_T0}, v{V_T1}, 8, v{V_T0}")
    g.i(f"s_add_u32 s{S_T0}, s{S_T0}, 1024")
    g.i(f"v_add_u32 v{V_VA}, s{S_T0}, v{V_T0}")
    g.i(f"v_and_b32 v{V_T0}, 31, v0")
    g.i(f"v_subrev_u32 v{V_T1}, 20, v{V_T0}")
    g.i(f"v_cmp_gt_u32 vcc, 8, v{V_T1}")
    g.i(f"v_mov_b32 v{V_T1}, {L_CONST+16}")
    g.i(f"v_mov_b32 v{V_VX}, {L_CONST+16+64}")
    g.i(f"v_cndmask_b32 v{V_T1}, v{V_T1}, v{V_VX}, vcc")
    g.i(f"v_and_b32 v{V_VX}, 27, v0")
    g.i(f"v_cmp_eq_u32 vcc, 16, v{V_VX}")
    g.i(f"v_subrev_u32 v{V_VX}, 16, v{V_T1}")
    g.i("s_nop 0")
    g.i(f"v_cndmask_b32 v{V_T1}, v{V_T1}, v{V_VX}, vcc")
    g.i(f"v_cmp_gt_u32 vcc, 16, v{V_T0}")
    g.i(f"v_mov_b32 v{V_T0}, {RING}")
    g.i(f"v_mov_b32 v{V_IDX}, 0xdddd")
    g.i(f"v_cndmask_b32 v{V_VA}, v{V_T1}, v{V_VA}, vcc")
    g.i(f"v_cndmask_b32 v{V_VX}, 0, v{V_T0}, vcc")
    g.i(f"v_add_u32 v{V_VX}, v{V_VX}, v{V_VA}")
    g.i(f"v_mov_b32 v{KG}, 0")
    g.i(f"v_mov_b32 v{VG}, 0")
    g.i("v_mov_b64 v[252:253], -1")
    g.i("v_mov_b64 v[254:255], -1")
    for r in range(0, 32, 2):
        g.i(f"v_mov_b64 v[{V_O[0]+r}:{V_O[0]+r+1}], 0")
    g.i(f"s_lshl_b32 s{S_T0}, s{S_BR}, 4")
    g.i(f"s_add_u32 s{S_T0}, s{S_T0}, s{S_HP}")
    g.i(f"s_lshl_b32 s{S_T0}, s{S_T0}, 7")
    g.i(f"v_and_b32 v6, 31, v0")
    g.i(f"v_lshl_add_u32 v{V_FA}, v6, 2, s{S_T0}")
    g.i(f"v_lshrrev_b32 v{V_T0}, 2, v0")
    g.i(f"v_and_b32 v{V_T0}, 4, v{V_T0}")
    g.i(f"v_and_b32 v{V_T1}, 7, v0")
    g.i(f"v_xor_b32 v{V_T0}, v{V_T0}, v{V_T1}")
    g.i(f"v_lshlrev_b32 v{V_T0}, 4, v{V_T0}")
    g.i(f"v_lshrrev_b32 v{V_T1}, 3, v0")
    g.i(f"v_lshl_add_u32 v{V_WOA}, v{V_T1}, 10, v{V_T0}")

def consts(g):
    g.i(f"s_cmp_lg_u32 s{S_WAVE}, 4")
    g.i("s_cbranch_scc1 L_ld_noconst")
    g.i("v_lshrrev_b32 v6, 2, v0")
    g.i("v_and_b32 v7, 1, v6")
    g.i("v_lshlrev_b32 v7, 9, v7")
    g.i("v_lshrrev_b32 v6, 1, v6")
    g.i("v_lshl_add_u32 v7, v6, 11, v7")
    g.i("v_and_b32 v6, 1, v0")
    g.i("v_lshl_add_u32 v7, v6, 4, v7")
    g.i("v_cmp_eq_u32 vcc, 0, v6")
    g.i("v_and_b32 v6, 2, v0")
    g.i("v_lshl_add_u32 v7, v6, 5, v7")
    g.i("v_mov_b32 v6, 0x3f803f80")
    g.i(f"v_add_u32 v7, {L_CONST}, v7")
    g.i("v_cndmask_b32 v108, 0, v6, vcc")
    g.i("v_cndmask_b32 v109, 0, v6, vcc")
    g.i("v_cndmask_b32 v110, 0, v6, vcc")
    g.i("v_cndmask_b32 v111, 0, v6, vcc")
    g.i("ds_write_b128 v7, v[108:111]")
    g.lab("L_ld_noconst")

def loader(g):
    VX, VW, VT = 100, 104, 112
    LEAD = g.opt.get('lead', 0)
    g.lab("L_loader")
    g.i(f"s_sub_u32 s{S_A}, s{S_WAVE}, 4")
    S_CH, S_TX = S_F, 55
    RM = g.opt.get('rot', 7)
    if RM == 1:
        g.i(f"s_lshl_b32 s{S_CH}, s{S_TB}, 1")
        g.i(f"s_lshr_b32 s{S_T1}, s{S_TB}, 2")
        g.i(f"s_add_u32 s{S_CH}, s{S_CH}, s{S_T1}")
        g.i(f"s_and_b32 s{S_CH}, s{S_CH}, 7")
    elif RM == 2:
        g.i(f"s_mov_b32 s{S_CH}, s{S_TB}")
    elif RM == 7:
        g.i(f"s_and_b32 s{S_T1}, s{S_HP}, 1")
        g.i(f"s_lshl_b32 s{S_T1}, s{S_T1}, 2")
        g.i(f"s_add_u32 s{S_CH}, s{S_TB}, s{S_T1}")
        g.i(f"s_and_b32 s{S_CH}, s{S_CH}, 7")
    elif RM == 8:
        g.i(f"s_lshl_b32 s{S_CH}, s{S_TB}, 1")
        g.i(f"s_bfe_u32 s{S_T1}, s{S_HP}, 0x10001")
        g.i(f"s_add_u32 s{S_CH}, s{S_CH}, s{S_T1}")
        g.i(f"s_and_b32 s{S_CH}, s{S_CH}, 7")
    elif RM == 9:
        g.i(f"s_lshl_b32 s{S_CH}, s{S_TB}, 1")
        g.i(f"s_and_b32 s{S_T1}, s{S_HP}, 3")
        g.i(f"s_add_u32 s{S_CH}, s{S_CH}, s{S_T1}")
        g.i(f"s_and_b32 s{S_CH}, s{S_CH}, 7")
    elif RM == 0:
        g.i(f"s_mov_b32 s{S_CH}, 0")
    elif RM == 6:
        g.i(f"s_lshl_b32 s{S_CH}, s{S_TB}, 1")
        g.i(f"s_add_u32 s{S_CH}, s{S_CH}, s{S_HP}")
        g.i(f"s_and_b32 s{S_CH}, s{S_CH}, 7")
    elif RM == 4:
        g.i(f"s_lshl_b32 s{S_CH}, s{S_TB}, 1")
        g.i(f"s_add_u32 s{S_CH}, s{S_CH}, s{S_HP}")
        g.i(f"s_and_b32 s{S_CH}, s{S_CH}, 3")
        g.i(f"s_lshl_b32 s{S_CH}, s{S_CH}, 1")
    elif RM == 5:
        g.i(f"s_add_u32 s{S_CH}, s{S_TB}, s{S_HP}")
        g.i(f"s_and_b32 s{S_CH}, s{S_CH}, 3")
        g.i(f"s_lshl_b32 s{S_CH}, s{S_CH}, 1")
    elif RM == 3:
        g.i(f"s_lshl_b32 s{S_CH}, s{S_TB}, 1")
        g.i(f"s_and_b32 s{S_T1}, s{S_HP}, 1")
        g.i(f"s_add_u32 s{S_CH}, s{S_CH}, s{S_T1}")
        g.i(f"s_and_b32 s{S_CH}, s{S_CH}, 7")
    g.i(f"v_lshlrev_b32 v{VT}, 10, v0")
    g.i(f"s_and_b32 s{S_TX}, s{S_HP}, 7")
    g.i(f"s_lshl_b32 s{S_TX}, s{S_TX}, 2")
    g.i(f"s_add_u32 s{S_TX}, s{S_TX}, s{S_A}")
    g.i(f"s_lshl_b32 s{S_TX}, s{S_TX}, 13")
    NT = 1 if LEAD else 0
    def touch(ahead):
        if not LEAD: return
        g.i(f"s_add_u32 s{S_T0}, s{S_CH}, {ahead}")
        g.i(f"s_and_b32 s{S_T0}, s{S_T0}, 7")
        g.i(f"s_lshl_b32 s{S_T0}, s{S_T0}, 7")
        g.i(f"s_add_u32 s{S_T0}, s{S_T0}, s{S_TX}")
        g.i("s_mov_b64 exec, 0xff")
        g.i(f"buffer_load_dword v244, v{VT}, s[{S_X}:{S_X+3}], s{S_T0} offen")
        g.i("s_mov_b64 exec, -1")
    g.i("v_lshrrev_b32 v6, 4, v0")
    g.i("v_and_b32 v7, 7, v0")
    g.i("v_xor_b32 v6, v6, v7")
    g.i("v_lshlrev_b32 v6, 4, v6")
    g.i("v_lshrrev_b32 v7, 3, v0")
    g.i(f"v_lshl_add_u32 v{VX}, v7, 10, v6")
    g.i(f"v_xor_b32 v{VX+1}, 64, v{VX}")
    g.i(f"v_add_u32 v{VX+2}, {2*7168}, v{VX}")
    g.i(f"v_add_u32 v{VX+3}, {3*7168}, v{VX+1}")
    g.i(f"v_add_u32 v{VX+1}, 7168, v{VX+1}")
    g.i(f"s_lshl_b32 s{S_B}, s{S_A}, 16")
    g.i(f"s_lshl_b32 s{S_D}, s{S_A}, 13")
    for p in range(3):
        g.i(f"v_add_u32 v6, {64*p}, v0")
        g.i("v_mul_u32_u24 v7, 43691, v6")
        g.i("v_lshrrev_b32 v7, 19, v7")
        g.i("v_mul_u32_u24 v110, 12, v7")
        g.i("v_sub_u32 v6, v6, v110")
        g.i("v_mul_u32_u24 v7, 3072, v7")
        g.i("v_lshrrev_b32 v110, 2, v6")
        g.i(f"v_lshl_add_u32 v7, v110, {6 if g.opt.get('x_wc') else 10}, v7")
        g.i("v_and_b32 v6, 3, v6")
        g.i("v_lshl_add_u32 v7, v6, 4, v7")
        g.i(f"v_subrev_u32 v{VW+p}, {1024*p}, v7")
    g.i(f"s_mul_i32 s{S_C}, s{S_A}, {16*3072}")
    g.i(f"s_lshl_b32 s{S_T1}, s{S_HP}, {7 if g.opt.get('x_wc') else 6}")
    g.i(f"s_add_u32 s{S_C}, s{S_C}, s{S_T1}")
    g.i(f"s_mul_i32 s{S_E}, s{S_A}, 3072")
    g.i(f"s_add_u32 s{S_E}, s{S_E}, {SLOT_W}")
    early_srds(g)
    def issue():
        g.i(f"s_lshl_b32 s{S_T1}, s{S_CH}, 7")
        g.i(f"s_add_u32 s{S_T1}, s{S_T1}, s{S_B}")
        g.i(f"s_mov_b32 m0, s{S_D}")
        g.i(f"s_add_u32 s{S_T0}, s{S_T1}, 32768")
        for p in range(4):
            g.i(f"buffer_load_dwordx4 v{VX+p}, s[{S_X}:{S_X+3}], s{S_T1} offen offset:{1024*p}{g.opt.get('xfl','')} lds")
        g.i(f"s_add_u32 m0, s{S_D}, 4096")
        g.i(f"s_mul_i32 s{S_T1}, s{S_CH}, {64*3072}")
        for p in range(4):
            g.i(f"buffer_load_dwordx4 v{VX+p}, s[{S_X}:{S_X+3}], s{S_T0} offen offset:{1024*p}{g.opt.get('xfl','')} lds")
        g.i(f"s_mov_b32 m0, s{S_E}")
        g.i(f"s_add_u32 s{S_T1}, s{S_T1}, s{S_C}")
        for p in range(3):
            if g.opt.get('x_now'): g.i(f"buffer_load_dword v244, v{VW+p}, s[{S_DBG if False else S_W}:{S_W+3}], s{S_C} offen"); continue
            g.i(f"buffer_load_dwordx4 v{VW+p}, s[{S_W}:{S_W+3}], s{S_T1} offen offset:{1024*p}{g.opt.get('wfl','')} lds")
        g.i(f"s_add_u32 s{S_CH}, s{S_CH}, 1")
        g.i(f"s_and_b32 s{S_CH}, s{S_CH}, 7")
    def next_slot():
        g.i(f"s_add_u32 s{S_D}, s{S_D}, {SLOT}")
        g.i(f"s_add_u32 s{S_E}, s{S_E}, {SLOT}")
        g.i(f"s_cmp_lt_u32 s{S_D}, {3*SLOT}")
        g.i(f"s_cselect_b32 s{S_T0}, 0, {3*SLOT}")
        g.i(f"s_sub_u32 s{S_D}, s{S_D}, s{S_T0}")
        g.i(f"s_sub_u32 s{S_E}, s{S_E}, s{S_T0}")
    issue()
    g.st('ld_c0')
    next_slot(); issue()
    for c in range(2, LEAD): touch(c - 2)
    g.st('ld_c2')
    late_srds(g); attn_consts(g); consts(g)
    g.st('ld_pre')
    PRE = g.opt.get('pre', '')
    n0 = NT * max(LEAD - 2, 0)
    def pre():
        g.i(f"s_lshl_b32 s{S_T0}, s{S_TB}, 14")
        g.i(f"s_and_b32 s{S_T1}, s{S_A}, 1")
        g.i(f"s_lshl_b32 s{S_T1}, s{S_T1}, 13")
        g.i(f"s_add_u32 s{S_T0}, s{S_T0}, s{S_T1}")
        g.i(f"s_lshr_b32 s{S_T1}, s{S_A}, 1")
        g.i(f"s_lshl_b32 s{S_T1}, s{S_T1}, 17")
        g.i(f"s_add_u32 s{S_T0}, s{S_T0}, s{S_T1}")
        if PRE == 'r':
            g.i("v_lshlrev_b32 v6, 7, v0")
            g.i(f"buffer_load_dword v245, v6, s[{S_KV}:{S_KV+3}], s{S_T0} offen sc1")
            return 1
        g.i(f"s_add_u32 s{S_T1}, s{S_T0}, 4096")
        for k in range(8):
            g.i(f"buffer_store_dwordx4 v[{V_O[0]}:{V_O[0]+3}], v{V_L16}, s[{S_KV}:{S_KV+3}], s{S_T1 if k >= 4 else S_T0} offen offset:{1024*(k%4)} sc1")
        return 8
    np_ = 0
    PC = g.opt.get('prec', 1)
    for c, n in ((0, 11 + n0), (1, n0 + 11 + NT)):
        g.i(f"s_waitcnt vmcnt({n + (np_ if c == 1 else 0)})")
        if c == 0: g.st('ld_got0')
        g.i("s_barrier")
        next_slot(); issue(); touch(LEAD - 3)
        if PRE and c == PC: np_ = pre()
    if PRE and PC == 1:
        g.i(f"s_waitcnt vmcnt({11+2*NT+np_})")
        g.i("s_barrier")
        next_slot(); issue(); touch(LEAD - 3)
        g.i(f"s_mov_b32 s{S_IT}, 3")
        g.i(f"s_waitcnt vmcnt({11+2*NT+np_})")
        g.i("s_branch L_ld_loop2")
    g.i(f"s_mov_b32 s{S_IT}, 2")
    g.lab("L_ld_loop")
    g.i(f"s_waitcnt vmcnt({11+2*NT})")
    g.lab("L_ld_loop2")
    g.i("s_barrier")
    next_slot(); issue(); touch(LEAD - 3)
    g.i(f"s_add_u32 s{S_IT}, s{S_IT}, 1")
    g.i(f"s_cmp_lt_u32 s{S_IT}, 6")
    g.i("s_cbranch_scc1 L_ld_loop")
    g.st('ld_iss7')
    g.i(f"s_waitcnt vmcnt({11+2*NT})")
    g.i("s_barrier")
    g.i("s_waitcnt vmcnt(0)")
    g.i("s_barrier")
    g.i(f"s_cmp_lg_u32 s{S_WAVE}, 4")
    g.i("s_cbranch_scc1 L_ld_nocert")
    g.i(f"s_lshl_b32 s{S_T0}, s{S_BR}, 4")
    g.i(f"s_add_u32 s{S_T0}, s{S_T0}, s{S_HP}")
    g.i(f"s_lshl_b32 s{S_T0}, s{S_T0}, 3")
    g.i(f"v_mov_b32 v7, s{S_T0}")
    spin(g, "cert1", f"buffer_load_dword v{V_F}, v7, s[{S_DBG}:{S_DBG+3}], 0 offen sc1", 8)
    g.lab("L_ld_nocert")
    g.i(f"s_lshl_b32 s{S_T0}, s{S_A}, 11")
    g.i(f"s_add_u32 s{S_T0}, s{S_T0}, {L_QX}")
    g.i(f"v_add_u32 v6, s{S_T0}, v{V_L16}")
    attn_setup(g)
    g.i("s_waitcnt lgkmcnt(0)")
    g.i("s_barrier")
    g.i(f"ds_read_b128 {vr(V_Q[0],4)}, v6")
    g.i(f"ds_read_b128 {vr(V_Q[1],4)}, v6 offset:1024")
    g.i("s_branch L_attn")

class LdsQ:
    def __init__(self, g): self.g = g; self.q = []
    def issue(self, tag): self.q.append(tag)
    def need(self, tags):
        idx = max([i for i, t in enumerate(self.q) if t in tags], default=-1)
        if idx >= 0:
            n = len(self.q) - 1 - idx
            self.g.i(f"s_waitcnt lgkmcnt({min(n,15)})")
            self.q = self.q[idx + 1:]

def compute(g):
    g.lab("L_compute")
    g.i("s_waitcnt lgkmcnt(0)")
    late_srds(g)
    g.i(f"s_cmp_lg_u32 s{S_WAVE}, 0")
    g.i("s_cbranch_scc1 L_cp_noclear")
    g.i(f"s_lshl_b32 s{S_T0}, s{S_BR}, 4")
    g.i(f"s_add_u32 s{S_T0}, s{S_T0}, s{S_HP}")
    g.i(f"s_lshl_b32 s{S_T1}, s{S_T0}, 7")
    g.i(f"s_lshl_b32 s{S_T2}, s{S_TB}, 4")
    g.i(f"s_add_u32 s{S_T1}, s{S_T1}, s{S_T2}")
    g.i(f"v_lshl_add_u32 v6, v0, 2, s{S_T1}")
    g.i("v_mov_b32 v100, 0")
    g.i("s_mov_b64 exec, 0xf")
    g.i(f"buffer_store_dword v100, v6, s[{S_FL}:{S_FL+3}], 0 offen sc1")
    g.i("s_mov_b64 exec, -1")
    g.lab("L_cp_noclear")
    attn_consts(g)
    g.i("v_and_b32 v6, 31, v0")
    g.i(f"s_lshl_b32 s{S_T0}, s{S_WAVE}, 13")
    g.i(f"v_lshl_add_u32 v100, v6, 7, s{S_T0}")
    g.i("v_bfe_u32 v6, v0, 1, 3")
    g.i("v_lshrrev_b32 v7, 5, v0")
    g.i("v_xor_b32 v6, v6, v7")
    for s in range(4):
        g.i(f"v_xor_b32 v7, {2*s}, v6")
        g.i(f"v_lshl_add_u32 v{V_XA+s}, v7, 4, v100")
    g.i("v_lshrrev_b32 v6, 5, v0")
    g.i("v_bfe_u32 v7, v0, 2, 2")
    g.i("v_lshl_add_u32 v6, v6, 3, v7")
    g.i("v_mul_u32_u24 v6, 192, v6")
    g.i("v_bfe_u32 v7, v0, 4, 1")
    g.i("v_lshl_add_u32 v6, v7, 5, v6")
    g.i("v_and_b32 v7, 3, v0")
    g.i("v_lshl_add_u32 v6, v7, 3, v6")
    g.i(f"v_add_u32 v{V_WA}, {SLOT_W}, v6")
    for r in range(0, 96, 2):
        g.i(f"v_mov_b64 v[{V_ACC+r}:{V_ACC+r+1}], 0")
    S_A, S_B = 56, 57
    g.i("v_and_b32 v6, 0x33, v0")
    g.i("v_bfe_u32 v7, v0, 2, 1")
    g.i("v_lshl_or_b32 v6, v7, 3, v6")
    g.i("v_bfe_u32 v7, v0, 3, 1")
    g.i("v_lshl_or_b32 v6, v7, 2, v6")
    g.i(f"v_lshlrev_b32 v{KG}, 4, v6")
    g.i(f"s_lshl_b32 s{S_T0}, s{S_WAVE}, 12")
    g.i(f"v_add_u32 v{KL}, s{S_T0}, v{KG}")
    g.i("v_and_b32 v6, 15, v0")
    g.i("v_lshlrev_b32 v6, 4, v6")
    g.i("v_lshrrev_b32 v7, 5, v0")
    g.i("v_lshl_add_u32 v6, v7, 8, v6")
    g.i("v_add_u32 v6, 1024, v6")
    g.i("v_bfe_u32 v7, v0, 4, 1")
    g.i(f"v_lshl_add_u32 v{VG}, v7, 17, v6")
    g.i("v_lshl_add_u32 v6, v7, 14, v6")
    g.i(f"v_add_u32 v{VL}, s{S_T0}, v6")
    g.i(f"s_lshr_b32 s{S_T0}, s{S_T0}, 1")
    g.i(f"s_add_u32 s{S_T0}, s{S_T0}, {L_QX}")
    g.i(f"v_add_u32 v{QL}, s{S_T0}, v{V_L16}")
    if g.opt.get('dry', 1):
        g.i(f"s_cmp_lt_u32 s{S_WAVE}, 2")
        g.i("s_cbranch_scc1 L_dry_done")
        g.i(f"s_mov_b32 s{S_DRY}, 1")
        g.i(f"s_mov_b32 s{S_IT}, 7")
        g.i("s_mov_b64 vcc, 0")
        g.i(f"s_mov_b64 s[{S_M}:{S_M+1}], 0")
        g.i(f"s_mov_b64 s[{S_M+2}:{S_M+3}], 0")
        g.i(f"s_mov_b32 s{S_MK}, 0")
        g.i("s_waitcnt vmcnt(0) lgkmcnt(0)")
        g.i("s_setvskip -1, 0")
        g.i(f"s_cmp_eq_u32 s{S_WAVE}, 2")
        g.i("s_cbranch_scc1 L_at_done")
        g.i("s_branch L_cp_loop")
        g.lab("L_dry_ret")
        g.i("s_setvskip 0, 0")
        g.i("s_mov_b64 exec, -1")
        g.i("s_setprio 0")
        g.i(f"s_mov_b32 s{S_DRY}, 0")
        g.lab("L_dry_done")
    attn_setup(g)
    g.i(f"s_lshl_b32 s{S_T0}, s{S_WAVE}, 12")
    g.i(f"s_lshl_b32 s{S_G1}, s{S_TB}, 14")
    g.i(f"s_add_u32 s{S_G1}, s{S_G1}, s{S_T0}")
    g.i(f"s_add_u32 s{S_G2}, s{S_G1}, 131072")
    g.i(f"s_mov_b32 s{S_IT}, 0")
    g.i(f"s_mov_b32 s{S_A}, 0")
    g.i(f"s_mov_b32 s{S_B}, {SLOT}")
    q = LdsQ(g)
    def rd(setn, s, which):
        F = V_FR[setn]
        if which[0] == 'x':
            i = int(which[1])
            g.i(f"ds_read_b128 {vr(F+4*i,4)}, v{V_XA+s} offset:{4096*i}")
        else:
            p = {'q': 0, 'k': 1, 'v': 2}[which[0]]; i = int(which[1])
            g.i(f"ds_read_b64_tr_b16 {vr(F+8+4*p+2*i,2)}, v{V_WA} offset:{s*3072+i*768+p*64}")
        q.issue((setn, which))
    ORDER = ['x0', 'q0', 'q1', 'x1', 'k0', 'k1', 'v0', 'v1']
    def mf(setn, n):
        F = V_FR[setn]; p, i = n // 2, n % 2
        w, x = vr(F + 8 + 4 * p, 4), vr(F + 4 * i, 4)
        nm = 'qkv'[p]
        q.need({(setn, f'x{i}'), (setn, nm + '0'), (setn, nm + '1')})
        A, B = (w, x) if p < 2 else (x, w)
        acc = vr(V_ACC + 16 * n, 16)
        if g.opt.get('x_m16'):
            for hh in range(2):
                a4 = vr(V_ACC + 16 * n + 4 * hh, 4)
                g.i(f"v_mfma_f32_16x16x32_bf16 {a4}, {A}, {B}, {a4}")
        else:
            g.i(f"v_mfma_f32_32x32x16_bf16 {acc}, {A}, {B}, {acc}")
    def step(cur, nxt_s):
        plan = [ORDER[0:2], ORDER[2:4], ORDER[4:6], ORDER[6:8], [], []]
        for n in range(6):
            if cur is not None: mf(cur, n)
            if nxt_s is not None:
                for w in plan[n]: rd(1 - (cur if cur is not None else 1), nxt_s, w)
    g.i(f"s_cmp_lg_u32 s{S_WAVE}, 0")
    g.i("s_cbranch_scc1 L_cp_nocount")
    g.i(f"s_lshl_b32 s{S_T0}, s{S_BR}, 4")
    g.i(f"s_add_u32 s{S_T0}, s{S_T0}, s{S_HP}")
    g.i(f"s_lshl_b32 s{S_T0}, s{S_T0}, 3")
    g.i("s_mov_b64 exec, 1")
    g.i(f"v_mov_b32 v6, s{S_T0}")
    g.i("v_mov_b32 v7, 1")
    g.i(f"s_waitcnt vmcnt(0)")
    g.i(f"buffer_atomic_add v7, v6, s[{S_DBG}:{S_DBG+3}], 0 offen sc1")
    g.i("s_mov_b64 exec, -1")
    g.lab("L_cp_nocount")
    def prew():
        g.i(f"s_lshl_b32 s{S_T0}, s{S_TB}, 14")
        g.i(f"s_lshl_b32 s{S_T1}, s{S_WAVE}, 12")
        g.i(f"s_add_u32 s{S_T0}, s{S_T0}, s{S_T1}")
        g.i(f"s_add_u32 s{S_T1}, s{S_T0}, 131072")
        for k in range(8):
            g.i(f"buffer_store_dwordx4 v[{V_O[0]}:{V_O[0]+3}], v{V_L16}, s[{S_KV}:{S_KV+3}], s{S_T1 if k >= 4 else S_T0} offen offset:{1024*(k%4)} sc1")
    def prer():
        g.i("v_and_b32 v6, 31, v0")
        g.i("v_lshlrev_b32 v6, 7, v6")
        g.i("v_lshrrev_b32 v7, 5, v0")
        g.i("v_lshl_add_u32 v6, v7, 17, v6")
        g.i(f"buffer_load_dword v246, v6, s[{S_KV}:{S_KV+3}], s{S_G1} offen{g.opt.get('prefl', ' sc1')}")
    PR = g.opt.get('prer', 0)
    if PR == -1: prer()
    if g.opt.get('prew') == 1: prew()
    g.st('cp_pre')
    g.i("s_barrier")
    g.stamp(1)
    if g.opt.get('prew') == 2: prew()
    step(None, 0)
    g.lab("L_cp_loop")
    q.q = [(0, w) for w in ORDER]
    step(0, 1); step(1, 2); step(0, 3)
    g.i(f"s_add_u32 s{S_A}, s{S_A}, 1")
    g.i(f"s_cmp_eq_u32 s{S_A}, 3")
    g.i(f"s_cselect_b32 s{S_T0}, {(-2*SLOT) & 0xffffffff}, s{S_B}")
    g.i(f"s_cselect_b32 s{S_A}, 0, s{S_A}")
    g.i(f"s_add_u32 s{S_IT}, s{S_IT}, 1")
    g.i(f"s_cmp_eq_u32 s{S_IT}, 8")
    g.i("s_cbranch_scc1 L_cp_last")
    g.i("s_waitcnt lgkmcnt(0)")
    q.q = []
    g.i("s_barrier")
    for r in range(5):
        g.i(f"v_add_u32 v{V_XA+r}, s{S_T0}, v{V_XA+r}")
    PW = g.opt.get('pwd')
    if PW:
        c0, kind = PW
        if kind == 'd':
            g.i(f"s_cmp_lg_u32 s{S_IT}, {c0}")
            g.i("s_cbranch_scc1 L_cp_nopw")
            g.i("v_and_b32 v6, 31, v0")
            g.i("v_lshlrev_b32 v6, 7, v6")
            g.i("v_lshrrev_b32 v7, 5, v0")
            g.i("v_lshl_add_u32 v6, v7, 17, v6")
            g.i(f"buffer_store_dword v{V_O[0]}, v6, s[{S_KV}:{S_KV+3}], s{S_G1} offen sc1")
        elif kind == 'f':
            g.i(f"s_cmp_lg_u32 s{S_IT}, {c0}")
            g.i("s_cbranch_scc1 L_cp_nopw")
            for k in range(8):
                g.i(f"buffer_store_dwordx4 v[{V_O[0]}:{V_O[0]+3}], v{V_L16}, s[{S_KV}:{S_KV+3}], s{S_G2 if k >= 4 else S_G1} offen offset:{1024*(k%4)} sc1")
        elif kind == 's':
            g.i(f"s_sub_u32 s{S_T1}, s{S_IT}, {c0}")
            g.i(f"s_cmp_ge_u32 s{S_T1}, 4")
            g.i("s_cbranch_scc1 L_cp_nopw")
            g.i(f"s_lshl_b32 s{S_T1}, s{S_T1}, 10")
            g.i(f"s_add_u32 s{S_T2}, s{S_T1}, s{S_G2}")
            g.i(f"s_add_u32 s{S_T1}, s{S_T1}, s{S_G1}")
            for so in (S_T1, S_T2):
                g.i(f"buffer_store_dwordx4 v[{V_O[0]}:{V_O[0]+3}], v{V_L16}, s[{S_KV}:{S_KV+3}], s{so} offen sc1")
        g.lab("L_cp_nopw")
    if PR > 0:
        g.i(f"s_cmp_lg_u32 s{S_IT}, {PR}")
        g.i("s_cbranch_scc1 L_cp_nopre")
        prer()
        g.lab("L_cp_nopre")
    step(1, 0)
    g.i("s_branch L_cp_loop")
    g.lab("L_cp_last")
    q.q = [(1, w) for w in ORDER]
    step(1, None)
    g.stamp(2)
    g.i(f"s_mov_b32 s{S_T1}, {hex(QSCALE)}")
    g.i(f"s_mov_b32 s{S_T2}, s{S_T1}")
    g.i("s_nop 5")
    KVS = g.opt.get('kvs', ' sc1')
    T = 204
    n = 0
    for i in range(2):
        A = V_ACC + 16 * (2 + i)
        for hd in range(2):
            for r in range(4):
                g.i(f"v_cvt_pk_bf16_f32 v{T+4*n+r}, v{A+8*hd+2*r}, v{A+8*hd+2*r+1}")
            g.i(f"ds_write_b128 v{KL}, {vr(T+4*n,4)} offset:{16384*hd+2048*i}")
            n += 1
    for i in range(2):
        A = V_ACC + 16 * (4 + i)
        for gr in range(2):
            for r in range(4):
                g.i(f"v_cvt_pk_bf16_f32 v{T+4*n+r}, v{A+8*gr+2*r}, v{A+8*gr+2*r+1}")
            g.i(f"ds_write_b128 v{VL}, {vr(T+4*n,4)} offset:{2048*i+512*gr}")
            n += 1
    g.i(f"s_cmp_lg_u32 s{S_PG}, 0")
    g.i("s_cbranch_scc1 L_cp_later")
    for n in range(8): g.i(kv_store(n))
    g.lab("L_cp_later")
    for i in range(2):
        A = V_ACC + 16 * i
        for r in range(8, 16, 2):
            g.i(f"v_pk_mul_f32 v[{A+r}:{A+r+1}], v[{A+r}:{A+r+1}], s[{S_T0+1}:{S_T0+2}]")
        for r in range(4):
            g.i(f"v_cvt_pk_bf16_f32 v{A+8+r}, v{A+8+2*r}, v{A+8+2*r+1}")
        g.i(f"ds_write_b128 v{QL}, {vr(A+8,4)} offset:{1024*i}")
    for i in range(2):
        A = V_ACC + 16 * i
        for r in range(0, 8, 2):
            g.i(f"v_pk_mul_f32 v[{A+r}:{A+r+1}], v[{A+r}:{A+r+1}], s[{S_T0+1}:{S_T0+2}]")
        for r in range(4):
            g.i(f"v_cvt_pk_bf16_f32 v{V_Q[i]+r}, v{A+2*r}, v{A+2*r+1}")
    g.i("s_waitcnt lgkmcnt(0)")
    barrier_unless_dry(g, "b8")

U = 8
S_OA, S_OB = S_M + 6, S_M + 7
S_MK = S_M + 5
S_KV2 = S_X
S_KO = [None, 4, 5, 6, 7, 12, 13, 14]
S_LM = [[49, 50], [51, 52]]
V_VB = 4

def kv_store(n):
    if n < 4: adr, so, off = KG, (S_G2 if n % 2 else S_G1), 2048 * (n // 2)
    else: adr, so, off = VG, S_G1, 2048 * ((n - 4) // 2) + 512 * (n % 2)
    return f"buffer_store_dwordx4 {vr(KVT+4*n,4)}, v{adr}, s[{S_KV}:{S_KV+3}], s{so} offen offset:{off} sc1"

def spin_mask(g, tag, load):
    g.i(f"s_mov_b32 s{S_T3}, 0")
    g.lab(f"L_spin_{tag}")
    g.i(load)
    g.i(f"s_add_u32 s{S_T3}, s{S_T3}, 1")
    g.i("s_waitcnt vmcnt(0)")
    g.i(f"v_cmp_ne_u32 vcc, 1, v{V_F}")
    g.i(f"s_cmp_ge_u32 s{S_T3}, {SPIN_MAX}")
    g.i(f"s_cbranch_scc1 L_olr_{tag}")
    g.i(f"s_and_b32 vcc_lo, vcc_lo, s{S_MK}")
    g.i(f"s_cbranch_scc1 L_spin_{tag}")

def attn_setup(g):
    g.i(f"s_add_u32 s{S_KV2}, s{S_KV}, 131072")
    g.i(f"s_addc_u32 s{S_KV2+1}, s{S_KV+1}, 0")
    g.i(f"s_mov_b32 s{S_KV2+2}, 131072")
    g.i(f"s_mov_b32 s{S_KV2+3}, 0x20000")
    g.i(f"s_lshl_b32 s{S_LM[0][0]}, s{S_WAVE}, 11")
    g.i(f"s_add_u32 s{S_LM[0][1]}, s{S_LM[0][0]}, 16384")
    g.i(f"s_add_u32 s{S_LM[1][0]}, s{S_LM[0][0]}, {RING}")
    g.i(f"s_add_u32 s{S_LM[1][1]}, s{S_LM[0][0]}, {RING+16384}")
    for i in range(1, 8):
        g.i(f"s_cmp_gt_u32 s{S_TB}, {i-1}")
        g.i(f"s_cselect_b32 s{S_T0}, {i-1}, {i}")
        if i == 1:
            g.i(f"s_lshl_b32 s{S_T3}, s{S_T0}, 2")
            g.i(f"s_lshl_b32 s{S_MK}, 15, s{S_T3}")
        g.i(f"s_lshl_b32 s{S_T0}, s{S_T0}, 14")
        g.i(f"s_add_u32 s{S_KO[i]}, s{S_T0}, s{S_LM[0][0]}")
    g.i(f"s_lshr_b32 s{S_PG}, s{S_TB}, 1")
    g.i(f"s_min_u32 s{S_PG}, s{S_PG}, 2")
    g.i(f"s_cmp_ge_u32 s{S_WAVE}, 4")
    g.i(f"s_cselect_b32 s{S_PG}, 3, s{S_PG}")
    g.i(f"s_and_b32 s{S_F}, s{S_HP}, 7")
    g.i(f"s_lshl_b32 s{S_T0}, s{S_F}, 7")
    g.i(f"s_lshl_b32 s55, s{S_WAVE}, 16")
    g.i(f"s_add_u32 s55, s55, s{S_T0}")
    g.i(f"s_lshl_b32 s{S_E}, s{S_WAVE}, 13")
    g.i(f"s_add_u32 s{S_E}, s{S_E}, {L_WO}")
    g.i(f"s_and_b32 s{S_T0}, s{S_WAVE}, 3")
    g.i(f"s_lshl_b32 s{S_T0}, s{S_T0}, 1")
    g.i(f"s_lshl_b32 s{S_T1}, s{S_TB}, 3")
    g.i(f"s_add_u32 s{S_T0}, s{S_T0}, s{S_T1}")
    g.i(f"s_lshl_b32 s{S_OA}, s{S_T0}, 15")
    g.i(f"s_lshr_b32 s{S_T1}, s{S_WAVE}, 2")
    g.i(f"s_lshl_b32 s{S_T2}, s{S_HP}, 1")
    g.i(f"s_add_u32 s{S_T1}, s{S_T1}, s{S_T2}")
    g.i(f"s_lshl_b32 s{S_T2}, s{S_T1}, 10")
    g.i(f"s_add_u32 s{S_OA}, s{S_OA}, s{S_T2}")
    g.i(f"s_add_u32 s{S_OB}, s{S_OA}, 32768")

def attention(g):
    opt = g.opt
    g.lab("L_attn")
    g.stamp(3)
    g.i(f"ds_read_b128 {vr(V_K,4)}, v{V_KA}")
    g.i(f"ds_read_b128 {vr(V_V[0],4)}, v{V_VA}")
    g.i(f"ds_read_b128 {vr(V_V[0]+4,4)}, v{V_VA} offset:512")
    g.i("s_setprio 3")
    g.i("s_waitcnt lgkmcnt(2)")
    g.i(f"v_mfma_f32_32x32x16_bf16 {vr(V_S[0],16)}, {vr(V_K,4)}, {vr(V_Q[0],4)}, 0")
    dry_exit(g)
    g.i("s_nop 9")
    g.i("s_waitcnt lgkmcnt(0)")
    poll = f"buffer_load_dword v{V_F}, v{V_FA}, s[{S_FL}:{S_FL+3}], 0 offen sc1"
    side = []
    ev = {}
    def at(it, p, slot, *ins): ev.setdefault((it, p, slot), []).extend(ins)
    def kv(i, n):
        return f"buffer_load_dwordx4 v{V_L16}, {sr(S_KV2 if n >= 2 else S_KV, 4)}, s{S_KO[i]} offen offset:{1024*(n%2)}{opt.get('kvl', ' sc1')} lds"
    def check(tag, n):
        def f():
            if n is not None: g.i(f"s_waitcnt vmcnt({n})")
            g.i(f"v_cmp_ne_u32 vcc, 1, v{V_F}")
            g.i("s_nop 0")
            g.i(f"s_and_b32 vcc_lo, vcc_lo, s{S_MK}")
            g.i(f"s_cbranch_scc1 L_ol_{tag}")
            g.lab(f"L_olr_{tag}")
            side.append((tag, lambda: spin_mask(g, tag, poll)))
        return f
    def group(pg, tag, body):
        def f():
            g.i(f"s_cmp_lg_u32 s{S_PG}, {pg}")
            g.i(f"s_cbranch_scc1 L_pg_{tag}")
            body()
            g.lab(f"L_pg_{tag}")
        return f
    def flag():
        g.i(f"s_lshl_b32 s{S_T0}, s{S_TB}, 2")
        g.i(f"s_add_u32 s{S_T0}, s{S_T0}, s{S_WAVE}")
        g.i(f"s_lshl_b64 exec, 1, s{S_T0}")
        g.i("v_mov_b32 v6, 1")
        g.i(f"buffer_store_dword v6, v{V_FA}, s[{S_FL}:{S_FL+3}], 0 offen sc1")
        g.i("s_mov_b64 exec, -1")
    def stores(it, p0, pg):
        for k, (a_, b_) in enumerate(((0, 3), (3, 6), (6, 8))):
            at(it, p0 + k, 'p1', group(pg, f"s{pg}{k}", lambda a_=a_, b_=b_: [g.i(kv_store(n)) for n in range(a_, b_)]))
    def burst(i):
        sl = i % 2
        return [f"s_mov_b32 m0, s{S_LM[sl][0]}", "s_nop 0", kv(i, 0), kv(i, 1), f"s_mov_b32 m0, s{S_LM[sl][1]}", "s_nop 0", kv(i, 2), kv(i, 3)]
    def count():
        g.i(f"s_cmp_lg_u32 s{S_WAVE}, 7")
        g.i("s_cbranch_scc1 L_at_nocnt")
        g.i(f"s_lshl_b32 s{S_T0}, s{S_BR}, 4")
        g.i(f"s_add_u32 s{S_T0}, s{S_T0}, s{S_HP}")
        g.i(f"s_lshl_b32 s{S_T0}, s{S_T0}, 3")
        g.i("s_mov_b64 exec, 1")
        g.i(f"v_mov_b32 v6, s{S_T0}")
        g.i("v_mov_b32 v7, 1")
        g.i(f"buffer_atomic_add v7, v6, s[{S_DBG}:{S_DBG+3}], 0 offen offset:4 sc1")
        g.i("s_mov_b64 exec, -1")
        g.lab("L_at_nocnt")
    pp, pi0, pc0, ps1, pi1, pc1, pi3, pc3 = opt.get('ev', (1, 7, 9, 2, 5, 7, 7, 9))
    at(0, pp, 'qk', group(0, "f0", lambda: (g.st('pub_pre'), g.i("s_waitcnt vmcnt(0)"), g.st('pub_ack'), flag())))
    stores(0, ps1, 1)
    at(0, pi0, 'qk', poll)
    at(0, pc0, 'qk', "s_waitcnt vmcnt(0)", group(1, "f1", flag), check("kv0", None), lambda: g.st('chk_ok'), *burst(1),
       f"s_mov_b32 s{S_MK}, 0xffff")
    at(1, pi1, 'qk', poll)
    at(1, pc1, 'qk', check("kv1", 0), *burst(2), f"s_mov_b32 s{S_MK}, -1")
    stores(1, pc1 + 1, 2)
    at(2, 15, 'qk', group(2, "f2", flag))
    at(3, pi3, 'qk', poll)
    at(3, pc3, 'p2', check("kv2", 0), *burst(4))
    late = {i: 0 for i in range(8)}
    dp = opt.get('dma', (1, 3, 5, 7))
    for i in (2, 4, 5, 6):
        sl = (i + 1) % 2
        at(i, dp[0] - 1, 'p2x', f"s_mov_b32 m0, s{S_LM[sl][0]}")
        at(i, dp[0], 'qk', kv(i + 1, 0))
        at(i, dp[1], 'qk', kv(i + 1, 1))
        at(i, dp[2], 'p2', f"s_mov_b32 m0, s{S_LM[sl][1]}")
        at(i, dp[2], 'qk', kv(i + 1, 2))
        at(i, dp[3], 'qk', kv(i + 1, 3))
    wp = opt.get('wop', (11, 13))
    for i in range(1, 5):
        for k, p in enumerate(wp):
            at(i, p, 'p2', f"s_add_u32 m0, s{S_E}, {(2*(i-1)+k)*1024}")
            at(i, p, 'qk', f"buffer_load_dwordx4 v{V_WOA}, s[{S_WO}:{S_WO+3}], s55 offen lds")
            at(i, p, 'p1', "s_add_u32 s55, s55, 8192")
        late[i] += 2
    for k, so in enumerate((S_OA, S_OB)):
        at(5, 9 + 2 * k, 'qk', f"buffer_store_dwordx4 v[252:255], v{V_L16}, s[{S_O}:{S_O+3}], s{so} offen sc1")
    late[5] += 2
    at(7, 1, 'qk', count)
    if opt.get('x_late0'): late = {i: 0 for i in range(8)}
    prio = opt.get('prio', {0: 3, 5: 2, 10: 1, 13: 0})
    for i in range(8):
        for p, v in prio.items():
            ii, q = (i, p - 1) if p else (i - 1, 15)
            if ii >= 0: at(ii, q, 'p1', f"s_setprio {v}")
    def emit(it, p, slot):
        for x in ev.pop((it, p, slot), []):
            x() if callable(x) else g.i(x)
    p2, pq, p1 = opt.get('pos', (1, 5, 10))
    for it in range(8):
        if opt.get('itst'):
            g.i("s_memtime s[98:99]")
            g.i("s_waitcnt lgkmcnt(0)")
            g.i(f"v_writelane_b32 v250, s98, {it}")
        for p in range(2 * U):
            b, t = p % 2, p // 2
            S, So = V_S[b], V_S[1 - b]
            nt = (t + 1) % U
            sl = (it + (t == U - 1)) % 2
            VA = V_VB if sl else V_VA
            last = it == 7 and t == U - 1
            for e in range(16):
                g.i(f"v_exp_f32 v{S+e}, v{S+e}")
                if e == p2:
                    tp = (p - 1) // 2
                    if it or p:
                        g.i(f"v_smfmac_f32_32x32x32_bf16 {vr(V_O[1-b],16)}, {vr(V_V[tp%2]+4,4)}, {vr(So+8,8)}, v{V_IDX}")
                    emit(it, p, 'p2x')
                    if b == 0:
                        if t == U - 1 and it < 7:
                            if it == 1:
                                g.i(f"s_waitcnt vmcnt({late[it] + 8})")
                                g.i(f"s_cmp_eq_u32 s{S_PG}, 2")
                                g.i("s_cbranch_scc1 L_w8")
                                g.i(f"s_waitcnt vmcnt({late[it]})")
                                g.lab("L_w8")
                            else: g.i(f"s_waitcnt vmcnt({late[it]})")
                            if it == 0: g.st('chk1_ok')
                            g.i("s_barrier")
                        if not last: g.i(f"ds_read_b128 {vr(V_V[(t+1)%2],4)}, v{VA} offset:{nt*2048}")
                    elif not last:
                        g.i("s_waitcnt lgkmcnt(1)")
                    emit(it, p, 'p2')
                if e == pq:
                    if not (last and b):
                        g.i(f"v_mfma_f32_32x32x16_bf16 {vr(So,16)}, {vr(V_K,4)}, {vr(V_Q[1-b],4)}, 0")
                    if b == 0 and not last:
                        g.i(f"ds_read_b128 {vr(V_K,4)}, v{V_KA} offset:{sl*RING+nt*2048}")
                    emit(it, p, 'qk')
                if e == p1:
                    g.i(f"v_smfmac_f32_32x32x32_bf16 {vr(V_O[b],16)}, {vr(V_V[t%2],4)}, {vr(S,8)}, v{V_IDX}")
                    if b == 0 and not last:
                        g.i(f"ds_read_b128 {vr(V_V[(t+1)%2]+4,4)}, v{VA} offset:{nt*2048+512}")
                    elif not last:
                        g.i("s_waitcnt lgkmcnt(0)")
                    emit(it, p, 'p1')
    assert not ev, ev
    g.side = side
    g.lab("L_at_done")
    g.i("s_nop 1")
    g.i(f"v_smfmac_f32_32x32x32_bf16 {vr(V_O[1],16)}, {vr(V_V[1]+4,4)}, {vr(V_S[1]+8,8)}, v{V_IDX}")
    g.stamp(4)
    if opt.get('itst'):
        g.i("s_memtime s[98:99]")
        g.i("s_waitcnt lgkmcnt(0)")
        g.i(f"v_writelane_b32 v250, s98, 8")
    g.i(f"s_mov_b32 s{S_T0}, 0x2b800000")
    g.i(f"s_mov_b32 s{S_T1}, 0x53800000")
    g.i(f"s_mov_b32 s{S_T2}, 0x7f800000")
    for q in range(2):
        O = V_O[q]
        g.i(f"v_add_f32 v6, abs(v{O}), abs(v{O+1})")
        g.i(f"v_add_f32 v7, abs(v{O+2}), abs(v{O+3})")
        for r in range(4, 8, 2):
            g.i(f"v_add_f32 v6, v6, abs(v{O+r})")
            g.i(f"v_add_f32 v7, v7, abs(v{O+r+1})")
        g.i(f"v_add_f32 v6, v6, v7")
        g.i(f"v_cmp_nle_f32 s[{S_M}:{S_M+1}], s{S_T0}, v{O+8}")
        g.i(f"v_cmp_nge_f32 s[{S_M+2}:{S_M+3}], s{S_T1}, v{O+8}")
        g.i(f"v_cmp_ngt_f32 vcc, s{S_T2}, v6")
        g.i(f"v_rcp_f32 v{V_S[0]+q}, v{O+8}")
        g.i(f"s_or_b64 s[{S_M}:{S_M+1}], s[{S_M}:{S_M+1}], s[{S_M+2}:{S_M+3}]")
        g.i(f"s_or_b64 s[{S_M}:{S_M+1}], s[{S_M}:{S_M+1}], vcc")
        g.i("s_branch L_fallback" if opt.get('force_fallback') else "s_cbranch_scc1 L_fallback")
    g.lab("L_at_store")
    for q in range(2):
        O = V_O[q]
        for r in range(8):
            g.i(f"v_mul_f32 v{O+r}, v{O+r}, v{V_S[0]+q}")
        for r in range(4):
            g.i(f"v_cvt_pk_bf16_f32 v{O+r}, v{O+2*r}, v{O+2*r+1}")
        g.i(f"buffer_store_dwordx4 {vr(O,4)}, v{V_L16}, s[{S_O}:{S_O+3}], s{S_OB if q else S_OA} offen sc1")

P_WO = 100
P_OF = 8
def outproj(g):
    opt = g.opt
    A0, A1 = 228, 72
    WA0, WA1, RA, OA = 244, 245, 246, 247
    g.i(f"s_lshr_b32 s{S_E}, s{S_WAVE}, 2")
    g.i(f"s_lshl_b32 s{S_T0}, s{S_E}, 15")
    g.i(f"s_add_u32 s{S_T0}, s{S_T0}, {L_WO}")
    g.i("v_lshrrev_b32 v6, 5, v0")
    g.i("v_bfe_u32 v7, v0, 2, 2")
    g.i("v_lshl_add_u32 v6, v6, 2, v7")
    g.i(f"v_lshl_add_u32 v6, v6, 7, s{S_T0}")
    g.i("v_bfe_u32 v7, v0, 3, 2")
    g.i("v_and_b32 v2, 1, v7")
    g.i("v_lshl_add_u32 v6, v2, 6, v6")
    g.i("v_lshrrev_b32 v7, 1, v7")
    g.i("v_lshl_add_u32 v6, v7, 5, v6")
    g.i("v_and_b32 v7, 3, v0")
    g.i(f"v_lshl_add_u32 v6, v7, 3, v6")
    g.i(f"s_lshl_b32 s{S_T0}, s{S_E}, 6")
    g.i(f"v_xor_b32 v{WA0}, s{S_T0}, v6")
    g.i(f"v_xor_b32 v{WA1}, 64, v{WA0}")
    n = 0
    def wo_reads(s0, s1):
        for s in range(s0, s1):
            for f in range(2):
                for i in range(2):
                    g.i(f"ds_read_b64_tr_b16 {vr(P_WO+8*s+4*f+2*i,2)}, v{WA1 if f else WA0} offset:{s*2048+i*1024}")
    g.stamp(5)
    g.i(f"s_lshl_b32 s{S_T0}, s{S_BR}, 7")
    g.i("v_and_b32 v6, 15, v0")
    g.i(f"v_lshl_add_u32 v4, v6, 3, s{S_T0}")
    g.i(f"buffer_load_dword v5, v4, s[{S_DBG}:{S_DBG+3}], 0 offen offset:4 sc1")
    for s0 in range(0, 16, 3):
        if s0: g.i("s_waitcnt lgkmcnt(2)")
        wo_reads(s0, min(s0 + 3, 16))
    g.i(f"s_lshr_b32 s{S_T0}, s{S_HP}, 3")
    g.i(f"s_lshl_b32 s{S_T0}, s{S_T0}, 2")
    g.i(f"s_and_b32 s{S_T1}, s{S_WAVE}, 3")
    g.i(f"s_add_u32 s{S_A}, s{S_T0}, s{S_T1}")
    g.i(f"s_lshl_b32 s{S_T0}, s{S_TB}, 3")
    g.i(f"s_add_u32 s{S_A}, s{S_A}, s{S_T0}")
    g.i(f"s_lshl_b32 s{S_B}, s{S_A}, 15")
    g.i(f"s_lshl_b32 s{S_T0}, s{S_E}, 14")
    g.i(f"s_add_u32 s{S_B}, s{S_B}, s{S_T0}")
    g.i(f"s_add_u32 s{S_C}, s{S_B}, 4096")
    g.i(f"s_add_u32 s{S_D}, s{S_B}, 8192")
    g.i(f"s_add_u32 s{S_IT}, s{S_B}, 12288")
    g.i(f"v_lshlrev_b32 v2, 10, v6")
    g.i(f"v_add_u32 v2, 1020, v2")
    g.i(f"s_lshl_b32 s{S_T0}, s{S_WAVE}, 12")
    g.i(f"v_add_u32 v{RA}, s{S_T0}, v{V_L16}")
    g.i("v_and_b32 v6, 31, v0")
    g.i("v_lshlrev_b32 v6, 11, v6")
    g.i("v_lshrrev_b32 v7, 5, v0")
    g.i(f"v_lshl_add_u32 v{OA}, v7, 4, v6")
    g.i(f"s_lshl_b32 s{S_A}, s{S_A}, 16")
    g.i(f"s_lshl_b32 s{S_T0}, s{S_BR}, 10")
    g.i(f"s_add_u32 s{S_A}, s{S_A}, s{S_T0}")
    g.i(f"s_lshl_b32 s{S_T0}, s{S_F}, 7")
    g.i(f"s_add_u32 s{S_A}, s{S_A}, s{S_T0}")
    g.i(f"s_lshl_b32 s{S_T0}, s{S_E}, 6")
    g.i(f"s_add_u32 s{S_A}, s{S_A}, s{S_T0}")
    g.i(f"s_mov_b32 s{S_T3}, 0")
    g.lab("L_spin_c")
    g.i("s_waitcnt vmcnt(0)")
    g.i("v_cmp_gt_u32 vcc, 8, v5")
    g.i(f"s_add_u32 s{S_T3}, s{S_T3}, 1")
    g.i("s_cbranch_vccz L_spin_o")
    g.i(f"buffer_load_dword v5, v4, s[{S_DBG}:{S_DBG+3}], 0 offen offset:4 sc1")
    g.i(f"s_cmp_lt_u32 s{S_T3}, {SPIN_MAX}")
    g.i("s_cbranch_scc1 L_spin_c")
    g.lab("L_spin_o")
    if opt.get('probe', 1):
        g.i("s_mov_b64 exec, 0xffff")
        g.i(f"buffer_load_dword v3, v2, s[{S_O}:{S_O+3}], s{S_B} offen sc1")
        g.i(f"s_add_u32 s{S_T3}, s{S_T3}, 1")
        g.i("s_waitcnt vmcnt(0)")
        g.i("v_cmp_eq_u32 vcc, -1, v3")
        g.i("s_mov_b64 exec, -1")
        g.i(f"s_cmp_ge_u32 s{S_T3}, {SPIN_MAX}")
        g.i("s_cbranch_scc1 L_spun_o")
        if opt.get('sleep'): g.i(f"s_sleep {opt['sleep']}")
        g.i("s_cbranch_vccnz L_spin_o")
    else:
        g.i(f"s_add_u32 s{S_T3}, s{S_T3}, 1")
    g.lab("L_spun_o")
    g.stamp(6)
    for s in range(16):
        so = (S_B, S_C, S_D, S_IT)[s // 4]
        g.i(f"buffer_load_dwordx4 {vr(P_OF+4*s,4)}, v{V_L16}, s[{S_O}:{S_O+3}], s{so} offen offset:{1024*(s%4)} sc1")
    g.i("v_mov_b32 v3, 0")
    g.i("s_waitcnt lgkmcnt(0)")
    for s in range(16):
        g.i(f"s_waitcnt vmcnt({15-s})")
        for f, A in ((1, A1), (0, A0)):
            g.i(f"v_mfma_f32_32x32x16_bf16 {vr(A,16)}, {vr(P_WO+8*s+4*f,4)}, {vr(P_OF+4*s,4)}, {vr(A,16) if s else 0}")
            g.i(f"v_max3_u32 v3, v3, v{P_OF+4*s+2*f}, v{P_OF+4*s+2*f+1}")
    g.i("v_cmp_eq_u32 vcc, -1, v3")
    g.i(f"s_cmp_ge_u32 s{S_T3}, {SPIN_MAX}")
    g.i("s_cbranch_scc1 L_op_go")
    g.i("s_cbranch_vccnz L_spin_o")
    g.lab("L_op_go")
    g.i("s_nop 5")
    for r in range(4):
        g.i(f"ds_write_b128 v{RA}, {vr(A1+4*r,4)} offset:{1024*r}")
    g.i("s_waitcnt lgkmcnt(0)")
    g.i(f"v_xor_b32 v{RA}, 16384, v{RA}")
    barrier_unless_dry(g, "b9")
    for r in range(4):
        g.i(f"ds_read_b128 {vr(P_OF+4*r,4)}, v{RA} offset:{1024*r}")
    for r in range(4):
        g.i(f"s_waitcnt lgkmcnt({3-r})")
        for k in range(4):
            g.i(f"v_add_f32 v{A0+4*r+k}, v{A0+4*r+k}, v{P_OF+4*r+k}")
        for k in range(2):
            g.i(f"v_cvt_pk_bf16_f32 v{24+2*r+k}, v{A0+4*r+2*k}, v{A0+4*r+2*k+1}")
        if r % 2:
            g.i("s_nop 1")
            g.i(f"v_permlane32_swap_b32 v{24+2*r-2}, v{24+2*r}")
            g.i(f"v_permlane32_swap_b32 v{24+2*r-1}, v{24+2*r+1}")
            g.i(f"buffer_store_dwordx4 {vr(24+2*r-2,4)}, v{OA}, s[{S_OUT}:{S_OUT+3}], s{S_A} offen offset:{16*(r-1)}{opt.get('outs','')}")
    dry_exit(g)
    if g.diag:
        g.i("s_waitcnt vmcnt(0)")
        g.stamp(7)
        g.i("s_waitcnt lgkmcnt(0)")
        if g.diag == 3:
            a_, b_, K = opt['leak']
            if a_ in (1, 2) or b_ in (1, 2):
                g.i(f"s_cmp_ge_u32 s{S_WAVE}, 4")
                g.i("s_cbranch_scc1 L_end")
            if opt.get('leakc'):
                g.i(f"s_sub_u32 s{S_T0}, s{64+4*b_}, s{64+4*a_}")
                g.i(f"s_lshr_b32 s{S_T0}, s{S_T0}, 4")
            else:
                g.i(f"s_sub_u32 s{S_T0}, s{66+4*b_}, s{66+4*a_}")
            g.i(f"s_mul_i32 s{S_T0}, s{S_T0}, {K}")
            g.lab("L_leak")
            g.i("s_memrealtime s[98:99]")
            g.i("s_waitcnt lgkmcnt(0)")
            g.i(f"s_sub_u32 s{S_T1}, s98, s{66+4*7}")
            g.i(f"s_cmp_lt_u32 s{S_T1}, s{S_T0}")
            g.i("s_cbranch_scc1 L_leak")
            g.i("s_endpgm")
        if g.diag == 2:
            g.i(f"s_cmp_ge_u32 s{S_WAVE}, 4")
            g.i("s_cbranch_scc1 L_end")
            g.i("s_mov_b64 exec, 1")
            for k in range(1, 8):
                g.i(f"s_sub_u32 s{S_T0}, s{66+4*k}, s66")
                g.i(f"v_mov_b32 v6, s{S_T0}")
                g.i(f"v_mov_b32 v7, {8*k+4}")
                g.i(f"buffer_atomic_umax v6, v7, s[{S_DBG}:{S_DBG+3}], 0 offen sc1")
            g.i(f"s_sub_u32 s{S_T0}, s{64+4*4}, s{64+4*3}")
            g.i(f"v_mov_b32 v6, s{S_T0}")
            g.i(f"v_mov_b32 v7, 4")
            g.i(f"buffer_atomic_umax v6, v7, s[{S_DBG}:{S_DBG+3}], 0 offen sc1")
            g.i("s_endpgm")
        g.i(f"s_lshl_b32 s{S_T0}, s2, 3")
        g.i(f"s_add_u32 s{S_T0}, s{S_T0}, s{S_WAVE}")
        g.i(f"s_lshl_b32 s{S_T0}, s{S_T0}, 7")
        g.i(f"s_add_u32 s{S_T0}, s{S_T0}, {WS_STAMP}")
        srd(g.a, S_X, 96, 128, f"s{S_T0}")
        for k in range(32):
            g.i(f"v_mov_b32 v{36+k}, s{64+k}")
        g.i("v_mov_b32 v6, 0")
        for k in range(8):
            g.i(f"buffer_store_dwordx4 {vr(36+4*k,4)}, v6, s[{S_X}:{S_X+3}], 0 offen offset:{16*k}")
        if opt.get('itst'):
            g.i(f"s_add_u32 s{S_T0}, s{S_T0}, {1<<20}")
            srd(g.a, S_X, 96, 64, f"s{S_T0}")
            g.i("v_lshlrev_b32 v6, 2, v0")
            g.i(f"buffer_store_dword v250, v6, s[{S_X}:{S_X+3}], 0 offen")
    g.lab("L_end")
    g.i("s_endpgm")

def fallback(g):
    C = [100, 116]; M = [132, 133]; GV = 134
    g.lab("L_fallback")
    g.i(f"s_lshr_b32 s{S_T0}, s{S_WAVE}, 2")
    g.i(f"s_lshl_b32 s{S_T0}, s{S_T0}, 17")
    g.i(f"v_mov_b32 v{M[0]}, 0xff800000")
    g.i(f"v_mov_b32 v{M[1]}, 0xff800000")
    g.i(f"s_mov_b32 s{S_T1}, s{S_T0}")
    g.i(f"s_add_u32 s{S_T2}, s{S_T0}, 131072")
    g.lab("L_fb_max")
    g.i(f"buffer_load_dwordx4 {vr(V_K,4)}, v{V_L16}, s[{S_KV}:{S_KV+3}], s{S_T1} offen sc1")
    g.i(f"s_add_u32 s{S_T1}, s{S_T1}, 2048")
    g.i("s_waitcnt vmcnt(0)")
    for q in range(2):
        g.i(f"v_mfma_f32_32x32x16_bf16 {vr(V_S[q],16)}, {vr(V_K,4)}, {vr(V_Q[q],4)}, 0")
    g.i("s_nop 15")
    for q in range(2):
        for r in range(0, 16, 2):
            g.i(f"v_max3_f32 v{M[q]}, v{M[q]}, v{V_S[q]+r}, v{V_S[q]+r+1}")
    g.i(f"s_cmp_lt_u32 s{S_T1}, s{S_T2}")
    g.i("s_cbranch_scc1 L_fb_max")
    for q in range(2):
        g.i(f"v_mov_b32 v6, v{M[q]}")
        g.i(f"v_mov_b32 v7, v{M[q]}")
        g.i("s_nop 1")
        g.i("v_permlane32_swap_b32 v6, v7")
        g.i("s_nop 1")
        g.i("v_max_f32 v6, v6, v7")
        for r in range(16):
            g.i(f"v_sub_f32 v{C[q]+r}, 0, v6")
            g.i(f"v_mov_b32 v{V_O[q]+r}, 0")
    g.i("v_and_b32 v6, 15, v0")
    g.i("v_lshlrev_b32 v6, 4, v6")
    g.i("v_lshrrev_b32 v7, 5, v0")
    g.i(f"v_lshl_add_u32 v{GV}, v7, 8, v6")
    for r in range(8):
        g.i(f"v_mov_b32 v{V_V[0]+r}, 0x3f803f80")
    g.i(f"s_mov_b32 s{S_T1}, s{S_T0}")
    g.i(f"s_mov_b32 s{S_M}, 0xffff")
    g.i(f"s_mov_b32 s{S_M+1}, 0xffff")
    g.lab("L_fb_pv")
    g.i(f"buffer_load_dwordx4 {vr(V_K,4)}, v{V_L16}, s[{S_KV}:{S_KV+3}], s{S_T1} offen sc1")
    g.i(f"s_mov_b64 exec, s[{S_M}:{S_M+1}]")
    g.i(f"buffer_load_dwordx4 {vr(V_V[0],4)}, v{GV}, s[{S_KV}:{S_KV+3}], s{S_T1} offen offset:1024 sc1")
    g.i(f"buffer_load_dwordx4 {vr(V_V[0]+4,4)}, v{GV}, s[{S_KV}:{S_KV+3}], s{S_T1} offen offset:1536 sc1")
    g.i("s_mov_b64 exec, -1")
    g.i(f"s_add_u32 s{S_T1}, s{S_T1}, 2048")
    g.i("s_waitcnt vmcnt(0)")
    for q in range(2):
        g.i(f"v_mfma_f32_32x32x16_bf16 {vr(V_S[q],16)}, {vr(V_K,4)}, {vr(V_Q[q],4)}, {vr(C[q],16)}")
    g.i("s_nop 15")
    for q in range(2):
        for r in range(16):
            g.i(f"v_exp_f32 v{V_S[q]+r}, v{V_S[q]+r}")
    g.i("s_nop 3")
    for q in range(2):
        for h in range(2):
            g.i(f"v_smfmac_f32_32x32x32_bf16 {vr(V_O[q],16)}, {vr(V_V[0]+4*h,4)}, {vr(V_S[q]+8*h,8)}, v{V_IDX}")
    g.i("s_nop 15")
    g.i(f"s_cmp_lt_u32 s{S_T1}, s{S_T2}")
    g.i("s_cbranch_scc1 L_fb_pv")
    for q in range(2):
        g.i(f"v_rcp_f32 v{V_S[0]+q}, v{V_O[q]+8}")
    g.i("s_nop 1")
    g.i("s_branch L_at_store")

HEADER = open('cdna_kernels/' + NAME + '.s.ref').read().split('; Override launch')[0]

def generate(opt={}):
    global WS_KV, WS_O, WS_FLAG
    off = opt.get('wsoff', 0) << 20
    WS_KV, WS_O, WS_FLAG = (4 << 20) + off, (12 << 20) + off, (16 << 20) + off
    g = G(opt)
    name = NAME + "_kernel"
    g.a(HEADER.rstrip())
    g.a(f"; @launch grid=(256,1,1) block=(512,1,1) lds={LDS_TOTAL}")
    g.a('.amdgcn_target "amdgcn-amd-amdhsa--gfx950"')
    entry(g, name)
    if opt.get('lfirst', 1): loader(g)
    compute(g)
    attention(g)
    outproj(g)
    if not opt.get('lfirst', 1): loader(g)
    g.lab("L_code_end")
    for tag, body in g.side:
        g.lab(f"L_ol_{tag}")
        body()
        g.i(f"s_branch L_olr_{tag}")
    fallback(g)
    kernel_desc(g.a, name, NVGPR, 256, 102)
    return g.a.text()

if __name__ == "__main__":
    import sys
    opt = eval(sys.argv[2]) if len(sys.argv) > 2 else {}
    open(sys.argv[1], 'w').write(generate(opt))
```

```python
import math, struct
from common import *

WS_FLAG = 16 << 20
SLOT = 45056; SLOT_W = 32768
RING = 32768
L_WO = 65536
L_CONST = 135168
L_QX = 155648
LDS_TOTAL = 163840
S_X, S_W, S_WO, S_KV, S_O, S_FL, S_DBG, S_OUT = 8, 12, 16, 20, 24, 28, 32, 36
S_WAVE, S_BR, S_HP, S_TB, S_IT, S_T0, S_T1, S_T2, S_T3 = 40, 41, 42, 43, 44, 45, 46, 47, 48
S_A, S_B, S_C, S_D, S_E, S_F = 49, 50, 51, 52, 53, 54
S_G1, S_G2, S_PG = 58, 59, 60
KG, KL, VG, VL, QL, KVT = 244, 245, 247, 248, 249, 204
S_M = 56
V_L16, V_KA, V_VA, V_VX, V_IDX, V_T0, V_T1 = 1, 2, 3, 4, 5, 6, 7
V_Q = [8, 12]; V_K = 16; V_V = [20, 28]; V_S = [36, 52]; V_O = [68, 84]
V_F = 241
V_FA = 242
V_WOA = 243
V_ACC = 100
V_FR = [196, 216]
V_XA = 236; V_WA = 240
NVGPR = 256
QSCALE = struct.unpack('<I', struct.pack('<f', 0.25 * math.log2(math.e)))[0]
SPIN_MAX = 1 << 20
S_DRY = 3

class G:
    def __init__(self, opt):
        self.a = Asm(); self.opt = opt; self.diag = opt.get('diag', 0)
    def i(self, s): self.a.i(s)
    def lab(self, s): self.a.label(s)
    def st(self, name):
        m = self.opt.get('st', {})
        if name in m: self.stamp(m[name], True)
    def stamp(self, k, forced=False):
        if k in self.opt.get('st', {}).values() and not forced: return
        if self.diag:
            self.i(f"s_memtime s[{64+4*k}:{65+4*k}]")
            self.i(f"s_memrealtime s[{66+4*k}:{67+4*k}]")

def dry_exit(g, label="L_dry_ret"):
    if g.opt.get('dry', 1):
        g.i(f"s_cmp_lg_u32 s{S_DRY}, 0")
        g.i(f"s_cbranch_scc1 {label}")

def barrier_unless_dry(g, tag):
    dry_exit(g, f"L_nb_{tag}")
    g.i("s_barrier")
    g.lab(f"L_nb_{tag}")

def spin(g, tag, load, want, nlanes_mask=None):
    g.i(f"s_mov_b32 s{S_T3}, 0")
    g.lab(f"L_spin_{tag}")
    g.i(load)
    g.i(f"s_add_u32 s{S_T3}, s{S_T3}, 1")
    g.i("s_waitcnt vmcnt(0)")
    g.i(f"v_cmp_{'gt' if want > 1 else 'ne'}_u32 vcc, {want}, v{V_F}")
    g.i(f"s_cmp_ge_u32 s{S_T3}, {SPIN_MAX}")
    g.i(f"s_cbranch_scc1 L_spun_{tag}")
    g.i(f"s_cbranch_vccnz L_spin_{tag}")
    g.lab(f"L_spun_{tag}")

def entry(g, name):
    a = g.a
    kernel_head(a, name)
    PF = g.opt.get('cpf', 1)
    if PF:
        g.i("s_getpc_b64 s[8:9]")
        g.i("v_lshlrev_b32 v6, 7, v0")
        g.i("s_mov_b32 s10, L_code_end-" + name + "-4")
        g.i("s_mov_b32 s11, 0x20000")
    g.i("s_cmp_ge_u32 s2, 256")
    g.i("s_cbranch_scc1 L_end")
    if PF:
        g.i("buffer_load_dword v246, v6, s[8:11], 0 offen")
    g.stamp(0)
    g.i(f"s_mov_b32 s{S_DRY}, 0")
    g.i(f"s_bfe_u32 s{S_BR}, s2, 0x10002")
    g.i(f"s_mul_i32 s{S_T0}, s{S_BR}, 24")
    g.i(f"s_load_dwordx4 s[{S_M}:{S_M+3}], s[0:1], s{S_T0}")
    g.i(f"s_load_dwordx2 s[{S_M+4}:{S_M+5}], s[0:1], s{S_T0} offset:16")
    g.i("s_load_dwordx4 s[4:7], s[0:1], 48")
    g.i(f"s_load_dwordx2 s[{S_M+6}:{S_M+7}], s[0:1], 64")
    g.i("v_lshrrev_b32 v6, 6, v0")
    g.i("v_and_b32 v0, 63, v0")
    g.i(f"v_readfirstlane_b32 s{S_WAVE}, v6")
    g.i(f"v_lshlrev_b32 v{V_L16}, 4, v0")
    g.i(f"s_bfe_u32 s{S_HP}, s2, 0x10001")
    g.i(f"s_lshl_b32 s{S_HP}, s{S_HP}, 3")
    g.i(f"s_bfe_u32 s{S_T0}, s2, 0x30003")
    g.i(f"s_add_u32 s{S_HP}, s{S_HP}, s{S_T0}")
    g.i(f"s_and_b32 s{S_TB}, s2, 1")
    g.i(f"s_lshl_b32 s{S_TB}, s{S_TB}, 2")
    g.i(f"s_lshr_b32 s{S_T0}, s2, 6")
    g.i(f"s_add_u32 s{S_TB}, s{S_TB}, s{S_T0}")
    g.i(f"s_lshl_b32 s{S_T0}, s{S_TB}, 18")
    g.i(f"s_lshl_b32 s{S_T1}, s{S_BR}, 4")
    g.i(f"s_add_u32 s{S_T1}, s{S_T1}, s{S_HP}")
    g.i(f"s_lshl_b32 s{S_T2}, s{S_T1}, 18")
    g.i(f"s_add_u32 s{S_T2}, s{S_T2}, {WS_KV}")
    g.i(f"s_lshl_b32 s{S_T3}, s{S_BR}, 21")
    g.i(f"s_add_u32 s{S_T3}, s{S_T3}, {WS_O}")
    if g.opt.get('lfirst', 1):
        g.i(f"s_cmp_lt_u32 s{S_WAVE}, 4")
        g.i("s_cbranch_scc1 L_compute")
    else:
        g.i(f"s_cmp_ge_u32 s{S_WAVE}, 4")
        g.i("s_cbranch_scc1 L_loader")

def early_srds(g):
    g.i("s_waitcnt lgkmcnt(0)")
    g.st('karg')
    srd(g.a, S_X, S_M, 256 * 1024, f"s{S_T0}")
    srd(g.a, S_W, S_M + 2, 512 * 1536 * 2)

def late_srds(g):
    a = g.a
    srd(a, S_WO, S_M + 4, 512 * 512 * 2)
    srd(a, S_KV, S_M + 6, 256 * 1024, f"s{S_T2}")
    srd(a, S_O, S_M + 6, 2 << 20, f"s{S_T3}")
    srd(a, S_FL, S_M + 6, 4096, str(WS_FLAG))
    srd(a, S_DBG, 6, 256)
    srd(a, S_OUT, 4, 2048 * 1024 * 2)
    if g.diag:
        g.i(f"s_mov_b32 s96, s{S_M+6}")
        g.i(f"s_mov_b32 s97, s{S_M+7}")

def attn_consts(g):
    g.i(f"s_lshr_b32 s{S_T0}, s{S_WAVE}, 2")
    g.i(f"s_lshl_b32 s{S_T0}, s{S_T0}, 14")
    g.i(f"v_add_u32 v{V_KA}, s{S_T0}, v{V_L16}")
    g.i(f"v_and_b32 v{V_T0}, 15, v0")
    g.i(f"v_lshlrev_b32 v{V_T0}, 4, v{V_T0}")
    g.i(f"v_lshrrev_b32 v{V_T1}, 5, v0")
    g.i(f"v_lshl_add_u32 v{V_T0}, v{V_T1}, 8, v{V_T0}")
    g.i(f"s_add_u32 s{S_T0}, s{S_T0}, 1024")
    g.i(f"v_add_u32 v{V_VA}, s{S_T0}, v{V_T0}")
    g.i(f"v_and_b32 v{V_T0}, 31, v0")
    g.i(f"v_subrev_u32 v{V_T1}, 20, v{V_T0}")
    g.i(f"v_cmp_gt_u32 vcc, 8, v{V_T1}")
    g.i(f"v_mov_b32 v{V_T1}, {L_CONST+16}")
    g.i(f"v_mov_b32 v{V_VX}, {L_CONST+16+64}")
    g.i(f"v_cndmask_b32 v{V_T1}, v{V_T1}, v{V_VX}, vcc")
    g.i(f"v_and_b32 v{V_VX}, 27, v0")
    g.i(f"v_cmp_eq_u32 vcc, 16, v{V_VX}")
    g.i(f"v_subrev_u32 v{V_VX}, 16, v{V_T1}")
    g.i("s_nop 0")
    g.i(f"v_cndmask_b32 v{V_T1}, v{V_T1}, v{V_VX}, vcc")
    g.i(f"v_cmp_gt_u32 vcc, 16, v{V_T0}")
    g.i(f"v_mov_b32 v{V_T0}, {RING}")
    g.i(f"v_mov_b32 v{V_IDX}, 0xdddd")
    g.i(f"v_cndmask_b32 v{V_VA}, v{V_T1}, v{V_VA}, vcc")
    g.i(f"v_cndmask_b32 v{V_VX}, 0, v{V_T0}, vcc")
    g.i(f"v_add_u32 v{V_VX}, v{V_VX}, v{V_VA}")
    g.i(f"v_mov_b32 v{KG}, 0")
    g.i(f"v_mov_b32 v{VG}, 0")
    g.i("v_mov_b64 v[252:253], -1")
    g.i("v_mov_b64 v[254:255], -1")
    for r in range(0, 32, 2):
        g.i(f"v_mov_b64 v[{V_O[0]+r}:{V_O[0]+r+1}], 0")
    g.i(f"s_lshl_b32 s{S_T0}, s{S_BR}, 4")
    g.i(f"s_add_u32 s{S_T0}, s{S_T0}, s{S_HP}")
    g.i(f"s_lshl_b32 s{S_T0}, s{S_T0}, 7")
    g.i(f"v_and_b32 v6, 31, v0")
    g.i(f"v_lshl_add_u32 v{V_FA}, v6, 2, s{S_T0}")
    g.i(f"v_lshrrev_b32 v{V_T0}, 2, v0")
    g.i(f"v_and_b32 v{V_T0}, 4, v{V_T0}")
    g.i(f"v_and_b32 v{V_T1}, 7, v0")
    g.i(f"v_xor_b32 v{V_T0}, v{V_T0}, v{V_T1}")
    g.i(f"v_lshlrev_b32 v{V_T0}, 4, v{V_T0}")
    g.i(f"v_lshrrev_b32 v{V_T1}, 3, v0")
    g.i(f"v_lshl_add_u32 v{V_WOA}, v{V_T1}, 10, v{V_T0}")

def consts(g):
    g.i(f"s_cmp_lg_u32 s{S_WAVE}, 4")
    g.i("s_cbranch_scc1 L_ld_noconst")
    g.i("v_lshrrev_b32 v6, 2, v0")
    g.i("v_and_b32 v7, 1, v6")
    g.i("v_lshlrev_b32 v7, 9, v7")
    g.i("v_lshrrev_b32 v6, 1, v6")
    g.i("v_lshl_add_u32 v7, v6, 11, v7")
    g.i("v_and_b32 v6, 1, v0")
    g.i("v_lshl_add_u32 v7, v6, 4, v7")
    g.i("v_cmp_eq_u32 vcc, 0, v6")
    g.i("v_and_b32 v6, 2, v0")
    g.i("v_lshl_add_u32 v7, v6, 5, v7")
    g.i("v_mov_b32 v6, 0x3f803f80")
    g.i(f"v_add_u32 v7, {L_CONST}, v7")
    g.i("v_cndmask_b32 v108, 0, v6, vcc")
    g.i("v_cndmask_b32 v109, 0, v6, vcc")
    g.i("v_cndmask_b32 v110, 0, v6, vcc")
    g.i("v_cndmask_b32 v111, 0, v6, vcc")
    g.i("ds_write_b128 v7, v[108:111]")
    g.lab("L_ld_noconst")

def loader(g):
    VX, VW, VT = 100, 104, 112
    LEAD = g.opt.get('lead', 0)
    g.lab("L_loader")
    g.i(f"s_sub_u32 s{S_A}, s{S_WAVE}, 4")
    S_CH, S_TX = S_F, 55
    RM = g.opt.get('rot', 7)
    if RM == 1:
        g.i(f"s_lshl_b32 s{S_CH}, s{S_TB}, 1")
        g.i(f"s_lshr_b32 s{S_T1}, s{S_TB}, 2")
        g.i(f"s_add_u32 s{S_CH}, s{S_CH}, s{S_T1}")
        g.i(f"s_and_b32 s{S_CH}, s{S_CH}, 7")
    elif RM == 2:
        g.i(f"s_mov_b32 s{S_CH}, s{S_TB}")
    elif RM == 7:
        g.i(f"s_and_b32 s{S_T1}, s{S_HP}, 1")
        g.i(f"s_lshl_b32 s{S_T1}, s{S_T1}, 2")
        g.i(f"s_add_u32 s{S_CH}, s{S_TB}, s{S_T1}")
        g.i(f"s_and_b32 s{S_CH}, s{S_CH}, 7")
    elif RM == 8:
        g.i(f"s_lshl_b32 s{S_CH}, s{S_TB}, 1")
        g.i(f"s_bfe_u32 s{S_T1}, s{S_HP}, 0x10001")
        g.i(f"s_add_u32 s{S_CH}, s{S_CH}, s{S_T1}")
        g.i(f"s_and_b32 s{S_CH}, s{S_CH}, 7")
    elif RM == 9:
        g.i(f"s_lshl_b32 s{S_CH}, s{S_TB}, 1")
        g.i(f"s_and_b32 s{S_T1}, s{S_HP}, 3")
        g.i(f"s_add_u32 s{S_CH}, s{S_CH}, s{S_T1}")
        g.i(f"s_and_b32 s{S_CH}, s{S_CH}, 7")
    elif RM == 0:
        g.i(f"s_mov_b32 s{S_CH}, 0")
    elif RM == 6:
        g.i(f"s_lshl_b32 s{S_CH}, s{S_TB}, 1")
        g.i(f"s_add_u32 s{S_CH}, s{S_CH}, s{S_HP}")
        g.i(f"s_and_b32 s{S_CH}, s{S_CH}, 7")
    elif RM == 4:
        g.i(f"s_lshl_b32 s{S_CH}, s{S_TB}, 1")
        g.i(f"s_add_u32 s{S_CH}, s{S_CH}, s{S_HP}")
        g.i(f"s_and_b32 s{S_CH}, s{S_CH}, 3")
        g.i(f"s_lshl_b32 s{S_CH}, s{S_CH}, 1")
    elif RM == 5:
        g.i(f"s_add_u32 s{S_CH}, s{S_TB}, s{S_HP}")
        g.i(f"s_and_b32 s{S_CH}, s{S_CH}, 3")
        g.i(f"s_lshl_b32 s{S_CH}, s{S_CH}, 1")
    elif RM == 3:
        g.i(f"s_lshl_b32 s{S_CH}, s{S_TB}, 1")
        g.i(f"s_and_b32 s{S_T1}, s{S_HP}, 1")
        g.i(f"s_add_u32 s{S_CH}, s{S_CH}, s{S_T1}")
        g.i(f"s_and_b32 s{S_CH}, s{S_CH}, 7")
    g.i(f"v_lshlrev_b32 v{VT}, 10, v0")
    g.i(f"s_and_b32 s{S_TX}, s{S_HP}, 7")
    g.i(f"s_lshl_b32 s{S_TX}, s{S_TX}, 2")
    g.i(f"s_add_u32 s{S_TX}, s{S_TX}, s{S_A}")
    g.i(f"s_lshl_b32 s{S_TX}, s{S_TX}, 13")
    NT = 1 if LEAD else 0
    def touch(ahead):
        if not LEAD: return
        g.i(f"s_add_u32 s{S_T0}, s{S_CH}, {ahead}")
        g.i(f"s_and_b32 s{S_T0}, s{S_T0}, 7")
        g.i(f"s_lshl_b32 s{S_T0}, s{S_T0}, 7")
        g.i(f"s_add_u32 s{S_T0}, s{S_T0}, s{S_TX}")
        g.i("s_mov_b64 exec, 0xff")
        g.i(f"buffer_load_dword v244, v{VT}, s[{S_X}:{S_X+3}], s{S_T0} offen")
        g.i("s_mov_b64 exec, -1")
    g.i("v_lshrrev_b32 v6, 4, v0")
    g.i("v_and_b32 v7, 7, v0")
    g.i("v_xor_b32 v6, v6, v7")
    g.i("v_lshlrev_b32 v6, 4, v6")
    g.i("v_lshrrev_b32 v7, 3, v0")
    g.i(f"v_lshl_add_u32 v{VX}, v7, 10, v6")
    g.i(f"v_xor_b32 v{VX+1}, 64, v{VX}")
    g.i(f"v_add_u32 v{VX+2}, {2*7168}, v{VX}")
    g.i(f"v_add_u32 v{VX+3}, {3*7168}, v{VX+1}")
    g.i(f"v_add_u32 v{VX+1}, 7168, v{VX+1}")
    g.i(f"s_lshl_b32 s{S_B}, s{S_A}, 16")
    g.i(f"s_lshl_b32 s{S_D}, s{S_A}, 13")
    for p in range(3):
        g.i(f"v_add_u32 v6, {64*p}, v0")
        g.i("v_mul_u32_u24 v7, 43691, v6")
        g.i("v_lshrrev_b32 v7, 19, v7")
        g.i("v_mul_u32_u24 v110, 12, v7")
        g.i("v_sub_u32 v6, v6, v110")
        g.i("v_mul_u32_u24 v7, 3072, v7")
        g.i("v_lshrrev_b32 v110, 2, v6")
        g.i(f"v_lshl_add_u32 v7, v110, {6 if g.opt.get('x_wc') else 10}, v7")
        g.i("v_and_b32 v6, 3, v6")
        g.i("v_lshl_add_u32 v7, v6, 4, v7")
        g.i(f"v_subrev_u32 v{VW+p}, {1024*p}, v7")
    g.i(f"s_mul_i32 s{S_C}, s{S_A}, {16*3072}")
    g.i(f"s_lshl_b32 s{S_T1}, s{S_HP}, {7 if g.opt.get('x_wc') else 6}")
    g.i(f"s_add_u32 s{S_C}, s{S_C}, s{S_T1}")
    g.i(f"s_mul_i32 s{S_E}, s{S_A}, 3072")
    g.i(f"s_add_u32 s{S_E}, s{S_E}, {SLOT_W}")
    early_srds(g)
    def issue():
        g.i(f"s_lshl_b32 s{S_T1}, s{S_CH}, 7")
        g.i(f"s_add_u32 s{S_T1}, s{S_T1}, s{S_B}")
        g.i(f"s_mov_b32 m0, s{S_D}")
        g.i(f"s_add_u32 s{S_T0}, s{S_T1}, 32768")
        for p in range(4):
            g.i(f"buffer_load_dwordx4 v{VX+p}, s[{S_X}:{S_X+3}], s{S_T1} offen offset:{1024*p}{g.opt.get('xfl','')} lds")
        g.i(f"s_add_u32 m0, s{S_D}, 4096")
        g.i(f"s_mul_i32 s{S_T1}, s{S_CH}, {64*3072}")
        for p in range(4):
            g.i(f"buffer_load_dwordx4 v{VX+p}, s[{S_X}:{S_X+3}], s{S_T0} offen offset:{1024*p}{g.opt.get('xfl','')} lds")
        g.i(f"s_mov_b32 m0, s{S_E}")
        g.i(f"s_add_u32 s{S_T1}, s{S_T1}, s{S_C}")
        for p in range(3):
            if g.opt.get('x_now'): g.i(f"buffer_load_dword v244, v{VW+p}, s[{S_DBG if False else S_W}:{S_W+3}], s{S_C} offen"); continue
            g.i(f"buffer_load_dwordx4 v{VW+p}, s[{S_W}:{S_W+3}], s{S_T1} offen offset:{1024*p}{g.opt.get('wfl','')} lds")
        g.i(f"s_add_u32 s{S_CH}, s{S_CH}, 1")
        g.i(f"s_and_b32 s{S_CH}, s{S_CH}, 7")
    def next_slot():
        g.i(f"s_add_u32 s{S_D}, s{S_D}, {SLOT}")
        g.i(f"s_add_u32 s{S_E}, s{S_E}, {SLOT}")
        g.i(f"s_cmp_lt_u32 s{S_D}, {3*SLOT}")
        g.i(f"s_cselect_b32 s{S_T0}, 0, {3*SLOT}")
        g.i(f"s_sub_u32 s{S_D}, s{S_D}, s{S_T0}")
        g.i(f"s_sub_u32 s{S_E}, s{S_E}, s{S_T0}")
    issue()
    g.st('ld_c0')
    next_slot(); issue()
    for c in range(2, LEAD): touch(c - 2)
    g.st('ld_c2')
    late_srds(g); attn_consts(g); consts(g)
    g.st('ld_pre')
    PRE = g.opt.get('pre', '')
    n0 = NT * max(LEAD - 2, 0)
    def pre():
        g.i(f"s_lshl_b32 s{S_T0}, s{S_TB}, 14")
        g.i(f"s_and_b32 s{S_T1}, s{S_A}, 1")
        g.i(f"s_lshl_b32 s{S_T1}, s{S_T1}, 13")
        g.i(f"s_add_u32 s{S_T0}, s{S_T0}, s{S_T1}")
        g.i(f"s_lshr_b32 s{S_T1}, s{S_A}, 1")
        g.i(f"s_lshl_b32 s{S_T1}, s{S_T1}, 17")
        g.i(f"s_add_u32 s{S_T0}, s{S_T0}, s{S_T1}")
        if PRE == 'r':
            g.i("v_lshlrev_b32 v6, 7, v0")
            g.i(f"buffer_load_dword v245, v6, s[{S_KV}:{S_KV+3}], s{S_T0} offen sc1")
            return 1
        g.i(f"s_add_u32 s{S_T1}, s{S_T0}, 4096")
        for k in range(8):
            g.i(f"buffer_store_dwordx4 v[{V_O[0]}:{V_O[0]+3}], v{V_L16}, s[{S_KV}:{S_KV+3}], s{S_T1 if k >= 4 else S_T0} offen offset:{1024*(k%4)} sc1")
        return 8
    np_ = 0
    PC = g.opt.get('prec', 1)
    for c, n in ((0, 11 + n0), (1, n0 + 11 + NT)):
        g.i(f"s_waitcnt vmcnt({n + (np_ if c == 1 else 0)})")
        if c == 0: g.st('ld_got0')
        g.i("s_barrier")
        next_slot(); issue(); touch(LEAD - 3)
        if PRE and c == PC: np_ = pre()
    if PRE and PC == 1:
        g.i(f"s_waitcnt vmcnt({11+2*NT+np_})")
        g.i("s_barrier")
        next_slot(); issue(); touch(LEAD - 3)
        g.i(f"s_mov_b32 s{S_IT}, 3")
        g.i(f"s_waitcnt vmcnt({11+2*NT+np_})")
        g.i("s_branch L_ld_loop2")
    g.i(f"s_mov_b32 s{S_IT}, 2")
    g.lab("L_ld_loop")
    g.i(f"s_waitcnt vmcnt({11+2*NT})")
    g.lab("L_ld_loop2")
    g.i("s_barrier")
    next_slot(); issue(); touch(LEAD - 3)
    g.i(f"s_add_u32 s{S_IT}, s{S_IT}, 1")
    g.i(f"s_cmp_lt_u32 s{S_IT}, 6")
    g.i("s_cbranch_scc1 L_ld_loop")
    g.st('ld_iss7')
    g.i(f"s_waitcnt vmcnt({11+2*NT})")
    g.i("s_barrier")
    g.i("s_waitcnt vmcnt(0)")
    g.i("s_barrier")
    g.i(f"s_cmp_lg_u32 s{S_WAVE}, 4")
    g.i("s_cbranch_scc1 L_ld_nocert")
    g.i(f"s_lshl_b32 s{S_T0}, s{S_BR}, 4")
    g.i(f"s_add_u32 s{S_T0}, s{S_T0}, s{S_HP}")
    g.i(f"s_lshl_b32 s{S_T0}, s{S_T0}, 3")
    g.i(f"v_mov_b32 v7, s{S_T0}")
    spin(g, "cert1", f"buffer_load_dword v{V_F}, v7, s[{S_DBG}:{S_DBG+3}], 0 offen sc1", 8)
    g.lab("L_ld_nocert")
    g.i(f"s_lshl_b32 s{S_T0}, s{S_A}, 11")
    g.i(f"s_add_u32 s{S_T0}, s{S_T0}, {L_QX}")
    g.i(f"v_add_u32 v6, s{S_T0}, v{V_L16}")
    attn_setup(g)
    g.i("s_waitcnt lgkmcnt(0)")
    g.i("s_barrier")
    g.i(f"ds_read_b128 {vr(V_Q[0],4)}, v6")
    g.i(f"ds_read_b128 {vr(V_Q[1],4)}, v6 offset:1024")
    g.i("s_branch L_attn")

class LdsQ:
    def __init__(self, g): self.g = g; self.q = []
    def issue(self, tag): self.q.append(tag)
    def need(self, tags):
        idx = max([i for i, t in enumerate(self.q) if t in tags], default=-1)
        if idx >= 0:
            n = len(self.q) - 1 - idx
            self.g.i(f"s_waitcnt lgkmcnt({min(n,15)})")
            self.q = self.q[idx + 1:]

def compute(g):
    g.lab("L_compute")
    g.i("s_waitcnt lgkmcnt(0)")
    late_srds(g)
    g.i(f"s_cmp_lg_u32 s{S_WAVE}, 0")
    g.i("s_cbranch_scc1 L_cp_noclear")
    g.i(f"s_lshl_b32 s{S_T0}, s{S_BR}, 4")
    g.i(f"s_add_u32 s{S_T0}, s{S_T0}, s{S_HP}")
    g.i(f"s_lshl_b32 s{S_T1}, s{S_T0}, 7")
    g.i(f"s_lshl_b32 s{S_T2}, s{S_TB}, 4")
    g.i(f"s_add_u32 s{S_T1}, s{S_T1}, s{S_T2}")
    g.i(f"v_lshl_add_u32 v6, v0, 2, s{S_T1}")
    g.i("v_mov_b32 v100, 0")
    g.i("s_mov_b64 exec, 0xf")
    g.i(f"buffer_store_dword v100, v6, s[{S_FL}:{S_FL+3}], 0 offen sc1")
    g.i("s_mov_b64 exec, -1")
    g.lab("L_cp_noclear")
    attn_consts(g)
    g.i("v_and_b32 v6, 31, v0")
    g.i(f"s_lshl_b32 s{S_T0}, s{S_WAVE}, 13")
    g.i(f"v_lshl_add_u32 v100, v6, 7, s{S_T0}")
    g.i("v_bfe_u32 v6, v0, 1, 3")
    g.i("v_lshrrev_b32 v7, 5, v0")
    g.i("v_xor_b32 v6, v6, v7")
    for s in range(4):
        g.i(f"v_xor_b32 v7, {2*s}, v6")
        g.i(f"v_lshl_add_u32 v{V_XA+s}, v7, 4, v100")
    g.i("v_lshrrev_b32 v6, 5, v0")
    g.i("v_bfe_u32 v7, v0, 2, 2")
    g.i("v_lshl_add_u32 v6, v6, 3, v7")
    g.i("v_mul_u32_u24 v6, 192, v6")
    g.i("v_bfe_u32 v7, v0, 4, 1")
    g.i("v_lshl_add_u32 v6, v7, 5, v6")
    g.i("v_and_b32 v7, 3, v0")
    g.i("v_lshl_add_u32 v6, v7, 3, v6")
    g.i(f"v_add_u32 v{V_WA}, {SLOT_W}, v6")
    for r in range(0, 96, 2):
        g.i(f"v_mov_b64 v[{V_ACC+r}:{V_ACC+r+1}], 0")
    S_A, S_B = 56, 57
    g.i("v_and_b32 v6, 0x33, v0")
    g.i("v_bfe_u32 v7, v0, 2, 1")
    g.i("v_lshl_or_b32 v6, v7, 3, v6")
    g.i("v_bfe_u32 v7, v0, 3, 1")
    g.i("v_lshl_or_b32 v6, v7, 2, v6")
    g.i(f"v_lshlrev_b32 v{KG}, 4, v6")
    g.i(f"s_lshl_b32 s{S_T0}, s{S_WAVE}, 12")
    g.i(f"v_add_u32 v{KL}, s{S_T0}, v{KG}")
    g.i("v_and_b32 v6, 15, v0")
    g.i("v_lshlrev_b32 v6, 4, v6")
    g.i("v_lshrrev_b32 v7, 5, v0")
    g.i("v_lshl_add_u32 v6, v7, 8, v6")
    g.i("v_add_u32 v6, 1024, v6")
    g.i("v_bfe_u32 v7, v0, 4, 1")
    g.i(f"v_lshl_add_u32 v{VG}, v7, 17, v6")
    g.i("v_lshl_add_u32 v6, v7, 14, v6")
    g.i(f"v_add_u32 v{VL}, s{S_T0}, v6")
    g.i(f"s_lshr_b32 s{S_T0}, s{S_T0}, 1")
    g.i(f"s_add_u32 s{S_T0}, s{S_T0}, {L_QX}")
    g.i(f"v_add_u32 v{QL}, s{S_T0}, v{V_L16}")
    if g.opt.get('dry', 1):
        g.i(f"s_cmp_lt_u32 s{S_WAVE}, 2")
        g.i("s_cbranch_scc1 L_dry_done")
        g.i(f"s_mov_b32 s{S_DRY}, 1")
        g.i(f"s_mov_b32 s{S_IT}, 7")
        g.i("s_mov_b64 vcc, 0")
        g.i(f"s_mov_b64 s[{S_M}:{S_M+1}], 0")
        g.i(f"s_mov_b64 s[{S_M+2}:{S_M+3}], 0")
        g.i(f"s_mov_b32 s{S_MK}, 0")
        g.i("s_waitcnt vmcnt(0) lgkmcnt(0)")
        g.i("s_setvskip -1, 0")
        g.i(f"s_cmp_eq_u32 s{S_WAVE}, 2")
        g.i("s_cbranch_scc1 L_at_done")
        g.i("s_branch L_cp_loop")
        g.lab("L_dry_ret")
        g.i("s_setvskip 0, 0")
        g.i("s_mov_b64 exec, -1")
        g.i("s_setprio 0")
        g.i(f"s_mov_b32 s{S_DRY}, 0")
        g.lab("L_dry_done")
    attn_setup(g)
    g.i(f"s_lshl_b32 s{S_T0}, s{S_WAVE}, 12")
    g.i(f"s_lshl_b32 s{S_G1}, s{S_TB}, 14")
    g.i(f"s_add_u32 s{S_G1}, s{S_G1}, s{S_T0}")
    g.i(f"s_add_u32 s{S_G2}, s{S_G1}, 131072")
    g.i(f"s_mov_b32 s{S_IT}, 0")
    g.i(f"s_mov_b32 s{S_A}, 0")
    g.i(f"s_mov_b32 s{S_B}, {SLOT}")
    q = LdsQ(g)
    def rd(setn, s, which):
        F = V_FR[setn]
        if which[0] == 'x':
            i = int(which[1])
            g.i(f"ds_read_b128 {vr(F+4*i,4)}, v{V_XA+s} offset:{4096*i}")
        else:
            p = {'q': 0, 'k': 1, 'v': 2}[which[0]]; i = int(which[1])
            g.i(f"ds_read_b64_tr_b16 {vr(F+8+4*p+2*i,2)}, v{V_WA} offset:{s*3072+i*768+p*64}")
        q.issue((setn, which))
    ORDER = ['x0', 'q0', 'q1', 'x1', 'k0', 'k1', 'v0', 'v1']
    def mf(setn, n):
        F = V_FR[setn]; p, i = n // 2, n % 2
        w, x = vr(F + 8 + 4 * p, 4), vr(F + 4 * i, 4)
        nm = 'qkv'[p]
        q.need({(setn, f'x{i}'), (setn, nm + '0'), (setn, nm + '1')})
        A, B = (w, x) if p < 2 else (x, w)
        acc = vr(V_ACC + 16 * n, 16)
        if g.opt.get('x_m16'):
            for hh in range(2):
                a4 = vr(V_ACC + 16 * n + 4 * hh, 4)
                g.i(f"v_mfma_f32_16x16x32_bf16 {a4}, {A}, {B}, {a4}")
        else:
            g.i(f"v_mfma_f32_32x32x16_bf16 {acc}, {A}, {B}, {acc}")
    def step(cur, nxt_s):
        plan = [ORDER[0:2], ORDER[2:4], ORDER[4:6], ORDER[6:8], [], []]
        for n in range(6):
            if cur is not None: mf(cur, n)
            if nxt_s is not None:
                for w in plan[n]: rd(1 - (cur if cur is not None else 1), nxt_s, w)
    g.i(f"s_cmp_lg_u32 s{S_WAVE}, 0")
    g.i("s_cbranch_scc1 L_cp_nocount")
    g.i(f"s_lshl_b32 s{S_T0}, s{S_BR}, 4")
    g.i(f"s_add_u32 s{S_T0}, s{S_T0}, s{S_HP}")
    g.i(f"s_lshl_b32 s{S_T0}, s{S_T0}, 3")
    g.i("s_mov_b64 exec, 1")
    g.i(f"v_mov_b32 v6, s{S_T0}")
    g.i("v_mov_b32 v7, 1")
    g.i(f"s_waitcnt vmcnt(0)")
    g.i(f"buffer_atomic_add v7, v6, s[{S_DBG}:{S_DBG+3}], 0 offen sc1")
    g.i("s_mov_b64 exec, -1")
    g.lab("L_cp_nocount")
    def prew():
        g.i(f"s_lshl_b32 s{S_T0}, s{S_TB}, 14")
        g.i(f"s_lshl_b32 s{S_T1}, s{S_WAVE}, 12")
        g.i(f"s_add_u32 s{S_T0}, s{S_T0}, s{S_T1}")
        g.i(f"s_add_u32 s{S_T1}, s{S_T0}, 131072")
        for k in range(8):
            g.i(f"buffer_store_dwordx4 v[{V_O[0]}:{V_O[0]+3}], v{V_L16}, s[{S_KV}:{S_KV+3}], s{S_T1 if k >= 4 else S_T0} offen offset:{1024*(k%4)} sc1")
    def prer():
        g.i("v_and_b32 v6, 31, v0")
        g.i("v_lshlrev_b32 v6, 7, v6")
        g.i("v_lshrrev_b32 v7, 5, v0")
        g.i("v_lshl_add_u32 v6, v7, 17, v6")
        g.i(f"buffer_load_dword v246, v6, s[{S_KV}:{S_KV+3}], s{S_G1} offen{g.opt.get('prefl', ' sc1')}")
    PR = g.opt.get('prer', 0)
    if PR == -1: prer()
    if g.opt.get('prew') == 1: prew()
    g.st('cp_pre')
    g.i("s_barrier")
    g.stamp(1)
    if g.opt.get('prew') == 2: prew()
    step(None, 0)
    g.lab("L_cp_loop")
    q.q = [(0, w) for w in ORDER]
    step(0, 1); step(1, 2); step(0, 3)
    g.i(f"s_add_u32 s{S_A}, s{S_A}, 1")
    g.i(f"s_cmp_eq_u32 s{S_A}, 3")
    g.i(f"s_cselect_b32 s{S_T0}, {(-2*SLOT) & 0xffffffff}, s{S_B}")
    g.i(f"s_cselect_b32 s{S_A}, 0, s{S_A}")
    g.i(f"s_add_u32 s{S_IT}, s{S_IT}, 1")
    g.i(f"s_cmp_eq_u32 s{S_IT}, 8")
    g.i("s_cbranch_scc1 L_cp_last")
    g.i("s_waitcnt lgkmcnt(0)")
    q.q = []
    g.i("s_barrier")
    for r in range(5):
        g.i(f"v_add_u32 v{V_XA+r}, s{S_T0}, v{V_XA+r}")
    PW = g.opt.get('pwd')
    if PW:
        c0, kind = PW
        if kind == 'd':
            g.i(f"s_cmp_lg_u32 s{S_IT}, {c0}")
            g.i("s_cbranch_scc1 L_cp_nopw")
            g.i("v_and_b32 v6, 31, v0")
            g.i("v_lshlrev_b32 v6, 7, v6")
            g.i("v_lshrrev_b32 v7, 5, v0")
            g.i("v_lshl_add_u32 v6, v7, 17, v6")
            g.i(f"buffer_store_dword v{V_O[0]}, v6, s[{S_KV}:{S_KV+3}], s{S_G1} offen sc1")
        elif kind == 'f':
            g.i(f"s_cmp_lg_u32 s{S_IT}, {c0}")
            g.i("s_cbranch_scc1 L_cp_nopw")
            for k in range(8):
                g.i(f"buffer_store_dwordx4 v[{V_O[0]}:{V_O[0]+3}], v{V_L16}, s[{S_KV}:{S_KV+3}], s{S_G2 if k >= 4 else S_G1} offen offset:{1024*(k%4)} sc1")
        elif kind == 's':
            g.i(f"s_sub_u32 s{S_T1}, s{S_IT}, {c0}")
            g.i(f"s_cmp_ge_u32 s{S_T1}, 4")
            g.i("s_cbranch_scc1 L_cp_nopw")
            g.i(f"s_lshl_b32 s{S_T1}, s{S_T1}, 10")
            g.i(f"s_add_u32 s{S_T2}, s{S_T1}, s{S_G2}")
            g.i(f"s_add_u32 s{S_T1}, s{S_T1}, s{S_G1}")
            for so in (S_T1, S_T2):
                g.i(f"buffer_store_dwordx4 v[{V_O[0]}:{V_O[0]+3}], v{V_L16}, s[{S_KV}:{S_KV+3}], s{so} offen sc1")
        g.lab("L_cp_nopw")
    if PR > 0:
        g.i(f"s_cmp_lg_u32 s{S_IT}, {PR}")
        g.i("s_cbranch_scc1 L_cp_nopre")
        prer()
        g.lab("L_cp_nopre")
    step(1, 0)
    g.i("s_branch L_cp_loop")
    g.lab("L_cp_last")
    q.q = [(1, w) for w in ORDER]
    step(1, None)
    g.stamp(2)
    g.i(f"s_mov_b32 s{S_T1}, {hex(QSCALE)}")
    g.i(f"s_mov_b32 s{S_T2}, s{S_T1}")
    g.i("s_nop 5")
    KVS = g.opt.get('kvs', ' sc1')
    T = 204
    n = 0
    for i in range(2):
        A = V_ACC + 16 * (2 + i)
        for hd in range(2):
            for r in range(4):
                g.i(f"v_cvt_pk_bf16_f32 v{T+4*n+r}, v{A+8*hd+2*r}, v{A+8*hd+2*r+1}")
            g.i(f"ds_write_b128 v{KL}, {vr(T+4*n,4)} offset:{16384*hd+2048*i}")
            n += 1
    for i in range(2):
        A = V_ACC + 16 * (4 + i)
        for gr in range(2):
            for r in range(4):
                g.i(f"v_cvt_pk_bf16_f32 v{T+4*n+r}, v{A+8*gr+2*r}, v{A+8*gr+2*r+1}")
            g.i(f"ds_write_b128 v{VL}, {vr(T+4*n,4)} offset:{2048*i+512*gr}")
            n += 1
    g.i(f"s_cmp_lg_u32 s{S_PG}, 0")
    g.i("s_cbranch_scc1 L_cp_later")
    for n in range(8): g.i(kv_store(n))
    g.lab("L_cp_later")
    for i in range(2):
        A = V_ACC + 16 * i
        for r in range(8, 16, 2):
            g.i(f"v_pk_mul_f32 v[{A+r}:{A+r+1}], v[{A+r}:{A+r+1}], s[{S_T0+1}:{S_T0+2}]")
        for r in range(4):
            g.i(f"v_cvt_pk_bf16_f32 v{A+8+r}, v{A+8+2*r}, v{A+8+2*r+1}")
        g.i(f"ds_write_b128 v{QL}, {vr(A+8,4)} offset:{1024*i}")
    for i in range(2):
        A = V_ACC + 16 * i
        for r in range(0, 8, 2):
            g.i(f"v_pk_mul_f32 v[{A+r}:{A+r+1}], v[{A+r}:{A+r+1}], s[{S_T0+1}:{S_T0+2}]")
        for r in range(4):
            g.i(f"v_cvt_pk_bf16_f32 v{V_Q[i]+r}, v{A+2*r}, v{A+2*r+1}")
    g.i("s_waitcnt lgkmcnt(0)")
    barrier_unless_dry(g, "b8")

U = 8
S_OA, S_OB = S_M + 6, S_M + 7
S_MK = S_M + 5
S_KV2 = S_X
S_KO = [None, 4, 5, 6, 7, 12, 13, 14]
S_LM = [[49, 50], [51, 52]]
S_OW = 1
V_OW = 250
V_VB = 4

def kv_store(n):
    if n < 4: adr, so, off = KG, (S_G2 if n % 2 else S_G1), 2048 * (n // 2)
    else: adr, so, off = VG, S_G1, 2048 * ((n - 4) // 2) + 512 * (n % 2)
    return f"buffer_store_dwordx4 {vr(KVT+4*n,4)}, v{adr}, s[{S_KV}:{S_KV+3}], s{so} offen offset:{off} sc1"

def spin_mask(g, tag, load):
    g.i(f"s_mov_b32 s{S_T3}, 0")
    g.lab(f"L_spin_{tag}")
    g.i(load)
    g.i(f"s_add_u32 s{S_T3}, s{S_T3}, 1")
    g.i("s_waitcnt vmcnt(0)")
    g.i(f"v_cmp_ne_u32 vcc, 1, v{V_F}")
    g.i(f"s_cmp_ge_u32 s{S_T3}, {SPIN_MAX}")
    g.i(f"s_cbranch_scc1 L_olr_{tag}")
    g.i(f"s_and_b32 vcc_lo, vcc_lo, s{S_MK}")
    g.i(f"s_cbranch_scc1 L_spin_{tag}")

def attn_setup(g):
    g.i(f"s_add_u32 s{S_KV2}, s{S_KV}, 131072")
    g.i(f"s_addc_u32 s{S_KV2+1}, s{S_KV+1}, 0")
    g.i(f"s_mov_b32 s{S_KV2+2}, 131072")
    g.i(f"s_mov_b32 s{S_KV2+3}, 0x20000")
    g.i(f"s_lshl_b32 s{S_LM[0][0]}, s{S_WAVE}, 11")
    g.i(f"s_add_u32 s{S_LM[0][1]}, s{S_LM[0][0]}, 16384")
    g.i(f"s_add_u32 s{S_LM[1][0]}, s{S_LM[0][0]}, {RING}")
    g.i(f"s_add_u32 s{S_LM[1][1]}, s{S_LM[0][0]}, {RING+16384}")
    for i in range(1, 8):
        g.i(f"s_cmp_gt_u32 s{S_TB}, {i-1}")
        g.i(f"s_cselect_b32 s{S_T0}, {i-1}, {i}")
        if i == 1:
            g.i(f"s_lshl_b32 s{S_T3}, s{S_T0}, 2")
            g.i(f"s_lshl_b32 s{S_MK}, 15, s{S_T3}")
        g.i(f"s_lshl_b32 s{S_T0}, s{S_T0}, 14")
        g.i(f"s_add_u32 s{S_KO[i]}, s{S_T0}, s{S_LM[0][0]}")
    g.i(f"s_lshr_b32 s{S_PG}, s{S_TB}, 1")
    g.i(f"s_min_u32 s{S_PG}, s{S_PG}, 2")
    g.i(f"s_cmp_ge_u32 s{S_WAVE}, 4")
    g.i(f"s_cselect_b32 s{S_PG}, 3, s{S_PG}")
    g.i(f"s_and_b32 s{S_F}, s{S_HP}, 7")
    g.i(f"s_lshl_b32 s{S_T0}, s{S_F}, 7")
    g.i(f"s_lshl_b32 s55, s{S_WAVE}, 16")
    g.i(f"s_add_u32 s55, s55, s{S_T0}")
    g.i(f"s_lshl_b32 s{S_E}, s{S_WAVE}, 13")
    g.i(f"s_add_u32 s{S_E}, s{S_E}, {L_WO}")
    g.i(f"s_and_b32 s{S_T0}, s{S_WAVE}, 3")
    g.i(f"s_lshl_b32 s{S_T0}, s{S_T0}, 1")
    g.i(f"s_lshl_b32 s{S_T1}, s{S_TB}, 3")
    g.i(f"s_add_u32 s{S_T0}, s{S_T0}, s{S_T1}")
    g.i(f"s_lshl_b32 s{S_OA}, s{S_T0}, 15")
    g.i(f"s_lshr_b32 s{S_T1}, s{S_WAVE}, 2")
    g.i(f"s_lshl_b32 s{S_T2}, s{S_HP}, 1")
    g.i(f"s_add_u32 s{S_T1}, s{S_T1}, s{S_T2}")
    g.i(f"s_lshl_b32 s{S_T2}, s{S_T1}, 10")
    g.i(f"s_add_u32 s{S_OA}, s{S_OA}, s{S_T2}")
    g.i(f"s_add_u32 s{S_OB}, s{S_OA}, 32768")
    if g.opt.get('opw', 2) or g.opt.get('opr'):
        g.i(f"s_lshr_b32 s{S_T0}, s{S_HP}, 3")
        g.i(f"s_lshl_b32 s{S_T0}, s{S_T0}, 2")
        g.i(f"s_and_b32 s{S_T1}, s{S_WAVE}, 3")
        g.i(f"s_add_u32 s{S_T0}, s{S_T0}, s{S_T1}")
        g.i(f"s_lshl_b32 s{S_T1}, s{S_TB}, 3")
        g.i(f"s_add_u32 s{S_T0}, s{S_T0}, s{S_T1}")
        g.i(f"s_lshl_b32 s{S_T0}, s{S_T0}, 1")
        g.i(f"s_lshr_b32 s{S_T1}, s{S_WAVE}, 2")
        g.i(f"s_add_u32 s{S_T0}, s{S_T0}, s{S_T1}")
        g.i(f"s_lshl_b32 s{S_OW}, s{S_T0}, 15")
        g.i(f"s_lshl_b32 s{S_T0}, s{S_BR}, 10")
        g.i(f"s_add_u32 s{S_OW}, s{S_OW}, s{S_T0}")
        g.i(f"s_lshl_b32 s{S_T0}, s{S_F}, 7")
        g.i(f"s_add_u32 s{S_OW}, s{S_OW}, s{S_T0}")
        g.i("v_lshrrev_b32 v7, 3, v0")
        g.i("v_lshlrev_b32 v7, 11, v7")
        g.i(f"v_and_b32 v{V_OW}, 7, v0")
        g.i(f"v_lshl_add_u32 v{V_OW}, v{V_OW}, 4, v7")

def attention(g):
    opt = g.opt
    g.lab("L_attn")
    g.stamp(3)
    g.i(f"ds_read_b128 {vr(V_K,4)}, v{V_KA}")
    g.i(f"ds_read_b128 {vr(V_V[0],4)}, v{V_VA}")
    g.i(f"ds_read_b128 {vr(V_V[0]+4,4)}, v{V_VA} offset:512")
    g.i("s_setprio 3")
    g.i("s_waitcnt lgkmcnt(2)")
    g.i(f"v_mfma_f32_32x32x16_bf16 {vr(V_S[0],16)}, {vr(V_K,4)}, {vr(V_Q[0],4)}, 0")
    dry_exit(g)
    g.i("s_nop 9")
    g.i("s_waitcnt lgkmcnt(0)")
    poll = f"buffer_load_dword v{V_F}, v{V_FA}, s[{S_FL}:{S_FL+3}], 0 offen sc1"
    side = []
    ev = {}
    def at(it, p, slot, *ins): ev.setdefault((it, p, slot), []).extend(ins)
    def kv(i, n):
        return f"buffer_load_dwordx4 v{V_L16}, {sr(S_KV2 if n >= 2 else S_KV, 4)}, s{S_KO[i]} offen offset:{1024*(n%2)}{opt.get('kvl', ' sc1')} lds"
    def check(tag, n):
        def f():
            if n is not None: g.i(f"s_waitcnt vmcnt({n})")
            g.i(f"v_cmp_ne_u32 vcc, 1, v{V_F}")
            g.i("s_nop 0")
            g.i(f"s_and_b32 vcc_lo, vcc_lo, s{S_MK}")
            g.i(f"s_cbranch_scc1 L_ol_{tag}")
            g.lab(f"L_olr_{tag}")
            side.append((tag, lambda: spin_mask(g, tag, poll)))
        return f
    def group(pg, tag, body):
        def f():
            g.i(f"s_cmp_lg_u32 s{S_PG}, {pg}")
            g.i(f"s_cbranch_scc1 L_pg_{tag}")
            body()
            g.lab(f"L_pg_{tag}")
        return f
    def flag():
        g.i(f"s_lshl_b32 s{S_T0}, s{S_TB}, 2")
        g.i(f"s_add_u32 s{S_T0}, s{S_T0}, s{S_WAVE}")
        g.i(f"s_lshl_b64 exec, 1, s{S_T0}")
        g.i("v_mov_b32 v6, 1")
        g.i(f"buffer_store_dword v6, v{V_FA}, s[{S_FL}:{S_FL+3}], 0 offen sc1")
        g.i("s_mov_b64 exec, -1")
    def stores(it, p0, pg):
        for k, (a_, b_) in enumerate(((0, 3), (3, 6), (6, 8))):
            at(it, p0 + k, 'p1', group(pg, f"s{pg}{k}", lambda a_=a_, b_=b_: [g.i(kv_store(n)) for n in range(a_, b_)]))
    def burst(i):
        sl = i % 2
        return [f"s_mov_b32 m0, s{S_LM[sl][0]}", "s_nop 0", kv(i, 0), kv(i, 1), f"s_mov_b32 m0, s{S_LM[sl][1]}", "s_nop 0", kv(i, 2), kv(i, 3)]
    def count():
        g.i(f"s_cmp_lg_u32 s{S_WAVE}, 7")
        g.i("s_cbranch_scc1 L_at_nocnt")
        g.i(f"s_lshl_b32 s{S_T0}, s{S_BR}, 4")
        g.i(f"s_add_u32 s{S_T0}, s{S_T0}, s{S_HP}")
        g.i(f"s_lshl_b32 s{S_T0}, s{S_T0}, 3")
        g.i("s_mov_b64 exec, 1")
        g.i(f"v_mov_b32 v6, s{S_T0}")
        g.i("v_mov_b32 v7, 1")
        g.i(f"buffer_atomic_add v7, v6, s[{S_DBG}:{S_DBG+3}], 0 offen offset:4 sc1")
        g.i("s_mov_b64 exec, -1")
        g.lab("L_at_nocnt")
    pp, pi0, pc0, ps1, pi1, pc1, pi3, pc3 = opt.get('ev', (1, 8, 10, 3, 7, 9, 7, 9))
    at(0, pp, 'qk', group(0, "f0", lambda: (g.st('pub_pre'), g.i("s_waitcnt vmcnt(0)"), g.st('pub_ack'), flag())))
    stores(0, ps1, 1)
    at(0, pi0, 'qk', poll)
    at(0, pc0, 'qk', "s_waitcnt vmcnt(0)", group(1, "f1", flag), check("kv0", None), lambda: g.st('chk_ok'), *burst(1),
       f"s_mov_b32 s{S_MK}, 0xffff")
    at(1, pi1, 'qk', poll)
    at(1, pc1, 'qk', check("kv1", 0), *burst(2), f"s_mov_b32 s{S_MK}, -1")
    stores(1, pc1 + 1, 2)
    at(2, 15, 'qk', group(2, "f2", flag))
    at(3, pi3, 'qk', poll)
    at(3, pc3, 'p2', check("kv2", 0), *burst(4))
    late = {i: 0 for i in range(8)}
    dp = opt.get('dma', (1, 3, 5, 7))
    for i in (2, 4, 5, 6):
        sl = (i + 1) % 2
        at(i, dp[0] - 1, 'p2x', f"s_mov_b32 m0, s{S_LM[sl][0]}")
        at(i, dp[0], 'qk', kv(i + 1, 0))
        at(i, dp[1], 'qk', kv(i + 1, 1))
        at(i, dp[2], 'p2', f"s_mov_b32 m0, s{S_LM[sl][1]}")
        at(i, dp[2], 'qk', kv(i + 1, 2))
        at(i, dp[3], 'qk', kv(i + 1, 3))
    wp = opt.get('wop', (11, 13))
    for i in range(1, 5):
        for k, p in enumerate(wp):
            at(i, p, 'p2', f"s_add_u32 m0, s{S_E}, {(2*(i-1)+k)*1024}")
            at(i, p, 'qk', f"buffer_load_dwordx4 v{V_WOA}, s[{S_WO}:{S_WO+3}], s55 offen lds")
            at(i, p, 'p1', "s_add_u32 s55, s55, 8192")
        late[i] += 2
    for k, so in enumerate((S_OA, S_OB)):
        at(5, 9 + 2 * k, 'qk', f"buffer_store_dwordx4 v[252:255], v{V_L16}, s[{S_O}:{S_O+3}], s{so} offen sc1")
    late[5] += 2
    if opt.get('opw', 2):
        i = opt.get('opw', 2)
        at(i, 12, 'p1', f"buffer_store_dwordx4 v[252:255], v{V_OW}, s[{S_OUT}:{S_OUT+3}], s{S_OW} offen sc1", f"s_add_u32 s{S_T0}, s{S_OW}, 16384")
        at(i, 13, 'p1', f"buffer_store_dwordx4 v[252:255], v{V_OW}, s[{S_OUT}:{S_OUT+3}], s{S_T0} offen sc1")
        late[i] += 2
    if opt.get('opr'):
        at(7, 3, 'qk', f"buffer_load_dwordx4 v[236:239], v{V_OW}, s[{S_OUT}:{S_OUT+3}], s{S_OW} offen", f"s_add_u32 s{S_T0}, s{S_OW}, 16384")
        at(7, 5, 'qk', f"buffer_load_dwordx4 v[236:239], v{V_OW}, s[{S_OUT}:{S_OUT+3}], s{S_T0} offen")
    at(7, 1, 'qk', count)
    if opt.get('x_late0'): late = {i: 0 for i in range(8)}
    prio = opt.get('prio', {0: 3, 5: 2, 10: 1, 13: 0})
    for i in range(8):
        for p, v in prio.items():
            ii, q = (i, p - 1) if p else (i - 1, 15)
            if ii >= 0: at(ii, q, 'p1', f"s_setprio {v}")
    def emit(it, p, slot):
        for x in ev.pop((it, p, slot), []):
            x() if callable(x) else g.i(x)
    p2, pq, p1 = opt.get('pos', (1, 5, 10))
    for it in range(8):
        if opt.get('itst'):
            g.i("s_memtime s[98:99]")
            g.i("s_memrealtime s[100:101]")
            g.i("s_waitcnt lgkmcnt(0)")
            g.i(f"v_writelane_b32 v250, s98, {it}")
            g.i(f"v_writelane_b32 v250, s100, {it+9}") if it < 7 else None
        for p in range(2 * U):
            b, t = p % 2, p // 2
            S, So = V_S[b], V_S[1 - b]
            nt = (t + 1) % U
            sl = (it + (t == U - 1)) % 2
            VA = V_VB if sl else V_VA
            last = it == 7 and t == U - 1
            for e in range(16):
                g.i(f"v_exp_f32 v{S+e}, v{S+e}")
                if e == p2:
                    tp = (p - 1) // 2
                    if it or p:
                        g.i(f"v_smfmac_f32_32x32x32_bf16 {vr(V_O[1-b],16)}, {vr(V_V[tp%2]+4,4)}, {vr(So+8,8)}, v{V_IDX}")
                    emit(it, p, 'p2x')
                    if b == 0:
                        if t == U - 1 and it < 7:
                            if it == 1:
                                g.i(f"s_waitcnt vmcnt({late[it] + 8})")
                                g.i(f"s_cmp_eq_u32 s{S_PG}, 2")
                                g.i("s_cbranch_scc1 L_w8")
                                g.i(f"s_waitcnt vmcnt({late[it]})")
                                g.lab("L_w8")
                            else: g.i(f"s_waitcnt vmcnt({late[it]})")
                            if it == 0: g.st('chk1_ok')
                            g.i("s_barrier")
                        if not last: g.i(f"ds_read_b128 {vr(V_V[(t+1)%2],4)}, v{VA} offset:{nt*2048}")
                    elif not last:
                        g.i("s_waitcnt lgkmcnt(1)")
                    emit(it, p, 'p2')
                if e == pq:
                    if not (last and b):
                        g.i(f"v_mfma_f32_32x32x16_bf16 {vr(So,16)}, {vr(V_K,4)}, {vr(V_Q[1-b],4)}, 0")
                    if b == 0 and not last:
                        g.i(f"ds_read_b128 {vr(V_K,4)}, v{V_KA} offset:{sl*RING+nt*2048}")
                    emit(it, p, 'qk')
                if e == p1:
                    g.i(f"v_smfmac_f32_32x32x32_bf16 {vr(V_O[b],16)}, {vr(V_V[t%2],4)}, {vr(S,8)}, v{V_IDX}")
                    if b == 0 and not last:
                        g.i(f"ds_read_b128 {vr(V_V[(t+1)%2]+4,4)}, v{VA} offset:{nt*2048+512}")
                    elif not last:
                        g.i("s_waitcnt lgkmcnt(0)")
                    emit(it, p, 'p1')
    assert not ev, ev
    g.side = side
    g.lab("L_at_done")
    g.i("s_nop 1")
    g.i(f"v_smfmac_f32_32x32x32_bf16 {vr(V_O[1],16)}, {vr(V_V[1]+4,4)}, {vr(V_S[1]+8,8)}, v{V_IDX}")
    g.stamp(4)
    if opt.get('itst'):
        g.i("s_memtime s[98:99]")
        g.i("s_waitcnt lgkmcnt(0)")
        g.i(f"v_writelane_b32 v250, s98, 8")
    g.i(f"s_mov_b32 s{S_T0}, 0x2b800000")
    g.i(f"s_mov_b32 s{S_T1}, 0x53800000")
    g.i(f"s_mov_b32 s{S_T2}, 0x7f800000")
    for q in range(2):
        O = V_O[q]
        g.i(f"v_add_f32 v6, abs(v{O}), abs(v{O+1})")
        g.i(f"v_add_f32 v7, abs(v{O+2}), abs(v{O+3})")
        for r in range(4, 8, 2):
            g.i(f"v_add_f32 v6, v6, abs(v{O+r})")
            g.i(f"v_add_f32 v7, v7, abs(v{O+r+1})")
        g.i(f"v_add_f32 v6, v6, v7")
        g.i(f"v_cmp_nle_f32 s[{S_M}:{S_M+1}], s{S_T0}, v{O+8}")
        g.i(f"v_cmp_nge_f32 s[{S_M+2}:{S_M+3}], s{S_T1}, v{O+8}")
        g.i(f"v_cmp_ngt_f32 vcc, s{S_T2}, v6")
        g.i(f"v_rcp_f32 v{V_S[0]+q}, v{O+8}")
        g.i(f"s_or_b64 s[{S_M}:{S_M+1}], s[{S_M}:{S_M+1}], s[{S_M+2}:{S_M+3}]")
        g.i(f"s_or_b64 s[{S_M}:{S_M+1}], s[{S_M}:{S_M+1}], vcc")
        g.i("s_branch L_fallback" if opt.get('force_fallback') else "s_cbranch_scc1 L_fallback")
    g.lab("L_at_store")
    for q in range(2):
        O = V_O[q]
        for r in range(8):
            g.i(f"v_mul_f32 v{O+r}, v{O+r}, v{V_S[0]+q}")
        for r in range(4):
            g.i(f"v_cvt_pk_bf16_f32 v{O+r}, v{O+2*r}, v{O+2*r+1}")
        g.i(f"buffer_store_dwordx4 {vr(O,4)}, v{V_L16}, s[{S_O}:{S_O+3}], s{S_OB if q else S_OA} offen sc1")

P_WO = 100
P_OF = 8
def outproj(g):
    opt = g.opt
    A0, A1 = 228, 72
    WA0, WA1, RA, OA = 244, 245, 246, 247
    g.i(f"s_lshr_b32 s{S_E}, s{S_WAVE}, 2")
    g.i(f"s_lshl_b32 s{S_T0}, s{S_E}, 15")
    g.i(f"s_add_u32 s{S_T0}, s{S_T0}, {L_WO}")
    g.i("v_lshrrev_b32 v6, 5, v0")
    g.i("v_bfe_u32 v7, v0, 2, 2")
    g.i("v_lshl_add_u32 v6, v6, 2, v7")
    g.i(f"v_lshl_add_u32 v6, v6, 7, s{S_T0}")
    g.i("v_bfe_u32 v7, v0, 3, 2")
    g.i("v_and_b32 v2, 1, v7")
    g.i("v_lshl_add_u32 v6, v2, 6, v6")
    g.i("v_lshrrev_b32 v7, 1, v7")
    g.i("v_lshl_add_u32 v6, v7, 5, v6")
    g.i("v_and_b32 v7, 3, v0")
    g.i(f"v_lshl_add_u32 v6, v7, 3, v6")
    g.i(f"s_lshl_b32 s{S_T0}, s{S_E}, 6")
    g.i(f"v_xor_b32 v{WA0}, s{S_T0}, v6")
    g.i(f"v_xor_b32 v{WA1}, 64, v{WA0}")
    n = 0
    def wo_reads(s0, s1):
        for s in range(s0, s1):
            for f in range(2):
                for i in range(2):
                    g.i(f"ds_read_b64_tr_b16 {vr(P_WO+8*s+4*f+2*i,2)}, v{WA1 if f else WA0} offset:{s*2048+i*1024}")
    g.stamp(5)
    g.i(f"s_lshl_b32 s{S_T0}, s{S_BR}, 7")
    g.i("v_and_b32 v6, 15, v0")
    g.i(f"v_lshl_add_u32 v4, v6, 3, s{S_T0}")
    g.i(f"buffer_load_dword v5, v4, s[{S_DBG}:{S_DBG+3}], 0 offen offset:4 sc1")
    for s0 in range(0, 16, 3):
        if s0: g.i("s_waitcnt lgkmcnt(2)")
        wo_reads(s0, min(s0 + 3, 16))
    g.i(f"s_lshr_b32 s{S_T0}, s{S_HP}, 3")
    g.i(f"s_lshl_b32 s{S_T0}, s{S_T0}, 2")
    g.i(f"s_and_b32 s{S_T1}, s{S_WAVE}, 3")
    g.i(f"s_add_u32 s{S_A}, s{S_T0}, s{S_T1}")
    g.i(f"s_lshl_b32 s{S_T0}, s{S_TB}, 3")
    g.i(f"s_add_u32 s{S_A}, s{S_A}, s{S_T0}")
    g.i(f"s_lshl_b32 s{S_B}, s{S_A}, 15")
    g.i(f"s_lshl_b32 s{S_T0}, s{S_E}, 14")
    g.i(f"s_add_u32 s{S_B}, s{S_B}, s{S_T0}")
    g.i(f"s_add_u32 s{S_C}, s{S_B}, 4096")
    g.i(f"s_add_u32 s{S_D}, s{S_B}, 8192")
    g.i(f"s_add_u32 s{S_IT}, s{S_B}, 12288")
    g.i(f"v_lshlrev_b32 v2, 10, v6")
    g.i(f"v_add_u32 v2, 1020, v2")
    g.i(f"s_lshl_b32 s{S_T0}, s{S_WAVE}, 12")
    g.i(f"v_add_u32 v{RA}, s{S_T0}, v{V_L16}")
    g.i("v_and_b32 v6, 31, v0")
    g.i("v_lshlrev_b32 v6, 11, v6")
    g.i("v_lshrrev_b32 v7, 5, v0")
    g.i(f"v_lshl_add_u32 v{OA}, v7, 4, v6")
    g.i(f"s_lshl_b32 s{S_A}, s{S_A}, 16")
    g.i(f"s_lshl_b32 s{S_T0}, s{S_BR}, 10")
    g.i(f"s_add_u32 s{S_A}, s{S_A}, s{S_T0}")
    g.i(f"s_lshl_b32 s{S_T0}, s{S_F}, 7")
    g.i(f"s_add_u32 s{S_A}, s{S_A}, s{S_T0}")
    g.i(f"s_lshl_b32 s{S_T0}, s{S_E}, 6")
    g.i(f"s_add_u32 s{S_A}, s{S_A}, s{S_T0}")
    g.i(f"s_mov_b32 s{S_T3}, 0")
    g.lab("L_spin_c")
    g.i("s_waitcnt vmcnt(0)")
    g.i("v_cmp_gt_u32 vcc, 8, v5")
    g.i(f"s_add_u32 s{S_T3}, s{S_T3}, 1")
    g.i("s_cbranch_vccz L_spin_o")
    g.i(f"buffer_load_dword v5, v4, s[{S_DBG}:{S_DBG+3}], 0 offen offset:4 sc1")
    g.i(f"s_cmp_lt_u32 s{S_T3}, {SPIN_MAX}")
    g.i("s_cbranch_scc1 L_spin_c")
    g.lab("L_spin_o")
    if opt.get('probe', 1):
        g.i("s_mov_b64 exec, 0xffff")
        g.i(f"buffer_load_dword v3, v2, s[{S_O}:{S_O+3}], s{S_B} offen sc1")
        g.i(f"s_add_u32 s{S_T3}, s{S_T3}, 1")
        g.i("s_waitcnt vmcnt(0)")
        g.i("v_cmp_eq_u32 vcc, -1, v3")
        g.i("s_mov_b64 exec, -1")
        g.i(f"s_cmp_ge_u32 s{S_T3}, {SPIN_MAX}")
        g.i("s_cbranch_scc1 L_spun_o")
        if opt.get('sleep'): g.i(f"s_sleep {opt['sleep']}")
        g.i("s_cbranch_vccnz L_spin_o")
    else:
        g.i(f"s_add_u32 s{S_T3}, s{S_T3}, 1")
    g.lab("L_spun_o")
    g.stamp(6)
    for s in range(16):
        so = (S_B, S_C, S_D, S_IT)[s // 4]
        g.i(f"buffer_load_dwordx4 {vr(P_OF+4*s,4)}, v{V_L16}, s[{S_O}:{S_O+3}], s{so} offen offset:{1024*(s%4)} sc1")
    g.i("v_mov_b32 v3, 0")
    g.i("s_waitcnt lgkmcnt(0)")
    for s in range(16):
        g.i(f"s_waitcnt vmcnt({15-s})")
        for f, A in ((1, A1), (0, A0)):
            g.i(f"v_mfma_f32_32x32x16_bf16 {vr(A,16)}, {vr(P_WO+8*s+4*f,4)}, {vr(P_OF+4*s,4)}, {vr(A,16) if s else 0}")
            g.i(f"v_max3_u32 v3, v3, v{P_OF+4*s+2*f}, v{P_OF+4*s+2*f+1}")
    g.i("v_cmp_eq_u32 vcc, -1, v3")
    g.i(f"s_cmp_ge_u32 s{S_T3}, {SPIN_MAX}")
    g.i("s_cbranch_scc1 L_op_go")
    g.i("s_cbranch_vccnz L_spin_o")
    g.lab("L_op_go")
    g.i("s_nop 5")
    for r in range(4):
        g.i(f"ds_write_b128 v{RA}, {vr(A1+4*r,4)} offset:{1024*r}")
    g.i("s_waitcnt lgkmcnt(0)")
    g.i(f"v_xor_b32 v{RA}, 16384, v{RA}")
    barrier_unless_dry(g, "b9")
    for r in range(4):
        g.i(f"ds_read_b128 {vr(P_OF+4*r,4)}, v{RA} offset:{1024*r}")
    for r in range(4):
        g.i(f"s_waitcnt lgkmcnt({3-r})")
        for k in range(4):
            g.i(f"v_add_f32 v{A0+4*r+k}, v{A0+4*r+k}, v{P_OF+4*r+k}")
        for k in range(2):
            g.i(f"v_cvt_pk_bf16_f32 v{24+2*r+k}, v{A0+4*r+2*k}, v{A0+4*r+2*k+1}")
        if r % 2:
            g.i("s_nop 1")
            g.i(f"v_permlane32_swap_b32 v{24+2*r-2}, v{24+2*r}")
            g.i(f"v_permlane32_swap_b32 v{24+2*r-1}, v{24+2*r+1}")
            g.i(f"buffer_store_dwordx4 {vr(24+2*r-2,4)}, v{OA}, s[{S_OUT}:{S_OUT+3}], s{S_A} offen offset:{16*(r-1)}{opt.get('outs','')}")
    dry_exit(g)
    if g.diag:
        g.i("s_waitcnt vmcnt(0)")
        g.stamp(7)
        g.i("s_waitcnt lgkmcnt(0)")
        if g.diag == 3:
            a_, b_, K = opt['leak']
            if a_ in (1, 2) or b_ in (1, 2):
                g.i(f"s_cmp_ge_u32 s{S_WAVE}, 4")
                g.i("s_cbranch_scc1 L_end")
            if opt.get('leakc'):
                g.i(f"s_sub_u32 s{S_T0}, s{64+4*b_}, s{64+4*a_}")
                g.i(f"s_lshr_b32 s{S_T0}, s{S_T0}, 4")
            else:
                g.i(f"s_sub_u32 s{S_T0}, s{66+4*b_}, s{66+4*a_}")
            g.i(f"s_mul_i32 s{S_T0}, s{S_T0}, {K}")
            g.lab("L_leak")
            g.i("s_memrealtime s[98:99]")
            g.i("s_waitcnt lgkmcnt(0)")
            g.i(f"s_sub_u32 s{S_T1}, s98, s{66+4*7}")
            g.i(f"s_cmp_lt_u32 s{S_T1}, s{S_T0}")
            g.i("s_cbranch_scc1 L_leak")
            g.i("s_endpgm")
        if g.diag == 2:
            g.i(f"s_cmp_ge_u32 s{S_WAVE}, 4")
            g.i("s_cbranch_scc1 L_end")
            g.i("s_mov_b64 exec, 1")
            for k in range(1, 8):
                g.i(f"s_sub_u32 s{S_T0}, s{66+4*k}, s66")
                g.i(f"v_mov_b32 v6, s{S_T0}")
                g.i(f"v_mov_b32 v7, {8*k+4}")
                g.i(f"buffer_atomic_umax v6, v7, s[{S_DBG}:{S_DBG+3}], 0 offen sc1")
            g.i(f"s_sub_u32 s{S_T0}, s{64+4*4}, s{64+4*3}")
            g.i(f"v_mov_b32 v6, s{S_T0}")
            g.i(f"v_mov_b32 v7, 4")
            g.i(f"buffer_atomic_umax v6, v7, s[{S_DBG}:{S_DBG+3}], 0 offen sc1")
            g.i("s_endpgm")
        g.i(f"s_lshl_b32 s{S_T0}, s2, 3")
        g.i(f"s_add_u32 s{S_T0}, s{S_T0}, s{S_WAVE}")
        g.i(f"s_lshl_b32 s{S_T0}, s{S_T0}, 7")
        g.i(f"s_add_u32 s{S_T0}, s{S_T0}, {WS_STAMP}")
        srd(g.a, S_X, 96, 128, f"s{S_T0}")
        for k in range(32):
            g.i(f"v_mov_b32 v{36+k}, s{64+k}")
        g.i("v_mov_b32 v6, 0")
        for k in range(8):
            g.i(f"buffer_store_dwordx4 {vr(36+4*k,4)}, v6, s[{S_X}:{S_X+3}], 0 offen offset:{16*k}")
        if opt.get('itst'):
            g.i(f"s_add_u32 s{S_T0}, s{S_T0}, {1<<20}")
            srd(g.a, S_X, 96, 64, f"s{S_T0}")
            g.i("v_lshlrev_b32 v6, 2, v0")
            g.i(f"buffer_store_dword v250, v6, s[{S_X}:{S_X+3}], 0 offen")
    g.lab("L_end")
    g.i("s_endpgm")

def fallback(g):
    C = [100, 116]; M = [132, 133]; GV = 134
    g.lab("L_fallback")
    g.i(f"s_lshr_b32 s{S_T0}, s{S_WAVE}, 2")
    g.i(f"s_lshl_b32 s{S_T0}, s{S_T0}, 17")
    g.i(f"v_mov_b32 v{M[0]}, 0xff800000")
    g.i(f"v_mov_b32 v{M[1]}, 0xff800000")
    g.i(f"s_mov_b32 s{S_T1}, s{S_T0}")
    g.i(f"s_add_u32 s{S_T2}, s{S_T0}, 131072")
    g.lab("L_fb_max")
    g.i(f"buffer_load_dwordx4 {vr(V_K,4)}, v{V_L16}, s[{S_KV}:{S_KV+3}], s{S_T1} offen sc1")
    g.i(f"s_add_u32 s{S_T1}, s{S_T1}, 2048")
    g.i("s_waitcnt vmcnt(0)")
    for q in range(2):
        g.i(f"v_mfma_f32_32x32x16_bf16 {vr(V_S[q],16)}, {vr(V_K,4)}, {vr(V_Q[q],4)}, 0")
    g.i("s_nop 15")
    for q in range(2):
        for r in range(0, 16, 2):
            g.i(f"v_max3_f32 v{M[q]}, v{M[q]}, v{V_S[q]+r}, v{V_S[q]+r+1}")
    g.i(f"s_cmp_lt_u32 s{S_T1}, s{S_T2}")
    g.i("s_cbranch_scc1 L_fb_max")
    for q in range(2):
        g.i(f"v_mov_b32 v6, v{M[q]}")
        g.i(f"v_mov_b32 v7, v{M[q]}")
        g.i("s_nop 1")
        g.i("v_permlane32_swap_b32 v6, v7")
        g.i("s_nop 1")
        g.i("v_max_f32 v6, v6, v7")
        for r in range(16):
            g.i(f"v_sub_f32 v{C[q]+r}, 0, v6")
            g.i(f"v_mov_b32 v{V_O[q]+r}, 0")
    g.i("v_and_b32 v6, 15, v0")
    g.i("v_lshlrev_b32 v6, 4, v6")
    g.i("v_lshrrev_b32 v7, 5, v0")
    g.i(f"v_lshl_add_u32 v{GV}, v7, 8, v6")
    for r in range(8):
        g.i(f"v_mov_b32 v{V_V[0]+r}, 0x3f803f80")
    g.i(f"s_mov_b32 s{S_T1}, s{S_T0}")
    g.i(f"s_mov_b32 s{S_M}, 0xffff")
    g.i(f"s_mov_b32 s{S_M+1}, 0xffff")
    g.lab("L_fb_pv")
    g.i(f"buffer_load_dwordx4 {vr(V_K,4)}, v{V_L16}, s[{S_KV}:{S_KV+3}], s{S_T1} offen sc1")
    g.i(f"s_mov_b64 exec, s[{S_M}:{S_M+1}]")
    g.i(f"buffer_load_dwordx4 {vr(V_V[0],4)}, v{GV}, s[{S_KV}:{S_KV+3}], s{S_T1} offen offset:1024 sc1")
    g.i(f"buffer_load_dwordx4 {vr(V_V[0]+4,4)}, v{GV}, s[{S_KV}:{S_KV+3}], s{S_T1} offen offset:1536 sc1")
    g.i("s_mov_b64 exec, -1")
    g.i(f"s_add_u32 s{S_T1}, s{S_T1}, 2048")
    g.i("s_waitcnt vmcnt(0)")
    for q in range(2):
        g.i(f"v_mfma_f32_32x32x16_bf16 {vr(V_S[q],16)}, {vr(V_K,4)}, {vr(V_Q[q],4)}, {vr(C[q],16)}")
    g.i("s_nop 15")
    for q in range(2):
        for r in range(16):
            g.i(f"v_exp_f32 v{V_S[q]+r}, v{V_S[q]+r}")
    g.i("s_nop 3")
    for q in range(2):
        for h in range(2):
            g.i(f"v_smfmac_f32_32x32x32_bf16 {vr(V_O[q],16)}, {vr(V_V[0]+4*h,4)}, {vr(V_S[q]+8*h,8)}, v{V_IDX}")
    g.i("s_nop 15")
    g.i(f"s_cmp_lt_u32 s{S_T1}, s{S_T2}")
    g.i("s_cbranch_scc1 L_fb_pv")
    for q in range(2):
        g.i(f"v_rcp_f32 v{V_S[0]+q}, v{V_O[q]+8}")
    g.i("s_nop 1")
    g.i("s_branch L_at_store")

HEADER = open('cdna_kernels/' + NAME + '.s.ref').read().split('; Override launch')[0]

def generate(opt={}):
    global WS_KV, WS_O, WS_FLAG
    off = opt.get('wsoff', 0) << 20
    WS_KV, WS_O, WS_FLAG = (4 << 20) + off, (12 << 20) + off, (16 << 20) + off
    g = G(opt)
    name = NAME + "_kernel"
    g.a(HEADER.rstrip())
    g.a(f"; @launch grid=(256,1,1) block=(512,1,1) lds={LDS_TOTAL}")
    g.a('.amdgcn_target "amdgcn-amd-amdhsa--gfx950"')
    entry(g, name)
    if opt.get('lfirst', 1): loader(g)
    compute(g)
    attention(g)
    outproj(g)
    if not opt.get('lfirst', 1): loader(g)
    g.lab("L_code_end")
    for tag, body in g.side:
        g.lab(f"L_ol_{tag}")
        body()
        g.i(f"s_branch L_olr_{tag}")
    fallback(g)
    kernel_desc(g.a, name, NVGPR, 256, 102)
    return g.a.text()

if __name__ == "__main__":
    import sys
    opt = eval(sys.argv[2]) if len(sys.argv) > 2 else {}
    open(sys.argv[1], 'w').write(generate(opt))
```

```python
import math, struct
from common import *

WS_FLAG = 16 << 20
SLOT = 45056; SLOT_W = 32768
RING = 32768
L_WO = 65536
L_CONST = 135168
L_QX = 155648
LDS_TOTAL = 163840
S_X, S_W, S_WO, S_KV, S_O, S_FL, S_DBG, S_OUT = 8, 12, 16, 20, 24, 28, 32, 36
S_WAVE, S_BR, S_HP, S_TB, S_IT, S_T0, S_T1, S_T2, S_T3 = 40, 41, 42, 43, 44, 45, 46, 47, 48
S_A, S_B, S_C, S_D, S_E, S_F = 49, 50, 51, 52, 53, 54
S_G1, S_G2, S_PG = 58, 59, 60
KG, KL, VG, VL, QL, KVT = 244, 245, 247, 248, 249, 204
S_M = 56
V_L16, V_KA, V_VA, V_VX, V_IDX, V_T0, V_T1 = 1, 2, 3, 4, 5, 6, 7
V_Q = [8, 12]; V_K = 16; V_V = [20, 28]; V_S = [36, 52]; V_O = [68, 84]
V_F = 241
V_FA = 242
V_WOA = 243
V_ACC = 100
V_FR = [196, 216]
V_XA = 236; V_WA = 240
NVGPR = 256
QSCALE = struct.unpack('<I', struct.pack('<f', 0.25 * math.log2(math.e)))[0]
SPIN_MAX = 1 << 20
S_DRY = 3

class G:
    def __init__(self, opt):
        self.a = Asm(); self.opt = opt; self.diag = opt.get('diag', 0)
    def i(self, s): self.a.i(s)
    def lab(self, s): self.a.label(s)
    def st(self, name):
        m = self.opt.get('st', {})
        if name in m: self.stamp(m[name], True)
    def stamp(self, k, forced=False):
        if k in self.opt.get('st', {}).values() and not forced: return
        if self.diag:
            self.i(f"s_memtime s[{64+4*k}:{65+4*k}]")
            self.i(f"s_memrealtime s[{66+4*k}:{67+4*k}]")

def dry_exit(g, label="L_dry_ret"):
    if g.opt.get('dry', 1):
        g.i(f"s_cmp_lg_u32 s{S_DRY}, 0")
        g.i(f"s_cbranch_scc1 {label}")

def barrier_unless_dry(g, tag):
    dry_exit(g, f"L_nb_{tag}")
    g.i("s_barrier")
    g.lab(f"L_nb_{tag}")

def spin(g, tag, load, want, nlanes_mask=None):
    g.i(f"s_mov_b32 s{S_T3}, 0")
    g.lab(f"L_spin_{tag}")
    g.i(load)
    g.i(f"s_add_u32 s{S_T3}, s{S_T3}, 1")
    g.i("s_waitcnt vmcnt(0)")
    g.i(f"v_cmp_{'gt' if want > 1 else 'ne'}_u32 vcc, {want}, v{V_F}")
    g.i(f"s_cmp_ge_u32 s{S_T3}, {SPIN_MAX}")
    g.i(f"s_cbranch_scc1 L_spun_{tag}")
    g.i(f"s_cbranch_vccnz L_spin_{tag}")
    g.lab(f"L_spun_{tag}")

def entry(g, name):
    a = g.a
    kernel_head(a, name)
    PF = g.opt.get('cpf', 1)
    if PF:
        g.i("s_getpc_b64 s[8:9]")
        g.i("v_lshlrev_b32 v6, 7, v0")
        g.i("s_mov_b32 s10, L_code_end-" + name + "-4")
        g.i("s_mov_b32 s11, 0x20000")
    g.i("s_cmp_ge_u32 s2, 256")
    g.i("s_cbranch_scc1 L_end")
    if PF:
        g.i("buffer_load_dword v246, v6, s[8:11], 0 offen")
    g.stamp(0)
    g.i(f"s_mov_b32 s{S_DRY}, 0")
    g.i(f"s_bfe_u32 s{S_BR}, s2, 0x10002")
    g.i(f"s_mul_i32 s{S_T0}, s{S_BR}, 24")
    g.i(f"s_load_dwordx4 s[{S_M}:{S_M+3}], s[0:1], s{S_T0}")
    g.i(f"s_load_dwordx2 s[{S_M+4}:{S_M+5}], s[0:1], s{S_T0} offset:16")
    g.i("s_load_dwordx4 s[4:7], s[0:1], 48")
    g.i(f"s_load_dwordx2 s[{S_M+6}:{S_M+7}], s[0:1], 64")
    g.i("v_lshrrev_b32 v6, 6, v0")
    g.i("v_and_b32 v0, 63, v0")
    g.i(f"v_readfirstlane_b32 s{S_WAVE}, v6")
    g.i(f"v_lshlrev_b32 v{V_L16}, 4, v0")
    g.i(f"s_bfe_u32 s{S_HP}, s2, 0x10001")
    g.i(f"s_lshl_b32 s{S_HP}, s{S_HP}, 3")
    g.i(f"s_bfe_u32 s{S_T0}, s2, 0x30003")
    g.i(f"s_add_u32 s{S_HP}, s{S_HP}, s{S_T0}")
    g.i(f"s_and_b32 s{S_TB}, s2, 1")
    g.i(f"s_lshl_b32 s{S_TB}, s{S_TB}, 2")
    g.i(f"s_lshr_b32 s{S_T0}, s2, 6")
    g.i(f"s_add_u32 s{S_TB}, s{S_TB}, s{S_T0}")
    g.i(f"s_lshl_b32 s{S_T0}, s{S_TB}, 18")
    g.i(f"s_lshl_b32 s{S_T1}, s{S_BR}, 4")
    g.i(f"s_add_u32 s{S_T1}, s{S_T1}, s{S_HP}")
    g.i(f"s_lshl_b32 s{S_T2}, s{S_T1}, 18")
    g.i(f"s_add_u32 s{S_T2}, s{S_T2}, {WS_KV}")
    g.i(f"s_lshl_b32 s{S_T3}, s{S_BR}, 21")
    g.i(f"s_add_u32 s{S_T3}, s{S_T3}, {WS_O}")
    if g.opt.get('lfirst', 1):
        g.i(f"s_cmp_lt_u32 s{S_WAVE}, 4")
        g.i("s_cbranch_scc1 L_compute")
    else:
        g.i(f"s_cmp_ge_u32 s{S_WAVE}, 4")
        g.i("s_cbranch_scc1 L_loader")

def early_srds(g):
    g.i("s_waitcnt lgkmcnt(0)")
    g.st('karg')
    srd(g.a, S_X, S_M, 256 * 1024, f"s{S_T0}")
    srd(g.a, S_W, S_M + 2, 512 * 1536 * 2)

def late_srds(g):
    a = g.a
    srd(a, S_WO, S_M + 4, 512 * 512 * 2)
    srd(a, S_KV, S_M + 6, 256 * 1024, f"s{S_T2}")
    srd(a, S_O, S_M + 6, 2 << 20, f"s{S_T3}")
    srd(a, S_FL, S_M + 6, 4096, str(WS_FLAG))
    srd(a, S_DBG, 6, 256)
    srd(a, S_OUT, 4, 2048 * 1024 * 2)
    if g.diag:
        g.i(f"s_mov_b32 s96, s{S_M+6}")
        g.i(f"s_mov_b32 s97, s{S_M+7}")

def attn_consts(g):
    g.i(f"s_lshr_b32 s{S_T0}, s{S_WAVE}, 2")
    g.i(f"s_lshl_b32 s{S_T0}, s{S_T0}, 14")
    g.i(f"v_add_u32 v{V_KA}, s{S_T0}, v{V_L16}")
    g.i(f"v_and_b32 v{V_T0}, 15, v0")
    g.i(f"v_lshlrev_b32 v{V_T0}, 4, v{V_T0}")
    g.i(f"v_lshrrev_b32 v{V_T1}, 5, v0")
    g.i(f"v_lshl_add_u32 v{V_T0}, v{V_T1}, 8, v{V_T0}")
    g.i(f"s_add_u32 s{S_T0}, s{S_T0}, 1024")
    g.i(f"v_add_u32 v{V_VA}, s{S_T0}, v{V_T0}")
    g.i(f"v_and_b32 v{V_T0}, 31, v0")
    g.i(f"v_subrev_u32 v{V_T1}, 20, v{V_T0}")
    g.i(f"v_cmp_gt_u32 vcc, 8, v{V_T1}")
    g.i(f"v_mov_b32 v{V_T1}, {L_CONST+16}")
    g.i(f"v_mov_b32 v{V_VX}, {L_CONST+16+64}")
    g.i(f"v_cndmask_b32 v{V_T1}, v{V_T1}, v{V_VX}, vcc")
    g.i(f"v_and_b32 v{V_VX}, 27, v0")
    g.i(f"v_cmp_eq_u32 vcc, 16, v{V_VX}")
    g.i(f"v_subrev_u32 v{V_VX}, 16, v{V_T1}")
    g.i("s_nop 0")
    g.i(f"v_cndmask_b32 v{V_T1}, v{V_T1}, v{V_VX}, vcc")
    g.i(f"v_cmp_gt_u32 vcc, 16, v{V_T0}")
    g.i(f"v_mov_b32 v{V_T0}, {RING}")
    g.i(f"v_mov_b32 v{V_IDX}, 0xdddd")
    g.i(f"v_cndmask_b32 v{V_VA}, v{V_T1}, v{V_VA}, vcc")
    g.i(f"v_cndmask_b32 v{V_VX}, 0, v{V_T0}, vcc")
    g.i(f"v_add_u32 v{V_VX}, v{V_VX}, v{V_VA}")
    g.i(f"v_mov_b32 v{KG}, 0")
    g.i(f"v_mov_b32 v{VG}, 0")
    g.i("v_mov_b64 v[252:253], -1")
    g.i("v_mov_b64 v[254:255], -1")
    for r in range(0, 32, 2):
        g.i(f"v_mov_b64 v[{V_O[0]+r}:{V_O[0]+r+1}], 0")
    g.i(f"s_lshl_b32 s{S_T0}, s{S_BR}, 4")
    g.i(f"s_add_u32 s{S_T0}, s{S_T0}, s{S_HP}")
    g.i(f"s_lshl_b32 s{S_T0}, s{S_T0}, 7")
    g.i(f"v_and_b32 v6, 31, v0")
    g.i(f"v_lshl_add_u32 v{V_FA}, v6, 2, s{S_T0}")
    g.i(f"v_lshrrev_b32 v{V_T0}, 2, v0")
    g.i(f"v_and_b32 v{V_T0}, 4, v{V_T0}")
    g.i(f"v_and_b32 v{V_T1}, 7, v0")
    g.i(f"v_xor_b32 v{V_T0}, v{V_T0}, v{V_T1}")
    g.i(f"v_lshlrev_b32 v{V_T0}, 4, v{V_T0}")
    g.i(f"v_lshrrev_b32 v{V_T1}, 3, v0")
    g.i(f"v_lshl_add_u32 v{V_WOA}, v{V_T1}, 10, v{V_T0}")

def consts(g):
    g.i(f"s_cmp_lg_u32 s{S_WAVE}, 4")
    g.i("s_cbranch_scc1 L_ld_noconst")
    g.i("v_lshrrev_b32 v6, 2, v0")
    g.i("v_and_b32 v7, 1, v6")
    g.i("v_lshlrev_b32 v7, 9, v7")
    g.i("v_lshrrev_b32 v6, 1, v6")
    g.i("v_lshl_add_u32 v7, v6, 11, v7")
    g.i("v_and_b32 v6, 1, v0")
    g.i("v_lshl_add_u32 v7, v6, 4, v7")
    g.i("v_cmp_eq_u32 vcc, 0, v6")
    g.i("v_and_b32 v6, 2, v0")
    g.i("v_lshl_add_u32 v7, v6, 5, v7")
    g.i("v_mov_b32 v6, 0x3f803f80")
    g.i(f"v_add_u32 v7, {L_CONST}, v7")
    g.i("v_cndmask_b32 v108, 0, v6, vcc")
    g.i("v_cndmask_b32 v109, 0, v6, vcc")
    g.i("v_cndmask_b32 v110, 0, v6, vcc")
    g.i("v_cndmask_b32 v111, 0, v6, vcc")
    g.i("ds_write_b128 v7, v[108:111]")
    g.lab("L_ld_noconst")

def loader(g):
    VX, VW, VT = 100, 104, 112
    LEAD = g.opt.get('lead', 0)
    g.lab("L_loader")
    g.i(f"s_sub_u32 s{S_A}, s{S_WAVE}, 4")
    S_CH, S_TX = S_F, 55
    RM = g.opt.get('rot', 7)
    if RM == 1:
        g.i(f"s_lshl_b32 s{S_CH}, s{S_TB}, 1")
        g.i(f"s_lshr_b32 s{S_T1}, s{S_TB}, 2")
        g.i(f"s_add_u32 s{S_CH}, s{S_CH}, s{S_T1}")
        g.i(f"s_and_b32 s{S_CH}, s{S_CH}, 7")
    elif RM == 2:
        g.i(f"s_mov_b32 s{S_CH}, s{S_TB}")
    elif RM == 7:
        g.i(f"s_and_b32 s{S_T1}, s{S_HP}, 1")
        g.i(f"s_lshl_b32 s{S_T1}, s{S_T1}, 2")
        g.i(f"s_add_u32 s{S_CH}, s{S_TB}, s{S_T1}")
        g.i(f"s_and_b32 s{S_CH}, s{S_CH}, 7")
    elif RM == 8:
        g.i(f"s_lshl_b32 s{S_CH}, s{S_TB}, 1")
        g.i(f"s_bfe_u32 s{S_T1}, s{S_HP}, 0x10001")
        g.i(f"s_add_u32 s{S_CH}, s{S_CH}, s{S_T1}")
        g.i(f"s_and_b32 s{S_CH}, s{S_CH}, 7")
    elif RM == 9:
        g.i(f"s_lshl_b32 s{S_CH}, s{S_TB}, 1")
        g.i(f"s_and_b32 s{S_T1}, s{S_HP}, 3")
        g.i(f"s_add_u32 s{S_CH}, s{S_CH}, s{S_T1}")
        g.i(f"s_and_b32 s{S_CH}, s{S_CH}, 7")
    elif RM == 0:
        g.i(f"s_mov_b32 s{S_CH}, 0")
    elif RM == 6:
        g.i(f"s_lshl_b32 s{S_CH}, s{S_TB}, 1")
        g.i(f"s_add_u32 s{S_CH}, s{S_CH}, s{S_HP}")
        g.i(f"s_and_b32 s{S_CH}, s{S_CH}, 7")
    elif RM == 4:
        g.i(f"s_lshl_b32 s{S_CH}, s{S_TB}, 1")
        g.i(f"s_add_u32 s{S_CH}, s{S_CH}, s{S_HP}")
        g.i(f"s_and_b32 s{S_CH}, s{S_CH}, 3")
        g.i(f"s_lshl_b32 s{S_CH}, s{S_CH}, 1")
    elif RM == 5:
        g.i(f"s_add_u32 s{S_CH}, s{S_TB}, s{S_HP}")
        g.i(f"s_and_b32 s{S_CH}, s{S_CH}, 3")
        g.i(f"s_lshl_b32 s{S_CH}, s{S_CH}, 1")
    elif RM == 3:
        g.i(f"s_lshl_b32 s{S_CH}, s{S_TB}, 1")
        g.i(f"s_and_b32 s{S_T1}, s{S_HP}, 1")
        g.i(f"s_add_u32 s{S_CH}, s{S_CH}, s{S_T1}")
        g.i(f"s_and_b32 s{S_CH}, s{S_CH}, 7")
    g.i(f"v_lshlrev_b32 v{VT}, 10, v0")
    g.i(f"s_and_b32 s{S_TX}, s{S_HP}, 7")
    g.i(f"s_lshl_b32 s{S_TX}, s{S_TX}, 2")
    g.i(f"s_add_u32 s{S_TX}, s{S_TX}, s{S_A}")
    g.i(f"s_lshl_b32 s{S_TX}, s{S_TX}, 13")
    NT = 1 if LEAD else 0
    def touch(ahead):
        if not LEAD: return
        g.i(f"s_add_u32 s{S_T0}, s{S_CH}, {ahead}")
        g.i(f"s_and_b32 s{S_T0}, s{S_T0}, 7")
        g.i(f"s_lshl_b32 s{S_T0}, s{S_T0}, 7")
        g.i(f"s_add_u32 s{S_T0}, s{S_T0}, s{S_TX}")
        g.i("s_mov_b64 exec, 0xff")
        g.i(f"buffer_load_dword v244, v{VT}, s[{S_X}:{S_X+3}], s{S_T0} offen")
        g.i("s_mov_b64 exec, -1")
    g.i("v_lshrrev_b32 v6, 4, v0")
    g.i("v_and_b32 v7, 7, v0")
    g.i("v_xor_b32 v6, v6, v7")
    g.i("v_lshlrev_b32 v6, 4, v6")
    g.i("v_lshrrev_b32 v7, 3, v0")
    g.i(f"v_lshl_add_u32 v{VX}, v7, 10, v6")
    g.i(f"v_xor_b32 v{VX+1}, 64, v{VX}")
    g.i(f"v_add_u32 v{VX+2}, {2*7168}, v{VX}")
    g.i(f"v_add_u32 v{VX+3}, {3*7168}, v{VX+1}")
    g.i(f"v_add_u32 v{VX+1}, 7168, v{VX+1}")
    g.i(f"s_lshl_b32 s{S_B}, s{S_A}, 16")
    g.i(f"s_lshl_b32 s{S_D}, s{S_A}, 13")
    for p in range(3):
        g.i(f"v_add_u32 v6, {64*p}, v0")
        g.i("v_mul_u32_u24 v7, 43691, v6")
        g.i("v_lshrrev_b32 v7, 19, v7")
        g.i("v_mul_u32_u24 v110, 12, v7")
        g.i("v_sub_u32 v6, v6, v110")
        g.i("v_mul_u32_u24 v7, 3072, v7")
        g.i("v_lshrrev_b32 v110, 2, v6")
        g.i(f"v_lshl_add_u32 v7, v110, {6 if g.opt.get('x_wc') else 10}, v7")
        g.i("v_and_b32 v6, 3, v6")
        g.i("v_lshl_add_u32 v7, v6, 4, v7")
        g.i(f"v_subrev_u32 v{VW+p}, {1024*p}, v7")
    g.i(f"s_mul_i32 s{S_C}, s{S_A}, {16*3072}")
    g.i(f"s_lshl_b32 s{S_T1}, s{S_HP}, {7 if g.opt.get('x_wc') else 6}")
    g.i(f"s_add_u32 s{S_C}, s{S_C}, s{S_T1}")
    g.i(f"s_mul_i32 s{S_E}, s{S_A}, 3072")
    g.i(f"s_add_u32 s{S_E}, s{S_E}, {SLOT_W}")
    early_srds(g)
    def issue():
        g.i(f"s_lshl_b32 s{S_T1}, s{S_CH}, 7")
        g.i(f"s_add_u32 s{S_T1}, s{S_T1}, s{S_B}")
        g.i(f"s_mov_b32 m0, s{S_D}")
        g.i(f"s_add_u32 s{S_T0}, s{S_T1}, 32768")
        for p in range(4):
            g.i(f"buffer_load_dwordx4 v{VX+p}, s[{S_X}:{S_X+3}], s{S_T1} offen offset:{1024*p}{g.opt.get('xfl','')} lds")
        g.i(f"s_add_u32 m0, s{S_D}, 4096")
        g.i(f"s_mul_i32 s{S_T1}, s{S_CH}, {64*3072}")
        for p in range(4):
            g.i(f"buffer_load_dwordx4 v{VX+p}, s[{S_X}:{S_X+3}], s{S_T0} offen offset:{1024*p}{g.opt.get('xfl','')} lds")
        g.i(f"s_mov_b32 m0, s{S_E}")
        g.i(f"s_add_u32 s{S_T1}, s{S_T1}, s{S_C}")
        for p in range(3):
            if g.opt.get('x_now'): g.i(f"buffer_load_dword v244, v{VW+p}, s[{S_DBG if False else S_W}:{S_W+3}], s{S_C} offen"); continue
            g.i(f"buffer_load_dwordx4 v{VW+p}, s[{S_W}:{S_W+3}], s{S_T1} offen offset:{1024*p}{g.opt.get('wfl','')} lds")
        g.i(f"s_add_u32 s{S_CH}, s{S_CH}, 1")
        g.i(f"s_and_b32 s{S_CH}, s{S_CH}, 7")
    def next_slot():
        g.i(f"s_add_u32 s{S_D}, s{S_D}, {SLOT}")
        g.i(f"s_add_u32 s{S_E}, s{S_E}, {SLOT}")
        g.i(f"s_cmp_lt_u32 s{S_D}, {3*SLOT}")
        g.i(f"s_cselect_b32 s{S_T0}, 0, {3*SLOT}")
        g.i(f"s_sub_u32 s{S_D}, s{S_D}, s{S_T0}")
        g.i(f"s_sub_u32 s{S_E}, s{S_E}, s{S_T0}")
    issue()
    g.st('ld_c0')
    next_slot(); issue()
    for c in range(2, LEAD): touch(c - 2)
    g.st('ld_c2')
    late_srds(g); attn_consts(g); consts(g)
    g.st('ld_pre')
    PRE = g.opt.get('pre', '')
    n0 = NT * max(LEAD - 2, 0)
    def pre():
        g.i(f"s_lshl_b32 s{S_T0}, s{S_TB}, 14")
        g.i(f"s_and_b32 s{S_T1}, s{S_A}, 1")
        g.i(f"s_lshl_b32 s{S_T1}, s{S_T1}, 13")
        g.i(f"s_add_u32 s{S_T0}, s{S_T0}, s{S_T1}")
        g.i(f"s_lshr_b32 s{S_T1}, s{S_A}, 1")
        g.i(f"s_lshl_b32 s{S_T1}, s{S_T1}, 17")
        g.i(f"s_add_u32 s{S_T0}, s{S_T0}, s{S_T1}")
        if PRE == 'r':
            g.i("v_lshlrev_b32 v6, 7, v0")
            g.i(f"buffer_load_dword v245, v6, s[{S_KV}:{S_KV+3}], s{S_T0} offen sc1")
            return 1
        g.i(f"s_add_u32 s{S_T1}, s{S_T0}, 4096")
        for k in range(8):
            g.i(f"buffer_store_dwordx4 v[{V_O[0]}:{V_O[0]+3}], v{V_L16}, s[{S_KV}:{S_KV+3}], s{S_T1 if k >= 4 else S_T0} offen offset:{1024*(k%4)} sc1")
        return 8
    np_ = 0
    PC = g.opt.get('prec', 1)
    for c, n in ((0, 11 + n0), (1, n0 + 11 + NT)):
        g.i(f"s_waitcnt vmcnt({n + (np_ if c == 1 else 0)})")
        if c == 0: g.st('ld_got0')
        g.i("s_barrier")
        next_slot(); issue(); touch(LEAD - 3)
        if PRE and c == PC: np_ = pre()
    if PRE and PC == 1:
        g.i(f"s_waitcnt vmcnt({11+2*NT+np_})")
        g.i("s_barrier")
        next_slot(); issue(); touch(LEAD - 3)
        g.i(f"s_mov_b32 s{S_IT}, 3")
        g.i(f"s_waitcnt vmcnt({11+2*NT+np_})")
        g.i("s_branch L_ld_loop2")
    g.i(f"s_mov_b32 s{S_IT}, 2")
    g.lab("L_ld_loop")
    g.i(f"s_waitcnt vmcnt({11+2*NT})")
    g.lab("L_ld_loop2")
    g.i("s_barrier")
    next_slot(); issue(); touch(LEAD - 3)
    g.i(f"s_add_u32 s{S_IT}, s{S_IT}, 1")
    g.i(f"s_cmp_lt_u32 s{S_IT}, 6")
    g.i("s_cbranch_scc1 L_ld_loop")
    g.st('ld_iss7')
    g.i(f"s_waitcnt vmcnt({11+2*NT})")
    g.i("s_barrier")
    g.i("s_waitcnt vmcnt(0)")
    g.i("s_barrier")
    g.i(f"s_cmp_lg_u32 s{S_WAVE}, 4")
    g.i("s_cbranch_scc1 L_ld_nocert")
    g.i(f"s_lshl_b32 s{S_T0}, s{S_BR}, 4")
    g.i(f"s_add_u32 s{S_T0}, s{S_T0}, s{S_HP}")
    g.i(f"s_lshl_b32 s{S_T0}, s{S_T0}, 3")
    g.i(f"v_mov_b32 v7, s{S_T0}")
    spin(g, "cert1", f"buffer_load_dword v{V_F}, v7, s[{S_DBG}:{S_DBG+3}], 0 offen sc1", 8)
    g.lab("L_ld_nocert")
    g.i(f"s_lshl_b32 s{S_T0}, s{S_A}, 11")
    g.i(f"s_add_u32 s{S_T0}, s{S_T0}, {L_QX}")
    g.i(f"v_add_u32 v6, s{S_T0}, v{V_L16}")
    attn_setup(g)
    g.i("s_waitcnt lgkmcnt(0)")
    g.i("s_barrier")
    g.i(f"ds_read_b128 {vr(V_Q[0],4)}, v6")
    g.i(f"ds_read_b128 {vr(V_Q[1],4)}, v6 offset:1024")
    g.i("s_branch L_attn")

class LdsQ:
    def __init__(self, g): self.g = g; self.q = []
    def issue(self, tag): self.q.append(tag)
    def need(self, tags):
        idx = max([i for i, t in enumerate(self.q) if t in tags], default=-1)
        if idx >= 0:
            n = len(self.q) - 1 - idx
            self.g.i(f"s_waitcnt lgkmcnt({min(n,15)})")
            self.q = self.q[idx + 1:]

def compute(g):
    g.lab("L_compute")
    g.i("s_waitcnt lgkmcnt(0)")
    late_srds(g)
    g.i(f"s_cmp_lg_u32 s{S_WAVE}, 0")
    g.i("s_cbranch_scc1 L_cp_noclear")
    g.i(f"s_lshl_b32 s{S_T0}, s{S_BR}, 4")
    g.i(f"s_add_u32 s{S_T0}, s{S_T0}, s{S_HP}")
    g.i(f"s_lshl_b32 s{S_T1}, s{S_T0}, 7")
    g.i(f"s_lshl_b32 s{S_T2}, s{S_TB}, 4")
    g.i(f"s_add_u32 s{S_T1}, s{S_T1}, s{S_T2}")
    g.i(f"v_lshl_add_u32 v6, v0, 2, s{S_T1}")
    g.i("v_mov_b32 v100, 0")
    g.i("s_mov_b64 exec, 0xf")
    g.i(f"buffer_store_dword v100, v6, s[{S_FL}:{S_FL+3}], 0 offen sc1")
    g.i("s_mov_b64 exec, -1")
    g.lab("L_cp_noclear")
    attn_consts(g)
    g.i("v_and_b32 v6, 31, v0")
    g.i(f"s_lshl_b32 s{S_T0}, s{S_WAVE}, 13")
    g.i(f"v_lshl_add_u32 v100, v6, 7, s{S_T0}")
    g.i("v_bfe_u32 v6, v0, 1, 3")
    g.i("v_lshrrev_b32 v7, 5, v0")
    g.i("v_xor_b32 v6, v6, v7")
    for s in range(4):
        g.i(f"v_xor_b32 v7, {2*s}, v6")
        g.i(f"v_lshl_add_u32 v{V_XA+s}, v7, 4, v100")
    g.i("v_lshrrev_b32 v6, 5, v0")
    g.i("v_bfe_u32 v7, v0, 2, 2")
    g.i("v_lshl_add_u32 v6, v6, 3, v7")
    g.i("v_mul_u32_u24 v6, 192, v6")
    g.i("v_bfe_u32 v7, v0, 4, 1")
    g.i("v_lshl_add_u32 v6, v7, 5, v6")
    g.i("v_and_b32 v7, 3, v0")
    g.i("v_lshl_add_u32 v6, v7, 3, v6")
    g.i(f"v_add_u32 v{V_WA}, {SLOT_W}, v6")
    for r in range(0, 96, 2):
        g.i(f"v_mov_b64 v[{V_ACC+r}:{V_ACC+r+1}], 0")
    S_A, S_B = 56, 57
    g.i("v_and_b32 v6, 0x33, v0")
    g.i("v_bfe_u32 v7, v0, 2, 1")
    g.i("v_lshl_or_b32 v6, v7, 3, v6")
    g.i("v_bfe_u32 v7, v0, 3, 1")
    g.i("v_lshl_or_b32 v6, v7, 2, v6")
    g.i(f"v_lshlrev_b32 v{KG}, 4, v6")
    g.i(f"s_lshl_b32 s{S_T0}, s{S_WAVE}, 12")
    g.i(f"v_add_u32 v{KL}, s{S_T0}, v{KG}")
    g.i("v_and_b32 v6, 15, v0")
    g.i("v_lshlrev_b32 v6, 4, v6")
    g.i("v_lshrrev_b32 v7, 5, v0")
    g.i("v_lshl_add_u32 v6, v7, 8, v6")
    g.i("v_add_u32 v6, 1024, v6")
    g.i("v_bfe_u32 v7, v0, 4, 1")
    g.i(f"v_lshl_add_u32 v{VG}, v7, 17, v6")
    g.i("v_lshl_add_u32 v6, v7, 14, v6")
    g.i(f"v_add_u32 v{VL}, s{S_T0}, v6")
    g.i(f"s_lshr_b32 s{S_T0}, s{S_T0}, 1")
    g.i(f"s_add_u32 s{S_T0}, s{S_T0}, {L_QX}")
    g.i(f"v_add_u32 v{QL}, s{S_T0}, v{V_L16}")
    if g.opt.get('dry', 1):
        g.i(f"s_cmp_lt_u32 s{S_WAVE}, 2")
        g.i("s_cbranch_scc1 L_dry_done")
        g.i(f"s_mov_b32 s{S_DRY}, 1")
        g.i(f"s_mov_b32 s{S_IT}, 7")
        g.i("s_mov_b64 vcc, 0")
        g.i(f"s_mov_b64 s[{S_M}:{S_M+1}], 0")
        g.i(f"s_mov_b64 s[{S_M+2}:{S_M+3}], 0")
        g.i(f"s_mov_b32 s{S_MK}, 0")
        g.i("s_waitcnt vmcnt(0) lgkmcnt(0)")
        g.i("s_setvskip -1, 0")
        g.i(f"s_cmp_eq_u32 s{S_WAVE}, 2")
        g.i("s_cbranch_scc1 L_at_done")
        g.i("s_branch L_cp_loop")
        g.lab("L_dry_ret")
        g.i("s_setvskip 0, 0")
        g.i("s_mov_b64 exec, -1")
        g.i("s_setprio 0")
        g.i(f"s_mov_b32 s{S_DRY}, 0")
        g.lab("L_dry_done")
    attn_setup(g)
    g.i(f"s_lshl_b32 s{S_T0}, s{S_WAVE}, 12")
    g.i(f"s_lshl_b32 s{S_G1}, s{S_TB}, 14")
    g.i(f"s_add_u32 s{S_G1}, s{S_G1}, s{S_T0}")
    g.i(f"s_add_u32 s{S_G2}, s{S_G1}, 131072")
    g.i(f"s_mov_b32 s{S_IT}, 0")
    g.i(f"s_mov_b32 s{S_A}, 0")
    g.i(f"s_mov_b32 s{S_B}, {SLOT}")
    q = LdsQ(g)
    def rd(setn, s, which):
        F = V_FR[setn]
        if which[0] == 'x':
            i = int(which[1])
            g.i(f"ds_read_b128 {vr(F+4*i,4)}, v{V_XA+s} offset:{4096*i}")
        else:
            p = {'q': 0, 'k': 1, 'v': 2}[which[0]]; i = int(which[1])
            g.i(f"ds_read_b64_tr_b16 {vr(F+8+4*p+2*i,2)}, v{V_WA} offset:{s*3072+i*768+p*64}")
        q.issue((setn, which))
    ORDER = ['x0', 'q0', 'q1', 'x1', 'k0', 'k1', 'v0', 'v1']
    def mf(setn, n):
        F = V_FR[setn]; p, i = n // 2, n % 2
        w, x = vr(F + 8 + 4 * p, 4), vr(F + 4 * i, 4)
        nm = 'qkv'[p]
        q.need({(setn, f'x{i}'), (setn, nm + '0'), (setn, nm + '1')})
        A, B = (w, x) if p < 2 else (x, w)
        acc = vr(V_ACC + 16 * n, 16)
        if g.opt.get('x_m16'):
            for hh in range(2):
                a4 = vr(V_ACC + 16 * n + 4 * hh, 4)
                g.i(f"v_mfma_f32_16x16x32_bf16 {a4}, {A}, {B}, {a4}")
        else:
            g.i(f"v_mfma_f32_32x32x16_bf16 {acc}, {A}, {B}, {acc}")
    def step(cur, nxt_s):
        plan = [ORDER[0:2], ORDER[2:4], ORDER[4:6], ORDER[6:8], [], []]
        for n in range(6):
            if cur is not None: mf(cur, n)
            if nxt_s is not None:
                for w in plan[n]: rd(1 - (cur if cur is not None else 1), nxt_s, w)
    g.i(f"s_cmp_lg_u32 s{S_WAVE}, 0")
    g.i("s_cbranch_scc1 L_cp_nocount")
    g.i(f"s_lshl_b32 s{S_T0}, s{S_BR}, 4")
    g.i(f"s_add_u32 s{S_T0}, s{S_T0}, s{S_HP}")
    g.i(f"s_lshl_b32 s{S_T0}, s{S_T0}, 3")
    g.i("s_mov_b64 exec, 1")
    g.i(f"v_mov_b32 v6, s{S_T0}")
    g.i("v_mov_b32 v7, 1")
    g.i(f"s_waitcnt vmcnt(0)")
    g.i(f"buffer_atomic_add v7, v6, s[{S_DBG}:{S_DBG+3}], 0 offen sc1")
    g.i("s_mov_b64 exec, -1")
    g.lab("L_cp_nocount")
    def prew():
        g.i(f"s_lshl_b32 s{S_T0}, s{S_TB}, 14")
        g.i(f"s_lshl_b32 s{S_T1}, s{S_WAVE}, 12")
        g.i(f"s_add_u32 s{S_T0}, s{S_T0}, s{S_T1}")
        g.i(f"s_add_u32 s{S_T1}, s{S_T0}, 131072")
        for k in range(8):
            g.i(f"buffer_store_dwordx4 v[{V_O[0]}:{V_O[0]+3}], v{V_L16}, s[{S_KV}:{S_KV+3}], s{S_T1 if k >= 4 else S_T0} offen offset:{1024*(k%4)} sc1")
    def prer():
        g.i("v_and_b32 v6, 31, v0")
        g.i("v_lshlrev_b32 v6, 7, v6")
        g.i("v_lshrrev_b32 v7, 5, v0")
        g.i("v_lshl_add_u32 v6, v7, 17, v6")
        g.i(f"buffer_load_dword v246, v6, s[{S_KV}:{S_KV+3}], s{S_G1} offen{g.opt.get('prefl', ' sc1')}")
    PR = g.opt.get('prer', 0)
    if PR == -1: prer()
    if g.opt.get('prew') == 1: prew()
    g.st('cp_pre')
    g.i("s_barrier")
    g.stamp(1)
    if g.opt.get('prew') == 2: prew()
    step(None, 0)
    g.lab("L_cp_loop")
    q.q = [(0, w) for w in ORDER]
    step(0, 1); step(1, 2); step(0, 3)
    g.i(f"s_add_u32 s{S_A}, s{S_A}, 1")
    g.i(f"s_cmp_eq_u32 s{S_A}, 3")
    g.i(f"s_cselect_b32 s{S_T0}, {(-2*SLOT) & 0xffffffff}, s{S_B}")
    g.i(f"s_cselect_b32 s{S_A}, 0, s{S_A}")
    g.i(f"s_add_u32 s{S_IT}, s{S_IT}, 1")
    g.i(f"s_cmp_eq_u32 s{S_IT}, 8")
    g.i("s_cbranch_scc1 L_cp_last")
    g.i("s_waitcnt lgkmcnt(0)")
    q.q = []
    g.i("s_barrier")
    for r in range(5):
        g.i(f"v_add_u32 v{V_XA+r}, s{S_T0}, v{V_XA+r}")
    PW = g.opt.get('pwd')
    if PW:
        c0, kind = PW
        if kind == 'd':
            g.i(f"s_cmp_lg_u32 s{S_IT}, {c0}")
            g.i("s_cbranch_scc1 L_cp_nopw")
            g.i("v_and_b32 v6, 31, v0")
            g.i("v_lshlrev_b32 v6, 7, v6")
            g.i("v_lshrrev_b32 v7, 5, v0")
            g.i("v_lshl_add_u32 v6, v7, 17, v6")
            g.i(f"buffer_store_dword v{V_O[0]}, v6, s[{S_KV}:{S_KV+3}], s{S_G1} offen sc1")
        elif kind == 'f':
            g.i(f"s_cmp_lg_u32 s{S_IT}, {c0}")
            g.i("s_cbranch_scc1 L_cp_nopw")
            for k in range(8):
                g.i(f"buffer_store_dwordx4 v[{V_O[0]}:{V_O[0]+3}], v{V_L16}, s[{S_KV}:{S_KV+3}], s{S_G2 if k >= 4 else S_G1} offen offset:{1024*(k%4)} sc1")
        elif kind == 's':
            g.i(f"s_sub_u32 s{S_T1}, s{S_IT}, {c0}")
            g.i(f"s_cmp_ge_u32 s{S_T1}, 4")
            g.i("s_cbranch_scc1 L_cp_nopw")
            g.i(f"s_lshl_b32 s{S_T1}, s{S_T1}, 10")
            g.i(f"s_add_u32 s{S_T2}, s{S_T1}, s{S_G2}")
            g.i(f"s_add_u32 s{S_T1}, s{S_T1}, s{S_G1}")
            for so in (S_T1, S_T2):
                g.i(f"buffer_store_dwordx4 v[{V_O[0]}:{V_O[0]+3}], v{V_L16}, s[{S_KV}:{S_KV+3}], s{so} offen sc1")
        g.lab("L_cp_nopw")
    if PR > 0:
        g.i(f"s_cmp_lg_u32 s{S_IT}, {PR}")
        g.i("s_cbranch_scc1 L_cp_nopre")
        prer()
        g.lab("L_cp_nopre")
    step(1, 0)
    g.i("s_branch L_cp_loop")
    g.lab("L_cp_last")
    q.q = [(1, w) for w in ORDER]
    step(1, None)
    g.stamp(2)
    g.i(f"s_mov_b32 s{S_T1}, {hex(QSCALE)}")
    g.i(f"s_mov_b32 s{S_T2}, s{S_T1}")
    g.i("s_nop 5")
    KVS = g.opt.get('kvs', ' sc1')
    T = 204
    n = 0
    for i in range(2):
        A = V_ACC + 16 * (2 + i)
        for hd in range(2):
            for r in range(4):
                g.i(f"v_cvt_pk_bf16_f32 v{T+4*n+r}, v{A+8*hd+2*r}, v{A+8*hd+2*r+1}")
            g.i(f"ds_write_b128 v{KL}, {vr(T+4*n,4)} offset:{16384*hd+2048*i}")
            n += 1
    for i in range(2):
        A = V_ACC + 16 * (4 + i)
        for gr in range(2):
            for r in range(4):
                g.i(f"v_cvt_pk_bf16_f32 v{T+4*n+r}, v{A+8*gr+2*r}, v{A+8*gr+2*r+1}")
            g.i(f"ds_write_b128 v{VL}, {vr(T+4*n,4)} offset:{2048*i+512*gr}")
            n += 1
    g.i(f"s_cmp_lg_u32 s{S_PG}, 0")
    g.i("s_cbranch_scc1 L_cp_later")
    for n in range(8): g.i(kv_store(n))
    g.lab("L_cp_later")
    for i in range(2):
        A = V_ACC + 16 * i
        for r in range(8, 16, 2):
            g.i(f"v_pk_mul_f32 v[{A+r}:{A+r+1}], v[{A+r}:{A+r+1}], s[{S_T0+1}:{S_T0+2}]")
        for r in range(4):
            g.i(f"v_cvt_pk_bf16_f32 v{A+8+r}, v{A+8+2*r}, v{A+8+2*r+1}")
        g.i(f"ds_write_b128 v{QL}, {vr(A+8,4)} offset:{1024*i}")
    for i in range(2):
        A = V_ACC + 16 * i
        for r in range(0, 8, 2):
            g.i(f"v_pk_mul_f32 v[{A+r}:{A+r+1}], v[{A+r}:{A+r+1}], s[{S_T0+1}:{S_T0+2}]")
        for r in range(4):
            g.i(f"v_cvt_pk_bf16_f32 v{V_Q[i]+r}, v{A+2*r}, v{A+2*r+1}")
    g.i("s_waitcnt lgkmcnt(0)")
    barrier_unless_dry(g, "b8")

U = 8
S_OA, S_OB = S_M + 6, S_M + 7
S_MK = S_M + 5
S_KV2 = S_X
S_KO = [None, 4, 5, 6, 7, 12, 13, 14]
S_LM = [[49, 50], [51, 52]]
S_OW = 1
V_OW = 250
V_VB = 4

def kv_store(n):
    if n < 4: adr, so, off = KG, (S_G2 if n % 2 else S_G1), 2048 * (n // 2)
    else: adr, so, off = VG, S_G1, 2048 * ((n - 4) // 2) + 512 * (n % 2)
    return f"buffer_store_dwordx4 {vr(KVT+4*n,4)}, v{adr}, s[{S_KV}:{S_KV+3}], s{so} offen offset:{off} sc1"

def spin_mask(g, tag, load):
    g.i(f"s_mov_b32 s{S_T3}, 0")
    g.lab(f"L_spin_{tag}")
    g.i(load)
    g.i(f"s_add_u32 s{S_T3}, s{S_T3}, 1")
    g.i("s_waitcnt vmcnt(0)")
    g.i(f"v_cmp_ne_u32 vcc, 1, v{V_F}")
    g.i(f"s_cmp_ge_u32 s{S_T3}, {SPIN_MAX}")
    g.i(f"s_cbranch_scc1 L_olr_{tag}")
    g.i(f"s_and_b32 vcc_lo, vcc_lo, s{S_MK}")
    g.i(f"s_cbranch_scc1 L_spin_{tag}")

def attn_setup(g):
    g.i(f"s_add_u32 s{S_KV2}, s{S_KV}, 131072")
    g.i(f"s_addc_u32 s{S_KV2+1}, s{S_KV+1}, 0")
    g.i(f"s_mov_b32 s{S_KV2+2}, 131072")
    g.i(f"s_mov_b32 s{S_KV2+3}, 0x20000")
    g.i(f"s_lshl_b32 s{S_LM[0][0]}, s{S_WAVE}, 11")
    g.i(f"s_add_u32 s{S_LM[0][1]}, s{S_LM[0][0]}, 16384")
    g.i(f"s_add_u32 s{S_LM[1][0]}, s{S_LM[0][0]}, {RING}")
    g.i(f"s_add_u32 s{S_LM[1][1]}, s{S_LM[0][0]}, {RING+16384}")
    for i in range(1, 8):
        g.i(f"s_cmp_gt_u32 s{S_TB}, {i-1}")
        g.i(f"s_cselect_b32 s{S_T0}, {i-1}, {i}")
        if i == 1:
            g.i(f"s_lshl_b32 s{S_T3}, s{S_T0}, 2")
            g.i(f"s_lshl_b32 s{S_MK}, 15, s{S_T3}")
        g.i(f"s_lshl_b32 s{S_T0}, s{S_T0}, 14")
        g.i(f"s_add_u32 s{S_KO[i]}, s{S_T0}, s{S_LM[0][0]}")
    g.i(f"s_lshr_b32 s{S_PG}, s{S_TB}, 1")
    g.i(f"s_min_u32 s{S_PG}, s{S_PG}, 2")
    g.i(f"s_cmp_ge_u32 s{S_WAVE}, 4")
    g.i(f"s_cselect_b32 s{S_PG}, 3, s{S_PG}")
    g.i(f"s_and_b32 s{S_F}, s{S_HP}, 7")
    g.i(f"s_lshl_b32 s{S_T0}, s{S_F}, 7")
    g.i(f"s_lshl_b32 s55, s{S_WAVE}, 16")
    g.i(f"s_add_u32 s55, s55, s{S_T0}")
    g.i(f"s_lshl_b32 s{S_E}, s{S_WAVE}, 13")
    g.i(f"s_add_u32 s{S_E}, s{S_E}, {L_WO}")
    g.i(f"s_and_b32 s{S_T0}, s{S_WAVE}, 3")
    g.i(f"s_lshl_b32 s{S_T0}, s{S_T0}, 1")
    g.i(f"s_lshl_b32 s{S_T1}, s{S_TB}, 3")
    g.i(f"s_add_u32 s{S_T0}, s{S_T0}, s{S_T1}")
    g.i(f"s_lshl_b32 s{S_OA}, s{S_T0}, 15")
    g.i(f"s_lshr_b32 s{S_T1}, s{S_WAVE}, 2")
    g.i(f"s_lshl_b32 s{S_T2}, s{S_HP}, 1")
    g.i(f"s_add_u32 s{S_T1}, s{S_T1}, s{S_T2}")
    g.i(f"s_lshl_b32 s{S_T2}, s{S_T1}, 10")
    g.i(f"s_add_u32 s{S_OA}, s{S_OA}, s{S_T2}")
    g.i(f"s_add_u32 s{S_OB}, s{S_OA}, 32768")
    if g.opt.get('opw', 2) or g.opt.get('opr'):
        g.i(f"s_lshr_b32 s{S_T0}, s{S_HP}, 3")
        g.i(f"s_lshl_b32 s{S_T0}, s{S_T0}, 2")
        g.i(f"s_and_b32 s{S_T1}, s{S_WAVE}, 3")
        g.i(f"s_add_u32 s{S_T0}, s{S_T0}, s{S_T1}")
        g.i(f"s_lshl_b32 s{S_T1}, s{S_TB}, 3")
        g.i(f"s_add_u32 s{S_T0}, s{S_T0}, s{S_T1}")
        g.i(f"s_lshl_b32 s{S_T0}, s{S_T0}, 1")
        g.i(f"s_lshr_b32 s{S_T1}, s{S_WAVE}, 2")
        g.i(f"s_add_u32 s{S_T0}, s{S_T0}, s{S_T1}")
        g.i(f"s_lshl_b32 s{S_OW}, s{S_T0}, 15")
        g.i(f"s_lshl_b32 s{S_T0}, s{S_BR}, 10")
        g.i(f"s_add_u32 s{S_OW}, s{S_OW}, s{S_T0}")
        g.i(f"s_lshl_b32 s{S_T0}, s{S_F}, 7")
        g.i(f"s_add_u32 s{S_OW}, s{S_OW}, s{S_T0}")
        g.i("v_lshrrev_b32 v7, 3, v0")
        g.i("v_lshlrev_b32 v7, 11, v7")
        g.i(f"v_and_b32 v{V_OW}, 7, v0")
        g.i(f"v_lshl_add_u32 v{V_OW}, v{V_OW}, 4, v7")

def attention(g):
    opt = g.opt
    g.lab("L_attn")
    g.stamp(3)
    g.i(f"ds_read_b128 {vr(V_K,4)}, v{V_KA}")
    g.i(f"ds_read_b128 {vr(V_V[0],4)}, v{V_VA}")
    g.i(f"ds_read_b128 {vr(V_V[0]+4,4)}, v{V_VA} offset:512")
    g.i("s_setprio 3")
    g.i("s_waitcnt lgkmcnt(2)")
    g.i(f"v_mfma_f32_32x32x16_bf16 {vr(V_S[0],16)}, {vr(V_K,4)}, {vr(V_Q[0],4)}, 0")
    dry_exit(g)
    g.i("s_nop 9")
    g.i("s_waitcnt lgkmcnt(0)")
    poll = f"buffer_load_dword v{V_F}, v{V_FA}, s[{S_FL}:{S_FL+3}], 0 offen sc1"
    side = []
    ev = {}
    def at(it, p, slot, *ins): ev.setdefault((it, p, slot), []).extend(ins)
    def kv(i, n):
        return f"buffer_load_dwordx4 v{V_L16}, {sr(S_KV2 if n >= 2 else S_KV, 4)}, s{S_KO[i]} offen offset:{1024*(n%2)}{opt.get('kvl', ' sc1')} lds"
    def check(tag, n):
        def f():
            if n is not None: g.i(f"s_waitcnt vmcnt({n})")
            g.i(f"v_cmp_ne_u32 vcc, 1, v{V_F}")
            g.i("s_nop 0")
            g.i(f"s_and_b32 vcc_lo, vcc_lo, s{S_MK}")
            g.i(f"s_cbranch_scc1 L_ol_{tag}")
            g.lab(f"L_olr_{tag}")
            side.append((tag, lambda: spin_mask(g, tag, poll)))
        return f
    def group(pg, tag, body):
        def f():
            g.i(f"s_cmp_lg_u32 s{S_PG}, {pg}")
            g.i(f"s_cbranch_scc1 L_pg_{tag}")
            body()
            g.lab(f"L_pg_{tag}")
        return f
    def flag():
        g.i(f"s_lshl_b32 s{S_T0}, s{S_TB}, 2")
        g.i(f"s_add_u32 s{S_T0}, s{S_T0}, s{S_WAVE}")
        g.i(f"s_lshl_b64 exec, 1, s{S_T0}")
        g.i("v_mov_b32 v6, 1")
        g.i(f"buffer_store_dword v6, v{V_FA}, s[{S_FL}:{S_FL+3}], 0 offen sc1")
        g.i("s_mov_b64 exec, -1")
    def stores(it, p0, pg):
        for k, (a_, b_) in enumerate(((0, 3), (3, 6), (6, 8))):
            at(it, p0 + k, 'p1', group(pg, f"s{pg}{k}", lambda a_=a_, b_=b_: [g.i(kv_store(n)) for n in range(a_, b_)]))
    def burst(i):
        sl = i % 2
        return [f"s_mov_b32 m0, s{S_LM[sl][0]}", "s_nop 0", kv(i, 0), kv(i, 1), f"s_mov_b32 m0, s{S_LM[sl][1]}", "s_nop 0", kv(i, 2), kv(i, 3)]
    def count():
        g.i(f"s_cmp_lg_u32 s{S_WAVE}, 7")
        g.i("s_cbranch_scc1 L_at_nocnt")
        g.i(f"s_lshl_b32 s{S_T0}, s{S_BR}, 4")
        g.i(f"s_add_u32 s{S_T0}, s{S_T0}, s{S_HP}")
        g.i(f"s_lshl_b32 s{S_T0}, s{S_T0}, 3")
        g.i("s_mov_b64 exec, 1")
        g.i(f"v_mov_b32 v6, s{S_T0}")
        g.i("v_mov_b32 v7, 1")
        g.i(f"buffer_atomic_add v7, v6, s[{S_DBG}:{S_DBG+3}], 0 offen offset:4 sc1")
        g.i("s_mov_b64 exec, -1")
        g.lab("L_at_nocnt")
    pp, pi0, pc0, ps1, pi1, pc1, pi3, pc3 = opt.get('ev', (1, 8, 10, 3, 7, 9, 7, 9))
    at(0, pp, 'qk', group(0, "f0", lambda: (g.st('pub_pre'), g.i("s_waitcnt vmcnt(0)"), g.st('pub_ack'), flag())))
    stores(0, ps1, 1)
    at(0, pi0, 'qk', poll)
    at(0, pc0, 'qk', "s_waitcnt vmcnt(0)", group(1, "f1", flag), check("kv0", None), lambda: g.st('chk_ok'), *burst(1),
       f"s_mov_b32 s{S_MK}, 0xffff")
    at(1, pi1, 'qk', poll)
    at(1, pc1, 'qk', check("kv1", 0), *burst(2), f"s_mov_b32 s{S_MK}, -1")
    stores(1, pc1 + 1, 2)
    at(2, 15, 'qk', group(2, "f2", flag))
    at(3, pi3, 'qk', poll)
    at(3, pc3, 'p2', check("kv2", 0), *burst(4))
    late = {i: 0 for i in range(8)}
    dp = opt.get('dma', (1, 3, 5, 7))
    for i in (2, 4, 5, 6):
        sl = (i + 1) % 2
        at(i, dp[0] - 1, 'p2x', f"s_mov_b32 m0, s{S_LM[sl][0]}")
        at(i, dp[0], 'qk', kv(i + 1, 0))
        at(i, dp[1], 'qk', kv(i + 1, 1))
        at(i, dp[2], 'p2', f"s_mov_b32 m0, s{S_LM[sl][1]}")
        at(i, dp[2], 'qk', kv(i + 1, 2))
        at(i, dp[3], 'qk', kv(i + 1, 3))
    wp = opt.get('wop', (11, 13))
    for i in range(1, 5):
        for k, p in enumerate(wp):
            at(i, p, 'p2', f"s_add_u32 m0, s{S_E}, {(2*(i-1)+k)*1024}")
            at(i, p, 'qk', f"buffer_load_dwordx4 v{V_WOA}, s[{S_WO}:{S_WO+3}], s55 offen lds")
            at(i, p, 'p1', "s_add_u32 s55, s55, 8192")
        late[i] += 2
    for k, so in enumerate((S_OA, S_OB)):
        at(5, 9 + 2 * k, 'qk', f"buffer_store_dwordx4 v[252:255], v{V_L16}, s[{S_O}:{S_O+3}], s{so} offen sc1")
    late[5] += 2
    if opt.get('opw', 2):
        i = opt.get('opw', 2)
        at(i, 12, 'p1', f"buffer_store_dwordx4 v[252:255], v{V_OW}, s[{S_OUT}:{S_OUT+3}], s{S_OW} offen sc1", f"s_add_u32 s{S_T0}, s{S_OW}, 16384")
        at(i, 13, 'p1', f"buffer_store_dwordx4 v[252:255], v{V_OW}, s[{S_OUT}:{S_OUT+3}], s{S_T0} offen sc1")
        late[i] += 2
    if opt.get('opr'):
        at(7, 3, 'qk', f"buffer_load_dwordx4 v[236:239], v{V_OW}, s[{S_OUT}:{S_OUT+3}], s{S_OW} offen", f"s_add_u32 s{S_T0}, s{S_OW}, 16384")
        at(7, 5, 'qk', f"buffer_load_dwordx4 v[236:239], v{V_OW}, s[{S_OUT}:{S_OUT+3}], s{S_T0} offen")
    at(7, 1, 'qk', count)
    if opt.get('x_late0'): late = {i: 0 for i in range(8)}
    prio = opt.get('prio', {0: 3, 5: 2, 10: 1, 13: 0})
    for i in range(8):
        for p, v in prio.items():
            ii, q = (i, p - 1) if p else (i - 1, 15)
            if ii >= 0: at(ii, q, 'p1', f"s_setprio {v}")
    def emit(it, p, slot):
        for x in ev.pop((it, p, slot), []):
            x() if callable(x) else g.i(x)
    p2, pq, p1 = opt.get('pos', (1, 5, 10))
    for it in range(8):
        if opt.get('itst'):
            g.i("s_memtime s[98:99]")
            g.i("s_memrealtime s[100:101]")
            g.i("s_waitcnt lgkmcnt(0)")
            g.i(f"v_writelane_b32 v250, s98, {it}")
            g.i(f"v_writelane_b32 v250, s100, {it+9}") if it < 7 else None
        for p in range(2 * U):
            b, t = p % 2, p // 2
            S, So = V_S[b], V_S[1 - b]
            nt = (t + 1) % U
            sl = (it + (t == U - 1)) % 2
            VA = V_VB if sl else V_VA
            last = it == 7 and t == U - 1
            for e in range(16):
                g.i(f"v_exp_f32 v{S+e}, v{S+e}")
                if e == p2:
                    tp = (p - 1) // 2
                    if it or p:
                        g.i(f"v_smfmac_f32_32x32x32_bf16 {vr(V_O[1-b],16)}, {vr(V_V[tp%2]+4,4)}, {vr(So+8,8)}, v{V_IDX}")
                    emit(it, p, 'p2x')
                    if b == 0:
                        if t == U - 1 and it < 7:
                            if it == 1:
                                g.i(f"s_waitcnt vmcnt({late[it] + 8})")
                                g.i(f"s_cmp_eq_u32 s{S_PG}, 2")
                                g.i("s_cbranch_scc1 L_w8")
                                g.i(f"s_waitcnt vmcnt({late[it]})")
                                g.lab("L_w8")
                            else: g.i(f"s_waitcnt vmcnt({late[it]})")
                            if it == 0: g.st('chk1_ok')
                            g.i("s_barrier")
                        if not last: g.i(f"ds_read_b128 {vr(V_V[(t+1)%2],4)}, v{VA} offset:{nt*2048}")
                    elif not last:
                        g.i("s_waitcnt lgkmcnt(1)")
                    emit(it, p, 'p2')
                if e == pq:
                    if not (last and b):
                        g.i(f"v_mfma_f32_32x32x16_bf16 {vr(So,16)}, {vr(V_K,4)}, {vr(V_Q[1-b],4)}, 0")
                    if b == 0 and not last:
                        g.i(f"ds_read_b128 {vr(V_K,4)}, v{V_KA} offset:{sl*RING+nt*2048}")
                    emit(it, p, 'qk')
                if e == p1:
                    g.i(f"v_smfmac_f32_32x32x32_bf16 {vr(V_O[b],16)}, {vr(V_V[t%2],4)}, {vr(S,8)}, v{V_IDX}")
                    if b == 0 and not last:
                        g.i(f"ds_read_b128 {vr(V_V[(t+1)%2]+4,4)}, v{VA} offset:{nt*2048+512}")
                    elif not last:
                        g.i("s_waitcnt lgkmcnt(0)")
                    emit(it, p, 'p1')
    assert not ev, ev
    g.side = side
    g.lab("L_at_done")
    g.i("s_nop 1")
    g.i(f"v_smfmac_f32_32x32x32_bf16 {vr(V_O[1],16)}, {vr(V_V[1]+4,4)}, {vr(V_S[1]+8,8)}, v{V_IDX}")
    g.stamp(4)
    if opt.get('itst'):
        g.i("s_memtime s[98:99]")
        g.i("s_waitcnt lgkmcnt(0)")
        g.i(f"v_writelane_b32 v250, s98, 8")
    g.i(f"s_mov_b32 s{S_T0}, 0x2b800000")
    g.i(f"s_mov_b32 s{S_T1}, 0x53800000")
    g.i(f"s_mov_b32 s{S_T2}, 0x7f800000")
    for q in range(2):
        O = V_O[q]
        g.i(f"v_add_f32 v6, abs(v{O}), abs(v{O+1})")
        g.i(f"v_add_f32 v7, abs(v{O+2}), abs(v{O+3})")
        for r in range(4, 8, 2):
            g.i(f"v_add_f32 v6, v6, abs(v{O+r})")
            g.i(f"v_add_f32 v7, v7, abs(v{O+r+1})")
        g.i(f"v_add_f32 v6, v6, v7")
        g.i(f"v_cmp_nle_f32 s[{S_M}:{S_M+1}], s{S_T0}, v{O+8}")
        g.i(f"v_cmp_nge_f32 s[{S_M+2}:{S_M+3}], s{S_T1}, v{O+8}")
        g.i(f"v_cmp_ngt_f32 vcc, s{S_T2}, v6")
        g.i(f"v_rcp_f32 v{V_S[0]+q}, v{O+8}")
        g.i(f"s_or_b64 s[{S_M}:{S_M+1}], s[{S_M}:{S_M+1}], s[{S_M+2}:{S_M+3}]")
        g.i(f"s_or_b64 s[{S_M}:{S_M+1}], s[{S_M}:{S_M+1}], vcc")
        g.i("s_branch L_fallback" if opt.get('force_fallback') else "s_cbranch_scc1 L_fallback")
    g.lab("L_at_store")
    for q in range(2):
        O = V_O[q]
        for r in range(8):
            g.i(f"v_mul_f32 v{O+r}, v{O+r}, v{V_S[0]+q}")
        for r in range(4):
            g.i(f"v_cvt_pk_bf16_f32 v{O+r}, v{O+2*r}, v{O+2*r+1}")
        g.i(f"buffer_store_dwordx4 {vr(O,4)}, v{V_L16}, s[{S_O}:{S_O+3}], s{S_OB if q else S_OA} offen sc1")

P_WO = 100
P_OF = 8
def outproj(g):
    opt = g.opt
    A0, A1 = 228, 72
    WA0, WA1, RA, OA = 244, 245, 246, 247
    g.i(f"s_lshr_b32 s{S_E}, s{S_WAVE}, 2")
    g.i(f"s_lshl_b32 s{S_T0}, s{S_E}, 15")
    g.i(f"s_add_u32 s{S_T0}, s{S_T0}, {L_WO}")
    g.i("v_lshrrev_b32 v6, 5, v0")
    g.i("v_bfe_u32 v7, v0, 2, 2")
    g.i("v_lshl_add_u32 v6, v6, 2, v7")
    g.i(f"v_lshl_add_u32 v6, v6, 7, s{S_T0}")
    g.i("v_bfe_u32 v7, v0, 3, 2")
    g.i("v_and_b32 v2, 1, v7")
    g.i("v_lshl_add_u32 v6, v2, 6, v6")
    g.i("v_lshrrev_b32 v7, 1, v7")
    g.i("v_lshl_add_u32 v6, v7, 5, v6")
    g.i("v_and_b32 v7, 3, v0")
    g.i(f"v_lshl_add_u32 v6, v7, 3, v6")
    g.i(f"s_lshl_b32 s{S_T0}, s{S_E}, 6")
    g.i(f"v_xor_b32 v{WA0}, s{S_T0}, v6")
    g.i(f"v_xor_b32 v{WA1}, 64, v{WA0}")
    n = 0
    def wo_reads(s0, s1):
        for s in range(s0, s1):
            for f in range(2):
                for i in range(2):
                    g.i(f"ds_read_b64_tr_b16 {vr(P_WO+8*s+4*f+2*i,2)}, v{WA1 if f else WA0} offset:{s*2048+i*1024}")
    g.stamp(5)
    g.i(f"s_lshl_b32 s{S_T0}, s{S_BR}, 7")
    g.i("v_and_b32 v6, 15, v0")
    g.i(f"v_lshl_add_u32 v4, v6, 3, s{S_T0}")
    g.i(f"buffer_load_dword v5, v4, s[{S_DBG}:{S_DBG+3}], 0 offen offset:4 sc1")
    for s0 in range(0, 16, 3):
        if s0: g.i("s_waitcnt lgkmcnt(2)")
        wo_reads(s0, min(s0 + 3, 16))
    g.i(f"s_lshr_b32 s{S_T0}, s{S_HP}, 3")
    g.i(f"s_lshl_b32 s{S_T0}, s{S_T0}, 2")
    g.i(f"s_and_b32 s{S_T1}, s{S_WAVE}, 3")
    g.i(f"s_add_u32 s{S_A}, s{S_T0}, s{S_T1}")
    g.i(f"s_lshl_b32 s{S_T0}, s{S_TB}, 3")
    g.i(f"s_add_u32 s{S_A}, s{S_A}, s{S_T0}")
    g.i(f"s_lshl_b32 s{S_B}, s{S_A}, 15")
    g.i(f"s_lshl_b32 s{S_T0}, s{S_E}, 14")
    g.i(f"s_add_u32 s{S_B}, s{S_B}, s{S_T0}")
    g.i(f"s_add_u32 s{S_C}, s{S_B}, 4096")
    g.i(f"s_add_u32 s{S_D}, s{S_B}, 8192")
    g.i(f"s_add_u32 s{S_IT}, s{S_B}, 12288")
    g.i(f"v_lshlrev_b32 v2, 10, v6")
    g.i(f"v_add_u32 v2, 1020, v2")
    g.i(f"s_lshl_b32 s{S_T0}, s{S_WAVE}, 12")
    g.i(f"v_add_u32 v{RA}, s{S_T0}, v{V_L16}")
    g.i("v_and_b32 v6, 31, v0")
    g.i("v_lshlrev_b32 v6, 11, v6")
    g.i("v_lshrrev_b32 v7, 5, v0")
    g.i(f"v_lshl_add_u32 v{OA}, v7, 4, v6")
    g.i(f"s_lshl_b32 s{S_A}, s{S_A}, 16")
    g.i(f"s_lshl_b32 s{S_T0}, s{S_BR}, 10")
    g.i(f"s_add_u32 s{S_A}, s{S_A}, s{S_T0}")
    g.i(f"s_lshl_b32 s{S_T0}, s{S_F}, 7")
    g.i(f"s_add_u32 s{S_A}, s{S_A}, s{S_T0}")
    g.i(f"s_lshl_b32 s{S_T0}, s{S_E}, 6")
    g.i(f"s_add_u32 s{S_A}, s{S_A}, s{S_T0}")
    g.i(f"s_mov_b32 s{S_T3}, 0")
    g.lab("L_spin_c")
    g.i("s_waitcnt vmcnt(0)")
    g.i("v_cmp_gt_u32 vcc, 8, v5")
    g.i(f"s_add_u32 s{S_T3}, s{S_T3}, 1")
    g.i("s_cbranch_vccz L_spin_o")
    g.i(f"buffer_load_dword v5, v4, s[{S_DBG}:{S_DBG+3}], 0 offen offset:4 sc1")
    g.i(f"s_cmp_lt_u32 s{S_T3}, {SPIN_MAX}")
    g.i("s_cbranch_scc1 L_spin_c")
    g.lab("L_spin_o")
    if opt.get('probe', 1):
        g.i("s_mov_b64 exec, 0xffff")
        g.i(f"buffer_load_dword v3, v2, s[{S_O}:{S_O+3}], s{S_B} offen sc1")
        g.i(f"s_add_u32 s{S_T3}, s{S_T3}, 1")
        g.i("s_waitcnt vmcnt(0)")
        g.i("v_cmp_eq_u32 vcc, -1, v3")
        g.i("s_mov_b64 exec, -1")
        g.i(f"s_cmp_ge_u32 s{S_T3}, {SPIN_MAX}")
        g.i("s_cbranch_scc1 L_spun_o")
        if opt.get('sleep'): g.i(f"s_sleep {opt['sleep']}")
        g.i("s_cbranch_vccnz L_spin_o")
    else:
        g.i(f"s_add_u32 s{S_T3}, s{S_T3}, 1")
    g.lab("L_spun_o")
    g.stamp(6)
    for s in range(16):
        so = (S_B, S_C, S_D, S_IT)[s // 4]
        g.i(f"buffer_load_dwordx4 {vr(P_OF+4*s,4)}, v{V_L16}, s[{S_O}:{S_O+3}], s{so} offen offset:{1024*(s%4)} sc1")
    g.i("v_mov_b32 v3, 0")
    g.i("s_waitcnt lgkmcnt(0)")
    for s in range(16):
        g.i(f"s_waitcnt vmcnt({15-s})")
        for f, A in ((1, A1), (0, A0)):
            g.i(f"v_mfma_f32_32x32x16_bf16 {vr(A,16)}, {vr(P_WO+8*s+4*f,4)}, {vr(P_OF+4*s,4)}, {vr(A,16) if s else 0}")
            g.i(f"v_max3_u32 v3, v3, v{P_OF+4*s+2*f}, v{P_OF+4*s+2*f+1}")
    g.i("v_cmp_eq_u32 vcc, -1, v3")
    g.i(f"s_cmp_ge_u32 s{S_T3}, {SPIN_MAX}")
    g.i("s_cbranch_scc1 L_op_go")
    g.i("s_cbranch_vccnz L_spin_o")
    g.lab("L_op_go")
    g.i("s_nop 5")
    for r in range(4):
        g.i(f"ds_write_b128 v{RA}, {vr(A1+4*r,4)} offset:{1024*r}")
    g.i("s_waitcnt lgkmcnt(0)")
    g.i(f"v_xor_b32 v{RA}, 16384, v{RA}")
    if opt.get('fl'):
        g.i(f"s_and_b32 s{S_T0}, s{S_WAVE}, 3")
        g.i(f"s_lshl_b32 s{S_T0}, s{S_T0}, 12")
        g.i(f"s_add_u32 s{S_T0}, s{S_T0}, {RING}")
        g.i("v_and_b32 v6, 31, v0")
        g.i(f"v_lshl_add_u32 v6, v6, 7, s{S_T0}")
        g.i("v_lshrrev_b32 v7, 5, v0")
        g.i(f"v_lshl_add_u32 v7, s{S_E}, 2, v7")
        g.i("v_and_b32 v43, 7, v0")
        g.i("v_xor_b32 v7, v7, v43")
        g.i("v_lshl_add_u32 v40, v7, 4, v6")
        g.i("v_xor_b32 v41, 32, v40")
        g.i("v_lshrrev_b32 v6, 3, v0")
        g.i("v_xor_b32 v7, v6, v43")
        g.i(f"v_lshl_add_u32 v6, v6, 7, s{S_T0}")
        g.i("v_lshl_add_u32 v6, v7, 4, v6")
        g.i(f"v_lshl_add_u32 v42, s{S_E}, 11, v6")
    barrier_unless_dry(g, "b9")
    for r in range(4):
        g.i(f"ds_read_b128 {vr(P_OF+4*r,4)}, v{RA} offset:{1024*r}")
    for r in range(4):
        g.i(f"s_waitcnt lgkmcnt({3-r})")
        for k in range(4):
            g.i(f"v_add_f32 v{A0+4*r+k}, v{A0+4*r+k}, v{P_OF+4*r+k}")
        for k in range(2):
            g.i(f"v_cvt_pk_bf16_f32 v{24+2*r+k}, v{A0+4*r+2*k}, v{A0+4*r+2*k+1}")
        if r % 2:
            g.i("s_nop 1")
            g.i(f"v_permlane32_swap_b32 v{24+2*r-2}, v{24+2*r}")
            g.i(f"v_permlane32_swap_b32 v{24+2*r-1}, v{24+2*r+1}")
            if opt.get('fl'):
                g.i(f"ds_write_b128 v{40+r//2}, {vr(24+2*r-2,4)}")
            else:
                g.i(f"buffer_store_dwordx4 {vr(24+2*r-2,4)}, v{OA}, s[{S_OUT}:{S_OUT+3}], s{S_A} offen offset:{16*(r-1)}{opt.get('outs','')}")
    if opt.get('fl'):
        g.i(f"s_add_u32 s{S_T0}, s{S_OW}, 16384")
        g.i("s_waitcnt lgkmcnt(0)")
        barrier_unless_dry(g, "b10")
        g.i("ds_read_b128 v[24:27], v42")
        g.i("ds_read_b128 v[28:31], v42 offset:1024")
        g.i("s_waitcnt lgkmcnt(1)")
        g.i(f"buffer_store_dwordx4 v[24:27], v{V_OW}, s[{S_OUT}:{S_OUT+3}], s{S_OW} offen{opt.get('outs','')}")
        g.i("s_waitcnt lgkmcnt(0)")
        g.i(f"buffer_store_dwordx4 v[28:31], v{V_OW}, s[{S_OUT}:{S_OUT+3}], s{S_T0} offen{opt.get('outs','')}")
    dry_exit(g)
    if g.diag:
        g.i("s_waitcnt vmcnt(0)")
        g.stamp(7)
        g.i("s_waitcnt lgkmcnt(0)")
        if g.diag == 3:
            a_, b_, K = opt['leak']
            if a_ in (1, 2) or b_ in (1, 2):
                g.i(f"s_cmp_ge_u32 s{S_WAVE}, 4")
                g.i("s_cbranch_scc1 L_end")
            if opt.get('leakc'):
                g.i(f"s_sub_u32 s{S_T0}, s{64+4*b_}, s{64+4*a_}")
                g.i(f"s_lshr_b32 s{S_T0}, s{S_T0}, 4")
            else:
                g.i(f"s_sub_u32 s{S_T0}, s{66+4*b_}, s{66+4*a_}")
            g.i(f"s_mul_i32 s{S_T0}, s{S_T0}, {K}")
            g.lab("L_leak")
            g.i("s_memrealtime s[98:99]")
            g.i("s_waitcnt lgkmcnt(0)")
            g.i(f"s_sub_u32 s{S_T1}, s98, s{66+4*7}")
            g.i(f"s_cmp_lt_u32 s{S_T1}, s{S_T0}")
            g.i("s_cbranch_scc1 L_leak")
            g.i("s_endpgm")
        if g.diag == 2:
            g.i(f"s_cmp_ge_u32 s{S_WAVE}, 4")
            g.i("s_cbranch_scc1 L_end")
            g.i("s_mov_b64 exec, 1")
            for k in range(1, 8):
                g.i(f"s_sub_u32 s{S_T0}, s{66+4*k}, s66")
                g.i(f"v_mov_b32 v6, s{S_T0}")
                g.i(f"v_mov_b32 v7, {8*k+4}")
                g.i(f"buffer_atomic_umax v6, v7, s[{S_DBG}:{S_DBG+3}], 0 offen sc1")
            g.i(f"s_sub_u32 s{S_T0}, s{64+4*4}, s{64+4*3}")
            g.i(f"v_mov_b32 v6, s{S_T0}")
            g.i(f"v_mov_b32 v7, 4")
            g.i(f"buffer_atomic_umax v6, v7, s[{S_DBG}:{S_DBG+3}], 0 offen sc1")
            g.i("s_endpgm")
        g.i(f"s_lshl_b32 s{S_T0}, s2, 3")
        g.i(f"s_add_u32 s{S_T0}, s{S_T0}, s{S_WAVE}")
        g.i(f"s_lshl_b32 s{S_T0}, s{S_T0}, 7")
        g.i(f"s_add_u32 s{S_T0}, s{S_T0}, {WS_STAMP}")
        srd(g.a, S_X, 96, 128, f"s{S_T0}")
        for k in range(32):
            g.i(f"v_mov_b32 v{36+k}, s{64+k}")
        g.i("v_mov_b32 v6, 0")
        for k in range(8):
            g.i(f"buffer_store_dwordx4 {vr(36+4*k,4)}, v6, s[{S_X}:{S_X+3}], 0 offen offset:{16*k}")
        if opt.get('itst'):
            g.i(f"s_add_u32 s{S_T0}, s{S_T0}, {1<<20}")
            srd(g.a, S_X, 96, 64, f"s{S_T0}")
            g.i("v_lshlrev_b32 v6, 2, v0")
            g.i(f"buffer_store_dword v250, v6, s[{S_X}:{S_X+3}], 0 offen")
    g.lab("L_end")
    g.i("s_endpgm")

def fallback(g):
    C = [100, 116]; M = [132, 133]; GV = 134
    g.lab("L_fallback")
    g.i(f"s_lshr_b32 s{S_T0}, s{S_WAVE}, 2")
    g.i(f"s_lshl_b32 s{S_T0}, s{S_T0}, 17")
    g.i(f"v_mov_b32 v{M[0]}, 0xff800000")
    g.i(f"v_mov_b32 v{M[1]}, 0xff800000")
    g.i(f"s_mov_b32 s{S_T1}, s{S_T0}")
    g.i(f"s_add_u32 s{S_T2}, s{S_T0}, 131072")
    g.lab("L_fb_max")
    g.i(f"buffer_load_dwordx4 {vr(V_K,4)}, v{V_L16}, s[{S_KV}:{S_KV+3}], s{S_T1} offen sc1")
    g.i(f"s_add_u32 s{S_T1}, s{S_T1}, 2048")
    g.i("s_waitcnt vmcnt(0)")
    for q in range(2):
        g.i(f"v_mfma_f32_32x32x16_bf16 {vr(V_S[q],16)}, {vr(V_K,4)}, {vr(V_Q[q],4)}, 0")
    g.i("s_nop 15")
    for q in range(2):
        for r in range(0, 16, 2):
            g.i(f"v_max3_f32 v{M[q]}, v{M[q]}, v{V_S[q]+r}, v{V_S[q]+r+1}")
    g.i(f"s_cmp_lt_u32 s{S_T1}, s{S_T2}")
    g.i("s_cbranch_scc1 L_fb_max")
    for q in range(2):
        g.i(f"v_mov_b32 v6, v{M[q]}")
        g.i(f"v_mov_b32 v7, v{M[q]}")
        g.i("s_nop 1")
        g.i("v_permlane32_swap_b32 v6, v7")
        g.i("s_nop 1")
        g.i("v_max_f32 v6, v6, v7")
        for r in range(16):
            g.i(f"v_sub_f32 v{C[q]+r}, 0, v6")
            g.i(f"v_mov_b32 v{V_O[q]+r}, 0")
    g.i("v_and_b32 v6, 15, v0")
    g.i("v_lshlrev_b32 v6, 4, v6")
    g.i("v_lshrrev_b32 v7, 5, v0")
    g.i(f"v_lshl_add_u32 v{GV}, v7, 8, v6")
    for r in range(8):
        g.i(f"v_mov_b32 v{V_V[0]+r}, 0x3f803f80")
    g.i(f"s_mov_b32 s{S_T1}, s{S_T0}")
    g.i(f"s_mov_b32 s{S_M}, 0xffff")
    g.i(f"s_mov_b32 s{S_M+1}, 0xffff")
    g.lab("L_fb_pv")
    g.i(f"buffer_load_dwordx4 {vr(V_K,4)}, v{V_L16}, s[{S_KV}:{S_KV+3}], s{S_T1} offen sc1")
    g.i(f"s_mov_b64 exec, s[{S_M}:{S_M+1}]")
    g.i(f"buffer_load_dwordx4 {vr(V_V[0],4)}, v{GV}, s[{S_KV}:{S_KV+3}], s{S_T1} offen offset:1024 sc1")
    g.i(f"buffer_load_dwordx4 {vr(V_V[0]+4,4)}, v{GV}, s[{S_KV}:{S_KV+3}], s{S_T1} offen offset:1536 sc1")
    g.i("s_mov_b64 exec, -1")
    g.i(f"s_add_u32 s{S_T1}, s{S_T1}, 2048")
    g.i("s_waitcnt vmcnt(0)")
    for q in range(2):
        g.i(f"v_mfma_f32_32x32x16_bf16 {vr(V_S[q],16)}, {vr(V_K,4)}, {vr(V_Q[q],4)}, {vr(C[q],16)}")
    g.i("s_nop 15")
    for q in range(2):
        for r in range(16):
            g.i(f"v_exp_f32 v{V_S[q]+r}, v{V_S[q]+r}")
    g.i("s_nop 3")
    for q in range(2):
        for h in range(2):
            g.i(f"v_smfmac_f32_32x32x32_bf16 {vr(V_O[q],16)}, {vr(V_V[0]+4*h,4)}, {vr(V_S[q]+8*h,8)}, v{V_IDX}")
    g.i("s_nop 15")
    g.i(f"s_cmp_lt_u32 s{S_T1}, s{S_T2}")
    g.i("s_cbranch_scc1 L_fb_pv")
    for q in range(2):
        g.i(f"v_rcp_f32 v{V_S[0]+q}, v{V_O[q]+8}")
    g.i("s_nop 1")
    g.i("s_branch L_at_store")

HEADER = open('cdna_kernels/' + NAME + '.s.ref').read().split('; Override launch')[0]

def generate(opt={}):
    global WS_KV, WS_O, WS_FLAG
    off = opt.get('wsoff', 0) << 20
    WS_KV, WS_O, WS_FLAG = (4 << 20) + off, (12 << 20) + off, (16 << 20) + off
    g = G(opt)
    name = NAME + "_kernel"
    g.a(HEADER.rstrip())
    g.a(f"; @launch grid=(256,1,1) block=(512,1,1) lds={LDS_TOTAL}")
    g.a('.amdgcn_target "amdgcn-amd-amdhsa--gfx950"')
    entry(g, name)
    if opt.get('lfirst', 1): loader(g)
    compute(g)
    attention(g)
    outproj(g)
    if not opt.get('lfirst', 1): loader(g)
    g.lab("L_code_end")
    for tag, body in g.side:
        g.lab(f"L_ol_{tag}")
        body()
        g.i(f"s_branch L_olr_{tag}")
    fallback(g)
    kernel_desc(g.a, name, NVGPR, 256, 102)
    return g.a.text()

if __name__ == "__main__":
    import sys
    opt = eval(sys.argv[2]) if len(sys.argv) > 2 else {}
    open(sys.argv[1], 'w').write(generate(opt))
```

```python
import math, struct
from common import *

WS_FLAG = 16 << 20
SLOT = 45056; SLOT_W = 32768
RING = 32768
L_WO = 65536
L_CONST = 135168
L_QX = 155648
LDS_TOTAL = 163840
S_X, S_W, S_WO, S_KV, S_O, S_FL, S_DBG, S_OUT = 8, 12, 16, 20, 24, 28, 32, 36
S_WAVE, S_BR, S_HP, S_TB, S_IT, S_T0, S_T1, S_T2, S_T3 = 40, 41, 42, 43, 44, 45, 46, 47, 48
S_A, S_B, S_C, S_D, S_E, S_F = 49, 50, 51, 52, 53, 54
S_G1, S_G2, S_PG = 58, 59, 60
KG, KL, VG, VL, QL, KVT = 244, 245, 247, 248, 249, 204
S_M = 56
V_L16, V_KA, V_VA, V_VX, V_IDX, V_T0, V_T1 = 1, 2, 3, 4, 5, 6, 7
V_Q = [8, 12]; V_K = 16; V_V = [20, 28]; V_S = [36, 52]; V_O = [68, 84]
V_F = 241
V_FA = 242
V_OW = 251
V_WOA = 243
V_ACC = 100
V_FR = [196, 216]
V_XA = 236; V_WA = 240
NVGPR = 256
QSCALE = struct.unpack('<I', struct.pack('<f', 0.25 * math.log2(math.e)))[0]
SPIN_MAX = 1 << 20
S_DRY = 3

class G:
    def __init__(self, opt):
        self.a = Asm(); self.opt = opt; self.diag = opt.get('diag', 0)
    def i(self, s): self.a.i(s)
    def lab(self, s): self.a.label(s)
    def st(self, name):
        m = self.opt.get('st', {})
        if name in m: self.stamp(m[name], True)
    def stamp(self, k, forced=False):
        if k in self.opt.get('st', {}).values() and not forced: return
        if self.diag:
            self.i(f"s_memtime s[{64+4*k}:{65+4*k}]")
            self.i(f"s_memrealtime s[{66+4*k}:{67+4*k}]")

def dry_exit(g, label="L_dry_ret"):
    if g.opt.get('dry', 1):
        g.i(f"s_cmp_lg_u32 s{S_DRY}, 0")
        g.i(f"s_cbranch_scc1 {label}")

def barrier_unless_dry(g, tag):
    dry_exit(g, f"L_nb_{tag}")
    g.i("s_barrier")
    g.lab(f"L_nb_{tag}")

def spin(g, tag, load, want, nlanes_mask=None):
    g.i(f"s_mov_b32 s{S_T3}, 0")
    g.lab(f"L_spin_{tag}")
    g.i(load)
    g.i(f"s_add_u32 s{S_T3}, s{S_T3}, 1")
    g.i("s_waitcnt vmcnt(0)")
    g.i(f"v_cmp_{'gt' if want > 1 else 'ne'}_u32 vcc, {want}, v{V_F}")
    g.i(f"s_cmp_ge_u32 s{S_T3}, {SPIN_MAX}")
    g.i(f"s_cbranch_scc1 L_spun_{tag}")
    g.i(f"s_cbranch_vccnz L_spin_{tag}")
    g.lab(f"L_spun_{tag}")

def entry(g, name):
    a = g.a
    kernel_head(a, name)
    PF = g.opt.get('cpf', 1)
    if PF:
        g.i("s_getpc_b64 s[8:9]")
        g.i("v_lshlrev_b32 v6, 7, v0")
        g.i("s_mov_b32 s10, L_code_end-" + name + "-4")
        g.i("s_mov_b32 s11, 0x20000")
    g.i("s_cmp_ge_u32 s2, 256")
    g.i("s_cbranch_scc1 L_end")
    if PF:
        g.i("buffer_load_dword v246, v6, s[8:11], 0 offen")
    g.stamp(0)
    g.i(f"s_mov_b32 s{S_DRY}, 0")
    g.i(f"s_bfe_u32 s{S_BR}, s2, 0x10002")
    g.i(f"s_mul_i32 s{S_T0}, s{S_BR}, 24")
    g.i(f"s_load_dwordx4 s[{S_M}:{S_M+3}], s[0:1], s{S_T0}")
    g.i(f"s_load_dwordx2 s[{S_M+4}:{S_M+5}], s[0:1], s{S_T0} offset:16")
    g.i("s_load_dwordx4 s[4:7], s[0:1], 48")
    g.i(f"s_load_dwordx2 s[{S_M+6}:{S_M+7}], s[0:1], 64")
    g.i("v_lshrrev_b32 v6, 6, v0")
    g.i("v_and_b32 v0, 63, v0")
    g.i(f"v_readfirstlane_b32 s{S_WAVE}, v6")
    g.i(f"v_lshlrev_b32 v{V_L16}, 4, v0")
    g.i(f"s_bfe_u32 s{S_HP}, s2, 0x10001")
    g.i(f"s_lshl_b32 s{S_HP}, s{S_HP}, 3")
    g.i(f"s_bfe_u32 s{S_T0}, s2, 0x30003")
    g.i(f"s_add_u32 s{S_HP}, s{S_HP}, s{S_T0}")
    g.i(f"s_and_b32 s{S_TB}, s2, 1")
    g.i(f"s_lshl_b32 s{S_TB}, s{S_TB}, 2")
    g.i(f"s_lshr_b32 s{S_T0}, s2, 6")
    g.i(f"s_add_u32 s{S_TB}, s{S_TB}, s{S_T0}")
    g.i(f"s_lshl_b32 s{S_T0}, s{S_TB}, 18")
    g.i(f"s_lshl_b32 s{S_T1}, s{S_BR}, 4")
    g.i(f"s_add_u32 s{S_T1}, s{S_T1}, s{S_HP}")
    g.i(f"s_lshl_b32 s{S_T2}, s{S_T1}, 18")
    g.i(f"s_add_u32 s{S_T2}, s{S_T2}, {WS_KV}")
    g.i(f"s_lshl_b32 s{S_T3}, s{S_BR}, 21")
    g.i(f"s_add_u32 s{S_T3}, s{S_T3}, {WS_O}")
    if g.opt.get('lfirst', 1):
        g.i(f"s_cmp_lt_u32 s{S_WAVE}, 4")
        g.i("s_cbranch_scc1 L_compute")
    else:
        g.i(f"s_cmp_ge_u32 s{S_WAVE}, 4")
        g.i("s_cbranch_scc1 L_loader")

def early_srds(g):
    g.i("s_waitcnt lgkmcnt(0)")
    g.st('karg')
    srd(g.a, S_X, S_M, 256 * 1024, f"s{S_T0}")
    srd(g.a, S_W, S_M + 2, 512 * 1536 * 2)

def late_srds(g):
    a = g.a
    srd(a, S_WO, S_M + 4, 512 * 512 * 2)
    srd(a, S_KV, S_M + 6, 256 * 1024, f"s{S_T2}")
    srd(a, S_O, S_M + 6, 2 << 20, f"s{S_T3}")
    srd(a, S_FL, S_M + 6, 4096, str(WS_FLAG))
    srd(a, S_DBG, 6, 256)
    srd(a, S_OUT, 4, 2048 * 1024 * 2)
    if g.diag:
        g.i(f"s_mov_b32 s96, s{S_M+6}")
        g.i(f"s_mov_b32 s97, s{S_M+7}")

def attn_consts(g):
    g.i(f"s_lshr_b32 s{S_T0}, s{S_WAVE}, 2")
    g.i(f"s_lshl_b32 s{S_T0}, s{S_T0}, 14")
    g.i(f"v_add_u32 v{V_KA}, s{S_T0}, v{V_L16}")
    g.i(f"v_and_b32 v{V_T0}, 15, v0")
    g.i(f"v_lshlrev_b32 v{V_T0}, 4, v{V_T0}")
    g.i(f"v_lshrrev_b32 v{V_T1}, 5, v0")
    g.i(f"v_lshl_add_u32 v{V_T0}, v{V_T1}, 8, v{V_T0}")
    g.i(f"s_add_u32 s{S_T0}, s{S_T0}, 1024")
    g.i(f"v_add_u32 v{V_VA}, s{S_T0}, v{V_T0}")
    g.i(f"v_and_b32 v{V_T0}, 31, v0")
    g.i(f"v_subrev_u32 v{V_T1}, 20, v{V_T0}")
    g.i(f"v_cmp_gt_u32 vcc, 8, v{V_T1}")
    g.i(f"v_mov_b32 v{V_T1}, {L_CONST+16}")
    g.i(f"v_mov_b32 v{V_VX}, {L_CONST+16+64}")
    g.i(f"v_cndmask_b32 v{V_T1}, v{V_T1}, v{V_VX}, vcc")
    g.i(f"v_and_b32 v{V_VX}, {31 if g.opt.get('x_one') else 27}, v0")
    g.i(f"v_cmp_eq_u32 vcc, 16, v{V_VX}")
    g.i(f"v_subrev_u32 v{V_VX}, 16, v{V_T1}")
    g.i("s_nop 0")
    g.i(f"v_cndmask_b32 v{V_T1}, v{V_T1}, v{V_VX}, vcc")
    g.i(f"v_cmp_gt_u32 vcc, 16, v{V_T0}")
    g.i(f"v_mov_b32 v{V_T0}, {RING}")
    g.i(f"v_mov_b32 v{V_IDX}, 0xdddd")
    g.i(f"v_cndmask_b32 v{V_VA}, v{V_T1}, v{V_VA}, vcc")
    g.i(f"v_cndmask_b32 v{V_VX}, 0, v{V_T0}, vcc")
    g.i(f"v_add_u32 v{V_VX}, v{V_VX}, v{V_VA}")
    g.i("v_lshrrev_b32 v7, 3, v0")
    g.i("v_lshlrev_b32 v7, 11, v7")
    g.i(f"v_and_b32 v{V_OW}, 7, v0")
    g.i(f"v_lshl_add_u32 v{V_OW}, v{V_OW}, 4, v7")
    g.i(f"v_mov_b32 v{KG}, 0")
    g.i(f"v_mov_b32 v{VG}, 0")
    g.i("v_mov_b64 v[252:253], -1")
    g.i("v_mov_b64 v[254:255], -1")
    for r in range(0, 32, 2):
        g.i(f"v_mov_b64 v[{V_O[0]+r}:{V_O[0]+r+1}], 0")
    g.i(f"s_lshl_b32 s{S_T0}, s{S_BR}, 4")
    g.i(f"s_add_u32 s{S_T0}, s{S_T0}, s{S_HP}")
    g.i(f"s_lshl_b32 s{S_T0}, s{S_T0}, 7")
    g.i(f"v_and_b32 v6, 31, v0")
    g.i(f"v_lshl_add_u32 v{V_FA}, v6, 2, s{S_T0}")
    g.i(f"v_lshrrev_b32 v{V_T0}, 2, v0")
    g.i(f"v_and_b32 v{V_T0}, 4, v{V_T0}")
    g.i(f"v_and_b32 v{V_T1}, 7, v0")
    g.i(f"v_xor_b32 v{V_T0}, v{V_T0}, v{V_T1}")
    g.i(f"v_lshlrev_b32 v{V_T0}, 4, v{V_T0}")
    g.i(f"v_lshrrev_b32 v{V_T1}, 3, v0")
    g.i(f"v_lshl_add_u32 v{V_WOA}, v{V_T1}, 10, v{V_T0}")

def consts(g):
    g.i(f"s_cmp_lg_u32 s{S_WAVE}, 4")
    g.i("s_cbranch_scc1 L_ld_noconst")
    g.i("v_lshrrev_b32 v6, 2, v0")
    g.i("v_and_b32 v7, 1, v6")
    g.i("v_lshlrev_b32 v7, 9, v7")
    g.i("v_lshrrev_b32 v6, 1, v6")
    g.i("v_lshl_add_u32 v7, v6, 11, v7")
    g.i("v_and_b32 v6, 1, v0")
    g.i("v_lshl_add_u32 v7, v6, 4, v7")
    g.i("v_cmp_eq_u32 vcc, 0, v6")
    g.i("v_and_b32 v6, 2, v0")
    g.i("v_lshl_add_u32 v7, v6, 5, v7")
    g.i("v_mov_b32 v6, 0x3f803f80")
    g.i(f"v_add_u32 v7, {L_CONST}, v7")
    g.i("v_cndmask_b32 v108, 0, v6, vcc")
    g.i("v_cndmask_b32 v109, 0, v6, vcc")
    g.i("v_cndmask_b32 v110, 0, v6, vcc")
    g.i("v_cndmask_b32 v111, 0, v6, vcc")
    g.i("ds_write_b128 v7, v[108:111]")
    g.lab("L_ld_noconst")

def loader(g):
    VX, VW, VT = 100, 104, 112
    LEAD = g.opt.get('lead', 0)
    g.lab("L_loader")
    g.i(f"s_sub_u32 s{S_A}, s{S_WAVE}, 4")
    S_CH, S_TX = S_F, 55
    RM = g.opt.get('rot', 7)
    if RM == 1:
        g.i(f"s_lshl_b32 s{S_CH}, s{S_TB}, 1")
        g.i(f"s_lshr_b32 s{S_T1}, s{S_TB}, 2")
        g.i(f"s_add_u32 s{S_CH}, s{S_CH}, s{S_T1}")
        g.i(f"s_and_b32 s{S_CH}, s{S_CH}, 7")
    elif RM == 2:
        g.i(f"s_mov_b32 s{S_CH}, s{S_TB}")
    elif RM == 7:
        g.i(f"s_and_b32 s{S_T1}, s{S_HP}, 1")
        g.i(f"s_lshl_b32 s{S_T1}, s{S_T1}, 2")
        g.i(f"s_add_u32 s{S_CH}, s{S_TB}, s{S_T1}")
        g.i(f"s_and_b32 s{S_CH}, s{S_CH}, 7")
    elif RM == 8:
        g.i(f"s_lshl_b32 s{S_CH}, s{S_TB}, 1")
        g.i(f"s_bfe_u32 s{S_T1}, s{S_HP}, 0x10001")
        g.i(f"s_add_u32 s{S_CH}, s{S_CH}, s{S_T1}")
        g.i(f"s_and_b32 s{S_CH}, s{S_CH}, 7")
    elif RM == 9:
        g.i(f"s_lshl_b32 s{S_CH}, s{S_TB}, 1")
        g.i(f"s_and_b32 s{S_T1}, s{S_HP}, 3")
        g.i(f"s_add_u32 s{S_CH}, s{S_CH}, s{S_T1}")
        g.i(f"s_and_b32 s{S_CH}, s{S_CH}, 7")
    elif RM == 10:
        g.i(f"s_and_b32 s{S_CH}, s2, 7")
    elif RM == 11:
        g.i(f"s_and_b32 s{S_CH}, s2, 3")
        g.i(f"s_lshl_b32 s{S_CH}, s{S_CH}, 1")
        g.i(f"s_add_u32 s{S_CH}, s{S_CH}, s{S_BR}")
    elif RM == 0:
        g.i(f"s_mov_b32 s{S_CH}, 0")
    elif RM == 6:
        g.i(f"s_lshl_b32 s{S_CH}, s{S_TB}, 1")
        g.i(f"s_add_u32 s{S_CH}, s{S_CH}, s{S_HP}")
        g.i(f"s_and_b32 s{S_CH}, s{S_CH}, 7")
    elif RM == 4:
        g.i(f"s_lshl_b32 s{S_CH}, s{S_TB}, 1")
        g.i(f"s_add_u32 s{S_CH}, s{S_CH}, s{S_HP}")
        g.i(f"s_and_b32 s{S_CH}, s{S_CH}, 3")
        g.i(f"s_lshl_b32 s{S_CH}, s{S_CH}, 1")
    elif RM == 5:
        g.i(f"s_add_u32 s{S_CH}, s{S_TB}, s{S_HP}")
        g.i(f"s_and_b32 s{S_CH}, s{S_CH}, 3")
        g.i(f"s_lshl_b32 s{S_CH}, s{S_CH}, 1")
    elif RM == 3:
        g.i(f"s_lshl_b32 s{S_CH}, s{S_TB}, 1")
        g.i(f"s_and_b32 s{S_T1}, s{S_HP}, 1")
        g.i(f"s_add_u32 s{S_CH}, s{S_CH}, s{S_T1}")
        g.i(f"s_and_b32 s{S_CH}, s{S_CH}, 7")
    g.i(f"v_lshlrev_b32 v{VT}, 10, v0")
    g.i(f"s_and_b32 s{S_TX}, s{S_HP}, 7")
    g.i(f"s_lshl_b32 s{S_TX}, s{S_TX}, 2")
    g.i(f"s_add_u32 s{S_TX}, s{S_TX}, s{S_A}")
    g.i(f"s_lshl_b32 s{S_TX}, s{S_TX}, 13")
    PF = g.opt.get('pf', 0)
    NT = 2 if PF else (1 if LEAD else 0)
    if PF:
        S_TC, S_TW = S_IT, 0
        g.i(f"s_mov_b32 s{S_TC}, s{S_CH}")
        g.i("v_lshrrev_b32 v6, 1, v0")
        g.i("v_and_b32 v7, 1, v0")
        g.i("v_lshlrev_b32 v7, 7, v7")
        g.i(f"v_lshl_add_u32 v{VT+1}, v6, 10, v7")
        g.i(f"s_lshr_b32 s1, s2, 3")
        g.i(f"s_lshl_b32 s1, s1, 1")
        g.i(f"s_lshr_b32 s{S_T1}, s{S_A}, 1")
        g.i(f"s_add_u32 s1, s1, s{S_T1}")
        g.i(f"s_mul_i32 s1, s1, 3072")
        g.i(f"s_lshr_b32 s{S_T1}, s{S_HP}, 3")
        g.i(f"s_lshl_b32 s{S_T1}, s{S_T1}, 1")
        g.i(f"s_and_b32 s{S_B}, s{S_A}, 1")
        g.i(f"s_add_u32 s{S_T1}, s{S_T1}, s{S_B}")
        g.i(f"s_lshl_b32 s{S_T1}, s{S_T1}, 8")
        g.i(f"s_add_u32 s3, s1, s{S_T1}")
    def touch(ahead):
        if PF:
            g.i(f"s_lshl_b32 s{S_T0}, s{S_TC}, 7")
            g.i(f"s_add_u32 s{S_T0}, s{S_T0}, s{S_TX}")
            g.i(f"s_mul_i32 s{S_T1}, s{S_TC}, {64*3072}")
            g.i(f"s_add_u32 s{S_T1}, s{S_T1}, s3")
            g.i("s_mov_b64 exec, 0xff")
            g.i(f"buffer_load_dword v246, v{VT}, s[{S_X}:{S_X+3}], s{S_T0} offen")
            g.i("s_mov_b64 exec, 0x3f")
            g.i(f"buffer_load_dword v246, v{VT+1}, s[{S_W}:{S_W+3}], s{S_T1} offen")
            g.i("s_mov_b64 exec, -1")
            g.i(f"s_add_u32 s{S_TC}, s{S_TC}, 1")
            g.i(f"s_and_b32 s{S_TC}, s{S_TC}, 7")
            return
        if not LEAD: return
        g.i(f"s_add_u32 s{S_T0}, s{S_CH}, {ahead}")
        g.i(f"s_and_b32 s{S_T0}, s{S_T0}, 7")
        g.i(f"s_lshl_b32 s{S_T0}, s{S_T0}, 7")
        g.i(f"s_add_u32 s{S_T0}, s{S_T0}, s{S_TX}")
        g.i("s_mov_b64 exec, 0xff")
        g.i(f"buffer_load_dword v246, v{VT}, s[{S_X}:{S_X+3}], s{S_T0} offen")
        g.i("s_mov_b64 exec, -1")
    g.i("v_lshrrev_b32 v6, 4, v0")
    g.i("v_and_b32 v7, 7, v0")
    g.i("v_xor_b32 v6, v6, v7")
    g.i("v_lshlrev_b32 v6, 4, v6")
    g.i("v_lshrrev_b32 v7, 3, v0")
    g.i(f"v_lshl_add_u32 v{VX}, v7, 10, v6")
    g.i(f"v_xor_b32 v{VX+1}, 64, v{VX}")
    g.i(f"v_add_u32 v{VX+2}, {2*7168}, v{VX}")
    g.i(f"v_add_u32 v{VX+3}, {3*7168}, v{VX+1}")
    g.i(f"v_add_u32 v{VX+1}, 7168, v{VX+1}")
    g.i(f"s_lshl_b32 s{S_B}, s{S_A}, 16")
    g.i(f"s_lshl_b32 s{S_D}, s{S_A}, 13")
    for p in range(3):
        g.i(f"v_add_u32 v6, {64*p}, v0")
        g.i("v_mul_u32_u24 v7, 43691, v6")
        g.i("v_lshrrev_b32 v7, 19, v7")
        g.i("v_mul_u32_u24 v110, 12, v7")
        g.i("v_sub_u32 v6, v6, v110")
        g.i("v_mul_u32_u24 v7, 3072, v7")
        g.i("v_lshrrev_b32 v110, 2, v6")
        g.i(f"v_lshl_add_u32 v7, v110, {6 if g.opt.get('x_wc') else 10}, v7")
        g.i("v_and_b32 v6, 3, v6")
        g.i("v_lshl_add_u32 v7, v6, 4, v7")
        g.i(f"v_subrev_u32 v{VW+p}, {1024*p}, v7")
    g.i(f"s_mul_i32 s{S_C}, s{S_A}, {16*3072}")
    g.i(f"s_lshl_b32 s{S_T1}, s{S_HP}, {7 if g.opt.get('x_wc') else 6}")
    g.i(f"s_add_u32 s{S_C}, s{S_C}, s{S_T1}")
    g.i(f"s_mul_i32 s{S_E}, s{S_A}, 3072")
    g.i(f"s_add_u32 s{S_E}, s{S_E}, {SLOT_W}")
    early_srds(g)
    def issue():
        g.i(f"s_lshl_b32 s{S_T1}, s{S_CH}, 7")
        g.i(f"s_add_u32 s{S_T1}, s{S_T1}, s{S_B}")
        g.i(f"s_mov_b32 m0, s{S_D}")
        g.i(f"s_add_u32 s{S_T0}, s{S_T1}, 32768")
        for p in range(4):
            g.i(f"buffer_load_dwordx4 v{VX+p}, s[{S_X}:{S_X+3}], s{S_T1} offen offset:{1024*p}{g.opt.get('xfl','')} lds")
        g.i(f"s_add_u32 m0, s{S_D}, 4096")
        g.i(f"s_mul_i32 s{S_T1}, s{S_CH}, {64*3072}")
        for p in range(4):
            g.i(f"buffer_load_dwordx4 v{VX+p}, s[{S_X}:{S_X+3}], s{S_T0} offen offset:{1024*p}{g.opt.get('xfl','')} lds")
        g.i(f"s_mov_b32 m0, s{S_E}")
        g.i(f"s_add_u32 s{S_T1}, s{S_T1}, s{S_C}")
        for p in range(3):
            if g.opt.get('x_now'): g.i(f"buffer_load_dword v244, v{VW+p}, s[{S_DBG if False else S_W}:{S_W+3}], s{S_C} offen"); continue
            g.i(f"buffer_load_dwordx4 v{VW+p}, s[{S_W}:{S_W+3}], s{S_T1} offen offset:{1024*p}{g.opt.get('wfl','')} lds")
        g.i(f"s_add_u32 s{S_CH}, s{S_CH}, 1")
        g.i(f"s_and_b32 s{S_CH}, s{S_CH}, 7")
    def next_slot():
        g.i(f"s_add_u32 s{S_D}, s{S_D}, {SLOT}")
        g.i(f"s_add_u32 s{S_E}, s{S_E}, {SLOT}")
        g.i(f"s_cmp_lt_u32 s{S_D}, {3*SLOT}")
        g.i(f"s_cselect_b32 s{S_T0}, 0, {3*SLOT}")
        g.i(f"s_sub_u32 s{S_D}, s{S_D}, s{S_T0}")
        g.i(f"s_sub_u32 s{S_E}, s{S_E}, s{S_T0}")
    if PF:
        q = []; nt = [0]
        def T():
            if nt[0] < 8: touch(0); q.extend('TT'); nt[0] += 1
        def D(c): issue(); q.extend([c] * 11)
        def W(c): g.i(f"s_waitcnt vmcnt({len(q) - 1 - max(i for i, x in enumerate(q) if x == c)})")
        for c in range(PF): T()
        D(0); T()
        next_slot(); D(1); T()
        late_srds(g); attn_consts(g); consts(g)
        for c in range(6):
            W(c)
            g.i("s_barrier")
            next_slot(); D(c + 2); T()
        W(6)
        g.i("s_barrier")
        g.i("s_waitcnt vmcnt(0)")
        g.i("s_barrier")
        g.i("s_mov_b32 s3, 0")
    if not PF: loader_plain(g, issue, next_slot, touch, LEAD, NT)
    loader_fin(g)

def loader_plain(g, issue, next_slot, touch, LEAD, NT):
    issue()
    g.st('ld_c0')
    next_slot(); issue()
    for c in range(2, LEAD): touch(c - 2)
    g.st('ld_c2')
    late_srds(g); attn_consts(g); consts(g)
    g.st('ld_pre')
    PRE = g.opt.get('pre', '')
    n0 = NT * max(LEAD - 2, 0)
    def pre():
        g.i(f"s_lshl_b32 s{S_T0}, s{S_TB}, 14")
        g.i(f"s_and_b32 s{S_T1}, s{S_A}, 1")
        g.i(f"s_lshl_b32 s{S_T1}, s{S_T1}, 13")
        g.i(f"s_add_u32 s{S_T0}, s{S_T0}, s{S_T1}")
        g.i(f"s_lshr_b32 s{S_T1}, s{S_A}, 1")
        g.i(f"s_lshl_b32 s{S_T1}, s{S_T1}, 17")
        g.i(f"s_add_u32 s{S_T0}, s{S_T0}, s{S_T1}")
        if PRE == 'r':
            g.i("v_lshlrev_b32 v6, 7, v0")
            g.i(f"buffer_load_dword v245, v6, s[{S_KV}:{S_KV+3}], s{S_T0} offen sc1")
            return 1
        g.i(f"s_add_u32 s{S_T1}, s{S_T0}, 4096")
        for k in range(8):
            g.i(f"buffer_store_dwordx4 v[{V_O[0]}:{V_O[0]+3}], v{V_L16}, s[{S_KV}:{S_KV+3}], s{S_T1 if k >= 4 else S_T0} offen offset:{1024*(k%4)} sc1")
        return 8
    np_ = 0
    PC = g.opt.get('prec', 1)
    for c, n in ((0, 11 + n0), (1, n0 + 11 + NT)):
        g.i(f"s_waitcnt vmcnt({n + (np_ if c == 1 else 0)})")
        if c == 0: g.st('ld_got0')
        g.i("s_barrier")
        next_slot(); issue(); touch(LEAD - 3)
        if PRE and c == PC: np_ = pre()
    if PRE and PC == 1:
        g.i(f"s_waitcnt vmcnt({11+2*NT+np_})")
        g.i("s_barrier")
        next_slot(); issue(); touch(LEAD - 3)
        g.i(f"s_mov_b32 s{S_IT}, 3")
        g.i(f"s_waitcnt vmcnt({11+2*NT+np_})")
        g.i("s_branch L_ld_loop2")
    g.i(f"s_mov_b32 s{S_IT}, 2")
    g.lab("L_ld_loop")
    g.i(f"s_waitcnt vmcnt({11+2*NT})")
    g.lab("L_ld_loop2")
    g.i("s_barrier")
    next_slot(); issue(); touch(LEAD - 3)
    g.i(f"s_add_u32 s{S_IT}, s{S_IT}, 1")
    g.i(f"s_cmp_lt_u32 s{S_IT}, 6")
    g.i("s_cbranch_scc1 L_ld_loop")
    g.st('ld_iss7')
    g.i(f"s_waitcnt vmcnt({11+2*NT})")
    g.i("s_barrier")
    g.i("s_waitcnt vmcnt(0)")
    g.i("s_barrier")

def loader_fin(g):
    g.i(f"s_cmp_lg_u32 s{S_WAVE}, 4")
    g.i("s_cbranch_scc1 L_ld_nocert")
    g.i(f"s_lshl_b32 s{S_T0}, s{S_BR}, 4")
    g.i(f"s_add_u32 s{S_T0}, s{S_T0}, s{S_HP}")
    g.i(f"s_lshl_b32 s{S_T0}, s{S_T0}, 3")
    g.i(f"v_mov_b32 v7, s{S_T0}")
    spin(g, "cert1", f"buffer_load_dword v{V_F}, v7, s[{S_DBG}:{S_DBG+3}], 0 offen sc1", 8)
    g.lab("L_ld_nocert")
    g.i(f"s_lshl_b32 s{S_T0}, s{S_A}, 11")
    g.i(f"s_add_u32 s{S_T0}, s{S_T0}, {L_QX}")
    g.i(f"v_add_u32 v6, s{S_T0}, v{V_L16}")
    attn_setup(g)
    g.i("s_waitcnt lgkmcnt(0)")
    g.i("s_barrier")
    g.i(f"ds_read_b128 {vr(V_Q[0],4)}, v6")
    g.i(f"ds_read_b128 {vr(V_Q[1],4)}, v6 offset:1024")
    g.i("s_branch L_attn")

class LdsQ:
    def __init__(self, g): self.g = g; self.q = []
    def issue(self, tag): self.q.append(tag)
    def need(self, tags):
        idx = max([i for i, t in enumerate(self.q) if t in tags], default=-1)
        if idx >= 0:
            n = len(self.q) - 1 - idx
            self.g.i(f"s_waitcnt lgkmcnt({min(n,15)})")
            self.q = self.q[idx + 1:]

def compute(g):
    g.lab("L_compute")
    g.i("s_waitcnt lgkmcnt(0)")
    late_srds(g)
    g.i(f"s_cmp_lg_u32 s{S_WAVE}, 0")
    g.i("s_cbranch_scc1 L_cp_noclear")
    g.i(f"s_lshl_b32 s{S_T0}, s{S_BR}, 4")
    g.i(f"s_add_u32 s{S_T0}, s{S_T0}, s{S_HP}")
    g.i(f"s_lshl_b32 s{S_T1}, s{S_T0}, 7")
    g.i(f"s_lshl_b32 s{S_T2}, s{S_TB}, 4")
    g.i(f"s_add_u32 s{S_T1}, s{S_T1}, s{S_T2}")
    g.i(f"v_lshl_add_u32 v6, v0, 2, s{S_T1}")
    g.i("v_mov_b32 v100, 0")
    g.i("s_mov_b64 exec, 0xf")
    g.i(f"buffer_store_dword v100, v6, s[{S_FL}:{S_FL+3}], 0 offen sc1")
    g.i("s_mov_b64 exec, -1")
    g.lab("L_cp_noclear")
    attn_consts(g)
    g.i("v_and_b32 v6, 31, v0")
    g.i(f"s_lshl_b32 s{S_T0}, s{S_WAVE}, 13")
    g.i(f"v_lshl_add_u32 v100, v6, 7, s{S_T0}")
    g.i("v_bfe_u32 v6, v0, 1, 3")
    g.i("v_lshrrev_b32 v7, 5, v0")
    g.i("v_xor_b32 v6, v6, v7")
    for s in range(4):
        g.i(f"v_xor_b32 v7, {2*s}, v6")
        g.i(f"v_lshl_add_u32 v{V_XA+s}, v7, 4, v100")
    g.i("v_lshrrev_b32 v6, 5, v0")
    g.i("v_bfe_u32 v7, v0, 2, 2")
    g.i("v_lshl_add_u32 v6, v6, 3, v7")
    g.i("v_mul_u32_u24 v6, 192, v6")
    g.i("v_bfe_u32 v7, v0, 4, 1")
    g.i("v_lshl_add_u32 v6, v7, 5, v6")
    g.i("v_and_b32 v7, 3, v0")
    g.i("v_lshl_add_u32 v6, v7, 3, v6")
    g.i(f"v_add_u32 v{V_WA}, {SLOT_W}, v6")
    for r in range(0, 96, 2):
        g.i(f"v_mov_b64 v[{V_ACC+r}:{V_ACC+r+1}], 0")
    S_A, S_B = 56, 57
    g.i("v_and_b32 v6, 0x33, v0")
    g.i("v_bfe_u32 v7, v0, 2, 1")
    g.i("v_lshl_or_b32 v6, v7, 3, v6")
    g.i("v_bfe_u32 v7, v0, 3, 1")
    g.i("v_lshl_or_b32 v6, v7, 2, v6")
    g.i(f"v_lshlrev_b32 v{KG}, 4, v6")
    g.i(f"s_lshl_b32 s{S_T0}, s{S_WAVE}, 12")
    g.i(f"v_add_u32 v{KL}, s{S_T0}, v{KG}")
    g.i("v_and_b32 v6, 15, v0")
    g.i("v_lshlrev_b32 v6, 4, v6")
    g.i("v_lshrrev_b32 v7, 5, v0")
    g.i("v_lshl_add_u32 v6, v7, 8, v6")
    g.i("v_add_u32 v6, 1024, v6")
    g.i("v_bfe_u32 v7, v0, 4, 1")
    g.i(f"v_lshl_add_u32 v{VG}, v7, 17, v6")
    g.i("v_lshl_add_u32 v6, v7, 14, v6")
    g.i(f"v_add_u32 v{VL}, s{S_T0}, v6")
    g.i(f"s_lshr_b32 s{S_T0}, s{S_T0}, 1")
    g.i(f"s_add_u32 s{S_T0}, s{S_T0}, {L_QX}")
    g.i(f"v_add_u32 v{QL}, s{S_T0}, v{V_L16}")
    if g.opt.get('dry', 1):
        g.i(f"s_cmp_lt_u32 s{S_WAVE}, 2")
        g.i("s_cbranch_scc1 L_dry_done")
        g.i(f"s_mov_b32 s{S_DRY}, 1")
        g.i(f"s_mov_b32 s{S_IT}, 7")
        g.i("s_mov_b64 vcc, 0")
        g.i(f"s_mov_b64 s[{S_M}:{S_M+1}], 0")
        g.i(f"s_mov_b64 s[{S_M+2}:{S_M+3}], 0")
        g.i(f"s_mov_b32 s{S_MK}, 0")
        g.i("s_waitcnt vmcnt(0) lgkmcnt(0)")
        g.i("s_setvskip -1, 0")
        g.i(f"s_cmp_eq_u32 s{S_WAVE}, 2")
        g.i("s_cbranch_scc1 L_at_done")
        g.i("s_branch L_cp_loop")
        g.lab("L_dry_ret")
        g.i("s_setvskip 0, 0")
        g.i("s_mov_b64 exec, -1")
        g.i("s_setprio 0")
        g.i(f"s_mov_b32 s{S_DRY}, 0")
        g.lab("L_dry_done")
    attn_setup(g)
    g.i(f"s_lshl_b32 s{S_T0}, s{S_WAVE}, 12")
    g.i(f"s_lshl_b32 s{S_G1}, s{S_TB}, 14")
    g.i(f"s_add_u32 s{S_G1}, s{S_G1}, s{S_T0}")
    g.i(f"s_add_u32 s{S_G2}, s{S_G1}, 131072")
    g.i(f"s_mov_b32 s{S_IT}, 0")
    g.i(f"s_mov_b32 s{S_A}, 0")
    g.i(f"s_mov_b32 s{S_B}, {SLOT}")
    q = LdsQ(g)
    def rd(setn, s, which):
        F = V_FR[setn]
        if which[0] == 'x':
            i = int(which[1])
            g.i(f"ds_read_b128 {vr(F+4*i,4)}, v{V_XA+s} offset:{4096*i}")
        else:
            p = {'q': 0, 'k': 1, 'v': 2}[which[0]]; i = int(which[1])
            g.i(f"ds_read_b64_tr_b16 {vr(F+8+4*p+2*i,2)}, v{V_WA} offset:{s*3072+i*768+p*64}")
        q.issue((setn, which))
    ORDER = ['x0', 'q0', 'q1', 'x1', 'k0', 'k1', 'v0', 'v1']
    def mf(setn, n):
        F = V_FR[setn]; p, i = n // 2, n % 2
        w, x = vr(F + 8 + 4 * p, 4), vr(F + 4 * i, 4)
        nm = 'qkv'[p]
        q.need({(setn, f'x{i}'), (setn, nm + '0'), (setn, nm + '1')})
        A, B = (w, x) if p < 2 else (x, w)
        acc = vr(V_ACC + 16 * n, 16)
        if g.opt.get('x_m16'):
            for hh in range(2):
                a4 = vr(V_ACC + 16 * n + 4 * hh, 4)
                g.i(f"v_mfma_f32_16x16x32_bf16 {a4}, {A}, {B}, {a4}")
        else:
            g.i(f"v_mfma_f32_32x32x16_bf16 {acc}, {A}, {B}, {acc}")
    def step(cur, nxt_s):
        plan = [ORDER[0:2], ORDER[2:4], ORDER[4:6], ORDER[6:8], [], []]
        for n in range(6):
            if cur is not None: mf(cur, n)
            if nxt_s is not None:
                for w in plan[n]: rd(1 - (cur if cur is not None else 1), nxt_s, w)
    g.i(f"s_cmp_lg_u32 s{S_WAVE}, 0")
    g.i("s_cbranch_scc1 L_cp_nocount")
    g.i(f"s_lshl_b32 s{S_T0}, s{S_BR}, 4")
    g.i(f"s_add_u32 s{S_T0}, s{S_T0}, s{S_HP}")
    g.i(f"s_lshl_b32 s{S_T0}, s{S_T0}, 3")
    g.i("s_mov_b64 exec, 1")
    g.i(f"v_mov_b32 v6, s{S_T0}")
    g.i("v_mov_b32 v7, 1")
    g.i(f"s_waitcnt vmcnt(0)")
    g.i(f"buffer_atomic_add v7, v6, s[{S_DBG}:{S_DBG+3}], 0 offen sc1")
    g.i("s_mov_b64 exec, -1")
    g.lab("L_cp_nocount")
    def prew():
        g.i(f"s_lshl_b32 s{S_T0}, s{S_TB}, 14")
        g.i(f"s_lshl_b32 s{S_T1}, s{S_WAVE}, 12")
        g.i(f"s_add_u32 s{S_T0}, s{S_T0}, s{S_T1}")
        g.i(f"s_add_u32 s{S_T1}, s{S_T0}, 131072")
        for k in range(8):
            g.i(f"buffer_store_dwordx4 v[{V_O[0]}:{V_O[0]+3}], v{V_L16}, s[{S_KV}:{S_KV+3}], s{S_T1 if k >= 4 else S_T0} offen offset:{1024*(k%4)} sc1")
    def prer():
        g.i("v_and_b32 v6, 31, v0")
        g.i("v_lshlrev_b32 v6, 7, v6")
        g.i("v_lshrrev_b32 v7, 5, v0")
        g.i("v_lshl_add_u32 v6, v7, 17, v6")
        g.i(f"buffer_load_dword v246, v6, s[{S_KV}:{S_KV+3}], s{S_G1} offen{g.opt.get('prefl', ' sc1')}")
    PR = g.opt.get('prer', 0)
    if PR == -1: prer()
    if g.opt.get('prew') == 1: prew()
    g.st('cp_pre')
    g.i("s_barrier")
    g.stamp(1)
    if g.opt.get('prew') == 2: prew()
    step(None, 0)
    g.lab("L_cp_loop")
    q.q = [(0, w) for w in ORDER]
    step(0, 1); step(1, 2); step(0, 3)
    g.i(f"s_add_u32 s{S_A}, s{S_A}, 1")
    g.i(f"s_cmp_eq_u32 s{S_A}, 3")
    g.i(f"s_cselect_b32 s{S_T0}, {(-2*SLOT) & 0xffffffff}, s{S_B}")
    g.i(f"s_cselect_b32 s{S_A}, 0, s{S_A}")
    g.i(f"s_add_u32 s{S_IT}, s{S_IT}, 1")
    g.i(f"s_cmp_eq_u32 s{S_IT}, 8")
    g.i("s_cbranch_scc1 L_cp_last")
    g.i("s_waitcnt lgkmcnt(0)")
    q.q = []
    g.i("s_barrier")
    for r in range(5):
        g.i(f"v_add_u32 v{V_XA+r}, s{S_T0}, v{V_XA+r}")
    PW = g.opt.get('pwd')
    if PW:
        c0, kind = PW
        if kind == 'd':
            g.i(f"s_cmp_lg_u32 s{S_IT}, {c0}")
            g.i("s_cbranch_scc1 L_cp_nopw")
            g.i("v_and_b32 v6, 31, v0")
            g.i("v_lshlrev_b32 v6, 7, v6")
            g.i("v_lshrrev_b32 v7, 5, v0")
            g.i("v_lshl_add_u32 v6, v7, 17, v6")
            g.i(f"buffer_store_dword v{V_O[0]}, v6, s[{S_KV}:{S_KV+3}], s{S_G1} offen sc1")
        elif kind == 'f':
            g.i(f"s_cmp_lg_u32 s{S_IT}, {c0}")
            g.i("s_cbranch_scc1 L_cp_nopw")
            for k in range(8):
                g.i(f"buffer_store_dwordx4 v[{V_O[0]}:{V_O[0]+3}], v{V_L16}, s[{S_KV}:{S_KV+3}], s{S_G2 if k >= 4 else S_G1} offen offset:{1024*(k%4)} sc1")
        elif kind == 's':
            g.i(f"s_sub_u32 s{S_T1}, s{S_IT}, {c0}")
            g.i(f"s_cmp_ge_u32 s{S_T1}, 4")
            g.i("s_cbranch_scc1 L_cp_nopw")
            g.i(f"s_lshl_b32 s{S_T1}, s{S_T1}, 10")
            g.i(f"s_add_u32 s{S_T2}, s{S_T1}, s{S_G2}")
            g.i(f"s_add_u32 s{S_T1}, s{S_T1}, s{S_G1}")
            for so in (S_T1, S_T2):
                g.i(f"buffer_store_dwordx4 v[{V_O[0]}:{V_O[0]+3}], v{V_L16}, s[{S_KV}:{S_KV+3}], s{so} offen sc1")
        g.lab("L_cp_nopw")
    if PR > 0:
        g.i(f"s_cmp_lg_u32 s{S_IT}, {PR}")
        g.i("s_cbranch_scc1 L_cp_nopre")
        prer()
        g.lab("L_cp_nopre")
    step(1, 0)
    g.i("s_branch L_cp_loop")
    g.lab("L_cp_last")
    q.q = [(1, w) for w in ORDER]
    step(1, None)
    g.stamp(2)
    g.i(f"s_mov_b32 s{S_T1}, {hex(QSCALE)}")
    g.i(f"s_mov_b32 s{S_T2}, s{S_T1}")
    g.i("s_nop 5")
    KVS = g.opt.get('kvs', ' sc1')
    T = 204
    n = 0
    for i in range(2):
        A = V_ACC + 16 * (2 + i)
        for hd in range(2):
            for r in range(4):
                g.i(f"v_cvt_pk_bf16_f32 v{T+4*n+r}, v{A+8*hd+2*r}, v{A+8*hd+2*r+1}")
            g.i(f"ds_write_b128 v{KL}, {vr(T+4*n,4)} offset:{16384*hd+2048*i}")
            n += 1
    for i in range(2):
        A = V_ACC + 16 * (4 + i)
        for gr in range(2):
            for r in range(4):
                g.i(f"v_cvt_pk_bf16_f32 v{T+4*n+r}, v{A+8*gr+2*r}, v{A+8*gr+2*r+1}")
            g.i(f"ds_write_b128 v{VL}, {vr(T+4*n,4)} offset:{2048*i+512*gr}")
            n += 1
    g.i(f"s_cmp_lg_u32 s{S_PG}, 0")
    g.i("s_cbranch_scc1 L_cp_later")
    for n in range(8): g.i(kv_store(n))
    g.lab("L_cp_later")
    for i in range(2):
        A = V_ACC + 16 * i
        for r in range(8, 16, 2):
            g.i(f"v_pk_mul_f32 v[{A+r}:{A+r+1}], v[{A+r}:{A+r+1}], s[{S_T0+1}:{S_T0+2}]")
        for r in range(4):
            g.i(f"v_cvt_pk_bf16_f32 v{A+8+r}, v{A+8+2*r}, v{A+8+2*r+1}")
        g.i(f"ds_write_b128 v{QL}, {vr(A+8,4)} offset:{1024*i}")
    for i in range(2):
        A = V_ACC + 16 * i
        for r in range(0, 8, 2):
            g.i(f"v_pk_mul_f32 v[{A+r}:{A+r+1}], v[{A+r}:{A+r+1}], s[{S_T0+1}:{S_T0+2}]")
        for r in range(4):
            g.i(f"v_cvt_pk_bf16_f32 v{V_Q[i]+r}, v{A+2*r}, v{A+2*r+1}")
    g.i("s_waitcnt lgkmcnt(0)")
    barrier_unless_dry(g, "b8")

U = 8
S_OA, S_OB = S_M + 6, S_M + 7
S_MK = S_M + 5
S_KV2 = S_X
S_KO = [None, 4, 5, 6, 7, 12, 13, 14]
S_LM = [[49, 50], [51, 52]]
S_OW = 1
V_VB = 4

def kv_store(n):
    if n < 4: adr, so, off = KG, (S_G2 if n % 2 else S_G1), 2048 * (n // 2)
    else: adr, so, off = VG, S_G1, 2048 * ((n - 4) // 2) + 512 * (n % 2)
    return f"buffer_store_dwordx4 {vr(KVT+4*n,4)}, v{adr}, s[{S_KV}:{S_KV+3}], s{so} offen offset:{off} sc1"

def spin_mask(g, tag, load):
    g.i(f"s_mov_b32 s{S_T3}, 0")
    g.lab(f"L_spin_{tag}")
    g.i(load)
    g.i(f"s_add_u32 s{S_T3}, s{S_T3}, 1")
    g.i("s_waitcnt vmcnt(0)")
    g.i(f"v_cmp_ne_u32 vcc, 1, v{V_F}")
    g.i(f"s_cmp_ge_u32 s{S_T3}, {SPIN_MAX}")
    g.i(f"s_cbranch_scc1 L_olr_{tag}")
    g.i(f"s_and_b32 vcc_lo, vcc_lo, s{S_MK}")
    g.i(f"s_cbranch_scc1 L_spin_{tag}")

def attn_setup(g):
    g.i(f"s_add_u32 s{S_KV2}, s{S_KV}, 131072")
    g.i(f"s_addc_u32 s{S_KV2+1}, s{S_KV+1}, 0")
    g.i(f"s_mov_b32 s{S_KV2+2}, 131072")
    g.i(f"s_mov_b32 s{S_KV2+3}, 0x20000")
    g.i(f"s_lshl_b32 s{S_LM[0][0]}, s{S_WAVE}, 11")
    g.i(f"s_add_u32 s{S_LM[0][1]}, s{S_LM[0][0]}, 16384")
    g.i(f"s_add_u32 s{S_LM[1][0]}, s{S_LM[0][0]}, {RING}")
    g.i(f"s_add_u32 s{S_LM[1][1]}, s{S_LM[0][0]}, {RING+16384}")
    for i in range(1, 8):
        g.i(f"s_cmp_gt_u32 s{S_TB}, {i-1}")
        g.i(f"s_cselect_b32 s{S_T0}, {i-1}, {i}")
        if i == 1:
            g.i(f"s_lshl_b32 s{S_T3}, s{S_T0}, 2")
            g.i(f"s_lshl_b32 s{S_MK}, 15, s{S_T3}")
        g.i(f"s_lshl_b32 s{S_T0}, s{S_T0}, 14")
        g.i(f"s_add_u32 s{S_KO[i]}, s{S_T0}, s{S_LM[0][0]}")
    g.i(f"s_lshr_b32 s{S_PG}, s{S_TB}, 1")
    g.i(f"s_min_u32 s{S_PG}, s{S_PG}, 2")
    g.i(f"s_cmp_ge_u32 s{S_WAVE}, 4")
    g.i(f"s_cselect_b32 s{S_PG}, 3, s{S_PG}")
    g.i(f"s_and_b32 s{S_F}, s{S_HP}, 7")
    g.i(f"s_lshl_b32 s{S_T0}, s{S_F}, 7")
    g.i(f"s_lshl_b32 s55, s{S_WAVE}, 16")
    g.i(f"s_add_u32 s55, s55, s{S_T0}")
    g.i(f"s_lshl_b32 s{S_E}, s{S_WAVE}, 13")
    g.i(f"s_add_u32 s{S_E}, s{S_E}, {L_WO}")
    g.i(f"s_and_b32 s{S_T0}, s{S_WAVE}, 3")
    g.i(f"s_lshl_b32 s{S_T0}, s{S_T0}, 1")
    g.i(f"s_lshl_b32 s{S_T1}, s{S_TB}, 3")
    g.i(f"s_add_u32 s{S_T0}, s{S_T0}, s{S_T1}")
    g.i(f"s_lshl_b32 s{S_OA}, s{S_T0}, 15")
    g.i(f"s_lshr_b32 s{S_T1}, s{S_WAVE}, 2")
    g.i(f"s_lshl_b32 s{S_T2}, s{S_HP}, 1")
    g.i(f"s_add_u32 s{S_T1}, s{S_T1}, s{S_T2}")
    g.i(f"s_lshl_b32 s{S_T2}, s{S_T1}, 10")
    g.i(f"s_add_u32 s{S_OA}, s{S_OA}, s{S_T2}")
    g.i(f"s_add_u32 s{S_OB}, s{S_OA}, 32768")
    if True:
        g.i(f"s_lshr_b32 s{S_T0}, s{S_HP}, 3")
        g.i(f"s_lshl_b32 s{S_T0}, s{S_T0}, 2")
        g.i(f"s_and_b32 s{S_T1}, s{S_WAVE}, 3")
        g.i(f"s_add_u32 s{S_T0}, s{S_T0}, s{S_T1}")
        g.i(f"s_lshl_b32 s{S_T1}, s{S_TB}, 3")
        g.i(f"s_add_u32 s{S_T0}, s{S_T0}, s{S_T1}")
        g.i(f"s_lshl_b32 s{S_T0}, s{S_T0}, 1")
        g.i(f"s_lshr_b32 s{S_T1}, s{S_WAVE}, 2")
        g.i(f"s_add_u32 s{S_T0}, s{S_T0}, s{S_T1}")
        g.i(f"s_lshl_b32 s{S_OW}, s{S_T0}, 15")
        g.i(f"s_lshl_b32 s{S_T0}, s{S_BR}, 10")
        g.i(f"s_add_u32 s{S_OW}, s{S_OW}, s{S_T0}")
        g.i(f"s_lshl_b32 s{S_T0}, s{S_F}, 7")
        g.i(f"s_add_u32 s{S_OW}, s{S_OW}, s{S_T0}")

def attention(g):
    opt = g.opt
    g.lab("L_attn")
    g.stamp(3)
    g.i(f"ds_read_b128 {vr(V_K,4)}, v{V_KA}")
    g.i(f"ds_read_b128 {vr(V_V[0],4)}, v{V_VA}")
    g.i(f"ds_read_b128 {vr(V_V[0]+4,4)}, v{V_VA} offset:512")
    if opt.get('x_em'):
        g.i("s_mov_b32 s100, 0xffff"); g.i("s_mov_b32 s101, 0xffff")
    g.i("s_setprio 3")
    g.i("s_waitcnt lgkmcnt(2)")
    g.i(f"v_mfma_f32_32x32x16_bf16 {vr(V_S[0],16)}, {vr(V_K,4)}, {vr(V_Q[0],4)}, 0")
    dry_exit(g)
    g.i("s_nop 9")
    g.i("s_waitcnt lgkmcnt(0)")
    poll = f"buffer_load_dword v{V_F}, v{V_FA}, s[{S_FL}:{S_FL+3}], 0 offen sc1"
    side = []
    ev = {}
    def at(it, p, slot, *ins): ev.setdefault((it, p, slot), []).extend(ins)
    def kv(i, n):
        return f"buffer_load_dwordx4 v{V_L16}, {sr(S_KV2 if n >= 2 else S_KV, 4)}, s{S_KO[i]} offen offset:{1024*(n%2)}{opt.get('kvl', ' sc1')} lds"
    def check(tag, n):
        def f():
            if n is not None: g.i(f"s_waitcnt vmcnt({n})")
            g.i(f"v_cmp_ne_u32 vcc, 1, v{V_F}")
            g.i("s_nop 0")
            g.i(f"s_and_b32 vcc_lo, vcc_lo, s{S_MK}")
            g.i(f"s_cbranch_scc1 L_ol_{tag}")
            g.lab(f"L_olr_{tag}")
            side.append((tag, lambda: spin_mask(g, tag, poll)))
        return f
    def group(pg, tag, body):
        def f():
            g.i(f"s_cmp_lg_u32 s{S_PG}, {pg}")
            g.i(f"s_cbranch_scc1 L_pg_{tag}")
            body()
            g.lab(f"L_pg_{tag}")
        return f
    def flag():
        g.i(f"s_lshl_b32 s{S_T0}, s{S_TB}, 2")
        g.i(f"s_add_u32 s{S_T0}, s{S_T0}, s{S_WAVE}")
        g.i(f"s_lshl_b64 exec, 1, s{S_T0}")
        g.i("v_mov_b32 v6, 1")
        g.i(f"buffer_store_dword v6, v{V_FA}, s[{S_FL}:{S_FL+3}], 0 offen sc1")
        g.i("s_mov_b64 exec, -1")
    def stores(it, p0, pg):
        for k, (a_, b_) in enumerate(((0, 3), (3, 6), (6, 8))):
            at(it, p0 + k, 'p1', group(pg, f"s{pg}{k}", lambda a_=a_, b_=b_: [g.i(kv_store(n)) for n in range(a_, b_)]))
    def burst(i):
        sl = i % 2
        return [f"s_mov_b32 m0, s{S_LM[sl][0]}", "s_nop 0", kv(i, 0), kv(i, 1), f"s_mov_b32 m0, s{S_LM[sl][1]}", "s_nop 0", kv(i, 2), kv(i, 3)]
    def count():
        g.i(f"s_cmp_lg_u32 s{S_WAVE}, 7")
        g.i("s_cbranch_scc1 L_at_nocnt")
        g.i(f"s_lshl_b32 s{S_T0}, s{S_BR}, 4")
        g.i(f"s_add_u32 s{S_T0}, s{S_T0}, s{S_HP}")
        g.i(f"s_lshl_b32 s{S_T0}, s{S_T0}, 3")
        g.i("s_mov_b64 exec, 1")
        g.i(f"v_mov_b32 v6, s{S_T0}")
        g.i("v_mov_b32 v7, 1")
        g.i(f"buffer_atomic_add v7, v6, s[{S_DBG}:{S_DBG+3}], 0 offen offset:4 sc1")
        g.i("s_mov_b64 exec, -1")
        g.lab("L_at_nocnt")
    pp, pi0, pc0, ps1, pi1, pc1, pi3, pc3 = opt.get('ev', (1, 8, 10, 3, 7, 9, 7, 9))
    at(0, pp, 'qk', group(0, "f0", lambda: (g.st('pub_pre'), g.i("s_waitcnt vmcnt(0)"), g.st('pub_ack'), flag())))
    stores(0, ps1, 1)
    at(0, pi0, 'qk', poll)
    at(0, pc0, 'qk', "s_waitcnt vmcnt(0)", group(1, "f1", flag), check("kv0", None), lambda: g.st('chk_ok'), *burst(1),
       f"s_mov_b32 s{S_MK}, 0xffff")
    at(1, pi1, 'qk', poll)
    at(1, pc1, 'qk', check("kv1", 0), *burst(2), f"s_mov_b32 s{S_MK}, -1")
    stores(1, pc1 + 1, 2)
    at(2, 15, 'qk', group(2, "f2", flag))
    at(3, pi3, 'qk', poll)
    at(3, pc3, 'p2', check("kv2", 0), *burst(4))
    late = {i: 0 for i in range(8)}
    dp = opt.get('dma', (1, 3, 5, 7))
    for i in (2, 4, 5, 6):
        sl = (i + 1) % 2
        at(i, dp[0] - 1, 'p2x', f"s_mov_b32 m0, s{S_LM[sl][0]}")
        at(i, dp[0], 'qk', kv(i + 1, 0))
        at(i, dp[1], 'qk', kv(i + 1, 1))
        at(i, dp[2], 'p2', f"s_mov_b32 m0, s{S_LM[sl][1]}")
        at(i, dp[2], 'qk', kv(i + 1, 2))
        at(i, dp[3], 'qk', kv(i + 1, 3))
    wp = opt.get('wop', (11, 13))
    for i in range(1, 5):
        for k, p in enumerate(wp):
            at(i, p, 'p2', f"s_add_u32 m0, s{S_E}, {(2*(i-1)+k)*1024}")
            at(i, p, 'qk', f"buffer_load_dwordx4 v{V_WOA}, s[{S_WO}:{S_WO+3}], s55 offen lds")
            at(i, p, 'p1', "s_add_u32 s55, s55, 8192")
        late[i] += 2
    for k, so in enumerate((S_OA, S_OB)):
        at(5, 9 + 2 * k, 'qk', f"buffer_store_dwordx4 v[252:255], v{V_L16}, s[{S_O}:{S_O+3}], s{so} offen sc1")
    late[5] += 2
    if opt.get('opw', 2):
        i = opt.get('opw', 2)
        at(i, 12, 'p1', f"buffer_store_dwordx4 v[252:255], v{V_OW}, s[{S_OUT}:{S_OUT+3}], s{S_OW} offen sc1", f"s_add_u32 s{S_T0}, s{S_OW}, 16384")
        at(i, 13, 'p1', f"buffer_store_dwordx4 v[252:255], v{V_OW}, s[{S_OUT}:{S_OUT+3}], s{S_T0} offen sc1")
        late[i] += 2
    if opt.get('opr'):
        at(7, 3, 'qk', f"buffer_load_dwordx4 v[236:239], v{V_OW}, s[{S_OUT}:{S_OUT+3}], s{S_OW} offen", f"s_add_u32 s{S_T0}, s{S_OW}, 16384")
        at(7, 5, 'qk', f"buffer_load_dwordx4 v[236:239], v{V_OW}, s[{S_OUT}:{S_OUT+3}], s{S_T0} offen")
    at(7, 1, 'qk', count)
    if opt.get('x_late0'): late = {i: 0 for i in range(8)}
    prio = opt.get('prio', {0: 3, 5: 2, 10: 1, 13: 0})
    for i in range(8):
        for p, v in prio.items():
            ii, q = (i, p - 1) if p else (i - 1, 15)
            if ii >= 0: at(ii, q, 'p1', f"s_setprio {v}")
    def emit(it, p, slot):
        for x in ev.pop((it, p, slot), []):
            x() if callable(x) else g.i(x)
    p2, pq, p1 = opt.get('pos', (1, 5, 10))
    for it in range(8):
        if opt.get('itst'):
            g.i("s_memtime s[98:99]")
            g.i("s_memrealtime s[100:101]")
            g.i("s_waitcnt lgkmcnt(0)")
            g.i(f"v_writelane_b32 v250, s98, {it}")
            g.i(f"v_writelane_b32 v250, s100, {it+9}") if it < 7 else None
        for p in range(2 * U):
            b, t = p % 2, p // 2
            S, So = V_S[b], V_S[1 - b]
            nt = (t + 1) % U
            sl = (it + (t == U - 1)) % 2
            VA = V_VB if sl else V_VA
            last = it == 7 and t == U - 1
            skip = last or (opt.get('x_half') and t % 2 == 0)
            for e in range(16):
                g.i(f"v_exp_f32 v{S+e}, v{S+e}")
                if e == p2:
                    tp = (p - 1) // 2
                    if it or p:
                        g.i(f"v_smfmac_f32_32x32x32_bf16 {vr(V_O[1-b],16)}, {vr(V_V[tp%2]+4,4)}, {vr(So+8,8)}, v{V_IDX}")
                    emit(it, p, 'p2x')
                    if b == 0:
                        if t == U - 1 and it < 7:
                            if it == 1:
                                g.i(f"s_waitcnt vmcnt({late[it] + 8})")
                                g.i(f"s_cmp_eq_u32 s{S_PG}, 2")
                                g.i("s_cbranch_scc1 L_w8")
                                g.i(f"s_waitcnt vmcnt({late[it]})")
                                g.lab("L_w8")
                            else: g.i(f"s_waitcnt vmcnt({late[it]})")
                            if it == 0: g.st('chk1_ok')
                            g.i("s_barrier")
                        if not skip:
                            xm = opt.get('x_em') and (it or t)
                            if xm: g.i("s_mov_b64 exec, s[100:101]")
                            g.i(f"ds_read_b128 {vr(V_V[(t+1)%2],4)}, v{VA} offset:{nt*2048}")
                            if xm: g.i("s_mov_b64 exec, -1")
                    elif not last:
                        g.i("s_waitcnt lgkmcnt(1)")
                    emit(it, p, 'p2')
                if e == pq:
                    if not (last and b):
                        g.i(f"v_mfma_f32_32x32x16_bf16 {vr(So,16)}, {vr(V_K,4)}, {vr(V_Q[1-b],4)}, 0")
                    if b == 0 and not skip:
                        g.i(f"ds_read_b128 {vr(V_K,4)}, v{V_KA} offset:{sl*RING+nt*2048}")
                    emit(it, p, 'qk')
                if e == p1:
                    g.i(f"v_smfmac_f32_32x32x32_bf16 {vr(V_O[b],16)}, {vr(V_V[t%2],4)}, {vr(S,8)}, v{V_IDX}")
                    if b == 0 and last: pass
                    elif b == 0 and skip: pass
                    elif b == 0:
                        xm = opt.get('x_em') and (it or t)
                        if xm: g.i("s_mov_b64 exec, s[100:101]")
                        g.i(f"ds_read_b128 {vr(V_V[(t+1)%2]+4,4)}, v{VA} offset:{nt*2048+512}")
                        if xm: g.i("s_mov_b64 exec, -1")
                    elif not last:
                        g.i("s_waitcnt lgkmcnt(0)")
                    emit(it, p, 'p1')
    assert not ev, ev
    g.side = side
    g.lab("L_at_done")
    g.i("s_nop 1")
    g.i(f"v_smfmac_f32_32x32x32_bf16 {vr(V_O[1],16)}, {vr(V_V[1]+4,4)}, {vr(V_S[1]+8,8)}, v{V_IDX}")
    g.stamp(4)
    if opt.get('itst'):
        g.i("s_memtime s[98:99]")
        g.i("s_waitcnt lgkmcnt(0)")
        g.i(f"v_writelane_b32 v250, s98, 8")
    g.i(f"s_mov_b32 s{S_T0}, 0x2b800000")
    g.i(f"s_mov_b32 s{S_T1}, 0x53800000")
    g.i(f"s_mov_b32 s{S_T2}, 0x7f800000")
    for q in range(2):
        O = V_O[q]
        g.i(f"v_add_f32 v6, abs(v{O}), abs(v{O+1})")
        g.i(f"v_add_f32 v7, abs(v{O+2}), abs(v{O+3})")
        for r in range(4, 8, 2):
            g.i(f"v_add_f32 v6, v6, abs(v{O+r})")
            g.i(f"v_add_f32 v7, v7, abs(v{O+r+1})")
        g.i(f"v_add_f32 v6, v6, v7")
        g.i(f"v_cmp_nle_f32 s[{S_M}:{S_M+1}], s{S_T0}, v{O+8}")
        g.i(f"v_cmp_nge_f32 s[{S_M+2}:{S_M+3}], s{S_T1}, v{O+8}")
        g.i(f"v_cmp_ngt_f32 vcc, s{S_T2}, v6")
        g.i(f"v_rcp_f32 v{V_S[0]+q}, v{O+8}")
        g.i(f"s_or_b64 s[{S_M}:{S_M+1}], s[{S_M}:{S_M+1}], s[{S_M+2}:{S_M+3}]")
        g.i(f"s_or_b64 s[{S_M}:{S_M+1}], s[{S_M}:{S_M+1}], vcc")
        g.i("s_branch L_fallback" if opt.get('force_fallback') else "s_cbranch_scc1 L_fallback")
    g.lab("L_at_store")
    for q in range(2):
        O = V_O[q]
        for r in range(8):
            g.i(f"v_mul_f32 v{O+r}, v{O+r}, v{V_S[0]+q}")
        for r in range(4):
            g.i(f"v_cvt_pk_bf16_f32 v{O+r}, v{O+2*r}, v{O+2*r+1}")
        g.i(f"buffer_store_dwordx4 {vr(O,4)}, v{V_L16}, s[{S_O}:{S_O+3}], s{S_OB if q else S_OA} offen sc1")

P_WO = 100
P_OF = 8
def outproj(g):
    opt = g.opt
    A0, A1 = 228, 72
    WA0, WA1, RA, OA = 244, 245, 246, 247
    g.i(f"s_lshr_b32 s{S_E}, s{S_WAVE}, 2")
    g.i(f"s_lshl_b32 s{S_T0}, s{S_E}, 15")
    g.i(f"s_add_u32 s{S_T0}, s{S_T0}, {L_WO}")
    g.i("v_lshrrev_b32 v6, 5, v0")
    g.i("v_bfe_u32 v7, v0, 2, 2")
    g.i("v_lshl_add_u32 v6, v6, 2, v7")
    g.i(f"v_lshl_add_u32 v6, v6, 7, s{S_T0}")
    g.i("v_bfe_u32 v7, v0, 3, 2")
    g.i("v_and_b32 v2, 1, v7")
    g.i("v_lshl_add_u32 v6, v2, 6, v6")
    g.i("v_lshrrev_b32 v7, 1, v7")
    g.i("v_lshl_add_u32 v6, v7, 5, v6")
    g.i("v_and_b32 v7, 3, v0")
    g.i(f"v_lshl_add_u32 v6, v7, 3, v6")
    g.i(f"s_lshl_b32 s{S_T0}, s{S_E}, 6")
    g.i(f"v_xor_b32 v{WA0}, s{S_T0}, v6")
    g.i(f"v_xor_b32 v{WA1}, 64, v{WA0}")
    n = 0
    def wo_reads(s0, s1):
        for s in range(s0, s1):
            for f in range(2):
                for i in range(2):
                    g.i(f"ds_read_b64_tr_b16 {vr(P_WO+8*s+4*f+2*i,2)}, v{WA1 if f else WA0} offset:{s*2048+i*1024}")
    g.stamp(5)
    g.i(f"s_lshl_b32 s{S_T0}, s{S_BR}, 7")
    g.i("v_and_b32 v6, 15, v0")
    g.i(f"v_lshl_add_u32 v4, v6, 3, s{S_T0}")
    g.i(f"buffer_load_dword v5, v4, s[{S_DBG}:{S_DBG+3}], 0 offen offset:4 sc1")
    for s0 in range(0, 16, 3):
        if s0: g.i("s_waitcnt lgkmcnt(2)")
        wo_reads(s0, min(s0 + 3, 16))
    g.i(f"s_lshr_b32 s{S_T0}, s{S_HP}, 3")
    g.i(f"s_lshl_b32 s{S_T0}, s{S_T0}, 2")
    g.i(f"s_and_b32 s{S_T1}, s{S_WAVE}, 3")
    g.i(f"s_add_u32 s{S_A}, s{S_T0}, s{S_T1}")
    g.i(f"s_lshl_b32 s{S_T0}, s{S_TB}, 3")
    g.i(f"s_add_u32 s{S_A}, s{S_A}, s{S_T0}")
    g.i(f"s_lshl_b32 s{S_B}, s{S_A}, 15")
    g.i(f"s_lshl_b32 s{S_T0}, s{S_E}, 14")
    g.i(f"s_add_u32 s{S_B}, s{S_B}, s{S_T0}")
    g.i(f"s_add_u32 s{S_C}, s{S_B}, 4096")
    g.i(f"s_add_u32 s{S_D}, s{S_B}, 8192")
    g.i(f"s_add_u32 s{S_IT}, s{S_B}, 12288")
    g.i(f"v_lshlrev_b32 v2, 10, v6")
    g.i(f"v_add_u32 v2, 1020, v2")
    g.i(f"s_lshl_b32 s{S_T0}, s{S_WAVE}, 12")
    g.i(f"v_add_u32 v{RA}, s{S_T0}, v{V_L16}")
    if not opt.get('fl', 1):
        g.i("v_and_b32 v6, 31, v0")
        g.i("v_lshlrev_b32 v6, 11, v6")
        g.i("v_lshrrev_b32 v7, 5, v0")
        g.i(f"v_lshl_add_u32 v{OA}, v7, 4, v6")
        g.i(f"s_lshl_b32 s{S_A}, s{S_A}, 16")
        g.i(f"s_lshl_b32 s{S_T0}, s{S_BR}, 10")
        g.i(f"s_add_u32 s{S_A}, s{S_A}, s{S_T0}")
        g.i(f"s_lshl_b32 s{S_T0}, s{S_F}, 7")
        g.i(f"s_add_u32 s{S_A}, s{S_A}, s{S_T0}")
        g.i(f"s_lshl_b32 s{S_T0}, s{S_E}, 6")
        g.i(f"s_add_u32 s{S_A}, s{S_A}, s{S_T0}")
    if opt.get('fl', 1):
        g.i(f"s_and_b32 s{S_T0}, s{S_WAVE}, 3")
        g.i(f"s_lshl_b32 s{S_T0}, s{S_T0}, 12")
        g.i(f"s_add_u32 s{S_T0}, s{S_T0}, {RING}")
        g.i("v_and_b32 v6, 31, v0")
        g.i(f"v_lshl_add_u32 v6, v6, 7, s{S_T0}")
        g.i("v_lshrrev_b32 v7, 5, v0")
        g.i(f"v_lshl_add_u32 v7, s{S_E}, 2, v7")
        g.i("v_and_b32 v91, 7, v0")
        g.i("v_xor_b32 v7, v7, v91")
        g.i("v_lshl_add_u32 v88, v7, 4, v6")
        g.i("v_xor_b32 v89, 32, v88")
        g.i("v_lshrrev_b32 v6, 3, v0")
        g.i("v_xor_b32 v7, v6, v91")
        g.i(f"v_lshl_add_u32 v6, v6, 7, s{S_T0}")
        g.i("v_lshl_add_u32 v6, v7, 4, v6")
        g.i(f"v_lshl_add_u32 v90, s{S_E}, 11, v6")
    g.i(f"s_mov_b32 s{S_T3}, 0")
    g.lab("L_spin_c")
    g.i("s_waitcnt vmcnt(0)")
    g.i("v_cmp_gt_u32 vcc, 8, v5")
    g.i(f"s_add_u32 s{S_T3}, s{S_T3}, 1")
    g.i("s_cbranch_vccz L_spin_o")
    g.i(f"buffer_load_dword v5, v4, s[{S_DBG}:{S_DBG+3}], 0 offen offset:4 sc1")
    g.i(f"s_cmp_lt_u32 s{S_T3}, {SPIN_MAX}")
    g.i("s_cbranch_scc1 L_spin_c")
    g.lab("L_spin_o")
    if opt.get('probe', 1):
        g.i("s_mov_b64 exec, 0xffff")
        g.i(f"buffer_load_dword v3, v2, s[{S_O}:{S_O+3}], s{S_B} offen sc1")
        g.i(f"s_add_u32 s{S_T3}, s{S_T3}, 1")
        g.i("s_waitcnt vmcnt(0)")
        g.i("v_cmp_eq_u32 vcc, -1, v3")
        g.i("s_mov_b64 exec, -1")
        g.i(f"s_cmp_ge_u32 s{S_T3}, {SPIN_MAX}")
        g.i("s_cbranch_scc1 L_spun_o")
        if opt.get('sleep'): g.i(f"s_sleep {opt['sleep']}")
        g.i("s_cbranch_vccnz L_spin_o")
    else:
        g.i(f"s_add_u32 s{S_T3}, s{S_T3}, 1")
    g.lab("L_spun_o")
    g.stamp(6)
    for s in range(16):
        so = (S_B, S_C, S_D, S_IT)[s // 4]
        g.i(f"buffer_load_dwordx4 {vr(P_OF+4*s,4)}, v{V_L16}, s[{S_O}:{S_O+3}], s{so} offen offset:{1024*(s%4)} sc1")
    g.i("v_mov_b32 v3, 0")
    g.i("s_waitcnt lgkmcnt(0)")
    for s in range(16):
        g.i(f"s_waitcnt vmcnt({15-s})")
        for f, A in ((1, A1), (0, A0)):
            g.i(f"v_mfma_f32_32x32x16_bf16 {vr(A,16)}, {vr(P_WO+8*s+4*f,4)}, {vr(P_OF+4*s,4)}, {vr(A,16) if s else 0}")
            g.i(f"v_max3_u32 v3, v3, v{P_OF+4*s+2*f}, v{P_OF+4*s+2*f+1}")
    g.i("v_cmp_eq_u32 vcc, -1, v3")
    g.i(f"s_cmp_ge_u32 s{S_T3}, {SPIN_MAX}")
    g.i("s_cbranch_scc1 L_op_go")
    g.i("s_cbranch_vccnz L_spin_o")
    g.lab("L_op_go")
    g.i("s_nop 5")
    for r in range(4):
        g.i(f"ds_write_b128 v{RA}, {vr(A1+4*r,4)} offset:{1024*r}")
    g.i("s_waitcnt lgkmcnt(0)")
    g.i(f"v_xor_b32 v{RA}, 16384, v{RA}")
    barrier_unless_dry(g, "b9")
    for r in range(4):
        g.i(f"ds_read_b128 {vr(P_OF+4*r,4)}, v{RA} offset:{1024*r}")
    for r in range(4):
        g.i(f"s_waitcnt lgkmcnt({3-r})")
        for k in range(4):
            g.i(f"v_add_f32 v{A0+4*r+k}, v{A0+4*r+k}, v{P_OF+4*r+k}")
        for k in range(2):
            g.i(f"v_cvt_pk_bf16_f32 v{24+2*r+k}, v{A0+4*r+2*k}, v{A0+4*r+2*k+1}")
        if r % 2:
            g.i("s_nop 1")
            g.i(f"v_permlane32_swap_b32 v{24+2*r-2}, v{24+2*r}")
            g.i(f"v_permlane32_swap_b32 v{24+2*r-1}, v{24+2*r+1}")
            if opt.get('fl', 1):
                g.i(f"ds_write_b128 v{88+r//2}, {vr(24+2*r-2,4)}")
            else:
                g.i(f"buffer_store_dwordx4 {vr(24+2*r-2,4)}, v{OA}, s[{S_OUT}:{S_OUT+3}], s{S_A} offen offset:{16*(r-1)}{opt.get('outs','')}")
    if opt.get('fl', 1):
        g.i(f"s_add_u32 s{S_T0}, s{S_OW}, 16384")
        g.i("s_waitcnt lgkmcnt(0)")
        barrier_unless_dry(g, "b10")
        g.i("ds_read_b128 v[24:27], v90")
        g.i("ds_read_b128 v[28:31], v90 offset:1024")
        g.i("s_waitcnt lgkmcnt(1)")
        g.i(f"buffer_store_dwordx4 v[24:27], v{V_OW}, s[{S_OUT}:{S_OUT+3}], s{S_OW} offen{opt.get('outs','')}")
        g.i("s_waitcnt lgkmcnt(0)")
        g.i(f"buffer_store_dwordx4 v[28:31], v{V_OW}, s[{S_OUT}:{S_OUT+3}], s{S_T0} offen{opt.get('outs','')}")
    dry_exit(g)
    if g.diag:
        g.i("s_waitcnt vmcnt(0)")
        g.stamp(7)
        g.i("s_waitcnt lgkmcnt(0)")
        if g.diag == 3:
            a_, b_, K = opt['leak']
            if a_ in (1, 2) or b_ in (1, 2):
                g.i(f"s_cmp_ge_u32 s{S_WAVE}, 4")
                g.i("s_cbranch_scc1 L_end")
            if opt.get('leakc'):
                g.i(f"s_sub_u32 s{S_T0}, s{64+4*b_}, s{64+4*a_}")
                g.i(f"s_lshr_b32 s{S_T0}, s{S_T0}, 4")
            else:
                g.i(f"s_sub_u32 s{S_T0}, s{66+4*b_}, s{66+4*a_}")
            g.i(f"s_mul_i32 s{S_T0}, s{S_T0}, {K}")
            g.lab("L_leak")
            g.i("s_memrealtime s[98:99]")
            g.i("s_waitcnt lgkmcnt(0)")
            g.i(f"s_sub_u32 s{S_T1}, s98, s{66+4*7}")
            g.i(f"s_cmp_lt_u32 s{S_T1}, s{S_T0}")
            g.i("s_cbranch_scc1 L_leak")
            g.i("s_endpgm")
        if g.diag == 2:
            g.i(f"s_cmp_ge_u32 s{S_WAVE}, 4")
            g.i("s_cbranch_scc1 L_end")
            g.i("s_mov_b64 exec, 1")
            for k in range(1, 8):
                g.i(f"s_sub_u32 s{S_T0}, s{66+4*k}, s66")
                g.i(f"v_mov_b32 v6, s{S_T0}")
                g.i(f"v_mov_b32 v7, {8*k+4}")
                g.i(f"buffer_atomic_umax v6, v7, s[{S_DBG}:{S_DBG+3}], 0 offen sc1")
            g.i(f"s_sub_u32 s{S_T0}, s{64+4*4}, s{64+4*3}")
            g.i(f"v_mov_b32 v6, s{S_T0}")
            g.i(f"v_mov_b32 v7, 4")
            g.i(f"buffer_atomic_umax v6, v7, s[{S_DBG}:{S_DBG+3}], 0 offen sc1")
            g.i("s_endpgm")
        g.i(f"s_lshl_b32 s{S_T0}, s2, 3")
        g.i(f"s_add_u32 s{S_T0}, s{S_T0}, s{S_WAVE}")
        g.i(f"s_lshl_b32 s{S_T0}, s{S_T0}, 7")
        g.i(f"s_add_u32 s{S_T0}, s{S_T0}, {WS_STAMP}")
        srd(g.a, S_X, 96, 128, f"s{S_T0}")
        for k in range(32):
            g.i(f"v_mov_b32 v{36+k}, s{64+k}")
        g.i("v_mov_b32 v6, 0")
        for k in range(8):
            g.i(f"buffer_store_dwordx4 {vr(36+4*k,4)}, v6, s[{S_X}:{S_X+3}], 0 offen offset:{16*k}")
        if opt.get('itst'):
            g.i(f"s_add_u32 s{S_T0}, s{S_T0}, {1<<20}")
            srd(g.a, S_X, 96, 64, f"s{S_T0}")
            g.i("v_lshlrev_b32 v6, 2, v0")
            g.i(f"buffer_store_dword v250, v6, s[{S_X}:{S_X+3}], 0 offen")
    g.lab("L_end")
    g.i("s_endpgm")

def fallback(g):
    C = [100, 116]; M = [132, 133]; GV = 134
    g.lab("L_fallback")
    g.i(f"s_lshr_b32 s{S_T0}, s{S_WAVE}, 2")
    g.i(f"s_lshl_b32 s{S_T0}, s{S_T0}, 17")
    g.i(f"v_mov_b32 v{M[0]}, 0xff800000")
    g.i(f"v_mov_b32 v{M[1]}, 0xff800000")
    g.i(f"s_mov_b32 s{S_T1}, s{S_T0}")
    g.i(f"s_add_u32 s{S_T2}, s{S_T0}, 131072")
    g.lab("L_fb_max")
    g.i(f"buffer_load_dwordx4 {vr(V_K,4)}, v{V_L16}, s[{S_KV}:{S_KV+3}], s{S_T1} offen sc1")
    g.i(f"s_add_u32 s{S_T1}, s{S_T1}, 2048")
    g.i("s_waitcnt vmcnt(0)")
    for q in range(2):
        g.i(f"v_mfma_f32_32x32x16_bf16 {vr(V_S[q],16)}, {vr(V_K,4)}, {vr(V_Q[q],4)}, 0")
    g.i("s_nop 15")
    for q in range(2):
        for r in range(0, 16, 2):
            g.i(f"v_max3_f32 v{M[q]}, v{M[q]}, v{V_S[q]+r}, v{V_S[q]+r+1}")
    g.i(f"s_cmp_lt_u32 s{S_T1}, s{S_T2}")
    g.i("s_cbranch_scc1 L_fb_max")
    for q in range(2):
        g.i(f"v_mov_b32 v6, v{M[q]}")
        g.i(f"v_mov_b32 v7, v{M[q]}")
        g.i("s_nop 1")
        g.i("v_permlane32_swap_b32 v6, v7")
        g.i("s_nop 1")
        g.i("v_max_f32 v6, v6, v7")
        for r in range(16):
            g.i(f"v_sub_f32 v{C[q]+r}, 0, v6")
            g.i(f"v_mov_b32 v{V_O[q]+r}, 0")
    g.i("v_and_b32 v6, 15, v0")
    g.i("v_lshlrev_b32 v6, 4, v6")
    g.i("v_lshrrev_b32 v7, 5, v0")
    g.i(f"v_lshl_add_u32 v{GV}, v7, 8, v6")
    for r in range(8):
        g.i(f"v_mov_b32 v{V_V[0]+r}, 0x3f803f80")
    g.i(f"s_mov_b32 s{S_T1}, s{S_T0}")
    g.i(f"s_mov_b32 s{S_M}, 0xffff")
    g.i(f"s_mov_b32 s{S_M+1}, 0xffff")
    g.lab("L_fb_pv")
    g.i(f"buffer_load_dwordx4 {vr(V_K,4)}, v{V_L16}, s[{S_KV}:{S_KV+3}], s{S_T1} offen sc1")
    g.i(f"s_mov_b64 exec, s[{S_M}:{S_M+1}]")
    g.i(f"buffer_load_dwordx4 {vr(V_V[0],4)}, v{GV}, s[{S_KV}:{S_KV+3}], s{S_T1} offen offset:1024 sc1")
    g.i(f"buffer_load_dwordx4 {vr(V_V[0]+4,4)}, v{GV}, s[{S_KV}:{S_KV+3}], s{S_T1} offen offset:1536 sc1")
    g.i("s_mov_b64 exec, -1")
    g.i(f"s_add_u32 s{S_T1}, s{S_T1}, 2048")
    g.i("s_waitcnt vmcnt(0)")
    for q in range(2):
        g.i(f"v_mfma_f32_32x32x16_bf16 {vr(V_S[q],16)}, {vr(V_K,4)}, {vr(V_Q[q],4)}, {vr(C[q],16)}")
    g.i("s_nop 15")
    for q in range(2):
        for r in range(16):
            g.i(f"v_exp_f32 v{V_S[q]+r}, v{V_S[q]+r}")
    g.i("s_nop 3")
    for q in range(2):
        for h in range(2):
            g.i(f"v_smfmac_f32_32x32x32_bf16 {vr(V_O[q],16)}, {vr(V_V[0]+4*h,4)}, {vr(V_S[q]+8*h,8)}, v{V_IDX}")
    g.i("s_nop 15")
    g.i(f"s_cmp_lt_u32 s{S_T1}, s{S_T2}")
    g.i("s_cbranch_scc1 L_fb_pv")
    for q in range(2):
        g.i(f"v_rcp_f32 v{V_S[0]+q}, v{V_O[q]+8}")
    g.i("s_nop 1")
    g.i("s_branch L_at_store")

HEADER = open('cdna_kernels/' + NAME + '.s.ref').read().split('; Override launch')[0]

def generate(opt={}):
    global WS_KV, WS_O, WS_FLAG
    off = opt.get('wsoff', 0) << 20
    WS_KV, WS_O, WS_FLAG = (4 << 20) + off, (12 << 20) + off, (16 << 20) + off
    g = G(opt)
    name = NAME + "_kernel"
    g.a(HEADER.rstrip())
    g.a(f"; @launch grid=(256,1,1) block=(512,1,1) lds={LDS_TOTAL}")
    g.a('.amdgcn_target "amdgcn-amd-amdhsa--gfx950"')
    entry(g, name)
    if opt.get('lfirst', 1): loader(g)
    compute(g)
    attention(g)
    outproj(g)
    if not opt.get('lfirst', 1): loader(g)
    g.lab("L_code_end")
    for tag, body in g.side:
        g.lab(f"L_ol_{tag}")
        body()
        g.i(f"s_branch L_olr_{tag}")
    fallback(g)
    kernel_desc(g.a, name, NVGPR, 256, 102)
    return g.a.text()

if __name__ == "__main__":
    import sys
    opt = eval(sys.argv[2]) if len(sys.argv) > 2 else {}
    open(sys.argv[1], 'w').write(generate(opt))
```

```python
import math, struct
from common import *

WS_FLAG = 16 << 20
SLOT = 45056; SLOT_W = 32768
RING = 32768
L_WO = 65536
L_CONST = 135168
L_QX = 155648
LDS_TOTAL = 163840
S_X, S_W, S_WO, S_KV, S_O, S_FL, S_DBG, S_OUT = 8, 12, 16, 20, 24, 28, 32, 36
S_WAVE, S_BR, S_HP, S_TB, S_IT, S_T0, S_T1, S_T2, S_T3 = 40, 41, 42, 43, 44, 45, 46, 47, 48
S_A, S_B, S_C, S_D, S_E, S_F = 49, 50, 51, 52, 53, 54
S_G1, S_G2, S_PG = 58, 59, 60
KG, KL, VG, VL, QL, KVT = 244, 245, 247, 248, 249, 204
S_M = 56
V_L16, V_KA, V_VA, V_VX, V_IDX, V_T0, V_T1 = 1, 2, 3, 4, 5, 6, 7
V_Q = [8, 12]; V_K = 16; V_V = [20, 28]; V_S = [36, 52]; V_O = [68, 84]
V_F = 241
V_FA = 242
V_OW = 251
V_WOA = 243
V_ACC = 100
V_FR = [196, 216]
V_XA = 236; V_WA = 240
NVGPR = 256
QSCALE = struct.unpack('<I', struct.pack('<f', 0.25 * math.log2(math.e)))[0]
SPIN_MAX = 1 << 20
S_DRY = 3

class G:
    def __init__(self, opt):
        self.a = Asm(); self.opt = opt; self.diag = opt.get('diag', 0)
    def i(self, s): self.a.i(s)
    def lab(self, s): self.a.label(s)
    def st(self, name):
        m = self.opt.get('st', {})
        if name in m: self.stamp(m[name], True)
    def stamp(self, k, forced=False):
        if k in self.opt.get('st', {}).values() and not forced: return
        if self.diag:
            self.i(f"s_memtime s[{64+4*k}:{65+4*k}]")
            self.i(f"s_memrealtime s[{66+4*k}:{67+4*k}]")

def dry_exit(g, label="L_dry_ret"):
    if g.opt.get('dry', 1):
        g.i(f"s_cmp_lg_u32 s{S_DRY}, 0")
        g.i(f"s_cbranch_scc1 {label}")

def barrier_unless_dry(g, tag):
    dry_exit(g, f"L_nb_{tag}")
    g.i("s_barrier")
    g.lab(f"L_nb_{tag}")

def spin(g, tag, load, want, nlanes_mask=None):
    g.i(f"s_mov_b32 s{S_T3}, 0")
    g.lab(f"L_spin_{tag}")
    g.i(load)
    g.i(f"s_add_u32 s{S_T3}, s{S_T3}, 1")
    g.i("s_waitcnt vmcnt(0)")
    g.i(f"v_cmp_{'gt' if want > 1 else 'ne'}_u32 vcc, {want}, v{V_F}")
    g.i(f"s_cmp_ge_u32 s{S_T3}, {SPIN_MAX}")
    g.i(f"s_cbranch_scc1 L_spun_{tag}")
    g.i(f"s_cbranch_vccnz L_spin_{tag}")
    g.lab(f"L_spun_{tag}")

def entry(g, name):
    a = g.a
    kernel_head(a, name)
    PF = g.opt.get('cpf', 1)
    if PF:
        g.i("s_getpc_b64 s[8:9]")
        g.i("v_lshlrev_b32 v6, 7, v0")
        g.i("s_mov_b32 s10, L_code_end-" + name + "-4")
        g.i("s_mov_b32 s11, 0x20000")
    g.i("s_cmp_ge_u32 s2, 256")
    g.i("s_cbranch_scc1 L_end")
    if PF:
        g.i("buffer_load_dword v246, v6, s[8:11], 0 offen")
    g.stamp(0)
    g.i(f"s_mov_b32 s{S_DRY}, 0")
    g.i(f"s_bfe_u32 s{S_BR}, s2, 0x10002")
    g.i(f"s_mul_i32 s{S_T0}, s{S_BR}, 24")
    g.i(f"s_load_dwordx4 s[{S_M}:{S_M+3}], s[0:1], s{S_T0}")
    g.i(f"s_load_dwordx2 s[{S_M+4}:{S_M+5}], s[0:1], s{S_T0} offset:16")
    g.i("s_load_dwordx4 s[4:7], s[0:1], 48")
    g.i(f"s_load_dwordx2 s[{S_M+6}:{S_M+7}], s[0:1], 64")
    g.i("v_lshrrev_b32 v6, 6, v0")
    g.i("v_and_b32 v0, 63, v0")
    g.i(f"v_readfirstlane_b32 s{S_WAVE}, v6")
    g.i(f"v_lshlrev_b32 v{V_L16}, 4, v0")
    g.i(f"s_bfe_u32 s{S_HP}, s2, 0x10001")
    g.i(f"s_lshl_b32 s{S_HP}, s{S_HP}, 3")
    g.i(f"s_bfe_u32 s{S_T0}, s2, 0x30003")
    g.i(f"s_add_u32 s{S_HP}, s{S_HP}, s{S_T0}")
    g.i(f"s_and_b32 s{S_TB}, s2, 1")
    g.i(f"s_lshl_b32 s{S_TB}, s{S_TB}, 2")
    g.i(f"s_lshr_b32 s{S_T0}, s2, 6")
    g.i(f"s_add_u32 s{S_TB}, s{S_TB}, s{S_T0}")
    g.i(f"s_lshl_b32 s{S_T0}, s{S_TB}, 18")
    g.i(f"s_lshl_b32 s{S_T1}, s{S_BR}, 4")
    g.i(f"s_add_u32 s{S_T1}, s{S_T1}, s{S_HP}")
    g.i(f"s_lshl_b32 s{S_T2}, s{S_T1}, 18")
    g.i(f"s_add_u32 s{S_T2}, s{S_T2}, {WS_KV}")
    g.i(f"s_lshl_b32 s{S_T3}, s{S_BR}, 21")
    g.i(f"s_add_u32 s{S_T3}, s{S_T3}, {WS_O}")
    if g.opt.get('lfirst', 1):
        g.i(f"s_cmp_lt_u32 s{S_WAVE}, 4")
        g.i("s_cbranch_scc1 L_compute")
    else:
        g.i(f"s_cmp_ge_u32 s{S_WAVE}, 4")
        g.i("s_cbranch_scc1 L_loader")

def early_srds(g):
    g.i("s_waitcnt lgkmcnt(0)")
    g.st('karg')
    srd(g.a, S_X, S_M, 256 * 1024, f"s{S_T0}")
    srd(g.a, S_W, S_M + 2, 512 * 1536 * 2)

def late_srds(g):
    a = g.a
    srd(a, S_WO, S_M + 4, 512 * 512 * 2)
    srd(a, S_KV, S_M + 6, 256 * 1024, f"s{S_T2}")
    srd(a, S_O, S_M + 6, 2 << 20, f"s{S_T3}")
    srd(a, S_FL, S_M + 6, 4096, str(WS_FLAG))
    srd(a, S_DBG, 6, 256)
    srd(a, S_OUT, 4, 2048 * 1024 * 2)
    if g.diag:
        g.i(f"s_mov_b32 s96, s{S_M+6}")
        g.i(f"s_mov_b32 s97, s{S_M+7}")

def attn_consts(g):
    g.i(f"s_lshr_b32 s{S_T0}, s{S_WAVE}, 2")
    g.i(f"s_lshl_b32 s{S_T0}, s{S_T0}, 14")
    g.i(f"v_add_u32 v{V_KA}, s{S_T0}, v{V_L16}")
    g.i(f"v_and_b32 v{V_T0}, 15, v0")
    g.i(f"v_lshlrev_b32 v{V_T0}, 4, v{V_T0}")
    g.i(f"v_lshrrev_b32 v{V_T1}, 5, v0")
    g.i(f"v_lshl_add_u32 v{V_T0}, v{V_T1}, 8, v{V_T0}")
    g.i(f"s_add_u32 s{S_T0}, s{S_T0}, 1024")
    g.i(f"v_add_u32 v{V_VA}, s{S_T0}, v{V_T0}")
    g.i(f"v_and_b32 v{V_T0}, 31, v0")
    g.i(f"v_subrev_u32 v{V_T1}, 20, v{V_T0}")
    g.i(f"v_cmp_gt_u32 vcc, 8, v{V_T1}")
    g.i(f"v_mov_b32 v{V_T1}, {L_CONST+16}")
    g.i(f"v_mov_b32 v{V_VX}, {L_CONST+16+64}")
    g.i(f"v_cndmask_b32 v{V_T1}, v{V_T1}, v{V_VX}, vcc")
    g.i(f"v_and_b32 v{V_VX}, {31 if g.opt.get('x_one') else 27}, v0")
    g.i(f"v_cmp_eq_u32 vcc, 16, v{V_VX}")
    g.i(f"v_subrev_u32 v{V_VX}, 16, v{V_T1}")
    g.i("s_nop 0")
    g.i(f"v_cndmask_b32 v{V_T1}, v{V_T1}, v{V_VX}, vcc")
    g.i(f"v_cmp_gt_u32 vcc, 16, v{V_T0}")
    g.i(f"v_mov_b32 v{V_T0}, {RING}")
    g.i(f"v_mov_b32 v{V_IDX}, 0xdddd")
    g.i(f"v_cndmask_b32 v{V_VA}, v{V_T1}, v{V_VA}, vcc")
    g.i(f"v_cndmask_b32 v{V_VX}, 0, v{V_T0}, vcc")
    g.i(f"v_add_u32 v{V_VX}, v{V_VX}, v{V_VA}")
    g.i("v_lshrrev_b32 v7, 3, v0")
    g.i("v_lshlrev_b32 v7, 11, v7")
    g.i(f"v_and_b32 v{V_OW}, 7, v0")
    g.i(f"v_lshl_add_u32 v{V_OW}, v{V_OW}, 4, v7")
    g.i(f"v_mov_b32 v{KG}, 0")
    g.i(f"v_mov_b32 v{VG}, 0")
    g.i("v_mov_b64 v[252:253], -1")
    g.i("v_mov_b64 v[254:255], -1")
    for r in range(0, 32, 2):
        g.i(f"v_mov_b64 v[{V_O[0]+r}:{V_O[0]+r+1}], 0")
    g.i(f"s_lshl_b32 s{S_T0}, s{S_BR}, 4")
    g.i(f"s_add_u32 s{S_T0}, s{S_T0}, s{S_HP}")
    g.i(f"s_lshl_b32 s{S_T0}, s{S_T0}, 7")
    g.i(f"v_and_b32 v6, 31, v0")
    g.i(f"v_lshl_add_u32 v{V_FA}, v6, 2, s{S_T0}")
    g.i(f"v_lshrrev_b32 v{V_T0}, 2, v0")
    g.i(f"v_and_b32 v{V_T0}, 4, v{V_T0}")
    g.i(f"v_and_b32 v{V_T1}, 7, v0")
    g.i(f"v_xor_b32 v{V_T0}, v{V_T0}, v{V_T1}")
    g.i(f"v_lshlrev_b32 v{V_T0}, 4, v{V_T0}")
    g.i(f"v_lshrrev_b32 v{V_T1}, 3, v0")
    g.i(f"v_lshl_add_u32 v{V_WOA}, v{V_T1}, 10, v{V_T0}")

def consts(g):
    g.i(f"s_cmp_lg_u32 s{S_WAVE}, 4")
    g.i("s_cbranch_scc1 L_ld_noconst")
    g.i("v_lshrrev_b32 v6, 2, v0")
    g.i("v_and_b32 v7, 1, v6")
    g.i("v_lshlrev_b32 v7, 9, v7")
    g.i("v_lshrrev_b32 v6, 1, v6")
    g.i("v_lshl_add_u32 v7, v6, 11, v7")
    g.i("v_and_b32 v6, 1, v0")
    g.i("v_lshl_add_u32 v7, v6, 4, v7")
    g.i("v_cmp_eq_u32 vcc, 0, v6")
    g.i("v_and_b32 v6, 2, v0")
    g.i("v_lshl_add_u32 v7, v6, 5, v7")
    g.i("v_mov_b32 v6, 0x3f803f80")
    g.i(f"v_add_u32 v7, {L_CONST}, v7")
    g.i("v_cndmask_b32 v108, 0, v6, vcc")
    g.i("v_cndmask_b32 v109, 0, v6, vcc")
    g.i("v_cndmask_b32 v110, 0, v6, vcc")
    g.i("v_cndmask_b32 v111, 0, v6, vcc")
    g.i("ds_write_b128 v7, v[108:111]")
    g.lab("L_ld_noconst")

def loader(g):
    VX, VW, VT = 100, 104, 112
    LEAD = g.opt.get('lead', 0)
    g.lab("L_loader")
    g.i(f"s_sub_u32 s{S_A}, s{S_WAVE}, 4")
    S_CH, S_TX = S_F, 55
    RM = g.opt.get('rot', 7)
    if RM == 1:
        g.i(f"s_lshl_b32 s{S_CH}, s{S_TB}, 1")
        g.i(f"s_lshr_b32 s{S_T1}, s{S_TB}, 2")
        g.i(f"s_add_u32 s{S_CH}, s{S_CH}, s{S_T1}")
        g.i(f"s_and_b32 s{S_CH}, s{S_CH}, 7")
    elif RM == 2:
        g.i(f"s_mov_b32 s{S_CH}, s{S_TB}")
    elif RM == 7:
        g.i(f"s_and_b32 s{S_T1}, s{S_HP}, 1")
        g.i(f"s_lshl_b32 s{S_T1}, s{S_T1}, 2")
        g.i(f"s_add_u32 s{S_CH}, s{S_TB}, s{S_T1}")
        g.i(f"s_and_b32 s{S_CH}, s{S_CH}, 7")
    elif RM == 8:
        g.i(f"s_lshl_b32 s{S_CH}, s{S_TB}, 1")
        g.i(f"s_bfe_u32 s{S_T1}, s{S_HP}, 0x10001")
        g.i(f"s_add_u32 s{S_CH}, s{S_CH}, s{S_T1}")
        g.i(f"s_and_b32 s{S_CH}, s{S_CH}, 7")
    elif RM == 9:
        g.i(f"s_lshl_b32 s{S_CH}, s{S_TB}, 1")
        g.i(f"s_and_b32 s{S_T1}, s{S_HP}, 3")
        g.i(f"s_add_u32 s{S_CH}, s{S_CH}, s{S_T1}")
        g.i(f"s_and_b32 s{S_CH}, s{S_CH}, 7")
    elif RM == 10:
        g.i(f"s_and_b32 s{S_CH}, s2, 7")
    elif RM == 11:
        g.i(f"s_and_b32 s{S_CH}, s2, 3")
        g.i(f"s_lshl_b32 s{S_CH}, s{S_CH}, 1")
        g.i(f"s_add_u32 s{S_CH}, s{S_CH}, s{S_BR}")
    elif RM == 0:
        g.i(f"s_mov_b32 s{S_CH}, 0")
    elif RM == 6:
        g.i(f"s_lshl_b32 s{S_CH}, s{S_TB}, 1")
        g.i(f"s_add_u32 s{S_CH}, s{S_CH}, s{S_HP}")
        g.i(f"s_and_b32 s{S_CH}, s{S_CH}, 7")
    elif RM == 4:
        g.i(f"s_lshl_b32 s{S_CH}, s{S_TB}, 1")
        g.i(f"s_add_u32 s{S_CH}, s{S_CH}, s{S_HP}")
        g.i(f"s_and_b32 s{S_CH}, s{S_CH}, 3")
        g.i(f"s_lshl_b32 s{S_CH}, s{S_CH}, 1")
    elif RM == 5:
        g.i(f"s_add_u32 s{S_CH}, s{S_TB}, s{S_HP}")
        g.i(f"s_and_b32 s{S_CH}, s{S_CH}, 3")
        g.i(f"s_lshl_b32 s{S_CH}, s{S_CH}, 1")
    elif RM == 3:
        g.i(f"s_lshl_b32 s{S_CH}, s{S_TB}, 1")
        g.i(f"s_and_b32 s{S_T1}, s{S_HP}, 1")
        g.i(f"s_add_u32 s{S_CH}, s{S_CH}, s{S_T1}")
        g.i(f"s_and_b32 s{S_CH}, s{S_CH}, 7")
    g.i(f"v_lshlrev_b32 v{VT}, 10, v0")
    g.i(f"s_and_b32 s{S_TX}, s{S_HP}, 7")
    g.i(f"s_lshl_b32 s{S_TX}, s{S_TX}, 2")
    g.i(f"s_add_u32 s{S_TX}, s{S_TX}, s{S_A}")
    g.i(f"s_lshl_b32 s{S_TX}, s{S_TX}, 13")
    PF = g.opt.get('pf', 0)
    NT = 2 if PF else (1 if LEAD else 0)
    if PF:
        S_TC, S_TW = S_IT, 0
        g.i(f"s_mov_b32 s{S_TC}, s{S_CH}")
        g.i("v_lshrrev_b32 v6, 1, v0")
        g.i("v_and_b32 v7, 1, v0")
        g.i("v_lshlrev_b32 v7, 7, v7")
        g.i(f"v_lshl_add_u32 v{VT+1}, v6, 10, v7")
        g.i(f"s_lshr_b32 s1, s2, 3")
        g.i(f"s_lshl_b32 s1, s1, 1")
        g.i(f"s_lshr_b32 s{S_T1}, s{S_A}, 1")
        g.i(f"s_add_u32 s1, s1, s{S_T1}")
        g.i(f"s_mul_i32 s1, s1, 3072")
        g.i(f"s_lshr_b32 s{S_T1}, s{S_HP}, 3")
        g.i(f"s_lshl_b32 s{S_T1}, s{S_T1}, 1")
        g.i(f"s_and_b32 s{S_B}, s{S_A}, 1")
        g.i(f"s_add_u32 s{S_T1}, s{S_T1}, s{S_B}")
        g.i(f"s_lshl_b32 s{S_T1}, s{S_T1}, 8")
        g.i(f"s_add_u32 s3, s1, s{S_T1}")
    def touch(ahead):
        if PF:
            g.i(f"s_lshl_b32 s{S_T0}, s{S_TC}, 7")
            g.i(f"s_add_u32 s{S_T0}, s{S_T0}, s{S_TX}")
            g.i(f"s_mul_i32 s{S_T1}, s{S_TC}, {64*3072}")
            g.i(f"s_add_u32 s{S_T1}, s{S_T1}, s3")
            g.i("s_mov_b64 exec, 0xff")
            g.i(f"buffer_load_dword v246, v{VT}, s[{S_X}:{S_X+3}], s{S_T0} offen")
            if g.opt.get('pfw', 1):
                g.i("s_mov_b64 exec, 0x3f")
                g.i(f"buffer_load_dword v246, v{VT+1}, s[{S_W}:{S_W+3}], s{S_T1} offen")
            g.i("s_mov_b64 exec, -1")
            g.i(f"s_add_u32 s{S_TC}, s{S_TC}, 1")
            g.i(f"s_and_b32 s{S_TC}, s{S_TC}, 7")
            return
        if not LEAD: return
        g.i(f"s_add_u32 s{S_T0}, s{S_CH}, {ahead}")
        g.i(f"s_and_b32 s{S_T0}, s{S_T0}, 7")
        g.i(f"s_lshl_b32 s{S_T0}, s{S_T0}, 7")
        g.i(f"s_add_u32 s{S_T0}, s{S_T0}, s{S_TX}")
        g.i("s_mov_b64 exec, 0xff")
        g.i(f"buffer_load_dword v246, v{VT}, s[{S_X}:{S_X+3}], s{S_T0} offen")
        g.i("s_mov_b64 exec, -1")
    g.i("v_lshrrev_b32 v6, 4, v0")
    g.i("v_and_b32 v7, 7, v0")
    g.i("v_xor_b32 v6, v6, v7")
    g.i("v_lshlrev_b32 v6, 4, v6")
    g.i("v_lshrrev_b32 v7, 3, v0")
    g.i(f"v_lshl_add_u32 v{VX}, v7, 10, v6")
    g.i(f"v_xor_b32 v{VX+1}, 64, v{VX}")
    g.i(f"v_add_u32 v{VX+2}, {2*7168}, v{VX}")
    g.i(f"v_add_u32 v{VX+3}, {3*7168}, v{VX+1}")
    g.i(f"v_add_u32 v{VX+1}, 7168, v{VX+1}")
    g.i(f"s_lshl_b32 s{S_B}, s{S_A}, 16")
    g.i(f"s_lshl_b32 s{S_D}, s{S_A}, 13")
    for p in range(3):
        g.i(f"v_add_u32 v6, {64*p}, v0")
        g.i("v_mul_u32_u24 v7, 43691, v6")
        g.i("v_lshrrev_b32 v7, 19, v7")
        g.i("v_mul_u32_u24 v110, 12, v7")
        g.i("v_sub_u32 v6, v6, v110")
        g.i("v_mul_u32_u24 v7, 3072, v7")
        g.i("v_lshrrev_b32 v110, 2, v6")
        g.i(f"v_lshl_add_u32 v7, v110, {6 if g.opt.get('x_wc') else 10}, v7")
        g.i("v_and_b32 v6, 3, v6")
        g.i("v_lshl_add_u32 v7, v6, 4, v7")
        g.i(f"v_subrev_u32 v{VW+p}, {1024*p}, v7")
    g.i(f"s_mul_i32 s{S_C}, s{S_A}, {16*3072}")
    g.i(f"s_lshl_b32 s{S_T1}, s{S_HP}, {7 if g.opt.get('x_wc') else 6}")
    g.i(f"s_add_u32 s{S_C}, s{S_C}, s{S_T1}")
    g.i(f"s_mul_i32 s{S_E}, s{S_A}, 3072")
    g.i(f"s_add_u32 s{S_E}, s{S_E}, {SLOT_W}")
    early_srds(g)
    def issue():
        g.i(f"s_lshl_b32 s{S_T1}, s{S_CH}, 7")
        g.i(f"s_add_u32 s{S_T1}, s{S_T1}, s{S_B}")
        g.i(f"s_mov_b32 m0, s{S_D}")
        g.i(f"s_add_u32 s{S_T0}, s{S_T1}, 32768")
        for p in range(4):
            g.i(f"buffer_load_dwordx4 v{VX+p}, s[{S_X}:{S_X+3}], s{S_T1} offen offset:{1024*p}{g.opt.get('xfl','')} lds")
        g.i(f"s_add_u32 m0, s{S_D}, 4096")
        g.i(f"s_mul_i32 s{S_T1}, s{S_CH}, {64*3072}")
        for p in range(4):
            g.i(f"buffer_load_dwordx4 v{VX+p}, s[{S_X}:{S_X+3}], s{S_T0} offen offset:{1024*p}{g.opt.get('xfl','')} lds")
        g.i(f"s_mov_b32 m0, s{S_E}")
        g.i(f"s_add_u32 s{S_T1}, s{S_T1}, s{S_C}")
        for p in range(3):
            if g.opt.get('x_now'): g.i(f"buffer_load_dword v244, v{VW+p}, s[{S_DBG if False else S_W}:{S_W+3}], s{S_C} offen"); continue
            g.i(f"buffer_load_dwordx4 v{VW+p}, s[{S_W}:{S_W+3}], s{S_T1} offen offset:{1024*p}{g.opt.get('wfl','')} lds")
        g.i(f"s_add_u32 s{S_CH}, s{S_CH}, 1")
        g.i(f"s_and_b32 s{S_CH}, s{S_CH}, 7")
    def next_slot():
        g.i(f"s_add_u32 s{S_D}, s{S_D}, {SLOT}")
        g.i(f"s_add_u32 s{S_E}, s{S_E}, {SLOT}")
        g.i(f"s_cmp_lt_u32 s{S_D}, {3*SLOT}")
        g.i(f"s_cselect_b32 s{S_T0}, 0, {3*SLOT}")
        g.i(f"s_sub_u32 s{S_D}, s{S_D}, s{S_T0}")
        g.i(f"s_sub_u32 s{S_E}, s{S_E}, s{S_T0}")
    if PF:
        q = []; nt = [0]
        def T():
            if nt[0] < 8: touch(0); q.extend('TT' if g.opt.get('pfw', 1) else 'T'); nt[0] += 1
        def D(c): issue(); q.extend([c] * 11)
        def W(c): g.i(f"s_waitcnt vmcnt({len(q) - 1 - max(i for i, x in enumerate(q) if x == c)})")
        for c in range(PF): T()
        D(0); T()
        next_slot(); D(1); T()
        late_srds(g); attn_consts(g); consts(g)
        for c in range(6):
            W(c)
            g.i("s_barrier")
            next_slot(); D(c + 2); T()
        W(6)
        g.i("s_barrier")
        g.i("s_waitcnt vmcnt(0)")
        g.i("s_barrier")
        g.i("s_mov_b32 s3, 0")
    if not PF: loader_plain(g, issue, next_slot, touch, LEAD, NT)
    loader_fin(g)

def loader_plain(g, issue, next_slot, touch, LEAD, NT):
    issue()
    g.st('ld_c0')
    next_slot(); issue()
    for c in range(2, LEAD): touch(c - 2)
    g.st('ld_c2')
    late_srds(g); attn_consts(g); consts(g)
    g.st('ld_pre')
    PRE = g.opt.get('pre', '')
    n0 = NT * max(LEAD - 2, 0)
    def pre():
        g.i(f"s_lshl_b32 s{S_T0}, s{S_TB}, 14")
        g.i(f"s_and_b32 s{S_T1}, s{S_A}, 1")
        g.i(f"s_lshl_b32 s{S_T1}, s{S_T1}, 13")
        g.i(f"s_add_u32 s{S_T0}, s{S_T0}, s{S_T1}")
        g.i(f"s_lshr_b32 s{S_T1}, s{S_A}, 1")
        g.i(f"s_lshl_b32 s{S_T1}, s{S_T1}, 17")
        g.i(f"s_add_u32 s{S_T0}, s{S_T0}, s{S_T1}")
        if PRE == 'r':
            g.i("v_lshlrev_b32 v6, 7, v0")
            g.i(f"buffer_load_dword v245, v6, s[{S_KV}:{S_KV+3}], s{S_T0} offen sc1")
            return 1
        g.i(f"s_add_u32 s{S_T1}, s{S_T0}, 4096")
        for k in range(8):
            g.i(f"buffer_store_dwordx4 v[{V_O[0]}:{V_O[0]+3}], v{V_L16}, s[{S_KV}:{S_KV+3}], s{S_T1 if k >= 4 else S_T0} offen offset:{1024*(k%4)} sc1")
        return 8
    np_ = 0
    PC = g.opt.get('prec', 1)
    for c, n in ((0, 11 + n0), (1, n0 + 11 + NT)):
        g.i(f"s_waitcnt vmcnt({n + (np_ if c == 1 else 0)})")
        if c == 0: g.st('ld_got0')
        g.i("s_barrier")
        next_slot(); issue(); touch(LEAD - 3)
        if PRE and c == PC: np_ = pre()
    if PRE and PC == 1:
        g.i(f"s_waitcnt vmcnt({11+2*NT+np_})")
        g.i("s_barrier")
        next_slot(); issue(); touch(LEAD - 3)
        g.i(f"s_mov_b32 s{S_IT}, 3")
        g.i(f"s_waitcnt vmcnt({11+2*NT+np_})")
        g.i("s_branch L_ld_loop2")
    g.i(f"s_mov_b32 s{S_IT}, 2")
    g.lab("L_ld_loop")
    g.i(f"s_waitcnt vmcnt({11+2*NT})")
    g.lab("L_ld_loop2")
    g.i("s_barrier")
    next_slot(); issue(); touch(LEAD - 3)
    g.i(f"s_add_u32 s{S_IT}, s{S_IT}, 1")
    g.i(f"s_cmp_lt_u32 s{S_IT}, 6")
    g.i("s_cbranch_scc1 L_ld_loop")
    g.st('ld_iss7')
    g.i(f"s_waitcnt vmcnt({11+2*NT})")
    g.i("s_barrier")
    g.i("s_waitcnt vmcnt(0)")
    g.i("s_barrier")

def loader_fin(g):
    g.i(f"s_cmp_lg_u32 s{S_WAVE}, 4")
    g.i("s_cbranch_scc1 L_ld_nocert")
    g.i(f"s_lshl_b32 s{S_T0}, s{S_BR}, 4")
    g.i(f"s_add_u32 s{S_T0}, s{S_T0}, s{S_HP}")
    g.i(f"s_lshl_b32 s{S_T0}, s{S_T0}, 3")
    g.i(f"v_mov_b32 v7, s{S_T0}")
    spin(g, "cert1", f"buffer_load_dword v{V_F}, v7, s[{S_DBG}:{S_DBG+3}], 0 offen sc1", 8)
    g.lab("L_ld_nocert")
    g.i(f"s_lshl_b32 s{S_T0}, s{S_A}, 11")
    g.i(f"s_add_u32 s{S_T0}, s{S_T0}, {L_QX}")
    g.i(f"v_add_u32 v6, s{S_T0}, v{V_L16}")
    attn_setup(g)
    g.i("s_waitcnt lgkmcnt(0)")
    g.i("s_barrier")
    g.i(f"ds_read_b128 {vr(V_Q[0],4)}, v6")
    g.i(f"ds_read_b128 {vr(V_Q[1],4)}, v6 offset:1024")
    g.i("s_branch L_attn")

class LdsQ:
    def __init__(self, g): self.g = g; self.q = []
    def issue(self, tag): self.q.append(tag)
    def need(self, tags):
        idx = max([i for i, t in enumerate(self.q) if t in tags], default=-1)
        if idx >= 0:
            n = len(self.q) - 1 - idx
            self.g.i(f"s_waitcnt lgkmcnt({min(n,15)})")
            self.q = self.q[idx + 1:]

def compute(g):
    g.lab("L_compute")
    g.i("s_waitcnt lgkmcnt(0)")
    late_srds(g)
    g.i(f"s_cmp_lg_u32 s{S_WAVE}, 0")
    g.i("s_cbranch_scc1 L_cp_noclear")
    g.i(f"s_lshl_b32 s{S_T0}, s{S_BR}, 4")
    g.i(f"s_add_u32 s{S_T0}, s{S_T0}, s{S_HP}")
    g.i(f"s_lshl_b32 s{S_T1}, s{S_T0}, 7")
    g.i(f"s_lshl_b32 s{S_T2}, s{S_TB}, 4")
    g.i(f"s_add_u32 s{S_T1}, s{S_T1}, s{S_T2}")
    g.i(f"v_lshl_add_u32 v6, v0, 2, s{S_T1}")
    g.i("v_mov_b32 v100, 0")
    g.i("s_mov_b64 exec, 0xf")
    g.i(f"buffer_store_dword v100, v6, s[{S_FL}:{S_FL+3}], 0 offen sc1")
    g.i("s_mov_b64 exec, -1")
    g.lab("L_cp_noclear")
    attn_consts(g)
    g.i("v_and_b32 v6, 31, v0")
    g.i(f"s_lshl_b32 s{S_T0}, s{S_WAVE}, 13")
    g.i(f"v_lshl_add_u32 v100, v6, 7, s{S_T0}")
    g.i("v_bfe_u32 v6, v0, 1, 3")
    g.i("v_lshrrev_b32 v7, 5, v0")
    g.i("v_xor_b32 v6, v6, v7")
    for s in range(4):
        g.i(f"v_xor_b32 v7, {2*s}, v6")
        g.i(f"v_lshl_add_u32 v{V_XA+s}, v7, 4, v100")
    g.i("v_lshrrev_b32 v6, 5, v0")
    g.i("v_bfe_u32 v7, v0, 2, 2")
    g.i("v_lshl_add_u32 v6, v6, 3, v7")
    g.i("v_mul_u32_u24 v6, 192, v6")
    g.i("v_bfe_u32 v7, v0, 4, 1")
    g.i("v_lshl_add_u32 v6, v7, 5, v6")
    g.i("v_and_b32 v7, 3, v0")
    g.i("v_lshl_add_u32 v6, v7, 3, v6")
    g.i(f"v_add_u32 v{V_WA}, {SLOT_W}, v6")
    for r in range(0, 96, 2):
        g.i(f"v_mov_b64 v[{V_ACC+r}:{V_ACC+r+1}], 0")
    S_A, S_B = 56, 57
    g.i("v_and_b32 v6, 0x33, v0")
    g.i("v_bfe_u32 v7, v0, 2, 1")
    g.i("v_lshl_or_b32 v6, v7, 3, v6")
    g.i("v_bfe_u32 v7, v0, 3, 1")
    g.i("v_lshl_or_b32 v6, v7, 2, v6")
    g.i(f"v_lshlrev_b32 v{KG}, 4, v6")
    g.i(f"s_lshl_b32 s{S_T0}, s{S_WAVE}, 12")
    g.i(f"v_add_u32 v{KL}, s{S_T0}, v{KG}")
    g.i("v_and_b32 v6, 15, v0")
    g.i("v_lshlrev_b32 v6, 4, v6")
    g.i("v_lshrrev_b32 v7, 5, v0")
    g.i("v_lshl_add_u32 v6, v7, 8, v6")
    g.i("v_add_u32 v6, 1024, v6")
    g.i("v_bfe_u32 v7, v0, 4, 1")
    g.i(f"v_lshl_add_u32 v{VG}, v7, 17, v6")
    g.i("v_lshl_add_u32 v6, v7, 14, v6")
    g.i(f"v_add_u32 v{VL}, s{S_T0}, v6")
    g.i(f"s_lshr_b32 s{S_T0}, s{S_T0}, 1")
    g.i(f"s_add_u32 s{S_T0}, s{S_T0}, {L_QX}")
    g.i(f"v_add_u32 v{QL}, s{S_T0}, v{V_L16}")
    if g.opt.get('dry', 1):
        g.i(f"s_cmp_lt_u32 s{S_WAVE}, 2")
        g.i("s_cbranch_scc1 L_dry_done")
        g.i(f"s_mov_b32 s{S_DRY}, 1")
        g.i(f"s_mov_b32 s{S_IT}, 7")
        g.i("s_mov_b64 vcc, 0")
        g.i(f"s_mov_b64 s[{S_M}:{S_M+1}], 0")
        g.i(f"s_mov_b64 s[{S_M+2}:{S_M+3}], 0")
        g.i(f"s_mov_b32 s{S_MK}, 0")
        g.i("s_waitcnt vmcnt(0) lgkmcnt(0)")
        g.i("s_setvskip -1, 0")
        g.i(f"s_cmp_eq_u32 s{S_WAVE}, 2")
        g.i("s_cbranch_scc1 L_at_done")
        g.i("s_branch L_cp_loop")
        g.lab("L_dry_ret")
        g.i("s_setvskip 0, 0")
        g.i("s_mov_b64 exec, -1")
        g.i("s_setprio 0")
        g.i(f"s_mov_b32 s{S_DRY}, 0")
        g.lab("L_dry_done")
    attn_setup(g)
    g.i(f"s_lshl_b32 s{S_T0}, s{S_WAVE}, 12")
    g.i(f"s_lshl_b32 s{S_G1}, s{S_TB}, 14")
    g.i(f"s_add_u32 s{S_G1}, s{S_G1}, s{S_T0}")
    g.i(f"s_add_u32 s{S_G2}, s{S_G1}, 131072")
    g.i(f"s_mov_b32 s{S_IT}, 0")
    g.i(f"s_mov_b32 s{S_A}, 0")
    g.i(f"s_mov_b32 s{S_B}, {SLOT}")
    q = LdsQ(g)
    def rd(setn, s, which):
        F = V_FR[setn]
        if which[0] == 'x':
            i = int(which[1])
            g.i(f"ds_read_b128 {vr(F+4*i,4)}, v{V_XA+s} offset:{4096*i}")
        else:
            p = {'q': 0, 'k': 1, 'v': 2}[which[0]]; i = int(which[1])
            g.i(f"ds_read_b64_tr_b16 {vr(F+8+4*p+2*i,2)}, v{V_WA} offset:{s*3072+i*768+p*64}")
        q.issue((setn, which))
    ORDER = ['x0', 'q0', 'q1', 'x1', 'k0', 'k1', 'v0', 'v1']
    def mf(setn, n):
        F = V_FR[setn]; p, i = n // 2, n % 2
        w, x = vr(F + 8 + 4 * p, 4), vr(F + 4 * i, 4)
        nm = 'qkv'[p]
        q.need({(setn, f'x{i}'), (setn, nm + '0'), (setn, nm + '1')})
        A, B = (w, x) if p < 2 else (x, w)
        acc = vr(V_ACC + 16 * n, 16)
        if g.opt.get('x_m16'):
            for hh in range(2):
                a4 = vr(V_ACC + 16 * n + 4 * hh, 4)
                g.i(f"v_mfma_f32_16x16x32_bf16 {a4}, {A}, {B}, {a4}")
        else:
            g.i(f"v_mfma_f32_32x32x16_bf16 {acc}, {A}, {B}, {acc}")
    def step(cur, nxt_s):
        plan = [ORDER[0:2], ORDER[2:4], ORDER[4:6], ORDER[6:8], [], []]
        for n in range(6):
            if cur is not None: mf(cur, n)
            if nxt_s is not None:
                for w in plan[n]: rd(1 - (cur if cur is not None else 1), nxt_s, w)
    g.i(f"s_cmp_lg_u32 s{S_WAVE}, 0")
    g.i("s_cbranch_scc1 L_cp_nocount")
    g.i(f"s_lshl_b32 s{S_T0}, s{S_BR}, 4")
    g.i(f"s_add_u32 s{S_T0}, s{S_T0}, s{S_HP}")
    g.i(f"s_lshl_b32 s{S_T0}, s{S_T0}, 3")
    g.i("s_mov_b64 exec, 1")
    g.i(f"v_mov_b32 v6, s{S_T0}")
    g.i("v_mov_b32 v7, 1")
    g.i(f"s_waitcnt vmcnt(0)")
    g.i(f"buffer_atomic_add v7, v6, s[{S_DBG}:{S_DBG+3}], 0 offen sc1")
    g.i("s_mov_b64 exec, -1")
    g.lab("L_cp_nocount")
    def prew():
        g.i(f"s_lshl_b32 s{S_T0}, s{S_TB}, 14")
        g.i(f"s_lshl_b32 s{S_T1}, s{S_WAVE}, 12")
        g.i(f"s_add_u32 s{S_T0}, s{S_T0}, s{S_T1}")
        g.i(f"s_add_u32 s{S_T1}, s{S_T0}, 131072")
        for k in range(8):
            g.i(f"buffer_store_dwordx4 v[{V_O[0]}:{V_O[0]+3}], v{V_L16}, s[{S_KV}:{S_KV+3}], s{S_T1 if k >= 4 else S_T0} offen offset:{1024*(k%4)} sc1")
    def prer():
        g.i("v_and_b32 v6, 31, v0")
        g.i("v_lshlrev_b32 v6, 7, v6")
        g.i("v_lshrrev_b32 v7, 5, v0")
        g.i("v_lshl_add_u32 v6, v7, 17, v6")
        g.i(f"buffer_load_dword v246, v6, s[{S_KV}:{S_KV+3}], s{S_G1} offen{g.opt.get('prefl', ' sc1')}")
    PR = g.opt.get('prer', 0)
    if PR == -1: prer()
    if g.opt.get('prew') == 1: prew()
    g.st('cp_pre')
    g.i("s_barrier")
    g.stamp(1)
    if g.opt.get('prew') == 2: prew()
    step(None, 0)
    g.lab("L_cp_loop")
    q.q = [(0, w) for w in ORDER]
    step(0, 1); step(1, 2); step(0, 3)
    g.i(f"s_add_u32 s{S_A}, s{S_A}, 1")
    g.i(f"s_cmp_eq_u32 s{S_A}, 3")
    g.i(f"s_cselect_b32 s{S_T0}, {(-2*SLOT) & 0xffffffff}, s{S_B}")
    g.i(f"s_cselect_b32 s{S_A}, 0, s{S_A}")
    g.i(f"s_add_u32 s{S_IT}, s{S_IT}, 1")
    g.i(f"s_cmp_eq_u32 s{S_IT}, 8")
    g.i("s_cbranch_scc1 L_cp_last")
    g.i("s_waitcnt lgkmcnt(0)")
    q.q = []
    g.i("s_barrier")
    for r in range(5):
        g.i(f"v_add_u32 v{V_XA+r}, s{S_T0}, v{V_XA+r}")
    PW = g.opt.get('pwd')
    if PW:
        c0, kind = PW
        if kind == 'd':
            g.i(f"s_cmp_lg_u32 s{S_IT}, {c0}")
            g.i("s_cbranch_scc1 L_cp_nopw")
            g.i("v_and_b32 v6, 31, v0")
            g.i("v_lshlrev_b32 v6, 7, v6")
            g.i("v_lshrrev_b32 v7, 5, v0")
            g.i("v_lshl_add_u32 v6, v7, 17, v6")
            g.i(f"buffer_store_dword v{V_O[0]}, v6, s[{S_KV}:{S_KV+3}], s{S_G1} offen sc1")
        elif kind == 'f':
            g.i(f"s_cmp_lg_u32 s{S_IT}, {c0}")
            g.i("s_cbranch_scc1 L_cp_nopw")
            for k in range(8):
                g.i(f"buffer_store_dwordx4 v[{V_O[0]}:{V_O[0]+3}], v{V_L16}, s[{S_KV}:{S_KV+3}], s{S_G2 if k >= 4 else S_G1} offen offset:{1024*(k%4)} sc1")
        elif kind == 's':
            g.i(f"s_sub_u32 s{S_T1}, s{S_IT}, {c0}")
            g.i(f"s_cmp_ge_u32 s{S_T1}, 4")
            g.i("s_cbranch_scc1 L_cp_nopw")
            g.i(f"s_lshl_b32 s{S_T1}, s{S_T1}, 10")
            g.i(f"s_add_u32 s{S_T2}, s{S_T1}, s{S_G2}")
            g.i(f"s_add_u32 s{S_T1}, s{S_T1}, s{S_G1}")
            for so in (S_T1, S_T2):
                g.i(f"buffer_store_dwordx4 v[{V_O[0]}:{V_O[0]+3}], v{V_L16}, s[{S_KV}:{S_KV+3}], s{so} offen sc1")
        g.lab("L_cp_nopw")
    if PR > 0:
        g.i(f"s_cmp_lg_u32 s{S_IT}, {PR}")
        g.i("s_cbranch_scc1 L_cp_nopre")
        prer()
        g.lab("L_cp_nopre")
    step(1, 0)
    g.i("s_branch L_cp_loop")
    g.lab("L_cp_last")
    q.q = [(1, w) for w in ORDER]
    step(1, None)
    g.stamp(2)
    g.i(f"s_mov_b32 s{S_T1}, {hex(QSCALE)}")
    g.i(f"s_mov_b32 s{S_T2}, s{S_T1}")
    g.i("s_nop 5")
    KVS = g.opt.get('kvs', ' sc1')
    T = 204
    n = 0
    for i in range(2):
        A = V_ACC + 16 * (2 + i)
        for hd in range(2):
            for r in range(4):
                g.i(f"v_cvt_pk_bf16_f32 v{T+4*n+r}, v{A+8*hd+2*r}, v{A+8*hd+2*r+1}")
            g.i(f"ds_write_b128 v{KL}, {vr(T+4*n,4)} offset:{16384*hd+2048*i}")
            n += 1
    for i in range(2):
        A = V_ACC + 16 * (4 + i)
        for gr in range(2):
            for r in range(4):
                g.i(f"v_cvt_pk_bf16_f32 v{T+4*n+r}, v{A+8*gr+2*r}, v{A+8*gr+2*r+1}")
            g.i(f"ds_write_b128 v{VL}, {vr(T+4*n,4)} offset:{2048*i+512*gr}")
            n += 1
    g.i(f"s_cmp_lg_u32 s{S_PG}, 0")
    g.i("s_cbranch_scc1 L_cp_later")
    for n in range(8): g.i(kv_store(n))
    g.lab("L_cp_later")
    for i in range(2):
        A = V_ACC + 16 * i
        for r in range(8, 16, 2):
            g.i(f"v_pk_mul_f32 v[{A+r}:{A+r+1}], v[{A+r}:{A+r+1}], s[{S_T0+1}:{S_T0+2}]")
        for r in range(4):
            g.i(f"v_cvt_pk_bf16_f32 v{A+8+r}, v{A+8+2*r}, v{A+8+2*r+1}")
        g.i(f"ds_write_b128 v{QL}, {vr(A+8,4)} offset:{1024*i}")
    for i in range(2):
        A = V_ACC + 16 * i
        for r in range(0, 8, 2):
            g.i(f"v_pk_mul_f32 v[{A+r}:{A+r+1}], v[{A+r}:{A+r+1}], s[{S_T0+1}:{S_T0+2}]")
        for r in range(4):
            g.i(f"v_cvt_pk_bf16_f32 v{V_Q[i]+r}, v{A+2*r}, v{A+2*r+1}")
    g.i("s_waitcnt lgkmcnt(0)")
    barrier_unless_dry(g, "b8")

U = 8
S_OA, S_OB = S_M + 6, S_M + 7
S_MK = S_M + 5
S_KV2 = S_X
S_KO = [None, 4, 5, 6, 7, 12, 13, 14]
S_LM = [[49, 50], [51, 52]]
S_OW = 1
V_VB = 4

def kv_store(n):
    if n < 4: adr, so, off = KG, (S_G2 if n % 2 else S_G1), 2048 * (n // 2)
    else: adr, so, off = VG, S_G1, 2048 * ((n - 4) // 2) + 512 * (n % 2)
    return f"buffer_store_dwordx4 {vr(KVT+4*n,4)}, v{adr}, s[{S_KV}:{S_KV+3}], s{so} offen offset:{off} sc1"

def spin_mask(g, tag, load):
    g.i(f"s_mov_b32 s{S_T3}, 0")
    g.lab(f"L_spin_{tag}")
    g.i(load)
    g.i(f"s_add_u32 s{S_T3}, s{S_T3}, 1")
    g.i("s_waitcnt vmcnt(0)")
    g.i(f"v_cmp_ne_u32 vcc, 1, v{V_F}")
    g.i(f"s_cmp_ge_u32 s{S_T3}, {SPIN_MAX}")
    g.i(f"s_cbranch_scc1 L_olr_{tag}")
    g.i(f"s_and_b32 vcc_lo, vcc_lo, s{S_MK}")
    g.i(f"s_cbranch_scc1 L_spin_{tag}")

def attn_setup(g):
    g.i(f"s_add_u32 s{S_KV2}, s{S_KV}, 131072")
    g.i(f"s_addc_u32 s{S_KV2+1}, s{S_KV+1}, 0")
    g.i(f"s_mov_b32 s{S_KV2+2}, 131072")
    g.i(f"s_mov_b32 s{S_KV2+3}, 0x20000")
    g.i(f"s_lshl_b32 s{S_LM[0][0]}, s{S_WAVE}, 11")
    g.i(f"s_add_u32 s{S_LM[0][1]}, s{S_LM[0][0]}, 16384")
    g.i(f"s_add_u32 s{S_LM[1][0]}, s{S_LM[0][0]}, {RING}")
    g.i(f"s_add_u32 s{S_LM[1][1]}, s{S_LM[0][0]}, {RING+16384}")
    for i in range(1, 8):
        g.i(f"s_cmp_gt_u32 s{S_TB}, {i-1}")
        g.i(f"s_cselect_b32 s{S_T0}, {i-1}, {i}")
        if i == 1:
            g.i(f"s_lshl_b32 s{S_T3}, s{S_T0}, 2")
            g.i(f"s_lshl_b32 s{S_MK}, 15, s{S_T3}")
        g.i(f"s_lshl_b32 s{S_T0}, s{S_T0}, 14")
        g.i(f"s_add_u32 s{S_KO[i]}, s{S_T0}, s{S_LM[0][0]}")
    g.i(f"s_lshr_b32 s{S_PG}, s{S_TB}, 1")
    g.i(f"s_min_u32 s{S_PG}, s{S_PG}, 2")
    g.i(f"s_cmp_ge_u32 s{S_WAVE}, 4")
    g.i(f"s_cselect_b32 s{S_PG}, 3, s{S_PG}")
    g.i(f"s_and_b32 s{S_F}, s{S_HP}, 7")
    g.i(f"s_lshl_b32 s{S_T0}, s{S_F}, 7")
    g.i(f"s_lshl_b32 s55, s{S_WAVE}, 16")
    g.i(f"s_add_u32 s55, s55, s{S_T0}")
    g.i(f"s_lshl_b32 s{S_E}, s{S_WAVE}, 13")
    g.i(f"s_add_u32 s{S_E}, s{S_E}, {L_WO}")
    g.i(f"s_and_b32 s{S_T0}, s{S_WAVE}, 3")
    g.i(f"s_lshl_b32 s{S_T0}, s{S_T0}, 1")
    g.i(f"s_lshl_b32 s{S_T1}, s{S_TB}, 3")
    g.i(f"s_add_u32 s{S_T0}, s{S_T0}, s{S_T1}")
    g.i(f"s_lshl_b32 s{S_OA}, s{S_T0}, 15")
    g.i(f"s_lshr_b32 s{S_T1}, s{S_WAVE}, 2")
    g.i(f"s_lshl_b32 s{S_T2}, s{S_HP}, 1")
    g.i(f"s_add_u32 s{S_T1}, s{S_T1}, s{S_T2}")
    g.i(f"s_lshl_b32 s{S_T2}, s{S_T1}, 10")
    g.i(f"s_add_u32 s{S_OA}, s{S_OA}, s{S_T2}")
    g.i(f"s_add_u32 s{S_OB}, s{S_OA}, 32768")
    if True:
        g.i(f"s_lshr_b32 s{S_T0}, s{S_HP}, 3")
        g.i(f"s_lshl_b32 s{S_T0}, s{S_T0}, 2")
        g.i(f"s_and_b32 s{S_T1}, s{S_WAVE}, 3")
        g.i(f"s_add_u32 s{S_T0}, s{S_T0}, s{S_T1}")
        g.i(f"s_lshl_b32 s{S_T1}, s{S_TB}, 3")
        g.i(f"s_add_u32 s{S_T0}, s{S_T0}, s{S_T1}")
        g.i(f"s_lshl_b32 s{S_T0}, s{S_T0}, 1")
        g.i(f"s_lshr_b32 s{S_T1}, s{S_WAVE}, 2")
        g.i(f"s_add_u32 s{S_T0}, s{S_T0}, s{S_T1}")
        g.i(f"s_lshl_b32 s{S_OW}, s{S_T0}, 15")
        g.i(f"s_lshl_b32 s{S_T0}, s{S_BR}, 10")
        g.i(f"s_add_u32 s{S_OW}, s{S_OW}, s{S_T0}")
        g.i(f"s_lshl_b32 s{S_T0}, s{S_F}, 7")
        g.i(f"s_add_u32 s{S_OW}, s{S_OW}, s{S_T0}")

def attention(g):
    opt = g.opt
    g.lab("L_attn")
    g.stamp(3)
    g.i(f"ds_read_b128 {vr(V_K,4)}, v{V_KA}")
    g.i(f"ds_read_b128 {vr(V_V[0],4)}, v{V_VA}")
    g.i(f"ds_read_b128 {vr(V_V[0]+4,4)}, v{V_VA} offset:512")
    if opt.get('x_em'):
        g.i("s_mov_b32 s100, 0xffff"); g.i("s_mov_b32 s101, 0xffff")
    g.i("s_setprio 3")
    g.i("s_waitcnt lgkmcnt(2)")
    g.i(f"v_mfma_f32_32x32x16_bf16 {vr(V_S[0],16)}, {vr(V_K,4)}, {vr(V_Q[0],4)}, 0")
    dry_exit(g)
    g.i("s_nop 9")
    g.i("s_waitcnt lgkmcnt(0)")
    poll = f"buffer_load_dword v{V_F}, v{V_FA}, s[{S_FL}:{S_FL+3}], 0 offen sc1"
    side = []
    ev = {}
    def at(it, p, slot, *ins): ev.setdefault((it, p, slot), []).extend(ins)
    def kv(i, n):
        return f"buffer_load_dwordx4 v{V_L16}, {sr(S_KV2 if n >= 2 else S_KV, 4)}, s{S_KO[i]} offen offset:{1024*(n%2)}{opt.get('kvl', ' sc1')} lds"
    def check(tag, n):
        def f():
            if n is not None: g.i(f"s_waitcnt vmcnt({n})")
            g.i(f"v_cmp_ne_u32 vcc, 1, v{V_F}")
            g.i("s_nop 0")
            g.i(f"s_and_b32 vcc_lo, vcc_lo, s{S_MK}")
            g.i(f"s_cbranch_scc1 L_ol_{tag}")
            g.lab(f"L_olr_{tag}")
            side.append((tag, lambda: spin_mask(g, tag, poll)))
        return f
    def group(pg, tag, body):
        def f():
            g.i(f"s_cmp_lg_u32 s{S_PG}, {pg}")
            g.i(f"s_cbranch_scc1 L_pg_{tag}")
            body()
            g.lab(f"L_pg_{tag}")
        return f
    def flag():
        g.i(f"s_lshl_b32 s{S_T0}, s{S_TB}, 2")
        g.i(f"s_add_u32 s{S_T0}, s{S_T0}, s{S_WAVE}")
        g.i(f"s_lshl_b64 exec, 1, s{S_T0}")
        g.i("v_mov_b32 v6, 1")
        g.i(f"buffer_store_dword v6, v{V_FA}, s[{S_FL}:{S_FL+3}], 0 offen sc1")
        g.i("s_mov_b64 exec, -1")
    def stores(it, p0, pg):
        for k, (a_, b_) in enumerate(((0, 3), (3, 6), (6, 8))):
            at(it, p0 + k, 'p1', group(pg, f"s{pg}{k}", lambda a_=a_, b_=b_: [g.i(kv_store(n)) for n in range(a_, b_)]))
    def burst(i, it=None, p=None, slot=None):
        sl = i % 2
        if not opt.get('spread', 0):
            return [f"s_mov_b32 m0, s{S_LM[sl][0]}", "s_nop 0", kv(i, 0), kv(i, 1), f"s_mov_b32 m0, s{S_LM[sl][1]}", "s_nop 0", kv(i, 2), kv(i, 3)]
        seq = [(q, k) for q in range(p, 14) for k in ('p2', 'qk', 'p1')]
        seq = seq[seq.index((p, slot)) + 1:]
        at(it, *seq[0], kv(i, 1), f"s_mov_b32 m0, s{S_LM[sl][1]}")
        at(it, *seq[1], kv(i, 2))
        at(it, *seq[2], kv(i, 3))
        return [f"s_mov_b32 m0, s{S_LM[sl][0]}", "s_nop 0", kv(i, 0)]
    def count():
        g.i(f"s_cmp_lg_u32 s{S_WAVE}, 7")
        g.i("s_cbranch_scc1 L_at_nocnt")
        g.i(f"s_lshl_b32 s{S_T0}, s{S_BR}, 4")
        g.i(f"s_add_u32 s{S_T0}, s{S_T0}, s{S_HP}")
        g.i(f"s_lshl_b32 s{S_T0}, s{S_T0}, 3")
        g.i("s_mov_b64 exec, 1")
        g.i(f"v_mov_b32 v6, s{S_T0}")
        g.i("v_mov_b32 v7, 1")
        g.i(f"buffer_atomic_add v7, v6, s[{S_DBG}:{S_DBG+3}], 0 offen offset:4 sc1")
        g.i("s_mov_b64 exec, -1")
        g.lab("L_at_nocnt")
    pp, pi0, pc0, ps1, pi1, pc1, pi3, pc3 = opt.get('ev', (1, 8, 10, 3, 7, 9, 7, 9))
    at(0, pp, 'qk', group(0, "f0", lambda: (g.st('pub_pre'), g.i("s_waitcnt vmcnt(0)"), g.st('pub_ack'), flag())))
    stores(0, ps1, 1)
    at(0, pi0, 'qk', poll)
    at(0, pc0, 'qk', "s_waitcnt vmcnt(0)", group(1, "f1", flag), check("kv0", None), lambda: g.st('chk_ok'), *burst(1, 0, pc0, 'qk'),
       f"s_mov_b32 s{S_MK}, 0xffff")
    at(1, pi1, 'qk', poll)
    at(1, pc1, 'qk', check("kv1", 0), *burst(2, 1, pc1, 'qk'), f"s_mov_b32 s{S_MK}, -1")
    stores(1, pc1 + 1 + opt.get('spread', 0), 2)
    at(2, 15, 'qk', group(2, "f2", flag))
    at(3, pi3, 'qk', poll)
    at(3, pc3, 'p2', check("kv2", 0), *burst(4, 3, pc3, 'p2'))
    late = {i: 0 for i in range(8)}
    dp = opt.get('dma', (1, 3, 5, 7))
    for i in (2, 4, 5, 6):
        sl = (i + 1) % 2
        at(i, dp[0] - 1, 'p2x', f"s_mov_b32 m0, s{S_LM[sl][0]}")
        at(i, dp[0], 'qk', kv(i + 1, 0))
        at(i, dp[1], 'qk', kv(i + 1, 1))
        at(i, dp[2], 'p2', f"s_mov_b32 m0, s{S_LM[sl][1]}")
        at(i, dp[2], 'qk', kv(i + 1, 2))
        at(i, dp[3], 'qk', kv(i + 1, 3))
    wp = opt.get('wop', (11, 13))
    for i in range(1, 5):
        for k, p in enumerate(wp):
            at(i, p, 'p2', f"s_add_u32 m0, s{S_E}, {(2*(i-1)+k)*1024}")
            at(i, p, 'qk', f"buffer_load_dwordx4 v{V_WOA}, s[{S_WO}:{S_WO+3}], s55 offen lds")
            at(i, p, 'p1', "s_add_u32 s55, s55, 8192")
        late[i] += 2
    for k, so in enumerate((S_OA, S_OB)):
        at(5, 9 + 2 * k, 'qk', f"buffer_store_dwordx4 v[252:255], v{V_L16}, s[{S_O}:{S_O+3}], s{so} offen sc1")
    late[5] += 2
    if opt.get('opw', 2):
        i = opt.get('opw', 2)
        at(i, 12, 'p1', f"buffer_store_dwordx4 v[252:255], v{V_OW}, s[{S_OUT}:{S_OUT+3}], s{S_OW} offen sc1", f"s_add_u32 s{S_T0}, s{S_OW}, 16384")
        at(i, 13, 'p1', f"buffer_store_dwordx4 v[252:255], v{V_OW}, s[{S_OUT}:{S_OUT+3}], s{S_T0} offen sc1")
        late[i] += 2
    if opt.get('opr'):
        at(7, 3, 'qk', f"buffer_load_dwordx4 v[236:239], v{V_OW}, s[{S_OUT}:{S_OUT+3}], s{S_OW} offen", f"s_add_u32 s{S_T0}, s{S_OW}, 16384")
        at(7, 5, 'qk', f"buffer_load_dwordx4 v[236:239], v{V_OW}, s[{S_OUT}:{S_OUT+3}], s{S_T0} offen")
    at(7, 1, 'qk', count)
    if opt.get('x_late0'): late = {i: 0 for i in range(8)}
    prio = opt.get('prio', {0: 3, 5: 2, 10: 1, 13: 0})
    for i in range(8):
        for p, v in prio.items():
            ii, q = (i, p - 1) if p else (i - 1, 15)
            if ii >= 0: at(ii, q, 'p1', f"s_setprio {v}")
    def emit(it, p, slot):
        for x in ev.pop((it, p, slot), []):
            x() if callable(x) else g.i(x)
    p2, pq, p1 = opt.get('pos', (1, 5, 10))
    for it in range(8):
        if opt.get('itst'):
            g.i("s_memtime s[98:99]")
            g.i("s_memrealtime s[100:101]")
            g.i("s_waitcnt lgkmcnt(0)")
            g.i(f"v_writelane_b32 v250, s98, {it}")
            g.i(f"v_writelane_b32 v250, s100, {it+9}") if it < 7 else None
        for p in range(2 * U):
            b, t = p % 2, p // 2
            S, So = V_S[b], V_S[1 - b]
            nt = (t + 1) % U
            sl = (it + (t == U - 1)) % 2
            VA = V_VB if sl else V_VA
            last = it == 7 and t == U - 1
            skip = last or (opt.get('x_half') and t % 2 == 0)
            for e in range(16):
                g.i(f"v_exp_f32 v{S+e}, v{S+e}")
                if e == p2:
                    tp = (p - 1) // 2
                    if it or p:
                        g.i(f"v_smfmac_f32_32x32x32_bf16 {vr(V_O[1-b],16)}, {vr(V_V[tp%2]+4,4)}, {vr(So+8,8)}, v{V_IDX}")
                    emit(it, p, 'p2x')
                    if b == 0:
                        if t == U - 1 and it < 7:
                            if it == 1:
                                g.i(f"s_waitcnt vmcnt({late[it] + 8})")
                                g.i(f"s_cmp_eq_u32 s{S_PG}, 2")
                                g.i("s_cbranch_scc1 L_w8")
                                g.i(f"s_waitcnt vmcnt({late[it]})")
                                g.lab("L_w8")
                            else: g.i(f"s_waitcnt vmcnt({late[it]})")
                            if it == 0: g.st('chk1_ok')
                            g.i("s_barrier")
                        if not skip:
                            xm = opt.get('x_em') and (it or t)
                            if xm: g.i("s_mov_b64 exec, s[100:101]")
                            g.i(f"ds_read_b128 {vr(V_V[(t+1)%2],4)}, v{VA} offset:{nt*2048}")
                            if xm: g.i("s_mov_b64 exec, -1")
                    elif not last:
                        g.i("s_waitcnt lgkmcnt(1)")
                    emit(it, p, 'p2')
                if e == pq:
                    if not (last and b):
                        g.i(f"v_mfma_f32_32x32x16_bf16 {vr(So,16)}, {vr(V_K,4)}, {vr(V_Q[1-b],4)}, 0")
                    if b == 0 and not skip:
                        g.i(f"ds_read_b128 {vr(V_K,4)}, v{V_KA} offset:{sl*RING+nt*2048}")
                    emit(it, p, 'qk')
                if e == p1:
                    g.i(f"v_smfmac_f32_32x32x32_bf16 {vr(V_O[b],16)}, {vr(V_V[t%2],4)}, {vr(S,8)}, v{V_IDX}")
                    if b == 0 and last: pass
                    elif b == 0 and skip: pass
                    elif b == 0:
                        xm = opt.get('x_em') and (it or t)
                        if xm: g.i("s_mov_b64 exec, s[100:101]")
                        g.i(f"ds_read_b128 {vr(V_V[(t+1)%2]+4,4)}, v{VA} offset:{nt*2048+512}")
                        if xm: g.i("s_mov_b64 exec, -1")
                    elif not last:
                        g.i("s_waitcnt lgkmcnt(0)")
                    emit(it, p, 'p1')
    assert not ev, ev
    g.side = side
    g.lab("L_at_done")
    g.i("s_nop 1")
    g.i(f"v_smfmac_f32_32x32x32_bf16 {vr(V_O[1],16)}, {vr(V_V[1]+4,4)}, {vr(V_S[1]+8,8)}, v{V_IDX}")
    g.tail_pad = True
    g.stamp(4)
    if opt.get('itst'):
        g.i("s_memtime s[98:99]")
        g.i("s_waitcnt lgkmcnt(0)")
        g.i(f"v_writelane_b32 v250, s98, 8")
    g.i(f"s_mov_b32 s{S_T0}, 0x2b800000")
    g.i(f"s_mov_b32 s{S_T1}, 0x53800000")
    g.i(f"s_mov_b32 s{S_T2}, 0x7f800000")
    for q in range(2):
        O = V_O[q]
        g.i(f"v_maximum3_f32 v6, abs(v{O}), abs(v{O+1}), abs(v{O+2})")
        g.i(f"v_maximum3_f32 v7, abs(v{O+3}), abs(v{O+4}), abs(v{O+5})")
        g.i(f"v_maximum3_f32 v6, v6, abs(v{O+6}), abs(v{O+7})")
        g.i(f"v_maximum3_f32 v6, v6, v7, v7")
        g.i(f"v_cmp_nle_f32 s[{S_M}:{S_M+1}], s{S_T0}, v{O+8}")
        g.i(f"v_cmp_nge_f32 s[{S_M+2}:{S_M+3}], s{S_T1}, v{O+8}")
        g.i(f"v_cmp_ngt_f32 vcc, s{S_T2}, v6")
        g.i(f"v_rcp_f32 v{V_S[0]+2*q}, v{O+8}")
        g.i(f"s_or_b64 s[{S_M}:{S_M+1}], s[{S_M}:{S_M+1}], s[{S_M+2}:{S_M+3}]")
        g.i(f"s_or_b64 s[{S_M}:{S_M+1}], s[{S_M}:{S_M+1}], vcc")
        g.i("s_branch L_fallback" if opt.get('force_fallback') else "s_cbranch_scc1 L_fallback")
    g.lab("L_at_store")
    for q in range(2):
        O = V_O[q]
        for r in range(0, 8, 2):
            g.i(f"v_pk_mul_f32 v[{O+r}:{O+r+1}], v[{O+r}:{O+r+1}], v[{V_S[0]+2*q}:{V_S[0]+2*q+1}] op_sel_hi:[1,0]")
        for r in range(4):
            g.i(f"v_cvt_pk_bf16_f32 v{O+r}, v{O+2*r}, v{O+2*r+1}")
        g.i(f"buffer_store_dwordx4 {vr(O,4)}, v{V_L16}, s[{S_O}:{S_O+3}], s{S_OB if q else S_OA} offen sc1")

P_WO = 100
P_OF = 8
def outproj(g):
    opt = g.opt
    A0, A1 = 228, 72
    WA0, WA1, RA, OA = 244, 245, 246, 247
    g.i(f"s_lshr_b32 s{S_E}, s{S_WAVE}, 2")
    g.i(f"s_lshl_b32 s{S_T0}, s{S_E}, 15")
    g.i(f"s_add_u32 s{S_T0}, s{S_T0}, {L_WO}")
    g.i("v_lshrrev_b32 v6, 5, v0")
    g.i("v_bfe_u32 v7, v0, 2, 2")
    g.i("v_lshl_add_u32 v6, v6, 2, v7")
    g.i(f"v_lshl_add_u32 v6, v6, 7, s{S_T0}")
    g.i("v_bfe_u32 v7, v0, 3, 2")
    g.i("v_and_b32 v2, 1, v7")
    g.i("v_lshl_add_u32 v6, v2, 6, v6")
    g.i("v_lshrrev_b32 v7, 1, v7")
    g.i("v_lshl_add_u32 v6, v7, 5, v6")
    g.i("v_and_b32 v7, 3, v0")
    g.i(f"v_lshl_add_u32 v6, v7, 3, v6")
    g.i(f"s_lshl_b32 s{S_T0}, s{S_E}, 6")
    g.i(f"v_xor_b32 v{WA0}, s{S_T0}, v6")
    g.i(f"v_xor_b32 v{WA1}, 64, v{WA0}")
    n = 0
    def wo_reads(s0, s1):
        for s in range(s0, s1):
            for f in range(2):
                for i in range(2):
                    g.i(f"ds_read_b64_tr_b16 {vr(P_WO+8*s+4*f+2*i,2)}, v{WA1 if f else WA0} offset:{s*2048+i*1024}")
    g.stamp(5)
    g.i(f"s_lshl_b32 s{S_T0}, s{S_BR}, 7")
    g.i("v_and_b32 v6, 15, v0")
    g.i(f"v_lshl_add_u32 v4, v6, 3, s{S_T0}")
    g.i(f"buffer_load_dword v5, v4, s[{S_DBG}:{S_DBG+3}], 0 offen offset:4 sc1")
    for s0 in range(0, 16, 3):
        if s0: g.i("s_waitcnt lgkmcnt(2)")
        wo_reads(s0, min(s0 + 3, 16))
    g.i(f"s_lshr_b32 s{S_T0}, s{S_HP}, 3")
    g.i(f"s_lshl_b32 s{S_T0}, s{S_T0}, 2")
    g.i(f"s_and_b32 s{S_T1}, s{S_WAVE}, 3")
    g.i(f"s_add_u32 s{S_A}, s{S_T0}, s{S_T1}")
    g.i(f"s_lshl_b32 s{S_T0}, s{S_TB}, 3")
    g.i(f"s_add_u32 s{S_A}, s{S_A}, s{S_T0}")
    g.i(f"s_lshl_b32 s{S_B}, s{S_A}, 15")
    g.i(f"s_lshl_b32 s{S_T0}, s{S_E}, 14")
    g.i(f"s_add_u32 s{S_B}, s{S_B}, s{S_T0}")
    g.i(f"s_add_u32 s{S_C}, s{S_B}, 4096")
    g.i(f"s_add_u32 s{S_D}, s{S_B}, 8192")
    g.i(f"s_add_u32 s{S_IT}, s{S_B}, 12288")
    g.i(f"v_lshlrev_b32 v2, 10, v6")
    g.i(f"v_add_u32 v2, 1020, v2")
    g.i(f"s_lshl_b32 s{S_T0}, s{S_WAVE}, 12")
    g.i(f"v_add_u32 v{RA}, s{S_T0}, v{V_L16}")
    if not opt.get('fl', 1):
        g.i("v_and_b32 v6, 31, v0")
        g.i("v_lshlrev_b32 v6, 11, v6")
        g.i("v_lshrrev_b32 v7, 5, v0")
        g.i(f"v_lshl_add_u32 v{OA}, v7, 4, v6")
        g.i(f"s_lshl_b32 s{S_A}, s{S_A}, 16")
        g.i(f"s_lshl_b32 s{S_T0}, s{S_BR}, 10")
        g.i(f"s_add_u32 s{S_A}, s{S_A}, s{S_T0}")
        g.i(f"s_lshl_b32 s{S_T0}, s{S_F}, 7")
        g.i(f"s_add_u32 s{S_A}, s{S_A}, s{S_T0}")
        g.i(f"s_lshl_b32 s{S_T0}, s{S_E}, 6")
        g.i(f"s_add_u32 s{S_A}, s{S_A}, s{S_T0}")
    if opt.get('fl', 1):
        g.i(f"s_and_b32 s{S_T0}, s{S_WAVE}, 3")
        g.i(f"s_lshl_b32 s{S_T0}, s{S_T0}, 12")
        g.i(f"s_add_u32 s{S_T0}, s{S_T0}, {RING}")
        g.i("v_and_b32 v6, 31, v0")
        g.i(f"v_lshl_add_u32 v6, v6, 7, s{S_T0}")
        g.i("v_lshrrev_b32 v7, 5, v0")
        g.i(f"v_lshl_add_u32 v7, s{S_E}, 2, v7")
        g.i("v_and_b32 v91, 7, v0")
        g.i("v_xor_b32 v7, v7, v91")
        g.i("v_lshl_add_u32 v88, v7, 4, v6")
        g.i("v_xor_b32 v89, 32, v88")
        g.i("v_lshrrev_b32 v6, 3, v0")
        g.i("v_xor_b32 v7, v6, v91")
        g.i(f"v_lshl_add_u32 v6, v6, 7, s{S_T0}")
        g.i("v_lshl_add_u32 v6, v7, 4, v6")
        g.i(f"v_lshl_add_u32 v90, s{S_E}, 11, v6")
    g.i(f"s_mov_b32 s{S_T3}, 0")
    probe = f"buffer_load_dword v3, v2, s[{S_O}:{S_O+3}], s{S_B} offen sc1"
    g.lab("L_spin_c")
    g.i("s_waitcnt vmcnt(0)")
    g.i("v_cmp_gt_u32 vcc, 8, v5")
    g.i(f"s_add_u32 s{S_T3}, s{S_T3}, 1")
    g.i("s_cbranch_vccz L_spin_o")
    g.i(f"buffer_load_dword v5, v4, s[{S_DBG}:{S_DBG+3}], 0 offen offset:4 sc1")
    g.i(f"s_cmp_lt_u32 s{S_T3}, {SPIN_MAX}")
    g.i("s_cbranch_scc1 L_spin_c")
    g.lab("L_spin_o")
    if opt.get('probe', 1):
        g.i(probe)
        g.i(f"s_add_u32 s{S_T3}, s{S_T3}, 1")
        g.i(f"s_cmp_ge_u32 s{S_T3}, {SPIN_MAX}")
        g.i("s_cbranch_scc1 L_spun_o")
        g.i("s_waitcnt vmcnt(0)")
        g.i("v_cmp_eq_u32 vcc, -1, v3")
        g.i("s_cbranch_vccnz L_spin_o")
    else:
        g.i(f"s_add_u32 s{S_T3}, s{S_T3}, 1")
    g.lab("L_spun_o")
    g.stamp(6)
    for s in range(16):
        so = (S_B, S_C, S_D, S_IT)[s // 4]
        g.i(f"buffer_load_dwordx4 {vr(P_OF+4*s,4)}, v{V_L16}, s[{S_O}:{S_O+3}], s{so} offen offset:{1024*(s%4)} sc1")
    g.i("v_mov_b32 v3, 0")
    g.i("s_waitcnt lgkmcnt(0)")
    for s in range(16):
        g.i(f"s_waitcnt vmcnt({15-s})")
        for f, A in ((1, A1), (0, A0)):
            g.i(f"v_mfma_f32_32x32x16_bf16 {vr(A,16)}, {vr(P_WO+8*s+4*f,4)}, {vr(P_OF+4*s,4)}, {vr(A,16) if s else 0}")
            g.i(f"v_max3_u32 v3, v3, v{P_OF+4*s+2*f}, v{P_OF+4*s+2*f+1}")
    g.i("v_cmp_eq_u32 vcc, -1, v3")
    g.i(f"s_cmp_ge_u32 s{S_T3}, {SPIN_MAX}")
    g.i("s_cbranch_scc1 L_op_go")
    g.i("s_cbranch_vccnz L_spin_o")
    g.lab("L_op_go")
    g.i("s_nop 5")
    for r in range(4):
        g.i(f"ds_write_b128 v{RA}, {vr(A1+4*r,4)} offset:{1024*r}")
    g.i("s_waitcnt lgkmcnt(0)")
    g.i(f"v_xor_b32 v{RA}, 16384, v{RA}")
    barrier_unless_dry(g, "b9")
    for r in range(4):
        g.i(f"ds_read_b128 {vr(P_OF+4*r,4)}, v{RA} offset:{1024*r}")
    for r in range(4):
        g.i(f"s_waitcnt lgkmcnt({3-r})")
        for k in range(4):
            g.i(f"v_add_f32 v{A0+4*r+k}, v{A0+4*r+k}, v{P_OF+4*r+k}")
        for k in range(2):
            g.i(f"v_cvt_pk_bf16_f32 v{24+2*r+k}, v{A0+4*r+2*k}, v{A0+4*r+2*k+1}")
        if r % 2:
            g.i("s_nop 1")
            g.i(f"v_permlane32_swap_b32 v{24+2*r-2}, v{24+2*r}")
            g.i(f"v_permlane32_swap_b32 v{24+2*r-1}, v{24+2*r+1}")
            if opt.get('fl', 1):
                g.i(f"ds_write_b128 v{88+r//2}, {vr(24+2*r-2,4)}")
            else:
                g.i(f"buffer_store_dwordx4 {vr(24+2*r-2,4)}, v{OA}, s[{S_OUT}:{S_OUT+3}], s{S_A} offen offset:{16*(r-1)}{opt.get('outs','')}")
    if opt.get('fl', 1):
        g.i(f"s_add_u32 s{S_T0}, s{S_OW}, 16384")
        g.i("s_waitcnt lgkmcnt(0)")
        barrier_unless_dry(g, "b10")
        g.i("ds_read_b128 v[24:27], v90")
        g.i("ds_read_b128 v[28:31], v90 offset:1024")
        g.i("s_waitcnt lgkmcnt(1)")
        g.i(f"buffer_store_dwordx4 v[24:27], v{V_OW}, s[{S_OUT}:{S_OUT+3}], s{S_OW} offen{opt.get('outs','')}")
        g.i("s_waitcnt lgkmcnt(0)")
        g.i(f"buffer_store_dwordx4 v[28:31], v{V_OW}, s[{S_OUT}:{S_OUT+3}], s{S_T0} offen{opt.get('outs','')}")
    dry_exit(g)
    if g.diag:
        g.i("s_waitcnt vmcnt(0)")
        g.stamp(7)
        g.i("s_waitcnt lgkmcnt(0)")
        if g.diag == 3:
            a_, b_, K = opt['leak']
            if a_ in (1, 2) or b_ in (1, 2):
                g.i(f"s_cmp_ge_u32 s{S_WAVE}, 4")
                g.i("s_cbranch_scc1 L_end")
            if opt.get('leakc'):
                g.i(f"s_sub_u32 s{S_T0}, s{64+4*b_}, s{64+4*a_}")
                g.i(f"s_lshr_b32 s{S_T0}, s{S_T0}, 4")
            else:
                g.i(f"s_sub_u32 s{S_T0}, s{66+4*b_}, s{66+4*a_}")
            g.i(f"s_mul_i32 s{S_T0}, s{S_T0}, {K}")
            g.lab("L_leak")
            g.i("s_memrealtime s[98:99]")
            g.i("s_waitcnt lgkmcnt(0)")
            g.i(f"s_sub_u32 s{S_T1}, s98, s{66+4*7}")
            g.i(f"s_cmp_lt_u32 s{S_T1}, s{S_T0}")
            g.i("s_cbranch_scc1 L_leak")
            g.i("s_endpgm")
        if g.diag == 2:
            g.i(f"s_cmp_ge_u32 s{S_WAVE}, 4")
            g.i("s_cbranch_scc1 L_end")
            g.i("s_mov_b64 exec, 1")
            for k in range(1, 8):
                g.i(f"s_sub_u32 s{S_T0}, s{66+4*k}, s66")
                g.i(f"v_mov_b32 v6, s{S_T0}")
                g.i(f"v_mov_b32 v7, {8*k+4}")
                g.i(f"buffer_atomic_umax v6, v7, s[{S_DBG}:{S_DBG+3}], 0 offen sc1")
            g.i(f"s_sub_u32 s{S_T0}, s{64+4*4}, s{64+4*3}")
            g.i(f"v_mov_b32 v6, s{S_T0}")
            g.i(f"v_mov_b32 v7, 4")
            g.i(f"buffer_atomic_umax v6, v7, s[{S_DBG}:{S_DBG+3}], 0 offen sc1")
            g.i("s_endpgm")
        g.i(f"s_lshl_b32 s{S_T0}, s2, 3")
        g.i(f"s_add_u32 s{S_T0}, s{S_T0}, s{S_WAVE}")
        g.i(f"s_lshl_b32 s{S_T0}, s{S_T0}, 7")
        g.i(f"s_add_u32 s{S_T0}, s{S_T0}, {WS_STAMP}")
        srd(g.a, S_X, 96, 128, f"s{S_T0}")
        for k in range(32):
            g.i(f"v_mov_b32 v{36+k}, s{64+k}")
        g.i("v_mov_b32 v6, 0")
        for k in range(8):
            g.i(f"buffer_store_dwordx4 {vr(36+4*k,4)}, v6, s[{S_X}:{S_X+3}], 0 offen offset:{16*k}")
        if opt.get('itst'):
            g.i(f"s_add_u32 s{S_T0}, s{S_T0}, {1<<20}")
            srd(g.a, S_X, 96, 64, f"s{S_T0}")
            g.i("v_lshlrev_b32 v6, 2, v0")
            g.i(f"buffer_store_dword v250, v6, s[{S_X}:{S_X+3}], 0 offen")
    g.lab("L_end")
    g.i("s_endpgm")

def fallback(g):
    C = [100, 116]; M = [132, 133]; GV = 134
    g.lab("L_fallback")
    g.i(f"s_lshr_b32 s{S_T0}, s{S_WAVE}, 2")
    g.i(f"s_lshl_b32 s{S_T0}, s{S_T0}, 17")
    g.i(f"v_mov_b32 v{M[0]}, 0xff800000")
    g.i(f"v_mov_b32 v{M[1]}, 0xff800000")
    g.i(f"s_mov_b32 s{S_T1}, s{S_T0}")
    g.i(f"s_add_u32 s{S_T2}, s{S_T0}, 131072")
    g.lab("L_fb_max")
    g.i(f"buffer_load_dwordx4 {vr(V_K,4)}, v{V_L16}, s[{S_KV}:{S_KV+3}], s{S_T1} offen sc1")
    g.i(f"s_add_u32 s{S_T1}, s{S_T1}, 2048")
    g.i("s_waitcnt vmcnt(0)")
    for q in range(2):
        g.i(f"v_mfma_f32_32x32x16_bf16 {vr(V_S[q],16)}, {vr(V_K,4)}, {vr(V_Q[q],4)}, 0")
    g.i("s_nop 15")
    for q in range(2):
        for r in range(0, 16, 2):
            g.i(f"v_max3_f32 v{M[q]}, v{M[q]}, v{V_S[q]+r}, v{V_S[q]+r+1}")
    g.i(f"s_cmp_lt_u32 s{S_T1}, s{S_T2}")
    g.i("s_cbranch_scc1 L_fb_max")
    for q in range(2):
        g.i(f"v_mov_b32 v6, v{M[q]}")
        g.i(f"v_mov_b32 v7, v{M[q]}")
        g.i("s_nop 1")
        g.i("v_permlane32_swap_b32 v6, v7")
        g.i("s_nop 1")
        g.i("v_max_f32 v6, v6, v7")
        for r in range(16):
            g.i(f"v_sub_f32 v{C[q]+r}, 0, v6")
            g.i(f"v_mov_b32 v{V_O[q]+r}, 0")
    g.i("v_and_b32 v6, 15, v0")
    g.i("v_lshlrev_b32 v6, 4, v6")
    g.i("v_lshrrev_b32 v7, 5, v0")
    g.i(f"v_lshl_add_u32 v{GV}, v7, 8, v6")
    for r in range(8):
        g.i(f"v_mov_b32 v{V_V[0]+r}, 0x3f803f80")
    g.i(f"s_mov_b32 s{S_T1}, s{S_T0}")
    g.i(f"s_mov_b32 s{S_M}, 0xffff")
    g.i(f"s_mov_b32 s{S_M+1}, 0xffff")
    g.lab("L_fb_pv")
    g.i(f"buffer_load_dwordx4 {vr(V_K,4)}, v{V_L16}, s[{S_KV}:{S_KV+3}], s{S_T1} offen sc1")
    g.i(f"s_mov_b64 exec, s[{S_M}:{S_M+1}]")
    g.i(f"buffer_load_dwordx4 {vr(V_V[0],4)}, v{GV}, s[{S_KV}:{S_KV+3}], s{S_T1} offen offset:1024 sc1")
    g.i(f"buffer_load_dwordx4 {vr(V_V[0]+4,4)}, v{GV}, s[{S_KV}:{S_KV+3}], s{S_T1} offen offset:1536 sc1")
    g.i("s_mov_b64 exec, -1")
    g.i(f"s_add_u32 s{S_T1}, s{S_T1}, 2048")
    g.i("s_waitcnt vmcnt(0)")
    for q in range(2):
        g.i(f"v_mfma_f32_32x32x16_bf16 {vr(V_S[q],16)}, {vr(V_K,4)}, {vr(V_Q[q],4)}, {vr(C[q],16)}")
    g.i("s_nop 15")
    for q in range(2):
        for r in range(16):
            g.i(f"v_exp_f32 v{V_S[q]+r}, v{V_S[q]+r}")
    g.i("s_nop 3")
    for q in range(2):
        for h in range(2):
            g.i(f"v_smfmac_f32_32x32x32_bf16 {vr(V_O[q],16)}, {vr(V_V[0]+4*h,4)}, {vr(V_S[q]+8*h,8)}, v{V_IDX}")
    g.i("s_nop 15")
    g.i(f"s_cmp_lt_u32 s{S_T1}, s{S_T2}")
    g.i("s_cbranch_scc1 L_fb_pv")
    for q in range(2):
        g.i(f"v_rcp_f32 v{V_S[0]+2*q}, v{V_O[q]+8}")
    g.i("s_nop 1")
    g.i("s_branch L_at_store")

HEADER = open('cdna_kernels/' + NAME + '.s.ref').read().split('; Override launch')[0]

def generate(opt={}):
    global WS_KV, WS_O, WS_FLAG
    off = opt.get('wsoff', 0) << 20
    WS_KV, WS_O, WS_FLAG = (4 << 20) + off, (12 << 20) + off, (16 << 20) + off
    g = G(opt)
    name = NAME + "_kernel"
    g.a(HEADER.rstrip())
    g.a(f"; @launch grid=(256,1,1) block=(512,1,1) lds={LDS_TOTAL}")
    g.a('.amdgcn_target "amdgcn-amd-amdhsa--gfx950"')
    entry(g, name)
    if opt.get('lfirst', 1): loader(g)
    compute(g)
    attention(g)
    outproj(g)
    if not opt.get('lfirst', 1): loader(g)
    g.lab("L_code_end")
    for tag, body in g.side:
        g.lab(f"L_ol_{tag}")
        body()
        g.i(f"s_branch L_olr_{tag}")
    fallback(g)
    kernel_desc(g.a, name, NVGPR, 256, 102)
    return g.a.text()

if __name__ == "__main__":
    import sys
    opt = eval(sys.argv[2]) if len(sys.argv) > 2 else {}
    open(sys.argv[1], 'w').write(generate(opt))
```

```python
import math, struct
from common import *

WS_FLAG = 16 << 20
SLOT = 45056; SLOT_W = 32768
RING = 32768
L_WO = 65536
L_CONST = 135168
L_QX = 155648
LDS_TOTAL = 163840
S_X, S_W, S_WO, S_KV, S_O, S_FL, S_DBG, S_OUT = 8, 12, 16, 20, 24, 28, 32, 36
S_WAVE, S_BR, S_HP, S_TB, S_IT, S_T0, S_T1, S_T2, S_T3 = 40, 41, 42, 43, 44, 45, 46, 47, 48
S_A, S_B, S_C, S_D, S_E, S_F = 49, 50, 51, 52, 53, 54
S_G1, S_G2, S_PG = 58, 59, 60
KG, KL, VG, VL, QL, KVT = 244, 245, 247, 248, 249, 204
S_M = 56
V_L16, V_KA, V_VA, V_VX, V_IDX, V_T0, V_T1 = 1, 2, 3, 4, 5, 6, 7
V_Q = [8, 12]; V_K = 16; V_V = [20, 28]; V_S = [36, 52]; V_O = [68, 84]
V_F = 241
V_FA = 242
V_OW = 251
V_WOA = 243
V_ACC = 100
V_FR = [196, 216]
V_XA = 236; V_WA = 240
NVGPR = 256
QSCALE = struct.unpack('<I', struct.pack('<f', 0.25 * math.log2(math.e)))[0]
SPIN_MAX = 1 << 20
S_DRY = 3

class G:
    def __init__(self, opt):
        self.a = Asm(); self.opt = opt; self.diag = opt.get('diag', 0)
    def i(self, s): self.a.i(s)
    def lab(self, s): self.a.label(s)
    def st(self, name):
        m = self.opt.get('st', {})
        if name in m: self.stamp(m[name], True)
    def stamp(self, k, forced=False):
        if k in self.opt.get('st', {}).values() and not forced: return
        if self.diag:
            self.i(f"s_memtime s[{64+4*k}:{65+4*k}]")
            self.i(f"s_memrealtime s[{66+4*k}:{67+4*k}]")

def dry_exit(g, label="L_dry_ret"):
    if g.opt.get('dry', 1):
        g.i(f"s_cmp_lg_u32 s{S_DRY}, 0")
        g.i(f"s_cbranch_scc1 {label}")

def barrier_unless_dry(g, tag):
    dry_exit(g, f"L_nb_{tag}")
    g.i("s_barrier")
    g.lab(f"L_nb_{tag}")

def spin(g, tag, load, want, nlanes_mask=None):
    g.i(f"s_mov_b32 s{S_T3}, 0")
    g.lab(f"L_spin_{tag}")
    g.i(load)
    g.i(f"s_add_u32 s{S_T3}, s{S_T3}, 1")
    g.i("s_waitcnt vmcnt(0)")
    g.i(f"v_cmp_{'gt' if want > 1 else 'ne'}_u32 vcc, {want}, v{V_F}")
    g.i(f"s_cmp_ge_u32 s{S_T3}, {SPIN_MAX}")
    g.i(f"s_cbranch_scc1 L_spun_{tag}")
    g.i(f"s_cbranch_vccnz L_spin_{tag}")
    g.lab(f"L_spun_{tag}")

def entry(g, name):
    a = g.a
    kernel_head(a, name)
    PF = g.opt.get('cpf', 1)
    if PF:
        g.i("s_getpc_b64 s[8:9]")
        g.i("v_lshlrev_b32 v6, 7, v0")
        g.i("s_mov_b32 s10, L_code_end-" + name + "-4")
        g.i("s_mov_b32 s11, 0x20000")
    g.i("s_cmp_ge_u32 s2, 256")
    g.i("s_cbranch_scc1 L_end")
    if PF:
        g.i("buffer_load_dword v246, v6, s[8:11], 0 offen")
    g.stamp(0)
    g.i(f"s_mov_b32 s{S_DRY}, 0")
    g.i(f"s_bfe_u32 s{S_BR}, s2, 0x10002")
    g.i(f"s_mul_i32 s{S_T0}, s{S_BR}, 24")
    g.i(f"s_load_dwordx4 s[{S_M}:{S_M+3}], s[0:1], s{S_T0}")
    g.i(f"s_load_dwordx2 s[{S_M+4}:{S_M+5}], s[0:1], s{S_T0} offset:16")
    g.i("s_load_dwordx4 s[4:7], s[0:1], 48")
    g.i(f"s_load_dwordx2 s[{S_M+6}:{S_M+7}], s[0:1], 64")
    g.i("v_lshrrev_b32 v6, 6, v0")
    g.i("v_and_b32 v0, 63, v0")
    g.i(f"v_readfirstlane_b32 s{S_WAVE}, v6")
    g.i(f"v_lshlrev_b32 v{V_L16}, 4, v0")
    g.i(f"s_bfe_u32 s{S_HP}, s2, 0x10001")
    g.i(f"s_lshl_b32 s{S_HP}, s{S_HP}, 3")
    g.i(f"s_bfe_u32 s{S_T0}, s2, 0x30003")
    g.i(f"s_add_u32 s{S_HP}, s{S_HP}, s{S_T0}")
    g.i(f"s_and_b32 s{S_TB}, s2, 1")
    g.i(f"s_lshl_b32 s{S_TB}, s{S_TB}, 2")
    g.i(f"s_lshr_b32 s{S_T0}, s2, 6")
    g.i(f"s_add_u32 s{S_TB}, s{S_TB}, s{S_T0}")
    g.i(f"s_lshl_b32 s{S_T0}, s{S_TB}, 18")
    g.i(f"s_lshl_b32 s{S_T1}, s{S_BR}, 4")
    g.i(f"s_add_u32 s{S_T1}, s{S_T1}, s{S_HP}")
    g.i(f"s_lshl_b32 s{S_T2}, s{S_T1}, 18")
    g.i(f"s_add_u32 s{S_T2}, s{S_T2}, {WS_KV}")
    g.i(f"s_lshl_b32 s{S_T3}, s{S_BR}, 21")
    g.i(f"s_add_u32 s{S_T3}, s{S_T3}, {WS_O}")
    if g.opt.get('lfirst', 1):
        g.i(f"s_cmp_lt_u32 s{S_WAVE}, 4")
        g.i("s_cbranch_scc1 L_compute")
    else:
        g.i(f"s_cmp_ge_u32 s{S_WAVE}, 4")
        g.i("s_cbranch_scc1 L_loader")

def early_srds(g):
    g.i("s_waitcnt lgkmcnt(0)")
    g.st('karg')
    srd(g.a, S_X, S_M, 256 * 1024, f"s{S_T0}")
    srd(g.a, S_W, S_M + 2, 512 * 1536 * 2)

def late_srds(g):
    a = g.a
    srd(a, S_WO, S_M + 4, 512 * 512 * 2)
    srd(a, S_KV, S_M + 6, 256 * 1024, f"s{S_T2}")
    srd(a, S_O, S_M + 6, 2 << 20, f"s{S_T3}")
    srd(a, S_FL, S_M + 6, 4096, str(WS_FLAG))
    srd(a, S_DBG, 6, 256)
    srd(a, S_OUT, 4, 2048 * 1024 * 2)
    if g.diag:
        g.i(f"s_mov_b32 s96, s{S_M+6}")
        g.i(f"s_mov_b32 s97, s{S_M+7}")

def attn_consts(g):
    g.i(f"s_lshr_b32 s{S_T0}, s{S_WAVE}, 2")
    g.i(f"s_lshl_b32 s{S_T0}, s{S_T0}, 14")
    g.i(f"v_add_u32 v{V_KA}, s{S_T0}, v{V_L16}")
    g.i(f"v_and_b32 v{V_T0}, 15, v0")
    g.i(f"v_lshlrev_b32 v{V_T0}, 4, v{V_T0}")
    g.i(f"v_lshrrev_b32 v{V_T1}, 5, v0")
    g.i(f"v_lshl_add_u32 v{V_T0}, v{V_T1}, 8, v{V_T0}")
    g.i(f"s_add_u32 s{S_T0}, s{S_T0}, 1024")
    g.i(f"v_add_u32 v{V_VA}, s{S_T0}, v{V_T0}")
    g.i(f"v_and_b32 v{V_T0}, 31, v0")
    g.i(f"v_subrev_u32 v{V_T1}, 20, v{V_T0}")
    g.i(f"v_cmp_gt_u32 vcc, 8, v{V_T1}")
    g.i(f"v_mov_b32 v{V_T1}, {L_CONST+16}")
    g.i(f"v_mov_b32 v{V_VX}, {L_CONST+16+64}")
    g.i(f"v_cndmask_b32 v{V_T1}, v{V_T1}, v{V_VX}, vcc")
    g.i(f"v_and_b32 v{V_VX}, {31 if g.opt.get('x_one') else 27}, v0")
    g.i(f"v_cmp_eq_u32 vcc, 16, v{V_VX}")
    g.i(f"v_subrev_u32 v{V_VX}, 16, v{V_T1}")
    g.i("s_nop 0")
    g.i(f"v_cndmask_b32 v{V_T1}, v{V_T1}, v{V_VX}, vcc")
    g.i(f"v_cmp_gt_u32 vcc, 16, v{V_T0}")
    g.i(f"v_mov_b32 v{V_T0}, {RING}")
    g.i(f"v_mov_b32 v{V_IDX}, 0xdddd")
    g.i(f"v_cndmask_b32 v{V_VA}, v{V_T1}, v{V_VA}, vcc")
    g.i(f"v_cndmask_b32 v{V_VX}, 0, v{V_T0}, vcc")
    g.i(f"v_add_u32 v{V_VX}, v{V_VX}, v{V_VA}")
    g.i("v_lshrrev_b32 v7, 3, v0")
    g.i("v_lshlrev_b32 v7, 11, v7")
    g.i(f"v_and_b32 v{V_OW}, 7, v0")
    g.i(f"v_lshl_add_u32 v{V_OW}, v{V_OW}, 4, v7")
    g.i(f"v_mov_b32 v{KG}, 0")
    g.i(f"v_mov_b32 v{VG}, 0")
    g.i("v_mov_b64 v[252:253], -1")
    g.i("v_mov_b64 v[254:255], -1")
    for r in range(0, 32, 2):
        g.i(f"v_mov_b64 v[{V_O[0]+r}:{V_O[0]+r+1}], 0")
    g.i(f"s_lshl_b32 s{S_T0}, s{S_BR}, 4")
    g.i(f"s_add_u32 s{S_T0}, s{S_T0}, s{S_HP}")
    g.i(f"s_lshl_b32 s{S_T0}, s{S_T0}, 7")
    g.i(f"v_and_b32 v6, 31, v0")
    g.i(f"v_lshl_add_u32 v{V_FA}, v6, 2, s{S_T0}")
    g.i(f"v_lshrrev_b32 v{V_T0}, 2, v0")
    g.i(f"v_and_b32 v{V_T0}, 4, v{V_T0}")
    g.i(f"v_and_b32 v{V_T1}, 7, v0")
    g.i(f"v_xor_b32 v{V_T0}, v{V_T0}, v{V_T1}")
    g.i(f"v_lshlrev_b32 v{V_T0}, 4, v{V_T0}")
    g.i(f"v_lshrrev_b32 v{V_T1}, 3, v0")
    g.i(f"v_lshl_add_u32 v{V_WOA}, v{V_T1}, 10, v{V_T0}")

def consts(g):
    g.i(f"s_cmp_lg_u32 s{S_WAVE}, 4")
    g.i("s_cbranch_scc1 L_ld_noconst")
    g.i("v_lshrrev_b32 v6, 2, v0")
    g.i("v_and_b32 v7, 1, v6")
    g.i("v_lshlrev_b32 v7, 9, v7")
    g.i("v_lshrrev_b32 v6, 1, v6")
    g.i("v_lshl_add_u32 v7, v6, 11, v7")
    g.i("v_and_b32 v6, 1, v0")
    g.i("v_lshl_add_u32 v7, v6, 4, v7")
    g.i("v_cmp_eq_u32 vcc, 0, v6")
    g.i("v_and_b32 v6, 2, v0")
    g.i("v_lshl_add_u32 v7, v6, 5, v7")
    g.i("v_mov_b32 v6, 0x3f803f80")
    g.i(f"v_add_u32 v7, {L_CONST}, v7")
    g.i("v_cndmask_b32 v108, 0, v6, vcc")
    g.i("v_cndmask_b32 v109, 0, v6, vcc")
    g.i("v_cndmask_b32 v110, 0, v6, vcc")
    g.i("v_cndmask_b32 v111, 0, v6, vcc")
    g.i("ds_write_b128 v7, v[108:111]")
    g.lab("L_ld_noconst")

def loader(g):
    VX, VW, VT = 100, 104, 112
    LEAD = g.opt.get('lead', 0)
    g.lab("L_loader")
    g.i(f"s_sub_u32 s{S_A}, s{S_WAVE}, 4")
    S_CH, S_TX = S_F, 55
    RM = g.opt.get('rot', 7)
    if RM == 1:
        g.i(f"s_lshl_b32 s{S_CH}, s{S_TB}, 1")
        g.i(f"s_lshr_b32 s{S_T1}, s{S_TB}, 2")
        g.i(f"s_add_u32 s{S_CH}, s{S_CH}, s{S_T1}")
        g.i(f"s_and_b32 s{S_CH}, s{S_CH}, 7")
    elif RM == 2:
        g.i(f"s_mov_b32 s{S_CH}, s{S_TB}")
    elif RM == 7:
        g.i(f"s_and_b32 s{S_T1}, s{S_HP}, 1")
        g.i(f"s_lshl_b32 s{S_T1}, s{S_T1}, 2")
        g.i(f"s_add_u32 s{S_CH}, s{S_TB}, s{S_T1}")
        g.i(f"s_and_b32 s{S_CH}, s{S_CH}, 7")
    elif RM == 8:
        g.i(f"s_lshl_b32 s{S_CH}, s{S_TB}, 1")
        g.i(f"s_bfe_u32 s{S_T1}, s{S_HP}, 0x10001")
        g.i(f"s_add_u32 s{S_CH}, s{S_CH}, s{S_T1}")
        g.i(f"s_and_b32 s{S_CH}, s{S_CH}, 7")
    elif RM == 9:
        g.i(f"s_lshl_b32 s{S_CH}, s{S_TB}, 1")
        g.i(f"s_and_b32 s{S_T1}, s{S_HP}, 3")
        g.i(f"s_add_u32 s{S_CH}, s{S_CH}, s{S_T1}")
        g.i(f"s_and_b32 s{S_CH}, s{S_CH}, 7")
    elif RM == 10:
        g.i(f"s_and_b32 s{S_CH}, s2, 7")
    elif RM == 11:
        g.i(f"s_and_b32 s{S_CH}, s2, 3")
        g.i(f"s_lshl_b32 s{S_CH}, s{S_CH}, 1")
        g.i(f"s_add_u32 s{S_CH}, s{S_CH}, s{S_BR}")
    elif RM == 0:
        g.i(f"s_mov_b32 s{S_CH}, 0")
    elif RM == 6:
        g.i(f"s_lshl_b32 s{S_CH}, s{S_TB}, 1")
        g.i(f"s_add_u32 s{S_CH}, s{S_CH}, s{S_HP}")
        g.i(f"s_and_b32 s{S_CH}, s{S_CH}, 7")
    elif RM == 4:
        g.i(f"s_lshl_b32 s{S_CH}, s{S_TB}, 1")
        g.i(f"s_add_u32 s{S_CH}, s{S_CH}, s{S_HP}")
        g.i(f"s_and_b32 s{S_CH}, s{S_CH}, 3")
        g.i(f"s_lshl_b32 s{S_CH}, s{S_CH}, 1")
    elif RM == 5:
        g.i(f"s_add_u32 s{S_CH}, s{S_TB}, s{S_HP}")
        g.i(f"s_and_b32 s{S_CH}, s{S_CH}, 3")
        g.i(f"s_lshl_b32 s{S_CH}, s{S_CH}, 1")
    elif RM == 3:
        g.i(f"s_lshl_b32 s{S_CH}, s{S_TB}, 1")
        g.i(f"s_and_b32 s{S_T1}, s{S_HP}, 1")
        g.i(f"s_add_u32 s{S_CH}, s{S_CH}, s{S_T1}")
        g.i(f"s_and_b32 s{S_CH}, s{S_CH}, 7")
    g.i(f"v_lshlrev_b32 v{VT}, 10, v0")
    g.i(f"s_and_b32 s{S_TX}, s{S_HP}, 7")
    g.i(f"s_lshl_b32 s{S_TX}, s{S_TX}, 2")
    g.i(f"s_add_u32 s{S_TX}, s{S_TX}, s{S_A}")
    g.i(f"s_lshl_b32 s{S_TX}, s{S_TX}, 13")
    PF = g.opt.get('pf', 0)
    NT = 2 if PF else (1 if LEAD else 0)
    if PF:
        S_TC, S_TW = S_IT, 0
        g.i(f"s_mov_b32 s{S_TC}, s{S_CH}")
        g.i("v_lshrrev_b32 v6, 1, v0")
        g.i("v_and_b32 v7, 1, v0")
        g.i("v_lshlrev_b32 v7, 7, v7")
        g.i(f"v_lshl_add_u32 v{VT+1}, v6, 10, v7")
        g.i(f"s_lshr_b32 s1, s2, 3")
        g.i(f"s_lshl_b32 s1, s1, 1")
        g.i(f"s_lshr_b32 s{S_T1}, s{S_A}, 1")
        g.i(f"s_add_u32 s1, s1, s{S_T1}")
        g.i(f"s_mul_i32 s1, s1, 3072")
        g.i(f"s_lshr_b32 s{S_T1}, s{S_HP}, 3")
        g.i(f"s_lshl_b32 s{S_T1}, s{S_T1}, 1")
        g.i(f"s_and_b32 s{S_B}, s{S_A}, 1")
        g.i(f"s_add_u32 s{S_T1}, s{S_T1}, s{S_B}")
        g.i(f"s_lshl_b32 s{S_T1}, s{S_T1}, 8")
        g.i(f"s_add_u32 s3, s1, s{S_T1}")
    def touch(ahead):
        if PF:
            g.i(f"s_lshl_b32 s{S_T0}, s{S_TC}, 7")
            g.i(f"s_add_u32 s{S_T0}, s{S_T0}, s{S_TX}")
            g.i(f"s_mul_i32 s{S_T1}, s{S_TC}, {64*3072}")
            g.i(f"s_add_u32 s{S_T1}, s{S_T1}, s3")
            g.i("s_mov_b64 exec, 0xff")
            g.i(f"buffer_load_dword v246, v{VT}, s[{S_X}:{S_X+3}], s{S_T0} offen")
            if g.opt.get('pfw', 1):
                g.i("s_mov_b64 exec, 0x3f")
                g.i(f"buffer_load_dword v246, v{VT+1}, s[{S_W}:{S_W+3}], s{S_T1} offen")
            g.i("s_mov_b64 exec, -1")
            g.i(f"s_add_u32 s{S_TC}, s{S_TC}, 1")
            g.i(f"s_and_b32 s{S_TC}, s{S_TC}, 7")
            return
        if not LEAD: return
        g.i(f"s_add_u32 s{S_T0}, s{S_CH}, {ahead}")
        g.i(f"s_and_b32 s{S_T0}, s{S_T0}, 7")
        g.i(f"s_lshl_b32 s{S_T0}, s{S_T0}, 7")
        g.i(f"s_add_u32 s{S_T0}, s{S_T0}, s{S_TX}")
        g.i("s_mov_b64 exec, 0xff")
        g.i(f"buffer_load_dword v246, v{VT}, s[{S_X}:{S_X+3}], s{S_T0} offen")
        g.i("s_mov_b64 exec, -1")
    g.i("v_lshrrev_b32 v6, 4, v0")
    g.i("v_and_b32 v7, 7, v0")
    g.i("v_xor_b32 v6, v6, v7")
    g.i("v_lshlrev_b32 v6, 4, v6")
    g.i("v_lshrrev_b32 v7, 3, v0")
    g.i(f"v_lshl_add_u32 v{VX}, v7, 10, v6")
    g.i(f"v_xor_b32 v{VX+1}, 64, v{VX}")
    g.i(f"v_add_u32 v{VX+2}, {2*7168}, v{VX}")
    g.i(f"v_add_u32 v{VX+3}, {3*7168}, v{VX+1}")
    g.i(f"v_add_u32 v{VX+1}, 7168, v{VX+1}")
    g.i(f"s_lshl_b32 s{S_B}, s{S_A}, 16")
    g.i(f"s_lshl_b32 s{S_D}, s{S_A}, 13")
    for p in range(3):
        g.i(f"v_add_u32 v6, {64*p}, v0")
        g.i("v_mul_u32_u24 v7, 43691, v6")
        g.i("v_lshrrev_b32 v7, 19, v7")
        g.i("v_mul_u32_u24 v110, 12, v7")
        g.i("v_sub_u32 v6, v6, v110")
        g.i("v_mul_u32_u24 v7, 3072, v7")
        g.i("v_lshrrev_b32 v110, 2, v6")
        g.i(f"v_lshl_add_u32 v7, v110, {6 if g.opt.get('x_wc') else 10}, v7")
        g.i("v_and_b32 v6, 3, v6")
        g.i("v_lshl_add_u32 v7, v6, 4, v7")
        g.i(f"v_subrev_u32 v{VW+p}, {1024*p}, v7")
    g.i(f"s_mul_i32 s{S_C}, s{S_A}, {16*3072}")
    g.i(f"s_lshl_b32 s{S_T1}, s{S_HP}, {7 if g.opt.get('x_wc') else 6}")
    g.i(f"s_add_u32 s{S_C}, s{S_C}, s{S_T1}")
    g.i(f"s_mul_i32 s{S_E}, s{S_A}, 3072")
    g.i(f"s_add_u32 s{S_E}, s{S_E}, {SLOT_W}")
    early_srds(g)
    def issue():
        g.i(f"s_lshl_b32 s{S_T1}, s{S_CH}, 7")
        g.i(f"s_add_u32 s{S_T1}, s{S_T1}, s{S_B}")
        g.i(f"s_mov_b32 m0, s{S_D}")
        g.i(f"s_add_u32 s{S_T0}, s{S_T1}, 32768")
        for p in range(4):
            g.i(f"buffer_load_dwordx4 v{VX+p}, s[{S_X}:{S_X+3}], s{S_T1} offen offset:{1024*p}{g.opt.get('xfl','')} lds")
        g.i(f"s_add_u32 m0, s{S_D}, 4096")
        g.i(f"s_mul_i32 s{S_T1}, s{S_CH}, {64*3072}")
        for p in range(4):
            g.i(f"buffer_load_dwordx4 v{VX+p}, s[{S_X}:{S_X+3}], s{S_T0} offen offset:{1024*p}{g.opt.get('xfl','')} lds")
        g.i(f"s_mov_b32 m0, s{S_E}")
        g.i(f"s_add_u32 s{S_T1}, s{S_T1}, s{S_C}")
        for p in range(3):
            if g.opt.get('x_now'): g.i(f"buffer_load_dword v244, v{VW+p}, s[{S_DBG if False else S_W}:{S_W+3}], s{S_C} offen"); continue
            g.i(f"buffer_load_dwordx4 v{VW+p}, s[{S_W}:{S_W+3}], s{S_T1} offen offset:{1024*p}{g.opt.get('wfl','')} lds")
        g.i(f"s_add_u32 s{S_CH}, s{S_CH}, 1")
        g.i(f"s_and_b32 s{S_CH}, s{S_CH}, 7")
    def next_slot():
        g.i(f"s_add_u32 s{S_D}, s{S_D}, {SLOT}")
        g.i(f"s_add_u32 s{S_E}, s{S_E}, {SLOT}")
        g.i(f"s_cmp_lt_u32 s{S_D}, {3*SLOT}")
        g.i(f"s_cselect_b32 s{S_T0}, 0, {3*SLOT}")
        g.i(f"s_sub_u32 s{S_D}, s{S_D}, s{S_T0}")
        g.i(f"s_sub_u32 s{S_E}, s{S_E}, s{S_T0}")
    if PF:
        q = []; nt = [0]
        def T():
            if nt[0] < 8: touch(0); q.extend('TT' if g.opt.get('pfw', 1) else 'T'); nt[0] += 1
        def D(c): issue(); q.extend([c] * 11)
        def W(c): g.i(f"s_waitcnt vmcnt({len(q) - 1 - max(i for i, x in enumerate(q) if x == c)})")
        for c in range(PF): T()
        D(0); T()
        next_slot(); D(1); T()
        late_srds(g); attn_consts(g); consts(g)
        for c in range(6):
            W(c)
            g.i("s_barrier")
            next_slot(); D(c + 2); T()
        W(6)
        g.i("s_barrier")
        g.i("s_waitcnt vmcnt(0)")
        g.i("s_barrier")
        g.i("s_mov_b32 s3, 0")
    if not PF: loader_plain(g, issue, next_slot, touch, LEAD, NT)
    loader_fin(g)

def loader_plain(g, issue, next_slot, touch, LEAD, NT):
    issue()
    g.st('ld_c0')
    next_slot(); issue()
    for c in range(2, LEAD): touch(c - 2)
    g.st('ld_c2')
    late_srds(g); attn_consts(g); consts(g)
    g.st('ld_pre')
    PRE = g.opt.get('pre', '')
    n0 = NT * max(LEAD - 2, 0)
    def pre():
        g.i(f"s_lshl_b32 s{S_T0}, s{S_TB}, 14")
        g.i(f"s_and_b32 s{S_T1}, s{S_A}, 1")
        g.i(f"s_lshl_b32 s{S_T1}, s{S_T1}, 13")
        g.i(f"s_add_u32 s{S_T0}, s{S_T0}, s{S_T1}")
        g.i(f"s_lshr_b32 s{S_T1}, s{S_A}, 1")
        g.i(f"s_lshl_b32 s{S_T1}, s{S_T1}, 17")
        g.i(f"s_add_u32 s{S_T0}, s{S_T0}, s{S_T1}")
        if PRE == 'r':
            g.i("v_lshlrev_b32 v6, 7, v0")
            g.i(f"buffer_load_dword v245, v6, s[{S_KV}:{S_KV+3}], s{S_T0} offen sc1")
            return 1
        g.i(f"s_add_u32 s{S_T1}, s{S_T0}, 4096")
        for k in range(8):
            g.i(f"buffer_store_dwordx4 v[{V_O[0]}:{V_O[0]+3}], v{V_L16}, s[{S_KV}:{S_KV+3}], s{S_T1 if k >= 4 else S_T0} offen offset:{1024*(k%4)} sc1")
        return 8
    np_ = 0
    PC = g.opt.get('prec', 1)
    for c, n in ((0, 11 + n0), (1, n0 + 11 + NT)):
        g.i(f"s_waitcnt vmcnt({n + (np_ if c == 1 else 0)})")
        if c == 0: g.st('ld_got0')
        g.i("s_barrier")
        next_slot(); issue(); touch(LEAD - 3)
        if PRE and c == PC: np_ = pre()
    if PRE and PC == 1:
        g.i(f"s_waitcnt vmcnt({11+2*NT+np_})")
        g.i("s_barrier")
        next_slot(); issue(); touch(LEAD - 3)
        g.i(f"s_mov_b32 s{S_IT}, 3")
        g.i(f"s_waitcnt vmcnt({11+2*NT+np_})")
        g.i("s_branch L_ld_loop2")
    g.i(f"s_mov_b32 s{S_IT}, 2")
    g.lab("L_ld_loop")
    g.i(f"s_waitcnt vmcnt({11+2*NT})")
    g.lab("L_ld_loop2")
    g.i("s_barrier")
    next_slot(); issue(); touch(LEAD - 3)
    g.i(f"s_add_u32 s{S_IT}, s{S_IT}, 1")
    g.i(f"s_cmp_lt_u32 s{S_IT}, 6")
    g.i("s_cbranch_scc1 L_ld_loop")
    g.st('ld_iss7')
    g.i(f"s_waitcnt vmcnt({11+2*NT})")
    g.i("s_barrier")
    g.i("s_waitcnt vmcnt(0)")
    g.i("s_barrier")

def loader_fin(g):
    g.i(f"s_cmp_lg_u32 s{S_WAVE}, 4")
    g.i("s_cbranch_scc1 L_ld_nocert")
    g.i(f"s_lshl_b32 s{S_T0}, s{S_BR}, 4")
    g.i(f"s_add_u32 s{S_T0}, s{S_T0}, s{S_HP}")
    g.i(f"s_lshl_b32 s{S_T0}, s{S_T0}, 3")
    g.i(f"v_mov_b32 v7, s{S_T0}")
    spin(g, "cert1", f"buffer_load_dword v{V_F}, v7, s[{S_DBG}:{S_DBG+3}], 0 offen sc1", 8)
    g.lab("L_ld_nocert")
    g.i(f"s_lshl_b32 s{S_T0}, s{S_A}, 11")
    g.i(f"s_add_u32 s{S_T0}, s{S_T0}, {L_QX}")
    g.i(f"v_add_u32 v6, s{S_T0}, v{V_L16}")
    attn_setup(g)
    g.i("s_waitcnt lgkmcnt(0)")
    g.i("s_barrier")
    g.i(f"ds_read_b128 {vr(V_Q[0],4)}, v6")
    g.i(f"ds_read_b128 {vr(V_Q[1],4)}, v6 offset:1024")
    g.i("s_branch L_attn")

class LdsQ:
    def __init__(self, g): self.g = g; self.q = []
    def issue(self, tag): self.q.append(tag)
    def need(self, tags):
        idx = max([i for i, t in enumerate(self.q) if t in tags], default=-1)
        if idx >= 0:
            n = len(self.q) - 1 - idx
            self.g.i(f"s_waitcnt lgkmcnt({min(n,15)})")
            self.q = self.q[idx + 1:]

def compute(g):
    g.lab("L_compute")
    TL = g.opt.get('tlb', 0)
    if TL:
        g.i(f"v_lshlrev_b32 v6, {TL}, v0")
    g.i("s_waitcnt lgkmcnt(0)")
    if TL:
        srd(g.a, S_W, S_M + 2, 512 * 1536 * 2)
        g.i(f"buffer_load_dword v246, v6, s[{S_W}:{S_W+3}], 0 offen")
        if g.opt.get('tlbx'):
            srd(g.a, S_X, S_M, 256 * 1024, f"s{S_T0}")
            g.i(f"buffer_load_dword v246, v6, s[{S_X}:{S_X+3}], 0 offen")
    late_srds(g)
    g.i(f"s_cmp_lg_u32 s{S_WAVE}, 0")
    g.i("s_cbranch_scc1 L_cp_noclear")
    g.i(f"s_lshl_b32 s{S_T0}, s{S_BR}, 4")
    g.i(f"s_add_u32 s{S_T0}, s{S_T0}, s{S_HP}")
    g.i(f"s_lshl_b32 s{S_T1}, s{S_T0}, 7")
    g.i(f"s_lshl_b32 s{S_T2}, s{S_TB}, 4")
    g.i(f"s_add_u32 s{S_T1}, s{S_T1}, s{S_T2}")
    g.i(f"v_lshl_add_u32 v6, v0, 2, s{S_T1}")
    g.i("v_mov_b32 v100, 0")
    g.i("s_mov_b64 exec, 0xf")
    g.i(f"buffer_store_dword v100, v6, s[{S_FL}:{S_FL+3}], 0 offen sc1")
    g.i("s_mov_b64 exec, -1")
    g.lab("L_cp_noclear")
    attn_consts(g)
    g.i("v_and_b32 v6, 31, v0")
    g.i(f"s_lshl_b32 s{S_T0}, s{S_WAVE}, 13")
    g.i(f"v_lshl_add_u32 v100, v6, 7, s{S_T0}")
    g.i("v_bfe_u32 v6, v0, 1, 3")
    g.i("v_lshrrev_b32 v7, 5, v0")
    g.i("v_xor_b32 v6, v6, v7")
    for s in range(4):
        g.i(f"v_xor_b32 v7, {2*s}, v6")
        g.i(f"v_lshl_add_u32 v{V_XA+s}, v7, 4, v100")
    g.i("v_lshrrev_b32 v6, 5, v0")
    g.i("v_bfe_u32 v7, v0, 2, 2")
    g.i("v_lshl_add_u32 v6, v6, 3, v7")
    g.i("v_mul_u32_u24 v6, 192, v6")
    g.i("v_bfe_u32 v7, v0, 4, 1")
    g.i("v_lshl_add_u32 v6, v7, 5, v6")
    g.i("v_and_b32 v7, 3, v0")
    g.i("v_lshl_add_u32 v6, v7, 3, v6")
    g.i(f"v_add_u32 v{V_WA}, {SLOT_W}, v6")
    for r in range(0, 96, 2):
        g.i(f"v_mov_b64 v[{V_ACC+r}:{V_ACC+r+1}], 0")
    S_A, S_B = 56, 57
    g.i("v_and_b32 v6, 0x33, v0")
    g.i("v_bfe_u32 v7, v0, 2, 1")
    g.i("v_lshl_or_b32 v6, v7, 3, v6")
    g.i("v_bfe_u32 v7, v0, 3, 1")
    g.i("v_lshl_or_b32 v6, v7, 2, v6")
    g.i(f"v_lshlrev_b32 v{KG}, 4, v6")
    g.i(f"s_lshl_b32 s{S_T0}, s{S_WAVE}, 12")
    g.i(f"v_add_u32 v{KL}, s{S_T0}, v{KG}")
    g.i("v_and_b32 v6, 15, v0")
    g.i("v_lshlrev_b32 v6, 4, v6")
    g.i("v_lshrrev_b32 v7, 5, v0")
    g.i("v_lshl_add_u32 v6, v7, 8, v6")
    g.i("v_add_u32 v6, 1024, v6")
    g.i("v_bfe_u32 v7, v0, 4, 1")
    g.i(f"v_lshl_add_u32 v{VG}, v7, 17, v6")
    g.i("v_lshl_add_u32 v6, v7, 14, v6")
    g.i(f"v_add_u32 v{VL}, s{S_T0}, v6")
    g.i(f"s_lshr_b32 s{S_T0}, s{S_T0}, 1")
    g.i(f"s_add_u32 s{S_T0}, s{S_T0}, {L_QX}")
    g.i(f"v_add_u32 v{QL}, s{S_T0}, v{V_L16}")
    if g.opt.get('dry', 1):
        g.i(f"s_cmp_lt_u32 s{S_WAVE}, 2")
        g.i("s_cbranch_scc1 L_dry_done")
        g.i(f"s_mov_b32 s{S_DRY}, 1")
        g.i(f"s_mov_b32 s{S_IT}, 7")
        g.i("s_mov_b64 vcc, 0")
        g.i(f"s_mov_b64 s[{S_M}:{S_M+1}], 0")
        g.i(f"s_mov_b64 s[{S_M+2}:{S_M+3}], 0")
        g.i(f"s_mov_b32 s{S_MK}, 0")
        g.i("s_waitcnt vmcnt(0) lgkmcnt(0)")
        g.i("s_setvskip -1, 0")
        g.i(f"s_cmp_eq_u32 s{S_WAVE}, 2")
        g.i("s_cbranch_scc1 L_at_done")
        g.i("s_branch L_cp_loop")
        g.lab("L_dry_ret")
        g.i("s_setvskip 0, 0")
        g.i("s_mov_b64 exec, -1")
        g.i("s_setprio 0")
        g.i(f"s_mov_b32 s{S_DRY}, 0")
        g.lab("L_dry_done")
    attn_setup(g)
    g.i(f"s_lshl_b32 s{S_T0}, s{S_WAVE}, 12")
    g.i(f"s_lshl_b32 s{S_G1}, s{S_TB}, 14")
    g.i(f"s_add_u32 s{S_G1}, s{S_G1}, s{S_T0}")
    g.i(f"s_add_u32 s{S_G2}, s{S_G1}, 131072")
    g.i(f"s_mov_b32 s{S_IT}, 0")
    g.i(f"s_mov_b32 s{S_A}, 0")
    g.i(f"s_mov_b32 s{S_B}, {SLOT}")
    q = LdsQ(g)
    def rd(setn, s, which):
        F = V_FR[setn]
        if which[0] == 'x':
            i = int(which[1])
            g.i(f"ds_read_b128 {vr(F+4*i,4)}, v{V_XA+s} offset:{4096*i}")
        else:
            p = {'q': 0, 'k': 1, 'v': 2}[which[0]]; i = int(which[1])
            g.i(f"ds_read_b64_tr_b16 {vr(F+8+4*p+2*i,2)}, v{V_WA} offset:{s*3072+i*768+p*64}")
        q.issue((setn, which))
    ORDER = ['x0', 'q0', 'q1', 'x1', 'k0', 'k1', 'v0', 'v1']
    def mf(setn, n):
        F = V_FR[setn]; p, i = n // 2, n % 2
        w, x = vr(F + 8 + 4 * p, 4), vr(F + 4 * i, 4)
        nm = 'qkv'[p]
        q.need({(setn, f'x{i}'), (setn, nm + '0'), (setn, nm + '1')})
        A, B = (w, x) if p < 2 else (x, w)
        acc = vr(V_ACC + 16 * n, 16)
        if g.opt.get('x_m16'):
            for hh in range(2):
                a4 = vr(V_ACC + 16 * n + 4 * hh, 4)
                g.i(f"v_mfma_f32_16x16x32_bf16 {a4}, {A}, {B}, {a4}")
        else:
            g.i(f"v_mfma_f32_32x32x16_bf16 {acc}, {A}, {B}, {acc}")
    def step(cur, nxt_s):
        plan = [ORDER[0:2], ORDER[2:4], ORDER[4:6], ORDER[6:8], [], []]
        for n in range(6):
            if cur is not None: mf(cur, n)
            if nxt_s is not None:
                for w in plan[n]: rd(1 - (cur if cur is not None else 1), nxt_s, w)
    g.i(f"s_cmp_lg_u32 s{S_WAVE}, 0")
    g.i("s_cbranch_scc1 L_cp_nocount")
    g.i(f"s_lshl_b32 s{S_T0}, s{S_BR}, 4")
    g.i(f"s_add_u32 s{S_T0}, s{S_T0}, s{S_HP}")
    g.i(f"s_lshl_b32 s{S_T0}, s{S_T0}, 3")
    g.i("s_mov_b64 exec, 1")
    g.i(f"v_mov_b32 v6, s{S_T0}")
    g.i("v_mov_b32 v7, 1")
    g.i(f"s_waitcnt vmcnt(0)")
    g.i(f"buffer_atomic_add v7, v6, s[{S_DBG}:{S_DBG+3}], 0 offen sc1")
    g.i("s_mov_b64 exec, -1")
    g.lab("L_cp_nocount")
    def prew():
        g.i(f"s_lshl_b32 s{S_T0}, s{S_TB}, 14")
        g.i(f"s_lshl_b32 s{S_T1}, s{S_WAVE}, 12")
        g.i(f"s_add_u32 s{S_T0}, s{S_T0}, s{S_T1}")
        g.i(f"s_add_u32 s{S_T1}, s{S_T0}, 131072")
        for k in range(8):
            g.i(f"buffer_store_dwordx4 v[{V_O[0]}:{V_O[0]+3}], v{V_L16}, s[{S_KV}:{S_KV+3}], s{S_T1 if k >= 4 else S_T0} offen offset:{1024*(k%4)} sc1")
    def prer():
        g.i("v_and_b32 v6, 31, v0")
        g.i("v_lshlrev_b32 v6, 7, v6")
        g.i("v_lshrrev_b32 v7, 5, v0")
        g.i("v_lshl_add_u32 v6, v7, 17, v6")
        g.i(f"buffer_load_dword v246, v6, s[{S_KV}:{S_KV+3}], s{S_G1} offen{g.opt.get('prefl', ' sc1')}")
    PR = g.opt.get('prer', 0)
    if PR == -1: prer()
    if g.opt.get('prew') == 1: prew()
    g.st('cp_pre')
    g.i("s_barrier")
    g.stamp(1)
    if g.opt.get('prew') == 2: prew()
    step(None, 0)
    g.lab("L_cp_loop")
    q.q = [(0, w) for w in ORDER]
    step(0, 1); step(1, 2); step(0, 3)
    g.i(f"s_add_u32 s{S_A}, s{S_A}, 1")
    g.i(f"s_cmp_eq_u32 s{S_A}, 3")
    g.i(f"s_cselect_b32 s{S_T0}, {(-2*SLOT) & 0xffffffff}, s{S_B}")
    g.i(f"s_cselect_b32 s{S_A}, 0, s{S_A}")
    g.i(f"s_add_u32 s{S_IT}, s{S_IT}, 1")
    g.i(f"s_cmp_eq_u32 s{S_IT}, 8")
    g.i("s_cbranch_scc1 L_cp_last")
    g.i("s_waitcnt lgkmcnt(0)")
    q.q = []
    g.i("s_barrier")
    for r in range(5):
        g.i(f"v_add_u32 v{V_XA+r}, s{S_T0}, v{V_XA+r}")
    PW = g.opt.get('pwd')
    if PW:
        c0, kind = PW
        if kind == 'd':
            g.i(f"s_cmp_lg_u32 s{S_IT}, {c0}")
            g.i("s_cbranch_scc1 L_cp_nopw")
            g.i("v_and_b32 v6, 31, v0")
            g.i("v_lshlrev_b32 v6, 7, v6")
            g.i("v_lshrrev_b32 v7, 5, v0")
            g.i("v_lshl_add_u32 v6, v7, 17, v6")
            g.i(f"buffer_store_dword v{V_O[0]}, v6, s[{S_KV}:{S_KV+3}], s{S_G1} offen sc1")
        elif kind == 'f':
            g.i(f"s_cmp_lg_u32 s{S_IT}, {c0}")
            g.i("s_cbranch_scc1 L_cp_nopw")
            for k in range(8):
                g.i(f"buffer_store_dwordx4 v[{V_O[0]}:{V_O[0]+3}], v{V_L16}, s[{S_KV}:{S_KV+3}], s{S_G2 if k >= 4 else S_G1} offen offset:{1024*(k%4)} sc1")
        elif kind == 's':
            g.i(f"s_sub_u32 s{S_T1}, s{S_IT}, {c0}")
            g.i(f"s_cmp_ge_u32 s{S_T1}, 4")
            g.i("s_cbranch_scc1 L_cp_nopw")
            g.i(f"s_lshl_b32 s{S_T1}, s{S_T1}, 10")
            g.i(f"s_add_u32 s{S_T2}, s{S_T1}, s{S_G2}")
            g.i(f"s_add_u32 s{S_T1}, s{S_T1}, s{S_G1}")
            for so in (S_T1, S_T2):
                g.i(f"buffer_store_dwordx4 v[{V_O[0]}:{V_O[0]+3}], v{V_L16}, s[{S_KV}:{S_KV+3}], s{so} offen sc1")
        g.lab("L_cp_nopw")
    if PR > 0:
        g.i(f"s_cmp_lg_u32 s{S_IT}, {PR}")
        g.i("s_cbranch_scc1 L_cp_nopre")
        prer()
        g.lab("L_cp_nopre")
    step(1, 0)
    g.i("s_branch L_cp_loop")
    g.lab("L_cp_last")
    q.q = [(1, w) for w in ORDER]
    step(1, None)
    g.stamp(2)
    g.i(f"s_mov_b32 s{S_T1}, {hex(QSCALE)}")
    g.i(f"s_mov_b32 s{S_T2}, s{S_T1}")
    g.i("s_nop 5")
    KVS = g.opt.get('kvs', ' sc1')
    T = 204
    n = 0
    for i in range(2):
        A = V_ACC + 16 * (2 + i)
        for hd in range(2):
            for r in range(4):
                g.i(f"v_cvt_pk_bf16_f32 v{T+4*n+r}, v{A+8*hd+2*r}, v{A+8*hd+2*r+1}")
            g.i(f"ds_write_b128 v{KL}, {vr(T+4*n,4)} offset:{16384*hd+2048*i}")
            n += 1
    for i in range(2):
        A = V_ACC + 16 * (4 + i)
        for gr in range(2):
            for r in range(4):
                g.i(f"v_cvt_pk_bf16_f32 v{T+4*n+r}, v{A+8*gr+2*r}, v{A+8*gr+2*r+1}")
            g.i(f"ds_write_b128 v{VL}, {vr(T+4*n,4)} offset:{2048*i+512*gr}")
            n += 1
    g.i(f"s_cmp_lg_u32 s{S_PG}, 0")
    g.i("s_cbranch_scc1 L_cp_later")
    for n in range(8): g.i(kv_store(n))
    g.lab("L_cp_later")
    for i in range(2):
        A = V_ACC + 16 * i
        for r in range(8, 16, 2):
            g.i(f"v_pk_mul_f32 v[{A+r}:{A+r+1}], v[{A+r}:{A+r+1}], s[{S_T0+1}:{S_T0+2}]")
        for r in range(4):
            g.i(f"v_cvt_pk_bf16_f32 v{A+8+r}, v{A+8+2*r}, v{A+8+2*r+1}")
        g.i(f"ds_write_b128 v{QL}, {vr(A+8,4)} offset:{1024*i}")
    for i in range(2):
        A = V_ACC + 16 * i
        for r in range(0, 8, 2):
            g.i(f"v_pk_mul_f32 v[{A+r}:{A+r+1}], v[{A+r}:{A+r+1}], s[{S_T0+1}:{S_T0+2}]")
        for r in range(4):
            g.i(f"v_cvt_pk_bf16_f32 v{V_Q[i]+r}, v{A+2*r}, v{A+2*r+1}")
    g.i("s_waitcnt lgkmcnt(0)")
    barrier_unless_dry(g, "b8")

U = 8
S_OA, S_OB = S_M + 6, S_M + 7
S_MK = S_M + 5
S_KV2 = S_X
S_KO = [None, 4, 5, 6, 7, 12, 13, 14]
S_LM = [[49, 50], [51, 52]]
S_OW = 1
V_VB = 4

def kv_store(n):
    if n < 4: adr, so, off = KG, (S_G2 if n % 2 else S_G1), 2048 * (n // 2)
    else: adr, so, off = VG, S_G1, 2048 * ((n - 4) // 2) + 512 * (n % 2)
    return f"buffer_store_dwordx4 {vr(KVT+4*n,4)}, v{adr}, s[{S_KV}:{S_KV+3}], s{so} offen offset:{off} sc1"

def spin_mask(g, tag, load):
    g.i(f"s_mov_b32 s{S_T3}, 0")
    g.lab(f"L_spin_{tag}")
    g.i(load)
    g.i(f"s_add_u32 s{S_T3}, s{S_T3}, 1")
    g.i("s_waitcnt vmcnt(0)")
    g.i(f"v_cmp_ne_u32 vcc, 1, v{V_F}")
    g.i(f"s_cmp_ge_u32 s{S_T3}, {SPIN_MAX}")
    g.i(f"s_cbranch_scc1 L_olr_{tag}")
    g.i(f"s_and_b32 vcc_lo, vcc_lo, s{S_MK}")
    g.i(f"s_cbranch_scc1 L_spin_{tag}")

def attn_setup(g):
    g.i(f"s_add_u32 s{S_KV2}, s{S_KV}, 131072")
    g.i(f"s_addc_u32 s{S_KV2+1}, s{S_KV+1}, 0")
    g.i(f"s_mov_b32 s{S_KV2+2}, 131072")
    g.i(f"s_mov_b32 s{S_KV2+3}, 0x20000")
    g.i(f"s_lshl_b32 s{S_LM[0][0]}, s{S_WAVE}, 11")
    g.i(f"s_add_u32 s{S_LM[0][1]}, s{S_LM[0][0]}, 16384")
    g.i(f"s_add_u32 s{S_LM[1][0]}, s{S_LM[0][0]}, {RING}")
    g.i(f"s_add_u32 s{S_LM[1][1]}, s{S_LM[0][0]}, {RING+16384}")
    for i in range(1, 8):
        g.i(f"s_cmp_gt_u32 s{S_TB}, {i-1}")
        g.i(f"s_cselect_b32 s{S_T0}, {i-1}, {i}")
        if i == 1:
            g.i(f"s_lshl_b32 s{S_T3}, s{S_T0}, 2")
            g.i(f"s_lshl_b32 s{S_MK}, 15, s{S_T3}")
        g.i(f"s_lshl_b32 s{S_T0}, s{S_T0}, 14")
        g.i(f"s_add_u32 s{S_KO[i]}, s{S_T0}, s{S_LM[0][0]}")
    g.i(f"s_lshr_b32 s{S_PG}, s{S_TB}, 1")
    g.i(f"s_min_u32 s{S_PG}, s{S_PG}, 2")
    g.i(f"s_cmp_ge_u32 s{S_WAVE}, 4")
    g.i(f"s_cselect_b32 s{S_PG}, 3, s{S_PG}")
    g.i(f"s_and_b32 s{S_F}, s{S_HP}, 7")
    g.i(f"s_lshl_b32 s{S_T0}, s{S_F}, 7")
    g.i(f"s_lshl_b32 s55, s{S_WAVE}, 16")
    g.i(f"s_add_u32 s55, s55, s{S_T0}")
    g.i(f"s_lshl_b32 s{S_E}, s{S_WAVE}, 13")
    g.i(f"s_add_u32 s{S_E}, s{S_E}, {L_WO}")
    g.i(f"s_and_b32 s{S_T0}, s{S_WAVE}, 3")
    g.i(f"s_lshl_b32 s{S_T0}, s{S_T0}, 1")
    g.i(f"s_lshl_b32 s{S_T1}, s{S_TB}, 3")
    g.i(f"s_add_u32 s{S_T0}, s{S_T0}, s{S_T1}")
    g.i(f"s_lshl_b32 s{S_OA}, s{S_T0}, 15")
    g.i(f"s_lshr_b32 s{S_T1}, s{S_WAVE}, 2")
    g.i(f"s_lshl_b32 s{S_T2}, s{S_HP}, 1")
    g.i(f"s_add_u32 s{S_T1}, s{S_T1}, s{S_T2}")
    g.i(f"s_lshl_b32 s{S_T2}, s{S_T1}, 10")
    g.i(f"s_add_u32 s{S_OA}, s{S_OA}, s{S_T2}")
    g.i(f"s_add_u32 s{S_OB}, s{S_OA}, 32768")
    if True:
        g.i(f"s_lshr_b32 s{S_T0}, s{S_HP}, 3")
        g.i(f"s_lshl_b32 s{S_T0}, s{S_T0}, 2")
        g.i(f"s_and_b32 s{S_T1}, s{S_WAVE}, 3")
        g.i(f"s_add_u32 s{S_T0}, s{S_T0}, s{S_T1}")
        g.i(f"s_lshl_b32 s{S_T1}, s{S_TB}, 3")
        g.i(f"s_add_u32 s{S_T0}, s{S_T0}, s{S_T1}")
        g.i(f"s_lshl_b32 s{S_T0}, s{S_T0}, 1")
        g.i(f"s_lshr_b32 s{S_T1}, s{S_WAVE}, 2")
        g.i(f"s_add_u32 s{S_T0}, s{S_T0}, s{S_T1}")
        g.i(f"s_lshl_b32 s{S_OW}, s{S_T0}, 15")
        g.i(f"s_lshl_b32 s{S_T0}, s{S_BR}, 10")
        g.i(f"s_add_u32 s{S_OW}, s{S_OW}, s{S_T0}")
        g.i(f"s_lshl_b32 s{S_T0}, s{S_F}, 7")
        g.i(f"s_add_u32 s{S_OW}, s{S_OW}, s{S_T0}")

def attention(g):
    opt = g.opt
    g.lab("L_attn")
    g.stamp(3)
    g.i(f"ds_read_b128 {vr(V_K,4)}, v{V_KA}")
    g.i(f"ds_read_b128 {vr(V_V[0],4)}, v{V_VA}")
    g.i(f"ds_read_b128 {vr(V_V[0]+4,4)}, v{V_VA} offset:512")
    if opt.get('x_em'):
        g.i("s_mov_b32 s100, 0xffff"); g.i("s_mov_b32 s101, 0xffff")
    g.i("s_setprio 3")
    g.i("s_waitcnt lgkmcnt(2)")
    g.i(f"v_mfma_f32_32x32x16_bf16 {vr(V_S[0],16)}, {vr(V_K,4)}, {vr(V_Q[0],4)}, 0")
    dry_exit(g)
    g.i("s_nop 9")
    g.i("s_waitcnt lgkmcnt(0)")
    poll = f"buffer_load_dword v{V_F}, v{V_FA}, s[{S_FL}:{S_FL+3}], 0 offen sc1"
    side = []
    ev = {}
    def at(it, p, slot, *ins): ev.setdefault((it, p, slot), []).extend(ins)
    def kv(i, n):
        return f"buffer_load_dwordx4 v{V_L16}, {sr(S_KV2 if n >= 2 else S_KV, 4)}, s{S_KO[i]} offen offset:{1024*(n%2)}{opt.get('kvl', ' sc1')} lds"
    def check(tag, n):
        def f():
            if n is not None: g.i(f"s_waitcnt vmcnt({n})")
            g.i(f"v_cmp_ne_u32 vcc, 1, v{V_F}")
            g.i("s_nop 0")
            g.i(f"s_and_b32 vcc_lo, vcc_lo, s{S_MK}")
            g.i(f"s_cbranch_scc1 L_ol_{tag}")
            g.lab(f"L_olr_{tag}")
            side.append((tag, lambda: spin_mask(g, tag, poll)))
        return f
    def group(pg, tag, body):
        def f():
            g.i(f"s_cmp_lg_u32 s{S_PG}, {pg}")
            g.i(f"s_cbranch_scc1 L_pg_{tag}")
            body()
            g.lab(f"L_pg_{tag}")
        return f
    def flag():
        g.i(f"s_lshl_b32 s{S_T0}, s{S_TB}, 2")
        g.i(f"s_add_u32 s{S_T0}, s{S_T0}, s{S_WAVE}")
        g.i(f"s_lshl_b64 exec, 1, s{S_T0}")
        g.i("v_mov_b32 v6, 1")
        g.i(f"buffer_store_dword v6, v{V_FA}, s[{S_FL}:{S_FL+3}], 0 offen sc1")
        g.i("s_mov_b64 exec, -1")
    def stores(it, p0, pg):
        for k, (a_, b_) in enumerate(((0, 3), (3, 6), (6, 8))):
            at(it, p0 + k, 'p1', group(pg, f"s{pg}{k}", lambda a_=a_, b_=b_: [g.i(kv_store(n)) for n in range(a_, b_)]))
    def burst(i, it=None, p=None, slot=None):
        sl = i % 2
        if not opt.get('spread', 0):
            return [f"s_mov_b32 m0, s{S_LM[sl][0]}", "s_nop 0", kv(i, 0), kv(i, 1), f"s_mov_b32 m0, s{S_LM[sl][1]}", "s_nop 0", kv(i, 2), kv(i, 3)]
        seq = [(q, k) for q in range(p, 14) for k in ('p2', 'qk', 'p1')]
        seq = seq[seq.index((p, slot)) + 1:]
        at(it, *seq[0], kv(i, 1), f"s_mov_b32 m0, s{S_LM[sl][1]}")
        at(it, *seq[1], kv(i, 2))
        at(it, *seq[2], kv(i, 3))
        return [f"s_mov_b32 m0, s{S_LM[sl][0]}", "s_nop 0", kv(i, 0)]
    def count():
        g.i(f"s_cmp_lg_u32 s{S_WAVE}, 7")
        g.i("s_cbranch_scc1 L_at_nocnt")
        g.i(f"s_lshl_b32 s{S_T0}, s{S_BR}, 4")
        g.i(f"s_add_u32 s{S_T0}, s{S_T0}, s{S_HP}")
        g.i(f"s_lshl_b32 s{S_T0}, s{S_T0}, 3")
        g.i("s_mov_b64 exec, 1")
        g.i(f"v_mov_b32 v6, s{S_T0}")
        g.i("v_mov_b32 v7, 1")
        g.i(f"buffer_atomic_add v7, v6, s[{S_DBG}:{S_DBG+3}], 0 offen offset:4 sc1")
        g.i("s_mov_b64 exec, -1")
        g.lab("L_at_nocnt")
    pp, pi0, pc0, ps1, pi1, pc1, pi3, pc3 = opt.get('ev', (1, 8, 10, 3, 7, 9, 7, 9))
    at(0, pp, 'qk', group(0, "f0", lambda: (g.st('pub_pre'), g.i("s_waitcnt vmcnt(0)"), g.st('pub_ack'), flag())))
    stores(0, ps1, 1)
    at(0, pi0, 'qk', poll)
    at(0, pc0, 'qk', "s_waitcnt vmcnt(0)", group(1, "f1", flag), check("kv0", None), lambda: g.st('chk_ok'), *burst(1, 0, pc0, 'qk'),
       f"s_mov_b32 s{S_MK}, 0xffff")
    at(1, pi1, 'qk', poll)
    at(1, pc1, 'qk', check("kv1", 0), *burst(2, 1, pc1, 'qk'), f"s_mov_b32 s{S_MK}, -1")
    stores(1, pc1 + 1 + opt.get('spread', 0), 2)
    at(2, 15, 'qk', group(2, "f2", flag))
    at(3, pi3, 'qk', poll)
    at(3, pc3, 'p2', check("kv2", 0), *burst(4, 3, pc3, 'p2'))
    late = {i: 0 for i in range(8)}
    dp = opt.get('dma', (1, 3, 5, 7))
    for i in (2, 4, 5, 6):
        sl = (i + 1) % 2
        at(i, dp[0] - 1, 'p2x', f"s_mov_b32 m0, s{S_LM[sl][0]}")
        at(i, dp[0], 'qk', kv(i + 1, 0))
        at(i, dp[1], 'qk', kv(i + 1, 1))
        at(i, dp[2], 'p2', f"s_mov_b32 m0, s{S_LM[sl][1]}")
        at(i, dp[2], 'qk', kv(i + 1, 2))
        at(i, dp[3], 'qk', kv(i + 1, 3))
    wp = opt.get('wop', (11, 13))
    for i in range(1, 5):
        for k, p in enumerate(wp):
            at(i, p, 'p2', f"s_add_u32 m0, s{S_E}, {(2*(i-1)+k)*1024}")
            at(i, p, 'qk', f"buffer_load_dwordx4 v{V_WOA}, s[{S_WO}:{S_WO+3}], s55 offen lds")
            at(i, p, 'p1', "s_add_u32 s55, s55, 8192")
        late[i] += 2
    for k, so in enumerate((S_OA, S_OB)):
        at(5, 9 + 2 * k, 'qk', f"buffer_store_dwordx4 v[252:255], v{V_L16}, s[{S_O}:{S_O+3}], s{so} offen sc1")
    late[5] += 2
    if opt.get('opw', 2):
        i = opt.get('opw', 2)
        at(i, 12, 'p1', f"buffer_store_dwordx4 v[252:255], v{V_OW}, s[{S_OUT}:{S_OUT+3}], s{S_OW} offen sc1", f"s_add_u32 s{S_T0}, s{S_OW}, 16384")
        at(i, 13, 'p1', f"buffer_store_dwordx4 v[252:255], v{V_OW}, s[{S_OUT}:{S_OUT+3}], s{S_T0} offen sc1")
        late[i] += 2
    if opt.get('opr'):
        at(7, 3, 'qk', f"buffer_load_dwordx4 v[236:239], v{V_OW}, s[{S_OUT}:{S_OUT+3}], s{S_OW} offen", f"s_add_u32 s{S_T0}, s{S_OW}, 16384")
        at(7, 5, 'qk', f"buffer_load_dwordx4 v[236:239], v{V_OW}, s[{S_OUT}:{S_OUT+3}], s{S_T0} offen")
    at(7, 1, 'qk', count)
    if opt.get('x_late0'): late = {i: 0 for i in range(8)}
    prio = opt.get('prio', {0: 3, 5: 2, 10: 1, 13: 0})
    for i in range(8):
        for p, v in prio.items():
            ii, q = (i, p - 1) if p else (i - 1, 15)
            if ii >= 0: at(ii, q, 'p1', f"s_setprio {v}")
    def emit(it, p, slot):
        for x in ev.pop((it, p, slot), []):
            x() if callable(x) else g.i(x)
    p2, pq, p1 = opt.get('pos', (1, 5, 10))
    for it in range(8):
        if opt.get('itst'):
            g.i("s_memtime s[98:99]")
            g.i("s_memrealtime s[100:101]")
            g.i("s_waitcnt lgkmcnt(0)")
            g.i(f"v_writelane_b32 v250, s98, {it}")
            g.i(f"v_writelane_b32 v250, s100, {it+9}") if it < 7 else None
        for p in range(2 * U):
            b, t = p % 2, p // 2
            S, So = V_S[b], V_S[1 - b]
            nt = (t + 1) % U
            sl = (it + (t == U - 1)) % 2
            VA = V_VB if sl else V_VA
            last = it == 7 and t == U - 1
            skip = last or (opt.get('x_half') and t % 2 == 0)
            for e in range(16):
                g.i(f"v_exp_f32 v{S+e}, v{S+e}")
                if e == p2:
                    tp = (p - 1) // 2
                    if it or p:
                        g.i(f"v_smfmac_f32_32x32x32_bf16 {vr(V_O[1-b],16)}, {vr(V_V[tp%2]+4,4)}, {vr(So+8,8)}, v{V_IDX}")
                    emit(it, p, 'p2x')
                    if b == 0:
                        if t == U - 1 and it < 7:
                            if it == 1:
                                g.i(f"s_waitcnt vmcnt({late[it] + 8})")
                                g.i(f"s_cmp_eq_u32 s{S_PG}, 2")
                                g.i("s_cbranch_scc1 L_w8")
                                g.i(f"s_waitcnt vmcnt({late[it]})")
                                g.lab("L_w8")
                            else: g.i(f"s_waitcnt vmcnt({late[it]})")
                            if it == 0: g.st('chk1_ok')
                            g.i("s_barrier")
                        if not skip:
                            xm = opt.get('x_em') and (it or t)
                            if xm: g.i("s_mov_b64 exec, s[100:101]")
                            g.i(f"ds_read_b128 {vr(V_V[(t+1)%2],4)}, v{VA} offset:{nt*2048}")
                            if xm: g.i("s_mov_b64 exec, -1")
                    elif not last:
                        g.i("s_waitcnt lgkmcnt(1)")
                    emit(it, p, 'p2')
                if e == pq:
                    if not (last and b):
                        g.i(f"v_mfma_f32_32x32x16_bf16 {vr(So,16)}, {vr(V_K,4)}, {vr(V_Q[1-b],4)}, 0")
                    if b == 0 and not skip:
                        g.i(f"ds_read_b128 {vr(V_K,4)}, v{V_KA} offset:{sl*RING+nt*2048}")
                    emit(it, p, 'qk')
                if e == p1:
                    g.i(f"v_smfmac_f32_32x32x32_bf16 {vr(V_O[b],16)}, {vr(V_V[t%2],4)}, {vr(S,8)}, v{V_IDX}")
                    if b == 0 and last: pass
                    elif b == 0 and skip: pass
                    elif b == 0:
                        xm = opt.get('x_em') and (it or t)
                        if xm: g.i("s_mov_b64 exec, s[100:101]")
                        g.i(f"ds_read_b128 {vr(V_V[(t+1)%2]+4,4)}, v{VA} offset:{nt*2048+512}")
                        if xm: g.i("s_mov_b64 exec, -1")
                    elif not last:
                        g.i("s_waitcnt lgkmcnt(0)")
                    emit(it, p, 'p1')
    assert not ev, ev
    g.side = side
    g.lab("L_at_done")
    g.i("s_nop 1")
    g.i(f"v_smfmac_f32_32x32x32_bf16 {vr(V_O[1],16)}, {vr(V_V[1]+4,4)}, {vr(V_S[1]+8,8)}, v{V_IDX}")
    g.tail_pad = True
    g.stamp(4)
    if opt.get('itst'):
        g.i("s_memtime s[98:99]")
        g.i("s_waitcnt lgkmcnt(0)")
        g.i(f"v_writelane_b32 v250, s98, 8")
    g.i(f"s_mov_b32 s{S_T0}, 0x2b800000")
    g.i(f"s_mov_b32 s{S_T1}, 0x53800000")
    g.i(f"s_mov_b32 s{S_T2}, 0x7f800000")
    for q in range(2):
        O = V_O[q]
        g.i(f"v_maximum3_f32 v6, abs(v{O}), abs(v{O+1}), abs(v{O+2})")
        g.i(f"v_maximum3_f32 v7, abs(v{O+3}), abs(v{O+4}), abs(v{O+5})")
        g.i(f"v_maximum3_f32 v6, v6, abs(v{O+6}), abs(v{O+7})")
        g.i(f"v_maximum3_f32 v6, v6, v7, v7")
        g.i(f"v_cmp_nle_f32 s[{S_M}:{S_M+1}], s{S_T0}, v{O+8}")
        g.i(f"v_cmp_nge_f32 s[{S_M+2}:{S_M+3}], s{S_T1}, v{O+8}")
        g.i(f"v_cmp_ngt_f32 vcc, s{S_T2}, v6")
        g.i(f"v_rcp_f32 v{V_S[0]+2*q}, v{O+8}")
        g.i(f"s_or_b64 s[{S_M}:{S_M+1}], s[{S_M}:{S_M+1}], s[{S_M+2}:{S_M+3}]")
        g.i(f"s_or_b64 s[{S_M}:{S_M+1}], s[{S_M}:{S_M+1}], vcc")
        g.i("s_branch L_fallback" if opt.get('force_fallback') else "s_cbranch_scc1 L_fallback")
    g.lab("L_at_store")
    for q in range(2):
        O = V_O[q]
        for r in range(0, 8, 2):
            g.i(f"v_pk_mul_f32 v[{O+r}:{O+r+1}], v[{O+r}:{O+r+1}], v[{V_S[0]+2*q}:{V_S[0]+2*q+1}] op_sel_hi:[1,0]")
        for r in range(4):
            g.i(f"v_cvt_pk_bf16_f32 v{O+r}, v{O+2*r}, v{O+2*r+1}")
        g.i(f"buffer_store_dwordx4 {vr(O,4)}, v{V_L16}, s[{S_O}:{S_O+3}], s{S_OB if q else S_OA} offen sc1")

P_WO = 100
P_OF = 8
def outproj(g):
    opt = g.opt
    A0, A1 = 228, 72
    WA0, WA1, RA, OA = 244, 245, 246, 247
    g.i(f"s_lshr_b32 s{S_E}, s{S_WAVE}, 2")
    g.i(f"s_lshl_b32 s{S_T0}, s{S_E}, 15")
    g.i(f"s_add_u32 s{S_T0}, s{S_T0}, {L_WO}")
    g.i("v_lshrrev_b32 v6, 5, v0")
    g.i("v_bfe_u32 v7, v0, 2, 2")
    g.i("v_lshl_add_u32 v6, v6, 2, v7")
    g.i(f"v_lshl_add_u32 v6, v6, 7, s{S_T0}")
    g.i("v_bfe_u32 v7, v0, 3, 2")
    g.i("v_and_b32 v2, 1, v7")
    g.i("v_lshl_add_u32 v6, v2, 6, v6")
    g.i("v_lshrrev_b32 v7, 1, v7")
    g.i("v_lshl_add_u32 v6, v7, 5, v6")
    g.i("v_and_b32 v7, 3, v0")
    g.i(f"v_lshl_add_u32 v6, v7, 3, v6")
    g.i(f"s_lshl_b32 s{S_T0}, s{S_E}, 6")
    g.i(f"v_xor_b32 v{WA0}, s{S_T0}, v6")
    g.i(f"v_xor_b32 v{WA1}, 64, v{WA0}")
    n = 0
    def wo_reads(s0, s1):
        for s in range(s0, s1):
            for f in range(2):
                for i in range(2):
                    g.i(f"ds_read_b64_tr_b16 {vr(P_WO+8*s+4*f+2*i,2)}, v{WA1 if f else WA0} offset:{s*2048+i*1024}")
    g.stamp(5)
    g.i(f"s_lshl_b32 s{S_T0}, s{S_BR}, 7")
    g.i("v_and_b32 v6, 15, v0")
    g.i(f"v_lshl_add_u32 v4, v6, 3, s{S_T0}")
    g.i(f"buffer_load_dword v5, v4, s[{S_DBG}:{S_DBG+3}], 0 offen offset:4 sc1")
    for s0 in range(0, 16, 3):
        if s0: g.i("s_waitcnt lgkmcnt(2)")
        wo_reads(s0, min(s0 + 3, 16))
    g.i(f"s_lshr_b32 s{S_T0}, s{S_HP}, 3")
    g.i(f"s_lshl_b32 s{S_T0}, s{S_T0}, 2")
    g.i(f"s_and_b32 s{S_T1}, s{S_WAVE}, 3")
    g.i(f"s_add_u32 s{S_A}, s{S_T0}, s{S_T1}")
    g.i(f"s_lshl_b32 s{S_T0}, s{S_TB}, 3")
    g.i(f"s_add_u32 s{S_A}, s{S_A}, s{S_T0}")
    g.i(f"s_lshl_b32 s{S_B}, s{S_A}, 15")
    g.i(f"s_lshl_b32 s{S_T0}, s{S_E}, 14")
    g.i(f"s_add_u32 s{S_B}, s{S_B}, s{S_T0}")
    g.i(f"s_add_u32 s{S_C}, s{S_B}, 4096")
    g.i(f"s_add_u32 s{S_D}, s{S_B}, 8192")
    g.i(f"s_add_u32 s{S_IT}, s{S_B}, 12288")
    g.i(f"v_lshlrev_b32 v2, 10, v6")
    g.i(f"v_add_u32 v2, 1020, v2")
    g.i(f"s_lshl_b32 s{S_T0}, s{S_WAVE}, 12")
    g.i(f"v_add_u32 v{RA}, s{S_T0}, v{V_L16}")
    if not opt.get('fl', 1):
        g.i("v_and_b32 v6, 31, v0")
        g.i("v_lshlrev_b32 v6, 11, v6")
        g.i("v_lshrrev_b32 v7, 5, v0")
        g.i(f"v_lshl_add_u32 v{OA}, v7, 4, v6")
        g.i(f"s_lshl_b32 s{S_A}, s{S_A}, 16")
        g.i(f"s_lshl_b32 s{S_T0}, s{S_BR}, 10")
        g.i(f"s_add_u32 s{S_A}, s{S_A}, s{S_T0}")
        g.i(f"s_lshl_b32 s{S_T0}, s{S_F}, 7")
        g.i(f"s_add_u32 s{S_A}, s{S_A}, s{S_T0}")
        g.i(f"s_lshl_b32 s{S_T0}, s{S_E}, 6")
        g.i(f"s_add_u32 s{S_A}, s{S_A}, s{S_T0}")
    if opt.get('fl', 1):
        g.i(f"s_and_b32 s{S_T0}, s{S_WAVE}, 3")
        g.i(f"s_lshl_b32 s{S_T0}, s{S_T0}, 12")
        g.i(f"s_add_u32 s{S_T0}, s{S_T0}, {RING}")
        g.i("v_and_b32 v6, 31, v0")
        g.i(f"v_lshl_add_u32 v6, v6, 7, s{S_T0}")
        g.i("v_lshrrev_b32 v7, 5, v0")
        g.i(f"v_lshl_add_u32 v7, s{S_E}, 2, v7")
        g.i("v_and_b32 v91, 7, v0")
        g.i("v_xor_b32 v7, v7, v91")
        g.i("v_lshl_add_u32 v88, v7, 4, v6")
        g.i("v_xor_b32 v89, 32, v88")
        g.i("v_lshrrev_b32 v6, 3, v0")
        g.i("v_xor_b32 v7, v6, v91")
        g.i(f"v_lshl_add_u32 v6, v6, 7, s{S_T0}")
        g.i("v_lshl_add_u32 v6, v7, 4, v6")
        g.i(f"v_lshl_add_u32 v90, s{S_E}, 11, v6")
    g.i(f"s_mov_b32 s{S_T3}, 0")
    probe = f"buffer_load_dword v3, v2, s[{S_O}:{S_O+3}], s{S_B} offen sc1"
    g.lab("L_spin_c")
    g.i("s_waitcnt vmcnt(0)")
    g.i("v_cmp_gt_u32 vcc, 8, v5")
    g.i(f"s_add_u32 s{S_T3}, s{S_T3}, 1")
    g.i("s_cbranch_vccz L_spin_o")
    g.i(f"buffer_load_dword v5, v4, s[{S_DBG}:{S_DBG+3}], 0 offen offset:4 sc1")
    g.i(f"s_cmp_lt_u32 s{S_T3}, {SPIN_MAX}")
    g.i("s_cbranch_scc1 L_spin_c")
    g.lab("L_spin_o")
    if opt.get('probe', 1):
        g.i(probe)
        g.i(f"s_add_u32 s{S_T3}, s{S_T3}, 1")
        g.i(f"s_cmp_ge_u32 s{S_T3}, {SPIN_MAX}")
        g.i("s_cbranch_scc1 L_spun_o")
        g.i("s_waitcnt vmcnt(0)")
        g.i("v_cmp_eq_u32 vcc, -1, v3")
        g.i("s_cbranch_vccnz L_spin_o")
    else:
        g.i(f"s_add_u32 s{S_T3}, s{S_T3}, 1")
    g.lab("L_spun_o")
    g.stamp(6)
    for s in range(16):
        so = (S_B, S_C, S_D, S_IT)[s // 4]
        g.i(f"buffer_load_dwordx4 {vr(P_OF+4*s,4)}, v{V_L16}, s[{S_O}:{S_O+3}], s{so} offen offset:{1024*(s%4)} sc1")
    g.i("v_mov_b32 v3, 0")
    g.i("s_waitcnt lgkmcnt(0)")
    for s in range(16):
        g.i(f"s_waitcnt vmcnt({15-s})")
        for f, A in ((1, A1), (0, A0)):
            g.i(f"v_mfma_f32_32x32x16_bf16 {vr(A,16)}, {vr(P_WO+8*s+4*f,4)}, {vr(P_OF+4*s,4)}, {vr(A,16) if s else 0}")
            g.i(f"v_max3_u32 v3, v3, v{P_OF+4*s+2*f}, v{P_OF+4*s+2*f+1}")
    g.i("v_cmp_eq_u32 vcc, -1, v3")
    g.i(f"s_cmp_ge_u32 s{S_T3}, {SPIN_MAX}")
    g.i("s_cbranch_scc1 L_op_go")
    g.i("s_cbranch_vccnz L_spin_o")
    g.lab("L_op_go")
    g.i("s_nop 5")
    for r in range(4):
        g.i(f"ds_write_b128 v{RA}, {vr(A1+4*r,4)} offset:{1024*r}")
    g.i("s_waitcnt lgkmcnt(0)")
    g.i(f"v_xor_b32 v{RA}, 16384, v{RA}")
    barrier_unless_dry(g, "b9")
    for r in range(4):
        g.i(f"ds_read_b128 {vr(P_OF+4*r,4)}, v{RA} offset:{1024*r}")
    for r in range(4):
        g.i(f"s_waitcnt lgkmcnt({3-r})")
        for k in range(4):
            g.i(f"v_add_f32 v{A0+4*r+k}, v{A0+4*r+k}, v{P_OF+4*r+k}")
        for k in range(2):
            g.i(f"v_cvt_pk_bf16_f32 v{24+2*r+k}, v{A0+4*r+2*k}, v{A0+4*r+2*k+1}")
        if r % 2:
            g.i("s_nop 1")
            g.i(f"v_permlane32_swap_b32 v{24+2*r-2}, v{24+2*r}")
            g.i(f"v_permlane32_swap_b32 v{24+2*r-1}, v{24+2*r+1}")
            if opt.get('fl', 1):
                g.i(f"ds_write_b128 v{88+r//2}, {vr(24+2*r-2,4)}")
            else:
                g.i(f"buffer_store_dwordx4 {vr(24+2*r-2,4)}, v{OA}, s[{S_OUT}:{S_OUT+3}], s{S_A} offen offset:{16*(r-1)}{opt.get('outs','')}")
    if opt.get('fl', 1):
        g.i(f"s_add_u32 s{S_T0}, s{S_OW}, 16384")
        g.i("s_waitcnt lgkmcnt(0)")
        barrier_unless_dry(g, "b10")
        g.i("ds_read_b128 v[24:27], v90")
        g.i("ds_read_b128 v[28:31], v90 offset:1024")
        g.i("s_waitcnt lgkmcnt(1)")
        g.i(f"buffer_store_dwordx4 v[24:27], v{V_OW}, s[{S_OUT}:{S_OUT+3}], s{S_OW} offen{opt.get('outs','')}")
        g.i("s_waitcnt lgkmcnt(0)")
        g.i(f"buffer_store_dwordx4 v[28:31], v{V_OW}, s[{S_OUT}:{S_OUT+3}], s{S_T0} offen{opt.get('outs','')}")
    dry_exit(g)
    if g.diag:
        g.i("s_waitcnt vmcnt(0)")
        g.stamp(7)
        g.i("s_waitcnt lgkmcnt(0)")
        if g.diag == 3:
            a_, b_, K = opt['leak']
            if a_ in (1, 2) or b_ in (1, 2):
                g.i(f"s_cmp_ge_u32 s{S_WAVE}, 4")
                g.i("s_cbranch_scc1 L_end")
            if opt.get('leakc'):
                g.i(f"s_sub_u32 s{S_T0}, s{64+4*b_}, s{64+4*a_}")
                g.i(f"s_lshr_b32 s{S_T0}, s{S_T0}, 4")
            else:
                g.i(f"s_sub_u32 s{S_T0}, s{66+4*b_}, s{66+4*a_}")
            g.i(f"s_mul_i32 s{S_T0}, s{S_T0}, {K}")
            g.lab("L_leak")
            g.i("s_memrealtime s[98:99]")
            g.i("s_waitcnt lgkmcnt(0)")
            g.i(f"s_sub_u32 s{S_T1}, s98, s{66+4*7}")
            g.i(f"s_cmp_lt_u32 s{S_T1}, s{S_T0}")
            g.i("s_cbranch_scc1 L_leak")
            g.i("s_endpgm")
        if g.diag == 2:
            g.i(f"s_cmp_ge_u32 s{S_WAVE}, 4")
            g.i("s_cbranch_scc1 L_end")
            g.i("s_mov_b64 exec, 1")
            for k in range(1, 8):
                g.i(f"s_sub_u32 s{S_T0}, s{66+4*k}, s66")
                g.i(f"v_mov_b32 v6, s{S_T0}")
                g.i(f"v_mov_b32 v7, {8*k+4}")
                g.i(f"buffer_atomic_umax v6, v7, s[{S_DBG}:{S_DBG+3}], 0 offen sc1")
            g.i(f"s_sub_u32 s{S_T0}, s{64+4*4}, s{64+4*3}")
            g.i(f"v_mov_b32 v6, s{S_T0}")
            g.i(f"v_mov_b32 v7, 4")
            g.i(f"buffer_atomic_umax v6, v7, s[{S_DBG}:{S_DBG+3}], 0 offen sc1")
            g.i("s_endpgm")
        g.i(f"s_lshl_b32 s{S_T0}, s2, 3")
        g.i(f"s_add_u32 s{S_T0}, s{S_T0}, s{S_WAVE}")
        g.i(f"s_lshl_b32 s{S_T0}, s{S_T0}, 7")
        g.i(f"s_add_u32 s{S_T0}, s{S_T0}, {WS_STAMP}")
        srd(g.a, S_X, 96, 128, f"s{S_T0}")
        for k in range(32):
            g.i(f"v_mov_b32 v{36+k}, s{64+k}")
        g.i("v_mov_b32 v6, 0")
        for k in range(8):
            g.i(f"buffer_store_dwordx4 {vr(36+4*k,4)}, v6, s[{S_X}:{S_X+3}], 0 offen offset:{16*k}")
        if opt.get('itst'):
            g.i(f"s_add_u32 s{S_T0}, s{S_T0}, {1<<20}")
            srd(g.a, S_X, 96, 64, f"s{S_T0}")
            g.i("v_lshlrev_b32 v6, 2, v0")
            g.i(f"buffer_store_dword v250, v6, s[{S_X}:{S_X+3}], 0 offen")
    g.lab("L_end")
    g.i("s_endpgm")

def fallback(g):
    C = [100, 116]; M = [132, 133]; GV = 134
    g.lab("L_fallback")
    g.i(f"s_lshr_b32 s{S_T0}, s{S_WAVE}, 2")
    g.i(f"s_lshl_b32 s{S_T0}, s{S_T0}, 17")
    g.i(f"v_mov_b32 v{M[0]}, 0xff800000")
    g.i(f"v_mov_b32 v{M[1]}, 0xff800000")
    g.i(f"s_mov_b32 s{S_T1}, s{S_T0}")
    g.i(f"s_add_u32 s{S_T2}, s{S_T0}, 131072")
    g.lab("L_fb_max")
    g.i(f"buffer_load_dwordx4 {vr(V_K,4)}, v{V_L16}, s[{S_KV}:{S_KV+3}], s{S_T1} offen sc1")
    g.i(f"s_add_u32 s{S_T1}, s{S_T1}, 2048")
    g.i("s_waitcnt vmcnt(0)")
    for q in range(2):
        g.i(f"v_mfma_f32_32x32x16_bf16 {vr(V_S[q],16)}, {vr(V_K,4)}, {vr(V_Q[q],4)}, 0")
    g.i("s_nop 15")
    for q in range(2):
        for r in range(0, 16, 2):
            g.i(f"v_max3_f32 v{M[q]}, v{M[q]}, v{V_S[q]+r}, v{V_S[q]+r+1}")
    g.i(f"s_cmp_lt_u32 s{S_T1}, s{S_T2}")
    g.i("s_cbranch_scc1 L_fb_max")
    for q in range(2):
        g.i(f"v_mov_b32 v6, v{M[q]}")
        g.i(f"v_mov_b32 v7, v{M[q]}")
        g.i("s_nop 1")
        g.i("v_permlane32_swap_b32 v6, v7")
        g.i("s_nop 1")
        g.i("v_max_f32 v6, v6, v7")
        for r in range(16):
            g.i(f"v_sub_f32 v{C[q]+r}, 0, v6")
            g.i(f"v_mov_b32 v{V_O[q]+r}, 0")
    g.i("v_and_b32 v6, 15, v0")
    g.i("v_lshlrev_b32 v6, 4, v6")
    g.i("v_lshrrev_b32 v7, 5, v0")
    g.i(f"v_lshl_add_u32 v{GV}, v7, 8, v6")
    for r in range(8):
        g.i(f"v_mov_b32 v{V_V[0]+r}, 0x3f803f80")
    g.i(f"s_mov_b32 s{S_T1}, s{S_T0}")
    g.i(f"s_mov_b32 s{S_M}, 0xffff")
    g.i(f"s_mov_b32 s{S_M+1}, 0xffff")
    g.lab("L_fb_pv")
    g.i(f"buffer_load_dwordx4 {vr(V_K,4)}, v{V_L16}, s[{S_KV}:{S_KV+3}], s{S_T1} offen sc1")
    g.i(f"s_mov_b64 exec, s[{S_M}:{S_M+1}]")
    g.i(f"buffer_load_dwordx4 {vr(V_V[0],4)}, v{GV}, s[{S_KV}:{S_KV+3}], s{S_T1} offen offset:1024 sc1")
    g.i(f"buffer_load_dwordx4 {vr(V_V[0]+4,4)}, v{GV}, s[{S_KV}:{S_KV+3}], s{S_T1} offen offset:1536 sc1")
    g.i("s_mov_b64 exec, -1")
    g.i(f"s_add_u32 s{S_T1}, s{S_T1}, 2048")
    g.i("s_waitcnt vmcnt(0)")
    for q in range(2):
        g.i(f"v_mfma_f32_32x32x16_bf16 {vr(V_S[q],16)}, {vr(V_K,4)}, {vr(V_Q[q],4)}, {vr(C[q],16)}")
    g.i("s_nop 15")
    for q in range(2):
        for r in range(16):
            g.i(f"v_exp_f32 v{V_S[q]+r}, v{V_S[q]+r}")
    g.i("s_nop 3")
    for q in range(2):
        for h in range(2):
            g.i(f"v_smfmac_f32_32x32x32_bf16 {vr(V_O[q],16)}, {vr(V_V[0]+4*h,4)}, {vr(V_S[q]+8*h,8)}, v{V_IDX}")
    g.i("s_nop 15")
    g.i(f"s_cmp_lt_u32 s{S_T1}, s{S_T2}")
    g.i("s_cbranch_scc1 L_fb_pv")
    for q in range(2):
        g.i(f"v_rcp_f32 v{V_S[0]+2*q}, v{V_O[q]+8}")
    g.i("s_nop 1")
    g.i("s_branch L_at_store")

HEADER = open('cdna_kernels/' + NAME + '.s.ref').read().split('; Override launch')[0]

def generate(opt={}):
    global WS_KV, WS_O, WS_FLAG
    off = opt.get('wsoff', 0) << 20
    WS_KV, WS_O, WS_FLAG = (4 << 20) + off, (12 << 20) + off, (16 << 20) + off
    g = G(opt)
    name = NAME + "_kernel"
    g.a(HEADER.rstrip())
    g.a(f"; @launch grid=(256,1,1) block=(512,1,1) lds={LDS_TOTAL}")
    g.a('.amdgcn_target "amdgcn-amd-amdhsa--gfx950"')
    entry(g, name)
    if opt.get('lfirst', 1): loader(g)
    compute(g)
    attention(g)
    outproj(g)
    if not opt.get('lfirst', 1): loader(g)
    g.lab("L_code_end")
    for tag, body in g.side:
        g.lab(f"L_ol_{tag}")
        body()
        g.i(f"s_branch L_olr_{tag}")
    fallback(g)
    kernel_desc(g.a, name, NVGPR, 256, 102)
    return g.a.text()

if __name__ == "__main__":
    import sys
    opt = eval(sys.argv[2]) if len(sys.argv) > 2 else {}
    open(sys.argv[1], 'w').write(generate(opt))
```

```python
import math, struct
from common import *

WS_FLAG = 16 << 20
SLOT = 45056; SLOT_W = 32768
RING = 32768
L_WO = 65536
L_CONST = 135168
L_QX = 155648
LDS_TOTAL = 163840
S_X, S_W, S_WO, S_KV, S_O, S_FL, S_DBG, S_OUT = 8, 12, 16, 20, 24, 28, 32, 36
S_WAVE, S_BR, S_HP, S_TB, S_IT, S_T0, S_T1, S_T2, S_T3 = 40, 41, 42, 43, 44, 45, 46, 47, 48
S_A, S_B, S_C, S_D, S_E, S_F = 49, 50, 51, 52, 53, 54
S_G1, S_G2, S_PG = 58, 59, 60
KG, KL, VG, VL, QL, KVT = 244, 245, 247, 248, 249, 204
S_M = 56
V_L16, V_KA, V_VA, V_VX, V_IDX, V_T0, V_T1 = 1, 2, 3, 4, 5, 6, 7
V_Q = [8, 12]; V_K = 16; V_V = [20, 28]; V_S = [36, 52]; V_O = [68, 84]
V_F = 241
V_FA = 242
V_OW = 251
V_WOA = 243
V_ACC = 100
V_FR = [196, 216]
V_XA = 236; V_WA = 240
NVGPR = 256
QSCALE = struct.unpack('<I', struct.pack('<f', 0.25 * math.log2(math.e)))[0]
SPIN_MAX = 1 << 20
S_DRY = 3

class G:
    def __init__(self, opt):
        self.a = Asm(); self.opt = opt; self.diag = opt.get('diag', 0)
    def i(self, s): self.a.i(s)
    def lab(self, s): self.a.label(s)
    def st(self, name):
        m = self.opt.get('st', {})
        if name in m: self.stamp(m[name], True)
    def stamp(self, k, forced=False):
        if k in self.opt.get('st', {}).values() and not forced: return
        if self.diag:
            self.i(f"s_memtime s[{64+4*k}:{65+4*k}]")
            self.i(f"s_memrealtime s[{66+4*k}:{67+4*k}]")

def dry_exit(g, label="L_dry_ret"):
    if g.opt.get('dry', 1):
        g.i(f"s_cmp_lg_u32 s{S_DRY}, 0")
        g.i(f"s_cbranch_scc1 {label}")

def barrier_unless_dry(g, tag):
    dry_exit(g, f"L_nb_{tag}")
    g.i("s_barrier")
    g.lab(f"L_nb_{tag}")

def spin(g, tag, load, want, nlanes_mask=None):
    g.i(f"s_mov_b32 s{S_T3}, 0")
    g.lab(f"L_spin_{tag}")
    g.i(load)
    g.i(f"s_add_u32 s{S_T3}, s{S_T3}, 1")
    g.i("s_waitcnt vmcnt(0)")
    g.i(f"v_cmp_{'gt' if want > 1 else 'ne'}_u32 vcc, {want}, v{V_F}")
    g.i(f"s_cmp_ge_u32 s{S_T3}, {SPIN_MAX}")
    g.i(f"s_cbranch_scc1 L_spun_{tag}")
    g.i(f"s_cbranch_vccnz L_spin_{tag}")
    g.lab(f"L_spun_{tag}")

def entry(g, name):
    a = g.a
    kernel_head(a, name)
    PF = g.opt.get('cpf', 1)
    if PF:
        g.i("s_getpc_b64 s[8:9]")
        g.i("v_lshlrev_b32 v6, 7, v0")
        g.i("s_mov_b32 s10, L_code_end-" + name + "-4")
        g.i("s_mov_b32 s11, 0x20000")
    g.i("s_cmp_ge_u32 s2, 256")
    g.i("s_cbranch_scc1 L_end")
    if PF:
        g.i("buffer_load_dword v246, v6, s[8:11], 0 offen")
    g.stamp(0)
    g.i(f"s_mov_b32 s{S_DRY}, 0")
    g.i(f"s_bfe_u32 s{S_BR}, s2, 0x10002")
    g.i(f"s_mul_i32 s{S_T0}, s{S_BR}, 24")
    g.i(f"s_load_dwordx4 s[{S_M}:{S_M+3}], s[0:1], s{S_T0}")
    g.i(f"s_load_dwordx2 s[{S_M+4}:{S_M+5}], s[0:1], s{S_T0} offset:16")
    g.i("s_load_dwordx4 s[4:7], s[0:1], 48")
    g.i(f"s_load_dwordx2 s[{S_M+6}:{S_M+7}], s[0:1], 64")
    g.i("v_lshrrev_b32 v6, 6, v0")
    g.i("v_and_b32 v0, 63, v0")
    g.i(f"v_readfirstlane_b32 s{S_WAVE}, v6")
    g.i(f"v_lshlrev_b32 v{V_L16}, 4, v0")
    g.i(f"s_bfe_u32 s{S_HP}, s2, 0x10001")
    g.i(f"s_lshl_b32 s{S_HP}, s{S_HP}, 3")
    g.i(f"s_bfe_u32 s{S_T0}, s2, 0x30003")
    g.i(f"s_add_u32 s{S_HP}, s{S_HP}, s{S_T0}")
    g.i(f"s_and_b32 s{S_TB}, s2, 1")
    g.i(f"s_lshl_b32 s{S_TB}, s{S_TB}, 2")
    g.i(f"s_lshr_b32 s{S_T0}, s2, 6")
    g.i(f"s_add_u32 s{S_TB}, s{S_TB}, s{S_T0}")
    g.i(f"s_lshl_b32 s{S_T0}, s{S_TB}, 18")
    g.i(f"s_lshl_b32 s{S_T1}, s{S_BR}, 4")
    g.i(f"s_add_u32 s{S_T1}, s{S_T1}, s{S_HP}")
    g.i(f"s_lshl_b32 s{S_T2}, s{S_T1}, 18")
    g.i(f"s_add_u32 s{S_T2}, s{S_T2}, {WS_KV}")
    g.i(f"s_lshl_b32 s{S_T3}, s{S_BR}, 21")
    g.i(f"s_add_u32 s{S_T3}, s{S_T3}, {WS_O}")
    if g.opt.get('lfirst', 1):
        g.i(f"s_cmp_lt_u32 s{S_WAVE}, 4")
        g.i("s_cbranch_scc1 L_compute")
    else:
        g.i(f"s_cmp_ge_u32 s{S_WAVE}, 4")
        g.i("s_cbranch_scc1 L_loader")

def early_srds(g):
    g.i("s_waitcnt lgkmcnt(0)")
    g.st('karg')
    srd(g.a, S_X, S_M, 256 * 1024, f"s{S_T0}")
    srd(g.a, S_W, S_M + 2, 512 * 1536 * 2)

def late_srds(g):
    a = g.a
    srd(a, S_WO, S_M + 4, 512 * 512 * 2)
    srd(a, S_KV, S_M + 6, 256 * 1024, f"s{S_T2}")
    srd(a, S_O, S_M + 6, 2 << 20, f"s{S_T3}")
    srd(a, S_FL, S_M + 6, 4096, str(WS_FLAG))
    srd(a, S_DBG, 6, 256)
    srd(a, S_OUT, 4, 2048 * 1024 * 2)
    if g.diag:
        g.i(f"s_mov_b32 s96, s{S_M+6}")
        g.i(f"s_mov_b32 s97, s{S_M+7}")

def attn_consts(g):
    g.i(f"s_lshr_b32 s{S_T0}, s{S_WAVE}, 2")
    g.i(f"s_lshl_b32 s{S_T0}, s{S_T0}, 14")
    g.i(f"v_add_u32 v{V_KA}, s{S_T0}, v{V_L16}")
    g.i(f"v_and_b32 v{V_T0}, 15, v0")
    g.i(f"v_lshlrev_b32 v{V_T0}, 4, v{V_T0}")
    g.i(f"v_lshrrev_b32 v{V_T1}, 5, v0")
    g.i(f"v_lshl_add_u32 v{V_T0}, v{V_T1}, 8, v{V_T0}")
    g.i(f"s_add_u32 s{S_T0}, s{S_T0}, 1024")
    g.i(f"v_add_u32 v{V_VA}, s{S_T0}, v{V_T0}")
    g.i(f"v_and_b32 v{V_T0}, 31, v0")
    g.i(f"v_subrev_u32 v{V_T1}, 20, v{V_T0}")
    g.i(f"v_cmp_gt_u32 vcc, 8, v{V_T1}")
    g.i(f"v_mov_b32 v{V_T1}, {L_CONST+16}")
    g.i(f"v_mov_b32 v{V_VX}, {L_CONST+16+64}")
    g.i(f"v_cndmask_b32 v{V_T1}, v{V_T1}, v{V_VX}, vcc")
    g.i(f"v_and_b32 v{V_VX}, {31 if g.opt.get('x_one') else 27}, v0")
    g.i(f"v_cmp_eq_u32 vcc, 16, v{V_VX}")
    g.i(f"v_subrev_u32 v{V_VX}, 16, v{V_T1}")
    g.i("s_nop 0")
    g.i(f"v_cndmask_b32 v{V_T1}, v{V_T1}, v{V_VX}, vcc")
    g.i(f"v_cmp_gt_u32 vcc, 16, v{V_T0}")
    g.i(f"v_mov_b32 v{V_T0}, {RING}")
    g.i(f"v_mov_b32 v{V_IDX}, 0xdddd")
    g.i(f"v_cndmask_b32 v{V_VA}, v{V_T1}, v{V_VA}, vcc")
    g.i(f"v_cndmask_b32 v{V_VX}, 0, v{V_T0}, vcc")
    g.i(f"v_add_u32 v{V_VX}, v{V_VX}, v{V_VA}")
    g.i("v_lshrrev_b32 v7, 3, v0")
    g.i("v_lshlrev_b32 v7, 11, v7")
    g.i(f"v_and_b32 v{V_OW}, 7, v0")
    g.i(f"v_lshl_add_u32 v{V_OW}, v{V_OW}, 4, v7")
    g.i(f"v_mov_b32 v{KG}, 0")
    g.i(f"v_mov_b32 v{VG}, 0")
    g.i("v_mov_b64 v[252:253], -1")
    g.i("v_mov_b64 v[254:255], -1")
    for r in range(0, 32, 2):
        g.i(f"v_mov_b64 v[{V_O[0]+r}:{V_O[0]+r+1}], 0")
    g.i(f"s_lshl_b32 s{S_T0}, s{S_BR}, 4")
    g.i(f"s_add_u32 s{S_T0}, s{S_T0}, s{S_HP}")
    g.i(f"s_lshl_b32 s{S_T0}, s{S_T0}, 7")
    g.i(f"v_and_b32 v6, 31, v0")
    g.i(f"v_lshl_add_u32 v{V_FA}, v6, 2, s{S_T0}")
    g.i(f"v_lshrrev_b32 v{V_T0}, 2, v0")
    g.i(f"v_and_b32 v{V_T0}, 4, v{V_T0}")
    g.i(f"v_and_b32 v{V_T1}, 7, v0")
    g.i(f"v_xor_b32 v{V_T0}, v{V_T0}, v{V_T1}")
    g.i(f"v_lshlrev_b32 v{V_T0}, 4, v{V_T0}")
    g.i(f"v_lshrrev_b32 v{V_T1}, 3, v0")
    g.i(f"v_lshl_add_u32 v{V_WOA}, v{V_T1}, 10, v{V_T0}")

def consts(g):
    g.i(f"s_cmp_lg_u32 s{S_WAVE}, 4")
    g.i("s_cbranch_scc1 L_ld_noconst")
    g.i("v_lshrrev_b32 v6, 2, v0")
    g.i("v_and_b32 v7, 1, v6")
    g.i("v_lshlrev_b32 v7, 9, v7")
    g.i("v_lshrrev_b32 v6, 1, v6")
    g.i("v_lshl_add_u32 v7, v6, 11, v7")
    g.i("v_and_b32 v6, 1, v0")
    g.i("v_lshl_add_u32 v7, v6, 4, v7")
    g.i("v_cmp_eq_u32 vcc, 0, v6")
    g.i("v_and_b32 v6, 2, v0")
    g.i("v_lshl_add_u32 v7, v6, 5, v7")
    g.i("v_mov_b32 v6, 0x3f803f80")
    g.i(f"v_add_u32 v7, {L_CONST}, v7")
    g.i("v_cndmask_b32 v108, 0, v6, vcc")
    g.i("v_cndmask_b32 v109, 0, v6, vcc")
    g.i("v_cndmask_b32 v110, 0, v6, vcc")
    g.i("v_cndmask_b32 v111, 0, v6, vcc")
    g.i("ds_write_b128 v7, v[108:111]")
    g.lab("L_ld_noconst")

def loader(g):
    VX, VW, VT = 100, 104, 112
    LEAD = g.opt.get('lead', 0)
    g.lab("L_loader")
    g.i(f"s_sub_u32 s{S_A}, s{S_WAVE}, 4")
    S_CH, S_TX = S_F, 55
    RM = g.opt.get('rot', 7)
    if RM == 1:
        g.i(f"s_lshl_b32 s{S_CH}, s{S_TB}, 1")
        g.i(f"s_lshr_b32 s{S_T1}, s{S_TB}, 2")
        g.i(f"s_add_u32 s{S_CH}, s{S_CH}, s{S_T1}")
        g.i(f"s_and_b32 s{S_CH}, s{S_CH}, 7")
    elif RM == 2:
        g.i(f"s_mov_b32 s{S_CH}, s{S_TB}")
    elif RM == 7:
        g.i(f"s_and_b32 s{S_T1}, s{S_HP}, 1")
        g.i(f"s_lshl_b32 s{S_T1}, s{S_T1}, 2")
        g.i(f"s_add_u32 s{S_CH}, s{S_TB}, s{S_T1}")
        g.i(f"s_and_b32 s{S_CH}, s{S_CH}, 7")
    elif RM == 8:
        g.i(f"s_lshl_b32 s{S_CH}, s{S_TB}, 1")
        g.i(f"s_bfe_u32 s{S_T1}, s{S_HP}, 0x10001")
        g.i(f"s_add_u32 s{S_CH}, s{S_CH}, s{S_T1}")
        g.i(f"s_and_b32 s{S_CH}, s{S_CH}, 7")
    elif RM == 9:
        g.i(f"s_lshl_b32 s{S_CH}, s{S_TB}, 1")
        g.i(f"s_and_b32 s{S_T1}, s{S_HP}, 3")
        g.i(f"s_add_u32 s{S_CH}, s{S_CH}, s{S_T1}")
        g.i(f"s_and_b32 s{S_CH}, s{S_CH}, 7")
    elif RM == 10:
        g.i(f"s_and_b32 s{S_CH}, s2, 7")
    elif RM == 11:
        g.i(f"s_and_b32 s{S_CH}, s2, 3")
        g.i(f"s_lshl_b32 s{S_CH}, s{S_CH}, 1")
        g.i(f"s_add_u32 s{S_CH}, s{S_CH}, s{S_BR}")
    elif RM == 0:
        g.i(f"s_mov_b32 s{S_CH}, 0")
    elif RM == 6:
        g.i(f"s_lshl_b32 s{S_CH}, s{S_TB}, 1")
        g.i(f"s_add_u32 s{S_CH}, s{S_CH}, s{S_HP}")
        g.i(f"s_and_b32 s{S_CH}, s{S_CH}, 7")
    elif RM == 4:
        g.i(f"s_lshl_b32 s{S_CH}, s{S_TB}, 1")
        g.i(f"s_add_u32 s{S_CH}, s{S_CH}, s{S_HP}")
        g.i(f"s_and_b32 s{S_CH}, s{S_CH}, 3")
        g.i(f"s_lshl_b32 s{S_CH}, s{S_CH}, 1")
    elif RM == 5:
        g.i(f"s_add_u32 s{S_CH}, s{S_TB}, s{S_HP}")
        g.i(f"s_and_b32 s{S_CH}, s{S_CH}, 3")
        g.i(f"s_lshl_b32 s{S_CH}, s{S_CH}, 1")
    elif RM == 3:
        g.i(f"s_lshl_b32 s{S_CH}, s{S_TB}, 1")
        g.i(f"s_and_b32 s{S_T1}, s{S_HP}, 1")
        g.i(f"s_add_u32 s{S_CH}, s{S_CH}, s{S_T1}")
        g.i(f"s_and_b32 s{S_CH}, s{S_CH}, 7")
    g.i(f"v_lshlrev_b32 v{VT}, 10, v0")
    g.i(f"s_and_b32 s{S_TX}, s{S_HP}, 7")
    g.i(f"s_lshl_b32 s{S_TX}, s{S_TX}, 2")
    g.i(f"s_add_u32 s{S_TX}, s{S_TX}, s{S_A}")
    g.i(f"s_lshl_b32 s{S_TX}, s{S_TX}, 13")
    PF = g.opt.get('pf', 0)
    NT = 2 if PF else (1 if LEAD else 0)
    if PF:
        S_TC, S_TW = S_IT, 0
        g.i(f"s_mov_b32 s{S_TC}, s{S_CH}")
        g.i("v_lshrrev_b32 v6, 1, v0")
        g.i("v_and_b32 v7, 1, v0")
        g.i("v_lshlrev_b32 v7, 7, v7")
        g.i(f"v_lshl_add_u32 v{VT+1}, v6, 10, v7")
        g.i(f"s_lshr_b32 s1, s2, 3")
        g.i(f"s_lshl_b32 s1, s1, 1")
        g.i(f"s_lshr_b32 s{S_T1}, s{S_A}, 1")
        g.i(f"s_add_u32 s1, s1, s{S_T1}")
        g.i(f"s_mul_i32 s1, s1, 3072")
        g.i(f"s_lshr_b32 s{S_T1}, s{S_HP}, 3")
        g.i(f"s_lshl_b32 s{S_T1}, s{S_T1}, 1")
        g.i(f"s_and_b32 s{S_B}, s{S_A}, 1")
        g.i(f"s_add_u32 s{S_T1}, s{S_T1}, s{S_B}")
        g.i(f"s_lshl_b32 s{S_T1}, s{S_T1}, 8")
        g.i(f"s_add_u32 s3, s1, s{S_T1}")
    def touch(ahead):
        if PF:
            g.i(f"s_lshl_b32 s{S_T0}, s{S_TC}, 7")
            g.i(f"s_add_u32 s{S_T0}, s{S_T0}, s{S_TX}")
            g.i(f"s_mul_i32 s{S_T1}, s{S_TC}, {64*3072}")
            g.i(f"s_add_u32 s{S_T1}, s{S_T1}, s3")
            g.i("s_mov_b64 exec, 0xff")
            g.i(f"buffer_load_dword v246, v{VT}, s[{S_X}:{S_X+3}], s{S_T0} offen")
            if g.opt.get('pfw', 1):
                g.i("s_mov_b64 exec, 0x3f")
                g.i(f"buffer_load_dword v246, v{VT+1}, s[{S_W}:{S_W+3}], s{S_T1} offen")
            g.i("s_mov_b64 exec, -1")
            g.i(f"s_add_u32 s{S_TC}, s{S_TC}, 1")
            g.i(f"s_and_b32 s{S_TC}, s{S_TC}, 7")
            return
        if not LEAD: return
        g.i(f"s_add_u32 s{S_T0}, s{S_CH}, {ahead}")
        g.i(f"s_and_b32 s{S_T0}, s{S_T0}, 7")
        g.i(f"s_lshl_b32 s{S_T0}, s{S_T0}, 7")
        g.i(f"s_add_u32 s{S_T0}, s{S_T0}, s{S_TX}")
        g.i("s_mov_b64 exec, 0xff")
        g.i(f"buffer_load_dword v246, v{VT}, s[{S_X}:{S_X+3}], s{S_T0} offen")
        g.i("s_mov_b64 exec, -1")
    g.i("v_lshrrev_b32 v6, 4, v0")
    g.i("v_and_b32 v7, 7, v0")
    g.i("v_xor_b32 v6, v6, v7")
    g.i("v_lshlrev_b32 v6, 4, v6")
    g.i("v_lshrrev_b32 v7, 3, v0")
    g.i(f"v_lshl_add_u32 v{VX}, v7, 10, v6")
    g.i(f"v_xor_b32 v{VX+1}, 64, v{VX}")
    g.i(f"v_add_u32 v{VX+2}, {2*7168}, v{VX}")
    g.i(f"v_add_u32 v{VX+3}, {3*7168}, v{VX+1}")
    g.i(f"v_add_u32 v{VX+1}, 7168, v{VX+1}")
    g.i(f"s_lshl_b32 s{S_B}, s{S_A}, 16")
    g.i(f"s_lshl_b32 s{S_D}, s{S_A}, 13")
    for p in range(3):
        g.i(f"v_add_u32 v6, {64*p}, v0")
        g.i("v_mul_u32_u24 v7, 43691, v6")
        g.i("v_lshrrev_b32 v7, 19, v7")
        g.i("v_mul_u32_u24 v110, 12, v7")
        g.i("v_sub_u32 v6, v6, v110")
        g.i("v_mul_u32_u24 v7, 3072, v7")
        g.i("v_lshrrev_b32 v110, 2, v6")
        g.i(f"v_lshl_add_u32 v7, v110, {6 if g.opt.get('x_wc') else 10}, v7")
        g.i("v_and_b32 v6, 3, v6")
        g.i("v_lshl_add_u32 v7, v6, 4, v7")
        g.i(f"v_subrev_u32 v{VW+p}, {1024*p}, v7")
    g.i(f"s_mul_i32 s{S_C}, s{S_A}, {16*3072}")
    g.i(f"s_lshl_b32 s{S_T1}, s{S_HP}, {7 if g.opt.get('x_wc') else 6}")
    g.i(f"s_add_u32 s{S_C}, s{S_C}, s{S_T1}")
    g.i(f"s_mul_i32 s{S_E}, s{S_A}, 3072")
    g.i(f"s_add_u32 s{S_E}, s{S_E}, {SLOT_W}")
    early_srds(g)
    def issue():
        g.i(f"s_lshl_b32 s{S_T1}, s{S_CH}, 7")
        g.i(f"s_add_u32 s{S_T1}, s{S_T1}, s{S_B}")
        g.i(f"s_mov_b32 m0, s{S_D}")
        g.i(f"s_add_u32 s{S_T0}, s{S_T1}, 32768")
        for p in range(4):
            g.i(f"buffer_load_dwordx4 v{VX+p}, s[{S_X}:{S_X+3}], s{S_T1} offen offset:{1024*p}{g.opt.get('xfl','')} lds")
        g.i(f"s_add_u32 m0, s{S_D}, 4096")
        g.i(f"s_mul_i32 s{S_T1}, s{S_CH}, {64*3072}")
        for p in range(4):
            g.i(f"buffer_load_dwordx4 v{VX+p}, s[{S_X}:{S_X+3}], s{S_T0} offen offset:{1024*p}{g.opt.get('xfl','')} lds")
        g.i(f"s_mov_b32 m0, s{S_E}")
        g.i(f"s_add_u32 s{S_T1}, s{S_T1}, s{S_C}")
        for p in range(3):
            if g.opt.get('x_now'): g.i(f"buffer_load_dword v244, v{VW+p}, s[{S_DBG if False else S_W}:{S_W+3}], s{S_C} offen"); continue
            g.i(f"buffer_load_dwordx4 v{VW+p}, s[{S_W}:{S_W+3}], s{S_T1} offen offset:{1024*p}{g.opt.get('wfl','')} lds")
        g.i(f"s_add_u32 s{S_CH}, s{S_CH}, 1")
        g.i(f"s_and_b32 s{S_CH}, s{S_CH}, 7")
    def next_slot():
        g.i(f"s_add_u32 s{S_D}, s{S_D}, {SLOT}")
        g.i(f"s_add_u32 s{S_E}, s{S_E}, {SLOT}")
        g.i(f"s_cmp_lt_u32 s{S_D}, {3*SLOT}")
        g.i(f"s_cselect_b32 s{S_T0}, 0, {3*SLOT}")
        g.i(f"s_sub_u32 s{S_D}, s{S_D}, s{S_T0}")
        g.i(f"s_sub_u32 s{S_E}, s{S_E}, s{S_T0}")
    if PF:
        q = []; nt = [0]
        def T():
            if nt[0] < 8: touch(0); q.extend('TT' if g.opt.get('pfw', 1) else 'T'); nt[0] += 1
        def D(c): issue(); q.extend([c] * 11)
        def W(c): g.i(f"s_waitcnt vmcnt({len(q) - 1 - max(i for i, x in enumerate(q) if x == c)})")
        for c in range(PF): T()
        D(0); T()
        next_slot(); D(1); T()
        late_srds(g); attn_consts(g); consts(g)
        for c in range(6):
            W(c)
            g.i("s_barrier")
            next_slot(); D(c + 2); T()
        W(6)
        g.i("s_barrier")
        g.i("s_waitcnt vmcnt(0)")
        g.i("s_barrier")
        g.i("s_mov_b32 s3, 0")
    if not PF: loader_plain(g, issue, next_slot, touch, LEAD, NT)
    loader_fin(g)

def loader_plain(g, issue, next_slot, touch, LEAD, NT):
    issue()
    g.st('ld_c0')
    next_slot(); issue()
    for c in range(2, LEAD): touch(c - 2)
    g.st('ld_c2')
    late_srds(g); attn_consts(g); consts(g)
    g.st('ld_pre')
    PRE = g.opt.get('pre', '')
    n0 = NT * max(LEAD - 2, 0)
    def pre():
        g.i(f"s_lshl_b32 s{S_T0}, s{S_TB}, 14")
        g.i(f"s_and_b32 s{S_T1}, s{S_A}, 1")
        g.i(f"s_lshl_b32 s{S_T1}, s{S_T1}, 13")
        g.i(f"s_add_u32 s{S_T0}, s{S_T0}, s{S_T1}")
        g.i(f"s_lshr_b32 s{S_T1}, s{S_A}, 1")
        g.i(f"s_lshl_b32 s{S_T1}, s{S_T1}, 17")
        g.i(f"s_add_u32 s{S_T0}, s{S_T0}, s{S_T1}")
        if PRE == 'r':
            g.i("v_lshlrev_b32 v6, 7, v0")
            g.i(f"buffer_load_dword v245, v6, s[{S_KV}:{S_KV+3}], s{S_T0} offen sc1")
            return 1
        g.i(f"s_add_u32 s{S_T1}, s{S_T0}, 4096")
        for k in range(8):
            g.i(f"buffer_store_dwordx4 v[{V_O[0]}:{V_O[0]+3}], v{V_L16}, s[{S_KV}:{S_KV+3}], s{S_T1 if k >= 4 else S_T0} offen offset:{1024*(k%4)} sc1")
        return 8
    np_ = 0
    PC = g.opt.get('prec', 1)
    for c, n in ((0, 11 + n0), (1, n0 + 11 + NT)):
        g.i(f"s_waitcnt vmcnt({n + (np_ if c == 1 else 0)})")
        if c == 0: g.st('ld_got0')
        g.i("s_barrier")
        next_slot(); issue(); touch(LEAD - 3)
        if PRE and c == PC: np_ = pre()
    if PRE and PC == 1:
        g.i(f"s_waitcnt vmcnt({11+2*NT+np_})")
        g.i("s_barrier")
        next_slot(); issue(); touch(LEAD - 3)
        g.i(f"s_mov_b32 s{S_IT}, 3")
        g.i(f"s_waitcnt vmcnt({11+2*NT+np_})")
        g.i("s_branch L_ld_loop2")
    g.i(f"s_mov_b32 s{S_IT}, 2")
    g.lab("L_ld_loop")
    g.i(f"s_waitcnt vmcnt({11+2*NT})")
    g.lab("L_ld_loop2")
    g.i("s_barrier")
    next_slot(); issue(); touch(LEAD - 3)
    g.i(f"s_add_u32 s{S_IT}, s{S_IT}, 1")
    g.i(f"s_cmp_lt_u32 s{S_IT}, 6")
    g.i("s_cbranch_scc1 L_ld_loop")
    g.st('ld_iss7')
    g.i(f"s_waitcnt vmcnt({11+2*NT})")
    g.i("s_barrier")
    g.i("s_waitcnt vmcnt(0)")
    g.i("s_barrier")

def loader_fin(g):
    g.i(f"s_cmp_lg_u32 s{S_WAVE}, 4")
    g.i("s_cbranch_scc1 L_ld_nocert")
    g.i(f"s_lshl_b32 s{S_T0}, s{S_BR}, 4")
    g.i(f"s_add_u32 s{S_T0}, s{S_T0}, s{S_HP}")
    g.i(f"s_lshl_b32 s{S_T0}, s{S_T0}, 3")
    g.i(f"v_mov_b32 v7, s{S_T0}")
    spin(g, "cert1", f"buffer_load_dword v{V_F}, v7, s[{S_DBG}:{S_DBG+3}], 0 offen sc1", 8)
    g.lab("L_ld_nocert")
    g.i(f"s_lshl_b32 s{S_T0}, s{S_A}, 11")
    g.i(f"s_add_u32 s{S_T0}, s{S_T0}, {L_QX}")
    g.i(f"v_add_u32 v6, s{S_T0}, v{V_L16}")
    attn_setup(g)
    g.i("s_waitcnt lgkmcnt(0)")
    g.i("s_barrier")
    g.i(f"ds_read_b128 {vr(V_Q[0],4)}, v6")
    g.i(f"ds_read_b128 {vr(V_Q[1],4)}, v6 offset:1024")
    g.i("s_branch L_attn")

class LdsQ:
    def __init__(self, g): self.g = g; self.q = []
    def issue(self, tag): self.q.append(tag)
    def need(self, tags):
        idx = max([i for i, t in enumerate(self.q) if t in tags], default=-1)
        if idx >= 0:
            n = len(self.q) - 1 - idx
            self.g.i(f"s_waitcnt lgkmcnt({min(n,15)})")
            self.q = self.q[idx + 1:]

def compute(g):
    g.lab("L_compute")
    TL = g.opt.get('tlb', 0)
    if TL:
        g.i(f"v_lshlrev_b32 v6, {TL}, v0")
    g.i("s_waitcnt lgkmcnt(0)")
    if TL:
        srd(g.a, S_W, S_M + 2, 512 * 1536 * 2)
        g.i(f"buffer_load_dword v246, v6, s[{S_W}:{S_W+3}], 0 offen")
        if g.opt.get('tlbx'):
            srd(g.a, S_X, S_M, 256 * 1024, f"s{S_T0}")
            g.i(f"buffer_load_dword v246, v6, s[{S_X}:{S_X+3}], 0 offen")
    late_srds(g)
    g.i(f"s_cmp_lg_u32 s{S_WAVE}, 0")
    g.i("s_cbranch_scc1 L_cp_noclear")
    g.i(f"s_lshl_b32 s{S_T0}, s{S_BR}, 4")
    g.i(f"s_add_u32 s{S_T0}, s{S_T0}, s{S_HP}")
    g.i(f"s_lshl_b32 s{S_T1}, s{S_T0}, 7")
    g.i(f"s_lshl_b32 s{S_T2}, s{S_TB}, 4")
    g.i(f"s_add_u32 s{S_T1}, s{S_T1}, s{S_T2}")
    g.i(f"v_lshl_add_u32 v6, v0, 2, s{S_T1}")
    g.i("v_mov_b32 v100, 0")
    g.i("s_mov_b64 exec, 0xf")
    g.i(f"buffer_store_dword v100, v6, s[{S_FL}:{S_FL+3}], 0 offen sc1")
    g.i("s_mov_b64 exec, -1")
    g.lab("L_cp_noclear")
    attn_consts(g)
    g.i("v_and_b32 v6, 31, v0")
    g.i(f"s_lshl_b32 s{S_T0}, s{S_WAVE}, 13")
    g.i(f"v_lshl_add_u32 v100, v6, 7, s{S_T0}")
    g.i("v_bfe_u32 v6, v0, 1, 3")
    g.i("v_lshrrev_b32 v7, 5, v0")
    g.i("v_xor_b32 v6, v6, v7")
    for s in range(4):
        g.i(f"v_xor_b32 v7, {2*s}, v6")
        g.i(f"v_lshl_add_u32 v{V_XA+s}, v7, 4, v100")
    g.i("v_lshrrev_b32 v6, 5, v0")
    g.i("v_bfe_u32 v7, v0, 2, 2")
    g.i("v_lshl_add_u32 v6, v6, 3, v7")
    g.i("v_mul_u32_u24 v6, 192, v6")
    g.i("v_bfe_u32 v7, v0, 4, 1")
    g.i("v_lshl_add_u32 v6, v7, 5, v6")
    g.i("v_and_b32 v7, 3, v0")
    g.i("v_lshl_add_u32 v6, v7, 3, v6")
    g.i(f"v_add_u32 v{V_WA}, {SLOT_W}, v6")
    for r in range(0, 96, 2):
        g.i(f"v_mov_b64 v[{V_ACC+r}:{V_ACC+r+1}], 0")
    S_A, S_B = 56, 57
    g.i("v_and_b32 v6, 0x33, v0")
    g.i("v_bfe_u32 v7, v0, 2, 1")
    g.i("v_lshl_or_b32 v6, v7, 3, v6")
    g.i("v_bfe_u32 v7, v0, 3, 1")
    g.i("v_lshl_or_b32 v6, v7, 2, v6")
    g.i(f"v_lshlrev_b32 v{KG}, 4, v6")
    g.i(f"s_lshl_b32 s{S_T0}, s{S_WAVE}, 12")
    g.i(f"v_add_u32 v{KL}, s{S_T0}, v{KG}")
    g.i("v_and_b32 v6, 15, v0")
    g.i("v_lshlrev_b32 v6, 4, v6")
    g.i("v_lshrrev_b32 v7, 5, v0")
    g.i("v_lshl_add_u32 v6, v7, 8, v6")
    g.i("v_add_u32 v6, 1024, v6")
    g.i("v_bfe_u32 v7, v0, 4, 1")
    g.i(f"v_lshl_add_u32 v{VG}, v7, 17, v6")
    g.i("v_lshl_add_u32 v6, v7, 14, v6")
    g.i(f"v_add_u32 v{VL}, s{S_T0}, v6")
    g.i(f"s_lshr_b32 s{S_T0}, s{S_T0}, 1")
    g.i(f"s_add_u32 s{S_T0}, s{S_T0}, {L_QX}")
    g.i(f"v_add_u32 v{QL}, s{S_T0}, v{V_L16}")
    if g.opt.get('dry', 1):
        g.i(f"s_cmp_lt_u32 s{S_WAVE}, 2")
        g.i("s_cbranch_scc1 L_dry_done")
        g.i(f"s_mov_b32 s{S_DRY}, 1")
        g.i(f"s_mov_b32 s{S_IT}, 7")
        g.i("s_mov_b64 vcc, 0")
        g.i(f"s_mov_b64 s[{S_M}:{S_M+1}], 0")
        g.i(f"s_mov_b64 s[{S_M+2}:{S_M+3}], 0")
        g.i(f"s_mov_b32 s{S_MK}, 0")
        g.i("s_waitcnt vmcnt(0) lgkmcnt(0)")
        g.i("s_setvskip -1, 0")
        g.i(f"s_cmp_eq_u32 s{S_WAVE}, 2")
        g.i("s_cbranch_scc1 L_at_done")
        g.i("s_branch L_cp_loop")
        g.lab("L_dry_ret")
        g.i("s_setvskip 0, 0")
        g.i("s_mov_b64 exec, -1")
        g.i("s_setprio 0")
        g.i(f"s_mov_b32 s{S_DRY}, 0")
        g.lab("L_dry_done")
    attn_setup(g)
    g.i(f"s_lshl_b32 s{S_T0}, s{S_WAVE}, 12")
    g.i(f"s_lshl_b32 s{S_G1}, s{S_TB}, 14")
    g.i(f"s_add_u32 s{S_G1}, s{S_G1}, s{S_T0}")
    g.i(f"s_add_u32 s{S_G2}, s{S_G1}, 131072")
    g.i(f"s_mov_b32 s{S_IT}, 0")
    g.i(f"s_mov_b32 s{S_A}, 0")
    g.i(f"s_mov_b32 s{S_B}, {SLOT}")
    q = LdsQ(g)
    def rd(setn, s, which):
        F = V_FR[setn]
        if which[0] == 'x':
            i = int(which[1])
            g.i(f"ds_read_b128 {vr(F+4*i,4)}, v{V_XA+s} offset:{4096*i}")
        else:
            p = {'q': 0, 'k': 1, 'v': 2}[which[0]]; i = int(which[1])
            g.i(f"ds_read_b64_tr_b16 {vr(F+8+4*p+2*i,2)}, v{V_WA} offset:{s*3072+i*768+p*64}")
        q.issue((setn, which))
    ORDER = ['x0', 'q0', 'q1', 'x1', 'k0', 'k1', 'v0', 'v1']
    def mf(setn, n):
        F = V_FR[setn]; p, i = n // 2, n % 2
        w, x = vr(F + 8 + 4 * p, 4), vr(F + 4 * i, 4)
        nm = 'qkv'[p]
        q.need({(setn, f'x{i}'), (setn, nm + '0'), (setn, nm + '1')})
        A, B = (w, x) if p < 2 else (x, w)
        acc = vr(V_ACC + 16 * n, 16)
        if g.opt.get('x_m16'):
            for hh in range(2):
                a4 = vr(V_ACC + 16 * n + 4 * hh, 4)
                g.i(f"v_mfma_f32_16x16x32_bf16 {a4}, {A}, {B}, {a4}")
        else:
            g.i(f"v_mfma_f32_32x32x16_bf16 {acc}, {A}, {B}, {acc}")
    def step(cur, nxt_s):
        plan = [ORDER[0:2], ORDER[2:4], ORDER[4:6], ORDER[6:8], [], []]
        for n in range(6):
            if cur is not None: mf(cur, n)
            if nxt_s is not None:
                for w in plan[n]: rd(1 - (cur if cur is not None else 1), nxt_s, w)
    g.i(f"s_cmp_lg_u32 s{S_WAVE}, 0")
    g.i("s_cbranch_scc1 L_cp_nocount")
    g.i(f"s_lshl_b32 s{S_T0}, s{S_BR}, 4")
    g.i(f"s_add_u32 s{S_T0}, s{S_T0}, s{S_HP}")
    g.i(f"s_lshl_b32 s{S_T0}, s{S_T0}, 3")
    g.i("s_mov_b64 exec, 1")
    g.i(f"v_mov_b32 v6, s{S_T0}")
    g.i("v_mov_b32 v7, 1")
    g.i(f"s_waitcnt vmcnt(0)")
    g.i(f"buffer_atomic_add v7, v6, s[{S_DBG}:{S_DBG+3}], 0 offen sc1")
    g.i("s_mov_b64 exec, -1")
    g.lab("L_cp_nocount")
    def prew():
        g.i(f"s_lshl_b32 s{S_T0}, s{S_TB}, 14")
        g.i(f"s_lshl_b32 s{S_T1}, s{S_WAVE}, 12")
        g.i(f"s_add_u32 s{S_T0}, s{S_T0}, s{S_T1}")
        g.i(f"s_add_u32 s{S_T1}, s{S_T0}, 131072")
        for k in range(8):
            g.i(f"buffer_store_dwordx4 v[{V_O[0]}:{V_O[0]+3}], v{V_L16}, s[{S_KV}:{S_KV+3}], s{S_T1 if k >= 4 else S_T0} offen offset:{1024*(k%4)} sc1")
    def prer():
        g.i("v_and_b32 v6, 31, v0")
        g.i("v_lshlrev_b32 v6, 7, v6")
        g.i("v_lshrrev_b32 v7, 5, v0")
        g.i("v_lshl_add_u32 v6, v7, 17, v6")
        g.i(f"buffer_load_dword v246, v6, s[{S_KV}:{S_KV+3}], s{S_G1} offen{g.opt.get('prefl', ' sc1')}")
    PR = g.opt.get('prer', 0)
    if PR == -1: prer()
    if g.opt.get('prew') == 1: prew()
    g.st('cp_pre')
    g.i("s_barrier")
    g.stamp(1)
    if g.opt.get('prew') == 2: prew()
    step(None, 0)
    g.lab("L_cp_loop")
    q.q = [(0, w) for w in ORDER]
    step(0, 1); step(1, 2); step(0, 3)
    g.i(f"s_add_u32 s{S_A}, s{S_A}, 1")
    g.i(f"s_cmp_eq_u32 s{S_A}, 3")
    g.i(f"s_cselect_b32 s{S_T0}, {(-2*SLOT) & 0xffffffff}, s{S_B}")
    g.i(f"s_cselect_b32 s{S_A}, 0, s{S_A}")
    g.i(f"s_add_u32 s{S_IT}, s{S_IT}, 1")
    g.i(f"s_cmp_eq_u32 s{S_IT}, 8")
    g.i("s_cbranch_scc1 L_cp_last")
    g.i("s_waitcnt lgkmcnt(0)")
    q.q = []
    g.i("s_barrier")
    for r in range(5):
        g.i(f"v_add_u32 v{V_XA+r}, s{S_T0}, v{V_XA+r}")
    PW = g.opt.get('pwd')
    if PW:
        c0, kind = PW
        if kind == 'd':
            g.i(f"s_cmp_lg_u32 s{S_IT}, {c0}")
            g.i("s_cbranch_scc1 L_cp_nopw")
            g.i("v_and_b32 v6, 31, v0")
            g.i("v_lshlrev_b32 v6, 7, v6")
            g.i("v_lshrrev_b32 v7, 5, v0")
            g.i("v_lshl_add_u32 v6, v7, 17, v6")
            g.i(f"buffer_store_dword v{V_O[0]}, v6, s[{S_KV}:{S_KV+3}], s{S_G1} offen sc1")
        elif kind == 'f':
            g.i(f"s_cmp_lg_u32 s{S_IT}, {c0}")
            g.i("s_cbranch_scc1 L_cp_nopw")
            for k in range(8):
                g.i(f"buffer_store_dwordx4 v[{V_O[0]}:{V_O[0]+3}], v{V_L16}, s[{S_KV}:{S_KV+3}], s{S_G2 if k >= 4 else S_G1} offen offset:{1024*(k%4)} sc1")
        elif kind == 's':
            g.i(f"s_sub_u32 s{S_T1}, s{S_IT}, {c0}")
            g.i(f"s_cmp_ge_u32 s{S_T1}, 4")
            g.i("s_cbranch_scc1 L_cp_nopw")
            g.i(f"s_lshl_b32 s{S_T1}, s{S_T1}, 10")
            g.i(f"s_add_u32 s{S_T2}, s{S_T1}, s{S_G2}")
            g.i(f"s_add_u32 s{S_T1}, s{S_T1}, s{S_G1}")
            for so in (S_T1, S_T2):
                g.i(f"buffer_store_dwordx4 v[{V_O[0]}:{V_O[0]+3}], v{V_L16}, s[{S_KV}:{S_KV+3}], s{so} offen sc1")
        g.lab("L_cp_nopw")
    if PR > 0:
        g.i(f"s_cmp_lg_u32 s{S_IT}, {PR}")
        g.i("s_cbranch_scc1 L_cp_nopre")
        prer()
        g.lab("L_cp_nopre")
    step(1, 0)
    g.i("s_branch L_cp_loop")
    g.lab("L_cp_last")
    q.q = [(1, w) for w in ORDER]
    step(1, None)
    g.stamp(2)
    g.i(f"s_mov_b32 s{S_T1}, {hex(QSCALE)}")
    g.i(f"s_mov_b32 s{S_T2}, s{S_T1}")
    g.i("s_nop 5")
    KVS = g.opt.get('kvs', ' sc1')
    T = 204
    n = 0
    for i in range(2):
        A = V_ACC + 16 * (2 + i)
        for hd in range(2):
            for r in range(4):
                g.i(f"v_cvt_pk_bf16_f32 v{T+4*n+r}, v{A+8*hd+2*r}, v{A+8*hd+2*r+1}")
            g.i(f"ds_write_b128 v{KL}, {vr(T+4*n,4)} offset:{16384*hd+2048*i}")
            n += 1
    for i in range(2):
        A = V_ACC + 16 * (4 + i)
        for gr in range(2):
            for r in range(4):
                g.i(f"v_cvt_pk_bf16_f32 v{T+4*n+r}, v{A+8*gr+2*r}, v{A+8*gr+2*r+1}")
            g.i(f"ds_write_b128 v{VL}, {vr(T+4*n,4)} offset:{2048*i+512*gr}")
            n += 1
    g.i(f"s_cmp_lg_u32 s{S_PG}, 0")
    g.i("s_cbranch_scc1 L_cp_later")
    for n in range(8): g.i(kv_store(n))
    g.lab("L_cp_later")
    for i in range(2):
        A = V_ACC + 16 * i
        for r in range(8, 16, 2):
            g.i(f"v_pk_mul_f32 v[{A+r}:{A+r+1}], v[{A+r}:{A+r+1}], s[{S_T0+1}:{S_T0+2}]")
        for r in range(4):
            g.i(f"v_cvt_pk_bf16_f32 v{A+8+r}, v{A+8+2*r}, v{A+8+2*r+1}")
        g.i(f"ds_write_b128 v{QL}, {vr(A+8,4)} offset:{1024*i}")
    for i in range(2):
        A = V_ACC + 16 * i
        for r in range(0, 8, 2):
            g.i(f"v_pk_mul_f32 v[{A+r}:{A+r+1}], v[{A+r}:{A+r+1}], s[{S_T0+1}:{S_T0+2}]")
        for r in range(4):
            g.i(f"v_cvt_pk_bf16_f32 v{V_Q[i]+r}, v{A+2*r}, v{A+2*r+1}")
    g.i("s_waitcnt lgkmcnt(0)")
    barrier_unless_dry(g, "b8")

U = 8
S_OA, S_OB = S_M + 6, S_M + 7
S_MK = S_M + 5
S_KV2 = S_X
S_KO = [None, 4, 5, 6, 7, 12, 13, 14]
S_LM = [[49, 50], [51, 52]]
S_OW = 1
V_VB = 4

def kv_store(n):
    if n < 4: adr, so, off = KG, (S_G2 if n % 2 else S_G1), 2048 * (n // 2)
    else: adr, so, off = VG, S_G1, 2048 * ((n - 4) // 2) + 512 * (n % 2)
    return f"buffer_store_dwordx4 {vr(KVT+4*n,4)}, v{adr}, s[{S_KV}:{S_KV+3}], s{so} offen offset:{off} sc1"

def spin_mask(g, tag, load):
    g.i(f"s_mov_b32 s{S_T3}, 0")
    g.lab(f"L_spin_{tag}")
    g.i(load)
    g.i(f"s_add_u32 s{S_T3}, s{S_T3}, 1")
    g.i("s_waitcnt vmcnt(0)")
    g.i(f"v_cmp_ne_u32 vcc, 1, v{V_F}")
    g.i(f"s_cmp_ge_u32 s{S_T3}, {SPIN_MAX}")
    g.i(f"s_cbranch_scc1 L_olr_{tag}")
    g.i(f"s_and_b32 vcc_lo, vcc_lo, s{S_MK}")
    g.i(f"s_cbranch_scc1 L_spin_{tag}")

def attn_setup(g):
    g.i(f"s_add_u32 s{S_KV2}, s{S_KV}, 131072")
    g.i(f"s_addc_u32 s{S_KV2+1}, s{S_KV+1}, 0")
    g.i(f"s_mov_b32 s{S_KV2+2}, 131072")
    g.i(f"s_mov_b32 s{S_KV2+3}, 0x20000")
    g.i(f"s_lshl_b32 s{S_LM[0][0]}, s{S_WAVE}, 11")
    g.i(f"s_add_u32 s{S_LM[0][1]}, s{S_LM[0][0]}, 16384")
    g.i(f"s_add_u32 s{S_LM[1][0]}, s{S_LM[0][0]}, {RING}")
    g.i(f"s_add_u32 s{S_LM[1][1]}, s{S_LM[0][0]}, {RING+16384}")
    for i in range(1, 8):
        g.i(f"s_cmp_gt_u32 s{S_TB}, {i-1}")
        g.i(f"s_cselect_b32 s{S_T0}, {i-1}, {i}")
        if i == 1:
            g.i(f"s_lshl_b32 s{S_T3}, s{S_T0}, 2")
            g.i(f"s_lshl_b32 s{S_MK}, 15, s{S_T3}")
        g.i(f"s_lshl_b32 s{S_T0}, s{S_T0}, 14")
        g.i(f"s_add_u32 s{S_KO[i]}, s{S_T0}, s{S_LM[0][0]}")
    g.i(f"s_lshr_b32 s{S_PG}, s{S_TB}, 1")
    g.i(f"s_min_u32 s{S_PG}, s{S_PG}, 2")
    g.i(f"s_cmp_ge_u32 s{S_WAVE}, 4")
    g.i(f"s_cselect_b32 s{S_PG}, 3, s{S_PG}")
    g.i(f"s_and_b32 s{S_F}, s{S_HP}, 7")
    g.i(f"s_lshl_b32 s{S_T0}, s{S_F}, 7")
    g.i(f"s_lshl_b32 s55, s{S_WAVE}, 16")
    g.i(f"s_add_u32 s55, s55, s{S_T0}")
    g.i(f"s_lshl_b32 s{S_E}, s{S_WAVE}, 13")
    g.i(f"s_add_u32 s{S_E}, s{S_E}, {L_WO}")
    g.i(f"s_and_b32 s{S_T0}, s{S_WAVE}, 3")
    g.i(f"s_lshl_b32 s{S_T0}, s{S_T0}, 1")
    g.i(f"s_lshl_b32 s{S_T1}, s{S_TB}, 3")
    g.i(f"s_add_u32 s{S_T0}, s{S_T0}, s{S_T1}")
    g.i(f"s_lshl_b32 s{S_OA}, s{S_T0}, 15")
    g.i(f"s_lshr_b32 s{S_T1}, s{S_WAVE}, 2")
    g.i(f"s_lshl_b32 s{S_T2}, s{S_HP}, 1")
    g.i(f"s_add_u32 s{S_T1}, s{S_T1}, s{S_T2}")
    g.i(f"s_lshl_b32 s{S_T2}, s{S_T1}, 10")
    g.i(f"s_add_u32 s{S_OA}, s{S_OA}, s{S_T2}")
    g.i(f"s_add_u32 s{S_OB}, s{S_OA}, 32768")
    if True:
        g.i(f"s_lshr_b32 s{S_T0}, s{S_HP}, 3")
        g.i(f"s_lshl_b32 s{S_T0}, s{S_T0}, 2")
        g.i(f"s_and_b32 s{S_T1}, s{S_WAVE}, 3")
        g.i(f"s_add_u32 s{S_T0}, s{S_T0}, s{S_T1}")
        g.i(f"s_lshl_b32 s{S_T1}, s{S_TB}, 3")
        g.i(f"s_add_u32 s{S_T0}, s{S_T0}, s{S_T1}")
        g.i(f"s_lshl_b32 s{S_T0}, s{S_T0}, 1")
        g.i(f"s_lshr_b32 s{S_T1}, s{S_WAVE}, 2")
        g.i(f"s_add_u32 s{S_T0}, s{S_T0}, s{S_T1}")
        g.i(f"s_lshl_b32 s{S_OW}, s{S_T0}, 15")
        g.i(f"s_lshl_b32 s{S_T0}, s{S_BR}, 10")
        g.i(f"s_add_u32 s{S_OW}, s{S_OW}, s{S_T0}")
        g.i(f"s_lshl_b32 s{S_T0}, s{S_F}, 7")
        g.i(f"s_add_u32 s{S_OW}, s{S_OW}, s{S_T0}")

def attention(g):
    opt = g.opt
    g.lab("L_attn")
    g.stamp(3)
    g.i(f"ds_read_b128 {vr(V_K,4)}, v{V_KA}")
    g.i(f"ds_read_b128 {vr(V_V[0],4)}, v{V_VA}")
    g.i(f"ds_read_b128 {vr(V_V[0]+4,4)}, v{V_VA} offset:512")
    if opt.get('x_em'):
        g.i("s_mov_b32 s100, 0xffff"); g.i("s_mov_b32 s101, 0xffff")
    g.i("s_setprio 3")
    g.i("s_waitcnt lgkmcnt(2)")
    g.i(f"v_mfma_f32_32x32x16_bf16 {vr(V_S[0],16)}, {vr(V_K,4)}, {vr(V_Q[0],4)}, 0")
    dry_exit(g)
    g.i("s_nop 9")
    g.i("s_waitcnt lgkmcnt(0)")
    poll = f"buffer_load_dword v{V_F}, v{V_FA}, s[{S_FL}:{S_FL+3}], 0 offen sc1"
    side = []
    ev = {}
    def at(it, p, slot, *ins): ev.setdefault((it, p, slot), []).extend(ins)
    def kv(i, n):
        return f"buffer_load_dwordx4 v{V_L16}, {sr(S_KV2 if n >= 2 else S_KV, 4)}, s{S_KO[i]} offen offset:{1024*(n%2)}{opt.get('kvl', ' sc1')} lds"
    def check(tag, n):
        def f():
            if n is not None: g.i(f"s_waitcnt vmcnt({n})")
            g.i(f"v_cmp_ne_u32 vcc, 1, v{V_F}")
            g.i("s_nop 0")
            g.i(f"s_and_b32 vcc_lo, vcc_lo, s{S_MK}")
            g.i(f"s_cbranch_scc1 L_ol_{tag}")
            g.lab(f"L_olr_{tag}")
            side.append((tag, lambda: spin_mask(g, tag, poll)))
        return f
    def group(pg, tag, body):
        def f():
            g.i(f"s_cmp_lg_u32 s{S_PG}, {pg}")
            g.i(f"s_cbranch_scc1 L_pg_{tag}")
            body()
            g.lab(f"L_pg_{tag}")
        return f
    def flag():
        g.i(f"s_lshl_b32 s{S_T0}, s{S_TB}, 2")
        g.i(f"s_add_u32 s{S_T0}, s{S_T0}, s{S_WAVE}")
        g.i(f"s_lshl_b64 exec, 1, s{S_T0}")
        g.i("v_mov_b32 v6, 1")
        g.i(f"buffer_store_dword v6, v{V_FA}, s[{S_FL}:{S_FL+3}], 0 offen sc1")
        g.i("s_mov_b64 exec, -1")
    def stores(it, p0, pg):
        for k, (a_, b_) in enumerate(((0, 3), (3, 6), (6, 8))):
            at(it, p0 + k, 'p1', group(pg, f"s{pg}{k}", lambda a_=a_, b_=b_: [g.i(kv_store(n)) for n in range(a_, b_)]))
    def burst(i, it=None, p=None, slot=None):
        sl = i % 2
        if not opt.get('spread', 0):
            return [f"s_mov_b32 m0, s{S_LM[sl][0]}", "s_nop 0", kv(i, 0), kv(i, 1), f"s_mov_b32 m0, s{S_LM[sl][1]}", "s_nop 0", kv(i, 2), kv(i, 3)]
        seq = [(q, k) for q in range(p, 14) for k in ('p2', 'qk', 'p1')]
        seq = seq[seq.index((p, slot)) + 1:]
        at(it, *seq[0], kv(i, 1), f"s_mov_b32 m0, s{S_LM[sl][1]}")
        at(it, *seq[1], kv(i, 2))
        at(it, *seq[2], kv(i, 3))
        return [f"s_mov_b32 m0, s{S_LM[sl][0]}", "s_nop 0", kv(i, 0)]
    def count():
        g.i(f"s_cmp_lg_u32 s{S_WAVE}, 7")
        g.i("s_cbranch_scc1 L_at_nocnt")
        g.i(f"s_lshl_b32 s{S_T0}, s{S_BR}, 4")
        g.i(f"s_add_u32 s{S_T0}, s{S_T0}, s{S_HP}")
        g.i(f"s_lshl_b32 s{S_T0}, s{S_T0}, 3")
        g.i("s_mov_b64 exec, 1")
        g.i(f"v_mov_b32 v6, s{S_T0}")
        g.i("v_mov_b32 v7, 1")
        g.i(f"buffer_atomic_add v7, v6, s[{S_DBG}:{S_DBG+3}], 0 offen offset:4 sc1")
        g.i("s_mov_b64 exec, -1")
        g.lab("L_at_nocnt")
    pp, pi0, pc0, ps1, pi1, pc1, pi3, pc3 = opt.get('ev', (1, 8, 10, 3, 7, 9, 7, 9))
    at(0, pp, 'qk', group(0, "f0", lambda: (g.st('pub_pre'), g.i("s_waitcnt vmcnt(0)"), g.st('pub_ack'), flag())))
    stores(0, ps1, 1)
    at(0, pi0, 'qk', poll)
    at(0, pc0, 'qk', "s_waitcnt vmcnt(0)", group(1, "f1", flag), check("kv0", None), lambda: g.st('chk_ok'), *burst(1, 0, pc0, 'qk'),
       f"s_mov_b32 s{S_MK}, 0xffff")
    at(1, pi1, 'qk', poll)
    at(1, pc1, 'qk', check("kv1", 0), *burst(2, 1, pc1, 'qk'), f"s_mov_b32 s{S_MK}, -1")
    stores(1, pc1 + 1 + opt.get('spread', 0), 2)
    at(2, 15, 'qk', group(2, "f2", flag))
    at(3, pi3, 'qk', poll)
    at(3, pc3, 'p2', check("kv2", 0), *burst(4, 3, pc3, 'p2'))
    late = {i: 0 for i in range(8)}
    dp = opt.get('dma', (1, 3, 5, 7))
    for i in (2, 4, 5, 6):
        sl = (i + 1) % 2
        at(i, dp[0] - 1, 'p2x', f"s_mov_b32 m0, s{S_LM[sl][0]}")
        at(i, dp[0], 'qk', kv(i + 1, 0))
        at(i, dp[1], 'qk', kv(i + 1, 1))
        at(i, dp[2], 'p2', f"s_mov_b32 m0, s{S_LM[sl][1]}")
        at(i, dp[2], 'qk', kv(i + 1, 2))
        at(i, dp[3], 'qk', kv(i + 1, 3))
    wp = opt.get('wop', (11, 13))
    for i in range(1, 5):
        for k, p in enumerate(wp):
            at(i, p, 'p2', f"s_add_u32 m0, s{S_E}, {(2*(i-1)+k)*1024}")
            at(i, p, 'qk', f"buffer_load_dwordx4 v{V_WOA}, s[{S_WO}:{S_WO+3}], s55 offen lds")
            at(i, p, 'p1', "s_add_u32 s55, s55, 8192")
        late[i] += 2
    for k, so in enumerate((S_OA, S_OB)):
        at(5, 9 + 2 * k, 'qk', f"buffer_store_dwordx4 v[252:255], v{V_L16}, s[{S_O}:{S_O+3}], s{so} offen sc1")
    late[5] += 2
    if opt.get('opw', 2):
        i = opt.get('opw', 2)
        at(i, 12, 'p1', f"buffer_store_dwordx4 v[252:255], v{V_OW}, s[{S_OUT}:{S_OUT+3}], s{S_OW} offen sc1", f"s_add_u32 s{S_T0}, s{S_OW}, 16384")
        at(i, 13, 'p1', f"buffer_store_dwordx4 v[252:255], v{V_OW}, s[{S_OUT}:{S_OUT+3}], s{S_T0} offen sc1")
        late[i] += 2
    if opt.get('opr'):
        at(7, 3, 'qk', f"buffer_load_dwordx4 v[236:239], v{V_OW}, s[{S_OUT}:{S_OUT+3}], s{S_OW} offen", f"s_add_u32 s{S_T0}, s{S_OW}, 16384")
        at(7, 5, 'qk', f"buffer_load_dwordx4 v[236:239], v{V_OW}, s[{S_OUT}:{S_OUT+3}], s{S_T0} offen")
    at(7, 1, 'qk', count)
    if opt.get('x_late0'): late = {i: 0 for i in range(8)}
    prio = opt.get('prio', {0: 3, 5: 2, 10: 1, 13: 0})
    for i in range(8):
        for p, v in prio.items():
            ii, q = (i, p - 1) if p else (i - 1, 15)
            if ii >= 0: at(ii, q, 'p1', f"s_setprio {v}")
    def emit(it, p, slot):
        for x in ev.pop((it, p, slot), []):
            x() if callable(x) else g.i(x)
    p2, pq, p1 = opt.get('pos', (1, 5, 10))
    for it in range(8):
        if opt.get('itst'):
            g.i("s_memtime s[98:99]")
            g.i("s_memrealtime s[100:101]")
            g.i("s_waitcnt lgkmcnt(0)")
            g.i(f"v_writelane_b32 v250, s98, {it}")
            g.i(f"v_writelane_b32 v250, s100, {it+9}") if it < 7 else None
        for p in range(2 * U):
            b, t = p % 2, p // 2
            S, So = V_S[b], V_S[1 - b]
            nt = (t + 1) % U
            sl = (it + (t == U - 1)) % 2
            VA = V_VB if sl else V_VA
            last = it == 7 and t == U - 1
            skip = last or (opt.get('x_half') and t % 2 == 0)
            for e in range(16):
                g.i(f"v_exp_f32 v{S+e}, v{S+e}")
                if e == p2:
                    tp = (p - 1) // 2
                    if it or p:
                        g.i(f"v_smfmac_f32_32x32x32_bf16 {vr(V_O[1-b],16)}, {vr(V_V[tp%2]+4,4)}, {vr(So+8,8)}, v{V_IDX}")
                    emit(it, p, 'p2x')
                    if b == 0:
                        if t == U - 1 and it < 7:
                            if it == 1:
                                g.i(f"s_waitcnt vmcnt({late[it] + 8})")
                                g.i(f"s_cmp_eq_u32 s{S_PG}, 2")
                                g.i("s_cbranch_scc1 L_w8")
                                g.i(f"s_waitcnt vmcnt({late[it]})")
                                g.lab("L_w8")
                            else: g.i(f"s_waitcnt vmcnt({late[it]})")
                            if it == 0: g.st('chk1_ok')
                            g.i("s_barrier")
                        if not skip:
                            xm = opt.get('x_em') and (it or t)
                            if xm: g.i("s_mov_b64 exec, s[100:101]")
                            g.i(f"ds_read_b128 {vr(V_V[(t+1)%2],4)}, v{VA} offset:{nt*2048}")
                            if xm: g.i("s_mov_b64 exec, -1")
                    elif not last:
                        g.i("s_waitcnt lgkmcnt(1)")
                    emit(it, p, 'p2')
                if e == pq:
                    if not (last and b):
                        g.i(f"v_mfma_f32_32x32x16_bf16 {vr(So,16)}, {vr(V_K,4)}, {vr(V_Q[1-b],4)}, 0")
                    if b == 0 and not skip:
                        g.i(f"ds_read_b128 {vr(V_K,4)}, v{V_KA} offset:{sl*RING+nt*2048}")
                    emit(it, p, 'qk')
                if e == p1:
                    g.i(f"v_smfmac_f32_32x32x32_bf16 {vr(V_O[b],16)}, {vr(V_V[t%2],4)}, {vr(S,8)}, v{V_IDX}")
                    if b == 0 and last: pass
                    elif b == 0 and skip: pass
                    elif b == 0:
                        xm = opt.get('x_em') and (it or t)
                        if xm: g.i("s_mov_b64 exec, s[100:101]")
                        g.i(f"ds_read_b128 {vr(V_V[(t+1)%2]+4,4)}, v{VA} offset:{nt*2048+512}")
                        if xm: g.i("s_mov_b64 exec, -1")
                    elif not last:
                        g.i("s_waitcnt lgkmcnt(0)")
                    emit(it, p, 'p1')
    assert not ev, ev
    g.side = side
    g.lab("L_at_done")
    g.i("s_nop 1")
    g.i(f"v_smfmac_f32_32x32x32_bf16 {vr(V_O[1],16)}, {vr(V_V[1]+4,4)}, {vr(V_S[1]+8,8)}, v{V_IDX}")
    g.tail_pad = True
    g.stamp(4)
    if opt.get('itst'):
        g.i("s_memtime s[98:99]")
        g.i("s_waitcnt lgkmcnt(0)")
        g.i(f"v_writelane_b32 v250, s98, 8")
    g.i(f"s_mov_b32 s{S_T0}, 0x2b800000")
    g.i(f"s_mov_b32 s{S_T1}, 0x53800000")
    g.i(f"s_mov_b32 s{S_T2}, 0x7f800000")
    for q in range(2):
        O = V_O[q]
        g.i(f"v_maximum3_f32 v6, abs(v{O}), abs(v{O+1}), abs(v{O+2})")
        g.i(f"v_maximum3_f32 v7, abs(v{O+3}), abs(v{O+4}), abs(v{O+5})")
        g.i(f"v_maximum3_f32 v6, v6, abs(v{O+6}), abs(v{O+7})")
        g.i(f"v_maximum3_f32 v6, v6, v7, v7")
        g.i(f"v_cmp_nle_f32 s[{S_M}:{S_M+1}], s{S_T0}, v{O+8}")
        g.i(f"v_cmp_nge_f32 s[{S_M+2}:{S_M+3}], s{S_T1}, v{O+8}")
        g.i(f"v_cmp_ngt_f32 vcc, s{S_T2}, v6")
        g.i(f"v_rcp_f32 v{V_S[0]+2*q}, v{O+8}")
        g.i(f"s_or_b64 s[{S_M}:{S_M+1}], s[{S_M}:{S_M+1}], s[{S_M+2}:{S_M+3}]")
        g.i(f"s_or_b64 s[{S_M}:{S_M+1}], s[{S_M}:{S_M+1}], vcc")
        g.i("s_branch L_fallback" if opt.get('force_fallback') else "s_cbranch_scc1 L_fallback")
    g.lab("L_at_store")
    for q in range(2):
        O = V_O[q]
        for r in range(0, 8, 2):
            g.i(f"v_pk_mul_f32 v[{O+r}:{O+r+1}], v[{O+r}:{O+r+1}], v[{V_S[0]+2*q}:{V_S[0]+2*q+1}] op_sel_hi:[1,0]")
        for r in range(4):
            g.i(f"v_cvt_pk_bf16_f32 v{O+r}, v{O+2*r}, v{O+2*r+1}")
        g.i(f"buffer_store_dwordx4 {vr(O,4)}, v{V_L16}, s[{S_O}:{S_O+3}], s{S_OB if q else S_OA} offen sc1")

P_WO = 100
P_OF = 8
def outproj(g):
    opt = g.opt
    A0, A1 = 228, 72
    WA0, WA1, RA, OA = 244, 245, 246, 247
    g.i(f"s_lshr_b32 s{S_E}, s{S_WAVE}, 2")
    g.i(f"s_lshl_b32 s{S_T0}, s{S_E}, 15")
    g.i(f"s_add_u32 s{S_T0}, s{S_T0}, {L_WO}")
    g.i("v_lshrrev_b32 v6, 5, v0")
    g.i("v_bfe_u32 v7, v0, 2, 2")
    g.i("v_lshl_add_u32 v6, v6, 2, v7")
    g.i(f"v_lshl_add_u32 v6, v6, 7, s{S_T0}")
    g.i("v_bfe_u32 v7, v0, 3, 2")
    g.i("v_and_b32 v2, 1, v7")
    g.i("v_lshl_add_u32 v6, v2, 6, v6")
    g.i("v_lshrrev_b32 v7, 1, v7")
    g.i("v_lshl_add_u32 v6, v7, 5, v6")
    g.i("v_and_b32 v7, 3, v0")
    g.i(f"v_lshl_add_u32 v6, v7, 3, v6")
    g.i(f"s_lshl_b32 s{S_T0}, s{S_E}, 6")
    g.i(f"v_xor_b32 v{WA0}, s{S_T0}, v6")
    g.i(f"v_xor_b32 v{WA1}, 64, v{WA0}")
    n = 0
    def wo_reads(s0, s1):
        for s in range(s0, s1):
            for f in range(2):
                for i in range(2):
                    g.i(f"ds_read_b64_tr_b16 {vr(P_WO+8*s+4*f+2*i,2)}, v{WA1 if f else WA0} offset:{s*2048+i*1024}")
    g.stamp(5)
    g.i(f"s_lshl_b32 s{S_T0}, s{S_BR}, 7")
    g.i("v_and_b32 v6, 15, v0")
    g.i(f"v_lshl_add_u32 v4, v6, 3, s{S_T0}")
    g.i(f"buffer_load_dword v5, v4, s[{S_DBG}:{S_DBG+3}], 0 offen offset:4 sc1")
    for s0 in range(0, 16, 3):
        if s0: g.i("s_waitcnt lgkmcnt(2)")
        wo_reads(s0, min(s0 + 3, 16))
    g.i(f"s_lshr_b32 s{S_T0}, s{S_HP}, 3")
    g.i(f"s_lshl_b32 s{S_T0}, s{S_T0}, 2")
    g.i(f"s_and_b32 s{S_T1}, s{S_WAVE}, 3")
    g.i(f"s_add_u32 s{S_A}, s{S_T0}, s{S_T1}")
    g.i(f"s_lshl_b32 s{S_T0}, s{S_TB}, 3")
    g.i(f"s_add_u32 s{S_A}, s{S_A}, s{S_T0}")
    g.i(f"s_lshl_b32 s{S_B}, s{S_A}, 15")
    g.i(f"s_lshl_b32 s{S_T0}, s{S_E}, 14")
    g.i(f"s_add_u32 s{S_B}, s{S_B}, s{S_T0}")
    g.i(f"s_add_u32 s{S_C}, s{S_B}, 4096")
    g.i(f"s_add_u32 s{S_D}, s{S_B}, 8192")
    g.i(f"s_add_u32 s{S_IT}, s{S_B}, 12288")
    g.i(f"v_lshlrev_b32 v2, 10, v6")
    g.i(f"v_add_u32 v2, 1020, v2")
    g.i(f"s_lshl_b32 s{S_T0}, s{S_WAVE}, 12")
    g.i(f"v_add_u32 v{RA}, s{S_T0}, v{V_L16}")
    if not opt.get('fl', 1):
        g.i("v_and_b32 v6, 31, v0")
        g.i("v_lshlrev_b32 v6, 11, v6")
        g.i("v_lshrrev_b32 v7, 5, v0")
        g.i(f"v_lshl_add_u32 v{OA}, v7, 4, v6")
        g.i(f"s_lshl_b32 s{S_A}, s{S_A}, 16")
        g.i(f"s_lshl_b32 s{S_T0}, s{S_BR}, 10")
        g.i(f"s_add_u32 s{S_A}, s{S_A}, s{S_T0}")
        g.i(f"s_lshl_b32 s{S_T0}, s{S_F}, 7")
        g.i(f"s_add_u32 s{S_A}, s{S_A}, s{S_T0}")
        g.i(f"s_lshl_b32 s{S_T0}, s{S_E}, 6")
        g.i(f"s_add_u32 s{S_A}, s{S_A}, s{S_T0}")
    if opt.get('fl', 1):
        g.i(f"s_and_b32 s{S_T0}, s{S_WAVE}, 3")
        g.i(f"s_lshl_b32 s{S_T0}, s{S_T0}, 12")
        g.i(f"s_add_u32 s{S_T0}, s{S_T0}, {RING}")
        g.i("v_and_b32 v6, 31, v0")
        g.i(f"v_lshl_add_u32 v6, v6, 7, s{S_T0}")
        g.i("v_lshrrev_b32 v7, 5, v0")
        g.i(f"v_lshl_add_u32 v7, s{S_E}, 2, v7")
        g.i("v_and_b32 v91, 7, v0")
        g.i("v_xor_b32 v7, v7, v91")
        g.i("v_lshl_add_u32 v88, v7, 4, v6")
        g.i("v_xor_b32 v89, 32, v88")
        g.i("v_lshrrev_b32 v6, 3, v0")
        g.i("v_xor_b32 v7, v6, v91")
        g.i(f"v_lshl_add_u32 v6, v6, 7, s{S_T0}")
        g.i("v_lshl_add_u32 v6, v7, 4, v6")
        g.i(f"v_lshl_add_u32 v90, s{S_E}, 11, v6")
    g.i(f"s_mov_b32 s{S_T3}, 0")
    probe = f"buffer_load_dword v3, v2, s[{S_O}:{S_O+3}], s{S_B} offen sc1"
    g.lab("L_spin_c")
    g.i("s_waitcnt vmcnt(0)")
    g.i("v_cmp_gt_u32 vcc, 8, v5")
    g.i(f"s_add_u32 s{S_T3}, s{S_T3}, 1")
    g.i("s_cbranch_vccz L_spin_o")
    g.i(f"buffer_load_dword v5, v4, s[{S_DBG}:{S_DBG+3}], 0 offen offset:4 sc1")
    g.i(f"s_cmp_lt_u32 s{S_T3}, {SPIN_MAX}")
    g.i("s_cbranch_scc1 L_spin_c")
    g.lab("L_spin_o")
    if opt.get('probe', 1):
        g.i(probe)
        g.i(f"s_add_u32 s{S_T3}, s{S_T3}, 1")
        g.i(f"s_cmp_ge_u32 s{S_T3}, {SPIN_MAX}")
        g.i("s_cbranch_scc1 L_spun_o")
        g.i("s_waitcnt vmcnt(0)")
        g.i("v_cmp_eq_u32 vcc, -1, v3")
        g.i("s_cbranch_vccnz L_spin_o")
    else:
        g.i(f"s_add_u32 s{S_T3}, s{S_T3}, 1")
    g.lab("L_spun_o")
    g.stamp(6)
    for s in range(16):
        so = (S_B, S_C, S_D, S_IT)[s // 4]
        g.i(f"buffer_load_dwordx4 {vr(P_OF+4*s,4)}, v{V_L16}, s[{S_O}:{S_O+3}], s{so} offen offset:{1024*(s%4)} sc1")
    g.i("v_mov_b32 v3, 0")
    g.i("s_waitcnt lgkmcnt(0)")
    for s in range(16):
        g.i(f"s_waitcnt vmcnt({15-s})")
        for f, A in ((1, A1), (0, A0)):
            g.i(f"v_mfma_f32_32x32x16_bf16 {vr(A,16)}, {vr(P_WO+8*s+4*f,4)}, {vr(P_OF+4*s,4)}, {vr(A,16) if s else 0}")
            g.i(f"v_max3_u32 v3, v3, v{P_OF+4*s+2*f}, v{P_OF+4*s+2*f+1}")
    g.i("v_cmp_eq_u32 vcc, -1, v3")
    g.i(f"s_cmp_ge_u32 s{S_T3}, {SPIN_MAX}")
    g.i("s_cbranch_scc1 L_op_go")
    g.i("s_cbranch_vccnz L_spin_o")
    g.lab("L_op_go")
    g.i("s_nop 5")
    for r in range(4):
        g.i(f"ds_write_b128 v{RA}, {vr(A1+4*r,4)} offset:{1024*r}")
    g.i("s_waitcnt lgkmcnt(0)")
    g.i(f"v_xor_b32 v{RA}, 16384, v{RA}")
    barrier_unless_dry(g, "b9")
    for r in range(4):
        g.i(f"ds_read_b128 {vr(P_OF+4*r,4)}, v{RA} offset:{1024*r}")
    for r in range(4):
        g.i(f"s_waitcnt lgkmcnt({3-r})")
        for k in range(4):
            g.i(f"v_add_f32 v{A0+4*r+k}, v{A0+4*r+k}, v{P_OF+4*r+k}")
        for k in range(2):
            g.i(f"v_cvt_pk_bf16_f32 v{24+2*r+k}, v{A0+4*r+2*k}, v{A0+4*r+2*k+1}")
        if r % 2:
            g.i("s_nop 1")
            g.i(f"v_permlane32_swap_b32 v{24+2*r-2}, v{24+2*r}")
            g.i(f"v_permlane32_swap_b32 v{24+2*r-1}, v{24+2*r+1}")
            if opt.get('fl', 1):
                g.i(f"ds_write_b128 v{88+r//2}, {vr(24+2*r-2,4)}")
            else:
                g.i(f"buffer_store_dwordx4 {vr(24+2*r-2,4)}, v{OA}, s[{S_OUT}:{S_OUT+3}], s{S_A} offen offset:{16*(r-1)}{opt.get('outs','')}")
    if opt.get('fl', 1):
        g.i(f"s_add_u32 s{S_T0}, s{S_OW}, 16384")
        g.i("s_waitcnt lgkmcnt(0)")
        barrier_unless_dry(g, "b10")
        g.i("ds_read_b128 v[24:27], v90")
        g.i("ds_read_b128 v[28:31], v90 offset:1024")
        g.i("s_waitcnt lgkmcnt(1)")
        g.i(f"buffer_store_dwordx4 v[24:27], v{V_OW}, s[{S_OUT}:{S_OUT+3}], s{S_OW} offen{opt.get('outs','')}")
        g.i("s_waitcnt lgkmcnt(0)")
        g.i(f"buffer_store_dwordx4 v[28:31], v{V_OW}, s[{S_OUT}:{S_OUT+3}], s{S_T0} offen{opt.get('outs','')}")
    dry_exit(g)
    if g.diag:
        g.i("s_waitcnt vmcnt(0)")
        g.stamp(7)
        g.i("s_waitcnt lgkmcnt(0)")
        if g.diag == 3:
            a_, b_, K = opt['leak']
            if opt.get('leakw'):
                g.i(f"s_cmp_lt_u32 s{S_WAVE}, 4")
                g.i("s_cbranch_scc1 L_end")
            elif a_ in (1, 2) or b_ in (1, 2):
                g.i(f"s_cmp_ge_u32 s{S_WAVE}, 4")
                g.i("s_cbranch_scc1 L_end")
            if opt.get('leakc'):
                g.i(f"s_sub_u32 s{S_T0}, s{64+4*b_}, s{64+4*a_}")
                g.i(f"s_lshr_b32 s{S_T0}, s{S_T0}, 4")
            else:
                g.i(f"s_sub_u32 s{S_T0}, s{66+4*b_}, s{66+4*a_}")
            g.i(f"s_mul_i32 s{S_T0}, s{S_T0}, {K}")
            g.lab("L_leak")
            g.i("s_memrealtime s[98:99]")
            g.i("s_waitcnt lgkmcnt(0)")
            g.i(f"s_sub_u32 s{S_T1}, s98, s{66+4*7}")
            g.i(f"s_cmp_lt_u32 s{S_T1}, s{S_T0}")
            g.i("s_cbranch_scc1 L_leak")
            g.i("s_endpgm")
        if g.diag == 2:
            g.i(f"s_cmp_ge_u32 s{S_WAVE}, 4")
            g.i("s_cbranch_scc1 L_end")
            g.i("s_mov_b64 exec, 1")
            for k in range(1, 8):
                g.i(f"s_sub_u32 s{S_T0}, s{66+4*k}, s66")
                g.i(f"v_mov_b32 v6, s{S_T0}")
                g.i(f"v_mov_b32 v7, {8*k+4}")
                g.i(f"buffer_atomic_umax v6, v7, s[{S_DBG}:{S_DBG+3}], 0 offen sc1")
            g.i(f"s_sub_u32 s{S_T0}, s{64+4*4}, s{64+4*3}")
            g.i(f"v_mov_b32 v6, s{S_T0}")
            g.i(f"v_mov_b32 v7, 4")
            g.i(f"buffer_atomic_umax v6, v7, s[{S_DBG}:{S_DBG+3}], 0 offen sc1")
            g.i("s_endpgm")
        g.i(f"s_lshl_b32 s{S_T0}, s2, 3")
        g.i(f"s_add_u32 s{S_T0}, s{S_T0}, s{S_WAVE}")
        g.i(f"s_lshl_b32 s{S_T0}, s{S_T0}, 7")
        g.i(f"s_add_u32 s{S_T0}, s{S_T0}, {WS_STAMP}")
        srd(g.a, S_X, 96, 128, f"s{S_T0}")
        for k in range(32):
            g.i(f"v_mov_b32 v{36+k}, s{64+k}")
        g.i("v_mov_b32 v6, 0")
        for k in range(8):
            g.i(f"buffer_store_dwordx4 {vr(36+4*k,4)}, v6, s[{S_X}:{S_X+3}], 0 offen offset:{16*k}")
        if opt.get('itst'):
            g.i(f"s_add_u32 s{S_T0}, s{S_T0}, {1<<20}")
            srd(g.a, S_X, 96, 64, f"s{S_T0}")
            g.i("v_lshlrev_b32 v6, 2, v0")
            g.i(f"buffer_store_dword v250, v6, s[{S_X}:{S_X+3}], 0 offen")
    g.lab("L_end")
    g.i("s_endpgm")

def fallback(g):
    C = [100, 116]; M = [132, 133]; GV = 134
    g.lab("L_fallback")
    g.i(f"s_lshr_b32 s{S_T0}, s{S_WAVE}, 2")
    g.i(f"s_lshl_b32 s{S_T0}, s{S_T0}, 17")
    g.i(f"v_mov_b32 v{M[0]}, 0xff800000")
    g.i(f"v_mov_b32 v{M[1]}, 0xff800000")
    g.i(f"s_mov_b32 s{S_T1}, s{S_T0}")
    g.i(f"s_add_u32 s{S_T2}, s{S_T0}, 131072")
    g.lab("L_fb_max")
    g.i(f"buffer_load_dwordx4 {vr(V_K,4)}, v{V_L16}, s[{S_KV}:{S_KV+3}], s{S_T1} offen sc1")
    g.i(f"s_add_u32 s{S_T1}, s{S_T1}, 2048")
    g.i("s_waitcnt vmcnt(0)")
    for q in range(2):
        g.i(f"v_mfma_f32_32x32x16_bf16 {vr(V_S[q],16)}, {vr(V_K,4)}, {vr(V_Q[q],4)}, 0")
    g.i("s_nop 15")
    for q in range(2):
        for r in range(0, 16, 2):
            g.i(f"v_max3_f32 v{M[q]}, v{M[q]}, v{V_S[q]+r}, v{V_S[q]+r+1}")
    g.i(f"s_cmp_lt_u32 s{S_T1}, s{S_T2}")
    g.i("s_cbranch_scc1 L_fb_max")
    for q in range(2):
        g.i(f"v_mov_b32 v6, v{M[q]}")
        g.i(f"v_mov_b32 v7, v{M[q]}")
        g.i("s_nop 1")
        g.i("v_permlane32_swap_b32 v6, v7")
        g.i("s_nop 1")
        g.i("v_max_f32 v6, v6, v7")
        for r in range(16):
            g.i(f"v_sub_f32 v{C[q]+r}, 0, v6")
            g.i(f"v_mov_b32 v{V_O[q]+r}, 0")
    g.i("v_and_b32 v6, 15, v0")
    g.i("v_lshlrev_b32 v6, 4, v6")
    g.i("v_lshrrev_b32 v7, 5, v0")
    g.i(f"v_lshl_add_u32 v{GV}, v7, 8, v6")
    for r in range(8):
        g.i(f"v_mov_b32 v{V_V[0]+r}, 0x3f803f80")
    g.i(f"s_mov_b32 s{S_T1}, s{S_T0}")
    g.i(f"s_mov_b32 s{S_M}, 0xffff")
    g.i(f"s_mov_b32 s{S_M+1}, 0xffff")
    g.lab("L_fb_pv")
    g.i(f"buffer_load_dwordx4 {vr(V_K,4)}, v{V_L16}, s[{S_KV}:{S_KV+3}], s{S_T1} offen sc1")
    g.i(f"s_mov_b64 exec, s[{S_M}:{S_M+1}]")
    g.i(f"buffer_load_dwordx4 {vr(V_V[0],4)}, v{GV}, s[{S_KV}:{S_KV+3}], s{S_T1} offen offset:1024 sc1")
    g.i(f"buffer_load_dwordx4 {vr(V_V[0]+4,4)}, v{GV}, s[{S_KV}:{S_KV+3}], s{S_T1} offen offset:1536 sc1")
    g.i("s_mov_b64 exec, -1")
    g.i(f"s_add_u32 s{S_T1}, s{S_T1}, 2048")
    g.i("s_waitcnt vmcnt(0)")
    for q in range(2):
        g.i(f"v_mfma_f32_32x32x16_bf16 {vr(V_S[q],16)}, {vr(V_K,4)}, {vr(V_Q[q],4)}, {vr(C[q],16)}")
    g.i("s_nop 15")
    for q in range(2):
        for r in range(16):
            g.i(f"v_exp_f32 v{V_S[q]+r}, v{V_S[q]+r}")
    g.i("s_nop 3")
    for q in range(2):
        for h in range(2):
            g.i(f"v_smfmac_f32_32x32x32_bf16 {vr(V_O[q],16)}, {vr(V_V[0]+4*h,4)}, {vr(V_S[q]+8*h,8)}, v{V_IDX}")
    g.i("s_nop 15")
    g.i(f"s_cmp_lt_u32 s{S_T1}, s{S_T2}")
    g.i("s_cbranch_scc1 L_fb_pv")
    for q in range(2):
        g.i(f"v_rcp_f32 v{V_S[0]+2*q}, v{V_O[q]+8}")
    g.i("s_nop 1")
    g.i("s_branch L_at_store")

HEADER = open('cdna_kernels/' + NAME + '.s.ref').read().split('; Override launch')[0]

def generate(opt={}):
    global WS_KV, WS_O, WS_FLAG
    off = opt.get('wsoff', 0) << 20
    WS_KV, WS_O, WS_FLAG = (4 << 20) + off, (12 << 20) + off, (16 << 20) + off
    g = G(opt)
    name = NAME + "_kernel"
    g.a(HEADER.rstrip())
    g.a(f"; @launch grid=(256,1,1) block=(512,1,1) lds={LDS_TOTAL}")
    g.a('.amdgcn_target "amdgcn-amd-amdhsa--gfx950"')
    entry(g, name)
    if opt.get('lfirst', 1): loader(g)
    compute(g)
    attention(g)
    outproj(g)
    if not opt.get('lfirst', 1): loader(g)
    g.lab("L_code_end")
    for tag, body in g.side:
        g.lab(f"L_ol_{tag}")
        body()
        g.i(f"s_branch L_olr_{tag}")
    fallback(g)
    kernel_desc(g.a, name, NVGPR, 256, 102)
    return g.a.text()

if __name__ == "__main__":
    import sys
    opt = eval(sys.argv[2]) if len(sys.argv) > 2 else {}
    open(sys.argv[1], 'w').write(generate(opt))
```

```python
import math, struct
from common import *

WS_FLAG = 16 << 20
SLOT = 45056; SLOT_W = 32768
RING = 32768
L_WO = 65536
L_CONST = 135168
L_QX = 155648
LDS_TOTAL = 163840
S_X, S_W, S_WO, S_KV, S_O, S_FL, S_DBG, S_OUT = 8, 12, 16, 20, 24, 28, 32, 36
S_WAVE, S_BR, S_HP, S_TB, S_IT, S_T0, S_T1, S_T2, S_T3 = 40, 41, 42, 43, 44, 45, 46, 47, 48
S_A, S_B, S_C, S_D, S_E, S_F = 49, 50, 51, 52, 53, 54
S_G1, S_G2, S_PG = 58, 59, 60
KG, KL, VG, VL, QL, KVT = 244, 245, 247, 248, 249, 204
S_M = 56
V_L16, V_KA, V_VA, V_VX, V_IDX, V_T0, V_T1 = 1, 2, 3, 4, 5, 6, 7
V_Q = [8, 12]; V_K = 16; V_V = [20, 28]; V_S = [36, 52]; V_O = [68, 84]
V_F = 241
V_FA = 242
V_OW = 251
V_WOA = 243
V_ACC = 100
V_FR = [196, 216]
V_XA = 236; V_WA = 240
NVGPR = 256
QSCALE = struct.unpack('<I', struct.pack('<f', 0.25 * math.log2(math.e)))[0]
SPIN_MAX = 1 << 20
S_DRY = 3

class G:
    def __init__(self, opt):
        self.a = Asm(); self.opt = opt; self.diag = opt.get('diag', 0)
    def i(self, s): self.a.i(s)
    def lab(self, s): self.a.label(s)
    def st(self, name):
        m = self.opt.get('st', {})
        if name in m: self.stamp(m[name], True)
    def stamp(self, k, forced=False):
        if k in self.opt.get('st', {}).values() and not forced: return
        if self.diag:
            self.i(f"s_memtime s[{64+4*k}:{65+4*k}]")
            self.i(f"s_memrealtime s[{66+4*k}:{67+4*k}]")

def dry_exit(g, label="L_dry_ret"):
    if g.opt.get('dry', 1):
        g.i(f"s_cmp_lg_u32 s{S_DRY}, 0")
        g.i(f"s_cbranch_scc1 {label}")

def barrier_unless_dry(g, tag):
    dry_exit(g, f"L_nb_{tag}")
    g.i("s_barrier")
    g.lab(f"L_nb_{tag}")

def spin(g, tag, load, want, nlanes_mask=None):
    g.i(f"s_mov_b32 s{S_T3}, 0")
    g.lab(f"L_spin_{tag}")
    g.i(load)
    g.i(f"s_add_u32 s{S_T3}, s{S_T3}, 1")
    g.i("s_waitcnt vmcnt(0)")
    g.i(f"v_cmp_{'gt' if want > 1 else 'ne'}_u32 vcc, {want}, v{V_F}")
    g.i(f"s_cmp_ge_u32 s{S_T3}, {SPIN_MAX}")
    g.i(f"s_cbranch_scc1 L_spun_{tag}")
    g.i(f"s_cbranch_vccnz L_spin_{tag}")
    g.lab(f"L_spun_{tag}")

def entry(g, name):
    a = g.a
    kernel_head(a, name)
    PF = g.opt.get('cpf', 1)
    if PF in (2, 3):
        g.i("s_getpc_b64 s[16:17]")
    if PF == 1:
        g.i("s_getpc_b64 s[8:9]")
        g.i("v_lshlrev_b32 v6, 7, v0")
        g.i("s_mov_b32 s10, L_code_end-" + name + "-4")
        g.i("s_mov_b32 s11, 0x20000")
    if PF == 4:
        g.i("s_getpc_b64 s[8:9]")
        g.i("v_lshlrev_b32 v6, 7, v0")
        g.i("s_lshl_b32 s4, s2, 7")
        g.i("s_and_b32 s4, s4, 0x7c00")
        g.i("s_add_u32 s10, s4, 1024")
        g.i("s_min_u32 s10, s10, L_code_end-" + name + "-4")
        g.i("s_mov_b32 s11, 0x20000")
    g.i("s_cmp_ge_u32 s2, 256")
    g.i("s_cbranch_scc1 L_end")
    if PF == 1:
        g.i("buffer_load_dword v246, v6, s[8:11], 0 offen")
    if PF == 4:
        g.i("buffer_load_dword v246, v6, s[8:11], s4 offen")
    g.stamp(0)
    g.i(f"s_mov_b32 s{S_DRY}, 0")
    g.i(f"s_bfe_u32 s{S_BR}, s2, 0x10002")
    g.i(f"s_mul_i32 s{S_T0}, s{S_BR}, 24")
    g.i(f"s_load_dwordx4 s[{S_M}:{S_M+3}], s[0:1], s{S_T0}")
    g.i(f"s_load_dwordx2 s[{S_M+4}:{S_M+5}], s[0:1], s{S_T0} offset:16")
    g.i("s_load_dwordx4 s[4:7], s[0:1], 48")
    g.i(f"s_load_dwordx2 s[{S_M+6}:{S_M+7}], s[0:1], 64")
    g.i("v_lshrrev_b32 v6, 6, v0")
    g.i("v_and_b32 v0, 63, v0")
    g.i(f"v_readfirstlane_b32 s{S_WAVE}, v6")
    g.i(f"v_lshlrev_b32 v{V_L16}, 4, v0")
    g.i(f"s_bfe_u32 s{S_HP}, s2, 0x10001")
    g.i(f"s_lshl_b32 s{S_HP}, s{S_HP}, 3")
    g.i(f"s_bfe_u32 s{S_T0}, s2, 0x30003")
    g.i(f"s_add_u32 s{S_HP}, s{S_HP}, s{S_T0}")
    g.i(f"s_and_b32 s{S_TB}, s2, 1")
    g.i(f"s_lshl_b32 s{S_TB}, s{S_TB}, 2")
    g.i(f"s_lshr_b32 s{S_T0}, s2, 6")
    g.i(f"s_add_u32 s{S_TB}, s{S_TB}, s{S_T0}")
    g.i(f"s_lshl_b32 s{S_T0}, s{S_TB}, 18")
    g.i(f"s_lshl_b32 s{S_T1}, s{S_BR}, 4")
    g.i(f"s_add_u32 s{S_T1}, s{S_T1}, s{S_HP}")
    g.i(f"s_lshl_b32 s{S_T2}, s{S_T1}, 18")
    g.i(f"s_add_u32 s{S_T2}, s{S_T2}, {WS_KV}")
    g.i(f"s_lshl_b32 s{S_T3}, s{S_BR}, 21")
    g.i(f"s_add_u32 s{S_T3}, s{S_T3}, {WS_O}")
    if g.opt.get('lfirst', 1):
        g.i(f"s_cmp_lt_u32 s{S_WAVE}, 4")
        g.i("s_cbranch_scc1 L_compute")
    else:
        g.i(f"s_cmp_ge_u32 s{S_WAVE}, 4")
        g.i("s_cbranch_scc1 L_loader")

def early_srds(g):
    g.i("s_waitcnt lgkmcnt(0)")
    g.st('karg')
    srd(g.a, S_X, S_M, 256 * 1024, f"s{S_T0}")
    srd(g.a, S_W, S_M + 2, 512 * 1536 * 2)

def late_srds(g):
    a = g.a
    srd(a, S_WO, S_M + 4, 512 * 512 * 2)
    srd(a, S_KV, S_M + 6, 256 * 1024, f"s{S_T2}")
    srd(a, S_O, S_M + 6, 2 << 20, f"s{S_T3}")
    srd(a, S_FL, S_M + 6, 4096, str(WS_FLAG))
    srd(a, S_DBG, 6, 256)
    srd(a, S_OUT, 4, 2048 * 1024 * 2)
    if g.diag:
        g.i(f"s_mov_b32 s96, s{S_M+6}")
        g.i(f"s_mov_b32 s97, s{S_M+7}")

def attn_consts(g):
    g.i(f"s_lshr_b32 s{S_T0}, s{S_WAVE}, 2")
    g.i(f"s_lshl_b32 s{S_T0}, s{S_T0}, 14")
    g.i(f"v_add_u32 v{V_KA}, s{S_T0}, v{V_L16}")
    g.i(f"v_and_b32 v{V_T0}, 15, v0")
    g.i(f"v_lshlrev_b32 v{V_T0}, 4, v{V_T0}")
    g.i(f"v_lshrrev_b32 v{V_T1}, 5, v0")
    g.i(f"v_lshl_add_u32 v{V_T0}, v{V_T1}, 8, v{V_T0}")
    g.i(f"s_add_u32 s{S_T0}, s{S_T0}, 1024")
    g.i(f"v_add_u32 v{V_VA}, s{S_T0}, v{V_T0}")
    g.i(f"v_and_b32 v{V_T0}, 31, v0")
    g.i(f"v_subrev_u32 v{V_T1}, 20, v{V_T0}")
    g.i(f"v_cmp_gt_u32 vcc, 8, v{V_T1}")
    g.i(f"v_mov_b32 v{V_T1}, {L_CONST+16}")
    g.i(f"v_mov_b32 v{V_VX}, {L_CONST+16+64}")
    g.i(f"v_cndmask_b32 v{V_T1}, v{V_T1}, v{V_VX}, vcc")
    g.i(f"v_and_b32 v{V_VX}, {31 if g.opt.get('x_one') else 27}, v0")
    g.i(f"v_cmp_eq_u32 vcc, 16, v{V_VX}")
    g.i(f"v_subrev_u32 v{V_VX}, 16, v{V_T1}")
    g.i("s_nop 0")
    g.i(f"v_cndmask_b32 v{V_T1}, v{V_T1}, v{V_VX}, vcc")
    g.i(f"v_cmp_gt_u32 vcc, 16, v{V_T0}")
    g.i(f"v_mov_b32 v{V_T0}, {RING}")
    g.i(f"v_mov_b32 v{V_IDX}, 0xdddd")
    g.i(f"v_cndmask_b32 v{V_VA}, v{V_T1}, v{V_VA}, vcc")
    g.i(f"v_cndmask_b32 v{V_VX}, 0, v{V_T0}, vcc")
    g.i(f"v_add_u32 v{V_VX}, v{V_VX}, v{V_VA}")
    g.i("v_lshrrev_b32 v7, 3, v0")
    g.i("v_lshlrev_b32 v7, 11, v7")
    g.i(f"v_and_b32 v{V_OW}, 7, v0")
    g.i(f"v_lshl_add_u32 v{V_OW}, v{V_OW}, 4, v7")
    g.i(f"v_mov_b32 v{KG}, 0")
    g.i(f"v_mov_b32 v{VG}, 0")
    g.i("v_mov_b64 v[252:253], -1")
    g.i("v_mov_b64 v[254:255], -1")
    for r in range(0, 32, 2):
        g.i(f"v_mov_b64 v[{V_O[0]+r}:{V_O[0]+r+1}], 0")
    g.i(f"s_lshl_b32 s{S_T0}, s{S_BR}, 4")
    g.i(f"s_add_u32 s{S_T0}, s{S_T0}, s{S_HP}")
    g.i(f"s_lshl_b32 s{S_T0}, s{S_T0}, 7")
    g.i(f"v_and_b32 v6, 31, v0")
    g.i(f"v_lshl_add_u32 v{V_FA}, v6, 2, s{S_T0}")
    g.i(f"v_lshrrev_b32 v{V_T0}, 2, v0")
    g.i(f"v_and_b32 v{V_T0}, 4, v{V_T0}")
    g.i(f"v_and_b32 v{V_T1}, 7, v0")
    g.i(f"v_xor_b32 v{V_T0}, v{V_T0}, v{V_T1}")
    g.i(f"v_lshlrev_b32 v{V_T0}, 4, v{V_T0}")
    g.i(f"v_lshrrev_b32 v{V_T1}, 3, v0")
    g.i(f"v_lshl_add_u32 v{V_WOA}, v{V_T1}, 10, v{V_T0}")

def consts(g):
    g.i(f"s_cmp_lg_u32 s{S_WAVE}, 4")
    g.i("s_cbranch_scc1 L_ld_noconst")
    g.i("v_lshrrev_b32 v6, 2, v0")
    g.i("v_and_b32 v7, 1, v6")
    g.i("v_lshlrev_b32 v7, 9, v7")
    g.i("v_lshrrev_b32 v6, 1, v6")
    g.i("v_lshl_add_u32 v7, v6, 11, v7")
    g.i("v_and_b32 v6, 1, v0")
    g.i("v_lshl_add_u32 v7, v6, 4, v7")
    g.i("v_cmp_eq_u32 vcc, 0, v6")
    g.i("v_and_b32 v6, 2, v0")
    g.i("v_lshl_add_u32 v7, v6, 5, v7")
    g.i("v_mov_b32 v6, 0x3f803f80")
    g.i(f"v_add_u32 v7, {L_CONST}, v7")
    g.i("v_cndmask_b32 v108, 0, v6, vcc")
    g.i("v_cndmask_b32 v109, 0, v6, vcc")
    g.i("v_cndmask_b32 v110, 0, v6, vcc")
    g.i("v_cndmask_b32 v111, 0, v6, vcc")
    g.i("ds_write_b128 v7, v[108:111]")
    g.lab("L_ld_noconst")

def loader(g):
    VX, VW, VT = 100, 104, 112
    LEAD = g.opt.get('lead', 0)
    g.lab("L_loader")
    g.i(f"s_sub_u32 s{S_A}, s{S_WAVE}, 4")
    S_CH, S_TX = S_F, 55
    RM = g.opt.get('rot', 7)
    if RM == 1:
        g.i(f"s_lshl_b32 s{S_CH}, s{S_TB}, 1")
        g.i(f"s_lshr_b32 s{S_T1}, s{S_TB}, 2")
        g.i(f"s_add_u32 s{S_CH}, s{S_CH}, s{S_T1}")
        g.i(f"s_and_b32 s{S_CH}, s{S_CH}, 7")
    elif RM == 2:
        g.i(f"s_mov_b32 s{S_CH}, s{S_TB}")
    elif RM == 7:
        g.i(f"s_and_b32 s{S_T1}, s{S_HP}, 1")
        g.i(f"s_lshl_b32 s{S_T1}, s{S_T1}, 2")
        g.i(f"s_add_u32 s{S_CH}, s{S_TB}, s{S_T1}")
        g.i(f"s_and_b32 s{S_CH}, s{S_CH}, 7")
    elif RM == 8:
        g.i(f"s_lshl_b32 s{S_CH}, s{S_TB}, 1")
        g.i(f"s_bfe_u32 s{S_T1}, s{S_HP}, 0x10001")
        g.i(f"s_add_u32 s{S_CH}, s{S_CH}, s{S_T1}")
        g.i(f"s_and_b32 s{S_CH}, s{S_CH}, 7")
    elif RM == 9:
        g.i(f"s_lshl_b32 s{S_CH}, s{S_TB}, 1")
        g.i(f"s_and_b32 s{S_T1}, s{S_HP}, 3")
        g.i(f"s_add_u32 s{S_CH}, s{S_CH}, s{S_T1}")
        g.i(f"s_and_b32 s{S_CH}, s{S_CH}, 7")
    elif RM == 10:
        g.i(f"s_and_b32 s{S_CH}, s2, 7")
    elif RM == 11:
        g.i(f"s_and_b32 s{S_CH}, s2, 3")
        g.i(f"s_lshl_b32 s{S_CH}, s{S_CH}, 1")
        g.i(f"s_add_u32 s{S_CH}, s{S_CH}, s{S_BR}")
    elif RM == 0:
        g.i(f"s_mov_b32 s{S_CH}, 0")
    elif RM == 6:
        g.i(f"s_lshl_b32 s{S_CH}, s{S_TB}, 1")
        g.i(f"s_add_u32 s{S_CH}, s{S_CH}, s{S_HP}")
        g.i(f"s_and_b32 s{S_CH}, s{S_CH}, 7")
    elif RM == 4:
        g.i(f"s_lshl_b32 s{S_CH}, s{S_TB}, 1")
        g.i(f"s_add_u32 s{S_CH}, s{S_CH}, s{S_HP}")
        g.i(f"s_and_b32 s{S_CH}, s{S_CH}, 3")
        g.i(f"s_lshl_b32 s{S_CH}, s{S_CH}, 1")
    elif RM == 5:
        g.i(f"s_add_u32 s{S_CH}, s{S_TB}, s{S_HP}")
        g.i(f"s_and_b32 s{S_CH}, s{S_CH}, 3")
        g.i(f"s_lshl_b32 s{S_CH}, s{S_CH}, 1")
    elif RM == 3:
        g.i(f"s_lshl_b32 s{S_CH}, s{S_TB}, 1")
        g.i(f"s_and_b32 s{S_T1}, s{S_HP}, 1")
        g.i(f"s_add_u32 s{S_CH}, s{S_CH}, s{S_T1}")
        g.i(f"s_and_b32 s{S_CH}, s{S_CH}, 7")
    if g.opt.get('pf') or LEAD: pass
    if g.opt.get('pf') or LEAD:
        g.i(f"v_lshlrev_b32 v{VT}, 10, v0")
        g.i(f"s_and_b32 s{S_TX}, s{S_HP}, 7")
        g.i(f"s_lshl_b32 s{S_TX}, s{S_TX}, 2")
        g.i(f"s_add_u32 s{S_TX}, s{S_TX}, s{S_A}")
        g.i(f"s_lshl_b32 s{S_TX}, s{S_TX}, 13")
    PF = g.opt.get('pf', 0)
    NT = 2 if PF else (1 if LEAD else 0)
    if PF:
        S_TC, S_TW = S_IT, 0
        g.i(f"s_mov_b32 s{S_TC}, s{S_CH}")
        g.i("v_lshrrev_b32 v6, 1, v0")
        g.i("v_and_b32 v7, 1, v0")
        g.i("v_lshlrev_b32 v7, 7, v7")
        g.i(f"v_lshl_add_u32 v{VT+1}, v6, 10, v7")
        g.i(f"s_lshr_b32 s1, s2, 3")
        g.i(f"s_lshl_b32 s1, s1, 1")
        g.i(f"s_lshr_b32 s{S_T1}, s{S_A}, 1")
        g.i(f"s_add_u32 s1, s1, s{S_T1}")
        g.i(f"s_mul_i32 s1, s1, 3072")
        g.i(f"s_lshr_b32 s{S_T1}, s{S_HP}, 3")
        g.i(f"s_lshl_b32 s{S_T1}, s{S_T1}, 1")
        g.i(f"s_and_b32 s{S_B}, s{S_A}, 1")
        g.i(f"s_add_u32 s{S_T1}, s{S_T1}, s{S_B}")
        g.i(f"s_lshl_b32 s{S_T1}, s{S_T1}, 8")
        g.i(f"s_add_u32 s3, s1, s{S_T1}")
    def touch(ahead):
        if PF:
            g.i(f"s_lshl_b32 s{S_T0}, s{S_TC}, 7")
            g.i(f"s_add_u32 s{S_T0}, s{S_T0}, s{S_TX}")
            g.i(f"s_mul_i32 s{S_T1}, s{S_TC}, {64*3072}")
            g.i(f"s_add_u32 s{S_T1}, s{S_T1}, s3")
            g.i("s_mov_b64 exec, 0xff")
            g.i(f"buffer_load_dword v246, v{VT}, s[{S_X}:{S_X+3}], s{S_T0} offen")
            if g.opt.get('pfw', 1):
                g.i("s_mov_b64 exec, 0x3f")
                g.i(f"buffer_load_dword v246, v{VT+1}, s[{S_W}:{S_W+3}], s{S_T1} offen")
            g.i("s_mov_b64 exec, -1")
            g.i(f"s_add_u32 s{S_TC}, s{S_TC}, 1")
            g.i(f"s_and_b32 s{S_TC}, s{S_TC}, 7")
            return
        if not LEAD: return
        g.i(f"s_add_u32 s{S_T0}, s{S_CH}, {ahead}")
        g.i(f"s_and_b32 s{S_T0}, s{S_T0}, 7")
        g.i(f"s_lshl_b32 s{S_T0}, s{S_T0}, 7")
        g.i(f"s_add_u32 s{S_T0}, s{S_T0}, s{S_TX}")
        g.i("s_mov_b64 exec, 0xff")
        g.i(f"buffer_load_dword v246, v{VT}, s[{S_X}:{S_X+3}], s{S_T0} offen")
        g.i("s_mov_b64 exec, -1")
    g.i("v_lshrrev_b32 v6, 4, v0")
    g.i("v_and_b32 v7, 7, v0")
    g.i("v_xor_b32 v6, v6, v7")
    g.i("v_lshlrev_b32 v6, 4, v6")
    g.i("v_lshrrev_b32 v7, 3, v0")
    g.i(f"v_lshl_add_u32 v{VX}, v7, 10, v6")
    g.i(f"v_xor_b32 v{VX+1}, 64, v{VX}")
    g.i(f"v_add_u32 v{VX+2}, {2*7168}, v{VX}")
    g.i(f"v_add_u32 v{VX+3}, {3*7168}, v{VX+1}")
    g.i(f"v_add_u32 v{VX+1}, 7168, v{VX+1}")
    g.i(f"s_lshl_b32 s{S_B}, s{S_A}, 16")
    g.i(f"s_lshl_b32 s{S_D}, s{S_A}, 13")
    for p in range(3):
        g.i(f"v_add_u32 v6, {64*p}, v0")
        g.i("v_mul_u32_u24 v7, 43691, v6")
        g.i("v_lshrrev_b32 v7, 19, v7")
        g.i("v_mul_u32_u24 v110, 12, v7")
        g.i("v_sub_u32 v6, v6, v110")
        g.i("v_mul_u32_u24 v7, 3072, v7")
        g.i("v_lshrrev_b32 v110, 2, v6")
        g.i(f"v_lshl_add_u32 v7, v110, {6 if g.opt.get('x_wc') else 10}, v7")
        g.i("v_and_b32 v6, 3, v6")
        g.i("v_lshl_add_u32 v7, v6, 4, v7")
        g.i(f"v_subrev_u32 v{VW+p}, {1024*p}, v7")
    g.i(f"s_mul_i32 s{S_C}, s{S_A}, {16*3072}")
    g.i(f"s_lshl_b32 s{S_T1}, s{S_HP}, {7 if g.opt.get('x_wc') else 6}")
    g.i(f"s_add_u32 s{S_C}, s{S_C}, s{S_T1}")
    g.i(f"s_mul_i32 s{S_E}, s{S_A}, 3072")
    g.i(f"s_add_u32 s{S_E}, s{S_E}, {SLOT_W}")
    early_srds(g)
    cnt = [0]
    def issue():
        cnt[0] += 1
        g.i(f"s_lshl_b32 s{S_T1}, s{S_CH}, 7")
        g.i(f"s_add_u32 s{S_T1}, s{S_T1}, s{S_B}")
        g.i(f"s_mov_b32 m0, s{S_D}")
        g.i(f"s_add_u32 s{S_T0}, s{S_T1}, 32768")
        for p in range(4):
            g.i(f"buffer_load_dwordx4 v{VX+p}, s[{S_X}:{S_X+3}], s{S_T1} offen offset:{1024*p}{g.opt.get('xfl','')} lds")
        if cnt[0] == 1: g.st('ld_4')
        g.i(f"s_add_u32 m0, s{S_D}, 4096")
        g.i(f"s_mul_i32 s{S_T1}, s{S_CH}, {64*3072}")
        for p in range(4):
            g.i(f"buffer_load_dwordx4 v{VX+p}, s[{S_X}:{S_X+3}], s{S_T0} offen offset:{1024*p}{g.opt.get('xfl','')} lds")
        if cnt[0] == 1: g.st('ld_8')
        g.i(f"s_mov_b32 m0, s{S_E}")
        g.i(f"s_add_u32 s{S_T1}, s{S_T1}, s{S_C}")
        for p in range(3):
            if g.opt.get('x_now'): g.i(f"buffer_load_dword v244, v{VW+p}, s[{S_DBG if False else S_W}:{S_W+3}], s{S_C} offen"); continue
            g.i(f"buffer_load_dwordx4 v{VW+p}, s[{S_W}:{S_W+3}], s{S_T1} offen offset:{1024*p}{g.opt.get('wfl','')} lds")
        g.i(f"s_add_u32 s{S_CH}, s{S_CH}, 1")
        g.i(f"s_and_b32 s{S_CH}, s{S_CH}, 7")
    def next_slot():
        g.i(f"s_add_u32 s{S_D}, s{S_D}, {SLOT}")
        g.i(f"s_add_u32 s{S_E}, s{S_E}, {SLOT}")
        g.i(f"s_cmp_lt_u32 s{S_D}, {3*SLOT}")
        g.i(f"s_cselect_b32 s{S_T0}, 0, {3*SLOT}")
        g.i(f"s_sub_u32 s{S_D}, s{S_D}, s{S_T0}")
        g.i(f"s_sub_u32 s{S_E}, s{S_E}, s{S_T0}")
    if PF:
        q = []; nt = [0]
        def T():
            if nt[0] < 8: touch(0); q.extend('TT' if g.opt.get('pfw', 1) else 'T'); nt[0] += 1
        def D(c): issue(); q.extend([c] * 11)
        def W(c): g.i(f"s_waitcnt vmcnt({len(q) - 1 - max(i for i, x in enumerate(q) if x == c)})")
        for c in range(PF): T()
        D(0); T()
        next_slot(); D(1); T()
        late_srds(g); attn_consts(g); consts(g)
        for c in range(6):
            W(c)
            g.i("s_barrier")
            next_slot(); D(c + 2); T()
        W(6)
        g.i("s_barrier")
        g.i("s_waitcnt vmcnt(0)")
        g.i("s_barrier")
        g.i("s_mov_b32 s3, 0")
    if not PF: loader_plain(g, issue, next_slot, touch, LEAD, NT)
    loader_fin(g)

def loader_plain(g, issue, next_slot, touch, LEAD, NT):
    issue()
    g.st('ld_c0')
    next_slot(); issue()
    for c in range(2, LEAD): touch(c - 2)
    g.st('ld_c2')
    late_srds(g); attn_consts(g); consts(g)
    g.st('ld_pre')
    PRE = g.opt.get('pre', '')
    n0 = NT * max(LEAD - 2, 0)
    def pre():
        g.i(f"s_lshl_b32 s{S_T0}, s{S_TB}, 14")
        g.i(f"s_and_b32 s{S_T1}, s{S_A}, 1")
        g.i(f"s_lshl_b32 s{S_T1}, s{S_T1}, 13")
        g.i(f"s_add_u32 s{S_T0}, s{S_T0}, s{S_T1}")
        g.i(f"s_lshr_b32 s{S_T1}, s{S_A}, 1")
        g.i(f"s_lshl_b32 s{S_T1}, s{S_T1}, 17")
        g.i(f"s_add_u32 s{S_T0}, s{S_T0}, s{S_T1}")
        if PRE == 'r':
            g.i("v_lshlrev_b32 v6, 7, v0")
            g.i(f"buffer_load_dword v245, v6, s[{S_KV}:{S_KV+3}], s{S_T0} offen sc1")
            return 1
        g.i(f"s_add_u32 s{S_T1}, s{S_T0}, 4096")
        for k in range(8):
            g.i(f"buffer_store_dwordx4 v[{V_O[0]}:{V_O[0]+3}], v{V_L16}, s[{S_KV}:{S_KV+3}], s{S_T1 if k >= 4 else S_T0} offen offset:{1024*(k%4)} sc1")
        return 8
    np_ = 0
    PC = g.opt.get('prec', 1)
    for c, n in ((0, 11 + n0), (1, n0 + 11 + NT)):
        g.i(f"s_waitcnt vmcnt({n + (np_ if c == 1 else 0)})")
        if c == 0: g.st('ld_got0')
        g.i("s_barrier")
        next_slot(); issue(); touch(LEAD - 3)
        if PRE and c == PC: np_ = pre()
    if PRE and PC == 1:
        g.i(f"s_waitcnt vmcnt({11+2*NT+np_})")
        g.i("s_barrier")
        next_slot(); issue(); touch(LEAD - 3)
        g.i(f"s_mov_b32 s{S_IT}, 3")
        g.i(f"s_waitcnt vmcnt({11+2*NT+np_})")
        g.i("s_branch L_ld_loop2")
    g.i(f"s_mov_b32 s{S_IT}, 2")
    g.lab("L_ld_loop")
    g.i(f"s_waitcnt vmcnt({11+2*NT})")
    g.lab("L_ld_loop2")
    g.i("s_barrier")
    next_slot(); issue(); touch(LEAD - 3)
    g.i(f"s_add_u32 s{S_IT}, s{S_IT}, 1")
    g.i(f"s_cmp_lt_u32 s{S_IT}, 6")
    g.i("s_cbranch_scc1 L_ld_loop")
    g.st('ld_iss7')
    g.i(f"s_waitcnt vmcnt({11+2*NT})")
    g.i("s_barrier")
    g.i("s_waitcnt vmcnt(0)")
    g.i("s_barrier")

def loader_fin(g):
    g.i(f"s_cmp_lg_u32 s{S_WAVE}, 4")
    g.i("s_cbranch_scc1 L_ld_nocert")
    g.i(f"s_lshl_b32 s{S_T0}, s{S_BR}, 4")
    g.i(f"s_add_u32 s{S_T0}, s{S_T0}, s{S_HP}")
    g.i(f"s_lshl_b32 s{S_T0}, s{S_T0}, 3")
    g.i(f"v_mov_b32 v7, s{S_T0}")
    spin(g, "cert1", f"buffer_load_dword v{V_F}, v7, s[{S_DBG}:{S_DBG+3}], 0 offen sc1", 8)
    g.lab("L_ld_nocert")
    g.i(f"s_lshl_b32 s{S_T0}, s{S_A}, 11")
    g.i(f"s_add_u32 s{S_T0}, s{S_T0}, {L_QX}")
    g.i(f"v_add_u32 v6, s{S_T0}, v{V_L16}")
    attn_setup(g)
    g.i("s_waitcnt lgkmcnt(0)")
    g.i("s_barrier")
    g.i(f"ds_read_b128 {vr(V_Q[0],4)}, v6")
    g.i(f"ds_read_b128 {vr(V_Q[1],4)}, v6 offset:1024")
    g.i("s_branch L_attn")

class LdsQ:
    def __init__(self, g): self.g = g; self.q = []
    def issue(self, tag): self.q.append(tag)
    def need(self, tags):
        idx = max([i for i, t in enumerate(self.q) if t in tags], default=-1)
        if idx >= 0:
            n = len(self.q) - 1 - idx
            self.g.i(f"s_waitcnt lgkmcnt({min(n,15)})")
            self.q = self.q[idx + 1:]

def clear_flags(g):
    g.i(f"s_cmp_lg_u32 s{S_WAVE}, 0")
    g.i("s_cbranch_scc1 L_cp_noclear")
    g.i(f"s_lshl_b32 s{S_T0}, s{S_BR}, 4")
    g.i(f"s_add_u32 s{S_T0}, s{S_T0}, s{S_HP}")
    g.i(f"s_lshl_b32 s{S_T1}, s{S_T0}, 7")
    g.i(f"s_lshl_b32 s{S_T2}, s{S_TB}, 4")
    g.i(f"s_add_u32 s{S_T1}, s{S_T1}, s{S_T2}")
    g.i(f"v_lshl_add_u32 v6, v0, 2, s{S_T1}")
    g.i("v_mov_b32 v7, 0")
    g.i("s_mov_b64 exec, 0xf")
    g.i(f"buffer_store_dword v7, v6, s[{S_FL}:{S_FL+3}], 0 offen sc1")
    g.i("s_mov_b64 exec, -1")
    g.lab("L_cp_noclear")

def compute(g):
    g.lab("L_compute")
    CP = g.opt.get('cpf', 1)
    if CP == 3:
        n = g.opt.get('cpn', 12)
        g.i(f"s_mul_i32 s18, s{S_WAVE}, {128*n}")
        g.i(f"s_add_u32 s18, s18, L_compute-{NAME}_kernel")
        g.i("s_add_u32 s18, s16, s18")
        g.i("s_addc_u32 s19, s17, 0")
        g.i("s_waitcnt lgkmcnt(0)")
        for k in range(n): g.i(f"s_load_dword s95, s[18:19], {128*k}")
    if CP in (2, 3):
        g.i("s_mov_b32 s12, s16"); g.i("s_mov_b32 s13, s17")
        g.i(f"s_mov_b32 s14, L_code_end-{NAME}_kernel-4"); g.i("s_mov_b32 s15, 0x20000")
    TL = g.opt.get('tlb', 0)
    if TL:
        g.i(f"v_lshlrev_b32 v6, {TL}, v0")
    if CP != 3: g.i("s_waitcnt lgkmcnt(0)")
    if TL:
        srd(g.a, S_W, S_M + 2, 512 * 1536 * 2)
        g.i(f"buffer_load_dword v246, v6, s[{S_W}:{S_W+3}], 0 offen")
        if g.opt.get('tlbx'):
            srd(g.a, S_X, S_M, 256 * 1024, f"s{S_T0}")
            g.i(f"buffer_load_dword v246, v6, s[{S_X}:{S_X+3}], 0 offen")
    late_srds(g)
    if not g.opt.get('lateclr'): clear_flags(g)
    attn_consts(g)
    g.i("v_and_b32 v6, 31, v0")
    g.i(f"s_lshl_b32 s{S_T0}, s{S_WAVE}, 13")
    g.i(f"v_lshl_add_u32 v100, v6, 7, s{S_T0}")
    g.i("v_bfe_u32 v6, v0, 1, 3")
    g.i("v_lshrrev_b32 v7, 5, v0")
    g.i("v_xor_b32 v6, v6, v7")
    for s in range(4):
        g.i(f"v_xor_b32 v7, {2*s}, v6")
        g.i(f"v_lshl_add_u32 v{V_XA+s}, v7, 4, v100")
    g.i("v_lshrrev_b32 v6, 5, v0")
    g.i("v_bfe_u32 v7, v0, 2, 2")
    g.i("v_lshl_add_u32 v6, v6, 3, v7")
    g.i("v_mul_u32_u24 v6, 192, v6")
    g.i("v_bfe_u32 v7, v0, 4, 1")
    g.i("v_lshl_add_u32 v6, v7, 5, v6")
    g.i("v_and_b32 v7, 3, v0")
    g.i("v_lshl_add_u32 v6, v7, 3, v6")
    g.i(f"v_add_u32 v{V_WA}, {SLOT_W}, v6")
    for r in range(0, 96, 2):
        g.i(f"v_mov_b64 v[{V_ACC+r}:{V_ACC+r+1}], 0")
    S_A, S_B = 56, 57
    g.i("v_and_b32 v6, 0x33, v0")
    g.i("v_bfe_u32 v7, v0, 2, 1")
    g.i("v_lshl_or_b32 v6, v7, 3, v6")
    g.i("v_bfe_u32 v7, v0, 3, 1")
    g.i("v_lshl_or_b32 v6, v7, 2, v6")
    g.i(f"v_lshlrev_b32 v{KG}, 4, v6")
    g.i(f"s_lshl_b32 s{S_T0}, s{S_WAVE}, 12")
    g.i(f"v_add_u32 v{KL}, s{S_T0}, v{KG}")
    g.i("v_and_b32 v6, 15, v0")
    g.i("v_lshlrev_b32 v6, 4, v6")
    g.i("v_lshrrev_b32 v7, 5, v0")
    g.i("v_lshl_add_u32 v6, v7, 8, v6")
    g.i("v_add_u32 v6, 1024, v6")
    g.i("v_bfe_u32 v7, v0, 4, 1")
    g.i(f"v_lshl_add_u32 v{VG}, v7, 17, v6")
    g.i("v_lshl_add_u32 v6, v7, 14, v6")
    g.i(f"v_add_u32 v{VL}, s{S_T0}, v6")
    g.i(f"s_lshr_b32 s{S_T0}, s{S_T0}, 1")
    g.i(f"s_add_u32 s{S_T0}, s{S_T0}, {L_QX}")
    g.i(f"v_add_u32 v{QL}, s{S_T0}, v{V_L16}")
    if g.opt.get('lateclr'): clear_flags(g)
    if CP in (2, 3):
        g.i(f"s_lshl_b32 s{S_T0}, s{S_WAVE}, 13")
        g.i("v_lshlrev_b32 v6, 7, v0")
        g.i(f"buffer_load_dword v246, v6, s[12:15], s{S_T0} offen")
    if g.opt.get('dry', 1):
        g.i(f"s_cmp_lt_u32 s{S_WAVE}, 2")
        g.i("s_cbranch_scc1 L_dry_done")
        g.i(f"s_mov_b32 s{S_DRY}, 1")
        g.i(f"s_mov_b32 s{S_IT}, 7")
        g.i("s_mov_b64 vcc, 0")
        g.i(f"s_mov_b64 s[{S_M}:{S_M+1}], 0")
        g.i(f"s_mov_b64 s[{S_M+2}:{S_M+3}], 0")
        g.i(f"s_mov_b32 s{S_MK}, 0")
        g.i("s_waitcnt vmcnt(0) lgkmcnt(0)")
        g.i("s_setvskip -1, 0")
        g.i(f"s_cmp_eq_u32 s{S_WAVE}, 2")
        g.i("s_cbranch_scc1 L_at_done")
        g.i("s_branch L_cp_loop")
        g.lab("L_dry_ret")
        g.i("s_setvskip 0, 0")
        g.i("s_mov_b64 exec, -1")
        g.i("s_setprio 0")
        g.i(f"s_mov_b32 s{S_DRY}, 0")
        g.lab("L_dry_done")
    attn_setup(g)
    g.i(f"s_lshl_b32 s{S_T0}, s{S_WAVE}, 12")
    g.i(f"s_lshl_b32 s{S_G1}, s{S_TB}, 14")
    g.i(f"s_add_u32 s{S_G1}, s{S_G1}, s{S_T0}")
    g.i(f"s_add_u32 s{S_G2}, s{S_G1}, 131072")
    g.i(f"s_mov_b32 s{S_IT}, 0")
    g.i(f"s_mov_b32 s{S_A}, 0")
    g.i(f"s_mov_b32 s{S_B}, {SLOT}")
    q = LdsQ(g)
    def rd(setn, s, which):
        F = V_FR[setn]
        if which[0] == 'x':
            i = int(which[1])
            g.i(f"ds_read_b128 {vr(F+4*i,4)}, v{V_XA+s} offset:{4096*i}")
        else:
            p = {'q': 0, 'k': 1, 'v': 2}[which[0]]; i = int(which[1])
            g.i(f"ds_read_b64_tr_b16 {vr(F+8+4*p+2*i,2)}, v{V_WA} offset:{s*3072+i*768+p*64}")
        q.issue((setn, which))
    ORDER = ['x0', 'q0', 'q1', 'x1', 'k0', 'k1', 'v0', 'v1']
    def mf(setn, n):
        F = V_FR[setn]; p, i = n // 2, n % 2
        w, x = vr(F + 8 + 4 * p, 4), vr(F + 4 * i, 4)
        nm = 'qkv'[p]
        q.need({(setn, f'x{i}'), (setn, nm + '0'), (setn, nm + '1')})
        A, B = (w, x) if p < 2 else (x, w)
        acc = vr(V_ACC + 16 * n, 16)
        if g.opt.get('x_m16'):
            for hh in range(2):
                a4 = vr(V_ACC + 16 * n + 4 * hh, 4)
                g.i(f"v_mfma_f32_16x16x32_bf16 {a4}, {A}, {B}, {a4}")
        else:
            g.i(f"v_mfma_f32_32x32x16_bf16 {acc}, {A}, {B}, {acc}")
    def step(cur, nxt_s):
        plan = [ORDER[0:2], ORDER[2:4], ORDER[4:6], ORDER[6:8], [], []]
        for n in range(6):
            if cur is not None: mf(cur, n)
            if nxt_s is not None:
                for w in plan[n]: rd(1 - (cur if cur is not None else 1), nxt_s, w)
    g.i(f"s_cmp_lg_u32 s{S_WAVE}, 0")
    g.i("s_cbranch_scc1 L_cp_nocount")
    g.i(f"s_lshl_b32 s{S_T0}, s{S_BR}, 4")
    g.i(f"s_add_u32 s{S_T0}, s{S_T0}, s{S_HP}")
    g.i(f"s_lshl_b32 s{S_T0}, s{S_T0}, 3")
    g.i("s_mov_b64 exec, 1")
    g.i(f"v_mov_b32 v6, s{S_T0}")
    g.i("v_mov_b32 v7, 1")
    g.i(f"s_waitcnt vmcnt(0)")
    g.i(f"buffer_atomic_add v7, v6, s[{S_DBG}:{S_DBG+3}], 0 offen sc1")
    g.i("s_mov_b64 exec, -1")
    g.lab("L_cp_nocount")
    def prew():
        g.i(f"s_lshl_b32 s{S_T0}, s{S_TB}, 14")
        g.i(f"s_lshl_b32 s{S_T1}, s{S_WAVE}, 12")
        g.i(f"s_add_u32 s{S_T0}, s{S_T0}, s{S_T1}")
        g.i(f"s_add_u32 s{S_T1}, s{S_T0}, 131072")
        for k in range(8):
            g.i(f"buffer_store_dwordx4 v[{V_O[0]}:{V_O[0]+3}], v{V_L16}, s[{S_KV}:{S_KV+3}], s{S_T1 if k >= 4 else S_T0} offen offset:{1024*(k%4)} sc1")
    def prer():
        g.i("v_and_b32 v6, 31, v0")
        g.i("v_lshlrev_b32 v6, 7, v6")
        g.i("v_lshrrev_b32 v7, 5, v0")
        g.i("v_lshl_add_u32 v6, v7, 17, v6")
        g.i(f"buffer_load_dword v246, v6, s[{S_KV}:{S_KV+3}], s{S_G1} offen{g.opt.get('prefl', ' sc1')}")
    PR = g.opt.get('prer', 0)
    if PR == -1: prer()
    if g.opt.get('prew') == 1: prew()
    g.st('cp_pre')
    g.i("s_barrier")
    g.stamp(1)
    if g.opt.get('prew') == 2: prew()
    step(None, 0)
    g.lab("L_cp_loop")
    q.q = [(0, w) for w in ORDER]
    step(0, 1); step(1, 2); step(0, 3)
    g.i(f"s_add_u32 s{S_A}, s{S_A}, 1")
    g.i(f"s_cmp_eq_u32 s{S_A}, 3")
    g.i(f"s_cselect_b32 s{S_T0}, {(-2*SLOT) & 0xffffffff}, s{S_B}")
    g.i(f"s_cselect_b32 s{S_A}, 0, s{S_A}")
    g.i(f"s_add_u32 s{S_IT}, s{S_IT}, 1")
    g.i(f"s_cmp_eq_u32 s{S_IT}, 8")
    g.i("s_cbranch_scc1 L_cp_last")
    g.i("s_waitcnt lgkmcnt(0)")
    q.q = []
    g.i("s_barrier")
    for r in range(5):
        g.i(f"v_add_u32 v{V_XA+r}, s{S_T0}, v{V_XA+r}")
    PW = g.opt.get('pwd')
    if PW:
        c0, kind = PW
        if kind == 'd':
            g.i(f"s_cmp_lg_u32 s{S_IT}, {c0}")
            g.i("s_cbranch_scc1 L_cp_nopw")
            g.i("v_and_b32 v6, 31, v0")
            g.i("v_lshlrev_b32 v6, 7, v6")
            g.i("v_lshrrev_b32 v7, 5, v0")
            g.i("v_lshl_add_u32 v6, v7, 17, v6")
            g.i(f"buffer_store_dword v{V_O[0]}, v6, s[{S_KV}:{S_KV+3}], s{S_G1} offen sc1")
        elif kind == 'f':
            g.i(f"s_cmp_lg_u32 s{S_IT}, {c0}")
            g.i("s_cbranch_scc1 L_cp_nopw")
            for k in range(8):
                g.i(f"buffer_store_dwordx4 v[{V_O[0]}:{V_O[0]+3}], v{V_L16}, s[{S_KV}:{S_KV+3}], s{S_G2 if k >= 4 else S_G1} offen offset:{1024*(k%4)} sc1")
        elif kind == 's':
            g.i(f"s_sub_u32 s{S_T1}, s{S_IT}, {c0}")
            g.i(f"s_cmp_ge_u32 s{S_T1}, 4")
            g.i("s_cbranch_scc1 L_cp_nopw")
            g.i(f"s_lshl_b32 s{S_T1}, s{S_T1}, 10")
            g.i(f"s_add_u32 s{S_T2}, s{S_T1}, s{S_G2}")
            g.i(f"s_add_u32 s{S_T1}, s{S_T1}, s{S_G1}")
            for so in (S_T1, S_T2):
                g.i(f"buffer_store_dwordx4 v[{V_O[0]}:{V_O[0]+3}], v{V_L16}, s[{S_KV}:{S_KV+3}], s{so} offen sc1")
        g.lab("L_cp_nopw")
    if PR > 0:
        g.i(f"s_cmp_lg_u32 s{S_IT}, {PR}")
        g.i("s_cbranch_scc1 L_cp_nopre")
        prer()
        g.lab("L_cp_nopre")
    step(1, 0)
    g.i("s_branch L_cp_loop")
    g.lab("L_cp_last")
    q.q = [(1, w) for w in ORDER]
    step(1, None)
    g.stamp(2)
    g.i(f"s_mov_b32 s{S_T1}, {hex(QSCALE)}")
    g.i(f"s_mov_b32 s{S_T2}, s{S_T1}")
    g.i("s_nop 5")
    KVS = g.opt.get('kvs', ' sc1')
    T = 204
    n = 0
    for i in range(2):
        A = V_ACC + 16 * (2 + i)
        for hd in range(2):
            for r in range(4):
                g.i(f"v_cvt_pk_bf16_f32 v{T+4*n+r}, v{A+8*hd+2*r}, v{A+8*hd+2*r+1}")
            g.i(f"ds_write_b128 v{KL}, {vr(T+4*n,4)} offset:{16384*hd+2048*i}")
            n += 1
    for i in range(2):
        A = V_ACC + 16 * (4 + i)
        for gr in range(2):
            for r in range(4):
                g.i(f"v_cvt_pk_bf16_f32 v{T+4*n+r}, v{A+8*gr+2*r}, v{A+8*gr+2*r+1}")
            g.i(f"ds_write_b128 v{VL}, {vr(T+4*n,4)} offset:{2048*i+512*gr}")
            n += 1
    g.i(f"s_cmp_lg_u32 s{S_PG}, 0")
    g.i("s_cbranch_scc1 L_cp_later")
    for n in range(8): g.i(kv_store(n))
    g.lab("L_cp_later")
    for i in range(2):
        A = V_ACC + 16 * i
        for r in range(8, 16, 2):
            g.i(f"v_pk_mul_f32 v[{A+r}:{A+r+1}], v[{A+r}:{A+r+1}], s[{S_T0+1}:{S_T0+2}]")
        for r in range(4):
            g.i(f"v_cvt_pk_bf16_f32 v{A+8+r}, v{A+8+2*r}, v{A+8+2*r+1}")
        g.i(f"ds_write_b128 v{QL}, {vr(A+8,4)} offset:{1024*i}")
    for i in range(2):
        A = V_ACC + 16 * i
        for r in range(0, 8, 2):
            g.i(f"v_pk_mul_f32 v[{A+r}:{A+r+1}], v[{A+r}:{A+r+1}], s[{S_T0+1}:{S_T0+2}]")
        for r in range(4):
            g.i(f"v_cvt_pk_bf16_f32 v{V_Q[i]+r}, v{A+2*r}, v{A+2*r+1}")
    g.i("s_waitcnt lgkmcnt(0)")
    barrier_unless_dry(g, "b8")

U = 8
S_OA, S_OB = S_M + 6, S_M + 7
S_MK = S_M + 5
S_KV2 = S_X
S_KO = [None, 4, 5, 6, 7, 12, 13, 14]
S_LM = [[49, 50], [51, 52]]
S_OW = 1
V_VB = 4

def kv_store(n):
    if n < 4: adr, so, off = KG, (S_G2 if n % 2 else S_G1), 2048 * (n // 2)
    else: adr, so, off = VG, S_G1, 2048 * ((n - 4) // 2) + 512 * (n % 2)
    return f"buffer_store_dwordx4 {vr(KVT+4*n,4)}, v{adr}, s[{S_KV}:{S_KV+3}], s{so} offen offset:{off} sc1"

def spin_mask(g, tag, load):
    g.i(f"s_mov_b32 s{S_T3}, 0")
    g.lab(f"L_spin_{tag}")
    g.i(load)
    g.i(f"s_add_u32 s{S_T3}, s{S_T3}, 1")
    g.i("s_waitcnt vmcnt(0)")
    g.i(f"v_cmp_ne_u32 vcc, 1, v{V_F}")
    g.i(f"s_cmp_ge_u32 s{S_T3}, {SPIN_MAX}")
    g.i(f"s_cbranch_scc1 L_olr_{tag}")
    g.i(f"s_and_b32 vcc_lo, vcc_lo, s{S_MK}")
    g.i(f"s_cbranch_scc1 L_spin_{tag}")

def attn_setup(g):
    g.i(f"s_add_u32 s{S_KV2}, s{S_KV}, 131072")
    g.i(f"s_addc_u32 s{S_KV2+1}, s{S_KV+1}, 0")
    g.i(f"s_mov_b32 s{S_KV2+2}, 131072")
    g.i(f"s_mov_b32 s{S_KV2+3}, 0x20000")
    g.i(f"s_lshl_b32 s{S_LM[0][0]}, s{S_WAVE}, 11")
    g.i(f"s_add_u32 s{S_LM[0][1]}, s{S_LM[0][0]}, 16384")
    g.i(f"s_add_u32 s{S_LM[1][0]}, s{S_LM[0][0]}, {RING}")
    g.i(f"s_add_u32 s{S_LM[1][1]}, s{S_LM[0][0]}, {RING+16384}")
    for i in range(1, 8):
        g.i(f"s_cmp_gt_u32 s{S_TB}, {i-1}")
        g.i(f"s_cselect_b32 s{S_T0}, {i-1}, {i}")
        if i == 1:
            g.i(f"s_lshl_b32 s{S_T3}, s{S_T0}, 2")
            g.i(f"s_lshl_b32 s{S_MK}, 15, s{S_T3}")
        g.i(f"s_lshl_b32 s{S_T0}, s{S_T0}, 14")
        g.i(f"s_add_u32 s{S_KO[i]}, s{S_T0}, s{S_LM[0][0]}")
    g.i(f"s_lshr_b32 s{S_PG}, s{S_TB}, 1")
    g.i(f"s_min_u32 s{S_PG}, s{S_PG}, 2")
    g.i(f"s_cmp_ge_u32 s{S_WAVE}, 4")
    g.i(f"s_cselect_b32 s{S_PG}, 3, s{S_PG}")
    g.i(f"s_and_b32 s{S_F}, s{S_HP}, 7")
    g.i(f"s_lshl_b32 s{S_T0}, s{S_F}, 7")
    g.i(f"s_lshl_b32 s55, s{S_WAVE}, 16")
    g.i(f"s_add_u32 s55, s55, s{S_T0}")
    g.i(f"s_lshl_b32 s{S_E}, s{S_WAVE}, 13")
    g.i(f"s_add_u32 s{S_E}, s{S_E}, {L_WO}")
    g.i(f"s_and_b32 s{S_T0}, s{S_WAVE}, 3")
    g.i(f"s_lshl_b32 s{S_T0}, s{S_T0}, 1")
    g.i(f"s_lshl_b32 s{S_T1}, s{S_TB}, 3")
    g.i(f"s_add_u32 s{S_T0}, s{S_T0}, s{S_T1}")
    g.i(f"s_lshl_b32 s{S_OA}, s{S_T0}, 15")
    g.i(f"s_lshr_b32 s{S_T1}, s{S_WAVE}, 2")
    g.i(f"s_lshl_b32 s{S_T2}, s{S_HP}, 1")
    g.i(f"s_add_u32 s{S_T1}, s{S_T1}, s{S_T2}")
    g.i(f"s_lshl_b32 s{S_T2}, s{S_T1}, 10")
    g.i(f"s_add_u32 s{S_OA}, s{S_OA}, s{S_T2}")
    g.i(f"s_add_u32 s{S_OB}, s{S_OA}, 32768")
    if True:
        g.i(f"s_lshr_b32 s{S_T0}, s{S_HP}, 3")
        g.i(f"s_lshl_b32 s{S_T0}, s{S_T0}, 2")
        g.i(f"s_and_b32 s{S_T1}, s{S_WAVE}, 3")
        g.i(f"s_add_u32 s{S_T0}, s{S_T0}, s{S_T1}")
        g.i(f"s_lshl_b32 s{S_T1}, s{S_TB}, 3")
        g.i(f"s_add_u32 s{S_T0}, s{S_T0}, s{S_T1}")
        g.i(f"s_lshl_b32 s{S_T0}, s{S_T0}, 1")
        g.i(f"s_lshr_b32 s{S_T1}, s{S_WAVE}, 2")
        g.i(f"s_add_u32 s{S_T0}, s{S_T0}, s{S_T1}")
        g.i(f"s_lshl_b32 s{S_OW}, s{S_T0}, 15")
        g.i(f"s_lshl_b32 s{S_T0}, s{S_BR}, 10")
        g.i(f"s_add_u32 s{S_OW}, s{S_OW}, s{S_T0}")
        g.i(f"s_lshl_b32 s{S_T0}, s{S_F}, 7")
        g.i(f"s_add_u32 s{S_OW}, s{S_OW}, s{S_T0}")

def attention(g):
    opt = g.opt
    g.lab("L_attn")
    g.stamp(3)
    g.i(f"ds_read_b128 {vr(V_K,4)}, v{V_KA}")
    g.i(f"ds_read_b128 {vr(V_V[0],4)}, v{V_VA}")
    g.i(f"ds_read_b128 {vr(V_V[0]+4,4)}, v{V_VA} offset:512")
    if opt.get('x_em'):
        g.i("s_mov_b32 s100, 0xffff"); g.i("s_mov_b32 s101, 0xffff")
    g.i("s_setprio 3")
    g.i("s_waitcnt lgkmcnt(2)")
    g.i(f"v_mfma_f32_32x32x16_bf16 {vr(V_S[0],16)}, {vr(V_K,4)}, {vr(V_Q[0],4)}, 0")
    dry_exit(g)
    g.i("s_nop 9")
    g.i("s_waitcnt lgkmcnt(0)")
    poll = f"buffer_load_dword v{V_F}, v{V_FA}, s[{S_FL}:{S_FL+3}], 0 offen sc1"
    side = []
    ev = {}
    def at(it, p, slot, *ins): ev.setdefault((it, p, slot), []).extend(ins)
    def kv(i, n):
        return f"buffer_load_dwordx4 v{V_L16}, {sr(S_KV2 if n >= 2 else S_KV, 4)}, s{S_KO[i]} offen offset:{1024*(n%2)}{opt.get('kvl', ' sc1')} lds"
    def check(tag, n):
        def f():
            if n is not None: g.i(f"s_waitcnt vmcnt({n})")
            g.i(f"v_cmp_ne_u32 vcc, 1, v{V_F}")
            g.i("s_nop 0")
            g.i(f"s_and_b32 vcc_lo, vcc_lo, s{S_MK}")
            g.i(f"s_cbranch_scc1 L_ol_{tag}")
            g.lab(f"L_olr_{tag}")
            side.append((tag, lambda: spin_mask(g, tag, poll)))
        return f
    def group(pg, tag, body):
        def f():
            g.i(f"s_cmp_lg_u32 s{S_PG}, {pg}")
            g.i(f"s_cbranch_scc1 L_pg_{tag}")
            body()
            g.lab(f"L_pg_{tag}")
        return f
    def flag():
        g.i(f"s_lshl_b32 s{S_T0}, s{S_TB}, 2")
        g.i(f"s_add_u32 s{S_T0}, s{S_T0}, s{S_WAVE}")
        g.i(f"s_lshl_b64 exec, 1, s{S_T0}")
        g.i("v_mov_b32 v6, 1")
        g.i(f"buffer_store_dword v6, v{V_FA}, s[{S_FL}:{S_FL+3}], 0 offen sc1")
        g.i("s_mov_b64 exec, -1")
    def stores(it, p0, pg):
        for k, (a_, b_) in enumerate(((0, 3), (3, 6), (6, 8))):
            at(it, p0 + k, 'p1', group(pg, f"s{pg}{k}", lambda a_=a_, b_=b_: [g.i(kv_store(n)) for n in range(a_, b_)]))
    def burst(i, it=None, p=None, slot=None):
        sl = i % 2
        if not opt.get('spread', 0):
            return [f"s_mov_b32 m0, s{S_LM[sl][0]}", "s_nop 0", kv(i, 0), kv(i, 1), f"s_mov_b32 m0, s{S_LM[sl][1]}", "s_nop 0", kv(i, 2), kv(i, 3)]
        seq = [(q, k) for q in range(p, 14) for k in ('p2', 'qk', 'p1')]
        seq = seq[seq.index((p, slot)) + 1:]
        at(it, *seq[0], kv(i, 1), f"s_mov_b32 m0, s{S_LM[sl][1]}")
        at(it, *seq[1], kv(i, 2))
        at(it, *seq[2], kv(i, 3))
        return [f"s_mov_b32 m0, s{S_LM[sl][0]}", "s_nop 0", kv(i, 0)]
    def count():
        g.i(f"s_cmp_lg_u32 s{S_WAVE}, 7")
        g.i("s_cbranch_scc1 L_at_nocnt")
        g.i(f"s_lshl_b32 s{S_T0}, s{S_BR}, 4")
        g.i(f"s_add_u32 s{S_T0}, s{S_T0}, s{S_HP}")
        g.i(f"s_lshl_b32 s{S_T0}, s{S_T0}, 3")
        g.i("s_mov_b64 exec, 1")
        g.i(f"v_mov_b32 v6, s{S_T0}")
        g.i("v_mov_b32 v7, 1")
        g.i(f"buffer_atomic_add v7, v6, s[{S_DBG}:{S_DBG+3}], 0 offen offset:4 sc1")
        g.i("s_mov_b64 exec, -1")
        g.lab("L_at_nocnt")
    pp, pi0, pc0, ps1, pi1, pc1, pi3, pc3 = opt.get('ev', (1, 8, 10, 3, 7, 9, 7, 9))
    at(0, pp, 'qk', group(0, "f0", lambda: (g.st('pub_pre'), g.i("s_waitcnt vmcnt(0)"), g.st('pub_ack'), flag())))
    stores(0, ps1, 1)
    at(0, pi0, 'qk', poll)
    at(0, pc0, 'qk', "s_waitcnt vmcnt(0)", group(1, "f1", flag), check("kv0", None), lambda: g.st('chk_ok'), *burst(1, 0, pc0, 'qk'),
       f"s_mov_b32 s{S_MK}, 0xffff")
    at(1, pi1, 'qk', poll)
    at(1, pc1, 'qk', check("kv1", 0), *burst(2, 1, pc1, 'qk'), f"s_mov_b32 s{S_MK}, -1")
    stores(1, pc1 + 1 + opt.get('spread', 0), 2)
    at(2, 15, 'qk', group(2, "f2", flag))
    at(3, pi3, 'qk', poll)
    at(3, pc3, 'p2', check("kv2", 0), *burst(4, 3, pc3, 'p2'))
    late = {i: 0 for i in range(8)}
    dp = opt.get('dma', (1, 3, 5, 7))
    for i in (2, 4, 5, 6):
        sl = (i + 1) % 2
        at(i, dp[0] - 1, 'p2x', f"s_mov_b32 m0, s{S_LM[sl][0]}")
        at(i, dp[0], 'qk', kv(i + 1, 0))
        at(i, dp[1], 'qk', kv(i + 1, 1))
        at(i, dp[2], 'p2', f"s_mov_b32 m0, s{S_LM[sl][1]}")
        at(i, dp[2], 'qk', kv(i + 1, 2))
        at(i, dp[3], 'qk', kv(i + 1, 3))
    wp = opt.get('wop', (11, 13))
    for i in range(1, 5):
        for k, p in enumerate(wp):
            at(i, p, 'p2', f"s_add_u32 m0, s{S_E}, {(2*(i-1)+k)*1024}")
            at(i, p, 'qk', f"buffer_load_dwordx4 v{V_WOA}, s[{S_WO}:{S_WO+3}], s55 offen lds")
            at(i, p, 'p1', "s_add_u32 s55, s55, 8192")
        late[i] += 2
    for k, so in enumerate((S_OA, S_OB)):
        at(5, 9 + 2 * k, 'qk', f"buffer_store_dwordx4 v[252:255], v{V_L16}, s[{S_O}:{S_O+3}], s{so} offen sc1")
    late[5] += 2
    if opt.get('opw', 2):
        i = opt.get('opw', 2)
        at(i, 12, 'p1', f"buffer_store_dwordx4 v[252:255], v{V_OW}, s[{S_OUT}:{S_OUT+3}], s{S_OW} offen sc1", f"s_add_u32 s{S_T0}, s{S_OW}, 16384")
        at(i, 13, 'p1', f"buffer_store_dwordx4 v[252:255], v{V_OW}, s[{S_OUT}:{S_OUT+3}], s{S_T0} offen sc1")
        late[i] += 2
    if opt.get('opr'):
        at(7, 3, 'qk', f"buffer_load_dwordx4 v[236:239], v{V_OW}, s[{S_OUT}:{S_OUT+3}], s{S_OW} offen", f"s_add_u32 s{S_T0}, s{S_OW}, 16384")
        at(7, 5, 'qk', f"buffer_load_dwordx4 v[236:239], v{V_OW}, s[{S_OUT}:{S_OUT+3}], s{S_T0} offen")
    at(7, 1, 'qk', count)
    if opt.get('x_late0'): late = {i: 0 for i in range(8)}
    prio = opt.get('prio', {0: 3, 5: 2, 10: 1, 13: 0})
    for i in range(8):
        for p, v in prio.items():
            ii, q = (i, p - 1) if p else (i - 1, 15)
            if ii >= 0: at(ii, q, 'p1', f"s_setprio {v}")
    def emit(it, p, slot):
        for x in ev.pop((it, p, slot), []):
            x() if callable(x) else g.i(x)
    p2, pq, p1 = opt.get('pos', (1, 5, 10))
    for it in range(8):
        if opt.get('itst'):
            g.i("s_memtime s[98:99]")
            g.i("s_memrealtime s[100:101]")
            g.i("s_waitcnt lgkmcnt(0)")
            g.i(f"v_writelane_b32 v250, s98, {it}")
            g.i(f"v_writelane_b32 v250, s100, {it+9}") if it < 7 else None
        for p in range(2 * U):
            b, t = p % 2, p // 2
            S, So = V_S[b], V_S[1 - b]
            nt = (t + 1) % U
            sl = (it + (t == U - 1)) % 2
            VA = V_VB if sl else V_VA
            last = it == 7 and t == U - 1
            skip = last or (opt.get('x_half') and t % 2 == 0)
            for e in range(16):
                g.i(f"v_exp_f32 v{S+e}, v{S+e}")
                if e == p2:
                    tp = (p - 1) // 2
                    if it or p:
                        g.i(f"v_smfmac_f32_32x32x32_bf16 {vr(V_O[1-b],16)}, {vr(V_V[tp%2]+4,4)}, {vr(So+8,8)}, v{V_IDX}")
                    emit(it, p, 'p2x')
                    if b == 0:
                        if t == U - 1 and it < 7:
                            if it == 1:
                                g.i(f"s_waitcnt vmcnt({late[it] + 8})")
                                g.i(f"s_cmp_eq_u32 s{S_PG}, 2")
                                g.i("s_cbranch_scc1 L_w8")
                                g.i(f"s_waitcnt vmcnt({late[it]})")
                                g.lab("L_w8")
                            else: g.i(f"s_waitcnt vmcnt({late[it]})")
                            if it == 0: g.st('chk1_ok')
                            g.i("s_barrier")
                        if not skip:
                            xm = opt.get('x_em') and (it or t)
                            if xm: g.i("s_mov_b64 exec, s[100:101]")
                            g.i(f"ds_read_b128 {vr(V_V[(t+1)%2],4)}, v{VA} offset:{nt*2048}")
                            if xm: g.i("s_mov_b64 exec, -1")
                    elif not last:
                        g.i("s_waitcnt lgkmcnt(1)")
                    emit(it, p, 'p2')
                if e == pq:
                    if not (last and b):
                        g.i(f"v_mfma_f32_32x32x16_bf16 {vr(So,16)}, {vr(V_K,4)}, {vr(V_Q[1-b],4)}, 0")
                    if b == 0 and not skip:
                        g.i(f"ds_read_b128 {vr(V_K,4)}, v{V_KA} offset:{sl*RING+nt*2048}")
                    emit(it, p, 'qk')
                if e == p1:
                    g.i(f"v_smfmac_f32_32x32x32_bf16 {vr(V_O[b],16)}, {vr(V_V[t%2],4)}, {vr(S,8)}, v{V_IDX}")
                    if b == 0 and last: pass
                    elif b == 0 and skip: pass
                    elif b == 0:
                        xm = opt.get('x_em') and (it or t)
                        if xm: g.i("s_mov_b64 exec, s[100:101]")
                        g.i(f"ds_read_b128 {vr(V_V[(t+1)%2]+4,4)}, v{VA} offset:{nt*2048+512}")
                        if xm: g.i("s_mov_b64 exec, -1")
                    elif not last:
                        g.i("s_waitcnt lgkmcnt(0)")
                    emit(it, p, 'p1')
    assert not ev, ev
    g.side = side
    g.lab("L_at_done")
    g.i("s_nop 1")
    g.i(f"v_smfmac_f32_32x32x32_bf16 {vr(V_O[1],16)}, {vr(V_V[1]+4,4)}, {vr(V_S[1]+8,8)}, v{V_IDX}")
    g.tail_pad = True
    g.stamp(4)
    if opt.get('itst'):
        g.i("s_memtime s[98:99]")
        g.i("s_waitcnt lgkmcnt(0)")
        g.i(f"v_writelane_b32 v250, s98, 8")
    g.i(f"s_mov_b32 s{S_T0}, 0x2b800000")
    g.i(f"s_mov_b32 s{S_T1}, 0x53800000")
    g.i(f"s_mov_b32 s{S_T2}, 0x7f800000")
    for q in range(2):
        O = V_O[q]
        g.i(f"v_maximum3_f32 v6, abs(v{O}), abs(v{O+1}), abs(v{O+2})")
        g.i(f"v_maximum3_f32 v7, abs(v{O+3}), abs(v{O+4}), abs(v{O+5})")
        g.i(f"v_maximum3_f32 v6, v6, abs(v{O+6}), abs(v{O+7})")
        g.i(f"v_maximum3_f32 v6, v6, v7, v7")
        g.i(f"v_cmp_nle_f32 s[{S_M}:{S_M+1}], s{S_T0}, v{O+8}")
        g.i(f"v_cmp_nge_f32 s[{S_M+2}:{S_M+3}], s{S_T1}, v{O+8}")
        g.i(f"v_cmp_ngt_f32 vcc, s{S_T2}, v6")
        g.i(f"v_rcp_f32 v{V_S[0]+2*q}, v{O+8}")
        g.i(f"s_or_b64 s[{S_M}:{S_M+1}], s[{S_M}:{S_M+1}], s[{S_M+2}:{S_M+3}]")
        g.i(f"s_or_b64 s[{S_M}:{S_M+1}], s[{S_M}:{S_M+1}], vcc")
        g.i("s_branch L_fallback" if opt.get('force_fallback') else "s_cbranch_scc1 L_fallback")
    g.lab("L_at_store")
    for q in range(2):
        O = V_O[q]
        for r in range(0, 8, 2):
            g.i(f"v_pk_mul_f32 v[{O+r}:{O+r+1}], v[{O+r}:{O+r+1}], v[{V_S[0]+2*q}:{V_S[0]+2*q+1}] op_sel_hi:[1,0]")
        for r in range(4):
            g.i(f"v_cvt_pk_bf16_f32 v{O+r}, v{O+2*r}, v{O+2*r+1}")
        g.i(f"buffer_store_dwordx4 {vr(O,4)}, v{V_L16}, s[{S_O}:{S_O+3}], s{S_OB if q else S_OA} offen sc1")

P_WO = 100
P_OF = 8
def outproj(g):
    opt = g.opt
    A0, A1 = 228, 72
    WA0, WA1, RA, OA = 244, 245, 246, 247
    g.i(f"s_lshr_b32 s{S_E}, s{S_WAVE}, 2")
    g.i(f"s_lshl_b32 s{S_T0}, s{S_E}, 15")
    g.i(f"s_add_u32 s{S_T0}, s{S_T0}, {L_WO}")
    g.i("v_lshrrev_b32 v6, 5, v0")
    g.i("v_bfe_u32 v7, v0, 2, 2")
    g.i("v_lshl_add_u32 v6, v6, 2, v7")
    g.i(f"v_lshl_add_u32 v6, v6, 7, s{S_T0}")
    g.i("v_bfe_u32 v7, v0, 3, 2")
    g.i("v_and_b32 v2, 1, v7")
    g.i("v_lshl_add_u32 v6, v2, 6, v6")
    g.i("v_lshrrev_b32 v7, 1, v7")
    g.i("v_lshl_add_u32 v6, v7, 5, v6")
    g.i("v_and_b32 v7, 3, v0")
    g.i(f"v_lshl_add_u32 v6, v7, 3, v6")
    g.i(f"s_lshl_b32 s{S_T0}, s{S_E}, 6")
    g.i(f"v_xor_b32 v{WA0}, s{S_T0}, v6")
    g.i(f"v_xor_b32 v{WA1}, 64, v{WA0}")
    n = 0
    def wo_reads(s0, s1):
        for s in range(s0, s1):
            for f in range(2):
                for i in range(2):
                    g.i(f"ds_read_b64_tr_b16 {vr(P_WO+8*s+4*f+2*i,2)}, v{WA1 if f else WA0} offset:{s*2048+i*1024}")
    g.stamp(5)
    g.i(f"s_lshl_b32 s{S_T0}, s{S_BR}, 7")
    g.i("v_and_b32 v6, 15, v0")
    g.i(f"v_lshl_add_u32 v4, v6, 3, s{S_T0}")
    g.i(f"buffer_load_dword v5, v4, s[{S_DBG}:{S_DBG+3}], 0 offen offset:4 sc1")
    for s0 in range(0, 16, 3):
        if s0: g.i("s_waitcnt lgkmcnt(2)")
        wo_reads(s0, min(s0 + 3, 16))
    g.i(f"s_lshr_b32 s{S_T0}, s{S_HP}, 3")
    g.i(f"s_lshl_b32 s{S_T0}, s{S_T0}, 2")
    g.i(f"s_and_b32 s{S_T1}, s{S_WAVE}, 3")
    g.i(f"s_add_u32 s{S_A}, s{S_T0}, s{S_T1}")
    g.i(f"s_lshl_b32 s{S_T0}, s{S_TB}, 3")
    g.i(f"s_add_u32 s{S_A}, s{S_A}, s{S_T0}")
    g.i(f"s_lshl_b32 s{S_B}, s{S_A}, 15")
    g.i(f"s_lshl_b32 s{S_T0}, s{S_E}, 14")
    g.i(f"s_add_u32 s{S_B}, s{S_B}, s{S_T0}")
    g.i(f"s_add_u32 s{S_C}, s{S_B}, 4096")
    g.i(f"s_add_u32 s{S_D}, s{S_B}, 8192")
    g.i(f"s_add_u32 s{S_IT}, s{S_B}, 12288")
    g.i(f"v_lshlrev_b32 v2, 10, v6")
    g.i(f"v_add_u32 v2, 1020, v2")
    g.i(f"s_lshl_b32 s{S_T0}, s{S_WAVE}, 12")
    g.i(f"v_add_u32 v{RA}, s{S_T0}, v{V_L16}")
    if not opt.get('fl', 1):
        g.i("v_and_b32 v6, 31, v0")
        g.i("v_lshlrev_b32 v6, 11, v6")
        g.i("v_lshrrev_b32 v7, 5, v0")
        g.i(f"v_lshl_add_u32 v{OA}, v7, 4, v6")
        g.i(f"s_lshl_b32 s{S_A}, s{S_A}, 16")
        g.i(f"s_lshl_b32 s{S_T0}, s{S_BR}, 10")
        g.i(f"s_add_u32 s{S_A}, s{S_A}, s{S_T0}")
        g.i(f"s_lshl_b32 s{S_T0}, s{S_F}, 7")
        g.i(f"s_add_u32 s{S_A}, s{S_A}, s{S_T0}")
        g.i(f"s_lshl_b32 s{S_T0}, s{S_E}, 6")
        g.i(f"s_add_u32 s{S_A}, s{S_A}, s{S_T0}")
    if opt.get('fl', 1):
        g.i(f"s_and_b32 s{S_T0}, s{S_WAVE}, 3")
        g.i(f"s_lshl_b32 s{S_T0}, s{S_T0}, 12")
        g.i(f"s_add_u32 s{S_T0}, s{S_T0}, {RING}")
        g.i("v_and_b32 v6, 31, v0")
        g.i(f"v_lshl_add_u32 v6, v6, 7, s{S_T0}")
        g.i("v_lshrrev_b32 v7, 5, v0")
        g.i(f"v_lshl_add_u32 v7, s{S_E}, 2, v7")
        g.i("v_and_b32 v91, 7, v0")
        g.i("v_xor_b32 v7, v7, v91")
        g.i("v_lshl_add_u32 v88, v7, 4, v6")
        g.i("v_xor_b32 v89, 32, v88")
        g.i("v_lshrrev_b32 v6, 3, v0")
        g.i("v_xor_b32 v7, v6, v91")
        g.i(f"v_lshl_add_u32 v6, v6, 7, s{S_T0}")
        g.i("v_lshl_add_u32 v6, v7, 4, v6")
        g.i(f"v_lshl_add_u32 v90, s{S_E}, 11, v6")
    g.i(f"s_mov_b32 s{S_T3}, 0")
    probe = f"buffer_load_dword v3, v2, s[{S_O}:{S_O+3}], s{S_B} offen sc1"
    g.lab("L_spin_c")
    g.i("s_waitcnt vmcnt(0)")
    g.i("v_cmp_gt_u32 vcc, 8, v5")
    g.i(f"s_add_u32 s{S_T3}, s{S_T3}, 1")
    g.i("s_cbranch_vccz L_spin_o")
    g.i(f"buffer_load_dword v5, v4, s[{S_DBG}:{S_DBG+3}], 0 offen offset:4 sc1")
    g.i(f"s_cmp_lt_u32 s{S_T3}, {SPIN_MAX}")
    g.i("s_cbranch_scc1 L_spin_c")
    g.lab("L_spin_o")
    if opt.get('probe', 1):
        g.i(probe)
        g.i(f"s_add_u32 s{S_T3}, s{S_T3}, 1")
        g.i(f"s_cmp_ge_u32 s{S_T3}, {SPIN_MAX}")
        g.i("s_cbranch_scc1 L_spun_o")
        g.i("s_waitcnt vmcnt(0)")
        g.i("v_cmp_eq_u32 vcc, -1, v3")
        g.i("s_cbranch_vccnz L_spin_o")
    else:
        g.i(f"s_add_u32 s{S_T3}, s{S_T3}, 1")
    g.lab("L_spun_o")
    g.stamp(6)
    for s in range(16):
        so = (S_B, S_C, S_D, S_IT)[s // 4]
        g.i(f"buffer_load_dwordx4 {vr(P_OF+4*s,4)}, v{V_L16}, s[{S_O}:{S_O+3}], s{so} offen offset:{1024*(s%4)} sc1")
    g.i("v_mov_b32 v3, 0")
    g.i("s_waitcnt lgkmcnt(0)")
    for s in range(16):
        g.i(f"s_waitcnt vmcnt({15-s})")
        for f, A in ((1, A1), (0, A0)):
            g.i(f"v_mfma_f32_32x32x16_bf16 {vr(A,16)}, {vr(P_WO+8*s+4*f,4)}, {vr(P_OF+4*s,4)}, {vr(A,16) if s else 0}")
            g.i(f"v_max3_u32 v3, v3, v{P_OF+4*s+2*f}, v{P_OF+4*s+2*f+1}")
    g.i("v_cmp_eq_u32 vcc, -1, v3")
    g.i(f"s_cmp_ge_u32 s{S_T3}, {SPIN_MAX}")
    g.i("s_cbranch_scc1 L_op_go")
    g.i("s_cbranch_vccnz L_spin_o")
    g.lab("L_op_go")
    g.i("s_nop 5")
    for r in range(4):
        g.i(f"ds_write_b128 v{RA}, {vr(A1+4*r,4)} offset:{1024*r}")
    g.i("s_waitcnt lgkmcnt(0)")
    g.i(f"v_xor_b32 v{RA}, 16384, v{RA}")
    barrier_unless_dry(g, "b9")
    for r in range(4):
        g.i(f"ds_read_b128 {vr(P_OF+4*r,4)}, v{RA} offset:{1024*r}")
    for r in range(4):
        g.i(f"s_waitcnt lgkmcnt({3-r})")
        for k in range(4):
            g.i(f"v_add_f32 v{A0+4*r+k}, v{A0+4*r+k}, v{P_OF+4*r+k}")
        for k in range(2):
            g.i(f"v_cvt_pk_bf16_f32 v{24+2*r+k}, v{A0+4*r+2*k}, v{A0+4*r+2*k+1}")
        if r % 2:
            g.i("s_nop 1")
            g.i(f"v_permlane32_swap_b32 v{24+2*r-2}, v{24+2*r}")
            g.i(f"v_permlane32_swap_b32 v{24+2*r-1}, v{24+2*r+1}")
            if opt.get('fl', 1):
                g.i(f"ds_write_b128 v{88+r//2}, {vr(24+2*r-2,4)}")
            else:
                g.i(f"buffer_store_dwordx4 {vr(24+2*r-2,4)}, v{OA}, s[{S_OUT}:{S_OUT+3}], s{S_A} offen offset:{16*(r-1)}{opt.get('outs','')}")
    if opt.get('fl', 1):
        g.i(f"s_add_u32 s{S_T0}, s{S_OW}, 16384")
        g.i("s_waitcnt lgkmcnt(0)")
        barrier_unless_dry(g, "b10")
        g.i("ds_read_b128 v[24:27], v90")
        g.i("ds_read_b128 v[28:31], v90 offset:1024")
        g.i("s_waitcnt lgkmcnt(1)")
        g.i(f"buffer_store_dwordx4 v[24:27], v{V_OW}, s[{S_OUT}:{S_OUT+3}], s{S_OW} offen{opt.get('outs','')}")
        g.i("s_waitcnt lgkmcnt(0)")
        g.i(f"buffer_store_dwordx4 v[28:31], v{V_OW}, s[{S_OUT}:{S_OUT+3}], s{S_T0} offen{opt.get('outs','')}")
    dry_exit(g)
    if g.diag:
        g.i("s_waitcnt vmcnt(0)")
        g.stamp(7)
        g.i("s_waitcnt lgkmcnt(0)")
        if g.diag == 3:
            a_, b_, K = opt['leak']
            if opt.get('leakw'):
                g.i(f"s_cmp_lt_u32 s{S_WAVE}, 4")
                g.i("s_cbranch_scc1 L_end")
            elif a_ in (1, 2) or b_ in (1, 2):
                g.i(f"s_cmp_ge_u32 s{S_WAVE}, 4")
                g.i("s_cbranch_scc1 L_end")
            if opt.get('leakc'):
                g.i(f"s_sub_u32 s{S_T0}, s{64+4*b_}, s{64+4*a_}")
                g.i(f"s_lshr_b32 s{S_T0}, s{S_T0}, 4")
            else:
                g.i(f"s_sub_u32 s{S_T0}, s{66+4*b_}, s{66+4*a_}")
            g.i(f"s_mul_i32 s{S_T0}, s{S_T0}, {K}")
            g.lab("L_leak")
            g.i("s_memrealtime s[98:99]")
            g.i("s_waitcnt lgkmcnt(0)")
            g.i(f"s_sub_u32 s{S_T1}, s98, s{66+4*7}")
            g.i(f"s_cmp_lt_u32 s{S_T1}, s{S_T0}")
            g.i("s_cbranch_scc1 L_leak")
            g.i("s_endpgm")
        if g.diag == 2:
            g.i(f"s_cmp_ge_u32 s{S_WAVE}, 4")
            g.i("s_cbranch_scc1 L_end")
            g.i("s_mov_b64 exec, 1")
            for k in range(1, 8):
                g.i(f"s_sub_u32 s{S_T0}, s{66+4*k}, s66")
                g.i(f"v_mov_b32 v6, s{S_T0}")
                g.i(f"v_mov_b32 v7, {8*k+4}")
                g.i(f"buffer_atomic_umax v6, v7, s[{S_DBG}:{S_DBG+3}], 0 offen sc1")
            g.i(f"s_sub_u32 s{S_T0}, s{64+4*4}, s{64+4*3}")
            g.i(f"v_mov_b32 v6, s{S_T0}")
            g.i(f"v_mov_b32 v7, 4")
            g.i(f"buffer_atomic_umax v6, v7, s[{S_DBG}:{S_DBG+3}], 0 offen sc1")
            g.i("s_endpgm")
        g.i(f"s_lshl_b32 s{S_T0}, s2, 3")
        g.i(f"s_add_u32 s{S_T0}, s{S_T0}, s{S_WAVE}")
        g.i(f"s_lshl_b32 s{S_T0}, s{S_T0}, 7")
        g.i(f"s_add_u32 s{S_T0}, s{S_T0}, {WS_STAMP}")
        srd(g.a, S_X, 96, 128, f"s{S_T0}")
        for k in range(32):
            g.i(f"v_mov_b32 v{36+k}, s{64+k}")
        g.i("v_mov_b32 v6, 0")
        for k in range(8):
            g.i(f"buffer_store_dwordx4 {vr(36+4*k,4)}, v6, s[{S_X}:{S_X+3}], 0 offen offset:{16*k}")
        if opt.get('itst'):
            g.i(f"s_add_u32 s{S_T0}, s{S_T0}, {1<<20}")
            srd(g.a, S_X, 96, 64, f"s{S_T0}")
            g.i("v_lshlrev_b32 v6, 2, v0")
            g.i(f"buffer_store_dword v250, v6, s[{S_X}:{S_X+3}], 0 offen")
    g.lab("L_end")
    g.i("s_endpgm")

def fallback(g):
    C = [100, 116]; M = [132, 133]; GV = 134
    g.lab("L_fallback")
    g.i(f"s_lshr_b32 s{S_T0}, s{S_WAVE}, 2")
    g.i(f"s_lshl_b32 s{S_T0}, s{S_T0}, 17")
    g.i(f"v_mov_b32 v{M[0]}, 0xff800000")
    g.i(f"v_mov_b32 v{M[1]}, 0xff800000")
    g.i(f"s_mov_b32 s{S_T1}, s{S_T0}")
    g.i(f"s_add_u32 s{S_T2}, s{S_T0}, 131072")
    g.lab("L_fb_max")
    g.i(f"buffer_load_dwordx4 {vr(V_K,4)}, v{V_L16}, s[{S_KV}:{S_KV+3}], s{S_T1} offen sc1")
    g.i(f"s_add_u32 s{S_T1}, s{S_T1}, 2048")
    g.i("s_waitcnt vmcnt(0)")
    for q in range(2):
        g.i(f"v_mfma_f32_32x32x16_bf16 {vr(V_S[q],16)}, {vr(V_K,4)}, {vr(V_Q[q],4)}, 0")
    g.i("s_nop 15")
    for q in range(2):
        for r in range(0, 16, 2):
            g.i(f"v_max3_f32 v{M[q]}, v{M[q]}, v{V_S[q]+r}, v{V_S[q]+r+1}")
    g.i(f"s_cmp_lt_u32 s{S_T1}, s{S_T2}")
    g.i("s_cbranch_scc1 L_fb_max")
    for q in range(2):
        g.i(f"v_mov_b32 v6, v{M[q]}")
        g.i(f"v_mov_b32 v7, v{M[q]}")
        g.i("s_nop 1")
        g.i("v_permlane32_swap_b32 v6, v7")
        g.i("s_nop 1")
        g.i("v_max_f32 v6, v6, v7")
        for r in range(16):
            g.i(f"v_sub_f32 v{C[q]+r}, 0, v6")
            g.i(f"v_mov_b32 v{V_O[q]+r}, 0")
    g.i("v_and_b32 v6, 15, v0")
    g.i("v_lshlrev_b32 v6, 4, v6")
    g.i("v_lshrrev_b32 v7, 5, v0")
    g.i(f"v_lshl_add_u32 v{GV}, v7, 8, v6")
    for r in range(8):
        g.i(f"v_mov_b32 v{V_V[0]+r}, 0x3f803f80")
    g.i(f"s_mov_b32 s{S_T1}, s{S_T0}")
    g.i(f"s_mov_b32 s{S_M}, 0xffff")
    g.i(f"s_mov_b32 s{S_M+1}, 0xffff")
    g.lab("L_fb_pv")
    g.i(f"buffer_load_dwordx4 {vr(V_K,4)}, v{V_L16}, s[{S_KV}:{S_KV+3}], s{S_T1} offen sc1")
    g.i(f"s_mov_b64 exec, s[{S_M}:{S_M+1}]")
    g.i(f"buffer_load_dwordx4 {vr(V_V[0],4)}, v{GV}, s[{S_KV}:{S_KV+3}], s{S_T1} offen offset:1024 sc1")
    g.i(f"buffer_load_dwordx4 {vr(V_V[0]+4,4)}, v{GV}, s[{S_KV}:{S_KV+3}], s{S_T1} offen offset:1536 sc1")
    g.i("s_mov_b64 exec, -1")
    g.i(f"s_add_u32 s{S_T1}, s{S_T1}, 2048")
    g.i("s_waitcnt vmcnt(0)")
    for q in range(2):
        g.i(f"v_mfma_f32_32x32x16_bf16 {vr(V_S[q],16)}, {vr(V_K,4)}, {vr(V_Q[q],4)}, {vr(C[q],16)}")
    g.i("s_nop 15")
    for q in range(2):
        for r in range(16):
            g.i(f"v_exp_f32 v{V_S[q]+r}, v{V_S[q]+r}")
    g.i("s_nop 3")
    for q in range(2):
        for h in range(2):
            g.i(f"v_smfmac_f32_32x32x32_bf16 {vr(V_O[q],16)}, {vr(V_V[0]+4*h,4)}, {vr(V_S[q]+8*h,8)}, v{V_IDX}")
    g.i("s_nop 15")
    g.i(f"s_cmp_lt_u32 s{S_T1}, s{S_T2}")
    g.i("s_cbranch_scc1 L_fb_pv")
    for q in range(2):
        g.i(f"v_rcp_f32 v{V_S[0]+2*q}, v{V_O[q]+8}")
    g.i("s_nop 1")
    g.i("s_branch L_at_store")

HEADER = open('cdna_kernels/' + NAME + '.s.ref').read().split('; Override launch')[0]

def generate(opt={}):
    global WS_KV, WS_O, WS_FLAG
    off = opt.get('wsoff', 0) << 20
    WS_KV, WS_O, WS_FLAG = (4 << 20) + off, (12 << 20) + off, (16 << 20) + off
    g = G(opt)
    name = NAME + "_kernel"
    g.a(HEADER.rstrip())
    g.a(f"; @launch grid=(256,1,1) block=(512,1,1) lds={LDS_TOTAL}")
    g.a('.amdgcn_target "amdgcn-amd-amdhsa--gfx950"')
    entry(g, name)
    if opt.get('lfirst', 1): loader(g)
    compute(g)
    attention(g)
    outproj(g)
    if not opt.get('lfirst', 1): loader(g)
    g.lab("L_code_end")
    for tag, body in g.side:
        g.lab(f"L_ol_{tag}")
        body()
        g.i(f"s_branch L_olr_{tag}")
    fallback(g)
    kernel_desc(g.a, name, NVGPR, 256, 102)
    return g.a.text()

if __name__ == "__main__":
    import sys
    opt = eval(sys.argv[2]) if len(sys.argv) > 2 else {}
    open(sys.argv[1], 'w').write(generate(opt))
```

```python
import math, struct
from common import *

WS_FLAG = 16 << 20
SLOT = 45056; SLOT_W = 32768
RING = 32768
L_WO = 65536
L_CONST = 135168
L_QX = 155648
LDS_TOTAL = 163840
S_X, S_W, S_WO, S_KV, S_O, S_FL, S_DBG, S_OUT = 8, 12, 16, 20, 24, 28, 32, 36
S_WAVE, S_BR, S_HP, S_TB, S_IT, S_T0, S_T1, S_T2, S_T3 = 40, 41, 42, 43, 44, 45, 46, 47, 48
S_A, S_B, S_C, S_D, S_E, S_F = 49, 50, 51, 52, 53, 54
S_G1, S_G2, S_PG = 58, 59, 60
KG, KL, VG, VL, QL, KVT = 244, 245, 247, 248, 249, 204
S_M = 56
V_L16, V_KA, V_VA, V_VX, V_IDX, V_T0, V_T1 = 1, 2, 3, 4, 5, 6, 7
V_Q = [8, 12]; V_K = 16; V_V = [20, 28]; V_S = [36, 52]; V_O = [68, 84]
V_F = 241
V_FA = 242
V_OW = 251
V_CA, V_PA = 248, 249
V_WOA = 243
V_ACC = 100
V_FR = [196, 216]
V_XA = 236; V_WA = 240
NVGPR = 256
QSCALE = struct.unpack('<I', struct.pack('<f', 0.25 * math.log2(math.e)))[0]
SPIN_MAX = 1 << 20
S_DRY = 3

class G:
    def __init__(self, opt):
        self.a = Asm(); self.opt = opt; self.diag = opt.get('diag', 0)
    def i(self, s): self.a.i(s)
    def lab(self, s): self.a.label(s)
    def st(self, name):
        m = self.opt.get('st', {})
        if name in m: self.stamp(m[name], True)
    def stamp(self, k, forced=False):
        if k in self.opt.get('st', {}).values() and not forced: return
        if self.diag:
            self.i(f"s_memtime s[{64+4*k}:{65+4*k}]")
            self.i(f"s_memrealtime s[{66+4*k}:{67+4*k}]")

def dry_exit(g, label="L_dry_ret"):
    if g.opt.get('dry', 1):
        g.i(f"s_cmp_lg_u32 s{S_DRY}, 0")
        g.i(f"s_cbranch_scc1 {label}")

def barrier_unless_dry(g, tag):
    dry_exit(g, f"L_nb_{tag}")
    g.i("s_barrier")
    g.lab(f"L_nb_{tag}")

def spin(g, tag, load, want, nlanes_mask=None):
    g.i(f"s_mov_b32 s{S_T3}, 0")
    g.lab(f"L_spin_{tag}")
    g.i(load)
    g.i(f"s_add_u32 s{S_T3}, s{S_T3}, 1")
    g.i("s_waitcnt vmcnt(0)")
    g.i(f"v_cmp_{'gt' if want > 1 else 'ne'}_u32 vcc, {want}, v{V_F}")
    g.i(f"s_cmp_ge_u32 s{S_T3}, {SPIN_MAX}")
    g.i(f"s_cbranch_scc1 L_spun_{tag}")
    g.i(f"s_cbranch_vccnz L_spin_{tag}")
    g.lab(f"L_spun_{tag}")

def entry(g, name):
    a = g.a
    kernel_head(a, name)
    PF = g.opt.get('cpf', 4)
    if PF in (2, 3):
        g.i("s_getpc_b64 s[16:17]")
    if PF == 1:
        g.i("s_getpc_b64 s[8:9]")
        g.i("v_lshlrev_b32 v6, 7, v0")
        g.i("s_mov_b32 s10, L_code_end-" + name + "-4")
        g.i("s_mov_b32 s11, 0x20000")
    if PF == 4:
        g.i("s_getpc_b64 s[8:9]")
        g.i("v_lshlrev_b32 v6, 7, v0")
        g.i("s_lshl_b32 s4, s2, 7")
        g.i("s_and_b32 s4, s4, 0x7c00")
        g.i("s_add_u32 s10, s4, 1024")
        g.i("s_min_u32 s10, s10, L_code_end-" + name + "-4")
        g.i("s_mov_b32 s11, 0x20000")
    g.i("s_cmp_ge_u32 s2, 256")
    g.i("s_cbranch_scc1 L_end")
    if PF == 1:
        g.i("buffer_load_dword v246, v6, s[8:11], 0 offen")
    if PF == 4:
        g.i("buffer_load_dword v246, v6, s[8:11], s4 offen")
    g.stamp(0)
    g.i(f"s_mov_b32 s{S_DRY}, 0")
    g.i(f"s_bfe_u32 s{S_BR}, s2, 0x10002")
    g.i(f"s_mul_i32 s{S_T0}, s{S_BR}, 24")
    g.i(f"s_load_dwordx4 s[{S_M}:{S_M+3}], s[0:1], s{S_T0}")
    g.i(f"s_load_dwordx2 s[{S_M+4}:{S_M+5}], s[0:1], s{S_T0} offset:16")
    g.i("s_load_dwordx4 s[4:7], s[0:1], 48")
    g.i(f"s_load_dwordx2 s[{S_M+6}:{S_M+7}], s[0:1], 64")
    g.i("v_lshrrev_b32 v6, 6, v0")
    g.i("v_and_b32 v0, 63, v0")
    g.i(f"v_readfirstlane_b32 s{S_WAVE}, v6")
    g.i(f"v_lshlrev_b32 v{V_L16}, 4, v0")
    g.i(f"s_bfe_u32 s{S_HP}, s2, 0x10001")
    g.i(f"s_lshl_b32 s{S_HP}, s{S_HP}, 3")
    g.i(f"s_bfe_u32 s{S_T0}, s2, 0x30003")
    g.i(f"s_add_u32 s{S_HP}, s{S_HP}, s{S_T0}")
    g.i(f"s_and_b32 s{S_TB}, s2, 1")
    g.i(f"s_lshl_b32 s{S_TB}, s{S_TB}, 2")
    g.i(f"s_lshr_b32 s{S_T0}, s2, 6")
    g.i(f"s_add_u32 s{S_TB}, s{S_TB}, s{S_T0}")
    g.i(f"s_lshl_b32 s{S_T0}, s{S_TB}, 18")
    g.i(f"s_lshl_b32 s{S_T1}, s{S_BR}, 4")
    g.i(f"s_add_u32 s{S_T1}, s{S_T1}, s{S_HP}")
    g.i(f"s_lshl_b32 s{S_T2}, s{S_T1}, 18")
    g.i(f"s_add_u32 s{S_T2}, s{S_T2}, {WS_KV}")
    g.i(f"s_lshl_b32 s{S_T3}, s{S_BR}, 21")
    g.i(f"s_add_u32 s{S_T3}, s{S_T3}, {WS_O}")
    if g.opt.get('lfirst', 1):
        g.i(f"s_cmp_lt_u32 s{S_WAVE}, 4")
        g.i("s_cbranch_scc1 L_compute")
    else:
        g.i(f"s_cmp_ge_u32 s{S_WAVE}, 4")
        g.i("s_cbranch_scc1 L_loader")

def early_srds(g):
    g.i("s_waitcnt lgkmcnt(0)")
    g.st('karg')
    srd(g.a, S_X, S_M, 256 * 1024, f"s{S_T0}")
    srd(g.a, S_W, S_M + 2, 512 * 1536 * 2)

def late_srds(g):
    a = g.a
    srd(a, S_WO, S_M + 4, 512 * 512 * 2)
    srd(a, S_KV, S_M + 6, 256 * 1024, f"s{S_T2}")
    srd(a, S_O, S_M + 6, 2 << 20, f"s{S_T3}")
    srd(a, S_FL, S_M + 6, 4096, str(WS_FLAG))
    srd(a, S_DBG, 6, 256)
    srd(a, S_OUT, 4, 2048 * 1024 * 2)
    if g.diag:
        g.i(f"s_mov_b32 s96, s{S_M+6}")
        g.i(f"s_mov_b32 s97, s{S_M+7}")

def attn_consts(g):
    g.i(f"s_lshr_b32 s{S_T0}, s{S_WAVE}, 2")
    g.i(f"s_lshl_b32 s{S_T0}, s{S_T0}, 14")
    g.i(f"v_add_u32 v{V_KA}, s{S_T0}, v{V_L16}")
    g.i(f"v_and_b32 v{V_T0}, 15, v0")
    g.i(f"v_lshlrev_b32 v{V_T0}, 4, v{V_T0}")
    g.i(f"v_lshrrev_b32 v{V_T1}, 5, v0")
    g.i(f"v_lshl_add_u32 v{V_T0}, v{V_T1}, 8, v{V_T0}")
    g.i(f"s_add_u32 s{S_T0}, s{S_T0}, 1024")
    g.i(f"v_add_u32 v{V_VA}, s{S_T0}, v{V_T0}")
    g.i(f"v_and_b32 v{V_T0}, 31, v0")
    g.i(f"v_subrev_u32 v{V_T1}, 20, v{V_T0}")
    g.i(f"v_cmp_gt_u32 vcc, 8, v{V_T1}")
    g.i(f"v_mov_b32 v{V_T1}, {L_CONST+16}")
    g.i(f"v_mov_b32 v{V_VX}, {L_CONST+16+64}")
    g.i(f"v_cndmask_b32 v{V_T1}, v{V_T1}, v{V_VX}, vcc")
    g.i(f"v_and_b32 v{V_VX}, {31 if g.opt.get('x_one') else 27}, v0")
    g.i(f"v_cmp_eq_u32 vcc, 16, v{V_VX}")
    g.i(f"v_subrev_u32 v{V_VX}, 16, v{V_T1}")
    g.i("s_nop 0")
    g.i(f"v_cndmask_b32 v{V_T1}, v{V_T1}, v{V_VX}, vcc")
    g.i(f"v_cmp_gt_u32 vcc, 16, v{V_T0}")
    g.i(f"v_mov_b32 v{V_T0}, {RING}")
    g.i(f"v_mov_b32 v{V_IDX}, 0xdddd")
    g.i(f"v_cndmask_b32 v{V_VA}, v{V_T1}, v{V_VA}, vcc")
    g.i(f"v_cndmask_b32 v{V_VX}, 0, v{V_T0}, vcc")
    g.i(f"v_add_u32 v{V_VX}, v{V_VX}, v{V_VA}")
    g.i("v_lshrrev_b32 v7, 3, v0")
    g.i("v_lshlrev_b32 v7, 11, v7")
    g.i(f"v_and_b32 v{V_OW}, 7, v0")
    g.i(f"v_lshl_add_u32 v{V_OW}, v{V_OW}, 4, v7")
    g.i(f"v_mov_b64 v[{V_CA}:{V_PA}], 0")
    g.i(f"v_mov_b32 v{KG}, 0")
    g.i(f"v_mov_b32 v{VG}, 0")
    g.i("v_mov_b64 v[252:253], -1")
    g.i("v_mov_b64 v[254:255], -1")
    for r in range(0, 32, 2):
        g.i(f"v_mov_b64 v[{V_O[0]+r}:{V_O[0]+r+1}], 0")
    g.i(f"s_lshl_b32 s{S_T0}, s{S_BR}, 4")
    g.i(f"s_add_u32 s{S_T0}, s{S_T0}, s{S_HP}")
    g.i(f"s_lshl_b32 s{S_T0}, s{S_T0}, 7")
    g.i(f"v_and_b32 v6, 31, v0")
    g.i(f"v_lshl_add_u32 v{V_FA}, v6, 2, s{S_T0}")
    g.i(f"v_lshrrev_b32 v{V_T0}, 2, v0")
    g.i(f"v_and_b32 v{V_T0}, 4, v{V_T0}")
    g.i(f"v_and_b32 v{V_T1}, 7, v0")
    g.i(f"v_xor_b32 v{V_T0}, v{V_T0}, v{V_T1}")
    g.i(f"v_lshlrev_b32 v{V_T0}, 4, v{V_T0}")
    g.i(f"v_lshrrev_b32 v{V_T1}, 3, v0")
    g.i(f"v_lshl_add_u32 v{V_WOA}, v{V_T1}, 10, v{V_T0}")

def consts(g):
    g.i(f"s_cmp_lg_u32 s{S_WAVE}, 4")
    g.i("s_cbranch_scc1 L_ld_noconst")
    g.i("v_lshrrev_b32 v6, 2, v0")
    g.i("v_and_b32 v7, 1, v6")
    g.i("v_lshlrev_b32 v7, 9, v7")
    g.i("v_lshrrev_b32 v6, 1, v6")
    g.i("v_lshl_add_u32 v7, v6, 11, v7")
    g.i("v_and_b32 v6, 1, v0")
    g.i("v_lshl_add_u32 v7, v6, 4, v7")
    g.i("v_cmp_eq_u32 vcc, 0, v6")
    g.i("v_and_b32 v6, 2, v0")
    g.i("v_lshl_add_u32 v7, v6, 5, v7")
    g.i("v_mov_b32 v6, 0x3f803f80")
    g.i(f"v_add_u32 v7, {L_CONST}, v7")
    g.i("v_cndmask_b32 v108, 0, v6, vcc")
    g.i("v_cndmask_b32 v109, 0, v6, vcc")
    g.i("v_cndmask_b32 v110, 0, v6, vcc")
    g.i("v_cndmask_b32 v111, 0, v6, vcc")
    g.i("ds_write_b128 v7, v[108:111]")
    g.lab("L_ld_noconst")

def loader(g):
    VX, VW, VT = 100, 104, 112
    LEAD = g.opt.get('lead', 0)
    g.lab("L_loader")
    g.i(f"s_sub_u32 s{S_A}, s{S_WAVE}, 4")
    S_CH, S_TX = S_F, 55
    RM = g.opt.get('rot', 7)
    if RM == 1:
        g.i(f"s_lshl_b32 s{S_CH}, s{S_TB}, 1")
        g.i(f"s_lshr_b32 s{S_T1}, s{S_TB}, 2")
        g.i(f"s_add_u32 s{S_CH}, s{S_CH}, s{S_T1}")
        g.i(f"s_and_b32 s{S_CH}, s{S_CH}, 7")
    elif RM == 2:
        g.i(f"s_mov_b32 s{S_CH}, s{S_TB}")
    elif RM == 7:
        g.i(f"s_and_b32 s{S_T1}, s{S_HP}, 1")
        g.i(f"s_lshl_b32 s{S_T1}, s{S_T1}, 2")
        g.i(f"s_add_u32 s{S_CH}, s{S_TB}, s{S_T1}")
        g.i(f"s_and_b32 s{S_CH}, s{S_CH}, 7")
    elif RM == 8:
        g.i(f"s_lshl_b32 s{S_CH}, s{S_TB}, 1")
        g.i(f"s_bfe_u32 s{S_T1}, s{S_HP}, 0x10001")
        g.i(f"s_add_u32 s{S_CH}, s{S_CH}, s{S_T1}")
        g.i(f"s_and_b32 s{S_CH}, s{S_CH}, 7")
    elif RM == 9:
        g.i(f"s_lshl_b32 s{S_CH}, s{S_TB}, 1")
        g.i(f"s_and_b32 s{S_T1}, s{S_HP}, 3")
        g.i(f"s_add_u32 s{S_CH}, s{S_CH}, s{S_T1}")
        g.i(f"s_and_b32 s{S_CH}, s{S_CH}, 7")
    elif RM == 10:
        g.i(f"s_and_b32 s{S_CH}, s2, 7")
    elif RM == 11:
        g.i(f"s_and_b32 s{S_CH}, s2, 3")
        g.i(f"s_lshl_b32 s{S_CH}, s{S_CH}, 1")
        g.i(f"s_add_u32 s{S_CH}, s{S_CH}, s{S_BR}")
    elif RM == 0:
        g.i(f"s_mov_b32 s{S_CH}, 0")
    elif RM == 6:
        g.i(f"s_lshl_b32 s{S_CH}, s{S_TB}, 1")
        g.i(f"s_add_u32 s{S_CH}, s{S_CH}, s{S_HP}")
        g.i(f"s_and_b32 s{S_CH}, s{S_CH}, 7")
    elif RM == 4:
        g.i(f"s_lshl_b32 s{S_CH}, s{S_TB}, 1")
        g.i(f"s_add_u32 s{S_CH}, s{S_CH}, s{S_HP}")
        g.i(f"s_and_b32 s{S_CH}, s{S_CH}, 3")
        g.i(f"s_lshl_b32 s{S_CH}, s{S_CH}, 1")
    elif RM == 5:
        g.i(f"s_add_u32 s{S_CH}, s{S_TB}, s{S_HP}")
        g.i(f"s_and_b32 s{S_CH}, s{S_CH}, 3")
        g.i(f"s_lshl_b32 s{S_CH}, s{S_CH}, 1")
    elif RM == 3:
        g.i(f"s_lshl_b32 s{S_CH}, s{S_TB}, 1")
        g.i(f"s_and_b32 s{S_T1}, s{S_HP}, 1")
        g.i(f"s_add_u32 s{S_CH}, s{S_CH}, s{S_T1}")
        g.i(f"s_and_b32 s{S_CH}, s{S_CH}, 7")
    if g.opt.get('pf') or LEAD: pass
    if g.opt.get('pf') or LEAD:
        g.i(f"v_lshlrev_b32 v{VT}, 10, v0")
        g.i(f"s_and_b32 s{S_TX}, s{S_HP}, 7")
        g.i(f"s_lshl_b32 s{S_TX}, s{S_TX}, 2")
        g.i(f"s_add_u32 s{S_TX}, s{S_TX}, s{S_A}")
        g.i(f"s_lshl_b32 s{S_TX}, s{S_TX}, 13")
    PF = g.opt.get('pf', 0)
    NT = 2 if PF else (1 if LEAD else 0)
    if PF:
        S_TC, S_TW = S_IT, 0
        g.i(f"s_mov_b32 s{S_TC}, s{S_CH}")
        g.i("v_lshrrev_b32 v6, 1, v0")
        g.i("v_and_b32 v7, 1, v0")
        g.i("v_lshlrev_b32 v7, 7, v7")
        g.i(f"v_lshl_add_u32 v{VT+1}, v6, 10, v7")
        g.i(f"s_lshr_b32 s1, s2, 3")
        g.i(f"s_lshl_b32 s1, s1, 1")
        g.i(f"s_lshr_b32 s{S_T1}, s{S_A}, 1")
        g.i(f"s_add_u32 s1, s1, s{S_T1}")
        g.i(f"s_mul_i32 s1, s1, 3072")
        g.i(f"s_lshr_b32 s{S_T1}, s{S_HP}, 3")
        g.i(f"s_lshl_b32 s{S_T1}, s{S_T1}, 1")
        g.i(f"s_and_b32 s{S_B}, s{S_A}, 1")
        g.i(f"s_add_u32 s{S_T1}, s{S_T1}, s{S_B}")
        g.i(f"s_lshl_b32 s{S_T1}, s{S_T1}, 8")
        g.i(f"s_add_u32 s3, s1, s{S_T1}")
    def touch(ahead):
        if PF:
            g.i(f"s_lshl_b32 s{S_T0}, s{S_TC}, 7")
            g.i(f"s_add_u32 s{S_T0}, s{S_T0}, s{S_TX}")
            g.i(f"s_mul_i32 s{S_T1}, s{S_TC}, {64*3072}")
            g.i(f"s_add_u32 s{S_T1}, s{S_T1}, s3")
            g.i("s_mov_b64 exec, 0xff")
            g.i(f"buffer_load_dword v246, v{VT}, s[{S_X}:{S_X+3}], s{S_T0} offen")
            if g.opt.get('pfw', 1):
                g.i("s_mov_b64 exec, 0x3f")
                g.i(f"buffer_load_dword v246, v{VT+1}, s[{S_W}:{S_W+3}], s{S_T1} offen")
            g.i("s_mov_b64 exec, -1")
            g.i(f"s_add_u32 s{S_TC}, s{S_TC}, 1")
            g.i(f"s_and_b32 s{S_TC}, s{S_TC}, 7")
            return
        if not LEAD: return
        g.i(f"s_add_u32 s{S_T0}, s{S_CH}, {ahead}")
        g.i(f"s_and_b32 s{S_T0}, s{S_T0}, 7")
        g.i(f"s_lshl_b32 s{S_T0}, s{S_T0}, 7")
        g.i(f"s_add_u32 s{S_T0}, s{S_T0}, s{S_TX}")
        g.i("s_mov_b64 exec, 0xff")
        g.i(f"buffer_load_dword v246, v{VT}, s[{S_X}:{S_X+3}], s{S_T0} offen")
        g.i("s_mov_b64 exec, -1")
    g.i("v_lshrrev_b32 v6, 4, v0")
    g.i("v_and_b32 v7, 7, v0")
    g.i("v_xor_b32 v6, v6, v7")
    g.i("v_lshlrev_b32 v6, 4, v6")
    g.i("v_lshrrev_b32 v7, 3, v0")
    g.i(f"v_lshl_add_u32 v{VX}, v7, 10, v6")
    g.i(f"v_xor_b32 v{VX+1}, 64, v{VX}")
    g.i(f"v_add_u32 v{VX+2}, {2*7168}, v{VX}")
    g.i(f"v_add_u32 v{VX+3}, {3*7168}, v{VX+1}")
    g.i(f"v_add_u32 v{VX+1}, 7168, v{VX+1}")
    g.i(f"s_lshl_b32 s{S_B}, s{S_A}, 16")
    g.i(f"s_lshl_b32 s{S_D}, s{S_A}, 13")
    for p in range(3):
        g.i(f"v_add_u32 v6, {64*p}, v0")
        g.i("v_mul_u32_u24 v7, 43691, v6")
        g.i("v_lshrrev_b32 v7, 19, v7")
        g.i("v_mul_u32_u24 v110, 12, v7")
        g.i("v_sub_u32 v6, v6, v110")
        g.i("v_mul_u32_u24 v7, 3072, v7")
        g.i("v_lshrrev_b32 v110, 2, v6")
        g.i(f"v_lshl_add_u32 v7, v110, {6 if g.opt.get('x_wc') else 10}, v7")
        g.i("v_and_b32 v6, 3, v6")
        g.i("v_lshl_add_u32 v7, v6, 4, v7")
        g.i(f"v_subrev_u32 v{VW+p}, {1024*p}, v7")
    g.i(f"s_mul_i32 s{S_C}, s{S_A}, {16*3072}")
    g.i(f"s_lshl_b32 s{S_T1}, s{S_HP}, {7 if g.opt.get('x_wc') else 6}")
    g.i(f"s_add_u32 s{S_C}, s{S_C}, s{S_T1}")
    g.i(f"s_mul_i32 s{S_E}, s{S_A}, 3072")
    g.i(f"s_add_u32 s{S_E}, s{S_E}, {SLOT_W}")
    early_srds(g)
    cnt = [0]
    def issue():
        cnt[0] += 1
        g.i(f"s_lshl_b32 s{S_T1}, s{S_CH}, 7")
        g.i(f"s_add_u32 s{S_T1}, s{S_T1}, s{S_B}")
        g.i(f"s_mov_b32 m0, s{S_D}")
        g.i(f"s_add_u32 s{S_T0}, s{S_T1}, 32768")
        for p in range(4):
            g.i(f"buffer_load_dwordx4 v{VX+p}, s[{S_X}:{S_X+3}], s{S_T1} offen offset:{1024*p}{g.opt.get('xfl','')} lds")
        if cnt[0] == 1: g.st('ld_4')
        g.i(f"s_add_u32 m0, s{S_D}, 4096")
        g.i(f"s_mul_i32 s{S_T1}, s{S_CH}, {64*3072}")
        for p in range(4):
            g.i(f"buffer_load_dwordx4 v{VX+p}, s[{S_X}:{S_X+3}], s{S_T0} offen offset:{1024*p}{g.opt.get('xfl','')} lds")
        if cnt[0] == 1: g.st('ld_8')
        g.i(f"s_mov_b32 m0, s{S_E}")
        g.i(f"s_add_u32 s{S_T1}, s{S_T1}, s{S_C}")
        for p in range(3):
            if g.opt.get('x_now'): g.i(f"buffer_load_dword v244, v{VW+p}, s[{S_DBG if False else S_W}:{S_W+3}], s{S_C} offen"); continue
            g.i(f"buffer_load_dwordx4 v{VW+p}, s[{S_W}:{S_W+3}], s{S_T1} offen offset:{1024*p}{g.opt.get('wfl','')} lds")
        g.i(f"s_add_u32 s{S_CH}, s{S_CH}, 1")
        g.i(f"s_and_b32 s{S_CH}, s{S_CH}, 7")
    def next_slot():
        g.i(f"s_add_u32 s{S_D}, s{S_D}, {SLOT}")
        g.i(f"s_add_u32 s{S_E}, s{S_E}, {SLOT}")
        g.i(f"s_cmp_lt_u32 s{S_D}, {3*SLOT}")
        g.i(f"s_cselect_b32 s{S_T0}, 0, {3*SLOT}")
        g.i(f"s_sub_u32 s{S_D}, s{S_D}, s{S_T0}")
        g.i(f"s_sub_u32 s{S_E}, s{S_E}, s{S_T0}")
    if PF:
        q = []; nt = [0]
        def T():
            if nt[0] < 8: touch(0); q.extend('TT' if g.opt.get('pfw', 1) else 'T'); nt[0] += 1
        def D(c): issue(); q.extend([c] * 11)
        def W(c): g.i(f"s_waitcnt vmcnt({len(q) - 1 - max(i for i, x in enumerate(q) if x == c)})")
        for c in range(PF): T()
        D(0); T()
        next_slot(); D(1); T()
        late_srds(g); attn_consts(g); consts(g)
        for c in range(6):
            W(c)
            g.i("s_barrier")
            next_slot(); D(c + 2); T()
        W(6)
        g.i("s_barrier")
        g.i("s_waitcnt vmcnt(0)")
        g.i("s_barrier")
        g.i("s_mov_b32 s3, 0")
    if not PF: loader_plain(g, issue, next_slot, touch, LEAD, NT)
    loader_fin(g)

def loader_plain(g, issue, next_slot, touch, LEAD, NT):
    issue()
    g.st('ld_c0')
    next_slot(); issue()
    for c in range(2, LEAD): touch(c - 2)
    g.st('ld_c2')
    late_srds(g); attn_consts(g); consts(g)
    g.st('ld_pre')
    PRE = g.opt.get('pre', '')
    n0 = NT * max(LEAD - 2, 0)
    def pre():
        g.i(f"s_lshl_b32 s{S_T0}, s{S_TB}, 14")
        g.i(f"s_and_b32 s{S_T1}, s{S_A}, 1")
        g.i(f"s_lshl_b32 s{S_T1}, s{S_T1}, 13")
        g.i(f"s_add_u32 s{S_T0}, s{S_T0}, s{S_T1}")
        g.i(f"s_lshr_b32 s{S_T1}, s{S_A}, 1")
        g.i(f"s_lshl_b32 s{S_T1}, s{S_T1}, 17")
        g.i(f"s_add_u32 s{S_T0}, s{S_T0}, s{S_T1}")
        if PRE == 'r':
            g.i("v_lshlrev_b32 v6, 7, v0")
            g.i(f"buffer_load_dword v245, v6, s[{S_KV}:{S_KV+3}], s{S_T0} offen sc1")
            return 1
        g.i(f"s_add_u32 s{S_T1}, s{S_T0}, 4096")
        for k in range(8):
            g.i(f"buffer_store_dwordx4 v[{V_O[0]}:{V_O[0]+3}], v{V_L16}, s[{S_KV}:{S_KV+3}], s{S_T1 if k >= 4 else S_T0} offen offset:{1024*(k%4)} sc1")
        return 8
    np_ = 0
    PC = g.opt.get('prec', 1)
    for c, n in ((0, 11 + n0), (1, n0 + 11 + NT)):
        g.i(f"s_waitcnt vmcnt({n + (np_ if c == 1 else 0)})")
        if c == 0: g.st('ld_got0')
        g.i("s_barrier")
        next_slot(); issue(); touch(LEAD - 3)
        if PRE and c == PC: np_ = pre()
    if PRE and PC == 1:
        g.i(f"s_waitcnt vmcnt({11+2*NT+np_})")
        g.i("s_barrier")
        next_slot(); issue(); touch(LEAD - 3)
        g.i(f"s_mov_b32 s{S_IT}, 3")
        g.i(f"s_waitcnt vmcnt({11+2*NT+np_})")
        g.i("s_branch L_ld_loop2")
    g.i(f"s_mov_b32 s{S_IT}, 2")
    g.lab("L_ld_loop")
    g.i(f"s_waitcnt vmcnt({11+2*NT})")
    g.lab("L_ld_loop2")
    g.i("s_barrier")
    next_slot(); issue(); touch(LEAD - 3)
    g.i(f"s_add_u32 s{S_IT}, s{S_IT}, 1")
    g.i(f"s_cmp_lt_u32 s{S_IT}, 6")
    g.i("s_cbranch_scc1 L_ld_loop")
    g.st('ld_iss7')
    g.i(f"s_waitcnt vmcnt({11+2*NT})")
    g.i("s_barrier")
    g.i("s_waitcnt vmcnt(0)")
    g.i("s_barrier")

def loader_fin(g):
    g.i(f"s_cmp_lg_u32 s{S_WAVE}, 4")
    g.i("s_cbranch_scc1 L_ld_nocert")
    g.i(f"s_lshl_b32 s{S_T0}, s{S_BR}, 4")
    g.i(f"s_add_u32 s{S_T0}, s{S_T0}, s{S_HP}")
    g.i(f"s_lshl_b32 s{S_T0}, s{S_T0}, 3")
    g.i(f"v_mov_b32 v7, s{S_T0}")
    spin(g, "cert1", f"buffer_load_dword v{V_F}, v7, s[{S_DBG}:{S_DBG+3}], 0 offen sc1", 8)
    g.lab("L_ld_nocert")
    g.i(f"s_lshl_b32 s{S_T0}, s{S_A}, 11")
    g.i(f"s_add_u32 s{S_T0}, s{S_T0}, {L_QX}")
    g.i(f"v_add_u32 v6, s{S_T0}, v{V_L16}")
    attn_setup(g)
    g.i("s_waitcnt lgkmcnt(0)")
    g.i("s_barrier")
    g.i(f"ds_read_b128 {vr(V_Q[0],4)}, v6")
    g.i(f"ds_read_b128 {vr(V_Q[1],4)}, v6 offset:1024")
    g.i("s_branch L_attn")

class LdsQ:
    def __init__(self, g): self.g = g; self.q = []
    def issue(self, tag): self.q.append(tag)
    def need(self, tags):
        idx = max([i for i, t in enumerate(self.q) if t in tags], default=-1)
        if idx >= 0:
            n = len(self.q) - 1 - idx
            self.g.i(f"s_waitcnt lgkmcnt({min(n,15)})")
            self.q = self.q[idx + 1:]

def clear_flags(g):
    g.i(f"s_cmp_lg_u32 s{S_WAVE}, 0")
    g.i("s_cbranch_scc1 L_cp_noclear")
    g.i(f"s_lshl_b32 s{S_T0}, s{S_BR}, 4")
    g.i(f"s_add_u32 s{S_T0}, s{S_T0}, s{S_HP}")
    g.i(f"s_lshl_b32 s{S_T1}, s{S_T0}, 7")
    g.i(f"s_lshl_b32 s{S_T2}, s{S_TB}, 4")
    g.i(f"s_add_u32 s{S_T1}, s{S_T1}, s{S_T2}")
    g.i(f"v_lshl_add_u32 v6, v0, 2, s{S_T1}")
    g.i("v_mov_b32 v7, 0")
    g.i("s_mov_b64 exec, 0xf")
    g.i(f"buffer_store_dword v7, v6, s[{S_FL}:{S_FL+3}], 0 offen sc1")
    g.i("s_mov_b64 exec, -1")
    g.lab("L_cp_noclear")

def compute(g):
    g.lab("L_compute")
    CP = g.opt.get('cpf', 4)
    if CP == 3:
        n = g.opt.get('cpn', 12)
        g.i(f"s_mul_i32 s18, s{S_WAVE}, {128*n}")
        g.i(f"s_add_u32 s18, s18, L_compute-{NAME}_kernel")
        g.i("s_add_u32 s18, s16, s18")
        g.i("s_addc_u32 s19, s17, 0")
        g.i("s_waitcnt lgkmcnt(0)")
        for k in range(n): g.i(f"s_load_dword s95, s[18:19], {128*k}")
    if CP in (2, 3):
        g.i("s_mov_b32 s12, s16"); g.i("s_mov_b32 s13, s17")
        g.i(f"s_mov_b32 s14, L_code_end-{NAME}_kernel-4"); g.i("s_mov_b32 s15, 0x20000")
    TL = g.opt.get('tlb', 0)
    if TL:
        g.i(f"v_lshlrev_b32 v6, {TL}, v0")
    if CP != 3: g.i("s_waitcnt lgkmcnt(0)")
    if TL:
        srd(g.a, S_W, S_M + 2, 512 * 1536 * 2)
        g.i(f"buffer_load_dword v246, v6, s[{S_W}:{S_W+3}], 0 offen")
        if g.opt.get('tlbx'):
            srd(g.a, S_X, S_M, 256 * 1024, f"s{S_T0}")
            g.i(f"buffer_load_dword v246, v6, s[{S_X}:{S_X+3}], 0 offen")
    late_srds(g)
    if not g.opt.get('lateclr'): clear_flags(g)
    attn_consts(g)
    g.i("v_and_b32 v6, 31, v0")
    g.i(f"s_lshl_b32 s{S_T0}, s{S_WAVE}, 13")
    g.i(f"v_lshl_add_u32 v100, v6, 7, s{S_T0}")
    g.i("v_bfe_u32 v6, v0, 1, 3")
    g.i("v_lshrrev_b32 v7, 5, v0")
    g.i("v_xor_b32 v6, v6, v7")
    for s in range(4):
        g.i(f"v_xor_b32 v7, {2*s}, v6")
        g.i(f"v_lshl_add_u32 v{V_XA+s}, v7, 4, v100")
    g.i("v_lshrrev_b32 v6, 5, v0")
    g.i("v_bfe_u32 v7, v0, 2, 2")
    g.i("v_lshl_add_u32 v6, v6, 3, v7")
    g.i("v_mul_u32_u24 v6, 192, v6")
    g.i("v_bfe_u32 v7, v0, 4, 1")
    g.i("v_lshl_add_u32 v6, v7, 5, v6")
    g.i("v_and_b32 v7, 3, v0")
    g.i("v_lshl_add_u32 v6, v7, 3, v6")
    g.i(f"v_add_u32 v{V_WA}, {SLOT_W}, v6")
    for r in range(0, 96, 2):
        g.i(f"v_mov_b64 v[{V_ACC+r}:{V_ACC+r+1}], 0")
    S_A, S_B = 56, 57
    g.i("v_and_b32 v6, 0x33, v0")
    g.i("v_bfe_u32 v7, v0, 2, 1")
    g.i("v_lshl_or_b32 v6, v7, 3, v6")
    g.i("v_bfe_u32 v7, v0, 3, 1")
    g.i("v_lshl_or_b32 v6, v7, 2, v6")
    g.i(f"v_lshlrev_b32 v{KG}, 4, v6")
    g.i(f"s_lshl_b32 s{S_T0}, s{S_WAVE}, 12")
    g.i(f"v_add_u32 v{KL}, s{S_T0}, v{KG}")
    g.i("v_and_b32 v6, 15, v0")
    g.i("v_lshlrev_b32 v6, 4, v6")
    g.i("v_lshrrev_b32 v7, 5, v0")
    g.i("v_lshl_add_u32 v6, v7, 8, v6")
    g.i("v_add_u32 v6, 1024, v6")
    g.i("v_bfe_u32 v7, v0, 4, 1")
    g.i(f"v_lshl_add_u32 v{VG}, v7, 17, v6")
    g.i("v_lshl_add_u32 v6, v7, 14, v6")
    g.i(f"v_add_u32 v{VL}, s{S_T0}, v6")
    g.i(f"s_lshr_b32 s{S_T0}, s{S_T0}, 1")
    g.i(f"s_add_u32 s{S_T0}, s{S_T0}, {L_QX}")
    g.i(f"v_add_u32 v{QL}, s{S_T0}, v{V_L16}")
    if g.opt.get('lateclr'): clear_flags(g)
    if CP in (2, 3):
        g.i(f"s_lshl_b32 s{S_T0}, s{S_WAVE}, 13")
        g.i("v_lshlrev_b32 v6, 7, v0")
        g.i(f"buffer_load_dword v246, v6, s[12:15], s{S_T0} offen")
    if g.opt.get('dry', 1):
        g.i(f"s_cmp_lt_u32 s{S_WAVE}, 2")
        g.i("s_cbranch_scc1 L_dry_done")
        g.i(f"s_mov_b32 s{S_DRY}, 1")
        g.i(f"s_mov_b32 s{S_IT}, 7")
        g.i("s_mov_b64 vcc, 0")
        g.i(f"s_mov_b64 s[{S_M}:{S_M+1}], 0")
        g.i(f"s_mov_b64 s[{S_M+2}:{S_M+3}], 0")
        g.i(f"s_mov_b32 s{S_MK}, 0")
        g.i("s_waitcnt vmcnt(0) lgkmcnt(0)")
        g.i("s_setvskip -1, 0")
        g.i(f"s_cmp_eq_u32 s{S_WAVE}, 2")
        g.i("s_cbranch_scc1 L_at_done")
        g.i("s_branch L_cp_loop")
        g.lab("L_dry_ret")
        g.i("s_setvskip 0, 0")
        g.i("s_mov_b64 exec, -1")
        g.i("s_setprio 0")
        g.i(f"s_mov_b32 s{S_DRY}, 0")
        g.lab("L_dry_done")
    attn_setup(g)
    g.i(f"s_lshl_b32 s{S_T0}, s{S_WAVE}, 12")
    g.i(f"s_lshl_b32 s{S_G1}, s{S_TB}, 14")
    g.i(f"s_add_u32 s{S_G1}, s{S_G1}, s{S_T0}")
    g.i(f"s_add_u32 s{S_G2}, s{S_G1}, 131072")
    g.i(f"s_mov_b32 s{S_IT}, 0")
    g.i(f"s_mov_b32 s{S_A}, 0")
    g.i(f"s_mov_b32 s{S_B}, {SLOT}")
    q = LdsQ(g)
    def rd(setn, s, which):
        F = V_FR[setn]
        if which[0] == 'x':
            i = int(which[1])
            g.i(f"ds_read_b128 {vr(F+4*i,4)}, v{V_XA+s} offset:{4096*i}")
        else:
            p = {'q': 0, 'k': 1, 'v': 2}[which[0]]; i = int(which[1])
            g.i(f"ds_read_b64_tr_b16 {vr(F+8+4*p+2*i,2)}, v{V_WA} offset:{s*3072+i*768+p*64}")
        q.issue((setn, which))
    ORDER = ['x0', 'q0', 'q1', 'x1', 'k0', 'k1', 'v0', 'v1']
    def mf(setn, n):
        F = V_FR[setn]; p, i = n // 2, n % 2
        w, x = vr(F + 8 + 4 * p, 4), vr(F + 4 * i, 4)
        nm = 'qkv'[p]
        q.need({(setn, f'x{i}'), (setn, nm + '0'), (setn, nm + '1')})
        A, B = (w, x) if p < 2 else (x, w)
        acc = vr(V_ACC + 16 * n, 16)
        if g.opt.get('x_m16'):
            for hh in range(2):
                a4 = vr(V_ACC + 16 * n + 4 * hh, 4)
                g.i(f"v_mfma_f32_16x16x32_bf16 {a4}, {A}, {B}, {a4}")
        else:
            g.i(f"v_mfma_f32_32x32x16_bf16 {acc}, {A}, {B}, {acc}")
    def step(cur, nxt_s):
        plan = [ORDER[0:2], ORDER[2:4], ORDER[4:6], ORDER[6:8], [], []]
        for n in range(6):
            if cur is not None: mf(cur, n)
            if nxt_s is not None:
                for w in plan[n]: rd(1 - (cur if cur is not None else 1), nxt_s, w)
    g.i(f"s_cmp_lg_u32 s{S_WAVE}, 0")
    g.i("s_cbranch_scc1 L_cp_nocount")
    g.i(f"s_lshl_b32 s{S_T0}, s{S_BR}, 4")
    g.i(f"s_add_u32 s{S_T0}, s{S_T0}, s{S_HP}")
    g.i(f"s_lshl_b32 s{S_T0}, s{S_T0}, 3")
    g.i("s_mov_b64 exec, 1")
    g.i(f"v_mov_b32 v6, s{S_T0}")
    g.i("v_mov_b32 v7, 1")
    g.i(f"s_waitcnt vmcnt(0)")
    g.i(f"buffer_atomic_add v7, v6, s[{S_DBG}:{S_DBG+3}], 0 offen sc1")
    g.i("s_mov_b64 exec, -1")
    g.lab("L_cp_nocount")
    def prew():
        g.i(f"s_lshl_b32 s{S_T0}, s{S_TB}, 14")
        g.i(f"s_lshl_b32 s{S_T1}, s{S_WAVE}, 12")
        g.i(f"s_add_u32 s{S_T0}, s{S_T0}, s{S_T1}")
        g.i(f"s_add_u32 s{S_T1}, s{S_T0}, 131072")
        for k in range(8):
            g.i(f"buffer_store_dwordx4 v[{V_O[0]}:{V_O[0]+3}], v{V_L16}, s[{S_KV}:{S_KV+3}], s{S_T1 if k >= 4 else S_T0} offen offset:{1024*(k%4)} sc1")
    def prer():
        g.i("v_and_b32 v6, 31, v0")
        g.i("v_lshlrev_b32 v6, 7, v6")
        g.i("v_lshrrev_b32 v7, 5, v0")
        g.i("v_lshl_add_u32 v6, v7, 17, v6")
        g.i(f"buffer_load_dword v246, v6, s[{S_KV}:{S_KV+3}], s{S_G1} offen{g.opt.get('prefl', ' sc1')}")
    PR = g.opt.get('prer', 0)
    if PR == -1: prer()
    if g.opt.get('prew') == 1: prew()
    g.st('cp_pre')
    g.i("s_barrier")
    g.stamp(1)
    if g.opt.get('prew') == 2: prew()
    step(None, 0)
    g.lab("L_cp_loop")
    q.q = [(0, w) for w in ORDER]
    step(0, 1); step(1, 2); step(0, 3)
    g.i(f"s_add_u32 s{S_A}, s{S_A}, 1")
    g.i(f"s_cmp_eq_u32 s{S_A}, 3")
    g.i(f"s_cselect_b32 s{S_T0}, {(-2*SLOT) & 0xffffffff}, s{S_B}")
    g.i(f"s_cselect_b32 s{S_A}, 0, s{S_A}")
    g.i(f"s_add_u32 s{S_IT}, s{S_IT}, 1")
    g.i(f"s_cmp_eq_u32 s{S_IT}, 8")
    g.i("s_cbranch_scc1 L_cp_last")
    g.i("s_waitcnt lgkmcnt(0)")
    q.q = []
    g.i("s_barrier")
    for r in range(5):
        g.i(f"v_add_u32 v{V_XA+r}, s{S_T0}, v{V_XA+r}")
    PW = g.opt.get('pwd')
    if PW:
        c0, kind = PW
        if kind == 'd':
            g.i(f"s_cmp_lg_u32 s{S_IT}, {c0}")
            g.i("s_cbranch_scc1 L_cp_nopw")
            g.i("v_and_b32 v6, 31, v0")
            g.i("v_lshlrev_b32 v6, 7, v6")
            g.i("v_lshrrev_b32 v7, 5, v0")
            g.i("v_lshl_add_u32 v6, v7, 17, v6")
            g.i(f"buffer_store_dword v{V_O[0]}, v6, s[{S_KV}:{S_KV+3}], s{S_G1} offen sc1")
        elif kind == 'f':
            g.i(f"s_cmp_lg_u32 s{S_IT}, {c0}")
            g.i("s_cbranch_scc1 L_cp_nopw")
            for k in range(8):
                g.i(f"buffer_store_dwordx4 v[{V_O[0]}:{V_O[0]+3}], v{V_L16}, s[{S_KV}:{S_KV+3}], s{S_G2 if k >= 4 else S_G1} offen offset:{1024*(k%4)} sc1")
        elif kind == 's':
            g.i(f"s_sub_u32 s{S_T1}, s{S_IT}, {c0}")
            g.i(f"s_cmp_ge_u32 s{S_T1}, 4")
            g.i("s_cbranch_scc1 L_cp_nopw")
            g.i(f"s_lshl_b32 s{S_T1}, s{S_T1}, 10")
            g.i(f"s_add_u32 s{S_T2}, s{S_T1}, s{S_G2}")
            g.i(f"s_add_u32 s{S_T1}, s{S_T1}, s{S_G1}")
            for so in (S_T1, S_T2):
                g.i(f"buffer_store_dwordx4 v[{V_O[0]}:{V_O[0]+3}], v{V_L16}, s[{S_KV}:{S_KV+3}], s{so} offen sc1")
        g.lab("L_cp_nopw")
    if PR > 0:
        g.i(f"s_cmp_lg_u32 s{S_IT}, {PR}")
        g.i("s_cbranch_scc1 L_cp_nopre")
        prer()
        g.lab("L_cp_nopre")
    step(1, 0)
    g.i("s_branch L_cp_loop")
    g.lab("L_cp_last")
    q.q = [(1, w) for w in ORDER]
    step(1, None)
    g.stamp(2)
    g.i(f"s_mov_b32 s{S_T1}, {hex(QSCALE)}")
    g.i(f"s_mov_b32 s{S_T2}, s{S_T1}")
    g.i("s_nop 5")
    KVS = g.opt.get('kvs', ' sc1')
    T = 204
    n = 0
    for i in range(2):
        A = V_ACC + 16 * (2 + i)
        for hd in range(2):
            for r in range(4):
                g.i(f"v_cvt_pk_bf16_f32 v{T+4*n+r}, v{A+8*hd+2*r}, v{A+8*hd+2*r+1}")
            g.i(f"ds_write_b128 v{KL}, {vr(T+4*n,4)} offset:{16384*hd+2048*i}")
            n += 1
    for i in range(2):
        A = V_ACC + 16 * (4 + i)
        for gr in range(2):
            for r in range(4):
                g.i(f"v_cvt_pk_bf16_f32 v{T+4*n+r}, v{A+8*gr+2*r}, v{A+8*gr+2*r+1}")
            g.i(f"ds_write_b128 v{VL}, {vr(T+4*n,4)} offset:{2048*i+512*gr}")
            n += 1
    g.i(f"s_cmp_lg_u32 s{S_PG}, 0")
    g.i("s_cbranch_scc1 L_cp_later")
    for n in range(8): g.i(kv_store(n))
    g.lab("L_cp_later")
    for i in range(2):
        A = V_ACC + 16 * i
        for r in range(8, 16, 2):
            g.i(f"v_pk_mul_f32 v[{A+r}:{A+r+1}], v[{A+r}:{A+r+1}], s[{S_T0+1}:{S_T0+2}]")
        for r in range(4):
            g.i(f"v_cvt_pk_bf16_f32 v{A+8+r}, v{A+8+2*r}, v{A+8+2*r+1}")
        g.i(f"ds_write_b128 v{QL}, {vr(A+8,4)} offset:{1024*i}")
    for i in range(2):
        A = V_ACC + 16 * i
        for r in range(0, 8, 2):
            g.i(f"v_pk_mul_f32 v[{A+r}:{A+r+1}], v[{A+r}:{A+r+1}], s[{S_T0+1}:{S_T0+2}]")
        for r in range(4):
            g.i(f"v_cvt_pk_bf16_f32 v{V_Q[i]+r}, v{A+2*r}, v{A+2*r+1}")
    g.i("s_waitcnt lgkmcnt(0)")
    barrier_unless_dry(g, "b8")

U = 8
S_OA, S_OB = S_M + 6, S_M + 7
S_MK = S_M + 5
S_KV2 = S_X
S_KO = [None, 4, 5, 6, 7, 12, 13, 14]
S_LM = [[49, 50], [51, 52]]
S_OW = 1
V_VB = 4

def kv_store(n):
    if n < 4: adr, so, off = KG, (S_G2 if n % 2 else S_G1), 2048 * (n // 2)
    else: adr, so, off = VG, S_G1, 2048 * ((n - 4) // 2) + 512 * (n % 2)
    return f"buffer_store_dwordx4 {vr(KVT+4*n,4)}, v{adr}, s[{S_KV}:{S_KV+3}], s{so} offen offset:{off} sc1"

def spin_mask(g, tag, load):
    g.i(f"s_mov_b32 s{S_T3}, 0")
    g.lab(f"L_spin_{tag}")
    g.i(load)
    g.i(f"s_add_u32 s{S_T3}, s{S_T3}, 1")
    g.i("s_waitcnt vmcnt(0)")
    g.i(f"v_cmp_ne_u32 vcc, 1, v{V_F}")
    g.i(f"s_cmp_ge_u32 s{S_T3}, {SPIN_MAX}")
    g.i(f"s_cbranch_scc1 L_olr_{tag}")
    g.i(f"s_and_b32 vcc_lo, vcc_lo, s{S_MK}")
    g.i(f"s_cbranch_scc1 L_spin_{tag}")

def attn_setup(g):
    g.i(f"s_add_u32 s{S_KV2}, s{S_KV}, 131072")
    g.i(f"s_addc_u32 s{S_KV2+1}, s{S_KV+1}, 0")
    g.i(f"s_mov_b32 s{S_KV2+2}, 131072")
    g.i(f"s_mov_b32 s{S_KV2+3}, 0x20000")
    g.i(f"s_lshl_b32 s{S_LM[0][0]}, s{S_WAVE}, 11")
    g.i(f"s_add_u32 s{S_LM[0][1]}, s{S_LM[0][0]}, 16384")
    g.i(f"s_add_u32 s{S_LM[1][0]}, s{S_LM[0][0]}, {RING}")
    g.i(f"s_add_u32 s{S_LM[1][1]}, s{S_LM[0][0]}, {RING+16384}")
    for i in range(1, 8):
        g.i(f"s_cmp_gt_u32 s{S_TB}, {i-1}")
        g.i(f"s_cselect_b32 s{S_T0}, {i-1}, {i}")
        if i == 1:
            g.i(f"s_lshl_b32 s{S_T3}, s{S_T0}, 2")
            g.i(f"s_lshl_b32 s{S_MK}, 15, s{S_T3}")
        g.i(f"s_lshl_b32 s{S_T0}, s{S_T0}, 14")
        g.i(f"s_add_u32 s{S_KO[i]}, s{S_T0}, s{S_LM[0][0]}")
    g.i(f"s_lshr_b32 s{S_PG}, s{S_TB}, 1")
    g.i(f"s_min_u32 s{S_PG}, s{S_PG}, 2")
    g.i(f"s_cmp_ge_u32 s{S_WAVE}, 4")
    g.i(f"s_cselect_b32 s{S_PG}, 3, s{S_PG}")
    g.i(f"s_and_b32 s{S_F}, s{S_HP}, 7")
    g.i(f"s_lshl_b32 s{S_T0}, s{S_F}, 7")
    if g.opt.get('orot', 0):
        g.i(f"s_add_u32 s55, s{S_WAVE}, s{S_F}")
        g.i("s_and_b32 s55, s55, 3")
        g.i(f"s_and_b32 s{S_T1}, s{S_WAVE}, 4")
        g.i(f"s_or_b32 s55, s55, s{S_T1}")
        g.i("s_lshl_b32 s55, s55, 16")
    else:
        g.i(f"s_lshl_b32 s55, s{S_WAVE}, 16")
    g.i(f"s_add_u32 s55, s55, s{S_T0}")
    g.i(f"s_lshl_b32 s{S_E}, s{S_WAVE}, 13")
    g.i(f"s_add_u32 s{S_E}, s{S_E}, {L_WO}")
    g.i(f"s_and_b32 s{S_T0}, s{S_WAVE}, 3")
    g.i(f"s_lshl_b32 s{S_T0}, s{S_T0}, 1")
    g.i(f"s_lshl_b32 s{S_T1}, s{S_TB}, 3")
    g.i(f"s_add_u32 s{S_T0}, s{S_T0}, s{S_T1}")
    g.i(f"s_lshl_b32 s{S_OA}, s{S_T0}, 15")
    g.i(f"s_lshr_b32 s{S_T1}, s{S_WAVE}, 2")
    g.i(f"s_lshl_b32 s{S_T2}, s{S_HP}, 1")
    g.i(f"s_add_u32 s{S_T1}, s{S_T1}, s{S_T2}")
    g.i(f"s_lshl_b32 s{S_T2}, s{S_T1}, 10")
    g.i(f"s_add_u32 s{S_OA}, s{S_OA}, s{S_T2}")
    g.i(f"s_add_u32 s{S_OB}, s{S_OA}, 32768")
    if True:
        g.i(f"s_lshr_b32 s{S_T0}, s{S_HP}, 3")
        g.i(f"s_lshl_b32 s{S_T0}, s{S_T0}, 2")
        g.i(f"s_and_b32 s{S_T1}, s{S_WAVE}, 3")
        g.i(f"s_add_u32 s{S_T0}, s{S_T0}, s{S_T1}")
        g.i(f"s_lshl_b32 s{S_T1}, s{S_TB}, 3")
        g.i(f"s_add_u32 s{S_T0}, s{S_T0}, s{S_T1}")
        g.i(f"s_lshl_b32 s{S_T0}, s{S_T0}, 1")
        g.i(f"s_lshr_b32 s{S_T1}, s{S_WAVE}, 2")
        g.i(f"s_add_u32 s{S_T0}, s{S_T0}, s{S_T1}")
        g.i(f"s_lshl_b32 s{S_OW}, s{S_T0}, 15")
        g.i(f"s_lshl_b32 s{S_T0}, s{S_BR}, 10")
        g.i(f"s_add_u32 s{S_OW}, s{S_OW}, s{S_T0}")
        g.i(f"s_lshl_b32 s{S_T0}, s{S_F}, 7")
        g.i(f"s_add_u32 s{S_OW}, s{S_OW}, s{S_T0}")

def attention(g):
    opt = g.opt
    g.lab("L_attn")
    g.stamp(3)
    g.i(f"ds_read_b128 {vr(V_K,4)}, v{V_KA}")
    g.i(f"ds_read_b128 {vr(V_V[0],4)}, v{V_VA}")
    g.i(f"ds_read_b128 {vr(V_V[0]+4,4)}, v{V_VA} offset:512")
    if opt.get('x_em'):
        g.i("s_mov_b32 s100, 0xffff"); g.i("s_mov_b32 s101, 0xffff")
    g.i("s_setprio 3")
    g.i("s_waitcnt lgkmcnt(2)")
    g.i(f"v_mfma_f32_32x32x16_bf16 {vr(V_S[0],16)}, {vr(V_K,4)}, {vr(V_Q[0],4)}, 0")
    dry_exit(g)
    g.i("s_nop 9")
    g.i("s_waitcnt lgkmcnt(0)")
    poll = f"buffer_load_dword v{V_F}, v{V_FA}, s[{S_FL}:{S_FL+3}], 0 offen sc1"
    side = []
    ev = {}
    def at(it, p, slot, *ins): ev.setdefault((it, p, slot), []).extend(ins)
    def kv(i, n):
        return f"buffer_load_dwordx4 v{V_L16}, {sr(S_KV2 if n >= 2 else S_KV, 4)}, s{S_KO[i]} offen offset:{1024*(n%2)}{opt.get('kvl', ' sc1')} lds"
    def check(tag, n):
        def f():
            if n is not None: g.i(f"s_waitcnt vmcnt({n})")
            g.i(f"v_cmp_ne_u32 vcc, 1, v{V_F}")
            g.i("s_nop 0")
            g.i(f"s_and_b32 vcc_lo, vcc_lo, s{S_MK}")
            g.i(f"s_cbranch_scc1 L_ol_{tag}")
            g.lab(f"L_olr_{tag}")
            side.append((tag, lambda: spin_mask(g, tag, poll)))
        return f
    def group(pg, tag, body):
        def f():
            g.i(f"s_cmp_lg_u32 s{S_PG}, {pg}")
            g.i(f"s_cbranch_scc1 L_pg_{tag}")
            body()
            g.lab(f"L_pg_{tag}")
        return f
    def flag():
        g.i(f"s_lshl_b32 s{S_T0}, s{S_TB}, 2")
        g.i(f"s_add_u32 s{S_T0}, s{S_T0}, s{S_WAVE}")
        g.i(f"s_lshl_b64 exec, 1, s{S_T0}")
        g.i("v_mov_b32 v6, 1")
        g.i(f"buffer_store_dword v6, v{V_FA}, s[{S_FL}:{S_FL+3}], 0 offen sc1")
        g.i("s_mov_b64 exec, -1")
    def stores(it, p0, pg):
        for k, (a_, b_) in enumerate(((0, 3), (3, 6), (6, 8))):
            at(it, p0 + k, 'p1', group(pg, f"s{pg}{k}", lambda a_=a_, b_=b_: [g.i(kv_store(n)) for n in range(a_, b_)]))
    def burst(i, it=None, p=None, slot=None):
        sl = i % 2
        if not opt.get('spread', 0):
            return [f"s_mov_b32 m0, s{S_LM[sl][0]}", "s_nop 0", kv(i, 0), kv(i, 1), f"s_mov_b32 m0, s{S_LM[sl][1]}", "s_nop 0", kv(i, 2), kv(i, 3)]
        seq = [(q, k) for q in range(p, 14) for k in ('p2', 'qk', 'p1')]
        seq = seq[seq.index((p, slot)) + 1:]
        at(it, *seq[0], kv(i, 1), f"s_mov_b32 m0, s{S_LM[sl][1]}")
        at(it, *seq[1], kv(i, 2))
        at(it, *seq[2], kv(i, 3))
        return [f"s_mov_b32 m0, s{S_LM[sl][0]}", "s_nop 0", kv(i, 0)]
    def count():
        g.i(f"s_cmp_lg_u32 s{S_WAVE}, 7")
        g.i("s_cbranch_scc1 L_at_nocnt")
        g.i(f"s_lshl_b32 s{S_T0}, s{S_BR}, 4")
        g.i(f"s_add_u32 s{S_T0}, s{S_T0}, s{S_HP}")
        g.i(f"s_lshl_b32 s{S_T0}, s{S_T0}, 3")
        g.i("s_mov_b64 exec, 1")
        g.i(f"v_mov_b32 v6, s{S_T0}")
        g.i("v_mov_b32 v7, 1")
        g.i(f"buffer_atomic_add v7, v6, s[{S_DBG}:{S_DBG+3}], 0 offen offset:4 sc1")
        g.i("s_mov_b64 exec, -1")
        g.lab("L_at_nocnt")
    pp, pi0, pc0, ps1, pi1, pc1, pi3, pc3 = opt.get('ev', (1, 8, 10, 3, 7, 9, 7, 9))
    at(0, pp, 'qk', group(0, "f0", lambda: (g.st('pub_pre'), g.i("s_waitcnt vmcnt(0)"), g.st('pub_ack'), flag())))
    stores(0, ps1, 1)
    at(0, pi0, 'qk', poll)
    at(0, pc0, 'qk', "s_waitcnt vmcnt(0)", group(1, "f1", flag), check("kv0", None), lambda: g.st('chk_ok'), *burst(1, 0, pc0, 'qk'),
       f"s_mov_b32 s{S_MK}, 0xffff")
    at(1, pi1, 'qk', poll)
    at(1, pc1, 'qk', check("kv1", 0), *burst(2, 1, pc1, 'qk'), f"s_mov_b32 s{S_MK}, -1")
    stores(1, pc1 + 1 + opt.get('spread', 0), 2)
    at(2, 15, 'qk', group(2, "f2", flag))
    at(3, pi3, 'qk', poll)
    at(3, pc3, 'p2', check("kv2", 0), *burst(4, 3, pc3, 'p2'))
    late = {i: 0 for i in range(8)}
    dp = opt.get('dma', (1, 3, 5, 7))
    for i in (2, 4, 5, 6):
        sl = (i + 1) % 2
        at(i, dp[0] - 1, 'p2x', f"s_mov_b32 m0, s{S_LM[sl][0]}")
        at(i, dp[0], 'qk', kv(i + 1, 0))
        at(i, dp[1], 'qk', kv(i + 1, 1))
        at(i, dp[2], 'p2', f"s_mov_b32 m0, s{S_LM[sl][1]}")
        at(i, dp[2], 'qk', kv(i + 1, 2))
        at(i, dp[3], 'qk', kv(i + 1, 3))
    wp = opt.get('wop', (11, 13))
    for i in range(1, 5):
        for k, p in enumerate(wp):
            at(i, p, 'p2', f"s_add_u32 m0, s{S_E}, {(2*(i-1)+k)*1024}")
            at(i, p, 'qk', f"buffer_load_dwordx4 v{V_WOA}, s[{S_WO}:{S_WO+3}], s55 offen lds")
            at(i, p, 'p1', "s_add_u32 s55, s55, 8192")
        late[i] += 2
    for k, so in enumerate((S_OA, S_OB)):
        at(5, 9 + 2 * k, 'qk', f"buffer_store_dwordx4 v[252:255], v{V_L16}, s[{S_O}:{S_O+3}], s{so} offen sc1")
    late[5] += 2
    if opt.get('opw', 2):
        i = opt.get('opw', 2)
        at(i, 12, 'p1', f"buffer_store_dwordx4 v[252:255], v{V_OW}, s[{S_OUT}:{S_OUT+3}], s{S_OW} offen sc1", f"s_add_u32 s{S_T0}, s{S_OW}, 16384")
        at(i, 13, 'p1', f"buffer_store_dwordx4 v[252:255], v{V_OW}, s[{S_OUT}:{S_OUT+3}], s{S_T0} offen sc1")
        late[i] += 2
    if opt.get('opr'):
        at(7, 3, 'qk', f"buffer_load_dwordx4 v[236:239], v{V_OW}, s[{S_OUT}:{S_OUT+3}], s{S_OW} offen", f"s_add_u32 s{S_T0}, s{S_OW}, 16384")
        at(7, 5, 'qk', f"buffer_load_dwordx4 v[236:239], v{V_OW}, s[{S_OUT}:{S_OUT+3}], s{S_T0} offen")
    if opt.get('early', 1):
        at(7, 3, 'qk', f"s_lshr_b32 s{S_E}, s{S_WAVE}, 2", f"s_lshr_b32 s{S_T0}, s{S_HP}, 3", f"s_lshl_b32 s{S_T0}, s{S_T0}, 2",
           f"s_and_b32 s{S_T1}, s{S_WAVE}, 3", f"s_add_u32 s{S_A}, s{S_T0}, s{S_T1}")
        at(7, 5, 'qk', f"s_lshl_b32 s{S_T0}, s{S_TB}, 3", f"s_add_u32 s{S_A}, s{S_A}, s{S_T0}", f"s_lshl_b32 s{S_B}, s{S_A}, 15",
           f"s_lshl_b32 s{S_T0}, s{S_E}, 14", f"s_add_u32 s{S_B}, s{S_B}, s{S_T0}")
        if opt.get('orot', 0):
            for k, (d, q) in enumerate(((S_A, 6), (S_C, 7), (S_D, 8), (S_IT, 9))):
                at(7, q, 'p1', f"s_add_u32 s{S_T1}, s{S_F}, {k}", f"s_and_b32 s{S_T1}, s{S_T1}, 3", f"s_lshl_b32 s{S_T1}, s{S_T1}, 12",
                   f"s_add_u32 s{d}, s{S_B}, s{S_T1}")
            at(7, 7, 'qk', f"s_lshl_b32 s{S_T0}, s{S_BR}, 7")
        else:
            at(7, 7, 'qk', f"s_mov_b32 s{S_A}, s{S_B}", f"s_add_u32 s{S_C}, s{S_B}, 4096", f"s_add_u32 s{S_D}, s{S_B}, 8192",
               f"s_add_u32 s{S_IT}, s{S_B}, 12288", f"s_lshl_b32 s{S_T0}, s{S_BR}, 7")
        at(7, 9, 'qk', "v_and_b32 v6, 15, v0", f"v_lshl_add_u32 v{V_CA}, v6, 3, s{S_T0}", f"v_lshlrev_b32 v{V_PA}, 10, v6")
        at(7, opt.get('certp', 13), 'qk', f"buffer_load_dword v236, v{V_CA}, s[{S_DBG}:{S_DBG+3}], 0 offen offset:4 sc1")
        EM = opt.get('earlym', 0)
        def early_probe():
            g.i(f"s_lshr_b32 s{S_T0}, s{S_HP}, 3")
            g.i(f"s_cmp_eq_u32 s{S_T0}, s{S_E}")
            g.i("s_cbranch_scc1 L_at_noprobe")
            g.i(f"buffer_load_dword v237, v{V_PA}, s[{S_O}:{S_O+3}], s{S_B} offen offset:1020 sc1")
            g.lab("L_at_noprobe")
        if EM: at(7, 11, 'qk', "v_mov_b32 v237, -1")
        if EM == 1: at(7, 15, 'p1', early_probe)
        if EM == 2: at(7, 15, 'p1', f"buffer_load_dword v237, v{V_PA}, s[{S_O}:{S_O+3}], s{S_B} offen offset:1020 sc1")
    at(7, 1, 'qk', count)
    if opt.get('x_late0'): late = {i: 0 for i in range(8)}
    prio = opt.get('prio', {0: 3, 5: 2, 10: 1, 13: 0})
    for i in range(8):
        for p, v in prio.items():
            ii, q = (i, p - 1) if p else (i - 1, 15)
            if i == 7 and v == 0 and opt.get('pend', 1): continue
            if ii >= 0: at(ii, q, 'p1', f"s_setprio {v}")
    def emit(it, p, slot):
        for x in ev.pop((it, p, slot), []):
            x() if callable(x) else g.i(x)
    p2, pq, p1 = opt.get('pos', (1, 5, 10))
    for it in range(8):
        if opt.get('itst'):
            g.i("s_memtime s[98:99]")
            g.i("s_memrealtime s[100:101]")
            g.i("s_waitcnt lgkmcnt(0)")
            g.i(f"v_writelane_b32 v250, s98, {it}")
            g.i(f"v_writelane_b32 v250, s100, {it+9}") if it < 7 else None
        for p in range(2 * U):
            b, t = p % 2, p // 2
            S, So = V_S[b], V_S[1 - b]
            nt = (t + 1) % U
            sl = (it + (t == U - 1)) % 2
            VA = V_VB if sl else V_VA
            last = it == 7 and t == U - 1
            skip = last or (opt.get('x_half') and t % 2 == 0)
            for e in range(16):
                g.i(f"v_exp_f32 v{S+e}, v{S+e}")
                if e == p2:
                    tp = (p - 1) // 2
                    if it or p:
                        g.i(f"v_smfmac_f32_32x32x32_bf16 {vr(V_O[1-b],16)}, {vr(V_V[tp%2]+4,4)}, {vr(So+8,8)}, v{V_IDX}")
                    emit(it, p, 'p2x')
                    if b == 0:
                        if t == U - 1 and it < 7:
                            if it == 1:
                                g.i(f"s_waitcnt vmcnt({late[it] + 8})")
                                g.i(f"s_cmp_eq_u32 s{S_PG}, 2")
                                g.i("s_cbranch_scc1 L_w8")
                                g.i(f"s_waitcnt vmcnt({late[it]})")
                                g.lab("L_w8")
                            else: g.i(f"s_waitcnt vmcnt({late[it]})")
                            if it == 0: g.st('chk1_ok')
                            g.i("s_barrier")
                        if not skip:
                            xm = opt.get('x_em') and (it or t)
                            if xm: g.i("s_mov_b64 exec, s[100:101]")
                            g.i(f"ds_read_b128 {vr(V_V[(t+1)%2],4)}, v{VA} offset:{nt*2048}")
                            if xm: g.i("s_mov_b64 exec, -1")
                    elif not last:
                        g.i("s_waitcnt lgkmcnt(1)")
                    emit(it, p, 'p2')
                if e == pq:
                    if not (last and b):
                        g.i(f"v_mfma_f32_32x32x16_bf16 {vr(So,16)}, {vr(V_K,4)}, {vr(V_Q[1-b],4)}, 0")
                    if b == 0 and not skip:
                        g.i(f"ds_read_b128 {vr(V_K,4)}, v{V_KA} offset:{sl*RING+nt*2048}")
                    if b == 0 and skip: g.i("s_nop 0")
                    emit(it, p, 'qk')
                if e == p1:
                    g.i(f"v_smfmac_f32_32x32x32_bf16 {vr(V_O[b],16)}, {vr(V_V[t%2],4)}, {vr(S,8)}, v{V_IDX}")
                    if b == 0 and last: pass
                    elif b == 0 and skip: pass
                    elif b == 0:
                        xm = opt.get('x_em') and (it or t)
                        if xm: g.i("s_mov_b64 exec, s[100:101]")
                        g.i(f"ds_read_b128 {vr(V_V[(t+1)%2]+4,4)}, v{VA} offset:{nt*2048+512}")
                        if xm: g.i("s_mov_b64 exec, -1")
                    elif not last:
                        g.i("s_waitcnt lgkmcnt(0)")
                    emit(it, p, 'p1')
    assert not ev, ev
    g.side = side
    g.lab("L_at_done")
    g.i("s_nop 1")
    g.i(f"v_smfmac_f32_32x32x32_bf16 {vr(V_O[1],16)}, {vr(V_V[1]+4,4)}, {vr(V_S[1]+8,8)}, v{V_IDX}")
    g.i("s_setprio 0")
    g.stamp(4)
    if opt.get('itst'):
        g.i("s_memtime s[98:99]")
        g.i("s_waitcnt lgkmcnt(0)")
        g.i(f"v_writelane_b32 v250, s98, 8")
    g.i(f"s_mov_b32 s{S_T0}, 0x2b800000")
    g.i(f"s_mov_b32 s{S_T1}, 0x53800000")
    g.i(f"s_mov_b32 s{S_T2}, 0x7f800000")
    for q in range(2):
        O = V_O[q]
        g.i(f"v_maximum3_f32 v6, abs(v{O}), abs(v{O+1}), abs(v{O+2})")
        g.i(f"v_maximum3_f32 v7, abs(v{O+3}), abs(v{O+4}), abs(v{O+5})")
        g.i(f"v_maximum3_f32 v6, v6, abs(v{O+6}), abs(v{O+7})")
        g.i(f"v_maximum3_f32 v6, v6, v7, v7")
        g.i(f"v_cmp_nle_f32 s[{S_M}:{S_M+1}], s{S_T0}, v{O+8}")
        g.i(f"v_cmp_nge_f32 s[{S_M+2}:{S_M+3}], s{S_T1}, v{O+8}")
        g.i(f"v_cmp_ngt_f32 vcc, s{S_T2}, v6")
        g.i(f"v_rcp_f32 v{V_S[0]+2*q}, v{O+8}")
        g.i(f"s_or_b64 s[{S_M}:{S_M+1}], s[{S_M}:{S_M+1}], s[{S_M+2}:{S_M+3}]")
        g.i(f"s_or_b64 s[{S_M}:{S_M+1}], s[{S_M}:{S_M+1}], vcc")
        g.i("s_branch L_fallback" if opt.get('force_fallback') else "s_cbranch_scc1 L_fallback")
    g.lab("L_at_store")
    for q in range(2):
        O = V_O[q]
        for r in range(0, 8, 2):
            g.i(f"v_pk_mul_f32 v[{O+r}:{O+r+1}], v[{O+r}:{O+r+1}], v[{V_S[0]+2*q}:{V_S[0]+2*q+1}] op_sel_hi:[1,0]")
        for r in range(4):
            g.i(f"v_cvt_pk_bf16_f32 v{O+r}, v{O+2*r}, v{O+2*r+1}")
        g.i(f"buffer_store_dwordx4 {vr(O,4)}, v{V_L16}, s[{S_O}:{S_O+3}], s{S_OB if q else S_OA} offen sc1")

P_WO = 100
P_OF = 8
def outproj(g):
    opt = g.opt
    A0, A1 = 228, 72
    WA0, WA1, RA = 244, 245, 246
    def o_loads(fl=' sc1'):
        for s in range(16):
            so = (S_A, S_C, S_D, S_IT)[s // 4]
            g.i(f"buffer_load_dwordx4 {vr(P_OF+4*s,4)}, v{V_L16}, s[{S_O}:{S_O+3}], s{so} offen offset:{1024*(s%4)}{fl}")
    if opt.get('x_ack'): g.i("s_waitcnt vmcnt(0)")
    g.stamp(5)
    g.i("s_waitcnt vmcnt(2)")
    g.i("v_cmp_gt_u32 vcc, 8, v236")
    g.i(f"s_mov_b32 s{S_T3}, 0")
    if opt.get('earlym', 0):
        g.i(f"v_cmp_eq_u32 s[{S_M}:{S_M+1}], -1, v237")
        g.i("s_nop 0")
        g.i(f"s_or_b64 s[{S_M}:{S_M+1}], s[{S_M}:{S_M+1}], vcc")
    if opt.get('earlym', 0):
        g.i("s_cbranch_scc1 L_op_later")
        o_loads()
        g.lab("L_op_later")
    g.i(f"s_lshl_b32 s{S_T0}, s{S_E}, 15")
    g.i(f"s_add_u32 s{S_T0}, s{S_T0}, {L_WO}")
    g.i("v_lshrrev_b32 v6, 5, v0")
    g.i("v_bfe_u32 v7, v0, 2, 2")
    g.i("v_lshl_add_u32 v6, v6, 2, v7")
    g.i(f"v_lshl_add_u32 v6, v6, 7, s{S_T0}")
    g.i("v_bfe_u32 v7, v0, 3, 2")
    g.i("v_and_b32 v2, 1, v7")
    g.i("v_lshl_add_u32 v6, v2, 6, v6")
    g.i("v_lshrrev_b32 v7, 1, v7")
    g.i("v_lshl_add_u32 v6, v7, 5, v6")
    g.i("v_and_b32 v7, 3, v0")
    g.i(f"v_lshl_add_u32 v6, v7, 3, v6")
    g.i(f"s_lshl_b32 s{S_T0}, s{S_E}, 6")
    g.i(f"v_xor_b32 v{WA0}, s{S_T0}, v6")
    g.i(f"v_xor_b32 v{WA1}, 64, v{WA0}")
    for s in range(16):
        if s and s % 3 == 0: g.i("s_waitcnt lgkmcnt(2)")
        for f in range(2):
            for i in range(2):
                g.i(f"ds_read_b64_tr_b16 {vr(P_WO+8*s+4*f+2*i,2)}, v{WA1 if f else WA0} offset:{s*2048+i*1024}")
    g.i(f"s_lshl_b32 s{S_T0}, s{S_WAVE}, 12")
    g.i(f"v_add_u32 v{RA}, s{S_T0}, v{V_L16}")
    g.i(f"s_and_b32 s{S_T0}, s{S_WAVE}, 3")
    g.i(f"s_lshl_b32 s{S_T0}, s{S_T0}, 12")
    g.i(f"s_add_u32 s{S_T0}, s{S_T0}, {RING}")
    g.i("v_and_b32 v6, 31, v0")
    g.i(f"v_lshl_add_u32 v6, v6, 7, s{S_T0}")
    g.i("v_lshrrev_b32 v7, 5, v0")
    g.i(f"v_lshl_add_u32 v7, s{S_E}, 2, v7")
    g.i("v_and_b32 v91, 7, v0")
    g.i("v_xor_b32 v7, v7, v91")
    g.i("v_lshl_add_u32 v88, v7, 4, v6")
    g.i("v_xor_b32 v89, 32, v88")
    g.i("v_lshrrev_b32 v6, 3, v0")
    g.i("v_xor_b32 v7, v6, v91")
    g.i(f"v_lshl_add_u32 v6, v6, 7, s{S_T0}")
    g.i("v_lshl_add_u32 v6, v7, 4, v6")
    g.i(f"v_lshl_add_u32 v90, s{S_E}, 11, v6")
    g.st('t_tr')
    if opt.get('earlym', 0):
        g.i(f"s_cmp_eq_u64 s[{S_M}:{S_M+1}], 0")
        g.i("s_cbranch_scc1 L_op_mm")
    g.i("s_cbranch_vccz L_spin_o")
    g.lab("L_spin_c")
    g.i(f"buffer_load_dword v5, v{V_CA}, s[{S_DBG}:{S_DBG+3}], 0 offen offset:4 sc1")
    g.i(f"s_add_u32 s{S_T3}, s{S_T3}, 1")
    g.i(f"s_cmp_ge_u32 s{S_T3}, {SPIN_MAX}")
    g.i("s_cbranch_scc1 L_spin_o")
    g.i("s_waitcnt vmcnt(0)")
    g.i("v_cmp_gt_u32 vcc, 8, v5")
    g.i("s_cbranch_vccnz L_spin_c")
    g.lab("L_spin_o")
    g.i(f"buffer_load_dword v3, v{V_PA}, s[{S_O}:{S_O+3}], s{S_B} offen offset:1020 sc1")
    g.i(f"s_add_u32 s{S_T3}, s{S_T3}, 1")
    g.i(f"s_cmp_ge_u32 s{S_T3}, {SPIN_MAX}")
    g.i("s_cbranch_scc1 L_spun_o")
    g.i("s_waitcnt vmcnt(0)")
    g.i("v_cmp_eq_u32 vcc, -1, v3")
    if opt.get('sleep'): g.i(f"s_cbranch_vccz L_spun_o"); g.i(f"s_sleep {opt['sleep']}"); g.i("s_branch L_spin_o")
    g.i("s_cbranch_vccnz L_spin_o")
    g.lab("L_spun_o")
    g.st('t_ok')
    if 'ofl' in opt:
        g.i(f"s_cmp_lg_u32 s{S_PG}, 99")
        g.i(f"s_mov_b32 s{S_PG}, 99")
        g.i("s_cbranch_scc1 L_op_first")
        o_loads()
        g.i("s_branch L_op_mm")
        g.lab("L_op_first")
        o_loads(opt['ofl'])
    else:
        o_loads()
    g.lab("L_op_mm")
    g.stamp(6)
    g.i("v_mov_b32 v3, 0")
    g.i("s_waitcnt lgkmcnt(0)")
    for s in range(16):
        g.i(f"s_waitcnt vmcnt({15-s})")
        if s == 0: g.st('t_f0')
        if s == 15: g.st('t_f15')
        for f, A in ((1, A1), (0, A0)):
            g.i(f"v_mfma_f32_32x32x16_bf16 {vr(A,16)}, {vr(P_WO+8*s+4*f,4)}, {vr(P_OF+4*s,4)}, {vr(A,16) if s else 0}")
            g.i(f"v_max3_u32 v3, v3, v{P_OF+4*s+2*f}, v{P_OF+4*s+2*f+1}")
    g.i("v_cmp_eq_u32 vcc, -1, v3")
    g.i(f"s_cmp_ge_u32 s{S_T3}, {SPIN_MAX}")
    g.i("s_cbranch_scc1 L_op_go")
    g.i("s_cbranch_vccnz L_spin_o")
    g.lab("L_op_go")
    g.i("s_nop 5")
    for r in range(4):
        g.i(f"ds_write_b128 v{RA}, {vr(A1+4*r,4)} offset:{1024*r}")
    g.i("s_waitcnt lgkmcnt(0)")
    g.i(f"v_xor_b32 v{RA}, 16384, v{RA}")
    g.st('t_b9a')
    barrier_unless_dry(g, "b9")
    g.st('t_b9')
    for r in range(4):
        g.i(f"ds_read_b128 {vr(P_OF+4*r,4)}, v{RA} offset:{1024*r}")
    for r in range(4):
        g.i(f"s_waitcnt lgkmcnt({3-r})")
        for k in range(4):
            g.i(f"v_add_f32 v{A0+4*r+k}, v{A0+4*r+k}, v{P_OF+4*r+k}")
        for k in range(2):
            g.i(f"v_cvt_pk_bf16_f32 v{24+2*r+k}, v{A0+4*r+2*k}, v{A0+4*r+2*k+1}")
        if r % 2:
            g.i("s_nop 1")
            g.i(f"v_permlane32_swap_b32 v{24+2*r-2}, v{24+2*r}")
            g.i(f"v_permlane32_swap_b32 v{24+2*r-1}, v{24+2*r+1}")
            g.i(f"ds_write_b128 v{88+r//2}, {vr(24+2*r-2,4)}")
    if True:
        g.i(f"s_add_u32 s{S_T0}, s{S_OW}, 16384")
        g.i("s_waitcnt lgkmcnt(0)")
        barrier_unless_dry(g, "b10")
        g.i("ds_read_b128 v[24:27], v90")
        g.i("ds_read_b128 v[28:31], v90 offset:1024")
        g.i("s_waitcnt lgkmcnt(1)")
        g.i(f"buffer_store_dwordx4 v[24:27], v{V_OW}, s[{S_OUT}:{S_OUT+3}], s{S_OW} offen{opt.get('outs','')}")
        g.i("s_waitcnt lgkmcnt(0)")
        g.i(f"buffer_store_dwordx4 v[28:31], v{V_OW}, s[{S_OUT}:{S_OUT+3}], s{S_T0} offen{opt.get('outs','')}")
    dry_exit(g)
    if g.diag:
        g.i("s_waitcnt vmcnt(0)")
        g.stamp(7)
        g.i("s_waitcnt lgkmcnt(0)")
        if g.diag == 3:
            a_, b_, K = opt['leak']
            if opt.get('leakw'):
                g.i(f"s_cmp_lt_u32 s{S_WAVE}, 4")
                g.i("s_cbranch_scc1 L_end")
            elif a_ in (1, 2) or b_ in (1, 2):
                g.i(f"s_cmp_ge_u32 s{S_WAVE}, 4")
                g.i("s_cbranch_scc1 L_end")
            if opt.get('leakc'):
                g.i(f"s_sub_u32 s{S_T0}, s{64+4*b_}, s{64+4*a_}")
                g.i(f"s_lshr_b32 s{S_T0}, s{S_T0}, 4")
            else:
                g.i(f"s_sub_u32 s{S_T0}, s{66+4*b_}, s{66+4*a_}")
            g.i(f"s_mul_i32 s{S_T0}, s{S_T0}, {K}")
            g.lab("L_leak")
            g.i("s_memrealtime s[98:99]")
            g.i("s_waitcnt lgkmcnt(0)")
            g.i(f"s_sub_u32 s{S_T1}, s98, s{66+4*7}")
            g.i(f"s_cmp_lt_u32 s{S_T1}, s{S_T0}")
            g.i("s_cbranch_scc1 L_leak")
            g.i("s_endpgm")
        if g.diag == 2:
            g.i(f"s_cmp_ge_u32 s{S_WAVE}, 4")
            g.i("s_cbranch_scc1 L_end")
            g.i("s_mov_b64 exec, 1")
            for k in range(1, 8):
                g.i(f"s_sub_u32 s{S_T0}, s{66+4*k}, s66")
                g.i(f"v_mov_b32 v6, s{S_T0}")
                g.i(f"v_mov_b32 v7, {8*k+4}")
                g.i(f"buffer_atomic_umax v6, v7, s[{S_DBG}:{S_DBG+3}], 0 offen sc1")
            g.i(f"s_sub_u32 s{S_T0}, s{64+4*4}, s{64+4*3}")
            g.i(f"v_mov_b32 v6, s{S_T0}")
            g.i(f"v_mov_b32 v7, 4")
            g.i(f"buffer_atomic_umax v6, v7, s[{S_DBG}:{S_DBG+3}], 0 offen sc1")
            g.i("s_endpgm")
        g.i(f"s_lshl_b32 s{S_T0}, s2, 3")
        g.i(f"s_add_u32 s{S_T0}, s{S_T0}, s{S_WAVE}")
        g.i(f"s_lshl_b32 s{S_T0}, s{S_T0}, 7")
        g.i(f"s_add_u32 s{S_T0}, s{S_T0}, {WS_STAMP}")
        srd(g.a, S_X, 96, 128, f"s{S_T0}")
        for k in range(32):
            g.i(f"v_mov_b32 v{36+k}, s{64+k}")
        g.i("v_mov_b32 v6, 0")
        for k in range(8):
            g.i(f"buffer_store_dwordx4 {vr(36+4*k,4)}, v6, s[{S_X}:{S_X+3}], 0 offen offset:{16*k}")
        if opt.get('itst'):
            g.i(f"s_add_u32 s{S_T0}, s{S_T0}, {1<<20}")
            srd(g.a, S_X, 96, 64, f"s{S_T0}")
            g.i("v_lshlrev_b32 v6, 2, v0")
            g.i(f"buffer_store_dword v250, v6, s[{S_X}:{S_X+3}], 0 offen")
    g.lab("L_end")
    g.i("s_endpgm")

def fallback(g):
    C = [100, 116]; M = [132, 133]; GV = 134
    g.lab("L_fallback")
    g.i(f"s_lshr_b32 s{S_T0}, s{S_WAVE}, 2")
    g.i(f"s_lshl_b32 s{S_T0}, s{S_T0}, 17")
    g.i(f"v_mov_b32 v{M[0]}, 0xff800000")
    g.i(f"v_mov_b32 v{M[1]}, 0xff800000")
    g.i(f"s_mov_b32 s{S_T1}, s{S_T0}")
    g.i(f"s_add_u32 s{S_T2}, s{S_T0}, 131072")
    g.lab("L_fb_max")
    g.i(f"buffer_load_dwordx4 {vr(V_K,4)}, v{V_L16}, s[{S_KV}:{S_KV+3}], s{S_T1} offen sc1")
    g.i(f"s_add_u32 s{S_T1}, s{S_T1}, 2048")
    g.i("s_waitcnt vmcnt(0)")
    for q in range(2):
        g.i(f"v_mfma_f32_32x32x16_bf16 {vr(V_S[q],16)}, {vr(V_K,4)}, {vr(V_Q[q],4)}, 0")
    g.i("s_nop 15")
    for q in range(2):
        for r in range(0, 16, 2):
            g.i(f"v_max3_f32 v{M[q]}, v{M[q]}, v{V_S[q]+r}, v{V_S[q]+r+1}")
    g.i(f"s_cmp_lt_u32 s{S_T1}, s{S_T2}")
    g.i("s_cbranch_scc1 L_fb_max")
    for q in range(2):
        g.i(f"v_mov_b32 v6, v{M[q]}")
        g.i(f"v_mov_b32 v7, v{M[q]}")
        g.i("s_nop 1")
        g.i("v_permlane32_swap_b32 v6, v7")
        g.i("s_nop 1")
        g.i("v_max_f32 v6, v6, v7")
        for r in range(16):
            g.i(f"v_sub_f32 v{C[q]+r}, 0, v6")
            g.i(f"v_mov_b32 v{V_O[q]+r}, 0")
    g.i("v_and_b32 v6, 15, v0")
    g.i("v_lshlrev_b32 v6, 4, v6")
    g.i("v_lshrrev_b32 v7, 5, v0")
    g.i(f"v_lshl_add_u32 v{GV}, v7, 8, v6")
    for r in range(8):
        g.i(f"v_mov_b32 v{V_V[0]+r}, 0x3f803f80")
    g.i(f"s_mov_b32 s{S_T1}, s{S_T0}")
    g.i(f"s_mov_b32 s{S_M}, 0xffff")
    g.i(f"s_mov_b32 s{S_M+1}, 0xffff")
    g.lab("L_fb_pv")
    g.i(f"buffer_load_dwordx4 {vr(V_K,4)}, v{V_L16}, s[{S_KV}:{S_KV+3}], s{S_T1} offen sc1")
    g.i(f"s_mov_b64 exec, s[{S_M}:{S_M+1}]")
    g.i(f"buffer_load_dwordx4 {vr(V_V[0],4)}, v{GV}, s[{S_KV}:{S_KV+3}], s{S_T1} offen offset:1024 sc1")
    g.i(f"buffer_load_dwordx4 {vr(V_V[0]+4,4)}, v{GV}, s[{S_KV}:{S_KV+3}], s{S_T1} offen offset:1536 sc1")
    g.i("s_mov_b64 exec, -1")
    g.i(f"s_add_u32 s{S_T1}, s{S_T1}, 2048")
    g.i("s_waitcnt vmcnt(0)")
    for q in range(2):
        g.i(f"v_mfma_f32_32x32x16_bf16 {vr(V_S[q],16)}, {vr(V_K,4)}, {vr(V_Q[q],4)}, {vr(C[q],16)}")
    g.i("s_nop 15")
    for q in range(2):
        for r in range(16):
            g.i(f"v_exp_f32 v{V_S[q]+r}, v{V_S[q]+r}")
    g.i("s_nop 3")
    for q in range(2):
        for h in range(2):
            g.i(f"v_smfmac_f32_32x32x32_bf16 {vr(V_O[q],16)}, {vr(V_V[0]+4*h,4)}, {vr(V_S[q]+8*h,8)}, v{V_IDX}")
    g.i("s_nop 15")
    g.i(f"s_cmp_lt_u32 s{S_T1}, s{S_T2}")
    g.i("s_cbranch_scc1 L_fb_pv")
    for q in range(2):
        g.i(f"v_rcp_f32 v{V_S[0]+2*q}, v{V_O[q]+8}")
    g.i("s_nop 1")
    g.i("s_branch L_at_store")

HEADER = open('cdna_kernels/' + NAME + '.s.ref').read().split('; Override launch')[0]

DOC = """;
; One persistent launch, 256 workgroups (one per CU) x 8 waves.  Workgroup = (branch, head pair hp, block tb of 256 tokens).
;  1. QKV projection of the 256 tokens x 96 columns (q,k,v of the two heads).  Waves 4-7 stream x and wqkv into a 3-slot
;     O^T += [V^T; 1] P^T with v_smfmac_f32_32x32x32_bf16 whose 2:4 index picks the upper halves of the fp32 p registers
;     (bf16 p without a pack instruction; the row of ones gives the softmax denominator from the same p).
;     first filled with an all-ones pattern, a consumer accepts a fragment when no word holds the pattern any more.
; Generated by a Python script (register maps and schedules are spelled out below)."""

def generate(opt={}):
    global WS_KV, WS_O, WS_FLAG
    off = opt.get('wsoff', 0) << 20
    WS_KV, WS_O, WS_FLAG = (4 << 20) + off, (12 << 20) + off, (16 << 20) + off
    g = G(opt)
    name = NAME + "_kernel"
    g.a(HEADER.rstrip())
    g.a(f"; @launch grid=(256,1,1) block=(512,1,1) lds={LDS_TOTAL}")
    g.a(DOC)
    g.a('.amdgcn_target "amdgcn-amd-amdhsa--gfx950"')
    entry(g, name)
    if opt.get('lfirst', 1): loader(g)
    compute(g)
    attention(g)
    outproj(g)
    if not opt.get('lfirst', 1): loader(g)
    g.lab("L_code_end")
    for tag, body in g.side:
        g.lab(f"L_ol_{tag}")
        body()
        g.i(f"s_branch L_olr_{tag}")
    fallback(g)
    kernel_desc(g.a, name, NVGPR, 256, 102)
    return g.a.text()

if __name__ == "__main__":
    import sys
    opt = eval(sys.argv[2]) if len(sys.argv) > 2 else {}
    open(sys.argv[1], 'w').write(generate(opt))
```

```python
import math, struct
from common import *

WS_FLAG = 16 << 20
SLOT = 45056; SLOT_W = 32768
RING = 32768
L_WO = 65536
L_CONST = 135168
L_QX = 155648
LDS_TOTAL = 163840
S_X, S_W, S_WO, S_KV, S_O, S_FL, S_DBG, S_OUT = 8, 12, 16, 20, 24, 28, 32, 36
S_WAVE, S_BR, S_HP, S_TB, S_IT, S_T0, S_T1, S_T2, S_T3 = 40, 41, 42, 43, 44, 45, 46, 47, 48
S_A, S_B, S_C, S_D, S_E, S_F = 49, 50, 51, 52, 53, 54
S_G1, S_G2, S_PG = 58, 59, 60
KG, KL, VG, VL, QL, KVT = 244, 245, 247, 248, 249, 204
S_M = 56
V_L16, V_KA, V_VA, V_VX, V_IDX, V_T0, V_T1 = 1, 2, 3, 4, 5, 6, 7
V_Q = [8, 12]; V_K = 16; V_V = [20, 28]; V_S = [36, 52]; V_O = [68, 84]
V_F = 241
V_FA = 242
V_OW = 251
V_CA, V_PA = 248, 249
V_WOA = 243
V_ACC = 100
V_FR = [196, 216]
V_XA = 236; V_WA = 240
NVGPR = 256
QSCALE = struct.unpack('<I', struct.pack('<f', 0.25 * math.log2(math.e)))[0]
SPIN_MAX = 1 << 20
S_DRY = 3

class G:
    def __init__(self, opt):
        self.a = Asm(); self.opt = opt; self.diag = opt.get('diag', 0)
    def i(self, s): self.a.i(s)
    def lab(self, s): self.a.label(s)
    def st(self, name):
        m = self.opt.get('st', {})
        if name in m: self.stamp(m[name], True)
    def stamp(self, k, forced=False):
        if k in self.opt.get('st', {}).values() and not forced: return
        if self.diag:
            self.i(f"s_memtime s[{64+4*k}:{65+4*k}]")
            self.i(f"s_memrealtime s[{66+4*k}:{67+4*k}]")

def dry_exit(g, label="L_dry_ret"):
    if g.opt.get('dry', 1):
        g.i(f"s_cmp_lg_u32 s{S_DRY}, 0")
        g.i(f"s_cbranch_scc1 {label}")

def barrier_unless_dry(g, tag):
    dry_exit(g, f"L_nb_{tag}")
    g.i("s_barrier")
    g.lab(f"L_nb_{tag}")

def spin(g, tag, load, want, nlanes_mask=None):
    g.i(f"s_mov_b32 s{S_T3}, 0")
    g.lab(f"L_spin_{tag}")
    g.i(load)
    g.i(f"s_add_u32 s{S_T3}, s{S_T3}, 1")
    g.i("s_waitcnt vmcnt(0)")
    g.i(f"v_cmp_{'gt' if want > 1 else 'ne'}_u32 vcc, {want}, v{V_F}")
    g.i(f"s_cmp_ge_u32 s{S_T3}, {SPIN_MAX}")
    g.i(f"s_cbranch_scc1 L_spun_{tag}")
    g.i(f"s_cbranch_vccnz L_spin_{tag}")
    g.lab(f"L_spun_{tag}")

def entry(g, name):
    a = g.a
    kernel_head(a, name)
    PF = g.opt.get('cpf', 4)
    if PF in (2, 3):
        g.i("s_getpc_b64 s[16:17]")
    if PF == 1:
        g.i("s_getpc_b64 s[8:9]")
        g.i("v_lshlrev_b32 v6, 7, v0")
        g.i("s_mov_b32 s10, L_code_end-" + name + "-4")
        g.i("s_mov_b32 s11, 0x20000")
    if PF == 4:
        g.i("s_getpc_b64 s[8:9]")
        g.i("v_lshlrev_b32 v6, 7, v0")
        g.i("s_lshl_b32 s4, s2, 7")
        g.i("s_and_b32 s4, s4, 0x7c00")
        g.i("s_add_u32 s10, s4, 1024")
        g.i("s_min_u32 s10, s10, L_code_end-" + name + "-4")
        g.i("s_mov_b32 s11, 0x20000")
    g.i("s_cmp_ge_u32 s2, 256")
    g.i("s_cbranch_scc1 L_end")
    if PF == 1:
        g.i("buffer_load_dword v246, v6, s[8:11], 0 offen")
    if PF == 4:
        g.i("buffer_load_dword v246, v6, s[8:11], s4 offen")
    g.stamp(0)
    g.i(f"s_mov_b32 s{S_DRY}, 0")
    g.i(f"s_bfe_u32 s{S_BR}, s2, 0x10002")
    g.i(f"s_mul_i32 s{S_T0}, s{S_BR}, 24")
    g.i(f"s_load_dwordx4 s[{S_M}:{S_M+3}], s[0:1], s{S_T0}")
    g.i(f"s_load_dwordx2 s[{S_M+4}:{S_M+5}], s[0:1], s{S_T0} offset:16")
    g.i("s_load_dwordx4 s[4:7], s[0:1], 48")
    g.i(f"s_load_dwordx2 s[{S_M+6}:{S_M+7}], s[0:1], 64")
    g.i("v_lshrrev_b32 v6, 6, v0")
    g.i("v_and_b32 v0, 63, v0")
    g.i(f"v_readfirstlane_b32 s{S_WAVE}, v6")
    g.i(f"v_lshlrev_b32 v{V_L16}, 4, v0")
    g.i(f"s_bfe_u32 s{S_HP}, s2, 0x10001")
    g.i(f"s_lshl_b32 s{S_HP}, s{S_HP}, 3")
    g.i(f"s_bfe_u32 s{S_T0}, s2, 0x30003")
    g.i(f"s_add_u32 s{S_HP}, s{S_HP}, s{S_T0}")
    g.i(f"s_and_b32 s{S_TB}, s2, 1")
    g.i(f"s_lshl_b32 s{S_TB}, s{S_TB}, 2")
    g.i(f"s_lshr_b32 s{S_T0}, s2, 6")
    g.i(f"s_add_u32 s{S_TB}, s{S_TB}, s{S_T0}")
    g.i(f"s_lshl_b32 s{S_T0}, s{S_TB}, 18")
    g.i(f"s_lshl_b32 s{S_T1}, s{S_BR}, 4")
    g.i(f"s_add_u32 s{S_T1}, s{S_T1}, s{S_HP}")
    g.i(f"s_lshl_b32 s{S_T2}, s{S_T1}, 18")
    g.i(f"s_add_u32 s{S_T2}, s{S_T2}, {WS_KV}")
    g.i(f"s_lshl_b32 s{S_T3}, s{S_BR}, 21")
    g.i(f"s_add_u32 s{S_T3}, s{S_T3}, {WS_O}")
    if g.opt.get('lfirst', 1):
        g.i(f"s_cmp_lt_u32 s{S_WAVE}, 4")
        g.i("s_cbranch_scc1 L_compute")
    else:
        g.i(f"s_cmp_ge_u32 s{S_WAVE}, 4")
        g.i("s_cbranch_scc1 L_loader")

def early_srds(g):
    g.i("s_waitcnt lgkmcnt(0)")
    g.st('karg')
    srd(g.a, S_X, S_M, 256 * 1024, f"s{S_T0}")
    srd(g.a, S_W, S_M + 2, 512 * 1536 * 2)

def late_srds(g):
    a = g.a
    srd(a, S_WO, S_M + 4, 512 * 512 * 2)
    srd(a, S_KV, S_M + 6, 256 * 1024, f"s{S_T2}")
    srd(a, S_O, S_M + 6, 2 << 20, f"s{S_T3}")
    srd(a, S_FL, S_M + 6, 4096, str(WS_FLAG))
    srd(a, S_DBG, 6, 256)
    srd(a, S_OUT, 4, 2048 * 1024 * 2)
    if g.diag:
        g.i(f"s_mov_b32 s96, s{S_M+6}")
        g.i(f"s_mov_b32 s97, s{S_M+7}")

def attn_consts(g):
    g.i(f"s_lshr_b32 s{S_T0}, s{S_WAVE}, 2")
    g.i(f"s_lshl_b32 s{S_T0}, s{S_T0}, 14")
    g.i(f"v_add_u32 v{V_KA}, s{S_T0}, v{V_L16}")
    g.i(f"v_and_b32 v{V_T0}, 15, v0")
    g.i(f"v_lshlrev_b32 v{V_T0}, 4, v{V_T0}")
    g.i(f"v_lshrrev_b32 v{V_T1}, 5, v0")
    g.i(f"v_lshl_add_u32 v{V_T0}, v{V_T1}, 8, v{V_T0}")
    g.i(f"s_add_u32 s{S_T0}, s{S_T0}, 1024")
    g.i(f"v_add_u32 v{V_VA}, s{S_T0}, v{V_T0}")
    g.i(f"v_and_b32 v{V_T0}, 31, v0")
    g.i(f"v_subrev_u32 v{V_T1}, 20, v{V_T0}")
    g.i(f"v_cmp_gt_u32 vcc, 8, v{V_T1}")
    g.i(f"v_mov_b32 v{V_T1}, {L_CONST+16}")
    g.i(f"v_mov_b32 v{V_VX}, {L_CONST+16+64}")
    g.i(f"v_cndmask_b32 v{V_T1}, v{V_T1}, v{V_VX}, vcc")
    g.i(f"v_and_b32 v{V_VX}, {31 if g.opt.get('x_one') else 27}, v0")
    g.i(f"v_cmp_eq_u32 vcc, 16, v{V_VX}")
    g.i(f"v_subrev_u32 v{V_VX}, 16, v{V_T1}")
    g.i("s_nop 0")
    g.i(f"v_cndmask_b32 v{V_T1}, v{V_T1}, v{V_VX}, vcc")
    g.i(f"v_cmp_gt_u32 vcc, 16, v{V_T0}")
    g.i(f"v_mov_b32 v{V_T0}, {RING}")
    g.i(f"v_mov_b32 v{V_IDX}, 0xdddd")
    g.i(f"v_cndmask_b32 v{V_VA}, v{V_T1}, v{V_VA}, vcc")
    g.i(f"v_cndmask_b32 v{V_VX}, 0, v{V_T0}, vcc")
    g.i(f"v_add_u32 v{V_VX}, v{V_VX}, v{V_VA}")
    g.i("v_lshrrev_b32 v7, 3, v0")
    g.i("v_lshlrev_b32 v7, 11, v7")
    g.i(f"v_and_b32 v{V_OW}, 7, v0")
    g.i(f"v_lshl_add_u32 v{V_OW}, v{V_OW}, 4, v7")
    g.i(f"v_mov_b64 v[{V_CA}:{V_PA}], 0")
    g.i(f"v_mov_b32 v{KG}, 0")
    g.i(f"v_mov_b32 v{VG}, 0")
    g.i("v_mov_b64 v[252:253], -1")
    g.i("v_mov_b64 v[254:255], -1")
    for r in range(0, 32, 2):
        g.i(f"v_mov_b64 v[{V_O[0]+r}:{V_O[0]+r+1}], 0")
    g.i(f"s_lshl_b32 s{S_T0}, s{S_BR}, 4")
    g.i(f"s_add_u32 s{S_T0}, s{S_T0}, s{S_HP}")
    g.i(f"s_lshl_b32 s{S_T0}, s{S_T0}, 7")
    g.i(f"v_and_b32 v6, 31, v0")
    g.i(f"v_lshl_add_u32 v{V_FA}, v6, 2, s{S_T0}")
    g.i(f"v_lshrrev_b32 v{V_T0}, 2, v0")
    g.i(f"v_and_b32 v{V_T0}, 4, v{V_T0}")
    g.i(f"v_and_b32 v{V_T1}, 7, v0")
    g.i(f"v_xor_b32 v{V_T0}, v{V_T0}, v{V_T1}")
    g.i(f"v_lshlrev_b32 v{V_T0}, 4, v{V_T0}")
    g.i(f"v_lshrrev_b32 v{V_T1}, 3, v0")
    g.i(f"v_lshl_add_u32 v{V_WOA}, v{V_T1}, 10, v{V_T0}")

def consts(g):
    g.i(f"s_cmp_lg_u32 s{S_WAVE}, 4")
    g.i("s_cbranch_scc1 L_ld_noconst")
    g.i("v_lshrrev_b32 v6, 2, v0")
    g.i("v_and_b32 v7, 1, v6")
    g.i("v_lshlrev_b32 v7, 9, v7")
    g.i("v_lshrrev_b32 v6, 1, v6")
    g.i("v_lshl_add_u32 v7, v6, 11, v7")
    g.i("v_and_b32 v6, 1, v0")
    g.i("v_lshl_add_u32 v7, v6, 4, v7")
    g.i("v_cmp_eq_u32 vcc, 0, v6")
    g.i("v_and_b32 v6, 2, v0")
    g.i("v_lshl_add_u32 v7, v6, 5, v7")
    g.i("v_mov_b32 v6, 0x3f803f80")
    g.i(f"v_add_u32 v7, {L_CONST}, v7")
    g.i("v_cndmask_b32 v108, 0, v6, vcc")
    g.i("v_cndmask_b32 v109, 0, v6, vcc")
    g.i("v_cndmask_b32 v110, 0, v6, vcc")
    g.i("v_cndmask_b32 v111, 0, v6, vcc")
    g.i("ds_write_b128 v7, v[108:111]")
    g.lab("L_ld_noconst")

def loader(g):
    VX, VW, VT = 100, 104, 112
    LEAD = g.opt.get('lead', 0)
    g.lab("L_loader")
    g.i(f"s_sub_u32 s{S_A}, s{S_WAVE}, 4")
    S_CH, S_TX = S_F, 55
    RM = g.opt.get('rot', 7)
    if RM == 1:
        g.i(f"s_lshl_b32 s{S_CH}, s{S_TB}, 1")
        g.i(f"s_lshr_b32 s{S_T1}, s{S_TB}, 2")
        g.i(f"s_add_u32 s{S_CH}, s{S_CH}, s{S_T1}")
        g.i(f"s_and_b32 s{S_CH}, s{S_CH}, 7")
    elif RM == 2:
        g.i(f"s_mov_b32 s{S_CH}, s{S_TB}")
    elif RM == 7:
        g.i(f"s_and_b32 s{S_T1}, s{S_HP}, 1")
        g.i(f"s_lshl_b32 s{S_T1}, s{S_T1}, 2")
        g.i(f"s_add_u32 s{S_CH}, s{S_TB}, s{S_T1}")
        g.i(f"s_and_b32 s{S_CH}, s{S_CH}, 7")
    elif RM == 8:
        g.i(f"s_lshl_b32 s{S_CH}, s{S_TB}, 1")
        g.i(f"s_bfe_u32 s{S_T1}, s{S_HP}, 0x10001")
        g.i(f"s_add_u32 s{S_CH}, s{S_CH}, s{S_T1}")
        g.i(f"s_and_b32 s{S_CH}, s{S_CH}, 7")
    elif RM == 9:
        g.i(f"s_lshl_b32 s{S_CH}, s{S_TB}, 1")
        g.i(f"s_and_b32 s{S_T1}, s{S_HP}, 3")
        g.i(f"s_add_u32 s{S_CH}, s{S_CH}, s{S_T1}")
        g.i(f"s_and_b32 s{S_CH}, s{S_CH}, 7")
    elif RM == 10:
        g.i(f"s_and_b32 s{S_CH}, s2, 7")
    elif RM == 11:
        g.i(f"s_and_b32 s{S_CH}, s2, 3")
        g.i(f"s_lshl_b32 s{S_CH}, s{S_CH}, 1")
        g.i(f"s_add_u32 s{S_CH}, s{S_CH}, s{S_BR}")
    elif RM == 0:
        g.i(f"s_mov_b32 s{S_CH}, 0")
    elif RM == 6:
        g.i(f"s_lshl_b32 s{S_CH}, s{S_TB}, 1")
        g.i(f"s_add_u32 s{S_CH}, s{S_CH}, s{S_HP}")
        g.i(f"s_and_b32 s{S_CH}, s{S_CH}, 7")
    elif RM == 4:
        g.i(f"s_lshl_b32 s{S_CH}, s{S_TB}, 1")
        g.i(f"s_add_u32 s{S_CH}, s{S_CH}, s{S_HP}")
        g.i(f"s_and_b32 s{S_CH}, s{S_CH}, 3")
        g.i(f"s_lshl_b32 s{S_CH}, s{S_CH}, 1")
    elif RM == 5:
        g.i(f"s_add_u32 s{S_CH}, s{S_TB}, s{S_HP}")
        g.i(f"s_and_b32 s{S_CH}, s{S_CH}, 3")
        g.i(f"s_lshl_b32 s{S_CH}, s{S_CH}, 1")
    elif RM == 3:
        g.i(f"s_lshl_b32 s{S_CH}, s{S_TB}, 1")
        g.i(f"s_and_b32 s{S_T1}, s{S_HP}, 1")
        g.i(f"s_add_u32 s{S_CH}, s{S_CH}, s{S_T1}")
        g.i(f"s_and_b32 s{S_CH}, s{S_CH}, 7")
    if g.opt.get('pf') or LEAD: pass
    if g.opt.get('pf') or LEAD:
        g.i(f"v_lshlrev_b32 v{VT}, 10, v0")
        g.i(f"s_and_b32 s{S_TX}, s{S_HP}, 7")
        g.i(f"s_lshl_b32 s{S_TX}, s{S_TX}, 2")
        g.i(f"s_add_u32 s{S_TX}, s{S_TX}, s{S_A}")
        g.i(f"s_lshl_b32 s{S_TX}, s{S_TX}, 13")
    PF = g.opt.get('pf', 0)
    NT = 2 if PF else (1 if LEAD else 0)
    if PF:
        S_TC, S_TW = S_IT, 0
        g.i(f"s_mov_b32 s{S_TC}, s{S_CH}")
        g.i("v_lshrrev_b32 v6, 1, v0")
        g.i("v_and_b32 v7, 1, v0")
        g.i("v_lshlrev_b32 v7, 7, v7")
        g.i(f"v_lshl_add_u32 v{VT+1}, v6, 10, v7")
        g.i(f"s_lshr_b32 s1, s2, 3")
        g.i(f"s_lshl_b32 s1, s1, 1")
        g.i(f"s_lshr_b32 s{S_T1}, s{S_A}, 1")
        g.i(f"s_add_u32 s1, s1, s{S_T1}")
        g.i(f"s_mul_i32 s1, s1, 3072")
        g.i(f"s_lshr_b32 s{S_T1}, s{S_HP}, 3")
        g.i(f"s_lshl_b32 s{S_T1}, s{S_T1}, 1")
        g.i(f"s_and_b32 s{S_B}, s{S_A}, 1")
        g.i(f"s_add_u32 s{S_T1}, s{S_T1}, s{S_B}")
        g.i(f"s_lshl_b32 s{S_T1}, s{S_T1}, 8")
        g.i(f"s_add_u32 s3, s1, s{S_T1}")
    def touch(ahead):
        if PF:
            g.i(f"s_lshl_b32 s{S_T0}, s{S_TC}, 7")
            g.i(f"s_add_u32 s{S_T0}, s{S_T0}, s{S_TX}")
            g.i(f"s_mul_i32 s{S_T1}, s{S_TC}, {64*3072}")
            g.i(f"s_add_u32 s{S_T1}, s{S_T1}, s3")
            g.i("s_mov_b64 exec, 0xff")
            g.i(f"buffer_load_dword v246, v{VT}, s[{S_X}:{S_X+3}], s{S_T0} offen")
            if g.opt.get('pfw', 1):
                g.i("s_mov_b64 exec, 0x3f")
                g.i(f"buffer_load_dword v246, v{VT+1}, s[{S_W}:{S_W+3}], s{S_T1} offen")
            g.i("s_mov_b64 exec, -1")
            g.i(f"s_add_u32 s{S_TC}, s{S_TC}, 1")
            g.i(f"s_and_b32 s{S_TC}, s{S_TC}, 7")
            return
        if not LEAD: return
        g.i(f"s_add_u32 s{S_T0}, s{S_CH}, {ahead}")
        g.i(f"s_and_b32 s{S_T0}, s{S_T0}, 7")
        g.i(f"s_lshl_b32 s{S_T0}, s{S_T0}, 7")
        g.i(f"s_add_u32 s{S_T0}, s{S_T0}, s{S_TX}")
        g.i("s_mov_b64 exec, 0xff")
        g.i(f"buffer_load_dword v246, v{VT}, s[{S_X}:{S_X+3}], s{S_T0} offen")
        g.i("s_mov_b64 exec, -1")
    g.i("v_lshrrev_b32 v6, 4, v0")
    g.i("v_and_b32 v7, 7, v0")
    g.i("v_xor_b32 v6, v6, v7")
    g.i("v_lshlrev_b32 v6, 4, v6")
    g.i("v_lshrrev_b32 v7, 3, v0")
    g.i(f"v_lshl_add_u32 v{VX}, v7, 10, v6")
    g.i(f"v_xor_b32 v{VX+1}, 64, v{VX}")
    g.i(f"v_add_u32 v{VX+2}, {2*7168}, v{VX}")
    g.i(f"v_add_u32 v{VX+3}, {3*7168}, v{VX+1}")
    g.i(f"v_add_u32 v{VX+1}, 7168, v{VX+1}")
    g.i(f"s_lshl_b32 s{S_B}, s{S_A}, 16")
    g.i(f"s_lshl_b32 s{S_D}, s{S_A}, 13")
    for p in range(3):
        g.i(f"v_add_u32 v6, {64*p}, v0")
        g.i("v_mul_u32_u24 v7, 43691, v6")
        g.i("v_lshrrev_b32 v7, 19, v7")
        g.i("v_mul_u32_u24 v110, 12, v7")
        g.i("v_sub_u32 v6, v6, v110")
        g.i("v_mul_u32_u24 v7, 3072, v7")
        g.i("v_lshrrev_b32 v110, 2, v6")
        g.i(f"v_lshl_add_u32 v7, v110, {6 if g.opt.get('x_wc') else 10}, v7")
        g.i("v_and_b32 v6, 3, v6")
        g.i("v_lshl_add_u32 v7, v6, 4, v7")
        g.i(f"v_subrev_u32 v{VW+p}, {1024*p}, v7")
    g.i(f"s_mul_i32 s{S_C}, s{S_A}, {16*3072}")
    g.i(f"s_lshl_b32 s{S_T1}, s{S_HP}, {7 if g.opt.get('x_wc') else 6}")
    g.i(f"s_add_u32 s{S_C}, s{S_C}, s{S_T1}")
    g.i(f"s_mul_i32 s{S_E}, s{S_A}, 3072")
    g.i(f"s_add_u32 s{S_E}, s{S_E}, {SLOT_W}")
    early_srds(g)
    cnt = [0]
    def issue():
        cnt[0] += 1
        g.i(f"s_lshl_b32 s{S_T1}, s{S_CH}, 7")
        g.i(f"s_add_u32 s{S_T1}, s{S_T1}, s{S_B}")
        g.i(f"s_mov_b32 m0, s{S_D}")
        g.i(f"s_add_u32 s{S_T0}, s{S_T1}, 32768")
        for p in range(4):
            g.i(f"buffer_load_dwordx4 v{VX+p}, s[{S_X}:{S_X+3}], s{S_T1} offen offset:{1024*p}{g.opt.get('xfl','')} lds")
        if cnt[0] == 1: g.st('ld_4')
        g.i(f"s_add_u32 m0, s{S_D}, 4096")
        g.i(f"s_mul_i32 s{S_T1}, s{S_CH}, {64*3072}")
        for p in range(4):
            g.i(f"buffer_load_dwordx4 v{VX+p}, s[{S_X}:{S_X+3}], s{S_T0} offen offset:{1024*p}{g.opt.get('xfl','')} lds")
        if cnt[0] == 1: g.st('ld_8')
        g.i(f"s_mov_b32 m0, s{S_E}")
        g.i(f"s_add_u32 s{S_T1}, s{S_T1}, s{S_C}")
        for p in range(3):
            if g.opt.get('x_now'): g.i(f"buffer_load_dword v244, v{VW+p}, s[{S_DBG if False else S_W}:{S_W+3}], s{S_C} offen"); continue
            g.i(f"buffer_load_dwordx4 v{VW+p}, s[{S_W}:{S_W+3}], s{S_T1} offen offset:{1024*p}{g.opt.get('wfl','')} lds")
        g.i(f"s_add_u32 s{S_CH}, s{S_CH}, 1")
        g.i(f"s_and_b32 s{S_CH}, s{S_CH}, 7")
    def next_slot():
        g.i(f"s_add_u32 s{S_D}, s{S_D}, {SLOT}")
        g.i(f"s_add_u32 s{S_E}, s{S_E}, {SLOT}")
        g.i(f"s_cmp_lt_u32 s{S_D}, {3*SLOT}")
        g.i(f"s_cselect_b32 s{S_T0}, 0, {3*SLOT}")
        g.i(f"s_sub_u32 s{S_D}, s{S_D}, s{S_T0}")
        g.i(f"s_sub_u32 s{S_E}, s{S_E}, s{S_T0}")
    if PF:
        q = []; nt = [0]
        def T():
            if nt[0] < 8: touch(0); q.extend('TT' if g.opt.get('pfw', 1) else 'T'); nt[0] += 1
        def D(c): issue(); q.extend([c] * 11)
        def W(c): g.i(f"s_waitcnt vmcnt({len(q) - 1 - max(i for i, x in enumerate(q) if x == c)})")
        for c in range(PF): T()
        D(0); T()
        next_slot(); D(1); T()
        late_srds(g); attn_consts(g); consts(g)
        for c in range(6):
            W(c)
            g.i("s_barrier")
            next_slot(); D(c + 2); T()
        W(6)
        g.i("s_barrier")
        g.i("s_waitcnt vmcnt(0)")
        g.i("s_barrier")
        g.i("s_mov_b32 s3, 0")
    if not PF: loader_plain(g, issue, next_slot, touch, LEAD, NT)
    loader_fin(g)

def loader_plain(g, issue, next_slot, touch, LEAD, NT):
    issue()
    g.st('ld_c0')
    next_slot(); issue()
    for c in range(2, LEAD): touch(c - 2)
    g.st('ld_c2')
    late_srds(g); attn_consts(g); consts(g)
    g.st('ld_pre')
    PRE = g.opt.get('pre', '')
    n0 = NT * max(LEAD - 2, 0)
    def pre():
        g.i(f"s_lshl_b32 s{S_T0}, s{S_TB}, 14")
        g.i(f"s_and_b32 s{S_T1}, s{S_A}, 1")
        g.i(f"s_lshl_b32 s{S_T1}, s{S_T1}, 13")
        g.i(f"s_add_u32 s{S_T0}, s{S_T0}, s{S_T1}")
        g.i(f"s_lshr_b32 s{S_T1}, s{S_A}, 1")
        g.i(f"s_lshl_b32 s{S_T1}, s{S_T1}, 17")
        g.i(f"s_add_u32 s{S_T0}, s{S_T0}, s{S_T1}")
        if PRE == 'r':
            g.i("v_lshlrev_b32 v6, 7, v0")
            g.i(f"buffer_load_dword v245, v6, s[{S_KV}:{S_KV+3}], s{S_T0} offen sc1")
            return 1
        g.i(f"s_add_u32 s{S_T1}, s{S_T0}, 4096")
        for k in range(8):
            g.i(f"buffer_store_dwordx4 v[{V_O[0]}:{V_O[0]+3}], v{V_L16}, s[{S_KV}:{S_KV+3}], s{S_T1 if k >= 4 else S_T0} offen offset:{1024*(k%4)} sc1")
        return 8
    np_ = 0
    PC = g.opt.get('prec', 1)
    for c, n in ((0, 11 + n0), (1, n0 + 11 + NT)):
        g.i(f"s_waitcnt vmcnt({n + (np_ if c == 1 else 0)})")
        if c == 0: g.st('ld_got0')
        g.i("s_barrier")
        next_slot(); issue(); touch(LEAD - 3)
        if PRE and c == PC: np_ = pre()
    if PRE and PC == 1:
        g.i(f"s_waitcnt vmcnt({11+2*NT+np_})")
        g.i("s_barrier")
        next_slot(); issue(); touch(LEAD - 3)
        g.i(f"s_mov_b32 s{S_IT}, 3")
        g.i(f"s_waitcnt vmcnt({11+2*NT+np_})")
        g.i("s_branch L_ld_loop2")
    g.i(f"s_mov_b32 s{S_IT}, 2")
    g.lab("L_ld_loop")
    g.i(f"s_waitcnt vmcnt({11+2*NT})")
    g.lab("L_ld_loop2")
    g.i("s_barrier")
    next_slot(); issue(); touch(LEAD - 3)
    g.i(f"s_add_u32 s{S_IT}, s{S_IT}, 1")
    g.i(f"s_cmp_lt_u32 s{S_IT}, 6")
    g.i("s_cbranch_scc1 L_ld_loop")
    g.st('ld_iss7')
    g.i(f"s_waitcnt vmcnt({11+2*NT})")
    g.i("s_barrier")
    g.i("s_waitcnt vmcnt(0)")
    g.i("s_barrier")

def loader_fin(g):
    g.i(f"s_cmp_lg_u32 s{S_WAVE}, 4")
    g.i("s_cbranch_scc1 L_ld_nocert")
    g.i(f"s_lshl_b32 s{S_T0}, s{S_BR}, 4")
    g.i(f"s_add_u32 s{S_T0}, s{S_T0}, s{S_HP}")
    g.i(f"s_lshl_b32 s{S_T0}, s{S_T0}, 3")
    g.i(f"v_mov_b32 v7, s{S_T0}")
    spin(g, "cert1", f"buffer_load_dword v{V_F}, v7, s[{S_DBG}:{S_DBG+3}], 0 offen sc1", 8)
    g.lab("L_ld_nocert")
    g.i(f"s_lshl_b32 s{S_T0}, s{S_A}, 11")
    g.i(f"s_add_u32 s{S_T0}, s{S_T0}, {L_QX}")
    g.i(f"v_add_u32 v6, s{S_T0}, v{V_L16}")
    attn_setup(g)
    g.i("s_waitcnt lgkmcnt(0)")
    g.i("s_barrier")
    g.i(f"ds_read_b128 {vr(V_Q[0],4)}, v6")
    g.i(f"ds_read_b128 {vr(V_Q[1],4)}, v6 offset:1024")
    g.i("s_branch L_attn")

class LdsQ:
    def __init__(self, g): self.g = g; self.q = []
    def issue(self, tag): self.q.append(tag)
    def need(self, tags):
        idx = max([i for i, t in enumerate(self.q) if t in tags], default=-1)
        if idx >= 0:
            n = len(self.q) - 1 - idx
            self.g.i(f"s_waitcnt lgkmcnt({min(n,15)})")
            self.q = self.q[idx + 1:]

def clear_flags(g):
    g.i(f"s_cmp_lg_u32 s{S_WAVE}, 0")
    g.i("s_cbranch_scc1 L_cp_noclear")
    g.i(f"s_lshl_b32 s{S_T0}, s{S_BR}, 4")
    g.i(f"s_add_u32 s{S_T0}, s{S_T0}, s{S_HP}")
    g.i(f"s_lshl_b32 s{S_T1}, s{S_T0}, 7")
    g.i(f"s_lshl_b32 s{S_T2}, s{S_TB}, 4")
    g.i(f"s_add_u32 s{S_T1}, s{S_T1}, s{S_T2}")
    g.i(f"v_lshl_add_u32 v6, v0, 2, s{S_T1}")
    g.i("v_mov_b32 v7, 0")
    g.i("s_mov_b64 exec, 0xf")
    g.i(f"buffer_store_dword v7, v6, s[{S_FL}:{S_FL+3}], 0 offen sc1")
    g.i("s_mov_b64 exec, -1")
    g.lab("L_cp_noclear")

def compute(g):
    g.lab("L_compute")
    CP = g.opt.get('cpf', 4)
    if CP == 3:
        n = g.opt.get('cpn', 12)
        g.i(f"s_mul_i32 s18, s{S_WAVE}, {128*n}")
        g.i(f"s_add_u32 s18, s18, L_compute-{NAME}_kernel")
        g.i("s_add_u32 s18, s16, s18")
        g.i("s_addc_u32 s19, s17, 0")
        g.i("s_waitcnt lgkmcnt(0)")
        for k in range(n): g.i(f"s_load_dword s95, s[18:19], {128*k}")
    if CP in (2, 3):
        g.i("s_mov_b32 s12, s16"); g.i("s_mov_b32 s13, s17")
        g.i(f"s_mov_b32 s14, L_code_end-{NAME}_kernel-4"); g.i("s_mov_b32 s15, 0x20000")
    TL = g.opt.get('tlb', 0)
    if TL:
        g.i(f"v_lshlrev_b32 v6, {TL}, v0")
    if CP != 3: g.i("s_waitcnt lgkmcnt(0)")
    if TL:
        srd(g.a, S_W, S_M + 2, 512 * 1536 * 2)
        g.i(f"buffer_load_dword v246, v6, s[{S_W}:{S_W+3}], 0 offen")
        if g.opt.get('tlbx'):
            srd(g.a, S_X, S_M, 256 * 1024, f"s{S_T0}")
            g.i(f"buffer_load_dword v246, v6, s[{S_X}:{S_X+3}], 0 offen")
    late_srds(g)
    if not g.opt.get('lateclr'): clear_flags(g)
    attn_consts(g)
    g.i("v_and_b32 v6, 31, v0")
    g.i(f"s_lshl_b32 s{S_T0}, s{S_WAVE}, 13")
    g.i(f"v_lshl_add_u32 v100, v6, 7, s{S_T0}")
    g.i("v_bfe_u32 v6, v0, 1, 3")
    g.i("v_lshrrev_b32 v7, 5, v0")
    g.i("v_xor_b32 v6, v6, v7")
    for s in range(4):
        g.i(f"v_xor_b32 v7, {2*s}, v6")
        g.i(f"v_lshl_add_u32 v{V_XA+s}, v7, 4, v100")
    g.i("v_lshrrev_b32 v6, 5, v0")
    g.i("v_bfe_u32 v7, v0, 2, 2")
    g.i("v_lshl_add_u32 v6, v6, 3, v7")
    g.i("v_mul_u32_u24 v6, 192, v6")
    g.i("v_bfe_u32 v7, v0, 4, 1")
    g.i("v_lshl_add_u32 v6, v7, 5, v6")
    g.i("v_and_b32 v7, 3, v0")
    g.i("v_lshl_add_u32 v6, v7, 3, v6")
    g.i(f"v_add_u32 v{V_WA}, {SLOT_W}, v6")
    for r in range(0, 96, 2):
        g.i(f"v_mov_b64 v[{V_ACC+r}:{V_ACC+r+1}], 0")
    S_A, S_B = 56, 57
    g.i("v_and_b32 v6, 0x33, v0")
    g.i("v_bfe_u32 v7, v0, 2, 1")
    g.i("v_lshl_or_b32 v6, v7, 3, v6")
    g.i("v_bfe_u32 v7, v0, 3, 1")
    g.i("v_lshl_or_b32 v6, v7, 2, v6")
    g.i(f"v_lshlrev_b32 v{KG}, 4, v6")
    g.i(f"s_lshl_b32 s{S_T0}, s{S_WAVE}, 12")
    g.i(f"v_add_u32 v{KL}, s{S_T0}, v{KG}")
    g.i("v_and_b32 v6, 15, v0")
    g.i("v_lshlrev_b32 v6, 4, v6")
    g.i("v_lshrrev_b32 v7, 5, v0")
    g.i("v_lshl_add_u32 v6, v7, 8, v6")
    g.i("v_add_u32 v6, 1024, v6")
    g.i("v_bfe_u32 v7, v0, 4, 1")
    g.i(f"v_lshl_add_u32 v{VG}, v7, 17, v6")
    g.i("v_lshl_add_u32 v6, v7, 14, v6")
    g.i(f"v_add_u32 v{VL}, s{S_T0}, v6")
    g.i(f"s_lshr_b32 s{S_T0}, s{S_T0}, 1")
    g.i(f"s_add_u32 s{S_T0}, s{S_T0}, {L_QX}")
    g.i(f"v_add_u32 v{QL}, s{S_T0}, v{V_L16}")
    if g.opt.get('lateclr'): clear_flags(g)
    if CP in (2, 3):
        g.i(f"s_lshl_b32 s{S_T0}, s{S_WAVE}, 13")
        g.i("v_lshlrev_b32 v6, 7, v0")
        g.i(f"buffer_load_dword v246, v6, s[12:15], s{S_T0} offen")
    if g.opt.get('dry', 1):
        g.i(f"s_cmp_lt_u32 s{S_WAVE}, 2")
        g.i("s_cbranch_scc1 L_dry_done")
        g.i(f"s_mov_b32 s{S_DRY}, 1")
        g.i(f"s_mov_b32 s{S_IT}, 7")
        g.i("s_mov_b64 vcc, 0")
        g.i(f"s_mov_b64 s[{S_M}:{S_M+1}], 0")
        g.i(f"s_mov_b64 s[{S_M+2}:{S_M+3}], 0")
        g.i(f"s_mov_b32 s{S_MK}, 0")
        g.i("s_waitcnt vmcnt(0) lgkmcnt(0)")
        g.i("s_setvskip -1, 0")
        g.i(f"s_cmp_eq_u32 s{S_WAVE}, 2")
        g.i("s_cbranch_scc1 L_at_done")
        g.i("s_branch L_cp_loop")
        g.lab("L_dry_ret")
        g.i("s_setvskip 0, 0")
        g.i("s_mov_b64 exec, -1")
        g.i("s_setprio 0")
        g.i(f"s_mov_b32 s{S_DRY}, 0")
        g.lab("L_dry_done")
    attn_setup(g)
    g.i(f"s_lshl_b32 s{S_T0}, s{S_WAVE}, 12")
    g.i(f"s_lshl_b32 s{S_G1}, s{S_TB}, 14")
    g.i(f"s_add_u32 s{S_G1}, s{S_G1}, s{S_T0}")
    g.i(f"s_add_u32 s{S_G2}, s{S_G1}, 131072")
    g.i(f"s_mov_b32 s{S_IT}, 0")
    g.i(f"s_mov_b32 s{S_A}, 0")
    g.i(f"s_mov_b32 s{S_B}, {SLOT}")
    q = LdsQ(g)
    def rd(setn, s, which):
        F = V_FR[setn]
        if which[0] == 'x':
            i = int(which[1])
            g.i(f"ds_read_b128 {vr(F+4*i,4)}, v{V_XA+s} offset:{4096*i}")
        else:
            p = {'q': 0, 'k': 1, 'v': 2}[which[0]]; i = int(which[1])
            g.i(f"ds_read_b64_tr_b16 {vr(F+8+4*p+2*i,2)}, v{V_WA} offset:{s*3072+i*768+p*64}")
        q.issue((setn, which))
    ORDER = ['x0', 'q0', 'q1', 'x1', 'k0', 'k1', 'v0', 'v1']
    def mf(setn, n):
        F = V_FR[setn]; p, i = n // 2, n % 2
        w, x = vr(F + 8 + 4 * p, 4), vr(F + 4 * i, 4)
        nm = 'qkv'[p]
        q.need({(setn, f'x{i}'), (setn, nm + '0'), (setn, nm + '1')})
        A, B = (w, x) if p < 2 else (x, w)
        acc = vr(V_ACC + 16 * n, 16)
        if g.opt.get('x_m16'):
            for hh in range(2):
                a4 = vr(V_ACC + 16 * n + 4 * hh, 4)
                g.i(f"v_mfma_f32_16x16x32_bf16 {a4}, {A}, {B}, {a4}")
        else:
            g.i(f"v_mfma_f32_32x32x16_bf16 {acc}, {A}, {B}, {acc}")
    def step(cur, nxt_s):
        plan = [ORDER[0:2], ORDER[2:4], ORDER[4:6], ORDER[6:8], [], []]
        for n in range(6):
            if cur is not None: mf(cur, n)
            if nxt_s is not None:
                for w in plan[n]: rd(1 - (cur if cur is not None else 1), nxt_s, w)
    g.i(f"s_cmp_lg_u32 s{S_WAVE}, 0")
    g.i("s_cbranch_scc1 L_cp_nocount")
    g.i(f"s_lshl_b32 s{S_T0}, s{S_BR}, 4")
    g.i(f"s_add_u32 s{S_T0}, s{S_T0}, s{S_HP}")
    g.i(f"s_lshl_b32 s{S_T0}, s{S_T0}, 3")
    g.i("s_mov_b64 exec, 1")
    g.i(f"v_mov_b32 v6, s{S_T0}")
    g.i("v_mov_b32 v7, 1")
    g.i(f"s_waitcnt vmcnt(0)")
    g.i(f"buffer_atomic_add v7, v6, s[{S_DBG}:{S_DBG+3}], 0 offen sc1")
    g.i("s_mov_b64 exec, -1")
    g.lab("L_cp_nocount")
    def prew():
        g.i(f"s_lshl_b32 s{S_T0}, s{S_TB}, 14")
        g.i(f"s_lshl_b32 s{S_T1}, s{S_WAVE}, 12")
        g.i(f"s_add_u32 s{S_T0}, s{S_T0}, s{S_T1}")
        g.i(f"s_add_u32 s{S_T1}, s{S_T0}, 131072")
        for k in range(8):
            g.i(f"buffer_store_dwordx4 v[{V_O[0]}:{V_O[0]+3}], v{V_L16}, s[{S_KV}:{S_KV+3}], s{S_T1 if k >= 4 else S_T0} offen offset:{1024*(k%4)} sc1")
    def prer():
        g.i("v_and_b32 v6, 31, v0")
        g.i("v_lshlrev_b32 v6, 7, v6")
        g.i("v_lshrrev_b32 v7, 5, v0")
        g.i("v_lshl_add_u32 v6, v7, 17, v6")
        g.i(f"buffer_load_dword v246, v6, s[{S_KV}:{S_KV+3}], s{S_G1} offen{g.opt.get('prefl', ' sc1')}")
    PR = g.opt.get('prer', 0)
    if PR == -1: prer()
    if g.opt.get('prew') == 1: prew()
    g.st('cp_pre')
    g.i("s_barrier")
    g.stamp(1)
    if g.opt.get('prew') == 2: prew()
    step(None, 0)
    g.lab("L_cp_loop")
    q.q = [(0, w) for w in ORDER]
    step(0, 1); step(1, 2); step(0, 3)
    g.i(f"s_add_u32 s{S_A}, s{S_A}, 1")
    g.i(f"s_cmp_eq_u32 s{S_A}, 3")
    g.i(f"s_cselect_b32 s{S_T0}, {(-2*SLOT) & 0xffffffff}, s{S_B}")
    g.i(f"s_cselect_b32 s{S_A}, 0, s{S_A}")
    g.i(f"s_add_u32 s{S_IT}, s{S_IT}, 1")
    g.i(f"s_cmp_eq_u32 s{S_IT}, 8")
    g.i("s_cbranch_scc1 L_cp_last")
    g.i("s_waitcnt lgkmcnt(0)")
    q.q = []
    g.i("s_barrier")
    for r in range(5):
        g.i(f"v_add_u32 v{V_XA+r}, s{S_T0}, v{V_XA+r}")
    PW = g.opt.get('pwd')
    if PW:
        c0, kind = PW
        if kind == 'd':
            g.i(f"s_cmp_lg_u32 s{S_IT}, {c0}")
            g.i("s_cbranch_scc1 L_cp_nopw")
            g.i("v_and_b32 v6, 31, v0")
            g.i("v_lshlrev_b32 v6, 7, v6")
            g.i("v_lshrrev_b32 v7, 5, v0")
            g.i("v_lshl_add_u32 v6, v7, 17, v6")
            g.i(f"buffer_store_dword v{V_O[0]}, v6, s[{S_KV}:{S_KV+3}], s{S_G1} offen sc1")
        elif kind == 'f':
            g.i(f"s_cmp_lg_u32 s{S_IT}, {c0}")
            g.i("s_cbranch_scc1 L_cp_nopw")
            for k in range(8):
                g.i(f"buffer_store_dwordx4 v[{V_O[0]}:{V_O[0]+3}], v{V_L16}, s[{S_KV}:{S_KV+3}], s{S_G2 if k >= 4 else S_G1} offen offset:{1024*(k%4)} sc1")
        elif kind == 's':
            g.i(f"s_sub_u32 s{S_T1}, s{S_IT}, {c0}")
            g.i(f"s_cmp_ge_u32 s{S_T1}, 4")
            g.i("s_cbranch_scc1 L_cp_nopw")
            g.i(f"s_lshl_b32 s{S_T1}, s{S_T1}, 10")
            g.i(f"s_add_u32 s{S_T2}, s{S_T1}, s{S_G2}")
            g.i(f"s_add_u32 s{S_T1}, s{S_T1}, s{S_G1}")
            for so in (S_T1, S_T2):
                g.i(f"buffer_store_dwordx4 v[{V_O[0]}:{V_O[0]+3}], v{V_L16}, s[{S_KV}:{S_KV+3}], s{so} offen sc1")
        g.lab("L_cp_nopw")
    if PR > 0:
        g.i(f"s_cmp_lg_u32 s{S_IT}, {PR}")
        g.i("s_cbranch_scc1 L_cp_nopre")
        prer()
        g.lab("L_cp_nopre")
    step(1, 0)
    g.i("s_branch L_cp_loop")
    g.lab("L_cp_last")
    q.q = [(1, w) for w in ORDER]
    step(1, None)
    g.stamp(2)
    g.i(f"s_mov_b32 s{S_T1}, {hex(QSCALE)}")
    g.i(f"s_mov_b32 s{S_T2}, s{S_T1}")
    g.i("s_nop 5")
    KVS = g.opt.get('kvs', ' sc1')
    T = 204
    n = 0
    for i in range(2):
        A = V_ACC + 16 * (2 + i)
        for hd in range(2):
            for r in range(4):
                g.i(f"v_cvt_pk_bf16_f32 v{T+4*n+r}, v{A+8*hd+2*r}, v{A+8*hd+2*r+1}")
            g.i(f"ds_write_b128 v{KL}, {vr(T+4*n,4)} offset:{16384*hd+2048*i}")
            n += 1
    for i in range(2):
        A = V_ACC + 16 * (4 + i)
        for gr in range(2):
            for r in range(4):
                g.i(f"v_cvt_pk_bf16_f32 v{T+4*n+r}, v{A+8*gr+2*r}, v{A+8*gr+2*r+1}")
            g.i(f"ds_write_b128 v{VL}, {vr(T+4*n,4)} offset:{2048*i+512*gr}")
            n += 1
    g.i(f"s_cmp_lg_u32 s{S_PG}, 0")
    g.i("s_cbranch_scc1 L_cp_later")
    for n in range(8): g.i(kv_store(n))
    g.lab("L_cp_later")
    for i in range(2):
        A = V_ACC + 16 * i
        for r in range(8, 16, 2):
            g.i(f"v_pk_mul_f32 v[{A+r}:{A+r+1}], v[{A+r}:{A+r+1}], s[{S_T0+1}:{S_T0+2}]")
        for r in range(4):
            g.i(f"v_cvt_pk_bf16_f32 v{A+8+r}, v{A+8+2*r}, v{A+8+2*r+1}")
        g.i(f"ds_write_b128 v{QL}, {vr(A+8,4)} offset:{1024*i}")
    for i in range(2):
        A = V_ACC + 16 * i
        for r in range(0, 8, 2):
            g.i(f"v_pk_mul_f32 v[{A+r}:{A+r+1}], v[{A+r}:{A+r+1}], s[{S_T0+1}:{S_T0+2}]")
        for r in range(4):
            g.i(f"v_cvt_pk_bf16_f32 v{V_Q[i]+r}, v{A+2*r}, v{A+2*r+1}")
    g.i("s_waitcnt lgkmcnt(0)")
    barrier_unless_dry(g, "b8")

U = 8
S_OA, S_OB = S_M + 6, S_M + 7
S_MK = S_M + 5
S_KV2 = S_X
S_KO = [None, 4, 5, 6, 7, 12, 13, 14]
S_LM = [[49, 50], [51, 52]]
S_OW = 1
V_VB = 4

def kv_store(n):
    if n < 4: adr, so, off = KG, (S_G2 if n % 2 else S_G1), 2048 * (n // 2)
    else: adr, so, off = VG, S_G1, 2048 * ((n - 4) // 2) + 512 * (n % 2)
    return f"buffer_store_dwordx4 {vr(KVT+4*n,4)}, v{adr}, s[{S_KV}:{S_KV+3}], s{so} offen offset:{off} sc1"

def spin_mask(g, tag, load):
    g.i(f"s_mov_b32 s{S_T3}, 0")
    g.lab(f"L_spin_{tag}")
    g.i(load)
    g.i(f"s_add_u32 s{S_T3}, s{S_T3}, 1")
    g.i("s_waitcnt vmcnt(0)")
    g.i(f"v_cmp_ne_u32 vcc, 1, v{V_F}")
    g.i(f"s_cmp_ge_u32 s{S_T3}, {SPIN_MAX}")
    g.i(f"s_cbranch_scc1 L_olr_{tag}")
    g.i(f"s_and_b32 vcc_lo, vcc_lo, s{S_MK}")
    g.i(f"s_cbranch_scc1 L_spin_{tag}")

def attn_setup(g):
    g.i(f"s_add_u32 s{S_KV2}, s{S_KV}, 131072")
    g.i(f"s_addc_u32 s{S_KV2+1}, s{S_KV+1}, 0")
    g.i(f"s_mov_b32 s{S_KV2+2}, 131072")
    g.i(f"s_mov_b32 s{S_KV2+3}, 0x20000")
    g.i(f"s_lshl_b32 s{S_LM[0][0]}, s{S_WAVE}, 11")
    g.i(f"s_add_u32 s{S_LM[0][1]}, s{S_LM[0][0]}, 16384")
    g.i(f"s_add_u32 s{S_LM[1][0]}, s{S_LM[0][0]}, {RING}")
    g.i(f"s_add_u32 s{S_LM[1][1]}, s{S_LM[0][0]}, {RING+16384}")
    for i in range(1, 8):
        g.i(f"s_cmp_gt_u32 s{S_TB}, {i-1}")
        g.i(f"s_cselect_b32 s{S_T0}, {i-1}, {i}")
        if i == 1:
            g.i(f"s_lshl_b32 s{S_T3}, s{S_T0}, 2")
            g.i(f"s_lshl_b32 s{S_MK}, 15, s{S_T3}")
        g.i(f"s_lshl_b32 s{S_T0}, s{S_T0}, 14")
        g.i(f"s_add_u32 s{S_KO[i]}, s{S_T0}, s{S_LM[0][0]}")
    g.i(f"s_lshr_b32 s{S_PG}, s{S_TB}, 1")
    g.i(f"s_min_u32 s{S_PG}, s{S_PG}, 2")
    g.i(f"s_cmp_ge_u32 s{S_WAVE}, 4")
    g.i(f"s_cselect_b32 s{S_PG}, 3, s{S_PG}")
    g.i(f"s_and_b32 s{S_F}, s{S_HP}, 7")
    g.i(f"s_lshl_b32 s{S_T0}, s{S_F}, 7")
    if g.opt.get('orot', 0):
        g.i(f"s_add_u32 s55, s{S_WAVE}, s{S_F}")
        g.i("s_and_b32 s55, s55, 3")
        g.i(f"s_and_b32 s{S_T1}, s{S_WAVE}, 4")
        g.i(f"s_or_b32 s55, s55, s{S_T1}")
        g.i("s_lshl_b32 s55, s55, 16")
    else:
        g.i(f"s_lshl_b32 s55, s{S_WAVE}, 16")
    g.i(f"s_add_u32 s55, s55, s{S_T0}")
    g.i(f"s_lshl_b32 s{S_E}, s{S_WAVE}, 13")
    g.i(f"s_add_u32 s{S_E}, s{S_E}, {L_WO}")
    g.i(f"s_and_b32 s{S_T0}, s{S_WAVE}, 3")
    g.i(f"s_lshl_b32 s{S_T0}, s{S_T0}, 1")
    g.i(f"s_lshl_b32 s{S_T1}, s{S_TB}, 3")
    g.i(f"s_add_u32 s{S_T0}, s{S_T0}, s{S_T1}")
    g.i(f"s_lshl_b32 s{S_OA}, s{S_T0}, 15")
    g.i(f"s_lshr_b32 s{S_T1}, s{S_WAVE}, 2")
    g.i(f"s_lshl_b32 s{S_T2}, s{S_HP}, 1")
    g.i(f"s_add_u32 s{S_T1}, s{S_T1}, s{S_T2}")
    g.i(f"s_lshl_b32 s{S_T2}, s{S_T1}, 10")
    g.i(f"s_add_u32 s{S_OA}, s{S_OA}, s{S_T2}")
    g.i(f"s_add_u32 s{S_OB}, s{S_OA}, 32768")
    if True:
        g.i(f"s_lshr_b32 s{S_T0}, s{S_HP}, 3")
        g.i(f"s_lshl_b32 s{S_T0}, s{S_T0}, 2")
        g.i(f"s_and_b32 s{S_T1}, s{S_WAVE}, 3")
        g.i(f"s_add_u32 s{S_T0}, s{S_T0}, s{S_T1}")
        g.i(f"s_lshl_b32 s{S_T1}, s{S_TB}, 3")
        g.i(f"s_add_u32 s{S_T0}, s{S_T0}, s{S_T1}")
        g.i(f"s_lshl_b32 s{S_T0}, s{S_T0}, 1")
        g.i(f"s_lshr_b32 s{S_T1}, s{S_WAVE}, 2")
        g.i(f"s_add_u32 s{S_T0}, s{S_T0}, s{S_T1}")
        g.i(f"s_lshl_b32 s{S_OW}, s{S_T0}, 15")
        g.i(f"s_lshl_b32 s{S_T0}, s{S_BR}, 10")
        g.i(f"s_add_u32 s{S_OW}, s{S_OW}, s{S_T0}")
        g.i(f"s_lshl_b32 s{S_T0}, s{S_F}, 7")
        g.i(f"s_add_u32 s{S_OW}, s{S_OW}, s{S_T0}")

def attention(g):
    opt = g.opt
    g.lab("L_attn")
    g.stamp(3)
    g.i(f"ds_read_b128 {vr(V_K,4)}, v{V_KA}")
    g.i(f"ds_read_b128 {vr(V_V[0],4)}, v{V_VA}")
    g.i(f"ds_read_b128 {vr(V_V[0]+4,4)}, v{V_VA} offset:512")
    if opt.get('x_em'):
        g.i("s_mov_b32 s100, 0xffff"); g.i("s_mov_b32 s101, 0xffff")
    g.i("s_setprio 3")
    g.i("s_waitcnt lgkmcnt(2)")
    g.i(f"v_mfma_f32_32x32x16_bf16 {vr(V_S[0],16)}, {vr(V_K,4)}, {vr(V_Q[0],4)}, 0")
    dry_exit(g)
    g.i("s_nop 9")
    g.i("s_waitcnt lgkmcnt(0)")
    poll = f"buffer_load_dword v{V_F}, v{V_FA}, s[{S_FL}:{S_FL+3}], 0 offen sc1"
    side = []
    ev = {}
    def at(it, p, slot, *ins): ev.setdefault((it, p, slot), []).extend(ins)
    def kv(i, n):
        return f"buffer_load_dwordx4 v{V_L16}, {sr(S_KV2 if n >= 2 else S_KV, 4)}, s{S_KO[i]} offen offset:{1024*(n%2)}{opt.get('kvl', ' sc1')} lds"
    def check(tag, n):
        def f():
            if n is not None: g.i(f"s_waitcnt vmcnt({n})")
            g.i(f"v_cmp_ne_u32 vcc, 1, v{V_F}")
            g.i("s_nop 0")
            g.i(f"s_and_b32 vcc_lo, vcc_lo, s{S_MK}")
            g.i(f"s_cbranch_scc1 L_ol_{tag}")
            g.lab(f"L_olr_{tag}")
            side.append((tag, lambda: spin_mask(g, tag, poll)))
        return f
    def group(pg, tag, body):
        def f():
            g.i(f"s_cmp_lg_u32 s{S_PG}, {pg}")
            g.i(f"s_cbranch_scc1 L_pg_{tag}")
            body()
            g.lab(f"L_pg_{tag}")
        return f
    def flag():
        g.i(f"s_lshl_b32 s{S_T0}, s{S_TB}, 2")
        g.i(f"s_add_u32 s{S_T0}, s{S_T0}, s{S_WAVE}")
        g.i(f"s_lshl_b64 exec, 1, s{S_T0}")
        g.i("v_mov_b32 v6, 1")
        g.i(f"buffer_store_dword v6, v{V_FA}, s[{S_FL}:{S_FL+3}], 0 offen sc1")
        g.i("s_mov_b64 exec, -1")
    def stores(it, p0, pg):
        for k, (a_, b_) in enumerate(((0, 3), (3, 6), (6, 8))):
            at(it, p0 + k, 'p1', group(pg, f"s{pg}{k}", lambda a_=a_, b_=b_: [g.i(kv_store(n)) for n in range(a_, b_)]))
    def burst(i, it=None, p=None, slot=None):
        sl = i % 2
        if not opt.get('spread', 0):
            return [f"s_mov_b32 m0, s{S_LM[sl][0]}", "s_nop 0", kv(i, 0), kv(i, 1), f"s_mov_b32 m0, s{S_LM[sl][1]}", "s_nop 0", kv(i, 2), kv(i, 3)]
        seq = [(q, k) for q in range(p, 14) for k in ('p2', 'qk', 'p1')]
        seq = seq[seq.index((p, slot)) + 1:]
        at(it, *seq[0], kv(i, 1), f"s_mov_b32 m0, s{S_LM[sl][1]}")
        at(it, *seq[1], kv(i, 2))
        at(it, *seq[2], kv(i, 3))
        return [f"s_mov_b32 m0, s{S_LM[sl][0]}", "s_nop 0", kv(i, 0)]
    def count():
        g.i(f"s_cmp_lg_u32 s{S_WAVE}, 7")
        g.i("s_cbranch_scc1 L_at_nocnt")
        g.i(f"s_lshl_b32 s{S_T0}, s{S_BR}, 4")
        g.i(f"s_add_u32 s{S_T0}, s{S_T0}, s{S_HP}")
        g.i(f"s_lshl_b32 s{S_T0}, s{S_T0}, 3")
        g.i("s_mov_b64 exec, 1")
        g.i(f"v_mov_b32 v6, s{S_T0}")
        g.i("v_mov_b32 v7, 1")
        g.i(f"buffer_atomic_add v7, v6, s[{S_DBG}:{S_DBG+3}], 0 offen offset:4 sc1")
        g.i("s_mov_b64 exec, -1")
        g.lab("L_at_nocnt")
    pp, pi0, pc0, ps1, pi1, pc1, pi3, pc3 = opt.get('ev', (1, 8, 10, 3, 7, 9, 7, 9))
    at(0, pp, 'qk', group(0, "f0", lambda: (g.st('pub_pre'), g.i("s_waitcnt vmcnt(0)"), g.st('pub_ack'), flag())))
    stores(0, ps1, 1)
    at(0, pi0, 'qk', poll)
    at(0, pc0, 'qk', "s_waitcnt vmcnt(0)", group(1, "f1", flag), check("kv0", None), lambda: g.st('chk_ok'), *burst(1, 0, pc0, 'qk'),
       f"s_mov_b32 s{S_MK}, 0xffff")
    at(1, pi1, 'qk', poll)
    at(1, pc1, 'qk', check("kv1", 0), *burst(2, 1, pc1, 'qk'), f"s_mov_b32 s{S_MK}, -1")
    if opt.get('safe', 1):
        for k, (it_, p_, sl_, a_, b_) in enumerate(((1, 14, 'p1', 0, 3), (1, 15, 'p1', 3, 6), (2, 0, 'p1', 6, 8))):
            at(it_, p_, sl_, group(2, f"s2{k}", lambda a_=a_, b_=b_: [g.i(kv_store(n)) for n in range(a_, b_)]))
    else:
        stores(1, pc1 + 1 + opt.get('spread', 0), 2)
    at(2, 15, 'qk', group(2, "f2", flag))
    at(3, pi3, 'qk', poll)
    at(3, pc3, 'p2', check("kv2", 0), *burst(4, 3, pc3, 'p2'))
    late = {i: 0 for i in range(8)}
    dp = opt.get('dma', (1, 3, 5, 7))
    for i in (2, 4, 5, 6):
        sl = (i + 1) % 2
        at(i, dp[0] - 1, 'p2x', f"s_mov_b32 m0, s{S_LM[sl][0]}")
        at(i, dp[0], 'qk', kv(i + 1, 0))
        at(i, dp[1], 'qk', kv(i + 1, 1))
        at(i, dp[2], 'p2', f"s_mov_b32 m0, s{S_LM[sl][1]}")
        at(i, dp[2], 'qk', kv(i + 1, 2))
        at(i, dp[3], 'qk', kv(i + 1, 3))
    wp = opt.get('wop', (11, 13))
    for i in range(1, 5):
        for k, p in enumerate(wp):
            at(i, p, 'p2', f"s_add_u32 m0, s{S_E}, {(2*(i-1)+k)*1024}")
            at(i, p, 'qk', f"buffer_load_dwordx4 v{V_WOA}, s[{S_WO}:{S_WO+3}], s55 offen lds")
            at(i, p, 'p1', "s_add_u32 s55, s55, 8192")
        late[i] += 2
    if opt.get('safe', 1):
        at(5, 12, 'p1', "s_waitcnt vmcnt(0)")
        if opt.get('opw', 2): at(opt.get('opw', 2), 12, 'p1', "s_waitcnt vmcnt(1)")
    for k, so in enumerate((S_OA, S_OB)):
        at(5, 9 + 2 * k, 'qk', f"buffer_store_dwordx4 v[252:255], v{V_L16}, s[{S_O}:{S_O+3}], s{so} offen sc1")
    late[5] += 2
    if opt.get('opw', 2):
        i = opt.get('opw', 2)
        at(i, 12, 'p1', f"buffer_store_dwordx4 v[252:255], v{V_OW}, s[{S_OUT}:{S_OUT+3}], s{S_OW} offen sc1", f"s_add_u32 s{S_T0}, s{S_OW}, 16384")
        at(i, 13, 'p1', f"buffer_store_dwordx4 v[252:255], v{V_OW}, s[{S_OUT}:{S_OUT+3}], s{S_T0} offen sc1")
        late[i] += 2
    if opt.get('opr'):
        at(7, 3, 'qk', f"buffer_load_dwordx4 v[236:239], v{V_OW}, s[{S_OUT}:{S_OUT+3}], s{S_OW} offen", f"s_add_u32 s{S_T0}, s{S_OW}, 16384")
        at(7, 5, 'qk', f"buffer_load_dwordx4 v[236:239], v{V_OW}, s[{S_OUT}:{S_OUT+3}], s{S_T0} offen")
    if opt.get('early', 1):
        at(7, 3, 'qk', f"s_lshr_b32 s{S_E}, s{S_WAVE}, 2", f"s_lshr_b32 s{S_T0}, s{S_HP}, 3", f"s_lshl_b32 s{S_T0}, s{S_T0}, 2",
           f"s_and_b32 s{S_T1}, s{S_WAVE}, 3", f"s_add_u32 s{S_A}, s{S_T0}, s{S_T1}")
        at(7, 5, 'qk', f"s_lshl_b32 s{S_T0}, s{S_TB}, 3", f"s_add_u32 s{S_A}, s{S_A}, s{S_T0}", f"s_lshl_b32 s{S_B}, s{S_A}, 15",
           f"s_lshl_b32 s{S_T0}, s{S_E}, 14", f"s_add_u32 s{S_B}, s{S_B}, s{S_T0}")
        if opt.get('orot', 0):
            for k, (d, q) in enumerate(((S_A, 6), (S_C, 7), (S_D, 8), (S_IT, 9))):
                at(7, q, 'p1', f"s_add_u32 s{S_T1}, s{S_F}, {k}", f"s_and_b32 s{S_T1}, s{S_T1}, 3", f"s_lshl_b32 s{S_T1}, s{S_T1}, 12",
                   f"s_add_u32 s{d}, s{S_B}, s{S_T1}")
            at(7, 7, 'qk', f"s_lshl_b32 s{S_T0}, s{S_BR}, 7")
        else:
            at(7, 7, 'qk', f"s_mov_b32 s{S_A}, s{S_B}", f"s_add_u32 s{S_C}, s{S_B}, 4096", f"s_add_u32 s{S_D}, s{S_B}, 8192",
               f"s_add_u32 s{S_IT}, s{S_B}, 12288", f"s_lshl_b32 s{S_T0}, s{S_BR}, 7")
        at(7, 9, 'qk', "v_and_b32 v6, 15, v0", f"v_lshl_add_u32 v{V_CA}, v6, 3, s{S_T0}", f"v_lshlrev_b32 v{V_PA}, 10, v6")
        at(7, opt.get('certp', 13), 'qk', f"buffer_load_dword v236, v{V_CA}, s[{S_DBG}:{S_DBG+3}], 0 offen offset:4 sc1")
        EM = opt.get('earlym', 0)
        def early_probe():
            g.i(f"s_lshr_b32 s{S_T0}, s{S_HP}, 3")
            g.i(f"s_cmp_eq_u32 s{S_T0}, s{S_E}")
            g.i("s_cbranch_scc1 L_at_noprobe")
            g.i(f"buffer_load_dword v237, v{V_PA}, s[{S_O}:{S_O+3}], s{S_B} offen offset:1020 sc1")
            g.lab("L_at_noprobe")
        if EM: at(7, 11, 'qk', "v_mov_b32 v237, -1")
        if EM == 1: at(7, 15, 'p1', early_probe)
        if EM == 2: at(7, 15, 'p1', f"buffer_load_dword v237, v{V_PA}, s[{S_O}:{S_O+3}], s{S_B} offen offset:1020 sc1")
    at(7, 1, 'qk', count)
    if opt.get('x_late0'): late = {i: 0 for i in range(8)}
    prio = opt.get('prio', {0: 3, 5: 2, 10: 1, 13: 0})
    for i in range(8):
        for p, v in prio.items():
            ii, q = (i, p - 1) if p else (i - 1, 15)
            if i == 7 and v == 0 and opt.get('pend', 1): continue
            if ii >= 0: at(ii, q, 'p1', f"s_setprio {v}")
    def emit(it, p, slot):
        for x in ev.pop((it, p, slot), []):
            x() if callable(x) else g.i(x)
    p2, pq, p1 = opt.get('pos', (1, 5, 10))
    for it in range(8):
        if opt.get('itst'):
            g.i("s_memtime s[98:99]")
            g.i("s_memrealtime s[100:101]")
            g.i("s_waitcnt lgkmcnt(0)")
            g.i(f"v_writelane_b32 v250, s98, {it}")
            g.i(f"v_writelane_b32 v250, s100, {it+9}") if it < 7 else None
        for p in range(2 * U):
            b, t = p % 2, p // 2
            S, So = V_S[b], V_S[1 - b]
            nt = (t + 1) % U
            sl = (it + (t == U - 1)) % 2
            VA = V_VB if sl else V_VA
            last = it == 7 and t == U - 1
            skip = last or (opt.get('x_half') and t % 2 == 0)
            for e in range(16):
                g.i(f"v_exp_f32 v{S+e}, v{S+e}")
                if e == p2:
                    tp = (p - 1) // 2
                    if it or p:
                        g.i(f"v_smfmac_f32_32x32x32_bf16 {vr(V_O[1-b],16)}, {vr(V_V[tp%2]+4,4)}, {vr(So+8,8)}, v{V_IDX}")
                    emit(it, p, 'p2x')
                    if b == 0:
                        if t == U - 1 and it < 7:
                            if it == 1 and not opt.get('safe', 1):
                                g.i(f"s_waitcnt vmcnt({late[it] + 8})")
                                g.i(f"s_cmp_eq_u32 s{S_PG}, 2")
                                g.i("s_cbranch_scc1 L_w8")
                                g.i(f"s_waitcnt vmcnt({late[it]})")
                                g.lab("L_w8")
                            else: g.i(f"s_waitcnt vmcnt({late[it]})")
                            if it == 0: g.st('chk1_ok')
                            g.i("s_barrier")
                        if not skip:
                            xm = opt.get('x_em') and (it or t)
                            if xm: g.i("s_mov_b64 exec, s[100:101]")
                            g.i(f"ds_read_b128 {vr(V_V[(t+1)%2],4)}, v{VA} offset:{nt*2048}")
                            if xm: g.i("s_mov_b64 exec, -1")
                    elif not last:
                        g.i("s_waitcnt lgkmcnt(1)")
                    emit(it, p, 'p2')
                if e == pq:
                    if not (last and b):
                        g.i(f"v_mfma_f32_32x32x16_bf16 {vr(So,16)}, {vr(V_K,4)}, {vr(V_Q[1-b],4)}, 0")
                    if b == 0 and not skip:
                        g.i(f"ds_read_b128 {vr(V_K,4)}, v{V_KA} offset:{sl*RING+nt*2048}")
                    if b == 0 and skip: g.i("s_nop 0")
                    emit(it, p, 'qk')
                if e == p1:
                    g.i(f"v_smfmac_f32_32x32x32_bf16 {vr(V_O[b],16)}, {vr(V_V[t%2],4)}, {vr(S,8)}, v{V_IDX}")
                    if b == 0 and last: pass
                    elif b == 0 and skip: pass
                    elif b == 0:
                        xm = opt.get('x_em') and (it or t)
                        if xm: g.i("s_mov_b64 exec, s[100:101]")
                        g.i(f"ds_read_b128 {vr(V_V[(t+1)%2]+4,4)}, v{VA} offset:{nt*2048+512}")
                        if xm: g.i("s_mov_b64 exec, -1")
                    elif not last:
                        g.i("s_waitcnt lgkmcnt(0)")
                    emit(it, p, 'p1')
    assert not ev, ev
    g.side = side
    g.lab("L_at_done")
    g.i("s_nop 1")
    g.i(f"v_smfmac_f32_32x32x32_bf16 {vr(V_O[1],16)}, {vr(V_V[1]+4,4)}, {vr(V_S[1]+8,8)}, v{V_IDX}")
    g.i("s_setprio 0")
    g.stamp(4)
    if opt.get('itst'):
        g.i("s_memtime s[98:99]")
        g.i("s_waitcnt lgkmcnt(0)")
        g.i(f"v_writelane_b32 v250, s98, 8")
    g.i(f"s_mov_b32 s{S_T0}, 0x2b800000")
    g.i(f"s_mov_b32 s{S_T1}, 0x53800000")
    g.i(f"s_mov_b32 s{S_T2}, 0x7f800000")
    for q in range(2):
        O = V_O[q]
        g.i(f"v_maximum3_f32 v6, abs(v{O}), abs(v{O+1}), abs(v{O+2})")
        g.i(f"v_maximum3_f32 v7, abs(v{O+3}), abs(v{O+4}), abs(v{O+5})")
        g.i(f"v_maximum3_f32 v6, v6, abs(v{O+6}), abs(v{O+7})")
        g.i(f"v_maximum3_f32 v6, v6, v7, v7")
        g.i(f"v_cmp_nle_f32 s[{S_M}:{S_M+1}], s{S_T0}, v{O+8}")
        g.i(f"v_cmp_nge_f32 s[{S_M+2}:{S_M+3}], s{S_T1}, v{O+8}")
        g.i(f"v_cmp_ngt_f32 vcc, s{S_T2}, v6")
        g.i(f"v_rcp_f32 v{V_S[0]+2*q}, v{O+8}")
        g.i(f"s_or_b64 s[{S_M}:{S_M+1}], s[{S_M}:{S_M+1}], s[{S_M+2}:{S_M+3}]")
        g.i(f"s_or_b64 s[{S_M}:{S_M+1}], s[{S_M}:{S_M+1}], vcc")
        g.i("s_branch L_fallback" if opt.get('force_fallback') else "s_cbranch_scc1 L_fallback")
    g.lab("L_at_store")
    for q in range(2):
        O = V_O[q]
        for r in range(0, 8, 2):
            g.i(f"v_pk_mul_f32 v[{O+r}:{O+r+1}], v[{O+r}:{O+r+1}], v[{V_S[0]+2*q}:{V_S[0]+2*q+1}] op_sel_hi:[1,0]")
        for r in range(4):
            g.i(f"v_cvt_pk_bf16_f32 v{O+r}, v{O+2*r}, v{O+2*r+1}")
        g.i(f"buffer_store_dwordx4 {vr(O,4)}, v{V_L16}, s[{S_O}:{S_O+3}], s{S_OB if q else S_OA} offen sc1")

P_WO = 100
P_OF = 8
def outproj(g):
    opt = g.opt
    A0, A1 = 228, 72
    WA0, WA1, RA = 244, 245, 246
    def o_loads(fl=' sc1'):
        for s in range(16):
            so = (S_A, S_C, S_D, S_IT)[s // 4]
            g.i(f"buffer_load_dwordx4 {vr(P_OF+4*s,4)}, v{V_L16}, s[{S_O}:{S_O+3}], s{so} offen offset:{1024*(s%4)}{fl}")
    if opt.get('x_ack'): g.i("s_waitcnt vmcnt(0)")
    g.stamp(5)
    g.i("s_waitcnt vmcnt(2)")
    g.i("v_cmp_gt_u32 vcc, 8, v236")
    g.i(f"s_mov_b32 s{S_T3}, 0")
    if opt.get('earlym', 0):
        g.i(f"v_cmp_eq_u32 s[{S_M}:{S_M+1}], -1, v237")
        g.i("s_nop 0")
        g.i(f"s_or_b64 s[{S_M}:{S_M+1}], s[{S_M}:{S_M+1}], vcc")
    if opt.get('earlym', 0):
        g.i("s_cbranch_scc1 L_op_later")
        o_loads()
        g.lab("L_op_later")
    g.i(f"s_lshl_b32 s{S_T0}, s{S_E}, 15")
    g.i(f"s_add_u32 s{S_T0}, s{S_T0}, {L_WO}")
    g.i("v_lshrrev_b32 v6, 5, v0")
    g.i("v_bfe_u32 v7, v0, 2, 2")
    g.i("v_lshl_add_u32 v6, v6, 2, v7")
    g.i(f"v_lshl_add_u32 v6, v6, 7, s{S_T0}")
    g.i("v_bfe_u32 v7, v0, 3, 2")
    g.i("v_and_b32 v2, 1, v7")
    g.i("v_lshl_add_u32 v6, v2, 6, v6")
    g.i("v_lshrrev_b32 v7, 1, v7")
    g.i("v_lshl_add_u32 v6, v7, 5, v6")
    g.i("v_and_b32 v7, 3, v0")
    g.i(f"v_lshl_add_u32 v6, v7, 3, v6")
    g.i(f"s_lshl_b32 s{S_T0}, s{S_E}, 6")
    g.i(f"v_xor_b32 v{WA0}, s{S_T0}, v6")
    g.i(f"v_xor_b32 v{WA1}, 64, v{WA0}")
    for s in range(16):
        if s and s % 3 == 0: g.i("s_waitcnt lgkmcnt(2)")
        for f in range(2):
            for i in range(2):
                g.i(f"ds_read_b64_tr_b16 {vr(P_WO+8*s+4*f+2*i,2)}, v{WA1 if f else WA0} offset:{s*2048+i*1024}")
    g.i(f"s_lshl_b32 s{S_T0}, s{S_WAVE}, 12")
    g.i(f"v_add_u32 v{RA}, s{S_T0}, v{V_L16}")
    g.i(f"s_and_b32 s{S_T0}, s{S_WAVE}, 3")
    g.i(f"s_lshl_b32 s{S_T0}, s{S_T0}, 12")
    g.i(f"s_add_u32 s{S_T0}, s{S_T0}, {RING}")
    g.i("v_and_b32 v6, 31, v0")
    g.i(f"v_lshl_add_u32 v6, v6, 7, s{S_T0}")
    g.i("v_lshrrev_b32 v7, 5, v0")
    g.i(f"v_lshl_add_u32 v7, s{S_E}, 2, v7")
    g.i("v_and_b32 v91, 7, v0")
    g.i("v_xor_b32 v7, v7, v91")
    g.i("v_lshl_add_u32 v88, v7, 4, v6")
    g.i("v_xor_b32 v89, 32, v88")
    g.i("v_lshrrev_b32 v6, 3, v0")
    g.i("v_xor_b32 v7, v6, v91")
    g.i(f"v_lshl_add_u32 v6, v6, 7, s{S_T0}")
    g.i("v_lshl_add_u32 v6, v7, 4, v6")
    g.i(f"v_lshl_add_u32 v90, s{S_E}, 11, v6")
    g.st('t_tr')
    if opt.get('earlym', 0):
        g.i(f"s_cmp_eq_u64 s[{S_M}:{S_M+1}], 0")
        g.i("s_cbranch_scc1 L_op_mm")
    g.i("s_cbranch_vccz L_spin_o")
    g.lab("L_spin_c")
    g.i(f"buffer_load_dword v5, v{V_CA}, s[{S_DBG}:{S_DBG+3}], 0 offen offset:4 sc1")
    g.i(f"s_add_u32 s{S_T3}, s{S_T3}, 1")
    g.i(f"s_cmp_ge_u32 s{S_T3}, {SPIN_MAX}")
    g.i("s_cbranch_scc1 L_spin_o")
    g.i("s_waitcnt vmcnt(0)")
    g.i("v_cmp_gt_u32 vcc, 8, v5")
    g.i("s_cbranch_vccnz L_spin_c")
    g.lab("L_spin_o")
    g.i(f"buffer_load_dword v3, v{V_PA}, s[{S_O}:{S_O+3}], s{S_B} offen offset:1020 sc1")
    g.i(f"s_add_u32 s{S_T3}, s{S_T3}, 1")
    g.i(f"s_cmp_ge_u32 s{S_T3}, {SPIN_MAX}")
    g.i("s_cbranch_scc1 L_spun_o")
    g.i("s_waitcnt vmcnt(0)")
    g.i("v_cmp_eq_u32 vcc, -1, v3")
    if opt.get('sleep'): g.i(f"s_cbranch_vccz L_spun_o"); g.i(f"s_sleep {opt['sleep']}"); g.i("s_branch L_spin_o")
    g.i("s_cbranch_vccnz L_spin_o")
    g.lab("L_spun_o")
    g.st('t_ok')
    if 'ofl' in opt:
        g.i(f"s_cmp_lg_u32 s{S_PG}, 99")
        g.i(f"s_mov_b32 s{S_PG}, 99")
        g.i("s_cbranch_scc1 L_op_first")
        o_loads()
        g.i("s_branch L_op_mm")
        g.lab("L_op_first")
        o_loads(opt['ofl'])
    else:
        o_loads()
    g.lab("L_op_mm")
    g.stamp(6)
    g.i("v_mov_b32 v3, 0")
    g.i("s_waitcnt lgkmcnt(0)")
    for s in range(16):
        g.i(f"s_waitcnt vmcnt({15-s})")
        if s == 0: g.st('t_f0')
        if s == 15: g.st('t_f15')
        for f, A in ((1, A1), (0, A0)):
            g.i(f"v_mfma_f32_32x32x16_bf16 {vr(A,16)}, {vr(P_WO+8*s+4*f,4)}, {vr(P_OF+4*s,4)}, {vr(A,16) if s else 0}")
            g.i(f"v_max3_u32 v3, v3, v{P_OF+4*s+2*f}, v{P_OF+4*s+2*f+1}")
    g.i("v_cmp_eq_u32 vcc, -1, v3")
    g.i(f"s_cmp_ge_u32 s{S_T3}, {SPIN_MAX}")
    g.i("s_cbranch_scc1 L_op_go")
    g.i("s_cbranch_vccnz L_spin_o")
    g.lab("L_op_go")
    g.i("s_nop 5")
    for r in range(4):
        g.i(f"ds_write_b128 v{RA}, {vr(A1+4*r,4)} offset:{1024*r}")
    g.i("s_waitcnt lgkmcnt(0)")
    g.i(f"v_xor_b32 v{RA}, 16384, v{RA}")
    g.st('t_b9a')
    barrier_unless_dry(g, "b9")
    g.st('t_b9')
    for r in range(4):
        g.i(f"ds_read_b128 {vr(P_OF+4*r,4)}, v{RA} offset:{1024*r}")
    for r in range(4):
        g.i(f"s_waitcnt lgkmcnt({3-r})")
        for k in range(4):
            g.i(f"v_add_f32 v{A0+4*r+k}, v{A0+4*r+k}, v{P_OF+4*r+k}")
        for k in range(2):
            g.i(f"v_cvt_pk_bf16_f32 v{24+2*r+k}, v{A0+4*r+2*k}, v{A0+4*r+2*k+1}")
        if r % 2:
            g.i("s_nop 1")
            g.i(f"v_permlane32_swap_b32 v{24+2*r-2}, v{24+2*r}")
            g.i(f"v_permlane32_swap_b32 v{24+2*r-1}, v{24+2*r+1}")
            g.i(f"ds_write_b128 v{88+r//2}, {vr(24+2*r-2,4)}")
    if True:
        g.i(f"s_add_u32 s{S_T0}, s{S_OW}, 16384")
        g.i("s_waitcnt lgkmcnt(0)")
        barrier_unless_dry(g, "b10")
        g.i("ds_read_b128 v[24:27], v90")
        g.i("ds_read_b128 v[28:31], v90 offset:1024")
        g.i("s_waitcnt lgkmcnt(1)")
        g.i(f"buffer_store_dwordx4 v[24:27], v{V_OW}, s[{S_OUT}:{S_OUT+3}], s{S_OW} offen{opt.get('outs','')}")
        g.i("s_waitcnt lgkmcnt(0)")
        g.i(f"buffer_store_dwordx4 v[28:31], v{V_OW}, s[{S_OUT}:{S_OUT+3}], s{S_T0} offen{opt.get('outs','')}")
    dry_exit(g)
    if g.diag:
        g.i("s_waitcnt vmcnt(0)")
        g.stamp(7)
        g.i("s_waitcnt lgkmcnt(0)")
        if g.diag == 3:
            a_, b_, K = opt['leak']
            if opt.get('leakw'):
                g.i(f"s_cmp_lt_u32 s{S_WAVE}, 4")
                g.i("s_cbranch_scc1 L_end")
            elif a_ in (1, 2) or b_ in (1, 2):
                g.i(f"s_cmp_ge_u32 s{S_WAVE}, 4")
                g.i("s_cbranch_scc1 L_end")
            if opt.get('leakc'):
                g.i(f"s_sub_u32 s{S_T0}, s{64+4*b_}, s{64+4*a_}")
                g.i(f"s_lshr_b32 s{S_T0}, s{S_T0}, 4")
            else:
                g.i(f"s_sub_u32 s{S_T0}, s{66+4*b_}, s{66+4*a_}")
            g.i(f"s_mul_i32 s{S_T0}, s{S_T0}, {K}")
            g.lab("L_leak")
            g.i("s_memrealtime s[98:99]")
            g.i("s_waitcnt lgkmcnt(0)")
            g.i(f"s_sub_u32 s{S_T1}, s98, s{66+4*7}")
            g.i(f"s_cmp_lt_u32 s{S_T1}, s{S_T0}")
            g.i("s_cbranch_scc1 L_leak")
            g.i("s_endpgm")
        if g.diag == 2:
            g.i(f"s_cmp_ge_u32 s{S_WAVE}, 4")
            g.i("s_cbranch_scc1 L_end")
            g.i("s_mov_b64 exec, 1")
            for k in range(1, 8):
                g.i(f"s_sub_u32 s{S_T0}, s{66+4*k}, s66")
                g.i(f"v_mov_b32 v6, s{S_T0}")
                g.i(f"v_mov_b32 v7, {8*k+4}")
                g.i(f"buffer_atomic_umax v6, v7, s[{S_DBG}:{S_DBG+3}], 0 offen sc1")
            g.i(f"s_sub_u32 s{S_T0}, s{64+4*4}, s{64+4*3}")
            g.i(f"v_mov_b32 v6, s{S_T0}")
            g.i(f"v_mov_b32 v7, 4")
            g.i(f"buffer_atomic_umax v6, v7, s[{S_DBG}:{S_DBG+3}], 0 offen sc1")
            g.i("s_endpgm")
        g.i(f"s_lshl_b32 s{S_T0}, s2, 3")
        g.i(f"s_add_u32 s{S_T0}, s{S_T0}, s{S_WAVE}")
        g.i(f"s_lshl_b32 s{S_T0}, s{S_T0}, 7")
        g.i(f"s_add_u32 s{S_T0}, s{S_T0}, {WS_STAMP}")
        srd(g.a, S_X, 96, 128, f"s{S_T0}")
        for k in range(32):
            g.i(f"v_mov_b32 v{36+k}, s{64+k}")
        g.i("v_mov_b32 v6, 0")
        for k in range(8):
            g.i(f"buffer_store_dwordx4 {vr(36+4*k,4)}, v6, s[{S_X}:{S_X+3}], 0 offen offset:{16*k}")
        if opt.get('itst'):
            g.i(f"s_add_u32 s{S_T0}, s{S_T0}, {1<<20}")
            srd(g.a, S_X, 96, 64, f"s{S_T0}")
            g.i("v_lshlrev_b32 v6, 2, v0")
            g.i(f"buffer_store_dword v250, v6, s[{S_X}:{S_X+3}], 0 offen")
    g.lab("L_end")
    g.i("s_endpgm")

def fallback(g):
    C = [100, 116]; M = [132, 133]; GV = 134
    g.lab("L_fallback")
    g.i(f"s_lshr_b32 s{S_T0}, s{S_WAVE}, 2")
    g.i(f"s_lshl_b32 s{S_T0}, s{S_T0}, 17")
    g.i(f"v_mov_b32 v{M[0]}, 0xff800000")
    g.i(f"v_mov_b32 v{M[1]}, 0xff800000")
    g.i(f"s_mov_b32 s{S_T1}, s{S_T0}")
    g.i(f"s_add_u32 s{S_T2}, s{S_T0}, 131072")
    g.lab("L_fb_max")
    g.i(f"buffer_load_dwordx4 {vr(V_K,4)}, v{V_L16}, s[{S_KV}:{S_KV+3}], s{S_T1} offen sc1")
    g.i(f"s_add_u32 s{S_T1}, s{S_T1}, 2048")
    g.i("s_waitcnt vmcnt(0)")
    for q in range(2):
        g.i(f"v_mfma_f32_32x32x16_bf16 {vr(V_S[q],16)}, {vr(V_K,4)}, {vr(V_Q[q],4)}, 0")
    g.i("s_nop 15")
    for q in range(2):
        for r in range(0, 16, 2):
            g.i(f"v_max3_f32 v{M[q]}, v{M[q]}, v{V_S[q]+r}, v{V_S[q]+r+1}")
    g.i(f"s_cmp_lt_u32 s{S_T1}, s{S_T2}")
    g.i("s_cbranch_scc1 L_fb_max")
    for q in range(2):
        g.i(f"v_mov_b32 v6, v{M[q]}")
        g.i(f"v_mov_b32 v7, v{M[q]}")
        g.i("s_nop 1")
        g.i("v_permlane32_swap_b32 v6, v7")
        g.i("s_nop 1")
        g.i("v_max_f32 v6, v6, v7")
        for r in range(16):
            g.i(f"v_sub_f32 v{C[q]+r}, 0, v6")
            g.i(f"v_mov_b32 v{V_O[q]+r}, 0")
    g.i("v_and_b32 v6, 15, v0")
    g.i("v_lshlrev_b32 v6, 4, v6")
    g.i("v_lshrrev_b32 v7, 5, v0")
    g.i(f"v_lshl_add_u32 v{GV}, v7, 8, v6")
    for r in range(8):
        g.i(f"v_mov_b32 v{V_V[0]+r}, 0x3f803f80")
    g.i(f"s_mov_b32 s{S_T1}, s{S_T0}")
    g.i(f"s_mov_b32 s{S_M}, 0xffff")
    g.i(f"s_mov_b32 s{S_M+1}, 0xffff")
    g.lab("L_fb_pv")
    g.i(f"buffer_load_dwordx4 {vr(V_K,4)}, v{V_L16}, s[{S_KV}:{S_KV+3}], s{S_T1} offen sc1")
    g.i(f"s_mov_b64 exec, s[{S_M}:{S_M+1}]")
    g.i(f"buffer_load_dwordx4 {vr(V_V[0],4)}, v{GV}, s[{S_KV}:{S_KV+3}], s{S_T1} offen offset:1024 sc1")
    g.i(f"buffer_load_dwordx4 {vr(V_V[0]+4,4)}, v{GV}, s[{S_KV}:{S_KV+3}], s{S_T1} offen offset:1536 sc1")
    g.i("s_mov_b64 exec, -1")
    g.i(f"s_add_u32 s{S_T1}, s{S_T1}, 2048")
    g.i("s_waitcnt vmcnt(0)")
    for q in range(2):
        g.i(f"v_mfma_f32_32x32x16_bf16 {vr(V_S[q],16)}, {vr(V_K,4)}, {vr(V_Q[q],4)}, {vr(C[q],16)}")
    g.i("s_nop 15")
    for q in range(2):
        for r in range(16):
            g.i(f"v_exp_f32 v{V_S[q]+r}, v{V_S[q]+r}")
    g.i("s_nop 3")
    for q in range(2):
        for h in range(2):
            g.i(f"v_smfmac_f32_32x32x32_bf16 {vr(V_O[q],16)}, {vr(V_V[0]+4*h,4)}, {vr(V_S[q]+8*h,8)}, v{V_IDX}")
    g.i("s_nop 15")
    g.i(f"s_cmp_lt_u32 s{S_T1}, s{S_T2}")
    g.i("s_cbranch_scc1 L_fb_pv")
    for q in range(2):
        g.i(f"v_rcp_f32 v{V_S[0]+2*q}, v{V_O[q]+8}")
    g.i("s_nop 1")
    g.i("s_branch L_at_store")

HEADER = open('cdna_kernels/' + NAME + '.s.ref').read().split('; Override launch')[0]

DOC = """;
; One persistent launch, 256 workgroups (one per CU) x 8 waves.  Workgroup = (branch, head pair hp, block tb of 256 tokens).
;  1. QKV projection of the 256 tokens x 96 columns (q,k,v of the two heads).  Waves 4-7 stream x and wqkv into a 3-slot
;     O^T += [V^T; 1] P^T with v_smfmac_f32_32x32x32_bf16 whose 2:4 index picks the upper halves of the fp32 p registers
;     (bf16 p without a pack instruction; the row of ones gives the softmax denominator from the same p).
;     first filled with an all-ones pattern, a consumer accepts a fragment when no word holds the pattern any more.
; Generated by a Python script (register maps and schedules are spelled out below)."""

def generate(opt={}):
    global WS_KV, WS_O, WS_FLAG
    off = opt.get('wsoff', 0) << 20
    WS_KV, WS_O, WS_FLAG = (4 << 20) + off, (12 << 20) + off, (16 << 20) + off
    g = G(opt)
    name = NAME + "_kernel"
    g.a(HEADER.rstrip())
    g.a(f"; @launch grid=(256,1,1) block=(512,1,1) lds={LDS_TOTAL}")
    g.a(DOC)
    g.a('.amdgcn_target "amdgcn-amd-amdhsa--gfx950"')
    entry(g, name)
    if opt.get('lfirst', 1): loader(g)
    compute(g)
    attention(g)
    outproj(g)
    if not opt.get('lfirst', 1): loader(g)
    g.lab("L_code_end")
    for tag, body in g.side:
        g.lab(f"L_ol_{tag}")
        body()
        g.i(f"s_branch L_olr_{tag}")
    fallback(g)
    kernel_desc(g.a, name, NVGPR, 256, 102)
    return g.a.text()

if __name__ == "__main__":
    import sys
    opt = eval(sys.argv[2]) if len(sys.argv) > 2 else {}
    open(sys.argv[1], 'w').write(generate(opt))
```

```python
import math, struct
from common import *

WS_FLAG = 16 << 20
SLOT = 45056; SLOT_W = 32768
RING = 32768
L_WO = 65536
L_CONST = 135168
L_QX = 155648
LDS_TOTAL = 163840
S_X, S_W, S_WO, S_KV, S_O, S_FL, S_DBG, S_OUT = 8, 12, 16, 20, 24, 28, 32, 36
S_WAVE, S_BR, S_HP, S_TB, S_IT, S_T0, S_T1, S_T2, S_T3 = 40, 41, 42, 43, 44, 45, 46, 47, 48
S_A, S_B, S_C, S_D, S_E, S_F = 49, 50, 51, 52, 53, 54
S_G1, S_G2, S_PG = 58, 59, 60
KG, KL, VG, VL, QL, KVT = 244, 245, 247, 248, 249, 204
S_M = 56
V_L16, V_KA, V_VA, V_VX, V_IDX, V_T0, V_T1 = 1, 2, 3, 4, 5, 6, 7
V_Q = [8, 12]; V_K = 16; V_V = [20, 28]; V_S = [36, 52]; V_O = [68, 84]
V_F = 241
V_FA = 242
V_OW = 251
V_CA, V_PA = 248, 249
V_WOA = 243
V_ACC = 100
V_FR = [196, 216]
V_XA = 236; V_WA = 240
NVGPR = 256
QSCALE = struct.unpack('<I', struct.pack('<f', 0.25 * math.log2(math.e)))[0]
SPIN_MAX = 1 << 20
S_DRY = 3

class G:
    def __init__(self, opt):
        self.a = Asm(); self.opt = opt; self.diag = opt.get('diag', 0)
    def i(self, s): self.a.i(s)
    def lab(self, s): self.a.label(s)
    def st(self, name):
        m = self.opt.get('st', {})
        if name in m: self.stamp(m[name], True)
    def stamp(self, k, forced=False):
        if k in self.opt.get('st', {}).values() and not forced: return
        if self.diag:
            self.i(f"s_memtime s[{64+4*k}:{65+4*k}]")
            self.i(f"s_memrealtime s[{66+4*k}:{67+4*k}]")

def dry_exit(g, label="L_dry_ret"):
    if g.opt.get('dry', 1):
        g.i(f"s_cmp_lg_u32 s{S_DRY}, 0")
        g.i(f"s_cbranch_scc1 {label}")

def barrier_unless_dry(g, tag):
    dry_exit(g, f"L_nb_{tag}")
    g.i("s_barrier")
    g.lab(f"L_nb_{tag}")

def spin(g, tag, load, want, nlanes_mask=None):
    g.i(f"s_mov_b32 s{S_T3}, 0")
    g.lab(f"L_spin_{tag}")
    g.i(load)
    g.i(f"s_add_u32 s{S_T3}, s{S_T3}, 1")
    g.i("s_waitcnt vmcnt(0)")
    g.i(f"v_cmp_{'gt' if want > 1 else 'ne'}_u32 vcc, {want}, v{V_F}")
    g.i(f"s_cmp_ge_u32 s{S_T3}, {SPIN_MAX}")
    g.i(f"s_cbranch_scc1 L_spun_{tag}")
    g.i(f"s_cbranch_vccnz L_spin_{tag}")
    g.lab(f"L_spun_{tag}")

def entry(g, name):
    a = g.a
    kernel_head(a, name)
    PF = g.opt.get('cpf', 4)
    if PF in (2, 3):
        g.i("s_getpc_b64 s[16:17]")
    if PF == 1:
        g.i("s_getpc_b64 s[8:9]")
        g.i("v_lshlrev_b32 v6, 7, v0")
        g.i("s_mov_b32 s10, L_code_end-" + name + "-4")
        g.i("s_mov_b32 s11, 0x20000")
    if PF == 4:
        g.i("s_getpc_b64 s[8:9]")
        g.i("v_lshlrev_b32 v6, 7, v0")
        g.i("s_lshl_b32 s4, s2, 7")
        g.i("s_and_b32 s4, s4, 0x7c00")
        g.i("s_add_u32 s10, s4, 1024")
        g.i("s_min_u32 s10, s10, L_code_end-" + name + "-4")
        g.i("s_mov_b32 s11, 0x20000")
    g.i("s_cmp_ge_u32 s2, 256")
    g.i("s_cbranch_scc1 L_end")
    if PF == 1:
        g.i("buffer_load_dword v246, v6, s[8:11], 0 offen")
    if PF == 4:
        g.i("buffer_load_dword v246, v6, s[8:11], s4 offen")
    g.stamp(0)
    g.i(f"s_mov_b32 s{S_DRY}, 0")
    g.i(f"s_bfe_u32 s{S_BR}, s2, 0x10002")
    g.i(f"s_mul_i32 s{S_T0}, s{S_BR}, 24")
    g.i(f"s_load_dwordx4 s[{S_M}:{S_M+3}], s[0:1], s{S_T0}")
    g.i(f"s_load_dwordx2 s[{S_M+4}:{S_M+5}], s[0:1], s{S_T0} offset:16")
    g.i("s_load_dwordx4 s[4:7], s[0:1], 48")
    g.i(f"s_load_dwordx2 s[{S_M+6}:{S_M+7}], s[0:1], 64")
    g.i("v_lshrrev_b32 v6, 6, v0")
    g.i("v_and_b32 v0, 63, v0")
    g.i(f"v_readfirstlane_b32 s{S_WAVE}, v6")
    g.i(f"v_lshlrev_b32 v{V_L16}, 4, v0")
    g.i(f"s_bfe_u32 s{S_HP}, s2, 0x10001")
    g.i(f"s_lshl_b32 s{S_HP}, s{S_HP}, 3")
    g.i(f"s_bfe_u32 s{S_T0}, s2, 0x30003")
    g.i(f"s_add_u32 s{S_HP}, s{S_HP}, s{S_T0}")
    g.i(f"s_and_b32 s{S_TB}, s2, 1")
    g.i(f"s_lshl_b32 s{S_TB}, s{S_TB}, 2")
    g.i(f"s_lshr_b32 s{S_T0}, s2, 6")
    g.i(f"s_add_u32 s{S_TB}, s{S_TB}, s{S_T0}")
    g.i(f"s_lshl_b32 s{S_T0}, s{S_TB}, 18")
    g.i(f"s_lshl_b32 s{S_T1}, s{S_BR}, 4")
    g.i(f"s_add_u32 s{S_T1}, s{S_T1}, s{S_HP}")
    g.i(f"s_lshl_b32 s{S_T2}, s{S_T1}, 18")
    g.i(f"s_add_u32 s{S_T2}, s{S_T2}, {WS_KV}")
    g.i(f"s_lshl_b32 s{S_T3}, s{S_BR}, 21")
    g.i(f"s_add_u32 s{S_T3}, s{S_T3}, {WS_O}")
    if g.opt.get('lfirst', 1):
        g.i(f"s_cmp_lt_u32 s{S_WAVE}, 4")
        g.i("s_cbranch_scc1 L_compute")
    else:
        g.i(f"s_cmp_ge_u32 s{S_WAVE}, 4")
        g.i("s_cbranch_scc1 L_loader")

def early_srds(g):
    g.i("s_waitcnt lgkmcnt(0)")
    g.st('karg')
    srd(g.a, S_X, S_M, 256 * 1024, f"s{S_T0}")
    srd(g.a, S_W, S_M + 2, 512 * 1536 * 2)

def late_srds(g):
    a = g.a
    srd(a, S_WO, S_M + 4, 512 * 512 * 2)
    srd(a, S_KV, S_M + 6, 256 * 1024, f"s{S_T2}")
    srd(a, S_O, S_M + 6, 2 << 20, f"s{S_T3}")
    srd(a, S_FL, S_M + 6, 4096, str(WS_FLAG))
    srd(a, S_DBG, 6, 256)
    srd(a, S_OUT, 4, 2048 * 1024 * 2)
    if g.diag:
        g.i(f"s_mov_b32 s96, s{S_M+6}")
        g.i(f"s_mov_b32 s97, s{S_M+7}")

def attn_consts(g):
    g.i(f"s_lshr_b32 s{S_T0}, s{S_WAVE}, 2")
    g.i(f"s_lshl_b32 s{S_T0}, s{S_T0}, 14")
    g.i(f"v_add_u32 v{V_KA}, s{S_T0}, v{V_L16}")
    g.i(f"v_and_b32 v{V_T0}, 15, v0")
    g.i(f"v_lshlrev_b32 v{V_T0}, 4, v{V_T0}")
    g.i(f"v_lshrrev_b32 v{V_T1}, 5, v0")
    g.i(f"v_lshl_add_u32 v{V_T0}, v{V_T1}, 8, v{V_T0}")
    g.i(f"s_add_u32 s{S_T0}, s{S_T0}, 1024")
    g.i(f"v_add_u32 v{V_VA}, s{S_T0}, v{V_T0}")
    g.i(f"v_and_b32 v{V_T0}, 31, v0")
    g.i(f"v_subrev_u32 v{V_T1}, 20, v{V_T0}")
    g.i(f"v_cmp_gt_u32 vcc, 8, v{V_T1}")
    g.i(f"v_mov_b32 v{V_T1}, {L_CONST+16}")
    g.i(f"v_mov_b32 v{V_VX}, {L_CONST+16+64}")
    g.i(f"v_cndmask_b32 v{V_T1}, v{V_T1}, v{V_VX}, vcc")
    g.i(f"v_and_b32 v{V_VX}, {31 if g.opt.get('x_one') else 27}, v0")
    g.i(f"v_cmp_eq_u32 vcc, 16, v{V_VX}")
    g.i(f"v_subrev_u32 v{V_VX}, 16, v{V_T1}")
    g.i("s_nop 0")
    g.i(f"v_cndmask_b32 v{V_T1}, v{V_T1}, v{V_VX}, vcc")
    g.i(f"v_cmp_gt_u32 vcc, 16, v{V_T0}")
    g.i(f"v_mov_b32 v{V_T0}, {RING}")
    g.i(f"v_mov_b32 v{V_IDX}, 0xdddd")
    g.i(f"v_cndmask_b32 v{V_VA}, v{V_T1}, v{V_VA}, vcc")
    g.i(f"v_cndmask_b32 v{V_VX}, 0, v{V_T0}, vcc")
    g.i(f"v_add_u32 v{V_VX}, v{V_VX}, v{V_VA}")
    g.i("v_lshrrev_b32 v7, 3, v0")
    g.i("v_lshlrev_b32 v7, 11, v7")
    g.i(f"v_and_b32 v{V_OW}, 7, v0")
    g.i(f"v_lshl_add_u32 v{V_OW}, v{V_OW}, 4, v7")
    g.i(f"v_mov_b64 v[{V_CA}:{V_PA}], 0")
    g.i(f"v_mov_b32 v{KG}, 0")
    g.i(f"v_mov_b32 v{VG}, 0")
    g.i("v_mov_b64 v[252:253], -1")
    g.i("v_mov_b64 v[254:255], -1")
    for r in range(0, 32, 2):
        g.i(f"v_mov_b64 v[{V_O[0]+r}:{V_O[0]+r+1}], 0")
    g.i(f"s_lshl_b32 s{S_T0}, s{S_BR}, 4")
    g.i(f"s_add_u32 s{S_T0}, s{S_T0}, s{S_HP}")
    g.i(f"s_lshl_b32 s{S_T0}, s{S_T0}, 7")
    g.i(f"v_and_b32 v6, 31, v0")
    g.i(f"v_lshl_add_u32 v{V_FA}, v6, 2, s{S_T0}")
    g.i(f"v_lshrrev_b32 v{V_T0}, 2, v0")
    g.i(f"v_and_b32 v{V_T0}, 4, v{V_T0}")
    g.i(f"v_and_b32 v{V_T1}, 7, v0")
    g.i(f"v_xor_b32 v{V_T0}, v{V_T0}, v{V_T1}")
    g.i(f"v_lshlrev_b32 v{V_T0}, 4, v{V_T0}")
    g.i(f"v_lshrrev_b32 v{V_T1}, 3, v0")
    g.i(f"v_lshl_add_u32 v{V_WOA}, v{V_T1}, 10, v{V_T0}")

def consts(g):
    g.i(f"s_cmp_lg_u32 s{S_WAVE}, 4")
    g.i("s_cbranch_scc1 L_ld_noconst")
    g.i("v_lshrrev_b32 v6, 2, v0")
    g.i("v_and_b32 v7, 1, v6")
    g.i("v_lshlrev_b32 v7, 9, v7")
    g.i("v_lshrrev_b32 v6, 1, v6")
    g.i("v_lshl_add_u32 v7, v6, 11, v7")
    g.i("v_and_b32 v6, 1, v0")
    g.i("v_lshl_add_u32 v7, v6, 4, v7")
    g.i("v_cmp_eq_u32 vcc, 0, v6")
    g.i("v_and_b32 v6, 2, v0")
    g.i("v_lshl_add_u32 v7, v6, 5, v7")
    g.i("v_mov_b32 v6, 0x3f803f80")
    g.i(f"v_add_u32 v7, {L_CONST}, v7")
    g.i("v_cndmask_b32 v108, 0, v6, vcc")
    g.i("v_cndmask_b32 v109, 0, v6, vcc")
    g.i("v_cndmask_b32 v110, 0, v6, vcc")
    g.i("v_cndmask_b32 v111, 0, v6, vcc")
    g.i("ds_write_b128 v7, v[108:111]")
    g.lab("L_ld_noconst")

def loader(g):
    VX, VW, VT = 100, 104, 112
    LEAD = g.opt.get('lead', 0)
    g.lab("L_loader")
    g.i(f"s_sub_u32 s{S_A}, s{S_WAVE}, 4")
    S_CH, S_TX = S_F, 55
    RM = g.opt.get('rot', 7)
    if RM == 1:
        g.i(f"s_lshl_b32 s{S_CH}, s{S_TB}, 1")
        g.i(f"s_lshr_b32 s{S_T1}, s{S_TB}, 2")
        g.i(f"s_add_u32 s{S_CH}, s{S_CH}, s{S_T1}")
        g.i(f"s_and_b32 s{S_CH}, s{S_CH}, 7")
    elif RM == 2:
        g.i(f"s_mov_b32 s{S_CH}, s{S_TB}")
    elif RM == 7:
        g.i(f"s_and_b32 s{S_T1}, s{S_HP}, 1")
        g.i(f"s_lshl_b32 s{S_T1}, s{S_T1}, 2")
        g.i(f"s_add_u32 s{S_CH}, s{S_TB}, s{S_T1}")
        g.i(f"s_and_b32 s{S_CH}, s{S_CH}, 7")
    elif RM == 8:
        g.i(f"s_lshl_b32 s{S_CH}, s{S_TB}, 1")
        g.i(f"s_bfe_u32 s{S_T1}, s{S_HP}, 0x10001")
        g.i(f"s_add_u32 s{S_CH}, s{S_CH}, s{S_T1}")
        g.i(f"s_and_b32 s{S_CH}, s{S_CH}, 7")
    elif RM == 9:
        g.i(f"s_lshl_b32 s{S_CH}, s{S_TB}, 1")
        g.i(f"s_and_b32 s{S_T1}, s{S_HP}, 3")
        g.i(f"s_add_u32 s{S_CH}, s{S_CH}, s{S_T1}")
        g.i(f"s_and_b32 s{S_CH}, s{S_CH}, 7")
    elif RM == 10:
        g.i(f"s_and_b32 s{S_CH}, s2, 7")
    elif RM == 11:
        g.i(f"s_and_b32 s{S_CH}, s2, 3")
        g.i(f"s_lshl_b32 s{S_CH}, s{S_CH}, 1")
        g.i(f"s_add_u32 s{S_CH}, s{S_CH}, s{S_BR}")
    elif RM == 0:
        g.i(f"s_mov_b32 s{S_CH}, 0")
    elif RM == 6:
        g.i(f"s_lshl_b32 s{S_CH}, s{S_TB}, 1")
        g.i(f"s_add_u32 s{S_CH}, s{S_CH}, s{S_HP}")
        g.i(f"s_and_b32 s{S_CH}, s{S_CH}, 7")
    elif RM == 4:
        g.i(f"s_lshl_b32 s{S_CH}, s{S_TB}, 1")
        g.i(f"s_add_u32 s{S_CH}, s{S_CH}, s{S_HP}")
        g.i(f"s_and_b32 s{S_CH}, s{S_CH}, 3")
        g.i(f"s_lshl_b32 s{S_CH}, s{S_CH}, 1")
    elif RM == 5:
        g.i(f"s_add_u32 s{S_CH}, s{S_TB}, s{S_HP}")
        g.i(f"s_and_b32 s{S_CH}, s{S_CH}, 3")
        g.i(f"s_lshl_b32 s{S_CH}, s{S_CH}, 1")
    elif RM == 3:
        g.i(f"s_lshl_b32 s{S_CH}, s{S_TB}, 1")
        g.i(f"s_and_b32 s{S_T1}, s{S_HP}, 1")
        g.i(f"s_add_u32 s{S_CH}, s{S_CH}, s{S_T1}")
        g.i(f"s_and_b32 s{S_CH}, s{S_CH}, 7")
    if g.opt.get('pf') or LEAD: pass
    if g.opt.get('pf') or LEAD:
        g.i(f"v_lshlrev_b32 v{VT}, 10, v0")
        g.i(f"s_and_b32 s{S_TX}, s{S_HP}, 7")
        g.i(f"s_lshl_b32 s{S_TX}, s{S_TX}, 2")
        g.i(f"s_add_u32 s{S_TX}, s{S_TX}, s{S_A}")
        g.i(f"s_lshl_b32 s{S_TX}, s{S_TX}, 13")
    PF = g.opt.get('pf', 0)
    NT = 2 if PF else (1 if LEAD else 0)
    if PF:
        S_TC, S_TW = S_IT, 0
        g.i(f"s_mov_b32 s{S_TC}, s{S_CH}")
        g.i("v_lshrrev_b32 v6, 1, v0")
        g.i("v_and_b32 v7, 1, v0")
        g.i("v_lshlrev_b32 v7, 7, v7")
        g.i(f"v_lshl_add_u32 v{VT+1}, v6, 10, v7")
        g.i(f"s_lshr_b32 s1, s2, 3")
        g.i(f"s_lshl_b32 s1, s1, 1")
        g.i(f"s_lshr_b32 s{S_T1}, s{S_A}, 1")
        g.i(f"s_add_u32 s1, s1, s{S_T1}")
        g.i(f"s_mul_i32 s1, s1, 3072")
        g.i(f"s_lshr_b32 s{S_T1}, s{S_HP}, 3")
        g.i(f"s_lshl_b32 s{S_T1}, s{S_T1}, 1")
        g.i(f"s_and_b32 s{S_B}, s{S_A}, 1")
        g.i(f"s_add_u32 s{S_T1}, s{S_T1}, s{S_B}")
        g.i(f"s_lshl_b32 s{S_T1}, s{S_T1}, 8")
        g.i(f"s_add_u32 s3, s1, s{S_T1}")
    def touch(ahead):
        if PF:
            g.i(f"s_lshl_b32 s{S_T0}, s{S_TC}, 7")
            g.i(f"s_add_u32 s{S_T0}, s{S_T0}, s{S_TX}")
            g.i(f"s_mul_i32 s{S_T1}, s{S_TC}, {64*3072}")
            g.i(f"s_add_u32 s{S_T1}, s{S_T1}, s3")
            g.i("s_mov_b64 exec, 0xff")
            g.i(f"buffer_load_dword v246, v{VT}, s[{S_X}:{S_X+3}], s{S_T0} offen")
            if g.opt.get('pfw', 1):
                g.i("s_mov_b64 exec, 0x3f")
                g.i(f"buffer_load_dword v246, v{VT+1}, s[{S_W}:{S_W+3}], s{S_T1} offen")
            g.i("s_mov_b64 exec, -1")
            g.i(f"s_add_u32 s{S_TC}, s{S_TC}, 1")
            g.i(f"s_and_b32 s{S_TC}, s{S_TC}, 7")
            return
        if not LEAD: return
        g.i(f"s_add_u32 s{S_T0}, s{S_CH}, {ahead}")
        g.i(f"s_and_b32 s{S_T0}, s{S_T0}, 7")
        g.i(f"s_lshl_b32 s{S_T0}, s{S_T0}, 7")
        g.i(f"s_add_u32 s{S_T0}, s{S_T0}, s{S_TX}")
        g.i("s_mov_b64 exec, 0xff")
        g.i(f"buffer_load_dword v246, v{VT}, s[{S_X}:{S_X+3}], s{S_T0} offen")
        g.i("s_mov_b64 exec, -1")
    g.i("v_lshrrev_b32 v6, 4, v0")
    g.i("v_and_b32 v7, 7, v0")
    g.i("v_xor_b32 v6, v6, v7")
    g.i("v_lshlrev_b32 v6, 4, v6")
    g.i("v_lshrrev_b32 v7, 3, v0")
    g.i(f"v_lshl_add_u32 v{VX}, v7, 10, v6")
    g.i(f"v_xor_b32 v{VX+1}, 64, v{VX}")
    g.i(f"v_add_u32 v{VX+2}, {2*7168}, v{VX}")
    g.i(f"v_add_u32 v{VX+3}, {3*7168}, v{VX+1}")
    g.i(f"v_add_u32 v{VX+1}, 7168, v{VX+1}")
    g.i(f"s_lshl_b32 s{S_B}, s{S_A}, 16")
    g.i(f"s_lshl_b32 s{S_D}, s{S_A}, 13")
    for p in range(3):
        g.i(f"v_add_u32 v6, {64*p}, v0")
        g.i("v_mul_u32_u24 v7, 43691, v6")
        g.i("v_lshrrev_b32 v7, 19, v7")
        g.i("v_mul_u32_u24 v110, 12, v7")
        g.i("v_sub_u32 v6, v6, v110")
        g.i("v_mul_u32_u24 v7, 3072, v7")
        g.i("v_lshrrev_b32 v110, 2, v6")
        g.i(f"v_lshl_add_u32 v7, v110, {6 if g.opt.get('x_wc') else 10}, v7")
        g.i("v_and_b32 v6, 3, v6")
        g.i("v_lshl_add_u32 v7, v6, 4, v7")
        g.i(f"v_subrev_u32 v{VW+p}, {1024*p}, v7")
    g.i(f"s_mul_i32 s{S_C}, s{S_A}, {16*3072}")
    g.i(f"s_lshl_b32 s{S_T1}, s{S_HP}, {7 if g.opt.get('x_wc') else 6}")
    g.i(f"s_add_u32 s{S_C}, s{S_C}, s{S_T1}")
    g.i(f"s_mul_i32 s{S_E}, s{S_A}, 3072")
    g.i(f"s_add_u32 s{S_E}, s{S_E}, {SLOT_W}")
    early_srds(g)
    cnt = [0]
    def issue():
        cnt[0] += 1
        g.i(f"s_lshl_b32 s{S_T1}, s{S_CH}, 7")
        g.i(f"s_add_u32 s{S_T1}, s{S_T1}, s{S_B}")
        g.i(f"s_mov_b32 m0, s{S_D}")
        g.i(f"s_add_u32 s{S_T0}, s{S_T1}, 32768")
        for p in range(4):
            g.i(f"buffer_load_dwordx4 v{VX+p}, s[{S_X}:{S_X+3}], s{S_T1} offen offset:{1024*p}{g.opt.get('xfl','')} lds")
        if cnt[0] == 1: g.st('ld_4')
        g.i(f"s_add_u32 m0, s{S_D}, 4096")
        g.i(f"s_mul_i32 s{S_T1}, s{S_CH}, {64*3072}")
        for p in range(4):
            g.i(f"buffer_load_dwordx4 v{VX+p}, s[{S_X}:{S_X+3}], s{S_T0} offen offset:{1024*p}{g.opt.get('xfl','')} lds")
        if cnt[0] == 1: g.st('ld_8')
        g.i(f"s_mov_b32 m0, s{S_E}")
        g.i(f"s_add_u32 s{S_T1}, s{S_T1}, s{S_C}")
        for p in range(3):
            if g.opt.get('x_now'): g.i(f"buffer_load_dword v244, v{VW+p}, s[{S_DBG if False else S_W}:{S_W+3}], s{S_C} offen"); continue
            g.i(f"buffer_load_dwordx4 v{VW+p}, s[{S_W}:{S_W+3}], s{S_T1} offen offset:{1024*p}{g.opt.get('wfl','')} lds")
        g.i(f"s_add_u32 s{S_CH}, s{S_CH}, 1")
        g.i(f"s_and_b32 s{S_CH}, s{S_CH}, 7")
    def next_slot():
        g.i(f"s_add_u32 s{S_D}, s{S_D}, {SLOT}")
        g.i(f"s_add_u32 s{S_E}, s{S_E}, {SLOT}")
        g.i(f"s_cmp_lt_u32 s{S_D}, {3*SLOT}")
        g.i(f"s_cselect_b32 s{S_T0}, 0, {3*SLOT}")
        g.i(f"s_sub_u32 s{S_D}, s{S_D}, s{S_T0}")
        g.i(f"s_sub_u32 s{S_E}, s{S_E}, s{S_T0}")
    if PF:
        q = []; nt = [0]
        def T():
            if nt[0] < 8: touch(0); q.extend('TT' if g.opt.get('pfw', 1) else 'T'); nt[0] += 1
        def D(c): issue(); q.extend([c] * 11)
        def W(c): g.i(f"s_waitcnt vmcnt({len(q) - 1 - max(i for i, x in enumerate(q) if x == c)})")
        for c in range(PF): T()
        D(0); T()
        next_slot(); D(1); T()
        late_srds(g); attn_consts(g); consts(g)
        for c in range(6):
            W(c)
            g.i("s_barrier")
            next_slot(); D(c + 2); T()
        W(6)
        g.i("s_barrier")
        g.i("s_waitcnt vmcnt(0)")
        g.i("s_barrier")
        g.i("s_mov_b32 s3, 0")
    if not PF: loader_plain(g, issue, next_slot, touch, LEAD, NT)
    loader_fin(g)

def loader_plain(g, issue, next_slot, touch, LEAD, NT):
    issue()
    g.st('ld_c0')
    next_slot(); issue()
    for c in range(2, LEAD): touch(c - 2)
    g.st('ld_c2')
    late_srds(g); attn_consts(g); consts(g)
    g.st('ld_pre')
    PRE = g.opt.get('pre', '')
    n0 = NT * max(LEAD - 2, 0)
    def pre():
        g.i(f"s_lshl_b32 s{S_T0}, s{S_TB}, 14")
        g.i(f"s_and_b32 s{S_T1}, s{S_A}, 1")
        g.i(f"s_lshl_b32 s{S_T1}, s{S_T1}, 13")
        g.i(f"s_add_u32 s{S_T0}, s{S_T0}, s{S_T1}")
        g.i(f"s_lshr_b32 s{S_T1}, s{S_A}, 1")
        g.i(f"s_lshl_b32 s{S_T1}, s{S_T1}, 17")
        g.i(f"s_add_u32 s{S_T0}, s{S_T0}, s{S_T1}")
        if PRE == 'r':
            g.i("v_lshlrev_b32 v6, 7, v0")
            g.i(f"buffer_load_dword v245, v6, s[{S_KV}:{S_KV+3}], s{S_T0} offen sc1")
            return 1
        g.i(f"s_add_u32 s{S_T1}, s{S_T0}, 4096")
        for k in range(8):
            g.i(f"buffer_store_dwordx4 v[{V_O[0]}:{V_O[0]+3}], v{V_L16}, s[{S_KV}:{S_KV+3}], s{S_T1 if k >= 4 else S_T0} offen offset:{1024*(k%4)} sc1")
        return 8
    np_ = 0
    PC = g.opt.get('prec', 1)
    for c, n in ((0, 11 + n0), (1, n0 + 11 + NT)):
        g.i(f"s_waitcnt vmcnt({n + (np_ if c == 1 else 0)})")
        if c == 0: g.st('ld_got0')
        g.i("s_barrier")
        next_slot(); issue(); touch(LEAD - 3)
        if PRE and c == PC: np_ = pre()
    if PRE and PC == 1:
        g.i(f"s_waitcnt vmcnt({11+2*NT+np_})")
        g.i("s_barrier")
        next_slot(); issue(); touch(LEAD - 3)
        g.i(f"s_mov_b32 s{S_IT}, 3")
        g.i(f"s_waitcnt vmcnt({11+2*NT+np_})")
        g.i("s_branch L_ld_loop2")
    g.i(f"s_mov_b32 s{S_IT}, 2")
    g.lab("L_ld_loop")
    g.i(f"s_waitcnt vmcnt({11+2*NT})")
    g.lab("L_ld_loop2")
    g.i("s_barrier")
    next_slot(); issue(); touch(LEAD - 3)
    g.i(f"s_add_u32 s{S_IT}, s{S_IT}, 1")
    g.i(f"s_cmp_lt_u32 s{S_IT}, 6")
    g.i("s_cbranch_scc1 L_ld_loop")
    g.st('ld_iss7')
    g.i(f"s_waitcnt vmcnt({11+2*NT})")
    g.i("s_barrier")
    g.i("s_waitcnt vmcnt(0)")
    g.i("s_barrier")

def loader_fin(g):
    g.i(f"s_cmp_lg_u32 s{S_WAVE}, 4")
    g.i("s_cbranch_scc1 L_ld_nocert")
    g.i(f"s_lshl_b32 s{S_T0}, s{S_BR}, 4")
    g.i(f"s_add_u32 s{S_T0}, s{S_T0}, s{S_HP}")
    g.i(f"s_lshl_b32 s{S_T0}, s{S_T0}, 3")
    g.i(f"v_mov_b32 v7, s{S_T0}")
    spin(g, "cert1", f"buffer_load_dword v{V_F}, v7, s[{S_DBG}:{S_DBG+3}], 0 offen sc1", 8)
    g.lab("L_ld_nocert")
    g.i(f"s_lshl_b32 s{S_T0}, s{S_A}, 11")
    g.i(f"s_add_u32 s{S_T0}, s{S_T0}, {L_QX}")
    g.i(f"v_add_u32 v6, s{S_T0}, v{V_L16}")
    attn_setup(g)
    g.i("s_waitcnt lgkmcnt(0)")
    g.i("s_barrier")
    g.i(f"ds_read_b128 {vr(V_Q[0],4)}, v6")
    g.i(f"ds_read_b128 {vr(V_Q[1],4)}, v6 offset:1024")
    g.i("s_branch L_attn")

class LdsQ:
    def __init__(self, g): self.g = g; self.q = []
    def issue(self, tag): self.q.append(tag)
    def need(self, tags):
        idx = max([i for i, t in enumerate(self.q) if t in tags], default=-1)
        if idx >= 0:
            n = len(self.q) - 1 - idx
            self.g.i(f"s_waitcnt lgkmcnt({min(n,15)})")
            self.q = self.q[idx + 1:]

def clear_flags(g):
    g.i(f"s_cmp_lg_u32 s{S_WAVE}, 0")
    g.i("s_cbranch_scc1 L_cp_noclear")
    g.i(f"s_lshl_b32 s{S_T0}, s{S_BR}, 4")
    g.i(f"s_add_u32 s{S_T0}, s{S_T0}, s{S_HP}")
    g.i(f"s_lshl_b32 s{S_T1}, s{S_T0}, 7")
    g.i(f"s_lshl_b32 s{S_T2}, s{S_TB}, 4")
    g.i(f"s_add_u32 s{S_T1}, s{S_T1}, s{S_T2}")
    g.i(f"v_lshl_add_u32 v6, v0, 2, s{S_T1}")
    g.i("v_mov_b32 v7, 0")
    g.i("s_mov_b64 exec, 0xf")
    g.i(f"buffer_store_dword v7, v6, s[{S_FL}:{S_FL+3}], 0 offen sc1")
    g.i("s_mov_b64 exec, -1")
    g.lab("L_cp_noclear")

def compute(g):
    g.lab("L_compute")
    CP = g.opt.get('cpf', 4)
    if CP == 3:
        n = g.opt.get('cpn', 12)
        g.i(f"s_mul_i32 s18, s{S_WAVE}, {128*n}")
        g.i(f"s_add_u32 s18, s18, L_compute-{NAME}_kernel")
        g.i("s_add_u32 s18, s16, s18")
        g.i("s_addc_u32 s19, s17, 0")
        g.i("s_waitcnt lgkmcnt(0)")
        for k in range(n): g.i(f"s_load_dword s95, s[18:19], {128*k}")
    if CP in (2, 3):
        g.i("s_mov_b32 s12, s16"); g.i("s_mov_b32 s13, s17")
        g.i(f"s_mov_b32 s14, L_code_end-{NAME}_kernel-4"); g.i("s_mov_b32 s15, 0x20000")
    TL = g.opt.get('tlb', 0)
    if TL:
        g.i(f"v_lshlrev_b32 v6, {TL}, v0")
    if CP != 3: g.i("s_waitcnt lgkmcnt(0)")
    if TL:
        srd(g.a, S_W, S_M + 2, 512 * 1536 * 2)
        g.i(f"buffer_load_dword v246, v6, s[{S_W}:{S_W+3}], 0 offen")
        if g.opt.get('tlbx'):
            srd(g.a, S_X, S_M, 256 * 1024, f"s{S_T0}")
            g.i(f"buffer_load_dword v246, v6, s[{S_X}:{S_X+3}], 0 offen")
    late_srds(g)
    if not g.opt.get('lateclr'): clear_flags(g)
    attn_consts(g)
    g.i("v_and_b32 v6, 31, v0")
    g.i(f"s_lshl_b32 s{S_T0}, s{S_WAVE}, 13")
    g.i(f"v_lshl_add_u32 v100, v6, 7, s{S_T0}")
    g.i("v_bfe_u32 v6, v0, 1, 3")
    g.i("v_lshrrev_b32 v7, 5, v0")
    g.i("v_xor_b32 v6, v6, v7")
    for s in range(4):
        g.i(f"v_xor_b32 v7, {2*s}, v6")
        g.i(f"v_lshl_add_u32 v{V_XA+s}, v7, 4, v100")
    g.i("v_lshrrev_b32 v6, 5, v0")
    g.i("v_bfe_u32 v7, v0, 2, 2")
    g.i("v_lshl_add_u32 v6, v6, 3, v7")
    g.i("v_mul_u32_u24 v6, 192, v6")
    g.i("v_bfe_u32 v7, v0, 4, 1")
    g.i("v_lshl_add_u32 v6, v7, 5, v6")
    g.i("v_and_b32 v7, 3, v0")
    g.i("v_lshl_add_u32 v6, v7, 3, v6")
    g.i(f"v_add_u32 v{V_WA}, {SLOT_W}, v6")
    for r in range(0, 96, 2):
        g.i(f"v_mov_b64 v[{V_ACC+r}:{V_ACC+r+1}], 0")
    S_A, S_B = 56, 57
    g.i("v_and_b32 v6, 0x33, v0")
    g.i("v_bfe_u32 v7, v0, 2, 1")
    g.i("v_lshl_or_b32 v6, v7, 3, v6")
    g.i("v_bfe_u32 v7, v0, 3, 1")
    g.i("v_lshl_or_b32 v6, v7, 2, v6")
    g.i(f"v_lshlrev_b32 v{KG}, 4, v6")
    g.i(f"s_lshl_b32 s{S_T0}, s{S_WAVE}, 12")
    g.i(f"v_add_u32 v{KL}, s{S_T0}, v{KG}")
    g.i("v_and_b32 v6, 15, v0")
    g.i("v_lshlrev_b32 v6, 4, v6")
    g.i("v_lshrrev_b32 v7, 5, v0")
    g.i("v_lshl_add_u32 v6, v7, 8, v6")
    g.i("v_add_u32 v6, 1024, v6")
    g.i("v_bfe_u32 v7, v0, 4, 1")
    g.i(f"v_lshl_add_u32 v{VG}, v7, 17, v6")
    g.i("v_lshl_add_u32 v6, v7, 14, v6")
    g.i(f"v_add_u32 v{VL}, s{S_T0}, v6")
    g.i(f"s_lshr_b32 s{S_T0}, s{S_T0}, 1")
    g.i(f"s_add_u32 s{S_T0}, s{S_T0}, {L_QX}")
    g.i(f"v_add_u32 v{QL}, s{S_T0}, v{V_L16}")
    if g.opt.get('lateclr'): clear_flags(g)
    if CP in (2, 3):
        g.i(f"s_lshl_b32 s{S_T0}, s{S_WAVE}, 13")
        g.i("v_lshlrev_b32 v6, 7, v0")
        g.i(f"buffer_load_dword v246, v6, s[12:15], s{S_T0} offen")
    if g.opt.get('dry', 1):
        g.i(f"s_cmp_lt_u32 s{S_WAVE}, 2")
        g.i("s_cbranch_scc1 L_dry_done")
        g.i(f"s_mov_b32 s{S_DRY}, 1")
        g.i(f"s_mov_b32 s{S_IT}, 7")
        g.i("s_mov_b64 vcc, 0")
        g.i(f"s_mov_b64 s[{S_M}:{S_M+1}], 0")
        g.i(f"s_mov_b64 s[{S_M+2}:{S_M+3}], 0")
        g.i(f"s_mov_b32 s{S_MK}, 0")
        g.i("s_waitcnt vmcnt(0) lgkmcnt(0)")
        g.i("s_setvskip -1, 0")
        g.i(f"s_cmp_eq_u32 s{S_WAVE}, 2")
        g.i("s_cbranch_scc1 L_at_done")
        g.i("s_branch L_cp_loop")
        g.lab("L_dry_ret")
        g.i("s_setvskip 0, 0")
        g.i("s_mov_b64 exec, -1")
        g.i("s_setprio 0")
        g.i(f"s_mov_b32 s{S_DRY}, 0")
        g.lab("L_dry_done")
    attn_setup(g)
    g.i(f"s_lshl_b32 s{S_T0}, s{S_WAVE}, 12")
    g.i(f"s_lshl_b32 s{S_G1}, s{S_TB}, 14")
    g.i(f"s_add_u32 s{S_G1}, s{S_G1}, s{S_T0}")
    g.i(f"s_add_u32 s{S_G2}, s{S_G1}, 131072")
    g.i(f"s_mov_b32 s{S_IT}, 0")
    g.i(f"s_mov_b32 s{S_A}, 0")
    g.i(f"s_mov_b32 s{S_B}, {SLOT}")
    q = LdsQ(g)
    def rd(setn, s, which):
        F = V_FR[setn]
        if which[0] == 'x':
            i = int(which[1])
            g.i(f"ds_read_b128 {vr(F+4*i,4)}, v{V_XA+s} offset:{4096*i}")
        else:
            p = {'q': 0, 'k': 1, 'v': 2}[which[0]]; i = int(which[1])
            g.i(f"ds_read_b64_tr_b16 {vr(F+8+4*p+2*i,2)}, v{V_WA} offset:{s*3072+i*768+p*64}")
        q.issue((setn, which))
    ORDER = ['x0', 'q0', 'q1', 'x1', 'k0', 'k1', 'v0', 'v1']
    def mf(setn, n):
        F = V_FR[setn]; p, i = n // 2, n % 2
        w, x = vr(F + 8 + 4 * p, 4), vr(F + 4 * i, 4)
        nm = 'qkv'[p]
        q.need({(setn, f'x{i}'), (setn, nm + '0'), (setn, nm + '1')})
        A, B = (w, x) if p < 2 else (x, w)
        acc = vr(V_ACC + 16 * n, 16)
        if g.opt.get('x_m16'):
            for hh in range(2):
                a4 = vr(V_ACC + 16 * n + 4 * hh, 4)
                g.i(f"v_mfma_f32_16x16x32_bf16 {a4}, {A}, {B}, {a4}")
        else:
            g.i(f"v_mfma_f32_32x32x16_bf16 {acc}, {A}, {B}, {acc}")
    def step(cur, nxt_s, order=range(6)):
        plan = [ORDER[0:2], ORDER[2:4], ORDER[4:6], ORDER[6:8], [], []]
        for n in range(6):
            if cur is not None: mf(cur, order[n])
            if nxt_s is not None:
                for w in plan[n]: rd(1 - (cur if cur is not None else 1), nxt_s, w)
    g.i(f"s_cmp_lg_u32 s{S_WAVE}, 0")
    g.i("s_cbranch_scc1 L_cp_nocount")
    g.i(f"s_lshl_b32 s{S_T0}, s{S_BR}, 4")
    g.i(f"s_add_u32 s{S_T0}, s{S_T0}, s{S_HP}")
    g.i(f"s_lshl_b32 s{S_T0}, s{S_T0}, 3")
    g.i("s_mov_b64 exec, 1")
    g.i(f"v_mov_b32 v6, s{S_T0}")
    g.i("v_mov_b32 v7, 1")
    g.i(f"s_waitcnt vmcnt(0)")
    g.i(f"buffer_atomic_add v7, v6, s[{S_DBG}:{S_DBG+3}], 0 offen sc1")
    g.i("s_mov_b64 exec, -1")
    g.lab("L_cp_nocount")
    def prew():
        g.i(f"s_lshl_b32 s{S_T0}, s{S_TB}, 14")
        g.i(f"s_lshl_b32 s{S_T1}, s{S_WAVE}, 12")
        g.i(f"s_add_u32 s{S_T0}, s{S_T0}, s{S_T1}")
        g.i(f"s_add_u32 s{S_T1}, s{S_T0}, 131072")
        for k in range(8):
            g.i(f"buffer_store_dwordx4 v[{V_O[0]}:{V_O[0]+3}], v{V_L16}, s[{S_KV}:{S_KV+3}], s{S_T1 if k >= 4 else S_T0} offen offset:{1024*(k%4)} sc1")
    def prer():
        g.i("v_and_b32 v6, 31, v0")
        g.i("v_lshlrev_b32 v6, 7, v6")
        g.i("v_lshrrev_b32 v7, 5, v0")
        g.i("v_lshl_add_u32 v6, v7, 17, v6")
        g.i(f"buffer_load_dword v246, v6, s[{S_KV}:{S_KV+3}], s{S_G1} offen{g.opt.get('prefl', ' sc1')}")
    PR = g.opt.get('prer', 0)
    if PR == -1: prer()
    if g.opt.get('prew') == 1: prew()
    g.st('cp_pre')
    g.i("s_barrier")
    g.stamp(1)
    if g.opt.get('prew') == 2: prew()
    step(None, 0)
    g.lab("L_cp_loop")
    q.q = [(0, w) for w in ORDER]
    step(0, 1); step(1, 2); step(0, 3)
    g.i(f"s_add_u32 s{S_A}, s{S_A}, 1")
    g.i(f"s_cmp_eq_u32 s{S_A}, 3")
    g.i(f"s_cselect_b32 s{S_T0}, {(-2*SLOT) & 0xffffffff}, s{S_B}")
    g.i(f"s_cselect_b32 s{S_A}, 0, s{S_A}")
    g.i(f"s_add_u32 s{S_IT}, s{S_IT}, 1")
    g.i(f"s_cmp_eq_u32 s{S_IT}, 8")
    g.i("s_cbranch_scc1 L_cp_last")
    g.i("s_waitcnt lgkmcnt(0)")
    q.q = []
    g.i("s_barrier")
    for r in range(5):
        g.i(f"v_add_u32 v{V_XA+r}, s{S_T0}, v{V_XA+r}")
    PW = g.opt.get('pwd')
    if PW:
        c0, kind = PW
        if kind == 'd':
            g.i(f"s_cmp_lg_u32 s{S_IT}, {c0}")
            g.i("s_cbranch_scc1 L_cp_nopw")
            g.i("v_and_b32 v6, 31, v0")
            g.i("v_lshlrev_b32 v6, 7, v6")
            g.i("v_lshrrev_b32 v7, 5, v0")
            g.i("v_lshl_add_u32 v6, v7, 17, v6")
            g.i(f"buffer_store_dword v{V_O[0]}, v6, s[{S_KV}:{S_KV+3}], s{S_G1} offen sc1")
        elif kind == 'f':
            g.i(f"s_cmp_lg_u32 s{S_IT}, {c0}")
            g.i("s_cbranch_scc1 L_cp_nopw")
            for k in range(8):
                g.i(f"buffer_store_dwordx4 v[{V_O[0]}:{V_O[0]+3}], v{V_L16}, s[{S_KV}:{S_KV+3}], s{S_G2 if k >= 4 else S_G1} offen offset:{1024*(k%4)} sc1")
        elif kind == 's':
            g.i(f"s_sub_u32 s{S_T1}, s{S_IT}, {c0}")
            g.i(f"s_cmp_ge_u32 s{S_T1}, 4")
            g.i("s_cbranch_scc1 L_cp_nopw")
            g.i(f"s_lshl_b32 s{S_T1}, s{S_T1}, 10")
            g.i(f"s_add_u32 s{S_T2}, s{S_T1}, s{S_G2}")
            g.i(f"s_add_u32 s{S_T1}, s{S_T1}, s{S_G1}")
            for so in (S_T1, S_T2):
                g.i(f"buffer_store_dwordx4 v[{V_O[0]}:{V_O[0]+3}], v{V_L16}, s[{S_KV}:{S_KV+3}], s{so} offen sc1")
        g.lab("L_cp_nopw")
    if PR > 0:
        g.i(f"s_cmp_lg_u32 s{S_IT}, {PR}")
        g.i("s_cbranch_scc1 L_cp_nopre")
        prer()
        g.lab("L_cp_nopre")
    step(1, 0)
    g.i("s_branch L_cp_loop")
    g.lab("L_cp_last")
    q.q = [(1, w) for w in ORDER]
    step(1, None, (2, 3, 4, 5, 0, 1) if g.opt.get('trim', 1) else range(6))
    g.stamp(2)
    g.i(f"s_mov_b32 s{S_T1}, {hex(QSCALE)}")
    g.i(f"s_mov_b32 s{S_T2}, s{S_T1}")
    g.i("s_nop 3" if g.opt.get('trim', 1) else "s_nop 5")
    KVS = g.opt.get('kvs', ' sc1')
    T = 204
    n = 0
    for i in range(2):
        A = V_ACC + 16 * (2 + i)
        for hd in range(2):
            for r in range(4):
                g.i(f"v_cvt_pk_bf16_f32 v{T+4*n+r}, v{A+8*hd+2*r}, v{A+8*hd+2*r+1}")
            g.i(f"ds_write_b128 v{KL}, {vr(T+4*n,4)} offset:{16384*hd+2048*i}")
            n += 1
    for i in range(2):
        A = V_ACC + 16 * (4 + i)
        for gr in range(2):
            for r in range(4):
                g.i(f"v_cvt_pk_bf16_f32 v{T+4*n+r}, v{A+8*gr+2*r}, v{A+8*gr+2*r+1}")
            g.i(f"ds_write_b128 v{VL}, {vr(T+4*n,4)} offset:{2048*i+512*gr}")
            n += 1
    g.i(f"s_cmp_lg_u32 s{S_PG}, 0")
    g.i("s_cbranch_scc1 L_cp_later")
    for n in range(8): g.i(kv_store(n))
    g.lab("L_cp_later")
    for i in range(2):
        A = V_ACC + 16 * i
        for r in range(8, 16, 2):
            g.i(f"v_pk_mul_f32 v[{A+r}:{A+r+1}], v[{A+r}:{A+r+1}], s[{S_T0+1}:{S_T0+2}]")
        for r in range(4):
            g.i(f"v_cvt_pk_bf16_f32 v{A+8+r}, v{A+8+2*r}, v{A+8+2*r+1}")
        g.i(f"ds_write_b128 v{QL}, {vr(A+8,4)} offset:{1024*i}")
    def q_own():
        for i in range(2):
            A = V_ACC + 16 * i
            for r in range(0, 8, 2):
                g.i(f"v_pk_mul_f32 v[{A+r}:{A+r+1}], v[{A+r}:{A+r+1}], s[{S_T0+1}:{S_T0+2}]")
            for r in range(4):
                g.i(f"v_cvt_pk_bf16_f32 v{V_Q[i]+r}, v{A+2*r}, v{A+2*r+1}")
    if not g.opt.get('trimq', 0): q_own()
    g.i("s_waitcnt lgkmcnt(0)")
    barrier_unless_dry(g, "b8")
    if g.opt.get('trimq', 0): q_own()

U = 8
S_OA, S_OB = S_M + 6, S_M + 7
S_MK = S_M + 5
S_KV2 = S_X
S_KO = [None, 4, 5, 6, 7, 12, 13, 14]
S_LM = [[49, 50], [51, 52]]
S_OW = 1
V_VB = 4

def kv_store(n):
    if n < 4: adr, so, off = KG, (S_G2 if n % 2 else S_G1), 2048 * (n // 2)
    else: adr, so, off = VG, S_G1, 2048 * ((n - 4) // 2) + 512 * (n % 2)
    return f"buffer_store_dwordx4 {vr(KVT+4*n,4)}, v{adr}, s[{S_KV}:{S_KV+3}], s{so} offen offset:{off} sc1"

def spin_mask(g, tag, load):
    g.i(f"s_mov_b32 s{S_T3}, 0")
    g.lab(f"L_spin_{tag}")
    g.i(load)
    g.i(f"s_add_u32 s{S_T3}, s{S_T3}, 1")
    g.i("s_waitcnt vmcnt(0)")
    g.i(f"v_cmp_ne_u32 vcc, 1, v{V_F}")
    g.i(f"s_cmp_ge_u32 s{S_T3}, {SPIN_MAX}")
    g.i(f"s_cbranch_scc1 L_olr_{tag}")
    g.i(f"s_and_b32 vcc_lo, vcc_lo, s{S_MK}")
    g.i(f"s_cbranch_scc1 L_spin_{tag}")

def attn_setup(g):
    g.i(f"s_add_u32 s{S_KV2}, s{S_KV}, 131072")
    g.i(f"s_addc_u32 s{S_KV2+1}, s{S_KV+1}, 0")
    g.i(f"s_mov_b32 s{S_KV2+2}, 131072")
    g.i(f"s_mov_b32 s{S_KV2+3}, 0x20000")
    g.i(f"s_lshl_b32 s{S_LM[0][0]}, s{S_WAVE}, 11")
    g.i(f"s_add_u32 s{S_LM[0][1]}, s{S_LM[0][0]}, 16384")
    g.i(f"s_add_u32 s{S_LM[1][0]}, s{S_LM[0][0]}, {RING}")
    g.i(f"s_add_u32 s{S_LM[1][1]}, s{S_LM[0][0]}, {RING+16384}")
    for i in range(1, 8):
        g.i(f"s_cmp_gt_u32 s{S_TB}, {i-1}")
        g.i(f"s_cselect_b32 s{S_T0}, {i-1}, {i}")
        if i == 1:
            g.i(f"s_lshl_b32 s{S_T3}, s{S_T0}, 2")
            g.i(f"s_lshl_b32 s{S_MK}, 15, s{S_T3}")
        g.i(f"s_lshl_b32 s{S_T0}, s{S_T0}, 14")
        g.i(f"s_add_u32 s{S_KO[i]}, s{S_T0}, s{S_LM[0][0]}")
    g.i(f"s_lshr_b32 s{S_PG}, s{S_TB}, 1")
    g.i(f"s_min_u32 s{S_PG}, s{S_PG}, 2")
    g.i(f"s_cmp_ge_u32 s{S_WAVE}, 4")
    g.i(f"s_cselect_b32 s{S_PG}, 3, s{S_PG}")
    g.i(f"s_and_b32 s{S_F}, s{S_HP}, 7")
    g.i(f"s_lshl_b32 s{S_T0}, s{S_F}, 7")
    if g.opt.get('orot', 0):
        g.i(f"s_add_u32 s55, s{S_WAVE}, s{S_F}")
        g.i("s_and_b32 s55, s55, 3")
        g.i(f"s_and_b32 s{S_T1}, s{S_WAVE}, 4")
        g.i(f"s_or_b32 s55, s55, s{S_T1}")
        g.i("s_lshl_b32 s55, s55, 16")
    else:
        g.i(f"s_lshl_b32 s55, s{S_WAVE}, 16")
    g.i(f"s_add_u32 s55, s55, s{S_T0}")
    g.i(f"s_lshl_b32 s{S_E}, s{S_WAVE}, 13")
    g.i(f"s_add_u32 s{S_E}, s{S_E}, {L_WO}")
    g.i(f"s_and_b32 s{S_T0}, s{S_WAVE}, 3")
    g.i(f"s_lshl_b32 s{S_T0}, s{S_T0}, 1")
    g.i(f"s_lshl_b32 s{S_T1}, s{S_TB}, 3")
    g.i(f"s_add_u32 s{S_T0}, s{S_T0}, s{S_T1}")
    g.i(f"s_lshl_b32 s{S_OA}, s{S_T0}, 15")
    g.i(f"s_lshr_b32 s{S_T1}, s{S_WAVE}, 2")
    g.i(f"s_lshl_b32 s{S_T2}, s{S_HP}, 1")
    g.i(f"s_add_u32 s{S_T1}, s{S_T1}, s{S_T2}")
    g.i(f"s_lshl_b32 s{S_T2}, s{S_T1}, 10")
    g.i(f"s_add_u32 s{S_OA}, s{S_OA}, s{S_T2}")
    g.i(f"s_add_u32 s{S_OB}, s{S_OA}, 32768")
    if True:
        g.i(f"s_lshr_b32 s{S_T0}, s{S_HP}, 3")
        g.i(f"s_lshl_b32 s{S_T0}, s{S_T0}, 2")
        g.i(f"s_and_b32 s{S_T1}, s{S_WAVE}, 3")
        g.i(f"s_add_u32 s{S_T0}, s{S_T0}, s{S_T1}")
        g.i(f"s_lshl_b32 s{S_T1}, s{S_TB}, 3")
        g.i(f"s_add_u32 s{S_T0}, s{S_T0}, s{S_T1}")
        g.i(f"s_lshl_b32 s{S_T0}, s{S_T0}, 1")
        g.i(f"s_lshr_b32 s{S_T1}, s{S_WAVE}, 2")
        g.i(f"s_add_u32 s{S_T0}, s{S_T0}, s{S_T1}")
        g.i(f"s_lshl_b32 s{S_OW}, s{S_T0}, 15")
        g.i(f"s_lshl_b32 s{S_T0}, s{S_BR}, 10")
        g.i(f"s_add_u32 s{S_OW}, s{S_OW}, s{S_T0}")
        g.i(f"s_lshl_b32 s{S_T0}, s{S_F}, 7")
        g.i(f"s_add_u32 s{S_OW}, s{S_OW}, s{S_T0}")

def attention(g):
    opt = g.opt
    g.lab("L_attn")
    g.stamp(3)
    g.i(f"ds_read_b128 {vr(V_K,4)}, v{V_KA}")
    g.i(f"ds_read_b128 {vr(V_V[0],4)}, v{V_VA}")
    g.i(f"ds_read_b128 {vr(V_V[0]+4,4)}, v{V_VA} offset:512")
    if opt.get('x_em'):
        g.i("s_mov_b32 s100, 0xffff"); g.i("s_mov_b32 s101, 0xffff")
    g.i("s_setprio 3")
    g.i("s_waitcnt lgkmcnt(2)")
    g.i(f"v_mfma_f32_32x32x16_bf16 {vr(V_S[0],16)}, {vr(V_K,4)}, {vr(V_Q[0],4)}, 0")
    dry_exit(g)
    g.i("s_nop 9")
    g.i("s_waitcnt lgkmcnt(0)")
    poll = f"buffer_load_dword v{V_F}, v{V_FA}, s[{S_FL}:{S_FL+3}], 0 offen sc1"
    side = []
    ev = {}
    def at(it, p, slot, *ins): ev.setdefault((it, p, slot), []).extend(ins)
    def kv(i, n):
        return f"buffer_load_dwordx4 v{V_L16}, {sr(S_KV2 if n >= 2 else S_KV, 4)}, s{S_KO[i]} offen offset:{1024*(n%2)}{opt.get('kvl', ' sc1')} lds"
    def check(tag, n):
        def f():
            if n is not None: g.i(f"s_waitcnt vmcnt({n})")
            g.i(f"v_cmp_ne_u32 vcc, 1, v{V_F}")
            g.i("s_nop 0")
            g.i(f"s_and_b32 vcc_lo, vcc_lo, s{S_MK}")
            g.i(f"s_cbranch_scc1 L_ol_{tag}")
            g.lab(f"L_olr_{tag}")
            side.append((tag, lambda: spin_mask(g, tag, poll)))
        return f
    def group(pg, tag, body):
        def f():
            g.i(f"s_cmp_lg_u32 s{S_PG}, {pg}")
            g.i(f"s_cbranch_scc1 L_pg_{tag}")
            body()
            g.lab(f"L_pg_{tag}")
        return f
    def flag():
        g.i(f"s_lshl_b32 s{S_T0}, s{S_TB}, 2")
        g.i(f"s_add_u32 s{S_T0}, s{S_T0}, s{S_WAVE}")
        g.i(f"s_lshl_b64 exec, 1, s{S_T0}")
        g.i("v_mov_b32 v6, 1")
        g.i(f"buffer_store_dword v6, v{V_FA}, s[{S_FL}:{S_FL+3}], 0 offen sc1")
        g.i("s_mov_b64 exec, -1")
    def stores(it, p0, pg):
        for k, (a_, b_) in enumerate(((0, 3), (3, 6), (6, 8))):
            at(it, p0 + k, 'p1', group(pg, f"s{pg}{k}", lambda a_=a_, b_=b_: [g.i(kv_store(n)) for n in range(a_, b_)]))
    def burst(i, it=None, p=None, slot=None):
        sl = i % 2
        if not opt.get('spread', 0):
            return [f"s_mov_b32 m0, s{S_LM[sl][0]}", "s_nop 0", kv(i, 0), kv(i, 1), f"s_mov_b32 m0, s{S_LM[sl][1]}", "s_nop 0", kv(i, 2), kv(i, 3)]
        seq = [(q, k) for q in range(p, 14) for k in ('p2', 'qk', 'p1')]
        seq = seq[seq.index((p, slot)) + 1:]
        at(it, *seq[0], kv(i, 1), f"s_mov_b32 m0, s{S_LM[sl][1]}")
        at(it, *seq[1], kv(i, 2))
        at(it, *seq[2], kv(i, 3))
        return [f"s_mov_b32 m0, s{S_LM[sl][0]}", "s_nop 0", kv(i, 0)]
    def count():
        g.i(f"s_cmp_lg_u32 s{S_WAVE}, 7")
        g.i("s_cbranch_scc1 L_at_nocnt")
        g.i(f"s_lshl_b32 s{S_T0}, s{S_BR}, 4")
        g.i(f"s_add_u32 s{S_T0}, s{S_T0}, s{S_HP}")
        g.i(f"s_lshl_b32 s{S_T0}, s{S_T0}, 3")
        g.i("s_mov_b64 exec, 1")
        g.i(f"v_mov_b32 v6, s{S_T0}")
        g.i("v_mov_b32 v7, 1")
        g.i(f"buffer_atomic_add v7, v6, s[{S_DBG}:{S_DBG+3}], 0 offen offset:4 sc1")
        g.i("s_mov_b64 exec, -1")
        g.lab("L_at_nocnt")
    pp, pi0, pc0, ps1, pi1, pc1, pi3, pc3 = opt.get('ev', (1, 8, 10, 3, 7, 9, 7, 9))
    at(0, pp, 'qk', group(0, "f0", lambda: (g.st('pub_pre'), g.i("s_waitcnt vmcnt(0)"), g.st('pub_ack'), flag())))
    stores(0, ps1, 1)
    at(0, pi0, 'qk', poll)
    at(0, pc0, 'qk', "s_waitcnt vmcnt(0)", group(1, "f1", flag), check("kv0", None), lambda: g.st('chk_ok'), *burst(1, 0, pc0, 'qk'),
       f"s_mov_b32 s{S_MK}, 0xffff")
    at(1, pi1, 'qk', poll)
    at(1, pc1, 'qk', check("kv1", 0), *burst(2, 1, pc1, 'qk'), f"s_mov_b32 s{S_MK}, -1")
    if opt.get('safe', 1):
        for k, (it_, p_, sl_, a_, b_) in enumerate(((1, 14, 'p1', 0, 3), (1, 15, 'p1', 3, 6), (2, 0, 'p1', 6, 8))):
            at(it_, p_, sl_, group(2, f"s2{k}", lambda a_=a_, b_=b_: [g.i(kv_store(n)) for n in range(a_, b_)]))
    else:
        stores(1, pc1 + 1 + opt.get('spread', 0), 2)
    at(2, 15, 'qk', group(2, "f2", flag))
    at(3, pi3, 'qk', poll)
    at(3, pc3, 'p2', check("kv2", 0), *burst(4, 3, pc3, 'p2'))
    late = {i: 0 for i in range(8)}
    dp = opt.get('dma', (1, 3, 5, 7))
    for i in (2, 4, 5, 6):
        sl = (i + 1) % 2
        at(i, dp[0] - 1, 'p2x', f"s_mov_b32 m0, s{S_LM[sl][0]}")
        at(i, dp[0], 'qk', kv(i + 1, 0))
        at(i, dp[1], 'qk', kv(i + 1, 1))
        at(i, dp[2], 'p2', f"s_mov_b32 m0, s{S_LM[sl][1]}")
        at(i, dp[2], 'qk', kv(i + 1, 2))
        at(i, dp[3], 'qk', kv(i + 1, 3))
    SF = opt.get('safe', 1)
    wits = (1, 3, 4, 5) if SF else (1, 2, 3, 4)
    for n, i in enumerate(wits):
        for k, p in enumerate((9, 11) if SF and i >= 4 else (11, 13)):
            at(i, p, 'p2', f"s_add_u32 m0, s{S_E}, {(2*n+k)*1024}")
            at(i, p, 'qk', f"buffer_load_dwordx4 v{V_WOA}, s[{S_WO}:{S_WO+3}], s55 offen lds")
            at(i, p, 'p1', "s_add_u32 s55, s55, 8192")
        late[i] += 2
    OW = opt.get('opw', 4 if SF else 2)
    if SF:
        for i in (OW, 5): at(i, 12, 'p1', "s_waitcnt vmcnt(2)")
    for k, so in enumerate((S_OA, S_OB)):
        at(5, 12 + k, 'p1', f"buffer_store_dwordx4 v[252:255], v{V_L16}, s[{S_O}:{S_O+3}], s{so} offen sc1")
    late[5] += 2
    if OW:
        at(OW, 12, 'p1', f"buffer_store_dwordx4 v[252:255], v{V_OW}, s[{S_OUT}:{S_OUT+3}], s{S_OW} offen sc1", f"s_add_u32 s{S_T0}, s{S_OW}, 16384")
        at(OW, 13, 'p1', f"buffer_store_dwordx4 v[252:255], v{V_OW}, s[{S_OUT}:{S_OUT+3}], s{S_T0} offen sc1")
        late[OW] += 2
    if opt.get('opr'):
        at(7, 3, 'qk', f"buffer_load_dwordx4 v[236:239], v{V_OW}, s[{S_OUT}:{S_OUT+3}], s{S_OW} offen", f"s_add_u32 s{S_T0}, s{S_OW}, 16384")
        at(7, 5, 'qk', f"buffer_load_dwordx4 v[236:239], v{V_OW}, s[{S_OUT}:{S_OUT+3}], s{S_T0} offen")
    if opt.get('early', 1):
        at(7, 3, 'qk', f"s_lshr_b32 s{S_E}, s{S_WAVE}, 2", f"s_lshr_b32 s{S_T0}, s{S_HP}, 3", f"s_lshl_b32 s{S_T0}, s{S_T0}, 2",
           f"s_and_b32 s{S_T1}, s{S_WAVE}, 3", f"s_add_u32 s{S_A}, s{S_T0}, s{S_T1}")
        at(7, 5, 'qk', f"s_lshl_b32 s{S_T0}, s{S_TB}, 3", f"s_add_u32 s{S_A}, s{S_A}, s{S_T0}", f"s_lshl_b32 s{S_B}, s{S_A}, 15",
           f"s_lshl_b32 s{S_T0}, s{S_E}, 14", f"s_add_u32 s{S_B}, s{S_B}, s{S_T0}")
        if opt.get('orot', 0):
            for k, (d, q) in enumerate(((S_A, 6), (S_C, 7), (S_D, 8), (S_IT, 9))):
                at(7, q, 'p1', f"s_add_u32 s{S_T1}, s{S_F}, {k}", f"s_and_b32 s{S_T1}, s{S_T1}, 3", f"s_lshl_b32 s{S_T1}, s{S_T1}, 12",
                   f"s_add_u32 s{d}, s{S_B}, s{S_T1}")
            at(7, 7, 'qk', f"s_lshl_b32 s{S_T0}, s{S_BR}, 7")
        else:
            at(7, 7, 'qk', f"s_mov_b32 s{S_A}, s{S_B}", f"s_add_u32 s{S_C}, s{S_B}, 4096", f"s_add_u32 s{S_D}, s{S_B}, 8192",
               f"s_add_u32 s{S_IT}, s{S_B}, 12288", f"s_lshl_b32 s{S_T0}, s{S_BR}, 7")
        at(7, 9, 'qk', "v_and_b32 v6, 15, v0", f"v_lshl_add_u32 v{V_CA}, v6, 3, s{S_T0}", f"v_lshlrev_b32 v{V_PA}, 10, v6")
        at(7, opt.get('certp', 13), 'qk', f"buffer_load_dword v236, v{V_CA}, s[{S_DBG}:{S_DBG+3}], 0 offen offset:4 sc1")
        EM = opt.get('earlym', 0)
        def early_probe():
            g.i(f"s_lshr_b32 s{S_T0}, s{S_HP}, 3")
            g.i(f"s_cmp_eq_u32 s{S_T0}, s{S_E}")
            g.i("s_cbranch_scc1 L_at_noprobe")
            g.i(f"buffer_load_dword v237, v{V_PA}, s[{S_O}:{S_O+3}], s{S_B} offen offset:1020 sc1")
            g.lab("L_at_noprobe")
        at(7, 11, 'qk', "v_mov_b32 v236, 0")
        if EM: at(7, 11, 'qk', "v_mov_b32 v237, -1")
        if EM == 1: at(7, 15, 'p1', early_probe)
        if EM == 2: at(7, 15, 'p1', f"buffer_load_dword v237, v{V_PA}, s[{S_O}:{S_O+3}], s{S_B} offen offset:1020 sc1")
    at(7, 1, 'qk', count)
    if opt.get('x_late0'): late = {i: 0 for i in range(8)}
    prio = opt.get('prio', {0: 3, 5: 2, 10: 1, 13: 0})
    for i in range(8):
        for p, v in prio.items():
            ii, q = (i, p - 1) if p else (i - 1, 15)
            if i == 7 and v == 0 and opt.get('pend', 2): continue
            if ii >= 0: at(ii, q, 'p1', f"s_setprio {v}")
    def emit(it, p, slot):
        for x in ev.pop((it, p, slot), []):
            x() if callable(x) else g.i(x)
    p2, pq, p1 = opt.get('pos', (1, 5, 10))
    for it in range(8):
        if opt.get('itst'):
            g.i("s_memtime s[98:99]")
            g.i("s_memrealtime s[100:101]")
            g.i("s_waitcnt lgkmcnt(0)")
            g.i(f"v_writelane_b32 v250, s98, {it}")
            g.i(f"v_writelane_b32 v250, s100, {it+9}") if it < 7 else None
        for p in range(2 * U):
            b, t = p % 2, p // 2
            S, So = V_S[b], V_S[1 - b]
            nt = (t + 1) % U
            sl = (it + (t == U - 1)) % 2
            VA = V_VB if sl else V_VA
            last = it == 7 and t == U - 1
            skip = last or (opt.get('x_half') and t % 2 == 0)
            for e in range(16):
                g.i(f"v_exp_f32 v{S+e}, v{S+e}")
                if e == p2:
                    tp = (p - 1) // 2
                    if it or p:
                        g.i(f"v_smfmac_f32_32x32x32_bf16 {vr(V_O[1-b],16)}, {vr(V_V[tp%2]+4,4)}, {vr(So+8,8)}, v{V_IDX}")
                    emit(it, p, 'p2x')
                    if b == 0:
                        if t == U - 1 and it < 7:
                            if it == 1 and not opt.get('safe', 1):
                                g.i(f"s_waitcnt vmcnt({late[it] + 8})")
                                g.i(f"s_cmp_eq_u32 s{S_PG}, 2")
                                g.i("s_cbranch_scc1 L_w8")
                                g.i(f"s_waitcnt vmcnt({late[it]})")
                                g.lab("L_w8")
                            else: g.i(f"s_waitcnt vmcnt({late[it]})")
                            if it == 0: g.st('chk1_ok')
                            g.i("s_barrier")
                        if not skip:
                            xm = opt.get('x_em') and (it or t)
                            if xm: g.i("s_mov_b64 exec, s[100:101]")
                            g.i(f"ds_read_b128 {vr(V_V[(t+1)%2],4)}, v{VA} offset:{nt*2048}")
                            if xm: g.i("s_mov_b64 exec, -1")
                    elif not last:
                        g.i("s_waitcnt lgkmcnt(1)")
                    emit(it, p, 'p2')
                if e == pq:
                    if not (last and b):
                        g.i(f"v_mfma_f32_32x32x16_bf16 {vr(So,16)}, {vr(V_K,4)}, {vr(V_Q[1-b],4)}, 0")
                    if b == 0 and not skip:
                        g.i(f"ds_read_b128 {vr(V_K,4)}, v{V_KA} offset:{sl*RING+nt*2048}")
                    if b == 0 and skip: g.i("s_nop 0")
                    emit(it, p, 'qk')
                if e == p1:
                    g.i(f"v_smfmac_f32_32x32x32_bf16 {vr(V_O[b],16)}, {vr(V_V[t%2],4)}, {vr(S,8)}, v{V_IDX}")
                    if b == 0 and last: pass
                    elif b == 0 and skip: pass
                    elif b == 0:
                        xm = opt.get('x_em') and (it or t)
                        if xm: g.i("s_mov_b64 exec, s[100:101]")
                        g.i(f"ds_read_b128 {vr(V_V[(t+1)%2]+4,4)}, v{VA} offset:{nt*2048+512}")
                        if xm: g.i("s_mov_b64 exec, -1")
                    elif not last:
                        g.i("s_waitcnt lgkmcnt(0)")
                    emit(it, p, 'p1')
    assert not ev, ev
    g.side = side
    g.lab("L_at_done")
    g.i("s_nop 1")
    g.i(f"v_smfmac_f32_32x32x32_bf16 {vr(V_O[1],16)}, {vr(V_V[1]+4,4)}, {vr(V_S[1]+8,8)}, v{V_IDX}")
    if opt.get('pend', 2) == 1: g.i("s_setprio 0")
    g.stamp(4)
    if opt.get('itst'):
        g.i("s_memtime s[98:99]")
        g.i("s_waitcnt lgkmcnt(0)")
        g.i(f"v_writelane_b32 v250, s98, 8")
    g.i(f"s_mov_b32 s{S_T0}, 0x2b800000")
    g.i(f"s_mov_b32 s{S_T1}, 0x53800000")
    g.i(f"s_mov_b32 s{S_T2}, 0x7f800000")
    for q in range(2):
        O = V_O[q]
        g.i(f"v_maximum3_f32 v6, abs(v{O}), abs(v{O+1}), abs(v{O+2})")
        g.i(f"v_maximum3_f32 v7, abs(v{O+3}), abs(v{O+4}), abs(v{O+5})")
        g.i(f"v_maximum3_f32 v6, v6, abs(v{O+6}), abs(v{O+7})")
        g.i(f"v_maximum3_f32 v6, v6, v7, v7")
        g.i(f"v_cmp_nle_f32 s[{S_M}:{S_M+1}], s{S_T0}, v{O+8}")
        g.i(f"v_cmp_nge_f32 s[{S_M+2}:{S_M+3}], s{S_T1}, v{O+8}")
        g.i(f"v_cmp_ngt_f32 vcc, s{S_T2}, v6")
        g.i(f"v_rcp_f32 v{V_S[0]+2*q}, v{O+8}")
        g.i(f"s_or_b64 s[{S_M}:{S_M+1}], s[{S_M}:{S_M+1}], s[{S_M+2}:{S_M+3}]")
        g.i(f"s_or_b64 s[{S_M}:{S_M+1}], s[{S_M}:{S_M+1}], vcc")
        g.i("s_branch L_fallback" if opt.get('force_fallback') else "s_cbranch_scc1 L_fallback")
    g.lab("L_at_store")
    for q in range(2):
        O = V_O[q]
        for r in range(0, 8, 2):
            g.i(f"v_pk_mul_f32 v[{O+r}:{O+r+1}], v[{O+r}:{O+r+1}], v[{V_S[0]+2*q}:{V_S[0]+2*q+1}] op_sel_hi:[1,0]")
        for r in range(4):
            g.i(f"v_cvt_pk_bf16_f32 v{O+r}, v{O+2*r}, v{O+2*r+1}")
        g.i(f"buffer_store_dwordx4 {vr(O,4)}, v{V_L16}, s[{S_O}:{S_O+3}], s{S_OB if q else S_OA} offen sc1")

P_WO = 100
P_OF = 8
def outproj(g):
    opt = g.opt
    A0, A1 = 228, 72
    WA0, WA1, RA = 244, 245, 246
    def o_loads(fl=' sc1'):
        for s in range(16):
            so = (S_A, S_C, S_D, S_IT)[s // 4]
            g.i(f"buffer_load_dwordx4 {vr(P_OF+4*s,4)}, v{V_L16}, s[{S_O}:{S_O+3}], s{so} offen offset:{1024*(s%4)}{fl}")
    if opt.get('pend', 2) == 2: g.i("s_setprio 0")
    if opt.get('x_ack'): g.i("s_waitcnt vmcnt(0)")
    g.stamp(5)
    g.i("s_waitcnt vmcnt(2)")
    g.i("v_cmp_gt_u32 vcc, 8, v236")
    g.i(f"s_mov_b32 s{S_T3}, 0")
    if opt.get('earlym', 0):
        g.i(f"v_cmp_eq_u32 s[{S_M}:{S_M+1}], -1, v237")
        g.i("s_nop 0")
        g.i(f"s_or_b64 s[{S_M}:{S_M+1}], s[{S_M}:{S_M+1}], vcc")
    if opt.get('earlym', 0):
        g.i("s_cbranch_scc1 L_op_later")
        o_loads()
        g.lab("L_op_later")
    g.i(f"s_lshl_b32 s{S_T0}, s{S_E}, 15")
    g.i(f"s_add_u32 s{S_T0}, s{S_T0}, {L_WO}")
    g.i("v_lshrrev_b32 v6, 5, v0")
    g.i("v_bfe_u32 v7, v0, 2, 2")
    g.i("v_lshl_add_u32 v6, v6, 2, v7")
    g.i(f"v_lshl_add_u32 v6, v6, 7, s{S_T0}")
    g.i("v_bfe_u32 v7, v0, 3, 2")
    g.i("v_and_b32 v2, 1, v7")
    g.i("v_lshl_add_u32 v6, v2, 6, v6")
    g.i("v_lshrrev_b32 v7, 1, v7")
    g.i("v_lshl_add_u32 v6, v7, 5, v6")
    g.i("v_and_b32 v7, 3, v0")
    g.i(f"v_lshl_add_u32 v6, v7, 3, v6")
    g.i(f"s_lshl_b32 s{S_T0}, s{S_E}, 6")
    g.i(f"v_xor_b32 v{WA0}, s{S_T0}, v6")
    g.i(f"v_xor_b32 v{WA1}, 64, v{WA0}")
    for s in range(16):
        if s and s % 3 == 0: g.i("s_waitcnt lgkmcnt(2)")
        for f in range(2):
            for i in range(2):
                g.i(f"ds_read_b64_tr_b16 {vr(P_WO+8*s+4*f+2*i,2)}, v{WA1 if f else WA0} offset:{s*2048+i*1024}")
    g.i(f"s_lshl_b32 s{S_T0}, s{S_WAVE}, 12")
    g.i(f"v_add_u32 v{RA}, s{S_T0}, v{V_L16}")
    g.i(f"s_and_b32 s{S_T0}, s{S_WAVE}, 3")
    g.i(f"s_lshl_b32 s{S_T0}, s{S_T0}, 12")
    g.i(f"s_add_u32 s{S_T0}, s{S_T0}, {RING}")
    g.i("v_and_b32 v6, 31, v0")
    g.i(f"v_lshl_add_u32 v6, v6, 7, s{S_T0}")
    g.i("v_lshrrev_b32 v7, 5, v0")
    g.i(f"v_lshl_add_u32 v7, s{S_E}, 2, v7")
    g.i("v_and_b32 v91, 7, v0")
    g.i("v_xor_b32 v7, v7, v91")
    g.i("v_lshl_add_u32 v88, v7, 4, v6")
    g.i("v_xor_b32 v89, 32, v88")
    g.i("v_lshrrev_b32 v6, 3, v0")
    g.i("v_xor_b32 v7, v6, v91")
    g.i(f"v_lshl_add_u32 v6, v6, 7, s{S_T0}")
    g.i("v_lshl_add_u32 v6, v7, 4, v6")
    g.i(f"v_lshl_add_u32 v90, s{S_E}, 11, v6")
    g.st('t_tr')
    if opt.get('earlym', 0):
        g.i(f"s_cmp_eq_u64 s[{S_M}:{S_M+1}], 0")
        g.i("s_cbranch_scc1 L_op_mm")
    g.i("s_cbranch_vccz L_spin_o")
    g.lab("L_spin_c")
    g.i(f"buffer_load_dword v5, v{V_CA}, s[{S_DBG}:{S_DBG+3}], 0 offen offset:4 sc1")
    g.i(f"s_add_u32 s{S_T3}, s{S_T3}, 1")
    g.i(f"s_cmp_ge_u32 s{S_T3}, {SPIN_MAX}")
    g.i("s_cbranch_scc1 L_spin_o")
    g.i("s_waitcnt vmcnt(0)")
    g.i("v_cmp_gt_u32 vcc, 8, v5")
    g.i("s_cbranch_vccnz L_spin_c")
    g.lab("L_spin_o")
    g.i(f"buffer_load_dword v3, v{V_PA}, s[{S_O}:{S_O+3}], s{S_B} offen offset:1020 sc1")
    g.i(f"s_add_u32 s{S_T3}, s{S_T3}, 1")
    g.i(f"s_cmp_ge_u32 s{S_T3}, {SPIN_MAX}")
    g.i("s_cbranch_scc1 L_spun_o")
    g.i("s_waitcnt vmcnt(0)")
    g.i("v_cmp_eq_u32 vcc, -1, v3")
    if opt.get('sleep'): g.i(f"s_cbranch_vccz L_spun_o"); g.i(f"s_sleep {opt['sleep']}"); g.i("s_branch L_spin_o")
    g.i("s_cbranch_vccnz L_spin_o")
    g.lab("L_spun_o")
    g.st('t_ok')
    if 'ofl' in opt:
        g.i(f"s_cmp_lg_u32 s{S_PG}, 99")
        g.i(f"s_mov_b32 s{S_PG}, 99")
        g.i("s_cbranch_scc1 L_op_first")
        o_loads()
        g.i("s_branch L_op_mm")
        g.lab("L_op_first")
        o_loads(opt['ofl'])
    else:
        o_loads()
    g.lab("L_op_mm")
    g.stamp(6)
    g.i("v_mov_b32 v3, 0")
    g.i("s_waitcnt lgkmcnt(0)")
    for s in range(16):
        g.i(f"s_waitcnt vmcnt({15-s})")
        if s == 0: g.st('t_f0')
        if s == 15: g.st('t_f15')
        for f, A in ((1, A1), (0, A0)):
            g.i(f"v_mfma_f32_32x32x16_bf16 {vr(A,16)}, {vr(P_WO+8*s+4*f,4)}, {vr(P_OF+4*s,4)}, {vr(A,16) if s else 0}")
            g.i(f"v_max3_u32 v3, v3, v{P_OF+4*s+2*f}, v{P_OF+4*s+2*f+1}")
    g.i("v_cmp_eq_u32 vcc, -1, v3")
    g.i(f"s_cmp_ge_u32 s{S_T3}, {SPIN_MAX}")
    g.i("s_cbranch_scc1 L_op_go")
    g.i("s_cbranch_vccnz L_spin_o")
    g.lab("L_op_go")
    g.i("s_nop 5")
    for r in range(4):
        g.i(f"ds_write_b128 v{RA}, {vr(A1+4*r,4)} offset:{1024*r}")
    g.i("s_waitcnt lgkmcnt(0)")
    g.i(f"v_xor_b32 v{RA}, 16384, v{RA}")
    g.st('t_b9a')
    barrier_unless_dry(g, "b9")
    g.st('t_b9')
    for r in range(4):
        g.i(f"ds_read_b128 {vr(P_OF+4*r,4)}, v{RA} offset:{1024*r}")
    for r in range(4):
        g.i(f"s_waitcnt lgkmcnt({3-r})")
        for k in range(4):
            g.i(f"v_add_f32 v{A0+4*r+k}, v{A0+4*r+k}, v{P_OF+4*r+k}")
        for k in range(2):
            g.i(f"v_cvt_pk_bf16_f32 v{24+2*r+k}, v{A0+4*r+2*k}, v{A0+4*r+2*k+1}")
        if r % 2:
            g.i("s_nop 1")
            g.i(f"v_permlane32_swap_b32 v{24+2*r-2}, v{24+2*r}")
            g.i(f"v_permlane32_swap_b32 v{24+2*r-1}, v{24+2*r+1}")
            g.i(f"ds_write_b128 v{88+r//2}, {vr(24+2*r-2,4)}")
    if True:
        g.i(f"s_add_u32 s{S_T0}, s{S_OW}, 16384")
        g.i("s_waitcnt lgkmcnt(0)")
        barrier_unless_dry(g, "b10")
        g.i("ds_read_b128 v[24:27], v90")
        g.i("ds_read_b128 v[28:31], v90 offset:1024")
        g.i("s_waitcnt lgkmcnt(1)")
        g.i(f"buffer_store_dwordx4 v[24:27], v{V_OW}, s[{S_OUT}:{S_OUT+3}], s{S_OW} offen{opt.get('outs','')}")
        g.i("s_waitcnt lgkmcnt(0)")
        g.i(f"buffer_store_dwordx4 v[28:31], v{V_OW}, s[{S_OUT}:{S_OUT+3}], s{S_T0} offen{opt.get('outs','')}")
    dry_exit(g)
    if g.diag:
        g.i("s_waitcnt vmcnt(0)")
        g.stamp(7)
        g.i("s_waitcnt lgkmcnt(0)")
        if g.diag == 3:
            a_, b_, K = opt['leak']
            if opt.get('leakw'):
                g.i(f"s_cmp_lt_u32 s{S_WAVE}, 4")
                g.i("s_cbranch_scc1 L_end")
            elif a_ in (1, 2) or b_ in (1, 2):
                g.i(f"s_cmp_ge_u32 s{S_WAVE}, 4")
                g.i("s_cbranch_scc1 L_end")
            if opt.get('leakc'):
                g.i(f"s_sub_u32 s{S_T0}, s{64+4*b_}, s{64+4*a_}")
                g.i(f"s_lshr_b32 s{S_T0}, s{S_T0}, 4")
            else:
                g.i(f"s_sub_u32 s{S_T0}, s{66+4*b_}, s{66+4*a_}")
            g.i(f"s_mul_i32 s{S_T0}, s{S_T0}, {K}")
            g.lab("L_leak")
            g.i("s_memrealtime s[98:99]")
            g.i("s_waitcnt lgkmcnt(0)")
            g.i(f"s_sub_u32 s{S_T1}, s98, s{66+4*7}")
            g.i(f"s_cmp_lt_u32 s{S_T1}, s{S_T0}")
            g.i("s_cbranch_scc1 L_leak")
            g.i("s_endpgm")
        if g.diag == 2:
            g.i(f"s_cmp_ge_u32 s{S_WAVE}, 4")
            g.i("s_cbranch_scc1 L_end")
            g.i("s_mov_b64 exec, 1")
            for k in range(1, 8):
                g.i(f"s_sub_u32 s{S_T0}, s{66+4*k}, s66")
                g.i(f"v_mov_b32 v6, s{S_T0}")
                g.i(f"v_mov_b32 v7, {8*k+4}")
                g.i(f"buffer_atomic_umax v6, v7, s[{S_DBG}:{S_DBG+3}], 0 offen sc1")
            g.i(f"s_sub_u32 s{S_T0}, s{64+4*4}, s{64+4*3}")
            g.i(f"v_mov_b32 v6, s{S_T0}")
            g.i(f"v_mov_b32 v7, 4")
            g.i(f"buffer_atomic_umax v6, v7, s[{S_DBG}:{S_DBG+3}], 0 offen sc1")
            g.i("s_endpgm")
        g.i(f"s_lshl_b32 s{S_T0}, s2, 3")
        g.i(f"s_add_u32 s{S_T0}, s{S_T0}, s{S_WAVE}")
        g.i(f"s_lshl_b32 s{S_T0}, s{S_T0}, 7")
        g.i(f"s_add_u32 s{S_T0}, s{S_T0}, {WS_STAMP}")
        srd(g.a, S_X, 96, 128, f"s{S_T0}")
        for k in range(32):
            g.i(f"v_mov_b32 v{36+k}, s{64+k}")
        g.i("v_mov_b32 v6, 0")
        for k in range(8):
            g.i(f"buffer_store_dwordx4 {vr(36+4*k,4)}, v6, s[{S_X}:{S_X+3}], 0 offen offset:{16*k}")
        if opt.get('itst'):
            g.i(f"s_add_u32 s{S_T0}, s{S_T0}, {1<<20}")
            srd(g.a, S_X, 96, 64, f"s{S_T0}")
            g.i("v_lshlrev_b32 v6, 2, v0")
            g.i(f"buffer_store_dword v250, v6, s[{S_X}:{S_X+3}], 0 offen")
    g.lab("L_end")
    g.i("s_endpgm")

def fallback(g):
    C = [100, 116]; M = [132, 133]; GV = 134
    g.lab("L_fallback")
    g.i(f"s_lshr_b32 s{S_T0}, s{S_WAVE}, 2")
    g.i(f"s_lshl_b32 s{S_T0}, s{S_T0}, 17")
    g.i(f"v_mov_b32 v{M[0]}, 0xff800000")
    g.i(f"v_mov_b32 v{M[1]}, 0xff800000")
    g.i(f"s_mov_b32 s{S_T1}, s{S_T0}")
    g.i(f"s_add_u32 s{S_T2}, s{S_T0}, 131072")
    g.lab("L_fb_max")
    g.i(f"buffer_load_dwordx4 {vr(V_K,4)}, v{V_L16}, s[{S_KV}:{S_KV+3}], s{S_T1} offen sc1")
    g.i(f"s_add_u32 s{S_T1}, s{S_T1}, 2048")
    g.i("s_waitcnt vmcnt(0)")
    for q in range(2):
        g.i(f"v_mfma_f32_32x32x16_bf16 {vr(V_S[q],16)}, {vr(V_K,4)}, {vr(V_Q[q],4)}, 0")
    g.i("s_nop 15")
    for q in range(2):
        for r in range(0, 16, 2):
            g.i(f"v_max3_f32 v{M[q]}, v{M[q]}, v{V_S[q]+r}, v{V_S[q]+r+1}")
    g.i(f"s_cmp_lt_u32 s{S_T1}, s{S_T2}")
    g.i("s_cbranch_scc1 L_fb_max")
    for q in range(2):
        g.i(f"v_mov_b32 v6, v{M[q]}")
        g.i(f"v_mov_b32 v7, v{M[q]}")
        g.i("s_nop 1")
        g.i("v_permlane32_swap_b32 v6, v7")
        g.i("s_nop 1")
        g.i("v_max_f32 v6, v6, v7")
        for r in range(16):
            g.i(f"v_sub_f32 v{C[q]+r}, 0, v6")
            g.i(f"v_mov_b32 v{V_O[q]+r}, 0")
    g.i("v_and_b32 v6, 15, v0")
    g.i("v_lshlrev_b32 v6, 4, v6")
    g.i("v_lshrrev_b32 v7, 5, v0")
    g.i(f"v_lshl_add_u32 v{GV}, v7, 8, v6")
    for r in range(8):
        g.i(f"v_mov_b32 v{V_V[0]+r}, 0x3f803f80")
    g.i(f"s_mov_b32 s{S_T1}, s{S_T0}")
    g.i(f"s_mov_b32 s{S_M}, 0xffff")
    g.i(f"s_mov_b32 s{S_M+1}, 0xffff")
    g.lab("L_fb_pv")
    g.i(f"buffer_load_dwordx4 {vr(V_K,4)}, v{V_L16}, s[{S_KV}:{S_KV+3}], s{S_T1} offen sc1")
    g.i(f"s_mov_b64 exec, s[{S_M}:{S_M+1}]")
    g.i(f"buffer_load_dwordx4 {vr(V_V[0],4)}, v{GV}, s[{S_KV}:{S_KV+3}], s{S_T1} offen offset:1024 sc1")
    g.i(f"buffer_load_dwordx4 {vr(V_V[0]+4,4)}, v{GV}, s[{S_KV}:{S_KV+3}], s{S_T1} offen offset:1536 sc1")
    g.i("s_mov_b64 exec, -1")
    g.i(f"s_add_u32 s{S_T1}, s{S_T1}, 2048")
    g.i("s_waitcnt vmcnt(0)")
    for q in range(2):
        g.i(f"v_mfma_f32_32x32x16_bf16 {vr(V_S[q],16)}, {vr(V_K,4)}, {vr(V_Q[q],4)}, {vr(C[q],16)}")
    g.i("s_nop 15")
    for q in range(2):
        for r in range(16):
            g.i(f"v_exp_f32 v{V_S[q]+r}, v{V_S[q]+r}")
    g.i("s_nop 3")
    for q in range(2):
        for h in range(2):
            g.i(f"v_smfmac_f32_32x32x32_bf16 {vr(V_O[q],16)}, {vr(V_V[0]+4*h,4)}, {vr(V_S[q]+8*h,8)}, v{V_IDX}")
    g.i("s_nop 15")
    g.i(f"s_cmp_lt_u32 s{S_T1}, s{S_T2}")
    g.i("s_cbranch_scc1 L_fb_pv")
    for q in range(2):
        g.i(f"v_rcp_f32 v{V_S[0]+2*q}, v{V_O[q]+8}")
    g.i("s_nop 1")
    g.i("s_branch L_at_store")

HEADER = open('cdna_kernels/' + NAME + '.s.ref').read().split('; Override launch')[0]

DOC = """;
; One persistent launch, 256 workgroups (one per CU) x 8 waves.  Workgroup = (branch, head pair hp, block tb of 256 tokens).
;  1. QKV projection of the 256 tokens x 96 columns (q,k,v of the two heads).  Waves 4-7 stream x and wqkv into a 3-slot
;     O^T += [V^T; 1] P^T with v_smfmac_f32_32x32x32_bf16 whose 2:4 index picks the upper halves of the fp32 p registers
;     (bf16 p without a pack instruction; the row of ones gives the softmax denominator from the same p).
;     first filled with an all-ones pattern, a consumer accepts a fragment when no word holds the pattern any more.
; Generated by a Python script (register maps and schedules are spelled out below)."""

def generate(opt={}):
    global WS_KV, WS_O, WS_FLAG
    off = opt.get('wsoff', 0) << 20
    WS_KV, WS_O, WS_FLAG = (4 << 20) + off, (12 << 20) + off, (16 << 20) + off
    g = G(opt)
    name = NAME + "_kernel"
    g.a(HEADER.rstrip())
    g.a(f"; @launch grid=(256,1,1) block=(512,1,1) lds={LDS_TOTAL}")
    g.a(DOC)
    g.a('.amdgcn_target "amdgcn-amd-amdhsa--gfx950"')
    entry(g, name)
    if opt.get('lfirst', 1): loader(g)
    compute(g)
    attention(g)
    outproj(g)
    if not opt.get('lfirst', 1): loader(g)
    g.lab("L_code_end")
    for tag, body in g.side:
        g.lab(f"L_ol_{tag}")
        body()
        g.i(f"s_branch L_olr_{tag}")
    fallback(g)
    kernel_desc(g.a, name, NVGPR, 256, 102)
    return g.a.text()

if __name__ == "__main__":
    import sys
    opt = eval(sys.argv[2]) if len(sys.argv) > 2 else {}
    open(sys.argv[1], 'w').write(generate(opt))
```

```python
import math, struct
from common import *

WS_FLAG = 16 << 20
SLOT = 45056; SLOT_W = 32768
RING = 32768
L_WO = 65536
L_CONST = 135168
L_QX = 155648
LDS_TOTAL = 163840
S_X, S_W, S_WO, S_KV, S_O, S_FL, S_DBG, S_OUT = 8, 12, 16, 20, 24, 28, 32, 36
S_WAVE, S_BR, S_HP, S_TB, S_IT, S_T0, S_T1, S_T2, S_T3 = 40, 41, 42, 43, 44, 45, 46, 47, 48
S_A, S_B, S_C, S_D, S_E, S_F = 49, 50, 51, 52, 53, 54
S_G1, S_G2, S_PG = 58, 59, 60
KG, KL, VG, VL, QL, KVT = 244, 245, 247, 248, 249, 204
S_M = 56
V_L16, V_KA, V_VA, V_VX, V_IDX, V_T0, V_T1 = 1, 2, 3, 4, 5, 6, 7
V_Q = [8, 12]; V_K = 16; V_V = [20, 28]; V_S = [36, 52]; V_O = [68, 84]
V_F = 241
V_FA = 242
V_OW = 251
V_CA, V_PA = 248, 249
V_WOA = 243
V_ACC = 100
V_FR = [196, 216]
V_XA = 236; V_WA = 240
NVGPR = 256
QSCALE = struct.unpack('<I', struct.pack('<f', 0.25 * math.log2(math.e)))[0]
SPIN_MAX = 1 << 20
S_DRY = 3

class G:
    def __init__(self, opt):
        self.a = Asm(); self.opt = opt; self.diag = opt.get('diag', 0)
    def i(self, s): self.a.i(s)
    def lab(self, s): self.a.label(s)
    def st(self, name):
        m = self.opt.get('st', {})
        if name in m: self.stamp(m[name], True)
    def stamp(self, k, forced=False):
        if k in self.opt.get('st', {}).values() and not forced: return
        if self.diag:
            self.i(f"s_memtime s[{64+4*k}:{65+4*k}]")
            self.i(f"s_memrealtime s[{66+4*k}:{67+4*k}]")

def dry_exit(g, label="L_dry_ret"):
    if g.opt.get('dry', 1):
        g.i(f"s_cmp_lg_u32 s{S_DRY}, 0")
        g.i(f"s_cbranch_scc1 {label}")

def barrier_unless_dry(g, tag):
    dry_exit(g, f"L_nb_{tag}")
    g.i("s_barrier")
    g.lab(f"L_nb_{tag}")

def spin(g, tag, load, want, nlanes_mask=None):
    g.i(f"s_mov_b32 s{S_T3}, 0")
    g.lab(f"L_spin_{tag}")
    g.i(load)
    g.i(f"s_add_u32 s{S_T3}, s{S_T3}, 1")
    g.i("s_waitcnt vmcnt(0)")
    g.i(f"v_cmp_{'gt' if want > 1 else 'ne'}_u32 vcc, {want}, v{V_F}")
    g.i(f"s_cmp_ge_u32 s{S_T3}, {SPIN_MAX}")
    g.i(f"s_cbranch_scc1 L_spun_{tag}")
    g.i(f"s_cbranch_vccnz L_spin_{tag}")
    g.lab(f"L_spun_{tag}")

def entry(g, name):
    a = g.a
    kernel_head(a, name)
    PF = g.opt.get('cpf', 4)
    if PF in (2, 3):
        g.i("s_getpc_b64 s[16:17]")
    if PF == 1:
        g.i("s_getpc_b64 s[8:9]")
        g.i("v_lshlrev_b32 v6, 7, v0")
        g.i("s_mov_b32 s10, L_code_end-" + name + "-4")
        g.i("s_mov_b32 s11, 0x20000")
    if PF == 4:
        g.i("s_getpc_b64 s[8:9]")
        g.i("v_lshlrev_b32 v6, 7, v0")
        g.i("s_lshl_b32 s4, s2, 7")
        g.i("s_and_b32 s4, s4, 0x7c00")
        g.i("s_add_u32 s10, s4, 1024")
        g.i("s_min_u32 s10, s10, L_code_end-" + name + "-4")
        g.i("s_mov_b32 s11, 0x20000")
    g.i("s_cmp_ge_u32 s2, 256")
    g.i("s_cbranch_scc1 L_end")
    if PF == 1:
        g.i("buffer_load_dword v246, v6, s[8:11], 0 offen")
    if PF == 4:
        g.i("buffer_load_dword v246, v6, s[8:11], s4 offen")
    g.stamp(0)
    g.i(f"s_mov_b32 s{S_DRY}, 0")
    g.i(f"s_bfe_u32 s{S_BR}, s2, 0x10002")
    g.i(f"s_mul_i32 s{S_T0}, s{S_BR}, 24")
    g.i(f"s_load_dwordx4 s[{S_M}:{S_M+3}], s[0:1], s{S_T0}")
    g.i(f"s_load_dwordx2 s[{S_M+4}:{S_M+5}], s[0:1], s{S_T0} offset:16")
    g.i("s_load_dwordx4 s[4:7], s[0:1], 48")
    g.i(f"s_load_dwordx2 s[{S_M+6}:{S_M+7}], s[0:1], 64")
    g.i("v_lshrrev_b32 v6, 6, v0")
    g.i("v_and_b32 v0, 63, v0")
    g.i(f"v_readfirstlane_b32 s{S_WAVE}, v6")
    g.i(f"v_lshlrev_b32 v{V_L16}, 4, v0")
    g.i(f"s_bfe_u32 s{S_HP}, s2, 0x10001")
    g.i(f"s_lshl_b32 s{S_HP}, s{S_HP}, 3")
    g.i(f"s_bfe_u32 s{S_T0}, s2, 0x30003")
    g.i(f"s_add_u32 s{S_HP}, s{S_HP}, s{S_T0}")
    g.i(f"s_and_b32 s{S_TB}, s2, 1")
    g.i(f"s_lshl_b32 s{S_TB}, s{S_TB}, 2")
    g.i(f"s_lshr_b32 s{S_T0}, s2, 6")
    g.i(f"s_add_u32 s{S_TB}, s{S_TB}, s{S_T0}")
    g.i(f"s_lshl_b32 s{S_T0}, s{S_TB}, 18")
    g.i(f"s_lshl_b32 s{S_T1}, s{S_BR}, 4")
    g.i(f"s_add_u32 s{S_T1}, s{S_T1}, s{S_HP}")
    g.i(f"s_lshl_b32 s{S_T2}, s{S_T1}, 18")
    g.i(f"s_add_u32 s{S_T2}, s{S_T2}, {WS_KV}")
    g.i(f"s_lshl_b32 s{S_T3}, s{S_BR}, 21")
    g.i(f"s_add_u32 s{S_T3}, s{S_T3}, {WS_O}")
    if g.opt.get('lfirst', 1):
        g.i(f"s_cmp_lt_u32 s{S_WAVE}, 4")
        g.i("s_cbranch_scc1 L_compute")
    else:
        g.i(f"s_cmp_ge_u32 s{S_WAVE}, 4")
        g.i("s_cbranch_scc1 L_loader")

def early_srds(g):
    g.i("s_waitcnt lgkmcnt(0)")
    g.st('karg')
    srd(g.a, S_X, S_M, 256 * 1024, f"s{S_T0}")
    srd(g.a, S_W, S_M + 2, 512 * 1536 * 2)

def late_srds(g):
    a = g.a
    srd(a, S_WO, S_M + 4, 512 * 512 * 2)
    srd(a, S_KV, S_M + 6, 256 * 1024, f"s{S_T2}")
    srd(a, S_O, S_M + 6, 2 << 20, f"s{S_T3}")
    srd(a, S_FL, S_M + 6, 4096, str(WS_FLAG))
    srd(a, S_DBG, 6, 256)
    srd(a, S_OUT, 4, 2048 * 1024 * 2)
    if g.diag:
        g.i(f"s_mov_b32 s96, s{S_M+6}")
        g.i(f"s_mov_b32 s97, s{S_M+7}")

def attn_consts(g):
    g.i(f"s_lshr_b32 s{S_T0}, s{S_WAVE}, 2")
    g.i(f"s_lshl_b32 s{S_T0}, s{S_T0}, 14")
    g.i(f"v_add_u32 v{V_KA}, s{S_T0}, v{V_L16}")
    g.i(f"v_and_b32 v{V_T0}, 15, v0")
    g.i(f"v_lshlrev_b32 v{V_T0}, 4, v{V_T0}")
    g.i(f"v_lshrrev_b32 v{V_T1}, 5, v0")
    g.i(f"v_lshl_add_u32 v{V_T0}, v{V_T1}, 8, v{V_T0}")
    g.i(f"s_add_u32 s{S_T0}, s{S_T0}, 1024")
    g.i(f"v_add_u32 v{V_VA}, s{S_T0}, v{V_T0}")
    g.i(f"v_and_b32 v{V_T0}, 31, v0")
    g.i(f"v_subrev_u32 v{V_T1}, 20, v{V_T0}")
    g.i(f"v_cmp_gt_u32 vcc, 8, v{V_T1}")
    g.i(f"v_mov_b32 v{V_T1}, {L_CONST+16}")
    g.i(f"v_mov_b32 v{V_VX}, {L_CONST+16+64}")
    g.i(f"v_cndmask_b32 v{V_T1}, v{V_T1}, v{V_VX}, vcc")
    g.i(f"v_and_b32 v{V_VX}, {31 if g.opt.get('x_one') else 27}, v0")
    g.i(f"v_cmp_eq_u32 vcc, 16, v{V_VX}")
    g.i(f"v_subrev_u32 v{V_VX}, 16, v{V_T1}")
    g.i("s_nop 0")
    g.i(f"v_cndmask_b32 v{V_T1}, v{V_T1}, v{V_VX}, vcc")
    g.i(f"v_cmp_gt_u32 vcc, 16, v{V_T0}")
    g.i(f"v_mov_b32 v{V_T0}, {RING}")
    g.i(f"v_mov_b32 v{V_IDX}, 0xdddd")
    g.i(f"v_cndmask_b32 v{V_VA}, v{V_T1}, v{V_VA}, vcc")
    g.i(f"v_cndmask_b32 v{V_VX}, 0, v{V_T0}, vcc")
    g.i(f"v_add_u32 v{V_VX}, v{V_VX}, v{V_VA}")
    g.i("v_lshrrev_b32 v7, 3, v0")
    g.i("v_lshlrev_b32 v7, 11, v7")
    g.i(f"v_and_b32 v{V_OW}, 7, v0")
    g.i(f"v_lshl_add_u32 v{V_OW}, v{V_OW}, 4, v7")
    g.i(f"v_mov_b64 v[{V_CA}:{V_PA}], 0")
    g.i(f"v_mov_b32 v{KG}, 0")
    g.i(f"v_mov_b32 v{VG}, 0")
    g.i("v_mov_b64 v[252:253], -1")
    g.i("v_mov_b64 v[254:255], -1")
    for r in range(0, 32, 2):
        g.i(f"v_mov_b64 v[{V_O[0]+r}:{V_O[0]+r+1}], 0")
    g.i(f"s_lshl_b32 s{S_T0}, s{S_BR}, 4")
    g.i(f"s_add_u32 s{S_T0}, s{S_T0}, s{S_HP}")
    g.i(f"s_lshl_b32 s{S_T0}, s{S_T0}, 7")
    g.i(f"v_and_b32 v6, 31, v0")
    g.i(f"v_lshl_add_u32 v{V_FA}, v6, 2, s{S_T0}")
    g.i(f"v_lshrrev_b32 v{V_T0}, 2, v0")
    g.i(f"v_and_b32 v{V_T0}, 4, v{V_T0}")
    g.i(f"v_and_b32 v{V_T1}, 7, v0")
    g.i(f"v_xor_b32 v{V_T0}, v{V_T0}, v{V_T1}")
    g.i(f"v_lshlrev_b32 v{V_T0}, 4, v{V_T0}")
    g.i(f"v_lshrrev_b32 v{V_T1}, 3, v0")
    g.i(f"v_lshl_add_u32 v{V_WOA}, v{V_T1}, 10, v{V_T0}")

def consts(g):
    g.i(f"s_cmp_lg_u32 s{S_WAVE}, 4")
    g.i("s_cbranch_scc1 L_ld_noconst")
    g.i("v_lshrrev_b32 v6, 2, v0")
    g.i("v_and_b32 v7, 1, v6")
    g.i("v_lshlrev_b32 v7, 9, v7")
    g.i("v_lshrrev_b32 v6, 1, v6")
    g.i("v_lshl_add_u32 v7, v6, 11, v7")
    g.i("v_and_b32 v6, 1, v0")
    g.i("v_lshl_add_u32 v7, v6, 4, v7")
    g.i("v_cmp_eq_u32 vcc, 0, v6")
    g.i("v_and_b32 v6, 2, v0")
    g.i("v_lshl_add_u32 v7, v6, 5, v7")
    g.i("v_mov_b32 v6, 0x3f803f80")
    g.i(f"v_add_u32 v7, {L_CONST}, v7")
    g.i("v_cndmask_b32 v108, 0, v6, vcc")
    g.i("v_cndmask_b32 v109, 0, v6, vcc")
    g.i("v_cndmask_b32 v110, 0, v6, vcc")
    g.i("v_cndmask_b32 v111, 0, v6, vcc")
    g.i("ds_write_b128 v7, v[108:111]")
    g.lab("L_ld_noconst")

def loader(g):
    VX, VW, VT = 100, 104, 112
    LEAD = g.opt.get('lead', 0)
    g.lab("L_loader")
    g.i(f"s_sub_u32 s{S_A}, s{S_WAVE}, 4")
    S_CH, S_TX = S_F, 55
    RM = g.opt.get('rot', 7)
    if RM == 1:
        g.i(f"s_lshl_b32 s{S_CH}, s{S_TB}, 1")
        g.i(f"s_lshr_b32 s{S_T1}, s{S_TB}, 2")
        g.i(f"s_add_u32 s{S_CH}, s{S_CH}, s{S_T1}")
        g.i(f"s_and_b32 s{S_CH}, s{S_CH}, 7")
    elif RM == 2:
        g.i(f"s_mov_b32 s{S_CH}, s{S_TB}")
    elif RM == 7:
        g.i(f"s_and_b32 s{S_T1}, s{S_HP}, 1")
        g.i(f"s_lshl_b32 s{S_T1}, s{S_T1}, 2")
        g.i(f"s_add_u32 s{S_CH}, s{S_TB}, s{S_T1}")
        g.i(f"s_and_b32 s{S_CH}, s{S_CH}, 7")
    elif RM == 8:
        g.i(f"s_lshl_b32 s{S_CH}, s{S_TB}, 1")
        g.i(f"s_bfe_u32 s{S_T1}, s{S_HP}, 0x10001")
        g.i(f"s_add_u32 s{S_CH}, s{S_CH}, s{S_T1}")
        g.i(f"s_and_b32 s{S_CH}, s{S_CH}, 7")
    elif RM == 9:
        g.i(f"s_lshl_b32 s{S_CH}, s{S_TB}, 1")
        g.i(f"s_and_b32 s{S_T1}, s{S_HP}, 3")
        g.i(f"s_add_u32 s{S_CH}, s{S_CH}, s{S_T1}")
        g.i(f"s_and_b32 s{S_CH}, s{S_CH}, 7")
    elif RM == 10:
        g.i(f"s_and_b32 s{S_CH}, s2, 7")
    elif RM == 11:
        g.i(f"s_and_b32 s{S_CH}, s2, 3")
        g.i(f"s_lshl_b32 s{S_CH}, s{S_CH}, 1")
        g.i(f"s_add_u32 s{S_CH}, s{S_CH}, s{S_BR}")
    elif RM == 0:
        g.i(f"s_mov_b32 s{S_CH}, 0")
    elif RM == 6:
        g.i(f"s_lshl_b32 s{S_CH}, s{S_TB}, 1")
        g.i(f"s_add_u32 s{S_CH}, s{S_CH}, s{S_HP}")
        g.i(f"s_and_b32 s{S_CH}, s{S_CH}, 7")
    elif RM == 4:
        g.i(f"s_lshl_b32 s{S_CH}, s{S_TB}, 1")
        g.i(f"s_add_u32 s{S_CH}, s{S_CH}, s{S_HP}")
        g.i(f"s_and_b32 s{S_CH}, s{S_CH}, 3")
        g.i(f"s_lshl_b32 s{S_CH}, s{S_CH}, 1")
    elif RM == 5:
        g.i(f"s_add_u32 s{S_CH}, s{S_TB}, s{S_HP}")
        g.i(f"s_and_b32 s{S_CH}, s{S_CH}, 3")
        g.i(f"s_lshl_b32 s{S_CH}, s{S_CH}, 1")
    elif RM == 3:
        g.i(f"s_lshl_b32 s{S_CH}, s{S_TB}, 1")
        g.i(f"s_and_b32 s{S_T1}, s{S_HP}, 1")
        g.i(f"s_add_u32 s{S_CH}, s{S_CH}, s{S_T1}")
        g.i(f"s_and_b32 s{S_CH}, s{S_CH}, 7")
    if g.opt.get('pf') or LEAD: pass
    if g.opt.get('pf') or LEAD:
        g.i(f"v_lshlrev_b32 v{VT}, 10, v0")
        g.i(f"s_and_b32 s{S_TX}, s{S_HP}, 7")
        g.i(f"s_lshl_b32 s{S_TX}, s{S_TX}, 2")
        g.i(f"s_add_u32 s{S_TX}, s{S_TX}, s{S_A}")
        g.i(f"s_lshl_b32 s{S_TX}, s{S_TX}, 13")
    PF = g.opt.get('pf', 0)
    NT = 2 if PF else (1 if LEAD else 0)
    if PF:
        S_TC, S_TW = S_IT, 0
        g.i(f"s_mov_b32 s{S_TC}, s{S_CH}")
        g.i("v_lshrrev_b32 v6, 1, v0")
        g.i("v_and_b32 v7, 1, v0")
        g.i("v_lshlrev_b32 v7, 7, v7")
        g.i(f"v_lshl_add_u32 v{VT+1}, v6, 10, v7")
        g.i(f"s_lshr_b32 s1, s2, 3")
        g.i(f"s_lshl_b32 s1, s1, 1")
        g.i(f"s_lshr_b32 s{S_T1}, s{S_A}, 1")
        g.i(f"s_add_u32 s1, s1, s{S_T1}")
        g.i(f"s_mul_i32 s1, s1, 3072")
        g.i(f"s_lshr_b32 s{S_T1}, s{S_HP}, 3")
        g.i(f"s_lshl_b32 s{S_T1}, s{S_T1}, 1")
        g.i(f"s_and_b32 s{S_B}, s{S_A}, 1")
        g.i(f"s_add_u32 s{S_T1}, s{S_T1}, s{S_B}")
        g.i(f"s_lshl_b32 s{S_T1}, s{S_T1}, 8")
        g.i(f"s_add_u32 s3, s1, s{S_T1}")
    def touch(ahead):
        if PF:
            g.i(f"s_lshl_b32 s{S_T0}, s{S_TC}, 7")
            g.i(f"s_add_u32 s{S_T0}, s{S_T0}, s{S_TX}")
            g.i(f"s_mul_i32 s{S_T1}, s{S_TC}, {64*3072}")
            g.i(f"s_add_u32 s{S_T1}, s{S_T1}, s3")
            g.i("s_mov_b64 exec, 0xff")
            g.i(f"buffer_load_dword v246, v{VT}, s[{S_X}:{S_X+3}], s{S_T0} offen")
            if g.opt.get('pfw', 1):
                g.i("s_mov_b64 exec, 0x3f")
                g.i(f"buffer_load_dword v246, v{VT+1}, s[{S_W}:{S_W+3}], s{S_T1} offen")
            g.i("s_mov_b64 exec, -1")
            g.i(f"s_add_u32 s{S_TC}, s{S_TC}, 1")
            g.i(f"s_and_b32 s{S_TC}, s{S_TC}, 7")
            return
        if not LEAD: return
        g.i(f"s_add_u32 s{S_T0}, s{S_CH}, {ahead}")
        g.i(f"s_and_b32 s{S_T0}, s{S_T0}, 7")
        g.i(f"s_lshl_b32 s{S_T0}, s{S_T0}, 7")
        g.i(f"s_add_u32 s{S_T0}, s{S_T0}, s{S_TX}")
        g.i("s_mov_b64 exec, 0xff")
        g.i(f"buffer_load_dword v246, v{VT}, s[{S_X}:{S_X+3}], s{S_T0} offen")
        g.i("s_mov_b64 exec, -1")
    g.i("v_lshrrev_b32 v6, 4, v0")
    g.i("v_and_b32 v7, 7, v0")
    g.i("v_xor_b32 v6, v6, v7")
    g.i("v_lshlrev_b32 v6, 4, v6")
    g.i("v_lshrrev_b32 v7, 3, v0")
    g.i(f"v_lshl_add_u32 v{VX}, v7, 10, v6")
    g.i(f"v_xor_b32 v{VX+1}, 64, v{VX}")
    g.i(f"v_add_u32 v{VX+2}, {2*7168}, v{VX}")
    g.i(f"v_add_u32 v{VX+3}, {3*7168}, v{VX+1}")
    g.i(f"v_add_u32 v{VX+1}, 7168, v{VX+1}")
    g.i(f"s_lshl_b32 s{S_B}, s{S_A}, 16")
    g.i(f"s_lshl_b32 s{S_D}, s{S_A}, 13")
    for p in range(3):
        g.i(f"v_add_u32 v6, {64*p}, v0")
        g.i("v_mul_u32_u24 v7, 43691, v6")
        g.i("v_lshrrev_b32 v7, 19, v7")
        g.i("v_mul_u32_u24 v110, 12, v7")
        g.i("v_sub_u32 v6, v6, v110")
        g.i("v_mul_u32_u24 v7, 3072, v7")
        g.i("v_lshrrev_b32 v110, 2, v6")
        g.i(f"v_lshl_add_u32 v7, v110, {6 if g.opt.get('x_wc') else 10}, v7")
        g.i("v_and_b32 v6, 3, v6")
        g.i("v_lshl_add_u32 v7, v6, 4, v7")
        g.i(f"v_subrev_u32 v{VW+p}, {1024*p}, v7")
    g.i(f"s_mul_i32 s{S_C}, s{S_A}, {16*3072}")
    g.i(f"s_lshl_b32 s{S_T1}, s{S_HP}, {7 if g.opt.get('x_wc') else 6}")
    g.i(f"s_add_u32 s{S_C}, s{S_C}, s{S_T1}")
    g.i(f"s_mul_i32 s{S_E}, s{S_A}, 3072")
    g.i(f"s_add_u32 s{S_E}, s{S_E}, {SLOT_W}")
    early_srds(g)
    cnt = [0]
    def issue():
        cnt[0] += 1
        g.i(f"s_lshl_b32 s{S_T1}, s{S_CH}, 7")
        g.i(f"s_add_u32 s{S_T1}, s{S_T1}, s{S_B}")
        g.i(f"s_mov_b32 m0, s{S_D}")
        g.i(f"s_add_u32 s{S_T0}, s{S_T1}, 32768")
        for p in range(4):
            g.i(f"buffer_load_dwordx4 v{VX+p}, s[{S_X}:{S_X+3}], s{S_T1} offen offset:{1024*p}{g.opt.get('xfl','')} lds")
        if cnt[0] == 1: g.st('ld_4')
        g.i(f"s_add_u32 m0, s{S_D}, 4096")
        g.i(f"s_mul_i32 s{S_T1}, s{S_CH}, {64*3072}")
        for p in range(4):
            g.i(f"buffer_load_dwordx4 v{VX+p}, s[{S_X}:{S_X+3}], s{S_T0} offen offset:{1024*p}{g.opt.get('xfl','')} lds")
        if cnt[0] == 1: g.st('ld_8')
        g.i(f"s_mov_b32 m0, s{S_E}")
        g.i(f"s_add_u32 s{S_T1}, s{S_T1}, s{S_C}")
        for p in range(3):
            if g.opt.get('x_now'): g.i(f"buffer_load_dword v244, v{VW+p}, s[{S_DBG if False else S_W}:{S_W+3}], s{S_C} offen"); continue
            g.i(f"buffer_load_dwordx4 v{VW+p}, s[{S_W}:{S_W+3}], s{S_T1} offen offset:{1024*p}{g.opt.get('wfl','')} lds")
        g.i(f"s_add_u32 s{S_CH}, s{S_CH}, 1")
        g.i(f"s_and_b32 s{S_CH}, s{S_CH}, 7")
    def next_slot():
        g.i(f"s_add_u32 s{S_D}, s{S_D}, {SLOT}")
        g.i(f"s_add_u32 s{S_E}, s{S_E}, {SLOT}")
        g.i(f"s_cmp_lt_u32 s{S_D}, {3*SLOT}")
        g.i(f"s_cselect_b32 s{S_T0}, 0, {3*SLOT}")
        g.i(f"s_sub_u32 s{S_D}, s{S_D}, s{S_T0}")
        g.i(f"s_sub_u32 s{S_E}, s{S_E}, s{S_T0}")
    if PF:
        q = []; nt = [0]
        def T():
            if nt[0] < 8: touch(0); q.extend('TT' if g.opt.get('pfw', 1) else 'T'); nt[0] += 1
        def D(c): issue(); q.extend([c] * 11)
        def W(c): g.i(f"s_waitcnt vmcnt({len(q) - 1 - max(i for i, x in enumerate(q) if x == c)})")
        for c in range(PF): T()
        D(0); T()
        next_slot(); D(1); T()
        late_srds(g); attn_consts(g); consts(g)
        for c in range(6):
            W(c)
            g.i("s_barrier")
            next_slot(); D(c + 2); T()
        W(6)
        g.i("s_barrier")
        g.i("s_waitcnt vmcnt(0)")
        g.i("s_barrier")
        g.i("s_mov_b32 s3, 0")
    if not PF: loader_plain(g, issue, next_slot, touch, LEAD, NT)
    loader_fin(g)

def loader_plain(g, issue, next_slot, touch, LEAD, NT):
    issue()
    g.st('ld_c0')
    next_slot(); issue()
    for c in range(2, LEAD): touch(c - 2)
    g.st('ld_c2')
    late_srds(g); attn_consts(g); consts(g)
    g.st('ld_pre')
    PRE = g.opt.get('pre', '')
    n0 = NT * max(LEAD - 2, 0)
    def pre():
        g.i(f"s_lshl_b32 s{S_T0}, s{S_TB}, 14")
        g.i(f"s_and_b32 s{S_T1}, s{S_A}, 1")
        g.i(f"s_lshl_b32 s{S_T1}, s{S_T1}, 13")
        g.i(f"s_add_u32 s{S_T0}, s{S_T0}, s{S_T1}")
        g.i(f"s_lshr_b32 s{S_T1}, s{S_A}, 1")
        g.i(f"s_lshl_b32 s{S_T1}, s{S_T1}, 17")
        g.i(f"s_add_u32 s{S_T0}, s{S_T0}, s{S_T1}")
        if PRE == 'r':
            g.i("v_lshlrev_b32 v6, 7, v0")
            g.i(f"buffer_load_dword v245, v6, s[{S_KV}:{S_KV+3}], s{S_T0} offen sc1")
            return 1
        g.i(f"s_add_u32 s{S_T1}, s{S_T0}, 4096")
        for k in range(8):
            g.i(f"buffer_store_dwordx4 v[{V_O[0]}:{V_O[0]+3}], v{V_L16}, s[{S_KV}:{S_KV+3}], s{S_T1 if k >= 4 else S_T0} offen offset:{1024*(k%4)} sc1")
        return 8
    np_ = 0
    PC = g.opt.get('prec', 1)
    for c, n in ((0, 11 + n0), (1, n0 + 11 + NT)):
        g.i(f"s_waitcnt vmcnt({n + (np_ if c == 1 else 0)})")
        if c == 0: g.st('ld_got0')
        g.i("s_barrier")
        next_slot(); issue(); touch(LEAD - 3)
        if PRE and c == PC: np_ = pre()
    if PRE and PC == 1:
        g.i(f"s_waitcnt vmcnt({11+2*NT+np_})")
        g.i("s_barrier")
        next_slot(); issue(); touch(LEAD - 3)
        g.i(f"s_mov_b32 s{S_IT}, 3")
        g.i(f"s_waitcnt vmcnt({11+2*NT+np_})")
        g.i("s_branch L_ld_loop2")
    g.i(f"s_mov_b32 s{S_IT}, 2")
    g.lab("L_ld_loop")
    g.i(f"s_waitcnt vmcnt({11+2*NT})")
    g.lab("L_ld_loop2")
    g.i("s_barrier")
    next_slot(); issue(); touch(LEAD - 3)
    g.i(f"s_add_u32 s{S_IT}, s{S_IT}, 1")
    g.i(f"s_cmp_lt_u32 s{S_IT}, 6")
    g.i("s_cbranch_scc1 L_ld_loop")
    g.st('ld_iss7')
    g.i(f"s_waitcnt vmcnt({11+2*NT})")
    g.i("s_barrier")
    g.i("s_waitcnt vmcnt(0)")
    g.i("s_barrier")

def loader_fin(g):
    g.i(f"s_cmp_lg_u32 s{S_WAVE}, 4")
    g.i("s_cbranch_scc1 L_ld_nocert")
    g.i(f"s_lshl_b32 s{S_T0}, s{S_BR}, 4")
    g.i(f"s_add_u32 s{S_T0}, s{S_T0}, s{S_HP}")
    g.i(f"s_lshl_b32 s{S_T0}, s{S_T0}, 3")
    g.i(f"v_mov_b32 v7, s{S_T0}")
    spin(g, "cert1", f"buffer_load_dword v{V_F}, v7, s[{S_DBG}:{S_DBG+3}], 0 offen sc1", 8)
    g.lab("L_ld_nocert")
    g.i(f"s_lshl_b32 s{S_T0}, s{S_A}, 11")
    g.i(f"s_add_u32 s{S_T0}, s{S_T0}, {L_QX}")
    g.i(f"v_add_u32 v6, s{S_T0}, v{V_L16}")
    attn_setup(g)
    g.i("s_waitcnt lgkmcnt(0)")
    g.i("s_barrier")
    g.i(f"ds_read_b128 {vr(V_Q[0],4)}, v6")
    g.i(f"ds_read_b128 {vr(V_Q[1],4)}, v6 offset:1024")
    g.i("s_branch L_attn")

class LdsQ:
    def __init__(self, g): self.g = g; self.q = []
    def issue(self, tag): self.q.append(tag)
    def need(self, tags):
        idx = max([i for i, t in enumerate(self.q) if t in tags], default=-1)
        if idx >= 0:
            n = len(self.q) - 1 - idx
            self.g.i(f"s_waitcnt lgkmcnt({min(n,15)})")
            self.q = self.q[idx + 1:]

def clear_flags(g):
    g.i(f"s_cmp_lg_u32 s{S_WAVE}, 0")
    g.i("s_cbranch_scc1 L_cp_noclear")
    g.i(f"s_lshl_b32 s{S_T0}, s{S_BR}, 4")
    g.i(f"s_add_u32 s{S_T0}, s{S_T0}, s{S_HP}")
    g.i(f"s_lshl_b32 s{S_T1}, s{S_T0}, 7")
    g.i(f"s_lshl_b32 s{S_T2}, s{S_TB}, 4")
    g.i(f"s_add_u32 s{S_T1}, s{S_T1}, s{S_T2}")
    g.i(f"v_lshl_add_u32 v6, v0, 2, s{S_T1}")
    g.i("v_mov_b32 v7, 0")
    g.i("s_mov_b64 exec, 0xf")
    g.i(f"buffer_store_dword v7, v6, s[{S_FL}:{S_FL+3}], 0 offen sc1")
    g.i("s_mov_b64 exec, -1")
    g.lab("L_cp_noclear")

def compute(g):
    g.lab("L_compute")
    CP = g.opt.get('cpf', 4)
    if CP == 3:
        n = g.opt.get('cpn', 12)
        g.i(f"s_mul_i32 s18, s{S_WAVE}, {128*n}")
        g.i(f"s_add_u32 s18, s18, L_compute-{NAME}_kernel")
        g.i("s_add_u32 s18, s16, s18")
        g.i("s_addc_u32 s19, s17, 0")
        g.i("s_waitcnt lgkmcnt(0)")
        for k in range(n): g.i(f"s_load_dword s95, s[18:19], {128*k}")
    if CP in (2, 3):
        g.i("s_mov_b32 s12, s16"); g.i("s_mov_b32 s13, s17")
        g.i(f"s_mov_b32 s14, L_code_end-{NAME}_kernel-4"); g.i("s_mov_b32 s15, 0x20000")
    TL = g.opt.get('tlb', 0)
    if TL:
        g.i(f"v_lshlrev_b32 v6, {TL}, v0")
    if CP != 3: g.i("s_waitcnt lgkmcnt(0)")
    if TL:
        srd(g.a, S_W, S_M + 2, 512 * 1536 * 2)
        g.i(f"buffer_load_dword v246, v6, s[{S_W}:{S_W+3}], 0 offen")
        if g.opt.get('tlbx'):
            srd(g.a, S_X, S_M, 256 * 1024, f"s{S_T0}")
            g.i(f"buffer_load_dword v246, v6, s[{S_X}:{S_X+3}], 0 offen")
    late_srds(g)
    if not g.opt.get('lateclr'): clear_flags(g)
    attn_consts(g)
    g.i("v_and_b32 v6, 31, v0")
    g.i(f"s_lshl_b32 s{S_T0}, s{S_WAVE}, 13")
    g.i(f"v_lshl_add_u32 v100, v6, 7, s{S_T0}")
    g.i("v_bfe_u32 v6, v0, 1, 3")
    g.i("v_lshrrev_b32 v7, 5, v0")
    g.i("v_xor_b32 v6, v6, v7")
    for s in range(4):
        g.i(f"v_xor_b32 v7, {2*s}, v6")
        g.i(f"v_lshl_add_u32 v{V_XA+s}, v7, 4, v100")
    g.i("v_lshrrev_b32 v6, 5, v0")
    g.i("v_bfe_u32 v7, v0, 2, 2")
    g.i("v_lshl_add_u32 v6, v6, 3, v7")
    g.i("v_mul_u32_u24 v6, 192, v6")
    g.i("v_bfe_u32 v7, v0, 4, 1")
    g.i("v_lshl_add_u32 v6, v7, 5, v6")
    g.i("v_and_b32 v7, 3, v0")
    g.i("v_lshl_add_u32 v6, v7, 3, v6")
    g.i(f"v_add_u32 v{V_WA}, {SLOT_W}, v6")
    for r in range(0, 96, 2):
        g.i(f"v_mov_b64 v[{V_ACC+r}:{V_ACC+r+1}], 0")
    S_A, S_B = 56, 57
    g.i("v_and_b32 v6, 0x33, v0")
    g.i("v_bfe_u32 v7, v0, 2, 1")
    g.i("v_lshl_or_b32 v6, v7, 3, v6")
    g.i("v_bfe_u32 v7, v0, 3, 1")
    g.i("v_lshl_or_b32 v6, v7, 2, v6")
    g.i(f"v_lshlrev_b32 v{KG}, 4, v6")
    g.i(f"s_lshl_b32 s{S_T0}, s{S_WAVE}, 12")
    g.i(f"v_add_u32 v{KL}, s{S_T0}, v{KG}")
    g.i("v_and_b32 v6, 15, v0")
    g.i("v_lshlrev_b32 v6, 4, v6")
    g.i("v_lshrrev_b32 v7, 5, v0")
    g.i("v_lshl_add_u32 v6, v7, 8, v6")
    g.i("v_add_u32 v6, 1024, v6")
    g.i("v_bfe_u32 v7, v0, 4, 1")
    g.i(f"v_lshl_add_u32 v{VG}, v7, 17, v6")
    g.i("v_lshl_add_u32 v6, v7, 14, v6")
    g.i(f"v_add_u32 v{VL}, s{S_T0}, v6")
    g.i(f"s_lshr_b32 s{S_T0}, s{S_T0}, 1")
    g.i(f"s_add_u32 s{S_T0}, s{S_T0}, {L_QX}")
    g.i(f"v_add_u32 v{QL}, s{S_T0}, v{V_L16}")
    if g.opt.get('lateclr'): clear_flags(g)
    if CP in (2, 3):
        g.i(f"s_lshl_b32 s{S_T0}, s{S_WAVE}, 13")
        g.i("v_lshlrev_b32 v6, 7, v0")
        g.i(f"buffer_load_dword v246, v6, s[12:15], s{S_T0} offen")
    if g.opt.get('dry', 1):
        g.i(f"s_cmp_lt_u32 s{S_WAVE}, 2")
        g.i("s_cbranch_scc1 L_dry_done")
        g.i(f"s_mov_b32 s{S_DRY}, 1")
        g.i(f"s_mov_b32 s{S_IT}, 7")
        g.i("s_mov_b64 vcc, 0")
        g.i(f"s_mov_b64 s[{S_M}:{S_M+1}], 0")
        g.i(f"s_mov_b64 s[{S_M+2}:{S_M+3}], 0")
        g.i(f"s_mov_b32 s{S_MK}, 0")
        g.i("s_waitcnt vmcnt(0) lgkmcnt(0)")
        g.i("s_setvskip -1, 0")
        g.i(f"s_cmp_eq_u32 s{S_WAVE}, 2")
        g.i("s_cbranch_scc1 L_at_done")
        g.i("s_branch L_cp_loop")
        g.lab("L_dry_ret")
        g.i("s_setvskip 0, 0")
        g.i("s_mov_b64 exec, -1")
        g.i("s_setprio 0")
        g.i(f"s_mov_b32 s{S_DRY}, 0")
        g.lab("L_dry_done")
    attn_setup(g)
    g.i(f"s_lshl_b32 s{S_T0}, s{S_WAVE}, 12")
    g.i(f"s_lshl_b32 s{S_G1}, s{S_TB}, 14")
    g.i(f"s_add_u32 s{S_G1}, s{S_G1}, s{S_T0}")
    g.i(f"s_add_u32 s{S_G2}, s{S_G1}, 131072")
    g.i(f"s_mov_b32 s{S_IT}, 0")
    g.i(f"s_mov_b32 s{S_A}, 0")
    g.i(f"s_mov_b32 s{S_B}, {SLOT}")
    q = LdsQ(g)
    def rd(setn, s, which):
        F = V_FR[setn]
        if which[0] == 'x':
            i = int(which[1])
            g.i(f"ds_read_b128 {vr(F+4*i,4)}, v{V_XA+s} offset:{4096*i}")
        else:
            p = {'q': 0, 'k': 1, 'v': 2}[which[0]]; i = int(which[1])
            g.i(f"ds_read_b64_tr_b16 {vr(F+8+4*p+2*i,2)}, v{V_WA} offset:{s*3072+i*768+p*64}")
        q.issue((setn, which))
    ORDER = ['x0', 'q0', 'q1', 'x1', 'k0', 'k1', 'v0', 'v1']
    def mf(setn, n):
        F = V_FR[setn]; p, i = n // 2, n % 2
        w, x = vr(F + 8 + 4 * p, 4), vr(F + 4 * i, 4)
        nm = 'qkv'[p]
        q.need({(setn, f'x{i}'), (setn, nm + '0'), (setn, nm + '1')})
        A, B = (w, x) if p < 2 else (x, w)
        acc = vr(V_ACC + 16 * n, 16)
        if g.opt.get('x_m16'):
            for hh in range(2):
                a4 = vr(V_ACC + 16 * n + 4 * hh, 4)
                g.i(f"v_mfma_f32_16x16x32_bf16 {a4}, {A}, {B}, {a4}")
        else:
            g.i(f"v_mfma_f32_32x32x16_bf16 {acc}, {A}, {B}, {acc}")
    def step(cur, nxt_s, order=range(6)):
        plan = [ORDER[0:2], ORDER[2:4], ORDER[4:6], ORDER[6:8], [], []]
        for n in range(6):
            if cur is not None: mf(cur, order[n])
            if nxt_s is not None:
                for w in plan[n]: rd(1 - (cur if cur is not None else 1), nxt_s, w)
    g.i(f"s_cmp_lg_u32 s{S_WAVE}, 0")
    g.i("s_cbranch_scc1 L_cp_nocount")
    g.i(f"s_lshl_b32 s{S_T0}, s{S_BR}, 4")
    g.i(f"s_add_u32 s{S_T0}, s{S_T0}, s{S_HP}")
    g.i(f"s_lshl_b32 s{S_T0}, s{S_T0}, 3")
    g.i("s_mov_b64 exec, 1")
    g.i(f"v_mov_b32 v6, s{S_T0}")
    g.i("v_mov_b32 v7, 1")
    g.i(f"s_waitcnt vmcnt(0)")
    g.i(f"buffer_atomic_add v7, v6, s[{S_DBG}:{S_DBG+3}], 0 offen sc1")
    g.i("s_mov_b64 exec, -1")
    g.lab("L_cp_nocount")
    def prew():
        g.i(f"s_lshl_b32 s{S_T0}, s{S_TB}, 14")
        g.i(f"s_lshl_b32 s{S_T1}, s{S_WAVE}, 12")
        g.i(f"s_add_u32 s{S_T0}, s{S_T0}, s{S_T1}")
        g.i(f"s_add_u32 s{S_T1}, s{S_T0}, 131072")
        for k in range(8):
            g.i(f"buffer_store_dwordx4 v[{V_O[0]}:{V_O[0]+3}], v{V_L16}, s[{S_KV}:{S_KV+3}], s{S_T1 if k >= 4 else S_T0} offen offset:{1024*(k%4)} sc1")
    def prer():
        g.i("v_and_b32 v6, 31, v0")
        g.i("v_lshlrev_b32 v6, 7, v6")
        g.i("v_lshrrev_b32 v7, 5, v0")
        g.i("v_lshl_add_u32 v6, v7, 17, v6")
        g.i(f"buffer_load_dword v246, v6, s[{S_KV}:{S_KV+3}], s{S_G1} offen{g.opt.get('prefl', ' sc1')}")
    PR = g.opt.get('prer', 0)
    if PR == -1: prer()
    if g.opt.get('prew') == 1: prew()
    g.st('cp_pre')
    g.i("s_barrier")
    g.stamp(1)
    if g.opt.get('prew') == 2: prew()
    step(None, 0)
    g.lab("L_cp_loop")
    q.q = [(0, w) for w in ORDER]
    step(0, 1); step(1, 2); step(0, 3)
    g.i(f"s_add_u32 s{S_A}, s{S_A}, 1")
    g.i(f"s_cmp_eq_u32 s{S_A}, 3")
    g.i(f"s_cselect_b32 s{S_T0}, {(-2*SLOT) & 0xffffffff}, s{S_B}")
    g.i(f"s_cselect_b32 s{S_A}, 0, s{S_A}")
    g.i(f"s_add_u32 s{S_IT}, s{S_IT}, 1")
    g.i(f"s_cmp_eq_u32 s{S_IT}, 8")
    g.i("s_cbranch_scc1 L_cp_last")
    g.i("s_waitcnt lgkmcnt(0)")
    q.q = []
    g.i("s_barrier")
    for r in range(5):
        g.i(f"v_add_u32 v{V_XA+r}, s{S_T0}, v{V_XA+r}")
    PW = g.opt.get('pwd')
    if PW:
        c0, kind = PW
        if kind == 'd':
            g.i(f"s_cmp_lg_u32 s{S_IT}, {c0}")
            g.i("s_cbranch_scc1 L_cp_nopw")
            g.i("v_and_b32 v6, 31, v0")
            g.i("v_lshlrev_b32 v6, 7, v6")
            g.i("v_lshrrev_b32 v7, 5, v0")
            g.i("v_lshl_add_u32 v6, v7, 17, v6")
            g.i(f"buffer_store_dword v{V_O[0]}, v6, s[{S_KV}:{S_KV+3}], s{S_G1} offen sc1")
        elif kind == 'f':
            g.i(f"s_cmp_lg_u32 s{S_IT}, {c0}")
            g.i("s_cbranch_scc1 L_cp_nopw")
            for k in range(8):
                g.i(f"buffer_store_dwordx4 v[{V_O[0]}:{V_O[0]+3}], v{V_L16}, s[{S_KV}:{S_KV+3}], s{S_G2 if k >= 4 else S_G1} offen offset:{1024*(k%4)} sc1")
        elif kind == 's':
            g.i(f"s_sub_u32 s{S_T1}, s{S_IT}, {c0}")
            g.i(f"s_cmp_ge_u32 s{S_T1}, 4")
            g.i("s_cbranch_scc1 L_cp_nopw")
            g.i(f"s_lshl_b32 s{S_T1}, s{S_T1}, 10")
            g.i(f"s_add_u32 s{S_T2}, s{S_T1}, s{S_G2}")
            g.i(f"s_add_u32 s{S_T1}, s{S_T1}, s{S_G1}")
            for so in (S_T1, S_T2):
                g.i(f"buffer_store_dwordx4 v[{V_O[0]}:{V_O[0]+3}], v{V_L16}, s[{S_KV}:{S_KV+3}], s{so} offen sc1")
        g.lab("L_cp_nopw")
    if PR > 0:
        g.i(f"s_cmp_lg_u32 s{S_IT}, {PR}")
        g.i("s_cbranch_scc1 L_cp_nopre")
        prer()
        g.lab("L_cp_nopre")
    step(1, 0)
    g.i("s_branch L_cp_loop")
    g.lab("L_cp_last")
    q.q = [(1, w) for w in ORDER]
    step(1, None, (2, 3, 4, 5, 0, 1) if g.opt.get('trim', 1) else range(6))
    g.stamp(2)
    g.i(f"s_mov_b32 s{S_T1}, {hex(QSCALE)}")
    g.i(f"s_mov_b32 s{S_T2}, s{S_T1}")
    g.i("s_nop 3" if g.opt.get('trim', 1) else "s_nop 5")
    KVS = g.opt.get('kvs', ' sc1')
    T = 204
    n = 0
    for i in range(2):
        A = V_ACC + 16 * (2 + i)
        for hd in range(2):
            for r in range(4):
                g.i(f"v_cvt_pk_bf16_f32 v{T+4*n+r}, v{A+8*hd+2*r}, v{A+8*hd+2*r+1}")
            g.i(f"ds_write_b128 v{KL}, {vr(T+4*n,4)} offset:{16384*hd+2048*i}")
            n += 1
    for i in range(2):
        A = V_ACC + 16 * (4 + i)
        for gr in range(2):
            for r in range(4):
                g.i(f"v_cvt_pk_bf16_f32 v{T+4*n+r}, v{A+8*gr+2*r}, v{A+8*gr+2*r+1}")
            g.i(f"ds_write_b128 v{VL}, {vr(T+4*n,4)} offset:{2048*i+512*gr}")
            n += 1
    g.i(f"s_cmp_lg_u32 s{S_PG}, 0")
    g.i("s_cbranch_scc1 L_cp_later")
    for n in range(8): g.i(kv_store(n))
    g.lab("L_cp_later")
    for i in range(2):
        A = V_ACC + 16 * i
        for r in range(8, 16, 2):
            g.i(f"v_pk_mul_f32 v[{A+r}:{A+r+1}], v[{A+r}:{A+r+1}], s[{S_T0+1}:{S_T0+2}]")
        for r in range(4):
            g.i(f"v_cvt_pk_bf16_f32 v{A+8+r}, v{A+8+2*r}, v{A+8+2*r+1}")
        g.i(f"ds_write_b128 v{QL}, {vr(A+8,4)} offset:{1024*i}")
    def q_own():
        for i in range(2):
            A = V_ACC + 16 * i
            for r in range(0, 8, 2):
                g.i(f"v_pk_mul_f32 v[{A+r}:{A+r+1}], v[{A+r}:{A+r+1}], s[{S_T0+1}:{S_T0+2}]")
            for r in range(4):
                g.i(f"v_cvt_pk_bf16_f32 v{V_Q[i]+r}, v{A+2*r}, v{A+2*r+1}")
    if not g.opt.get('trimq', 0): q_own()
    g.i("s_waitcnt lgkmcnt(0)")
    barrier_unless_dry(g, "b8")
    if g.opt.get('trimq', 0): q_own()

U = 8
S_OA, S_OB = S_M + 6, S_M + 7
S_MK = S_M + 5
S_KV2 = S_X
S_KO = [None, 4, 5, 6, 7, 12, 13, 14]
S_LM = [[49, 50], [51, 52]]
S_OW = 1
V_VB = 4

def kv_store(n):
    if n < 4: adr, so, off = KG, (S_G2 if n % 2 else S_G1), 2048 * (n // 2)
    else: adr, so, off = VG, S_G1, 2048 * ((n - 4) // 2) + 512 * (n % 2)
    return f"buffer_store_dwordx4 {vr(KVT+4*n,4)}, v{adr}, s[{S_KV}:{S_KV+3}], s{so} offen offset:{off} sc1"

def spin_mask(g, tag, load):
    g.i(f"s_mov_b32 s{S_T3}, 0")
    g.lab(f"L_spin_{tag}")
    g.i(load)
    g.i(f"s_add_u32 s{S_T3}, s{S_T3}, 1")
    g.i("s_waitcnt vmcnt(0)")
    g.i(f"v_cmp_ne_u32 vcc, 1, v{V_F}")
    g.i(f"s_cmp_ge_u32 s{S_T3}, {SPIN_MAX}")
    g.i(f"s_cbranch_scc1 L_olr_{tag}")
    g.i(f"s_and_b32 vcc_lo, vcc_lo, s{S_MK}")
    g.i(f"s_cbranch_scc1 L_spin_{tag}")

def attn_setup(g):
    g.i(f"s_add_u32 s{S_KV2}, s{S_KV}, 131072")
    g.i(f"s_addc_u32 s{S_KV2+1}, s{S_KV+1}, 0")
    g.i(f"s_mov_b32 s{S_KV2+2}, 131072")
    g.i(f"s_mov_b32 s{S_KV2+3}, 0x20000")
    g.i(f"s_lshl_b32 s{S_LM[0][0]}, s{S_WAVE}, 11")
    g.i(f"s_add_u32 s{S_LM[0][1]}, s{S_LM[0][0]}, 16384")
    g.i(f"s_add_u32 s{S_LM[1][0]}, s{S_LM[0][0]}, {RING}")
    g.i(f"s_add_u32 s{S_LM[1][1]}, s{S_LM[0][0]}, {RING+16384}")
    for i in range(1, 8):
        g.i(f"s_cmp_gt_u32 s{S_TB}, {i-1}")
        g.i(f"s_cselect_b32 s{S_T0}, {i-1}, {i}")
        if i == 1:
            g.i(f"s_lshl_b32 s{S_T3}, s{S_T0}, 2")
            g.i(f"s_lshl_b32 s{S_MK}, 15, s{S_T3}")
        g.i(f"s_lshl_b32 s{S_T0}, s{S_T0}, 14")
        g.i(f"s_add_u32 s{S_KO[i]}, s{S_T0}, s{S_LM[0][0]}")
    g.i(f"s_lshr_b32 s{S_PG}, s{S_TB}, 1")
    g.i(f"s_min_u32 s{S_PG}, s{S_PG}, 2")
    g.i(f"s_cmp_ge_u32 s{S_WAVE}, 4")
    g.i(f"s_cselect_b32 s{S_PG}, 3, s{S_PG}")
    g.i(f"s_and_b32 s{S_F}, s{S_HP}, 7")
    g.i(f"s_lshl_b32 s{S_T0}, s{S_F}, 7")
    if g.opt.get('orot', 0):
        g.i(f"s_add_u32 s55, s{S_WAVE}, s{S_F}")
        g.i("s_and_b32 s55, s55, 3")
        g.i(f"s_and_b32 s{S_T1}, s{S_WAVE}, 4")
        g.i(f"s_or_b32 s55, s55, s{S_T1}")
        g.i("s_lshl_b32 s55, s55, 16")
    else:
        g.i(f"s_lshl_b32 s55, s{S_WAVE}, 16")
    g.i(f"s_add_u32 s55, s55, s{S_T0}")
    g.i(f"s_lshl_b32 s{S_E}, s{S_WAVE}, 13")
    g.i(f"s_add_u32 s{S_E}, s{S_E}, {L_WO}")
    g.i(f"s_and_b32 s{S_T0}, s{S_WAVE}, 3")
    g.i(f"s_lshl_b32 s{S_T0}, s{S_T0}, 1")
    g.i(f"s_lshl_b32 s{S_T1}, s{S_TB}, 3")
    g.i(f"s_add_u32 s{S_T0}, s{S_T0}, s{S_T1}")
    g.i(f"s_lshl_b32 s{S_OA}, s{S_T0}, 15")
    g.i(f"s_lshr_b32 s{S_T1}, s{S_WAVE}, 2")
    g.i(f"s_lshl_b32 s{S_T2}, s{S_HP}, 1")
    g.i(f"s_add_u32 s{S_T1}, s{S_T1}, s{S_T2}")
    g.i(f"s_lshl_b32 s{S_T2}, s{S_T1}, 10")
    g.i(f"s_add_u32 s{S_OA}, s{S_OA}, s{S_T2}")
    g.i(f"s_add_u32 s{S_OB}, s{S_OA}, 32768")
    if True:
        g.i(f"s_lshr_b32 s{S_T0}, s{S_HP}, 3")
        g.i(f"s_lshl_b32 s{S_T0}, s{S_T0}, 2")
        g.i(f"s_and_b32 s{S_T1}, s{S_WAVE}, 3")
        g.i(f"s_add_u32 s{S_T0}, s{S_T0}, s{S_T1}")
        g.i(f"s_lshl_b32 s{S_T1}, s{S_TB}, 3")
        g.i(f"s_add_u32 s{S_T0}, s{S_T0}, s{S_T1}")
        g.i(f"s_lshl_b32 s{S_T0}, s{S_T0}, 1")
        g.i(f"s_lshr_b32 s{S_T1}, s{S_WAVE}, 2")
        g.i(f"s_add_u32 s{S_T0}, s{S_T0}, s{S_T1}")
        g.i(f"s_lshl_b32 s{S_OW}, s{S_T0}, 15")
        g.i(f"s_lshl_b32 s{S_T0}, s{S_BR}, 10")
        g.i(f"s_add_u32 s{S_OW}, s{S_OW}, s{S_T0}")
        g.i(f"s_lshl_b32 s{S_T0}, s{S_F}, 7")
        g.i(f"s_add_u32 s{S_OW}, s{S_OW}, s{S_T0}")

def attention(g):
    opt = g.opt
    g.lab("L_attn")
    g.stamp(3)
    g.i(f"ds_read_b128 {vr(V_K,4)}, v{V_KA}")
    g.i(f"ds_read_b128 {vr(V_V[0],4)}, v{V_VA}")
    g.i(f"ds_read_b128 {vr(V_V[0]+4,4)}, v{V_VA} offset:512")
    if opt.get('x_em'):
        g.i("s_mov_b32 s100, 0xffff"); g.i("s_mov_b32 s101, 0xffff")
    g.i("s_setprio 3")
    g.i("s_waitcnt lgkmcnt(2)")
    g.i(f"v_mfma_f32_32x32x16_bf16 {vr(V_S[0],16)}, {vr(V_K,4)}, {vr(V_Q[0],4)}, 0")
    dry_exit(g)
    g.i("s_nop 9")
    g.i("s_waitcnt lgkmcnt(0)")
    poll = f"buffer_load_dword v{V_F}, v{V_FA}, s[{S_FL}:{S_FL+3}], 0 offen sc1"
    side = []
    ev = {}
    def at(it, p, slot, *ins): ev.setdefault((it, p, slot), []).extend(ins)
    def kv(i, n):
        return f"buffer_load_dwordx4 v{V_L16}, {sr(S_KV2 if n >= 2 else S_KV, 4)}, s{S_KO[i]} offen offset:{1024*(n%2)}{opt.get('kvl', ' sc1')} lds"
    def check(tag, n):
        def f():
            if n is not None: g.i(f"s_waitcnt vmcnt({n})")
            g.i(f"v_cmp_ne_u32 vcc, 1, v{V_F}")
            g.i("s_nop 0")
            g.i(f"s_and_b32 vcc_lo, vcc_lo, s{S_MK}")
            g.i(f"s_cbranch_scc1 L_ol_{tag}")
            g.lab(f"L_olr_{tag}")
            side.append((tag, lambda: spin_mask(g, tag, poll)))
        return f
    def group(pg, tag, body):
        def f():
            g.i(f"s_cmp_lg_u32 s{S_PG}, {pg}")
            g.i(f"s_cbranch_scc1 L_pg_{tag}")
            body()
            g.lab(f"L_pg_{tag}")
        return f
    def flag():
        g.i(f"s_lshl_b32 s{S_T0}, s{S_TB}, 2")
        g.i(f"s_add_u32 s{S_T0}, s{S_T0}, s{S_WAVE}")
        g.i(f"s_lshl_b64 exec, 1, s{S_T0}")
        g.i("v_mov_b32 v6, 1")
        g.i(f"buffer_store_dword v6, v{V_FA}, s[{S_FL}:{S_FL+3}], 0 offen sc1")
        g.i("s_mov_b64 exec, -1")
    def stores(it, p0, pg):
        for k, (a_, b_) in enumerate(((0, 3), (3, 6), (6, 8))):
            at(it, p0 + k, 'p1', group(pg, f"s{pg}{k}", lambda a_=a_, b_=b_: [g.i(kv_store(n)) for n in range(a_, b_)]))
    def burst(i, it=None, p=None, slot=None):
        sl = i % 2
        if not opt.get('spread', 0):
            return [f"s_mov_b32 m0, s{S_LM[sl][0]}", "s_nop 0", kv(i, 0), kv(i, 1), f"s_mov_b32 m0, s{S_LM[sl][1]}", "s_nop 0", kv(i, 2), kv(i, 3)]
        seq = [(q, k) for q in range(p, 14) for k in ('p2', 'qk', 'p1')]
        seq = seq[seq.index((p, slot)) + 1:]
        at(it, *seq[0], kv(i, 1), f"s_mov_b32 m0, s{S_LM[sl][1]}")
        at(it, *seq[1], kv(i, 2))
        at(it, *seq[2], kv(i, 3))
        return [f"s_mov_b32 m0, s{S_LM[sl][0]}", "s_nop 0", kv(i, 0)]
    def count():
        g.i(f"s_cmp_lg_u32 s{S_WAVE}, 7")
        g.i("s_cbranch_scc1 L_at_nocnt")
        g.i(f"s_lshl_b32 s{S_T0}, s{S_BR}, 4")
        g.i(f"s_add_u32 s{S_T0}, s{S_T0}, s{S_HP}")
        g.i(f"s_lshl_b32 s{S_T0}, s{S_T0}, 3")
        g.i("s_mov_b64 exec, 1")
        g.i(f"v_mov_b32 v6, s{S_T0}")
        g.i("v_mov_b32 v7, 1")
        g.i(f"buffer_atomic_add v7, v6, s[{S_DBG}:{S_DBG+3}], 0 offen offset:4 sc1")
        g.i("s_mov_b64 exec, -1")
        g.lab("L_at_nocnt")
    pp, pi0, pc0, ps1, pi1, pc1, pi3, pc3 = opt.get('ev', (1, 8, 10, 3, 7, 9, 7, 9))
    at(0, pp, 'qk', group(0, "f0", lambda: (g.st('pub_pre'), g.i("s_waitcnt vmcnt(0)"), g.st('pub_ack'), flag())))
    stores(0, ps1, 1)
    at(0, pi0, 'qk', poll)
    at(0, pc0, 'qk', "s_waitcnt vmcnt(0)", group(1, "f1", flag), check("kv0", None), lambda: g.st('chk_ok'), *burst(1, 0, pc0, 'qk'),
       f"s_mov_b32 s{S_MK}, 0xffff")
    at(1, pi1, 'qk', poll)
    at(1, pc1, 'qk', check("kv1", 0), *burst(2, 1, pc1, 'qk'), f"s_mov_b32 s{S_MK}, -1")
    if opt.get('safe', 1):
        for k, (it_, p_, sl_, a_, b_) in enumerate(((1, 14, 'p1', 0, 3), (1, 15, 'p1', 3, 6), (2, 0, 'p1', 6, 8))):
            at(it_, p_, sl_, group(2, f"s2{k}", lambda a_=a_, b_=b_: [g.i(kv_store(n)) for n in range(a_, b_)]))
    else:
        stores(1, pc1 + 1 + opt.get('spread', 0), 2)
    at(2, 15, 'qk', group(2, "f2", flag))
    at(3, pi3, 'qk', poll)
    at(3, pc3, 'p2', check("kv2", 0), *burst(4, 3, pc3, 'p2'))
    late = {i: 0 for i in range(8)}
    dp = opt.get('dma', (1, 3, 5, 7))
    for i in (2, 4, 5, 6):
        sl = (i + 1) % 2
        at(i, dp[0] - 1, 'p2x', f"s_mov_b32 m0, s{S_LM[sl][0]}")
        at(i, dp[0], 'qk', kv(i + 1, 0))
        at(i, dp[1], 'qk', kv(i + 1, 1))
        at(i, dp[2], 'p2', f"s_mov_b32 m0, s{S_LM[sl][1]}")
        at(i, dp[2], 'qk', kv(i + 1, 2))
        at(i, dp[3], 'qk', kv(i + 1, 3))
    SF = opt.get('safe', 1)
    wits = (1, 3, 4, 5) if SF else (1, 2, 3, 4)
    for n, i in enumerate(wits):
        for k, p in enumerate((9, 11) if SF and i >= 4 else (11, 13)):
            at(i, p, 'p2', f"s_add_u32 m0, s{S_E}, {(2*n+k)*1024}")
            at(i, p, 'qk', f"buffer_load_dwordx4 v{V_WOA}, s[{S_WO}:{S_WO+3}], s55 offen lds")
            at(i, p, 'p1', "s_add_u32 s55, s55, 8192")
        late[i] += 2
    OW = opt.get('opw', 4 if SF else 2)
    if SF:
        for i in (OW, 5): at(i, 12, 'p1', "s_waitcnt vmcnt(2)")
    for k, so in enumerate((S_OA, S_OB)):
        at(5, 12 + k, 'p1', f"buffer_store_dwordx4 v[252:255], v{V_L16}, s[{S_O}:{S_O+3}], s{so} offen sc1")
    late[5] += 2
    if OW:
        at(OW, 12, 'p1', f"buffer_store_dwordx4 v[252:255], v{V_OW}, s[{S_OUT}:{S_OUT+3}], s{S_OW} offen sc1", f"s_add_u32 s{S_T0}, s{S_OW}, 16384")
        at(OW, 13, 'p1', f"buffer_store_dwordx4 v[252:255], v{V_OW}, s[{S_OUT}:{S_OUT+3}], s{S_T0} offen sc1")
        late[OW] += 2
    if opt.get('opr'):
        at(7, 3, 'qk', f"buffer_load_dwordx4 v[236:239], v{V_OW}, s[{S_OUT}:{S_OUT+3}], s{S_OW} offen", f"s_add_u32 s{S_T0}, s{S_OW}, 16384")
        at(7, 5, 'qk', f"buffer_load_dwordx4 v[236:239], v{V_OW}, s[{S_OUT}:{S_OUT+3}], s{S_T0} offen")
    if opt.get('early', 1):
        at(7, 3, 'qk', f"s_lshr_b32 s{S_E}, s{S_WAVE}, 2", f"s_lshr_b32 s{S_T0}, s{S_HP}, 3", f"s_lshl_b32 s{S_T0}, s{S_T0}, 2",
           f"s_and_b32 s{S_T1}, s{S_WAVE}, 3", f"s_add_u32 s{S_A}, s{S_T0}, s{S_T1}")
        at(7, 5, 'qk', f"s_lshl_b32 s{S_T0}, s{S_TB}, 3", f"s_add_u32 s{S_A}, s{S_A}, s{S_T0}", f"s_lshl_b32 s{S_B}, s{S_A}, 15",
           f"s_lshl_b32 s{S_T0}, s{S_E}, 14", f"s_add_u32 s{S_B}, s{S_B}, s{S_T0}")
        if opt.get('orot', 0):
            for k, (d, q) in enumerate(((S_A, 6), (S_C, 7), (S_D, 8), (S_IT, 9))):
                at(7, q, 'p1', f"s_add_u32 s{S_T1}, s{S_F}, {k}", f"s_and_b32 s{S_T1}, s{S_T1}, 3", f"s_lshl_b32 s{S_T1}, s{S_T1}, 12",
                   f"s_add_u32 s{d}, s{S_B}, s{S_T1}")
            at(7, 7, 'qk', f"s_lshl_b32 s{S_T0}, s{S_BR}, 7")
        else:
            at(7, 7, 'qk', f"s_mov_b32 s{S_A}, s{S_B}", f"s_add_u32 s{S_C}, s{S_B}, 4096", f"s_add_u32 s{S_D}, s{S_B}, 8192",
               f"s_add_u32 s{S_IT}, s{S_B}, 12288", f"s_lshl_b32 s{S_T0}, s{S_BR}, 7")
        at(7, 9, 'qk', "v_and_b32 v6, 15, v0", f"v_lshl_add_u32 v{V_CA}, v6, 3, s{S_T0}", f"v_lshlrev_b32 v{V_PA}, 10, v6")
        at(7, opt.get('certp', 13), 'qk', f"buffer_load_dword v236, v{V_CA}, s[{S_DBG}:{S_DBG+3}], 0 offen offset:4 sc1")
        EM = opt.get('earlym', 0)
        def early_probe():
            g.i(f"s_lshr_b32 s{S_T0}, s{S_HP}, 3")
            g.i(f"s_cmp_eq_u32 s{S_T0}, s{S_E}")
            g.i("s_cbranch_scc1 L_at_noprobe")
            g.i(f"buffer_load_dword v237, v{V_PA}, s[{S_O}:{S_O+3}], s{S_B} offen offset:1020 sc1")
            g.lab("L_at_noprobe")
        at(7, 11, 'qk', "v_mov_b32 v236, 0")
        if EM: at(7, 11, 'qk', "v_mov_b32 v237, -1")
        if EM == 1: at(7, 15, 'p1', early_probe)
        if EM == 2: at(7, 15, 'p1', f"buffer_load_dword v237, v{V_PA}, s[{S_O}:{S_O+3}], s{S_B} offen offset:1020 sc1")
    at(7, 1, 'qk', count)
    if opt.get('x_late0'): late = {i: 0 for i in range(8)}
    prio = opt.get('prio', {0: 3, 5: 2, 10: 1, 13: 0})
    for i in range(8):
        for p, v in prio.items():
            ii, q = (i, p - 1) if p else (i - 1, 15)
            if i == 7 and v == 0 and opt.get('pend', 2): continue
            if ii >= 0: at(ii, q, 'p1', f"s_setprio {v}")
    def emit(it, p, slot):
        for x in ev.pop((it, p, slot), []):
            x() if callable(x) else g.i(x)
    p2, pq, p1 = opt.get('pos', (1, 5, 10))
    for it in range(8):
        if opt.get('itst'):
            g.i("s_memtime s[98:99]")
            g.i("s_memrealtime s[100:101]")
            g.i("s_waitcnt lgkmcnt(0)")
            g.i(f"v_writelane_b32 v250, s98, {it}")
            g.i(f"v_writelane_b32 v250, s100, {it+9}") if it < 7 else None
        for p in range(2 * U):
            b, t = p % 2, p // 2
            S, So = V_S[b], V_S[1 - b]
            nt = (t + 1) % U
            sl = (it + (t == U - 1)) % 2
            VA = V_VB if sl else V_VA
            last = it == 7 and t == U - 1
            skip = last or (opt.get('x_half') and t % 2 == 0)
            for e in range(16):
                g.i(f"v_exp_f32 v{S+e}, v{S+e}")
                if e == p2:
                    tp = (p - 1) // 2
                    if it or p:
                        g.i(f"v_smfmac_f32_32x32x32_bf16 {vr(V_O[1-b],16)}, {vr(V_V[tp%2]+4,4)}, {vr(So+8,8)}, v{V_IDX}")
                    emit(it, p, 'p2x')
                    if b == 0:
                        if t == U - 1 and it < 7:
                            if it == 1 and not opt.get('safe', 1):
                                g.i(f"s_waitcnt vmcnt({late[it] + 8})")
                                g.i(f"s_cmp_eq_u32 s{S_PG}, 2")
                                g.i("s_cbranch_scc1 L_w8")
                                g.i(f"s_waitcnt vmcnt({late[it]})")
                                g.lab("L_w8")
                            else: g.i(f"s_waitcnt vmcnt({late[it]})")
                            if it == 0: g.st('chk1_ok')
                            g.i("s_barrier")
                        if not skip:
                            xm = opt.get('x_em') and (it or t)
                            if xm: g.i("s_mov_b64 exec, s[100:101]")
                            g.i(f"ds_read_b128 {vr(V_V[(t+1)%2],4)}, v{VA} offset:{nt*2048}")
                            if xm: g.i("s_mov_b64 exec, -1")
                    elif not last:
                        g.i("s_waitcnt lgkmcnt(1)")
                    emit(it, p, 'p2')
                if e == pq:
                    if not (last and b):
                        g.i(f"v_mfma_f32_32x32x16_bf16 {vr(So,16)}, {vr(V_K,4)}, {vr(V_Q[1-b],4)}, 0")
                    if b == 0 and not skip:
                        g.i(f"ds_read_b128 {vr(V_K,4)}, v{V_KA} offset:{sl*RING+nt*2048}")
                    if b == 0 and skip: g.i("s_nop 0")
                    emit(it, p, 'qk')
                if e == p1:
                    g.i(f"v_smfmac_f32_32x32x32_bf16 {vr(V_O[b],16)}, {vr(V_V[t%2],4)}, {vr(S,8)}, v{V_IDX}")
                    if b == 0 and last: pass
                    elif b == 0 and skip: pass
                    elif b == 0:
                        xm = opt.get('x_em') and (it or t)
                        if xm: g.i("s_mov_b64 exec, s[100:101]")
                        g.i(f"ds_read_b128 {vr(V_V[(t+1)%2]+4,4)}, v{VA} offset:{nt*2048+512}")
                        if xm: g.i("s_mov_b64 exec, -1")
                    elif not last:
                        g.i("s_waitcnt lgkmcnt(0)")
                    emit(it, p, 'p1')
    assert not ev, ev
    g.side = side
    g.lab("L_at_done")
    g.i("s_nop 1")
    g.i(f"v_smfmac_f32_32x32x32_bf16 {vr(V_O[1],16)}, {vr(V_V[1]+4,4)}, {vr(V_S[1]+8,8)}, v{V_IDX}")
    if opt.get('pend', 2) == 1: g.i("s_setprio 0")
    g.stamp(4)
    if opt.get('itst'):
        g.i("s_memtime s[98:99]")
        g.i("s_waitcnt lgkmcnt(0)")
        g.i(f"v_writelane_b32 v250, s98, 8")
    g.i(f"s_mov_b32 s{S_T0}, 0x2b800000")
    g.i(f"s_mov_b32 s{S_T1}, 0x53800000")
    g.i(f"s_mov_b32 s{S_T2}, 0x7f800000")
    for q in range(2):
        O = V_O[q]
        g.i(f"v_maximum3_f32 v6, abs(v{O}), abs(v{O+1}), abs(v{O+2})")
        g.i(f"v_maximum3_f32 v7, abs(v{O+3}), abs(v{O+4}), abs(v{O+5})")
        g.i(f"v_maximum3_f32 v6, v6, abs(v{O+6}), abs(v{O+7})")
        g.i(f"v_maximum3_f32 v6, v6, v7, v7")
        g.i(f"v_cmp_nle_f32 s[{S_M}:{S_M+1}], s{S_T0}, v{O+8}")
        g.i(f"v_cmp_nge_f32 s[{S_M+2}:{S_M+3}], s{S_T1}, v{O+8}")
        g.i(f"v_cmp_ngt_f32 vcc, s{S_T2}, v6")
        g.i(f"v_rcp_f32 v{V_S[0]+2*q}, v{O+8}")
        g.i(f"s_or_b64 s[{S_M}:{S_M+1}], s[{S_M}:{S_M+1}], s[{S_M+2}:{S_M+3}]")
        g.i(f"s_or_b64 s[{S_M}:{S_M+1}], s[{S_M}:{S_M+1}], vcc")
        g.i("s_branch L_fallback" if opt.get('force_fallback') else "s_cbranch_scc1 L_fallback")
    g.lab("L_at_store")
    for q in range(2):
        O = V_O[q]
        for r in range(0, 8, 2):
            g.i(f"v_pk_mul_f32 v[{O+r}:{O+r+1}], v[{O+r}:{O+r+1}], v[{V_S[0]+2*q}:{V_S[0]+2*q+1}] op_sel_hi:[1,0]")
        for r in range(4):
            g.i(f"v_cvt_pk_bf16_f32 v{O+r}, v{O+2*r}, v{O+2*r+1}")
        g.i(f"buffer_store_dwordx4 {vr(O,4)}, v{V_L16}, s[{S_O}:{S_O+3}], s{S_OB if q else S_OA} offen{opt.get('ost', ' sc1')}")

P_WO = 100
P_OF = 8
def outproj(g):
    opt = g.opt
    A0, A1 = 228, 72
    WA0, WA1, RA = 244, 245, 246
    NW = opt.get('nw', 6)
    def o_loads(fl=' sc1', rng=None):
        for s in (rng if rng is not None else range(NW)):
            so = (S_A, S_C, S_D, S_IT)[s // 4]
            g.i(f"buffer_load_dwordx4 {vr(P_OF+4*s,4)}, v{V_L16}, s[{S_O}:{S_O+3}], s{so} offen offset:{1024*(s%4)}{fl}")
    if opt.get('pend', 2) == 2: g.i("s_setprio 0")
    if opt.get('x_ack'): g.i("s_waitcnt vmcnt(0)")
    g.stamp(5)
    g.i("s_waitcnt vmcnt(2)")
    g.i("v_cmp_gt_u32 vcc, 8, v236")
    g.i(f"s_mov_b32 s{S_T3}, 0")
    if opt.get('earlym', 0):
        g.i(f"v_cmp_eq_u32 s[{S_M}:{S_M+1}], -1, v237")
        g.i("s_nop 0")
        g.i(f"s_or_b64 s[{S_M}:{S_M+1}], s[{S_M}:{S_M+1}], vcc")
    if opt.get('earlym', 0):
        g.i("s_cbranch_scc1 L_op_later")
        o_loads()
        g.lab("L_op_later")
    g.i(f"s_lshl_b32 s{S_T0}, s{S_E}, 15")
    g.i(f"s_add_u32 s{S_T0}, s{S_T0}, {L_WO}")
    g.i("v_lshrrev_b32 v6, 5, v0")
    g.i("v_bfe_u32 v7, v0, 2, 2")
    g.i("v_lshl_add_u32 v6, v6, 2, v7")
    g.i(f"v_lshl_add_u32 v6, v6, 7, s{S_T0}")
    g.i("v_bfe_u32 v7, v0, 3, 2")
    g.i("v_and_b32 v2, 1, v7")
    g.i("v_lshl_add_u32 v6, v2, 6, v6")
    g.i("v_lshrrev_b32 v7, 1, v7")
    g.i("v_lshl_add_u32 v6, v7, 5, v6")
    g.i("v_and_b32 v7, 3, v0")
    g.i(f"v_lshl_add_u32 v6, v7, 3, v6")
    g.i(f"s_lshl_b32 s{S_T0}, s{S_E}, 6")
    g.i(f"v_xor_b32 v{WA0}, s{S_T0}, v6")
    g.i(f"v_xor_b32 v{WA1}, 64, v{WA0}")
    for s in range(16):
        if s and s % 3 == 0: g.i("s_waitcnt lgkmcnt(2)")
        for f in range(2):
            for i in range(2):
                g.i(f"ds_read_b64_tr_b16 {vr(P_WO+8*s+4*f+2*i,2)}, v{WA1 if f else WA0} offset:{s*2048+i*1024}")
    g.i(f"s_lshl_b32 s{S_T0}, s{S_WAVE}, 12")
    g.i(f"v_add_u32 v{RA}, s{S_T0}, v{V_L16}")
    g.i(f"s_and_b32 s{S_T0}, s{S_WAVE}, 3")
    g.i(f"s_lshl_b32 s{S_T0}, s{S_T0}, 12")
    g.i(f"s_add_u32 s{S_T0}, s{S_T0}, {RING}")
    g.i("v_and_b32 v6, 31, v0")
    g.i(f"v_lshl_add_u32 v6, v6, 7, s{S_T0}")
    g.i("v_lshrrev_b32 v7, 5, v0")
    g.i(f"v_lshl_add_u32 v7, s{S_E}, 2, v7")
    g.i("v_and_b32 v91, 7, v0")
    g.i("v_xor_b32 v7, v7, v91")
    g.i("v_lshl_add_u32 v88, v7, 4, v6")
    g.i("v_xor_b32 v89, 32, v88")
    g.i("v_lshrrev_b32 v6, 3, v0")
    g.i("v_xor_b32 v7, v6, v91")
    g.i(f"v_lshl_add_u32 v6, v6, 7, s{S_T0}")
    g.i("v_lshl_add_u32 v6, v7, 4, v6")
    g.i(f"v_lshl_add_u32 v90, s{S_E}, 11, v6")
    g.st('t_tr')
    if opt.get('earlym', 0):
        g.i(f"s_cmp_eq_u64 s[{S_M}:{S_M+1}], 0")
        g.i("s_cbranch_scc1 L_op_mm")
    g.i("s_cbranch_vccz L_spin_o")
    g.lab("L_spin_c")
    g.i(f"buffer_load_dword v5, v{V_CA}, s[{S_DBG}:{S_DBG+3}], 0 offen offset:4 sc1")
    g.i(f"s_add_u32 s{S_T3}, s{S_T3}, 1")
    g.i(f"s_cmp_ge_u32 s{S_T3}, {SPIN_MAX}")
    g.i("s_cbranch_scc1 L_spin_o")
    g.i("s_waitcnt vmcnt(0)")
    g.i("v_cmp_gt_u32 vcc, 8, v5")
    g.i("s_cbranch_vccnz L_spin_c")
    g.lab("L_spin_o")
    g.i(f"buffer_load_dword v3, v{V_PA}, s[{S_O}:{S_O+3}], s{S_B} offen offset:1020{opt.get('pfl', ' sc1')}")
    g.i(f"s_add_u32 s{S_T3}, s{S_T3}, 1")
    g.i(f"s_cmp_ge_u32 s{S_T3}, {SPIN_MAX}")
    g.i("s_cbranch_scc1 L_spun_o")
    g.i("s_waitcnt vmcnt(0)")
    g.i("v_cmp_eq_u32 vcc, -1, v3")
    if opt.get('sleep'): g.i(f"s_cbranch_vccz L_spun_o"); g.i(f"s_sleep {opt['sleep']}"); g.i("s_branch L_spin_o")
    g.i("s_cbranch_vccnz L_spin_o")
    g.lab("L_spun_o")
    g.st('t_ok')
    if 'ofl' in opt:
        g.i(f"s_cmp_lg_u32 s{S_PG}, 99")
        g.i(f"s_mov_b32 s{S_PG}, 99")
        g.i("s_cbranch_scc1 L_op_first")
        o_loads()
        g.i("s_branch L_op_mm")
        g.lab("L_op_first")
        o_loads(opt['ofl'])
    else:
        o_loads()
    g.lab("L_op_mm")
    g.stamp(6)
    g.i("v_mov_b32 v3, 0")
    g.i("s_waitcnt lgkmcnt(0)")
    for s in range(16):
        g.i(f"s_waitcnt vmcnt({min(NW - 1, 15 - s)})")
        if s + NW < 16: o_loads(rng=[s + NW])
        if s == 0: g.st('t_f0')
        if s == 15: g.st('t_f15')
        for f, A in ((1, A1), (0, A0)):
            g.i(f"v_mfma_f32_32x32x16_bf16 {vr(A,16)}, {vr(P_WO+8*s+4*f,4)}, {vr(P_OF+4*s,4)}, {vr(A,16) if s else 0}")
            g.i(f"v_max3_u32 v3, v3, v{P_OF+4*s+2*f}, v{P_OF+4*s+2*f+1}")
    g.i("v_cmp_eq_u32 vcc, -1, v3")
    g.i(f"s_cmp_ge_u32 s{S_T3}, {SPIN_MAX}")
    g.i("s_cbranch_scc1 L_op_go")
    g.i("s_cbranch_vccnz L_spin_o")
    g.lab("L_op_go")
    g.i("s_nop 5")
    for r in range(4):
        g.i(f"ds_write_b128 v{RA}, {vr(A1+4*r,4)} offset:{1024*r}")
    g.i("s_waitcnt lgkmcnt(0)")
    g.i(f"v_xor_b32 v{RA}, 16384, v{RA}")
    g.st('t_b9a')
    barrier_unless_dry(g, "b9")
    g.st('t_b9')
    for r in range(4):
        g.i(f"ds_read_b128 {vr(P_OF+4*r,4)}, v{RA} offset:{1024*r}")
    for r in range(4):
        g.i(f"s_waitcnt lgkmcnt({3-r})")
        for k in range(4):
            g.i(f"v_add_f32 v{A0+4*r+k}, v{A0+4*r+k}, v{P_OF+4*r+k}")
        for k in range(2):
            g.i(f"v_cvt_pk_bf16_f32 v{24+2*r+k}, v{A0+4*r+2*k}, v{A0+4*r+2*k+1}")
        if r % 2:
            g.i("s_nop 1")
            g.i(f"v_permlane32_swap_b32 v{24+2*r-2}, v{24+2*r}")
            g.i(f"v_permlane32_swap_b32 v{24+2*r-1}, v{24+2*r+1}")
            g.i(f"ds_write_b128 v{88+r//2}, {vr(24+2*r-2,4)}")
    if True:
        g.i(f"s_add_u32 s{S_T0}, s{S_OW}, 16384")
        g.i("s_waitcnt lgkmcnt(0)")
        barrier_unless_dry(g, "b10")
        g.i("ds_read_b128 v[24:27], v90")
        g.i("ds_read_b128 v[28:31], v90 offset:1024")
        g.i("s_waitcnt lgkmcnt(1)")
        g.i(f"buffer_store_dwordx4 v[24:27], v{V_OW}, s[{S_OUT}:{S_OUT+3}], s{S_OW} offen{opt.get('outs','')}")
        g.i("s_waitcnt lgkmcnt(0)")
        g.i(f"buffer_store_dwordx4 v[28:31], v{V_OW}, s[{S_OUT}:{S_OUT+3}], s{S_T0} offen{opt.get('outs','')}")
    dry_exit(g)
    if g.diag:
        g.i("s_waitcnt vmcnt(0)")
        g.stamp(7)
        g.i("s_waitcnt lgkmcnt(0)")
        if g.diag == 3:
            a_, b_, K = opt['leak']
            if opt.get('leakw'):
                g.i(f"s_cmp_lt_u32 s{S_WAVE}, 4")
                g.i("s_cbranch_scc1 L_end")
            elif a_ in (1, 2) or b_ in (1, 2):
                g.i(f"s_cmp_ge_u32 s{S_WAVE}, 4")
                g.i("s_cbranch_scc1 L_end")
            if opt.get('leakc'):
                g.i(f"s_sub_u32 s{S_T0}, s{64+4*b_}, s{64+4*a_}")
                g.i(f"s_lshr_b32 s{S_T0}, s{S_T0}, 4")
            else:
                g.i(f"s_sub_u32 s{S_T0}, s{66+4*b_}, s{66+4*a_}")
            g.i(f"s_mul_i32 s{S_T0}, s{S_T0}, {K}")
            g.lab("L_leak")
            g.i("s_memrealtime s[98:99]")
            g.i("s_waitcnt lgkmcnt(0)")
            g.i(f"s_sub_u32 s{S_T1}, s98, s{66+4*7}")
            g.i(f"s_cmp_lt_u32 s{S_T1}, s{S_T0}")
            g.i("s_cbranch_scc1 L_leak")
            g.i("s_endpgm")
        if g.diag == 2:
            g.i(f"s_cmp_ge_u32 s{S_WAVE}, 4")
            g.i("s_cbranch_scc1 L_end")
            g.i("s_mov_b64 exec, 1")
            for k in range(1, 8):
                g.i(f"s_sub_u32 s{S_T0}, s{66+4*k}, s66")
                g.i(f"v_mov_b32 v6, s{S_T0}")
                g.i(f"v_mov_b32 v7, {8*k+4}")
                g.i(f"buffer_atomic_umax v6, v7, s[{S_DBG}:{S_DBG+3}], 0 offen sc1")
            g.i(f"s_sub_u32 s{S_T0}, s{64+4*4}, s{64+4*3}")
            g.i(f"v_mov_b32 v6, s{S_T0}")
            g.i(f"v_mov_b32 v7, 4")
            g.i(f"buffer_atomic_umax v6, v7, s[{S_DBG}:{S_DBG+3}], 0 offen sc1")
            g.i("s_endpgm")
        g.i(f"s_lshl_b32 s{S_T0}, s2, 3")
        g.i(f"s_add_u32 s{S_T0}, s{S_T0}, s{S_WAVE}")
        g.i(f"s_lshl_b32 s{S_T0}, s{S_T0}, 7")
        g.i(f"s_add_u32 s{S_T0}, s{S_T0}, {WS_STAMP}")
        srd(g.a, S_X, 96, 128, f"s{S_T0}")
        for k in range(32):
            g.i(f"v_mov_b32 v{36+k}, s{64+k}")
        g.i("v_mov_b32 v6, 0")
        for k in range(8):
            g.i(f"buffer_store_dwordx4 {vr(36+4*k,4)}, v6, s[{S_X}:{S_X+3}], 0 offen offset:{16*k}")
        if opt.get('itst'):
            g.i(f"s_add_u32 s{S_T0}, s{S_T0}, {1<<20}")
            srd(g.a, S_X, 96, 64, f"s{S_T0}")
            g.i("v_lshlrev_b32 v6, 2, v0")
            g.i(f"buffer_store_dword v250, v6, s[{S_X}:{S_X+3}], 0 offen")
    g.lab("L_end")
    g.i("s_endpgm")

def fallback(g):
    C = [100, 116]; M = [132, 133]; GV = 134
    g.lab("L_fallback")
    g.i(f"s_lshr_b32 s{S_T0}, s{S_WAVE}, 2")
    g.i(f"s_lshl_b32 s{S_T0}, s{S_T0}, 17")
    g.i(f"v_mov_b32 v{M[0]}, 0xff800000")
    g.i(f"v_mov_b32 v{M[1]}, 0xff800000")
    g.i(f"s_mov_b32 s{S_T1}, s{S_T0}")
    g.i(f"s_add_u32 s{S_T2}, s{S_T0}, 131072")
    g.lab("L_fb_max")
    g.i(f"buffer_load_dwordx4 {vr(V_K,4)}, v{V_L16}, s[{S_KV}:{S_KV+3}], s{S_T1} offen sc1")
    g.i(f"s_add_u32 s{S_T1}, s{S_T1}, 2048")
    g.i("s_waitcnt vmcnt(0)")
    for q in range(2):
        g.i(f"v_mfma_f32_32x32x16_bf16 {vr(V_S[q],16)}, {vr(V_K,4)}, {vr(V_Q[q],4)}, 0")
    g.i("s_nop 15")
    for q in range(2):
        for r in range(0, 16, 2):
            g.i(f"v_max3_f32 v{M[q]}, v{M[q]}, v{V_S[q]+r}, v{V_S[q]+r+1}")
    g.i(f"s_cmp_lt_u32 s{S_T1}, s{S_T2}")
    g.i("s_cbranch_scc1 L_fb_max")
    for q in range(2):
        g.i(f"v_mov_b32 v6, v{M[q]}")
        g.i(f"v_mov_b32 v7, v{M[q]}")
        g.i("s_nop 1")
        g.i("v_permlane32_swap_b32 v6, v7")
        g.i("s_nop 1")
        g.i("v_max_f32 v6, v6, v7")
        for r in range(16):
            g.i(f"v_sub_f32 v{C[q]+r}, 0, v6")
            g.i(f"v_mov_b32 v{V_O[q]+r}, 0")
    g.i("v_and_b32 v6, 15, v0")
    g.i("v_lshlrev_b32 v6, 4, v6")
    g.i("v_lshrrev_b32 v7, 5, v0")
    g.i(f"v_lshl_add_u32 v{GV}, v7, 8, v6")
    for r in range(8):
        g.i(f"v_mov_b32 v{V_V[0]+r}, 0x3f803f80")
    g.i(f"s_mov_b32 s{S_T1}, s{S_T0}")
    g.i(f"s_mov_b32 s{S_M}, 0xffff")
    g.i(f"s_mov_b32 s{S_M+1}, 0xffff")
    g.lab("L_fb_pv")
    g.i(f"buffer_load_dwordx4 {vr(V_K,4)}, v{V_L16}, s[{S_KV}:{S_KV+3}], s{S_T1} offen sc1")
    g.i(f"s_mov_b64 exec, s[{S_M}:{S_M+1}]")
    g.i(f"buffer_load_dwordx4 {vr(V_V[0],4)}, v{GV}, s[{S_KV}:{S_KV+3}], s{S_T1} offen offset:1024 sc1")
    g.i(f"buffer_load_dwordx4 {vr(V_V[0]+4,4)}, v{GV}, s[{S_KV}:{S_KV+3}], s{S_T1} offen offset:1536 sc1")
    g.i("s_mov_b64 exec, -1")
    g.i(f"s_add_u32 s{S_T1}, s{S_T1}, 2048")
    g.i("s_waitcnt vmcnt(0)")
    for q in range(2):
        g.i(f"v_mfma_f32_32x32x16_bf16 {vr(V_S[q],16)}, {vr(V_K,4)}, {vr(V_Q[q],4)}, {vr(C[q],16)}")
    g.i("s_nop 15")
    for q in range(2):
        for r in range(16):
            g.i(f"v_exp_f32 v{V_S[q]+r}, v{V_S[q]+r}")
    g.i("s_nop 3")
    for q in range(2):
        for h in range(2):
            g.i(f"v_smfmac_f32_32x32x32_bf16 {vr(V_O[q],16)}, {vr(V_V[0]+4*h,4)}, {vr(V_S[q]+8*h,8)}, v{V_IDX}")
    g.i("s_nop 15")
    g.i(f"s_cmp_lt_u32 s{S_T1}, s{S_T2}")
    g.i("s_cbranch_scc1 L_fb_pv")
    for q in range(2):
        g.i(f"v_rcp_f32 v{V_S[0]+2*q}, v{V_O[q]+8}")
    g.i("s_nop 1")
    g.i("s_branch L_at_store")

HEADER = open('cdna_kernels/' + NAME + '.s.ref').read().split('; Override launch')[0]

DOC = """;
; One persistent launch, 256 workgroups (one per CU) x 8 waves.  Workgroup = (branch, head pair hp, block tb of 256 tokens).
;  1. QKV projection of the 256 tokens x 96 columns (q,k,v of the two heads).  Waves 4-7 stream x and wqkv into a 3-slot
;     O^T += [V^T; 1] P^T with v_smfmac_f32_32x32x32_bf16 whose 2:4 index picks the upper halves of the fp32 p registers
;     (bf16 p without a pack instruction; the row of ones gives the softmax denominator from the same p).
;     first filled with an all-ones pattern, a consumer accepts a fragment when no word holds the pattern any more.
; Generated by a Python script (register maps and schedules are spelled out below)."""

def generate(opt={}):
    global WS_KV, WS_O, WS_FLAG
    off = opt.get('wsoff', 0) << 20
    WS_KV, WS_O, WS_FLAG = (4 << 20) + off, (12 << 20) + off, (16 << 20) + off
    g = G(opt)
    name = NAME + "_kernel"
    g.a(HEADER.rstrip())
    g.a(f"; @launch grid=(256,1,1) block=(512,1,1) lds={LDS_TOTAL}")
    g.a(DOC)
    g.a('.amdgcn_target "amdgcn-amd-amdhsa--gfx950"')
    entry(g, name)
    if opt.get('lfirst', 1): loader(g)
    compute(g)
    attention(g)
    outproj(g)
    if not opt.get('lfirst', 1): loader(g)
    g.lab("L_code_end")
    for tag, body in g.side:
        g.lab(f"L_ol_{tag}")
        body()
        g.i(f"s_branch L_olr_{tag}")
    fallback(g)
    kernel_desc(g.a, name, NVGPR, 256, 102)
    return g.a.text()

if __name__ == "__main__":
    import sys
    opt = eval(sys.argv[2]) if len(sys.argv) > 2 else {}
    open(sys.argv[1], 'w').write(generate(opt))
```

```python
import math, struct
from common import *

WS_FLAG = 16 << 20
SLOT = 45056; SLOT_W = 32768
RING = 32768
L_WO = 65536
L_CONST = 135168
L_QX = 155648
LDS_TOTAL = 163840
S_X, S_W, S_WO, S_KV, S_O, S_FL, S_DBG, S_OUT = 8, 12, 16, 20, 24, 28, 32, 36
S_WAVE, S_BR, S_HP, S_TB, S_IT, S_T0, S_T1, S_T2, S_T3 = 40, 41, 42, 43, 44, 45, 46, 47, 48
S_A, S_B, S_C, S_D, S_E, S_F = 49, 50, 51, 52, 53, 54
S_G1, S_G2, S_PG = 58, 59, 60
KG, KL, VG, VL, QL, KVT = 244, 245, 247, 248, 249, 204
S_M = 56
V_L16, V_KA, V_VA, V_VX, V_IDX, V_T0, V_T1 = 1, 2, 3, 4, 5, 6, 7
V_Q = [8, 12]; V_K = 16; V_V = [20, 28]; V_S = [36, 52]; V_O = [68, 84]
V_F = 241
V_FA = 242
V_OW = 251
V_CA, V_PA = 248, 249
V_WOA = 243
V_ACC = 100
V_FR = [196, 216]
V_XA = 236; V_WA = 240
NVGPR = 256
QSCALE = struct.unpack('<I', struct.pack('<f', 0.25 * math.log2(math.e)))[0]
SPIN_MAX = 1 << 20
S_DRY = 3

class G:
    def __init__(self, opt):
        self.a = Asm(); self.opt = opt; self.diag = opt.get('diag', 0)
    def i(self, s): self.a.i(s)
    def lab(self, s): self.a.label(s)
    def st(self, name):
        m = self.opt.get('st', {})
        if name in m: self.stamp(m[name], True)
    def stamp(self, k, forced=False):
        if k in self.opt.get('st', {}).values() and not forced: return
        if self.diag:
            self.i(f"s_memtime s[{64+4*k}:{65+4*k}]")
            self.i(f"s_memrealtime s[{66+4*k}:{67+4*k}]")

def dry_exit(g, label="L_dry_ret"):
    if g.opt.get('dry', 1):
        g.i(f"s_cmp_lg_u32 s{S_DRY}, 0")
        g.i(f"s_cbranch_scc1 {label}")

def barrier_unless_dry(g, tag):
    dry_exit(g, f"L_nb_{tag}")
    g.i("s_barrier")
    g.lab(f"L_nb_{tag}")

def spin(g, tag, load, want, nlanes_mask=None):
    g.i(f"s_mov_b32 s{S_T3}, 0")
    g.lab(f"L_spin_{tag}")
    g.i(load)
    g.i(f"s_add_u32 s{S_T3}, s{S_T3}, 1")
    g.i("s_waitcnt vmcnt(0)")
    g.i(f"v_cmp_{'gt' if want > 1 else 'ne'}_u32 vcc, {want}, v{V_F}")
    g.i(f"s_cmp_ge_u32 s{S_T3}, {SPIN_MAX}")
    g.i(f"s_cbranch_scc1 L_spun_{tag}")
    g.i(f"s_cbranch_vccnz L_spin_{tag}")
    g.lab(f"L_spun_{tag}")

def entry(g, name):
    a = g.a
    kernel_head(a, name)
    PF = g.opt.get('cpf', 4)
    if PF in (2, 3):
        g.i("s_getpc_b64 s[16:17]")
    if PF == 1:
        g.i("s_getpc_b64 s[8:9]")
        g.i("v_lshlrev_b32 v6, 7, v0")
        g.i("s_mov_b32 s10, L_code_end-" + name + "-4")
        g.i("s_mov_b32 s11, 0x20000")
    if PF == 4:
        g.i("s_getpc_b64 s[8:9]")
        g.i("v_lshlrev_b32 v6, 7, v0")
        g.i("s_lshl_b32 s4, s2, 7")
        g.i("s_and_b32 s4, s4, 0x7c00")
        g.i("s_add_u32 s10, s4, 1024")
        g.i("s_min_u32 s10, s10, L_code_end-" + name + "-4")
        g.i("s_mov_b32 s11, 0x20000")
    g.i("s_cmp_ge_u32 s2, 256")
    g.i("s_cbranch_scc1 L_end")
    if PF == 1:
        g.i("buffer_load_dword v246, v6, s[8:11], 0 offen")
    if PF == 4:
        g.i("buffer_load_dword v246, v6, s[8:11], s4 offen")
    g.stamp(0)
    g.i(f"s_mov_b32 s{S_DRY}, 0")
    g.i(f"s_bfe_u32 s{S_BR}, s2, 0x10002")
    g.i(f"s_mul_i32 s{S_T0}, s{S_BR}, 24")
    g.i(f"s_load_dwordx4 s[{S_M}:{S_M+3}], s[0:1], s{S_T0}")
    g.i(f"s_load_dwordx2 s[{S_M+4}:{S_M+5}], s[0:1], s{S_T0} offset:16")
    g.i("s_load_dwordx4 s[4:7], s[0:1], 48")
    g.i(f"s_load_dwordx2 s[{S_M+6}:{S_M+7}], s[0:1], 64")
    g.i("v_lshrrev_b32 v6, 6, v0")
    g.i("v_and_b32 v0, 63, v0")
    g.i(f"v_readfirstlane_b32 s{S_WAVE}, v6")
    g.i(f"v_lshlrev_b32 v{V_L16}, 4, v0")
    g.i(f"s_bfe_u32 s{S_HP}, s2, 0x10001")
    g.i(f"s_lshl_b32 s{S_HP}, s{S_HP}, 3")
    g.i(f"s_bfe_u32 s{S_T0}, s2, 0x30003")
    g.i(f"s_add_u32 s{S_HP}, s{S_HP}, s{S_T0}")
    g.i(f"s_and_b32 s{S_TB}, s2, 1")
    g.i(f"s_lshl_b32 s{S_TB}, s{S_TB}, 2")
    g.i(f"s_lshr_b32 s{S_T0}, s2, 6")
    g.i(f"s_add_u32 s{S_TB}, s{S_TB}, s{S_T0}")
    g.i(f"s_lshl_b32 s{S_T0}, s{S_TB}, 18")
    g.i(f"s_lshl_b32 s{S_T1}, s{S_BR}, 4")
    g.i(f"s_add_u32 s{S_T1}, s{S_T1}, s{S_HP}")
    g.i(f"s_lshl_b32 s{S_T2}, s{S_T1}, 18")
    g.i(f"s_add_u32 s{S_T2}, s{S_T2}, {WS_KV}")
    g.i(f"s_lshl_b32 s{S_T3}, s{S_BR}, 21")
    g.i(f"s_add_u32 s{S_T3}, s{S_T3}, {WS_O}")
    if g.opt.get('lfirst', 1):
        g.i(f"s_cmp_lt_u32 s{S_WAVE}, 4")
        g.i("s_cbranch_scc1 L_compute")
    else:
        g.i(f"s_cmp_ge_u32 s{S_WAVE}, 4")
        g.i("s_cbranch_scc1 L_loader")

def early_srds(g):
    g.i("s_waitcnt lgkmcnt(0)")
    g.st('karg')
    srd(g.a, S_X, S_M, 256 * 1024, f"s{S_T0}")
    srd(g.a, S_W, S_M + 2, 512 * 1536 * 2)

def late_srds(g):
    a = g.a
    srd(a, S_WO, S_M + 4, 512 * 512 * 2)
    srd(a, S_KV, S_M + 6, 256 * 1024, f"s{S_T2}")
    srd(a, S_O, S_M + 6, 2 << 20, f"s{S_T3}")
    srd(a, S_FL, S_M + 6, 4096, str(WS_FLAG))
    srd(a, S_DBG, 6, 256)
    srd(a, S_OUT, 4, 2048 * 1024 * 2)
    if g.diag:
        g.i(f"s_mov_b32 s96, s{S_M+6}")
        g.i(f"s_mov_b32 s97, s{S_M+7}")

def attn_consts(g):
    g.i(f"s_lshr_b32 s{S_T0}, s{S_WAVE}, 2")
    g.i(f"s_lshl_b32 s{S_T0}, s{S_T0}, 14")
    g.i(f"v_add_u32 v{V_KA}, s{S_T0}, v{V_L16}")
    g.i(f"v_and_b32 v{V_T0}, 15, v0")
    g.i(f"v_lshlrev_b32 v{V_T0}, 4, v{V_T0}")
    g.i(f"v_lshrrev_b32 v{V_T1}, 5, v0")
    g.i(f"v_lshl_add_u32 v{V_T0}, v{V_T1}, 8, v{V_T0}")
    g.i(f"s_add_u32 s{S_T0}, s{S_T0}, 1024")
    g.i(f"v_add_u32 v{V_VA}, s{S_T0}, v{V_T0}")
    g.i(f"v_and_b32 v{V_T0}, 31, v0")
    g.i(f"v_subrev_u32 v{V_T1}, 20, v{V_T0}")
    g.i(f"v_cmp_gt_u32 vcc, 8, v{V_T1}")
    g.i(f"v_mov_b32 v{V_T1}, {L_CONST+16}")
    g.i(f"v_mov_b32 v{V_VX}, {L_CONST+16+64}")
    g.i(f"v_cndmask_b32 v{V_T1}, v{V_T1}, v{V_VX}, vcc")
    g.i(f"v_and_b32 v{V_VX}, {31 if g.opt.get('x_one') else 27}, v0")
    g.i(f"v_cmp_eq_u32 vcc, 16, v{V_VX}")
    g.i(f"v_subrev_u32 v{V_VX}, 16, v{V_T1}")
    g.i("s_nop 0")
    g.i(f"v_cndmask_b32 v{V_T1}, v{V_T1}, v{V_VX}, vcc")
    g.i(f"v_cmp_gt_u32 vcc, 16, v{V_T0}")
    g.i(f"v_mov_b32 v{V_T0}, {RING}")
    g.i(f"v_mov_b32 v{V_IDX}, 0xdddd")
    g.i(f"v_cndmask_b32 v{V_VA}, v{V_T1}, v{V_VA}, vcc")
    g.i(f"v_cndmask_b32 v{V_VX}, 0, v{V_T0}, vcc")
    g.i(f"v_add_u32 v{V_VX}, v{V_VX}, v{V_VA}")
    g.i("v_lshrrev_b32 v7, 3, v0")
    g.i("v_lshlrev_b32 v7, 11, v7")
    g.i(f"v_and_b32 v{V_OW}, 7, v0")
    g.i(f"v_lshl_add_u32 v{V_OW}, v{V_OW}, 4, v7")
    g.i(f"v_mov_b64 v[{V_CA}:{V_PA}], 0")
    g.i(f"v_mov_b32 v{KG}, 0")
    g.i(f"v_mov_b32 v{VG}, 0")
    g.i("v_mov_b64 v[252:253], -1")
    g.i("v_mov_b64 v[254:255], -1")
    for r in range(0, 32, 2):
        g.i(f"v_mov_b64 v[{V_O[0]+r}:{V_O[0]+r+1}], 0")
    g.i(f"s_lshl_b32 s{S_T0}, s{S_BR}, 4")
    g.i(f"s_add_u32 s{S_T0}, s{S_T0}, s{S_HP}")
    g.i(f"s_lshl_b32 s{S_T0}, s{S_T0}, 7")
    g.i(f"v_and_b32 v6, 31, v0")
    g.i(f"v_lshl_add_u32 v{V_FA}, v6, 2, s{S_T0}")
    g.i(f"v_lshrrev_b32 v{V_T0}, 2, v0")
    g.i(f"v_and_b32 v{V_T0}, 4, v{V_T0}")
    g.i(f"v_and_b32 v{V_T1}, 7, v0")
    g.i(f"v_xor_b32 v{V_T0}, v{V_T0}, v{V_T1}")
    g.i(f"v_lshlrev_b32 v{V_T0}, 4, v{V_T0}")
    g.i(f"v_lshrrev_b32 v{V_T1}, 3, v0")
    g.i(f"v_lshl_add_u32 v{V_WOA}, v{V_T1}, 10, v{V_T0}")

def consts(g):
    g.i(f"s_cmp_lg_u32 s{S_WAVE}, 4")
    g.i("s_cbranch_scc1 L_ld_noconst")
    g.i("v_lshrrev_b32 v6, 2, v0")
    g.i("v_and_b32 v7, 1, v6")
    g.i("v_lshlrev_b32 v7, 9, v7")
    g.i("v_lshrrev_b32 v6, 1, v6")
    g.i("v_lshl_add_u32 v7, v6, 11, v7")
    g.i("v_and_b32 v6, 1, v0")
    g.i("v_lshl_add_u32 v7, v6, 4, v7")
    g.i("v_cmp_eq_u32 vcc, 0, v6")
    g.i("v_and_b32 v6, 2, v0")
    g.i("v_lshl_add_u32 v7, v6, 5, v7")
    g.i("v_mov_b32 v6, 0x3f803f80")
    g.i(f"v_add_u32 v7, {L_CONST}, v7")
    g.i("v_cndmask_b32 v108, 0, v6, vcc")
    g.i("v_cndmask_b32 v109, 0, v6, vcc")
    g.i("v_cndmask_b32 v110, 0, v6, vcc")
    g.i("v_cndmask_b32 v111, 0, v6, vcc")
    g.i("ds_write_b128 v7, v[108:111]")
    g.lab("L_ld_noconst")

def loader(g):
    VX, VW, VT = 100, 104, 112
    LEAD = g.opt.get('lead', 0)
    g.lab("L_loader")
    g.i(f"s_sub_u32 s{S_A}, s{S_WAVE}, 4")
    S_CH, S_TX = S_F, 55
    RM = g.opt.get('rot', 7)
    if RM == 1:
        g.i(f"s_lshl_b32 s{S_CH}, s{S_TB}, 1")
        g.i(f"s_lshr_b32 s{S_T1}, s{S_TB}, 2")
        g.i(f"s_add_u32 s{S_CH}, s{S_CH}, s{S_T1}")
        g.i(f"s_and_b32 s{S_CH}, s{S_CH}, 7")
    elif RM == 2:
        g.i(f"s_mov_b32 s{S_CH}, s{S_TB}")
    elif RM == 7:
        g.i(f"s_and_b32 s{S_T1}, s{S_HP}, 1")
        g.i(f"s_lshl_b32 s{S_T1}, s{S_T1}, 2")
        g.i(f"s_add_u32 s{S_CH}, s{S_TB}, s{S_T1}")
        g.i(f"s_and_b32 s{S_CH}, s{S_CH}, 7")
    elif RM == 8:
        g.i(f"s_lshl_b32 s{S_CH}, s{S_TB}, 1")
        g.i(f"s_bfe_u32 s{S_T1}, s{S_HP}, 0x10001")
        g.i(f"s_add_u32 s{S_CH}, s{S_CH}, s{S_T1}")
        g.i(f"s_and_b32 s{S_CH}, s{S_CH}, 7")
    elif RM == 9:
        g.i(f"s_lshl_b32 s{S_CH}, s{S_TB}, 1")
        g.i(f"s_and_b32 s{S_T1}, s{S_HP}, 3")
        g.i(f"s_add_u32 s{S_CH}, s{S_CH}, s{S_T1}")
        g.i(f"s_and_b32 s{S_CH}, s{S_CH}, 7")
    elif RM == 10:
        g.i(f"s_and_b32 s{S_CH}, s2, 7")
    elif RM == 11:
        g.i(f"s_and_b32 s{S_CH}, s2, 3")
        g.i(f"s_lshl_b32 s{S_CH}, s{S_CH}, 1")
        g.i(f"s_add_u32 s{S_CH}, s{S_CH}, s{S_BR}")
    elif RM == 0:
        g.i(f"s_mov_b32 s{S_CH}, 0")
    elif RM == 6:
        g.i(f"s_lshl_b32 s{S_CH}, s{S_TB}, 1")
        g.i(f"s_add_u32 s{S_CH}, s{S_CH}, s{S_HP}")
        g.i(f"s_and_b32 s{S_CH}, s{S_CH}, 7")
    elif RM == 4:
        g.i(f"s_lshl_b32 s{S_CH}, s{S_TB}, 1")
        g.i(f"s_add_u32 s{S_CH}, s{S_CH}, s{S_HP}")
        g.i(f"s_and_b32 s{S_CH}, s{S_CH}, 3")
        g.i(f"s_lshl_b32 s{S_CH}, s{S_CH}, 1")
    elif RM == 5:
        g.i(f"s_add_u32 s{S_CH}, s{S_TB}, s{S_HP}")
        g.i(f"s_and_b32 s{S_CH}, s{S_CH}, 3")
        g.i(f"s_lshl_b32 s{S_CH}, s{S_CH}, 1")
    elif RM == 3:
        g.i(f"s_lshl_b32 s{S_CH}, s{S_TB}, 1")
        g.i(f"s_and_b32 s{S_T1}, s{S_HP}, 1")
        g.i(f"s_add_u32 s{S_CH}, s{S_CH}, s{S_T1}")
        g.i(f"s_and_b32 s{S_CH}, s{S_CH}, 7")
    if g.opt.get('pf') or LEAD: pass
    if g.opt.get('pf') or LEAD:
        g.i(f"v_lshlrev_b32 v{VT}, 10, v0")
        g.i(f"s_and_b32 s{S_TX}, s{S_HP}, 7")
        g.i(f"s_lshl_b32 s{S_TX}, s{S_TX}, 2")
        g.i(f"s_add_u32 s{S_TX}, s{S_TX}, s{S_A}")
        g.i(f"s_lshl_b32 s{S_TX}, s{S_TX}, 13")
    PF = g.opt.get('pf', 0)
    NT = 2 if PF else (1 if LEAD else 0)
    if PF:
        S_TC, S_TW = S_IT, 0
        g.i(f"s_mov_b32 s{S_TC}, s{S_CH}")
        g.i("v_lshrrev_b32 v6, 1, v0")
        g.i("v_and_b32 v7, 1, v0")
        g.i("v_lshlrev_b32 v7, 7, v7")
        g.i(f"v_lshl_add_u32 v{VT+1}, v6, 10, v7")
        g.i(f"s_lshr_b32 s1, s2, 3")
        g.i(f"s_lshl_b32 s1, s1, 1")
        g.i(f"s_lshr_b32 s{S_T1}, s{S_A}, 1")
        g.i(f"s_add_u32 s1, s1, s{S_T1}")
        g.i(f"s_mul_i32 s1, s1, 3072")
        g.i(f"s_lshr_b32 s{S_T1}, s{S_HP}, 3")
        g.i(f"s_lshl_b32 s{S_T1}, s{S_T1}, 1")
        g.i(f"s_and_b32 s{S_B}, s{S_A}, 1")
        g.i(f"s_add_u32 s{S_T1}, s{S_T1}, s{S_B}")
        g.i(f"s_lshl_b32 s{S_T1}, s{S_T1}, 8")
        g.i(f"s_add_u32 s3, s1, s{S_T1}")
    def touch(ahead):
        if PF:
            g.i(f"s_lshl_b32 s{S_T0}, s{S_TC}, 7")
            g.i(f"s_add_u32 s{S_T0}, s{S_T0}, s{S_TX}")
            g.i(f"s_mul_i32 s{S_T1}, s{S_TC}, {64*3072}")
            g.i(f"s_add_u32 s{S_T1}, s{S_T1}, s3")
            g.i("s_mov_b64 exec, 0xff")
            g.i(f"buffer_load_dword v246, v{VT}, s[{S_X}:{S_X+3}], s{S_T0} offen")
            if g.opt.get('pfw', 1):
                g.i("s_mov_b64 exec, 0x3f")
                g.i(f"buffer_load_dword v246, v{VT+1}, s[{S_W}:{S_W+3}], s{S_T1} offen")
            g.i("s_mov_b64 exec, -1")
            g.i(f"s_add_u32 s{S_TC}, s{S_TC}, 1")
            g.i(f"s_and_b32 s{S_TC}, s{S_TC}, 7")
            return
        if not LEAD: return
        g.i(f"s_add_u32 s{S_T0}, s{S_CH}, {ahead}")
        g.i(f"s_and_b32 s{S_T0}, s{S_T0}, 7")
        g.i(f"s_lshl_b32 s{S_T0}, s{S_T0}, 7")
        g.i(f"s_add_u32 s{S_T0}, s{S_T0}, s{S_TX}")
        g.i("s_mov_b64 exec, 0xff")
        g.i(f"buffer_load_dword v246, v{VT}, s[{S_X}:{S_X+3}], s{S_T0} offen")
        g.i("s_mov_b64 exec, -1")
    g.i("v_lshrrev_b32 v6, 4, v0")
    g.i("v_and_b32 v7, 7, v0")
    g.i("v_xor_b32 v6, v6, v7")
    g.i("v_lshlrev_b32 v6, 4, v6")
    g.i("v_lshrrev_b32 v7, 3, v0")
    g.i(f"v_lshl_add_u32 v{VX}, v7, 10, v6")
    g.i(f"v_xor_b32 v{VX+1}, 64, v{VX}")
    g.i(f"v_add_u32 v{VX+2}, {2*7168}, v{VX}")
    g.i(f"v_add_u32 v{VX+3}, {3*7168}, v{VX+1}")
    g.i(f"v_add_u32 v{VX+1}, 7168, v{VX+1}")
    g.i(f"s_lshl_b32 s{S_B}, s{S_A}, 16")
    g.i(f"s_lshl_b32 s{S_D}, s{S_A}, 13")
    for p in range(3):
        g.i(f"v_add_u32 v6, {64*p}, v0")
        g.i("v_mul_u32_u24 v7, 43691, v6")
        g.i("v_lshrrev_b32 v7, 19, v7")
        g.i("v_mul_u32_u24 v110, 12, v7")
        g.i("v_sub_u32 v6, v6, v110")
        g.i("v_mul_u32_u24 v7, 3072, v7")
        g.i("v_lshrrev_b32 v110, 2, v6")
        g.i(f"v_lshl_add_u32 v7, v110, {6 if g.opt.get('x_wc') else 10}, v7")
        g.i("v_and_b32 v6, 3, v6")
        g.i("v_lshl_add_u32 v7, v6, 4, v7")
        g.i(f"v_subrev_u32 v{VW+p}, {1024*p}, v7")
    g.i(f"s_mul_i32 s{S_C}, s{S_A}, {16*3072}")
    g.i(f"s_lshl_b32 s{S_T1}, s{S_HP}, {7 if g.opt.get('x_wc') else 6}")
    g.i(f"s_add_u32 s{S_C}, s{S_C}, s{S_T1}")
    g.i(f"s_mul_i32 s{S_E}, s{S_A}, 3072")
    g.i(f"s_add_u32 s{S_E}, s{S_E}, {SLOT_W}")
    early_srds(g)
    cnt = [0]
    def issue():
        cnt[0] += 1
        g.i(f"s_lshl_b32 s{S_T1}, s{S_CH}, 7")
        g.i(f"s_add_u32 s{S_T1}, s{S_T1}, s{S_B}")
        g.i(f"s_mov_b32 m0, s{S_D}")
        g.i(f"s_add_u32 s{S_T0}, s{S_T1}, 32768")
        for p in range(4):
            g.i(f"buffer_load_dwordx4 v{VX+p}, s[{S_X}:{S_X+3}], s{S_T1} offen offset:{1024*p}{g.opt.get('xfl','')} lds")
        if cnt[0] == 1: g.st('ld_4')
        g.i(f"s_add_u32 m0, s{S_D}, 4096")
        g.i(f"s_mul_i32 s{S_T1}, s{S_CH}, {64*3072}")
        for p in range(4):
            g.i(f"buffer_load_dwordx4 v{VX+p}, s[{S_X}:{S_X+3}], s{S_T0} offen offset:{1024*p}{g.opt.get('xfl','')} lds")
        if cnt[0] == 1: g.st('ld_8')
        g.i(f"s_mov_b32 m0, s{S_E}")
        g.i(f"s_add_u32 s{S_T1}, s{S_T1}, s{S_C}")
        for p in range(3):
            if g.opt.get('x_now'): g.i(f"buffer_load_dword v244, v{VW+p}, s[{S_DBG if False else S_W}:{S_W+3}], s{S_C} offen"); continue
            g.i(f"buffer_load_dwordx4 v{VW+p}, s[{S_W}:{S_W+3}], s{S_T1} offen offset:{1024*p}{g.opt.get('wfl','')} lds")
        g.i(f"s_add_u32 s{S_CH}, s{S_CH}, 1")
        g.i(f"s_and_b32 s{S_CH}, s{S_CH}, 7")
    def next_slot():
        g.i(f"s_add_u32 s{S_D}, s{S_D}, {SLOT}")
        g.i(f"s_add_u32 s{S_E}, s{S_E}, {SLOT}")
        g.i(f"s_cmp_lt_u32 s{S_D}, {3*SLOT}")
        g.i(f"s_cselect_b32 s{S_T0}, 0, {3*SLOT}")
        g.i(f"s_sub_u32 s{S_D}, s{S_D}, s{S_T0}")
        g.i(f"s_sub_u32 s{S_E}, s{S_E}, s{S_T0}")
    if PF:
        q = []; nt = [0]
        def T():
            if nt[0] < 8: touch(0); q.extend('TT' if g.opt.get('pfw', 1) else 'T'); nt[0] += 1
        def D(c): issue(); q.extend([c] * 11)
        def W(c): g.i(f"s_waitcnt vmcnt({len(q) - 1 - max(i for i, x in enumerate(q) if x == c)})")
        for c in range(PF): T()
        D(0); T()
        next_slot(); D(1); T()
        late_srds(g); attn_consts(g); consts(g)
        for c in range(6):
            W(c)
            g.i("s_barrier")
            next_slot(); D(c + 2); T()
        W(6)
        g.i("s_barrier")
        g.i("s_waitcnt vmcnt(0)")
        g.i("s_barrier")
        g.i("s_mov_b32 s3, 0")
    if not PF: loader_plain(g, issue, next_slot, touch, LEAD, NT)
    loader_fin(g)

def loader_plain(g, issue, next_slot, touch, LEAD, NT):
    issue()
    g.st('ld_c0')
    next_slot(); issue()
    for c in range(2, LEAD): touch(c - 2)
    g.st('ld_c2')
    late_srds(g); attn_consts(g); consts(g)
    g.st('ld_pre')
    PRE = g.opt.get('pre', '')
    n0 = NT * max(LEAD - 2, 0)
    def pre():
        g.i(f"s_lshl_b32 s{S_T0}, s{S_TB}, 14")
        g.i(f"s_and_b32 s{S_T1}, s{S_A}, 1")
        g.i(f"s_lshl_b32 s{S_T1}, s{S_T1}, 13")
        g.i(f"s_add_u32 s{S_T0}, s{S_T0}, s{S_T1}")
        g.i(f"s_lshr_b32 s{S_T1}, s{S_A}, 1")
        g.i(f"s_lshl_b32 s{S_T1}, s{S_T1}, 17")
        g.i(f"s_add_u32 s{S_T0}, s{S_T0}, s{S_T1}")
        if PRE == 'r':
            g.i("v_lshlrev_b32 v6, 7, v0")
            g.i(f"buffer_load_dword v245, v6, s[{S_KV}:{S_KV+3}], s{S_T0} offen sc1")
            return 1
        g.i(f"s_add_u32 s{S_T1}, s{S_T0}, 4096")
        for k in range(8):
            g.i(f"buffer_store_dwordx4 v[{V_O[0]}:{V_O[0]+3}], v{V_L16}, s[{S_KV}:{S_KV+3}], s{S_T1 if k >= 4 else S_T0} offen offset:{1024*(k%4)} sc1")
        return 8
    np_ = 0
    PC = g.opt.get('prec', 1)
    for c, n in ((0, 11 + n0), (1, n0 + 11 + NT)):
        g.i(f"s_waitcnt vmcnt({n + (np_ if c == 1 else 0)})")
        if c == 0: g.st('ld_got0')
        g.i("s_barrier")
        next_slot(); issue(); touch(LEAD - 3)
        if PRE and c == PC: np_ = pre()
    if PRE and PC == 1:
        g.i(f"s_waitcnt vmcnt({11+2*NT+np_})")
        g.i("s_barrier")
        next_slot(); issue(); touch(LEAD - 3)
        g.i(f"s_mov_b32 s{S_IT}, 3")
        g.i(f"s_waitcnt vmcnt({11+2*NT+np_})")
        g.i("s_branch L_ld_loop2")
    g.i(f"s_mov_b32 s{S_IT}, 2")
    g.lab("L_ld_loop")
    g.i(f"s_waitcnt vmcnt({11+2*NT})")
    g.lab("L_ld_loop2")
    g.i("s_barrier")
    next_slot(); issue(); touch(LEAD - 3)
    g.i(f"s_add_u32 s{S_IT}, s{S_IT}, 1")
    g.i(f"s_cmp_lt_u32 s{S_IT}, 6")
    g.i("s_cbranch_scc1 L_ld_loop")
    g.st('ld_iss7')
    g.i(f"s_waitcnt vmcnt({11+2*NT})")
    g.i("s_barrier")
    g.i("s_waitcnt vmcnt(0)")
    g.i("s_barrier")

def loader_fin(g):
    g.i(f"s_cmp_lg_u32 s{S_WAVE}, 4")
    g.i("s_cbranch_scc1 L_ld_nocert")
    g.i(f"s_lshl_b32 s{S_T0}, s{S_BR}, 4")
    g.i(f"s_add_u32 s{S_T0}, s{S_T0}, s{S_HP}")
    g.i(f"s_lshl_b32 s{S_T0}, s{S_T0}, 3")
    g.i(f"v_mov_b32 v7, s{S_T0}")
    spin(g, "cert1", f"buffer_load_dword v{V_F}, v7, s[{S_DBG}:{S_DBG+3}], 0 offen sc1", 8)
    g.lab("L_ld_nocert")
    g.i(f"s_lshl_b32 s{S_T0}, s{S_A}, 11")
    g.i(f"s_add_u32 s{S_T0}, s{S_T0}, {L_QX}")
    g.i(f"v_add_u32 v6, s{S_T0}, v{V_L16}")
    attn_setup(g)
    g.i("s_waitcnt lgkmcnt(0)")
    g.i("s_barrier")
    g.i(f"ds_read_b128 {vr(V_Q[0],4)}, v6")
    g.i(f"ds_read_b128 {vr(V_Q[1],4)}, v6 offset:1024")
    g.i("s_branch L_attn")

class LdsQ:
    def __init__(self, g): self.g = g; self.q = []
    def issue(self, tag): self.q.append(tag)
    def need(self, tags):
        idx = max([i for i, t in enumerate(self.q) if t in tags], default=-1)
        if idx >= 0:
            n = len(self.q) - 1 - idx
            self.g.i(f"s_waitcnt lgkmcnt({min(n,15)})")
            self.q = self.q[idx + 1:]

def last_chunk(g, q, mf):
    X8, WREG = 16, {'k': 48, 'v': 196, 'q': 216}
    def rx(s, i):
        g.i(f"ds_read_b128 {vr(X8+8*s+4*i,4)}, v{V_XA+s} offset:{4096*i}"); q.issue(('x', s, i))
    def rw(nm, s, i):
        p = 'qkv'.index(nm)
        g.i(f"ds_read_b64_tr_b16 {vr(WREG[nm]+4*s+2*i,2)}, v{V_WA} offset:{s*3072+i*768+p*64}"); q.issue((nm, s, i))
    def mm(nm, s, i):
        q.need({('x', s, i), (nm, s, 0), (nm, s, 1)})
        w, x = vr(WREG[nm] + 4 * s, 4), vr(X8 + 8 * s + 4 * i, 4)
        A, B = (x, w) if nm == 'v' else (w, x)
        acc = vr(V_ACC + 32 * 'qkv'.index(nm) + 16 * i, 16)
        g.i(f"v_mfma_f32_32x32x16_bf16 {acc}, {A}, {B}, {acc}")
    def pack(n):
        src = V_ACC + 32 + 8 * n
        ins = [f"v_cvt_pk_bf16_f32 v{KVT+4*n+r}, v{src+2*r}, v{src+2*r+1}" for r in range(4)]
        adr, off = (KL, 16384 * (n % 2) + 2048 * (n // 2)) if n < 4 else (VL, 2048 * ((n - 4) // 2) + 512 * (n % 2))
        return ins + [('w', f"ds_write_b128 v{adr}, {vr(KVT+4*n,4)} offset:{off}")]
    def fill(items):
        for x in items:
            if callable(x): x()
            elif isinstance(x, tuple): g.i(x[1]); q.issue(('w',))
            else: g.i(x)
    q.q = []
    first = []
    for s in range(4):
        first += [lambda s=s: rx(s, 0), lambda s=s: rw('k', s, 0), lambda s=s: rw('k', s, 1), lambda s=s: rx(s, 1)]
    for n in range(6):
        mf(1, n); fill(first[2 * n:2 * n + 2])
    rest = first[12:] + [lambda s=s, i=i: rw('v', s, i) for s in range(4) for i in range(2)]
    for n in range(8):
        mm('k', n // 2, n % 2); fill(rest[2 * n:2 * n + 2])
    g.i(f"s_mov_b32 s{S_T1}, {hex(QSCALE)}")
    g.i(f"s_mov_b32 s{S_T2}, s{S_T1}")
    qr = [lambda s=s, i=i: rw('q', s, i) for s in range(4) for i in range(2)]
    kp = sum((pack(n) for n in range(4)), [])
    for n in range(8):
        mm('v', n // 2, n % 2)
        fill(qr[3 * n:3 * n + 3] if n < 3 else kp[4 * (n - 3):4 * (n - 2)])
    vp = sum((pack(n) for n in range(4, 8)), [])
    mm('q', 0, 0); mm('q', 0, 1); mm('q', 1, 0)
    g.i("s_nop 7")
    for n in range(3, 8):
        mm('q', n // 2, n % 2); fill(vp[4 * (n - 3):4 * (n - 2)])
    g.stamp(2)
    g.i(f"s_cmp_lg_u32 s{S_PG}, 0")
    g.i("s_cbranch_scc1 L_cp_later")
    for n in range(8): g.i(kv_store(n))
    g.lab("L_cp_later")
    g.i("s_nop 5")
    for h in (8, 0):
        for i in range(2):
            A = V_ACC + 16 * i + h
            for r in range(0, 8, 2):
                g.i(f"v_pk_mul_f32 v[{A+r}:{A+r+1}], v[{A+r}:{A+r+1}], s[{S_T0+1}:{S_T0+2}]")
            D = A if h else V_Q[i]
            for r in range(4):
                g.i(f"v_cvt_pk_bf16_f32 v{D+r}, v{A+2*r}, v{A+2*r+1}")
            if h: g.i(f"ds_write_b128 v{QL}, {vr(A,4)} offset:{1024*i}")
    g.i("s_waitcnt lgkmcnt(0)")
    barrier_unless_dry(g, "b8")

def clear_flags(g):
    g.i(f"s_cmp_lg_u32 s{S_WAVE}, 0")
    g.i("s_cbranch_scc1 L_cp_noclear")
    g.i(f"s_lshl_b32 s{S_T0}, s{S_BR}, 4")
    g.i(f"s_add_u32 s{S_T0}, s{S_T0}, s{S_HP}")
    g.i(f"s_lshl_b32 s{S_T1}, s{S_T0}, 7")
    g.i(f"s_lshl_b32 s{S_T2}, s{S_TB}, 4")
    g.i(f"s_add_u32 s{S_T1}, s{S_T1}, s{S_T2}")
    g.i(f"v_lshl_add_u32 v6, v0, 2, s{S_T1}")
    g.i("v_mov_b32 v7, 0")
    g.i("s_mov_b64 exec, 0xf")
    g.i(f"buffer_store_dword v7, v6, s[{S_FL}:{S_FL+3}], 0 offen sc1")
    g.i("s_mov_b64 exec, -1")
    g.lab("L_cp_noclear")

def compute(g):
    g.lab("L_compute")
    CP = g.opt.get('cpf', 4)
    if CP == 3:
        n = g.opt.get('cpn', 12)
        g.i(f"s_mul_i32 s18, s{S_WAVE}, {128*n}")
        g.i(f"s_add_u32 s18, s18, L_compute-{NAME}_kernel")
        g.i("s_add_u32 s18, s16, s18")
        g.i("s_addc_u32 s19, s17, 0")
        g.i("s_waitcnt lgkmcnt(0)")
        for k in range(n): g.i(f"s_load_dword s95, s[18:19], {128*k}")
    if CP in (2, 3):
        g.i("s_mov_b32 s12, s16"); g.i("s_mov_b32 s13, s17")
        g.i(f"s_mov_b32 s14, L_code_end-{NAME}_kernel-4"); g.i("s_mov_b32 s15, 0x20000")
    TL = g.opt.get('tlb', 0)
    if TL:
        g.i(f"v_lshlrev_b32 v6, {TL}, v0")
    if CP != 3: g.i("s_waitcnt lgkmcnt(0)")
    if TL:
        srd(g.a, S_W, S_M + 2, 512 * 1536 * 2)
        g.i(f"buffer_load_dword v246, v6, s[{S_W}:{S_W+3}], 0 offen")
        if g.opt.get('tlbx'):
            srd(g.a, S_X, S_M, 256 * 1024, f"s{S_T0}")
            g.i(f"buffer_load_dword v246, v6, s[{S_X}:{S_X+3}], 0 offen")
    late_srds(g)
    if not g.opt.get('lateclr'): clear_flags(g)
    attn_consts(g)
    g.i("v_and_b32 v6, 31, v0")
    g.i(f"s_lshl_b32 s{S_T0}, s{S_WAVE}, 13")
    g.i(f"v_lshl_add_u32 v100, v6, 7, s{S_T0}")
    g.i("v_bfe_u32 v6, v0, 1, 3")
    g.i("v_lshrrev_b32 v7, 5, v0")
    g.i("v_xor_b32 v6, v6, v7")
    for s in range(4):
        g.i(f"v_xor_b32 v7, {2*s}, v6")
        g.i(f"v_lshl_add_u32 v{V_XA+s}, v7, 4, v100")
    g.i("v_lshrrev_b32 v6, 5, v0")
    g.i("v_bfe_u32 v7, v0, 2, 2")
    g.i("v_lshl_add_u32 v6, v6, 3, v7")
    g.i("v_mul_u32_u24 v6, 192, v6")
    g.i("v_bfe_u32 v7, v0, 4, 1")
    g.i("v_lshl_add_u32 v6, v7, 5, v6")
    g.i("v_and_b32 v7, 3, v0")
    g.i("v_lshl_add_u32 v6, v7, 3, v6")
    g.i(f"v_add_u32 v{V_WA}, {SLOT_W}, v6")
    for r in range(0, 96, 2):
        g.i(f"v_mov_b64 v[{V_ACC+r}:{V_ACC+r+1}], 0")
    S_A, S_B = 56, 57
    g.i("v_and_b32 v6, 0x33, v0")
    g.i("v_bfe_u32 v7, v0, 2, 1")
    g.i("v_lshl_or_b32 v6, v7, 3, v6")
    g.i("v_bfe_u32 v7, v0, 3, 1")
    g.i("v_lshl_or_b32 v6, v7, 2, v6")
    g.i(f"v_lshlrev_b32 v{KG}, 4, v6")
    g.i(f"s_lshl_b32 s{S_T0}, s{S_WAVE}, 12")
    g.i(f"v_add_u32 v{KL}, s{S_T0}, v{KG}")
    g.i("v_and_b32 v6, 15, v0")
    g.i("v_lshlrev_b32 v6, 4, v6")
    g.i("v_lshrrev_b32 v7, 5, v0")
    g.i("v_lshl_add_u32 v6, v7, 8, v6")
    g.i("v_add_u32 v6, 1024, v6")
    g.i("v_bfe_u32 v7, v0, 4, 1")
    g.i(f"v_lshl_add_u32 v{VG}, v7, 17, v6")
    g.i("v_lshl_add_u32 v6, v7, 14, v6")
    g.i(f"v_add_u32 v{VL}, s{S_T0}, v6")
    g.i(f"s_lshr_b32 s{S_T0}, s{S_T0}, 1")
    g.i(f"s_add_u32 s{S_T0}, s{S_T0}, {L_QX}")
    g.i(f"v_add_u32 v{QL}, s{S_T0}, v{V_L16}")
    if g.opt.get('lateclr'): clear_flags(g)
    if CP in (2, 3):
        g.i(f"s_lshl_b32 s{S_T0}, s{S_WAVE}, 13")
        g.i("v_lshlrev_b32 v6, 7, v0")
        g.i(f"buffer_load_dword v246, v6, s[12:15], s{S_T0} offen")
    if g.opt.get('dry', 1):
        g.i(f"s_cmp_lt_u32 s{S_WAVE}, 2")
        g.i("s_cbranch_scc1 L_dry_done")
        g.i(f"s_mov_b32 s{S_DRY}, 1")
        g.i(f"s_mov_b32 s{S_IT}, 7")
        g.i("s_mov_b64 vcc, 0")
        g.i(f"s_mov_b64 s[{S_M}:{S_M+1}], 0")
        g.i(f"s_mov_b64 s[{S_M+2}:{S_M+3}], 0")
        g.i(f"s_mov_b32 s{S_MK}, 0")
        g.i("s_waitcnt vmcnt(0) lgkmcnt(0)")
        g.i("s_setvskip -1, 0")
        g.i(f"s_cmp_eq_u32 s{S_WAVE}, 2")
        g.i("s_cbranch_scc1 L_at_done")
        g.i("s_branch L_cp_last" if g.opt.get('peel', 1) else "s_branch L_cp_loop")
        g.lab("L_dry_ret")
        g.i("s_setvskip 0, 0")
        g.i("s_mov_b64 exec, -1")
        g.i("s_setprio 0")
        g.i(f"s_mov_b32 s{S_DRY}, 0")
        g.lab("L_dry_done")
    attn_setup(g)
    g.i(f"s_lshl_b32 s{S_T0}, s{S_WAVE}, 12")
    g.i(f"s_lshl_b32 s{S_G1}, s{S_TB}, 14")
    g.i(f"s_add_u32 s{S_G1}, s{S_G1}, s{S_T0}")
    g.i(f"s_add_u32 s{S_G2}, s{S_G1}, 131072")
    g.i(f"s_mov_b32 s{S_IT}, 0")
    g.i(f"s_mov_b32 s{S_A}, 0")
    g.i(f"s_mov_b32 s{S_B}, {SLOT}")
    q = LdsQ(g)
    def rd(setn, s, which):
        F = V_FR[setn]
        if which[0] == 'x':
            i = int(which[1])
            g.i(f"ds_read_b128 {vr(F+4*i,4)}, v{V_XA+s} offset:{4096*i}")
        else:
            p = {'q': 0, 'k': 1, 'v': 2}[which[0]]; i = int(which[1])
            g.i(f"ds_read_b64_tr_b16 {vr(F+8+4*p+2*i,2)}, v{V_WA} offset:{s*3072+i*768+p*64}")
        q.issue((setn, which))
    ORDER = ['x0', 'q0', 'q1', 'x1', 'k0', 'k1', 'v0', 'v1']
    def mf(setn, n, mid=None):
        F = V_FR[setn]; p, i = n // 2, n % 2
        w, x = vr(F + 8 + 4 * p, 4), vr(F + 4 * i, 4)
        nm = 'qkv'[p]
        q.need({(setn, f'x{i}'), (setn, nm + '0'), (setn, nm + '1')})
        A, B = (w, x) if p < 2 else (x, w)
        acc = vr(V_ACC + 16 * n, 16)
        if g.opt.get('x_m16'):
            for hh in range(2):
                a4 = vr(V_ACC + 16 * n + 4 * hh, 4)
                g.i(f"v_mfma_f32_16x16x32_bf16 {a4}, {A}, {B}, {a4}")
                if mid and g.opt['x_m16'] == 2 and hh == 0: mid()
        else:
            g.i(f"v_mfma_f32_32x32x16_bf16 {acc}, {A}, {B}, {acc}")
    def step(cur, nxt_s, order=range(6)):
        plan = [ORDER[0:2], ORDER[2:4], ORDER[4:6], ORDER[6:8], [], []]
        for n in range(6):
            if g.opt.get('x_m16') == 2 and cur is not None and nxt_s is not None and plan[n]:
                mf(cur, order[n], lambda: rd(1 - cur, nxt_s, plan[n][0]))
                rd(1 - cur, nxt_s, plan[n][1])
                continue
            if cur is not None: mf(cur, order[n])
            if nxt_s is not None:
                for w in plan[n]: rd(1 - (cur if cur is not None else 1), nxt_s, w)
    g.i(f"s_cmp_lg_u32 s{S_WAVE}, 0")
    g.i("s_cbranch_scc1 L_cp_nocount")
    g.i(f"s_lshl_b32 s{S_T0}, s{S_BR}, 4")
    g.i(f"s_add_u32 s{S_T0}, s{S_T0}, s{S_HP}")
    g.i(f"s_lshl_b32 s{S_T0}, s{S_T0}, 3")
    g.i("s_mov_b64 exec, 1")
    g.i(f"v_mov_b32 v6, s{S_T0}")
    g.i("v_mov_b32 v7, 1")
    g.i(f"s_waitcnt vmcnt(0)")
    g.i(f"buffer_atomic_add v7, v6, s[{S_DBG}:{S_DBG+3}], 0 offen sc1")
    g.i("s_mov_b64 exec, -1")
    g.lab("L_cp_nocount")
    def prew():
        g.i(f"s_lshl_b32 s{S_T0}, s{S_TB}, 14")
        g.i(f"s_lshl_b32 s{S_T1}, s{S_WAVE}, 12")
        g.i(f"s_add_u32 s{S_T0}, s{S_T0}, s{S_T1}")
        g.i(f"s_add_u32 s{S_T1}, s{S_T0}, 131072")
        for k in range(8):
            g.i(f"buffer_store_dwordx4 v[{V_O[0]}:{V_O[0]+3}], v{V_L16}, s[{S_KV}:{S_KV+3}], s{S_T1 if k >= 4 else S_T0} offen offset:{1024*(k%4)} sc1")
    def prer():
        g.i("v_and_b32 v6, 31, v0")
        g.i("v_lshlrev_b32 v6, 7, v6")
        g.i("v_lshrrev_b32 v7, 5, v0")
        g.i("v_lshl_add_u32 v6, v7, 17, v6")
        g.i(f"buffer_load_dword v246, v6, s[{S_KV}:{S_KV+3}], s{S_G1} offen{g.opt.get('prefl', ' sc1')}")
    PR = g.opt.get('prer', 0)
    if PR == -1: prer()
    if g.opt.get('prew') == 1: prew()
    g.st('cp_pre')
    g.i("s_barrier")
    g.stamp(1)
    if g.opt.get('prew') == 2: prew()
    step(None, 0)
    g.lab("L_cp_loop")
    q.q = [(0, w) for w in ORDER]
    step(0, 1); step(1, 2); step(0, 3)
    g.i(f"s_add_u32 s{S_A}, s{S_A}, 1")
    g.i(f"s_cmp_eq_u32 s{S_A}, 3")
    g.i(f"s_cselect_b32 s{S_T0}, {(-2*SLOT) & 0xffffffff}, s{S_B}")
    g.i(f"s_cselect_b32 s{S_A}, 0, s{S_A}")
    g.i(f"s_add_u32 s{S_IT}, s{S_IT}, 1")
    PEEL = g.opt.get('peel', 1)
    if not PEEL:
        g.i(f"s_cmp_eq_u32 s{S_IT}, 8")
        g.i("s_cbranch_scc1 L_cp_last")
    g.i("s_waitcnt lgkmcnt(0)")
    q.q = []
    g.i("s_barrier")
    for r in range(5):
        g.i(f"v_add_u32 v{V_XA+r}, s{S_T0}, v{V_XA+r}")
    PW = g.opt.get('pwd')
    if PW:
        c0, kind = PW
        if kind == 'd':
            g.i(f"s_cmp_lg_u32 s{S_IT}, {c0}")
            g.i("s_cbranch_scc1 L_cp_nopw")
            g.i("v_and_b32 v6, 31, v0")
            g.i("v_lshlrev_b32 v6, 7, v6")
            g.i("v_lshrrev_b32 v7, 5, v0")
            g.i("v_lshl_add_u32 v6, v7, 17, v6")
            g.i(f"buffer_store_dword v{V_O[0]}, v6, s[{S_KV}:{S_KV+3}], s{S_G1} offen sc1")
        elif kind == 'f':
            g.i(f"s_cmp_lg_u32 s{S_IT}, {c0}")
            g.i("s_cbranch_scc1 L_cp_nopw")
            for k in range(8):
                g.i(f"buffer_store_dwordx4 v[{V_O[0]}:{V_O[0]+3}], v{V_L16}, s[{S_KV}:{S_KV+3}], s{S_G2 if k >= 4 else S_G1} offen offset:{1024*(k%4)} sc1")
        elif kind == 's':
            g.i(f"s_sub_u32 s{S_T1}, s{S_IT}, {c0}")
            g.i(f"s_cmp_ge_u32 s{S_T1}, 4")
            g.i("s_cbranch_scc1 L_cp_nopw")
            g.i(f"s_lshl_b32 s{S_T1}, s{S_T1}, 10")
            g.i(f"s_add_u32 s{S_T2}, s{S_T1}, s{S_G2}")
            g.i(f"s_add_u32 s{S_T1}, s{S_T1}, s{S_G1}")
            for so in (S_T1, S_T2):
                g.i(f"buffer_store_dwordx4 v[{V_O[0]}:{V_O[0]+3}], v{V_L16}, s[{S_KV}:{S_KV+3}], s{so} offen sc1")
        g.lab("L_cp_nopw")
    if PR > 0:
        g.i(f"s_cmp_lg_u32 s{S_IT}, {PR}")
        g.i("s_cbranch_scc1 L_cp_nopre")
        prer()
        g.lab("L_cp_nopre")
    if PEEL:
        g.i(f"s_cmp_eq_u32 s{S_IT}, 7")
        g.i("s_cbranch_scc1 L_cp_last")
    step(1, 0)
    g.i("s_branch L_cp_loop")
    g.lab("L_cp_last")
    if PEEL:
        last_chunk(g, q, mf)
        return
    q.q = [(1, w) for w in ORDER]
    step(1, None, (2, 3, 4, 5, 0, 1) if g.opt.get('trim', 1) else range(6))
    g.stamp(2)
    g.i(f"s_mov_b32 s{S_T1}, {hex(QSCALE)}")
    g.i(f"s_mov_b32 s{S_T2}, s{S_T1}")
    g.i("s_nop 3" if g.opt.get('trim', 1) else "s_nop 5")
    KVS = g.opt.get('kvs', ' sc1')
    T = 204
    n = 0
    for i in range(2):
        A = V_ACC + 16 * (2 + i)
        for hd in range(2):
            for r in range(4):
                g.i(f"v_cvt_pk_bf16_f32 v{T+4*n+r}, v{A+8*hd+2*r}, v{A+8*hd+2*r+1}")
            g.i(f"ds_write_b128 v{KL}, {vr(T+4*n,4)} offset:{16384*hd+2048*i}")
            n += 1
    for i in range(2):
        A = V_ACC + 16 * (4 + i)
        for gr in range(2):
            for r in range(4):
                g.i(f"v_cvt_pk_bf16_f32 v{T+4*n+r}, v{A+8*gr+2*r}, v{A+8*gr+2*r+1}")
            g.i(f"ds_write_b128 v{VL}, {vr(T+4*n,4)} offset:{2048*i+512*gr}")
            n += 1
    g.i(f"s_cmp_lg_u32 s{S_PG}, 0")
    g.i("s_cbranch_scc1 L_cp_later")
    for n in range(8): g.i(kv_store(n))
    g.lab("L_cp_later")
    for i in range(2):
        A = V_ACC + 16 * i
        for r in range(8, 16, 2):
            g.i(f"v_pk_mul_f32 v[{A+r}:{A+r+1}], v[{A+r}:{A+r+1}], s[{S_T0+1}:{S_T0+2}]")
        for r in range(4):
            g.i(f"v_cvt_pk_bf16_f32 v{A+8+r}, v{A+8+2*r}, v{A+8+2*r+1}")
        g.i(f"ds_write_b128 v{QL}, {vr(A+8,4)} offset:{1024*i}")
    def q_own():
        for i in range(2):
            A = V_ACC + 16 * i
            for r in range(0, 8, 2):
                g.i(f"v_pk_mul_f32 v[{A+r}:{A+r+1}], v[{A+r}:{A+r+1}], s[{S_T0+1}:{S_T0+2}]")
            for r in range(4):
                g.i(f"v_cvt_pk_bf16_f32 v{V_Q[i]+r}, v{A+2*r}, v{A+2*r+1}")
    if not g.opt.get('trimq', 0): q_own()
    g.i("s_waitcnt lgkmcnt(0)")
    barrier_unless_dry(g, "b8")
    if g.opt.get('trimq', 0): q_own()

U = 8
S_OA, S_OB = S_M + 6, S_M + 7
S_MK = S_M + 5
S_KV2 = S_X
S_KO = [None, 4, 5, 6, 7, 12, 13, 14]
S_LM = [[49, 50], [51, 52]]
S_OW = 1
V_VB = 4

def kv_store(n):
    if n < 4: adr, so, off = KG, (S_G2 if n % 2 else S_G1), 2048 * (n // 2)
    else: adr, so, off = VG, S_G1, 2048 * ((n - 4) // 2) + 512 * (n % 2)
    return f"buffer_store_dwordx4 {vr(KVT+4*n,4)}, v{adr}, s[{S_KV}:{S_KV+3}], s{so} offen offset:{off} sc1"

def spin_mask(g, tag, load):
    g.i(f"s_mov_b32 s{S_T3}, 0")
    g.lab(f"L_spin_{tag}")
    g.i(load)
    g.i(f"s_add_u32 s{S_T3}, s{S_T3}, 1")
    g.i("s_waitcnt vmcnt(0)")
    g.i(f"v_cmp_ne_u32 vcc, 1, v{V_F}")
    g.i(f"s_cmp_ge_u32 s{S_T3}, {SPIN_MAX}")
    g.i(f"s_cbranch_scc1 L_olr_{tag}")
    g.i(f"s_and_b32 vcc_lo, vcc_lo, s{S_MK}")
    g.i(f"s_cbranch_scc1 L_spin_{tag}")

def attn_setup(g):
    g.i(f"s_add_u32 s{S_KV2}, s{S_KV}, 131072")
    g.i(f"s_addc_u32 s{S_KV2+1}, s{S_KV+1}, 0")
    g.i(f"s_mov_b32 s{S_KV2+2}, 131072")
    g.i(f"s_mov_b32 s{S_KV2+3}, 0x20000")
    g.i(f"s_lshl_b32 s{S_LM[0][0]}, s{S_WAVE}, 11")
    g.i(f"s_add_u32 s{S_LM[0][1]}, s{S_LM[0][0]}, 16384")
    g.i(f"s_add_u32 s{S_LM[1][0]}, s{S_LM[0][0]}, {RING}")
    g.i(f"s_add_u32 s{S_LM[1][1]}, s{S_LM[0][0]}, {RING+16384}")
    for i in range(1, 8):
        g.i(f"s_cmp_gt_u32 s{S_TB}, {i-1}")
        g.i(f"s_cselect_b32 s{S_T0}, {i-1}, {i}")
        if i == 1:
            g.i(f"s_lshl_b32 s{S_T3}, s{S_T0}, 2")
            g.i(f"s_lshl_b32 s{S_MK}, 15, s{S_T3}")
        g.i(f"s_lshl_b32 s{S_T0}, s{S_T0}, 14")
        g.i(f"s_add_u32 s{S_KO[i]}, s{S_T0}, s{S_LM[0][0]}")
    g.i(f"s_lshr_b32 s{S_PG}, s{S_TB}, 1")
    g.i(f"s_min_u32 s{S_PG}, s{S_PG}, 2")
    g.i(f"s_cmp_ge_u32 s{S_WAVE}, 4")
    g.i(f"s_cselect_b32 s{S_PG}, 3, s{S_PG}")
    g.i(f"s_and_b32 s{S_F}, s{S_HP}, 7")
    g.i(f"s_lshl_b32 s{S_T0}, s{S_F}, 7")
    if g.opt.get('orot', 0):
        g.i(f"s_add_u32 s55, s{S_WAVE}, s{S_F}")
        g.i("s_and_b32 s55, s55, 3")
        g.i(f"s_and_b32 s{S_T1}, s{S_WAVE}, 4")
        g.i(f"s_or_b32 s55, s55, s{S_T1}")
        g.i("s_lshl_b32 s55, s55, 16")
    else:
        g.i(f"s_lshl_b32 s55, s{S_WAVE}, 16")
    g.i(f"s_add_u32 s55, s55, s{S_T0}")
    g.i(f"s_lshl_b32 s{S_E}, s{S_WAVE}, 13")
    g.i(f"s_add_u32 s{S_E}, s{S_E}, {L_WO}")
    g.i(f"s_and_b32 s{S_T0}, s{S_WAVE}, 3")
    g.i(f"s_lshl_b32 s{S_T0}, s{S_T0}, 1")
    g.i(f"s_lshl_b32 s{S_T1}, s{S_TB}, 3")
    g.i(f"s_add_u32 s{S_T0}, s{S_T0}, s{S_T1}")
    g.i(f"s_lshl_b32 s{S_OA}, s{S_T0}, 15")
    g.i(f"s_lshr_b32 s{S_T1}, s{S_WAVE}, 2")
    g.i(f"s_lshl_b32 s{S_T2}, s{S_HP}, 1")
    g.i(f"s_add_u32 s{S_T1}, s{S_T1}, s{S_T2}")
    g.i(f"s_lshl_b32 s{S_T2}, s{S_T1}, 10")
    g.i(f"s_add_u32 s{S_OA}, s{S_OA}, s{S_T2}")
    g.i(f"s_add_u32 s{S_OB}, s{S_OA}, 32768")
    if True:
        g.i(f"s_lshr_b32 s{S_T0}, s{S_HP}, 3")
        g.i(f"s_lshl_b32 s{S_T0}, s{S_T0}, 2")
        g.i(f"s_and_b32 s{S_T1}, s{S_WAVE}, 3")
        g.i(f"s_add_u32 s{S_T0}, s{S_T0}, s{S_T1}")
        g.i(f"s_lshl_b32 s{S_T1}, s{S_TB}, 3")
        g.i(f"s_add_u32 s{S_T0}, s{S_T0}, s{S_T1}")
        g.i(f"s_lshl_b32 s{S_T0}, s{S_T0}, 1")
        g.i(f"s_lshr_b32 s{S_T1}, s{S_WAVE}, 2")
        g.i(f"s_add_u32 s{S_T0}, s{S_T0}, s{S_T1}")
        g.i(f"s_lshl_b32 s{S_OW}, s{S_T0}, 15")
        g.i(f"s_lshl_b32 s{S_T0}, s{S_BR}, 10")
        g.i(f"s_add_u32 s{S_OW}, s{S_OW}, s{S_T0}")
        g.i(f"s_lshl_b32 s{S_T0}, s{S_F}, 7")
        g.i(f"s_add_u32 s{S_OW}, s{S_OW}, s{S_T0}")

def attention(g):
    opt = g.opt
    g.lab("L_attn")
    g.stamp(3)
    g.i(f"ds_read_b128 {vr(V_K,4)}, v{V_KA}")
    g.i(f"ds_read_b128 {vr(V_V[0],4)}, v{V_VA}")
    g.i(f"ds_read_b128 {vr(V_V[0]+4,4)}, v{V_VA} offset:512")
    if opt.get('x_em'):
        g.i("s_mov_b32 s100, 0xffff"); g.i("s_mov_b32 s101, 0xffff")
    g.i("s_setprio 3")
    g.i("s_waitcnt lgkmcnt(2)")
    g.i(f"v_mfma_f32_32x32x16_bf16 {vr(V_S[0],16)}, {vr(V_K,4)}, {vr(V_Q[0],4)}, 0")
    dry_exit(g)
    g.i("s_nop 9")
    g.i("s_waitcnt lgkmcnt(0)")
    poll = f"buffer_load_dword v{V_F}, v{V_FA}, s[{S_FL}:{S_FL+3}], 0 offen sc1"
    side = []
    ev = {}
    def at(it, p, slot, *ins): ev.setdefault((it, p, slot), []).extend(ins)
    def kv(i, n):
        return f"buffer_load_dwordx4 v{V_L16}, {sr(S_KV2 if n >= 2 else S_KV, 4)}, s{S_KO[i]} offen offset:{1024*(n%2)}{opt.get('kvl', ' sc1')} lds"
    def check(tag, n):
        def f():
            if n is not None: g.i(f"s_waitcnt vmcnt({n})")
            g.i(f"v_cmp_ne_u32 vcc, 1, v{V_F}")
            g.i("s_nop 0")
            g.i(f"s_and_b32 vcc_lo, vcc_lo, s{S_MK}")
            g.i(f"s_cbranch_scc1 L_ol_{tag}")
            g.lab(f"L_olr_{tag}")
            side.append((tag, lambda: spin_mask(g, tag, poll)))
        return f
    def group(pg, tag, body):
        def f():
            g.i(f"s_cmp_lg_u32 s{S_PG}, {pg}")
            g.i(f"s_cbranch_scc1 L_pg_{tag}")
            body()
            g.lab(f"L_pg_{tag}")
        return f
    def flag():
        g.i(f"s_lshl_b32 s{S_T0}, s{S_TB}, 2")
        g.i(f"s_add_u32 s{S_T0}, s{S_T0}, s{S_WAVE}")
        g.i(f"s_lshl_b64 exec, 1, s{S_T0}")
        g.i("v_mov_b32 v6, 1")
        g.i(f"buffer_store_dword v6, v{V_FA}, s[{S_FL}:{S_FL+3}], 0 offen sc1")
        g.i("s_mov_b64 exec, -1")
    def stores(it, p0, pg):
        for k, (a_, b_) in enumerate(((0, 3), (3, 6), (6, 8))):
            at(it, p0 + k, 'p1', group(pg, f"s{pg}{k}", lambda a_=a_, b_=b_: [g.i(kv_store(n)) for n in range(a_, b_)]))
    def burst(i, it=None, p=None, slot=None):
        sl = i % 2
        if not opt.get('spread', 0):
            return [f"s_mov_b32 m0, s{S_LM[sl][0]}", "s_nop 0", kv(i, 0), kv(i, 1), f"s_mov_b32 m0, s{S_LM[sl][1]}", "s_nop 0", kv(i, 2), kv(i, 3)]
        seq = [(q, k) for q in range(p, 14) for k in ('p2', 'qk', 'p1')]
        seq = seq[seq.index((p, slot)) + 1:]
        at(it, *seq[0], kv(i, 1), f"s_mov_b32 m0, s{S_LM[sl][1]}")
        at(it, *seq[1], kv(i, 2))
        at(it, *seq[2], kv(i, 3))
        return [f"s_mov_b32 m0, s{S_LM[sl][0]}", "s_nop 0", kv(i, 0)]
    def count():
        g.i(f"s_cmp_lg_u32 s{S_WAVE}, 7")
        g.i("s_cbranch_scc1 L_at_nocnt")
        g.i(f"s_lshl_b32 s{S_T0}, s{S_BR}, 4")
        g.i(f"s_add_u32 s{S_T0}, s{S_T0}, s{S_HP}")
        g.i(f"s_lshl_b32 s{S_T0}, s{S_T0}, 3")
        g.i("s_mov_b64 exec, 1")
        g.i(f"v_mov_b32 v6, s{S_T0}")
        g.i("v_mov_b32 v7, 1")
        g.i(f"buffer_atomic_add v7, v6, s[{S_DBG}:{S_DBG+3}], 0 offen offset:4 sc1")
        g.i("s_mov_b64 exec, -1")
        g.lab("L_at_nocnt")
    pp, pi0, pc0, ps1, pi1, pc1, pi3, pc3 = opt.get('ev', (1, 7, 9, 1, 5, 7, 6, 8))
    at(0, pp, 'qk', group(0, "f0", lambda: (g.st('pub_pre'), g.i("s_waitcnt vmcnt(0)"), g.st('pub_ack'), flag())))
    stores(0, ps1, 1)
    at(0, pi0, 'qk', poll)
    at(0, pc0, 'qk', "s_waitcnt vmcnt(0)", group(1, "f1", flag), check("kv0", None), lambda: g.st('chk_ok'), *burst(1, 0, pc0, 'qk'),
       f"s_mov_b32 s{S_MK}, 0xffff")
    at(1, pi1, 'qk', poll)
    at(1, pc1, 'qk', check("kv1", 0), *burst(2, 1, pc1, 'qk'), f"s_mov_b32 s{S_MK}, -1")
    if opt.get('safe', 1):
        for k, (it_, p_, sl_, a_, b_) in enumerate(((1, 14, 'p1', 0, 3), (1, 15, 'p1', 3, 6), (2, 0, 'p1', 6, 8))):
            at(it_, p_, sl_, group(2, f"s2{k}", lambda a_=a_, b_=b_: [g.i(kv_store(n)) for n in range(a_, b_)]))
    else:
        stores(1, pc1 + 1 + opt.get('spread', 0), 2)
    at(2, 15, 'qk', group(2, "f2", flag))
    at(3, pi3, 'qk', poll)
    at(3, pc3, 'p2', check("kv2", 0), *burst(4, 3, pc3, 'p2'))
    late = {i: 0 for i in range(8)}
    dp = opt.get('dma', (1, 3, 5, 7))
    for i in (2, 4, 5, 6):
        sl = (i + 1) % 2
        at(i, dp[0] - 1, 'p2x', f"s_mov_b32 m0, s{S_LM[sl][0]}")
        at(i, dp[0], 'qk', kv(i + 1, 0))
        at(i, dp[1], 'qk', kv(i + 1, 1))
        at(i, dp[2], 'p2', f"s_mov_b32 m0, s{S_LM[sl][1]}")
        at(i, dp[2], 'qk', kv(i + 1, 2))
        at(i, dp[3], 'qk', kv(i + 1, 3))
    SF = opt.get('safe', 1)
    wits = (1, 3, 4, 5) if SF else (1, 2, 3, 4)
    for n, i in enumerate(wits):
        for k, p in enumerate((9, 11) if SF and i >= 4 else (11, 13)):
            at(i, p, 'p2', f"s_add_u32 m0, s{S_E}, {(2*n+k)*1024}")
            at(i, p, 'qk', f"buffer_load_dwordx4 v{V_WOA}, s[{S_WO}:{S_WO+3}], s55 offen lds")
            at(i, p, 'p1', "s_add_u32 s55, s55, 8192")
        late[i] += 2
    OW = opt.get('opw', 4 if SF else 2)
    if SF:
        for i in (OW, 5): at(i, 12, 'p1', "s_waitcnt vmcnt(2)")
    for k, so in enumerate((S_OA, S_OB)):
        at(5, 12 + k, 'p1', f"buffer_store_dwordx4 v[252:255], v{V_L16}, s[{S_O}:{S_O+3}], s{so} offen sc1")
    late[5] += 2
    if OW:
        at(OW, 12, 'p1', f"buffer_store_dwordx4 v[252:255], v{V_OW}, s[{S_OUT}:{S_OUT+3}], s{S_OW} offen sc1", f"s_add_u32 s{S_T0}, s{S_OW}, 16384")
        at(OW, 13, 'p1', f"buffer_store_dwordx4 v[252:255], v{V_OW}, s[{S_OUT}:{S_OUT+3}], s{S_T0} offen sc1")
        late[OW] += 2
    if opt.get('opr'):
        at(7, 3, 'qk', f"buffer_load_dwordx4 v[236:239], v{V_OW}, s[{S_OUT}:{S_OUT+3}], s{S_OW} offen", f"s_add_u32 s{S_T0}, s{S_OW}, 16384")
        at(7, 5, 'qk', f"buffer_load_dwordx4 v[236:239], v{V_OW}, s[{S_OUT}:{S_OUT+3}], s{S_T0} offen")
    if opt.get('early', 1):
        at(7, 3, 'qk', f"s_lshr_b32 s{S_E}, s{S_WAVE}, 2", f"s_lshr_b32 s{S_T0}, s{S_HP}, 3", f"s_lshl_b32 s{S_T0}, s{S_T0}, 2",
           f"s_and_b32 s{S_T1}, s{S_WAVE}, 3", f"s_add_u32 s{S_A}, s{S_T0}, s{S_T1}")
        at(7, 5, 'qk', f"s_lshl_b32 s{S_T0}, s{S_TB}, 3", f"s_add_u32 s{S_A}, s{S_A}, s{S_T0}", f"s_lshl_b32 s{S_B}, s{S_A}, 15",
           f"s_lshl_b32 s{S_T0}, s{S_E}, 14", f"s_add_u32 s{S_B}, s{S_B}, s{S_T0}")
        if opt.get('orot', 0):
            for k, (d, q) in enumerate(((S_A, 6), (S_C, 7), (S_D, 8), (S_IT, 9))):
                at(7, q, 'p1', f"s_add_u32 s{S_T1}, s{S_F}, {k}", f"s_and_b32 s{S_T1}, s{S_T1}, 3", f"s_lshl_b32 s{S_T1}, s{S_T1}, 12",
                   f"s_add_u32 s{d}, s{S_B}, s{S_T1}")
            at(7, 7, 'qk', f"s_lshl_b32 s{S_T0}, s{S_BR}, 7")
        else:
            at(7, 7, 'qk', f"s_mov_b32 s{S_A}, s{S_B}", f"s_add_u32 s{S_C}, s{S_B}, 4096", f"s_add_u32 s{S_D}, s{S_B}, 8192",
               f"s_add_u32 s{S_IT}, s{S_B}, 12288", f"s_lshl_b32 s{S_T0}, s{S_BR}, 7")
        at(7, 9, 'qk', "v_and_b32 v6, 15, v0", f"v_lshl_add_u32 v{V_CA}, v6, 3, s{S_T0}", f"v_lshlrev_b32 v{V_PA}, 10, v6")
        at(7, opt.get('certp', 13), 'qk', f"buffer_load_dword v236, v{V_CA}, s[{S_DBG}:{S_DBG+3}], 0 offen offset:4 sc1")
        EM = opt.get('earlym', 0)
        def early_probe():
            g.i(f"s_lshr_b32 s{S_T0}, s{S_HP}, 3")
            g.i(f"s_cmp_eq_u32 s{S_T0}, s{S_E}")
            g.i("s_cbranch_scc1 L_at_noprobe")
            g.i(f"buffer_load_dword v237, v{V_PA}, s[{S_O}:{S_O+3}], s{S_B} offen offset:1020 sc1")
            g.lab("L_at_noprobe")
        at(7, 11, 'qk', "v_mov_b32 v236, 0")
        if EM: at(7, 11, 'qk', "v_mov_b32 v237, -1")
        if EM == 1: at(7, 15, 'p1', early_probe)
        if EM == 2: at(7, 15, 'p1', f"buffer_load_dword v237, v{V_PA}, s[{S_O}:{S_O+3}], s{S_B} offen offset:1020 sc1")
    at(7, 1, 'qk', count)
    if opt.get('x_late0'): late = {i: 0 for i in range(8)}
    prio = opt.get('prio', {0: 3, 5: 2, 10: 1, 13: 0})
    for i in range(8):
        for p, v in prio.items():
            ii, q = (i, p - 1) if p else (i - 1, 15)
            if i == 7 and v == 0 and opt.get('pend', 2): continue
            if ii >= 0: at(ii, q, 'p1', f"s_setprio {v}")
    def emit(it, p, slot):
        for x in ev.pop((it, p, slot), []):
            x() if callable(x) else g.i(x)
    p2, pq, p1 = opt.get('pos', (1, 5, 10))
    for it in range(8):
        if opt.get('itst'):
            g.i("s_memtime s[98:99]")
            g.i("s_memrealtime s[100:101]")
            g.i("s_waitcnt lgkmcnt(0)")
            g.i(f"v_writelane_b32 v250, s98, {it}")
            g.i(f"v_writelane_b32 v250, s100, {it+9}") if it < 7 else None
        for p in range(2 * U):
            b, t = p % 2, p // 2
            S, So = V_S[b], V_S[1 - b]
            nt = (t + 1) % U
            sl = (it + (t == U - 1)) % 2
            VA = V_VB if sl else V_VA
            last = it == 7 and t == U - 1
            skip = last or (opt.get('x_half') and t % 2 == 0)
            for e in range(16):
                g.i(f"v_exp_f32 v{S+e}, v{S+e}")
                if e == p2:
                    tp = (p - 1) // 2
                    if it or p:
                        g.i(f"v_smfmac_f32_32x32x32_bf16 {vr(V_O[1-b],16)}, {vr(V_V[tp%2]+4,4)}, {vr(So+8,8)}, v{V_IDX}")
                    emit(it, p, 'p2x')
                    if b == 0:
                        if t == U - 1 and it < 7:
                            if it == 1 and not opt.get('safe', 1):
                                g.i(f"s_waitcnt vmcnt({late[it] + 8})")
                                g.i(f"s_cmp_eq_u32 s{S_PG}, 2")
                                g.i("s_cbranch_scc1 L_w8")
                                g.i(f"s_waitcnt vmcnt({late[it]})")
                                g.lab("L_w8")
                            else: g.i(f"s_waitcnt vmcnt({late[it]})")
                            if it == 0: g.st('chk1_ok')
                            g.i("s_barrier")
                        if not skip:
                            xm = opt.get('x_em') and (it or t)
                            if xm: g.i("s_mov_b64 exec, s[100:101]")
                            g.i(f"ds_read_b128 {vr(V_V[(t+1)%2],4)}, v{VA} offset:{nt*2048}")
                            if xm: g.i("s_mov_b64 exec, -1")
                    elif not last:
                        g.i("s_waitcnt lgkmcnt(1)")
                    emit(it, p, 'p2')
                if e == pq:
                    if not (last and b):
                        g.i(f"v_mfma_f32_32x32x16_bf16 {vr(So,16)}, {vr(V_K,4)}, {vr(V_Q[1-b],4)}, 0")
                    if b == 0 and not skip:
                        g.i(f"ds_read_b128 {vr(V_K,4)}, v{V_KA} offset:{sl*RING+nt*2048}")
                    if b == 0 and skip: g.i("s_nop 0")
                    emit(it, p, 'qk')
                if e == p1:
                    g.i(f"v_smfmac_f32_32x32x32_bf16 {vr(V_O[b],16)}, {vr(V_V[t%2],4)}, {vr(S,8)}, v{V_IDX}")
                    if b == 0 and last: pass
                    elif b == 0 and skip: pass
                    elif b == 0:
                        xm = opt.get('x_em') and (it or t)
                        if xm: g.i("s_mov_b64 exec, s[100:101]")
                        g.i(f"ds_read_b128 {vr(V_V[(t+1)%2]+4,4)}, v{VA} offset:{nt*2048+512}")
                        if xm: g.i("s_mov_b64 exec, -1")
                    elif not last:
                        g.i("s_waitcnt lgkmcnt(0)")
                    emit(it, p, 'p1')
    assert not ev, ev
    g.side = side
    g.lab("L_at_done")
    g.i("s_nop 1")
    g.i(f"v_smfmac_f32_32x32x32_bf16 {vr(V_O[1],16)}, {vr(V_V[1]+4,4)}, {vr(V_S[1]+8,8)}, v{V_IDX}")
    if opt.get('pend', 2) == 1: g.i("s_setprio 0")
    g.stamp(4)
    if opt.get('itst'):
        g.i("s_memtime s[98:99]")
        g.i("s_waitcnt lgkmcnt(0)")
        g.i(f"v_writelane_b32 v250, s98, 8")
    g.i(f"s_mov_b32 s{S_T0}, 0x2b800000")
    g.i(f"s_mov_b32 s{S_T1}, 0x53800000")
    g.i(f"s_mov_b32 s{S_T2}, 0x7f800000")
    for q in range(2):
        O = V_O[q]
        g.i(f"v_maximum3_f32 v6, abs(v{O}), abs(v{O+1}), abs(v{O+2})")
        g.i(f"v_maximum3_f32 v7, abs(v{O+3}), abs(v{O+4}), abs(v{O+5})")
        g.i(f"v_maximum3_f32 v6, v6, abs(v{O+6}), abs(v{O+7})")
        g.i(f"v_maximum3_f32 v6, v6, v7, v7")
        g.i(f"v_cmp_nle_f32 s[{S_M}:{S_M+1}], s{S_T0}, v{O+8}")
        g.i(f"v_cmp_nge_f32 s[{S_M+2}:{S_M+3}], s{S_T1}, v{O+8}")
        g.i(f"v_cmp_ngt_f32 vcc, s{S_T2}, v6")
        g.i(f"v_rcp_f32 v{V_S[0]+2*q}, v{O+8}")
        g.i(f"s_or_b64 s[{S_M}:{S_M+1}], s[{S_M}:{S_M+1}], s[{S_M+2}:{S_M+3}]")
        g.i(f"s_or_b64 s[{S_M}:{S_M+1}], s[{S_M}:{S_M+1}], vcc")
        g.i("s_branch L_fallback" if opt.get('force_fallback') else "s_cbranch_scc1 L_fallback")
    g.lab("L_at_store")
    for q in range(2):
        O = V_O[q]
        for r in range(0, 8, 2):
            g.i(f"v_pk_mul_f32 v[{O+r}:{O+r+1}], v[{O+r}:{O+r+1}], v[{V_S[0]+2*q}:{V_S[0]+2*q+1}] op_sel_hi:[1,0]")
        for r in range(4):
            g.i(f"v_cvt_pk_bf16_f32 v{O+r}, v{O+2*r}, v{O+2*r+1}")
        g.i(f"buffer_store_dwordx4 {vr(O,4)}, v{V_L16}, s[{S_O}:{S_O+3}], s{S_OB if q else S_OA} offen{opt.get('ost', ' sc1')}")

P_WO = 100
P_OF = 8
def outproj(g):
    opt = g.opt
    A0, A1 = 228, 72
    WA0, WA1, RA = 244, 245, 246
    NW = opt.get('nw', 6)
    def o_loads(fl=' sc1', rng=None):
        for s in (rng if rng is not None else range(NW)):
            so = (S_A, S_C, S_D, S_IT)[s // 4]
            g.i(f"buffer_load_dwordx4 {vr(P_OF+4*s,4)}, v{V_L16}, s[{S_O}:{S_O+3}], s{so} offen offset:{1024*(s%4)}{fl}")
    if opt.get('pend', 2) == 2: g.i("s_setprio 0")
    if opt.get('x_ack'): g.i("s_waitcnt vmcnt(0)")
    g.stamp(5)
    g.i("s_waitcnt vmcnt(2)")
    g.i("v_cmp_gt_u32 vcc, 8, v236")
    g.i(f"s_mov_b32 s{S_T3}, 0")
    if opt.get('earlym', 0):
        g.i(f"v_cmp_eq_u32 s[{S_M}:{S_M+1}], -1, v237")
        g.i("s_nop 0")
        g.i(f"s_or_b64 s[{S_M}:{S_M+1}], s[{S_M}:{S_M+1}], vcc")
    if opt.get('earlym', 0):
        g.i("s_cbranch_scc1 L_op_later")
        o_loads()
        g.lab("L_op_later")
    g.i(f"s_lshl_b32 s{S_T0}, s{S_E}, 15")
    g.i(f"s_add_u32 s{S_T0}, s{S_T0}, {L_WO}")
    g.i("v_lshrrev_b32 v6, 5, v0")
    g.i("v_bfe_u32 v7, v0, 2, 2")
    g.i("v_lshl_add_u32 v6, v6, 2, v7")
    g.i(f"v_lshl_add_u32 v6, v6, 7, s{S_T0}")
    g.i("v_bfe_u32 v7, v0, 3, 2")
    g.i("v_and_b32 v2, 1, v7")
    g.i("v_lshl_add_u32 v6, v2, 6, v6")
    g.i("v_lshrrev_b32 v7, 1, v7")
    g.i("v_lshl_add_u32 v6, v7, 5, v6")
    g.i("v_and_b32 v7, 3, v0")
    g.i(f"v_lshl_add_u32 v6, v7, 3, v6")
    g.i(f"s_lshl_b32 s{S_T0}, s{S_E}, 6")
    g.i(f"v_xor_b32 v{WA0}, s{S_T0}, v6")
    g.i(f"v_xor_b32 v{WA1}, 64, v{WA0}")
    for s in range(16):
        if s and s % 3 == 0: g.i("s_waitcnt lgkmcnt(2)")
        for f in range(2):
            for i in range(2):
                g.i(f"ds_read_b64_tr_b16 {vr(P_WO+8*s+4*f+2*i,2)}, v{WA1 if f else WA0} offset:{s*2048+i*1024}")
    g.i(f"s_lshl_b32 s{S_T0}, s{S_WAVE}, 12")
    g.i(f"v_add_u32 v{RA}, s{S_T0}, v{V_L16}")
    g.i(f"s_and_b32 s{S_T0}, s{S_WAVE}, 3")
    g.i(f"s_lshl_b32 s{S_T0}, s{S_T0}, 12")
    g.i(f"s_add_u32 s{S_T0}, s{S_T0}, {RING}")
    g.i("v_and_b32 v6, 31, v0")
    g.i(f"v_lshl_add_u32 v6, v6, 7, s{S_T0}")
    g.i("v_lshrrev_b32 v7, 5, v0")
    g.i(f"v_lshl_add_u32 v7, s{S_E}, 2, v7")
    g.i("v_and_b32 v91, 7, v0")
    g.i("v_xor_b32 v7, v7, v91")
    g.i("v_lshl_add_u32 v88, v7, 4, v6")
    g.i("v_xor_b32 v89, 32, v88")
    g.i("v_lshrrev_b32 v6, 3, v0")
    g.i("v_xor_b32 v7, v6, v91")
    g.i(f"v_lshl_add_u32 v6, v6, 7, s{S_T0}")
    g.i("v_lshl_add_u32 v6, v7, 4, v6")
    g.i(f"v_lshl_add_u32 v90, s{S_E}, 11, v6")
    g.st('t_tr')
    if opt.get('earlym', 0):
        g.i(f"s_cmp_eq_u64 s[{S_M}:{S_M+1}], 0")
        g.i("s_cbranch_scc1 L_op_mm")
    g.i("s_cbranch_vccz L_spin_o")
    g.lab("L_spin_c")
    g.i(f"buffer_load_dword v5, v{V_CA}, s[{S_DBG}:{S_DBG+3}], 0 offen offset:4 sc1")
    g.i(f"s_add_u32 s{S_T3}, s{S_T3}, 1")
    g.i(f"s_cmp_ge_u32 s{S_T3}, {SPIN_MAX}")
    g.i("s_cbranch_scc1 L_spin_o")
    g.i("s_waitcnt vmcnt(0)")
    g.i("v_cmp_gt_u32 vcc, 8, v5")
    g.i("s_cbranch_vccnz L_spin_c")
    g.lab("L_spin_o")
    g.i(f"buffer_load_dword v3, v{V_PA}, s[{S_O}:{S_O+3}], s{S_B} offen offset:1020{opt.get('pfl', ' sc1')}")
    g.i(f"s_add_u32 s{S_T3}, s{S_T3}, 1")
    g.i(f"s_cmp_ge_u32 s{S_T3}, {SPIN_MAX}")
    g.i("s_cbranch_scc1 L_spun_o")
    g.i("s_waitcnt vmcnt(0)")
    g.i("v_cmp_eq_u32 vcc, -1, v3")
    if opt.get('sleep'): g.i(f"s_cbranch_vccz L_spun_o"); g.i(f"s_sleep {opt['sleep']}"); g.i("s_branch L_spin_o")
    g.i("s_cbranch_vccnz L_spin_o")
    g.lab("L_spun_o")
    g.st('t_ok')
    if 'ofl' in opt:
        g.i(f"s_cmp_lg_u32 s{S_PG}, 99")
        g.i(f"s_mov_b32 s{S_PG}, 99")
        g.i("s_cbranch_scc1 L_op_first")
        o_loads()
        g.i("s_branch L_op_mm")
        g.lab("L_op_first")
        o_loads(opt['ofl'])
    else:
        o_loads()
    g.lab("L_op_mm")
    g.stamp(6)
    g.i("v_mov_b32 v3, 0")
    g.i("s_waitcnt lgkmcnt(0)")
    for s in range(16):
        g.i(f"s_waitcnt vmcnt({min(NW - 1, 15 - s)})")
        if s + NW < 16: o_loads(rng=[s + NW])
        if s == 0: g.st('t_f0')
        if s == 15: g.st('t_f15')
        for f, A in ((1, A1), (0, A0)):
            g.i(f"v_mfma_f32_32x32x16_bf16 {vr(A,16)}, {vr(P_WO+8*s+4*f,4)}, {vr(P_OF+4*s,4)}, {vr(A,16) if s else 0}")
            g.i(f"v_max3_u32 v3, v3, v{P_OF+4*s+2*f}, v{P_OF+4*s+2*f+1}")
    g.i("v_cmp_eq_u32 vcc, -1, v3")
    g.i(f"s_cmp_ge_u32 s{S_T3}, {SPIN_MAX}")
    g.i("s_cbranch_scc1 L_op_go")
    g.i("s_cbranch_vccnz L_spin_o")
    g.lab("L_op_go")
    g.i("s_nop 5")
    for r in range(4):
        g.i(f"ds_write_b128 v{RA}, {vr(A1+4*r,4)} offset:{1024*r}")
    g.i("s_waitcnt lgkmcnt(0)")
    g.i(f"v_xor_b32 v{RA}, 16384, v{RA}")
    g.st('t_b9a')
    barrier_unless_dry(g, "b9")
    g.st('t_b9')
    for r in range(4):
        g.i(f"ds_read_b128 {vr(P_OF+4*r,4)}, v{RA} offset:{1024*r}")
    for r in range(4):
        g.i(f"s_waitcnt lgkmcnt({3-r})")
        for k in range(4):
            g.i(f"v_add_f32 v{A0+4*r+k}, v{A0+4*r+k}, v{P_OF+4*r+k}")
        for k in range(2):
            g.i(f"v_cvt_pk_bf16_f32 v{24+2*r+k}, v{A0+4*r+2*k}, v{A0+4*r+2*k+1}")
        if r % 2:
            g.i("s_nop 1")
            g.i(f"v_permlane32_swap_b32 v{24+2*r-2}, v{24+2*r}")
            g.i(f"v_permlane32_swap_b32 v{24+2*r-1}, v{24+2*r+1}")
            g.i(f"ds_write_b128 v{88+r//2}, {vr(24+2*r-2,4)}")
    if True:
        g.i(f"s_add_u32 s{S_T0}, s{S_OW}, 16384")
        g.i("s_waitcnt lgkmcnt(0)")
        barrier_unless_dry(g, "b10")
        g.i("ds_read_b128 v[24:27], v90")
        g.i("ds_read_b128 v[28:31], v90 offset:1024")
        g.i("s_waitcnt lgkmcnt(1)")
        g.i(f"buffer_store_dwordx4 v[24:27], v{V_OW}, s[{S_OUT}:{S_OUT+3}], s{S_OW} offen{opt.get('outs','')}")
        g.i("s_waitcnt lgkmcnt(0)")
        g.i(f"buffer_store_dwordx4 v[28:31], v{V_OW}, s[{S_OUT}:{S_OUT+3}], s{S_T0} offen{opt.get('outs','')}")
    dry_exit(g)
    if g.diag:
        g.i("s_waitcnt vmcnt(0)")
        g.stamp(7)
        g.i("s_waitcnt lgkmcnt(0)")
        if g.diag == 3:
            a_, b_, K = opt['leak']
            if opt.get('leakw'):
                g.i(f"s_cmp_lt_u32 s{S_WAVE}, 4")
                g.i("s_cbranch_scc1 L_end")
            elif a_ in (1, 2) or b_ in (1, 2):
                g.i(f"s_cmp_ge_u32 s{S_WAVE}, 4")
                g.i("s_cbranch_scc1 L_end")
            if opt.get('leakc'):
                g.i(f"s_sub_u32 s{S_T0}, s{64+4*b_}, s{64+4*a_}")
                g.i(f"s_lshr_b32 s{S_T0}, s{S_T0}, 4")
            else:
                g.i(f"s_sub_u32 s{S_T0}, s{66+4*b_}, s{66+4*a_}")
            g.i(f"s_mul_i32 s{S_T0}, s{S_T0}, {K}")
            g.lab("L_leak")
            g.i("s_memrealtime s[98:99]")
            g.i("s_waitcnt lgkmcnt(0)")
            g.i(f"s_sub_u32 s{S_T1}, s98, s{66+4*7}")
            g.i(f"s_cmp_lt_u32 s{S_T1}, s{S_T0}")
            g.i("s_cbranch_scc1 L_leak")
            g.i("s_endpgm")
        if g.diag == 2:
            g.i(f"s_cmp_ge_u32 s{S_WAVE}, 4")
            g.i("s_cbranch_scc1 L_end")
            g.i("s_mov_b64 exec, 1")
            for k in range(1, 8):
                g.i(f"s_sub_u32 s{S_T0}, s{66+4*k}, s66")
                g.i(f"v_mov_b32 v6, s{S_T0}")
                g.i(f"v_mov_b32 v7, {8*k+4}")
                g.i(f"buffer_atomic_umax v6, v7, s[{S_DBG}:{S_DBG+3}], 0 offen sc1")
            g.i(f"s_sub_u32 s{S_T0}, s{64+4*4}, s{64+4*3}")
            g.i(f"v_mov_b32 v6, s{S_T0}")
            g.i(f"v_mov_b32 v7, 4")
            g.i(f"buffer_atomic_umax v6, v7, s[{S_DBG}:{S_DBG+3}], 0 offen sc1")
            g.i("s_endpgm")
        g.i(f"s_lshl_b32 s{S_T0}, s2, 3")
        g.i(f"s_add_u32 s{S_T0}, s{S_T0}, s{S_WAVE}")
        g.i(f"s_lshl_b32 s{S_T0}, s{S_T0}, 7")
        g.i(f"s_add_u32 s{S_T0}, s{S_T0}, {WS_STAMP}")
        srd(g.a, S_X, 96, 128, f"s{S_T0}")
        for k in range(32):
            g.i(f"v_mov_b32 v{36+k}, s{64+k}")
        g.i("v_mov_b32 v6, 0")
        for k in range(8):
            g.i(f"buffer_store_dwordx4 {vr(36+4*k,4)}, v6, s[{S_X}:{S_X+3}], 0 offen offset:{16*k}")
        if opt.get('itst'):
            g.i(f"s_add_u32 s{S_T0}, s{S_T0}, {1<<20}")
            srd(g.a, S_X, 96, 64, f"s{S_T0}")
            g.i("v_lshlrev_b32 v6, 2, v0")
            g.i(f"buffer_store_dword v250, v6, s[{S_X}:{S_X+3}], 0 offen")
    g.lab("L_end")
    g.i("s_endpgm")

def fallback(g):
    C = [100, 116]; M = [132, 133]; GV = 134
    g.lab("L_fallback")
    g.i(f"s_lshr_b32 s{S_T0}, s{S_WAVE}, 2")
    g.i(f"s_lshl_b32 s{S_T0}, s{S_T0}, 17")
    g.i(f"v_mov_b32 v{M[0]}, 0xff800000")
    g.i(f"v_mov_b32 v{M[1]}, 0xff800000")
    g.i(f"s_mov_b32 s{S_T1}, s{S_T0}")
    g.i(f"s_add_u32 s{S_T2}, s{S_T0}, 131072")
    g.lab("L_fb_max")
    g.i(f"buffer_load_dwordx4 {vr(V_K,4)}, v{V_L16}, s[{S_KV}:{S_KV+3}], s{S_T1} offen sc1")
    g.i(f"s_add_u32 s{S_T1}, s{S_T1}, 2048")
    g.i("s_waitcnt vmcnt(0)")
    for q in range(2):
        g.i(f"v_mfma_f32_32x32x16_bf16 {vr(V_S[q],16)}, {vr(V_K,4)}, {vr(V_Q[q],4)}, 0")
    g.i("s_nop 15")
    for q in range(2):
        for r in range(0, 16, 2):
            g.i(f"v_max3_f32 v{M[q]}, v{M[q]}, v{V_S[q]+r}, v{V_S[q]+r+1}")
    g.i(f"s_cmp_lt_u32 s{S_T1}, s{S_T2}")
    g.i("s_cbranch_scc1 L_fb_max")
    for q in range(2):
        g.i(f"v_mov_b32 v6, v{M[q]}")
        g.i(f"v_mov_b32 v7, v{M[q]}")
        g.i("s_nop 1")
        g.i("v_permlane32_swap_b32 v6, v7")
        g.i("s_nop 1")
        g.i("v_max_f32 v6, v6, v7")
        for r in range(16):
            g.i(f"v_sub_f32 v{C[q]+r}, 0, v6")
            g.i(f"v_mov_b32 v{V_O[q]+r}, 0")
    g.i("v_and_b32 v6, 15, v0")
    g.i("v_lshlrev_b32 v6, 4, v6")
    g.i("v_lshrrev_b32 v7, 5, v0")
    g.i(f"v_lshl_add_u32 v{GV}, v7, 8, v6")
    for r in range(8):
        g.i(f"v_mov_b32 v{V_V[0]+r}, 0x3f803f80")
    g.i(f"s_mov_b32 s{S_T1}, s{S_T0}")
    g.i(f"s_mov_b32 s{S_M}, 0xffff")
    g.i(f"s_mov_b32 s{S_M+1}, 0xffff")
    g.lab("L_fb_pv")
    g.i(f"buffer_load_dwordx4 {vr(V_K,4)}, v{V_L16}, s[{S_KV}:{S_KV+3}], s{S_T1} offen sc1")
    g.i(f"s_mov_b64 exec, s[{S_M}:{S_M+1}]")
    g.i(f"buffer_load_dwordx4 {vr(V_V[0],4)}, v{GV}, s[{S_KV}:{S_KV+3}], s{S_T1} offen offset:1024 sc1")
    g.i(f"buffer_load_dwordx4 {vr(V_V[0]+4,4)}, v{GV}, s[{S_KV}:{S_KV+3}], s{S_T1} offen offset:1536 sc1")
    g.i("s_mov_b64 exec, -1")
    g.i(f"s_add_u32 s{S_T1}, s{S_T1}, 2048")
    g.i("s_waitcnt vmcnt(0)")
    for q in range(2):
        g.i(f"v_mfma_f32_32x32x16_bf16 {vr(V_S[q],16)}, {vr(V_K,4)}, {vr(V_Q[q],4)}, {vr(C[q],16)}")
    g.i("s_nop 15")
    for q in range(2):
        for r in range(16):
            g.i(f"v_exp_f32 v{V_S[q]+r}, v{V_S[q]+r}")
    g.i("s_nop 3")
    for q in range(2):
        for h in range(2):
            g.i(f"v_smfmac_f32_32x32x32_bf16 {vr(V_O[q],16)}, {vr(V_V[0]+4*h,4)}, {vr(V_S[q]+8*h,8)}, v{V_IDX}")
    g.i("s_nop 15")
    g.i(f"s_cmp_lt_u32 s{S_T1}, s{S_T2}")
    g.i("s_cbranch_scc1 L_fb_pv")
    for q in range(2):
        g.i(f"v_rcp_f32 v{V_S[0]+2*q}, v{V_O[q]+8}")
    g.i("s_nop 1")
    g.i("s_branch L_at_store")

HEADER = open('cdna_kernels/' + NAME + '.s.ref').read().split('; Override launch')[0]

DOC = """;
; One persistent launch, 256 workgroups (one per CU) x 8 waves.  Workgroup = (branch, head pair hp, block tb of 256 tokens).
;  1. QKV projection of the 256 tokens x 96 columns (q,k,v of the two heads).  Waves 4-7 stream x and wqkv into a 3-slot
;     O^T += [V^T; 1] P^T with v_smfmac_f32_32x32x32_bf16 whose 2:4 index picks the upper halves of the fp32 p registers
;     (bf16 p without a pack instruction; the row of ones gives the softmax denominator from the same p).
;     first filled with an all-ones pattern, a consumer accepts a fragment when no word holds the pattern any more.
; Generated by a Python script (register maps and schedules are spelled out below)."""

def generate(opt={}):
    global WS_KV, WS_O, WS_FLAG, KVT
    KVT = 132 if opt.get('peel', 1) else 204
    off = opt.get('wsoff', 0) << 20
    WS_KV, WS_O, WS_FLAG = (4 << 20) + off, (12 << 20) + off, (16 << 20) + off
    g = G(opt)
    name = NAME + "_kernel"
    g.a(HEADER.rstrip())
    g.a(f"; @launch grid=(256,1,1) block=(512,1,1) lds={LDS_TOTAL}")
    g.a(DOC)
    g.a('.amdgcn_target "amdgcn-amd-amdhsa--gfx950"')
    entry(g, name)
    if opt.get('lfirst', 1): loader(g)
    compute(g)
    attention(g)
    outproj(g)
    if not opt.get('lfirst', 1): loader(g)
    g.lab("L_code_end")
    for tag, body in g.side:
        g.lab(f"L_ol_{tag}")
        body()
        g.i(f"s_branch L_olr_{tag}")
    fallback(g)
    kernel_desc(g.a, name, NVGPR, 256, 102)
    return g.a.text()

if __name__ == "__main__":
    import sys
    opt = eval(sys.argv[2]) if len(sys.argv) > 2 else {}
    open(sys.argv[1], 'w').write(generate(opt))
```

```python
import math, struct
from common import *

WS_FLAG = 16 << 20
SLOT = 45056; SLOT_W = 32768
RING = 32768
L_WO = 65536
L_CONST = 135168
L_QX = 155648
LDS_TOTAL = 163840
S_X, S_W, S_WO, S_KV, S_O, S_FL, S_DBG, S_OUT = 8, 12, 16, 20, 24, 28, 32, 36
S_WAVE, S_BR, S_HP, S_TB, S_IT, S_T0, S_T1, S_T2, S_T3 = 40, 41, 42, 43, 44, 45, 46, 47, 48
S_A, S_B, S_C, S_D, S_E, S_F = 49, 50, 51, 52, 53, 54
S_G1, S_G2, S_PG = 58, 59, 60
KG, KL, VG, VL, QL, KVT = 244, 245, 247, 248, 249, 204
S_M = 56
V_L16, V_KA, V_VA, V_VX, V_IDX, V_T0, V_T1 = 1, 2, 3, 4, 5, 6, 7
V_Q = [8, 12]; V_K = 16; V_V = [20, 28]; V_S = [36, 52]; V_O = [68, 84]
V_F = 241
V_FA = 242
V_OW = 251
V_CA, V_PA = 248, 249
V_WOA = 243
V_ACC = 100
V_FR = [196, 216]
V_XA = 236; V_WA = 240
NVGPR = 256
QSCALE = struct.unpack('<I', struct.pack('<f', 0.25 * math.log2(math.e)))[0]
SPIN_MAX = 1 << 20
S_DRY = 3

class G:
    def __init__(self, opt):
        self.a = Asm(); self.opt = opt; self.diag = opt.get('diag', 0)
    def i(self, s): self.a.i(s)
    def lab(self, s): self.a.label(s)
    def st(self, name):
        m = self.opt.get('st', {})
        if name in m: self.stamp(m[name], True)
    def stamp(self, k, forced=False):
        if k in self.opt.get('st', {}).values() and not forced: return
        if self.diag:
            self.i(f"s_memtime s[{64+4*k}:{65+4*k}]")
            self.i(f"s_memrealtime s[{66+4*k}:{67+4*k}]")

def dry_exit(g, label="L_dry_ret"):
    if g.opt.get('dry', 0):
        g.i(f"s_cmp_lg_u32 s{S_DRY}, 0")
        g.i(f"s_cbranch_scc1 {label}")

def barrier_unless_dry(g, tag):
    dry_exit(g, f"L_nb_{tag}")
    g.i("s_barrier")
    g.lab(f"L_nb_{tag}")

def spin(g, tag, load, want, nlanes_mask=None):
    g.i(f"s_mov_b32 s{S_T3}, 0")
    g.lab(f"L_spin_{tag}")
    g.i(load)
    g.i(f"s_add_u32 s{S_T3}, s{S_T3}, 1")
    g.i("s_waitcnt vmcnt(0)")
    g.i(f"v_cmp_{'gt' if want > 1 else 'ne'}_u32 vcc, {want}, v{V_F}")
    g.i(f"s_cmp_ge_u32 s{S_T3}, {SPIN_MAX}")
    g.i(f"s_cbranch_scc1 L_spun_{tag}")
    g.i(f"s_cbranch_vccnz L_spin_{tag}")
    g.lab(f"L_spun_{tag}")

def entry(g, name):
    a = g.a
    kernel_head(a, name)
    PF = g.opt.get('cpf', 4)
    if PF in (2, 3):
        g.i("s_getpc_b64 s[16:17]")
    if PF == 1:
        g.i("s_getpc_b64 s[8:9]")
        g.i("v_lshlrev_b32 v6, 7, v0")
        g.i("s_mov_b32 s10, L_code_end-" + name + "-4")
        g.i("s_mov_b32 s11, 0x20000")
    if PF == 4:
        g.i("s_getpc_b64 s[8:9]")
        g.i("v_lshlrev_b32 v6, 7, v0")
        g.i("s_lshl_b32 s4, s2, 7")
        g.i("s_and_b32 s4, s4, 0x7c00")
        g.i("s_add_u32 s10, s4, 1024")
        g.i("s_min_u32 s10, s10, L_code_end-" + name + "-4")
        g.i("s_mov_b32 s11, 0x20000")
    g.i("s_cmp_ge_u32 s2, 256")
    g.i("s_cbranch_scc1 L_end")
    if PF == 1:
        g.i("buffer_load_dword v246, v6, s[8:11], 0 offen")
    if PF == 4:
        g.i("buffer_load_dword v246, v6, s[8:11], s4 offen")
    g.stamp(0)
    if g.opt.get('dry', 0): g.i(f"s_mov_b32 s{S_DRY}, 0")
    g.i(f"s_bfe_u32 s{S_BR}, s2, 0x10002")
    g.i(f"s_mul_i32 s{S_T0}, s{S_BR}, 24")
    g.i(f"s_load_dwordx4 s[{S_M}:{S_M+3}], s[0:1], s{S_T0}")
    g.i(f"s_load_dwordx2 s[{S_M+4}:{S_M+5}], s[0:1], s{S_T0} offset:16")
    g.i("s_load_dwordx4 s[4:7], s[0:1], 48")
    g.i(f"s_load_dwordx2 s[{S_M+6}:{S_M+7}], s[0:1], 64")
    g.i("v_lshrrev_b32 v6, 6, v0")
    g.i("v_and_b32 v0, 63, v0")
    g.i(f"v_readfirstlane_b32 s{S_WAVE}, v6")
    g.i(f"v_lshlrev_b32 v{V_L16}, 4, v0")
    g.i(f"s_bfe_u32 s{S_HP}, s2, 0x10001")
    g.i(f"s_lshl_b32 s{S_HP}, s{S_HP}, 3")
    g.i(f"s_bfe_u32 s{S_T0}, s2, 0x30003")
    g.i(f"s_add_u32 s{S_HP}, s{S_HP}, s{S_T0}")
    g.i(f"s_and_b32 s{S_TB}, s2, 1")
    g.i(f"s_lshl_b32 s{S_TB}, s{S_TB}, 2")
    g.i(f"s_lshr_b32 s{S_T0}, s2, 6")
    g.i(f"s_add_u32 s{S_TB}, s{S_TB}, s{S_T0}")
    g.i(f"s_lshl_b32 s{S_T0}, s{S_TB}, 18")
    g.i(f"s_lshl_b32 s{S_T1}, s{S_BR}, 4")
    g.i(f"s_add_u32 s{S_T1}, s{S_T1}, s{S_HP}")
    g.i(f"s_lshl_b32 s{S_T2}, s{S_T1}, 18")
    g.i(f"s_add_u32 s{S_T2}, s{S_T2}, {WS_KV}")
    g.i(f"s_lshl_b32 s{S_T3}, s{S_BR}, 21")
    g.i(f"s_add_u32 s{S_T3}, s{S_T3}, {WS_O}")
    if g.opt.get('lfirst', 1):
        g.i(f"s_cmp_lt_u32 s{S_WAVE}, 4")
        g.i("s_cbranch_scc1 L_compute")
    else:
        g.i(f"s_cmp_ge_u32 s{S_WAVE}, 4")
        g.i("s_cbranch_scc1 L_loader")

def early_srds(g):
    g.i("s_waitcnt lgkmcnt(0)")
    g.st('karg')
    srd(g.a, S_X, S_M, 256 * 1024, f"s{S_T0}")
    srd(g.a, S_W, S_M + 2, 512 * 1536 * 2)

def late_srds(g):
    a = g.a
    srd(a, S_WO, S_M + 4, 512 * 512 * 2)
    srd(a, S_KV, S_M + 6, 256 * 1024, f"s{S_T2}")
    srd(a, S_O, S_M + 6, 2 << 20, f"s{S_T3}")
    srd(a, S_FL, S_M + 6, 4096, str(WS_FLAG))
    srd(a, S_DBG, 6, 256)
    srd(a, S_OUT, 4, 2048 * 1024 * 2)
    if g.diag:
        g.i(f"s_mov_b32 s96, s{S_M+6}")
        g.i(f"s_mov_b32 s97, s{S_M+7}")

def attn_consts(g):
    g.i(f"s_lshr_b32 s{S_T0}, s{S_WAVE}, 2")
    g.i(f"s_lshl_b32 s{S_T0}, s{S_T0}, 14")
    g.i(f"v_add_u32 v{V_KA}, s{S_T0}, v{V_L16}")
    g.i(f"v_and_b32 v{V_T0}, 15, v0")
    g.i(f"v_lshlrev_b32 v{V_T0}, 4, v{V_T0}")
    g.i(f"v_lshrrev_b32 v{V_T1}, 5, v0")
    g.i(f"v_lshl_add_u32 v{V_T0}, v{V_T1}, 8, v{V_T0}")
    g.i(f"s_add_u32 s{S_T0}, s{S_T0}, 1024")
    g.i(f"v_add_u32 v{V_VA}, s{S_T0}, v{V_T0}")
    g.i(f"v_and_b32 v{V_T0}, 31, v0")
    g.i(f"v_subrev_u32 v{V_T1}, 20, v{V_T0}")
    g.i(f"v_cmp_gt_u32 vcc, 8, v{V_T1}")
    g.i(f"v_mov_b32 v{V_T1}, {L_CONST+16}")
    g.i(f"v_mov_b32 v{V_VX}, {L_CONST+16+64}")
    g.i(f"v_cndmask_b32 v{V_T1}, v{V_T1}, v{V_VX}, vcc")
    g.i(f"v_and_b32 v{V_VX}, {31 if g.opt.get('x_one') else 27}, v0")
    g.i(f"v_cmp_eq_u32 vcc, 16, v{V_VX}")
    g.i(f"v_subrev_u32 v{V_VX}, 16, v{V_T1}")
    g.i("s_nop 0")
    g.i(f"v_cndmask_b32 v{V_T1}, v{V_T1}, v{V_VX}, vcc")
    g.i(f"v_cmp_gt_u32 vcc, 16, v{V_T0}")
    g.i(f"v_mov_b32 v{V_T0}, {RING}")
    g.i(f"v_mov_b32 v{V_IDX}, 0xdddd")
    g.i(f"v_cndmask_b32 v{V_VA}, v{V_T1}, v{V_VA}, vcc")
    g.i(f"v_cndmask_b32 v{V_VX}, 0, v{V_T0}, vcc")
    g.i(f"v_add_u32 v{V_VX}, v{V_VX}, v{V_VA}")
    g.i("v_lshrrev_b32 v7, 3, v0")
    g.i("v_lshlrev_b32 v7, 11, v7")
    g.i(f"v_and_b32 v{V_OW}, 7, v0")
    g.i(f"v_lshl_add_u32 v{V_OW}, v{V_OW}, 4, v7")
    g.i(f"v_mov_b64 v[{V_CA}:{V_PA}], 0")
    g.i(f"v_mov_b32 v{KG}, 0")
    g.i(f"v_mov_b32 v{VG}, 0")
    g.i("v_mov_b64 v[252:253], -1")
    g.i("v_mov_b64 v[254:255], -1")
    for r in range(0, 32, 2):
        g.i(f"v_mov_b64 v[{V_O[0]+r}:{V_O[0]+r+1}], 0")
    g.i(f"s_lshl_b32 s{S_T0}, s{S_BR}, 4")
    g.i(f"s_add_u32 s{S_T0}, s{S_T0}, s{S_HP}")
    g.i(f"s_lshl_b32 s{S_T0}, s{S_T0}, 7")
    g.i(f"v_and_b32 v6, 31, v0")
    g.i(f"v_lshl_add_u32 v{V_FA}, v6, 2, s{S_T0}")
    g.i(f"v_lshrrev_b32 v{V_T0}, 2, v0")
    g.i(f"v_and_b32 v{V_T0}, 4, v{V_T0}")
    g.i(f"v_and_b32 v{V_T1}, 7, v0")
    g.i(f"v_xor_b32 v{V_T0}, v{V_T0}, v{V_T1}")
    g.i(f"v_lshlrev_b32 v{V_T0}, 4, v{V_T0}")
    g.i(f"v_lshrrev_b32 v{V_T1}, 3, v0")
    g.i(f"v_lshl_add_u32 v{V_WOA}, v{V_T1}, 10, v{V_T0}")

def consts(g):
    g.i(f"s_cmp_lg_u32 s{S_WAVE}, 4")
    g.i("s_cbranch_scc1 L_ld_noconst")
    g.i("v_lshrrev_b32 v6, 2, v0")
    g.i("v_and_b32 v7, 1, v6")
    g.i("v_lshlrev_b32 v7, 9, v7")
    g.i("v_lshrrev_b32 v6, 1, v6")
    g.i("v_lshl_add_u32 v7, v6, 11, v7")
    g.i("v_and_b32 v6, 1, v0")
    g.i("v_lshl_add_u32 v7, v6, 4, v7")
    g.i("v_cmp_eq_u32 vcc, 0, v6")
    g.i("v_and_b32 v6, 2, v0")
    g.i("v_lshl_add_u32 v7, v6, 5, v7")
    g.i("v_mov_b32 v6, 0x3f803f80")
    g.i(f"v_add_u32 v7, {L_CONST}, v7")
    g.i("v_cndmask_b32 v108, 0, v6, vcc")
    g.i("v_cndmask_b32 v109, 0, v6, vcc")
    g.i("v_cndmask_b32 v110, 0, v6, vcc")
    g.i("v_cndmask_b32 v111, 0, v6, vcc")
    g.i("ds_write_b128 v7, v[108:111]")
    g.lab("L_ld_noconst")

def loader(g):
    VX, VW, VT = 100, 104, 112
    LEAD = g.opt.get('lead', 0)
    g.lab("L_loader")
    g.i(f"s_sub_u32 s{S_A}, s{S_WAVE}, 4")
    S_CH, S_TX = S_F, 55
    RM = g.opt.get('rot', 7)
    if RM == 1:
        g.i(f"s_lshl_b32 s{S_CH}, s{S_TB}, 1")
        g.i(f"s_lshr_b32 s{S_T1}, s{S_TB}, 2")
        g.i(f"s_add_u32 s{S_CH}, s{S_CH}, s{S_T1}")
        g.i(f"s_and_b32 s{S_CH}, s{S_CH}, 7")
    elif RM == 2:
        g.i(f"s_mov_b32 s{S_CH}, s{S_TB}")
    elif RM == 7:
        g.i(f"s_and_b32 s{S_T1}, s{S_HP}, 1")
        g.i(f"s_lshl_b32 s{S_T1}, s{S_T1}, 2")
        g.i(f"s_add_u32 s{S_CH}, s{S_TB}, s{S_T1}")
        g.i(f"s_and_b32 s{S_CH}, s{S_CH}, 7")
    elif RM == 8:
        g.i(f"s_lshl_b32 s{S_CH}, s{S_TB}, 1")
        g.i(f"s_bfe_u32 s{S_T1}, s{S_HP}, 0x10001")
        g.i(f"s_add_u32 s{S_CH}, s{S_CH}, s{S_T1}")
        g.i(f"s_and_b32 s{S_CH}, s{S_CH}, 7")
    elif RM == 9:
        g.i(f"s_lshl_b32 s{S_CH}, s{S_TB}, 1")
        g.i(f"s_and_b32 s{S_T1}, s{S_HP}, 3")
        g.i(f"s_add_u32 s{S_CH}, s{S_CH}, s{S_T1}")
        g.i(f"s_and_b32 s{S_CH}, s{S_CH}, 7")
    elif RM == 10:
        g.i(f"s_and_b32 s{S_CH}, s2, 7")
    elif RM == 11:
        g.i(f"s_and_b32 s{S_CH}, s2, 3")
        g.i(f"s_lshl_b32 s{S_CH}, s{S_CH}, 1")
        g.i(f"s_add_u32 s{S_CH}, s{S_CH}, s{S_BR}")
    elif RM == 0:
        g.i(f"s_mov_b32 s{S_CH}, 0")
    elif RM == 6:
        g.i(f"s_lshl_b32 s{S_CH}, s{S_TB}, 1")
        g.i(f"s_add_u32 s{S_CH}, s{S_CH}, s{S_HP}")
        g.i(f"s_and_b32 s{S_CH}, s{S_CH}, 7")
    elif RM == 4:
        g.i(f"s_lshl_b32 s{S_CH}, s{S_TB}, 1")
        g.i(f"s_add_u32 s{S_CH}, s{S_CH}, s{S_HP}")
        g.i(f"s_and_b32 s{S_CH}, s{S_CH}, 3")
        g.i(f"s_lshl_b32 s{S_CH}, s{S_CH}, 1")
    elif RM == 5:
        g.i(f"s_add_u32 s{S_CH}, s{S_TB}, s{S_HP}")
        g.i(f"s_and_b32 s{S_CH}, s{S_CH}, 3")
        g.i(f"s_lshl_b32 s{S_CH}, s{S_CH}, 1")
    elif RM == 3:
        g.i(f"s_lshl_b32 s{S_CH}, s{S_TB}, 1")
        g.i(f"s_and_b32 s{S_T1}, s{S_HP}, 1")
        g.i(f"s_add_u32 s{S_CH}, s{S_CH}, s{S_T1}")
        g.i(f"s_and_b32 s{S_CH}, s{S_CH}, 7")
    if g.opt.get('pf') or LEAD: pass
    if g.opt.get('pf') or LEAD:
        g.i(f"v_lshlrev_b32 v{VT}, 10, v0")
        g.i(f"s_and_b32 s{S_TX}, s{S_HP}, 7")
        g.i(f"s_lshl_b32 s{S_TX}, s{S_TX}, 2")
        g.i(f"s_add_u32 s{S_TX}, s{S_TX}, s{S_A}")
        g.i(f"s_lshl_b32 s{S_TX}, s{S_TX}, 13")
    PF = g.opt.get('pf', 0)
    NT = 2 if PF else (1 if LEAD else 0)
    if PF:
        S_TC, S_TW = S_IT, 0
        g.i(f"s_mov_b32 s{S_TC}, s{S_CH}")
        g.i("v_lshrrev_b32 v6, 1, v0")
        g.i("v_and_b32 v7, 1, v0")
        g.i("v_lshlrev_b32 v7, 7, v7")
        g.i(f"v_lshl_add_u32 v{VT+1}, v6, 10, v7")
        g.i(f"s_lshr_b32 s1, s2, 3")
        g.i(f"s_lshl_b32 s1, s1, 1")
        g.i(f"s_lshr_b32 s{S_T1}, s{S_A}, 1")
        g.i(f"s_add_u32 s1, s1, s{S_T1}")
        g.i(f"s_mul_i32 s1, s1, 3072")
        g.i(f"s_lshr_b32 s{S_T1}, s{S_HP}, 3")
        g.i(f"s_lshl_b32 s{S_T1}, s{S_T1}, 1")
        g.i(f"s_and_b32 s{S_B}, s{S_A}, 1")
        g.i(f"s_add_u32 s{S_T1}, s{S_T1}, s{S_B}")
        g.i(f"s_lshl_b32 s{S_T1}, s{S_T1}, 8")
        g.i(f"s_add_u32 s3, s1, s{S_T1}")
    def touch(ahead):
        if PF:
            g.i(f"s_lshl_b32 s{S_T0}, s{S_TC}, 7")
            g.i(f"s_add_u32 s{S_T0}, s{S_T0}, s{S_TX}")
            g.i(f"s_mul_i32 s{S_T1}, s{S_TC}, {64*3072}")
            g.i(f"s_add_u32 s{S_T1}, s{S_T1}, s3")
            g.i("s_mov_b64 exec, 0xff")
            g.i(f"buffer_load_dword v246, v{VT}, s[{S_X}:{S_X+3}], s{S_T0} offen")
            if g.opt.get('pfw', 1):
                g.i("s_mov_b64 exec, 0x3f")
                g.i(f"buffer_load_dword v246, v{VT+1}, s[{S_W}:{S_W+3}], s{S_T1} offen")
            g.i("s_mov_b64 exec, -1")
            g.i(f"s_add_u32 s{S_TC}, s{S_TC}, 1")
            g.i(f"s_and_b32 s{S_TC}, s{S_TC}, 7")
            return
        if not LEAD: return
        g.i(f"s_add_u32 s{S_T0}, s{S_CH}, {ahead}")
        g.i(f"s_and_b32 s{S_T0}, s{S_T0}, 7")
        g.i(f"s_lshl_b32 s{S_T0}, s{S_T0}, 7")
        g.i(f"s_add_u32 s{S_T0}, s{S_T0}, s{S_TX}")
        g.i("s_mov_b64 exec, 0xff")
        g.i(f"buffer_load_dword v246, v{VT}, s[{S_X}:{S_X+3}], s{S_T0} offen")
        g.i("s_mov_b64 exec, -1")
    g.i("v_lshrrev_b32 v6, 4, v0")
    g.i("v_and_b32 v7, 7, v0")
    g.i("v_xor_b32 v6, v6, v7")
    g.i("v_lshlrev_b32 v6, 4, v6")
    g.i("v_lshrrev_b32 v7, 3, v0")
    g.i(f"v_lshl_add_u32 v{VX}, v7, 10, v6")
    g.i(f"v_xor_b32 v{VX+1}, 64, v{VX}")
    g.i(f"v_add_u32 v{VX+2}, {2*7168}, v{VX}")
    g.i(f"v_add_u32 v{VX+3}, {3*7168}, v{VX+1}")
    g.i(f"v_add_u32 v{VX+1}, 7168, v{VX+1}")
    g.i(f"s_lshl_b32 s{S_B}, s{S_A}, 16")
    g.i(f"s_lshl_b32 s{S_D}, s{S_A}, 13")
    def w_setup():
        for p in range(3):
            g.i(f"v_add_u32 v6, {64*p}, v0")
            g.i("v_mul_u32_u24 v7, 43691, v6")
            g.i("v_lshrrev_b32 v7, 19, v7")
            g.i("v_mul_u32_u24 v110, 12, v7")
            g.i("v_sub_u32 v6, v6, v110")
            g.i("v_mul_u32_u24 v7, 3072, v7")
            g.i("v_lshrrev_b32 v110, 2, v6")
            g.i(f"v_lshl_add_u32 v7, v110, {6 if g.opt.get('x_wc') else 10}, v7")
            g.i("v_and_b32 v6, 3, v6")
            g.i("v_lshl_add_u32 v7, v6, 4, v7")
            g.i(f"v_subrev_u32 v{VW+p}, {1024*p}, v7")
        g.i(f"s_mul_i32 s{S_C}, s{S_A}, {16*3072}")
        g.i(f"s_lshl_b32 s{S_T1}, s{S_HP}, {7 if g.opt.get('x_wc') else 6}")
        g.i(f"s_add_u32 s{S_C}, s{S_C}, s{S_T1}")
        g.i(f"s_mul_i32 s{S_E}, s{S_A}, 3072")
        g.i(f"s_add_u32 s{S_E}, s{S_E}, {SLOT_W}")
    WL = g.opt.get('wlate', 0)
    if not WL: w_setup()
    early_srds(g)
    cnt = [0]
    def issue():
        cnt[0] += 1
        g.i(f"s_lshl_b32 s{S_T1}, s{S_CH}, 7")
        g.i(f"s_add_u32 s{S_T1}, s{S_T1}, s{S_B}")
        g.i(f"s_mov_b32 m0, s{S_D}")
        g.i(f"s_add_u32 s{S_T0}, s{S_T1}, 32768")
        for p in range(4):
            g.i(f"buffer_load_dwordx4 v{VX+p}, s[{S_X}:{S_X+3}], s{S_T1} offen offset:{1024*p}{g.opt.get('xfl','')} lds")
        if cnt[0] == 1: g.st('ld_4')
        g.i(f"s_add_u32 m0, s{S_D}, 4096")
        g.i(f"s_mul_i32 s{S_T1}, s{S_CH}, {64*3072}")
        for p in range(4):
            g.i(f"buffer_load_dwordx4 v{VX+p}, s[{S_X}:{S_X+3}], s{S_T0} offen offset:{1024*p}{g.opt.get('xfl','')} lds")
        if cnt[0] == 1: g.st('ld_8')
        if cnt[0] == 1 and WL:
            g.i(f"s_mov_b32 s{S_IT}, s{S_T1}")
            w_setup()
            g.i(f"s_mov_b32 s{S_T1}, s{S_IT}")
        g.i(f"s_mov_b32 m0, s{S_E}")
        g.i(f"s_add_u32 s{S_T1}, s{S_T1}, s{S_C}")
        for p in range(3):
            if g.opt.get('x_now'): g.i(f"buffer_load_dword v244, v{VW+p}, s[{S_DBG if False else S_W}:{S_W+3}], s{S_C} offen"); continue
            g.i(f"buffer_load_dwordx4 v{VW+p}, s[{S_W}:{S_W+3}], s{S_T1} offen offset:{1024*p}{g.opt.get('wfl','')} lds")
        g.i(f"s_add_u32 s{S_CH}, s{S_CH}, 1")
        g.i(f"s_and_b32 s{S_CH}, s{S_CH}, 7")
    def next_slot():
        g.i(f"s_add_u32 s{S_D}, s{S_D}, {SLOT}")
        g.i(f"s_add_u32 s{S_E}, s{S_E}, {SLOT}")
        g.i(f"s_cmp_lt_u32 s{S_D}, {3*SLOT}")
        g.i(f"s_cselect_b32 s{S_T0}, 0, {3*SLOT}")
        g.i(f"s_sub_u32 s{S_D}, s{S_D}, s{S_T0}")
        g.i(f"s_sub_u32 s{S_E}, s{S_E}, s{S_T0}")
    if PF:
        q = []; nt = [0]
        def T():
            if nt[0] < 8: touch(0); q.extend('TT' if g.opt.get('pfw', 1) else 'T'); nt[0] += 1
        def D(c): issue(); q.extend([c] * 11)
        def W(c): g.i(f"s_waitcnt vmcnt({len(q) - 1 - max(i for i, x in enumerate(q) if x == c)})")
        for c in range(PF): T()
        D(0); T()
        next_slot(); D(1); T()
        late_srds(g); attn_consts(g); consts(g)
        for c in range(6):
            W(c)
            g.i("s_barrier")
            next_slot(); D(c + 2); T()
        W(6)
        g.i("s_barrier")
        g.i("s_waitcnt vmcnt(0)")
        g.i("s_barrier")
        g.i("s_mov_b32 s3, 0")
    if not PF: loader_plain(g, issue, next_slot, touch, LEAD, NT)
    loader_fin(g)

def loader_plain(g, issue, next_slot, touch, LEAD, NT):
    issue()
    g.st('ld_c0')
    next_slot(); issue()
    for c in range(2, LEAD): touch(c - 2)
    g.st('ld_c2')
    late_srds(g); attn_consts(g); consts(g)
    g.st('ld_pre')
    PRE = g.opt.get('pre', '')
    n0 = NT * max(LEAD - 2, 0)
    def pre():
        g.i(f"s_lshl_b32 s{S_T0}, s{S_TB}, 14")
        g.i(f"s_and_b32 s{S_T1}, s{S_A}, 1")
        g.i(f"s_lshl_b32 s{S_T1}, s{S_T1}, 13")
        g.i(f"s_add_u32 s{S_T0}, s{S_T0}, s{S_T1}")
        g.i(f"s_lshr_b32 s{S_T1}, s{S_A}, 1")
        g.i(f"s_lshl_b32 s{S_T1}, s{S_T1}, 17")
        g.i(f"s_add_u32 s{S_T0}, s{S_T0}, s{S_T1}")
        if PRE == 'r':
            g.i("v_lshlrev_b32 v6, 7, v0")
            g.i(f"buffer_load_dword v245, v6, s[{S_KV}:{S_KV+3}], s{S_T0} offen sc1")
            return 1
        g.i(f"s_add_u32 s{S_T1}, s{S_T0}, 4096")
        for k in range(8):
            g.i(f"buffer_store_dwordx4 v[{V_O[0]}:{V_O[0]+3}], v{V_L16}, s[{S_KV}:{S_KV+3}], s{S_T1 if k >= 4 else S_T0} offen offset:{1024*(k%4)} sc1")
        return 8
    np_ = 0
    PC = g.opt.get('prec', 1)
    for c, n in ((0, 11 + n0), (1, n0 + 11 + NT)):
        g.i(f"s_waitcnt vmcnt({n + (np_ if c == 1 else 0)})")
        if c == 0: g.st('ld_got0')
        g.i("s_barrier")
        next_slot(); issue(); touch(LEAD - 3)
        if PRE and c == PC: np_ = pre()
    if PRE and PC == 1:
        g.i(f"s_waitcnt vmcnt({11+2*NT+np_})")
        g.i("s_barrier")
        next_slot(); issue(); touch(LEAD - 3)
        g.i(f"s_mov_b32 s{S_IT}, 3")
        g.i(f"s_waitcnt vmcnt({11+2*NT+np_})")
        g.i("s_branch L_ld_loop2")
    g.i(f"s_mov_b32 s{S_IT}, 2")
    g.lab("L_ld_loop")
    g.i(f"s_waitcnt vmcnt({11+2*NT})")
    g.lab("L_ld_loop2")
    g.i("s_barrier")
    next_slot(); issue(); touch(LEAD - 3)
    g.i(f"s_add_u32 s{S_IT}, s{S_IT}, 1")
    g.i(f"s_cmp_lt_u32 s{S_IT}, 6")
    g.i("s_cbranch_scc1 L_ld_loop")
    g.st('ld_iss7')
    g.i(f"s_waitcnt vmcnt({11+2*NT})")
    g.i("s_barrier")
    g.i("s_waitcnt vmcnt(0)")
    g.i("s_barrier")

def loader_fin(g):
    g.i(f"s_cmp_lg_u32 s{S_WAVE}, 4")
    g.i("s_cbranch_scc1 L_ld_nocert")
    g.i(f"s_lshl_b32 s{S_T0}, s{S_BR}, 4")
    g.i(f"s_add_u32 s{S_T0}, s{S_T0}, s{S_HP}")
    g.i(f"s_lshl_b32 s{S_T0}, s{S_T0}, 3")
    g.i(f"v_mov_b32 v7, s{S_T0}")
    spin(g, "cert1", f"buffer_load_dword v{V_F}, v7, s[{S_DBG}:{S_DBG+3}], 0 offen sc1", 8)
    g.lab("L_ld_nocert")
    g.i(f"s_lshl_b32 s{S_T0}, s{S_A}, 11")
    g.i(f"s_add_u32 s{S_T0}, s{S_T0}, {L_QX}")
    g.i(f"v_add_u32 v6, s{S_T0}, v{V_L16}")
    attn_setup(g)
    g.i("s_waitcnt lgkmcnt(0)")
    g.i("s_barrier")
    g.i(f"ds_read_b128 {vr(V_Q[0],4)}, v6")
    g.i(f"ds_read_b128 {vr(V_Q[1],4)}, v6 offset:1024")
    g.i("s_branch L_attn")

class LdsQ:
    def __init__(self, g): self.g = g; self.q = []
    def issue(self, tag): self.q.append(tag)
    def need(self, tags):
        idx = max([i for i, t in enumerate(self.q) if t in tags], default=-1)
        if idx >= 0:
            n = len(self.q) - 1 - idx
            self.g.i(f"s_waitcnt lgkmcnt({min(n,15)})")
            self.q = self.q[idx + 1:]

def last_chunk(g, q, mf):
    X8, WREG = 16, {'k': 48, 'v': 196, 'q': 216}
    def rx(s, i):
        g.i(f"ds_read_b128 {vr(X8+8*s+4*i,4)}, v{V_XA+s} offset:{4096*i}"); q.issue(('x', s, i))
    def rw(nm, s, i):
        p = 'qkv'.index(nm)
        g.i(f"ds_read_b64_tr_b16 {vr(WREG[nm]+4*s+2*i,2)}, v{V_WA} offset:{s*3072+i*768+p*64}"); q.issue((nm, s, i))
    def mm(nm, s, i):
        q.need({('x', s, i), (nm, s, 0), (nm, s, 1)})
        w, x = vr(WREG[nm] + 4 * s, 4), vr(X8 + 8 * s + 4 * i, 4)
        A, B = (x, w) if nm == 'v' else (w, x)
        acc = vr(V_ACC + 32 * 'qkv'.index(nm) + 16 * i, 16)
        g.i(f"v_mfma_f32_32x32x16_bf16 {acc}, {A}, {B}, {acc}")
    def pack(n):
        src = V_ACC + 32 + 8 * n
        ins = [f"v_cvt_pk_bf16_f32 v{KVT+4*n+r}, v{src+2*r}, v{src+2*r+1}" for r in range(4)]
        adr, off = (KL, 16384 * (n % 2) + 2048 * (n // 2)) if n < 4 else (VL, 2048 * ((n - 4) // 2) + 512 * (n % 2))
        return ins + [('w', f"ds_write_b128 v{adr}, {vr(KVT+4*n,4)} offset:{off}")]
    def fill(items):
        for x in items:
            if callable(x): x()
            elif isinstance(x, tuple): g.i(x[1]); q.issue(('w',))
            else: g.i(x)
    q.q = []
    first = []
    for s in range(4):
        first += [lambda s=s: rx(s, 0), lambda s=s: rw('k', s, 0), lambda s=s: rw('k', s, 1), lambda s=s: rx(s, 1)]
    for n in range(6):
        mf(1, n); fill(first[2 * n:2 * n + 2])
    rest = first[12:] + [lambda s=s, i=i: rw('v', s, i) for s in range(4) for i in range(2)]
    for n in range(8):
        mm('k', n // 2, n % 2); fill(rest[2 * n:2 * n + 2])
    g.i(f"s_mov_b32 s{S_T1}, {hex(QSCALE)}")
    g.i(f"s_mov_b32 s{S_T2}, s{S_T1}")
    qr = [lambda s=s, i=i: rw('q', s, i) for s in range(4) for i in range(2)]
    kp = sum((pack(n) for n in range(4)), [])
    for n in range(8):
        mm('v', n // 2, n % 2)
        fill(qr[3 * n:3 * n + 3] if n < 3 else kp[4 * (n - 3):4 * (n - 2)])
    vp = sum((pack(n) for n in range(4, 8)), [])
    mm('q', 0, 0); mm('q', 0, 1); mm('q', 1, 0)
    g.i("s_nop 7")
    for n in range(3, 8):
        mm('q', n // 2, n % 2); fill(vp[4 * (n - 3):4 * (n - 2)])
    g.stamp(2)
    g.i(f"s_cmp_lg_u32 s{S_PG}, 0")
    g.i("s_cbranch_scc1 L_cp_later")
    for n in range(8): g.i(kv_store(n))
    g.lab("L_cp_later")
    g.i("s_nop 5")
    for h in (8, 0):
        for i in range(2):
            A = V_ACC + 16 * i + h
            for r in range(0, 8, 2):
                g.i(f"v_pk_mul_f32 v[{A+r}:{A+r+1}], v[{A+r}:{A+r+1}], s[{S_T0+1}:{S_T0+2}]")
            D = A if h else V_Q[i]
            for r in range(4):
                g.i(f"v_cvt_pk_bf16_f32 v{D+r}, v{A+2*r}, v{A+2*r+1}")
            if h: g.i(f"ds_write_b128 v{QL}, {vr(A,4)} offset:{1024*i}")
    g.i("s_waitcnt lgkmcnt(0)")
    barrier_unless_dry(g, "b8")

def clear_flags(g):
    g.i(f"s_cmp_lg_u32 s{S_WAVE}, 0")
    g.i("s_cbranch_scc1 L_cp_noclear")
    g.i(f"s_lshl_b32 s{S_T0}, s{S_BR}, 4")
    g.i(f"s_add_u32 s{S_T0}, s{S_T0}, s{S_HP}")
    g.i(f"s_lshl_b32 s{S_T1}, s{S_T0}, 7")
    g.i(f"s_lshl_b32 s{S_T2}, s{S_TB}, 4")
    g.i(f"s_add_u32 s{S_T1}, s{S_T1}, s{S_T2}")
    g.i(f"v_lshl_add_u32 v6, v0, 2, s{S_T1}")
    g.i("v_mov_b32 v7, 0")
    g.i("s_mov_b64 exec, 0xf")
    g.i(f"buffer_store_dword v7, v6, s[{S_FL}:{S_FL+3}], 0 offen sc1")
    g.i("s_mov_b64 exec, -1")
    g.lab("L_cp_noclear")

def compute(g):
    g.lab("L_compute")
    CP = g.opt.get('cpf', 4)
    if CP == 3:
        n = g.opt.get('cpn', 12)
        g.i(f"s_mul_i32 s18, s{S_WAVE}, {128*n}")
        g.i(f"s_add_u32 s18, s18, L_compute-{NAME}_kernel")
        g.i("s_add_u32 s18, s16, s18")
        g.i("s_addc_u32 s19, s17, 0")
        g.i("s_waitcnt lgkmcnt(0)")
        for k in range(n): g.i(f"s_load_dword s95, s[18:19], {128*k}")
    if CP in (2, 3):
        g.i("s_mov_b32 s12, s16"); g.i("s_mov_b32 s13, s17")
        g.i(f"s_mov_b32 s14, L_code_end-{NAME}_kernel-4"); g.i("s_mov_b32 s15, 0x20000")
    TL = g.opt.get('tlb', 0)
    if TL:
        g.i(f"v_lshlrev_b32 v6, {TL}, v0")
    if CP != 3: g.i("s_waitcnt lgkmcnt(0)")
    if TL:
        srd(g.a, S_W, S_M + 2, 512 * 1536 * 2)
        g.i(f"buffer_load_dword v246, v6, s[{S_W}:{S_W+3}], 0 offen")
        if g.opt.get('tlbx'):
            srd(g.a, S_X, S_M, 256 * 1024, f"s{S_T0}")
            g.i(f"buffer_load_dword v246, v6, s[{S_X}:{S_X+3}], 0 offen")
    late_srds(g)
    if not g.opt.get('lateclr'): clear_flags(g)
    attn_consts(g)
    g.i("v_and_b32 v6, 31, v0")
    g.i(f"s_lshl_b32 s{S_T0}, s{S_WAVE}, 13")
    g.i(f"v_lshl_add_u32 v100, v6, 7, s{S_T0}")
    g.i("v_bfe_u32 v6, v0, 1, 3")
    g.i("v_lshrrev_b32 v7, 5, v0")
    g.i("v_xor_b32 v6, v6, v7")
    for s in range(4):
        g.i(f"v_xor_b32 v7, {2*s}, v6")
        g.i(f"v_lshl_add_u32 v{V_XA+s}, v7, 4, v100")
    g.i("v_lshrrev_b32 v6, 5, v0")
    g.i("v_bfe_u32 v7, v0, 2, 2")
    g.i("v_lshl_add_u32 v6, v6, 3, v7")
    g.i("v_mul_u32_u24 v6, 192, v6")
    g.i("v_bfe_u32 v7, v0, 4, 1")
    g.i("v_lshl_add_u32 v6, v7, 5, v6")
    g.i("v_and_b32 v7, 3, v0")
    g.i("v_lshl_add_u32 v6, v7, 3, v6")
    g.i(f"v_add_u32 v{V_WA}, {SLOT_W}, v6")
    for r in range(0, 96, 2):
        g.i(f"v_mov_b64 v[{V_ACC+r}:{V_ACC+r+1}], 0")
    S_A, S_B = 56, 57
    g.i("v_and_b32 v6, 0x33, v0")
    g.i("v_bfe_u32 v7, v0, 2, 1")
    g.i("v_lshl_or_b32 v6, v7, 3, v6")
    g.i("v_bfe_u32 v7, v0, 3, 1")
    g.i("v_lshl_or_b32 v6, v7, 2, v6")
    g.i(f"v_lshlrev_b32 v{KG}, 4, v6")
    g.i(f"s_lshl_b32 s{S_T0}, s{S_WAVE}, 12")
    g.i(f"v_add_u32 v{KL}, s{S_T0}, v{KG}")
    g.i("v_and_b32 v6, 15, v0")
    g.i("v_lshlrev_b32 v6, 4, v6")
    g.i("v_lshrrev_b32 v7, 5, v0")
    g.i("v_lshl_add_u32 v6, v7, 8, v6")
    g.i("v_add_u32 v6, 1024, v6")
    g.i("v_bfe_u32 v7, v0, 4, 1")
    g.i(f"v_lshl_add_u32 v{VG}, v7, 17, v6")
    g.i("v_lshl_add_u32 v6, v7, 14, v6")
    g.i(f"v_add_u32 v{VL}, s{S_T0}, v6")
    g.i(f"s_lshr_b32 s{S_T0}, s{S_T0}, 1")
    g.i(f"s_add_u32 s{S_T0}, s{S_T0}, {L_QX}")
    g.i(f"v_add_u32 v{QL}, s{S_T0}, v{V_L16}")
    if g.opt.get('lateclr'): clear_flags(g)
    if CP in (2, 3):
        g.i(f"s_lshl_b32 s{S_T0}, s{S_WAVE}, 13")
        g.i("v_lshlrev_b32 v6, 7, v0")
        g.i(f"buffer_load_dword v246, v6, s[12:15], s{S_T0} offen")
    if g.opt.get('dry', 0):
        g.i(f"s_cmp_lt_u32 s{S_WAVE}, 2")
        g.i("s_cbranch_scc1 L_dry_done")
        g.i(f"s_mov_b32 s{S_DRY}, 1")
        g.i(f"s_mov_b32 s{S_IT}, 7")
        g.i("s_mov_b64 vcc, 0")
        g.i(f"s_mov_b64 s[{S_M}:{S_M+1}], 0")
        g.i(f"s_mov_b64 s[{S_M+2}:{S_M+3}], 0")
        g.i(f"s_mov_b32 s{S_MK}, 0")
        g.i("s_waitcnt vmcnt(0) lgkmcnt(0)")
        g.i("s_setvskip -1, 0")
        g.i(f"s_cmp_eq_u32 s{S_WAVE}, 2")
        g.i("s_cbranch_scc1 L_at_done")
        g.i("s_branch L_cp_last" if g.opt.get('peel', 1) else "s_branch L_cp_loop")
        g.lab("L_dry_ret")
        g.i("s_setvskip 0, 0")
        g.i("s_mov_b64 exec, -1")
        g.i("s_setprio 0")
        g.i(f"s_mov_b32 s{S_DRY}, 0")
        g.lab("L_dry_done")
    attn_setup(g)
    g.i(f"s_lshl_b32 s{S_T0}, s{S_WAVE}, 12")
    g.i(f"s_lshl_b32 s{S_G1}, s{S_TB}, 14")
    g.i(f"s_add_u32 s{S_G1}, s{S_G1}, s{S_T0}")
    g.i(f"s_add_u32 s{S_G2}, s{S_G1}, 131072")
    g.i(f"s_mov_b32 s{S_IT}, 0")
    g.i(f"s_mov_b32 s{S_A}, 0")
    g.i(f"s_mov_b32 s{S_B}, {SLOT}")
    q = LdsQ(g)
    def rd(setn, s, which):
        F = V_FR[setn]
        if which[0] == 'x':
            i = int(which[1])
            g.i(f"ds_read_b128 {vr(F+4*i,4)}, v{V_XA+s} offset:{4096*i}")
        else:
            p = {'q': 0, 'k': 1, 'v': 2}[which[0]]; i = int(which[1])
            g.i(f"ds_read_b64_tr_b16 {vr(F+8+4*p+2*i,2)}, v{V_WA} offset:{s*3072+i*768+p*64}")
        q.issue((setn, which))
    ORDER = ['x0', 'q0', 'q1', 'x1', 'k0', 'k1', 'v0', 'v1']
    def mf(setn, n, mid=None):
        F = V_FR[setn]; p, i = n // 2, n % 2
        w, x = vr(F + 8 + 4 * p, 4), vr(F + 4 * i, 4)
        nm = 'qkv'[p]
        q.need({(setn, f'x{i}'), (setn, nm + '0'), (setn, nm + '1')})
        A, B = (w, x) if p < 2 else (x, w)
        acc = vr(V_ACC + 16 * n, 16)
        if g.opt.get('x_m16'):
            for hh in range(2):
                a4 = vr(V_ACC + 16 * n + 4 * hh, 4)
                g.i(f"v_mfma_f32_16x16x32_bf16 {a4}, {A}, {B}, {a4}")
                if mid and g.opt['x_m16'] == 2 and hh == 0: mid()
        else:
            g.i(f"v_mfma_f32_32x32x16_bf16 {acc}, {A}, {B}, {acc}")
    def step(cur, nxt_s, order=range(6)):
        plan = [ORDER[0:2], ORDER[2:4], ORDER[4:6], ORDER[6:8], [], []]
        for n in range(6):
            if g.opt.get('x_m16') == 2 and cur is not None and nxt_s is not None and plan[n]:
                mf(cur, order[n], lambda: rd(1 - cur, nxt_s, plan[n][0]))
                rd(1 - cur, nxt_s, plan[n][1])
                continue
            if cur is not None: mf(cur, order[n])
            if nxt_s is not None:
                for w in plan[n]: rd(1 - (cur if cur is not None else 1), nxt_s, w)
    g.i(f"s_cmp_lg_u32 s{S_WAVE}, 0")
    g.i("s_cbranch_scc1 L_cp_nocount")
    g.i(f"s_lshl_b32 s{S_T0}, s{S_BR}, 4")
    g.i(f"s_add_u32 s{S_T0}, s{S_T0}, s{S_HP}")
    g.i(f"s_lshl_b32 s{S_T0}, s{S_T0}, 3")
    g.i("s_mov_b64 exec, 1")
    g.i(f"v_mov_b32 v6, s{S_T0}")
    g.i("v_mov_b32 v7, 1")
    g.i(f"s_waitcnt vmcnt(0)")
    g.i(f"buffer_atomic_add v7, v6, s[{S_DBG}:{S_DBG+3}], 0 offen sc1")
    g.i("s_mov_b64 exec, -1")
    g.lab("L_cp_nocount")
    def prew():
        g.i(f"s_lshl_b32 s{S_T0}, s{S_TB}, 14")
        g.i(f"s_lshl_b32 s{S_T1}, s{S_WAVE}, 12")
        g.i(f"s_add_u32 s{S_T0}, s{S_T0}, s{S_T1}")
        g.i(f"s_add_u32 s{S_T1}, s{S_T0}, 131072")
        for k in range(8):
            g.i(f"buffer_store_dwordx4 v[{V_O[0]}:{V_O[0]+3}], v{V_L16}, s[{S_KV}:{S_KV+3}], s{S_T1 if k >= 4 else S_T0} offen offset:{1024*(k%4)} sc1")
    def prer():
        g.i("v_and_b32 v6, 31, v0")
        g.i("v_lshlrev_b32 v6, 7, v6")
        g.i("v_lshrrev_b32 v7, 5, v0")
        g.i("v_lshl_add_u32 v6, v7, 17, v6")
        g.i(f"buffer_load_dword v246, v6, s[{S_KV}:{S_KV+3}], s{S_G1} offen{g.opt.get('prefl', ' sc1')}")
    PR = g.opt.get('prer', 0)
    if PR == -1: prer()
    if g.opt.get('prew') == 1: prew()
    g.st('cp_pre')
    g.i("s_barrier")
    g.stamp(1)
    if g.opt.get('prew') == 2: prew()
    step(None, 0)
    g.lab("L_cp_loop")
    q.q = [(0, w) for w in ORDER]
    step(0, 1); step(1, 2); step(0, 3)
    g.i(f"s_add_u32 s{S_A}, s{S_A}, 1")
    g.i(f"s_cmp_eq_u32 s{S_A}, 3")
    g.i(f"s_cselect_b32 s{S_T0}, {(-2*SLOT) & 0xffffffff}, s{S_B}")
    g.i(f"s_cselect_b32 s{S_A}, 0, s{S_A}")
    g.i(f"s_add_u32 s{S_IT}, s{S_IT}, 1")
    PEEL = g.opt.get('peel', 1)
    if not PEEL:
        g.i(f"s_cmp_eq_u32 s{S_IT}, 8")
        g.i("s_cbranch_scc1 L_cp_last")
    g.i("s_waitcnt lgkmcnt(0)")
    q.q = []
    g.i("s_barrier")
    for r in range(5):
        g.i(f"v_add_u32 v{V_XA+r}, s{S_T0}, v{V_XA+r}")
    PW = g.opt.get('pwd')
    if PW:
        c0, kind = PW
        if kind == 'd':
            g.i(f"s_cmp_lg_u32 s{S_IT}, {c0}")
            g.i("s_cbranch_scc1 L_cp_nopw")
            g.i("v_and_b32 v6, 31, v0")
            g.i("v_lshlrev_b32 v6, 7, v6")
            g.i("v_lshrrev_b32 v7, 5, v0")
            g.i("v_lshl_add_u32 v6, v7, 17, v6")
            g.i(f"buffer_store_dword v{V_O[0]}, v6, s[{S_KV}:{S_KV+3}], s{S_G1} offen sc1")
        elif kind == 'f':
            g.i(f"s_cmp_lg_u32 s{S_IT}, {c0}")
            g.i("s_cbranch_scc1 L_cp_nopw")
            for k in range(8):
                g.i(f"buffer_store_dwordx4 v[{V_O[0]}:{V_O[0]+3}], v{V_L16}, s[{S_KV}:{S_KV+3}], s{S_G2 if k >= 4 else S_G1} offen offset:{1024*(k%4)} sc1")
        elif kind == 's':
            g.i(f"s_sub_u32 s{S_T1}, s{S_IT}, {c0}")
            g.i(f"s_cmp_ge_u32 s{S_T1}, 4")
            g.i("s_cbranch_scc1 L_cp_nopw")
            g.i(f"s_lshl_b32 s{S_T1}, s{S_T1}, 10")
            g.i(f"s_add_u32 s{S_T2}, s{S_T1}, s{S_G2}")
            g.i(f"s_add_u32 s{S_T1}, s{S_T1}, s{S_G1}")
            for so in (S_T1, S_T2):
                g.i(f"buffer_store_dwordx4 v[{V_O[0]}:{V_O[0]+3}], v{V_L16}, s[{S_KV}:{S_KV+3}], s{so} offen sc1")
        g.lab("L_cp_nopw")
    if PR > 0:
        g.i(f"s_cmp_lg_u32 s{S_IT}, {PR}")
        g.i("s_cbranch_scc1 L_cp_nopre")
        prer()
        g.lab("L_cp_nopre")
    if PEEL:
        g.i(f"s_cmp_eq_u32 s{S_IT}, 7")
        g.i("s_cbranch_scc1 L_cp_last")
    step(1, 0)
    g.i("s_branch L_cp_loop")
    g.lab("L_cp_last")
    if PEEL:
        last_chunk(g, q, mf)
        return
    q.q = [(1, w) for w in ORDER]
    step(1, None, (2, 3, 4, 5, 0, 1) if g.opt.get('trim', 1) else range(6))
    g.stamp(2)
    g.i(f"s_mov_b32 s{S_T1}, {hex(QSCALE)}")
    g.i(f"s_mov_b32 s{S_T2}, s{S_T1}")
    g.i("s_nop 3" if g.opt.get('trim', 1) else "s_nop 5")
    KVS = g.opt.get('kvs', ' sc1')
    T = 204
    n = 0
    for i in range(2):
        A = V_ACC + 16 * (2 + i)
        for hd in range(2):
            for r in range(4):
                g.i(f"v_cvt_pk_bf16_f32 v{T+4*n+r}, v{A+8*hd+2*r}, v{A+8*hd+2*r+1}")
            g.i(f"ds_write_b128 v{KL}, {vr(T+4*n,4)} offset:{16384*hd+2048*i}")
            n += 1
    for i in range(2):
        A = V_ACC + 16 * (4 + i)
        for gr in range(2):
            for r in range(4):
                g.i(f"v_cvt_pk_bf16_f32 v{T+4*n+r}, v{A+8*gr+2*r}, v{A+8*gr+2*r+1}")
            g.i(f"ds_write_b128 v{VL}, {vr(T+4*n,4)} offset:{2048*i+512*gr}")
            n += 1
    g.i(f"s_cmp_lg_u32 s{S_PG}, 0")
    g.i("s_cbranch_scc1 L_cp_later")
    for n in range(8): g.i(kv_store(n))
    g.lab("L_cp_later")
    for i in range(2):
        A = V_ACC + 16 * i
        for r in range(8, 16, 2):
            g.i(f"v_pk_mul_f32 v[{A+r}:{A+r+1}], v[{A+r}:{A+r+1}], s[{S_T0+1}:{S_T0+2}]")
        for r in range(4):
            g.i(f"v_cvt_pk_bf16_f32 v{A+8+r}, v{A+8+2*r}, v{A+8+2*r+1}")
        g.i(f"ds_write_b128 v{QL}, {vr(A+8,4)} offset:{1024*i}")
    def q_own():
        for i in range(2):
            A = V_ACC + 16 * i
            for r in range(0, 8, 2):
                g.i(f"v_pk_mul_f32 v[{A+r}:{A+r+1}], v[{A+r}:{A+r+1}], s[{S_T0+1}:{S_T0+2}]")
            for r in range(4):
                g.i(f"v_cvt_pk_bf16_f32 v{V_Q[i]+r}, v{A+2*r}, v{A+2*r+1}")
    if not g.opt.get('trimq', 0): q_own()
    g.i("s_waitcnt lgkmcnt(0)")
    barrier_unless_dry(g, "b8")
    if g.opt.get('trimq', 0): q_own()

U = 8
S_OA, S_OB = S_M + 6, S_M + 7
S_MK = S_M + 5
S_KV2 = S_X
S_KO = [None, 4, 5, 6, 7, 12, 13, 14]
S_LM = [[49, 50], [51, 52]]
S_OW = 1
V_VB = 4

def kv_store(n):
    if n < 4: adr, so, off = KG, (S_G2 if n % 2 else S_G1), 2048 * (n // 2)
    else: adr, so, off = VG, S_G1, 2048 * ((n - 4) // 2) + 512 * (n % 2)
    return f"buffer_store_dwordx4 {vr(KVT+4*n,4)}, v{adr}, s[{S_KV}:{S_KV+3}], s{so} offen offset:{off} sc1"

def spin_mask(g, tag, load):
    g.i(f"s_mov_b32 s{S_T3}, 0")
    g.lab(f"L_spin_{tag}")
    g.i(load)
    g.i(f"s_add_u32 s{S_T3}, s{S_T3}, 1")
    g.i("s_waitcnt vmcnt(0)")
    g.i(f"v_cmp_ne_u32 vcc, 1, v{V_F}")
    g.i(f"s_cmp_ge_u32 s{S_T3}, {SPIN_MAX}")
    g.i(f"s_cbranch_scc1 L_olr_{tag}")
    g.i(f"s_and_b32 vcc_lo, vcc_lo, s{S_MK}")
    g.i(f"s_cbranch_scc1 L_spin_{tag}")

def attn_setup(g):
    g.i(f"s_add_u32 s{S_KV2}, s{S_KV}, 131072")
    g.i(f"s_addc_u32 s{S_KV2+1}, s{S_KV+1}, 0")
    g.i(f"s_mov_b32 s{S_KV2+2}, 131072")
    g.i(f"s_mov_b32 s{S_KV2+3}, 0x20000")
    g.i(f"s_lshl_b32 s{S_LM[0][0]}, s{S_WAVE}, 11")
    g.i(f"s_add_u32 s{S_LM[0][1]}, s{S_LM[0][0]}, 16384")
    g.i(f"s_add_u32 s{S_LM[1][0]}, s{S_LM[0][0]}, {RING}")
    g.i(f"s_add_u32 s{S_LM[1][1]}, s{S_LM[0][0]}, {RING+16384}")
    for i in range(1, 8):
        g.i(f"s_cmp_gt_u32 s{S_TB}, {i-1}")
        g.i(f"s_cselect_b32 s{S_T0}, {i-1}, {i}")
        if i == 1:
            g.i(f"s_lshl_b32 s{S_T3}, s{S_T0}, 2")
            g.i(f"s_lshl_b32 s{S_MK}, 15, s{S_T3}")
        g.i(f"s_lshl_b32 s{S_T0}, s{S_T0}, 14")
        g.i(f"s_add_u32 s{S_KO[i]}, s{S_T0}, s{S_LM[0][0]}")
    g.i(f"s_lshr_b32 s{S_PG}, s{S_TB}, 1")
    g.i(f"s_min_u32 s{S_PG}, s{S_PG}, 2")
    g.i(f"s_cmp_ge_u32 s{S_WAVE}, 4")
    g.i(f"s_cselect_b32 s{S_PG}, 3, s{S_PG}")
    g.i(f"s_and_b32 s{S_F}, s{S_HP}, 7")
    g.i(f"s_lshl_b32 s{S_T0}, s{S_F}, 7")
    if g.opt.get('orot', 0):
        g.i(f"s_add_u32 s55, s{S_WAVE}, s{S_F}")
        g.i("s_and_b32 s55, s55, 3")
        g.i(f"s_and_b32 s{S_T1}, s{S_WAVE}, 4")
        g.i(f"s_or_b32 s55, s55, s{S_T1}")
        g.i("s_lshl_b32 s55, s55, 16")
    else:
        g.i(f"s_lshl_b32 s55, s{S_WAVE}, 16")
    g.i(f"s_add_u32 s55, s55, s{S_T0}")
    g.i(f"s_lshl_b32 s{S_E}, s{S_WAVE}, 13")
    g.i(f"s_add_u32 s{S_E}, s{S_E}, {L_WO}")
    g.i(f"s_and_b32 s{S_T0}, s{S_WAVE}, 3")
    g.i(f"s_lshl_b32 s{S_T0}, s{S_T0}, 1")
    g.i(f"s_lshl_b32 s{S_T1}, s{S_TB}, 3")
    g.i(f"s_add_u32 s{S_T0}, s{S_T0}, s{S_T1}")
    g.i(f"s_lshl_b32 s{S_OA}, s{S_T0}, 15")
    g.i(f"s_lshr_b32 s{S_T1}, s{S_WAVE}, 2")
    g.i(f"s_lshl_b32 s{S_T2}, s{S_HP}, 1")
    g.i(f"s_add_u32 s{S_T1}, s{S_T1}, s{S_T2}")
    g.i(f"s_lshl_b32 s{S_T2}, s{S_T1}, 10")
    g.i(f"s_add_u32 s{S_OA}, s{S_OA}, s{S_T2}")
    g.i(f"s_add_u32 s{S_OB}, s{S_OA}, 32768")
    if True:
        g.i(f"s_lshr_b32 s{S_T0}, s{S_HP}, 3")
        g.i(f"s_lshl_b32 s{S_T0}, s{S_T0}, 2")
        g.i(f"s_and_b32 s{S_T1}, s{S_WAVE}, 3")
        g.i(f"s_add_u32 s{S_T0}, s{S_T0}, s{S_T1}")
        g.i(f"s_lshl_b32 s{S_T1}, s{S_TB}, 3")
        g.i(f"s_add_u32 s{S_T0}, s{S_T0}, s{S_T1}")
        g.i(f"s_lshl_b32 s{S_T0}, s{S_T0}, 1")
        g.i(f"s_lshr_b32 s{S_T1}, s{S_WAVE}, 2")
        g.i(f"s_add_u32 s{S_T0}, s{S_T0}, s{S_T1}")
        g.i(f"s_lshl_b32 s{S_OW}, s{S_T0}, 15")
        g.i(f"s_lshl_b32 s{S_T0}, s{S_BR}, 10")
        g.i(f"s_add_u32 s{S_OW}, s{S_OW}, s{S_T0}")
        g.i(f"s_lshl_b32 s{S_T0}, s{S_F}, 7")
        g.i(f"s_add_u32 s{S_OW}, s{S_OW}, s{S_T0}")

def attention(g):
    opt = g.opt
    g.lab("L_attn")
    g.stamp(3)
    g.i(f"ds_read_b128 {vr(V_K,4)}, v{V_KA}")
    g.i(f"ds_read_b128 {vr(V_V[0],4)}, v{V_VA}")
    g.i(f"ds_read_b128 {vr(V_V[0]+4,4)}, v{V_VA} offset:512")
    if opt.get('x_em'):
        g.i("s_mov_b32 s100, 0xffff"); g.i("s_mov_b32 s101, 0xffff")
    g.i("s_setprio 3")
    g.i("s_waitcnt lgkmcnt(2)")
    g.i(f"v_mfma_f32_32x32x16_bf16 {vr(V_S[0],16)}, {vr(V_K,4)}, {vr(V_Q[0],4)}, 0")
    dry_exit(g)
    g.i("s_nop 9" if opt.get('dry', 0) else "s_nop 11")
    g.i("s_waitcnt lgkmcnt(0)")
    poll = f"buffer_load_dword v{V_F}, v{V_FA}, s[{S_FL}:{S_FL+3}], 0 offen sc1"
    side = []
    ev = {}
    def at(it, p, slot, *ins): ev.setdefault((it, p, slot), []).extend(ins)
    def kv(i, n):
        return f"buffer_load_dwordx4 v{V_L16}, {sr(S_KV2 if n >= 2 else S_KV, 4)}, s{S_KO[i]} offen offset:{1024*(n%2)}{opt.get('kvl', ' sc1')} lds"
    def check(tag, n):
        def f():
            if n is not None: g.i(f"s_waitcnt vmcnt({n})")
            g.i(f"v_cmp_ne_u32 vcc, 1, v{V_F}")
            g.i("s_nop 0")
            g.i(f"s_and_b32 vcc_lo, vcc_lo, s{S_MK}")
            g.i(f"s_cbranch_scc1 L_ol_{tag}")
            g.lab(f"L_olr_{tag}")
            side.append((tag, lambda: spin_mask(g, tag, poll)))
        return f
    def group(pg, tag, body):
        def f():
            g.i(f"s_cmp_lg_u32 s{S_PG}, {pg}")
            g.i(f"s_cbranch_scc1 L_pg_{tag}")
            body()
            g.lab(f"L_pg_{tag}")
        return f
    def flag():
        g.i(f"s_lshl_b32 s{S_T0}, s{S_TB}, 2")
        g.i(f"s_add_u32 s{S_T0}, s{S_T0}, s{S_WAVE}")
        g.i(f"s_lshl_b64 exec, 1, s{S_T0}")
        g.i("v_mov_b32 v6, 1")
        g.i(f"buffer_store_dword v6, v{V_FA}, s[{S_FL}:{S_FL+3}], 0 offen sc1")
        g.i("s_mov_b64 exec, -1")
    def stores(it, p0, pg):
        for k, (a_, b_) in enumerate(((0, 3), (3, 6), (6, 8))):
            at(it, p0 + k, 'p1', group(pg, f"s{pg}{k}", lambda a_=a_, b_=b_: [g.i(kv_store(n)) for n in range(a_, b_)]))
    def burst(i, it=None, p=None, slot=None):
        sl = i % 2
        if not opt.get('spread', 0):
            return [f"s_mov_b32 m0, s{S_LM[sl][0]}", "s_nop 0", kv(i, 0), kv(i, 1), f"s_mov_b32 m0, s{S_LM[sl][1]}", "s_nop 0", kv(i, 2), kv(i, 3)]
        seq = [(q, k) for q in range(p, 14) for k in ('p2', 'qk', 'p1')]
        seq = seq[seq.index((p, slot)) + 1:]
        at(it, *seq[0], kv(i, 1), f"s_mov_b32 m0, s{S_LM[sl][1]}")
        at(it, *seq[1], kv(i, 2))
        at(it, *seq[2], kv(i, 3))
        return [f"s_mov_b32 m0, s{S_LM[sl][0]}", "s_nop 0", kv(i, 0)]
    def count():
        g.i(f"s_cmp_lg_u32 s{S_WAVE}, 7")
        g.i("s_cbranch_scc1 L_at_nocnt")
        g.i(f"s_lshl_b32 s{S_T0}, s{S_BR}, 4")
        g.i(f"s_add_u32 s{S_T0}, s{S_T0}, s{S_HP}")
        g.i(f"s_lshl_b32 s{S_T0}, s{S_T0}, 3")
        g.i("s_mov_b64 exec, 1")
        g.i(f"v_mov_b32 v6, s{S_T0}")
        g.i("v_mov_b32 v7, 1")
        g.i(f"buffer_atomic_add v7, v6, s[{S_DBG}:{S_DBG+3}], 0 offen offset:4 sc1")
        g.i("s_mov_b64 exec, -1")
        g.lab("L_at_nocnt")
    pp, pi0, pc0, ps1, pi1, pc1, pi3, pc3 = opt.get('ev', (1, 7, 9, 1, 5, 7, 6, 8))
    at(0, pp, 'qk', group(0, "f0", lambda: (g.st('pub_pre'), g.i("s_waitcnt vmcnt(0)"), g.st('pub_ack'), flag())))
    stores(0, ps1, 1)
    at(0, pi0, 'qk', poll)
    at(0, pc0, 'qk', "s_waitcnt vmcnt(0)", group(1, "f1", flag), check("kv0", None), lambda: g.st('chk_ok'), *burst(1, 0, pc0, 'qk'),
       f"s_mov_b32 s{S_MK}, 0xffff")
    at(1, pi1, 'qk', poll)
    at(1, pc1, 'qk', check("kv1", 0), *burst(2, 1, pc1, 'qk'), f"s_mov_b32 s{S_MK}, -1")
    if opt.get('safe', 1):
        for k, (it_, p_, sl_, a_, b_) in enumerate(((1, 14, 'p1', 0, 3), (1, 15, 'p1', 3, 6), (2, 0, 'p1', 6, 8))):
            at(it_, p_, sl_, group(2, f"s2{k}", lambda a_=a_, b_=b_: [g.i(kv_store(n)) for n in range(a_, b_)]))
    else:
        stores(1, pc1 + 1 + opt.get('spread', 0), 2)
    at(2, 15, 'qk', group(2, "f2", flag))
    at(3, pi3, 'qk', poll)
    at(3, pc3, 'p2', check("kv2", 0), *burst(4, 3, pc3, 'p2'))
    late = {i: 0 for i in range(8)}
    dp = opt.get('dma', (1, 3, 5, 7))
    for i in (2, 4, 5, 6):
        sl = (i + 1) % 2
        at(i, dp[0] - 1, 'p2x', f"s_mov_b32 m0, s{S_LM[sl][0]}")
        at(i, dp[0], 'qk', kv(i + 1, 0))
        at(i, dp[1], 'qk', kv(i + 1, 1))
        at(i, dp[2], 'p2', f"s_mov_b32 m0, s{S_LM[sl][1]}")
        at(i, dp[2], 'qk', kv(i + 1, 2))
        at(i, dp[3], 'qk', kv(i + 1, 3))
    SF = opt.get('safe', 1)
    wits = (1, 3, 4, 5) if SF else (1, 2, 3, 4)
    for n, i in enumerate(wits):
        for k, p in enumerate((9, 11) if SF and i >= 4 else (11, 13)):
            at(i, p, 'p2', f"s_add_u32 m0, s{S_E}, {(2*n+k)*1024}")
            at(i, p, 'qk', f"buffer_load_dwordx4 v{V_WOA}, s[{S_WO}:{S_WO+3}], s55 offen lds")
            at(i, p, 'p1', "s_add_u32 s55, s55, 8192")
        late[i] += 2
    OW = opt.get('opw', 4 if SF else 2)
    if SF:
        for i in (OW, 5): at(i, 12, 'p1', "s_waitcnt vmcnt(2)")
    for k, so in enumerate((S_OA, S_OB)):
        at(5, 12 + k, 'p1', f"buffer_store_dwordx4 v[252:255], v{V_L16}, s[{S_O}:{S_O+3}], s{so} offen sc1")
    late[5] += 2
    if OW:
        at(OW, 12, 'p1', f"buffer_store_dwordx4 v[252:255], v{V_OW}, s[{S_OUT}:{S_OUT+3}], s{S_OW} offen sc1", f"s_add_u32 s{S_T0}, s{S_OW}, 16384")
        at(OW, 13, 'p1', f"buffer_store_dwordx4 v[252:255], v{V_OW}, s[{S_OUT}:{S_OUT+3}], s{S_T0} offen sc1")
        late[OW] += 2
    if opt.get('opr'):
        at(7, 3, 'qk', f"buffer_load_dwordx4 v[236:239], v{V_OW}, s[{S_OUT}:{S_OUT+3}], s{S_OW} offen", f"s_add_u32 s{S_T0}, s{S_OW}, 16384")
        at(7, 5, 'qk', f"buffer_load_dwordx4 v[236:239], v{V_OW}, s[{S_OUT}:{S_OUT+3}], s{S_T0} offen")
    if opt.get('early', 1):
        at(7, 3, 'qk', f"s_lshr_b32 s{S_E}, s{S_WAVE}, 2", f"s_lshr_b32 s{S_T0}, s{S_HP}, 3", f"s_lshl_b32 s{S_T0}, s{S_T0}, 2",
           f"s_and_b32 s{S_T1}, s{S_WAVE}, 3", f"s_add_u32 s{S_A}, s{S_T0}, s{S_T1}")
        at(7, 5, 'qk', f"s_lshl_b32 s{S_T0}, s{S_TB}, 3", f"s_add_u32 s{S_A}, s{S_A}, s{S_T0}", f"s_lshl_b32 s{S_B}, s{S_A}, 15",
           f"s_lshl_b32 s{S_T0}, s{S_E}, 14", f"s_add_u32 s{S_B}, s{S_B}, s{S_T0}")
        if opt.get('orot', 0):
            for k, (d, q) in enumerate(((S_A, 6), (S_C, 7), (S_D, 8), (S_IT, 9))):
                at(7, q, 'p1', f"s_add_u32 s{S_T1}, s{S_F}, {k}", f"s_and_b32 s{S_T1}, s{S_T1}, 3", f"s_lshl_b32 s{S_T1}, s{S_T1}, 12",
                   f"s_add_u32 s{d}, s{S_B}, s{S_T1}")
            at(7, 7, 'qk', f"s_lshl_b32 s{S_T0}, s{S_BR}, 7")
        else:
            at(7, 7, 'qk', f"s_mov_b32 s{S_A}, s{S_B}", f"s_add_u32 s{S_C}, s{S_B}, 4096", f"s_add_u32 s{S_D}, s{S_B}, 8192",
               f"s_add_u32 s{S_IT}, s{S_B}, 12288", f"s_lshl_b32 s{S_T0}, s{S_BR}, 7")
        at(7, 9, 'qk', "v_and_b32 v6, 15, v0", f"v_lshl_add_u32 v{V_CA}, v6, 3, s{S_T0}", f"v_lshlrev_b32 v{V_PA}, 10, v6")
        at(7, opt.get('certp', 13), 'qk', f"buffer_load_dword v236, v{V_CA}, s[{S_DBG}:{S_DBG+3}], 0 offen offset:4 sc1")
        EM = opt.get('earlym', 0)
        def early_probe():
            g.i(f"s_lshr_b32 s{S_T0}, s{S_HP}, 3")
            g.i(f"s_cmp_eq_u32 s{S_T0}, s{S_E}")
            g.i("s_cbranch_scc1 L_at_noprobe")
            g.i(f"buffer_load_dword v237, v{V_PA}, s[{S_O}:{S_O+3}], s{S_B} offen offset:1020 sc1")
            g.lab("L_at_noprobe")
        at(7, 11, 'qk', "v_mov_b32 v236, 0")
        if EM: at(7, 11, 'qk', "v_mov_b32 v237, -1")
        if EM == 1: at(7, 15, 'p1', early_probe)
        if EM == 2: at(7, 15, 'p1', f"buffer_load_dword v237, v{V_PA}, s[{S_O}:{S_O+3}], s{S_B} offen offset:1020 sc1")
    at(7, 1, 'qk', count)
    if opt.get('x_late0'): late = {i: 0 for i in range(8)}
    prio = opt.get('prio', {0: 3, 5: 2, 10: 1, 13: 0})
    for i in range(8):
        for p, v in prio.items():
            ii, q = (i, p - 1) if p else (i - 1, 15)
            if i == 7 and v == 0 and opt.get('pend', 2): continue
            if ii >= 0: at(ii, q, 'p1', f"s_setprio {v}")
    def emit(it, p, slot):
        for x in ev.pop((it, p, slot), []):
            x() if callable(x) else g.i(x)
    p2, pq, p1 = opt.get('pos', (1, 5, 10))
    for it in range(8):
        if opt.get('itst'):
            g.i("s_memtime s[98:99]")
            g.i("s_memrealtime s[100:101]")
            g.i("s_waitcnt lgkmcnt(0)")
            g.i(f"v_writelane_b32 v250, s98, {it}")
            g.i(f"v_writelane_b32 v250, s100, {it+9}") if it < 7 else None
        for p in range(2 * U):
            b, t = p % 2, p // 2
            S, So = V_S[b], V_S[1 - b]
            nt = (t + 1) % U
            sl = (it + (t == U - 1)) % 2
            VA = V_VB if sl else V_VA
            last = it == 7 and t == U - 1
            skip = last or (opt.get('x_half') and t % 2 == 0)
            for e in range(16):
                g.i(f"v_exp_f32 v{S+e}, v{S+e}")
                if e == p2:
                    tp = (p - 1) // 2
                    if it or p:
                        g.i(f"v_smfmac_f32_32x32x32_bf16 {vr(V_O[1-b],16)}, {vr(V_V[tp%2]+4,4)}, {vr(So+8,8)}, v{V_IDX}")
                    emit(it, p, 'p2x')
                    if b == 0:
                        if t == U - 1 and it < 7:
                            if it == 1 and not opt.get('safe', 1):
                                g.i(f"s_waitcnt vmcnt({late[it] + 8})")
                                g.i(f"s_cmp_eq_u32 s{S_PG}, 2")
                                g.i("s_cbranch_scc1 L_w8")
                                g.i(f"s_waitcnt vmcnt({late[it]})")
                                g.lab("L_w8")
                            else: g.i(f"s_waitcnt vmcnt({late[it]})")
                            if it == 0: g.st('chk1_ok')
                            g.i("s_barrier")
                        if not skip:
                            xm = opt.get('x_em') and (it or t)
                            if xm: g.i("s_mov_b64 exec, s[100:101]")
                            g.i(f"ds_read_b128 {vr(V_V[(t+1)%2],4)}, v{VA} offset:{nt*2048}")
                            if xm: g.i("s_mov_b64 exec, -1")
                    elif not last:
                        g.i("s_waitcnt lgkmcnt(1)")
                    emit(it, p, 'p2')
                if e == pq:
                    if not (last and b):
                        g.i(f"v_mfma_f32_32x32x16_bf16 {vr(So,16)}, {vr(V_K,4)}, {vr(V_Q[1-b],4)}, 0")
                    if b == 0 and not skip:
                        g.i(f"ds_read_b128 {vr(V_K,4)}, v{V_KA} offset:{sl*RING+nt*2048}")
                    if b == 0 and skip: g.i("s_nop 0")
                    emit(it, p, 'qk')
                if e == p1:
                    g.i(f"v_smfmac_f32_32x32x32_bf16 {vr(V_O[b],16)}, {vr(V_V[t%2],4)}, {vr(S,8)}, v{V_IDX}")
                    if b == 0 and last: pass
                    elif b == 0 and skip: pass
                    elif b == 0:
                        xm = opt.get('x_em') and (it or t)
                        if xm: g.i("s_mov_b64 exec, s[100:101]")
                        g.i(f"ds_read_b128 {vr(V_V[(t+1)%2]+4,4)}, v{VA} offset:{nt*2048+512}")
                        if xm: g.i("s_mov_b64 exec, -1")
                    elif not last:
                        g.i("s_waitcnt lgkmcnt(0)")
                    emit(it, p, 'p1')
    assert not ev, ev
    g.side = side
    g.lab("L_at_done")
    g.i("s_nop 1")
    g.i(f"v_smfmac_f32_32x32x32_bf16 {vr(V_O[1],16)}, {vr(V_V[1]+4,4)}, {vr(V_S[1]+8,8)}, v{V_IDX}")
    if opt.get('pend', 2) == 1: g.i("s_setprio 0")
    g.stamp(4)
    if opt.get('itst'):
        g.i("s_memtime s[98:99]")
        g.i("s_waitcnt lgkmcnt(0)")
        g.i(f"v_writelane_b32 v250, s98, 8")
    g.i(f"s_mov_b32 s{S_T0}, 0x2b800000")
    g.i(f"s_mov_b32 s{S_T1}, 0x53800000")
    g.i(f"s_mov_b32 s{S_T2}, 0x7f800000")
    for q in range(2):
        O = V_O[q]
        g.i(f"v_maximum3_f32 v6, abs(v{O}), abs(v{O+1}), abs(v{O+2})")
        g.i(f"v_maximum3_f32 v7, abs(v{O+3}), abs(v{O+4}), abs(v{O+5})")
        g.i(f"v_maximum3_f32 v6, v6, abs(v{O+6}), abs(v{O+7})")
        g.i(f"v_maximum3_f32 v6, v6, v7, v7")
        g.i(f"v_cmp_nle_f32 s[{S_M}:{S_M+1}], s{S_T0}, v{O+8}")
        g.i(f"v_cmp_nge_f32 s[{S_M+2}:{S_M+3}], s{S_T1}, v{O+8}")
        g.i(f"v_cmp_ngt_f32 vcc, s{S_T2}, v6")
        g.i(f"v_rcp_f32 v{V_S[0]+2*q}, v{O+8}")
        g.i(f"s_or_b64 s[{S_M}:{S_M+1}], s[{S_M}:{S_M+1}], s[{S_M+2}:{S_M+3}]")
        g.i(f"s_or_b64 s[{S_M}:{S_M+1}], s[{S_M}:{S_M+1}], vcc")
        g.i("s_branch L_fallback" if opt.get('force_fallback') else "s_cbranch_scc1 L_fallback")
    g.lab("L_at_store")
    for q in range(2):
        O = V_O[q]
        for r in range(0, 8, 2):
            g.i(f"v_pk_mul_f32 v[{O+r}:{O+r+1}], v[{O+r}:{O+r+1}], v[{V_S[0]+2*q}:{V_S[0]+2*q+1}] op_sel_hi:[1,0]")
        for r in range(4):
            g.i(f"v_cvt_pk_bf16_f32 v{O+r}, v{O+2*r}, v{O+2*r+1}")
        g.i(f"buffer_store_dwordx4 {vr(O,4)}, v{V_L16}, s[{S_O}:{S_O+3}], s{S_OB if q else S_OA} offen{opt.get('ost', ' sc1')}")

P_WO = 100
P_OF = 8
def outproj(g):
    opt = g.opt
    A0, A1 = 228, 72
    WA0, WA1, RA = 244, 245, 246
    NW = opt.get('nw', 6)
    def o_loads(fl=' sc1', rng=None):
        for s in (rng if rng is not None else range(NW)):
            so = (S_A, S_C, S_D, S_IT)[s // 4]
            g.i(f"buffer_load_dwordx4 {vr(P_OF+4*s,4)}, v{V_L16}, s[{S_O}:{S_O+3}], s{so} offen offset:{1024*(s%4)}{fl}")
    if opt.get('pend', 2) == 2: g.i("s_setprio 0")
    if opt.get('x_ack'): g.i("s_waitcnt vmcnt(0)")
    g.stamp(5)
    g.i("s_waitcnt vmcnt(2)")
    g.i("v_cmp_gt_u32 vcc, 8, v236")
    g.i(f"s_mov_b32 s{S_T3}, 0")
    if opt.get('earlym', 0):
        g.i(f"v_cmp_eq_u32 s[{S_M}:{S_M+1}], -1, v237")
        g.i("s_nop 0")
        g.i(f"s_or_b64 s[{S_M}:{S_M+1}], s[{S_M}:{S_M+1}], vcc")
    if opt.get('earlym', 0):
        g.i("s_cbranch_scc1 L_op_later")
        o_loads()
        g.lab("L_op_later")
    g.i(f"s_lshl_b32 s{S_T0}, s{S_E}, 15")
    g.i(f"s_add_u32 s{S_T0}, s{S_T0}, {L_WO}")
    g.i("v_lshrrev_b32 v6, 5, v0")
    g.i("v_bfe_u32 v7, v0, 2, 2")
    g.i("v_lshl_add_u32 v6, v6, 2, v7")
    g.i(f"v_lshl_add_u32 v6, v6, 7, s{S_T0}")
    g.i("v_bfe_u32 v7, v0, 3, 2")
    g.i("v_and_b32 v2, 1, v7")
    g.i("v_lshl_add_u32 v6, v2, 6, v6")
    g.i("v_lshrrev_b32 v7, 1, v7")
    g.i("v_lshl_add_u32 v6, v7, 5, v6")
    g.i("v_and_b32 v7, 3, v0")
    g.i(f"v_lshl_add_u32 v6, v7, 3, v6")
    g.i(f"s_lshl_b32 s{S_T0}, s{S_E}, 6")
    g.i(f"v_xor_b32 v{WA0}, s{S_T0}, v6")
    g.i(f"v_xor_b32 v{WA1}, 64, v{WA0}")
    for s in range(16):
        if s and s % 3 == 0: g.i("s_waitcnt lgkmcnt(2)")
        for f in range(2):
            for i in range(2):
                g.i(f"ds_read_b64_tr_b16 {vr(P_WO+8*s+4*f+2*i,2)}, v{WA1 if f else WA0} offset:{s*2048+i*1024}")
    g.i(f"s_lshl_b32 s{S_T0}, s{S_WAVE}, 12")
    g.i(f"v_add_u32 v{RA}, s{S_T0}, v{V_L16}")
    g.i(f"s_and_b32 s{S_T0}, s{S_WAVE}, 3")
    g.i(f"s_lshl_b32 s{S_T0}, s{S_T0}, 12")
    g.i(f"s_add_u32 s{S_T0}, s{S_T0}, {RING}")
    g.i("v_and_b32 v6, 31, v0")
    g.i(f"v_lshl_add_u32 v6, v6, 7, s{S_T0}")
    g.i("v_lshrrev_b32 v7, 5, v0")
    g.i(f"v_lshl_add_u32 v7, s{S_E}, 2, v7")
    g.i("v_and_b32 v91, 7, v0")
    g.i("v_xor_b32 v7, v7, v91")
    g.i("v_lshl_add_u32 v88, v7, 4, v6")
    g.i("v_xor_b32 v89, 32, v88")
    g.i("v_lshrrev_b32 v6, 3, v0")
    g.i("v_xor_b32 v7, v6, v91")
    g.i(f"v_lshl_add_u32 v6, v6, 7, s{S_T0}")
    g.i("v_lshl_add_u32 v6, v7, 4, v6")
    g.i(f"v_lshl_add_u32 v90, s{S_E}, 11, v6")
    g.st('t_tr')
    if opt.get('earlym', 0):
        g.i(f"s_cmp_eq_u64 s[{S_M}:{S_M+1}], 0")
        g.i("s_cbranch_scc1 L_op_mm")
    g.i("s_cbranch_vccz L_spin_o")
    g.lab("L_spin_c")
    g.i(f"buffer_load_dword v5, v{V_CA}, s[{S_DBG}:{S_DBG+3}], 0 offen offset:4 sc1")
    g.i(f"s_add_u32 s{S_T3}, s{S_T3}, 1")
    g.i(f"s_cmp_ge_u32 s{S_T3}, {SPIN_MAX}")
    g.i("s_cbranch_scc1 L_spin_o")
    g.i("s_waitcnt vmcnt(0)")
    g.i("v_cmp_gt_u32 vcc, 8, v5")
    g.i("s_cbranch_vccnz L_spin_c")
    g.lab("L_spin_o")
    g.i(f"buffer_load_dword v3, v{V_PA}, s[{S_O}:{S_O+3}], s{S_B} offen offset:1020{opt.get('pfl', ' sc1')}")
    g.i(f"s_add_u32 s{S_T3}, s{S_T3}, 1")
    g.i(f"s_cmp_ge_u32 s{S_T3}, {SPIN_MAX}")
    g.i("s_cbranch_scc1 L_spun_o")
    g.i("s_waitcnt vmcnt(0)")
    g.i("v_cmp_eq_u32 vcc, -1, v3")
    if opt.get('sleep'): g.i(f"s_cbranch_vccz L_spun_o"); g.i(f"s_sleep {opt['sleep']}"); g.i("s_branch L_spin_o")
    g.i("s_cbranch_vccnz L_spin_o")
    g.lab("L_spun_o")
    g.st('t_ok')
    if 'ofl' in opt:
        g.i(f"s_cmp_lg_u32 s{S_PG}, 99")
        g.i(f"s_mov_b32 s{S_PG}, 99")
        g.i("s_cbranch_scc1 L_op_first")
        o_loads()
        g.i("s_branch L_op_mm")
        g.lab("L_op_first")
        o_loads(opt['ofl'])
    else:
        o_loads()
    g.lab("L_op_mm")
    g.stamp(6)
    g.i("v_mov_b32 v3, 0")
    g.i("s_waitcnt lgkmcnt(0)")
    for s in range(16):
        g.i(f"s_waitcnt vmcnt({min(NW - 1, 15 - s)})")
        if s + NW < 16: o_loads(rng=[s + NW])
        if s == 0: g.st('t_f0')
        if s == 15: g.st('t_f15')
        for f, A in ((1, A1), (0, A0)):
            g.i(f"v_mfma_f32_32x32x16_bf16 {vr(A,16)}, {vr(P_WO+8*s+4*f,4)}, {vr(P_OF+4*s,4)}, {vr(A,16) if s else 0}")
            g.i(f"v_max3_u32 v3, v3, v{P_OF+4*s+2*f}, v{P_OF+4*s+2*f+1}")
    g.i("v_cmp_eq_u32 vcc, -1, v3")
    g.i(f"s_cmp_ge_u32 s{S_T3}, {SPIN_MAX}")
    g.i("s_cbranch_scc1 L_op_go")
    g.i("s_cbranch_vccnz L_spin_o")
    g.lab("L_op_go")
    g.i("s_nop 5")
    for r in range(4):
        g.i(f"ds_write_b128 v{RA}, {vr(A1+4*r,4)} offset:{1024*r}")
    g.i("s_waitcnt lgkmcnt(0)")
    g.i(f"v_xor_b32 v{RA}, 16384, v{RA}")
    g.st('t_b9a')
    barrier_unless_dry(g, "b9")
    g.st('t_b9')
    for r in range(4):
        g.i(f"ds_read_b128 {vr(P_OF+4*r,4)}, v{RA} offset:{1024*r}")
    for r in range(4):
        g.i(f"s_waitcnt lgkmcnt({3-r})")
        for k in range(4):
            g.i(f"v_add_f32 v{A0+4*r+k}, v{A0+4*r+k}, v{P_OF+4*r+k}")
        for k in range(2):
            g.i(f"v_cvt_pk_bf16_f32 v{24+2*r+k}, v{A0+4*r+2*k}, v{A0+4*r+2*k+1}")
        if r % 2:
            g.i("s_nop 1")
            g.i(f"v_permlane32_swap_b32 v{24+2*r-2}, v{24+2*r}")
            g.i(f"v_permlane32_swap_b32 v{24+2*r-1}, v{24+2*r+1}")
            g.i(f"ds_write_b128 v{88+r//2}, {vr(24+2*r-2,4)}")
    if True:
        g.i(f"s_add_u32 s{S_T0}, s{S_OW}, 16384")
        g.i("s_waitcnt lgkmcnt(0)")
        barrier_unless_dry(g, "b10")
        g.i("ds_read_b128 v[24:27], v90")
        g.i("ds_read_b128 v[28:31], v90 offset:1024")
        g.i("s_waitcnt lgkmcnt(1)")
        g.i(f"buffer_store_dwordx4 v[24:27], v{V_OW}, s[{S_OUT}:{S_OUT+3}], s{S_OW} offen{opt.get('outs','')}")
        g.i("s_waitcnt lgkmcnt(0)")
        g.i(f"buffer_store_dwordx4 v[28:31], v{V_OW}, s[{S_OUT}:{S_OUT+3}], s{S_T0} offen{opt.get('outs','')}")
    dry_exit(g)
    if g.diag:
        g.i("s_waitcnt vmcnt(0)")
        g.stamp(7)
        g.i("s_waitcnt lgkmcnt(0)")
        if g.diag == 3:
            a_, b_, K = opt['leak']
            if opt.get('leakw'):
                g.i(f"s_cmp_lt_u32 s{S_WAVE}, 4")
                g.i("s_cbranch_scc1 L_end")
            elif a_ in (1, 2) or b_ in (1, 2):
                g.i(f"s_cmp_ge_u32 s{S_WAVE}, 4")
                g.i("s_cbranch_scc1 L_end")
            if opt.get('leakc'):
                g.i(f"s_sub_u32 s{S_T0}, s{64+4*b_}, s{64+4*a_}")
                g.i(f"s_lshr_b32 s{S_T0}, s{S_T0}, 4")
            else:
                g.i(f"s_sub_u32 s{S_T0}, s{66+4*b_}, s{66+4*a_}")
            g.i(f"s_mul_i32 s{S_T0}, s{S_T0}, {K}")
            g.lab("L_leak")
            g.i("s_memrealtime s[98:99]")
            g.i("s_waitcnt lgkmcnt(0)")
            g.i(f"s_sub_u32 s{S_T1}, s98, s{66+4*7}")
            g.i(f"s_cmp_lt_u32 s{S_T1}, s{S_T0}")
            g.i("s_cbranch_scc1 L_leak")
            g.i("s_endpgm")
        if g.diag == 2:
            g.i(f"s_cmp_ge_u32 s{S_WAVE}, 4")
            g.i("s_cbranch_scc1 L_end")
            g.i("s_mov_b64 exec, 1")
            for k in range(1, 8):
                g.i(f"s_sub_u32 s{S_T0}, s{66+4*k}, s66")
                g.i(f"v_mov_b32 v6, s{S_T0}")
                g.i(f"v_mov_b32 v7, {8*k+4}")
                g.i(f"buffer_atomic_umax v6, v7, s[{S_DBG}:{S_DBG+3}], 0 offen sc1")
            g.i(f"s_sub_u32 s{S_T0}, s{64+4*4}, s{64+4*3}")
            g.i(f"v_mov_b32 v6, s{S_T0}")
            g.i(f"v_mov_b32 v7, 4")
            g.i(f"buffer_atomic_umax v6, v7, s[{S_DBG}:{S_DBG+3}], 0 offen sc1")
            g.i("s_endpgm")
        g.i(f"s_lshl_b32 s{S_T0}, s2, 3")
        g.i(f"s_add_u32 s{S_T0}, s{S_T0}, s{S_WAVE}")
        g.i(f"s_lshl_b32 s{S_T0}, s{S_T0}, 7")
        g.i(f"s_add_u32 s{S_T0}, s{S_T0}, {WS_STAMP}")
        srd(g.a, S_X, 96, 128, f"s{S_T0}")
        for k in range(32):
            g.i(f"v_mov_b32 v{36+k}, s{64+k}")
        g.i("v_mov_b32 v6, 0")
        for k in range(8):
            g.i(f"buffer_store_dwordx4 {vr(36+4*k,4)}, v6, s[{S_X}:{S_X+3}], 0 offen offset:{16*k}")
        if opt.get('itst'):
            g.i(f"s_add_u32 s{S_T0}, s{S_T0}, {1<<20}")
            srd(g.a, S_X, 96, 64, f"s{S_T0}")
            g.i("v_lshlrev_b32 v6, 2, v0")
            g.i(f"buffer_store_dword v250, v6, s[{S_X}:{S_X+3}], 0 offen")
    g.lab("L_end")
    g.i("s_endpgm")

def fallback(g):
    C = [100, 116]; M = [132, 133]; GV = 134
    g.lab("L_fallback")
    g.i(f"s_lshr_b32 s{S_T0}, s{S_WAVE}, 2")
    g.i(f"s_lshl_b32 s{S_T0}, s{S_T0}, 17")
    g.i(f"v_mov_b32 v{M[0]}, 0xff800000")
    g.i(f"v_mov_b32 v{M[1]}, 0xff800000")
    g.i(f"s_mov_b32 s{S_T1}, s{S_T0}")
    g.i(f"s_add_u32 s{S_T2}, s{S_T0}, 131072")
    g.lab("L_fb_max")
    g.i(f"buffer_load_dwordx4 {vr(V_K,4)}, v{V_L16}, s[{S_KV}:{S_KV+3}], s{S_T1} offen sc1")
    g.i(f"s_add_u32 s{S_T1}, s{S_T1}, 2048")
    g.i("s_waitcnt vmcnt(0)")
    for q in range(2):
        g.i(f"v_mfma_f32_32x32x16_bf16 {vr(V_S[q],16)}, {vr(V_K,4)}, {vr(V_Q[q],4)}, 0")
    g.i("s_nop 15")
    for q in range(2):
        for r in range(0, 16, 2):
            g.i(f"v_max3_f32 v{M[q]}, v{M[q]}, v{V_S[q]+r}, v{V_S[q]+r+1}")
    g.i(f"s_cmp_lt_u32 s{S_T1}, s{S_T2}")
    g.i("s_cbranch_scc1 L_fb_max")
    for q in range(2):
        g.i(f"v_mov_b32 v6, v{M[q]}")
        g.i(f"v_mov_b32 v7, v{M[q]}")
        g.i("s_nop 1")
        g.i("v_permlane32_swap_b32 v6, v7")
        g.i("s_nop 1")
        g.i("v_max_f32 v6, v6, v7")
        for r in range(16):
            g.i(f"v_sub_f32 v{C[q]+r}, 0, v6")
            g.i(f"v_mov_b32 v{V_O[q]+r}, 0")
    g.i("v_and_b32 v6, 15, v0")
    g.i("v_lshlrev_b32 v6, 4, v6")
    g.i("v_lshrrev_b32 v7, 5, v0")
    g.i(f"v_lshl_add_u32 v{GV}, v7, 8, v6")
    for r in range(8):
        g.i(f"v_mov_b32 v{V_V[0]+r}, 0x3f803f80")
    g.i(f"s_mov_b32 s{S_T1}, s{S_T0}")
    g.i(f"s_mov_b32 s{S_M}, 0xffff")
    g.i(f"s_mov_b32 s{S_M+1}, 0xffff")
    g.lab("L_fb_pv")
    g.i(f"buffer_load_dwordx4 {vr(V_K,4)}, v{V_L16}, s[{S_KV}:{S_KV+3}], s{S_T1} offen sc1")
    g.i(f"s_mov_b64 exec, s[{S_M}:{S_M+1}]")
    g.i(f"buffer_load_dwordx4 {vr(V_V[0],4)}, v{GV}, s[{S_KV}:{S_KV+3}], s{S_T1} offen offset:1024 sc1")
    g.i(f"buffer_load_dwordx4 {vr(V_V[0]+4,4)}, v{GV}, s[{S_KV}:{S_KV+3}], s{S_T1} offen offset:1536 sc1")
    g.i("s_mov_b64 exec, -1")
    g.i(f"s_add_u32 s{S_T1}, s{S_T1}, 2048")
    g.i("s_waitcnt vmcnt(0)")
    for q in range(2):
        g.i(f"v_mfma_f32_32x32x16_bf16 {vr(V_S[q],16)}, {vr(V_K,4)}, {vr(V_Q[q],4)}, {vr(C[q],16)}")
    g.i("s_nop 15")
    for q in range(2):
        for r in range(16):
            g.i(f"v_exp_f32 v{V_S[q]+r}, v{V_S[q]+r}")
    g.i("s_nop 3")
    for q in range(2):
        for h in range(2):
            g.i(f"v_smfmac_f32_32x32x32_bf16 {vr(V_O[q],16)}, {vr(V_V[0]+4*h,4)}, {vr(V_S[q]+8*h,8)}, v{V_IDX}")
    g.i("s_nop 15")
    g.i(f"s_cmp_lt_u32 s{S_T1}, s{S_T2}")
    g.i("s_cbranch_scc1 L_fb_pv")
    for q in range(2):
        g.i(f"v_rcp_f32 v{V_S[0]+2*q}, v{V_O[q]+8}")
    g.i("s_nop 1")
    g.i("s_branch L_at_store")

HEADER = open('cdna_kernels/' + NAME + '.s.ref').read().split('; Override launch')[0]

DOC = """;
; One persistent launch, 256 workgroups (one per CU) x 8 waves.  Workgroup = (branch, head pair hp, block tb of 256 tokens).
;  1. QKV projection of the 256 tokens x 96 columns (q,k,v of the two heads).  Waves 4-7 stream x and wqkv into a 3-slot
;     O^T += [V^T; 1] P^T with v_smfmac_f32_32x32x32_bf16 whose 2:4 index picks the upper halves of the fp32 p registers
;     (bf16 p without a pack instruction; the row of ones gives the softmax denominator from the same p).
;     first filled with an all-ones pattern, a consumer accepts a fragment when no word holds the pattern any more.
; Generated by a Python script (register maps and schedules are spelled out below)."""

def generate(opt={}):
    global WS_KV, WS_O, WS_FLAG, KVT
    KVT = 132 if opt.get('peel', 1) else 204
    off = opt.get('wsoff', 0) << 20
    WS_KV, WS_O, WS_FLAG = (4 << 20) + off, (12 << 20) + off, (16 << 20) + off
    g = G(opt)
    name = NAME + "_kernel"
    g.a(HEADER.rstrip())
    g.a(f"; @launch grid=(256,1,1) block=(512,1,1) lds={LDS_TOTAL}")
    g.a(DOC)
    g.a('.amdgcn_target "amdgcn-amd-amdhsa--gfx950"')
    entry(g, name)
    if opt.get('lfirst', 1): loader(g)
    compute(g)
    attention(g)
    outproj(g)
    if not opt.get('lfirst', 1): loader(g)
    g.lab("L_code_end")
    for tag, body in g.side:
        g.lab(f"L_ol_{tag}")
        body()
        g.i(f"s_branch L_olr_{tag}")
    fallback(g)
    kernel_desc(g.a, name, NVGPR, 256, 102)
    return g.a.text()

if __name__ == "__main__":
    import sys
    opt = eval(sys.argv[2]) if len(sys.argv) > 2 else {}
    open(sys.argv[1], 'w').write(generate(opt))
```

```python
import math, struct
from common import *

WS_FLAG = 16 << 20
SLOT = 45056; SLOT_W = 32768
RING = 32768
L_WO = 65536
L_CONST = 135168
L_QX = 155648
LDS_TOTAL = 163840
S_X, S_W, S_WO, S_KV, S_O, S_FL, S_DBG, S_OUT = 8, 12, 16, 20, 24, 28, 32, 36
S_WAVE, S_BR, S_HP, S_TB, S_IT, S_T0, S_T1, S_T2, S_T3 = 40, 41, 42, 43, 44, 45, 46, 47, 48
S_A, S_B, S_C, S_D, S_E, S_F = 49, 50, 51, 52, 53, 54
S_G1, S_G2, S_PG = 58, 59, 60
KG, KL, VG, VL, QL, KVT = 244, 245, 247, 248, 249, 204
S_M = 56
V_L16, V_KA, V_VA, V_VX, V_IDX, V_T0, V_T1 = 1, 2, 3, 4, 5, 6, 7
V_Q = [8, 12]; V_K = 16; V_V = [20, 28]; V_S = [36, 52]; V_O = [68, 84]
V_F = 241
V_FA = 242
V_OW = 251
V_CA, V_PA = 248, 249
V_WOA = 243
V_ACC = 100
V_FR = [196, 216]
V_XA = 236; V_WA = 240
NVGPR = 256
QSCALE = struct.unpack('<I', struct.pack('<f', 0.25 * math.log2(math.e)))[0]
SPIN_MAX = 1 << 20
S_DRY = 3

class G:
    def __init__(self, opt):
        self.a = Asm(); self.opt = opt; self.diag = opt.get('diag', 0)
    def i(self, s): self.a.i(s)
    def lab(self, s): self.a.label(s)
    def st(self, name):
        m = self.opt.get('st', {})
        if name in m: self.stamp(m[name], True)
    def stamp(self, k, forced=False):
        if k in self.opt.get('st', {}).values() and not forced: return
        if self.diag:
            self.i(f"s_memtime s[{64+4*k}:{65+4*k}]")
            self.i(f"s_memrealtime s[{66+4*k}:{67+4*k}]")

def dry_exit(g, label="L_dry_ret"):
    if g.opt.get('dry', 0):
        g.i(f"s_cmp_lg_u32 s{S_DRY}, 0")
        g.i(f"s_cbranch_scc1 {label}")

def barrier_unless_dry(g, tag):
    dry_exit(g, f"L_nb_{tag}")
    g.i("s_barrier")
    g.lab(f"L_nb_{tag}")

def spin(g, tag, load, want, nlanes_mask=None):
    g.i(f"s_mov_b32 s{S_T3}, 0")
    g.lab(f"L_spin_{tag}")
    g.i(load)
    g.i(f"s_add_u32 s{S_T3}, s{S_T3}, 1")
    g.i("s_waitcnt vmcnt(0)")
    g.i(f"v_cmp_{'gt' if want > 1 else 'ne'}_u32 vcc, {want}, v{V_F}")
    g.i(f"s_cmp_ge_u32 s{S_T3}, {SPIN_MAX}")
    g.i(f"s_cbranch_scc1 L_spun_{tag}")
    g.i(f"s_cbranch_vccnz L_spin_{tag}")
    g.lab(f"L_spun_{tag}")

def entry(g, name):
    a = g.a
    kernel_head(a, name)
    PF = g.opt.get('cpf', 4)
    if PF in (2, 3):
        g.i("s_getpc_b64 s[16:17]")
    if PF == 1:
        g.i("s_getpc_b64 s[8:9]")
        g.i("v_lshlrev_b32 v6, 7, v0")
        g.i("s_mov_b32 s10, L_code_end-" + name + "-4")
        g.i("s_mov_b32 s11, 0x20000")
    if PF == 4:
        g.i("s_getpc_b64 s[8:9]")
        g.i("v_lshlrev_b32 v6, 7, v0")
        g.i("s_lshl_b32 s4, s2, 7")
        g.i("s_and_b32 s4, s4, 0x7c00")
        g.i("s_add_u32 s10, s4, 1024")
        g.i("s_min_u32 s10, s10, L_code_end-" + name + "-4")
        g.i("s_mov_b32 s11, 0x20000")
    g.i("s_cmp_ge_u32 s2, 256")
    g.i("s_cbranch_scc1 L_end")
    if PF == 1:
        g.i("buffer_load_dword v246, v6, s[8:11], 0 offen")
    if PF == 4:
        g.i("buffer_load_dword v246, v6, s[8:11], s4 offen")
    g.stamp(0)
    if g.opt.get('dry', 0): g.i(f"s_mov_b32 s{S_DRY}, 0")
    g.i(f"s_bfe_u32 s{S_BR}, s2, 0x10002")
    g.i(f"s_mul_i32 s{S_T0}, s{S_BR}, 24")
    g.i(f"s_load_dwordx4 s[{S_M}:{S_M+3}], s[0:1], s{S_T0}")
    g.i(f"s_load_dwordx2 s[{S_M+4}:{S_M+5}], s[0:1], s{S_T0} offset:16")
    g.i("s_load_dwordx4 s[4:7], s[0:1], 48")
    g.i(f"s_load_dwordx2 s[{S_M+6}:{S_M+7}], s[0:1], 64")
    g.i("v_lshrrev_b32 v6, 6, v0")
    g.i("v_and_b32 v0, 63, v0")
    g.i(f"v_readfirstlane_b32 s{S_WAVE}, v6")
    g.i(f"v_lshlrev_b32 v{V_L16}, 4, v0")
    g.i(f"s_bfe_u32 s{S_HP}, s2, 0x10001")
    g.i(f"s_lshl_b32 s{S_HP}, s{S_HP}, 3")
    g.i(f"s_bfe_u32 s{S_T0}, s2, 0x30003")
    g.i(f"s_add_u32 s{S_HP}, s{S_HP}, s{S_T0}")
    g.i(f"s_and_b32 s{S_TB}, s2, 1")
    g.i(f"s_lshl_b32 s{S_TB}, s{S_TB}, 2")
    g.i(f"s_lshr_b32 s{S_T0}, s2, 6")
    g.i(f"s_add_u32 s{S_TB}, s{S_TB}, s{S_T0}")
    g.i(f"s_lshl_b32 s{S_T0}, s{S_TB}, 18")
    g.i(f"s_lshl_b32 s{S_T1}, s{S_BR}, 4")
    g.i(f"s_add_u32 s{S_T1}, s{S_T1}, s{S_HP}")
    g.i(f"s_lshl_b32 s{S_T2}, s{S_T1}, 18")
    g.i(f"s_add_u32 s{S_T2}, s{S_T2}, {WS_KV}")
    g.i(f"s_lshl_b32 s{S_T3}, s{S_BR}, 21")
    g.i(f"s_add_u32 s{S_T3}, s{S_T3}, {WS_O}")
    if g.opt.get('lfirst', 1):
        g.i(f"s_cmp_lt_u32 s{S_WAVE}, 4")
        g.i("s_cbranch_scc1 L_compute")
    else:
        g.i(f"s_cmp_ge_u32 s{S_WAVE}, 4")
        g.i("s_cbranch_scc1 L_loader")

def early_srds(g):
    g.i("s_waitcnt lgkmcnt(0)")
    g.st('karg')
    srd(g.a, S_X, S_M, 256 * 1024, f"s{S_T0}")
    srd(g.a, S_W, S_M + 2, 512 * 1536 * 2)

def late_srds(g):
    a = g.a
    srd(a, S_WO, S_M + 4, 512 * 512 * 2)
    srd(a, S_KV, S_M + 6, 256 * 1024, f"s{S_T2}")
    srd(a, S_O, S_M + 6, 2 << 20, f"s{S_T3}")
    srd(a, S_FL, S_M + 6, 4096, str(WS_FLAG))
    srd(a, S_DBG, 6, 256)
    srd(a, S_OUT, 4, 2048 * 1024 * 2)
    if g.diag:
        g.i(f"s_mov_b32 s96, s{S_M+6}")
        g.i(f"s_mov_b32 s97, s{S_M+7}")

def attn_consts(g):
    g.i(f"s_lshr_b32 s{S_T0}, s{S_WAVE}, 2")
    g.i(f"s_lshl_b32 s{S_T0}, s{S_T0}, 14")
    g.i(f"v_add_u32 v{V_KA}, s{S_T0}, v{V_L16}")
    g.i(f"v_and_b32 v{V_T0}, 15, v0")
    g.i(f"v_lshlrev_b32 v{V_T0}, 4, v{V_T0}")
    g.i(f"v_lshrrev_b32 v{V_T1}, 5, v0")
    g.i(f"v_lshl_add_u32 v{V_T0}, v{V_T1}, 8, v{V_T0}")
    g.i(f"s_add_u32 s{S_T0}, s{S_T0}, 1024")
    g.i(f"v_add_u32 v{V_VA}, s{S_T0}, v{V_T0}")
    g.i(f"v_and_b32 v{V_T0}, 31, v0")
    g.i(f"v_subrev_u32 v{V_T1}, 20, v{V_T0}")
    g.i(f"v_cmp_gt_u32 vcc, 8, v{V_T1}")
    g.i(f"v_mov_b32 v{V_T1}, {L_CONST+16}")
    g.i(f"v_mov_b32 v{V_VX}, {L_CONST+16+64}")
    g.i(f"v_cndmask_b32 v{V_T1}, v{V_T1}, v{V_VX}, vcc")
    g.i(f"v_and_b32 v{V_VX}, {31 if g.opt.get('x_one') else 27}, v0")
    g.i(f"v_cmp_eq_u32 vcc, 16, v{V_VX}")
    g.i(f"v_subrev_u32 v{V_VX}, 16, v{V_T1}")
    g.i("s_nop 0")
    g.i(f"v_cndmask_b32 v{V_T1}, v{V_T1}, v{V_VX}, vcc")
    g.i(f"v_cmp_gt_u32 vcc, 16, v{V_T0}")
    g.i(f"v_mov_b32 v{V_T0}, {RING}")
    g.i(f"v_mov_b32 v{V_IDX}, 0xdddd")
    g.i(f"v_cndmask_b32 v{V_VA}, v{V_T1}, v{V_VA}, vcc")
    g.i(f"v_cndmask_b32 v{V_VX}, 0, v{V_T0}, vcc")
    g.i(f"v_add_u32 v{V_VX}, v{V_VX}, v{V_VA}")
    g.i("v_lshrrev_b32 v7, 3, v0")
    g.i("v_lshlrev_b32 v7, 11, v7")
    g.i(f"v_and_b32 v{V_OW}, 7, v0")
    g.i(f"v_lshl_add_u32 v{V_OW}, v{V_OW}, 4, v7")
    g.i(f"v_mov_b64 v[{V_CA}:{V_PA}], 0")
    g.i(f"v_mov_b32 v{KG}, 0")
    g.i(f"v_mov_b32 v{VG}, 0")
    g.i("v_mov_b64 v[252:253], -1")
    g.i("v_mov_b64 v[254:255], -1")
    for r in range(0, 32, 2):
        g.i(f"v_mov_b64 v[{V_O[0]+r}:{V_O[0]+r+1}], 0")
    g.i(f"s_lshl_b32 s{S_T0}, s{S_BR}, 4")
    g.i(f"s_add_u32 s{S_T0}, s{S_T0}, s{S_HP}")
    g.i(f"s_lshl_b32 s{S_T0}, s{S_T0}, 7")
    g.i(f"v_and_b32 v6, 31, v0")
    g.i(f"v_lshl_add_u32 v{V_FA}, v6, 2, s{S_T0}")
    g.i(f"v_lshrrev_b32 v{V_T0}, 2, v0")
    g.i(f"v_and_b32 v{V_T0}, 4, v{V_T0}")
    g.i(f"v_and_b32 v{V_T1}, 7, v0")
    g.i(f"v_xor_b32 v{V_T0}, v{V_T0}, v{V_T1}")
    g.i(f"v_lshlrev_b32 v{V_T0}, 4, v{V_T0}")
    g.i(f"v_lshrrev_b32 v{V_T1}, 3, v0")
    g.i(f"v_lshl_add_u32 v{V_WOA}, v{V_T1}, 10, v{V_T0}")

def consts(g):
    g.i(f"s_cmp_lg_u32 s{S_WAVE}, 4")
    g.i("s_cbranch_scc1 L_ld_noconst")
    g.i("v_lshrrev_b32 v6, 2, v0")
    g.i("v_and_b32 v7, 1, v6")
    g.i("v_lshlrev_b32 v7, 9, v7")
    g.i("v_lshrrev_b32 v6, 1, v6")
    g.i("v_lshl_add_u32 v7, v6, 11, v7")
    g.i("v_and_b32 v6, 1, v0")
    g.i("v_lshl_add_u32 v7, v6, 4, v7")
    g.i("v_cmp_eq_u32 vcc, 0, v6")
    g.i("v_and_b32 v6, 2, v0")
    g.i("v_lshl_add_u32 v7, v6, 5, v7")
    g.i("v_mov_b32 v6, 0x3f803f80")
    g.i(f"v_add_u32 v7, {L_CONST}, v7")
    g.i("v_cndmask_b32 v108, 0, v6, vcc")
    g.i("v_cndmask_b32 v109, 0, v6, vcc")
    g.i("v_cndmask_b32 v110, 0, v6, vcc")
    g.i("v_cndmask_b32 v111, 0, v6, vcc")
    g.i("ds_write_b128 v7, v[108:111]")
    g.lab("L_ld_noconst")

def loader(g):
    VX, VW, VT = 100, 104, 112
    LEAD = g.opt.get('lead', 0)
    g.lab("L_loader")
    g.i(f"s_sub_u32 s{S_A}, s{S_WAVE}, 4")
    S_CH, S_TX = S_F, 55
    RM = g.opt.get('rot', 7)
    if RM == 1:
        g.i(f"s_lshl_b32 s{S_CH}, s{S_TB}, 1")
        g.i(f"s_lshr_b32 s{S_T1}, s{S_TB}, 2")
        g.i(f"s_add_u32 s{S_CH}, s{S_CH}, s{S_T1}")
        g.i(f"s_and_b32 s{S_CH}, s{S_CH}, 7")
    elif RM == 2:
        g.i(f"s_mov_b32 s{S_CH}, s{S_TB}")
    elif RM == 7:
        g.i(f"s_and_b32 s{S_T1}, s{S_HP}, 1")
        g.i(f"s_lshl_b32 s{S_T1}, s{S_T1}, 2")
        g.i(f"s_add_u32 s{S_CH}, s{S_TB}, s{S_T1}")
        g.i(f"s_and_b32 s{S_CH}, s{S_CH}, 7")
    elif RM == 8:
        g.i(f"s_lshl_b32 s{S_CH}, s{S_TB}, 1")
        g.i(f"s_bfe_u32 s{S_T1}, s{S_HP}, 0x10001")
        g.i(f"s_add_u32 s{S_CH}, s{S_CH}, s{S_T1}")
        g.i(f"s_and_b32 s{S_CH}, s{S_CH}, 7")
    elif RM == 9:
        g.i(f"s_lshl_b32 s{S_CH}, s{S_TB}, 1")
        g.i(f"s_and_b32 s{S_T1}, s{S_HP}, 3")
        g.i(f"s_add_u32 s{S_CH}, s{S_CH}, s{S_T1}")
        g.i(f"s_and_b32 s{S_CH}, s{S_CH}, 7")
    elif RM == 10:
        g.i(f"s_and_b32 s{S_CH}, s2, 7")
    elif RM == 11:
        g.i(f"s_and_b32 s{S_CH}, s2, 3")
        g.i(f"s_lshl_b32 s{S_CH}, s{S_CH}, 1")
        g.i(f"s_add_u32 s{S_CH}, s{S_CH}, s{S_BR}")
    elif RM == 0:
        g.i(f"s_mov_b32 s{S_CH}, 0")
    elif RM == 6:
        g.i(f"s_lshl_b32 s{S_CH}, s{S_TB}, 1")
        g.i(f"s_add_u32 s{S_CH}, s{S_CH}, s{S_HP}")
        g.i(f"s_and_b32 s{S_CH}, s{S_CH}, 7")
    elif RM == 4:
        g.i(f"s_lshl_b32 s{S_CH}, s{S_TB}, 1")
        g.i(f"s_add_u32 s{S_CH}, s{S_CH}, s{S_HP}")
        g.i(f"s_and_b32 s{S_CH}, s{S_CH}, 3")
        g.i(f"s_lshl_b32 s{S_CH}, s{S_CH}, 1")
    elif RM == 5:
        g.i(f"s_add_u32 s{S_CH}, s{S_TB}, s{S_HP}")
        g.i(f"s_and_b32 s{S_CH}, s{S_CH}, 3")
        g.i(f"s_lshl_b32 s{S_CH}, s{S_CH}, 1")
    elif RM == 3:
        g.i(f"s_lshl_b32 s{S_CH}, s{S_TB}, 1")
        g.i(f"s_and_b32 s{S_T1}, s{S_HP}, 1")
        g.i(f"s_add_u32 s{S_CH}, s{S_CH}, s{S_T1}")
        g.i(f"s_and_b32 s{S_CH}, s{S_CH}, 7")
    if g.opt.get('pf') or LEAD: pass
    if g.opt.get('pf') or LEAD:
        g.i(f"v_lshlrev_b32 v{VT}, 10, v0")
        g.i(f"s_and_b32 s{S_TX}, s{S_HP}, 7")
        g.i(f"s_lshl_b32 s{S_TX}, s{S_TX}, 2")
        g.i(f"s_add_u32 s{S_TX}, s{S_TX}, s{S_A}")
        g.i(f"s_lshl_b32 s{S_TX}, s{S_TX}, 13")
    PF = g.opt.get('pf', 0)
    NT = 2 if PF else (1 if LEAD else 0)
    if PF:
        S_TC, S_TW = S_IT, 0
        g.i(f"s_mov_b32 s{S_TC}, s{S_CH}")
        g.i("v_lshrrev_b32 v6, 1, v0")
        g.i("v_and_b32 v7, 1, v0")
        g.i("v_lshlrev_b32 v7, 7, v7")
        g.i(f"v_lshl_add_u32 v{VT+1}, v6, 10, v7")
        g.i(f"s_lshr_b32 s1, s2, 3")
        g.i(f"s_lshl_b32 s1, s1, 1")
        g.i(f"s_lshr_b32 s{S_T1}, s{S_A}, 1")
        g.i(f"s_add_u32 s1, s1, s{S_T1}")
        g.i(f"s_mul_i32 s1, s1, 3072")
        g.i(f"s_lshr_b32 s{S_T1}, s{S_HP}, 3")
        g.i(f"s_lshl_b32 s{S_T1}, s{S_T1}, 1")
        g.i(f"s_and_b32 s{S_B}, s{S_A}, 1")
        g.i(f"s_add_u32 s{S_T1}, s{S_T1}, s{S_B}")
        g.i(f"s_lshl_b32 s{S_T1}, s{S_T1}, 8")
        g.i(f"s_add_u32 s3, s1, s{S_T1}")
    def touch(ahead):
        if PF:
            g.i(f"s_lshl_b32 s{S_T0}, s{S_TC}, 7")
            g.i(f"s_add_u32 s{S_T0}, s{S_T0}, s{S_TX}")
            g.i(f"s_mul_i32 s{S_T1}, s{S_TC}, {64*3072}")
            g.i(f"s_add_u32 s{S_T1}, s{S_T1}, s3")
            g.i("s_mov_b64 exec, 0xff")
            g.i(f"buffer_load_dword v246, v{VT}, s[{S_X}:{S_X+3}], s{S_T0} offen")
            if g.opt.get('pfw', 1):
                g.i("s_mov_b64 exec, 0x3f")
                g.i(f"buffer_load_dword v246, v{VT+1}, s[{S_W}:{S_W+3}], s{S_T1} offen")
            g.i("s_mov_b64 exec, -1")
            g.i(f"s_add_u32 s{S_TC}, s{S_TC}, 1")
            g.i(f"s_and_b32 s{S_TC}, s{S_TC}, 7")
            return
        if not LEAD: return
        g.i(f"s_add_u32 s{S_T0}, s{S_CH}, {ahead}")
        g.i(f"s_and_b32 s{S_T0}, s{S_T0}, 7")
        g.i(f"s_lshl_b32 s{S_T0}, s{S_T0}, 7")
        g.i(f"s_add_u32 s{S_T0}, s{S_T0}, s{S_TX}")
        g.i("s_mov_b64 exec, 0xff")
        g.i(f"buffer_load_dword v246, v{VT}, s[{S_X}:{S_X+3}], s{S_T0} offen")
        g.i("s_mov_b64 exec, -1")
    g.i("v_lshrrev_b32 v6, 4, v0")
    g.i("v_and_b32 v7, 7, v0")
    g.i("v_xor_b32 v6, v6, v7")
    g.i("v_lshlrev_b32 v6, 4, v6")
    g.i("v_lshrrev_b32 v7, 3, v0")
    g.i(f"v_lshl_add_u32 v{VX}, v7, 10, v6")
    g.i(f"v_xor_b32 v{VX+1}, 64, v{VX}")
    g.i(f"v_add_u32 v{VX+2}, {2*7168}, v{VX}")
    g.i(f"v_add_u32 v{VX+3}, {3*7168}, v{VX+1}")
    g.i(f"v_add_u32 v{VX+1}, 7168, v{VX+1}")
    g.i(f"s_lshl_b32 s{S_B}, s{S_A}, 16")
    g.i(f"s_lshl_b32 s{S_D}, s{S_A}, 13")
    for p in range(3):
        g.i(f"v_add_u32 v6, {64*p}, v0")
        g.i("v_mul_u32_u24 v7, 43691, v6")
        g.i("v_lshrrev_b32 v7, 19, v7")
        g.i("v_mul_u32_u24 v110, 12, v7")
        g.i("v_sub_u32 v6, v6, v110")
        g.i("v_mul_u32_u24 v7, 3072, v7")
        g.i("v_lshrrev_b32 v110, 2, v6")
        g.i(f"v_lshl_add_u32 v7, v110, {6 if g.opt.get('x_wc') else 10}, v7")
        g.i("v_and_b32 v6, 3, v6")
        g.i("v_lshl_add_u32 v7, v6, 4, v7")
        g.i(f"v_subrev_u32 v{VW+p}, {1024*p}, v7")
    g.i(f"s_mul_i32 s{S_C}, s{S_A}, {16*3072}")
    g.i(f"s_lshl_b32 s{S_T1}, s{S_HP}, {7 if g.opt.get('x_wc') else 6}")
    g.i(f"s_add_u32 s{S_C}, s{S_C}, s{S_T1}")
    g.i(f"s_mul_i32 s{S_E}, s{S_A}, 3072")
    g.i(f"s_add_u32 s{S_E}, s{S_E}, {SLOT_W}")
    early_srds(g)
    cnt = [0]
    def issue():
        cnt[0] += 1
        g.i(f"s_lshl_b32 s{S_T1}, s{S_CH}, 7")
        g.i(f"s_add_u32 s{S_T1}, s{S_T1}, s{S_B}")
        g.i(f"s_mov_b32 m0, s{S_D}")
        g.i(f"s_add_u32 s{S_T0}, s{S_T1}, 32768")
        for p in range(4):
            g.i(f"buffer_load_dwordx4 v{VX+p}, s[{S_X}:{S_X+3}], s{S_T1} offen offset:{1024*p}{g.opt.get('xfl','')} lds")
        if cnt[0] == 1: g.st('ld_4')
        g.i(f"s_add_u32 m0, s{S_D}, 4096")
        g.i(f"s_mul_i32 s{S_T1}, s{S_CH}, {64*3072}")
        for p in range(4):
            g.i(f"buffer_load_dwordx4 v{VX+p}, s[{S_X}:{S_X+3}], s{S_T0} offen offset:{1024*p}{g.opt.get('xfl','')} lds")
        if cnt[0] == 1: g.st('ld_8')
        g.i(f"s_mov_b32 m0, s{S_E}")
        g.i(f"s_add_u32 s{S_T1}, s{S_T1}, s{S_C}")
        for p in range(3):
            if g.opt.get('x_now'): g.i(f"buffer_load_dword v244, v{VW+p}, s[{S_DBG if False else S_W}:{S_W+3}], s{S_C} offen"); continue
            g.i(f"buffer_load_dwordx4 v{VW+p}, s[{S_W}:{S_W+3}], s{S_T1} offen offset:{1024*p}{g.opt.get('wfl','')} lds")
        g.i(f"s_add_u32 s{S_CH}, s{S_CH}, 1")
        g.i(f"s_and_b32 s{S_CH}, s{S_CH}, 7")
    def next_slot():
        g.i(f"s_add_u32 s{S_D}, s{S_D}, {SLOT}")
        g.i(f"s_add_u32 s{S_E}, s{S_E}, {SLOT}")
        g.i(f"s_cmp_lt_u32 s{S_D}, {3*SLOT}")
        g.i(f"s_cselect_b32 s{S_T0}, 0, {3*SLOT}")
        g.i(f"s_sub_u32 s{S_D}, s{S_D}, s{S_T0}")
        g.i(f"s_sub_u32 s{S_E}, s{S_E}, s{S_T0}")
    if PF:
        q = []; nt = [0]
        def T():
            if nt[0] < 8: touch(0); q.extend('TT' if g.opt.get('pfw', 1) else 'T'); nt[0] += 1
        def D(c): issue(); q.extend([c] * 11)
        def W(c): g.i(f"s_waitcnt vmcnt({len(q) - 1 - max(i for i, x in enumerate(q) if x == c)})")
        for c in range(PF): T()
        D(0); T()
        next_slot(); D(1); T()
        late_srds(g); attn_consts(g); consts(g)
        for c in range(6):
            W(c)
            g.i("s_barrier")
            next_slot(); D(c + 2); T()
        W(6)
        g.i("s_barrier")
        g.i("s_waitcnt vmcnt(0)")
        g.i("s_barrier")
        g.i("s_mov_b32 s3, 0")
    if not PF: loader_plain(g, issue, next_slot, touch, LEAD, NT)
    loader_fin(g)

def loader_plain(g, issue, next_slot, touch, LEAD, NT):
    issue()
    g.st('ld_c0')
    next_slot(); issue()
    for c in range(2, LEAD): touch(c - 2)
    g.st('ld_c2')
    late_srds(g); attn_consts(g); consts(g)
    g.st('ld_pre')
    PRE = g.opt.get('pre', '')
    n0 = NT * max(LEAD - 2, 0)
    def pre():
        g.i(f"s_lshl_b32 s{S_T0}, s{S_TB}, 14")
        g.i(f"s_and_b32 s{S_T1}, s{S_A}, 1")
        g.i(f"s_lshl_b32 s{S_T1}, s{S_T1}, 13")
        g.i(f"s_add_u32 s{S_T0}, s{S_T0}, s{S_T1}")
        g.i(f"s_lshr_b32 s{S_T1}, s{S_A}, 1")
        g.i(f"s_lshl_b32 s{S_T1}, s{S_T1}, 17")
        g.i(f"s_add_u32 s{S_T0}, s{S_T0}, s{S_T1}")
        if PRE == 'r':
            g.i("v_lshlrev_b32 v6, 7, v0")
            g.i(f"buffer_load_dword v245, v6, s[{S_KV}:{S_KV+3}], s{S_T0} offen sc1")
            return 1
        g.i(f"s_add_u32 s{S_T1}, s{S_T0}, 4096")
        for k in range(8):
            g.i(f"buffer_store_dwordx4 v[{V_O[0]}:{V_O[0]+3}], v{V_L16}, s[{S_KV}:{S_KV+3}], s{S_T1 if k >= 4 else S_T0} offen offset:{1024*(k%4)} sc1")
        return 8
    np_ = 0
    PC = g.opt.get('prec', 1)
    for c, n in ((0, 11 + n0), (1, n0 + 11 + NT)):
        g.i(f"s_waitcnt vmcnt({n + (np_ if c == 1 else 0)})")
        if c == 0: g.st('ld_got0')
        g.i("s_barrier")
        next_slot(); issue(); touch(LEAD - 3)
        if PRE and c == PC: np_ = pre()
    if PRE and PC == 1:
        g.i(f"s_waitcnt vmcnt({11+2*NT+np_})")
        g.i("s_barrier")
        next_slot(); issue(); touch(LEAD - 3)
        g.i(f"s_mov_b32 s{S_IT}, 3")
        g.i(f"s_waitcnt vmcnt({11+2*NT+np_})")
        g.i("s_branch L_ld_loop2")
    g.i(f"s_mov_b32 s{S_IT}, 2")
    g.lab("L_ld_loop")
    g.i(f"s_waitcnt vmcnt({11+2*NT})")
    g.lab("L_ld_loop2")
    g.i("s_barrier")
    next_slot(); issue(); touch(LEAD - 3)
    g.i(f"s_add_u32 s{S_IT}, s{S_IT}, 1")
    g.i(f"s_cmp_lt_u32 s{S_IT}, 6")
    g.i("s_cbranch_scc1 L_ld_loop")
    g.st('ld_iss7')
    g.i(f"s_waitcnt vmcnt({11+2*NT})")
    g.i("s_barrier")
    g.i("s_waitcnt vmcnt(0)")
    g.i("s_barrier")

def loader_fin(g):
    g.i(f"s_cmp_lg_u32 s{S_WAVE}, 4")
    g.i("s_cbranch_scc1 L_ld_nocert")
    g.i(f"s_lshl_b32 s{S_T0}, s{S_BR}, 4")
    g.i(f"s_add_u32 s{S_T0}, s{S_T0}, s{S_HP}")
    g.i(f"s_lshl_b32 s{S_T0}, s{S_T0}, 3")
    g.i(f"v_mov_b32 v7, s{S_T0}")
    spin(g, "cert1", f"buffer_load_dword v{V_F}, v7, s[{S_DBG}:{S_DBG+3}], 0 offen sc1", 8)
    g.lab("L_ld_nocert")
    g.i(f"s_lshl_b32 s{S_T0}, s{S_A}, 11")
    g.i(f"s_add_u32 s{S_T0}, s{S_T0}, {L_QX}")
    g.i(f"v_add_u32 v6, s{S_T0}, v{V_L16}")
    attn_setup(g)
    g.i("s_waitcnt lgkmcnt(0)")
    g.i("s_barrier")
    g.i(f"ds_read_b128 {vr(V_Q[0],4)}, v6")
    g.i(f"ds_read_b128 {vr(V_Q[1],4)}, v6 offset:1024")
    g.i("s_branch L_attn")

class LdsQ:
    def __init__(self, g): self.g = g; self.q = []
    def issue(self, tag): self.q.append(tag)
    def need(self, tags):
        idx = max([i for i, t in enumerate(self.q) if t in tags], default=-1)
        if idx >= 0:
            n = len(self.q) - 1 - idx
            self.g.i(f"s_waitcnt lgkmcnt({min(n,15)})")
            self.q = self.q[idx + 1:]

def last_chunk(g, q, mf):
    X8, WREG = 16, {'k': 48, 'v': 196, 'q': 216}
    def rx(s, i):
        g.i(f"ds_read_b128 {vr(X8+8*s+4*i,4)}, v{V_XA+s} offset:{4096*i}"); q.issue(('x', s, i))
    def rw(nm, s, i):
        p = 'qkv'.index(nm)
        g.i(f"ds_read_b64_tr_b16 {vr(WREG[nm]+4*s+2*i,2)}, v{V_WA} offset:{s*3072+i*768+p*64}"); q.issue((nm, s, i))
    def mm(nm, s, i):
        q.need({('x', s, i), (nm, s, 0), (nm, s, 1)})
        w, x = vr(WREG[nm] + 4 * s, 4), vr(X8 + 8 * s + 4 * i, 4)
        A, B = (x, w) if nm == 'v' else (w, x)
        acc = vr(V_ACC + 32 * 'qkv'.index(nm) + 16 * i, 16)
        g.i(f"v_mfma_f32_32x32x16_bf16 {acc}, {A}, {B}, {acc}")
    def pack(n):
        src = V_ACC + 32 + 8 * n
        ins = [f"v_cvt_pk_bf16_f32 v{KVT+4*n+r}, v{src+2*r}, v{src+2*r+1}" for r in range(4)]
        adr, off = (KL, 16384 * (n % 2) + 2048 * (n // 2)) if n < 4 else (VL, 2048 * ((n - 4) // 2) + 512 * (n % 2))
        return ins + [('w', f"ds_write_b128 v{adr}, {vr(KVT+4*n,4)} offset:{off}")]
    def fill(items):
        for x in items:
            if callable(x): x()
            elif isinstance(x, tuple): g.i(x[1]); q.issue(('w',))
            else: g.i(x)
    q.q = []
    first = []
    for s in range(4):
        first += [lambda s=s: rx(s, 0), lambda s=s: rw('k', s, 0), lambda s=s: rw('k', s, 1), lambda s=s: rx(s, 1)]
    for n in range(6):
        mf(1, n); fill(first[2 * n:2 * n + 2])
    rest = first[12:] + [lambda s=s, i=i: rw('v', s, i) for s in range(4) for i in range(2)]
    for n in range(8):
        mm('k', n // 2, n % 2); fill(rest[2 * n:2 * n + 2])
    g.i(f"s_mov_b32 s{S_T1}, {hex(QSCALE)}")
    g.i(f"s_mov_b32 s{S_T2}, s{S_T1}")
    qr = [lambda s=s, i=i: rw('q', s, i) for s in range(4) for i in range(2)]
    kp = sum((pack(n) for n in range(4)), [])
    for n in range(8):
        mm('v', n // 2, n % 2)
        fill(qr[3 * n:3 * n + 3] if n < 3 else kp[4 * (n - 3):4 * (n - 2)])
    vp = sum((pack(n) for n in range(4, 8)), [])
    mm('q', 0, 0); mm('q', 0, 1); mm('q', 1, 0)
    g.i("s_nop 7")
    for n in range(3, 8):
        mm('q', n // 2, n % 2); fill(vp[4 * (n - 3):4 * (n - 2)])
    g.stamp(2)
    g.i(f"s_cmp_lg_u32 s{S_PG}, 0")
    g.i("s_cbranch_scc1 L_cp_later")
    for n in range(8): g.i(kv_store(n))
    g.lab("L_cp_later")
    g.i("s_nop 5")
    for h in (8, 0):
        for i in range(2):
            A = V_ACC + 16 * i + h
            for r in range(0, 8, 2):
                g.i(f"v_pk_mul_f32 v[{A+r}:{A+r+1}], v[{A+r}:{A+r+1}], s[{S_T0+1}:{S_T0+2}]")
            D = A if h else V_Q[i]
            for r in range(4):
                g.i(f"v_cvt_pk_bf16_f32 v{D+r}, v{A+2*r}, v{A+2*r+1}")
            if h: g.i(f"ds_write_b128 v{QL}, {vr(A,4)} offset:{1024*i}")
    g.i("s_waitcnt lgkmcnt(0)")
    barrier_unless_dry(g, "b8")

def clear_flags(g):
    g.i(f"s_cmp_lg_u32 s{S_WAVE}, 0")
    g.i("s_cbranch_scc1 L_cp_noclear")
    g.i(f"s_lshl_b32 s{S_T0}, s{S_BR}, 4")
    g.i(f"s_add_u32 s{S_T0}, s{S_T0}, s{S_HP}")
    g.i(f"s_lshl_b32 s{S_T1}, s{S_T0}, 7")
    g.i(f"s_lshl_b32 s{S_T2}, s{S_TB}, 4")
    g.i(f"s_add_u32 s{S_T1}, s{S_T1}, s{S_T2}")
    g.i(f"v_lshl_add_u32 v6, v0, 2, s{S_T1}")
    g.i("v_mov_b32 v7, 0")
    g.i("s_mov_b64 exec, 0xf")
    g.i(f"buffer_store_dword v7, v6, s[{S_FL}:{S_FL+3}], 0 offen sc1")
    g.i("s_mov_b64 exec, -1")
    g.lab("L_cp_noclear")

def compute(g):
    g.lab("L_compute")
    CP = g.opt.get('cpf', 4)
    if CP == 3:
        n = g.opt.get('cpn', 12)
        g.i(f"s_mul_i32 s18, s{S_WAVE}, {128*n}")
        g.i(f"s_add_u32 s18, s18, L_compute-{NAME}_kernel")
        g.i("s_add_u32 s18, s16, s18")
        g.i("s_addc_u32 s19, s17, 0")
        g.i("s_waitcnt lgkmcnt(0)")
        for k in range(n): g.i(f"s_load_dword s95, s[18:19], {128*k}")
    if CP in (2, 3):
        g.i("s_mov_b32 s12, s16"); g.i("s_mov_b32 s13, s17")
        g.i(f"s_mov_b32 s14, L_code_end-{NAME}_kernel-4"); g.i("s_mov_b32 s15, 0x20000")
    TL = g.opt.get('tlb', 0)
    if TL:
        g.i(f"v_lshlrev_b32 v6, {TL}, v0")
    if CP != 3: g.i("s_waitcnt lgkmcnt(0)")
    if TL:
        srd(g.a, S_W, S_M + 2, 512 * 1536 * 2)
        g.i(f"buffer_load_dword v246, v6, s[{S_W}:{S_W+3}], 0 offen")
        if g.opt.get('tlbx'):
            srd(g.a, S_X, S_M, 256 * 1024, f"s{S_T0}")
            g.i(f"buffer_load_dword v246, v6, s[{S_X}:{S_X+3}], 0 offen")
    late_srds(g)
    if not g.opt.get('lateclr'): clear_flags(g)
    attn_consts(g)
    g.i("v_and_b32 v6, 31, v0")
    g.i(f"s_lshl_b32 s{S_T0}, s{S_WAVE}, 13")
    g.i(f"v_lshl_add_u32 v100, v6, 7, s{S_T0}")
    g.i("v_bfe_u32 v6, v0, 1, 3")
    g.i("v_lshrrev_b32 v7, 5, v0")
    g.i("v_xor_b32 v6, v6, v7")
    for s in range(4):
        g.i(f"v_xor_b32 v7, {2*s}, v6")
        g.i(f"v_lshl_add_u32 v{V_XA+s}, v7, 4, v100")
    g.i("v_lshrrev_b32 v6, 5, v0")
    g.i("v_bfe_u32 v7, v0, 2, 2")
    g.i("v_lshl_add_u32 v6, v6, 3, v7")
    g.i("v_mul_u32_u24 v6, 192, v6")
    g.i("v_bfe_u32 v7, v0, 4, 1")
    g.i("v_lshl_add_u32 v6, v7, 5, v6")
    g.i("v_and_b32 v7, 3, v0")
    g.i("v_lshl_add_u32 v6, v7, 3, v6")
    g.i(f"v_add_u32 v{V_WA}, {SLOT_W}, v6")
    for r in range(0, 96, 2):
        g.i(f"v_mov_b64 v[{V_ACC+r}:{V_ACC+r+1}], 0")
    S_A, S_B = 56, 57
    g.i("v_and_b32 v6, 0x33, v0")
    g.i("v_bfe_u32 v7, v0, 2, 1")
    g.i("v_lshl_or_b32 v6, v7, 3, v6")
    g.i("v_bfe_u32 v7, v0, 3, 1")
    g.i("v_lshl_or_b32 v6, v7, 2, v6")
    g.i(f"v_lshlrev_b32 v{KG}, 4, v6")
    g.i(f"s_lshl_b32 s{S_T0}, s{S_WAVE}, 12")
    g.i(f"v_add_u32 v{KL}, s{S_T0}, v{KG}")
    g.i("v_and_b32 v6, 15, v0")
    g.i("v_lshlrev_b32 v6, 4, v6")
    g.i("v_lshrrev_b32 v7, 5, v0")
    g.i("v_lshl_add_u32 v6, v7, 8, v6")
    g.i("v_add_u32 v6, 1024, v6")
    g.i("v_bfe_u32 v7, v0, 4, 1")
    g.i(f"v_lshl_add_u32 v{VG}, v7, 17, v6")
    g.i("v_lshl_add_u32 v6, v7, 14, v6")
    g.i(f"v_add_u32 v{VL}, s{S_T0}, v6")
    g.i(f"s_lshr_b32 s{S_T0}, s{S_T0}, 1")
    g.i(f"s_add_u32 s{S_T0}, s{S_T0}, {L_QX}")
    g.i(f"v_add_u32 v{QL}, s{S_T0}, v{V_L16}")
    if g.opt.get('lateclr'): clear_flags(g)
    if CP in (2, 3):
        g.i(f"s_lshl_b32 s{S_T0}, s{S_WAVE}, 13")
        g.i("v_lshlrev_b32 v6, 7, v0")
        g.i(f"buffer_load_dword v246, v6, s[12:15], s{S_T0} offen")
    if g.opt.get('dry', 0):
        g.i(f"s_cmp_lt_u32 s{S_WAVE}, 2")
        g.i("s_cbranch_scc1 L_dry_done")
        g.i(f"s_mov_b32 s{S_DRY}, 1")
        g.i(f"s_mov_b32 s{S_IT}, 7")
        g.i("s_mov_b64 vcc, 0")
        g.i(f"s_mov_b64 s[{S_M}:{S_M+1}], 0")
        g.i(f"s_mov_b64 s[{S_M+2}:{S_M+3}], 0")
        g.i(f"s_mov_b32 s{S_MK}, 0")
        g.i("s_waitcnt vmcnt(0) lgkmcnt(0)")
        g.i("s_setvskip -1, 0")
        g.i(f"s_cmp_eq_u32 s{S_WAVE}, 2")
        g.i("s_cbranch_scc1 L_at_done")
        g.i("s_branch L_cp_last" if g.opt.get('peel', 1) else "s_branch L_cp_loop")
        g.lab("L_dry_ret")
        g.i("s_setvskip 0, 0")
        g.i("s_mov_b64 exec, -1")
        g.i("s_setprio 0")
        g.i(f"s_mov_b32 s{S_DRY}, 0")
        g.lab("L_dry_done")
    attn_setup(g)
    g.i(f"s_lshl_b32 s{S_T0}, s{S_WAVE}, 12")
    g.i(f"s_lshl_b32 s{S_G1}, s{S_TB}, 14")
    g.i(f"s_add_u32 s{S_G1}, s{S_G1}, s{S_T0}")
    g.i(f"s_add_u32 s{S_G2}, s{S_G1}, 131072")
    g.i(f"s_mov_b32 s{S_IT}, 0")
    g.i(f"s_mov_b32 s{S_A}, 0")
    g.i(f"s_mov_b32 s{S_B}, {SLOT}")
    q = LdsQ(g)
    def rd(setn, s, which):
        F = V_FR[setn]
        if which[0] == 'x':
            i = int(which[1])
            g.i(f"ds_read_b128 {vr(F+4*i,4)}, v{V_XA+s} offset:{4096*i}")
        else:
            p = {'q': 0, 'k': 1, 'v': 2}[which[0]]; i = int(which[1])
            g.i(f"ds_read_b64_tr_b16 {vr(F+8+4*p+2*i,2)}, v{V_WA} offset:{s*3072+i*768+p*64}")
        q.issue((setn, which))
    ORDER = ['x0', 'q0', 'q1', 'x1', 'k0', 'k1', 'v0', 'v1']
    def mf(setn, n, mid=None):
        F = V_FR[setn]; p, i = n // 2, n % 2
        w, x = vr(F + 8 + 4 * p, 4), vr(F + 4 * i, 4)
        nm = 'qkv'[p]
        q.need({(setn, f'x{i}'), (setn, nm + '0'), (setn, nm + '1')})
        A, B = (w, x) if p < 2 else (x, w)
        acc = vr(V_ACC + 16 * n, 16)
        if g.opt.get('x_m16'):
            for hh in range(2):
                a4 = vr(V_ACC + 16 * n + 4 * hh, 4)
                g.i(f"v_mfma_f32_16x16x32_bf16 {a4}, {A}, {B}, {a4}")
                if mid and g.opt['x_m16'] == 2 and hh == 0: mid()
        else:
            g.i(f"v_mfma_f32_32x32x16_bf16 {acc}, {A}, {B}, {acc}")
    def step(cur, nxt_s, order=range(6)):
        plan = [ORDER[0:2], ORDER[2:4], ORDER[4:6], ORDER[6:8], [], []]
        for n in range(6):
            if g.opt.get('x_m16') == 2 and cur is not None and nxt_s is not None and plan[n]:
                mf(cur, order[n], lambda: rd(1 - cur, nxt_s, plan[n][0]))
                rd(1 - cur, nxt_s, plan[n][1])
                continue
            if cur is not None: mf(cur, order[n])
            if nxt_s is not None:
                for w in plan[n]: rd(1 - (cur if cur is not None else 1), nxt_s, w)
    g.i(f"s_cmp_lg_u32 s{S_WAVE}, 0")
    g.i("s_cbranch_scc1 L_cp_nocount")
    g.i(f"s_lshl_b32 s{S_T0}, s{S_BR}, 4")
    g.i(f"s_add_u32 s{S_T0}, s{S_T0}, s{S_HP}")
    g.i(f"s_lshl_b32 s{S_T0}, s{S_T0}, 3")
    g.i("s_mov_b64 exec, 1")
    g.i(f"v_mov_b32 v6, s{S_T0}")
    g.i("v_mov_b32 v7, 1")
    g.i(f"s_waitcnt vmcnt(0)")
    g.i(f"buffer_atomic_add v7, v6, s[{S_DBG}:{S_DBG+3}], 0 offen sc1")
    g.i("s_mov_b64 exec, -1")
    g.lab("L_cp_nocount")
    def prew():
        g.i(f"s_lshl_b32 s{S_T0}, s{S_TB}, 14")
        g.i(f"s_lshl_b32 s{S_T1}, s{S_WAVE}, 12")
        g.i(f"s_add_u32 s{S_T0}, s{S_T0}, s{S_T1}")
        g.i(f"s_add_u32 s{S_T1}, s{S_T0}, 131072")
        for k in range(8):
            g.i(f"buffer_store_dwordx4 v[{V_O[0]}:{V_O[0]+3}], v{V_L16}, s[{S_KV}:{S_KV+3}], s{S_T1 if k >= 4 else S_T0} offen offset:{1024*(k%4)} sc1")
    def prer():
        g.i("v_and_b32 v6, 31, v0")
        g.i("v_lshlrev_b32 v6, 7, v6")
        g.i("v_lshrrev_b32 v7, 5, v0")
        g.i("v_lshl_add_u32 v6, v7, 17, v6")
        g.i(f"buffer_load_dword v246, v6, s[{S_KV}:{S_KV+3}], s{S_G1} offen{g.opt.get('prefl', ' sc1')}")
    PR = g.opt.get('prer', 0)
    if PR == -1: prer()
    if g.opt.get('prew') == 1: prew()
    g.st('cp_pre')
    g.i("s_barrier")
    g.stamp(1)
    if g.opt.get('prew') == 2: prew()
    step(None, 0)
    g.lab("L_cp_loop")
    q.q = [(0, w) for w in ORDER]
    step(0, 1); step(1, 2); step(0, 3)
    g.i(f"s_add_u32 s{S_A}, s{S_A}, 1")
    g.i(f"s_cmp_eq_u32 s{S_A}, 3")
    g.i(f"s_cselect_b32 s{S_T0}, {(-2*SLOT) & 0xffffffff}, s{S_B}")
    g.i(f"s_cselect_b32 s{S_A}, 0, s{S_A}")
    g.i(f"s_add_u32 s{S_IT}, s{S_IT}, 1")
    PEEL = g.opt.get('peel', 1)
    if not PEEL:
        g.i(f"s_cmp_eq_u32 s{S_IT}, 8")
        g.i("s_cbranch_scc1 L_cp_last")
    g.i("s_waitcnt lgkmcnt(0)")
    q.q = []
    g.i("s_barrier")
    for r in range(5):
        g.i(f"v_add_u32 v{V_XA+r}, s{S_T0}, v{V_XA+r}")
    PW = g.opt.get('pwd')
    if PW:
        c0, kind = PW
        if kind == 'd':
            g.i(f"s_cmp_lg_u32 s{S_IT}, {c0}")
            g.i("s_cbranch_scc1 L_cp_nopw")
            g.i("v_and_b32 v6, 31, v0")
            g.i("v_lshlrev_b32 v6, 7, v6")
            g.i("v_lshrrev_b32 v7, 5, v0")
            g.i("v_lshl_add_u32 v6, v7, 17, v6")
            g.i(f"buffer_store_dword v{V_O[0]}, v6, s[{S_KV}:{S_KV+3}], s{S_G1} offen sc1")
        elif kind == 'f':
            g.i(f"s_cmp_lg_u32 s{S_IT}, {c0}")
            g.i("s_cbranch_scc1 L_cp_nopw")
            for k in range(8):
                g.i(f"buffer_store_dwordx4 v[{V_O[0]}:{V_O[0]+3}], v{V_L16}, s[{S_KV}:{S_KV+3}], s{S_G2 if k >= 4 else S_G1} offen offset:{1024*(k%4)} sc1")
        elif kind == 's':
            g.i(f"s_sub_u32 s{S_T1}, s{S_IT}, {c0}")
            g.i(f"s_cmp_ge_u32 s{S_T1}, 4")
            g.i("s_cbranch_scc1 L_cp_nopw")
            g.i(f"s_lshl_b32 s{S_T1}, s{S_T1}, 10")
            g.i(f"s_add_u32 s{S_T2}, s{S_T1}, s{S_G2}")
            g.i(f"s_add_u32 s{S_T1}, s{S_T1}, s{S_G1}")
            for so in (S_T1, S_T2):
                g.i(f"buffer_store_dwordx4 v[{V_O[0]}:{V_O[0]+3}], v{V_L16}, s[{S_KV}:{S_KV+3}], s{so} offen sc1")
        g.lab("L_cp_nopw")
    if PR > 0:
        g.i(f"s_cmp_lg_u32 s{S_IT}, {PR}")
        g.i("s_cbranch_scc1 L_cp_nopre")
        prer()
        g.lab("L_cp_nopre")
    if PEEL:
        g.i(f"s_cmp_eq_u32 s{S_IT}, 7")
        g.i("s_cbranch_scc1 L_cp_last")
    step(1, 0)
    g.i("s_branch L_cp_loop")
    g.lab("L_cp_last")
    if PEEL:
        last_chunk(g, q, mf)
        return
    q.q = [(1, w) for w in ORDER]
    step(1, None, (2, 3, 4, 5, 0, 1) if g.opt.get('trim', 1) else range(6))
    g.stamp(2)
    g.i(f"s_mov_b32 s{S_T1}, {hex(QSCALE)}")
    g.i(f"s_mov_b32 s{S_T2}, s{S_T1}")
    g.i("s_nop 3" if g.opt.get('trim', 1) else "s_nop 5")
    KVS = g.opt.get('kvs', ' sc1')
    T = 204
    n = 0
    for i in range(2):
        A = V_ACC + 16 * (2 + i)
        for hd in range(2):
            for r in range(4):
                g.i(f"v_cvt_pk_bf16_f32 v{T+4*n+r}, v{A+8*hd+2*r}, v{A+8*hd+2*r+1}")
            g.i(f"ds_write_b128 v{KL}, {vr(T+4*n,4)} offset:{16384*hd+2048*i}")
            n += 1
    for i in range(2):
        A = V_ACC + 16 * (4 + i)
        for gr in range(2):
            for r in range(4):
                g.i(f"v_cvt_pk_bf16_f32 v{T+4*n+r}, v{A+8*gr+2*r}, v{A+8*gr+2*r+1}")
            g.i(f"ds_write_b128 v{VL}, {vr(T+4*n,4)} offset:{2048*i+512*gr}")
            n += 1
    g.i(f"s_cmp_lg_u32 s{S_PG}, 0")
    g.i("s_cbranch_scc1 L_cp_later")
    for n in range(8): g.i(kv_store(n))
    g.lab("L_cp_later")
    for i in range(2):
        A = V_ACC + 16 * i
        for r in range(8, 16, 2):
            g.i(f"v_pk_mul_f32 v[{A+r}:{A+r+1}], v[{A+r}:{A+r+1}], s[{S_T0+1}:{S_T0+2}]")
        for r in range(4):
            g.i(f"v_cvt_pk_bf16_f32 v{A+8+r}, v{A+8+2*r}, v{A+8+2*r+1}")
        g.i(f"ds_write_b128 v{QL}, {vr(A+8,4)} offset:{1024*i}")
    def q_own():
        for i in range(2):
            A = V_ACC + 16 * i
            for r in range(0, 8, 2):
                g.i(f"v_pk_mul_f32 v[{A+r}:{A+r+1}], v[{A+r}:{A+r+1}], s[{S_T0+1}:{S_T0+2}]")
            for r in range(4):
                g.i(f"v_cvt_pk_bf16_f32 v{V_Q[i]+r}, v{A+2*r}, v{A+2*r+1}")
    if not g.opt.get('trimq', 0): q_own()
    g.i("s_waitcnt lgkmcnt(0)")
    barrier_unless_dry(g, "b8")
    if g.opt.get('trimq', 0): q_own()

U = 8
S_OA, S_OB = S_M + 6, S_M + 7
S_MK = S_M + 5
S_KV2 = S_X
S_KO = [None, 4, 5, 6, 7, 12, 13, 14]
S_LM = [[49, 50], [51, 52]]
S_OW = 1
V_VB = 4

def kv_store(n):
    if n < 4: adr, so, off = KG, (S_G2 if n % 2 else S_G1), 2048 * (n // 2)
    else: adr, so, off = VG, S_G1, 2048 * ((n - 4) // 2) + 512 * (n % 2)
    return f"buffer_store_dwordx4 {vr(KVT+4*n,4)}, v{adr}, s[{S_KV}:{S_KV+3}], s{so} offen offset:{off} sc1"

def spin_mask(g, tag, load):
    g.i(f"s_mov_b32 s{S_T3}, 0")
    g.lab(f"L_spin_{tag}")
    g.i(load)
    g.i(f"s_add_u32 s{S_T3}, s{S_T3}, 1")
    g.i("s_waitcnt vmcnt(0)")
    g.i(f"v_cmp_ne_u32 vcc, 1, v{V_F}")
    g.i(f"s_cmp_ge_u32 s{S_T3}, {SPIN_MAX}")
    g.i(f"s_cbranch_scc1 L_olr_{tag}")
    g.i(f"s_and_b32 vcc_lo, vcc_lo, s{S_MK}")
    g.i(f"s_cbranch_scc1 L_spin_{tag}")

def attn_setup(g):
    g.i(f"s_add_u32 s{S_KV2}, s{S_KV}, 131072")
    g.i(f"s_addc_u32 s{S_KV2+1}, s{S_KV+1}, 0")
    g.i(f"s_mov_b32 s{S_KV2+2}, 131072")
    g.i(f"s_mov_b32 s{S_KV2+3}, 0x20000")
    g.i(f"s_lshl_b32 s{S_LM[0][0]}, s{S_WAVE}, 11")
    g.i(f"s_add_u32 s{S_LM[0][1]}, s{S_LM[0][0]}, 16384")
    g.i(f"s_add_u32 s{S_LM[1][0]}, s{S_LM[0][0]}, {RING}")
    g.i(f"s_add_u32 s{S_LM[1][1]}, s{S_LM[0][0]}, {RING+16384}")
    for i in range(1, 8):
        g.i(f"s_cmp_gt_u32 s{S_TB}, {i-1}")
        g.i(f"s_cselect_b32 s{S_T0}, {i-1}, {i}")
        if i == 1:
            g.i(f"s_lshl_b32 s{S_T3}, s{S_T0}, 2")
            g.i(f"s_lshl_b32 s{S_MK}, 15, s{S_T3}")
        g.i(f"s_lshl_b32 s{S_T0}, s{S_T0}, 14")
        g.i(f"s_add_u32 s{S_KO[i]}, s{S_T0}, s{S_LM[0][0]}")
    g.i(f"s_lshr_b32 s{S_PG}, s{S_TB}, 1")
    g.i(f"s_min_u32 s{S_PG}, s{S_PG}, 2")
    g.i(f"s_cmp_ge_u32 s{S_WAVE}, 4")
    g.i(f"s_cselect_b32 s{S_PG}, 3, s{S_PG}")
    g.i(f"s_and_b32 s{S_F}, s{S_HP}, 7")
    g.i(f"s_lshl_b32 s{S_T0}, s{S_F}, 7")
    if g.opt.get('orot', 0):
        g.i(f"s_add_u32 s55, s{S_WAVE}, s{S_F}")
        g.i("s_and_b32 s55, s55, 3")
        g.i(f"s_and_b32 s{S_T1}, s{S_WAVE}, 4")
        g.i(f"s_or_b32 s55, s55, s{S_T1}")
        g.i("s_lshl_b32 s55, s55, 16")
    else:
        g.i(f"s_lshl_b32 s55, s{S_WAVE}, 16")
    g.i(f"s_add_u32 s55, s55, s{S_T0}")
    g.i(f"s_lshl_b32 s{S_E}, s{S_WAVE}, 13")
    g.i(f"s_add_u32 s{S_E}, s{S_E}, {L_WO}")
    g.i(f"s_and_b32 s{S_T0}, s{S_WAVE}, 3")
    g.i(f"s_lshl_b32 s{S_T0}, s{S_T0}, 1")
    g.i(f"s_lshl_b32 s{S_T1}, s{S_TB}, 3")
    g.i(f"s_add_u32 s{S_T0}, s{S_T0}, s{S_T1}")
    g.i(f"s_lshl_b32 s{S_OA}, s{S_T0}, 15")
    g.i(f"s_lshr_b32 s{S_T1}, s{S_WAVE}, 2")
    g.i(f"s_lshl_b32 s{S_T2}, s{S_HP}, 1")
    g.i(f"s_add_u32 s{S_T1}, s{S_T1}, s{S_T2}")
    g.i(f"s_lshl_b32 s{S_T2}, s{S_T1}, 10")
    g.i(f"s_add_u32 s{S_OA}, s{S_OA}, s{S_T2}")
    g.i(f"s_add_u32 s{S_OB}, s{S_OA}, 32768")
    if True:
        g.i(f"s_lshr_b32 s{S_T0}, s{S_HP}, 3")
        g.i(f"s_lshl_b32 s{S_T0}, s{S_T0}, 2")
        g.i(f"s_and_b32 s{S_T1}, s{S_WAVE}, 3")
        g.i(f"s_add_u32 s{S_T0}, s{S_T0}, s{S_T1}")
        g.i(f"s_lshl_b32 s{S_T1}, s{S_TB}, 3")
        g.i(f"s_add_u32 s{S_T0}, s{S_T0}, s{S_T1}")
        g.i(f"s_lshl_b32 s{S_T0}, s{S_T0}, 1")
        g.i(f"s_lshr_b32 s{S_T1}, s{S_WAVE}, 2")
        g.i(f"s_add_u32 s{S_T0}, s{S_T0}, s{S_T1}")
        g.i(f"s_lshl_b32 s{S_OW}, s{S_T0}, 15")
        g.i(f"s_lshl_b32 s{S_T0}, s{S_BR}, 10")
        g.i(f"s_add_u32 s{S_OW}, s{S_OW}, s{S_T0}")
        g.i(f"s_lshl_b32 s{S_T0}, s{S_F}, 7")
        g.i(f"s_add_u32 s{S_OW}, s{S_OW}, s{S_T0}")

def attention(g):
    opt = g.opt
    g.lab("L_attn")
    g.stamp(3)
    g.i(f"ds_read_b128 {vr(V_K,4)}, v{V_KA}")
    g.i(f"ds_read_b128 {vr(V_V[0],4)}, v{V_VA}")
    g.i(f"ds_read_b128 {vr(V_V[0]+4,4)}, v{V_VA} offset:512")
    if opt.get('x_em'):
        g.i("s_mov_b32 s100, 0xffff"); g.i("s_mov_b32 s101, 0xffff")
    g.i("s_setprio 3")
    g.i("s_waitcnt lgkmcnt(2)")
    g.i(f"v_mfma_f32_32x32x16_bf16 {vr(V_S[0],16)}, {vr(V_K,4)}, {vr(V_Q[0],4)}, 0")
    dry_exit(g)
    g.i("s_nop 9" if opt.get('dry', 0) else "s_nop 11")
    g.i("s_waitcnt lgkmcnt(0)")
    poll = f"buffer_load_dword v{V_F}, v{V_FA}, s[{S_FL}:{S_FL+3}], 0 offen sc1"
    side = []
    ev = {}
    def at(it, p, slot, *ins): ev.setdefault((it, p, slot), []).extend(ins)
    def kv(i, n):
        return f"buffer_load_dwordx4 v{V_L16}, {sr(S_KV2 if n >= 2 else S_KV, 4)}, s{S_KO[i]} offen offset:{1024*(n%2)}{opt.get('kvl', ' sc1')} lds"
    def check(tag, n):
        def f():
            if n is not None: g.i(f"s_waitcnt vmcnt({n})")
            g.i(f"v_cmp_ne_u32 vcc, 1, v{V_F}")
            g.i("s_nop 0")
            g.i(f"s_and_b32 vcc_lo, vcc_lo, s{S_MK}")
            g.i(f"s_cbranch_scc1 L_ol_{tag}")
            g.lab(f"L_olr_{tag}")
            side.append((tag, lambda: spin_mask(g, tag, poll)))
        return f
    def group(pg, tag, body):
        def f():
            g.i(f"s_cmp_lg_u32 s{S_PG}, {pg}")
            g.i(f"s_cbranch_scc1 L_pg_{tag}")
            body()
            g.lab(f"L_pg_{tag}")
        return f
    def flag():
        g.i(f"s_lshl_b32 s{S_T0}, s{S_TB}, 2")
        g.i(f"s_add_u32 s{S_T0}, s{S_T0}, s{S_WAVE}")
        g.i(f"s_lshl_b64 exec, 1, s{S_T0}")
        g.i("v_mov_b32 v6, 1")
        g.i(f"buffer_store_dword v6, v{V_FA}, s[{S_FL}:{S_FL+3}], 0 offen sc1")
        g.i("s_mov_b64 exec, -1")
    def stores(it, p0, pg):
        for k, (a_, b_) in enumerate(((0, 3), (3, 6), (6, 8))):
            at(it, p0 + k, 'p1', group(pg, f"s{pg}{k}", lambda a_=a_, b_=b_: [g.i(kv_store(n)) for n in range(a_, b_)]))
    def burst(i, it=None, p=None, slot=None):
        sl = i % 2
        if not opt.get('spread', 0):
            return [f"s_mov_b32 m0, s{S_LM[sl][0]}", "s_nop 0", kv(i, 0), kv(i, 1), f"s_mov_b32 m0, s{S_LM[sl][1]}", "s_nop 0", kv(i, 2), kv(i, 3)]
        seq = [(q, k) for q in range(p, 14) for k in ('p2', 'qk', 'p1')]
        seq = seq[seq.index((p, slot)) + 1:]
        at(it, *seq[0], kv(i, 1), f"s_mov_b32 m0, s{S_LM[sl][1]}")
        at(it, *seq[1], kv(i, 2))
        at(it, *seq[2], kv(i, 3))
        return [f"s_mov_b32 m0, s{S_LM[sl][0]}", "s_nop 0", kv(i, 0)]
    def count():
        g.i(f"s_cmp_lg_u32 s{S_WAVE}, 7")
        g.i("s_cbranch_scc1 L_at_nocnt")
        g.i(f"s_lshl_b32 s{S_T0}, s{S_BR}, 4")
        g.i(f"s_add_u32 s{S_T0}, s{S_T0}, s{S_HP}")
        g.i(f"s_lshl_b32 s{S_T0}, s{S_T0}, 3")
        g.i("s_mov_b64 exec, 1")
        g.i(f"v_mov_b32 v6, s{S_T0}")
        g.i("v_mov_b32 v7, 1")
        g.i(f"buffer_atomic_add v7, v6, s[{S_DBG}:{S_DBG+3}], 0 offen offset:4 sc1")
        g.i("s_mov_b64 exec, -1")
        g.lab("L_at_nocnt")
    pp, pi0, pc0, ps1, pi1, pc1, pi3, pc3 = opt.get('ev', (1, 7, 9, 1, 5, 7, 6, 8))
    at(0, pp, 'qk', group(0, "f0", lambda: (g.st('pub_pre'), g.i("s_waitcnt vmcnt(0)"), g.st('pub_ack'), flag())))
    stores(0, ps1, 1)
    at(0, pi0, 'qk', poll)
    at(0, pc0, 'qk', "s_waitcnt vmcnt(0)", group(1, "f1", flag), check("kv0", None), lambda: g.st('chk_ok'), *burst(1, 0, pc0, 'qk'),
       f"s_mov_b32 s{S_MK}, 0xffff")
    at(1, pi1, 'qk', poll)
    at(1, pc1, 'qk', check("kv1", 0), *burst(2, 1, pc1, 'qk'), f"s_mov_b32 s{S_MK}, -1")
    if opt.get('safe', 1):
        for k, (it_, p_, sl_, a_, b_) in enumerate(((1, 14, 'p1', 0, 3), (1, 15, 'p1', 3, 6), (2, 0, 'p1', 6, 8))):
            at(it_, p_, sl_, group(2, f"s2{k}", lambda a_=a_, b_=b_: [g.i(kv_store(n)) for n in range(a_, b_)]))
    else:
        stores(1, pc1 + 1 + opt.get('spread', 0), 2)
    at(2, 15, 'qk', group(2, "f2", flag))
    at(3, pi3, 'qk', poll)
    at(3, pc3, 'p2', check("kv2", 0), *burst(4, 3, pc3, 'p2'))
    late = {i: 0 for i in range(8)}
    dp = opt.get('dma', (1, 3, 5, 7))
    for i in (2, 4, 5, 6):
        sl = (i + 1) % 2
        at(i, dp[0] - 1, 'p2x', f"s_mov_b32 m0, s{S_LM[sl][0]}")
        at(i, dp[0], 'qk', kv(i + 1, 0))
        at(i, dp[1], 'qk', kv(i + 1, 1))
        at(i, dp[2], 'p2', f"s_mov_b32 m0, s{S_LM[sl][1]}")
        at(i, dp[2], 'qk', kv(i + 1, 2))
        at(i, dp[3], 'qk', kv(i + 1, 3))
    SF = opt.get('safe', 1)
    wits = (1, 3, 4, 5) if SF else (1, 2, 3, 4)
    for n, i in enumerate(wits):
        for k, p in enumerate((9, 11) if SF and i >= 4 else (11, 13)):
            at(i, p, 'p2', f"s_add_u32 m0, s{S_E}, {(2*n+k)*1024}")
            at(i, p, 'qk', f"buffer_load_dwordx4 v{V_WOA}, s[{S_WO}:{S_WO+3}], s55 offen lds")
            at(i, p, 'p1', "s_add_u32 s55, s55, 8192")
        late[i] += 2
    OW = opt.get('opw', 4 if SF else 2)
    if SF:
        for i in (OW, 5): at(i, 12, 'p1', "s_waitcnt vmcnt(2)")
    for k, so in enumerate((S_OA, S_OB)):
        at(5, 12 + k, 'p1', f"buffer_store_dwordx4 v[252:255], v{V_L16}, s[{S_O}:{S_O+3}], s{so} offen sc1")
    late[5] += 2
    if OW:
        at(OW, 12, 'p1', f"buffer_store_dwordx4 v[252:255], v{V_OW}, s[{S_OUT}:{S_OUT+3}], s{S_OW} offen sc1", f"s_add_u32 s{S_T0}, s{S_OW}, 16384")
        at(OW, 13, 'p1', f"buffer_store_dwordx4 v[252:255], v{V_OW}, s[{S_OUT}:{S_OUT+3}], s{S_T0} offen sc1")
        late[OW] += 2
    if opt.get('opr'):
        at(7, 3, 'qk', f"buffer_load_dwordx4 v[236:239], v{V_OW}, s[{S_OUT}:{S_OUT+3}], s{S_OW} offen", f"s_add_u32 s{S_T0}, s{S_OW}, 16384")
        at(7, 5, 'qk', f"buffer_load_dwordx4 v[236:239], v{V_OW}, s[{S_OUT}:{S_OUT+3}], s{S_T0} offen")
    if opt.get('early', 1):
        at(7, 3, 'qk', f"s_lshr_b32 s{S_E}, s{S_WAVE}, 2", f"s_lshr_b32 s{S_T0}, s{S_HP}, 3", f"s_lshl_b32 s{S_T0}, s{S_T0}, 2",
           f"s_and_b32 s{S_T1}, s{S_WAVE}, 3", f"s_add_u32 s{S_A}, s{S_T0}, s{S_T1}")
        at(7, 5, 'qk', f"s_lshl_b32 s{S_T0}, s{S_TB}, 3", f"s_add_u32 s{S_A}, s{S_A}, s{S_T0}", f"s_lshl_b32 s{S_B}, s{S_A}, 15",
           f"s_lshl_b32 s{S_T0}, s{S_E}, 14", f"s_add_u32 s{S_B}, s{S_B}, s{S_T0}")
        if opt.get('orot', 0):
            for k, (d, q) in enumerate(((S_A, 6), (S_C, 7), (S_D, 8), (S_IT, 9))):
                at(7, q, 'p1', f"s_add_u32 s{S_T1}, s{S_F}, {k}", f"s_and_b32 s{S_T1}, s{S_T1}, 3", f"s_lshl_b32 s{S_T1}, s{S_T1}, 12",
                   f"s_add_u32 s{d}, s{S_B}, s{S_T1}")
            at(7, 7, 'qk', f"s_lshl_b32 s{S_T0}, s{S_BR}, 7")
        else:
            at(7, 7, 'qk', f"s_mov_b32 s{S_A}, s{S_B}", f"s_add_u32 s{S_C}, s{S_B}, 4096", f"s_add_u32 s{S_D}, s{S_B}, 8192",
               f"s_add_u32 s{S_IT}, s{S_B}, 12288", f"s_lshl_b32 s{S_T0}, s{S_BR}, 7")
        at(7, 9, 'qk', "v_and_b32 v6, 15, v0", f"v_lshl_add_u32 v{V_CA}, v6, 3, s{S_T0}", f"v_lshlrev_b32 v{V_PA}, 10, v6")
        at(7, opt.get('certp', 13), 'qk', f"buffer_load_dword v236, v{V_CA}, s[{S_DBG}:{S_DBG+3}], 0 offen offset:4 sc1")
        EM = opt.get('earlym', 0)
        def early_probe():
            g.i(f"s_lshr_b32 s{S_T0}, s{S_HP}, 3")
            g.i(f"s_cmp_eq_u32 s{S_T0}, s{S_E}")
            g.i("s_cbranch_scc1 L_at_noprobe")
            g.i(f"buffer_load_dword v237, v{V_PA}, s[{S_O}:{S_O+3}], s{S_B} offen offset:1020 sc1")
            g.lab("L_at_noprobe")
        at(7, 11, 'qk', "v_mov_b32 v236, 0")
        if EM: at(7, 11, 'qk', "v_mov_b32 v237, -1")
        if EM == 1: at(7, 15, 'p1', early_probe)
        if EM == 2: at(7, 15, 'p1', f"buffer_load_dword v237, v{V_PA}, s[{S_O}:{S_O+3}], s{S_B} offen offset:1020 sc1")
    at(7, 1, 'qk', count)
    if opt.get('x_late0'): late = {i: 0 for i in range(8)}
    prio = opt.get('prio', {0: 3, 5: 2, 10: 1, 13: 0})
    for i in range(8):
        for p, v in prio.items():
            ii, q = (i, p - 1) if p else (i - 1, 15)
            if i == 7 and v == 0 and opt.get('pend', 2): continue
            if ii >= 0: at(ii, q, 'p1', f"s_setprio {v}")
    def emit(it, p, slot):
        for x in ev.pop((it, p, slot), []):
            x() if callable(x) else g.i(x)
    p2, pq, p1 = opt.get('pos', (1, 5, 10))
    for it in range(8):
        if opt.get('itst'):
            g.i("s_memtime s[98:99]")
            g.i("s_memrealtime s[100:101]")
            g.i("s_waitcnt lgkmcnt(0)")
            g.i(f"v_writelane_b32 v250, s98, {it}")
            g.i(f"v_writelane_b32 v250, s100, {it+9}") if it < 7 else None
        for p in range(2 * U):
            b, t = p % 2, p // 2
            S, So = V_S[b], V_S[1 - b]
            nt = (t + 1) % U
            sl = (it + (t == U - 1)) % 2
            VA = V_VB if sl else V_VA
            last = it == 7 and t == U - 1
            skip = last or (opt.get('x_half') and t % 2 == 0)
            for e in range(16):
                g.i(f"v_exp_f32 v{S+e}, v{S+e}")
                if e == p2:
                    tp = (p - 1) // 2
                    if it or p:
                        g.i(f"v_smfmac_f32_32x32x32_bf16 {vr(V_O[1-b],16)}, {vr(V_V[tp%2]+4,4)}, {vr(So+8,8)}, v{V_IDX}")
                    emit(it, p, 'p2x')
                    if b == 0:
                        if t == U - 1 and it < 7:
                            if it == 1 and not opt.get('safe', 1):
                                g.i(f"s_waitcnt vmcnt({late[it] + 8})")
                                g.i(f"s_cmp_eq_u32 s{S_PG}, 2")
                                g.i("s_cbranch_scc1 L_w8")
                                g.i(f"s_waitcnt vmcnt({late[it]})")
                                g.lab("L_w8")
                            else: g.i(f"s_waitcnt vmcnt({late[it]})")
                            if it == 0: g.st('chk1_ok')
                            g.i("s_barrier")
                        if not skip:
                            xm = opt.get('x_em') and (it or t)
                            if xm: g.i("s_mov_b64 exec, s[100:101]")
                            g.i(f"ds_read_b128 {vr(V_V[(t+1)%2],4)}, v{VA} offset:{nt*2048}")
                            if xm: g.i("s_mov_b64 exec, -1")
                    elif not last:
                        g.i("s_waitcnt lgkmcnt(1)")
                    emit(it, p, 'p2')
                if e == pq:
                    if not (last and b):
                        g.i(f"v_mfma_f32_32x32x16_bf16 {vr(So,16)}, {vr(V_K,4)}, {vr(V_Q[1-b],4)}, 0")
                    if b == 0 and not skip:
                        g.i(f"ds_read_b128 {vr(V_K,4)}, v{V_KA} offset:{sl*RING+nt*2048}")
                    if b == 0 and skip: g.i("s_nop 0")
                    emit(it, p, 'qk')
                if e == p1:
                    g.i(f"v_smfmac_f32_32x32x32_bf16 {vr(V_O[b],16)}, {vr(V_V[t%2],4)}, {vr(S,8)}, v{V_IDX}")
                    if b == 0 and last: pass
                    elif b == 0 and skip: pass
                    elif b == 0:
                        xm = opt.get('x_em') and (it or t)
                        if xm: g.i("s_mov_b64 exec, s[100:101]")
                        g.i(f"ds_read_b128 {vr(V_V[(t+1)%2]+4,4)}, v{VA} offset:{nt*2048+512}")
                        if xm: g.i("s_mov_b64 exec, -1")
                    elif not last:
                        g.i("s_waitcnt lgkmcnt(0)")
                    emit(it, p, 'p1')
    assert not ev, ev
    g.side = side
    g.lab("L_at_done")
    g.i("s_nop 1")
    g.i(f"v_smfmac_f32_32x32x32_bf16 {vr(V_O[1],16)}, {vr(V_V[1]+4,4)}, {vr(V_S[1]+8,8)}, v{V_IDX}")
    if opt.get('pend', 2) == 1: g.i("s_setprio 0")
    g.stamp(4)
    if opt.get('itst'):
        g.i("s_memtime s[98:99]")
        g.i("s_waitcnt lgkmcnt(0)")
        g.i(f"v_writelane_b32 v250, s98, 8")
    g.i(f"s_mov_b32 s{S_T0}, 0x2b800000")
    g.i(f"s_mov_b32 s{S_T1}, 0x53800000")
    g.i(f"s_mov_b32 s{S_T2}, 0x7f800000")
    for q in range(2):
        O = V_O[q]
        g.i(f"v_maximum3_f32 v6, abs(v{O}), abs(v{O+1}), abs(v{O+2})")
        g.i(f"v_maximum3_f32 v7, abs(v{O+3}), abs(v{O+4}), abs(v{O+5})")
        g.i(f"v_maximum3_f32 v6, v6, abs(v{O+6}), abs(v{O+7})")
        g.i(f"v_maximum3_f32 v6, v6, v7, v7")
        g.i(f"v_cmp_nle_f32 s[{S_M}:{S_M+1}], s{S_T0}, v{O+8}")
        g.i(f"v_cmp_nge_f32 s[{S_M+2}:{S_M+3}], s{S_T1}, v{O+8}")
        g.i(f"v_cmp_ngt_f32 vcc, s{S_T2}, v6")
        g.i(f"v_rcp_f32 v{V_S[0]+2*q}, v{O+8}")
        g.i(f"s_or_b64 s[{S_M}:{S_M+1}], s[{S_M}:{S_M+1}], s[{S_M+2}:{S_M+3}]")
        g.i(f"s_or_b64 s[{S_M}:{S_M+1}], s[{S_M}:{S_M+1}], vcc")
        g.i("s_branch L_fallback" if opt.get('force_fallback') else "s_cbranch_scc1 L_fallback")
    g.lab("L_at_store")
    for q in range(2):
        O = V_O[q]
        for r in range(0, 8, 2):
            g.i(f"v_pk_mul_f32 v[{O+r}:{O+r+1}], v[{O+r}:{O+r+1}], v[{V_S[0]+2*q}:{V_S[0]+2*q+1}] op_sel_hi:[1,0]")
        for r in range(4):
            g.i(f"v_cvt_pk_bf16_f32 v{O+r}, v{O+2*r}, v{O+2*r+1}")
        g.i(f"buffer_store_dwordx4 {vr(O,4)}, v{V_L16}, s[{S_O}:{S_O+3}], s{S_OB if q else S_OA} offen{opt.get('ost', ' sc1')}")

P_WO = 100
P_OF = 8
def outproj(g):
    opt = g.opt
    A0, A1 = 228, 72
    WA0, WA1, RA = 244, 245, 246
    NW = opt.get('nw', 6)
    def o_loads(fl=' sc1', rng=None):
        for s in (rng if rng is not None else range(NW)):
            so = (S_A, S_C, S_D, S_IT)[s // 4]
            g.i(f"buffer_load_dwordx4 {vr(P_OF+4*s,4)}, v{V_L16}, s[{S_O}:{S_O+3}], s{so} offen offset:{1024*(s%4)}{fl}")
    if opt.get('pend', 2) == 2: g.i("s_setprio 0")
    if opt.get('x_ack'): g.i("s_waitcnt vmcnt(0)")
    g.stamp(5)
    g.i("s_waitcnt vmcnt(2)")
    g.i("v_cmp_gt_u32 vcc, 8, v236")
    g.i(f"s_mov_b32 s{S_T3}, 0")
    if opt.get('earlym', 0):
        g.i(f"v_cmp_eq_u32 s[{S_M}:{S_M+1}], -1, v237")
        g.i("s_nop 0")
        g.i(f"s_or_b64 s[{S_M}:{S_M+1}], s[{S_M}:{S_M+1}], vcc")
    if opt.get('earlym', 0):
        g.i("s_cbranch_scc1 L_op_later")
        o_loads()
        g.lab("L_op_later")
    g.i(f"s_lshl_b32 s{S_T0}, s{S_E}, 15")
    g.i(f"s_add_u32 s{S_T0}, s{S_T0}, {L_WO}")
    g.i("v_lshrrev_b32 v6, 5, v0")
    g.i("v_bfe_u32 v7, v0, 2, 2")
    g.i("v_lshl_add_u32 v6, v6, 2, v7")
    g.i(f"v_lshl_add_u32 v6, v6, 7, s{S_T0}")
    g.i("v_bfe_u32 v7, v0, 3, 2")
    g.i("v_and_b32 v2, 1, v7")
    g.i("v_lshl_add_u32 v6, v2, 6, v6")
    g.i("v_lshrrev_b32 v7, 1, v7")
    g.i("v_lshl_add_u32 v6, v7, 5, v6")
    g.i("v_and_b32 v7, 3, v0")
    g.i(f"v_lshl_add_u32 v6, v7, 3, v6")
    g.i(f"s_lshl_b32 s{S_T0}, s{S_E}, 6")
    g.i(f"v_xor_b32 v{WA0}, s{S_T0}, v6")
    g.i(f"v_xor_b32 v{WA1}, 64, v{WA0}")
    for s in range(16):
        if s and s % 3 == 0: g.i("s_waitcnt lgkmcnt(2)")
        for f in range(2):
            for i in range(2):
                g.i(f"ds_read_b64_tr_b16 {vr(P_WO+8*s+4*f+2*i,2)}, v{WA1 if f else WA0} offset:{s*2048+i*1024}")
    g.i(f"s_lshl_b32 s{S_T0}, s{S_WAVE}, 12")
    g.i(f"v_add_u32 v{RA}, s{S_T0}, v{V_L16}")
    g.i(f"s_and_b32 s{S_T0}, s{S_WAVE}, 3")
    g.i(f"s_lshl_b32 s{S_T0}, s{S_T0}, 12")
    g.i(f"s_add_u32 s{S_T0}, s{S_T0}, {RING}")
    g.i("v_and_b32 v6, 31, v0")
    g.i(f"v_lshl_add_u32 v6, v6, 7, s{S_T0}")
    g.i("v_lshrrev_b32 v7, 5, v0")
    g.i(f"v_lshl_add_u32 v7, s{S_E}, 2, v7")
    g.i("v_and_b32 v91, 7, v0")
    g.i("v_xor_b32 v7, v7, v91")
    g.i("v_lshl_add_u32 v88, v7, 4, v6")
    g.i("v_xor_b32 v89, 32, v88")
    g.i("v_lshrrev_b32 v6, 3, v0")
    g.i("v_xor_b32 v7, v6, v91")
    g.i(f"v_lshl_add_u32 v6, v6, 7, s{S_T0}")
    g.i("v_lshl_add_u32 v6, v7, 4, v6")
    g.i(f"v_lshl_add_u32 v90, s{S_E}, 11, v6")
    g.st('t_tr')
    if opt.get('earlym', 0):
        g.i(f"s_cmp_eq_u64 s[{S_M}:{S_M+1}], 0")
        g.i("s_cbranch_scc1 L_op_mm")
    g.i("s_cbranch_vccz L_spin_o")
    g.lab("L_spin_c")
    g.i(f"buffer_load_dword v5, v{V_CA}, s[{S_DBG}:{S_DBG+3}], 0 offen offset:4 sc1")
    g.i(f"s_add_u32 s{S_T3}, s{S_T3}, 1")
    g.i(f"s_cmp_ge_u32 s{S_T3}, {SPIN_MAX}")
    g.i("s_cbranch_scc1 L_spin_o")
    g.i("s_waitcnt vmcnt(0)")
    g.i("v_cmp_gt_u32 vcc, 8, v5")
    g.i("s_cbranch_vccnz L_spin_c")
    g.lab("L_spin_o")
    g.i(f"buffer_load_dword v3, v{V_PA}, s[{S_O}:{S_O+3}], s{S_B} offen offset:1020{opt.get('pfl', ' sc1')}")
    g.i(f"s_add_u32 s{S_T3}, s{S_T3}, 1")
    g.i(f"s_cmp_ge_u32 s{S_T3}, {SPIN_MAX}")
    g.i("s_cbranch_scc1 L_spun_o")
    g.i("s_waitcnt vmcnt(0)")
    g.i("v_cmp_eq_u32 vcc, -1, v3")
    if opt.get('sleep'): g.i(f"s_cbranch_vccz L_spun_o"); g.i(f"s_sleep {opt['sleep']}"); g.i("s_branch L_spin_o")
    g.i("s_cbranch_vccnz L_spin_o")
    g.lab("L_spun_o")
    g.st('t_ok')
    if 'ofl' in opt:
        g.i(f"s_cmp_lg_u32 s{S_PG}, 99")
        g.i(f"s_mov_b32 s{S_PG}, 99")
        g.i("s_cbranch_scc1 L_op_first")
        o_loads()
        g.i("s_branch L_op_mm")
        g.lab("L_op_first")
        o_loads(opt['ofl'])
    else:
        o_loads()
    g.lab("L_op_mm")
    g.stamp(6)
    g.i("v_mov_b32 v3, 0")
    g.i("s_waitcnt lgkmcnt(0)")
    for s in range(16):
        g.i(f"s_waitcnt vmcnt({min(NW - 1, 15 - s)})")
        if s + NW < 16: o_loads(rng=[s + NW])
        if s == 0: g.st('t_f0')
        if s == 15: g.st('t_f15')
        for f, A in ((1, A1), (0, A0)):
            g.i(f"v_mfma_f32_32x32x16_bf16 {vr(A,16)}, {vr(P_WO+8*s+4*f,4)}, {vr(P_OF+4*s,4)}, {vr(A,16) if s else 0}")
            g.i(f"v_max3_u32 v3, v3, v{P_OF+4*s+2*f}, v{P_OF+4*s+2*f+1}")
    g.i("v_cmp_eq_u32 vcc, -1, v3")
    g.i(f"s_cmp_ge_u32 s{S_T3}, {SPIN_MAX}")
    g.i("s_cbranch_scc1 L_op_go")
    g.i("s_cbranch_vccnz L_spin_o")
    g.lab("L_op_go")
    g.i("s_nop 5")
    for r in range(4):
        g.i(f"ds_write_b128 v{RA}, {vr(A1+4*r,4)} offset:{1024*r}")
    g.i("s_waitcnt lgkmcnt(0)")
    g.i(f"v_xor_b32 v{RA}, 16384, v{RA}")
    g.st('t_b9a')
    barrier_unless_dry(g, "b9")
    g.st('t_b9')
    for r in range(4):
        g.i(f"ds_read_b128 {vr(P_OF+4*r,4)}, v{RA} offset:{1024*r}")
    for r in range(4):
        g.i(f"s_waitcnt lgkmcnt({3-r})")
        for k in range(4):
            g.i(f"v_add_f32 v{A0+4*r+k}, v{A0+4*r+k}, v{P_OF+4*r+k}")
        for k in range(2):
            g.i(f"v_cvt_pk_bf16_f32 v{24+2*r+k}, v{A0+4*r+2*k}, v{A0+4*r+2*k+1}")
        if r % 2:
            g.i("s_nop 1")
            g.i(f"v_permlane32_swap_b32 v{24+2*r-2}, v{24+2*r}")
            g.i(f"v_permlane32_swap_b32 v{24+2*r-1}, v{24+2*r+1}")
            g.i(f"ds_write_b128 v{88+r//2}, {vr(24+2*r-2,4)}")
    if True:
        g.i(f"s_add_u32 s{S_T0}, s{S_OW}, 16384")
        g.i("s_waitcnt lgkmcnt(0)")
        barrier_unless_dry(g, "b10")
        g.i("ds_read_b128 v[24:27], v90")
        g.i("ds_read_b128 v[28:31], v90 offset:1024")
        g.i("s_waitcnt lgkmcnt(1)")
        g.i(f"buffer_store_dwordx4 v[24:27], v{V_OW}, s[{S_OUT}:{S_OUT+3}], s{S_OW} offen{opt.get('outs','')}")
        g.i("s_waitcnt lgkmcnt(0)")
        g.i(f"buffer_store_dwordx4 v[28:31], v{V_OW}, s[{S_OUT}:{S_OUT+3}], s{S_T0} offen{opt.get('outs','')}")
    dry_exit(g)
    if g.diag:
        g.i("s_waitcnt vmcnt(0)")
        g.stamp(7)
        g.i("s_waitcnt lgkmcnt(0)")
        if g.diag == 3:
            a_, b_, K = opt['leak']
            if opt.get('leakw'):
                g.i(f"s_cmp_lt_u32 s{S_WAVE}, 4")
                g.i("s_cbranch_scc1 L_end")
            elif a_ in (1, 2) or b_ in (1, 2):
                g.i(f"s_cmp_ge_u32 s{S_WAVE}, 4")
                g.i("s_cbranch_scc1 L_end")
            if opt.get('leakc'):
                g.i(f"s_sub_u32 s{S_T0}, s{64+4*b_}, s{64+4*a_}")
                g.i(f"s_lshr_b32 s{S_T0}, s{S_T0}, 4")
            else:
                g.i(f"s_sub_u32 s{S_T0}, s{66+4*b_}, s{66+4*a_}")
            g.i(f"s_mul_i32 s{S_T0}, s{S_T0}, {K}")
            g.lab("L_leak")
            g.i("s_memrealtime s[98:99]")
            g.i("s_waitcnt lgkmcnt(0)")
            g.i(f"s_sub_u32 s{S_T1}, s98, s{66+4*7}")
            g.i(f"s_cmp_lt_u32 s{S_T1}, s{S_T0}")
            g.i("s_cbranch_scc1 L_leak")
            g.i("s_endpgm")
        if g.diag == 2:
            g.i(f"s_cmp_ge_u32 s{S_WAVE}, 4")
            g.i("s_cbranch_scc1 L_end")
            g.i("s_mov_b64 exec, 1")
            for k in range(1, 8):
                g.i(f"s_sub_u32 s{S_T0}, s{66+4*k}, s66")
                g.i(f"v_mov_b32 v6, s{S_T0}")
                g.i(f"v_mov_b32 v7, {8*k+4}")
                g.i(f"buffer_atomic_umax v6, v7, s[{S_DBG}:{S_DBG+3}], 0 offen sc1")
            g.i(f"s_sub_u32 s{S_T0}, s{64+4*4}, s{64+4*3}")
            g.i(f"v_mov_b32 v6, s{S_T0}")
            g.i(f"v_mov_b32 v7, 4")
            g.i(f"buffer_atomic_umax v6, v7, s[{S_DBG}:{S_DBG+3}], 0 offen sc1")
            g.i("s_endpgm")
        g.i(f"s_lshl_b32 s{S_T0}, s2, 3")
        g.i(f"s_add_u32 s{S_T0}, s{S_T0}, s{S_WAVE}")
        g.i(f"s_lshl_b32 s{S_T0}, s{S_T0}, 7")
        g.i(f"s_add_u32 s{S_T0}, s{S_T0}, {WS_STAMP}")
        srd(g.a, S_X, 96, 128, f"s{S_T0}")
        for k in range(32):
            g.i(f"v_mov_b32 v{36+k}, s{64+k}")
        g.i("v_mov_b32 v6, 0")
        for k in range(8):
            g.i(f"buffer_store_dwordx4 {vr(36+4*k,4)}, v6, s[{S_X}:{S_X+3}], 0 offen offset:{16*k}")
        if opt.get('itst'):
            g.i(f"s_add_u32 s{S_T0}, s{S_T0}, {1<<20}")
            srd(g.a, S_X, 96, 64, f"s{S_T0}")
            g.i("v_lshlrev_b32 v6, 2, v0")
            g.i(f"buffer_store_dword v250, v6, s[{S_X}:{S_X+3}], 0 offen")
    g.lab("L_end")
    g.i("s_endpgm")

def fallback(g):
    C = [100, 116]; M = [132, 133]; GV = 134
    g.lab("L_fallback")
    g.i(f"s_lshr_b32 s{S_T0}, s{S_WAVE}, 2")
    g.i(f"s_lshl_b32 s{S_T0}, s{S_T0}, 17")
    g.i(f"v_mov_b32 v{M[0]}, 0xff800000")
    g.i(f"v_mov_b32 v{M[1]}, 0xff800000")
    g.i(f"s_mov_b32 s{S_T1}, s{S_T0}")
    g.i(f"s_add_u32 s{S_T2}, s{S_T0}, 131072")
    g.lab("L_fb_max")
    g.i(f"buffer_load_dwordx4 {vr(V_K,4)}, v{V_L16}, s[{S_KV}:{S_KV+3}], s{S_T1} offen sc1")
    g.i(f"s_add_u32 s{S_T1}, s{S_T1}, 2048")
    g.i("s_waitcnt vmcnt(0)")
    for q in range(2):
        g.i(f"v_mfma_f32_32x32x16_bf16 {vr(V_S[q],16)}, {vr(V_K,4)}, {vr(V_Q[q],4)}, 0")
    g.i("s_nop 15")
    for q in range(2):
        for r in range(0, 16, 2):
            g.i(f"v_max3_f32 v{M[q]}, v{M[q]}, v{V_S[q]+r}, v{V_S[q]+r+1}")
    g.i(f"s_cmp_lt_u32 s{S_T1}, s{S_T2}")
    g.i("s_cbranch_scc1 L_fb_max")
    for q in range(2):
        g.i(f"v_mov_b32 v6, v{M[q]}")
        g.i(f"v_mov_b32 v7, v{M[q]}")
        g.i("s_nop 1")
        g.i("v_permlane32_swap_b32 v6, v7")
        g.i("s_nop 1")
        g.i("v_max_f32 v6, v6, v7")
        for r in range(16):
            g.i(f"v_sub_f32 v{C[q]+r}, 0, v6")
            g.i(f"v_mov_b32 v{V_O[q]+r}, 0")
    g.i("v_and_b32 v6, 15, v0")
    g.i("v_lshlrev_b32 v6, 4, v6")
    g.i("v_lshrrev_b32 v7, 5, v0")
    g.i(f"v_lshl_add_u32 v{GV}, v7, 8, v6")
    for r in range(8):
        g.i(f"v_mov_b32 v{V_V[0]+r}, 0x3f803f80")
    g.i(f"s_mov_b32 s{S_T1}, s{S_T0}")
    g.i(f"s_mov_b32 s{S_M}, 0xffff")
    g.i(f"s_mov_b32 s{S_M+1}, 0xffff")
    g.lab("L_fb_pv")
    g.i(f"buffer_load_dwordx4 {vr(V_K,4)}, v{V_L16}, s[{S_KV}:{S_KV+3}], s{S_T1} offen sc1")
    g.i(f"s_mov_b64 exec, s[{S_M}:{S_M+1}]")
    g.i(f"buffer_load_dwordx4 {vr(V_V[0],4)}, v{GV}, s[{S_KV}:{S_KV+3}], s{S_T1} offen offset:1024 sc1")
    g.i(f"buffer_load_dwordx4 {vr(V_V[0]+4,4)}, v{GV}, s[{S_KV}:{S_KV+3}], s{S_T1} offen offset:1536 sc1")
    g.i("s_mov_b64 exec, -1")
    g.i(f"s_add_u32 s{S_T1}, s{S_T1}, 2048")
    g.i("s_waitcnt vmcnt(0)")
    for q in range(2):
        g.i(f"v_mfma_f32_32x32x16_bf16 {vr(V_S[q],16)}, {vr(V_K,4)}, {vr(V_Q[q],4)}, {vr(C[q],16)}")
    g.i("s_nop 15")
    for q in range(2):
        for r in range(16):
            g.i(f"v_exp_f32 v{V_S[q]+r}, v{V_S[q]+r}")
    g.i("s_nop 3")
    for q in range(2):
        for h in range(2):
            g.i(f"v_smfmac_f32_32x32x32_bf16 {vr(V_O[q],16)}, {vr(V_V[0]+4*h,4)}, {vr(V_S[q]+8*h,8)}, v{V_IDX}")
    g.i("s_nop 15")
    g.i(f"s_cmp_lt_u32 s{S_T1}, s{S_T2}")
    g.i("s_cbranch_scc1 L_fb_pv")
    for q in range(2):
        g.i(f"v_rcp_f32 v{V_S[0]+2*q}, v{V_O[q]+8}")
    g.i("s_nop 1")
    g.i("s_branch L_at_store")

HEADER = open('cdna_kernels/' + NAME + '.s.ref').read().split('; Override launch')[0]

DOC = """;
; One persistent launch, 256 workgroups (one per CU) x 8 waves.  Workgroup = (branch, head pair hp, block tb of 256 tokens).
;  1. QKV projection of the 256 tokens x 96 columns (q,k,v of the two heads).  Waves 4-7 stream x and wqkv into a 3-slot
;     O^T += [V^T; 1] P^T with v_smfmac_f32_32x32x32_bf16 whose 2:4 index picks the upper halves of the fp32 p registers
;     (bf16 p without a pack instruction; the row of ones gives the softmax denominator from the same p).
;     first filled with an all-ones pattern, a consumer accepts a fragment when no word holds the pattern any more.
; Generated by a Python script (register maps and schedules are spelled out below)."""

def generate(opt={}):
    global WS_KV, WS_O, WS_FLAG, KVT
    KVT = 132 if opt.get('peel', 1) else 204
    off = opt.get('wsoff', 0) << 20
    WS_KV, WS_O, WS_FLAG = (4 << 20) + off, (12 << 20) + off, (16 << 20) + off
    g = G(opt)
    name = NAME + "_kernel"
    g.a(HEADER.rstrip())
    g.a(f"; @launch grid=(256,1,1) block=(512,1,1) lds={LDS_TOTAL}")
    g.a(DOC)
    g.a('.amdgcn_target "amdgcn-amd-amdhsa--gfx950"')
    entry(g, name)
    if opt.get('lfirst', 1): loader(g)
    compute(g)
    attention(g)
    outproj(g)
    if not opt.get('lfirst', 1): loader(g)
    g.lab("L_code_end")
    for tag, body in g.side:
        g.lab(f"L_ol_{tag}")
        body()
        g.i(f"s_branch L_olr_{tag}")
    fallback(g)
    kernel_desc(g.a, name, NVGPR, 256, 102)
    return g.a.text()

if __name__ == "__main__":
    import sys
    opt = eval(sys.argv[2]) if len(sys.argv) > 2 else {}
    open(sys.argv[1], 'w').write(generate(opt))
```
